```python
import torch

def _softmax(x, axis=-1):
    return torch.softmax(x, dim=axis)
def _gelu(x):
    return torch.nn.functional.gelu(x, approximate="tanh")
def _silu(x):
    return torch.nn.functional.silu(x)
def _sigmoid(x):
    return torch.sigmoid(x)
def _layernorm(x, axis=-1, eps=1e-5):
    m = x.mean(dim=axis, keepdim=True)
    v = x.var(dim=axis, keepdim=True, unbiased=False)
    return (x - m) / torch.sqrt(v + eps)
def _scatter_add(tgt, idx, src, axis=0):
    return tgt.clone().index_add_(axis, idx, src)
def _segment_sum(src, seg, n):
    out = torch.zeros((n,) + src.shape[1:], dtype=src.dtype)
    return out.index_add_(0, seg, src)
def _pad(x, pw):
    flat = tuple(v for pair in reversed(pw) for v in pair)
    return torch.nn.functional.pad(x, flat)

kernel_name = 'sequential_preLN__spectral_fnet__dense_activation_squared_relu__prompt'

def setup_inputs():

    _w = (lambda a: (lambda t: t.to(torch.bfloat16) if t.is_floating_point() else t)(torch.as_tensor(a)))
    def _A_setup():
        B, S, D = 1, 2048, 1024
        ns = torch.arange(S)[:, None] * torch.arange(S)[None, :]
        nd = torch.arange(D)[:, None] * torch.arange(D)[None, :]
        Ws_re = torch.cos(-2.0 * torch.pi * ns / S).to(float)
        Ws_im = torch.sin(-2.0 * torch.pi * ns / S).to(float)
        Wd_re = torch.cos(-2.0 * torch.pi * nd / D).to(float)
        Wd_im = torch.sin(-2.0 * torch.pi * nd / D).to(float)
        return {
            "x": _w((lambda *s: torch.randn(*s, dtype=torch.bfloat16) * 0.05)(B, S, D)),
            "dft_seq_re": _w(Ws_re),
            "dft_seq_im": _w(Ws_im),
            "dft_hid_re": _w(Wd_re),
            "dft_hid_im": _w(Wd_im),
        }
    _A_in = _A_setup()

    def _B_setup():
        B, S, D, F = 1, 2048, 1024, 3584
        return {
            "x": _w((lambda *s: torch.randn(*s, dtype=torch.bfloat16) * 0.05)(B, S, D)),
            "w1": _w((lambda *s: torch.randn(*s, dtype=torch.bfloat16) * 0.2)(D, F)),
            "b1": _w((lambda *s: torch.randn(*s, dtype=torch.bfloat16) * 0.2)(F)),
            "w2": _w((lambda *s: torch.randn(*s, dtype=torch.bfloat16) * 0.2)(F, D)),
            "b2": _w((lambda *s: torch.randn(*s, dtype=torch.bfloat16) * 0.2)(D)),
        }
    _B_in = _B_setup()

    return {
        "A_x": _A_in["x"],
        "A_dft_seq_re": _A_in["dft_seq_re"],
        "A_dft_seq_im": _A_in["dft_seq_im"],
        "A_dft_hid_re": _A_in["dft_hid_re"],
        "A_dft_hid_im": _A_in["dft_hid_im"],
        "B_x": _B_in["x"],
        "B_w1": _B_in["w1"],
        "B_b1": _B_in["b1"],
        "B_w2": _B_in["w2"],
        "B_b2": _B_in["b2"],
    }

def reference(A_x, A_dft_seq_re, A_dft_seq_im, A_dft_hid_re, A_dft_hid_im, B_x, B_w1, B_b1, B_w2, B_b2):
    def _A_ref(x, dft_seq_re, dft_seq_im, dft_hid_re, dft_hid_im):
        a = torch.einsum("bsd,ed->bse", x, dft_hid_re)
        b = torch.einsum("bsd,ed->bse", x, dft_hid_im)
        y = torch.einsum("ts,bse->bte", dft_seq_re, a) - torch.einsum("ts,bse->bte", dft_seq_im, b)
        return y

    def _B_ref(x, w1, b1, w2, b2):
        h = torch.einsum("bsd,df->bsf", x, w1) + b1
        zero = torch.zeros_like(h)
        r = torch.where(h > zero, h, zero)
        h = r * r
        out = torch.einsum("bsf,fd->bsd", h, w2) + b2
        return out

    x = A_x
    h = x + _A_ref(_layernorm(x, axis=-1), A_dft_seq_re, A_dft_seq_im, A_dft_hid_re, A_dft_hid_im)
    h2 = h + _B_ref(_layernorm(h, axis=-1), B_w1, B_b1, B_w2, B_b2)
    return h2
```

```python
import re

REG_RE = re.compile(r'\b([vas])\[(\d+):(\d+)\]|\b([vas])(\d+)\b|\b(vcc|exec|m0|scc)\b')

def regs_of(tok):
    out = set()
    for m in REG_RE.finditer(tok):
        if m.group(1):
            for i in range(int(m.group(2)), int(m.group(3)) + 1):
                out.add(m.group(1) + str(i))
        elif m.group(4):
            out.add(m.group(4) + m.group(5))
        else:
            out.add(m.group(6))
    return out

TRANS = ('v_exp_f32', 'v_log_f32', 'v_rcp_f32', 'v_rsq_f32', 'v_sqrt_f32', 'v_sin_f32', 'v_cos_f32')

def split_ops(s):
    ops, depth, cur = [], 0, ''
    for ch in s:
        if ch == '[': depth += 1
        if ch == ']': depth -= 1
        if ch == ',' and depth == 0:
            ops.append(cur.strip()); cur = ''
        else:
            cur += ch
    if cur.strip(): ops.append(cur.strip())
    return ops

class Ins:
    def __init__(self, text):
        self.text = text
        t = text.split(';')[0].strip()
        self.is_label = t.endswith(':')
        self.is_dir = t.startswith('.') and not self.is_label
        self.empty = (t == '')
        self.op = ''
        self.w = set(); self.r = set()
        self.kind = 'other'
        self.passes = 0
        self.srcc = set(); self.srcab = set(); self.dpp = False; self.dppsrc = set()
        self.store_data = set(); self.wide = False
        if self.is_label or self.is_dir or self.empty: return
        parts = t.split(None, 1)
        self.op = op = parts[0]
        rest = parts[1] if len(parts) > 1 else ''
        ops = split_ops(rest)
        def R(i): return regs_of(ops[i].split(' ')[0] if not ops[i].startswith(('abs', '-', '|')) else ops[i]) if i < len(ops) else set()
        if op.startswith('v_mfma'):
            self.kind = 'mfma'
            self.passes = 8 if '32x32x16' in op else 4
            self.w = R(0); self.srcab = R(1) | R(2); self.srcc = R(3)
            self.r = self.srcab | self.srcc
        elif op.startswith('v_'):
            self.kind = 'valu'
            if op.startswith('v_cmp'):
                self.w = R(0); self.r = set().union(*[R(i) for i in range(1, len(ops))])
                if op.startswith('v_cmpx'): self.w.add('exec')
            elif op.startswith(('v_permlane16_swap', 'v_permlane32_swap')):
                self.w = R(0) | R(1); self.r = R(0) | R(1)
            elif op.startswith(('v_add_co', 'v_sub_co', 'v_addc_co', 'v_subb_co')):
                self.w = R(0) | R(1); self.r = set().union(*[R(i) for i in range(2, len(ops))])
            else:
                self.w = R(0)
                self.r = set().union(*[R(i) for i in range(1, len(ops))]) if len(ops) > 1 else set()
                if op.startswith(('v_fmac', 'v_dot2c', 'v_writelane', 'v_pk_fmac')): self.r |= R(0)
            if '_dpp' in op or 'row_' in rest or 'quad_perm' in rest:
                self.dpp = True; self.dppsrc = R(1)
                self.r |= R(0)
        elif op.startswith('ds_'):
            self.kind = 'ds'
            if op.startswith(('ds_read', 'ds_bpermute', 'ds_permute', 'ds_swizzle')):
                self.w = R(0); self.r = set().union(*[R(i) for i in range(1, len(ops))])
            else:
                self.r = set().union(*[R(i) for i in range(len(ops))])
        elif op.startswith(('buffer_', 'global_')):
            self.kind = 'vmem'
            lds = bool(re.search(r'\blds\b', rest)) or 'load_lds' in op
            if op in ('buffer_wbl2', 'buffer_inv'):
                pass
            elif 'load' in op and not lds:
                self.w = R(0); self.r = set().union(*[R(i) for i in range(1, len(ops))])
            elif lds:
                self.r = set().union(*[R(i) for i in range(len(ops))]) | {'m0'}
                self.kind = 'vmem_lds'
            else:
                self.r = set().union(*[R(i) for i in range(len(ops))])
                d = R(1) if op.startswith('global_') else R(0)
                if 'atomic' in op and re.search(r'\bsc0\b', rest): self.w = R(0)
                if op.endswith(('x3', 'x4')): self.store_data = d; self.wide = True
        elif op.startswith('s_'):
            self.kind = 'salu'
            if op in ('s_nop', 's_waitcnt', 's_barrier', 's_endpgm', 's_setprio', 's_sleep', 's_branch') or op.startswith('s_cbranch'):
                self.kind = 'ctl'
            elif op.startswith('s_cmp'):
                self.r = set().union(*[R(i) for i in range(len(ops))])
            elif op.startswith(('s_load', 's_buffer_load', 's_memtime', 's_memrealtime')):
                self.kind = 'smem'; self.w = R(0); self.r = set().union(*[R(i) for i in range(1, len(ops))]) if len(ops) > 1 else set()
            else:
                self.w = R(0); self.r = set().union(*[R(i) for i in range(1, len(ops))]) if len(ops) > 1 else set()
                if 'saveexec' in op: self.w.add('exec')
    def states(self):
        if self.is_label or self.is_dir or self.empty: return 0
        if self.op == 's_nop': return int(self.text.split(';')[0].split()[1], 0) + 1
        return 1

def need(p, c):
    n = 0
    vw = {x for x in p.w if x[0] in 'va' and x not in ('vcc',)}
    sw = {x for x in p.w if x[0] == 's' or x in ('vcc',)}
    if p.kind == 'valu':
        if c.kind == 'mfma' and vw & c.r: n = max(n, 2)
        if c.kind == 'valu':
            if c.op.startswith(('v_readlane', 'v_readfirstlane')) and vw & c.r: n = max(n, 1)
            if c.dpp and vw & c.dppsrc: n = max(n, 2)
            if c.op.startswith('v_permlane') and vw & c.r: n = max(n, 2)
            if p.op.startswith(TRANS) and vw & c.r and not c.op.startswith(TRANS): n = max(n, 1)
            if ('sdwa' in p.op or 'op_sel:' in p.text) and vw & (c.r | c.w): n = max(n, 1)
            if sw & c.r:
                n = max(n, 4 if c.op.startswith(('v_readlane', 'v_writelane')) else 2)
            if 'exec' in p.w:
                if c.dpp: n = max(n, 5)
                if c.op.startswith(('v_readlane', 'v_readfirstlane', 'v_writelane', 'v_permlane')): n = max(n, 4)
        if c.kind == 'mfma' and 'exec' in p.w: n = max(n, 4)
        if c.kind in ('vmem', 'vmem_lds') and sw & c.r: n = max(n, 5)
        if c.kind in ('salu', 'smem') and sw & c.r: n = max(n, 1)
    if p.kind == 'mfma':
        d = p.w
        big = 8 if p.passes == 4 else 12
        if c.kind == 'mfma':
            if d & c.srcab: n = max(n, big)
            if d & c.srcc and not (d == c.srcc and p.passes == c.passes): n = max(n, big - 2)
            if d & c.w and not (d == c.srcc): n = max(n, big - 2)
        elif c.kind in ('valu', 'ds', 'vmem', 'vmem_lds'):
            if d & (c.r | c.w): n = max(n, big)
        if c.kind == 'valu' and p.srcc & c.w: n = max(n, 3 if p.passes == 4 else 7)
    if p.kind == 'salu' and 'm0' in p.w and c.kind == 'vmem_lds': n = max(n, 1)
    if p.wide and p.store_data & c.w: n = max(n, 2)
    return n

class Asm:
    def __init__(self):
        self.lines = []
    def __call__(self, s, *a):
        for l in s.split('\n'):
            self.lines.append(l.strip() if not l.strip().endswith(':') else l.strip())
    def label(self, n): self.lines.append(n + ':')
    def c(self, s): self.lines.append('; ' + s)
    def padded(self, window=24):
        out = []
        hist = []
        npad = 0
        for l in self.lines:
            ins = Ins(l)
            if not (ins.is_label or ins.is_dir or ins.empty):
                dist = 0; req = 0
                for p in reversed(hist):
                    n = need(p, ins)
                    if n - dist > req: req = n - dist
                    dist += p.states()
                    if dist > window: break
                while req > 0:
                    k = min(req, 16)
                    nop = Ins('s_nop %d' % (k - 1)); out.append(nop.text); hist.append(nop); req -= k; npad += 1
                hist.append(ins)
                if ins.op in ('s_endpgm', 's_branch'): hist = []
            out.append(l)
        return out
    def text(self):
        res = []
        for l in self.padded():
            if l.endswith(':') or l.startswith('.') or l.startswith(';'): res.append(l)
            else: res.append('    ' + l)
        return '\n'.join(res) + '\n'

def vr(b, n=1):
    return 'v%d' % b if n == 1 else 'v[%d:%d]' % (b, b + n - 1)
def sr(b, n=1):
    return 's%d' % b if n == 1 else 's[%d:%d]' % (b, b + n - 1)
```

```python
from asmlib import *
NAME = 'sequential_preLN__spectral_fnet__dense_activation_squared_relu__prompt'
MB = 1 << 20
U_OFF = 0
HF_OFF = 8 * MB
G_OFF = 12 * MB
ST_OFF = 27 * MB
CSP_OFF = 27 * MB + 256 * 1024
WX_OFF = 27 * MB + 512 * 1024
R2_OFF = 27 * MB + 768 * 1024
KA = dict(x=0, w1=48, b1=56, w2=64, b2=72, out=80, dbg=88, ws=96)

def srd(A, s, base, off, size):
    if off == 0:
        A(f's_mov_b32 s{s}, s{base}')
        A(f's_mov_b32 s{s+1}, s{base+1}')
    else:
        A(f's_add_u32 s{s}, s{base}, {off}')
        A(f's_addc_u32 s{s+1}, s{base+1}, 0')
    A(f's_mov_b32 s{s+2}, {size}')
    A(f's_mov_b32 s{s+3}, 0x20000')

def kdesc(name, vgpr, sgpr=100):
    acc = (vgpr + 3) // 4 * 4
    return f'''.amdhsa_kernel {name}
  .amdhsa_next_free_vgpr {vgpr}
  .amdhsa_next_free_sgpr {sgpr}
  .amdhsa_accum_offset {acc}
  .amdhsa_group_segment_fixed_size 0
  .amdhsa_kernarg_size 104
  .amdhsa_user_sgpr_count 2
  .amdhsa_user_sgpr_kernarg_segment_ptr 1
  .amdhsa_system_sgpr_workgroup_id_x 1
  .amdhsa_float_denorm_mode_32 3
.end_amdhsa_kernel
'''

def khead(A, name):
    A(f'.globl {name}')
    A('.p2align 8')
    A(f'.type {name},@function')
    A.label(name)

def mfma(A, d, a, b, c=None):
    cs = vr(d, 4) if c is None else (c if isinstance(c, str) else vr(c, 4))
    A(f'v_mfma_f32_16x16x32_bf16 {vr(d,4)}, {vr(a,4)}, {vr(b,4)}, {cs}')

def ln_finish(A, vS, vQ, vM, vSig, vT, sTmp):
    A(f's_mov_b32 s{sTmp}, 0x3a800000')
    A(f'v_mul_f32 v{vM}, s{sTmp}, v{vS}')
    A(f'v_mul_f32 v{vT}, s{sTmp}, v{vQ}')
    A(f'v_fma_f32 v{vT}, -v{vM}, v{vM}, v{vT}')
    A(f'v_max_f32 v{vT}, 0, v{vT}')
    A(f'v_cvt_pk_bf16_f32 v{vT}, v{vT}, v{vM}')
    A(f'v_and_b32 v{vM}, 0xffff0000, v{vT}')
    A(f'v_lshlrev_b32 v{vT}, 16, v{vT}')
    A(f'v_add_f32 v{vT}, 0x3727c5ac, v{vT}')
    A(f'v_cvt_pk_bf16_f32 v{vT}, v{vT}, v{vT}')
    A(f'v_lshlrev_b32 v{vT}, 16, v{vT}')
    A(f'v_sqrt_f32 v{vT}, v{vT}')
    A(f'v_cvt_pk_bf16_f32 v{vT}, v{vT}, v{vT}')
    A(f'v_lshlrev_b32 v{vSig}, 16, v{vT}')

TS_OFF = 28 * MB
class Stamper:
    def __init__(self, A, on, kidx, wsreg=4):
        self.A, self.on, self.kidx, self.ws = A, on, kidx, wsreg
    def __call__(self, i, real=False):
        if self.on: self.A(f'{"s_memrealtime" if real or self.on == 3 else "s_memtime"} s[{70+2*i}:{71+2*i}]')
    def dump(self, n, role, vt=2):
        if not self.on: return
        A = self.A
        A('s_waitcnt lgkmcnt(0)')
        if self.on == 2:
            A('s_load_dwordx2 s[96:97], s[0:1], 88')
            A('s_waitcnt lgkmcnt(0)')
            A(f's_add_u32 s96, s96, {(3-self.kidx)*512}')
            A('s_addc_u32 s97, s97, 0')
            A('s_cmp_eq_u32 s2, 0')
            A('s_cselect_b32 s98, 256, 0')
            A('s_mov_b32 s99, 0x20000')
            A('s_sub_u32 s69, s80, s70')
            A('s_sub_u32 s68, s74, s70')
            A(f'v_mov_b32 v{vt}, s84')
            A(f'v_mov_b32 v{vt+1}, s82')
            A(f'v_mov_b32 v{vt+2}, s69')
            A(f'v_mov_b32 v{vt+3}, s68')
            A(f'v_mov_b32 v0, 0')
            A(f'buffer_store_dwordx4 v[{vt}:{vt+3}], v0, s[96:99], 0 offen offset:{self.kidx*16}')
            return
        A(f's_add_u32 s96, s{self.ws}, {TS_OFF + self.kidx*65536 + role*128}')
        A(f's_addc_u32 s97, s{self.ws+1}, 0')
        A('s_mov_b32 s98, 65536')
        A('s_mov_b32 s99, 0x20000')
        A(f's_lshl_b32 s69, s2, 8')
        for i in range(n):
            A(f'v_mov_b32 v{vt}, s{70+2*i}')
            A(f'v_mov_b32 v{vt+1}, s{71+2*i}')
            A(f'v_mov_b32 v{vt+2}, 0')
            A(f'buffer_store_dwordx2 v[{vt}:{vt+1}], v{vt+2}, s[96:99], s69 offen offset:{8*i}')
            A('s_nop 1')

E_OFF = 4 * MB + 512 * 1024
MX_OFF = 27 * MB + 256 * 1024
MU_OFF = 27 * MB + 512 * 1024

def line_touch(A, vdst, vtmp, srdn, base, first_byte, first_thread, stmp):
    srd(A, srdn, base, first_byte, 256 * 14336)
    A(f'v_subrev_u32 v{vtmp}, {first_thread}, v0')
    A(f'v_cmp_gt_u32 vcc, 112, v{vtmp}')
    A(f'v_lshlrev_b32 v{vtmp}, 7, v{vtmp}')
    A(f'v_cndmask_b32 v{vtmp}, 4.0, v{vtmp}, vcc')
    A(f's_mul_i32 s{stmp}, s2, 14336')
    A(f'buffer_load_dword v{vdst}, v{vtmp}, s[{srdn}:{srdn+3}], s{stmp} offen')

WC_OFF = 64 * MB
WH_OFF = 80 * MB
```

```python
from common import *

XP = 2080; NP = 80; ZP = 1312
ZB = 16 * XP
RB = ZB + 16 * ZP
FA_LDS = RB + 64

def gen_fa(A, name='fa_kernel', opt=None):
    opt = opt or {}
    smod = opt.get('smod', 'sc1'); xmod = opt.get('xmod', '')
    khead(A, name)
    st = Stamper(A, opt.get('stamp'), 0)
    st(0); st(7, True)
    A('s_cmp_ge_u32 s2, 256')
    A(f's_cbranch_scc1 {name}_end')
    A('s_load_dwordx2 s[6:7], s[0:1], %d' % KA['x'])
    A('s_load_dwordx2 s[4:5], s[0:1], %d' % KA['ws'])
    A('s_load_dwordx2 s[8:9], s[0:1], %d' % KA['w1'])
    if opt.get('cpf', 1):
        A('s_getpc_b64 s[36:37]')
        A(f's_mov_b32 s38, CODE_END-{name}-64')
        A('s_mov_b32 s39, 0x20000')
        A('v_lshlrev_b32 v4, 7, v0')
        A('buffer_load_dword v88, v4, s[36:39], 0 offen')
    A('v_lshrrev_b32 v2, 6, v0')
    A('v_and_b32 v1, 63, v0')
    A('s_and_b32 s13, s2, 7')
    A('v_readfirstlane_b32 s12, v2')
    A('s_lshr_b32 s14, s2, 3')
    A('s_and_b32 s11, s14, 1')
    A('s_sub_u32 s15, 16, s13')
    A('s_cmp_eq_u32 s13, 0')
    A('s_cselect_b32 s15, 8, s15')
    A('s_bitcmp1_b32 s14, 1')
    A('s_cselect_b32 s10, s15, s13')
    A('s_lshr_b32 s15, s14, 2')
    A('s_lshl_b32 s15, s15, 4')
    A('s_add_u32 s10, s10, s15')
    A('v_lshrrev_b32 v4, 5, v1')
    A('v_lshlrev_b32 v4, 1, v4')
    A('v_xor_b32 v4, v4, v1')
    A('v_lshlrev_b32 v14, 4, v4')
    A('s_lshl_b32 s13, s12, 8')
    A('s_add_u32 s13, s13, s10')
    A('s_lshl_b32 s63, s13, 2')
    A('s_lshl_b32 s13, s13, 11')
    A(f's_mul_i32 s14, s12, {2*XP}')
    vn, vg = 2, 3
    M1, TC, TS, M2C, M2S, SA1, SA2, SGN, MU, ONES = 16, 24, 40, 56, 60, 64, 68, 72, 73, 76
    GA, SA = 80, 84
    vSt, vTr0, vTr1, vZw, vZr, vU, vE, vE0, vZx, vX0, vZ0 = 108, 90, 91, 92, 93, 94, 95, 96, 97, 98, 99
    F = 112; T = 128; AF = 164; TMP = 200; P = 216; D = 232
    A(f'v_and_b32 v{vn}, 15, v1')
    A(f'v_lshrrev_b32 v{vg}, 4, v1')
    A('s_lshl_b32 s43, s11, 4')
    A('s_add_u32 s43, s43, 1')
    A(f'v_and_b32 v5, 7, v{vn}')
    A('v_add_u32 v5, s43, v5')
    A('v_cvt_f32_u32 v5, v5')
    A(f'v_and_b32 v6, 8, v{vn}')
    A(f'v_cvt_f32_u32 v7, v{vg}')
    A('v_cvt_f32_u32 v8, v6')
    A('v_mul_f32 v9, 0x3d000000, v5')
    A('v_mul_f32 v8, 0x3d000000, v8')
    A('v_mul_f32 v12, 0x41000000, v7')
    A('v_fmac_f32 v8, v12, v9')
    def m1(hh8, th, dl):
        for j in range(8):
            if j: A(f'v_add_f32 v{th}, v{th}, v{dl}')
            A(f'v_cos_f32 v{10 + (j & 1)}, v{th}')
            if j & 1: A(f'v_cvt_pk_bf16_f32 v{M1 + 4*hh8 + j//2}, v10, v11')
    A('v_mov_b32 v13, v8')
    m1(0, 8, 9)
    A('s_waitcnt lgkmcnt(0)')
    srd(A, 20, 6, 0, 2048 * 2048)
    for r in range(2):
        A(f's_add_u32 m0, s14, {r*XP}')
        A('s_nop 0')
        A(f'buffer_load_dwordx4 v14, s[20:23], s13 offen {xmod} lds')
        A(f'buffer_load_dwordx4 v14, s[20:23], s13 offen offset:1024 {xmod} lds')
        if r < 1: A(f's_add_u32 s13, s13, {128*2048}')
    A('v_add_f32 v9, 0x3e800000, v9')
    m1(1, 13, 9)
    A(f'v_lshlrev_b32 v9, 28, v6')
    A(f'v_lshrrev_b32 v10, 16, v9')
    A(f'v_or_b32 v{SGN}, v9, v10')
    A('v_mul_f32 v12, 4.0, v7')
    for hh8 in range(2):
        if hh8: A('v_add_f32 v5, 0x41000000, v5')
        A('v_mul_f32 v13, 0x3a800000, v5')
        A('v_xor_b32 v15, v9, v13')
        A('v_mul_f32 v8, v12, v15')
        for hh in range(2):
            for r in range(4):
                o = 8*hh8 + 4*hh + r
                if r: A('v_add_f32 v8, v8, v15')
                elif hh: A('v_fmac_f32 v8, 0x41500000, v15')
                A(f'v_cos_f32 v{TC+o}, v8')
                A(f'v_sin_f32 v{TS+o}, v8')
    A('s_cmp_eq_u32 s11, 1')
    A('s_cselect_b32 s44, 0xc2000000, 0')
    A(f'v_mov_b32 v{MU}, s44')
    A(f'v_cmp_eq_u32 vcc, 7, v{vn}')
    A(f'v_cndmask_b32 v{MU}, 0, v{MU}, vcc')
    A(f'v_cvt_f32_u32 v5, v{vn}')
    A('v_mul_f32 v13, 0x3d000000, v5')
    A('v_mul_f32 v8, v12, v13')
    for j in range(8):
        if j == 4: A('v_fmac_f32 v8, 0x41500000, v13')
        elif j: A('v_add_f32 v8, v8, v13')
        A(f'v_cos_f32 v{10+(j&1)}, v8')
        A(f'v_sin_f32 v{14+(j&1)}, v8')
        if j & 1:
            A(f'v_cvt_pk_bf16_f32 v{M2C+j//2}, v10, v11')
            A(f'v_cvt_pk_bf16_f32 v{M2S+j//2}, v14, v15')
    for i in range(4): A(f'v_mov_b32 v{ONES+i}, 0x3f803f80')
    A(f'v_lshrrev_b32 v10, 3, v{vn}')
    A(f'v_and_b32 v11, 7, v{vn}')
    A(f'v_mul_u32_u24 v12, {XP}, v10')
    A('v_lshl_add_u32 v12, v11, 8, v12')
    A('v_add_u32 v12, s14, v12')
    A('v_and_b32 v13, 1, v11')
    A('v_and_b32 v11, 2, v11')
    A('v_lshl_add_u32 v13, v11, 1, v13')
    A(f'v_and_b32 v11, 1, v{vg}')
    A('v_lshl_add_u32 v13, v11, 3, v13')
    A(f'v_and_b32 v11, 2, v{vg}')
    A('v_lshl_add_u32 v13, v11, 1, v13')
    for k in range(4):
        if k: A('v_add_u32 v13, 1, v13')
        A('v_and_b32 v15, 15, v13')
        A(f'v_lshl_add_u32 v{vSt+k}, v15, 4, v12')
    A(f'v_lshrrev_b32 v10, 2, v{vn}')
    A(f'v_and_b32 v11, 3, v{vn}')
    A('v_lshlrev_b32 v12, 6, v10')
    A(f'v_lshl_add_u32 v12, v{vg}, 9, v12')
    A('v_lshl_add_u32 v12, v11, 3, v12')
    A(f'v_and_b32 v13, 1, v{vg}')
    A('v_lshl_add_u32 v12, v13, 5, v12')
    A(f'v_add_u32 v{vTr0}, s14, v12')
    A(f'v_xor_b32 v{vTr1}, 32, v{vTr0}')
    A(f's_mul_i32 s15, s12, {2*ZP}')
    A(f's_add_u32 s15, s15, {ZB}')
    A(f'v_mul_u32_u24 v{vZw}, {NP}, v{vn}')
    A(f'v_lshl_add_u32 v{vZw}, v{vg}, 4, v{vZw}')
    A(f'v_add_u32 v{vZw}, s15, v{vZw}')
    A('v_lshrrev_b32 v12, 5, v1')
    A(f'v_mul_u32_u24 v{vX0}, {XP}, v12')
    A(f'v_add_u32 v{vX0}, s14, v{vX0}')
    A(f'v_mul_u32_u24 v{vZ0}, {ZP}, v12')
    A('v_and_b32 v12, 1, v1')
    A(f'v_mul_u32_u24 v12, {8*NP}, v12')
    A(f'v_add3_u32 v{vZ0}, v{vZ0}, v12, s15')
    A('v_cmp_eq_u32 s[46:47], 1, v11')
    A('v_cmp_eq_u32 s[48:49], 2, v11')
    A('v_cmp_eq_u32 s[50:51], 3, v11')
    A(f'v_cmp_eq_u32 s[52:53], v10, v{vg}')
    A('s_cmp_eq_u32 s11, 0')
    A('s_cselect_b32 s16, 8192, 0')
    srd(A, 32, 4, MX_OFF, 's16')
    A('s_cmp_ge_u32 s12, 4')
    A(f's_cbranch_scc1 {name}_other')
    srd(A, 28, 4, U_OFF, 4 * MB)
    srd(A, 36, 4, E_OFF, 65536)
    A('s_lshr_b32 s65, s12, 1')
    A('s_cmp_lg_u32 s65, 0')
    A('s_cselect_b32 s44, 0.25, 0')
    A(f'v_lshlrev_b32 v8, 9, v{vg}')
    A('v_add_u32 v8, s10, v8')
    A('v_cvt_f32_u32 v8, v8')
    A('v_mul_f32 v13, 0x3a000000, v5')
    A('v_fma_f32 v8, v8, v13, s44')
    A('v_mul_f32 v13, 0x3d800000, v5')
    for j in range(4):
        if j: A('v_add_f32 v8, v8, v13')
        A(f'v_cos_f32 v{SA1+j}, v8')
        A(f'v_sin_f32 v{SA2+j}, v8')
    A(f'v_lshl_add_u32 v12, v{vg}, 2, v10')
    A(f'v_mul_u32_u24 v12, {ZP}, v12')
    A(f'v_add_u32 v{vZx}, {ZB + 64}, v12')
    A('v_lshl_add_u32 v12, v11, 3, v12')
    A('s_and_b32 s15, s12, 1')
    A('s_lshl_b32 s16, s15, 5')
    A(f's_add_u32 s16, s16, {ZB}')
    A(f'v_add_u32 v{vZr}, s16, v12')
    A(f'v_lshlrev_b32 v{vU}, 20, v{vg}')
    A(f'v_lshl_add_u32 v{vU}, v10, 7, v{vU}')
    A(f'v_lshl_add_u32 v{vU}, v11, 4, v{vU}')
    A('s_lshl_b32 s66, s65, 17')
    A('s_lshl_b32 s16, s10, 10')
    A('s_add_u32 s66, s66, s16')
    A('s_lshl_b32 s16, s15, 9')
    A('s_add_u32 s66, s66, s16')
    A('s_lshl_b32 s16, s11, 6')
    A('s_add_u32 s66, s66, s16')
    A('s_lshl_b32 s16, s15, 2')
    A('s_add_u32 s16, s16, 1')
    A('v_add_u32 v12, s16, v10')
    A(f'v_lshlrev_b32 v{vE0}, 14, v{vg}')
    A(f'v_lshl_add_u32 v{vE}, v12, 9, v{vE0}')
    A('v_cmp_gt_u32 vcc, 8, v12')
    A('s_and_b64 vcc, vcc, s[50:51]')
    A(f'v_cndmask_b32 v{vE}, 4.0, v{vE}, vcc')
    A(f'v_or_b32 v12, s15, v{vn}')
    A('v_cmp_eq_u32 vcc, 0, v12')
    A(f'v_cndmask_b32 v{vE0}, 4.0, v{vE0}, vcc')
    A('s_lshl_b32 s67, s65, 7')
    A('s_add_u32 s67, s67, s10')
    A('s_lshl_b32 s67, s67, 1')
    st(1)
    A('s_waitcnt vmcnt(0)')
    A(f's_branch {name}_prepdone')
    A.label(f'{name}_other')
    if opt.get('pf', 1):
        line_touch(A, 89, 12, 24, 8, 0, 384, 15)
        st(1)
        A('s_waitcnt vmcnt(1)')
    else:
        st(1)
        A('s_waitcnt vmcnt(0)')
    A.label(f'{name}_prepdone')
    st(2)
    for i in range(4):
        A(f'ds_read_b128 {vr(F+4*i,4)}, v{vSt+i}')
    A(f'ds_read_u16 v{vX0}, v{vX0}')
    for r in range(2):
        for hh in range(2):
            for rd in range(2):
                A(f'ds_read_b64_tr_b16 {vr(AF+8*r+4*hh+2*rd,2)}, v{vTr0 if hh == 0 else vTr1} offset:{r*XP + 256*rd}')
    A('s_waitcnt lgkmcnt(9)')
    for i in range(4):
        mfma(A, GA, F+4*i, F+4*i, '0' if i == 0 else None)
        mfma(A, SA, ONES, F+4*i, '0' if i == 0 else None)
    for r in range(2):
        A(f's_waitcnt lgkmcnt({4 - 4*r})')
        for hh8 in range(2):
            for hh in range(2):
                mfma(A, T + 16*r + 8*hh8 + 4*hh, AF + 8*r + 4*hh, M1 + 4*hh8, '0')
    A(f'v_cndmask_b32 v10, v{GA}, v{GA+1}, s[46:47]')
    A(f'v_add_f32_dpp v11, v{SA}, v{SA} quad_perm:[1,0,3,2] row_mask:0xf bank_mask:0xf')
    A(f'v_cndmask_b32 v10, v10, v{GA+2}, s[48:49]')
    A(f'v_cndmask_b32 v10, v10, v{GA+3}, s[50:51]')
    A(f'v_add_f32_dpp v11, v11, v11 quad_perm:[2,3,0,1] row_mask:0xf bank_mask:0xf')
    A(f'v_cndmask_b32 v10, 0, v10, s[52:53]')
    A(f'v_add_f32_dpp v11, v11, v11 row_half_mirror row_mask:0xf bank_mask:0xf')
    A(f'v_add_f32_dpp v10, v10, v10 quad_perm:[1,0,3,2] row_mask:0xf bank_mask:0xf')
    A('v_mul_f32 v15, 0x3a800000, v11')
    A(f'v_add_f32_dpp v10, v10, v10 quad_perm:[2,3,0,1] row_mask:0xf bank_mask:0xf')
    for r in range(2): A(f'v_readlane_b32 s{56+r}, v15, {8*r}')
    A(f'v_add_f32_dpp v10, v10, v10 row_half_mirror row_mask:0xf bank_mask:0xf')
    A(f'v_lshlrev_b32 v{vX0}, 16, v{vX0}')
    A('v_mov_b32 v12, v10')
    A('v_permlane16_swap_b32 v10, v12')
    A('v_add_f32 v10, v10, v12')
    ln_finish(A, 11, 10, 12, 13, 14, 45)
    A('v_rcp_f32 v13, v13')
    A('v_lshrrev_b32 v10, 5, v1')
    A('v_lshlrev_b32 v12, 9, v10')
    A('v_lshlrev_b32 v10, 2, v10')
    A('s_lshl_b32 s15, s12, 3')
    A(f's_add_u32 s15, s15, {RB}')
    A('v_add_u32 v10, s15, v10')
    A('s_mov_b32 exec_lo, 1')
    A('s_mov_b32 exec_hi, 0x100')
    A('ds_write_b32 v10, v13')
    A('buffer_store_dword v15, v12, s[32:35], s63 offen')
    A('s_mov_b32 exec_lo, -1')
    A('s_mov_b32 exec_hi, 0')
    A(f'v_subrev_f32 v{vX0}, s56, v{vX0}')
    A('s_mov_b32 exec_lo, 0')
    A('s_mov_b32 exec_hi, -1')
    A(f'v_subrev_f32 v{vX0}, s57, v{vX0}')
    A('s_mov_b64 exec, -1')
    A('v_mov_b32 v11, 0')
    A(f'v_cvt_pk_bf16_f32 v10, v{vX0}, v11')
    A('s_mov_b32 vcc_lo, 0x55555555')
    A('s_mov_b32 vcc_hi, 0x55555555')
    A('v_cndmask_b32 v10, 0, v10, vcc')
    A(f'ds_write_b64 v{vZ0}, v[10:11] offset:64')
    def fin(r):
        d = D + 8 * r
        for k in range(4): A(f'v_cvt_pk_bf16_f32 v{d+k}, v{d+k}, v{d+4+k}')
        A(f'ds_write_b128 v{vZw}, {vr(d,4)} offset:{r*ZP}')
    for r in range(2):
        A(f'v_mul_f32 v14, s{56+r}, v{MU}')
        A('v_mov_b32 v15, v14')
        for k in range(0, 8, 2): A(f'v_pk_add_f32 {vr(T+16*r+8+k,2)}, {vr(T+16*r+8+k,2)}, v[14:15]')
        for hh8 in range(2):
            t = T + 16*r + 8*hh8; tm = TMP + 8*hh8; p = P + 8*hh8
            for k in range(0, 8, 2): A(f'v_pk_mul_f32 {vr(tm+k,2)}, {vr(t+k,2)}, {vr(TC+8*hh8+k,2)}')
            for k in range(8): A(f'v_fmac_f32_dpp v{tm+k}, v{t+k}, v{TS+8*hh8+k} row_ror:8 row_mask:0xf bank_mask:0xf')
            for k in range(4): A(f'v_cvt_pk_bf16_f32 v{p+k}, v{tm+2*k}, v{tm+2*k+1}')
            if r == 1 and hh8 == 0: fin(0)
            for k in range(4): A(f'v_xor_b32_dpp v{p+4+k}, v{p+k}, v{SGN} row_ror:8 row_mask:0xf bank_mask:0xf')
            mfma(A, D + 8*r + 4*hh8, M2C, p, '0')
            mfma(A, D + 8*r + 4*hh8, M2S, p + 4)
    A(f'v_lshlrev_b32 v10, 4, v{vg}')
    A(f'v_add_u32 v10, {RB}, v10')
    fin(1)
    st(3)
    A('s_waitcnt lgkmcnt(0)')
    A('s_barrier')
    st(8)
    A('s_cmp_ge_u32 s12, 4')
    A(f's_cbranch_scc1 {name}_end')
    RS = F; AM = F + 4; ZF = T; O = AF
    A(f'ds_read_b128 {vr(RS,4)}, v10')
    for tau in range(9):
        if tau == 7: A('s_waitcnt lgkmcnt(14)')
        for rd in range(2):
            if tau < 8: A(f'ds_read_b64_tr_b16 {vr(ZF + tau*4 + 2*rd, 2)}, v{vZr} offset:{(rd*8 + tau)*NP}')
            else: A(f'ds_read_b64_tr_b16 {vr(ZF + tau*4 + 2*rd, 2)}, v{vZx} offset:{rd*8*NP}')
    for j in range(0, 4, 2):
        A(f'v_pk_mul_f32 {vr(SA1+j,2)}, {vr(SA1+j,2)}, {vr(RS+j,2)}')
        A(f'v_pk_mul_f32 {vr(SA2+j,2)}, {vr(SA2+j,2)}, {vr(RS+j,2)}')
    for k in range(4): A(f'v_cvt_pk_bf16_f32 v{AM+k}, v{SA1+2*k}, v{SA1+2*k+1}')
    for tau in range(9):
        if tau % 2 == 0: A(f's_waitcnt lgkmcnt({max(14 - 2*tau, 0)})')
        mfma(A, O + 4*tau, AM, ZF + tau*4, '0')
    for r in range(4):
        b = P + 4*r
        for k in range(4): A(f'v_cvt_pk_bf16_f32 v{b+k}, v{O+8*k+r}, v{O+8*k+4+r}')
        A(f'buffer_store_dwordx4 {vr(b,4)}, v{vU}, s[28:31], s66 offen {smod}')
        if r < 3: A('s_add_u32 s66, s66, 0x40000')
    A('s_cmp_eq_u32 s11, 0')
    A(f's_cbranch_scc1 {name}_c0')
    for r in range(4):
        A(f'buffer_store_short_d16_hi v{P+4*r+3}, v{vE}, s[36:39], s67 offen')
        if r < 3: A('s_add_u32 s67, s67, 4096')
    A(f's_branch {name}_fin')
    A.label(f'{name}_c0')
    for r in range(4):
        A(f'v_cvt_pk_bf16_f32 v{O+32+r}, v{O+32+r}, v{O+32+r}')
        A(f'buffer_store_short v{O+32+r}, v{vE0}, s[36:39], s67 offen')
        if r < 3: A('s_add_u32 s67, s67, 4096')
    A.label(f'{name}_fin')
    st(4)
    A('s_waitcnt vmcnt(0)') if opt.get('stamp') else None
    st(5); st(6, True)
    st.dump(9, 0, 100)
    A.label(f'{name}_end')
    A('s_endpgm')
    return dict(name=name, grid=256, block=512, lds=FA_LDS, vgpr=248)
```

```python
from common import *

XB = 32768
FB_LDS = XB + 16384
def gen_fb(A, name='fb_kernel', opt=None):
    opt = opt or {}
    smod = opt.get('smod', 'sc1')
    khead(A, name)
    st = Stamper(A, opt.get('stamp'), 1)
    st(0); st(7, True)
    A('s_cmp_ge_u32 s2, 256')
    A(f's_cbranch_scc1 {name}_end')
    A('s_load_dwordx2 s[4:5], s[0:1], %d' % KA['ws'])
    A('s_load_dwordx2 s[6:7], s[0:1], %d' % KA['x'])
    A('s_load_dwordx2 s[38:39], s[0:1], %d' % KA['w1'])
    A('v_lshrrev_b32 v2, 6, v0')
    A('v_and_b32 v1, 63, v0')
    A('s_and_b32 s13, s2, 7')
    A('v_readfirstlane_b32 s12, v2')
    A('s_lshr_b32 s14, s2, 3')
    A('s_sub_u32 s15, 16, s13')
    A('s_cmp_eq_u32 s13, 0')
    A('s_cselect_b32 s15, 8, s15')
    A('s_bitcmp1_b32 s14, 0')
    A('s_cselect_b32 s10, s15, s13')
    A('s_lshr_b32 s11, s14, 1')
    A('s_sub_u32 s16, 16, s10')
    A('s_and_b32 s16, s16, 15')
    A('s_sub_u32 s17, 15, s11')
    A('s_lshr_b32 s19, s11, 3')
    A('s_cmp_lg_u32 s19, 0')
    A('s_cselect_b32 s16, s16, s10')
    A('s_cselect_b32 s17, s17, s11')
    vn, vg = 2, 3
    A(f'v_and_b32 v{vn}, 15, v1')
    A(f'v_lshrrev_b32 v{vg}, 4, v1')
    A('v_lshrrev_b32 v6, 3, v1')
    A('v_lshrrev_b32 v7, 4, v1')
    A('v_and_b32 v7, 1, v7')
    A('v_lshrrev_b32 v8, 1, v1')
    A('v_and_b32 v8, 3, v8')
    A('v_xor_b32 v7, v7, v8')
    A('v_lshlrev_b32 v7, 5, v7')
    A('v_lshl_add_u32 v4, v6, 10, v7')
    A('v_and_b32 v7, 1, v1')
    A('v_lshl_add_u32 v4, v7, 4, v4')
    A('v_xor_b32 v5, 64, v4')
    A(f'v_add_u32 v5, {8192 - 1024}, v5')
    A('s_lshl_b32 s14, s16, 3')
    A('s_add_u32 s14, s14, s12')
    A('s_lshl_b32 s14, s14, 15')
    A('s_lshl_b32 s15, s17, 7')
    A('s_add_u32 s14, s14, s15')
    A('s_lshl_b32 s18, s12, 12')
    A('v_lshrrev_b32 v8, 4, v1')
    A('v_xor_b32 v8, v8, v1')
    A('v_and_b32 v8, 7, v8')
    A('v_lshlrev_b32 v8, 4, v8')
    A('v_lshl_add_u32 v6, v6, 15, v8')
    A('v_xor_b32 v7, 64, v6')
    A(f'v_add_u32 v7, {8*32768 - 1024}, v7')
    A('s_lshl_b32 s61, s12, 19')
    A('s_lshl_b32 s15, s10, 11')
    A('s_add_u32 s61, s61, s15')
    A('s_lshl_b32 s15, s11, 7')
    A('s_add_u32 s61, s61, s15')
    A('s_lshl_b32 s62, s12, 11')
    A(f's_add_u32 s62, s62, {XB}')
    A('s_lshl_b32 s63, s10, 3')
    A('s_add_u32 s63, s63, s11')
    A('s_lshl_b32 s63, s63, 9')
    A('s_sub_u32 s15, s11, 1')
    A('s_cmp_lt_u32 s15, 7')
    A('s_cselect_b32 s64, 65536, 0')
    A(f'v_lshlrev_b32 v9, 4, v{vg}')
    A('s_waitcnt lgkmcnt(0)')
    srd(A, 20, 4, U_OFF, 4 * MB)
    for h in range(2):
        A(f's_add_u32 m0, s18, {h*2048}')
        A('s_nop 0')
        A(f'buffer_load_dwordx4 v4, s[20:23], s14 offen lds')
        A(f'buffer_load_dwordx4 v5, s[20:23], s14 offen offset:1024 lds')
        if h == 0: A('s_add_u32 s14, s14, 16384')
    srd(A, 24, 6, 0, 2048 * 2048)
    A('s_mov_b32 m0, s62')
    srd(A, 48, 4, E_OFF, 's64')
    A('buffer_load_dwordx4 v6, s[24:27], s61 offen lds')
    A('buffer_load_dwordx4 v7, s[24:27], s61 offen offset:1024 lds')
    FR = [16, 48]; EF = 80; B = 112; ACC = 144; EA = 160; VT = 164; VX = 168; X = 172; VB = 180; MXV = 181; MA = 184; MF = 188
    srd(A, 28, 4, E_OFF, 65536)
    A('s_lshl_b32 s15, s16, 12')
    for p in range(8): A(f'buffer_load_dwordx4 {vr(MF+4*p,4)}, v9, s[28:31], s15 offen offset:{64*p}')
    for p in range(8): A(f'buffer_load_dwordx4 {vr(EF+4*p,4)}, v9, s[48:51], s63 offen offset:{64*p}')
    srd(A, 40, 4, MX_OFF, 8192)
    A(f'v_lshlrev_b32 v9, 6, v{vn}')
    A('s_lshl_b32 s15, s12, 8')
    A('s_add_u32 s15, s15, s10')
    A('s_lshl_b32 s15, s15, 2')
    A(f'buffer_load_dword v{MXV}, v9, s[40:43], s15 offen')
    A('s_lshl_b32 s15, s12, 4')
    A(f'v_add_u32 v6, s15, v{vn}')
    A('s_cmp_lg_u32 s10, 0')
    A('s_cselect_b32 s15, -1, 0')
    A('v_sub_u32 v7, s15, v6')
    A('s_cmp_lg_u32 s19, 0')
    A('s_cselect_b64 vcc, -1, 0')
    A('v_cndmask_b32 v6, v6, v7, vcc')
    A('v_and_b32 v6, 127, v6')
    A('v_cvt_f32_u32 v7, v6')
    A('v_mul_f32 v7, 0x3c000000, v7')
    A(f'v_lshlrev_b32 v10, 3, v{vg}')
    A('v_cvt_f32_u32 v10, v10')
    A('v_mul_f32 v10, v10, v7')
    for j in range(8):
        if j: A('v_add_f32 v10, v10, v7')
        A(f'v_cos_f32 v{12+(j&1)}, v10')
        A(f'v_sin_f32 v{14+(j&1)}, v10')
        if j & 1:
            A(f'v_cvt_pk_bf16_f32 v{B+j//2}, v12, v13')
            A(f'v_cvt_pk_bf16_f32 v{B+16+j//2}, v14, v15')
    A('v_and_b32 v8, 1, v6')
    A('v_cmp_eq_u32 vcc, 1, v8')
    A('v_mul_u32_u24 v8, 0x8000, v8')
    A('v_lshl_or_b32 v8, v8, 16, v8')
    A('v_and_b32 v10, 2, v6')
    A('v_mul_u32_u24 v10, 0x4000, v10')
    A('v_lshl_or_b32 v10, v10, 16, v10')
    A('v_xor_b32 v11, v10, v8')
    for k in range(4):
        A(f'v_cndmask_b32 v12, v{B+k}, v{B+16+k}, vcc')
        A(f'v_cndmask_b32 v13, v{B+16+k}, v{B+k}, vcc')
        A(f'v_xor_b32 v{B+4+k}, v11, v12')
        A(f'v_xor_b32 v{B+20+k}, v10, v13')
    for k in range(8):
        A(f'v_xor_b32 v{B+8+k}, v8, v{B+k}')
        A(f'v_xor_b32 v{B+24+k}, v8, v{B+16+k}')
    A(f'v_lshrrev_b32 v10, 2, v{vn}')
    A(f'v_lshl_add_u32 v10, v{vg}, 3, v10')
    A(f'v_lshrrev_b32 v11, 3, v{vn}')
    A(f'v_and_b32 v12, 1, v{vg}')
    A('v_lshl_add_u32 v11, v12, 1, v11')
    A('v_lshlrev_b32 v11, 5, v11')
    A('v_lshl_add_u32 v10, v10, 7, v11')
    A(f'v_and_b32 v11, 3, v{vn}')
    A(f'v_lshl_add_u32 v{VT}, v11, 3, v10')
    for i in range(1, 4): A(f'v_xor_b32 v{VT+i}, {(2*(i&1) + (i>>1))*32}, v{VT}')
    A('s_mul_i32 s15, s19, 3')
    A(f'v_xor_b32 v10, s15, v{vg}')
    A('v_lshrrev_b32 v11, 1, v10')
    A(f'v_lshrrev_b32 v12, 1, v{vn}')
    A('v_xor_b32 v11, v11, v12')
    A('v_lshlrev_b32 v11, 4, v11')
    A(f'v_lshl_add_u32 v11, v{vn}, 7, v11')
    A('v_and_b32 v12, 1, v10')
    A('v_lshl_add_u32 v11, v12, 3, v11')
    A(f'v_add_u32 v{VX}, s62, v11')
    for i in range(1, 4): A(f'v_xor_b32 v{VX+i}, {32*i}, v{VX}')
    A(f'v_lshl_add_u32 v10, v10, 4, v{vn}')
    A('v_lshlrev_b32 v7, 4, v10')
    A('v_add_u32 v10, 48, v1')
    A('v_and_b32 v10, 63, v10')
    A(f'v_lshlrev_b32 v{VB}, 2, v10')
    A(f'v_cmp_eq_u32 s[46:47], 0, v{vg}')
    srd(A, 52, 4, HF_OFF, 4 * MB)
    srd(A, 56, 4, ST_OFF, 2048 * 128)
    A('s_cmp_eq_u32 s11, 0')
    A('s_cselect_b32 s15, 8192, 0')
    srd(A, 32, 4, MU_OFF, 's15')
    A('s_lshl_b32 s13, s10, 3')
    A('s_add_u32 s13, s13, s12')
    st(1)
    A('s_waitcnt vmcnt(19)')
    A('s_barrier')
    st(2)
    def frag(i, p): return FR[i & 1] + 4 * p
    def rd(i, ps):
        for p in ps:
            for r2 in range(2):
                A(f'ds_read_b64_tr_b16 {vr(frag(i,p)+2*r2,2)}, v{VT+i} offset:{(32*p+4*r2)*128}')
    rd(0, range(8))
    if opt.get('pf', 1):
        line_touch(A, 182, 10, 44 + 20, 38, 256 * 14336, 384, 15)
        A('s_waitcnt vmcnt(1)')
    else:
        A('s_waitcnt vmcnt(0)')
    for p in range(8):
        mfma(A, MA, MF + 4*p, B + 4*p, '0' if p == 0 else None)
        mfma(A, EA, EF + 4*p, B + 4*p, '0' if p == 0 else None)
        if p < 4: rd(1, [p])
    for i in range(4):
        for half in range(2):
            if i < 3: A(f's_waitcnt lgkmcnt({[15, 8][half] if i == 0 else 8})')
            else: A(f's_waitcnt lgkmcnt({[12, 4][half]})')
            for p in range(4*half, 4*half + 4):
                mfma(A, ACC + 4*i, frag(i,p), B + 4*p, '0' if p == 0 else None)
            if half == 0 and i + 1 < 4: rd(i + 1, range(4, 8))
            if half == 1 and i + 2 < 4: rd(i + 2, range(4))
            if half == 1 and i == 2:
                for k in range(4): A(f'ds_read_b64 {vr(X+2*k,2)}, v{VX+k}')
    st(3)
    ONE, S, Q = 4, 5, 6
    A(f'v_mov_b32 v{ONE}, 0x3f803f80')
    A(f'v_mov_b32 v{S}, 0')
    A(f'v_mov_b32 v{Q}, 0')
    A('s_lshl_b32 s14, s13, 15')
    A('s_lshl_b32 s15, s11, 11')
    A('s_add_u32 s14, s14, s15')
    A(f'v_add_f32 v{MA}, v{MA}, v{MXV}')
    A(f'v_lshlrev_b32 v28, 2, v{vn}')
    A('s_lshl_b32 s15, s13, 6')
    A(f'buffer_store_dword v{MA}, v28, s[32:35], s15 offen')
    def epi(V):
        for pr in range(2):
            o = 16 + 4*pr
            for i2 in range(2):
                i = 2*pr + i2
                for q in range(2):
                    xr = X + 2*i + q
                    A(f'v_lshlrev_b32 v{24+2*q}, 16, v{xr}')
                    A(f'v_and_b32 v{25+2*q}, 0xffff0000, v{xr}')
                for r in range(4): A(f'v_sub_f32 v{24+r}, v{24+r}, v{MA}')
                for r in range(4): A(f'v_add_f32 v{24+r}, v{24+r}, v{V[i][r]}')
                for q in range(2):
                    A(f'v_cvt_pk_bf16_f32 v{o+2*i2+q}, v{24+2*q}, v{25+2*q}')
            A(f'buffer_store_dwordx4 {vr(o,4)}, v7, s[52:55], s14 offen offset:{pr*1024} {smod}')
            for k in range(4):
                A(f'v_dot2_f32_bf16 v{S}, v{o+k}, v{ONE}, v{S}')
                A(f'v_dot2_f32_bf16 v{Q}, v{o+k}, v{o+k}, v{Q}')
    A('s_cmp_lg_u32 s19, 0')
    A(f's_cbranch_scc1 {name}_up')
    for i in range(4): A(f'ds_bpermute_b32 v{32+i}, v{VB}, v{ACC+4*i+3}')
    A('s_waitcnt lgkmcnt(0)')
    for i in range(4): A(f'v_cndmask_b32 v{36+i}, v{32+i}, v{31+i if i else EA}, s[46:47]')
    epi([[36+i, ACC+4*i, ACC+4*i+1, ACC+4*i+2] for i in range(4)])
    A(f's_branch {name}_join')
    A.label(f'{name}_up')
    A('s_waitcnt lgkmcnt(0)')
    A('s_nop 7')
    epi([[ACC+4*(3-i)+3-r for r in range(4)] for i in range(4)])
    A.label(f'{name}_join')
    A(f'v_lshlrev_b32 v28, 7, v{vn}')
    A(f'v_lshrrev_b32 v29, 1, v{vg}')
    A('v_lshl_add_u32 v28, v29, 2, v28')
    A(f'v_permlane32_swap_b32 v{S}, v{Q}')
    A(f'v_add_f32 v{S}, v{S}, v{Q}')
    A(f'v_mov_b32 v{Q}, v{S}')
    A(f'v_permlane16_swap_b32 v{S}, v{Q}')
    A(f'v_add_f32 v{S}, v{S}, v{Q}')
    A('s_lshl_b32 s14, s13, 11')
    A('s_lshl_b32 s15, s11, 3')
    A('s_add_u32 s14, s14, s15')
    A(f'buffer_store_dword v{S}, v28, s[56:59], s14 offen')
    st(4)
    A('s_waitcnt vmcnt(0)') if opt.get('stamp') else None
    st(5); st(6, True)
    st.dump(8, 0, 40)
    A.label(f'{name}_end')
    A('s_endpgm')
    return dict(name=name, grid=256, block=512, lds=FB_LDS, vgpr=220)
```

```python
from common import *

SLOT1 = 45056
NPART = 16
def w_voffs(A, base, vlane, srow16, spar, t0, qs, pitch=7168, qoff=None):
    A(f'v_and_b32 v{t0+3}, 1, v{vlane}')
    A(f'v_lshlrev_b32 v{t0+3}, 4, v{t0+3}')
    A(f'v_lshrrev_b32 v{t0}, 3, v{vlane}')
    A(f'v_lshrrev_b32 v{t0+1}, 4, v{vlane}')
    A(f'v_lshrrev_b32 v{t0+2}, 1, v{vlane}')
    A(f'v_xor_b32 v{t0+1}, v{t0+1}, v{t0+2}')
    A(f'v_and_b32 v{t0+1}, 3, v{t0+1}')
    A(f'v_add_u32 v{t0}, s{srow16}, v{t0}')
    A(f'v_mul_u32_u24 v{t0}, {pitch}, v{t0}')
    A(f'v_lshl_add_u32 v{t0}, v{t0+1}, 5, v{t0}')
    A(f's_lshl_b32 s92, s{spar}, 6')
    A(f'v_add3_u32 v{t0+2}, v{t0}, v{t0+3}, s92')
    A(f'v_lshrrev_b32 v{t0}, 2, v{vlane}')
    A(f'v_lshrrev_b32 v{t0+1}, 3, v{vlane}')
    A(f'v_xor_b32 v{t0+1}, v{t0+1}, v{vlane}')
    A(f'v_and_b32 v{t0+1}, 2, v{t0+1}')
    A(f'v_add_u32 v{t0}, s{srow16}, v{t0}')
    A(f'v_mul_u32_u24 v{t0}, {pitch}, v{t0}')
    A(f'v_lshl_add_u32 v{t0}, v{t0+1}, 4, v{t0}')
    A(f's_mul_i32 s93, s{spar}, 384')
    A(f's_sub_u32 s93, 384, s93')
    A(f'v_add3_u32 v{t0}, v{t0}, v{t0+3}, s93')
    def goff(q): return (q // 3) * 8 * pitch + (q % 3) * 128
    for k, q in enumerate(qs):
        if qoff is None:
            if q < 6: A(f'v_add_u32 v{base+k}, {goff(q)}, v{t0+2}')
            else: A(f'v_mov_b32 v{base+k}, v{t0}')
        else:
            A(f's_cmp_lg_u32 s{qoff}, 0')
            if q + 4 < 6:
                A(f's_cselect_b32 s93, {goff(q+4) - goff(q)}, 0')
                A(f's_add_u32 s93, s93, {goff(q)}')
                A(f'v_add_u32 v{base+k}, s93, v{t0+2}')
            else:
                A(f's_cselect_b64 vcc, -1, 0')
                A(f'v_add_u32 v{base+k}, {goff(q)}, v{t0+2}')
                A(f'v_cndmask_b32 v{base+k}, v{base+k}, v{t0}, vcc')

def tr_bases(A, vG, vH, vlane, t0, bandG=3072):
    A(f'v_lshrrev_b32 v{t0}, 2, v{vlane}')
    A(f'v_and_b32 v{t0}, 7, v{t0}')
    A(f'v_and_b32 v{t0+1}, 3, v{vlane}')
    A(f'v_lshlrev_b32 v{t0+1}, 3, v{t0+1}')
    A(f'v_lshrrev_b32 v{t0+2}, 5, v{vlane}')
    A(f'v_lshl_add_u32 v{vG}, v{t0}, 7, v{t0+1}')
    A(f'v_lshrrev_b32 v{t0+3}, 1, v{t0}')
    A(f'v_lshl_add_u32 v{vG}, v{t0+3}, 5, v{vG}')
    A(f'v_mul_u32_u24 v{t0+3}, {bandG}, v{t0+2}')
    A(f'v_add_u32 v{vG}, v{vG}, v{t0+3}')
    if vH is not None:
        A(f'v_lshl_add_u32 v{vH}, v{t0}, 6, v{t0+1}')
        A(f'v_lshrrev_b32 v{t0+3}, 2, v{t0}')
        A(f'v_lshl_add_u32 v{vH}, v{t0+3}, 5, v{vH}')
        A(f'v_lshl_add_u32 v{vH}, v{t0+2}, 9, v{vH}')

def w_dma4(A, name, WV, slds, sq, srdn, soff, mods=''):
    for q in range(3):
        A(f's_add_u32 m0, s{slds}, {q*1024}')
        A('s_nop 0')
        A(f'buffer_load_dwordx4 v{WV+q}, s[{srdn}:{srdn+3}], s{soff} offen {mods} lds')
    A(f's_cmp_lg_u32 s{sq}, 0')
    A(f's_cbranch_scc1 {name}_w3')
    A(f's_add_u32 m0, s{slds}, 3072')
    A(f'v_mov_b32 v{WV+2}, v{WV+3}')
    A.label(f'{name}_w3')
    A('s_nop 0')
    A(f'buffer_load_dwordx4 v{WV+2}, s[{srdn}:{srdn+3}], s{soff} offen {mods} lds')

def gen_g1(A, name='g1_kernel', opt=None):
    opt = opt or {}
    nomfma = opt.get('nomfma'); noload = opt.get('noload'); noread = opt.get('noread')
    smod = opt.get('smod', ''); pfh = opt.get('pfh', 0); pfw = opt.get('pfw', 0)
    khead(A, name)
    st = Stamper(A, opt.get('stamp'), 2)
    st(0); st(7, True)
    A('s_cmp_ge_u32 s2, 256')
    A(f's_cbranch_scc1 {name}_end')
    A('s_load_dwordx2 s[4:5], s[0:1], %d' % KA['ws'])
    A('s_load_dwordx4 s[64:67], s[0:1], %d' % KA['w1'])
    A('s_load_dwordx2 s[48:49], s[0:1], %d' % KA['w2'])
    A('v_lshrrev_b32 v2, 6, v0')
    A('v_and_b32 v1, 63, v0')
    A('s_and_b32 s8, s2, 7')
    A('v_readfirstlane_b32 s12, v2')
    A('s_lshr_b32 s9, s2, 3')
    A('s_and_b32 s10, s8, 1')
    A('s_lshl_b32 s10, s10, 3')
    A('s_and_b32 s11, s9, 7')
    A('s_add_u32 s10, s10, s11')
    A('s_lshr_b32 s11, s8, 1')
    A('s_lshl_b32 s11, s11, 2')
    A('s_lshr_b32 s50, s9, 3')
    A('s_add_u32 s11, s11, s50')
    A('s_cmp_ge_u32 s12, 4')
    A(f's_cbranch_scc1 {name}_loader')
    WB = [8, 36]; ACC = 64; HB = [176, 192]
    vAh, cAh = 2, 3
    vPF, vPD, VW, CW = 4, 5, 208, 216
    A('s_lshl_b32 s15, s50, 2')
    A('s_add_u32 s15, s15, s12')
    A('s_lshr_b32 s16, s15, 1')
    A('s_lshl_b32 s16, s16, 15')
    A('s_and_b32 s15, s15, 1')
    A('s_lshl_b32 s15, s15, 10')
    A('s_add_u32 s15, s15, s16')
    A(f's_add_u32 s15, s15, {3*2048}')
    A('v_lshrrev_b32 v8, 3, v1')
    A('v_lshlrev_b32 v8, 11, v8')
    A('v_and_b32 v9, 7, v1')
    A('v_lshl_add_u32 v8, v9, 7, v8')
    A('v_add_u32 v8, s15, v8')
    A('s_lshl_b32 s15, s10, 18')
    A(f's_add_u32 s15, s15, {HF_OFF}')
    A('s_waitcnt lgkmcnt(0)')
    srd(A, 24, 4, 's15', 256 * 1024)
    if pfh:
        A('s_mov_b32 s16, 16384')
        A(f'buffer_load_dword v{vPD}, v8, s[24:27], 0 offen')
        A(f'buffer_load_dword v{vPD}, v8, s[24:27], s16 offen')
    A('s_and_b32 s13, s12, 1')
    A('s_lshr_b32 s14, s12, 1')
    A('s_lshl_b32 s15, s13, 13')
    A(f'v_lshlrev_b32 v{vAh}, 4, v1')
    A(f'v_add_u32 v{vAh}, s15, v{vAh}')
    tr_bases(A, 12, 13, 1, 8)
    A('s_lshl_b32 s15, s14, 11')
    A('s_add_u32 s15, s15, 16384')
    for k in range(4):
        A(f'v_xor_b32 v14, {32*k}, v12')
        A(f'v_add_u32 v{VW+k}, s15, v14')
    A('s_cmp_lg_u32 s14, 0')
    A('s_cselect_b64 vcc, -1, 0')
    for k in range(2):
        A(f'v_xor_b32 v14, {32*k}, v13')
        A(f'v_add_u32 v14, {16384 + 6144}, v14')
        A(f'v_add_u32 v15, 1024, v{VW+k}')
        A(f'v_cndmask_b32 v{VW+4+k}, v15, v14, vcc')
    A(f'v_add_u32 v15, 1024, v{VW+2}')
    A(f'v_subrev_u32 v14, 1024, v{VW+3}')
    A(f'v_cndmask_b32 v{VW+6}, v15, v14, vcc')
    A(f'v_mov_b32 v{cAh}, v{vAh}')
    for k in range(7): A(f'v_mov_b32 v{CW+k}, v{VW+k}')
    for i in range(112):
        A(f'v_mov_b32 v{ACC+i}, 0')
    A('s_lshl_b32 s15, s9, 2')
    A('s_add_u32 s15, s15, s12')
    A('s_lshr_b32 s16, s15, 1')
    A('s_lshl_b32 s16, s16, 2')
    A('s_and_b32 s19, s8, 3')
    A('s_add_u32 s16, s16, s19')
    A('s_lshl_b32 s16, s16, 11')
    A('s_and_b32 s15, s15, 1')
    A('s_lshl_b32 s15, s15, 9')
    A('s_add_u32 s16, s16, s15')
    A('s_lshr_b32 s15, s8, 2')
    A('s_lshl_b32 s15, s15, 10')
    A('s_add_u32 s16, s16, s15')
    A(f'v_lshlrev_b32 v{vPF}, 7, v1')
    A(f'v_add_u32 v{vPF}, s16, v{vPF}')
    A('v_mov_b32 v8, 0x7f000000')
    A('v_cmp_gt_u32 vcc, 4, v1')
    A(f'v_cndmask_b32 v{vPF}, v8, v{vPF}, vcc')
    srd(A, 28, 48, 0, 3584 * 2048)
    A('s_mov_b32 s51, 0')
    A('s_lshl_b32 s15, s10, 1')
    A('s_add_u32 s15, s15, s13')
    A('s_mul_i32 s15, s15, %d' % (4 * 112 * 1024))
    A('s_add_u32 s15, s15, %d' % G_OFF)
    srd(A, 20, 4, 's15', 4 * 112 * 1024)
    A('s_mov_b32 s17, 0')
    A('s_mov_b32 s18, 0')
    def reads(s, buf):
        r = []
        for j in range(4):
            r.append(f'ds_read_b128 {vr(HB[buf]+4*j,4)}, v{cAh} offset:{(2*j+s)*1024}')
        for i in range(7):
            for rd in range(2):
                a = CW + i
                off = (2*s + rd) * 7168
                r.append(f'ds_read_b64_tr_b16 {vr(WB[buf]+4*i+2*rd,2)}, v{a} offset:{off}')
        return r
    def step(buf, rds, tail=None):
        k = 0; n = 0
        if noread: rds = []
        for i in range(7):
            for jj in range(4):
                j = jj if (i & 1) == 0 or not opt.get('snake', 1) else 3 - jj
                if not nomfma: mfma(A, ACC + (i*4+j)*4, WB[buf] + 4*i, HB[buf] + 4*j)
                if k < len(rds): A(rds[k]); k += 1
                n += 1
                if tail and n - 20 in tail:
                    for t in tail[n - 20]: A(t)
        A('s_waitcnt lgkmcnt(0)')
    st(1)
    A('s_barrier')
    st(2)
    if not noread:
        for r in reads(0, 0): A(r)
    A('s_waitcnt lgkmcnt(0)')
    A(f's_branch {name}_mid')
    A('.p2align 6')
    A.label(f'{name}_loop')
    A('s_barrier')
    tailA = {}
    if pfw: tailA = {0: [f'buffer_load_dword v{vPD}, v{vPF}, s[28:31], s51 offen'], 1: ['s_add_u32 s51, s51, 0x80000']}
    step(1, reads(0, 0), tailA)
    A.label(f'{name}_mid')
    tailB = {-3: [f's_add_u32 s17, s17, {SLOT1}', f's_cmp_eq_u32 s17, {3*SLOT1}'], -2: ['s_cselect_b32 s17, 0, s17', 's_add_u32 s18, s18, 1'],
             -1: [f'v_add_u32 v{cAh}, s17, v{vAh}', 's_cmp_le_u32 s18, 16']}
    for k in range(7): tailB[k] = [f'v_add_u32 v{CW+k}, s17, v{VW+k}']
    step(0, reads(1, 1), tailB)
    A(f's_cbranch_scc1 {name}_loop')
    st(3)
    A('s_and_b32 s52, s11, 1')
    A('s_mul_i32 s15, s11, 7')
    A('s_add_u32 s19, s15, s52')
    A('s_lshl_b32 s16, s14, 2')
    A('s_add_u32 s16, s16, s19')
    A('s_add_u32 s53, s16, 2')
    A('s_and_b32 s52, s52, s14')
    A('s_cmp_lg_u32 s52, 0')
    A('s_cselect_b32 s53, s15, s53')
    A('s_lshl_b32 s53, s53, 10')
    A('s_lshl_b32 s16, s16, 10')
    A('s_add_u32 s15, s19, 3')
    A('s_lshl_b32 s15, s15, 10')
    A('s_lshl_b32 s19, s14, 3')
    A('s_add_u32 s15, s15, s19')
    A('v_lshlrev_b32 v2, 4, v1')
    tmp = 8
    for j in range(4):
        for pp in range(4):
            tiles = [2*pp, 2*pp+1] if pp < 3 else [6]
            d = tmp + ((j*4+pp) % 8) * 4
            for n, i in enumerate(tiles):
                a = ACC + (i*4+j)*4
                for r in range(4): A(f'v_max_f32 v{a+r}, 0, v{a+r}')
                A(f'v_pk_mul_f32 {vr(a,2)}, {vr(a,2)}, {vr(a,2)}')
                A(f'v_pk_mul_f32 {vr(a+2,2)}, {vr(a+2,2)}, {vr(a+2,2)}')
                A(f'v_cvt_pk_bf16_f32 v{d+2*n}, v{a}, v{a+1}')
                A(f'v_cvt_pk_bf16_f32 v{d+2*n+1}, v{a+2}, v{a+3}')
            if pp < 2:
                A(f'buffer_store_dwordx4 {vr(d,4)}, v2, s[20:23], s16 offen offset:{pp*1024} {smod}')
            elif pp == 2:
                A(f'buffer_store_dwordx4 {vr(d,4)}, v2, s[20:23], s53 offen {smod}')
            else:
                A(f'buffer_store_dwordx2 {vr(d,2)}, v2, s[20:23], s15 offen {smod}')
        if j < 3:
            A(f's_add_u32 s16, s16, {112*1024}')
            A(f's_add_u32 s15, s15, {112*1024}')
            A(f's_add_u32 s53, s53, {112*1024}')
    st(4)
    A('s_waitcnt vmcnt(0)') if opt.get('stamp') else None
    st(5); st(6, True)
    st.dump(8, 0, 240)
    A('s_endpgm')
    A.label(f'{name}_loader')
    A('s_sub_u32 s12, s12, 4')
    A('s_lshl_b32 s15, s12, 16')
    A('v_lshlrev_b32 v8, 4, v1')
    A('v_add_u32 v8, s15, v8')
    A('v_add_u32 v9, 0x8000, v8')
    A('s_lshl_b32 s15, s12, 4')
    A('s_and_b32 s16, s11, 1')
    w_voffs(A, 10, 1, 15, 16, 4, range(7))
    A('s_lshl_b32 s43, s12, 12')
    A('s_mul_i32 s44, s12, 7168')
    A('s_add_u32 s44, s44, 16384')
    A('s_mov_b32 s40, 0')
    A('s_mov_b32 s41, 0')
    A('s_mov_b32 s42, 0')
    A('s_lshl_b32 s15, s12, 12')
    A('v_lshlrev_b32 v3, 4, v1')
    A('v_add_u32 v3, s15, v3')
    A('s_lshl_b32 s15, s10, 18')
    if opt.get('hot', 0) & 1: A('s_mov_b32 s15, 0')
    A(f's_add_u32 s15, s15, {HF_OFF}')
    A('s_mul_i32 s16, s11, 448')
    if opt.get('hot', 0) & 2: A('s_and_b32 s16, s11, 1'); A('s_mul_i32 s16, s16, 448')
    A(f's_sub_u32 s19, {1024*7168}, s16')
    A('s_waitcnt lgkmcnt(0)')
    srd(A, 20, 4, 's15', 256 * 1024)
    srd(A, 24, 64, 's16', 's19')
    def issue():
        if not noload:
            A('s_add_u32 m0, s40, s43')
            A('s_add_u32 s45, s40, s44')
            A('buffer_load_dwordx4 v8, s[20:23], s41 offen lds')
            A('buffer_load_dwordx4 v8, s[20:23], s41 offen offset:1024 lds')
            A('s_add_u32 m0, m0, 2048')
            A('s_nop 0')
            A('buffer_load_dwordx4 v9, s[20:23], s41 offen lds')
            A('buffer_load_dwordx4 v9, s[20:23], s41 offen offset:1024 lds')
            if not opt.get('hot', 0) & 4: A('s_add_u32 s41, s41, 2048')
            for q in range(7):
                A(f's_add_u32 m0, s45, {q*1024}')
                A('s_nop 0')
                A(f'buffer_load_dwordx4 v{10+q}, s[24:27], s42 offen lds')
            if not opt.get('hot', 0) & 8: A(f's_add_u32 s42, s42, {64*7168}')
        A(f's_add_u32 s40, s40, {SLOT1}')
        A(f's_cmp_eq_u32 s40, {3*SLOT1}')
        A('s_cselect_b32 s40, 0, s40')
    A('s_mov_b32 s18, 0')
    A.label(f'{name}_lpro')
    issue()
    A('s_add_u32 s18, s18, 1')
    A('s_cmp_lt_u32 s18, 3')
    A(f's_cbranch_scc1 {name}_lpro')
    A(f's_sub_u32 s19, 7168, s16')
    srd(A, 28, 66, 's16', 's19')
    A('s_lshl_b32 s15, s10, 14')
    A(f's_add_u32 s15, s15, {ST_OFF}')
    srd(A, 32, 4, 's15', 16384)
    A('s_lshl_b32 s15, s10, 9')
    A(f's_add_u32 s15, s15, {R2_OFF}')
    srd(A, 36, 4, 's15', 512)
    for k in range(4): A(f'buffer_load_dwordx4 {vr(40+4*k,4)}, v3, s[32:35], 0 offen offset:{1024*k}')
    srd(A, 52, 4, 38 * MB, 128 * 1024)
    A('s_lshl_b32 s15, s2, 2')
    A('s_add_u32 s15, s15, s12')
    A('s_lshl_b32 s15, s15, 7')
    A('v_mov_b32 v36, 0')
    A('buffer_store_dword v36, v36, s[52:55], s15 offen')
    srd(A, 56, 48, 0, 3584 * 2048)
    A('s_lshl_b32 s60, s15, 2')
    A('s_waitcnt vmcnt(27)')
    A('s_barrier')
    A('s_waitcnt vmcnt(16)')
    A('s_barrier')
    A.label(f'{name}_lloop')
    issue()
    if opt.get('spw', 1):
        for k in range(4): A(f's_buffer_load_dwordx2 s[62:63], s[56:59], s60 offset:{128*k + 60}')
        A('s_add_u32 s60, s60, 0x80000')
    A('s_add_u32 s18, s18, 1')
    A('s_cmp_lt_u32 s18, 16')
    A('s_waitcnt vmcnt(11)')
    A('s_barrier')
    A(f's_cbranch_scc1 {name}_lloop')
    if opt.get('spw', 1):
        for k in range(4): A(f's_buffer_load_dwordx2 s[62:63], s[56:59], s60 offset:{128*k + 60}')
    A('s_add_u32 s45, s40, s44')
    for q in range(7):
        A(f's_add_u32 m0, s45, {q*1024}')
        A('s_nop 0')
        A(f'buffer_load_dwordx4 v{10+q}, s[28:31], 0 offen lds')
    A('s_add_u32 s45, s40, s43')
    A('v_lshlrev_b32 v3, 4, v1')
    A('v_add_u32 v3, s45, v3')
    for i in range(4): A(f'v_mov_b32 v{32+i}, 0')
    A('ds_write_b128 v3, v[32:35]')
    A('ds_write_b128 v3, v[32:35] offset:2048')
    A('s_waitcnt vmcnt(7)')
    A('s_barrier')
    for k in range(4):
        A(f'v_add_f32 v{40+4*k}, v{40+4*k}, v{42+4*k}')
        A(f'v_add_f32 v{41+4*k}, v{41+4*k}, v{43+4*k}')
    for perm in ('quad_perm:[1,0,3,2]', 'quad_perm:[2,3,0,1]', 'row_half_mirror'):
        for k in range(4):
            for c in range(2):
                A(f'v_add_f32_dpp v{40+4*k+c}, v{40+4*k+c}, v{40+4*k+c} {perm} row_mask:0xf bank_mask:0xf')
    A('v_and_b32 v4, 3, v1')
    A('v_cmp_eq_u32 s[52:53], 1, v4')
    A('v_cmp_eq_u32 s[54:55], 2, v4')
    A('v_cmp_eq_u32 s[56:57], 3, v4')
    for c in range(2):
        A(f'v_cndmask_b32 v{20+c}, v{40+c}, v{44+c}, s[52:53]')
        A(f'v_cndmask_b32 v{20+c}, v{20+c}, v{48+c}, s[54:55]')
        A(f'v_cndmask_b32 v{20+c}, v{20+c}, v{52+c}, s[56:57]')
    ln_finish(A, 20, 21, 22, 23, 24, 47)
    A('v_lshrrev_b32 v28, 16, v23')
    A('v_mov_b32 v29, 0')
    A('v_mov_b32 v30, 0')
    A('v_mov_b32 v31, 0')
    A('v_lshrrev_b32 v5, 3, v1')
    A('v_lshl_add_u32 v2, v4, 3, v5')
    A('v_and_b32 v4, 15, v2')
    A('v_lshlrev_b32 v4, 4, v4')
    A('v_and_b32 v5, 16, v2')
    A('v_lshl_add_u32 v4, v5, 7, v4')
    A('v_add_u32 v4, s45, v4')
    A('ds_write_b128 v4, v[28:31]')
    A('s_waitcnt vmcnt(0) lgkmcnt(0)')
    A('s_barrier')
    A('s_cmp_lg_u32 s11, 0')
    A(f's_cbranch_scc1 {name}_end')
    A('v_mul_f32 v23, v23, v23')
    A('v_rcp_f32 v23, v23')
    A('s_lshl_b32 s15, s12, 7')
    A('v_lshlrev_b32 v2, 2, v2')
    A('buffer_store_dword v23, v2, s[36:39], s15 offen')
    A.label(f'{name}_end')
    A('s_endpgm')
    return dict(name=name, grid=256, block=512, lds=3*SLOT1, vgpr=224 if not opt.get('stamp') else 248)
```

```python
from common import *
from g1 import tr_bases

SLOT2 = 24576
NS2 = 6
def gen_g2(A, name='g2_kernel', opt=None):
    opt = opt or {}
    nomfma = opt.get('nomfma'); noload = opt.get('noload'); noread = opt.get('noread')
    smod = opt.get('smod', ''); spf = opt.get('spf', 0); PD = opt.get('pd', 3)
    khead(A, name)
    st = Stamper(A, opt.get('stamp'), 3)
    st(0); st(7, True)
    A('s_cmp_ge_u32 s2, 256')
    A(f's_cbranch_scc1 {name}_end')
    A('s_load_dwordx2 s[4:5], s[0:1], %d' % KA['ws'])
    A('s_load_dwordx4 s[48:51], s[0:1], %d' % KA['w2'])
    A('s_load_dwordx2 s[52:53], s[0:1], %d' % KA['out'])
    A('v_lshrrev_b32 v2, 6, v0')
    A('v_and_b32 v1, 63, v0')
    A('s_and_b32 s8, s2, 7')
    A('v_readfirstlane_b32 s12, v2')
    A('s_lshr_b32 s9, s2, 3')
    A('s_and_b32 s10, s8, 3')
    A('s_lshl_b32 s10, s10, 2')
    A('s_and_b32 s11, s9, 3')
    A('s_add_u32 s10, s10, s11')
    A('s_lshr_b32 s11, s8, 2')
    A('s_lshl_b32 s11, s11, 3')
    A('s_lshr_b32 s9, s9, 2')
    A('s_add_u32 s11, s11, s9')
    if opt.get('rot'):
        A(f's_add_u32 s11, s11, {opt["rot"]}')
        A('s_and_b32 s11, s11, 15')
    A('s_cmp_ge_u32 s12, 4')
    A(f's_cbranch_scc1 {name}_loader')
    ACC = 8; HB = [40, 72]; WB = [104, 120]
    EP = 136
    vAh, vAw, cAh, cAw, vAw1, cAw1 = 2, 3, 4, 5, 164, 165
    A('s_and_b32 s13, s12, 1')
    A('s_lshr_b32 s14, s12, 1')
    A('s_lshl_b32 s15, s13, 13')
    A(f'v_lshlrev_b32 v{vAh}, 4, v1')
    A(f'v_add_u32 v{vAh}, s15, v{vAh}')
    tr_bases(A, vAw, None, 1, 8, bandG=1024)
    A('s_lshl_b32 s15, s14, 6')
    A(f'v_xor_b32 v{vAw}, s15, v{vAw}')
    A(f'v_add_u32 v{vAw}, 16384, v{vAw}')
    A(f'v_xor_b32 v{vAw1}, 32, v{vAw}')
    A(f'v_mov_b32 v{cAh}, v{vAh}')
    A(f'v_mov_b32 v{cAw}, v{vAw}')
    A(f'v_mov_b32 v{cAw1}, v{vAw1}')
    for i in range(32): A(f'v_mov_b32 v{ACC+i}, 0')
    A('s_lshl_b32 s15, s10, 1')
    A('s_add_u32 s15, s15, s13')
    A('s_lshl_b32 s16, s15, 17')
    A(f's_add_u32 s16, s16, {HF_OFF}')
    A('s_lshl_b32 s19, s15, 8')
    A(f's_add_u32 s19, s19, {R2_OFF}')
    A('s_mov_b32 s17, 0')
    A('s_mov_b32 s18, 0')
    A('s_waitcnt lgkmcnt(0)')
    srd(A, 20, 4, 's16', 128 * 1024)
    srd(A, 24, 4, 's19', 256)
    srd(A, 28, 50, 0, 2048)
    srd(A, 32, 52, 0, 2048 * 2048)
    def reads(buf):
        r = []
        for s in range(2):
            for i in range(2):
                for rd in range(2):
                    r.append(f'ds_read_b64_tr_b16 {vr(WB[buf]+8*s+4*i+2*rd,2)}, v{cAw1 if i else cAw} offset:{(4*s+2*rd)*1024}')
            for j in range(4):
                r.append(f'ds_read_b128 {vr(HB[buf]+16*s+4*j,4)}, v{cAh} offset:{(2*j+s)*1024}')
        return r
    def adv():
        A(f's_add_u32 s17, s17, {SLOT2}')
        A(f's_cmp_eq_u32 s17, {NS2*SLOT2}')
        A('s_cselect_b32 s17, 0, s17')
        A(f'v_add_u32 v{cAh}, s17, v{vAh}')
        A(f'v_add_u32 v{cAw}, s17, v{vAw}')
        A(f'v_add_u32 v{cAw1}, s17, v{vAw1}')
    def step(buf, rds, tail=None):
        k = 0
        if noread: rds = []
        n = 0
        for s in range(2):
            for i in range(2):
                for j in range(4):
                    if not nomfma: mfma(A, ACC + (i*4+j)*4, WB[buf] + 8*s + 4*i, HB[buf] + 16*s + 4*j)
                    for _ in range(2):
                        if k < len(rds): A(rds[k]); k += 1
                    n += 1
                    if n == 10 and tail: tail()
        A('s_waitcnt lgkmcnt(0)')
    st(1)
    A('s_barrier')
    st(2)
    if not noread:
        for r in reads(0): A(r)
    adv()
    A('s_lshl_b32 s16, s11, 1')
    A('s_add_u32 s16, s16, s14')
    A('s_lshl_b32 s19, s16, 10')
    A('v_lshlrev_b32 v6, 4, v1')
    for j in range(4):
        A(f'buffer_load_dwordx4 {vr(EP+4*j,4)}, v6, s[20:23], s19 offen')
        if j < 3: A('s_add_u32 s19, s19, 32768')
    A('v_and_b32 v6, 15, v1')
    A('v_lshlrev_b32 v6, 2, v6')
    for j in range(4):
        A(f'buffer_load_dword v{EP+16+j}, v6, s[24:27], 0 offen offset:{64*j}')
    A('v_lshrrev_b32 v6, 4, v1')
    A('v_lshlrev_b32 v6, 3, v6')
    A('s_lshl_b32 s19, s16, 6')
    A(f'buffer_load_dwordx2 {vr(EP+20,2)}, v6, s[28:31], s19 offen')
    A(f'buffer_load_dwordx2 {vr(EP+22,2)}, v6, s[28:31], s19 offen offset:32')
    A('s_waitcnt lgkmcnt(0)')
    A(f's_branch {name}_mid')
    A('.p2align 6')
    A.label(f'{name}_loop')
    A('s_barrier')
    step(1, reads(0), adv)
    A.label(f'{name}_mid')
    A('s_barrier')
    def tail2():
        adv()
        A('s_add_u32 s18, s18, 1')
        A('s_cmp_lt_u32 s18, 28')
    step(0, reads(1), tail2)
    A(f's_cbranch_scc1 {name}_loop')
    step(1, [])
    st(3)
    A('s_waitcnt vmcnt(0)')
    B = 104
    for i in range(2):
        for q in range(2):
            A(f'v_lshlrev_b32 v{B+4*i+2*q}, 16, v{EP+20+2*i+q}')
            A(f'v_and_b32 v{B+4*i+2*q+1}, 0xffff0000, v{EP+20+2*i+q}')
    A('v_and_b32 v6, 15, v1')
    A('v_lshlrev_b32 v6, 16, v6')
    A('v_lshrrev_b32 v7, 4, v1')
    A('v_and_b32 v2, 1, v7')
    A('v_lshl_add_u32 v6, v2, 5, v6')
    A('v_lshrrev_b32 v7, 1, v7')
    A('v_lshl_add_u32 v6, v7, 4, v6')
    A('s_lshl_b32 s19, s15, 11')
    A('s_lshl_b32 s16, s16, 6')
    A('s_add_u32 s19, s19, s16')
    T = 40
    for j in range(4):
        d = T + 16*j
        for i in range(2):
            a = ACC + (i*4+j)*4
            for q in range(2):
                hreg = EP + 4*j + 2*i + q
                A(f'v_lshlrev_b32 v{d+4+2*q}, 16, v{hreg}')
                A(f'v_and_b32 v{d+5+2*q}, 0xffff0000, v{hreg}')
            for r in range(4):
                A(f'v_fma_f32 v{a+r}, v{a+r}, v{EP+16+j}, v{B+4*i+r}')
            for r in range(4):
                A(f'v_add_f32 v{a+r}, v{a+r}, v{d+4+r}')
            A(f'v_cvt_pk_bf16_f32 v{d+2*i}, v{a}, v{a+1}')
            A(f'v_cvt_pk_bf16_f32 v{d+2*i+1}, v{a+2}, v{a+3}')
        A(f'v_permlane16_swap_b32 v{d}, v{d+2}')
        A(f'v_permlane16_swap_b32 v{d+1}, v{d+3}')
        A(f'buffer_store_dwordx4 {vr(d,4)}, v6, s[32:35], s19 offen {smod}')
        if j < 3: A(f's_add_u32 s19, s19, {16*32*2048}')
    st(4)
    A('s_waitcnt vmcnt(0)') if opt.get('stamp') else None
    st(5); st(6, True)
    st.dump(8, 0, 160)
    A('s_endpgm')
    A.label(f'{name}_loader')
    A('s_sub_u32 s12, s12, 4')
    A(f's_mul_i32 s15, s12, {2*112*1024}')
    A('v_lshlrev_b32 v8, 4, v1')
    A('v_add_u32 v8, s15, v8')
    A(f'v_add_u32 v9, {112*1024}, v8')
    A('v_lshrrev_b32 v4, 3, v1')
    A('s_lshl_b32 s15, s12, 4')
    A('v_add_u32 v4, s15, v4')
    A('v_lshlrev_b32 v4, 11, v4')
    A('v_and_b32 v5, 1, v1')
    A('v_lshl_add_u32 v4, v5, 4, v4')
    A('v_lshrrev_b32 v5, 4, v1')
    A('v_lshrrev_b32 v6, 1, v1')
    A('v_xor_b32 v5, v5, v6')
    A('v_and_b32 v5, 3, v5')
    A('v_lshl_add_u32 v10, v5, 5, v4')
    A(f'v_add_u32 v11, {16384 - 1024}, v10')
    A('s_lshl_b32 s43, s12, 12')
    A('s_lshl_b32 s44, s12, 11')
    A('s_add_u32 s44, s44, 16384')
    A('s_mov_b32 s40, 0')
    A('s_mov_b32 s41, 0')
    A('s_mov_b32 s42, 0')
    A(f's_mul_i32 s15, s10, {8*112*1024}')
    A(f's_add_u32 s15, s15, {G_OFF}')
    A('s_lshl_b32 s16, s11, 7')
    A(f's_sub_u32 s19, {3584*2048}, s16')
    A('s_waitcnt lgkmcnt(0)')
    srd(A, 20, 4, 's15', 8 * 112 * 1024)
    srd(A, 24, 48, 's16', 's19')
    if spf:
        A(f's_mul_i32 s54, s9, {112*1024}')
        A('s_lshl_b32 s55, s12, 8')
        A('s_add_u32 s54, s54, s55')
        A(f's_add_u32 s54, s54, {NS2*2048}')
        A('s_lshr_b32 s55, s2, 3')
        A('s_and_b32 s55, s55, 3')
        A('s_lshl_b32 s55, s55, 3')
        A('s_add_u32 s55, s55, s12')
        A('s_lshl_b32 s55, s55, 12')
        A(f's_add_u32 s55, s55, {NS2*64*2048}')
    def pf():
        if not spf: return
        A('s_buffer_load_dwordx2 s[56:57], s[20:23], s54 offset:60')
        A('s_buffer_load_dwordx2 s[56:57], s[24:27], s55 offset:60')
        A('s_buffer_load_dwordx2 s[56:57], s[20:23], s54 offset:188')
        A('s_buffer_load_dwordx2 s[56:57], s[24:27], s55 offset:2108')
        A('s_add_u32 s54, s54, 2048')
        A(f's_add_u32 s55, s55, {64*2048}')
    if spf:
        A('s_cmp_ge_u32 s12, 4')
        A(f's_cbranch_scc0 {name}_ld2')
        for k in range(PD): pf()
        A('s_barrier')
        A('s_mov_b32 s18, 1')
        A.label(f'{name}_ploop')
        A('s_barrier')
        pf()
        A('s_add_u32 s18, s18, 1')
        A('s_cmp_lt_u32 s18, 56')
        A(f's_cbranch_scc1 {name}_ploop')
        A('s_endpgm')
        A.label(f'{name}_ld2')
    def issue():
        if not noload:
            A('s_add_u32 m0, s40, s43')
            A('s_add_u32 s45, s40, s44')
            for s in range(2): A(f'buffer_load_dwordx4 v8, s[20:23], s41 offen offset:{s*1024} lds')
            A('s_add_u32 m0, m0, 2048')
            A('s_nop 0')
            for s in range(2): A(f'buffer_load_dwordx4 v9, s[20:23], s41 offen offset:{s*1024} lds')
            A('s_mov_b32 m0, s45')
            A('s_add_u32 s41, s41, 2048')
            A(f'buffer_load_dwordx4 v10, s[24:27], s42 offen lds')
            A(f'buffer_load_dwordx4 v11, s[24:27], s42 offen offset:1024 lds')
            A(f's_add_u32 s42, s42, {64*2048}')
        A(f's_add_u32 s40, s40, {SLOT2}')
        A(f's_cmp_eq_u32 s40, {NS2*SLOT2}')
        A('s_cselect_b32 s40, 0, s40')
    A('s_mov_b32 s18, 0')
    A.label(f'{name}_lpro')
    issue()
    A('s_add_u32 s18, s18, 1')
    A(f's_cmp_lt_u32 s18, {NS2}')
    A(f's_cbranch_scc1 {name}_lpro')
    for k in range(PD): pf()
    A(f's_waitcnt vmcnt({6*(NS2-1)})')
    A('s_barrier')
    A(f's_waitcnt vmcnt({6*(NS2-2)})')
    A('s_barrier')
    A.label(f'{name}_lloop')
    issue()
    pf()
    A('s_add_u32 s18, s18, 1')
    A('s_cmp_lt_u32 s18, 56')
    A(f's_waitcnt vmcnt({6*(NS2-2)})')
    A('s_barrier')
    A(f's_cbranch_scc1 {name}_lloop')
    for k in range(NS2-3, -1, -1):
        A(f's_waitcnt vmcnt({6*k})')
        A('s_barrier')
    A.label(f'{name}_end')
    A('s_endpgm')
    return dict(name=name, grid=256, block=768 if spf else 512, lds=NS2*SLOT2, vgpr=168)
```

```python
from common import *
from g1 import tr_bases

SLOT = 32768
PX_OFF = 29 * MB
FL_OFF = 38 * MB
def gen_g2(A, name='g2_kernel', opt=None):
    opt = opt or {}
    nomfma = opt.get('nomfma'); noload = opt.get('noload'); noread = opt.get('noread')
    smod = opt.get('smod', ''); NS = opt.get('ns', 4); N2 = opt.get('n2', 8); N1 = (56 - N2) // 2
    SIG = opt.get('sig', 3); POLL = opt.get('poll', N2 - 3)
    S1 = opt.get('s1', 16)
    assert 2 * N1 + N2 == 56 and 1 <= SIG < POLL < N2 - 1
    khead(A, name)
    st = Stamper(A, opt.get('stamp'), 3)
    st(0); st(7, True)
    A('s_cmp_ge_u32 s2, 256')
    A(f's_cbranch_scc1 {name}_end')
    A('s_load_dwordx2 s[4:5], s[0:1], %d' % KA['ws'])
    A('s_load_dwordx4 s[48:51], s[0:1], %d' % KA['w2'])
    A('s_load_dwordx2 s[52:53], s[0:1], %d' % KA['out'])
    A('v_lshrrev_b32 v2, 6, v0')
    A('v_and_b32 v1, 63, v0')
    A('s_and_b32 s8, s2, 1')
    A('v_readfirstlane_b32 s12, v2')
    A('s_lshr_b32 s9, s2, 3')
    A('s_and_b32 s10, s2, 6')
    A('s_lshl_b32 s10, s10, 1')
    A('s_and_b32 s11, s9, 3')
    A('s_add_u32 s10, s10, s11')
    A('s_lshr_b32 s11, s9, 2')
    A('s_lshl_b32 s11, s11, 1')
    A('s_add_u32 s11, s11, s8')
    A('s_cmp_ge_u32 s12, 4')
    A(f's_cbranch_scc1 {name}_loader')
    AO = 8; AX = 40; HB = [72, 88]; WO = [104, 112]; WX = [120, 128]; EP = 136; PR = 164
    vAh, vAw, cAh, cAw, vAw1, cAw1, vL16, vFl = 2, 3, 4, 5, 6, 7, 196, 197
    A('s_and_b32 s13, s12, 1')
    A('s_lshr_b32 s14, s12, 1')
    A('s_lshl_b32 s15, s13, 13')
    A(f'v_lshlrev_b32 v{vL16}, 4, v1')
    A(f'v_add_u32 v{vAh}, s15, v{vL16}')
    tr_bases(A, vAw, None, 1, 8, bandG=1024)
    A('s_lshl_b32 s15, s14, 6')
    A(f'v_xor_b32 v{vAw}, s15, v{vAw}')
    A(f'v_add_u32 v{vAw}, 16384, v{vAw}')
    A(f'v_xor_b32 v{vAw1}, 32, v{vAw}')
    A(f'v_mov_b32 v{cAh}, v{vAh}')
    A(f'v_mov_b32 v{cAw}, v{vAw}')
    A(f'v_mov_b32 v{cAw1}, v{vAw1}')
    A(f'v_mov_b32 v{vFl}, 0')
    for i in range(64): A(f'v_mov_b32 v{AO+i}, 0')
    A('s_lshl_b32 s15, s10, 1')
    A('s_add_u32 s15, s15, s13')
    A('s_lshl_b32 s16, s15, 17')
    A(f's_add_u32 s16, s16, {HF_OFF}')
    A('s_lshl_b32 s19, s15, 8')
    A(f's_add_u32 s19, s19, {R2_OFF}')
    A('s_lshl_b32 s54, s2, 2')
    A('s_add_u32 s54, s54, s12')
    A('s_xor_b32 s55, s54, 4')
    A('s_lshl_b32 s56, s54, 13')
    A('s_lshl_b32 s57, s55, 13')
    A('s_lshl_b32 s54, s54, 7')
    A('s_lshl_b32 s55, s55, 7')
    A('s_mov_b32 s17, 0')
    A('s_mov_b32 s18, 0')
    A('s_waitcnt lgkmcnt(0)')
    srd(A, 20, 4, 's16', 128 * 1024)
    srd(A, 24, 4, 's19', 256)
    A(f's_add_u32 s19, s19, {MU_OFF - R2_OFF + (1 << 32) if MU_OFF < R2_OFF else MU_OFF - R2_OFF}')
    srd(A, 44, 4, 's19', 256)
    srd(A, 28, 50, 0, 2048)
    srd(A, 32, 52, 0, 2048 * 2048)
    srd(A, 36, 4, PX_OFF, 8 * MB)
    srd(A, 40, 4, FL_OFF, 128 * 1024)
    def reads(s, buf, full):
        r = []
        for i in range(2):
            for rd in range(2):
                r.append(f'ds_read_b64_tr_b16 {vr(WO[buf]+4*i+2*rd,2)}, v{cAw1 if i else cAw} offset:{(4*s+2*rd)*1024}')
        for j in range(4):
            r.append(f'ds_read_b128 {vr(HB[buf]+4*j,4)}, v{cAh} offset:{(2*j+s)*1024}')
        if full:
            for i in range(2):
                for rd in range(2):
                    r.append(f'ds_read_b64_tr_b16 {vr(WX[buf]+4*i+2*rd,2)}, v{cAw1 if i else cAw} offset:{8192 + (4*s+2*rd)*1024}')
        return r
    ADV = [[f's_add_u32 s17, s17, {SLOT}', f's_cmp_eq_u32 s17, {NS*SLOT}'], ['s_cselect_b32 s17, 0, s17', f'v_add_u32 v{cAh}, s17, v{vAh}'],
           [f'v_add_u32 v{cAw}, s17, v{vAw}'], [f'v_add_u32 v{cAw1}, s17, v{vAw1}']]
    def step(buf, full, rds, tail=(), xfirst=False):
        if noread: rds = []
        seq = []
        order = ([(AX, WX)] if full else []) + [(AO, WO)] if xfirst else [(AO, WO)] + ([(AX, WX)] if full else [])
        for acc, W in order:
            for i in range(2):
                for jj in range(4):
                    j = jj if i == 0 else 3 - jj
                    seq.append((acc + (i*4+j)*4, W[buf] + 4*i, HB[buf] + 4*j))
        per = 1 if len(rds) + len(tail) <= len(seq) else 2
        fill = [[x] for x in rds]
        if per == 2: fill = [sum(fill[k:k+2], []) for k in range(0, len(fill), 2)]
        fill += list(tail)
        for n, (d, a, b) in enumerate(seq):
            if not nomfma: mfma(A, d, a, b)
            if n < len(fill):
                for x in fill[n]: A(x)
        for f in fill[len(seq):]:
            for x in f: A(x)
        A('s_waitcnt lgkmcnt(0)')
    st(1)
    A('s_barrier')
    st(2)
    if not noread:
        for r in reads(0, 0, True): A(r)
    A('s_lshl_b32 s16, s11, 1')
    A('s_add_u32 s16, s16, s14')
    A('s_lshl_b32 s19, s16, 10')
    for j in range(4):
        A(f'buffer_load_dwordx4 {vr(EP+4*j,4)}, v{vL16}, s[20:23], s19 offen')
        if j < 3: A('s_add_u32 s19, s19, 32768')
    A(f'v_and_b32 v{PR}, 15, v1')
    A(f'v_lshlrev_b32 v{PR}, 2, v{PR}')
    for j in range(4):
        A(f'buffer_load_dword v{EP+16+j}, v{PR}, s[24:27], 0 offen offset:{64*j}')
        A(f'buffer_load_dword v{EP+24+j}, v{PR}, s[44:47], 0 offen offset:{64*j}')
    A(f'v_lshrrev_b32 v{PR+1}, 4, v1')
    A(f'v_lshlrev_b32 v{PR+1}, 3, v{PR+1}')
    A('s_lshl_b32 s19, s16, 6')
    A(f'buffer_load_dwordx2 {vr(EP+20,2)}, v{PR+1}, s[28:31], s19 offen')
    A(f'buffer_load_dwordx2 {vr(EP+22,2)}, v{PR+1}, s[28:31], s19 offen offset:32')
    A('s_waitcnt lgkmcnt(0)')
    A(f's_branch {name}_mid')
    A('.p2align 6')
    A.label(f'{name}_loop')
    A('s_barrier')
    step(1, True, reads(0, 0, True))
    A.label(f'{name}_mid')
    step(0, True, reads(1, 1, True), ADV[:3] + [ADV[3] + ['s_add_u32 s18, s18, 1', f's_cmp_lt_u32 s18, {N1}']])
    A(f's_cbranch_scc1 {name}_loop')
    st(8)
    for it in range(N2):
        if opt.get('fine') and it in opt['fine']: st(9 + opt['fine'].index(it))
        A('s_barrier')
        if it == 0:
            step(1, True, reads(0, 0, False), xfirst=True)
            for k in range(8):
                if k == 4: A('s_add_u32 s56, s56, 4096')
                A(f'buffer_store_dwordx4 {vr(AX+4*k,4)}, v{vL16}, s[36:39], s56 offen offset:{(k&3)*1024} sc1')
        else:
            if it == SIG:
                A('s_waitcnt vmcnt(0)')
                A(f'v_mov_b32 v{PR}, 1')
                A(f'buffer_store_dword v{PR}, v{vFl}, s[40:43], s54 offen sc1')
            if it == POLL:
                A(f'buffer_load_dword v{PR+1}, v{vFl}, s[40:43], s55 offen sc1')
            if it == POLL + 1:
                A.label(f'{name}_poll')
                A('s_waitcnt vmcnt(0)')
                A(f'v_readfirstlane_b32 s58, v{PR+1}')
                A('s_cmp_eq_u32 s58, 1')
                A(f's_cbranch_scc1 {name}_got')
                A('s_sleep 2')
                A(f'buffer_load_dword v{PR+1}, v{vFl}, s[40:43], s55 offen sc1')
                A(f's_branch {name}_poll')
                A.label(f'{name}_got')
                for k in range(8):
                    if k == 4: A('s_add_u32 s57, s57, 4096')
                    A(f'buffer_load_dwordx4 {vr(PR+4*k,4)}, v{vL16}, s[36:39], s57 offen offset:{(k&3)*1024} sc1')
            step(1, False, reads(0, 0, False))
        step(0, False, reads(1, 1, False), ADV if it < N2 - 1 else ())
    step(1, False, [])
    st(3)
    B = 104
    A('v_and_b32 v6, 15, v1')
    A(f'v_lshlrev_b32 v6, {16 if S1 == 32 else 15}, v6')
    A('v_lshrrev_b32 v7, 4, v1')
    A('v_and_b32 v2, 1, v7')
    A('v_lshl_add_u32 v6, v2, 5, v6')
    A('v_lshrrev_b32 v7, 1, v7')
    A('v_lshl_add_u32 v6, v7, 4, v6')
    if S1 == 32:
        A('s_lshl_b32 s19, s15, 11')
    else:
        A('s_lshl_b32 s19, s10, 11')
        A('s_lshl_b32 s15, s13, 21')
        A('s_add_u32 s19, s19, s15')
    A('s_lshl_b32 s16, s16, 6')
    A('s_add_u32 s19, s19, s16')
    A('s_waitcnt vmcnt(0)')
    for i in range(2):
        for q in range(2):
            A(f'v_lshlrev_b32 v{B+4*i+2*q}, 16, v{EP+20+2*i+q}')
            A(f'v_and_b32 v{B+4*i+2*q+1}, 0xffff0000, v{EP+20+2*i+q}')
    T = 40
    for j in range(4):
        d = T + 8*j
        for i in range(2):
            a = AO + (i*4+j)*4; pr = PR + (i*4+j)*4
            for q in range(2):
                hreg = EP + 4*j + 2*i + q
                A(f'v_lshlrev_b32 v{d+4+2*q}, 16, v{hreg}')
                A(f'v_and_b32 v{d+5+2*q}, 0xffff0000, v{hreg}')
            for q in range(2):
                A(f'v_pk_add_f32 {vr(a+2*q,2)}, {vr(a+2*q,2)}, {vr(pr+2*q,2)}')
                A(f'v_pk_add_f32 {vr(d+4+2*q,2)}, {vr(d+4+2*q,2)}, {vr(B+4*i+2*q,2)}')
            for r in range(4):
                A(f'v_add_f32 v{d+4+r}, v{d+4+r}, v{EP+24+j}')
            for r in range(4):
                A(f'v_fma_f32 v{a+r}, v{a+r}, v{EP+16+j}, v{d+4+r}')
            A(f'v_cvt_pk_bf16_f32 v{d+2*i}, v{a}, v{a+1}')
            A(f'v_cvt_pk_bf16_f32 v{d+2*i+1}, v{a+2}, v{a+3}')
        A(f'v_permlane16_swap_b32 v{d}, v{d+2}')
        A(f'v_permlane16_swap_b32 v{d+1}, v{d+3}')
        A(f'buffer_store_dwordx4 {vr(d,4)}, v6, s[32:35], s19 offen {smod}')
        if j < 3: A(f's_add_u32 s19, s19, {16*S1*2048}')
    st(4)
    A('s_waitcnt vmcnt(0)') if opt.get('stamp') else None
    st(5); st(6, True)
    st.dump(13 if opt.get('fine') else 9, 0, 200)
    A('s_endpgm')
    A.label(f'{name}_loader')
    A('s_sub_u32 s12, s12, 4')
    A(f's_mul_i32 s15, s12, {2*112*1024}')
    A('v_lshlrev_b32 v8, 4, v1')
    A('v_add_u32 v8, s15, v8')
    A(f'v_add_u32 v9, {112*1024}, v8')
    A('v_lshrrev_b32 v4, 3, v1')
    A('s_lshl_b32 s15, s12, 4')
    A('v_add_u32 v4, s15, v4')
    A('v_lshlrev_b32 v4, 11, v4')
    A('v_and_b32 v5, 1, v1')
    A('v_lshl_add_u32 v4, v5, 4, v4')
    A('v_lshrrev_b32 v5, 4, v1')
    A('v_lshrrev_b32 v6, 1, v1')
    A('v_xor_b32 v5, v5, v6')
    A('v_and_b32 v5, 3, v5')
    A('v_lshl_add_u32 v10, v5, 5, v4')
    A('s_lshl_b32 s15, s8, 7')
    A('v_add_u32 v10, s15, v10')
    A(f'v_add_u32 v11, {16384 - 1024}, v10')
    A('v_xor_b32 v12, 128, v10')
    A(f'v_add_u32 v13, {16384 - 1024}, v12')
    A('s_lshl_b32 s43, s12, 12')
    A('s_lshl_b32 s44, s12, 11')
    A('s_add_u32 s44, s44, 16384')
    A('s_mov_b32 s40, 0')
    A(f's_mul_i32 s41, s8, {(56-N1)*2048}')
    A(f's_mul_i32 s42, s8, {(56-N1)*64*2048}')
    A(f's_mul_i32 s15, s10, {8*112*1024}')
    A(f's_add_u32 s15, s15, {G_OFF}')
    A('s_lshr_b32 s16, s11, 1')
    A('s_lshl_b32 s16, s16, 8')
    A(f's_sub_u32 s19, {3584*2048}, s16')
    A('s_waitcnt lgkmcnt(0)')
    srd(A, 20, 4, 's15', 8 * 112 * 1024)
    srd(A, 24, 48, 's16', 's19')
    def issue(full):
        if not noload:
            A('s_add_u32 m0, s40, s43')
            A('s_add_u32 s45, s40, s44')
            for s in range(2): A(f'buffer_load_dwordx4 v8, s[20:23], s41 offen offset:{s*1024} lds')
            A('s_add_u32 m0, m0, 2048')
            A('s_nop 0')
            for s in range(2): A(f'buffer_load_dwordx4 v9, s[20:23], s41 offen offset:{s*1024} lds')
            A('s_mov_b32 m0, s45')
            A('s_add_u32 s41, s41, 2048')
            A(f'buffer_load_dwordx4 v10, s[24:27], s42 offen lds')
            A(f'buffer_load_dwordx4 v11, s[24:27], s42 offen offset:1024 lds')
            if full:
                A('s_add_u32 m0, s45, 8192')
                A('s_nop 0')
                A(f'buffer_load_dwordx4 v12, s[24:27], s42 offen lds')
                A(f'buffer_load_dwordx4 v13, s[24:27], s42 offen offset:1024 lds')
            A(f's_add_u32 s42, s42, {64*2048}')
        A(f's_add_u32 s40, s40, {SLOT}')
        A(f's_cmp_eq_u32 s40, {NS*SLOT}')
        A('s_cselect_b32 s40, 0, s40')
    NT = N1 + N2
    cnt = lambda s: 0 if s >= NT else (8 if s < N1 else 6)
    A('s_mov_b32 s18, 0')
    A.label(f'{name}_lpro')
    issue(True)
    A('s_add_u32 s18, s18, 1')
    A(f's_cmp_lt_u32 s18, {NS}')
    A(f's_cbranch_scc1 {name}_lpro')
    A(f's_waitcnt vmcnt({8*(NS-1)})')
    A('s_barrier')
    A(f's_waitcnt vmcnt({8*(NS-2)})')
    A('s_barrier')
    A.label(f'{name}_lloop')
    issue(True)
    A('s_add_u32 s18, s18, 1')
    A(f's_cmp_lt_u32 s18, {N1}')
    A(f's_waitcnt vmcnt({8*(NS-2)})')
    A('s_barrier')
    A(f's_cbranch_scc1 {name}_lloop')
    A(f's_mov_b32 s41, {N1*2048}')
    A(f's_mov_b32 s42, {N1*64*2048}')
    for j in range(N1 - NS + 1, NT - 1):
        s = j + NS - 1
        if s < NT: issue(False)
        A(f's_waitcnt vmcnt({sum(cnt(x) for x in range(j + 2, j + NS))})')
        A('s_barrier')
    A.label(f'{name}_end')
    A('s_endpgm')
    return dict(name=name, grid=256, block=512, lds=NS*SLOT, vgpr=204)
```

```python
from common import *

XP = 2112; NP = 80; ZP = 1312
ZB = 16 * XP
RB = ZB + 16 * ZP
FA_LDS = RB + 64

def gen_fa(A, name='fa_kernel', opt=None):
    opt = opt or {}
    smod = opt.get('smod', 'sc1'); xmod = opt.get('xmod', 'nt')
    khead(A, name)
    st = Stamper(A, opt.get('stamp'), 0)
    st(0); st(7, True)
    A('s_cmp_ge_u32 s2, 256')
    A(f's_cbranch_scc1 {name}_end')
    A('s_load_dwordx2 s[6:7], s[0:1], %d' % KA['x'])
    A('s_load_dwordx2 s[4:5], s[0:1], %d' % KA['ws'])
    A('s_load_dwordx2 s[8:9], s[0:1], %d' % KA['w1'])
    if opt.get('cpf', 1):
        A('s_getpc_b64 s[36:37]')
        A(f's_mov_b32 s38, CODE_END-{name}-64')
        A('s_mov_b32 s39, 0x20000')
        A('s_lshr_b32 s13, s2, 3')
        A('s_lshl_b32 s13, s13, 7')
        A('v_lshlrev_b32 v4, 12, v0')
        A('buffer_load_dword v88, v4, s[36:39], s13 offen')
    A('v_lshrrev_b32 v2, 6, v0')
    A('v_and_b32 v1, 63, v0')
    A('s_and_b32 s13, s2, 7')
    A('v_readfirstlane_b32 s12, v2')
    A('s_lshr_b32 s14, s2, 3')
    A('s_and_b32 s11, s14, 1')
    A('s_sub_u32 s15, 16, s13')
    A('s_cmp_eq_u32 s13, 0')
    A('s_cselect_b32 s15, 8, s15')
    A('s_bitcmp1_b32 s14, 1')
    A('s_cselect_b32 s10, s15, s13')
    A('s_lshr_b32 s15, s14, 2')
    A('s_lshl_b32 s15, s15, 4')
    A('s_add_u32 s10, s10, s15')
    A('v_lshrrev_b32 v4, 5, v1')
    A('v_lshlrev_b32 v4, 1, v4')
    A('v_xor_b32 v4, v4, v1')
    A('v_lshlrev_b32 v14, 4, v4')
    A('s_lshl_b32 s13, s12, 9')
    A('s_add_u32 s13, s13, s10')
    A('s_lshl_b32 s63, s13, 2')
    A('s_lshl_b32 s13, s13, 11')
    A(f's_mul_i32 s14, s12, {4*XP}')
    vn, vg = 2, 3
    M1, TC, TS, M2C, M2S, SA1, SA2, SGN, MU, ONES = 16, 24, 40, 56, 60, 64, 68, 72, 73, 76
    GA, SA = 80, 84
    vSt, vTr0, vTr1, vZw, vZr, vU, vE, vE0, vZx, vX0, vZ0 = 108, 90, 91, 92, 93, 94, 95, 96, 97, 98, 99
    F = 112; T = 144; AF = 208; TMP = 112; P = 128; D = 240
    A(f'v_and_b32 v{vn}, 15, v1')
    A(f'v_lshrrev_b32 v{vg}, 4, v1')
    A('s_lshl_b32 s43, s11, 4')
    A('s_add_u32 s43, s43, 1')
    A(f'v_and_b32 v5, 7, v{vn}')
    A('v_add_u32 v5, s43, v5')
    A('v_cvt_f32_u32 v5, v5')
    A(f'v_and_b32 v6, 8, v{vn}')
    A(f'v_cvt_f32_u32 v7, v{vg}')
    A('v_cvt_f32_u32 v8, v6')
    A('v_mul_f32 v9, 0x3d000000, v5')
    A('v_mul_f32 v8, 0x3d000000, v8')
    A('v_mul_f32 v12, 0x41000000, v7')
    A('v_fmac_f32 v8, v12, v9')
    def m1(hh8, th, dl):
        for j in range(8):
            if j: A(f'v_add_f32 v{th}, v{th}, v{dl}')
            A(f'v_cos_f32 v{10 + (j & 1)}, v{th}')
            if j & 1: A(f'v_cvt_pk_bf16_f32 v{M1 + 4*hh8 + j//2}, v10, v11')
    A('v_mov_b32 v13, v8')
    m1(0, 8, 9)
    A('s_waitcnt lgkmcnt(0)')
    srd(A, 20, 6, 0, 2048 * 2048)
    for r in range(4):
        A(f's_add_u32 m0, s14, {r*XP}')
        A('s_nop 0')
        A(f'buffer_load_dwordx4 v14, s[20:23], s13 offen {xmod} lds')
        A(f'buffer_load_dwordx4 v14, s[20:23], s13 offen offset:1024 {xmod} lds')
        if r < 3: A(f's_add_u32 s13, s13, {128*2048}')
    A('v_add_f32 v9, 0x3e800000, v9')
    m1(1, 13, 9)
    A(f'v_lshlrev_b32 v9, 28, v6')
    A(f'v_lshrrev_b32 v10, 16, v9')
    A(f'v_or_b32 v{SGN}, v9, v10')
    A('v_mul_f32 v12, 4.0, v7')
    for hh8 in range(2):
        if hh8: A('v_add_f32 v5, 0x41000000, v5')
        A('v_mul_f32 v13, 0x3a800000, v5')
        A('v_xor_b32 v15, v9, v13')
        A('v_mul_f32 v8, v12, v15')
        for hh in range(2):
            for r in range(4):
                o = 8*hh8 + 4*hh + r
                if r: A('v_add_f32 v8, v8, v15')
                elif hh: A('v_fmac_f32 v8, 0x41500000, v15')
                A(f'v_cos_f32 v{TC+o}, v8')
                A(f'v_sin_f32 v{TS+o}, v8')
    A('s_cmp_eq_u32 s11, 1')
    A('s_cselect_b32 s44, 0xc2000000, 0')
    A(f'v_mov_b32 v{MU}, s44')
    A(f'v_cmp_eq_u32 vcc, 7, v{vn}')
    A(f'v_cndmask_b32 v{MU}, 0, v{MU}, vcc')
    A(f'v_cvt_f32_u32 v5, v{vn}')
    A('v_mul_f32 v13, 0x3d000000, v5')
    A('v_mul_f32 v8, v12, v13')
    for j in range(8):
        if j == 4: A('v_fmac_f32 v8, 0x41500000, v13')
        elif j: A('v_add_f32 v8, v8, v13')
        A(f'v_cos_f32 v{10+(j&1)}, v8')
        A(f'v_sin_f32 v{14+(j&1)}, v8')
        if j & 1:
            A(f'v_cvt_pk_bf16_f32 v{M2C+j//2}, v10, v11')
            A(f'v_cvt_pk_bf16_f32 v{M2S+j//2}, v14, v15')
    for i in range(4): A(f'v_mov_b32 v{ONES+i}, 0x3f803f80')
    A(f'v_lshrrev_b32 v10, 2, v{vn}')
    A(f'v_and_b32 v11, 3, v{vn}')
    A(f'v_mul_u32_u24 v12, {XP}, v10')
    A(f'v_mul_u32_u24 v13, 528, v11')
    A('v_add3_u32 v12, v12, v13, s14')
    A(f'v_and_b32 v13, 1, v{vg}')
    A('v_lshl_add_u32 v12, v13, 8, v12')
    A(f'v_lshrrev_b32 v15, 1, v{vg}')
    A(f'v_lshl_add_u32 v{vSt}, v15, 7, v12')
    for e in range(1, 4): A(f'v_xor_b32 v{vSt+e}, {16*e}, v{vSt}')
    A('v_lshlrev_b32 v12, 6, v10')
    A(f'v_lshl_add_u32 v12, v{vg}, 9, v12')
    A('v_lshl_add_u32 v12, v11, 3, v12')
    A('v_lshl_add_u32 v12, v13, 5, v12')
    A(f'v_add_u32 v{vTr0}, s14, v12')
    A(f'v_xor_b32 v{vTr1}, 32, v{vTr0}')
    A(f's_mul_i32 s15, s12, {4*ZP}')
    A(f's_add_u32 s15, s15, {ZB}')
    A(f'v_mul_u32_u24 v{vZw}, {NP}, v{vn}')
    A(f'v_lshl_add_u32 v{vZw}, v{vg}, 4, v{vZw}')
    A(f'v_add_u32 v{vZw}, s15, v{vZw}')
    A(f'v_mul_u32_u24 v{vX0}, {XP}, v10')
    A(f'v_add_u32 v{vX0}, s14, v{vX0}')
    A(f'v_mul_u32_u24 v{vZ0}, {ZP}, v10')
    A('v_and_b32 v12, 1, v1')
    A(f'v_mul_u32_u24 v12, {8*NP}, v12')
    A(f'v_add3_u32 v{vZ0}, v{vZ0}, v12, s15')
    A('v_cmp_eq_u32 s[46:47], 1, v11')
    A('v_cmp_eq_u32 s[48:49], 2, v11')
    A('v_cmp_eq_u32 s[50:51], 3, v11')
    A(f'v_cmp_eq_u32 s[52:53], v10, v{vg}')
    A('s_cmp_eq_u32 s11, 0')
    A('s_cselect_b32 s16, 8192, 0')
    srd(A, 32, 4, MX_OFF, 's16')
    srd(A, 28, 4, U_OFF, 4 * MB)
    srd(A, 36, 4, E_OFF, 65536)
    A('s_lshr_b32 s65, s12, 1')
    A('s_cmp_lg_u32 s65, 0')
    A('s_cselect_b32 s44, 0.25, 0')
    A(f'v_lshlrev_b32 v8, 9, v{vg}')
    A('v_add_u32 v8, s10, v8')
    A('v_cvt_f32_u32 v8, v8')
    A('v_mul_f32 v13, 0x3a000000, v5')
    A('v_fma_f32 v8, v8, v13, s44')
    A('v_mul_f32 v13, 0x3d800000, v5')
    for j in range(4):
        if j: A('v_add_f32 v8, v8, v13')
        A(f'v_cos_f32 v{SA1+j}, v8')
        A(f'v_sin_f32 v{SA2+j}, v8')
    A(f'v_lshl_add_u32 v12, v{vg}, 2, v10')
    A(f'v_mul_u32_u24 v12, {ZP}, v12')
    A(f'v_add_u32 v{vZx}, {ZB + 64}, v12')
    A('v_lshl_add_u32 v12, v11, 3, v12')
    A('s_and_b32 s15, s12, 1')
    A('s_lshl_b32 s16, s15, 5')
    A(f's_add_u32 s16, s16, {ZB}')
    A(f'v_add_u32 v{vZr}, s16, v12')
    A(f'v_lshlrev_b32 v{vU}, 20, v{vg}')
    A(f'v_lshl_add_u32 v{vU}, v10, 7, v{vU}')
    A(f'v_lshl_add_u32 v{vU}, v11, 4, v{vU}')
    A('s_lshl_b32 s66, s65, 17')
    A('s_lshl_b32 s16, s10, 10')
    A('s_add_u32 s66, s66, s16')
    A('s_lshl_b32 s16, s15, 9')
    A('s_add_u32 s66, s66, s16')
    A('s_lshl_b32 s16, s11, 6')
    A('s_add_u32 s66, s66, s16')
    A('s_lshl_b32 s16, s15, 2')
    A('s_add_u32 s16, s16, 1')
    A('v_add_u32 v12, s16, v10')
    A(f'v_lshlrev_b32 v{vE0}, 14, v{vg}')
    A(f'v_lshl_add_u32 v{vE}, v12, 9, v{vE0}')
    A('v_cmp_gt_u32 vcc, 8, v12')
    A('s_and_b64 vcc, vcc, s[50:51]')
    A(f'v_cndmask_b32 v{vE}, 4.0, v{vE}, vcc')
    A(f'v_or_b32 v12, s15, v{vn}')
    A('v_cmp_eq_u32 vcc, 0, v12')
    A(f'v_cndmask_b32 v{vE0}, 4.0, v{vE0}, vcc')
    A('s_lshl_b32 s67, s65, 7')
    A('s_add_u32 s67, s67, s10')
    A('s_lshl_b32 s67, s67, 1')
    srd(A, 24, 4, 38 * MB, 1536 * 128)
    A('v_lshlrev_b32 v12, 7, v0')
    A('v_cmp_gt_u32 vcc, 6, v0')
    A('v_cndmask_b32 v12, 4.0, v12, vcc')
    A('s_mul_i32 s15, s2, 768')
    A('v_mov_b32 v13, 0')
    A('buffer_store_dword v13, v12, s[24:27], s15 offen')
    npf = 1
    if opt.get('pf', 1):
        srd(A, 24, 8, 0, 1024 * 7168)
        A('v_lshlrev_b32 v12, 7, v0')
        nl = 224 if opt.get('pf', 1) == 1 else 112
        A(f'v_cmp_gt_u32 vcc, {nl}, v0')
        A('v_cndmask_b32 v12, 4.0, v12, vcc')
        A(f's_mul_i32 s15, s2, {nl*128}')
        A('buffer_load_dword v89, v12, s[24:27], s15 offen')
        npf += 1
    st(1)
    A(f's_waitcnt vmcnt({npf})')
    st(2)
    for i in range(8):
        A(f'ds_read_b128 {vr(F+4*i,4)}, v{vSt + (i&3)} offset:{64*(i>>2)}')
    A(f'ds_read_u16 v{vX0}, v{vX0}')
    def s1rd(r):
        for hh in range(2):
            for rd in range(2):
                A(f'ds_read_b64_tr_b16 {vr(AF+8*r+4*hh+2*rd,2)}, v{vTr0 if hh == 0 else vTr1} offset:{r*XP + 256*rd}')
    s1rd(0)
    A('s_waitcnt lgkmcnt(9)')
    for i in range(8):
        if i == 4: A('s_waitcnt lgkmcnt(9)')
        mfma(A, GA, F+4*i, F+4*i, '0' if i == 0 else None)
        mfma(A, SA, ONES, F+4*i, '0' if i == 0 else None)
        if i == 3: s1rd(1)
        if i == 5: s1rd(2)
        if i == 7: s1rd(3)
    def s1(r):
        A(f's_waitcnt lgkmcnt({12 - 4*r})')
        for hh8 in range(2):
            for hh in range(2):
                mfma(A, T + 16*r + 8*hh8 + 4*hh, AF + 8*r + 4*hh, M1 + 4*hh8, '0')
    s1(0); s1(1)
    A(f'v_cndmask_b32 v10, v{GA}, v{GA+1}, s[46:47]')
    A(f'v_add_f32_dpp v11, v{SA}, v{SA} quad_perm:[1,0,3,2] row_mask:0xf bank_mask:0xf')
    A(f'v_cndmask_b32 v10, v10, v{GA+2}, s[48:49]')
    A(f'v_lshlrev_b32 v{vX0}, 16, v{vX0}')
    A(f'v_cndmask_b32 v10, v10, v{GA+3}, s[50:51]')
    A(f'v_add_f32_dpp v11, v11, v11 quad_perm:[2,3,0,1] row_mask:0xf bank_mask:0xf')
    s1(2)
    A(f'v_add_f32_dpp v10, v10, v10 quad_perm:[1,0,3,2] row_mask:0xf bank_mask:0xf')
    A('v_mul_f32 v15, 0x3a800000, v11')
    s1(3)
    A(f'v_add_f32_dpp v10, v10, v10 quad_perm:[2,3,0,1] row_mask:0xf bank_mask:0xf')
    for r in range(4): A(f'v_readlane_b32 s{56+r}, v15, {4*r}')
    A(f'v_sub_f32 v{vX0}, v{vX0}, v15')
    ln_finish(A, 11, 10, 12, 13, 14, 45)
    A('v_rcp_f32 v13, v13')
    A(f'v_lshlrev_b32 v12, 9, v{vg}')
    A(f'v_lshlrev_b32 v10, 2, v{vg}')
    A('s_lshl_b32 s15, s12, 4')
    A(f's_add_u32 s15, s15, {RB}')
    A('v_add_u32 v10, s15, v10')
    A('s_mov_b64 exec, s[52:53]')
    A('ds_write_b32 v10, v13')
    A('buffer_store_dword v15, v12, s[32:35], s63 offen')
    A('s_mov_b64 exec, -1')
    A('v_mov_b32 v11, 0')
    A(f'v_cvt_pk_bf16_f32 v10, v{vX0}, v11')
    A('s_mov_b32 vcc_lo, 0x55555555')
    A('s_mov_b32 vcc_hi, 0x55555555')
    A('v_cndmask_b32 v10, 0, v10, vcc')
    A(f'ds_write_b64 v{vZ0}, v[10:11] offset:64')
    def fin(r):
        d = D + 8 * (r & 1)
        for k in range(4): A(f'v_cvt_pk_bf16_f32 v{d+k}, v{d+k}, v{d+4+k}')
        A(f'ds_write_b128 v{vZw}, {vr(d,4)} offset:{r*ZP}')
    for r in range(4):
        A(f'v_mul_f32 v14, s{56+r}, v{MU}')
        A('v_mov_b32 v15, v14')
        for k in range(0, 8, 2): A(f'v_pk_add_f32 {vr(T+16*r+8+k,2)}, {vr(T+16*r+8+k,2)}, v[14:15]')
        for hh8 in range(2):
            t = T + 16*r + 8*hh8; tm = TMP + 8*hh8; p = P + 8*hh8
            for k in range(0, 8, 2): A(f'v_pk_mul_f32 {vr(tm+k,2)}, {vr(t+k,2)}, {vr(TC+8*hh8+k,2)}')
            for k in range(8): A(f'v_fmac_f32_dpp v{tm+k}, v{t+k}, v{TS+8*hh8+k} row_ror:8 row_mask:0xf bank_mask:0xf')
            for k in range(4): A(f'v_cvt_pk_bf16_f32 v{p+k}, v{tm+2*k}, v{tm+2*k+1}')
            if r > 0 and hh8 == 0: fin(r - 1)
            for k in range(4): A(f'v_xor_b32_dpp v{p+4+k}, v{p+k}, v{SGN} row_ror:8 row_mask:0xf bank_mask:0xf')
            mfma(A, D + 8*(r&1) + 4*hh8, M2C, p, '0')
            mfma(A, D + 8*(r&1) + 4*hh8, M2S, p + 4)
    A(f'v_lshlrev_b32 v10, 4, v{vg}')
    A(f'v_add_u32 v10, {RB}, v10')
    fin(3)
    st(3)
    A('s_waitcnt lgkmcnt(0)')
    A('s_barrier')
    st(8)
    RS = F; AM = F + 4; ZF = T; O = T + 36
    A(f'ds_read_b128 {vr(RS,4)}, v10')
    for tau in range(9):
        if tau == 7: A('s_waitcnt lgkmcnt(14)')
        for rd in range(2):
            if tau < 8: A(f'ds_read_b64_tr_b16 {vr(ZF + tau*4 + 2*rd, 2)}, v{vZr} offset:{(rd*8 + tau)*NP}')
            else: A(f'ds_read_b64_tr_b16 {vr(ZF + tau*4 + 2*rd, 2)}, v{vZx} offset:{rd*8*NP}')
    for j in range(0, 4, 2):
        A(f'v_pk_mul_f32 {vr(SA1+j,2)}, {vr(SA1+j,2)}, {vr(RS+j,2)}')
        A(f'v_pk_mul_f32 {vr(SA2+j,2)}, {vr(SA2+j,2)}, {vr(RS+j,2)}')
    for k in range(4): A(f'v_cvt_pk_bf16_f32 v{AM+k}, v{SA1+2*k}, v{SA1+2*k+1}')
    for tau in range(9):
        if tau % 2 == 0: A(f's_waitcnt lgkmcnt({max(14 - 2*tau, 0)})')
        mfma(A, O + 4*tau, AM, ZF + tau*4, '0')
    for r in range(4):
        b = P + 4*r
        for k in range(4): A(f'v_cvt_pk_bf16_f32 v{b+k}, v{O+8*k+r}, v{O+8*k+4+r}')
        A(f'buffer_store_dwordx4 {vr(b,4)}, v{vU}, s[28:31], s66 offen {smod}')
        if r < 3: A('s_add_u32 s66, s66, 0x40000')
    A('s_cmp_eq_u32 s11, 0')
    A(f's_cbranch_scc1 {name}_c0')
    for r in range(4):
        A(f'buffer_store_short_d16_hi v{P+4*r+3}, v{vE}, s[36:39], s67 offen')
        if r < 3: A('s_add_u32 s67, s67, 4096')
    A(f's_branch {name}_fin')
    A.label(f'{name}_c0')
    for r in range(4):
        A(f'v_cvt_pk_bf16_f32 v{O+32+r}, v{O+32+r}, v{O+32+r}')
        A(f'buffer_store_short v{O+32+r}, v{vE0}, s[36:39], s67 offen')
        if r < 3: A('s_add_u32 s67, s67, 4096')
    A.label(f'{name}_fin')
    st(4)
    A('s_waitcnt vmcnt(0)') if opt.get('stamp') else None
    st(5); st(6, True)
    st.dump(9, 0, 100)
    A.label(f'{name}_end')
    A('s_endpgm')
    return dict(name=name, grid=256, block=256, lds=FA_LDS, vgpr=256)
```

```python
from common import *

XB = 32768
EB = XB + 16384
FB_LDS = EB + 1024
def gen_fb(A, name='fb_kernel', opt=None):
    opt = opt or {}
    smod = opt.get('smod', 'sc1')
    khead(A, name)
    st = Stamper(A, opt.get('stamp'), 1)
    st(0); st(7, True)
    A('s_cmp_ge_u32 s2, 256')
    A(f's_cbranch_scc1 {name}_end')
    A('s_load_dwordx2 s[4:5], s[0:1], %d' % KA['ws'])
    A('s_load_dwordx2 s[6:7], s[0:1], %d' % KA['x'])
    A('s_load_dwordx2 s[38:39], s[0:1], %d' % KA['w1'])
    A('v_lshrrev_b32 v2, 6, v0')
    A('v_and_b32 v1, 63, v0')
    A('s_and_b32 s13, s2, 7')
    A('v_readfirstlane_b32 s12, v2')
    A('s_lshr_b32 s14, s2, 3')
    A('s_sub_u32 s15, 16, s13')
    A('s_cmp_eq_u32 s13, 0')
    A('s_cselect_b32 s15, 8, s15')
    A('s_bitcmp1_b32 s14, 0')
    A('s_cselect_b32 s10, s15, s13')
    A('s_lshr_b32 s11, s14, 1')
    A('s_sub_u32 s16, 16, s10')
    A('s_and_b32 s16, s16, 15')
    A('s_sub_u32 s17, 15, s11')
    A('s_lshr_b32 s19, s11, 3')
    A('s_cmp_lg_u32 s19, 0')
    A('s_cselect_b32 s16, s16, s10')
    A('s_cselect_b32 s17, s17, s11')
    vn, vg = 2, 3
    A(f'v_and_b32 v{vn}, 15, v1')
    A(f'v_lshrrev_b32 v{vg}, 4, v1')
    A('v_lshrrev_b32 v6, 3, v1')
    A(f'v_and_b32 v7, 1, v{vg}')
    A('v_lshrrev_b32 v8, 1, v1')
    A('v_and_b32 v8, 3, v8')
    A('v_xor_b32 v7, v7, v8')
    A('v_lshlrev_b32 v7, 5, v7')
    A('v_lshl_add_u32 v4, v6, 10, v7')
    A('v_and_b32 v7, 1, v1')
    A('v_lshl_add_u32 v4, v7, 4, v4')
    A('v_xor_b32 v5, 64, v4')
    A(f'v_add_u32 v5, {8192 - 1024}, v5')
    A('s_lshl_b32 s14, s16, 2')
    A('s_add_u32 s14, s14, s12')
    A('s_lshl_b32 s14, s14, 16')
    A('s_lshl_b32 s15, s17, 7')
    A('s_add_u32 s14, s14, s15')
    A('s_lshl_b32 s18, s12, 13')
    A(f'v_xor_b32 v8, v{vg}, v1')
    A('v_and_b32 v8, 7, v8')
    A('v_lshlrev_b32 v8, 4, v8')
    A('v_lshl_add_u32 v6, v6, 15, v8')
    A('v_xor_b32 v7, 64, v6')
    A(f'v_add_u32 v7, {8*32768 - 1024}, v7')
    A('s_lshl_b32 s61, s12, 19')
    A('s_lshl_b32 s15, s10, 11')
    A('s_add_u32 s61, s61, s15')
    A('s_lshl_b32 s15, s11, 7')
    A('s_add_u32 s61, s61, s15')
    A('s_lshl_b32 s62, s12, 12')
    A(f's_add_u32 s62, s62, {XB}')
    A('s_lshl_b32 s63, s10, 3')
    A('s_add_u32 s63, s63, s11')
    A('s_lshl_b32 s63, s63, 9')
    A('s_sub_u32 s63, s63, 512')
    A('s_sub_u32 s15, s11, 1')
    A('s_cmp_lt_u32 s15, 7')
    A('s_cselect_b32 s63, s63, 0x40000000')
    A('s_lshl_b32 s15, s16, 12')
    A('v_mov_b32 v9, s15')
    A('v_mov_b32 v10, s63')
    A('v_cmp_gt_u32 vcc, 32, v1')
    A('v_cndmask_b32 v9, v10, v9, vcc')
    A('v_lshl_add_u32 v9, v1, 4, v9')
    A(f'v_lshlrev_b32 v10, 6, v{vn}')
    A('s_lshl_b32 s15, s12, 8')
    A('s_add_u32 s15, s15, s10')
    A('s_lshl_b32 s15, s15, 2')
    A('s_waitcnt lgkmcnt(0)')
    srd(A, 20, 4, U_OFF, 4 * MB)
    srd(A, 28, 4, E_OFF, 65536)
    for h in range(4):
        A(f's_add_u32 m0, s18, {h*2048}')
        A('s_nop 0')
        A(f'buffer_load_dwordx4 v4, s[20:23], s14 offen lds')
        A(f'buffer_load_dwordx4 v5, s[20:23], s14 offen offset:1024 lds')
        if h < 3: A('s_add_u32 s14, s14, 16384')
    A(f's_mov_b32 m0, {EB}')
    srd(A, 24, 6, 0, 2048 * 2048)
    A('buffer_load_dwordx4 v9, s[28:31], 0 offen lds')
    FR = [16, 48]; EF = 80; B = [112, 144]; ACC = [176, 192]; MA = [208, 212]; VT = 216; VX = 220; X = [224, 232]; VB = 240; MXV = [241, 242]; VH = 243; VE = 244
    srd(A, 40, 4, MX_OFF, 8192)
    for u in range(2):
        A(f's_add_u32 m0, s62, {u*2048}')
        if u: A(f's_add_u32 s61, s61, {4 << 19}')
        else: A('s_nop 0')
        A('buffer_load_dwordx4 v6, s[24:27], s61 offen lds')
        A('buffer_load_dwordx4 v7, s[24:27], s61 offen offset:1024 lds')
    A('s_add_u32 s14, s15, 4096')
    A(f'buffer_load_dword v{MXV[0]}, v10, s[40:43], s15 offen')
    A(f'buffer_load_dword v{MXV[1]}, v10, s[40:43], s14 offen')
    A('s_lshl_b32 s15, s12, 4')
    A(f'v_add_u32 v6, s15, v{vn}')
    A('s_cmp_lg_u32 s10, 0')
    A('s_cselect_b32 s15, -1, 0')
    A('v_sub_u32 v7, s15, v6')
    A('s_cmp_lg_u32 s19, 0')
    A('s_cselect_b64 vcc, -1, 0')
    A('v_cndmask_b32 v6, v6, v7, vcc')
    A('v_and_b32 v6, 127, v6')
    A('v_cvt_f32_u32 v7, v6')
    A('v_mul_f32 v7, 0x3c000000, v7')
    A(f'v_lshlrev_b32 v10, 3, v{vg}')
    A('v_cvt_f32_u32 v10, v10')
    A('v_mul_f32 v10, v10, v7')
    B0 = B[0]
    for j in range(8):
        if j: A('v_add_f32 v10, v10, v7')
        A(f'v_cos_f32 v{12+(j&1)}, v10')
        A(f'v_sin_f32 v{14+(j&1)}, v10')
        if j & 1:
            A(f'v_cvt_pk_bf16_f32 v{B0+j//2}, v12, v13')
            A(f'v_cvt_pk_bf16_f32 v{B0+16+j//2}, v14, v15')
    A('v_and_b32 v8, 1, v6')
    A('v_cmp_eq_u32 vcc, 1, v8')
    A('v_mul_u32_u24 v8, 0x8000, v8')
    A('v_lshl_or_b32 v8, v8, 16, v8')
    A('v_and_b32 v10, 2, v6')
    A('v_mul_u32_u24 v10, 0x4000, v10')
    A('v_lshl_or_b32 v10, v10, 16, v10')
    A('v_xor_b32 v11, v10, v8')
    for k in range(4):
        A(f'v_cndmask_b32 v12, v{B0+k}, v{B0+16+k}, vcc')
        A(f'v_cndmask_b32 v13, v{B0+16+k}, v{B0+k}, vcc')
        A(f'v_xor_b32 v{B0+4+k}, v11, v12')
        A(f'v_xor_b32 v{B0+20+k}, v10, v13')
    for k in range(8):
        A(f'v_xor_b32 v{B0+8+k}, v8, v{B0+k}')
        A(f'v_xor_b32 v{B0+24+k}, v8, v{B0+16+k}')
    A('s_brev_b32 s15, 1')
    for k in range(32): A(f'v_xor_b32 v{B[1]+k}, s15, v{B0+k}')
    A(f'v_lshrrev_b32 v10, 2, v{vn}')
    A(f'v_lshl_add_u32 v10, v{vg}, 3, v10')
    A(f'v_lshrrev_b32 v11, 3, v{vn}')
    A(f'v_and_b32 v12, 1, v{vg}')
    A('v_lshl_add_u32 v11, v12, 1, v11')
    A('v_lshlrev_b32 v11, 5, v11')
    A('v_lshl_add_u32 v10, v10, 7, v11')
    A(f'v_and_b32 v11, 3, v{vn}')
    A(f'v_lshl_add_u32 v{VT}, v11, 3, v10')
    for i in range(1, 4): A(f'v_xor_b32 v{VT+i}, {(2*(i&1) + (i>>1))*32}, v{VT}')
    A(f'v_and_b32 v11, 1, v{vn}')
    A('v_lshlrev_b32 v11, 9, v11')
    A(f'v_lshl_add_u32 v11, v{vg}, 4, v11')
    A(f'v_add_u32 v{VE}, {EB}, v11')
    A('s_mul_i32 s15, s19, 3')
    A(f'v_xor_b32 v10, s15, v{vg}')
    A('v_lshrrev_b32 v11, 1, v10')
    A(f'v_lshrrev_b32 v12, 1, v{vn}')
    A('v_xor_b32 v11, v11, v12')
    A('v_lshlrev_b32 v11, 4, v11')
    A(f'v_lshl_add_u32 v11, v{vn}, 7, v11')
    A('v_and_b32 v12, 1, v10')
    A('v_lshl_add_u32 v11, v12, 3, v11')
    A(f'v_add_u32 v{VX}, s62, v11')
    for i in range(1, 4): A(f'v_xor_b32 v{VX+i}, {32*i}, v{VX}')
    A(f'v_lshl_add_u32 v10, v10, 4, v{vn}')
    A(f'v_lshlrev_b32 v{VH}, 4, v10')
    A('v_add_u32 v10, 48, v1')
    A('v_and_b32 v10, 63, v10')
    A(f'v_lshlrev_b32 v{VB}, 2, v10')
    A(f'v_cmp_eq_u32 s[46:47], 0, v{vg}')
    srd(A, 52, 4, HF_OFF, 4 * MB)
    srd(A, 56, 4, ST_OFF, 2048 * 128)
    A('s_cmp_eq_u32 s11, 0')
    A('s_cselect_b32 s15, 8192, 0')
    srd(A, 32, 4, MU_OFF, 's15')
    A('s_lshl_b32 s13, s10, 3')
    A('s_add_u32 s13, s13, s12')
    st(1)
    A('s_waitcnt vmcnt(6)')
    A('s_barrier')
    st(2)
    def frag(i, p): return FR[i & 1] + 4 * p
    def rd(i, ps):
        for p in ps:
            for r2 in range(2):
                A(f'ds_read_b64_tr_b16 {vr(frag(i,p)+2*r2,2)}, v{VT+i} offset:{(32*p+4*r2)*128}')
    rd(0, range(4))
    for p in range(8): A(f'ds_read_b128 {vr(EF+4*p,4)}, v{VE} offset:{64*p}')
    if opt.get('pf', 1): line_touch(A, 245, 10, 64, 38, 256 * 14336, 128, 15)
    nxt = 1
    def issue_next():
        nonlocal nxt
        if nxt < 8: rd(nxt >> 1, range(4*(nxt & 1), 4*(nxt & 1) + 4))
        nxt += 1
    for h in range(8):
        i, half = h >> 1, h & 1
        if h == 0: A('s_waitcnt lgkmcnt(8)')
        elif h == 1: pass
        elif h < 7: A('s_waitcnt lgkmcnt(8)')
        else: A('s_waitcnt lgkmcnt(8)')
        for k, p in enumerate(range(4*half, 4*half + 4)):
            for u in range(2): mfma(A, ACC[u] + 4*i, frag(i,p), B[u] + 4*p, '0' if p == 0 else None)
            if k == 0: issue_next()
            if k == 0 and h == 6:
                A(f's_waitcnt vmcnt({1 if opt.get("pf", 1) else 0})')
                for u in range(2):
                    for k2 in range(4): A(f'ds_read_b64 {vr(X[u]+2*k2,2)}, v{VX+k2} offset:{u*2048}')
        if h == 0:
            A('s_waitcnt lgkmcnt(8)')
            for p in range(8):
                for u in range(2): mfma(A, MA[u], EF + 4*p, B[u] + 4*p, '0' if p == 0 else None)
                if p == 1: issue_next()
            A('s_waitcnt lgkmcnt(8)')
    st(3)
    ONE = 4; S = [5, 7]; Q = [6, 8]
    A(f'v_mov_b32 v{ONE}, 0x3f803f80')
    for u in range(2):
        A(f'v_mov_b32 v{S[u]}, 0')
        A(f'v_mov_b32 v{Q[u]}, 0')
        A(f'v_add_f32 v{MA[u]}, v{MA[u]}, v{MXV[u]}')
    A(f'v_lshlrev_b32 v9, 2, v{vn}')
    A('s_lshl_b32 s15, s13, 6')
    A(f'buffer_store_dword v{MA[0]}, v9, s[32:35], s15 offen')
    A(f'buffer_store_dword v{MA[1]}, v9, s[32:35], s15 offen offset:256')
    A('s_lshl_b32 s14, s13, 15')
    A('s_lshl_b32 s15, s11, 11')
    A('s_add_u32 s14, s14, s15')
    A('s_add_u32 s15, s14, 0x20000')
    def epi(V):
        for u in range(2):
            for pr in range(2):
                o = 16 + 8*u + 4*pr
                for i2 in range(2):
                    i = 2*pr + i2; t = 32 + 4*i2
                    for q in range(2):
                        xr = X[u] + 2*i + q
                        A(f'v_lshlrev_b32 v{t+2*q}, 16, v{xr}')
                        A(f'v_and_b32 v{t+1+2*q}, 0xffff0000, v{xr}')
                    for r in range(4): A(f'v_sub_f32 v{t+r}, v{t+r}, v{MA[u]}')
                    for r in range(4): A(f'v_add_f32 v{t+r}, v{t+r}, v{V[u][i][r]}')
                    for q in range(2):
                        A(f'v_cvt_pk_bf16_f32 v{o+2*i2+q}, v{t+2*q}, v{t+1+2*q}')
                A(f'buffer_store_dwordx4 {vr(o,4)}, v{VH}, s[52:55], s{14+u} offen offset:{pr*1024} {smod}')
                for k in range(4):
                    A(f'v_dot2_f32_bf16 v{S[u]}, v{o+k}, v{ONE}, v{S[u]}')
                    A(f'v_dot2_f32_bf16 v{Q[u]}, v{o+k}, v{o+k}, v{Q[u]}')
    A('s_cmp_lg_u32 s19, 0')
    A(f's_cbranch_scc1 {name}_up')
    for u in range(2):
        for i in range(4): A(f'ds_bpermute_b32 v{48+4*u+i}, v{VB}, v{ACC[u]+4*i+3}')
    A('s_waitcnt lgkmcnt(0)')
    for u in range(2):
        for i in range(4): A(f'v_cndmask_b32 v{56+4*u+i}, v{48+4*u+i}, v{47+4*u+i if i else MA[u]+1}, s[46:47]')
    epi([[[56+4*u+i, ACC[u]+4*i, ACC[u]+4*i+1, ACC[u]+4*i+2] for i in range(4)] for u in range(2)])
    A(f's_branch {name}_join')
    A.label(f'{name}_up')
    A('s_waitcnt lgkmcnt(0)')
    epi([[[ACC[u]+4*(3-i)+3-r for r in range(4)] for i in range(4)] for u in range(2)])
    A.label(f'{name}_join')
    A(f'v_lshlrev_b32 v40, 7, v{vn}')
    A(f'v_lshrrev_b32 v41, 1, v{vg}')
    A('v_lshl_add_u32 v40, v41, 2, v40')
    A('s_lshl_b32 s14, s13, 11')
    A('s_lshl_b32 s15, s11, 3')
    A('s_add_u32 s14, s14, s15')
    A('s_add_u32 s15, s14, 8192')
    for u in range(2): A(f'v_permlane32_swap_b32 v{S[u]}, v{Q[u]}')
    for u in range(2): A(f'v_add_f32 v{S[u]}, v{S[u]}, v{Q[u]}')
    for u in range(2): A(f'v_mov_b32 v{Q[u]}, v{S[u]}')
    for u in range(2): A(f'v_permlane16_swap_b32 v{S[u]}, v{Q[u]}')
    for u in range(2): A(f'v_add_f32 v{S[u]}, v{S[u]}, v{Q[u]}')
    for u in range(2): A(f'buffer_store_dword v{S[u]}, v40, s[56:59], s{14+u} offen')
    st(4)
    A('s_waitcnt vmcnt(0)') if opt.get('stamp') else None
    st(5); st(6, True)
    st.dump(8, 0, 64)
    A.label(f'{name}_end')
    A('s_endpgm')
    return dict(name=name, grid=256, block=256, lds=FB_LDS, vgpr=248)
```

```python
from common import *

SLOT1 = 45056
NPART = 16
def w_voffs(A, base, vlane, srow16, spar, t0, qs, pitch=7168, qoff=None):
    A(f'v_and_b32 v{t0+3}, 1, v{vlane}')
    A(f'v_lshlrev_b32 v{t0+3}, 4, v{t0+3}')
    A(f'v_lshrrev_b32 v{t0}, 3, v{vlane}')
    A(f'v_lshrrev_b32 v{t0+1}, 4, v{vlane}')
    A(f'v_lshrrev_b32 v{t0+2}, 1, v{vlane}')
    A(f'v_xor_b32 v{t0+1}, v{t0+1}, v{t0+2}')
    A(f'v_and_b32 v{t0+1}, 3, v{t0+1}')
    A(f'v_add_u32 v{t0}, s{srow16}, v{t0}')
    A(f'v_mul_u32_u24 v{t0}, {pitch}, v{t0}')
    A(f'v_lshl_add_u32 v{t0}, v{t0+1}, 5, v{t0}')
    A(f's_lshl_b32 s92, s{spar}, 6')
    A(f'v_add3_u32 v{t0+2}, v{t0}, v{t0+3}, s92')
    A(f'v_lshrrev_b32 v{t0}, 2, v{vlane}')
    A(f'v_lshrrev_b32 v{t0+1}, 3, v{vlane}')
    A(f'v_xor_b32 v{t0+1}, v{t0+1}, v{vlane}')
    A(f'v_and_b32 v{t0+1}, 2, v{t0+1}')
    A(f'v_add_u32 v{t0}, s{srow16}, v{t0}')
    A(f'v_mul_u32_u24 v{t0}, {pitch}, v{t0}')
    A(f'v_lshl_add_u32 v{t0}, v{t0+1}, 4, v{t0}')
    A(f's_mul_i32 s93, s{spar}, 384')
    A(f's_sub_u32 s93, 384, s93')
    A(f'v_add3_u32 v{t0}, v{t0}, v{t0+3}, s93')
    def goff(q): return (q // 3) * 8 * pitch + (q % 3) * 128
    for k, q in enumerate(qs):
        if qoff is None:
            if q < 6: A(f'v_add_u32 v{base+k}, {goff(q)}, v{t0+2}')
            else: A(f'v_mov_b32 v{base+k}, v{t0}')
        else:
            A(f's_cmp_lg_u32 s{qoff}, 0')
            if q + 4 < 6:
                A(f's_cselect_b32 s93, {goff(q+4) - goff(q)}, 0')
                A(f's_add_u32 s93, s93, {goff(q)}')
                A(f'v_add_u32 v{base+k}, s93, v{t0+2}')
            else:
                A(f's_cselect_b64 vcc, -1, 0')
                A(f'v_add_u32 v{base+k}, {goff(q)}, v{t0+2}')
                A(f'v_cndmask_b32 v{base+k}, v{base+k}, v{t0}, vcc')

def tr_bases(A, vG, vH, vlane, t0, bandG=3072):
    A(f'v_lshrrev_b32 v{t0}, 2, v{vlane}')
    A(f'v_and_b32 v{t0}, 7, v{t0}')
    A(f'v_and_b32 v{t0+1}, 3, v{vlane}')
    A(f'v_lshlrev_b32 v{t0+1}, 3, v{t0+1}')
    A(f'v_lshrrev_b32 v{t0+2}, 5, v{vlane}')
    A(f'v_lshl_add_u32 v{vG}, v{t0}, 7, v{t0+1}')
    A(f'v_lshrrev_b32 v{t0+3}, 1, v{t0}')
    A(f'v_lshl_add_u32 v{vG}, v{t0+3}, 5, v{vG}')
    A(f'v_mul_u32_u24 v{t0+3}, {bandG}, v{t0+2}')
    A(f'v_add_u32 v{vG}, v{vG}, v{t0+3}')
    if vH is not None:
        A(f'v_lshl_add_u32 v{vH}, v{t0}, 6, v{t0+1}')
        A(f'v_lshrrev_b32 v{t0+3}, 2, v{t0}')
        A(f'v_lshl_add_u32 v{vH}, v{t0+3}, 5, v{vH}')
        A(f'v_lshl_add_u32 v{vH}, v{t0+2}, 9, v{vH}')

def w_dma4(A, name, WV, slds, sq, srdn, soff, mods=''):
    for q in range(3):
        A(f's_add_u32 m0, s{slds}, {q*1024}')
        A('s_nop 0')
        A(f'buffer_load_dwordx4 v{WV+q}, s[{srdn}:{srdn+3}], s{soff} offen {mods} lds')
    A(f's_cmp_lg_u32 s{sq}, 0')
    A(f's_cbranch_scc1 {name}_w3')
    A(f's_add_u32 m0, s{slds}, 3072')
    A(f'v_mov_b32 v{WV+2}, v{WV+3}')
    A.label(f'{name}_w3')
    A('s_nop 0')
    A(f'buffer_load_dwordx4 v{WV+2}, s[{srdn}:{srdn+3}], s{soff} offen {mods} lds')

def gen_g1(A, name='g1_kernel', opt=None):
    opt = opt or {}
    nomfma = opt.get('nomfma'); noload = opt.get('noload'); noread = opt.get('noread')
    smod = opt.get('smod', ''); pfh = opt.get('pfh', 0); pfw = opt.get('pfw', 0)
    khead(A, name)
    st = Stamper(A, opt.get('stamp'), 2)
    st(0); st(7, True)
    A('s_cmp_ge_u32 s2, 256')
    A(f's_cbranch_scc1 {name}_end')
    A('s_load_dwordx2 s[4:5], s[0:1], %d' % KA['ws'])
    A('s_load_dwordx4 s[64:67], s[0:1], %d' % KA['w1'])
    A('s_load_dwordx2 s[48:49], s[0:1], %d' % KA['w2'])
    A('v_lshrrev_b32 v2, 6, v0')
    A('v_and_b32 v1, 63, v0')
    A('s_and_b32 s8, s2, 7')
    A('v_readfirstlane_b32 s12, v2')
    A('s_lshr_b32 s9, s2, 3')
    A('s_and_b32 s10, s8, 1')
    A('s_lshl_b32 s10, s10, 3')
    A('s_and_b32 s11, s9, 7')
    A('s_add_u32 s10, s10, s11')
    A('s_lshr_b32 s11, s8, 1')
    A('s_lshl_b32 s11, s11, 2')
    A('s_lshr_b32 s50, s9, 3')
    A('s_add_u32 s11, s11, s50')
    A('s_cmp_ge_u32 s12, 4')
    A(f's_cbranch_scc1 {name}_loader')
    WB = [8, 36]; ACC = 64; HB = [176, 192]
    vAh, cAh = 2, 3
    vPF, vPD, VW, CW = 4, 5, 208, 216
    A('s_lshl_b32 s15, s50, 2')
    A('s_add_u32 s15, s15, s12')
    A('s_lshr_b32 s16, s15, 1')
    A('s_lshl_b32 s16, s16, 15')
    A('s_and_b32 s15, s15, 1')
    A('s_lshl_b32 s15, s15, 10')
    A('s_add_u32 s15, s15, s16')
    A(f's_add_u32 s15, s15, {3*2048}')
    A('v_lshrrev_b32 v8, 3, v1')
    A('v_lshlrev_b32 v8, 11, v8')
    A('v_and_b32 v9, 7, v1')
    A('v_lshl_add_u32 v8, v9, 7, v8')
    A('v_add_u32 v8, s15, v8')
    A('s_lshl_b32 s15, s10, 18')
    A(f's_add_u32 s15, s15, {HF_OFF}')
    A('s_waitcnt lgkmcnt(0)')
    srd(A, 24, 4, 's15', 256 * 1024)
    if pfh:
        A('s_mov_b32 s16, 16384')
        A(f'buffer_load_dword v{vPD}, v8, s[24:27], 0 offen')
        A(f'buffer_load_dword v{vPD}, v8, s[24:27], s16 offen')
    A('s_and_b32 s13, s12, 1')
    A('s_lshr_b32 s14, s12, 1')
    A('s_lshl_b32 s15, s13, 13')
    A(f'v_lshlrev_b32 v{vAh}, 4, v1')
    A(f'v_add_u32 v{vAh}, s15, v{vAh}')
    tr_bases(A, 12, 13, 1, 8)
    A('s_lshl_b32 s15, s14, 11')
    A('s_add_u32 s15, s15, 16384')
    for k in range(4):
        A(f'v_xor_b32 v14, {32*k}, v12')
        A(f'v_add_u32 v{VW+k}, s15, v14')
    A('s_cmp_lg_u32 s14, 0')
    A('s_cselect_b64 vcc, -1, 0')
    for k in range(2):
        A(f'v_xor_b32 v14, {32*k}, v13')
        A(f'v_add_u32 v14, {16384 + 6144}, v14')
        A(f'v_add_u32 v15, 1024, v{VW+k}')
        A(f'v_cndmask_b32 v{VW+4+k}, v15, v14, vcc')
    A(f'v_add_u32 v15, 1024, v{VW+2}')
    A(f'v_subrev_u32 v14, 1024, v{VW+3}')
    A(f'v_cndmask_b32 v{VW+6}, v15, v14, vcc')
    A(f'v_mov_b32 v{cAh}, v{vAh}')
    for k in range(7): A(f'v_mov_b32 v{CW+k}, v{VW+k}')
    for i in range(112):
        A(f'v_mov_b32 v{ACC+i}, 0')
    A('s_lshl_b32 s15, s9, 2')
    A('s_add_u32 s15, s15, s12')
    A('s_lshr_b32 s16, s15, 1')
    A('s_lshl_b32 s16, s16, 2')
    A('s_and_b32 s19, s8, 3')
    A('s_add_u32 s16, s16, s19')
    A('s_lshl_b32 s16, s16, 11')
    A('s_and_b32 s15, s15, 1')
    A('s_lshl_b32 s15, s15, 9')
    A('s_add_u32 s16, s16, s15')
    A('s_lshr_b32 s15, s8, 2')
    A('s_lshl_b32 s15, s15, 10')
    A('s_add_u32 s16, s16, s15')
    A(f'v_lshlrev_b32 v{vPF}, 7, v1')
    A(f'v_add_u32 v{vPF}, s16, v{vPF}')
    A('v_mov_b32 v8, 0x7f000000')
    A('v_cmp_gt_u32 vcc, 4, v1')
    A(f'v_cndmask_b32 v{vPF}, v8, v{vPF}, vcc')
    srd(A, 28, 48, 0, 3584 * 2048)
    A('s_mov_b32 s51, 0')
    A('s_lshl_b32 s15, s10, 1')
    A('s_add_u32 s15, s15, s13')
    A('s_mul_i32 s15, s15, %d' % (4 * 112 * 1024))
    A('s_add_u32 s15, s15, %d' % G_OFF)
    srd(A, 20, 4, 's15', 4 * 112 * 1024)
    A('s_mov_b32 s17, 0')
    A('s_mov_b32 s18, 0')
    def reads(s, buf):
        r = []
        for j in range(4):
            r.append(f'ds_read_b128 {vr(HB[buf]+4*j,4)}, v{cAh} offset:{(2*j+s)*1024}')
        for i in range(7):
            for rd in range(2):
                a = CW + i
                off = (2*s + rd) * 7168
                r.append(f'ds_read_b64_tr_b16 {vr(WB[buf]+4*i+2*rd,2)}, v{a} offset:{off}')
        return r
    def step(buf, rds, tail=None):
        k = 0; n = 0
        if noread: rds = []
        for i in range(7):
            for jj in range(4):
                j = jj if (i & 1) == 0 or not opt.get('snake', 1) else 3 - jj
                if not nomfma: mfma(A, ACC + (i*4+j)*4, WB[buf] + 4*i, HB[buf] + 4*j)
                if k < len(rds): A(rds[k]); k += 1
                n += 1
                if tail and n - 20 in tail:
                    for t in tail[n - 20]: A(t)
        A('s_waitcnt lgkmcnt(0)')
    st(1)
    A('s_barrier')
    st(2)
    if not noread:
        for r in reads(0, 0): A(r)
    A('s_waitcnt lgkmcnt(0)')
    A(f's_branch {name}_mid')
    A('.p2align 6')
    A.label(f'{name}_loop')
    A('s_barrier')
    tailA = {}
    if pfw: tailA = {0: [f'buffer_load_dword v{vPD}, v{vPF}, s[28:31], s51 offen'], 1: ['s_add_u32 s51, s51, 0x80000']}
    step(1, reads(0, 0), tailA)
    A.label(f'{name}_mid')
    tailB = {-3: [f's_add_u32 s17, s17, {SLOT1}', f's_cmp_eq_u32 s17, {3*SLOT1}'], -2: ['s_cselect_b32 s17, 0, s17', 's_add_u32 s18, s18, 1'],
             -1: [f'v_add_u32 v{cAh}, s17, v{vAh}', 's_cmp_le_u32 s18, 16']}
    for k in range(7): tailB[k] = [f'v_add_u32 v{CW+k}, s17, v{VW+k}']
    step(0, reads(1, 1), tailB)
    A(f's_cbranch_scc1 {name}_loop')
    st(3)
    A('s_and_b32 s52, s11, 1')
    A('s_mul_i32 s15, s11, 7')
    A('s_add_u32 s19, s15, s52')
    A('s_lshl_b32 s16, s14, 2')
    A('s_add_u32 s16, s16, s19')
    A('s_add_u32 s53, s16, 2')
    A('s_and_b32 s52, s52, s14')
    A('s_cmp_lg_u32 s52, 0')
    A('s_cselect_b32 s53, s15, s53')
    A('s_lshl_b32 s53, s53, 10')
    A('s_lshl_b32 s16, s16, 10')
    A('s_add_u32 s15, s19, 3')
    A('s_lshl_b32 s15, s15, 10')
    A('s_lshl_b32 s19, s14, 9')
    A('s_add_u32 s15, s15, s19')
    A('v_and_b32 v2, 15, v1')
    A('v_lshlrev_b32 v2, 4, v2')
    A('v_and_b32 v4, 16, v1')
    A('v_and_b32 v5, 32, v1')
    A('v_lshl_add_u32 v3, v5, 3, v2')
    A('v_lshl_add_u32 v2, v4, 5, v3')
    A('v_lshrrev_b32 v4, 1, v4')
    A('v_add_u32 v3, v3, v4')
    tmp = 8
    for j in range(4):
        for pp in range(4):
            tiles = [2*pp, 2*pp+1] if pp < 3 else [6]
            d = tmp + ((j*4+pp) % 8) * 4
            for n, i in enumerate(tiles):
                a = ACC + (i*4+j)*4
                for r in range(4): A(f'v_max_f32 v{a+r}, 0, v{a+r}')
                A(f'v_pk_mul_f32 {vr(a,2)}, {vr(a,2)}, {vr(a,2)}')
                A(f'v_pk_mul_f32 {vr(a+2,2)}, {vr(a+2,2)}, {vr(a+2,2)}')
                A(f'v_cvt_pk_bf16_f32 v{d+2*n}, v{a}, v{a+1}')
                A(f'v_cvt_pk_bf16_f32 v{d+2*n+1}, v{a+2}, v{a+3}')
            if pp < 3:
                A(f'v_permlane16_swap_b32 v{d}, v{d+2}')
                A(f'v_permlane16_swap_b32 v{d+1}, v{d+3}')
            if pp < 2:
                A(f'buffer_store_dwordx4 {vr(d,4)}, v2, s[20:23], s16 offen offset:{pp*1024} {smod}')
            elif pp == 2:
                A(f'buffer_store_dwordx4 {vr(d,4)}, v2, s[20:23], s53 offen {smod}')
            else:
                A(f'buffer_store_dwordx2 {vr(d,2)}, v3, s[20:23], s15 offen {smod}')
        if j < 3:
            A(f's_add_u32 s16, s16, {112*1024}')
            A(f's_add_u32 s15, s15, {112*1024}')
            A(f's_add_u32 s53, s53, {112*1024}')
    st(4)
    A('s_waitcnt vmcnt(0)') if opt.get('stamp') else None
    st(5); st(6, True)
    st.dump(8, 0, 240)
    A('s_endpgm')
    A.label(f'{name}_loader')
    A('s_sub_u32 s12, s12, 4')
    A('s_lshl_b32 s15, s12, 16')
    A('v_lshlrev_b32 v8, 4, v1')
    A('v_add_u32 v8, s15, v8')
    A('v_add_u32 v9, 0x8000, v8')
    A('s_lshl_b32 s15, s12, 4')
    A('s_and_b32 s16, s11, 1')
    w_voffs(A, 10, 1, 15, 16, 4, range(7))
    A('s_lshl_b32 s43, s12, 12')
    A('s_mul_i32 s44, s12, 7168')
    A('s_add_u32 s44, s44, 16384')
    A('s_mov_b32 s40, 0')
    A('s_mov_b32 s41, 0')
    A('s_mov_b32 s42, 0')
    A('s_lshl_b32 s15, s12, 12')
    A('v_lshlrev_b32 v3, 4, v1')
    A('v_add_u32 v3, s15, v3')
    A('s_lshl_b32 s15, s10, 18')
    if opt.get('hot', 0) & 1: A('s_mov_b32 s15, 0')
    A(f's_add_u32 s15, s15, {HF_OFF}')
    A('s_mul_i32 s16, s11, 448')
    if opt.get('hot', 0) & 2: A('s_and_b32 s16, s11, 1'); A('s_mul_i32 s16, s16, 448')
    A(f's_sub_u32 s19, {1024*7168}, s16')
    A('s_waitcnt lgkmcnt(0)')
    srd(A, 20, 4, 's15', 256 * 1024)
    srd(A, 24, 64, 's16', 's19')
    def issue():
        if not noload:
            A('s_add_u32 m0, s40, s43')
            A('s_add_u32 s45, s40, s44')
            A('buffer_load_dwordx4 v8, s[20:23], s41 offen lds')
            A('buffer_load_dwordx4 v8, s[20:23], s41 offen offset:1024 lds')
            A('s_add_u32 m0, m0, 2048')
            A('s_nop 0')
            A('buffer_load_dwordx4 v9, s[20:23], s41 offen lds')
            A('buffer_load_dwordx4 v9, s[20:23], s41 offen offset:1024 lds')
            if not opt.get('hot', 0) & 4: A('s_add_u32 s41, s41, 2048')
            for q in range(7):
                A(f's_add_u32 m0, s45, {q*1024}')
                A('s_nop 0')
                A(f'buffer_load_dwordx4 v{10+q}, s[24:27], s42 offen lds')
            if not opt.get('hot', 0) & 8: A(f's_add_u32 s42, s42, {64*7168}')
        A(f's_add_u32 s40, s40, {SLOT1}')
        A(f's_cmp_eq_u32 s40, {3*SLOT1}')
        A('s_cselect_b32 s40, 0, s40')
    A('s_mov_b32 s18, 0')
    A.label(f'{name}_lpro')
    issue()
    A('s_add_u32 s18, s18, 1')
    A('s_cmp_lt_u32 s18, 3')
    A(f's_cbranch_scc1 {name}_lpro')
    A(f's_sub_u32 s19, 7168, s16')
    srd(A, 28, 66, 's16', 's19')
    A('s_lshl_b32 s15, s10, 14')
    A(f's_add_u32 s15, s15, {ST_OFF}')
    srd(A, 32, 4, 's15', 16384)
    A('s_lshl_b32 s15, s10, 9')
    A(f's_add_u32 s15, s15, {R2_OFF}')
    srd(A, 36, 4, 's15', 512)
    for k in range(4): A(f'buffer_load_dwordx4 {vr(40+4*k,4)}, v3, s[32:35], 0 offen offset:{1024*k}')
    srd(A, 52, 4, 38 * MB, 128 * 1024)
    A('s_lshl_b32 s15, s2, 2')
    A('s_add_u32 s15, s15, s12')
    A('s_lshl_b32 s15, s15, 7')
    A('v_mov_b32 v36, 0')
    A('buffer_store_dword v36, v36, s[52:55], s15 offen')
    srd(A, 56, 48, 0, 3584 * 2048)
    A('s_lshl_b32 s60, s15, 2')
    A('s_waitcnt vmcnt(27)')
    A('s_barrier')
    A('s_waitcnt vmcnt(16)')
    A('s_barrier')
    A.label(f'{name}_lloop')
    issue()
    if opt.get('spw', 1):
        for k in range(4): A(f's_buffer_load_dwordx2 s[62:63], s[56:59], s60 offset:{128*k + 60}')
        A('s_add_u32 s60, s60, 0x80000')
    A('s_add_u32 s18, s18, 1')
    A('s_cmp_lt_u32 s18, 16')
    A('s_waitcnt vmcnt(11)')
    A('s_barrier')
    A(f's_cbranch_scc1 {name}_lloop')
    if opt.get('spw', 1):
        for k in range(4): A(f's_buffer_load_dwordx2 s[62:63], s[56:59], s60 offset:{128*k + 60}')
    A('s_add_u32 s45, s40, s44')
    for q in range(7):
        A(f's_add_u32 m0, s45, {q*1024}')
        A('s_nop 0')
        A(f'buffer_load_dwordx4 v{10+q}, s[28:31], 0 offen lds')
    A('s_add_u32 s45, s40, s43')
    A('v_lshlrev_b32 v3, 4, v1')
    A('v_add_u32 v3, s45, v3')
    for i in range(4): A(f'v_mov_b32 v{32+i}, 0')
    A('ds_write_b128 v3, v[32:35]')
    A('ds_write_b128 v3, v[32:35] offset:2048')
    A('s_waitcnt vmcnt(7)')
    A('s_barrier')
    for k in range(4):
        A(f'v_add_f32 v{40+4*k}, v{40+4*k}, v{42+4*k}')
        A(f'v_add_f32 v{41+4*k}, v{41+4*k}, v{43+4*k}')
    for perm in ('quad_perm:[1,0,3,2]', 'quad_perm:[2,3,0,1]', 'row_half_mirror'):
        for k in range(4):
            for c in range(2):
                A(f'v_add_f32_dpp v{40+4*k+c}, v{40+4*k+c}, v{40+4*k+c} {perm} row_mask:0xf bank_mask:0xf')
    A('v_and_b32 v4, 3, v1')
    A('v_cmp_eq_u32 s[52:53], 1, v4')
    A('v_cmp_eq_u32 s[54:55], 2, v4')
    A('v_cmp_eq_u32 s[56:57], 3, v4')
    for c in range(2):
        A(f'v_cndmask_b32 v{20+c}, v{40+c}, v{44+c}, s[52:53]')
        A(f'v_cndmask_b32 v{20+c}, v{20+c}, v{48+c}, s[54:55]')
        A(f'v_cndmask_b32 v{20+c}, v{20+c}, v{52+c}, s[56:57]')
    ln_finish(A, 20, 21, 22, 23, 24, 47)
    A('v_lshrrev_b32 v28, 16, v23')
    A('v_mov_b32 v29, 0')
    A('v_mov_b32 v30, 0')
    A('v_mov_b32 v31, 0')
    A('v_lshrrev_b32 v5, 3, v1')
    A('v_lshl_add_u32 v2, v4, 3, v5')
    A('v_and_b32 v4, 15, v2')
    A('v_lshlrev_b32 v4, 4, v4')
    A('v_and_b32 v5, 16, v2')
    A('v_lshl_add_u32 v4, v5, 7, v4')
    A('v_add_u32 v4, s45, v4')
    A('ds_write_b128 v4, v[28:31]')
    A('s_waitcnt vmcnt(0) lgkmcnt(0)')
    A('s_barrier')
    A('s_cmp_lg_u32 s11, 0')
    A(f's_cbranch_scc1 {name}_end')
    A('v_mul_f32 v23, v23, v23')
    A('v_rcp_f32 v23, v23')
    A('s_lshl_b32 s15, s12, 7')
    A('v_lshlrev_b32 v2, 2, v2')
    A('buffer_store_dword v23, v2, s[36:39], s15 offen')
    A.label(f'{name}_end')
    A('s_endpgm')
    return dict(name=name, grid=256, block=512, lds=3*SLOT1, vgpr=224 if not opt.get('stamp') else 248)
```

```python
from common import *
from g1 import tr_bases

SLOT = 32768
PX_OFF = 29 * MB
FL_OFF = 38 * MB
def gen_g2(A, name='g2_kernel', opt=None):
    opt = opt or {}
    nomfma = opt.get('nomfma'); noload = opt.get('noload'); noread = opt.get('noread')
    smod = opt.get('smod', ''); NS = opt.get('ns', 4); N2 = opt.get('n2', 8); N1 = (56 - N2) // 2
    SIG = opt.get('sig', 2); POLL = opt.get('poll', 4)
    PXO = opt.get('px', PX_OFF)
    S1 = opt.get('s1', 16)
    assert 2 * N1 + N2 == 56 and 1 <= SIG < POLL < N2
    khead(A, name)
    st = Stamper(A, opt.get('stamp'), 3)
    st(0); st(7, True)
    A('s_cmp_ge_u32 s2, 256')
    A(f's_cbranch_scc1 {name}_end')
    A('s_load_dwordx2 s[4:5], s[0:1], %d' % KA['ws'])
    A('s_load_dwordx4 s[48:51], s[0:1], %d' % KA['w2'])
    A('s_load_dwordx2 s[52:53], s[0:1], %d' % KA['out'])
    A('v_lshrrev_b32 v2, 6, v0')
    A('v_and_b32 v1, 63, v0')
    A('s_and_b32 s8, s2, 1')
    A('v_readfirstlane_b32 s12, v2')
    A('s_lshr_b32 s9, s2, 3')
    A('s_and_b32 s10, s2, 6')
    A('s_lshl_b32 s10, s10, 1')
    A('s_and_b32 s11, s9, 3')
    A('s_add_u32 s10, s10, s11')
    A('s_lshr_b32 s11, s9, 2')
    A('s_lshl_b32 s11, s11, 1')
    A('s_add_u32 s11, s11, s8')
    A('s_cmp_ge_u32 s12, 4')
    A(f's_cbranch_scc1 {name}_loader')
    AO = 8; AX = 40; HB = [72, 88]; WO = [104, 112]; WX = [120, 128]; EP = 136; PR = 164
    vAh, vAw, cAh, cAw, vAw1, cAw1, vL16, vFl = 2, 3, 4, 5, 6, 7, 196, 197
    A('s_and_b32 s13, s12, 1')
    A('s_lshr_b32 s14, s12, 1')
    A('s_lshl_b32 s15, s13, 13')
    A(f'v_lshlrev_b32 v{vL16}, 4, v1')
    A(f'v_add_u32 v{vAh}, s15, v{vL16}')
    A('v_lshrrev_b32 v8, 2, v1')
    A('v_and_b32 v8, 3, v8')
    A('v_lshrrev_b32 v9, 4, v1')
    A('v_lshl_add_u32 v8, v9, 3, v8')
    A('v_lshrrev_b32 v10, 3, v1')
    A('v_and_b32 v10, 3, v10')
    A('v_lshlrev_b32 v10, 5, v10')
    A('v_lshl_add_u32 v8, v8, 7, v10')
    A('v_and_b32 v10, 3, v1')
    A(f'v_lshl_add_u32 v{vAw}, v10, 3, v8')
    A('s_lshl_b32 s15, s14, 6')
    A(f'v_xor_b32 v{vAw}, s15, v{vAw}')
    A(f'v_add_u32 v{vAw}, 16384, v{vAw}')
    A(f'v_xor_b32 v{vAw1}, 32, v{vAw}')
    A(f'v_mov_b32 v{cAh}, v{vAh}')
    A(f'v_mov_b32 v{cAw}, v{vAw}')
    A(f'v_mov_b32 v{cAw1}, v{vAw1}')
    A(f'v_mov_b32 v{vFl}, 0')
    for i in range(64): A(f'v_mov_b32 v{AO+i}, 0')
    A('s_lshl_b32 s15, s10, 1')
    A('s_add_u32 s15, s15, s13')
    A('s_lshl_b32 s16, s15, 17')
    A(f's_add_u32 s16, s16, {HF_OFF}')
    A('s_lshl_b32 s19, s15, 8')
    A(f's_add_u32 s19, s19, {R2_OFF}')
    A('s_lshl_b32 s54, s2, 2')
    A('s_add_u32 s54, s54, s12')
    A('s_xor_b32 s55, s54, 4')
    A('s_lshl_b32 s56, s54, 12')
    A('s_lshl_b32 s57, s55, 12')
    A('s_lshl_b32 s54, s54, 7')
    A('s_lshl_b32 s55, s55, 7')
    A('s_mov_b32 s17, 0')
    A('s_mov_b32 s18, 0')
    A('s_waitcnt lgkmcnt(0)')
    srd(A, 20, 4, 's16', 128 * 1024)
    srd(A, 24, 4, 's19', 256)
    A(f's_add_u32 s19, s19, {MU_OFF - R2_OFF + (1 << 32) if MU_OFF < R2_OFF else MU_OFF - R2_OFF}')
    srd(A, 44, 4, 's19', 256)
    srd(A, 28, 50, 0, 2048)
    srd(A, 32, 52, 0, 2048 * 2048)
    srd(A, 36, 4, PXO, 4 * MB)
    srd(A, 40, 4, FL_OFF, 128 * 1024)
    def reads(s, buf, full):
        r = []
        for i in range(2):
            for rd in range(2):
                r.append(f'ds_read_b64_tr_b16 {vr(WO[buf]+4*i+2*rd,2)}, v{cAw1 if i else cAw} offset:{4096*s + 512*rd}')
        for j in range(4):
            r.append(f'ds_read_b128 {vr(HB[buf]+4*j,4)}, v{cAh} offset:{(2*j+s)*1024}')
        if full:
            for i in range(2):
                for rd in range(2):
                    r.append(f'ds_read_b64_tr_b16 {vr(WX[buf]+4*i+2*rd,2)}, v{cAw1 if i else cAw} offset:{8192 + 4096*s + 512*rd}')
        return r
    ADV = [[f's_add_u32 s17, s17, {SLOT}', f's_cmp_eq_u32 s17, {NS*SLOT}'], ['s_cselect_b32 s17, 0, s17', f'v_add_u32 v{cAh}, s17, v{vAh}'],
           [f'v_add_u32 v{cAw}, s17, v{vAw}'], [f'v_add_u32 v{cAw1}, s17, v{vAw1}']]
    def step(buf, full, rds, tail=(), xfirst=False):
        if noread: rds = []
        seq = []
        order = ([(AX, WX)] if full else []) + [(AO, WO)] if xfirst else [(AO, WO)] + ([(AX, WX)] if full else [])
        for acc, W in order:
            for i in range(2):
                for jj in range(4):
                    j = jj if i == 0 else 3 - jj
                    seq.append((acc + (i*4+j)*4, W[buf] + 4*i, HB[buf] + 4*j))
        per = 1 if len(rds) + len(tail) <= len(seq) else 2
        fill = [[x] for x in rds]
        if per == 2: fill = [sum(fill[k:k+2], []) for k in range(0, len(fill), 2)]
        fill += list(tail)
        for n, (d, a, b) in enumerate(seq):
            if not nomfma: mfma(A, d, a, b)
            if n < len(fill):
                for x in fill[n]: A(x)
        for f in fill[len(seq):]:
            for x in f: A(x)
        A('s_waitcnt lgkmcnt(0)')
    st(1)
    A('s_barrier')
    st(2)
    if not noread:
        for r in reads(0, 0, True): A(r)
    A('s_lshl_b32 s16, s11, 1')
    A('s_add_u32 s16, s16, s14')
    A('s_lshl_b32 s19, s16, 10')
    for j in range(4):
        A(f'buffer_load_dwordx4 {vr(EP+4*j,4)}, v{vL16}, s[20:23], s19 offen')
        if j < 3: A('s_add_u32 s19, s19, 32768')
    A(f'v_and_b32 v{PR}, 15, v1')
    A(f'v_lshlrev_b32 v{PR}, 2, v{PR}')
    for j in range(4):
        A(f'buffer_load_dword v{EP+16+j}, v{PR}, s[24:27], 0 offen offset:{64*j}')
        A(f'buffer_load_dword v{EP+24+j}, v{PR}, s[44:47], 0 offen offset:{64*j}')
    A(f'v_lshrrev_b32 v{PR+1}, 4, v1')
    A(f'v_lshlrev_b32 v{PR+1}, 3, v{PR+1}')
    A('s_lshl_b32 s19, s16, 6')
    A(f'buffer_load_dwordx2 {vr(EP+20,2)}, v{PR+1}, s[28:31], s19 offen')
    A(f'buffer_load_dwordx2 {vr(EP+22,2)}, v{PR+1}, s[28:31], s19 offen offset:32')
    A('s_waitcnt lgkmcnt(0)')
    A(f's_branch {name}_mid')
    A('.p2align 6')
    A.label(f'{name}_loop')
    A('s_barrier')
    step(1, True, reads(0, 0, True))
    A.label(f'{name}_mid')
    step(0, True, reads(1, 1, True), ADV[:3] + [ADV[3] + ['s_add_u32 s18, s18, 1', f's_cmp_lt_u32 s18, {N1}']])
    A(f's_cbranch_scc1 {name}_loop')
    st(8)
    A('s_mov_b32 s59, 0')
    def check(tag, spin):
        A('s_cmp_lg_u32 s59, 0')
        A(f's_cbranch_scc1 {name}_done{tag}')
        A.label(f'{name}_poll{tag}')
        A('s_waitcnt vmcnt(0)')
        A(f'v_readfirstlane_b32 s59, v{PR+16}')
        A('s_cmp_eq_u32 s59, 1')
        A(f's_cbranch_scc1 {name}_got{tag}')
        A('s_mov_b32 s59, 0')
        if spin: A('s_sleep 1')
        A(f'buffer_load_dword v{PR+16}, v{vFl}, s[40:43], s55 offen sc1')
        A(f's_branch {name}_poll{tag}' if spin else f's_branch {name}_done{tag}')
        A.label(f'{name}_got{tag}')
        for k in range(4):
            A(f'buffer_load_dwordx4 {vr(PR+4*k,4)}, v{vL16}, s[36:39], s57 offen offset:{k*1024} sc1')
        A.label(f'{name}_done{tag}')
    for it in range(N2):
        if opt.get('fine') and it in opt['fine']: st(9 + opt['fine'].index(it))
        A('s_barrier')
        if it == 0:
            cv = [[f'v_cvt_pk_bf16_f32 v{AX+k}, v{AX+2*k}, v{AX+2*k+1}'] for k in range(16)]
            step(1, True, reads(0, 0, False), xfirst=True)
            for k in range(4):
                for c in cv[4*k:4*k+4]: A(c[0])
                A(f'buffer_store_dwordx4 {vr(AX+4*k,4)}, v{vL16}, s[36:39], s56 offen offset:{k*1024} sc1')
        else:
            if it == SIG:
                A('s_waitcnt vmcnt(0)')
                A(f'v_mov_b32 v{PR}, 1')
                A(f'buffer_store_dword v{PR}, v{vFl}, s[40:43], s54 offen sc1')
            if it == POLL:
                A(f'buffer_load_dword v{PR+16}, v{vFl}, s[40:43], s55 offen sc1')
            if it > POLL: check(it, False)
            step(1, False, reads(0, 0, False))
        step(0, False, reads(1, 1, False), ADV if it < N2 - 1 else ())
    check('L', True)
    step(1, False, [])
    st(3)
    B = 104
    A('v_and_b32 v6, 15, v1')
    A(f'v_lshlrev_b32 v6, {16 if S1 == 32 else 15}, v6')
    A('v_lshrrev_b32 v7, 4, v1')
    A('v_and_b32 v2, 1, v7')
    A('v_lshl_add_u32 v6, v2, 5, v6')
    A('v_lshrrev_b32 v7, 1, v7')
    A('v_lshl_add_u32 v6, v7, 4, v6')
    if S1 == 32:
        A('s_lshl_b32 s19, s15, 11')
    else:
        A('s_lshl_b32 s19, s10, 11')
        A('s_lshl_b32 s15, s13, 21')
        A('s_add_u32 s19, s19, s15')
    A('s_lshl_b32 s16, s16, 6')
    A('s_add_u32 s19, s19, s16')
    A('s_waitcnt vmcnt(0)')
    for i in range(2):
        for q in range(2):
            A(f'v_lshlrev_b32 v{B+4*i+2*q}, 16, v{EP+20+2*i+q}')
            A(f'v_and_b32 v{B+4*i+2*q+1}, 0xffff0000, v{EP+20+2*i+q}')
    T = 40
    for j in range(4):
        d = T + 8*j
        for i in range(2):
            a = AO + (i*4+j)*4; pr = PR + (i*4+j)*2
            for q in range(2):
                hreg = EP + 4*j + 2*i + q
                A(f'v_lshlrev_b32 v{d+4+2*q}, 16, v{hreg}')
                A(f'v_and_b32 v{d+5+2*q}, 0xffff0000, v{hreg}')
                A(f'v_lshlrev_b32 v{72+2*q}, 16, v{pr+q}')
                A(f'v_and_b32 v{73+2*q}, 0xffff0000, v{pr+q}')
            for q in range(2):
                A(f'v_pk_add_f32 {vr(a+2*q,2)}, {vr(a+2*q,2)}, {vr(72+2*q,2)}')
                A(f'v_pk_add_f32 {vr(d+4+2*q,2)}, {vr(d+4+2*q,2)}, {vr(B+4*i+2*q,2)}')
            for r in range(4):
                A(f'v_add_f32 v{d+4+r}, v{d+4+r}, v{EP+24+j}')
            for r in range(4):
                A(f'v_fma_f32 v{a+r}, v{a+r}, v{EP+16+j}, v{d+4+r}')
            A(f'v_cvt_pk_bf16_f32 v{d+2*i}, v{a}, v{a+1}')
            A(f'v_cvt_pk_bf16_f32 v{d+2*i+1}, v{a+2}, v{a+3}')
        A(f'v_permlane16_swap_b32 v{d}, v{d+2}')
        A(f'v_permlane16_swap_b32 v{d+1}, v{d+3}')
        A(f'buffer_store_dwordx4 {vr(d,4)}, v6, s[32:35], s19 offen {smod}')
        if j < 3: A(f's_add_u32 s19, s19, {16*S1*2048}')
    st(4)
    A('s_waitcnt vmcnt(0)') if opt.get('stamp') else None
    st(5); st(6, True)
    st.dump(13 if opt.get('fine') else 9, 0, 200)
    A('s_endpgm')
    A.label(f'{name}_loader')
    A('s_sub_u32 s12, s12, 4')
    A(f's_mul_i32 s15, s12, {2*112*1024}')
    A('v_lshlrev_b32 v8, 4, v1')
    A('v_add_u32 v8, s15, v8')
    A(f'v_add_u32 v9, {112*1024}, v8')
    A('v_lshrrev_b32 v4, 3, v1')
    A('s_lshl_b32 s15, s12, 4')
    A('v_add_u32 v4, s15, v4')
    A('v_lshlrev_b32 v4, 11, v4')
    A('v_and_b32 v5, 1, v1')
    A('v_lshl_add_u32 v4, v5, 4, v4')
    A('v_lshrrev_b32 v5, 4, v1')
    A('v_and_b32 v5, 1, v5')
    A('v_lshrrev_b32 v6, 1, v1')
    A('v_and_b32 v6, 3, v6')
    A('v_xor_b32 v5, v5, v6')
    A('v_lshl_add_u32 v10, v5, 5, v4')
    A('s_lshl_b32 s15, s8, 7')
    A('v_add_u32 v10, s15, v10')
    A('v_xor_b32 v11, 64, v10')
    A(f'v_add_u32 v11, {16384 - 1024}, v11')
    A('v_xor_b32 v12, 128, v10')
    A('v_xor_b32 v13, 192, v10')
    A(f'v_add_u32 v13, {16384 - 1024}, v13')
    A('s_lshl_b32 s43, s12, 12')
    A('s_lshl_b32 s44, s12, 11')
    A('s_add_u32 s44, s44, 16384')
    A('s_mov_b32 s40, 0')
    A(f's_mul_i32 s41, s8, {(56-N1)*2048}')
    A(f's_mul_i32 s42, s8, {(56-N1)*64*2048}')
    A(f's_mul_i32 s15, s10, {8*112*1024}')
    A(f's_add_u32 s15, s15, {G_OFF}')
    A('s_lshr_b32 s16, s11, 1')
    A('s_lshl_b32 s16, s16, 8')
    A(f's_sub_u32 s19, {3584*2048}, s16')
    A('s_waitcnt lgkmcnt(0)')
    srd(A, 20, 4, 's15', 8 * 112 * 1024)
    srd(A, 24, 48, 's16', 's19')
    def issue(full):
        if not noload:
            A('s_add_u32 m0, s40, s43')
            A('s_add_u32 s45, s40, s44')
            for s in range(2): A(f'buffer_load_dwordx4 v8, s[20:23], s41 offen offset:{s*1024} lds')
            A('s_add_u32 m0, m0, 2048')
            A('s_nop 0')
            for s in range(2): A(f'buffer_load_dwordx4 v9, s[20:23], s41 offen offset:{s*1024} lds')
            A('s_mov_b32 m0, s45')
            A('s_add_u32 s41, s41, 2048')
            A(f'buffer_load_dwordx4 v10, s[24:27], s42 offen lds')
            A(f'buffer_load_dwordx4 v11, s[24:27], s42 offen offset:1024 lds')
            if full:
                A('s_add_u32 m0, s45, 8192')
                A('s_nop 0')
                A(f'buffer_load_dwordx4 v12, s[24:27], s42 offen lds')
                A(f'buffer_load_dwordx4 v13, s[24:27], s42 offen offset:1024 lds')
            A(f's_add_u32 s42, s42, {64*2048}')
        A(f's_add_u32 s40, s40, {SLOT}')
        A(f's_cmp_eq_u32 s40, {NS*SLOT}')
        A('s_cselect_b32 s40, 0, s40')
    NT = N1 + N2
    cnt = lambda s: 0 if s >= NT else (8 if s < N1 else 6)
    A('s_mov_b32 s18, 0')
    A.label(f'{name}_lpro')
    issue(True)
    A('s_add_u32 s18, s18, 1')
    A(f's_cmp_lt_u32 s18, {NS}')
    A(f's_cbranch_scc1 {name}_lpro')
    A(f's_waitcnt vmcnt({8*(NS-1)})')
    A('s_barrier')
    A(f's_waitcnt vmcnt({8*(NS-2)})')
    A('s_barrier')
    A.label(f'{name}_lloop')
    issue(True)
    A('s_add_u32 s18, s18, 1')
    A(f's_cmp_lt_u32 s18, {N1}')
    A(f's_waitcnt vmcnt({8*(NS-2)})')
    A('s_barrier')
    A(f's_cbranch_scc1 {name}_lloop')
    A(f's_mov_b32 s41, {N1*2048}')
    A(f's_mov_b32 s42, {N1*64*2048}')
    for j in range(N1 - NS + 1, NT - 1):
        s = j + NS - 1
        if s < NT: issue(False)
        A(f's_waitcnt vmcnt({sum(cnt(x) for x in range(j + 2, j + NS))})')
        A('s_barrier')
    A.label(f'{name}_end')
    A('s_endpgm')
    return dict(name=name, grid=256, block=512, lds=NS*SLOT, vgpr=204)
```

```python
from common import *
from g1 import w_voffs, tr_bases

HS = 16384; WS = 28672; WB0 = 3 * HS
XB = 32768; EB = WB0 + 3 * WS
SLOT = 32768
M_LDS = EB + 1024
PX_OFF = 29 * MB
FL_OFF = 38 * MB
GS_OFF = 40 * MB; GST = 3072; GTT = 56 * GST
FL1, FL2, FL3 = 0, 32768, 65536
FL_SIZE = 1536 * 128

def spin(A, tag, srdn, soff, vflag, vaddr, scnt, depth=4, gap=2):
    A(f's_mov_b32 s{scnt}, 400000')
    ld = lambda k: A(f'buffer_load_dword v{vflag+k}, v{vaddr}, s[{srdn}:{srdn+3}], s{soff} offen sc1')
    for k in range(depth - 1):
        ld(k); A(f's_sleep {gap}')
    A.label(f'{tag}_spin')
    for k in range(depth):
        ld((k + depth - 1) % depth)
        A(f's_waitcnt vmcnt({depth - 1})')
        A(f'v_cmp_ne_u32 vcc, 1, v{vflag+k}')
        A(f's_cbranch_vccz {tag}_go')
        A(f's_sleep {gap}')
    A(f's_sub_u32 s{scnt}, s{scnt}, 1')
    A(f's_cbranch_scc0 {tag}_spin')
    A.label(f'{tag}_go')

def skipmap(A, dst, src, odd, t):
    if odd:
        A(f'v_cmp_lt_u32 vcc, 255, v{src}')
        A(f'v_add_u32 v{dst}, {1024 + 128}, v{src}')
    else:
        A(f'v_cmp_lt_u32 vcc, 383, v{src}')
        if dst != src: A(f'v_mov_b32 v{dst}, v{src}')
    A(f'v_add_u32 v{t}, 128, v{dst}')
    A(f'v_cndmask_b32 v{dst}, v{dst}, v{t}, vcc')

def g1_decode(A):
    A('s_and_b32 s8, s2, 7')
    A('s_lshr_b32 s9, s2, 3')
    A('s_and_b32 s10, s8, 1')
    A('s_lshl_b32 s10, s10, 3')
    A('s_and_b32 s11, s9, 7')
    A('s_add_u32 s10, s10, s11')
    A('s_lshr_b32 s11, s8, 1')
    A('s_lshl_b32 s11, s11, 2')
    A('s_lshr_b32 s9, s9, 3')
    A('s_add_u32 s11, s11, s9')

def g2_decode(A):
    A('s_and_b32 s8, s2, 1')
    A('s_lshr_b32 s9, s2, 3')
    A('s_and_b32 s10, s2, 6')
    A('s_lshl_b32 s10, s10, 1')
    A('s_and_b32 s11, s9, 3')
    A('s_add_u32 s10, s10, s11')
    A('s_lshr_b32 s11, s9, 2')
    A('s_lshl_b32 s11, s11, 1')
    A('s_add_u32 s11, s11, s8')

def fb_compute(A, name, st, opt):
    A('s_and_b32 s13, s2, 7')
    A('s_lshr_b32 s14, s2, 3')
    A('s_sub_u32 s15, 16, s13')
    A('s_cmp_eq_u32 s13, 0')
    A('s_cselect_b32 s15, 8, s15')
    A('s_bitcmp1_b32 s14, 0')
    A('s_cselect_b32 s10, s15, s13')
    A('s_lshr_b32 s11, s14, 1')
    A('s_sub_u32 s16, 16, s10')
    A('s_and_b32 s16, s16, 15')
    A('s_sub_u32 s17, 15, s11')
    A('s_lshr_b32 s19, s11, 3')
    A('s_cmp_lg_u32 s19, 0')
    A('s_cselect_b32 s16, s16, s10')
    A('s_cselect_b32 s17, s17, s11')
    vn, vg = 2, 3
    A(f'v_and_b32 v{vn}, 15, v1')
    A(f'v_lshrrev_b32 v{vg}, 4, v1')
    A('v_lshrrev_b32 v6, 3, v1')
    A(f'v_and_b32 v7, 1, v{vg}')
    A('v_lshrrev_b32 v8, 1, v1')
    A('v_and_b32 v8, 3, v8')
    A('v_xor_b32 v7, v7, v8')
    A('v_lshlrev_b32 v7, 5, v7')
    A('v_lshl_add_u32 v4, v6, 10, v7')
    A('v_and_b32 v7, 1, v1')
    A('v_lshl_add_u32 v4, v7, 4, v4')
    A('v_xor_b32 v5, 64, v4')
    A(f'v_add_u32 v5, {8192 - 1024}, v5')
    A('s_lshl_b32 s14, s16, 2')
    A('s_add_u32 s14, s14, s12')
    A('s_lshl_b32 s14, s14, 16')
    A('s_lshl_b32 s15, s17, 7')
    A('s_add_u32 s14, s14, s15')
    A('s_lshl_b32 s18, s12, 13')
    A(f'v_xor_b32 v8, v{vg}, v1')
    A('v_and_b32 v8, 7, v8')
    A('v_lshlrev_b32 v8, 4, v8')
    A('v_lshl_add_u32 v6, v6, 15, v8')
    A('v_xor_b32 v7, 64, v6')
    A(f'v_add_u32 v7, {8*32768 - 1024}, v7')
    A('s_lshl_b32 s61, s12, 19')
    A('s_lshl_b32 s15, s10, 11')
    A('s_add_u32 s61, s61, s15')
    A('s_lshl_b32 s15, s11, 7')
    A('s_add_u32 s61, s61, s15')
    A('s_lshl_b32 s62, s12, 12')
    A(f's_add_u32 s62, s62, {XB}')
    A('s_lshl_b32 s63, s10, 3')
    A('s_add_u32 s63, s63, s11')
    A('s_lshl_b32 s63, s63, 9')
    A('s_sub_u32 s63, s63, 512')
    A('s_sub_u32 s15, s11, 1')
    A('s_cmp_lt_u32 s15, 7')
    A('s_cselect_b32 s63, s63, 0x40000000')
    A('s_lshl_b32 s15, s16, 12')
    A('v_mov_b32 v9, s15')
    A('v_mov_b32 v10, s63')
    A('v_cmp_gt_u32 vcc, 32, v1')
    A('v_cndmask_b32 v9, v10, v9, vcc')
    A('v_lshl_add_u32 v9, v1, 4, v9')
    A(f'v_lshlrev_b32 v10, 6, v{vn}')
    A('s_lshl_b32 s15, s12, 8')
    A('s_add_u32 s15, s15, s10')
    A('s_lshl_b32 s15, s15, 2')
    A('s_waitcnt lgkmcnt(0)')
    srd(A, 20, 4, U_OFF, 4 * MB)
    srd(A, 28, 4, E_OFF, 65536)
    for h in range(4):
        A(f's_add_u32 m0, s18, {h*2048}')
        A('s_nop 0')
        A(f'buffer_load_dwordx4 v4, s[20:23], s14 offen lds')
        A(f'buffer_load_dwordx4 v5, s[20:23], s14 offen offset:1024 lds')
        if h < 3: A('s_add_u32 s14, s14, 16384')
    A(f's_mov_b32 m0, {EB}')
    srd(A, 24, 6, 0, 2048 * 2048)
    A('buffer_load_dwordx4 v9, s[28:31], 0 offen lds')
    FR = [16, 48]; EF = 80; B = [112, 144]; ACC = [176, 192]; MA = [208, 212]; VT = 216; VX = 220; X = [224, 232]; VB = 240; MXV = [241, 242]; VH = 243; VE = 244
    srd(A, 40, 4, MX_OFF, 8192)
    for u in range(2):
        A(f's_add_u32 m0, s62, {u*2048}')
        if u: A(f's_add_u32 s61, s61, {4 << 19}')
        else: A('s_nop 0')
        A('buffer_load_dwordx4 v6, s[24:27], s61 offen lds')
        A('buffer_load_dwordx4 v7, s[24:27], s61 offen offset:1024 lds')
    A('s_add_u32 s14, s15, 4096')
    A(f'buffer_load_dword v{MXV[0]}, v10, s[40:43], s15 offen')
    A(f'buffer_load_dword v{MXV[1]}, v10, s[40:43], s14 offen')
    A('s_lshl_b32 s15, s12, 4')
    A(f'v_add_u32 v6, s15, v{vn}')
    A('s_cmp_lg_u32 s10, 0')
    A('s_cselect_b32 s15, -1, 0')
    A('v_sub_u32 v7, s15, v6')
    A('s_cmp_lg_u32 s19, 0')
    A('s_cselect_b64 vcc, -1, 0')
    A('v_cndmask_b32 v6, v6, v7, vcc')
    A('v_and_b32 v6, 127, v6')
    A('v_cvt_f32_u32 v7, v6')
    A('v_mul_f32 v7, 0x3c000000, v7')
    A(f'v_lshlrev_b32 v10, 3, v{vg}')
    A('v_cvt_f32_u32 v10, v10')
    A('v_mul_f32 v10, v10, v7')
    B0 = B[0]
    for j in range(8):
        if j: A('v_add_f32 v10, v10, v7')
        A(f'v_cos_f32 v{12+(j&1)}, v10')
        A(f'v_sin_f32 v{14+(j&1)}, v10')
        if j & 1:
            A(f'v_cvt_pk_bf16_f32 v{B0+j//2}, v12, v13')
            A(f'v_cvt_pk_bf16_f32 v{B0+16+j//2}, v14, v15')
    A('v_and_b32 v8, 1, v6')
    A('v_cmp_eq_u32 vcc, 1, v8')
    A('v_mul_u32_u24 v8, 0x8000, v8')
    A('v_lshl_or_b32 v8, v8, 16, v8')
    A('v_and_b32 v10, 2, v6')
    A('v_mul_u32_u24 v10, 0x4000, v10')
    A('v_lshl_or_b32 v10, v10, 16, v10')
    A('v_xor_b32 v11, v10, v8')
    for k in range(4):
        A(f'v_cndmask_b32 v12, v{B0+k}, v{B0+16+k}, vcc')
        A(f'v_cndmask_b32 v13, v{B0+16+k}, v{B0+k}, vcc')
        A(f'v_xor_b32 v{B0+4+k}, v11, v12')
        A(f'v_xor_b32 v{B0+20+k}, v10, v13')
    for k in range(8):
        A(f'v_xor_b32 v{B0+8+k}, v8, v{B0+k}')
        A(f'v_xor_b32 v{B0+24+k}, v8, v{B0+16+k}')
    A('s_brev_b32 s15, 1')
    for k in range(32): A(f'v_xor_b32 v{B[1]+k}, s15, v{B0+k}')
    A(f'v_lshrrev_b32 v10, 2, v{vn}')
    A(f'v_lshl_add_u32 v10, v{vg}, 3, v10')
    A(f'v_lshrrev_b32 v11, 3, v{vn}')
    A(f'v_and_b32 v12, 1, v{vg}')
    A('v_lshl_add_u32 v11, v12, 1, v11')
    A('v_lshlrev_b32 v11, 5, v11')
    A('v_lshl_add_u32 v10, v10, 7, v11')
    A(f'v_and_b32 v11, 3, v{vn}')
    A(f'v_lshl_add_u32 v{VT}, v11, 3, v10')
    for i in range(1, 4): A(f'v_xor_b32 v{VT+i}, {(2*(i&1) + (i>>1))*32}, v{VT}')
    A(f'v_and_b32 v11, 1, v{vn}')
    A('v_lshlrev_b32 v11, 9, v11')
    A(f'v_lshl_add_u32 v11, v{vg}, 4, v11')
    A(f'v_add_u32 v{VE}, {EB}, v11')
    A('s_mul_i32 s15, s19, 3')
    A(f'v_xor_b32 v10, s15, v{vg}')
    A('v_lshrrev_b32 v11, 1, v10')
    A(f'v_lshrrev_b32 v12, 1, v{vn}')
    A('v_xor_b32 v11, v11, v12')
    A('v_lshlrev_b32 v11, 4, v11')
    A(f'v_lshl_add_u32 v11, v{vn}, 7, v11')
    A('v_and_b32 v12, 1, v10')
    A('v_lshl_add_u32 v11, v12, 3, v11')
    A(f'v_add_u32 v{VX}, s62, v11')
    for i in range(1, 4): A(f'v_xor_b32 v{VX+i}, {32*i}, v{VX}')
    A(f'v_lshl_add_u32 v10, v10, 4, v{vn}')
    A(f'v_lshlrev_b32 v{VH}, 4, v10')
    A('v_add_u32 v10, 48, v1')
    A('v_and_b32 v10, 63, v10')
    A(f'v_lshlrev_b32 v{VB}, 2, v10')
    A(f'v_cmp_eq_u32 s[46:47], 0, v{vg}')
    srd(A, 52, 4, HF_OFF, 4 * MB)
    srd(A, 56, 4, ST_OFF, 2048 * 128)
    A('s_cmp_eq_u32 s11, 0')
    A('s_cselect_b32 s15, 8192, 0')
    srd(A, 32, 4, MU_OFF, 's15')
    srd(A, 36, 4, FL_OFF, FL_SIZE)
    A('s_lshl_b32 s13, s10, 3')
    A('s_add_u32 s13, s13, s12')
    st(1)
    A('s_waitcnt vmcnt(6)')
    A('s_barrier')
    st(2)
    def frag(i, p): return FR[i & 1] + 4 * p
    def rd(i, ps):
        for p in ps:
            for r2 in range(2):
                A(f'ds_read_b64_tr_b16 {vr(frag(i,p)+2*r2,2)}, v{VT+i} offset:{(32*p+4*r2)*128}')
    rd(0, range(4))
    for p in range(8): A(f'ds_read_b128 {vr(EF+4*p,4)}, v{VE} offset:{64*p}')
    nxt = [1]
    def issue_next():
        if nxt[0] < 8: rd(nxt[0] >> 1, range(4*(nxt[0] & 1), 4*(nxt[0] & 1) + 4))
        nxt[0] += 1
    for h in range(8):
        i, half = h >> 1, h & 1
        if h != 1: A('s_waitcnt lgkmcnt(8)')
        for k, p in enumerate(range(4*half, 4*half + 4)):
            for u in range(2): mfma(A, ACC[u] + 4*i, frag(i,p), B[u] + 4*p, '0' if p == 0 else None)
            if k == 0: issue_next()
            if k == 0 and h == 6:
                A('s_waitcnt vmcnt(0)')
                for u in range(2):
                    for k2 in range(4): A(f'ds_read_b64 {vr(X[u]+2*k2,2)}, v{VX+k2} offset:{u*2048}')
        if h == 0:
            A('s_waitcnt lgkmcnt(8)')
            for p in range(8):
                for u in range(2): mfma(A, MA[u], EF + 4*p, B[u] + 4*p, '0' if p == 0 else None)
                if p == 1: issue_next()
            A('s_waitcnt lgkmcnt(8)')
    A('s_waitcnt lgkmcnt(0)')
    A('s_barrier')
    st(3)
    ONE = 4; S = [5, 7]; Q = [6, 8]
    A(f'v_mov_b32 v{ONE}, 0x3f803f80')
    for u in range(2):
        A(f'v_mov_b32 v{S[u]}, 0')
        A(f'v_mov_b32 v{Q[u]}, 0')
        A(f'v_add_f32 v{MA[u]}, v{MA[u]}, v{MXV[u]}')
    A(f'v_lshlrev_b32 v9, 2, v{vn}')
    A('s_lshl_b32 s15, s13, 6')
    A(f'buffer_store_dword v{MA[0]}, v9, s[32:35], s15 offen sc1')
    A(f'buffer_store_dword v{MA[1]}, v9, s[32:35], s15 offen offset:256 sc1')
    A('s_lshl_b32 s14, s13, 15')
    A('s_lshl_b32 s15, s11, 11')
    A('s_add_u32 s14, s14, s15')
    A('s_add_u32 s15, s14, 0x20000')
    def epi(V):
        for u in range(2):
            for pr in range(2):
                o = 16 + 8*u + 4*pr
                for i2 in range(2):
                    i = 2*pr + i2; t = 32 + 4*i2
                    for q in range(2):
                        xr = X[u] + 2*i + q
                        A(f'v_lshlrev_b32 v{t+2*q}, 16, v{xr}')
                        A(f'v_and_b32 v{t+1+2*q}, 0xffff0000, v{xr}')
                    for r in range(4): A(f'v_sub_f32 v{t+r}, v{t+r}, v{MA[u]}')
                    for r in range(4): A(f'v_add_f32 v{t+r}, v{t+r}, v{V[u][i][r]}')
                    for q in range(2):
                        A(f'v_cvt_pk_bf16_f32 v{o+2*i2+q}, v{t+2*q}, v{t+1+2*q}')
                A(f'buffer_store_dwordx4 {vr(o,4)}, v{VH}, s[52:55], s{14+u} offen offset:{pr*1024} sc1')
        for u in range(2):
            for k in range(8):
                o = 16 + 8*u
                A(f'v_dot2_f32_bf16 v{S[u]}, v{o+k}, v{ONE}, v{S[u]}')
                A(f'v_dot2_f32_bf16 v{Q[u]}, v{o+k}, v{o+k}, v{Q[u]}')
    A('s_cmp_lg_u32 s19, 0')
    A(f's_cbranch_scc1 {name}_up')
    for u in range(2):
        for i in range(4): A(f'ds_bpermute_b32 v{48+4*u+i}, v{VB}, v{ACC[u]+4*i+3}')
    A('s_waitcnt lgkmcnt(0)')
    for u in range(2):
        for i in range(4): A(f'v_cndmask_b32 v{56+4*u+i}, v{48+4*u+i}, v{47+4*u+i if i else MA[u]+1}, s[46:47]')
    epi([[[56+4*u+i, ACC[u]+4*i, ACC[u]+4*i+1, ACC[u]+4*i+2] for i in range(4)] for u in range(2)])
    A(f's_branch {name}_join')
    A.label(f'{name}_up')
    epi([[[ACC[u]+4*(3-i)+3-r for r in range(4)] for i in range(4)] for u in range(2)])
    A.label(f'{name}_join')
    A(f'v_lshlrev_b32 v40, 7, v{vn}')
    A(f'v_lshrrev_b32 v41, 1, v{vg}')
    A('v_lshl_add_u32 v40, v41, 2, v40')
    A('s_lshl_b32 s14, s13, 11')
    A('s_lshl_b32 s15, s11, 3')
    A('s_add_u32 s14, s14, s15')
    A('s_add_u32 s15, s14, 8192')
    for u in range(2): A(f'v_permlane32_swap_b32 v{S[u]}, v{Q[u]}')
    for u in range(2): A(f'v_add_f32 v{S[u]}, v{S[u]}, v{Q[u]}')
    for u in range(2): A(f'v_mov_b32 v{Q[u]}, v{S[u]}')
    for u in range(2): A(f'v_permlane16_swap_b32 v{S[u]}, v{Q[u]}')
    for u in range(2): A(f'v_add_f32 v{S[u]}, v{S[u]}, v{Q[u]}')
    for u in range(2): A(f'buffer_store_dword v{S[u]}, v40, s[56:59], s{14+u} offen sc1')

def drained(A):
    A('s_waitcnt vmcnt(0)')
    A('s_barrier')

def g1_compute(A, name, st, opt):
    WB = [8, 36]; ACC = 64; HB = [176, 192]
    vAh, cAh, VW, CW = 2, 3, 208, 216
    g1_decode(A)
    A('s_and_b32 s13, s12, 1')
    A('s_lshr_b32 s14, s12, 1')
    A('s_lshl_b32 s15, s13, 13')
    A(f'v_lshlrev_b32 v{vAh}, 4, v1')
    A(f'v_add_u32 v{vAh}, s15, v{vAh}')
    tr_bases(A, 44, 45, 1, 48)
    A('s_lshl_b32 s15, s14, 11')
    A(f's_add_u32 s15, s15, {WB0}')
    for k in range(4):
        A(f'v_xor_b32 v46, {32*k}, v44')
        A(f'v_add_u32 v{VW+k}, s15, v46')
    A('s_cmp_lg_u32 s14, 0')
    A('s_cselect_b64 vcc, -1, 0')
    for k in range(2):
        A(f'v_xor_b32 v46, {32*k}, v45')
        A(f'v_add_u32 v46, {WB0 + 6144}, v46')
        A(f'v_add_u32 v47, 1024, v{VW+k}')
        A(f'v_cndmask_b32 v{VW+4+k}, v47, v46, vcc')
    A(f'v_add_u32 v47, 1024, v{VW+2}')
    A(f'v_subrev_u32 v46, 1024, v{VW+3}')
    A(f'v_cndmask_b32 v{VW+6}, v47, v46, vcc')
    A(f'v_mov_b32 v{cAh}, v{vAh}')
    for k in range(7): A(f'v_mov_b32 v{CW+k}, v{VW+k}')
    for i in range(112): A(f'v_mov_b32 v{ACC+i}, 0')
    A('s_lshl_b32 s15, s10, 1')
    A('s_add_u32 s15, s15, s13')
    gs = opt.get('gskip', 1); TT = GTT if gs else 112 * 1024
    A('s_mul_i32 s15, s15, %d' % (4 * TT))
    A('s_add_u32 s15, s15, %d' % (GS_OFF if gs else G_OFF))
    srd(A, 20, 4, 's15', 4 * TT)
    A('s_mov_b32 s17, 0')
    A('s_mov_b32 s19, 0')
    A('s_mov_b32 s18, 0')
    drained(A)
    st(4)
    A('s_barrier')
    def reads(s, buf):
        r = []
        for j in range(4):
            r.append(f'ds_read_b128 {vr(HB[buf]+4*j,4)}, v{cAh} offset:{(2*j+s)*1024}')
        for i in range(7):
            for rd in range(2):
                r.append(f'ds_read_b64_tr_b16 {vr(WB[buf]+4*i+2*rd,2)}, v{CW+i} offset:{(2*s + rd) * 7168}')
        return r
    def step(buf, rds, tail=None):
        k = 0; n = 0
        for i in range(7):
            for jj in range(4):
                j = jj if (i & 1) == 0 else 3 - jj
                mfma(A, ACC + (i*4+j)*4, WB[buf] + 4*i, HB[buf] + 4*j)
                if k < len(rds): A(rds[k]); k += 1
                n += 1
                if tail and n - 20 in tail:
                    for t in tail[n - 20]: A(t)
        A('s_waitcnt lgkmcnt(0)')
    A('s_barrier')
    st(8)
    for r in reads(0, 0): A(r)
    A('s_waitcnt lgkmcnt(0)')
    A(f's_branch {name}_g1mid')
    A('.p2align 6')
    A.label(f'{name}_g1loop')
    A('s_barrier')
    step(1, reads(0, 0))
    A.label(f'{name}_g1mid')
    tailB = {-4: [f's_add_u32 s17, s17, {HS}', f's_add_u32 s19, s19, {WS}'], -3: [f's_cmp_eq_u32 s17, {3*HS}', 's_cselect_b32 s17, 0, s17'],
             -2: ['s_cselect_b32 s19, 0, s19', 's_add_u32 s18, s18, 1'], -1: [f'v_add_u32 v{cAh}, s17, v{vAh}', 's_cmp_le_u32 s18, 16']}
    for k in range(7): tailB[k] = [f'v_add_u32 v{CW+k}, s19, v{VW+k}']
    step(0, reads(1, 1), tailB)
    A(f's_cbranch_scc1 {name}_g1loop')
    A('s_barrier')
    st(9)
    A('s_and_b32 s52, s11, 1')
    A('s_mul_i32 s15, s11, 7')
    A('s_add_u32 s19, s15, s52')
    A('s_lshl_b32 s16, s14, 2')
    A('s_add_u32 s16, s16, s19')
    A('s_add_u32 s53, s16, 2')
    A('s_and_b32 s52, s52, s14')
    A('s_cmp_lg_u32 s52, 0')
    A('s_cselect_b32 s53, s15, s53')
    A('s_add_u32 s15, s19, 3')
    if gs:
        for r in (53, 16, 15):
            A(f's_lshr_b32 s{r}, s{r}, 1')
            A(f's_mul_i32 s{r}, s{r}, {GST}')
    else:
        for r in (53, 16, 15): A(f's_lshl_b32 s{r}, s{r}, 10')
    A('v_and_b32 v2, 15, v1')
    A('v_lshlrev_b32 v2, 4, v2')
    A('v_and_b32 v4, 16, v1')
    A('v_and_b32 v5, 32, v1')
    A('v_lshl_add_u32 v3, v5, 3, v2')
    A('v_lshl_add_u32 v2, v4, 5, v3')
    A('v_lshrrev_b32 v4, 1, v4')
    A('s_lshl_b32 s19, s14, 9')
    A('v_add3_u32 v3, v3, v4, s19')
    if gs:
        skipmap(A, 6, 2, 1, 4)
        skipmap(A, 2, 2, 0, 4)
        skipmap(A, 3, 3, 1, 4)
        A('s_cmp_lg_u32 s52, 0')
        A('s_cselect_b64 vcc, -1, 0')
        A('v_cndmask_b32 v7, v2, v6, vcc')
    else:
        A('v_add_u32 v6, 1024, v2')
        A('v_mov_b32 v7, v2')
    tmp = 176
    for j in range(4):
        for pp in range(4):
            tiles = [2*pp, 2*pp+1] if pp < 3 else [6]
            d = tmp + ((j*4+pp) % 8) * 4
            for n, i in enumerate(tiles):
                a = ACC + (i*4+j)*4
                for r in range(4): A(f'v_max_f32 v{a+r}, 0, v{a+r}')
                A(f'v_pk_mul_f32 {vr(a,2)}, {vr(a,2)}, {vr(a,2)}')
                A(f'v_pk_mul_f32 {vr(a+2,2)}, {vr(a+2,2)}, {vr(a+2,2)}')
                A(f'v_cvt_pk_bf16_f32 v{d+2*n}, v{a}, v{a+1}')
                A(f'v_cvt_pk_bf16_f32 v{d+2*n+1}, v{a+2}, v{a+3}')
            if pp < 3:
                A(f'v_permlane16_swap_b32 v{d}, v{d+2}')
                A(f'v_permlane16_swap_b32 v{d+1}, v{d+3}')
            if pp < 2:
                A(f'buffer_store_dwordx4 {vr(d,4)}, v{6 if pp else 2}, s[20:23], s16 offen sc1')
            elif pp == 2:
                A(f'buffer_store_dwordx4 {vr(d,4)}, v7, s[20:23], s53 offen sc1')
            else:
                A(f'buffer_store_dwordx2 {vr(d,2)}, v3, s[20:23], s15 offen sc1')
        if j < 3:
            A(f's_add_u32 s16, s16, {TT}')
            A(f's_add_u32 s15, s15, {TT}')
            A(f's_add_u32 s53, s53, {TT}')

def g2_compute(A, name, st, opt):
    NS = 4; N2 = opt.get('n2', 8); N1 = (56 - N2) // 2
    SIG = opt.get('sig', 2); POLL = opt.get('poll', 4)
    AO = 8; AX = 40; HB = [72, 88]; WO = [104, 112]; WX = [120, 128]; EP = 136; PR = 224
    vAh, vAw, cAh, cAw, vAw1, cAw1, vL16, vFl = 164, 165, 166, 167, 168, 169, 170, 171
    A('s_load_dwordx2 s[50:51], s[0:1], %d' % KA['b2'])
    A('s_load_dwordx2 s[52:53], s[0:1], %d' % KA['out'])
    g2_decode(A)
    A('s_lshl_b32 s15, s13, 13')
    A(f'v_lshlrev_b32 v{vL16}, 4, v1')
    A(f'v_add_u32 v{vAh}, s15, v{vL16}')
    A('v_lshrrev_b32 v8, 2, v1')
    A('v_and_b32 v8, 3, v8')
    A('v_lshrrev_b32 v9, 4, v1')
    A('v_lshl_add_u32 v8, v9, 3, v8')
    A('v_lshrrev_b32 v10, 3, v1')
    A('v_and_b32 v10, 3, v10')
    A('v_lshlrev_b32 v10, 5, v10')
    A('v_lshl_add_u32 v8, v8, 7, v10')
    A('v_and_b32 v10, 3, v1')
    A(f'v_lshl_add_u32 v{vAw}, v10, 3, v8')
    A('s_lshl_b32 s15, s14, 6')
    A(f'v_xor_b32 v{vAw}, s15, v{vAw}')
    A(f'v_add_u32 v{vAw}, 16384, v{vAw}')
    A(f'v_xor_b32 v{vAw1}, 32, v{vAw}')
    A(f'v_mov_b32 v{cAh}, v{vAh}')
    A(f'v_mov_b32 v{cAw}, v{vAw}')
    A(f'v_mov_b32 v{cAw1}, v{vAw1}')
    A(f'v_mov_b32 v{vFl}, 0')
    for i in range(64): A(f'v_mov_b32 v{AO+i}, 0')
    A('s_lshl_b32 s15, s10, 1')
    A('s_add_u32 s15, s15, s13')
    A('s_lshl_b32 s16, s15, 17')
    A(f's_add_u32 s16, s16, {HF_OFF}')
    A('s_lshl_b32 s19, s15, 8')
    A(f's_add_u32 s19, s19, {MU_OFF}')
    A('s_lshl_b32 s54, s2, 2')
    A('s_add_u32 s54, s54, s12')
    A('s_xor_b32 s55, s54, 4')
    A('s_lshl_b32 s56, s54, 12')
    A('s_lshl_b32 s57, s55, 12')
    A('s_lshl_b32 s54, s54, 7')
    A('s_lshl_b32 s55, s55, 7')
    A(f's_add_u32 s54, s54, {FL3}')
    A(f's_add_u32 s55, s55, {FL3}')
    A('s_mov_b32 s17, 0')
    A('s_mov_b32 s18, 0')
    drained(A)
    st(10)
    A('s_waitcnt lgkmcnt(0)')
    srd(A, 20, 4, 's16', 128 * 1024)
    srd(A, 44, 4, 's19', 256)
    A(f's_add_u32 s19, s19, {R2_OFF - MU_OFF}')
    srd(A, 24, 4, 's19', 256)
    srd(A, 28, 50, 0, 2048)
    srd(A, 32, 52, 0, 2048 * 2048)
    srd(A, 40, 4, PX_OFF, 4 * MB)
    A('s_barrier')
    def reads(s, buf, full):
        r = []
        for i in range(2):
            for rd in range(2):
                r.append(f'ds_read_b64_tr_b16 {vr(WO[buf]+4*i+2*rd,2)}, v{cAw1 if i else cAw} offset:{4096*s + 512*rd}')
        for j in range(4):
            r.append(f'ds_read_b128 {vr(HB[buf]+4*j,4)}, v{cAh} offset:{(2*j+s)*1024}')
        if full:
            for i in range(2):
                for rd in range(2):
                    r.append(f'ds_read_b64_tr_b16 {vr(WX[buf]+4*i+2*rd,2)}, v{cAw1 if i else cAw} offset:{8192 + 4096*s + 512*rd}')
        return r
    ADV = [[f's_add_u32 s17, s17, {SLOT}', f's_cmp_eq_u32 s17, {NS*SLOT}'], ['s_cselect_b32 s17, 0, s17', f'v_add_u32 v{cAh}, s17, v{vAh}'],
           [f'v_add_u32 v{cAw}, s17, v{vAw}'], [f'v_add_u32 v{cAw1}, s17, v{vAw1}']]
    def step(buf, full, rds, tail=(), xfirst=False):
        seq = []
        order = ([(AX, WX)] if full else []) + [(AO, WO)] if xfirst else [(AO, WO)] + ([(AX, WX)] if full else [])
        for acc, W in order:
            for i in range(2):
                for jj in range(4):
                    j = jj if i == 0 else 3 - jj
                    seq.append((acc + (i*4+j)*4, W[buf] + 4*i, HB[buf] + 4*j))
        per = 1 if len(rds) + len(tail) <= len(seq) else 2
        fill = [[x] for x in rds]
        if per == 2: fill = [sum(fill[k:k+2], []) for k in range(0, len(fill), 2)]
        fill += list(tail)
        for n, (d, a, b) in enumerate(seq):
            mfma(A, d, a, b)
            if n < len(fill):
                for x in fill[n]: A(x)
        for f in fill[len(seq):]:
            for x in f: A(x)
        A('s_waitcnt lgkmcnt(0)')
    A('s_barrier')
    st(11)
    for r in reads(0, 0, True): A(r)
    A('s_lshl_b32 s16, s11, 1')
    A('s_add_u32 s16, s16, s14')
    A('s_lshl_b32 s19, s16, 10')
    for j in range(4):
        A(f'buffer_load_dwordx4 {vr(EP+4*j,4)}, v{vL16}, s[20:23], s19 offen sc1')
        if j < 3: A('s_add_u32 s19, s19, 32768')
    A(f'v_and_b32 v{PR}, 15, v1')
    A(f'v_lshlrev_b32 v{PR}, 2, v{PR}')
    for j in range(4):
        A(f'buffer_load_dword v{EP+16+j}, v{PR}, s[24:27], 0 offen offset:{64*j} sc1')
        A(f'buffer_load_dword v{EP+24+j}, v{PR}, s[44:47], 0 offen offset:{64*j} sc1')
    A(f'v_lshrrev_b32 v{PR+1}, 4, v1')
    A(f'v_lshlrev_b32 v{PR+1}, 3, v{PR+1}')
    A('s_lshl_b32 s19, s16, 6')
    A(f'buffer_load_dwordx2 {vr(EP+20,2)}, v{PR+1}, s[28:31], s19 offen')
    A(f'buffer_load_dwordx2 {vr(EP+22,2)}, v{PR+1}, s[28:31], s19 offen offset:32')
    A('s_waitcnt lgkmcnt(0)')
    A(f's_branch {name}_g2mid')
    A('.p2align 6')
    A.label(f'{name}_g2loop')
    A('s_barrier')
    step(1, True, reads(0, 0, True))
    A.label(f'{name}_g2mid')
    step(0, True, reads(1, 1, True), ADV[:3] + [ADV[3] + ['s_add_u32 s18, s18, 1', f's_cmp_lt_u32 s18, {N1}']])
    A(f's_cbranch_scc1 {name}_g2loop')
    A('s_mov_b32 s59, 0')
    A('s_mov_b32 s58, 400000')
    def check(tag, sp):
        A('s_cmp_lg_u32 s59, 0')
        A(f's_cbranch_scc1 {name}_done{tag}')
        A.label(f'{name}_poll{tag}')
        A('s_waitcnt vmcnt(0)')
        A(f'v_readfirstlane_b32 s59, v{PR+16}')
        A('s_cmp_eq_u32 s59, 1')
        A(f's_cbranch_scc1 {name}_got{tag}')
        A('s_mov_b32 s59, 0')
        if sp:
            A('s_sub_u32 s58, s58, 1')
            A(f's_cbranch_scc1 {name}_got{tag}')
            A('s_sleep 1')
        A(f'buffer_load_dword v{PR+16}, v{vFl}, s[36:39], s55 offen sc1')
        A(f's_branch {name}_poll{tag}' if sp else f's_branch {name}_done{tag}')
        A.label(f'{name}_got{tag}')
        for k in range(4):
            A(f'buffer_load_dwordx4 {vr(PR+4*k,4)}, v{vL16}, s[40:43], s57 offen offset:{k*1024} sc1')
        A.label(f'{name}_done{tag}')
    for it in range(N2):
        A('s_barrier')
        if it == 0:
            step(1, True, reads(0, 0, False), xfirst=True)
            for k in range(4):
                for c in range(4*k, 4*k+4): A(f'v_cvt_pk_bf16_f32 v{AX+c}, v{AX+2*c}, v{AX+2*c+1}')
                A(f'buffer_store_dwordx4 {vr(AX+4*k,4)}, v{vL16}, s[40:43], s56 offen offset:{k*1024} sc1')
        else:
            if it == SIG:
                A('s_waitcnt vmcnt(0)')
                A(f'v_mov_b32 v{PR}, 1')
                A(f'buffer_store_dword v{PR}, v{vFl}, s[36:39], s54 offen sc1')
            if it == POLL:
                A(f'buffer_load_dword v{PR+16}, v{vFl}, s[36:39], s55 offen sc1')
            if it > POLL: check(it, False)
            step(1, False, reads(0, 0, False))
        step(0, False, reads(1, 1, False), ADV if it < N2 - 1 else ())
    check('L', True)
    step(1, False, [])
    st(12)
    B = 104
    A('v_and_b32 v6, 15, v1')
    A('v_lshlrev_b32 v6, 15, v6')
    A('v_lshrrev_b32 v7, 4, v1')
    A('v_and_b32 v2, 1, v7')
    A('v_lshl_add_u32 v6, v2, 5, v6')
    A('v_lshrrev_b32 v7, 1, v7')
    A('v_lshl_add_u32 v6, v7, 4, v6')
    A('s_lshl_b32 s19, s10, 11')
    A('s_lshl_b32 s15, s13, 21')
    A('s_add_u32 s19, s19, s15')
    A('s_lshl_b32 s16, s16, 6')
    A('s_add_u32 s19, s19, s16')
    A('s_waitcnt vmcnt(0)')
    for i in range(2):
        for q in range(2):
            A(f'v_lshlrev_b32 v{B+4*i+2*q}, 16, v{EP+20+2*i+q}')
            A(f'v_and_b32 v{B+4*i+2*q+1}, 0xffff0000, v{EP+20+2*i+q}')
    T = 40
    for j in range(4):
        d = T + 8*j
        for i in range(2):
            a = AO + (i*4+j)*4; pr = PR + (i*4+j)*2
            for q in range(2):
                hreg = EP + 4*j + 2*i + q
                A(f'v_lshlrev_b32 v{d+4+2*q}, 16, v{hreg}')
                A(f'v_and_b32 v{d+5+2*q}, 0xffff0000, v{hreg}')
                A(f'v_lshlrev_b32 v{72+2*q}, 16, v{pr+q}')
                A(f'v_and_b32 v{73+2*q}, 0xffff0000, v{pr+q}')
            for q in range(2):
                A(f'v_pk_add_f32 {vr(a+2*q,2)}, {vr(a+2*q,2)}, {vr(72+2*q,2)}')
                A(f'v_pk_add_f32 {vr(d+4+2*q,2)}, {vr(d+4+2*q,2)}, {vr(B+4*i+2*q,2)}')
            for r in range(4): A(f'v_add_f32 v{d+4+r}, v{d+4+r}, v{EP+24+j}')
            for r in range(4): A(f'v_fma_f32 v{a+r}, v{a+r}, v{EP+16+j}, v{d+4+r}')
            A(f'v_cvt_pk_bf16_f32 v{d+2*i}, v{a}, v{a+1}')
            A(f'v_cvt_pk_bf16_f32 v{d+2*i+1}, v{a+2}, v{a+3}')
        A(f'v_permlane16_swap_b32 v{d}, v{d+2}')
        A(f'v_permlane16_swap_b32 v{d+1}, v{d+3}')
        A(f'buffer_store_dwordx4 {vr(d,4)}, v6, s[32:35], s19 offen')
        if j < 3: A(f's_add_u32 s19, s19, {16*16*2048}')

def loaders(A, name, opt):
    NS = 4; N2 = opt.get('n2', 8); N1 = (56 - N2) // 2; NT = N1 + N2
    hm = opt.get('hmod', 'sc1')
    A('s_load_dwordx4 s[64:67], s[0:1], %d' % KA['w1'])
    A('s_load_dwordx2 s[48:49], s[0:1], %d' % KA['w2'])
    A('s_sub_u32 s12, s12, 4')
    g1_decode(A)
    A('s_lshl_b32 s15, s12, 16')
    A('v_lshlrev_b32 v8, 4, v1')
    A('v_add_u32 v8, s15, v8')
    A('v_add_u32 v9, 0x8000, v8')
    A('s_lshl_b32 s15, s12, 4')
    A('s_and_b32 s16, s11, 1')
    w_voffs(A, 10, 1, 15, 16, 4, range(7))
    A('s_lshl_b32 s43, s12, 12')
    A('s_mul_i32 s44, s12, 7168')
    A(f's_add_u32 s44, s44, {WB0}')
    A('s_mov_b32 s41, 0')
    A('s_mov_b32 s42, 0')
    A('s_lshl_b32 s15, s12, 12')
    A('v_lshlrev_b32 v3, 4, v1')
    A('v_add_u32 v3, s15, v3')
    A('v_and_b32 v17, 15, v1')
    A('v_lshlrev_b32 v17, 7, v17')
    A('v_mov_b32 v20, 1')
    A('v_mov_b32 v21, 0')
    A('s_and_b32 s13, s2, 7')
    A('s_sub_u32 s15, 16, s13')
    A('s_cmp_eq_u32 s13, 0')
    A('s_cselect_b32 s15, 8, s15')
    A('s_bitcmp1_b32 s2, 3')
    A('s_cselect_b32 s13, s15, s13')
    A('s_lshl_b32 s13, s13, 4')
    A('s_lshr_b32 s15, s2, 4')
    A('s_add_u32 s13, s13, s15')
    A('s_lshl_b32 s13, s13, 7')
    A('s_lshl_b32 s14, s10, 4')
    A('s_add_u32 s14, s14, s11')
    A('s_lshl_b32 s14, s14, 7')
    A(f's_add_u32 s14, s14, {FL2}')
    A('s_lshl_b32 s15, s10, 18')
    A(f's_add_u32 s15, s15, {HF_OFF}')
    A('s_mul_i32 s16, s11, 448')
    A(f's_sub_u32 s19, {1024*7168}, s16')
    A('s_waitcnt lgkmcnt(0)')
    srd(A, 20, 4, 's15', 256 * 1024)
    srd(A, 24, 64, 's16', 's19')
    A('s_sub_u32 s19, 7168, s16')
    srd(A, 28, 66, 's16', 's19')
    A('s_lshl_b32 s15, s10, 14')
    A(f's_add_u32 s15, s15, {ST_OFF}')
    srd(A, 32, 4, 's15', 16384)
    A('s_lshl_b32 s15, s10, 9')
    A(f's_add_u32 s15, s15, {R2_OFF}')
    A('s_cmp_eq_u32 s11, 0')
    A('s_cselect_b32 s19, 512, 0')
    srd(A, 36, 4, 's15', 's19')
    srd(A, 52, 4, FL_OFF, FL_SIZE)
    srd(A, 56, 48, 0, 3584 * 2048)
    A('s_lshl_b32 s60, s2, 2')
    A('s_add_u32 s60, s60, s12')
    A('s_lshl_b32 s60, s60, 9')
    A(f's_mov_b32 s50, {4 << 20}')
    hstep = [2048]
    A('v_mov_b32 v26, v8')
    A('v_mov_b32 v27, v9')
    def issue_h(lds):
        A(f's_add_u32 m0, {lds}, s43')
        A('s_nop 0')
        A(f'buffer_load_dwordx4 v8, s[20:23], s41 offen {hm} lds')
        A(f'buffer_load_dwordx4 v26, s[20:23], s41 offen offset:1024 {hm} lds')
        A('s_add_u32 m0, m0, 2048')
        A('s_nop 0')
        A(f'buffer_load_dwordx4 v9, s[20:23], s41 offen {hm} lds')
        A(f'buffer_load_dwordx4 v27, s[20:23], s41 offen offset:1024 {hm} lds')
        A(f's_add_u32 s41, s41, {hstep[0]}')
    def issue_w(lds, srdn=24, so='s42'):
        A(f's_add_u32 s45, {lds}, s44')
        for q in range(7):
            A(f's_add_u32 m0, s45, {q*1024}')
            A('s_nop 0')
            A(f'buffer_load_dwordx4 v{10+q}, s[{srdn}:{srdn+3}], {so} offen lds')
        if srdn == 24: A(f's_add_u32 s42, s42, {64*7168}')
    def sp2():
        for k in range(4): A(f's_buffer_load_dwordx2 s[62:63], s[56:59], s60 offset:{128*k + 60}')
        A('s_add_u32 s60, s60, s50')
        A('s_sub_u32 s50, 0x80000, s50')
    if opt.get('pf', 0) == 1: line_touch(A, 18, 19, 68, 64, 256 * 14336, 256, 15)
    def handoff(tag, sown, soth):
        A('s_barrier')
        A('s_cmp_lg_u32 s12, 0')
        A(f's_cbranch_scc1 {tag}_go')
        A(f'buffer_store_dword v20, v21, s[52:55], s{sown} offen sc1')
        spin(A, tag, 52, soth, 36, 17, 47, opt.get('pdepth', 4), opt.get('pgap', 2))
        A('s_barrier')
    A('s_barrier')
    NW1 = opt.get('nw1', 3)
    for k in range(NW1): issue_w(k * WS)
    if opt.get('pf', 0) == 2: line_touch(A, 18, 19, 68, 64, 256 * 14336, 256, 15)
    sp2()
    A('s_lshl_b32 s15, s10, 11')
    A('s_barrier')
    handoff(f'{name}_fl1', 13, 15)
    for k in range(3):
        issue_h(k * HS)
        if k >= NW1: issue_w(k * WS)
    for k in range(4): A(f'buffer_load_dwordx4 {vr(40+4*k,4)}, v3, s[32:35], 0 offen offset:{1024*k} sc1')
    A('s_mov_b32 s40, 0')
    A('s_mov_b32 s46, 0')
    c1 = lambda k: 4 + (7 if k >= NW1 else 0)
    A(f's_waitcnt vmcnt({c1(1) + c1(2) + 4})')
    A('s_barrier')
    A(f's_waitcnt vmcnt({c1(2) + 4})')
    A('s_barrier')
    def issue():
        issue_h('s40'); issue_w('s46')
        A(f's_add_u32 s40, s40, {HS}')
        A(f's_add_u32 s46, s46, {WS}')
        A(f's_cmp_eq_u32 s40, {3*HS}')
        A('s_cselect_b32 s40, 0, s40')
        A('s_cselect_b32 s46, 0, s46')
    issue(); sp2()
    A('s_waitcnt vmcnt(11)')
    A('s_barrier')
    for k in range(4):
        A(f'v_add_f32 v{40+4*k}, v{40+4*k}, v{42+4*k}')
        A(f'v_add_f32 v{41+4*k}, v{41+4*k}, v{43+4*k}')
    issue(); sp2()
    for perm in ('quad_perm:[1,0,3,2]', 'quad_perm:[2,3,0,1]', 'row_half_mirror'):
        for k in range(4):
            for c in range(2):
                A(f'v_add_f32_dpp v{40+4*k+c}, v{40+4*k+c}, v{40+4*k+c} {perm} row_mask:0xf bank_mask:0xf')
    A('v_and_b32 v4, 3, v1')
    for k in range(1, 4):
        A(f'v_cmp_eq_u32 vcc, {k}, v4')
        for c in range(2): A(f'v_cndmask_b32 v{40+c}, v{40+c}, v{40+4*k+c}, vcc')
    ln_finish(A, 40, 41, 22, 23, 24, 47)
    A('v_lshrrev_b32 v28, 16, v23')
    A('v_mov_b32 v29, 0')
    A('v_mov_b32 v30, 0')
    A('v_mov_b32 v31, 0')
    A('v_lshrrev_b32 v5, 3, v1')
    A('v_lshl_add_u32 v2, v4, 3, v5')
    A('v_mul_f32 v23, v23, v23')
    A('v_rcp_f32 v23, v23')
    A('s_lshl_b32 s15, s12, 7')
    A('v_lshlrev_b32 v5, 2, v2')
    A('s_waitcnt vmcnt(11)')
    A('buffer_store_dword v23, v5, s[36:39], s15 offen sc1')
    A('s_barrier')
    A('s_mov_b32 s18, 5')
    A.label(f'{name}_l1loop')
    issue()
    A('s_cmp_eq_u32 s18, 14')
    A('s_cselect_b32 s50, 0x80000, s50')
    sp2()
    A('s_add_u32 s18, s18, 1')
    A('s_cmp_lt_u32 s18, 16')
    A('s_waitcnt vmcnt(11)')
    A('s_barrier')
    A(f's_cbranch_scc1 {name}_l1loop')
    issue_w('s46', 28, '0')
    A('s_add_u32 s45, s40, s43')
    A('v_lshlrev_b32 v3, 4, v1')
    A('v_add_u32 v3, s45, v3')
    for i in range(4): A(f'v_mov_b32 v{32+i}, 0')
    A('ds_write_b128 v3, v[32:35]')
    A('ds_write_b128 v3, v[32:35] offset:2048')
    A('v_and_b32 v4, 15, v2')
    A('v_lshlrev_b32 v4, 4, v4')
    A('v_and_b32 v5, 16, v2')
    A('v_lshl_add_u32 v4, v5, 7, v4')
    A('v_add_u32 v4, s45, v4')
    A('ds_write_b128 v4, v[28:31]')
    A('s_waitcnt vmcnt(7)')
    A('s_barrier')
    g2_decode(A)
    gs = opt.get('gskip', 1); TT = GTT if gs else 112 * 1024; hstep[0] = GST if gs else 2048
    A(f's_mul_i32 s15, s12, {2*TT}')
    A('v_lshlrev_b32 v8, 4, v1')
    if gs:
        skipmap(A, 26, 8, 1, 4)
        skipmap(A, 8, 8, 0, 4)
        A('v_subrev_u32 v26, 1024, v26')
    else:
        A('v_mov_b32 v26, v8')
    A('v_add_u32 v8, s15, v8')
    A('v_add_u32 v26, s15, v26')
    A(f'v_add_u32 v9, {TT}, v8')
    A(f'v_add_u32 v27, {TT}, v26')
    A('v_lshrrev_b32 v4, 3, v1')
    A('s_lshl_b32 s15, s12, 4')
    A('v_add_u32 v4, s15, v4')
    A('v_lshlrev_b32 v4, 11, v4')
    A('v_and_b32 v5, 1, v1')
    A('v_lshl_add_u32 v4, v5, 4, v4')
    A('v_lshrrev_b32 v5, 4, v1')
    A('v_and_b32 v5, 1, v5')
    A('v_lshrrev_b32 v6, 1, v1')
    A('v_and_b32 v6, 3, v6')
    A('v_xor_b32 v5, v5, v6')
    A('v_lshl_add_u32 v10, v5, 5, v4')
    A('s_lshl_b32 s15, s8, 7')
    A('v_add_u32 v10, s15, v10')
    A('v_xor_b32 v11, 64, v10')
    A(f'v_add_u32 v11, {16384 - 1024}, v11')
    A('v_xor_b32 v12, 128, v10')
    A('v_xor_b32 v13, 192, v10')
    A(f'v_add_u32 v13, {16384 - 1024}, v13')
    A('s_lshl_b32 s44, s12, 11')
    A('s_add_u32 s44, s44, 16384')
    A(f's_mul_i32 s41, s8, {(56-N1)*hstep[0]}')
    A(f's_mul_i32 s42, s8, {(56-N1)*64*2048}')
    A(f's_mul_i32 s15, s10, {8*TT}')
    A(f's_add_u32 s15, s15, {GS_OFF if gs else G_OFF}')
    A('s_lshr_b32 s16, s11, 1')
    A('s_lshl_b32 s16, s16, 8')
    A(f's_sub_u32 s19, {3584*2048}, s16')
    srd(A, 20, 4, 's15', 8 * TT)
    srd(A, 24, 48, 's16', 's19')
    A('s_waitcnt vmcnt(0) lgkmcnt(0)')
    A('s_barrier')
    def issue_w2(lds, full):
        A(f's_add_u32 m0, {lds}, s44')
        A('s_nop 0')
        A(f'buffer_load_dwordx4 v10, s[24:27], s42 offen lds')
        A(f'buffer_load_dwordx4 v11, s[24:27], s42 offen offset:1024 lds')
        if full:
            A('s_add_u32 m0, m0, 8192')
            A('s_nop 0')
            A(f'buffer_load_dwordx4 v12, s[24:27], s42 offen lds')
            A(f'buffer_load_dwordx4 v13, s[24:27], s42 offen offset:1024 lds')
        A(f's_add_u32 s42, s42, {64*2048}')
    def issue2(full):
        issue_h('s40'); issue_w2('s40', full)
        A(f's_add_u32 s40, s40, {SLOT}')
        A(f's_cmp_eq_u32 s40, {NS*SLOT}')
        A('s_cselect_b32 s40, 0, s40')
    A('s_lshl_b32 s15, s10, 11')
    A(f's_add_u32 s15, s15, {FL2}')
    A('s_barrier')
    for k in range(2): issue_w2(k * SLOT, True)
    handoff(f'{name}_fl2', 14, 15)
    for k in range(2): issue_h(k * SLOT)
    A(f's_mov_b32 s40, {2*SLOT}')
    issue2(True); issue2(True)
    A('s_waitcnt vmcnt(20)')
    A('s_barrier')
    A('s_waitcnt vmcnt(16)')
    A('s_barrier')
    issue2(True)
    A('s_waitcnt vmcnt(16)')
    A('s_barrier')
    A(f's_mov_b32 s18, {NS + 1}')
    A.label(f'{name}_l2loop')
    issue2(True)
    A('s_add_u32 s18, s18, 1')
    A(f's_cmp_lt_u32 s18, {N1}')
    A(f's_waitcnt vmcnt({8*(NS-2)})')
    A('s_barrier')
    A(f's_cbranch_scc1 {name}_l2loop')
    A(f's_mov_b32 s41, {N1*hstep[0]}')
    A(f's_mov_b32 s42, {N1*64*2048}')
    cnt = lambda s: 0 if s >= NT else (8 if s < N1 else 6)
    for j in range(N1 - NS + 1, NT - 1):
        s = j + NS - 1
        if s < NT: issue2(False)
        A(f's_waitcnt vmcnt({sum(cnt(x) for x in range(j + 2, j + NS))})')
        A('s_barrier')

def gen_m(A, name='m_kernel', opt=None):
    opt = opt or {}
    khead(A, name)
    st = Stamper(A, opt.get('stamp'), 1)
    st(0); st(7, True)
    A('s_cmp_ge_u32 s2, 256')
    A(f's_cbranch_scc1 {name}_end')
    A('s_load_dwordx2 s[4:5], s[0:1], %d' % KA['ws'])
    A('s_load_dwordx2 s[6:7], s[0:1], %d' % KA['x'])
    A('v_lshrrev_b32 v2, 6, v0')
    A('v_and_b32 v1, 63, v0')
    A('v_readfirstlane_b32 s12, v2')
    A('s_cmp_ge_u32 s12, 4')
    A(f's_cbranch_scc1 {name}_loader')
    fb_compute(A, name, st, opt)
    g1_compute(A, name, st, opt)
    g2_compute(A, name, st, opt)
    A('s_waitcnt vmcnt(0)') if opt.get('stamp') else None
    st(5); st(6, True)
    st.dump(13, 0, 244)
    A('s_endpgm')
    A.label(f'{name}_loader')
    loaders(A, name, opt)
    A.label(f'{name}_end')
    A('s_endpgm')
    return dict(name=name, grid=256, block=512, lds=M_LDS, vgpr=248)
```

```python
from common import *
from g1 import w_voffs, tr_bases

HS = 16384; WS = 28672; WB0 = 3 * HS
XB = 32768; EB = WB0 + 3 * WS
SLOT = 32768
SGB = EB + 1024
M_LDS = SGB + 512
PX_OFF = 29 * MB
FL_OFF = 38 * MB
GS_OFF = 40 * MB; GST = 3072; GTT = 56 * GST
FL1, FL2, FL3 = 0, 32768, 65536
FL_SIZE = 1536 * 128

def spin(A, tag, srdn, soff, vflag, vaddr, scnt, depth=4, gap=2):
    A(f's_mov_b32 s{scnt}, 400000')
    ld = lambda k: A(f'buffer_load_dword v{vflag+k}, v{vaddr}, s[{srdn}:{srdn+3}], s{soff} offen sc1')
    for k in range(depth - 1):
        ld(k); A(f's_sleep {gap}')
    A.label(f'{tag}_spin')
    for k in range(depth):
        ld((k + depth - 1) % depth)
        A(f's_waitcnt vmcnt({depth - 1})')
        A(f'v_cmp_ne_u32 vcc, 1, v{vflag+k}')
        A(f's_cbranch_vccz {tag}_go')
        A(f's_sleep {gap}')
    A(f's_sub_u32 s{scnt}, s{scnt}, 1')
    A(f's_cbranch_scc0 {tag}_spin')
    A.label(f'{tag}_go')

def skipmap(A, dst, src, odd, t):
    if odd:
        A(f'v_cmp_lt_u32 vcc, 255, v{src}')
        A(f'v_add_u32 v{dst}, {1024 + 128}, v{src}')
    else:
        A(f'v_cmp_lt_u32 vcc, 383, v{src}')
        if dst != src: A(f'v_mov_b32 v{dst}, v{src}')
    A(f'v_add_u32 v{t}, 128, v{dst}')
    A(f'v_cndmask_b32 v{dst}, v{dst}, v{t}, vcc')

def g1_decode(A):
    A('s_and_b32 s8, s2, 7')
    A('s_lshr_b32 s9, s2, 3')
    A('s_and_b32 s10, s8, 1')
    A('s_lshl_b32 s10, s10, 3')
    A('s_and_b32 s11, s9, 7')
    A('s_add_u32 s10, s10, s11')
    A('s_lshr_b32 s11, s8, 1')
    A('s_lshl_b32 s11, s11, 2')
    A('s_lshr_b32 s9, s9, 3')
    A('s_add_u32 s11, s11, s9')

def g2_decode(A):
    A('s_and_b32 s8, s2, 1')
    A('s_lshr_b32 s9, s2, 3')
    A('s_and_b32 s10, s2, 6')
    A('s_lshl_b32 s10, s10, 1')
    A('s_and_b32 s11, s9, 3')
    A('s_add_u32 s10, s10, s11')
    A('s_lshr_b32 s11, s9, 2')
    A('s_lshl_b32 s11, s11, 1')
    A('s_add_u32 s11, s11, s8')

def fb_compute(A, name, st, opt):
    A('s_and_b32 s13, s2, 7')
    A('s_lshr_b32 s14, s2, 3')
    A('s_sub_u32 s15, 16, s13')
    A('s_cmp_eq_u32 s13, 0')
    A('s_cselect_b32 s15, 8, s15')
    A('s_bitcmp1_b32 s14, 0')
    A('s_cselect_b32 s10, s15, s13')
    A('s_lshr_b32 s11, s14, 1')
    A('s_sub_u32 s16, 16, s10')
    A('s_and_b32 s16, s16, 15')
    A('s_sub_u32 s17, 15, s11')
    A('s_lshr_b32 s19, s11, 3')
    A('s_cmp_lg_u32 s19, 0')
    A('s_cselect_b32 s16, s16, s10')
    A('s_cselect_b32 s17, s17, s11')
    vn, vg = 2, 3
    A(f'v_and_b32 v{vn}, 15, v1')
    A(f'v_lshrrev_b32 v{vg}, 4, v1')
    A('v_lshrrev_b32 v6, 3, v1')
    A(f'v_and_b32 v7, 1, v{vg}')
    A('v_lshrrev_b32 v8, 1, v1')
    A('v_and_b32 v8, 3, v8')
    A('v_xor_b32 v7, v7, v8')
    A('v_lshlrev_b32 v7, 5, v7')
    A('v_lshl_add_u32 v4, v6, 10, v7')
    A('v_and_b32 v7, 1, v1')
    A('v_lshl_add_u32 v4, v7, 4, v4')
    A('v_xor_b32 v5, 64, v4')
    A(f'v_add_u32 v5, {8192 - 1024}, v5')
    A('s_lshl_b32 s14, s16, 2')
    A('s_add_u32 s14, s14, s12')
    A('s_lshl_b32 s14, s14, 16')
    A('s_lshl_b32 s15, s17, 7')
    A('s_add_u32 s14, s14, s15')
    A('s_lshl_b32 s18, s12, 13')
    A(f'v_xor_b32 v8, v{vg}, v1')
    A('v_and_b32 v8, 7, v8')
    A('v_lshlrev_b32 v8, 4, v8')
    A('v_lshl_add_u32 v6, v6, 15, v8')
    A('v_xor_b32 v7, 64, v6')
    A(f'v_add_u32 v7, {8*32768 - 1024}, v7')
    A('s_lshl_b32 s61, s12, 19')
    A('s_lshl_b32 s15, s10, 11')
    A('s_add_u32 s61, s61, s15')
    A('s_lshl_b32 s15, s11, 7')
    A('s_add_u32 s61, s61, s15')
    A('s_lshl_b32 s62, s12, 12')
    A(f's_add_u32 s62, s62, {XB}')
    A('s_lshl_b32 s63, s10, 3')
    A('s_add_u32 s63, s63, s11')
    A('s_lshl_b32 s63, s63, 9')
    A('s_sub_u32 s63, s63, 512')
    A('s_sub_u32 s15, s11, 1')
    A('s_cmp_lt_u32 s15, 7')
    A('s_cselect_b32 s63, s63, 0x40000000')
    A('s_lshl_b32 s15, s16, 12')
    A('v_mov_b32 v9, s15')
    A('v_mov_b32 v10, s63')
    A('v_cmp_gt_u32 vcc, 32, v1')
    A('v_cndmask_b32 v9, v10, v9, vcc')
    A('v_lshl_add_u32 v9, v1, 4, v9')
    A(f'v_lshlrev_b32 v10, 6, v{vn}')
    A('s_lshl_b32 s15, s12, 8')
    A('s_add_u32 s15, s15, s10')
    A('s_lshl_b32 s15, s15, 2')
    A('s_waitcnt lgkmcnt(0)')
    srd(A, 20, 4, U_OFF, 4 * MB)
    srd(A, 28, 4, E_OFF, 65536)
    for h in range(4):
        A(f's_add_u32 m0, s18, {h*2048}')
        A('s_nop 0')
        A(f'buffer_load_dwordx4 v4, s[20:23], s14 offen lds')
        A(f'buffer_load_dwordx4 v5, s[20:23], s14 offen offset:1024 lds')
        if h < 3: A('s_add_u32 s14, s14, 16384')
    A(f's_mov_b32 m0, {EB}')
    srd(A, 24, 6, 0, 2048 * 2048)
    A('buffer_load_dwordx4 v9, s[28:31], 0 offen lds')
    FR = [16, 48]; EF = 80; B = [112, 144]; ACC = [176, 192]; MA = [208, 212]; VT = 216; VX = 220; X = [224, 232]; VB = 240; MXV = [241, 242]; VH = 243; VE = 244
    srd(A, 40, 4, MX_OFF, 8192)
    for u in range(2):
        A(f's_add_u32 m0, s62, {u*2048}')
        if u: A(f's_add_u32 s61, s61, {4 << 19}')
        else: A('s_nop 0')
        A('buffer_load_dwordx4 v6, s[24:27], s61 offen lds')
        A('buffer_load_dwordx4 v7, s[24:27], s61 offen offset:1024 lds')
    A('s_add_u32 s14, s15, 4096')
    A(f'buffer_load_dword v{MXV[0]}, v10, s[40:43], s15 offen')
    A(f'buffer_load_dword v{MXV[1]}, v10, s[40:43], s14 offen')
    A('s_lshl_b32 s15, s12, 4')
    A(f'v_add_u32 v6, s15, v{vn}')
    A('s_cmp_lg_u32 s10, 0')
    A('s_cselect_b32 s15, -1, 0')
    A('v_sub_u32 v7, s15, v6')
    A('s_cmp_lg_u32 s19, 0')
    A('s_cselect_b64 vcc, -1, 0')
    A('v_cndmask_b32 v6, v6, v7, vcc')
    A('v_and_b32 v6, 127, v6')
    A('v_cvt_f32_u32 v7, v6')
    A('v_mul_f32 v7, 0x3c000000, v7')
    A(f'v_lshlrev_b32 v10, 3, v{vg}')
    A('v_cvt_f32_u32 v10, v10')
    A('v_mul_f32 v10, v10, v7')
    B0 = B[0]
    for j in range(8):
        if j: A('v_add_f32 v10, v10, v7')
        A(f'v_cos_f32 v{12+(j&1)}, v10')
        A(f'v_sin_f32 v{14+(j&1)}, v10')
        if j & 1:
            A(f'v_cvt_pk_bf16_f32 v{B0+j//2}, v12, v13')
            A(f'v_cvt_pk_bf16_f32 v{B0+16+j//2}, v14, v15')
    A('v_and_b32 v8, 1, v6')
    A('v_cmp_eq_u32 vcc, 1, v8')
    A('v_mul_u32_u24 v8, 0x8000, v8')
    A('v_lshl_or_b32 v8, v8, 16, v8')
    A('v_and_b32 v10, 2, v6')
    A('v_mul_u32_u24 v10, 0x4000, v10')
    A('v_lshl_or_b32 v10, v10, 16, v10')
    A('v_xor_b32 v11, v10, v8')
    for k in range(4):
        A(f'v_cndmask_b32 v12, v{B0+k}, v{B0+16+k}, vcc')
        A(f'v_cndmask_b32 v13, v{B0+16+k}, v{B0+k}, vcc')
        A(f'v_xor_b32 v{B0+4+k}, v11, v12')
        A(f'v_xor_b32 v{B0+20+k}, v10, v13')
    for k in range(8):
        A(f'v_xor_b32 v{B0+8+k}, v8, v{B0+k}')
        A(f'v_xor_b32 v{B0+24+k}, v8, v{B0+16+k}')
    A('s_brev_b32 s15, 1')
    for k in range(32): A(f'v_xor_b32 v{B[1]+k}, s15, v{B0+k}')
    A(f'v_lshrrev_b32 v10, 2, v{vn}')
    A(f'v_lshl_add_u32 v10, v{vg}, 3, v10')
    A(f'v_lshrrev_b32 v11, 3, v{vn}')
    A(f'v_and_b32 v12, 1, v{vg}')
    A('v_lshl_add_u32 v11, v12, 1, v11')
    A('v_lshlrev_b32 v11, 5, v11')
    A('v_lshl_add_u32 v10, v10, 7, v11')
    A(f'v_and_b32 v11, 3, v{vn}')
    A(f'v_lshl_add_u32 v{VT}, v11, 3, v10')
    for i in range(1, 4): A(f'v_xor_b32 v{VT+i}, {(2*(i&1) + (i>>1))*32}, v{VT}')
    A(f'v_and_b32 v11, 1, v{vn}')
    A('v_lshlrev_b32 v11, 9, v11')
    A(f'v_lshl_add_u32 v11, v{vg}, 4, v11')
    A(f'v_add_u32 v{VE}, {EB}, v11')
    A('s_mul_i32 s15, s19, 3')
    A(f'v_xor_b32 v10, s15, v{vg}')
    A('v_lshrrev_b32 v11, 1, v10')
    A(f'v_lshrrev_b32 v12, 1, v{vn}')
    A('v_xor_b32 v11, v11, v12')
    A('v_lshlrev_b32 v11, 4, v11')
    A(f'v_lshl_add_u32 v11, v{vn}, 7, v11')
    A('v_and_b32 v12, 1, v10')
    A('v_lshl_add_u32 v11, v12, 3, v11')
    A(f'v_add_u32 v{VX}, s62, v11')
    for i in range(1, 4): A(f'v_xor_b32 v{VX+i}, {32*i}, v{VX}')
    A(f'v_lshl_add_u32 v10, v10, 4, v{vn}')
    A(f'v_lshlrev_b32 v{VH}, 4, v10')
    A('v_add_u32 v10, 48, v1')
    A('v_and_b32 v10, 63, v10')
    A(f'v_lshlrev_b32 v{VB}, 2, v10')
    A(f'v_cmp_eq_u32 s[46:47], 0, v{vg}')
    srd(A, 52, 4, HF_OFF, 4 * MB)
    srd(A, 56, 4, ST_OFF, 2048 * 128)
    A('s_cmp_eq_u32 s11, 0')
    A('s_cselect_b32 s15, 8192, 0')
    srd(A, 32, 4, MU_OFF, 's15')
    srd(A, 36, 4, FL_OFF, FL_SIZE)
    A('s_lshl_b32 s13, s10, 3')
    A('s_add_u32 s13, s13, s12')
    st(1)
    A('s_waitcnt vmcnt(6)')
    A('s_barrier')
    st(2)
    def frag(i, p): return FR[i & 1] + 4 * p
    def rd(i, ps):
        for p in ps:
            for r2 in range(2):
                A(f'ds_read_b64_tr_b16 {vr(frag(i,p)+2*r2,2)}, v{VT+i} offset:{(32*p+4*r2)*128}')
    rd(0, range(4))
    for p in range(8): A(f'ds_read_b128 {vr(EF+4*p,4)}, v{VE} offset:{64*p}')
    nxt = [1]
    def issue_next():
        if nxt[0] < 8: rd(nxt[0] >> 1, range(4*(nxt[0] & 1), 4*(nxt[0] & 1) + 4))
        nxt[0] += 1
    for h in range(8):
        i, half = h >> 1, h & 1
        if h != 1: A('s_waitcnt lgkmcnt(8)')
        for k, p in enumerate(range(4*half, 4*half + 4)):
            for u in range(2): mfma(A, ACC[u] + 4*i, frag(i,p), B[u] + 4*p, '0' if p == 0 else None)
            if k == 0: issue_next()
            if k == 0 and h == 6:
                A('s_waitcnt vmcnt(0)')
                for u in range(2):
                    for k2 in range(4): A(f'ds_read_b64 {vr(X[u]+2*k2,2)}, v{VX+k2} offset:{u*2048}')
        if h == 0:
            A('s_waitcnt lgkmcnt(8)')
            for p in range(8):
                for u in range(2): mfma(A, MA[u], EF + 4*p, B[u] + 4*p, '0' if p == 0 else None)
                if p == 1: issue_next()
            A('s_waitcnt lgkmcnt(8)')
    A('s_waitcnt lgkmcnt(0)')
    A('s_barrier')
    st(3)
    ONE = 4; S = [5, 7]; Q = [6, 8]
    A(f'v_mov_b32 v{ONE}, 0x3f803f80')
    for u in range(2):
        A(f'v_mov_b32 v{S[u]}, 0')
        A(f'v_mov_b32 v{Q[u]}, 0')
        A(f'v_add_f32 v{MA[u]}, v{MA[u]}, v{MXV[u]}')
    A(f'v_lshlrev_b32 v9, 2, v{vn}')
    A('s_lshl_b32 s15, s13, 6')
    A(f'buffer_store_dword v{MA[0]}, v9, s[32:35], s15 offen sc1')
    A(f'buffer_store_dword v{MA[1]}, v9, s[32:35], s15 offen offset:256 sc1')
    A('s_lshl_b32 s14, s13, 15')
    A('s_lshl_b32 s15, s11, 11')
    A('s_add_u32 s14, s14, s15')
    A('s_add_u32 s15, s14, 0x20000')
    def epi(V):
        for u in range(2):
            for pr in range(2):
                o = 16 + 8*u + 4*pr
                for i2 in range(2):
                    i = 2*pr + i2; t = 32 + 4*i2
                    for q in range(2):
                        xr = X[u] + 2*i + q
                        A(f'v_lshlrev_b32 v{t+2*q}, 16, v{xr}')
                        A(f'v_and_b32 v{t+1+2*q}, 0xffff0000, v{xr}')
                    for r in range(4): A(f'v_sub_f32 v{t+r}, v{t+r}, v{MA[u]}')
                    for r in range(4): A(f'v_add_f32 v{t+r}, v{t+r}, v{V[u][i][r]}')
                    for q in range(2):
                        A(f'v_cvt_pk_bf16_f32 v{o+2*i2+q}, v{t+2*q}, v{t+1+2*q}')
                A(f'buffer_store_dwordx4 {vr(o,4)}, v{VH}, s[52:55], s{14+u} offen offset:{pr*1024} sc1')
        for u in range(2):
            for k in range(8):
                o = 16 + 8*u
                A(f'v_dot2_f32_bf16 v{S[u]}, v{o+k}, v{ONE}, v{S[u]}')
                A(f'v_dot2_f32_bf16 v{Q[u]}, v{o+k}, v{o+k}, v{Q[u]}')
    A('s_cmp_lg_u32 s19, 0')
    A(f's_cbranch_scc1 {name}_up')
    for u in range(2):
        for i in range(4): A(f'ds_bpermute_b32 v{48+4*u+i}, v{VB}, v{ACC[u]+4*i+3}')
    A('s_waitcnt lgkmcnt(0)')
    for u in range(2):
        for i in range(4): A(f'v_cndmask_b32 v{56+4*u+i}, v{48+4*u+i}, v{47+4*u+i if i else MA[u]+1}, s[46:47]')
    epi([[[56+4*u+i, ACC[u]+4*i, ACC[u]+4*i+1, ACC[u]+4*i+2] for i in range(4)] for u in range(2)])
    A(f's_branch {name}_join')
    A.label(f'{name}_up')
    epi([[[ACC[u]+4*(3-i)+3-r for r in range(4)] for i in range(4)] for u in range(2)])
    A.label(f'{name}_join')
    A(f'v_lshlrev_b32 v40, 7, v{vn}')
    A(f'v_lshrrev_b32 v41, 1, v{vg}')
    A('v_lshl_add_u32 v40, v41, 2, v40')
    A('s_lshl_b32 s14, s13, 11')
    A('s_lshl_b32 s15, s11, 3')
    A('s_add_u32 s14, s14, s15')
    A('s_add_u32 s15, s14, 8192')
    for u in range(2): A(f'v_permlane32_swap_b32 v{S[u]}, v{Q[u]}')
    for u in range(2): A(f'v_add_f32 v{S[u]}, v{S[u]}, v{Q[u]}')
    for u in range(2): A(f'v_mov_b32 v{Q[u]}, v{S[u]}')
    for u in range(2): A(f'v_permlane16_swap_b32 v{S[u]}, v{Q[u]}')
    for u in range(2): A(f'v_add_f32 v{S[u]}, v{S[u]}, v{Q[u]}')
    for u in range(2): A(f'buffer_store_dword v{S[u]}, v40, s[56:59], s{14+u} offen sc1')

def drained(A):
    A('s_waitcnt vmcnt(0)')
    A('s_barrier')

def g1_compute(A, name, st, opt):
    WB = [8, 36]; ACC = 64; HB = [176, 192]
    vAh, cAh, VW, CW = 2, 3, 208, 216
    g1_decode(A)
    A('s_and_b32 s13, s12, 1')
    A('s_lshr_b32 s14, s12, 1')
    A('s_lshl_b32 s15, s13, 13')
    A(f'v_lshlrev_b32 v{vAh}, 4, v1')
    A(f'v_add_u32 v{vAh}, s15, v{vAh}')
    tr_bases(A, 44, 45, 1, 48)
    A('s_lshl_b32 s15, s14, 11')
    A(f's_add_u32 s15, s15, {WB0}')
    for k in range(4):
        A(f'v_xor_b32 v46, {32*k}, v44')
        A(f'v_add_u32 v{VW+k}, s15, v46')
    A('s_cmp_lg_u32 s14, 0')
    A('s_cselect_b64 vcc, -1, 0')
    for k in range(2):
        A(f'v_xor_b32 v46, {32*k}, v45')
        A(f'v_add_u32 v46, {WB0 + 6144}, v46')
        A(f'v_add_u32 v47, 1024, v{VW+k}')
        A(f'v_cndmask_b32 v{VW+4+k}, v47, v46, vcc')
    A(f'v_add_u32 v47, 1024, v{VW+2}')
    A(f'v_subrev_u32 v46, 1024, v{VW+3}')
    A(f'v_cndmask_b32 v{VW+6}, v47, v46, vcc')
    A(f'v_mov_b32 v{cAh}, v{vAh}')
    for k in range(7): A(f'v_mov_b32 v{CW+k}, v{VW+k}')
    for i in range(112): A(f'v_mov_b32 v{ACC+i}, 0')
    A('s_lshl_b32 s15, s10, 1')
    A('s_add_u32 s15, s15, s13')
    gs = opt.get('gskip', 1); TT = GTT if gs else 112 * 1024
    A('s_mul_i32 s15, s15, %d' % (4 * TT))
    A('s_add_u32 s15, s15, %d' % (GS_OFF if gs else G_OFF))
    srd(A, 20, 4, 's15', 4 * TT)
    A('s_mov_b32 s17, 0')
    A('s_mov_b32 s19, 0')
    A('s_mov_b32 s18, 0')
    BV = 240; H2 = 224
    A('s_load_dwordx2 s[24:25], s[0:1], %d' % KA['b1'])
    A('s_and_b32 s52, s11, 1')
    A('s_lshl_b32 s15, s14, 3')
    A('s_lshl_b32 s16, s52, 1')
    A('s_add_u32 s15, s15, s16')
    A('s_mul_i32 s53, s11, 14')
    A('s_add_u32 s54, s15, 4')
    A('s_cmp_eq_u32 s54, 14')
    A('s_cselect_b32 s54, 0, s54')
    A('s_add_u32 s55, s16, 6')
    A('s_add_u32 s55, s55, s14')
    for r in (15, 54, 55):
        A(f's_add_u32 s{r}, s{r}, s53')
        A(f's_lshl_b32 s{r}, s{r}, 5')
    A('v_and_b32 v44, 15, v1')
    A('v_lshlrev_b32 v44, 1, v44')
    A('s_mov_b32 s26, 7168')
    A('s_mov_b32 s27, 0x20000')
    drained(A)
    st(4)
    A('s_waitcnt lgkmcnt(0)')
    for i in range(7):
        so, off = (15, 32*i) if i < 4 else ((54, 32*(i-4)) if i < 6 else (55, 0))
        A(f'buffer_load_ushort v{BV+i}, v44, s[24:27], s{so} offen offset:{off}')
    A('s_barrier')
    def reads(s, buf):
        r = []
        for j in range(4):
            r.append(f'ds_read_b128 {vr(HB[buf]+4*j,4)}, v{cAh} offset:{(2*j+s)*1024}')
        for i in range(7):
            for rd in range(2):
                r.append(f'ds_read_b64_tr_b16 {vr(WB[buf]+4*i+2*rd,2)}, v{CW+i} offset:{(2*s + rd) * 7168}')
        return r
    def step(buf, rds, tail=None):
        k = 0; n = 0
        for i in range(7):
            for jj in range(4):
                j = jj if (i & 1) == 0 else 3 - jj
                mfma(A, ACC + (i*4+j)*4, WB[buf] + 4*i, HB[buf] + 4*j)
                if k < len(rds): A(rds[k]); k += 1
                n += 1
                if tail and n - 20 in tail:
                    for t in tail[n - 20]: A(t)
        A('s_waitcnt lgkmcnt(0)')
    A('s_barrier')
    st(8)
    for r in reads(0, 0): A(r)
    A('s_waitcnt lgkmcnt(0)')
    A(f's_branch {name}_g1mid')
    A('.p2align 6')
    A.label(f'{name}_g1loop')
    A('s_barrier')
    step(1, reads(0, 0))
    A.label(f'{name}_g1mid')
    tailB = {-4: [f's_add_u32 s17, s17, {HS}', f's_add_u32 s19, s19, {WS}'], -3: [f's_cmp_eq_u32 s17, {3*HS}', 's_cselect_b32 s17, 0, s17'],
             -2: ['s_cselect_b32 s19, 0, s19', 's_add_u32 s18, s18, 1'], -1: [f'v_add_u32 v{cAh}, s17, v{vAh}', 's_cmp_le_u32 s18, 14']}
    for k in range(7): tailB[k] = [f'v_add_u32 v{CW+k}, s19, v{VW+k}']
    step(0, reads(1, 1), tailB)
    A(f's_cbranch_scc1 {name}_g1loop')
    A('s_barrier')
    gs = opt.get('gskip', 1)
    order = [6, 0, 1, 2, 3, 4, 5]
    SG = 4
    def wset(k): return WB[0] + 8 * (k % 3)
    def wrd(k):
        i = order[k]
        return [f'ds_read_b64_tr_b16 {vr(wset(k)+4*s_+2*rd,2)}, v{CW+i} offset:{(2*s_ + rd) * 7168}' for s_ in range(2) for rd in range(2)]
    BT = 32
    ST4 = [208, 212, 248, 252]
    A('v_and_b32 v2, 15, v1')
    A('s_lshl_b32 s15, s13, 8')
    A(f's_add_u32 s15, s15, {SGB}')
    A('v_lshl_add_u32 v2, v2, 2, s15')
    pre = [f'ds_read_b128 {vr(HB[0]+4*j,4)}, v{cAh} offset:{(2*j)*1024}' for j in range(4)] + wrd(0) + \
          [f'ds_read_b128 {vr(H2+4*j,4)}, v{cAh} offset:{(2*j+1)*1024}' for j in range(4)] + \
          [f'ds_read_b32 v{ST4[j]}, v2 offset:{64*j}' for j in range(4)] + wrd(1)
    setup = []
    for j in range(4):
        for k in range(1, 4): setup.append(f'v_mov_b32 v{ST4[j]+k}, 0')
    for k in range(1, 4): setup.append(f'v_mov_b32 v{BT+k}, 0')
    addr = ['s_and_b32 s52, s11, 1', 's_mul_i32 s15, s11, 7', 's_add_u32 s19, s15, s52', 's_lshl_b32 s16, s14, 2', 's_add_u32 s16, s16, s19',
            's_add_u32 s53, s16, 2', 's_and_b32 s52, s52, s14', 's_cmp_lg_u32 s52, 0', 's_cselect_b32 s53, s15, s53', 's_add_u32 s15, s19, 3']
    for r in (53, 16, 15):
        addr += [f's_lshr_b32 s{r}, s{r}, 1', f's_mul_i32 s{r}, s{r}, {GST}'] if gs else [f's_lshl_b32 s{r}, s{r}, 10']
    class L(list):
        def __call__(self, t): self.append(t)
    va = L()
    va('v_and_b32 v4, 15, v1'); va('v_lshlrev_b32 v4, 4, v4'); va('v_and_b32 v6, 16, v1'); va('v_and_b32 v7, 32, v1')
    va('v_lshl_add_u32 v5, v7, 3, v4'); va('v_lshl_add_u32 v4, v6, 5, v5'); va('v_lshrrev_b32 v6, 1, v6'); va('s_lshl_b32 s19, s14, 9')
    va('v_add3_u32 v5, v5, v6, s19')
    if gs:
        skipmap(va, 6, 4, 1, 2); skipmap(va, 4, 4, 0, 2); skipmap(va, 5, 5, 1, 2)
        va('s_cmp_lg_u32 s52, 0'); va('s_cselect_b64 vcc, -1, 0'); va('v_cndmask_b32 v7, v4, v6, vcc')
    else:
        va('v_add_u32 v6, 1024, v4'); va('v_mov_b32 v7, v4')
    def acc(i, j): return ACC + (i*4+j)*4
    def epi_tile(i, j, d):
        a = acc(i, j)
        return [f'v_max_f32 v{a+r}, 0, v{a+r}' for r in range(4)] + \
               [f'v_pk_mul_f32 {vr(a,2)}, {vr(a,2)}, {vr(a,2)}', f'v_pk_mul_f32 {vr(a+2,2)}, {vr(a+2,2)}, {vr(a+2,2)}',
                f'v_cvt_pk_bf16_f32 v{d}, v{a}, v{a+1}', f'v_cvt_pk_bf16_f32 v{d+1}, v{a+2}, v{a+3}']
    def epi(i):
        out = []
        for j in range(4):
            if i == 6:
                out += epi_tile(i, j, acc(i, j))
                out.append(f'buffer_store_dwordx2 {vr(acc(i,j),2)}, v5, s[20:23], s15 offen sc1')
                if j < 3: out.append(f's_add_u32 s15, s15, {TT}')
            elif i % 2 == 0:
                out += epi_tile(i, j, acc(i, j))
            else:
                d = acc(i - 1, j)
                out += epi_tile(i, j, d + 2)
                out += [f'v_permlane16_swap_b32 v{d}, v{d+2}', f'v_permlane16_swap_b32 v{d+1}, v{d+3}']
                pp = i // 2
                so = 53 if pp == 2 else 16
                if j: out.append(f's_add_u32 s56, s{so if j == 1 else 56}, {TT}')
                out.append(f'buffer_store_dwordx4 {vr(d,4)}, v{[4, 6, 7][pp]}, s[20:23], s{56 if j else so} offen sc1')
        return out
    for k, i in enumerate(order):
        mf = [(acc(i, j), WB[1] + 4*i, HB[1] + 4*j) for j in range(4)] + [(acc(i, j), wset(k), HB[0] + 4*j) for j in range(4)] + \
             [(acc(i, j), wset(k) + 4, H2 + 4*j) for j in range(4)] + [(acc(i, j), BT, ST4[j]) for j in range(4)]
        if k == 0:
            fill = pre + addr + list(va) + setup
        else:
            fill = (wrd(k + 1) if k + 1 < 7 else []) + epi(order[k - 1])
        per = -(-len(fill) // 15)
        fi = 0
        for n, (d, a, b) in enumerate(mf):
            if k == 0 and n == 4:
                for x in fill[fi:len(pre)]: A(x)
                fi = max(fi, len(pre))
                A('s_waitcnt lgkmcnt(14)')
            if k == 0 and n == 8: A('s_waitcnt lgkmcnt(8)')
            if k == 0 and n == 12:
                for x in fill[fi:]: A(x)
                fi = len(fill)
                A('s_waitcnt vmcnt(0) lgkmcnt(4)')
                A('v_cmp_gt_u32 vcc, 16, v1')
                for j in range(4): A(f'v_cndmask_b32 v{ST4[j]}, 0, v{ST4[j]}, vcc')
            if k > 0 and n == 4: A(f's_waitcnt lgkmcnt({4 if k + 1 < 7 else 0})')
            if n == 10 and k > 0 or (k == 0 and n == 12): A(f'v_mov_b32 v{BT}, v{BV+i}')
            mfma(A, d, a, b)
            if k == 6 and n == 4:
                A('s_barrier')
                st(9)
            for _ in range(per):
                if fi < len(fill): A(fill[fi]); fi += 1
        for x in fill[fi:]: A(x)
    for x in epi(5): A(x)

def g2_compute(A, name, st, opt):
    NS = 4; N2 = opt.get('n2', 8); N1 = (56 - N2) // 2
    SIG = opt.get('sig', 2); POLL = opt.get('poll', 4)
    AO = 8; AX = 40; HB = [72, 88]; WO = [104, 112]; WX = [120, 128]; EP = 136; PR = 224
    vAh, vAw, cAh, cAw, vAw1, cAw1, vL16, vFl = 164, 165, 166, 167, 168, 169, 170, 171
    A('s_load_dwordx2 s[50:51], s[0:1], %d' % KA['b2'])
    A('s_load_dwordx2 s[52:53], s[0:1], %d' % KA['out'])
    g2_decode(A)
    A('s_lshl_b32 s15, s13, 13')
    A(f'v_lshlrev_b32 v{vL16}, 4, v1')
    A(f'v_add_u32 v{vAh}, s15, v{vL16}')
    A('v_lshrrev_b32 v8, 2, v1')
    A('v_and_b32 v8, 3, v8')
    A('v_lshrrev_b32 v9, 4, v1')
    A('v_lshl_add_u32 v8, v9, 3, v8')
    A('v_lshrrev_b32 v10, 3, v1')
    A('v_and_b32 v10, 3, v10')
    A('v_lshlrev_b32 v10, 5, v10')
    A('v_lshl_add_u32 v8, v8, 7, v10')
    A('v_and_b32 v10, 3, v1')
    A(f'v_lshl_add_u32 v{vAw}, v10, 3, v8')
    A('s_lshl_b32 s15, s14, 6')
    A(f'v_xor_b32 v{vAw}, s15, v{vAw}')
    A(f'v_add_u32 v{vAw}, 16384, v{vAw}')
    A(f'v_xor_b32 v{vAw1}, 32, v{vAw}')
    A(f'v_mov_b32 v{cAh}, v{vAh}')
    A(f'v_mov_b32 v{cAw}, v{vAw}')
    A(f'v_mov_b32 v{cAw1}, v{vAw1}')
    A(f'v_mov_b32 v{vFl}, 0')
    for i in range(64): A(f'v_mov_b32 v{AO+i}, 0')
    A('s_lshl_b32 s15, s10, 1')
    A('s_add_u32 s15, s15, s13')
    A('s_lshl_b32 s16, s15, 17')
    A(f's_add_u32 s16, s16, {HF_OFF}')
    A('s_lshl_b32 s19, s15, 8')
    A(f's_add_u32 s19, s19, {MU_OFF}')
    A('s_lshl_b32 s54, s2, 2')
    A('s_add_u32 s54, s54, s12')
    A('s_xor_b32 s55, s54, 4')
    A('s_lshl_b32 s56, s54, 12')
    A('s_lshl_b32 s57, s55, 12')
    A('s_lshl_b32 s54, s54, 7')
    A('s_lshl_b32 s55, s55, 7')
    A(f's_add_u32 s54, s54, {FL3}')
    A(f's_add_u32 s55, s55, {FL3}')
    A('s_mov_b32 s17, 0')
    A('s_mov_b32 s18, 0')
    drained(A)
    st(10)
    A('s_waitcnt lgkmcnt(0)')
    srd(A, 20, 4, 's16', 128 * 1024)
    srd(A, 44, 4, 's19', 256)
    A(f's_add_u32 s19, s19, {R2_OFF - MU_OFF}')
    srd(A, 24, 4, 's19', 256)
    srd(A, 28, 50, 0, 2048)
    srd(A, 32, 52, 0, 2048 * 2048)
    srd(A, 40, 4, PX_OFF, 4 * MB)
    A('s_barrier')
    def reads(s, buf, full):
        r = []
        for i in range(2):
            for rd in range(2):
                r.append(f'ds_read_b64_tr_b16 {vr(WO[buf]+4*i+2*rd,2)}, v{cAw1 if i else cAw} offset:{4096*s + 512*rd}')
        for j in range(4):
            r.append(f'ds_read_b128 {vr(HB[buf]+4*j,4)}, v{cAh} offset:{(2*j+s)*1024}')
        if full:
            for i in range(2):
                for rd in range(2):
                    r.append(f'ds_read_b64_tr_b16 {vr(WX[buf]+4*i+2*rd,2)}, v{cAw1 if i else cAw} offset:{8192 + 4096*s + 512*rd}')
        return r
    ADV = [[f's_add_u32 s17, s17, {SLOT}', f's_cmp_eq_u32 s17, {NS*SLOT}'], ['s_cselect_b32 s17, 0, s17', f'v_add_u32 v{cAh}, s17, v{vAh}'],
           [f'v_add_u32 v{cAw}, s17, v{vAw}'], [f'v_add_u32 v{cAw1}, s17, v{vAw1}']]
    def step(buf, full, rds, tail=(), xfirst=False):
        seq = []
        order = ([(AX, WX)] if full else []) + [(AO, WO)] if xfirst else [(AO, WO)] + ([(AX, WX)] if full else [])
        for acc, W in order:
            for i in range(2):
                for jj in range(4):
                    j = jj if i == 0 else 3 - jj
                    seq.append((acc + (i*4+j)*4, W[buf] + 4*i, HB[buf] + 4*j))
        per = 1 if len(rds) + len(tail) <= len(seq) else 2
        fill = [[x] for x in rds]
        if per == 2: fill = [sum(fill[k:k+2], []) for k in range(0, len(fill), 2)]
        fill += list(tail)
        for n, (d, a, b) in enumerate(seq):
            mfma(A, d, a, b)
            if n < len(fill):
                for x in fill[n]: A(x)
        for f in fill[len(seq):]:
            for x in f: A(x)
        A('s_waitcnt lgkmcnt(0)')
    A('s_barrier')
    st(11)
    for r in reads(0, 0, True): A(r)
    A('s_lshl_b32 s16, s11, 1')
    A('s_add_u32 s16, s16, s14')
    A('s_lshl_b32 s19, s16, 10')
    for j in range(4):
        A(f'buffer_load_dwordx4 {vr(EP+4*j,4)}, v{vL16}, s[20:23], s19 offen sc1')
        if j < 3: A('s_add_u32 s19, s19, 32768')
    A(f'v_and_b32 v{PR}, 15, v1')
    A(f'v_lshlrev_b32 v{PR}, 2, v{PR}')
    for j in range(4):
        A(f'buffer_load_dword v{EP+16+j}, v{PR}, s[24:27], 0 offen offset:{64*j} sc1')
        A(f'buffer_load_dword v{EP+24+j}, v{PR}, s[44:47], 0 offen offset:{64*j} sc1')
    A(f'v_lshrrev_b32 v{PR+1}, 4, v1')
    A(f'v_lshlrev_b32 v{PR+1}, 3, v{PR+1}')
    A('s_lshl_b32 s19, s16, 6')
    A(f'buffer_load_dwordx2 {vr(EP+20,2)}, v{PR+1}, s[28:31], s19 offen')
    A(f'buffer_load_dwordx2 {vr(EP+22,2)}, v{PR+1}, s[28:31], s19 offen offset:32')
    A('s_waitcnt lgkmcnt(0)')
    A(f's_branch {name}_g2mid')
    A('.p2align 6')
    A.label(f'{name}_g2loop')
    A('s_barrier')
    step(1, True, reads(0, 0, True))
    A.label(f'{name}_g2mid')
    step(0, True, reads(1, 1, True), ADV[:3] + [ADV[3] + ['s_add_u32 s18, s18, 1', f's_cmp_lt_u32 s18, {N1}']])
    A(f's_cbranch_scc1 {name}_g2loop')
    A('s_mov_b32 s59, 0')
    A('s_mov_b32 s58, 400000')
    def check(tag, sp):
        A('s_cmp_lg_u32 s59, 0')
        A(f's_cbranch_scc1 {name}_done{tag}')
        A.label(f'{name}_poll{tag}')
        A('s_waitcnt vmcnt(0)')
        A(f'v_readfirstlane_b32 s59, v{PR+16}')
        A('s_cmp_eq_u32 s59, 1')
        A(f's_cbranch_scc1 {name}_got{tag}')
        A('s_mov_b32 s59, 0')
        if sp:
            A('s_sub_u32 s58, s58, 1')
            A(f's_cbranch_scc1 {name}_got{tag}')
            A('s_sleep 1')
        A(f'buffer_load_dword v{PR+16}, v{vFl}, s[36:39], s55 offen sc1')
        A(f's_branch {name}_poll{tag}' if sp else f's_branch {name}_done{tag}')
        A.label(f'{name}_got{tag}')
        for k in range(4):
            A(f'buffer_load_dwordx4 {vr(PR+4*k,4)}, v{vL16}, s[40:43], s57 offen offset:{k*1024} sc1')
        A.label(f'{name}_done{tag}')
    for it in range(N2):
        A('s_barrier')
        if it == 0:
            step(1, True, reads(0, 0, False), xfirst=True)
            for k in range(4):
                for c in range(4*k, 4*k+4): A(f'v_cvt_pk_bf16_f32 v{AX+c}, v{AX+2*c}, v{AX+2*c+1}')
                A(f'buffer_store_dwordx4 {vr(AX+4*k,4)}, v{vL16}, s[40:43], s56 offen offset:{k*1024} sc1')
        else:
            if it == SIG:
                A('s_waitcnt vmcnt(0)')
                A(f'v_mov_b32 v{PR}, 1')
                A(f'buffer_store_dword v{PR}, v{vFl}, s[36:39], s54 offen sc1')
            if it == POLL:
                A(f'buffer_load_dword v{PR+16}, v{vFl}, s[36:39], s55 offen sc1')
            if it > POLL: check(it, False)
            step(1, False, reads(0, 0, False))
        step(0, False, reads(1, 1, False), ADV if it < N2 - 1 else ())
    check('L', True)
    step(1, False, [])
    st(12)
    B = 104
    A('v_and_b32 v6, 15, v1')
    A('v_lshlrev_b32 v6, 15, v6')
    A('v_lshrrev_b32 v7, 4, v1')
    A('v_and_b32 v2, 1, v7')
    A('v_lshl_add_u32 v6, v2, 5, v6')
    A('v_lshrrev_b32 v7, 1, v7')
    A('v_lshl_add_u32 v6, v7, 4, v6')
    A('s_lshl_b32 s19, s10, 11')
    A('s_lshl_b32 s15, s13, 21')
    A('s_add_u32 s19, s19, s15')
    A('s_lshl_b32 s16, s16, 6')
    A('s_add_u32 s19, s19, s16')
    A('s_waitcnt vmcnt(0)')
    for i in range(2):
        for q in range(2):
            A(f'v_lshlrev_b32 v{B+4*i+2*q}, 16, v{EP+20+2*i+q}')
            A(f'v_and_b32 v{B+4*i+2*q+1}, 0xffff0000, v{EP+20+2*i+q}')
    T = 40
    for j in range(4):
        d = T + 8*j
        for i in range(2):
            a = AO + (i*4+j)*4; pr = PR + (i*4+j)*2
            for q in range(2):
                hreg = EP + 4*j + 2*i + q
                A(f'v_lshlrev_b32 v{d+4+2*q}, 16, v{hreg}')
                A(f'v_and_b32 v{d+5+2*q}, 0xffff0000, v{hreg}')
                A(f'v_lshlrev_b32 v{72+2*q}, 16, v{pr+q}')
                A(f'v_and_b32 v{73+2*q}, 0xffff0000, v{pr+q}')
            for q in range(2):
                A(f'v_pk_add_f32 {vr(a+2*q,2)}, {vr(a+2*q,2)}, {vr(72+2*q,2)}')
                A(f'v_pk_add_f32 {vr(d+4+2*q,2)}, {vr(d+4+2*q,2)}, {vr(B+4*i+2*q,2)}')
            for r in range(4): A(f'v_add_f32 v{d+4+r}, v{d+4+r}, v{EP+24+j}')
            for r in range(4): A(f'v_fma_f32 v{a+r}, v{a+r}, v{EP+16+j}, v{d+4+r}')
            A(f'v_cvt_pk_bf16_f32 v{d+2*i}, v{a}, v{a+1}')
            A(f'v_cvt_pk_bf16_f32 v{d+2*i+1}, v{a+2}, v{a+3}')
        A(f'v_permlane16_swap_b32 v{d}, v{d+2}')
        A(f'v_permlane16_swap_b32 v{d+1}, v{d+3}')
        A(f'buffer_store_dwordx4 {vr(d,4)}, v6, s[32:35], s19 offen')
        if j < 3: A(f's_add_u32 s19, s19, {16*16*2048}')

def loaders(A, name, opt):
    NS = 4; N2 = opt.get('n2', 8); N1 = (56 - N2) // 2; NT = N1 + N2
    hm = opt.get('hmod', 'sc1')
    A('s_load_dwordx4 s[64:67], s[0:1], %d' % KA['w1'])
    A('s_load_dwordx2 s[48:49], s[0:1], %d' % KA['w2'])
    A('s_sub_u32 s12, s12, 4')
    g1_decode(A)
    A('s_lshl_b32 s15, s12, 16')
    A('v_lshlrev_b32 v8, 4, v1')
    A('v_add_u32 v8, s15, v8')
    A('v_add_u32 v9, 0x8000, v8')
    A('s_lshl_b32 s15, s12, 4')
    A('s_and_b32 s16, s11, 1')
    w_voffs(A, 10, 1, 15, 16, 4, range(7))
    A('s_lshl_b32 s43, s12, 12')
    A('s_mul_i32 s44, s12, 7168')
    A(f's_add_u32 s44, s44, {WB0}')
    A('s_mov_b32 s41, 0')
    A('s_mov_b32 s42, 0')
    A('s_lshl_b32 s15, s12, 12')
    A('v_lshlrev_b32 v3, 4, v1')
    A('v_add_u32 v3, s15, v3')
    A('v_and_b32 v17, 15, v1')
    A('v_lshlrev_b32 v17, 7, v17')
    A('v_mov_b32 v20, 1')
    A('v_mov_b32 v21, 0')
    A('s_and_b32 s13, s2, 7')
    A('s_sub_u32 s15, 16, s13')
    A('s_cmp_eq_u32 s13, 0')
    A('s_cselect_b32 s15, 8, s15')
    A('s_bitcmp1_b32 s2, 3')
    A('s_cselect_b32 s13, s15, s13')
    A('s_lshl_b32 s13, s13, 4')
    A('s_lshr_b32 s15, s2, 4')
    A('s_add_u32 s13, s13, s15')
    A('s_lshl_b32 s13, s13, 7')
    A('s_lshl_b32 s14, s10, 4')
    A('s_add_u32 s14, s14, s11')
    A('s_lshl_b32 s14, s14, 7')
    A(f's_add_u32 s14, s14, {FL2}')
    A('s_lshl_b32 s15, s10, 18')
    A(f's_add_u32 s15, s15, {HF_OFF}')
    A('s_mul_i32 s16, s11, 448')
    A(f's_sub_u32 s19, {1024*7168}, s16')
    A('s_waitcnt lgkmcnt(0)')
    srd(A, 20, 4, 's15', 256 * 1024)
    srd(A, 24, 64, 's16', 's19')
    A('s_lshl_b32 s15, s10, 14')
    A(f's_add_u32 s15, s15, {ST_OFF}')
    srd(A, 32, 4, 's15', 16384)
    A('s_lshl_b32 s15, s10, 9')
    A(f's_add_u32 s15, s15, {R2_OFF}')
    A('s_cmp_eq_u32 s11, 0')
    A('s_cselect_b32 s19, 512, 0')
    srd(A, 36, 4, 's15', 's19')
    srd(A, 52, 4, FL_OFF, FL_SIZE)
    srd(A, 56, 48, 0, 3584 * 2048)
    A('s_lshl_b32 s60, s2, 2')
    A('s_add_u32 s60, s60, s12')
    A('s_lshl_b32 s60, s60, 9')
    A(f's_mov_b32 s50, {4 << 20}')
    hstep = [2048]
    A('v_mov_b32 v26, v8')
    A('v_mov_b32 v27, v9')
    def issue_h(lds):
        A(f's_add_u32 m0, {lds}, s43')
        A('s_nop 0')
        A(f'buffer_load_dwordx4 v8, s[20:23], s41 offen {hm} lds')
        A(f'buffer_load_dwordx4 v26, s[20:23], s41 offen offset:1024 {hm} lds')
        A('s_add_u32 m0, m0, 2048')
        A('s_nop 0')
        A(f'buffer_load_dwordx4 v9, s[20:23], s41 offen {hm} lds')
        A(f'buffer_load_dwordx4 v27, s[20:23], s41 offen offset:1024 {hm} lds')
        A(f's_add_u32 s41, s41, {hstep[0]}')
    def issue_w(lds, srdn=24, so='s42'):
        A(f's_add_u32 s45, {lds}, s44')
        for q in range(7):
            A(f's_add_u32 m0, s45, {q*1024}')
            A('s_nop 0')
            A(f'buffer_load_dwordx4 v{10+q}, s[{srdn}:{srdn+3}], {so} offen lds')
        if srdn == 24: A(f's_add_u32 s42, s42, {64*7168}')
    def sp2():
        for k in range(4): A(f's_buffer_load_dwordx2 s[62:63], s[56:59], s60 offset:{128*k + 60}')
        A('s_add_u32 s60, s60, s50')
        A('s_sub_u32 s50, 0x80000, s50')
    if opt.get('pf', 0) == 1: line_touch(A, 18, 19, 68, 64, 256 * 14336, 256, 15)
    def handoff(tag, sown, soth):
        A('s_barrier')
        A('s_cmp_lg_u32 s12, 0')
        A(f's_cbranch_scc1 {tag}_go')
        A(f'buffer_store_dword v20, v21, s[52:55], s{sown} offen sc1')
        spin(A, tag, 52, soth, 36, 17, 47, opt.get('pdepth', 4), opt.get('pgap', 2))
        A('s_barrier')
    A('s_barrier')
    NW1 = opt.get('nw1', 3)
    for k in range(NW1): issue_w(k * WS)
    if opt.get('pf', 0) == 2: line_touch(A, 18, 19, 68, 64, 256 * 14336, 256, 15)
    sp2(); sp2()
    A('s_lshl_b32 s15, s10, 11')
    A('s_barrier')
    handoff(f'{name}_fl1', 13, 15)
    for k in range(3):
        issue_h(k * HS)
        if k >= NW1: issue_w(k * WS)
    for k in range(4): A(f'buffer_load_dwordx4 {vr(40+4*k,4)}, v3, s[32:35], 0 offen offset:{1024*k} sc1')
    A('s_mov_b32 s40, 0')
    A('s_mov_b32 s46, 0')
    c1 = lambda k: 4 + (7 if k >= NW1 else 0)
    A(f's_waitcnt vmcnt({c1(1) + c1(2) + 4})')
    A('s_barrier')
    A(f's_waitcnt vmcnt({c1(2) + 4})')
    A('s_barrier')
    def issue():
        issue_h('s40'); issue_w('s46')
        A(f's_add_u32 s40, s40, {HS}')
        A(f's_add_u32 s46, s46, {WS}')
        A(f's_cmp_eq_u32 s40, {3*HS}')
        A('s_cselect_b32 s40, 0, s40')
        A('s_cselect_b32 s46, 0, s46')
    issue(); sp2()
    A('s_waitcnt vmcnt(11)')
    A('s_barrier')
    for k in range(4):
        A(f'v_add_f32 v{40+4*k}, v{40+4*k}, v{42+4*k}')
        A(f'v_add_f32 v{41+4*k}, v{41+4*k}, v{43+4*k}')
    issue(); sp2()
    for perm in ('quad_perm:[1,0,3,2]', 'quad_perm:[2,3,0,1]', 'row_half_mirror'):
        for k in range(4):
            for c in range(2):
                A(f'v_add_f32_dpp v{40+4*k+c}, v{40+4*k+c}, v{40+4*k+c} {perm} row_mask:0xf bank_mask:0xf')
    A('v_and_b32 v4, 3, v1')
    for k in range(1, 4):
        A(f'v_cmp_eq_u32 vcc, {k}, v4')
        for c in range(2): A(f'v_cndmask_b32 v{40+c}, v{40+c}, v{40+4*k+c}, vcc')
    ln_finish(A, 40, 41, 22, 23, 24, 47)
    A('v_lshrrev_b32 v28, 16, v23')
    A('v_lshrrev_b32 v5, 3, v1')
    A('v_lshl_add_u32 v2, v4, 3, v5')
    A('s_lshl_b32 s15, s12, 7')
    A(f's_add_u32 s15, s15, {SGB}')
    A('v_lshl_add_u32 v5, v2, 2, s15')
    A('ds_write_b32 v5, v28')
    A('v_mul_f32 v23, v23, v23')
    A('v_rcp_f32 v23, v23')
    A('s_lshl_b32 s15, s12, 7')
    A('v_lshlrev_b32 v5, 2, v2')
    A('s_waitcnt vmcnt(11)')
    A('buffer_store_dword v23, v5, s[36:39], s15 offen sc1')
    A('s_barrier')
    A('s_mov_b32 s18, 5')
    A.label(f'{name}_l1loop')
    issue()
    A('s_cmp_eq_u32 s18, 15')
    A(f's_cbranch_scc1 {name}_nosp')
    A('s_cmp_eq_u32 s18, 13')
    A('s_cselect_b32 s50, 0x80000, s50')
    sp2()
    A.label(f'{name}_nosp')
    A('s_add_u32 s18, s18, 1')
    A('s_cmp_lt_u32 s18, 16')
    A('s_waitcnt vmcnt(11)')
    A('s_barrier')
    A(f's_cbranch_scc1 {name}_l1loop')
    g2_decode(A)
    gs = opt.get('gskip', 1); TT = GTT if gs else 112 * 1024; hstep[0] = GST if gs else 2048
    A(f's_mul_i32 s15, s12, {2*TT}')
    A('v_lshlrev_b32 v8, 4, v1')
    if gs:
        skipmap(A, 26, 8, 1, 4)
        skipmap(A, 8, 8, 0, 4)
        A('v_subrev_u32 v26, 1024, v26')
    else:
        A('v_mov_b32 v26, v8')
    A('v_add_u32 v8, s15, v8')
    A('v_add_u32 v26, s15, v26')
    A(f'v_add_u32 v9, {TT}, v8')
    A(f'v_add_u32 v27, {TT}, v26')
    A('v_lshrrev_b32 v4, 3, v1')
    A('s_lshl_b32 s15, s12, 4')
    A('v_add_u32 v4, s15, v4')
    A('v_lshlrev_b32 v4, 11, v4')
    A('v_and_b32 v5, 1, v1')
    A('v_lshl_add_u32 v4, v5, 4, v4')
    A('v_lshrrev_b32 v5, 4, v1')
    A('v_and_b32 v5, 1, v5')
    A('v_lshrrev_b32 v6, 1, v1')
    A('v_and_b32 v6, 3, v6')
    A('v_xor_b32 v5, v5, v6')
    A('v_lshl_add_u32 v10, v5, 5, v4')
    A('s_lshl_b32 s15, s8, 7')
    A('v_add_u32 v10, s15, v10')
    A('v_xor_b32 v11, 64, v10')
    A(f'v_add_u32 v11, {16384 - 1024}, v11')
    A('v_xor_b32 v12, 128, v10')
    A('v_xor_b32 v13, 192, v10')
    A(f'v_add_u32 v13, {16384 - 1024}, v13')
    A('s_lshl_b32 s44, s12, 11')
    A('s_add_u32 s44, s44, 16384')
    A(f's_mul_i32 s41, s8, {(56-N1)*hstep[0]}')
    A(f's_mul_i32 s42, s8, {(56-N1)*64*2048}')
    A(f's_mul_i32 s15, s10, {8*TT}')
    A(f's_add_u32 s15, s15, {GS_OFF if gs else G_OFF}')
    A('s_lshr_b32 s16, s11, 1')
    A('s_lshl_b32 s16, s16, 8')
    A(f's_sub_u32 s19, {3584*2048}, s16')
    srd(A, 20, 4, 's15', 8 * TT)
    srd(A, 24, 48, 's16', 's19')
    A('s_waitcnt vmcnt(0) lgkmcnt(0)')
    A('s_barrier')
    def issue_w2(lds, full):
        A(f's_add_u32 m0, {lds}, s44')
        A('s_nop 0')
        A(f'buffer_load_dwordx4 v10, s[24:27], s42 offen lds')
        A(f'buffer_load_dwordx4 v11, s[24:27], s42 offen offset:1024 lds')
        if full:
            A('s_add_u32 m0, m0, 8192')
            A('s_nop 0')
            A(f'buffer_load_dwordx4 v12, s[24:27], s42 offen lds')
            A(f'buffer_load_dwordx4 v13, s[24:27], s42 offen offset:1024 lds')
        A(f's_add_u32 s42, s42, {64*2048}')
    def issue2(full):
        issue_h('s40'); issue_w2('s40', full)
        A(f's_add_u32 s40, s40, {SLOT}')
        A(f's_cmp_eq_u32 s40, {NS*SLOT}')
        A('s_cselect_b32 s40, 0, s40')
    A('s_lshl_b32 s15, s10, 11')
    A(f's_add_u32 s15, s15, {FL2}')
    A('s_barrier')
    for k in range(2): issue_w2(k * SLOT, True)
    handoff(f'{name}_fl2', 14, 15)
    for k in range(2): issue_h(k * SLOT)
    A(f's_mov_b32 s40, {2*SLOT}')
    issue2(True); issue2(True)
    A('s_waitcnt vmcnt(20)')
    A('s_barrier')
    A('s_waitcnt vmcnt(16)')
    A('s_barrier')
    issue2(True)
    A('s_waitcnt vmcnt(16)')
    A('s_barrier')
    A(f's_mov_b32 s18, {NS + 1}')
    A.label(f'{name}_l2loop')
    issue2(True)
    A('s_add_u32 s18, s18, 1')
    A(f's_cmp_lt_u32 s18, {N1}')
    A(f's_waitcnt vmcnt({8*(NS-2)})')
    A('s_barrier')
    A(f's_cbranch_scc1 {name}_l2loop')
    A(f's_mov_b32 s41, {N1*hstep[0]}')
    A(f's_mov_b32 s42, {N1*64*2048}')
    cnt = lambda s: 0 if s >= NT else (8 if s < N1 else 6)
    for j in range(N1 - NS + 1, NT - 1):
        s = j + NS - 1
        if s < NT: issue2(False)
        A(f's_waitcnt vmcnt({sum(cnt(x) for x in range(j + 2, j + NS))})')
        A('s_barrier')

def gen_m(A, name='m_kernel', opt=None):
    opt = opt or {}
    khead(A, name)
    st = Stamper(A, opt.get('stamp'), 1)
    st(0); st(7, True)
    A('s_cmp_ge_u32 s2, 256')
    A(f's_cbranch_scc1 {name}_end')
    A('s_load_dwordx2 s[4:5], s[0:1], %d' % KA['ws'])
    A('s_load_dwordx2 s[6:7], s[0:1], %d' % KA['x'])
    A('v_lshrrev_b32 v2, 6, v0')
    A('v_and_b32 v1, 63, v0')
    A('v_readfirstlane_b32 s12, v2')
    A('s_cmp_ge_u32 s12, 4')
    A(f's_cbranch_scc1 {name}_loader')
    fb_compute(A, name, st, opt)
    g1_compute(A, name, st, opt)
    g2_compute(A, name, st, opt)
    A('s_waitcnt vmcnt(0)') if opt.get('stamp') else None
    st(5); st(6, True)
    st.dump(13, 0, 244)
    A('s_endpgm')
    A.label(f'{name}_loader')
    loaders(A, name, opt)
    A.label(f'{name}_end')
    A('s_endpgm')
    return dict(name=name, grid=256, block=512, lds=M_LDS, vgpr=256)
```

```python
from common import *

XP = 2112; NP = 80; ZP = 1312
ZB = 16 * XP
RB = ZB + 16 * ZP
FA_LDS = RB + 64

def gen_fa(A, name='fa_kernel', opt=None):
    opt = opt or {}
    smod = opt.get('smod', 'sc1'); xmod = opt.get('xmod', 'nt')
    khead(A, name)
    st = Stamper(A, opt.get('stamp'), 0)
    st(0); st(7, True)
    A('s_cmp_ge_u32 s2, 256')
    A(f's_cbranch_scc1 {name}_end')
    A('s_load_dwordx2 s[6:7], s[0:1], %d' % KA['x'])
    A('s_load_dwordx2 s[4:5], s[0:1], %d' % KA['ws'])
    A('s_load_dwordx2 s[8:9], s[0:1], %d' % KA['w1'])
    if opt.get('cpf', 1):
        A('s_getpc_b64 s[36:37]')
        A(f's_mov_b32 s38, CODE_END-{name}-64')
        A('s_mov_b32 s39, 0x20000')
        A('s_lshr_b32 s13, s2, 3')
        A('s_lshl_b32 s13, s13, 7')
        A('v_lshlrev_b32 v4, 12, v0')
        A('buffer_load_dword v88, v4, s[36:39], s13 offen')
    A('v_lshrrev_b32 v2, 6, v0')
    A('v_and_b32 v1, 63, v0')
    A('s_and_b32 s13, s2, 7')
    A('v_readfirstlane_b32 s12, v2')
    A('s_lshr_b32 s14, s2, 3')
    A('s_and_b32 s11, s14, 1')
    A('s_sub_u32 s15, 16, s13')
    A('s_cmp_eq_u32 s13, 0')
    A('s_cselect_b32 s15, 8, s15')
    A('s_bitcmp1_b32 s14, 1')
    A('s_cselect_b32 s10, s15, s13')
    A('s_lshr_b32 s15, s14, 2')
    A('s_lshl_b32 s15, s15, 4')
    A('s_add_u32 s10, s10, s15')
    A('v_lshrrev_b32 v4, 5, v1')
    A('v_lshlrev_b32 v4, 1, v4')
    A('v_xor_b32 v4, v4, v1')
    A('v_lshlrev_b32 v14, 4, v4')
    A('s_lshl_b32 s13, s12, 9')
    A('s_add_u32 s13, s13, s10')
    A('s_lshl_b32 s63, s13, 2')
    A('s_lshl_b32 s13, s13, 11')
    A(f's_mul_i32 s14, s12, {4*XP}')
    vn, vg = 2, 3
    M1, TC, TS, M2C, M2S, SA1, SA2, SGN, MU, ONES = 16, 24, 40, 56, 60, 64, 68, 72, 73, 76
    GA, SA = 80, 84
    vSt, vTr0, vTr1, vZw, vZr, vU, vE, vE0, vZx, vX0, vZ0 = 108, 90, 91, 92, 93, 94, 95, 96, 97, 98, 99
    F = 112; T = 144; AF = 208; TMP = 112; P = 128; D = 240
    A(f'v_and_b32 v{vn}, 15, v1')
    A(f'v_lshrrev_b32 v{vg}, 4, v1')
    A('s_lshl_b32 s43, s11, 4')
    A('s_add_u32 s43, s43, 1')
    A(f'v_and_b32 v5, 7, v{vn}')
    A('v_add_u32 v5, s43, v5')
    A('v_cvt_f32_u32 v5, v5')
    A(f'v_and_b32 v6, 8, v{vn}')
    A(f'v_cvt_f32_u32 v7, v{vg}')
    A('v_cvt_f32_u32 v8, v6')
    A('v_mul_f32 v9, 0x3d000000, v5')
    A('v_mul_f32 v8, 0x3d000000, v8')
    A('v_mul_f32 v12, 0x41000000, v7')
    A('v_fmac_f32 v8, v12, v9')
    def m1(hh8, th, dl):
        for j in range(8):
            if j: A(f'v_add_f32 v{th}, v{th}, v{dl}')
            A(f'v_cos_f32 v{10 + (j & 1)}, v{th}')
            if j & 1: A(f'v_cvt_pk_bf16_f32 v{M1 + 4*hh8 + j//2}, v10, v11')
    A('v_mov_b32 v13, v8')
    m1(0, 8, 9)
    A('s_waitcnt lgkmcnt(0)')
    srd(A, 20, 6, 0, 2048 * 2048)
    for r in range(4):
        A(f's_add_u32 m0, s14, {r*XP}')
        A('s_nop 0')
        A(f'buffer_load_dwordx4 v14, s[20:23], s13 offen {xmod} lds')
        A(f'buffer_load_dwordx4 v14, s[20:23], s13 offen offset:1024 {xmod} lds')
        if r < 3: A(f's_add_u32 s13, s13, {128*2048}')
    A('v_add_f32 v9, 0x3e800000, v9')
    m1(1, 13, 9)
    A(f'v_lshlrev_b32 v9, 28, v6')
    A(f'v_lshrrev_b32 v10, 16, v9')
    A(f'v_or_b32 v{SGN}, v9, v10')
    A('v_mul_f32 v12, 4.0, v7')
    for hh8 in range(2):
        if hh8: A('v_add_f32 v5, 0x41000000, v5')
        A('v_mul_f32 v13, 0x3a800000, v5')
        A('v_xor_b32 v15, v9, v13')
        A('v_mul_f32 v8, v12, v15')
        for hh in range(2):
            for r in range(4):
                o = 8*hh8 + 4*hh + r
                if r: A('v_add_f32 v8, v8, v15')
                elif hh: A('v_fmac_f32 v8, 0x41500000, v15')
                A(f'v_cos_f32 v{TC+o}, v8')
                A(f'v_sin_f32 v{TS+o}, v8')
    A('s_cmp_eq_u32 s11, 1')
    A('s_cselect_b32 s44, 0xc2000000, 0')
    A(f'v_mov_b32 v{MU}, s44')
    A(f'v_cmp_eq_u32 vcc, 7, v{vn}')
    A(f'v_cndmask_b32 v{MU}, 0, v{MU}, vcc')
    A(f'v_cvt_f32_u32 v5, v{vn}')
    A('v_mul_f32 v13, 0x3d000000, v5')
    A('v_mul_f32 v8, v12, v13')
    for j in range(8):
        if j == 4: A('v_fmac_f32 v8, 0x41500000, v13')
        elif j: A('v_add_f32 v8, v8, v13')
        A(f'v_cos_f32 v{10+(j&1)}, v8')
        A(f'v_sin_f32 v{14+(j&1)}, v8')
        if j & 1:
            A(f'v_cvt_pk_bf16_f32 v{M2C+j//2}, v10, v11')
            A(f'v_cvt_pk_bf16_f32 v{M2S+j//2}, v14, v15')
    for i in range(4): A(f'v_mov_b32 v{ONES+i}, 0x3f803f80')
    A(f'v_lshrrev_b32 v10, 2, v{vn}')
    A(f'v_and_b32 v11, 3, v{vn}')
    A(f'v_mul_u32_u24 v12, {XP}, v10')
    A(f'v_mul_u32_u24 v13, 528, v11')
    A('v_add3_u32 v12, v12, v13, s14')
    A(f'v_and_b32 v13, 1, v{vg}')
    A('v_lshl_add_u32 v12, v13, 8, v12')
    A(f'v_lshrrev_b32 v15, 1, v{vg}')
    A(f'v_lshl_add_u32 v{vSt}, v15, 7, v12')
    for e in range(1, 4): A(f'v_xor_b32 v{vSt+e}, {16*e}, v{vSt}')
    A('v_lshlrev_b32 v12, 6, v10')
    A(f'v_lshl_add_u32 v12, v{vg}, 9, v12')
    A('v_lshl_add_u32 v12, v11, 3, v12')
    A('v_lshl_add_u32 v12, v13, 5, v12')
    A(f'v_add_u32 v{vTr0}, s14, v12')
    A(f'v_xor_b32 v{vTr1}, 32, v{vTr0}')
    A(f's_mul_i32 s15, s12, {4*ZP}')
    A(f's_add_u32 s15, s15, {ZB}')
    A(f'v_mul_u32_u24 v{vZw}, {NP}, v{vn}')
    A(f'v_lshl_add_u32 v{vZw}, v{vg}, 4, v{vZw}')
    A(f'v_add_u32 v{vZw}, s15, v{vZw}')
    A(f'v_mul_u32_u24 v{vX0}, {XP}, v10')
    A(f'v_add_u32 v{vX0}, s14, v{vX0}')
    A(f'v_mul_u32_u24 v{vZ0}, {ZP}, v10')
    A('v_and_b32 v12, 1, v1')
    A(f'v_mul_u32_u24 v12, {8*NP}, v12')
    A(f'v_add3_u32 v{vZ0}, v{vZ0}, v12, s15')
    A('v_cmp_eq_u32 s[46:47], 1, v11')
    A('v_cmp_eq_u32 s[48:49], 2, v11')
    A('v_cmp_eq_u32 s[50:51], 3, v11')
    A(f'v_cmp_eq_u32 s[52:53], v10, v{vg}')
    A('s_cmp_eq_u32 s11, 0')
    A('s_cselect_b32 s16, 8192, 0')
    srd(A, 32, 4, MX_OFF, 's16')
    srd(A, 28, 4, U_OFF, 4 * MB)
    srd(A, 36, 4, E_OFF, 65536)
    A('s_lshr_b32 s65, s12, 1')
    A('s_cmp_lg_u32 s65, 0')
    A('s_cselect_b32 s44, 0.25, 0')
    A(f'v_lshlrev_b32 v8, 9, v{vg}')
    A('v_add_u32 v8, s10, v8')
    A('v_cvt_f32_u32 v8, v8')
    A('v_mul_f32 v13, 0x3a000000, v5')
    A('v_fma_f32 v8, v8, v13, s44')
    A('v_mul_f32 v13, 0x3d800000, v5')
    for j in range(4):
        if j: A('v_add_f32 v8, v8, v13')
        A(f'v_cos_f32 v{SA1+j}, v8')
        A(f'v_sin_f32 v{SA2+j}, v8')
    A(f'v_lshl_add_u32 v12, v{vg}, 2, v10')
    A(f'v_mul_u32_u24 v12, {ZP}, v12')
    A(f'v_add_u32 v{vZx}, {ZB + 64}, v12')
    A('v_lshl_add_u32 v12, v11, 3, v12')
    A('s_and_b32 s15, s12, 1')
    A('s_lshl_b32 s16, s15, 5')
    A(f's_add_u32 s16, s16, {ZB}')
    A(f'v_add_u32 v{vZr}, s16, v12')
    A(f'v_lshlrev_b32 v{vU}, 20, v{vg}')
    A(f'v_lshl_add_u32 v{vU}, v10, 7, v{vU}')
    A(f'v_lshl_add_u32 v{vU}, v11, 4, v{vU}')
    A('s_lshl_b32 s66, s65, 17')
    A('s_lshl_b32 s16, s10, 10')
    A('s_add_u32 s66, s66, s16')
    A('s_lshl_b32 s16, s15, 9')
    A('s_add_u32 s66, s66, s16')
    A('s_lshl_b32 s16, s11, 6')
    A('s_add_u32 s66, s66, s16')
    A('s_lshl_b32 s16, s15, 2')
    A('s_add_u32 s16, s16, 1')
    A('v_add_u32 v12, s16, v10')
    A(f'v_lshlrev_b32 v{vE0}, 14, v{vg}')
    A(f'v_lshl_add_u32 v{vE}, v12, 9, v{vE0}')
    A('v_cmp_gt_u32 vcc, 8, v12')
    A('s_and_b64 vcc, vcc, s[50:51]')
    A(f'v_cndmask_b32 v{vE}, 4.0, v{vE}, vcc')
    A(f'v_or_b32 v12, s15, v{vn}')
    A('v_cmp_eq_u32 vcc, 0, v12')
    A(f'v_cndmask_b32 v{vE0}, 4.0, v{vE0}, vcc')
    A('s_lshl_b32 s67, s65, 7')
    A('s_add_u32 s67, s67, s10')
    A('s_lshl_b32 s67, s67, 1')
    srd(A, 24, 4, 38 * MB, 1792 * 128)
    A('v_lshlrev_b32 v12, 7, v0')
    A('v_cmp_gt_u32 vcc, 7, v0')
    A('v_cndmask_b32 v12, 4.0, v12, vcc')
    A('s_mul_i32 s15, s2, 896')
    A('v_mov_b32 v13, 0')
    A('buffer_store_dword v13, v12, s[24:27], s15 offen')
    npf = 1
    if opt.get('pf', 1):
        srd(A, 24, 8, 0, 1024 * 7168)
        A('v_lshlrev_b32 v12, 7, v0')
        nl = 224 if opt.get('pf', 1) == 1 else 112
        A(f'v_cmp_gt_u32 vcc, {nl}, v0')
        A('v_cndmask_b32 v12, 4.0, v12, vcc')
        A(f's_mul_i32 s15, s2, {nl*128}')
        A('buffer_load_dword v89, v12, s[24:27], s15 offen')
        npf += 1
    st(1)
    A(f's_waitcnt vmcnt({npf})')
    st(2)
    for i in range(8):
        A(f'ds_read_b128 {vr(F+4*i,4)}, v{vSt + (i&3)} offset:{64*(i>>2)}')
    A(f'ds_read_u16 v{vX0}, v{vX0}')
    def s1rd(r):
        for hh in range(2):
            for rd in range(2):
                A(f'ds_read_b64_tr_b16 {vr(AF+8*r+4*hh+2*rd,2)}, v{vTr0 if hh == 0 else vTr1} offset:{r*XP + 256*rd}')
    s1rd(0)
    A('s_waitcnt lgkmcnt(9)')
    for i in range(8):
        if i == 4: A('s_waitcnt lgkmcnt(9)')
        mfma(A, GA, F+4*i, F+4*i, '0' if i == 0 else None)
        mfma(A, SA, ONES, F+4*i, '0' if i == 0 else None)
        if i == 3: s1rd(1)
        if i == 5: s1rd(2)
        if i == 7: s1rd(3)
    def s1(r):
        A(f's_waitcnt lgkmcnt({12 - 4*r})')
        for hh8 in range(2):
            for hh in range(2):
                mfma(A, T + 16*r + 8*hh8 + 4*hh, AF + 8*r + 4*hh, M1 + 4*hh8, '0')
    s1(0); s1(1)
    A(f'v_cndmask_b32 v10, v{GA}, v{GA+1}, s[46:47]')
    A(f'v_add_f32_dpp v11, v{SA}, v{SA} quad_perm:[1,0,3,2] row_mask:0xf bank_mask:0xf')
    A(f'v_cndmask_b32 v10, v10, v{GA+2}, s[48:49]')
    A(f'v_lshlrev_b32 v{vX0}, 16, v{vX0}')
    A(f'v_cndmask_b32 v10, v10, v{GA+3}, s[50:51]')
    A(f'v_add_f32_dpp v11, v11, v11 quad_perm:[2,3,0,1] row_mask:0xf bank_mask:0xf')
    s1(2)
    A(f'v_add_f32_dpp v10, v10, v10 quad_perm:[1,0,3,2] row_mask:0xf bank_mask:0xf')
    A('v_mul_f32 v15, 0x3a800000, v11')
    s1(3)
    A(f'v_add_f32_dpp v10, v10, v10 quad_perm:[2,3,0,1] row_mask:0xf bank_mask:0xf')
    for r in range(4): A(f'v_readlane_b32 s{56+r}, v15, {4*r}')
    A(f'v_sub_f32 v{vX0}, v{vX0}, v15')
    ln_finish(A, 11, 10, 12, 13, 14, 45)
    A('v_rcp_f32 v13, v13')
    A(f'v_lshlrev_b32 v12, 9, v{vg}')
    A(f'v_lshlrev_b32 v10, 2, v{vg}')
    A('s_lshl_b32 s15, s12, 4')
    A(f's_add_u32 s15, s15, {RB}')
    A('v_add_u32 v10, s15, v10')
    A('s_mov_b64 exec, s[52:53]')
    A('ds_write_b32 v10, v13')
    A('buffer_store_dword v15, v12, s[32:35], s63 offen')
    A('s_mov_b64 exec, -1')
    A('v_mov_b32 v11, 0')
    A(f'v_cvt_pk_bf16_f32 v10, v{vX0}, v11')
    A('s_mov_b32 vcc_lo, 0x55555555')
    A('s_mov_b32 vcc_hi, 0x55555555')
    A('v_cndmask_b32 v10, 0, v10, vcc')
    A(f'ds_write_b64 v{vZ0}, v[10:11] offset:64')
    def fin(r):
        d = D + 8 * (r & 1)
        for k in range(4): A(f'v_cvt_pk_bf16_f32 v{d+k}, v{d+k}, v{d+4+k}')
        A(f'ds_write_b128 v{vZw}, {vr(d,4)} offset:{r*ZP}')
    for r in range(4):
        A(f'v_mul_f32 v14, s{56+r}, v{MU}')
        A('v_mov_b32 v15, v14')
        for k in range(0, 8, 2): A(f'v_pk_add_f32 {vr(T+16*r+8+k,2)}, {vr(T+16*r+8+k,2)}, v[14:15]')
        for hh8 in range(2):
            t = T + 16*r + 8*hh8; tm = TMP + 8*hh8; p = P + 8*hh8
            for k in range(0, 8, 2): A(f'v_pk_mul_f32 {vr(tm+k,2)}, {vr(t+k,2)}, {vr(TC+8*hh8+k,2)}')
            for k in range(8): A(f'v_fmac_f32_dpp v{tm+k}, v{t+k}, v{TS+8*hh8+k} row_ror:8 row_mask:0xf bank_mask:0xf')
            for k in range(4): A(f'v_cvt_pk_bf16_f32 v{p+k}, v{tm+2*k}, v{tm+2*k+1}')
            if r > 0 and hh8 == 0: fin(r - 1)
            for k in range(4): A(f'v_xor_b32_dpp v{p+4+k}, v{p+k}, v{SGN} row_ror:8 row_mask:0xf bank_mask:0xf')
            mfma(A, D + 8*(r&1) + 4*hh8, M2C, p, '0')
            mfma(A, D + 8*(r&1) + 4*hh8, M2S, p + 4)
    A(f'v_lshlrev_b32 v10, 4, v{vg}')
    A(f'v_add_u32 v10, {RB}, v10')
    fin(3)
    st(3)
    A('s_waitcnt lgkmcnt(0)')
    A('s_barrier')
    st(8)
    RS = F; AM = F + 4; ZF = T; O = T + 36
    A(f'ds_read_b128 {vr(RS,4)}, v10')
    for tau in range(9):
        if tau == 7: A('s_waitcnt lgkmcnt(14)')
        for rd in range(2):
            if tau < 8: A(f'ds_read_b64_tr_b16 {vr(ZF + tau*4 + 2*rd, 2)}, v{vZr} offset:{(rd*8 + tau)*NP}')
            else: A(f'ds_read_b64_tr_b16 {vr(ZF + tau*4 + 2*rd, 2)}, v{vZx} offset:{rd*8*NP}')
    for j in range(0, 4, 2):
        A(f'v_pk_mul_f32 {vr(SA1+j,2)}, {vr(SA1+j,2)}, {vr(RS+j,2)}')
        A(f'v_pk_mul_f32 {vr(SA2+j,2)}, {vr(SA2+j,2)}, {vr(RS+j,2)}')
    for k in range(4): A(f'v_cvt_pk_bf16_f32 v{AM+k}, v{SA1+2*k}, v{SA1+2*k+1}')
    for tau in range(9):
        if tau % 2 == 0: A(f's_waitcnt lgkmcnt({max(14 - 2*tau, 0)})')
        mfma(A, O + 4*tau, AM, ZF + tau*4, '0')
    for r in range(4):
        b = P + 4*r
        for k in range(4): A(f'v_cvt_pk_bf16_f32 v{b+k}, v{O+8*k+r}, v{O+8*k+4+r}')
        A(f'buffer_store_dwordx4 {vr(b,4)}, v{vU}, s[28:31], s66 offen {smod}')
        if r < 3: A('s_add_u32 s66, s66, 0x40000')
    A('s_cmp_eq_u32 s11, 0')
    A(f's_cbranch_scc1 {name}_c0')
    for r in range(4):
        A(f'buffer_store_short_d16_hi v{P+4*r+3}, v{vE}, s[36:39], s67 offen')
        if r < 3: A('s_add_u32 s67, s67, 4096')
    A(f's_branch {name}_fin')
    A.label(f'{name}_c0')
    for r in range(4):
        A(f'v_cvt_pk_bf16_f32 v{O+32+r}, v{O+32+r}, v{O+32+r}')
        A(f'buffer_store_short v{O+32+r}, v{vE0}, s[36:39], s67 offen')
        if r < 3: A('s_add_u32 s67, s67, 4096')
    A.label(f'{name}_fin')
    st(4)
    A('s_waitcnt vmcnt(0)') if opt.get('stamp') else None
    st(5); st(6, True)
    st.dump(9, 0, 100)
    A.label(f'{name}_end')
    A('s_endpgm')
    return dict(name=name, grid=256, block=256, lds=FA_LDS, vgpr=256)
```

```python
from common import *
from g1 import w_voffs, tr_bases

HS = 16384; WS = 28672; WB0 = 3 * HS
XB = 32768; EB = WB0 + 3 * WS
SLOT = 32768
SGB = EB + 1024
M_LDS = SGB + 512
PX_OFF = 29 * MB
FL_OFF = 38 * MB
GS_OFF = 40 * MB; GST = 3072; GTT = 56 * GST
FL1, FL2, FL3, FL4 = 0, 32768, 65536, 196608
FL_SIZE = 1792 * 128

def spin(A, tag, srdn, soff, vflag, vaddr, scnt, depth=4, gap=2):
    A(f's_mov_b32 s{scnt}, 400000')
    ld = lambda k: A(f'buffer_load_dword v{vflag+k}, v{vaddr}, s[{srdn}:{srdn+3}], s{soff} offen sc1')
    for k in range(depth - 1):
        ld(k); A(f's_sleep {gap}')
    A.label(f'{tag}_spin')
    for k in range(depth):
        ld((k + depth - 1) % depth)
        A(f's_waitcnt vmcnt({depth - 1})')
        A(f'v_cmp_ne_u32 vcc, 1, v{vflag+k}')
        A(f's_cbranch_vccz {tag}_go')
        A(f's_sleep {gap}')
    A(f's_sub_u32 s{scnt}, s{scnt}, 1')
    A(f's_cbranch_scc0 {tag}_spin')
    A.label(f'{tag}_go')

def skipmap(A, dst, src, odd, t):
    if odd:
        A(f'v_cmp_lt_u32 vcc, 255, v{src}')
        A(f'v_add_u32 v{dst}, {1024 + 128}, v{src}')
    else:
        A(f'v_cmp_lt_u32 vcc, 383, v{src}')
        if dst != src: A(f'v_mov_b32 v{dst}, v{src}')
    A(f'v_add_u32 v{t}, 128, v{dst}')
    A(f'v_cndmask_b32 v{dst}, v{dst}, v{t}, vcc')

def g1_decode(A):
    A('s_and_b32 s8, s2, 7')
    A('s_lshr_b32 s9, s2, 3')
    A('s_and_b32 s10, s8, 1')
    A('s_lshl_b32 s10, s10, 3')
    A('s_and_b32 s11, s9, 7')
    A('s_add_u32 s10, s10, s11')
    A('s_lshr_b32 s11, s8, 1')
    A('s_lshl_b32 s11, s11, 2')
    A('s_lshr_b32 s9, s9, 3')
    A('s_add_u32 s11, s11, s9')

def g2_decode(A):
    A('s_and_b32 s8, s2, 1')
    A('s_lshr_b32 s9, s2, 3')
    A('s_and_b32 s10, s2, 6')
    A('s_lshl_b32 s10, s10, 1')
    A('s_and_b32 s11, s9, 3')
    A('s_add_u32 s10, s10, s11')
    A('s_lshr_b32 s11, s9, 2')
    A('s_lshl_b32 s11, s11, 1')
    A('s_add_u32 s11, s11, s8')

def fb_compute(A, name, st, opt):
    A('s_and_b32 s13, s2, 7')
    A('s_lshr_b32 s14, s2, 3')
    A('s_sub_u32 s15, 16, s13')
    A('s_cmp_eq_u32 s13, 0')
    A('s_cselect_b32 s15, 8, s15')
    A('s_bitcmp1_b32 s14, 0')
    A('s_cselect_b32 s10, s15, s13')
    A('s_lshr_b32 s11, s14, 1')
    A('s_sub_u32 s16, 16, s10')
    A('s_and_b32 s16, s16, 15')
    A('s_sub_u32 s17, 15, s11')
    A('s_lshr_b32 s19, s11, 3')
    A('s_cmp_lg_u32 s19, 0')
    A('s_cselect_b32 s16, s16, s10')
    A('s_cselect_b32 s17, s17, s11')
    vn, vg = 2, 3
    A(f'v_and_b32 v{vn}, 15, v1')
    A(f'v_lshrrev_b32 v{vg}, 4, v1')
    A('v_lshrrev_b32 v6, 3, v1')
    A(f'v_and_b32 v7, 1, v{vg}')
    A('v_lshrrev_b32 v8, 1, v1')
    A('v_and_b32 v8, 3, v8')
    A('v_xor_b32 v7, v7, v8')
    A('v_lshlrev_b32 v7, 5, v7')
    A('v_lshl_add_u32 v4, v6, 10, v7')
    A('v_and_b32 v7, 1, v1')
    A('v_lshl_add_u32 v4, v7, 4, v4')
    A('v_xor_b32 v5, 64, v4')
    A(f'v_add_u32 v5, {8192 - 1024}, v5')
    A('s_lshl_b32 s14, s16, 2')
    A('s_add_u32 s14, s14, s12')
    A('s_lshl_b32 s14, s14, 16')
    A('s_lshl_b32 s15, s17, 7')
    A('s_add_u32 s14, s14, s15')
    A('s_lshl_b32 s18, s12, 13')
    A(f'v_xor_b32 v8, v{vg}, v1')
    A('v_and_b32 v8, 7, v8')
    A('v_lshlrev_b32 v8, 4, v8')
    A('v_lshl_add_u32 v6, v6, 15, v8')
    A('v_xor_b32 v7, 64, v6')
    A(f'v_add_u32 v7, {8*32768 - 1024}, v7')
    A('s_lshl_b32 s61, s12, 19')
    A('s_lshl_b32 s15, s10, 11')
    A('s_add_u32 s61, s61, s15')
    A('s_lshl_b32 s15, s11, 7')
    A('s_add_u32 s61, s61, s15')
    A('s_lshl_b32 s62, s12, 12')
    A(f's_add_u32 s62, s62, {XB}')
    A('s_lshl_b32 s63, s10, 3')
    A('s_add_u32 s63, s63, s11')
    A('s_lshl_b32 s63, s63, 9')
    A('s_sub_u32 s63, s63, 512')
    A('s_sub_u32 s15, s11, 1')
    A('s_cmp_lt_u32 s15, 7')
    A('s_cselect_b32 s63, s63, 0x40000000')
    A('s_lshl_b32 s15, s16, 12')
    A('v_mov_b32 v9, s15')
    A('v_mov_b32 v10, s63')
    A('v_cmp_gt_u32 vcc, 32, v1')
    A('v_cndmask_b32 v9, v10, v9, vcc')
    A('v_lshl_add_u32 v9, v1, 4, v9')
    A(f'v_lshlrev_b32 v10, 6, v{vn}')
    A('s_lshl_b32 s15, s12, 8')
    A('s_add_u32 s15, s15, s10')
    A('s_lshl_b32 s15, s15, 2')
    A('s_waitcnt lgkmcnt(0)')
    srd(A, 20, 4, U_OFF, 4 * MB)
    srd(A, 28, 4, E_OFF, 65536)
    for h in range(4):
        A(f's_add_u32 m0, s18, {h*2048}')
        A('s_nop 0')
        A(f'buffer_load_dwordx4 v4, s[20:23], s14 offen lds')
        A(f'buffer_load_dwordx4 v5, s[20:23], s14 offen offset:1024 lds')
        if h < 3: A('s_add_u32 s14, s14, 16384')
    A(f's_mov_b32 m0, {EB}')
    srd(A, 24, 6, 0, 2048 * 2048)
    A('buffer_load_dwordx4 v9, s[28:31], 0 offen lds')
    FR = [16, 48]; EF = 80; B = [112, 144]; ACC = [176, 192]; MA = [208, 212]; VT = 216; VX = 220; X = [224, 232]; VB = 240; MXV = [241, 242]; VH = 243; VE = 244
    srd(A, 40, 4, MX_OFF, 8192)
    for u in range(2):
        A(f's_add_u32 m0, s62, {u*2048}')
        if u: A(f's_add_u32 s61, s61, {4 << 19}')
        else: A('s_nop 0')
        A('buffer_load_dwordx4 v6, s[24:27], s61 offen lds')
        A('buffer_load_dwordx4 v7, s[24:27], s61 offen offset:1024 lds')
    A('s_add_u32 s14, s15, 4096')
    A(f'buffer_load_dword v{MXV[0]}, v10, s[40:43], s15 offen')
    A(f'buffer_load_dword v{MXV[1]}, v10, s[40:43], s14 offen')
    A('s_lshl_b32 s15, s12, 4')
    A(f'v_add_u32 v6, s15, v{vn}')
    A('s_cmp_lg_u32 s10, 0')
    A('s_cselect_b32 s15, -1, 0')
    A('v_sub_u32 v7, s15, v6')
    A('s_cmp_lg_u32 s19, 0')
    A('s_cselect_b64 vcc, -1, 0')
    A('v_cndmask_b32 v6, v6, v7, vcc')
    A('v_and_b32 v6, 127, v6')
    A('v_cvt_f32_u32 v7, v6')
    A('v_mul_f32 v7, 0x3c000000, v7')
    A(f'v_lshlrev_b32 v10, 3, v{vg}')
    A('v_cvt_f32_u32 v10, v10')
    A('v_mul_f32 v10, v10, v7')
    B0 = B[0]
    for j in range(8):
        if j: A('v_add_f32 v10, v10, v7')
        A(f'v_cos_f32 v{12+(j&1)}, v10')
        A(f'v_sin_f32 v{14+(j&1)}, v10')
        if j & 1:
            A(f'v_cvt_pk_bf16_f32 v{B0+j//2}, v12, v13')
            A(f'v_cvt_pk_bf16_f32 v{B0+16+j//2}, v14, v15')
    A('v_and_b32 v8, 1, v6')
    A('v_cmp_eq_u32 vcc, 1, v8')
    A('v_mul_u32_u24 v8, 0x8000, v8')
    A('v_lshl_or_b32 v8, v8, 16, v8')
    A('v_and_b32 v10, 2, v6')
    A('v_mul_u32_u24 v10, 0x4000, v10')
    A('v_lshl_or_b32 v10, v10, 16, v10')
    A('v_xor_b32 v11, v10, v8')
    for k in range(4):
        A(f'v_cndmask_b32 v12, v{B0+k}, v{B0+16+k}, vcc')
        A(f'v_cndmask_b32 v13, v{B0+16+k}, v{B0+k}, vcc')
        A(f'v_xor_b32 v{B0+4+k}, v11, v12')
        A(f'v_xor_b32 v{B0+20+k}, v10, v13')
    for k in range(8):
        A(f'v_xor_b32 v{B0+8+k}, v8, v{B0+k}')
        A(f'v_xor_b32 v{B0+24+k}, v8, v{B0+16+k}')
    A('s_brev_b32 s15, 1')
    for k in range(32): A(f'v_xor_b32 v{B[1]+k}, s15, v{B0+k}')
    A(f'v_lshrrev_b32 v10, 2, v{vn}')
    A(f'v_lshl_add_u32 v10, v{vg}, 3, v10')
    A(f'v_lshrrev_b32 v11, 3, v{vn}')
    A(f'v_and_b32 v12, 1, v{vg}')
    A('v_lshl_add_u32 v11, v12, 1, v11')
    A('v_lshlrev_b32 v11, 5, v11')
    A('v_lshl_add_u32 v10, v10, 7, v11')
    A(f'v_and_b32 v11, 3, v{vn}')
    A(f'v_lshl_add_u32 v{VT}, v11, 3, v10')
    for i in range(1, 4): A(f'v_xor_b32 v{VT+i}, {(2*(i&1) + (i>>1))*32}, v{VT}')
    A(f'v_and_b32 v11, 1, v{vn}')
    A('v_lshlrev_b32 v11, 9, v11')
    A(f'v_lshl_add_u32 v11, v{vg}, 4, v11')
    A(f'v_add_u32 v{VE}, {EB}, v11')
    A('s_mul_i32 s15, s19, 3')
    A(f'v_xor_b32 v10, s15, v{vg}')
    A('v_lshrrev_b32 v11, 1, v10')
    A(f'v_lshrrev_b32 v12, 1, v{vn}')
    A('v_xor_b32 v11, v11, v12')
    A('v_lshlrev_b32 v11, 4, v11')
    A(f'v_lshl_add_u32 v11, v{vn}, 7, v11')
    A('v_and_b32 v12, 1, v10')
    A('v_lshl_add_u32 v11, v12, 3, v11')
    A(f'v_add_u32 v{VX}, s62, v11')
    for i in range(1, 4): A(f'v_xor_b32 v{VX+i}, {32*i}, v{VX}')
    A(f'v_lshl_add_u32 v10, v10, 4, v{vn}')
    A(f'v_lshlrev_b32 v{VH}, 4, v10')
    A('v_add_u32 v10, 48, v1')
    A('v_and_b32 v10, 63, v10')
    A(f'v_lshlrev_b32 v{VB}, 2, v10')
    A(f'v_cmp_eq_u32 s[46:47], 0, v{vg}')
    srd(A, 52, 4, HF_OFF, 4 * MB)
    srd(A, 56, 4, ST_OFF, 2048 * 128)
    A('s_cmp_eq_u32 s11, 0')
    A('s_cselect_b32 s15, 8192, 0')
    srd(A, 32, 4, MU_OFF, 's15')
    srd(A, 36, 4, FL_OFF, FL_SIZE)
    A('s_lshl_b32 s13, s10, 3')
    A('s_add_u32 s13, s13, s12')
    st(1)
    A('s_waitcnt vmcnt(6)')
    A('s_barrier')
    st(2)
    def frag(i, p): return FR[i & 1] + 4 * p
    def rd(i, ps):
        for p in ps:
            for r2 in range(2):
                A(f'ds_read_b64_tr_b16 {vr(frag(i,p)+2*r2,2)}, v{VT+i} offset:{(32*p+4*r2)*128}')
    rd(0, range(4))
    for p in range(8): A(f'ds_read_b128 {vr(EF+4*p,4)}, v{VE} offset:{64*p}')
    nxt = [1]
    def issue_next():
        if nxt[0] < 8: rd(nxt[0] >> 1, range(4*(nxt[0] & 1), 4*(nxt[0] & 1) + 4))
        nxt[0] += 1
    for h in range(8):
        i, half = h >> 1, h & 1
        if h != 1: A('s_waitcnt lgkmcnt(8)')
        for k, p in enumerate(range(4*half, 4*half + 4)):
            for u in range(2): mfma(A, ACC[u] + 4*i, frag(i,p), B[u] + 4*p, '0' if p == 0 else None)
            if k == 0: issue_next()
            if k == 0 and h == 6:
                A('s_waitcnt vmcnt(0)')
                for u in range(2):
                    for k2 in range(4): A(f'ds_read_b64 {vr(X[u]+2*k2,2)}, v{VX+k2} offset:{u*2048}')
        if h == 0:
            A('s_waitcnt lgkmcnt(8)')
            for p in range(8):
                for u in range(2): mfma(A, MA[u], EF + 4*p, B[u] + 4*p, '0' if p == 0 else None)
                if p == 1: issue_next()
            A('s_waitcnt lgkmcnt(8)')
    A('s_waitcnt lgkmcnt(0)')
    A('s_barrier')
    st(3)
    ONE = 4; S = [5, 7]; Q = [6, 8]
    A(f'v_mov_b32 v{ONE}, 0x3f803f80')
    for u in range(2):
        A(f'v_mov_b32 v{S[u]}, 0')
        A(f'v_mov_b32 v{Q[u]}, 0')
        A(f'v_add_f32 v{MA[u]}, v{MA[u]}, v{MXV[u]}')
    A(f'v_lshlrev_b32 v9, 2, v{vn}')
    A('s_lshl_b32 s15, s13, 6')
    A(f'buffer_store_dword v{MA[0]}, v9, s[32:35], s15 offen sc1')
    A(f'buffer_store_dword v{MA[1]}, v9, s[32:35], s15 offen offset:256 sc1')
    A('s_lshl_b32 s14, s13, 15')
    A('s_lshl_b32 s15, s11, 11')
    A('s_add_u32 s14, s14, s15')
    A('s_add_u32 s15, s14, 0x20000')
    def epi(V):
        for u in range(2):
            for pr in range(2):
                o = 16 + 8*u + 4*pr
                for i2 in range(2):
                    i = 2*pr + i2; t = 32 + 4*i2
                    for q in range(2):
                        xr = X[u] + 2*i + q
                        A(f'v_lshlrev_b32 v{t+2*q}, 16, v{xr}')
                        A(f'v_and_b32 v{t+1+2*q}, 0xffff0000, v{xr}')
                    for r in range(4): A(f'v_sub_f32 v{t+r}, v{t+r}, v{MA[u]}')
                    for r in range(4): A(f'v_add_f32 v{t+r}, v{t+r}, v{V[u][i][r]}')
                    for q in range(2):
                        A(f'v_cvt_pk_bf16_f32 v{o+2*i2+q}, v{t+2*q}, v{t+1+2*q}')
                A(f'buffer_store_dwordx4 {vr(o,4)}, v{VH}, s[52:55], s{14+u} offen offset:{pr*1024} sc1')
        for u in range(2):
            for k in range(8):
                o = 16 + 8*u
                A(f'v_dot2_f32_bf16 v{S[u]}, v{o+k}, v{ONE}, v{S[u]}')
                A(f'v_dot2_f32_bf16 v{Q[u]}, v{o+k}, v{o+k}, v{Q[u]}')
    A('s_cmp_lg_u32 s19, 0')
    A(f's_cbranch_scc1 {name}_up')
    for u in range(2):
        for i in range(4): A(f'ds_bpermute_b32 v{48+4*u+i}, v{VB}, v{ACC[u]+4*i+3}')
    A('s_waitcnt lgkmcnt(0)')
    for u in range(2):
        for i in range(4): A(f'v_cndmask_b32 v{56+4*u+i}, v{48+4*u+i}, v{47+4*u+i if i else MA[u]+1}, s[46:47]')
    epi([[[56+4*u+i, ACC[u]+4*i, ACC[u]+4*i+1, ACC[u]+4*i+2] for i in range(4)] for u in range(2)])
    A(f's_branch {name}_join')
    A.label(f'{name}_up')
    epi([[[ACC[u]+4*(3-i)+3-r for r in range(4)] for i in range(4)] for u in range(2)])
    A.label(f'{name}_join')
    A(f'v_lshlrev_b32 v40, 7, v{vn}')
    A(f'v_lshrrev_b32 v41, 1, v{vg}')
    A('v_lshl_add_u32 v40, v41, 2, v40')
    A('s_lshl_b32 s14, s13, 11')
    A('s_lshl_b32 s15, s11, 3')
    A('s_add_u32 s14, s14, s15')
    A('s_add_u32 s15, s14, 8192')
    for u in range(2): A(f'v_permlane32_swap_b32 v{S[u]}, v{Q[u]}')
    for u in range(2): A(f'v_add_f32 v{S[u]}, v{S[u]}, v{Q[u]}')
    for u in range(2): A(f'v_mov_b32 v{Q[u]}, v{S[u]}')
    for u in range(2): A(f'v_permlane16_swap_b32 v{S[u]}, v{Q[u]}')
    for u in range(2): A(f'v_add_f32 v{S[u]}, v{S[u]}, v{Q[u]}')
    for u in range(2): A(f'buffer_store_dword v{S[u]}, v40, s[56:59], s{14+u} offen sc1')

def drained(A):
    A('s_waitcnt vmcnt(0)')
    A('s_barrier')

def g1_compute(A, name, st, opt):
    WB = [8, 36]; ACC = 64; HB = [176, 192]
    vAh, cAh, VW, CW = 2, 3, 208, 216
    g1_decode(A)
    A('s_and_b32 s13, s12, 1')
    A('s_lshr_b32 s14, s12, 1')
    A('s_lshl_b32 s15, s13, 13')
    A(f'v_lshlrev_b32 v{vAh}, 4, v1')
    A(f'v_add_u32 v{vAh}, s15, v{vAh}')
    tr_bases(A, 44, 45, 1, 48)
    A('s_cmp_lg_u32 s14, 0')
    A('s_cselect_b64 vcc, -1, 0')
    def gaddr(dst, lam):
        if lam < 12:
            A(f'v_xor_b32 v{dst}, {32*(lam&3)}, v44')
            A(f'v_add_u32 v{dst}, {WB0 + (lam>>2)*1024}, v{dst}')
        else:
            A(f'v_xor_b32 v{dst}, {32*(lam&1)}, v45')
            A(f'v_add_u32 v{dst}, {WB0 + 6144}, v{dst}')
    for k, (l0, l1) in enumerate(zip([4, 5, 2, 3, 0, 1, 6], [8, 9, 10, 11, 12, 13, 7])):
        gaddr(46, l0); gaddr(47, l1)
        A(f'v_cndmask_b32 v{VW+k}, v46, v47, vcc')
    A(f'v_mov_b32 v{cAh}, v{vAh}')
    for k in range(7): A(f'v_mov_b32 v{CW+k}, v{VW+k}')
    for i in range(112): A(f'v_mov_b32 v{ACC+i}, 0')
    A('s_lshl_b32 s15, s10, 1')
    A('s_add_u32 s15, s15, s13')
    gs = opt.get('gskip', 1); TT = GTT if gs else 112 * 1024
    A('s_mul_i32 s15, s15, %d' % (4 * TT))
    A('s_add_u32 s15, s15, %d' % (GS_OFF if gs else G_OFF))
    srd(A, 20, 4, 's15', 4 * TT)
    A('s_mov_b32 s17, 0')
    A('s_mov_b32 s19, 0')
    A('s_mov_b32 s18, 0')
    BV = 240; H2 = 224
    A('s_load_dwordx2 s[24:25], s[0:1], %d' % KA['b1'])
    A('s_and_b32 s52, s11, 1')
    A('s_mul_i32 s15, s11, 7')
    A('s_add_u32 s16, s15, s52')
    A('s_add_u32 s56, s16, 3')
    A('s_cmp_lg_u32 s14, 0')
    A('s_cselect_b32 s53, 4, 2')
    A('s_cselect_b32 s54, 5, 1')
    A('s_cselect_b32 s55, 6, 0')
    for r in (53, 54, 55): A(f's_add_u32 s{r}, s{r}, s16')
    A('s_and_b32 s52, s52, s14')
    A('s_cmp_lg_u32 s52, 0')
    A('s_cselect_b32 s55, s15, s55')
    for r in (53, 54, 55, 56): A(f's_lshl_b32 s{r+4}, s{r}, 6')
    A('s_lshl_b32 s15, s14, 5')
    A('s_add_u32 s60, s60, s15')
    A('v_and_b32 v44, 15, v1')
    A('v_lshlrev_b32 v44, 1, v44')
    A('s_mov_b32 s26, 7168')
    A('s_mov_b32 s27, 0x20000')
    drained(A)
    st(4)
    A('s_waitcnt lgkmcnt(0)')
    for i in range(7):
        so, off = 57 + i // 2, (32*(i&1) if i < 6 else 0)
        A(f'buffer_load_ushort v{BV+i}, v44, s[24:27], s{so} offen offset:{off}')
    A('s_barrier')
    def reads(s, buf):
        r = []
        for j in range(4):
            r.append(f'ds_read_b128 {vr(HB[buf]+4*j,4)}, v{cAh} offset:{(2*j+s)*1024}')
        for i in range(7):
            for rd in range(2):
                r.append(f'ds_read_b64_tr_b16 {vr(WB[buf]+4*i+2*rd,2)}, v{CW+i} offset:{(2*s + rd) * 7168}')
        return r
    def step(buf, rds, tail=None):
        k = 0; n = 0
        for i in range(7):
            for jj in range(4):
                j = jj if (i & 1) == 0 else 3 - jj
                mfma(A, ACC + (i*4+j)*4, WB[buf] + 4*i, HB[buf] + 4*j)
                if k < len(rds): A(rds[k]); k += 1
                n += 1
                if tail and n - 20 in tail:
                    for t in tail[n - 20]: A(t)
        A('s_waitcnt lgkmcnt(0)')
    A('s_barrier')
    st(8)
    for r in reads(0, 0): A(r)
    A('s_waitcnt lgkmcnt(0)')
    A(f's_branch {name}_g1mid')
    A('.p2align 6')
    A.label(f'{name}_g1loop')
    A('s_barrier')
    step(1, reads(0, 0))
    A.label(f'{name}_g1mid')
    tailB = {-4: [f's_add_u32 s17, s17, {HS}', f's_add_u32 s19, s19, {WS}'], -3: [f's_cmp_eq_u32 s17, {3*HS}', 's_cselect_b32 s17, 0, s17'],
             -2: ['s_cselect_b32 s19, 0, s19', 's_add_u32 s18, s18, 1'], -1: [f'v_add_u32 v{cAh}, s17, v{vAh}', 's_cmp_le_u32 s18, 14']}
    for k in range(7): tailB[k] = [f'v_add_u32 v{CW+k}, s19, v{VW+k}']
    step(0, reads(1, 1), tailB)
    A(f's_cbranch_scc1 {name}_g1loop')
    A('s_barrier')
    gs = opt.get('gskip', 1)
    order = [6, 0, 1, 2, 3, 4, 5]
    SG = 4
    def wset(k): return WB[0] + 8 * (k % 3)
    def wrd(k):
        i = order[k]
        return [f'ds_read_b64_tr_b16 {vr(wset(k)+4*s_+2*rd,2)}, v{CW+i} offset:{(2*s_ + rd) * 7168}' for s_ in range(2) for rd in range(2)]
    BT = 32
    ST4 = [208, 212, 248, 252]
    A('v_and_b32 v2, 15, v1')
    A('s_lshl_b32 s15, s13, 8')
    A(f's_add_u32 s15, s15, {SGB}')
    A('v_lshl_add_u32 v2, v2, 2, s15')
    pre = [f'ds_read_b128 {vr(HB[0]+4*j,4)}, v{cAh} offset:{(2*j)*1024}' for j in range(4)] + wrd(0) + \
          [f'ds_read_b128 {vr(H2+4*j,4)}, v{cAh} offset:{(2*j+1)*1024}' for j in range(4)] + \
          [f'ds_read_b32 v{ST4[j]}, v2 offset:{64*j}' for j in range(4)] + wrd(1)
    setup = []
    for j in range(4):
        for k in range(1, 4): setup.append(f'v_mov_b32 v{ST4[j]+k}, 0')
    for k in range(1, 4): setup.append(f'v_mov_b32 v{BT+k}, 0')
    addr = []
    for r in (53, 54, 55, 56):
        addr += [f's_lshr_b32 s{r}, s{r}, 1', f's_mul_i32 s{r}, s{r}, {GST}'] if gs else [f's_lshl_b32 s{r}, s{r}, 10']
    class L(list):
        def __call__(self, t): self.append(t)
    va = L()
    va('v_and_b32 v4, 15, v1'); va('v_lshlrev_b32 v4, 4, v4'); va('v_and_b32 v6, 16, v1'); va('v_and_b32 v7, 32, v1')
    va('v_lshl_add_u32 v5, v7, 3, v4'); va('v_lshl_add_u32 v4, v6, 5, v5'); va('v_lshrrev_b32 v6, 1, v6'); va('s_lshl_b32 s19, s14, 9')
    va('v_add3_u32 v5, v5, v6, s19')
    if gs:
        skipmap(va, 6, 4, 1, 2); skipmap(va, 4, 4, 0, 2); skipmap(va, 5, 5, 1, 2)
        va('s_cmp_lg_u32 s52, 0'); va('s_cselect_b64 vcc, -1, 0'); va('v_cndmask_b32 v7, v4, v6, vcc')
    else:
        va('v_mov_b32 v6, v4'); va('v_mov_b32 v7, v4')
    def acc(i, j): return ACC + (i*4+j)*4
    def epi_tile(i, j, d):
        a = acc(i, j)
        return [f'v_max_f32 v{a+r}, 0, v{a+r}' for r in range(4)] + \
               [f'v_pk_mul_f32 {vr(a,2)}, {vr(a,2)}, {vr(a,2)}', f'v_pk_mul_f32 {vr(a+2,2)}, {vr(a+2,2)}, {vr(a+2,2)}',
                f'v_cvt_pk_bf16_f32 v{d}, v{a}, v{a+1}', f'v_cvt_pk_bf16_f32 v{d+1}, v{a+2}, v{a+3}']
    late = []
    def epi(i):
        out = []
        for j in range(4):
            if i == 6:
                out += epi_tile(i, j, acc(i, j))
                out.append(f'buffer_store_dwordx2 {vr(acc(i,j),2)}, v5, s[20:23], s56 offen sc1')
                if j < 3: out.append(f's_add_u32 s56, s56, {TT}')
            elif i % 2 == 0:
                out += epi_tile(i, j, acc(i, j))
            else:
                d = acc(i - 1, j)
                out += epi_tile(i, j, d + 2)
                out += [f'v_permlane16_swap_b32 v{d}, v{d+2}', f'v_permlane16_swap_b32 v{d+1}, v{d+3}']
                pp = i // 2
                dst = out if pp < 2 else late
                dst.append(f'buffer_store_dwordx4 {vr(d,4)}, v{[4, 6, 7][pp]}, s[20:23], s{53+pp} offen sc1')
                if j < 3: dst.append(f's_add_u32 s{53+pp}, s{53+pp}, {TT}')
        return out
    for k, i in enumerate(order):
        mf = [(acc(i, j), WB[1] + 4*i, HB[1] + 4*j) for j in range(4)] + [(acc(i, j), wset(k), HB[0] + 4*j) for j in range(4)] + \
             [(acc(i, j), wset(k) + 4, H2 + 4*j) for j in range(4)] + [(acc(i, j), BT, ST4[j]) for j in range(4)]
        if k == 0:
            fill = pre + addr + list(va) + setup
        else:
            fill = (wrd(k + 1) if k + 1 < 7 else []) + epi(order[k - 1])
        per = -(-len(fill) // 15)
        fi = 0
        for n, (d, a, b) in enumerate(mf):
            if k == 0 and n == 4:
                for x in fill[fi:len(pre)]: A(x)
                fi = max(fi, len(pre))
                A('s_waitcnt lgkmcnt(14)')
            if k == 0 and n == 8: A('s_waitcnt lgkmcnt(8)')
            if k == 0 and n == 12:
                for x in fill[fi:]: A(x)
                fi = len(fill)
                A('s_waitcnt vmcnt(0) lgkmcnt(4)')
                A('v_cmp_gt_u32 vcc, 16, v1')
                for j in range(4): A(f'v_cndmask_b32 v{ST4[j]}, 0, v{ST4[j]}, vcc')
            if k > 0 and n == 4: A(f's_waitcnt lgkmcnt({4 if k + 1 < 7 else 0})')
            if n == 10 and k > 0 or (k == 0 and n == 12): A(f'v_mov_b32 v{BT}, v{BV+i}')
            mfma(A, d, a, b)
            if k == 6 and n == 4:
                A('s_barrier')
                st(9)
            for _ in range(per):
                if fi < len(fill): A(fill[fi]); fi += 1
        for x in fill[fi:]: A(x)
    for x in epi(5): A(x)
    return late

def g2_compute(A, name, st, opt, late):
    NS = 4; N2 = opt.get('n2', 8); N1 = (56 - N2) // 2
    SIG = opt.get('sig', 2); POLL = opt.get('poll', 4)
    AO = 8; AX = 40; HB = [72, 88]; WO = [104, 112]; WX = [120, 128]; EP = 136; PR = 224
    vAh, vAw, cAh, cAw, vAw1, cAw1, vL16, vFl = 164, 165, 166, 167, 168, 169, 170, 171
    A('s_load_dwordx2 s[50:51], s[0:1], %d' % KA['b2'])
    A('s_load_dwordx2 s[48:49], s[0:1], %d' % KA['out'])
    A('s_waitcnt vmcnt(0)')
    A('s_barrier')
    st(10)
    g2_decode(A)
    A('s_lshl_b32 s15, s13, 13')
    A(f'v_lshlrev_b32 v{vL16}, 4, v1')
    A(f'v_add_u32 v{vAh}, s15, v{vL16}')
    A('v_lshrrev_b32 v8, 2, v1')
    A('v_and_b32 v8, 3, v8')
    A('v_lshrrev_b32 v9, 4, v1')
    A('v_lshl_add_u32 v8, v9, 3, v8')
    A('v_lshrrev_b32 v10, 3, v1')
    A('v_and_b32 v10, 3, v10')
    A('v_lshlrev_b32 v10, 5, v10')
    A('v_lshl_add_u32 v8, v8, 7, v10')
    A('v_and_b32 v10, 3, v1')
    A(f'v_lshl_add_u32 v{vAw}, v10, 3, v8')
    A('s_lshl_b32 s15, s14, 6')
    A(f'v_xor_b32 v{vAw}, s15, v{vAw}')
    A(f'v_add_u32 v{vAw}, 16384, v{vAw}')
    A(f'v_xor_b32 v{vAw1}, 32, v{vAw}')
    A(f'v_mov_b32 v{cAh}, v{vAh}')
    A(f'v_mov_b32 v{cAw}, v{vAw}')
    A(f'v_mov_b32 v{cAw1}, v{vAw1}')
    A(f'v_mov_b32 v{vFl}, 0')
    for i in range(64): A(f'v_mov_b32 v{AO+i}, 0')
    for k in range(16): A(f'v_mov_b32 v{192+k}, v{128+k}')
    for k in range(4): A(f's_mov_b32 s{64+k}, s{20+k}' if k < 3 else 's_mov_b32 s67, 0x20000')
    A('s_mov_b32 s68, s55')
    TT = GTT if opt.get('gskip', 1) else 112 * 1024
    def late_store(k): return [f'buffer_store_dwordx4 {vr(192+4*k,4)}, v7, s[64:67], s68 offen sc1', f's_add_u32 s68, s68, {TT}']
    A('s_lshl_b32 s15, s10, 1')
    A('s_add_u32 s15, s15, s13')
    A('s_lshl_b32 s16, s15, 17')
    A(f's_add_u32 s16, s16, {HF_OFF}')
    A('s_lshl_b32 s19, s15, 8')
    A(f's_add_u32 s19, s19, {MU_OFF}')
    A('s_lshl_b32 s54, s2, 2')
    A('s_add_u32 s54, s54, s12')
    A('s_xor_b32 s55, s54, 4')
    A('s_lshl_b32 s56, s54, 12')
    A('s_lshl_b32 s57, s55, 12')
    A('s_lshl_b32 s54, s54, 7')
    A('s_lshl_b32 s55, s55, 7')
    A(f's_add_u32 s54, s54, {FL3}')
    A(f's_add_u32 s55, s55, {FL3}')
    A('s_mov_b32 s17, 0')
    A('s_mov_b32 s18, 0')
    A('s_waitcnt lgkmcnt(0)')
    srd(A, 20, 4, 's16', 128 * 1024)
    srd(A, 44, 4, 's19', 256)
    A(f's_add_u32 s19, s19, {R2_OFF - MU_OFF}')
    srd(A, 24, 4, 's19', 256)
    srd(A, 28, 50, 0, 2048)
    srd(A, 32, 48, 0, 2048 * 2048)
    srd(A, 40, 4, PX_OFF, 4 * MB)
    A('s_barrier')
    def reads(s, buf, full):
        r = []
        for i in range(2):
            for rd in range(2):
                r.append(f'ds_read_b64_tr_b16 {vr(WO[buf]+4*i+2*rd,2)}, v{cAw1 if i else cAw} offset:{4096*s + 512*rd}')
        for j in range(4):
            r.append(f'ds_read_b128 {vr(HB[buf]+4*j,4)}, v{cAh} offset:{(2*j+s)*1024}')
        if full:
            for i in range(2):
                for rd in range(2):
                    r.append(f'ds_read_b64_tr_b16 {vr(WX[buf]+4*i+2*rd,2)}, v{cAw1 if i else cAw} offset:{8192 + 4096*s + 512*rd}')
        return r
    ADV = [[f's_add_u32 s17, s17, {SLOT}', f's_cmp_eq_u32 s17, {NS*SLOT}'], ['s_cselect_b32 s17, 0, s17', f'v_add_u32 v{cAh}, s17, v{vAh}'],
           [f'v_add_u32 v{cAw}, s17, v{vAw}'], [f'v_add_u32 v{cAw1}, s17, v{vAw1}']]
    def step(buf, full, rds, tail=(), xfirst=False):
        seq = []
        order = ([(AX, WX)] if full else []) + [(AO, WO)] if xfirst else [(AO, WO)] + ([(AX, WX)] if full else [])
        for acc, W in order:
            for i in range(2):
                for jj in range(4):
                    j = jj if i == 0 else 3 - jj
                    seq.append((acc + (i*4+j)*4, W[buf] + 4*i, HB[buf] + 4*j))
        per = 1 if len(rds) + len(tail) <= len(seq) else 2
        fill = [[x] for x in rds]
        if per == 2: fill = [sum(fill[k:k+2], []) for k in range(0, len(fill), 2)]
        fill += list(tail)
        for n, (d, a, b) in enumerate(seq):
            mfma(A, d, a, b)
            if n < len(fill):
                for x in fill[n]: A(x)
        for f in fill[len(seq):]:
            for x in f: A(x)
        A('s_waitcnt lgkmcnt(0)')
    A('s_barrier')
    st(11)
    for r in reads(0, 0, True): A(r)
    A('s_lshl_b32 s16, s11, 1')
    A('s_add_u32 s16, s16, s14')
    A('s_lshl_b32 s19, s16, 10')
    for j in range(4):
        A(f'buffer_load_dwordx4 {vr(EP+4*j,4)}, v{vL16}, s[20:23], s19 offen sc1')
        if j < 3: A('s_add_u32 s19, s19, 32768')
    A(f'v_and_b32 v{PR}, 15, v1')
    A(f'v_lshlrev_b32 v{PR}, 2, v{PR}')
    for j in range(4):
        A(f'buffer_load_dword v{EP+16+j}, v{PR}, s[24:27], 0 offen offset:{64*j} sc1')
        A(f'buffer_load_dword v{EP+24+j}, v{PR}, s[44:47], 0 offen offset:{64*j} sc1')
    A(f'v_lshrrev_b32 v{PR+1}, 4, v1')
    A(f'v_lshlrev_b32 v{PR+1}, 3, v{PR+1}')
    A('s_lshl_b32 s19, s16, 6')
    A(f'buffer_load_dwordx2 {vr(EP+20,2)}, v{PR+1}, s[28:31], s19 offen')
    A(f'buffer_load_dwordx2 {vr(EP+22,2)}, v{PR+1}, s[28:31], s19 offen offset:32')
    A('s_waitcnt lgkmcnt(0)')
    step(0, True, reads(1, 1, True), ADV[:3] + [ADV[3] + late_store(0)])
    for k in range(1, 4):
        A('s_barrier')
        step(1, True, reads(0, 0, True), [late_store(k)])
        step(0, True, reads(1, 1, True), ADV)
    A('s_mov_b32 s18, 4')
    A('.p2align 6')
    A.label(f'{name}_g2loop')
    A('s_barrier')
    step(1, True, reads(0, 0, True), [['s_waitcnt vmcnt(0)']])
    step(0, True, reads(1, 1, True), ADV[:3] + [ADV[3] + ['s_add_u32 s18, s18, 1', f's_cmp_lt_u32 s18, {N1}']])
    A(f's_cbranch_scc1 {name}_g2loop')
    A('s_mov_b32 s59, 0')
    A('s_mov_b32 s58, 400000')
    def check(tag, sp):
        A('s_cmp_lg_u32 s59, 0')
        A(f's_cbranch_scc1 {name}_done{tag}')
        A.label(f'{name}_poll{tag}')
        A('s_waitcnt vmcnt(0)')
        A(f'v_readfirstlane_b32 s59, v{PR+16}')
        A('s_cmp_eq_u32 s59, 1')
        A(f's_cbranch_scc1 {name}_got{tag}')
        A('s_mov_b32 s59, 0')
        if sp:
            A('s_sub_u32 s58, s58, 1')
            A(f's_cbranch_scc1 {name}_got{tag}')
            A('s_sleep 1')
        A(f'buffer_load_dword v{PR+16}, v{vFl}, s[36:39], s55 offen sc1')
        A(f's_branch {name}_poll{tag}' if sp else f's_branch {name}_done{tag}')
        A.label(f'{name}_got{tag}')
        for k in range(4):
            A(f'buffer_load_dwordx4 {vr(PR+4*k,4)}, v{vL16}, s[40:43], s57 offen offset:{k*1024} sc1')
        A.label(f'{name}_done{tag}')
    for it in range(N2):
        A('s_barrier')
        if it == 0:
            step(1, True, reads(0, 0, False), xfirst=True)
            for k in range(4):
                for c in range(4*k, 4*k+4): A(f'v_cvt_pk_bf16_f32 v{AX+c}, v{AX+2*c}, v{AX+2*c+1}')
                A(f'buffer_store_dwordx4 {vr(AX+4*k,4)}, v{vL16}, s[40:43], s56 offen offset:{k*1024} sc1')
        else:
            if it == SIG:
                A('s_waitcnt vmcnt(0)')
                A(f'v_mov_b32 v{PR}, 1')
                A(f'buffer_store_dword v{PR}, v{vFl}, s[36:39], s54 offen sc1')
            if it == POLL:
                A(f'buffer_load_dword v{PR+16}, v{vFl}, s[36:39], s55 offen sc1')
            if it > POLL: check(it, False)
            step(1, False, reads(0, 0, False))
        step(0, False, reads(1, 1, False), ADV if it < N2 - 1 else ())
    check('L', True)
    step(1, False, [])
    st(12)
    B = 104
    A('v_and_b32 v6, 15, v1')
    A('v_lshlrev_b32 v6, 15, v6')
    A('v_lshrrev_b32 v7, 4, v1')
    A('v_and_b32 v2, 1, v7')
    A('v_lshl_add_u32 v6, v2, 5, v6')
    A('v_lshrrev_b32 v7, 1, v7')
    A('v_lshl_add_u32 v6, v7, 4, v6')
    A('s_lshl_b32 s19, s10, 11')
    A('s_lshl_b32 s15, s13, 21')
    A('s_add_u32 s19, s19, s15')
    A('s_lshl_b32 s16, s16, 6')
    A('s_add_u32 s19, s19, s16')
    A('s_waitcnt vmcnt(0)')
    for i in range(2):
        for q in range(2):
            A(f'v_lshlrev_b32 v{B+4*i+2*q}, 16, v{EP+20+2*i+q}')
            A(f'v_and_b32 v{B+4*i+2*q+1}, 0xffff0000, v{EP+20+2*i+q}')
    T = 40
    for j in range(4):
        d = T + 8*j
        for i in range(2):
            a = AO + (i*4+j)*4; pr = PR + (i*4+j)*2
            for q in range(2):
                hreg = EP + 4*j + 2*i + q
                A(f'v_lshlrev_b32 v{d+4+2*q}, 16, v{hreg}')
                A(f'v_and_b32 v{d+5+2*q}, 0xffff0000, v{hreg}')
                A(f'v_lshlrev_b32 v{72+2*q}, 16, v{pr+q}')
                A(f'v_and_b32 v{73+2*q}, 0xffff0000, v{pr+q}')
            for q in range(2):
                A(f'v_pk_add_f32 {vr(a+2*q,2)}, {vr(a+2*q,2)}, {vr(72+2*q,2)}')
                A(f'v_pk_add_f32 {vr(d+4+2*q,2)}, {vr(d+4+2*q,2)}, {vr(B+4*i+2*q,2)}')
            for r in range(4): A(f'v_add_f32 v{d+4+r}, v{d+4+r}, v{EP+24+j}')
            for r in range(4): A(f'v_fma_f32 v{a+r}, v{a+r}, v{EP+16+j}, v{d+4+r}')
            A(f'v_cvt_pk_bf16_f32 v{d+2*i}, v{a}, v{a+1}')
            A(f'v_cvt_pk_bf16_f32 v{d+2*i+1}, v{a+2}, v{a+3}')
        A(f'v_permlane16_swap_b32 v{d}, v{d+2}')
        A(f'v_permlane16_swap_b32 v{d+1}, v{d+3}')
        A(f'buffer_store_dwordx4 {vr(d,4)}, v6, s[32:35], s19 offen')
        if j < 3: A(f's_add_u32 s19, s19, {16*16*2048}')

def loaders(A, name, opt):
    NS = 4; N2 = opt.get('n2', 8); N1 = (56 - N2) // 2; NT = N1 + N2
    hm = opt.get('hmod', 'sc1')
    lst = Stamper(A, opt.get('stamp') == 1, 1)
    A('s_load_dwordx4 s[64:67], s[0:1], %d' % KA['w1'])
    A('s_load_dwordx2 s[48:49], s[0:1], %d' % KA['w2'])
    A('s_sub_u32 s12, s12, 4')
    g1_decode(A)
    A('s_lshl_b32 s15, s12, 16')
    A('v_lshlrev_b32 v8, 4, v1')
    A('v_add_u32 v8, s15, v8')
    A('v_add_u32 v9, 0x8000, v8')
    A('s_lshl_b32 s15, s12, 4')
    A('s_and_b32 s16, s11, 1')
    w_voffs(A, 10, 1, 15, 16, 4, range(7))
    A('s_lshl_b32 s43, s12, 12')
    A('s_mul_i32 s44, s12, 7168')
    A(f's_add_u32 s44, s44, {WB0}')
    A('s_mov_b32 s41, 0')
    A('s_mov_b32 s42, 0')
    A('s_lshl_b32 s15, s12, 12')
    A('v_lshlrev_b32 v3, 4, v1')
    A('v_add_u32 v3, s15, v3')
    A('v_and_b32 v17, 15, v1')
    A('v_lshlrev_b32 v17, 7, v17')
    A('v_mov_b32 v20, 1')
    A('v_mov_b32 v21, 0')
    A('s_and_b32 s13, s2, 7')
    A('s_sub_u32 s15, 16, s13')
    A('s_cmp_eq_u32 s13, 0')
    A('s_cselect_b32 s15, 8, s15')
    A('s_bitcmp1_b32 s2, 3')
    A('s_cselect_b32 s13, s15, s13')
    A('s_lshl_b32 s13, s13, 4')
    A('s_lshr_b32 s15, s2, 4')
    A('s_add_u32 s13, s13, s15')
    A('s_lshl_b32 s13, s13, 7')
    A('s_lshl_b32 s14, s10, 4')
    A('s_add_u32 s14, s14, s11')
    A('s_lshl_b32 s14, s14, 7')
    A(f's_add_u32 s14, s14, {FL2}')
    A('s_lshl_b32 s15, s10, 18')
    A(f's_add_u32 s15, s15, {HF_OFF}')
    A('s_mul_i32 s16, s11, 448')
    A(f's_sub_u32 s19, {1024*7168}, s16')
    A('s_waitcnt lgkmcnt(0)')
    srd(A, 20, 4, 's15', 256 * 1024)
    srd(A, 24, 64, 's16', 's19')
    A('s_lshl_b32 s15, s10, 14')
    A(f's_add_u32 s15, s15, {ST_OFF}')
    srd(A, 32, 4, 's15', 16384)
    A('s_lshl_b32 s15, s10, 9')
    A(f's_add_u32 s15, s15, {R2_OFF}')
    srd(A, 36, 4, 's15', 512)
    srd(A, 52, 4, FL_OFF, FL_SIZE)
    srd(A, 56, 48, 0, 3584 * 2048)
    A('s_lshl_b32 s60, s2, 2')
    A('s_add_u32 s60, s60, s12')
    A('s_lshl_b32 s60, s60, 9')
    A(f's_mov_b32 s50, {4 << 20}')
    hstep = [2048]
    A('v_mov_b32 v26, v8')
    A('v_mov_b32 v27, v9')
    def issue_h(lds):
        A(f's_add_u32 m0, {lds}, s43')
        A('s_nop 0')
        A(f'buffer_load_dwordx4 v8, s[20:23], s41 offen {hm} lds')
        A(f'buffer_load_dwordx4 v26, s[20:23], s41 offen offset:1024 {hm} lds')
        A('s_add_u32 m0, m0, 2048')
        A('s_nop 0')
        A(f'buffer_load_dwordx4 v9, s[20:23], s41 offen {hm} lds')
        A(f'buffer_load_dwordx4 v27, s[20:23], s41 offen offset:1024 {hm} lds')
        A(f's_add_u32 s41, s41, {hstep[0]}')
    def issue_w(lds, srdn=24, so='s42'):
        A(f's_add_u32 s45, {lds}, s44')
        for q in range(7):
            A(f's_add_u32 m0, s45, {q*1024}')
            A('s_nop 0')
            A(f'buffer_load_dwordx4 v{10+q}, s[{srdn}:{srdn+3}], {so} offen lds')
        if srdn == 24: A(f's_add_u32 s42, s42, {64*7168}')
    def sp2():
        for k in range(4): A(f's_buffer_load_dwordx2 s[62:63], s[56:59], s60 offset:{128*k + 60}')
        A('s_add_u32 s60, s60, s50')
        A('s_sub_u32 s50, 0x80000, s50')
    if opt.get('pf', 0) == 1: line_touch(A, 18, 19, 68, 64, 256 * 14336, 256, 15)
    def handoff(tag, sown, soth, ls=None):
        A('s_barrier')
        if ls: lst(ls)
        A('s_cmp_lg_u32 s12, 0')
        A(f's_cbranch_scc1 {tag}_go')
        A(f'buffer_store_dword v20, v21, s[52:55], s{sown} offen sc1')
        spin(A, tag, 52, soth, 36, 17, 47, opt.get('pdepth', 4), opt.get('pgap', 2))
        if ls: lst(ls + 1)
        A('s_barrier')
    A('s_barrier')
    NW1 = opt.get('nw1', 3)
    for k in range(NW1): issue_w(k * WS)
    if opt.get('pf', 0) == 2: line_touch(A, 18, 19, 68, 64, 256 * 14336, 256, 15)
    sp2(); sp2()
    A('s_lshl_b32 s15, s10, 11')
    A('s_barrier')
    handoff(f'{name}_fl1', 13, 15)
    for k in range(3):
        issue_h(k * HS)
        if k >= NW1: issue_w(k * WS)
    for k in range(4): A(f'buffer_load_dwordx4 {vr(40+4*k,4)}, v3, s[32:35], 0 offen offset:{1024*k} sc1')
    A('s_mov_b32 s40, 0')
    A('s_mov_b32 s46, 0')
    c1 = lambda k: 4 + (7 if k >= NW1 else 0)
    A(f's_waitcnt vmcnt({c1(1) + c1(2) + 4})')
    A('s_barrier')
    A(f's_waitcnt vmcnt({c1(2) + 4})')
    A('s_barrier')
    def issue():
        issue_h('s40'); issue_w('s46')
        A(f's_add_u32 s40, s40, {HS}')
        A(f's_add_u32 s46, s46, {WS}')
        A(f's_cmp_eq_u32 s40, {3*HS}')
        A('s_cselect_b32 s40, 0, s40')
        A('s_cselect_b32 s46, 0, s46')
    issue(); sp2()
    A('s_waitcnt vmcnt(11)')
    A('s_barrier')
    for k in range(4):
        A(f'v_add_f32 v{40+4*k}, v{40+4*k}, v{42+4*k}')
        A(f'v_add_f32 v{41+4*k}, v{41+4*k}, v{43+4*k}')
    issue(); sp2()
    for perm in ('quad_perm:[1,0,3,2]', 'quad_perm:[2,3,0,1]', 'row_half_mirror'):
        for k in range(4):
            for c in range(2):
                A(f'v_add_f32_dpp v{40+4*k+c}, v{40+4*k+c}, v{40+4*k+c} {perm} row_mask:0xf bank_mask:0xf')
    A('v_and_b32 v4, 3, v1')
    for k in range(1, 4):
        A(f'v_cmp_eq_u32 vcc, {k}, v4')
        for c in range(2): A(f'v_cndmask_b32 v{40+c}, v{40+c}, v{40+4*k+c}, vcc')
    ln_finish(A, 40, 41, 22, 23, 24, 47)
    A('v_lshrrev_b32 v28, 16, v23')
    A('v_lshrrev_b32 v5, 3, v1')
    A('v_lshl_add_u32 v2, v4, 3, v5')
    A('s_lshl_b32 s15, s12, 7')
    A(f's_add_u32 s15, s15, {SGB}')
    A('v_lshl_add_u32 v5, v2, 2, s15')
    A('ds_write_b32 v5, v28')
    A('v_mul_f32 v23, v23, v23')
    A('v_rcp_f32 v23, v23')
    A('s_lshl_b32 s15, s12, 7')
    A('v_lshlrev_b32 v5, 2, v2')
    A('s_waitcnt vmcnt(11)')
    A('buffer_store_dword v23, v5, s[36:39], s15 offen sc1')
    A('s_barrier')
    A('s_mov_b32 s18, 5')
    A.label(f'{name}_l1loop')
    issue()
    A('s_cmp_eq_u32 s18, 15')
    A(f's_cbranch_scc1 {name}_nosp')
    A('s_cmp_eq_u32 s18, 13')
    A('s_cselect_b32 s50, 0x80000, s50')
    sp2()
    A.label(f'{name}_nosp')
    A('s_add_u32 s18, s18, 1')
    A('s_cmp_lt_u32 s18, 16')
    A('s_waitcnt vmcnt(11)')
    A('s_barrier')
    A(f's_cbranch_scc1 {name}_l1loop')
    g2_decode(A)
    gs = opt.get('gskip', 1); TT = GTT if gs else 112 * 1024; hstep[0] = GST if gs else 2048
    A(f's_mul_i32 s15, s12, {2*TT}')
    A('v_lshlrev_b32 v8, 4, v1')
    if gs:
        skipmap(A, 26, 8, 1, 4)
        skipmap(A, 8, 8, 0, 4)
        A('v_subrev_u32 v26, 1024, v26')
    else:
        A('v_mov_b32 v26, v8')
    A('v_add_u32 v8, s15, v8')
    A('v_add_u32 v26, s15, v26')
    A(f'v_add_u32 v9, {TT}, v8')
    A(f'v_add_u32 v27, {TT}, v26')
    A('v_lshrrev_b32 v4, 3, v1')
    A('s_lshl_b32 s15, s12, 4')
    A('v_add_u32 v4, s15, v4')
    A('v_lshlrev_b32 v4, 11, v4')
    A('v_and_b32 v5, 1, v1')
    A('v_lshl_add_u32 v4, v5, 4, v4')
    A('v_lshrrev_b32 v5, 4, v1')
    A('v_and_b32 v5, 1, v5')
    A('v_lshrrev_b32 v6, 1, v1')
    A('v_and_b32 v6, 3, v6')
    A('v_xor_b32 v5, v5, v6')
    A('v_lshl_add_u32 v10, v5, 5, v4')
    A('s_lshl_b32 s15, s8, 7')
    A('v_add_u32 v10, s15, v10')
    A('v_xor_b32 v11, 64, v10')
    A(f'v_add_u32 v11, {16384 - 1024}, v11')
    A('v_xor_b32 v12, 128, v10')
    A('v_xor_b32 v13, 192, v10')
    A(f'v_add_u32 v13, {16384 - 1024}, v13')
    A('s_lshl_b32 s44, s12, 11')
    A('s_add_u32 s44, s44, 16384')
    def mask(st_): return sum(1 << x for x in st_)
    E0 = [x for x in range(N1) if x % 7 in (1, 2, 5, 6)]; E1 = [x for x in range(56 - N1, 56) if x % 7 in (1, 2, 5, 6)]
    NE = min(len(E0), len(E1)); E0 = E0[:NE]; E1 = E1[:NE]
    L0 = [x for x in range(N1) if x not in E0]; L1 = [x for x in range(56 - N1, 56) if x not in E1]
    for r, (m0, m1) in ((28, (mask(E0), mask(E1))), (30, (mask(L0), mask(L1)))):
        A('s_cmp_lg_u32 s8, 0')
        for h in range(2):
            A(f's_mov_b32 s{r+h}, {(m0 >> (32*h)) & 0xffffffff}')
            A(f's_mov_b32 s61, {(m1 >> (32*h)) & 0xffffffff}')
            A(f's_cselect_b32 s{r+h}, s61, s{r+h}')
    def nxt(r=28):
        A(f's_ff1_i32_b64 s61, s[{r}:{r+1}]')
        A(f's_bitset0_b64 s[{r}:{r+1}], s61')
    def seth(): A(f's_mul_i32 s41, s61, {hstep[0]}')
    def setw(): A('s_lshl_b32 s42, s61, 17')
    A(f's_mul_i32 s15, s10, {8*TT}')
    A(f's_add_u32 s15, s15, {GS_OFF if gs else G_OFF}')
    A('s_lshr_b32 s16, s11, 1')
    A('s_lshl_b32 s16, s16, 8')
    A(f's_sub_u32 s19, {3584*2048}, s16')
    srd(A, 20, 4, 's15', 8 * TT)
    srd(A, 24, 48, 's16', 's19')
    A('s_waitcnt vmcnt(0) lgkmcnt(0)')
    A('s_barrier')
    def issue_w2(lds, full):
        A(f's_add_u32 m0, {lds}, s44')
        A('s_nop 0')
        A(f'buffer_load_dwordx4 v10, s[24:27], s42 offen lds')
        A(f'buffer_load_dwordx4 v11, s[24:27], s42 offen offset:1024 lds')
        if full:
            A('s_add_u32 m0, m0, 8192')
            A('s_nop 0')
            A(f'buffer_load_dwordx4 v12, s[24:27], s42 offen lds')
            A(f'buffer_load_dwordx4 v13, s[24:27], s42 offen offset:1024 lds')
        A(f's_add_u32 s42, s42, {64*2048}')
    def slotadv():
        A(f's_add_u32 s40, s40, {SLOT}')
        A(f's_cmp_eq_u32 s40, {NS*SLOT}')
        A('s_cselect_b32 s40, 0, s40')
    def issue2(full, r=None):
        if r is not None: nxt(r); seth(); setw()
        issue_h('s40'); issue_w2('s40', full)
        slotadv()
    A('s_lshl_b32 s15, s10, 11')
    A(f's_add_u32 s15, s15, {FL2}')
    prod = lambda E: sorted({(2*x) // 7 for x in E} | {(2*x + 1) // 7 for x in E})
    P0, P1 = prod(E0), prod(E1)
    assert len(P0) == len(P1) and P0 == list(range(P0[0], P0[0] + len(P0))) and P1 == list(range(P1[0], P1[0] + len(P1)))
    A(f's_mul_i32 s61, s8, {P1[0] - P0[0]}')
    A(f's_add_u32 s61, s61, {P0[0]}')
    A(f'v_min_u32 v17, {len(P0) - 1}, v1')
    A('v_add_u32 v17, s61, v17')
    A('v_lshlrev_b32 v17, 7, v17')
    A('s_barrier')
    for k in range(2):
        nxt(); setw(); A(f's_mul_i32 s{32+k}, s61, {hstep[0]}')
        issue_w2(k * SLOT, True)
    lst(1)
    handoff(f'{name}_fl2', 14, 15, 2)
    for k in range(2):
        A(f's_mov_b32 s41, s{32+k}')
        issue_h(k * SLOT)
    A(f's_mov_b32 s40, {2*SLOT}')
    issue2(True, 28); issue2(True, 28)
    A('s_waitcnt vmcnt(20)')
    lst(4)
    A('s_barrier')
    A('s_waitcnt vmcnt(16)')
    A('s_barrier')
    def loop(tag, n, r):
        A(f's_mov_b32 s18, {n}')
        A.label(f'{name}_{tag}')
        issue2(True, r)
        A('s_sub_u32 s18, s18, 1')
        A('s_cmp_lg_u32 s18, 0')
        A('s_waitcnt vmcnt(16)')
        A('s_barrier')
        A(f's_cbranch_scc1 {name}_{tag}')
    loop('l2a', 4, 28)
    A('s_cmp_lg_u32 s12, 0')
    A(f's_cbranch_scc1 {name}_nob')
    A(f's_add_u32 s14, s14, {FL4 - FL2}')
    A('buffer_store_dword v20, v21, s[52:55], s14 offen sc1')
    A.label(f'{name}_nob')
    loop('l2b', NE - NS - 5, 28)
    A(f's_add_u32 s15, s15, {FL4 - FL2}')
    A('v_and_b32 v17, 15, v1')
    A('v_lshlrev_b32 v17, 7, v17')
    A('buffer_load_dword v36, v17, s[52:55], s15 offen sc1')
    issue2(True, 28)
    A('s_waitcnt vmcnt(16)')
    A('s_barrier')
    A('s_waitcnt vmcnt(8)')
    A('v_cmp_ne_u32 vcc, 1, v36')
    A(f's_cbranch_vccz {name}_fl4_go')
    spin(A, f'{name}_fl4', 52, 15, 36, 17, 47, 1, 1)
    loop('l2c', N1 - NE, 30)
    A(f's_mov_b32 s41, {N1*hstep[0]}')
    A(f's_mov_b32 s42, {N1*64*2048}')
    cnt = lambda s: 0 if s >= NT else (8 if s < N1 else 6)
    for j in range(N1 - NS + 1, NT - 1):
        s = j + NS - 1
        if s < NT: issue2(False)
        A(f's_waitcnt vmcnt({sum(cnt(x) for x in range(j + 2, j + NS))})')
        A('s_barrier')
    if opt.get('stamp') == 1:
        lst(5); lst(6, True); lst(8)
        A('s_cmp_lg_u32 s12, 0')
        A(f's_cbranch_scc1 {name}_end')
        lst.dump(9, 1, 60)

def gen_m(A, name='m_kernel', opt=None):
    opt = opt or {}
    khead(A, name)
    st = Stamper(A, opt.get('stamp'), 1)
    st(0); st(7, True)
    A('s_cmp_ge_u32 s2, 256')
    A(f's_cbranch_scc1 {name}_end')
    A('s_load_dwordx2 s[4:5], s[0:1], %d' % KA['ws'])
    A('s_load_dwordx2 s[6:7], s[0:1], %d' % KA['x'])
    A('v_lshrrev_b32 v2, 6, v0')
    A('v_and_b32 v1, 63, v0')
    A('v_readfirstlane_b32 s12, v2')
    A('s_cmp_ge_u32 s12, 4')
    A(f's_cbranch_scc1 {name}_loader')
    fb_compute(A, name, st, opt)
    late = g1_compute(A, name, st, opt)
    g2_compute(A, name, st, opt, late)
    A('s_waitcnt vmcnt(0)') if opt.get('stamp') else None
    st(5); st(6, True)
    st.dump(13, 0, 244)
    A('s_endpgm')
    A.label(f'{name}_loader')
    loaders(A, name, opt)
    A.label(f'{name}_end')
    A('s_endpgm')
    return dict(name=name, grid=256, block=512, lds=M_LDS, vgpr=256)
```

```python
import re

REG_RE = re.compile(r'\b([vas])\[(\d+):(\d+)\]|\b([vas])(\d+)\b|\b(vcc|exec|m0|scc)\b')

def regs_of(tok):
    out = set()
    for m in REG_RE.finditer(tok):
        if m.group(1):
            for i in range(int(m.group(2)), int(m.group(3)) + 1):
                out.add(m.group(1) + str(i))
        elif m.group(4):
            out.add(m.group(4) + m.group(5))
        else:
            out.add(m.group(6))
    return out

TRANS = ('v_exp_f32', 'v_log_f32', 'v_rcp_f32', 'v_rsq_f32', 'v_sqrt_f32', 'v_sin_f32', 'v_cos_f32')

def split_ops(s):
    ops, depth, cur = [], 0, ''
    for ch in s:
        if ch == '[': depth += 1
        if ch == ']': depth -= 1
        if ch == ',' and depth == 0:
            ops.append(cur.strip()); cur = ''
        else:
            cur += ch
    if cur.strip(): ops.append(cur.strip())
    return ops

class Ins:
    def __init__(self, text):
        self.text = text
        t = text.split(';')[0].strip()
        self.is_label = t.endswith(':')
        self.is_dir = t.startswith('.') and not self.is_label
        self.empty = (t == '')
        self.op = ''
        self.w = set(); self.r = set()
        self.kind = 'other'
        self.passes = 0
        self.srcc = set(); self.srcab = set(); self.dpp = False; self.dppsrc = set()
        self.store_data = set(); self.wide = False
        if self.is_label or self.is_dir or self.empty: return
        parts = t.split(None, 1)
        self.op = op = parts[0]
        rest = parts[1] if len(parts) > 1 else ''
        ops = split_ops(rest)
        def R(i): return regs_of(ops[i].split(' ')[0] if not ops[i].startswith(('abs', '-', '|')) else ops[i]) if i < len(ops) else set()
        if op.startswith('v_mfma'):
            self.kind = 'mfma'
            self.passes = 8 if '32x32x16' in op else 4
            self.w = R(0); self.srcab = R(1) | R(2); self.srcc = R(3)
            self.r = self.srcab | self.srcc
        elif op.startswith('v_'):
            self.kind = 'valu'
            if op.startswith('v_cmp'):
                self.w = R(0); self.r = set().union(*[R(i) for i in range(1, len(ops))])
                if op.startswith('v_cmpx'): self.w.add('exec')
            elif op.startswith(('v_permlane16_swap', 'v_permlane32_swap')):
                self.w = R(0) | R(1); self.r = R(0) | R(1)
            elif op.startswith(('v_add_co', 'v_sub_co', 'v_addc_co', 'v_subb_co')):
                self.w = R(0) | R(1); self.r = set().union(*[R(i) for i in range(2, len(ops))])
            else:
                self.w = R(0)
                self.r = set().union(*[R(i) for i in range(1, len(ops))]) if len(ops) > 1 else set()
                if op.startswith(('v_fmac', 'v_dot2c', 'v_writelane', 'v_pk_fmac')): self.r |= R(0)
            if '_dpp' in op or 'row_' in rest or 'quad_perm' in rest:
                self.dpp = True; self.dppsrc = R(1)
                self.r |= R(0)
        elif op.startswith('ds_'):
            self.kind = 'ds'
            if op.startswith(('ds_read', 'ds_bpermute', 'ds_permute', 'ds_swizzle')):
                self.w = R(0); self.r = set().union(*[R(i) for i in range(1, len(ops))])
            else:
                self.r = set().union(*[R(i) for i in range(len(ops))])
        elif op.startswith(('buffer_', 'global_')):
            self.kind = 'vmem'
            lds = bool(re.search(r'\blds\b', rest)) or 'load_lds' in op
            if op in ('buffer_wbl2', 'buffer_inv'):
                pass
            elif 'load' in op and not lds:
                self.w = R(0); self.r = set().union(*[R(i) for i in range(1, len(ops))])
            elif lds:
                self.r = set().union(*[R(i) for i in range(len(ops))]) | {'m0'}
                self.kind = 'vmem_lds'
            else:
                self.r = set().union(*[R(i) for i in range(len(ops))])
                d = R(1) if op.startswith('global_') else R(0)
                if 'atomic' in op and re.search(r'\bsc0\b', rest): self.w = R(0)
                if op.endswith(('x3', 'x4')): self.store_data = d; self.wide = True
        elif op.startswith('s_'):
            self.kind = 'salu'
            if op in ('s_nop', 's_waitcnt', 's_barrier', 's_endpgm', 's_setprio', 's_sleep', 's_branch') or op.startswith('s_cbranch'):
                self.kind = 'ctl'
            elif op.startswith('s_cmp'):
                self.r = set().union(*[R(i) for i in range(len(ops))])
            elif op.startswith(('s_load', 's_buffer_load', 's_memtime', 's_memrealtime')):
                self.kind = 'smem'; self.w = R(0); self.r = set().union(*[R(i) for i in range(1, len(ops))]) if len(ops) > 1 else set()
            else:
                self.w = R(0); self.r = set().union(*[R(i) for i in range(1, len(ops))]) if len(ops) > 1 else set()
                if 'saveexec' in op: self.w.add('exec')
    def states(self):
        if self.is_label or self.is_dir or self.empty: return 0
        if self.op == 's_nop': return int(self.text.split(';')[0].split()[1], 0) + 1
        return 1

def need(p, c):
    n = 0
    vw = {x for x in p.w if x[0] in 'va' and x not in ('vcc',)}
    sw = {x for x in p.w if x[0] == 's' or x in ('vcc',)}
    if p.kind == 'valu':
        if c.kind == 'mfma' and vw & c.r: n = max(n, 2)
        if c.kind == 'valu':
            if c.op.startswith(('v_readlane', 'v_readfirstlane')) and vw & c.r: n = max(n, 1)
            if c.dpp and vw & c.dppsrc: n = max(n, 2)
            if c.op.startswith('v_permlane') and vw & c.r: n = max(n, 2)
            if p.op.startswith(TRANS) and vw & c.r and not c.op.startswith(TRANS): n = max(n, 1)
            if ('sdwa' in p.op or 'op_sel:' in p.text) and vw & (c.r | c.w): n = max(n, 1)
            if sw & c.r:
                n = max(n, 4 if c.op.startswith(('v_readlane', 'v_writelane')) else 2)
            if 'exec' in p.w:
                if c.dpp: n = max(n, 5)
                if c.op.startswith(('v_readlane', 'v_readfirstlane', 'v_writelane', 'v_permlane')): n = max(n, 4)
        if p.op.startswith('v_dot') and vw & (c.r | c.w) and c.kind in ('valu', 'mfma', 'ds', 'vmem'):
            same_c = c.op == p.op and not (vw & regs_of(','.join(split_ops(c.text.split(None, 1)[1])[1:3])))
            if not same_c: n = max(n, 3)
        if c.kind == 'mfma' and 'exec' in p.w: n = max(n, 4)
        if c.kind in ('vmem', 'vmem_lds') and sw & c.r: n = max(n, 5)
        if c.kind in ('salu', 'smem') and sw & c.r: n = max(n, 1)
    if p.kind == 'mfma':
        d = p.w
        big = 8 if p.passes == 4 else 12
        if c.kind == 'mfma':
            if d & c.srcab: n = max(n, big)
            if d & c.srcc and not (d == c.srcc and p.passes == c.passes): n = max(n, big - 2)
            if d & c.w and not (d == c.srcc): n = max(n, big - 2)
        elif c.kind in ('valu', 'ds', 'vmem', 'vmem_lds'):
            if d & (c.r | c.w): n = max(n, big)
        if c.kind == 'valu' and p.srcc & c.w: n = max(n, 3 if p.passes == 4 else 7)
    if p.kind == 'salu' and 'm0' in p.w and c.kind == 'vmem_lds': n = max(n, 1)
    if p.wide and p.store_data & c.w: n = max(n, 2)
    return n

class Asm:
    def __init__(self):
        self.lines = []
    def __call__(self, s, *a):
        for l in s.split('\n'):
            self.lines.append(l.strip() if not l.strip().endswith(':') else l.strip())
    def label(self, n): self.lines.append(n + ':')
    def c(self, s): self.lines.append('; ' + s)
    def padded(self, window=24):
        out = []
        hist = []
        npad = 0
        for l in self.lines:
            ins = Ins(l)
            if not (ins.is_label or ins.is_dir or ins.empty):
                dist = 0; req = 0
                for p in reversed(hist):
                    n = need(p, ins)
                    if n - dist > req: req = n - dist
                    dist += p.states()
                    if dist > window: break
                while req > 0:
                    k = min(req, 16)
                    nop = Ins('s_nop %d' % (k - 1)); out.append(nop.text); hist.append(nop); req -= k; npad += 1
                hist.append(ins)
                if ins.op in ('s_endpgm', 's_branch'): hist = []
            out.append(l)
        return out
    def text(self):
        res = []
        for l in self.padded():
            if l.endswith(':') or l.startswith('.') or l.startswith(';'): res.append(l)
            else: res.append('    ' + l)
        return '\n'.join(res) + '\n'

def vr(b, n=1):
    return 'v%d' % b if n == 1 else 'v[%d:%d]' % (b, b + n - 1)
def sr(b, n=1):
    return 's%d' % b if n == 1 else 's[%d:%d]' % (b, b + n - 1)

class AutoLgkm:
    def __init__(self, A):
        self.A = A; self.pend = []
    def __call__(self, text):
        if '\n' in text:
            for t in text.split('\n'): self(t)
            return
        ins = Ins(text)
        touch = ins.r | ins.w
        last = -1
        for k, d in enumerate(self.pend):
            if d & touch: last = k
        if last >= 0:
            n = len(self.pend) - 1 - last
            self.A(f's_waitcnt lgkmcnt({min(n, 15)})')
            self.pend = self.pend[len(self.pend) - min(n, 15):] if min(n, 15) else []
        self.A(text)
        if ins.kind == 'ds': self.pend.append(set(ins.w))
    def drain(self):
        if self.pend: self.A('s_waitcnt lgkmcnt(0)'); self.pend = []

def weave(main, fill, start=0, per=None):
    n = len(main) - start
    if per is None: per = -(-len(fill) // max(n, 1))
    out = []; fi = 0
    for k, m in enumerate(main):
        out.append(m)
        if k >= start:
            out += fill[fi:fi + per]; fi += per
    return out + fill[fi:]
```

```python
from common import *

XP = 2112; NP = 80; ZP = 1312
ZB = 16 * XP
RB = ZB + 16 * ZP
FA_LDS = RB + 64

def gen_fa(A, name='fa_kernel', opt=None):
    opt = opt or {}
    smod = opt.get('smod', 'sc1'); xmod = opt.get('xmod', 'nt')
    khead(A, name)
    st = Stamper(A, opt.get('stamp'), 0)
    st(0); st(7, True)
    A('s_cmp_ge_u32 s2, 256')
    A(f's_cbranch_scc1 {name}_end')
    A('s_load_dwordx2 s[6:7], s[0:1], %d' % KA['x'])
    A('s_load_dwordx2 s[4:5], s[0:1], %d' % KA['ws'])
    A('s_load_dwordx2 s[8:9], s[0:1], %d' % KA['w1'])
    A('s_load_dwordx2 s[60:61], s[0:1], %d' % KA['w2'])
    if opt.get('cpf', 1):
        A('s_getpc_b64 s[36:37]')
        A(f's_mov_b32 s38, CODE_END-{name}-64')
        A('s_mov_b32 s39, 0x20000')
        A('s_lshr_b32 s13, s2, 3')
        A('s_lshl_b32 s13, s13, 7')
        A('v_lshlrev_b32 v4, 12, v0')
        A('buffer_load_dword v88, v4, s[36:39], s13 offen')
    A('v_lshrrev_b32 v2, 6, v0')
    A('v_and_b32 v1, 63, v0')
    A('s_and_b32 s13, s2, 7')
    A('v_readfirstlane_b32 s12, v2')
    A('s_lshr_b32 s14, s2, 3')
    A('s_and_b32 s11, s14, 1')
    A('s_sub_u32 s15, 16, s13')
    A('s_cmp_eq_u32 s13, 0')
    A('s_cselect_b32 s15, 8, s15')
    A('s_bitcmp1_b32 s14, 1')
    A('s_cselect_b32 s10, s15, s13')
    A('s_lshr_b32 s15, s14, 2')
    A('s_lshl_b32 s15, s15, 4')
    A('s_add_u32 s10, s10, s15')
    A('v_lshrrev_b32 v4, 5, v1')
    A('v_lshlrev_b32 v4, 1, v4')
    A('v_xor_b32 v4, v4, v1')
    A('v_lshlrev_b32 v14, 4, v4')
    A('s_lshl_b32 s13, s12, 9')
    A('s_add_u32 s13, s13, s10')
    A('s_lshl_b32 s63, s13, 2')
    A('s_lshl_b32 s13, s13, 11')
    A(f's_mul_i32 s14, s12, {4*XP}')
    vn, vg = 2, 3
    M1, TC, TS, M2C, M2S, SA1, SA2, SGN, MU, ONES = 16, 24, 40, 56, 60, 64, 68, 72, 73, 76
    GA, SA = 80, 84
    vSt, vTr0, vTr1, vZw, vZr, vU, vE, vE0, vZx, vX0, vZ0 = 108, 90, 91, 92, 93, 94, 95, 96, 97, 98, 99
    F = 112; T = 144; AF = 208; TMP = 112; P = 128; D = 240
    A(f'v_and_b32 v{vn}, 15, v1')
    A(f'v_lshrrev_b32 v{vg}, 4, v1')
    A('s_lshl_b32 s43, s11, 4')
    A('s_add_u32 s43, s43, 1')
    A(f'v_and_b32 v5, 7, v{vn}')
    A('v_add_u32 v5, s43, v5')
    A('v_cvt_f32_u32 v5, v5')
    A(f'v_and_b32 v6, 8, v{vn}')
    A(f'v_cvt_f32_u32 v7, v{vg}')
    A('v_cvt_f32_u32 v8, v6')
    A('v_mul_f32 v9, 0x3d000000, v5')
    A('v_mul_f32 v8, 0x3d000000, v8')
    A('v_mul_f32 v12, 0x41000000, v7')
    A('v_fmac_f32 v8, v12, v9')
    def m1(hh8, th, dl):
        for j in range(8):
            if j: A(f'v_add_f32 v{th}, v{th}, v{dl}')
            A(f'v_cos_f32 v{10 + (j & 1)}, v{th}')
            if j & 1: A(f'v_cvt_pk_bf16_f32 v{M1 + 4*hh8 + j//2}, v10, v11')
    A('v_mov_b32 v13, v8')
    m1(0, 8, 9)
    A('s_waitcnt lgkmcnt(0)')
    srd(A, 20, 6, 0, 2048 * 2048)
    for r in range(4):
        A(f's_add_u32 m0, s14, {r*XP}')
        A('s_nop 0')
        A(f'buffer_load_dwordx4 v14, s[20:23], s13 offen {xmod} lds')
        A(f'buffer_load_dwordx4 v14, s[20:23], s13 offen offset:1024 {xmod} lds')
        if r < 3: A(f's_add_u32 s13, s13, {128*2048}')
    A('v_add_f32 v9, 0x3e800000, v9')
    m1(1, 13, 9)
    A(f'v_lshlrev_b32 v9, 28, v6')
    A(f'v_lshrrev_b32 v10, 16, v9')
    A(f'v_or_b32 v{SGN}, v9, v10')
    A('v_mul_f32 v12, 4.0, v7')
    for hh8 in range(2):
        if hh8: A('v_add_f32 v5, 0x41000000, v5')
        A('v_mul_f32 v13, 0x3a800000, v5')
        A('v_xor_b32 v15, v9, v13')
        A('v_mul_f32 v8, v12, v15')
        for hh in range(2):
            for r in range(4):
                o = 8*hh8 + 4*hh + r
                if r: A('v_add_f32 v8, v8, v15')
                elif hh: A('v_fmac_f32 v8, 0x41500000, v15')
                A(f'v_cos_f32 v{TC+o}, v8')
                A(f'v_sin_f32 v{TS+o}, v8')
    A('s_cmp_eq_u32 s11, 1')
    A('s_cselect_b32 s44, 0xc2000000, 0')
    A(f'v_mov_b32 v{MU}, s44')
    A(f'v_cmp_eq_u32 vcc, 7, v{vn}')
    A(f'v_cndmask_b32 v{MU}, 0, v{MU}, vcc')
    A(f'v_cvt_f32_u32 v5, v{vn}')
    A('v_mul_f32 v13, 0x3d000000, v5')
    A('v_mul_f32 v8, v12, v13')
    for j in range(8):
        if j == 4: A('v_fmac_f32 v8, 0x41500000, v13')
        elif j: A('v_add_f32 v8, v8, v13')
        A(f'v_cos_f32 v{10+(j&1)}, v8')
        A(f'v_sin_f32 v{14+(j&1)}, v8')
        if j & 1:
            A(f'v_cvt_pk_bf16_f32 v{M2C+j//2}, v10, v11')
            A(f'v_cvt_pk_bf16_f32 v{M2S+j//2}, v14, v15')
    for i in range(4): A(f'v_mov_b32 v{ONES+i}, 0x3f803f80')
    A(f'v_lshrrev_b32 v10, 2, v{vn}')
    A(f'v_and_b32 v11, 3, v{vn}')
    A(f'v_mul_u32_u24 v12, {XP}, v10')
    A(f'v_mul_u32_u24 v13, 528, v11')
    A('v_add3_u32 v12, v12, v13, s14')
    A(f'v_and_b32 v13, 1, v{vg}')
    A('v_lshl_add_u32 v12, v13, 8, v12')
    A(f'v_lshrrev_b32 v15, 1, v{vg}')
    A(f'v_lshl_add_u32 v{vSt}, v15, 7, v12')
    for e in range(1, 4): A(f'v_xor_b32 v{vSt+e}, {16*e}, v{vSt}')
    A('v_lshlrev_b32 v12, 6, v10')
    A(f'v_lshl_add_u32 v12, v{vg}, 9, v12')
    A('v_lshl_add_u32 v12, v11, 3, v12')
    A('v_lshl_add_u32 v12, v13, 5, v12')
    A(f'v_add_u32 v{vTr0}, s14, v12')
    A(f'v_xor_b32 v{vTr1}, 32, v{vTr0}')
    A(f's_mul_i32 s15, s12, {4*ZP}')
    A(f's_add_u32 s15, s15, {ZB}')
    A(f'v_mul_u32_u24 v{vZw}, {NP}, v{vn}')
    A(f'v_lshl_add_u32 v{vZw}, v{vg}, 4, v{vZw}')
    A(f'v_add_u32 v{vZw}, s15, v{vZw}')
    A(f'v_mul_u32_u24 v{vX0}, {XP}, v10')
    A(f'v_add_u32 v{vX0}, s14, v{vX0}')
    A(f'v_mul_u32_u24 v{vZ0}, {ZP}, v10')
    A('v_and_b32 v12, 1, v1')
    A(f'v_mul_u32_u24 v12, {8*NP}, v12')
    A(f'v_add3_u32 v{vZ0}, v{vZ0}, v12, s15')
    A('v_cmp_eq_u32 s[46:47], 1, v11')
    A('v_cmp_eq_u32 s[48:49], 2, v11')
    A('v_cmp_eq_u32 s[50:51], 3, v11')
    A(f'v_cmp_eq_u32 s[52:53], v10, v{vg}')
    A('s_cmp_eq_u32 s11, 0')
    A('s_cselect_b32 s16, 8192, 0')
    srd(A, 32, 4, MX_OFF, 's16')
    srd(A, 28, 4, U_OFF, 4 * MB)
    srd(A, 36, 4, E_OFF, 65536)
    A('s_lshr_b32 s65, s12, 1')
    A('s_cmp_lg_u32 s65, 0')
    A('s_cselect_b32 s44, 0.25, 0')
    A(f'v_lshlrev_b32 v8, 9, v{vg}')
    A('v_add_u32 v8, s10, v8')
    A('v_cvt_f32_u32 v8, v8')
    A('v_mul_f32 v13, 0x3a000000, v5')
    A('v_fma_f32 v8, v8, v13, s44')
    A('v_mul_f32 v13, 0x3d800000, v5')
    for j in range(4):
        if j: A('v_add_f32 v8, v8, v13')
        A(f'v_cos_f32 v{SA1+j}, v8')
        A(f'v_sin_f32 v{SA2+j}, v8')
    A(f'v_lshl_add_u32 v12, v{vg}, 2, v10')
    A(f'v_mul_u32_u24 v12, {ZP}, v12')
    A(f'v_add_u32 v{vZx}, {ZB + 64}, v12')
    A('v_lshl_add_u32 v12, v11, 3, v12')
    A('s_and_b32 s15, s12, 1')
    A('s_lshl_b32 s16, s15, 5')
    A(f's_add_u32 s16, s16, {ZB}')
    A(f'v_add_u32 v{vZr}, s16, v12')
    A(f'v_lshlrev_b32 v{vU}, 20, v{vg}')
    A('s_lshl_b32 s16, s15, 2')
    A('s_add_u32 s16, s16, s10')
    A('v_add_u32 v12, s16, v10')
    A('v_and_b32 v12, 7, v12')
    A(f'v_lshl_add_u32 v{vU}, v12, 7, v{vU}')
    A(f'v_lshl_add_u32 v{vU}, v11, 4, v{vU}')
    A('s_lshl_b32 s66, s65, 17')
    A('s_lshl_b32 s16, s10, 10')
    A('s_add_u32 s66, s66, s16')
    A('s_lshl_b32 s16, s11, 6')
    A('s_add_u32 s66, s66, s16')
    A('s_lshl_b32 s16, s15, 2')
    A('s_add_u32 s16, s16, 1')
    A('v_add_u32 v12, s16, v10')
    A(f'v_lshlrev_b32 v{vE0}, 14, v{vg}')
    A(f'v_lshl_add_u32 v{vE}, v12, 9, v{vE0}')
    A('v_cmp_gt_u32 vcc, 8, v12')
    A('s_and_b64 vcc, vcc, s[50:51]')
    A(f'v_cndmask_b32 v{vE}, 4.0, v{vE}, vcc')
    A(f'v_or_b32 v12, s15, v{vn}')
    A('v_cmp_eq_u32 vcc, 0, v12')
    A(f'v_cndmask_b32 v{vE0}, 4.0, v{vE0}, vcc')
    A('s_lshl_b32 s67, s65, 7')
    A('s_add_u32 s67, s67, s10')
    A('s_lshl_b32 s67, s67, 1')
    srd(A, 24, 4, 38 * MB, 1792 * 128)
    A('v_lshlrev_b32 v12, 7, v0')
    A('v_cmp_gt_u32 vcc, 7, v0')
    A('v_cndmask_b32 v12, 4.0, v12, vcc')
    A('s_mul_i32 s15, s2, 896')
    A('v_mov_b32 v13, 0')
    A('buffer_store_dword v13, v12, s[24:27], s15 offen')
    npf = 2
    srd(A, 24, 60, 0, 3584 * 2048)
    A('v_lshrrev_b32 v12, 4, v0')
    A('s_mul_i32 s15, s2, 14')
    A('v_add_u32 v12, s15, v12')
    A('v_and_b32 v13, 8, v0')
    A('v_and_b32 v14, 7, v0')
    A('v_lshlrev_b32 v14, 4, v14')
    A('v_lshl_add_u32 v14, v12, 11, v14')
    A('v_add_u32 v12, v12, v13')
    A('v_and_b32 v12, 15, v12')
    A('v_lshl_add_u32 v104, v12, 7, v14')
    A('v_lshl_add_u32 v14, v13, 7, v14')
    A('v_cmp_gt_u32 vcc, 224, v0')
    A('v_cndmask_b32 v14, 4.0, v14, vcc')
    A('v_cndmask_b32 v104, 4.0, v104, vcc')
    A('buffer_load_dwordx4 v[100:103], v14, s[24:27], 0 offen offset:384')
    if opt.get('pf', 1):
        srd(A, 24, 8, 0, 1024 * 7168)
        A('v_lshlrev_b32 v12, 7, v0')
        nl = 224 if opt.get('pf', 1) == 1 else 112
        A(f'v_cmp_gt_u32 vcc, {nl}, v0')
        A('v_cndmask_b32 v12, 4.0, v12, vcc')
        A(f's_mul_i32 s15, s2, {nl*128}')
        A('buffer_load_dword v89, v12, s[24:27], s15 offen')
        npf += 1
    st(1)
    A(f's_waitcnt vmcnt({npf})')
    st(2)
    E = AutoLgkm(A)
    def mf(d, a, b, z): return f'v_mfma_f32_16x16x32_bf16 {vr(d,4)}, {vr(a,4)}, {vr(b,4)}, {"0" if z else vr(d,4)}'
    def s1rd(r): return [f'ds_read_b64_tr_b16 {vr(AF+8*r+4*hh+2*rd,2)}, v{vTr0 if hh == 0 else vTr1} offset:{r*XP + 256*rd}' for hh in range(2) for rd in range(2)]
    frd = [f'ds_read_b128 {vr(F+4*i,4)}, v{vSt + (i&3)} offset:{64*(i>>2)}' for i in range(8)] + [f'ds_read_u16 v{vX0}, v{vX0}']
    def s1(r): return [mf(T + 16*r + 8*hh8 + 4*hh, AF + 8*r + 4*hh, M1 + 4*hh8, True) for hh8 in range(2) for hh in range(2)]
    for x in s1rd(0) + s1rd(1) + s1rd(2) + frd[:3]: E(x)
    for x in weave(s1(0) + s1(1), s1rd(3) + frd[3:], per=2) + s1(2) + s1(3): E(x)
    D0 = AF + 16; D1 = D
    def tw(r, hh8, tm, p):
        t = T + 16*r + 8*hh8; d = (D1 if hh8 else D0) + 4*r
        return [f'v_pk_mul_f32 {vr(tm+k,2)}, {vr(t+k,2)}, {vr(TC+8*hh8+k,2)}' for k in range(0, 8, 2)] + \
               [f'v_fmac_f32_dpp v{tm+k}, v{t+k}, v{TS+8*hh8+k} row_ror:8 row_mask:0xf bank_mask:0xf' for k in range(8)] + \
               [f'v_cvt_pk_bf16_f32 v{p+k}, v{tm+2*k}, v{tm+2*k+1}' for k in range(4)] + [mf(d, M2C, p, True)] + \
               [f'v_xor_b32_dpp v{p+4+k}, v{p+k}, v{SGN} row_ror:8 row_mask:0xf bank_mask:0xf' for k in range(4)], mf(d, M2S, p + 4, False)
    stm = [x for i in range(8) for x in (mf(SA, ONES, F+4*i, i == 0), mf(GA, F+4*i, F+4*i, i == 0))]
    t0 = []
    for r in range(4):
        a, b = tw(r, 0, AF, AF + 8)
        t0 += a[:6] + ([pb] if r else []) + a[6:]
        pb = b
    mean = [f'v_add_f32_dpp v11, v{SA}, v{SA} quad_perm:[1,0,3,2] row_mask:0xf bank_mask:0xf', f'v_cndmask_b32 v10, v{GA}, v{GA+1}, s[46:47]',
            f'v_lshlrev_b32 v{vX0}, 16, v{vX0}', 'v_add_f32_dpp v11, v11, v11 quad_perm:[2,3,0,1] row_mask:0xf bank_mask:0xf',
            f'v_cndmask_b32 v10, v10, v{GA+2}, s[48:49]', 'v_mul_f32 v15, 0x3a800000, v11', f'v_cndmask_b32 v10, v10, v{GA+3}, s[50:51]'] + \
           [f'v_readlane_b32 s{56+r}, v15, {4*r}' for r in range(4)]
    for x in weave(stm, t0[:48], per=3) + weave(t0[48:], mean, start=6, per=1) + [pb]: E(x)
    class L(list):
        def __call__(self, t): self.append(t)
    sg = L()
    sg('v_add_f32_dpp v10, v10, v10 quad_perm:[1,0,3,2] row_mask:0xf bank_mask:0xf')
    sg(f'v_sub_f32 v{vX0}, v{vX0}, v15')
    sg('v_add_f32_dpp v10, v10, v10 quad_perm:[2,3,0,1] row_mask:0xf bank_mask:0xf')
    ln_finish(sg, 11, 10, 12, 13, 14, 45)
    sg('v_rcp_f32 v13, v13')
    sg(f'v_lshlrev_b32 v12, 9, v{vg}'); sg(f'v_lshlrev_b32 v10, 2, v{vg}'); sg('s_lshl_b32 s15, s12, 4'); sg(f's_add_u32 s15, s15, {RB}')
    sg('v_add_u32 v10, s15, v10')
    def fin(r):
        return [f'v_cvt_pk_bf16_f32 v{D0+4*r+k}, v{D0+4*r+k}, v{D1+4*r+k}' for k in range(4)] + [f'ds_write_b128 v{vZw}, {vr(D0+4*r,4)} offset:{r*ZP}']
    t1 = []
    for r in range(4):
        a, b = tw(r, 1, TMP, P + 8*(r & 1))
        pre = [f'v_mul_f32 v8, s{56+r}, v{MU}', 'v_mov_b32 v9, v8'] + [f'v_pk_add_f32 {vr(T+16*r+8+k,2)}, {vr(T+16*r+8+k,2)}, v[8:9]' for k in range(0, 8, 2)]
        t1 += pre[:2] + ([pb] if r else []) + pre[2:] + a[:12] + (fin(r - 1) if r else []) + a[12:]
        pb = b
    for x in weave(t1[:2*len(sg)], list(sg), per=1)[:]: E(x)
    A('s_mov_b64 exec, s[52:53]')
    E('ds_write_b32 v10, v13')
    A('buffer_store_dword v15, v12, s[32:35], s63 offen')
    A('s_mov_b64 exec, -1')
    x0 = ['v_mov_b32 v11, 0', f'v_cvt_pk_bf16_f32 v10, v{vX0}, v11', 's_mov_b32 vcc_lo, 0x55555555', 's_mov_b32 vcc_hi, 0x55555555',
          'v_cndmask_b32 v10, 0, v10, vcc', f'ds_write_b64 v{vZ0}, v[10:11] offset:64']
    for x in weave(t1[2*len(sg):], x0, per=1): E(x)
    E(pb)
    A(f'v_lshlrev_b32 v10, 4, v{vg}')
    A(f'v_add_u32 v10, {RB}, v10')
    for x in fin(3): E(x)
    st(3)
    A('s_waitcnt lgkmcnt(0)')
    A('s_barrier')
    st(8)
    RS = F; AM = F + 4; ZF = T; O = T + 36
    A(f'ds_read_b128 {vr(RS,4)}, v10')
    for tau in range(9):
        if tau == 7: A('s_waitcnt lgkmcnt(14)')
        for rd in range(2):
            if tau < 8: A(f'ds_read_b64_tr_b16 {vr(ZF + tau*4 + 2*rd, 2)}, v{vZr} offset:{(rd*8 + tau)*NP}')
            else: A(f'ds_read_b64_tr_b16 {vr(ZF + tau*4 + 2*rd, 2)}, v{vZx} offset:{rd*8*NP}')
    for j in range(0, 4, 2):
        A(f'v_pk_mul_f32 {vr(SA1+j,2)}, {vr(SA1+j,2)}, {vr(RS+j,2)}')
        A(f'v_pk_mul_f32 {vr(SA2+j,2)}, {vr(SA2+j,2)}, {vr(RS+j,2)}')
    for k in range(4): A(f'v_cvt_pk_bf16_f32 v{AM+k}, v{SA1+2*k}, v{SA1+2*k+1}')
    for tau in range(9):
        if tau % 2 == 0: A(f's_waitcnt lgkmcnt({max(14 - 2*tau, 0)})')
        mfma(A, O + 4*tau, AM, ZF + tau*4, '0')
    for r in range(4):
        b = P + 4*r
        for k in range(4): A(f'v_cvt_pk_bf16_f32 v{b+k}, v{O+8*k+r}, v{O+8*k+4+r}')
        A(f'buffer_store_dwordx4 {vr(b,4)}, v{vU}, s[28:31], s66 offen {smod}')
        if r < 3: A('s_add_u32 s66, s66, 0x40000')
    srd(A, 24, 4, WC_OFF, 3584 * 2048)
    A(f's_waitcnt vmcnt({6 if opt.get("pf", 1) else 5})')
    A('buffer_store_dwordx4 v[100:103], v104, s[24:27], 0 offen')
    A('s_cmp_eq_u32 s11, 0')
    A(f's_cbranch_scc1 {name}_c0')
    for r in range(4):
        A(f'buffer_store_short_d16_hi v{P+4*r+3}, v{vE}, s[36:39], s67 offen')
        if r < 3: A('s_add_u32 s67, s67, 4096')
    A(f's_branch {name}_fin')
    A.label(f'{name}_c0')
    for r in range(4):
        A(f'v_cvt_pk_bf16_f32 v{O+32+r}, v{O+32+r}, v{O+32+r}')
        A(f'buffer_store_short v{O+32+r}, v{vE0}, s[36:39], s67 offen')
        if r < 3: A('s_add_u32 s67, s67, 4096')
    A.label(f'{name}_fin')
    st(4)
    A('s_waitcnt vmcnt(0)') if opt.get('stamp') else None
    st(5); st(6, True)
    st.dump(9, 0, 108)
    A.label(f'{name}_end')
    A('s_endpgm')
    return dict(name=name, grid=256, block=256, lds=FA_LDS, vgpr=256)
```

```python
from common import *
from g1 import w_voffs, tr_bases

HS = 16384; WS = 28672; WB0 = 3 * HS
XB = 32768; EB = WB0 + 3 * WS
SLOT = 32768
SGB = EB + 1024
SYB = SGB + 512
R1, D1, R2W, D2 = 0, 64, 128, 384
M_LDS = SYB + 768
FULL = 0x01010101
PX_OFF = 29 * MB
FL_OFF = 38 * MB
GS_OFF = 40 * MB; GST = 3072; GTT = 56 * GST
FL1, FL2, FL3, FL4 = 0, 32768, 65536, 196608
FL_SIZE = 1792 * 128

def spin(A, tag, srdn, soff, vflag, vaddr, scnt, depth=4, gap=2):
    A(f's_mov_b32 s{scnt}, 400000')
    ld = lambda k: A(f'buffer_load_dword v{vflag+k}, v{vaddr}, s[{srdn}:{srdn+3}], s{soff} offen sc1')
    for k in range(depth - 1):
        ld(k); A(f's_sleep {gap}')
    A.label(f'{tag}_spin')
    for k in range(depth):
        ld((k + depth - 1) % depth)
        A(f's_waitcnt vmcnt({depth - 1})')
        A(f'v_cmp_ne_u32 vcc, 1, v{vflag+k}')
        A(f's_cbranch_vccz {tag}_go')
        A(f's_sleep {gap}')
    A(f's_sub_u32 s{scnt}, s{scnt}, 1')
    A(f's_cbranch_scc0 {tag}_spin')
    A.label(f'{tag}_go')

def skipmap(A, dst, src, odd, t):
    if odd:
        A(f'v_cmp_lt_u32 vcc, 255, v{src}')
        A(f'v_add_u32 v{dst}, {1024 + 128}, v{src}')
    else:
        A(f'v_cmp_lt_u32 vcc, 383, v{src}')
        if dst != src: A(f'v_mov_b32 v{dst}, v{src}')
    A(f'v_add_u32 v{t}, 128, v{dst}')
    A(f'v_cndmask_b32 v{dst}, v{dst}, v{t}, vcc')

def g1_decode(A):
    A('s_and_b32 s8, s2, 7')
    A('s_lshr_b32 s9, s2, 3')
    A('s_and_b32 s10, s8, 1')
    A('s_lshl_b32 s10, s10, 3')
    A('s_and_b32 s11, s9, 7')
    A('s_add_u32 s10, s10, s11')
    A('s_lshr_b32 s11, s8, 1')
    A('s_lshl_b32 s11, s11, 2')
    A('s_lshr_b32 s9, s9, 3')
    A('s_add_u32 s11, s11, s9')

def g2_decode(A):
    A('s_and_b32 s8, s2, 1')
    A('s_lshr_b32 s9, s2, 3')
    A('s_and_b32 s10, s2, 6')
    A('s_lshl_b32 s10, s10, 1')
    A('s_and_b32 s11, s9, 3')
    A('s_add_u32 s10, s10, s11')
    A('s_lshr_b32 s11, s9, 2')
    A('s_lshl_b32 s11, s11, 1')
    A('s_add_u32 s11, s11, s8')

def fb_compute(A, name, st, opt):
    A('s_and_b32 s13, s2, 7')
    A('s_lshr_b32 s14, s2, 3')
    A('s_sub_u32 s15, 16, s13')
    A('s_cmp_eq_u32 s13, 0')
    A('s_cselect_b32 s15, 8, s15')
    A('s_bitcmp1_b32 s14, 0')
    A('s_cselect_b32 s10, s15, s13')
    A('s_lshr_b32 s11, s14, 1')
    A('s_sub_u32 s16, 16, s10')
    A('s_and_b32 s16, s16, 15')
    A('s_sub_u32 s17, 15, s11')
    A('s_lshr_b32 s19, s11, 3')
    A('s_cmp_lg_u32 s19, 0')
    A('s_cselect_b32 s16, s16, s10')
    A('s_cselect_b32 s17, s17, s11')
    vn, vg = 2, 3
    A(f'v_and_b32 v{vn}, 15, v1')
    A(f'v_lshrrev_b32 v{vg}, 4, v1')
    A('v_lshrrev_b32 v6, 3, v1')
    A(f'v_and_b32 v7, 1, v{vg}')
    A('v_lshrrev_b32 v8, 1, v1')
    A('v_and_b32 v8, 3, v8')
    A('v_xor_b32 v7, v7, v8')
    A('v_lshlrev_b32 v7, 5, v7')
    A('v_lshl_add_u32 v4, v6, 10, v7')
    A('v_and_b32 v7, 1, v1')
    A('v_lshl_add_u32 v4, v7, 4, v4')
    A('v_add_u32 v7, s17, v6')
    A('v_and_b32 v7, 7, v7')
    A('v_lshl_add_u32 v4, v7, 7, v4')
    A('v_xor_b32 v5, 64, v4')
    A(f'v_add_u32 v5, {8192 - 1024}, v5')
    A('s_lshl_b32 s14, s16, 2')
    A('s_add_u32 s14, s14, s12')
    A('s_lshl_b32 s14, s14, 16')
    A('s_lshl_b32 s18, s12, 13')
    A(f'v_xor_b32 v8, v{vg}, v1')
    A('v_and_b32 v8, 7, v8')
    A('v_lshlrev_b32 v8, 4, v8')
    A('v_lshl_add_u32 v6, v6, 15, v8')
    A('v_xor_b32 v7, 64, v6')
    A(f'v_add_u32 v7, {8*32768 - 1024}, v7')
    A('s_lshl_b32 s61, s12, 19')
    A('s_lshl_b32 s15, s10, 11')
    A('s_add_u32 s61, s61, s15')
    A('s_lshl_b32 s15, s11, 7')
    A('s_add_u32 s61, s61, s15')
    A('s_lshl_b32 s62, s12, 12')
    A(f's_add_u32 s62, s62, {XB}')
    A('s_lshl_b32 s63, s10, 3')
    A('s_add_u32 s63, s63, s11')
    A('s_lshl_b32 s63, s63, 9')
    A('s_sub_u32 s63, s63, 512')
    A('s_sub_u32 s15, s11, 1')
    A('s_cmp_lt_u32 s15, 7')
    A('s_cselect_b32 s63, s63, 0x40000000')
    A('s_lshl_b32 s15, s16, 12')
    A('v_mov_b32 v9, s15')
    A('v_mov_b32 v10, s63')
    A('v_cmp_gt_u32 vcc, 32, v1')
    A('v_cndmask_b32 v9, v10, v9, vcc')
    A('v_lshl_add_u32 v9, v1, 4, v9')
    A(f'v_lshlrev_b32 v10, 6, v{vn}')
    A('s_lshl_b32 s15, s12, 8')
    A('s_add_u32 s15, s15, s10')
    A('s_lshl_b32 s15, s15, 2')
    A('s_waitcnt lgkmcnt(0)')
    srd(A, 20, 4, U_OFF, 4 * MB)
    srd(A, 28, 4, E_OFF, 65536)
    for h in range(4):
        A(f's_add_u32 m0, s18, {h*2048}')
        A('s_nop 0')
        A(f'buffer_load_dwordx4 v4, s[20:23], s14 offen lds')
        A(f'buffer_load_dwordx4 v5, s[20:23], s14 offen offset:1024 lds')
        if h < 3: A('s_add_u32 s14, s14, 16384')
    A(f's_mov_b32 m0, {EB}')
    srd(A, 24, 6, 0, 2048 * 2048)
    A('buffer_load_dwordx4 v9, s[28:31], 0 offen lds')
    FR = [16, 48]; EF = 80; B = [112, 144]; ACC = [176, 192]; MA = [208, 212]; VT = 216; VX = 220; X = [224, 232]; VB = 240; MXV = [241, 242]; VH = 243; VE = 244
    srd(A, 40, 4, MX_OFF, 8192)
    for u in range(2):
        A(f's_add_u32 m0, s62, {u*2048}')
        if u: A(f's_add_u32 s61, s61, {4 << 19}')
        else: A('s_nop 0')
        A('buffer_load_dwordx4 v6, s[24:27], s61 offen lds')
        A('buffer_load_dwordx4 v7, s[24:27], s61 offen offset:1024 lds')
    A('s_add_u32 s14, s15, 4096')
    A(f'buffer_load_dword v{MXV[0]}, v10, s[40:43], s15 offen')
    A(f'buffer_load_dword v{MXV[1]}, v10, s[40:43], s14 offen')
    A('s_lshl_b32 s15, s12, 4')
    A(f'v_add_u32 v6, s15, v{vn}')
    A('s_cmp_lg_u32 s10, 0')
    A('s_cselect_b32 s15, -1, 0')
    A('v_sub_u32 v7, s15, v6')
    A('s_cmp_lg_u32 s19, 0')
    A('s_cselect_b64 vcc, -1, 0')
    A('v_cndmask_b32 v6, v6, v7, vcc')
    A('v_and_b32 v6, 127, v6')
    A('v_cvt_f32_u32 v7, v6')
    A('v_mul_f32 v7, 0x3c000000, v7')
    A(f'v_lshlrev_b32 v10, 3, v{vg}')
    A('v_cvt_f32_u32 v10, v10')
    A('v_mul_f32 v10, v10, v7')
    B0 = B[0]
    for j in range(8):
        if j: A('v_add_f32 v10, v10, v7')
        A(f'v_cos_f32 v{12+(j&1)}, v10')
        A(f'v_sin_f32 v{14+(j&1)}, v10')
        if j & 1:
            A(f'v_cvt_pk_bf16_f32 v{B0+j//2}, v12, v13')
            A(f'v_cvt_pk_bf16_f32 v{B0+16+j//2}, v14, v15')
    A('v_and_b32 v8, 1, v6')
    A('v_cmp_eq_u32 vcc, 1, v8')
    A('v_mul_u32_u24 v8, 0x8000, v8')
    A('v_lshl_or_b32 v8, v8, 16, v8')
    A('v_and_b32 v10, 2, v6')
    A('v_mul_u32_u24 v10, 0x4000, v10')
    A('v_lshl_or_b32 v10, v10, 16, v10')
    A('v_xor_b32 v11, v10, v8')
    for k in range(4):
        A(f'v_cndmask_b32 v12, v{B0+k}, v{B0+16+k}, vcc')
        A(f'v_cndmask_b32 v13, v{B0+16+k}, v{B0+k}, vcc')
        A(f'v_xor_b32 v{B0+4+k}, v11, v12')
        A(f'v_xor_b32 v{B0+20+k}, v10, v13')
    for k in range(8):
        A(f'v_xor_b32 v{B0+8+k}, v8, v{B0+k}')
        A(f'v_xor_b32 v{B0+24+k}, v8, v{B0+16+k}')
    A('s_brev_b32 s15, 1')
    for k in range(32): A(f'v_xor_b32 v{B[1]+k}, s15, v{B0+k}')
    A(f'v_lshrrev_b32 v10, 2, v{vn}')
    A(f'v_lshl_add_u32 v10, v{vg}, 3, v10')
    A(f'v_lshrrev_b32 v11, 3, v{vn}')
    A(f'v_and_b32 v12, 1, v{vg}')
    A('v_lshl_add_u32 v11, v12, 1, v11')
    A('v_lshlrev_b32 v11, 5, v11')
    A('v_lshl_add_u32 v10, v10, 7, v11')
    A(f'v_and_b32 v11, 3, v{vn}')
    A(f'v_lshl_add_u32 v{VT}, v11, 3, v10')
    A('s_mul_i32 s15, s19, 96')
    A(f'v_xor_b32 v{VT}, s15, v{VT}')
    for i in range(1, 4): A(f'v_xor_b32 v{VT+i}, {(2*(i&1) + (i>>1))*32}, v{VT}')
    A(f'v_and_b32 v11, 1, v{vn}')
    A('v_lshlrev_b32 v11, 9, v11')
    A(f'v_lshl_add_u32 v11, v{vg}, 4, v11')
    A(f'v_add_u32 v{VE}, {EB}, v11')
    A('s_mul_i32 s15, s19, 3')
    A(f'v_xor_b32 v10, s15, v{vg}')
    A('v_lshrrev_b32 v11, 1, v10')
    A(f'v_lshrrev_b32 v12, 1, v{vn}')
    A('v_xor_b32 v11, v11, v12')
    A('v_lshlrev_b32 v11, 4, v11')
    A(f'v_lshl_add_u32 v11, v{vn}, 7, v11')
    A('v_and_b32 v12, 1, v10')
    A('v_lshl_add_u32 v11, v12, 3, v11')
    A(f'v_add_u32 v{VX}, s62, v11')
    for i in range(1, 4): A(f'v_xor_b32 v{VX+i}, {32*i}, v{VX}')
    A(f'v_lshl_add_u32 v10, v10, 4, v{vn}')
    A(f'v_lshlrev_b32 v{VH}, 4, v10')
    A('v_add_u32 v10, 48, v1')
    A('v_and_b32 v10, 63, v10')
    A(f'v_lshlrev_b32 v{VB}, 2, v10')
    A(f'v_cmp_eq_u32 s[46:47], 0, v{vg}')
    srd(A, 52, 4, HF_OFF, 4 * MB)
    srd(A, 56, 4, ST_OFF, 2048 * 128)
    A('s_cmp_eq_u32 s11, 0')
    A('s_cselect_b32 s15, 8192, 0')
    srd(A, 32, 4, MU_OFF, 's15')
    srd(A, 36, 4, FL_OFF, FL_SIZE)
    A('s_lshl_b32 s13, s10, 3')
    A('s_add_u32 s13, s13, s12')
    st(1)
    A('s_waitcnt vmcnt(6)')
    A('s_barrier')
    st(2)
    def frag(i, p): return FR[i & 1] + 4 * p
    def rd(h):
        i = h >> 1
        return [f'ds_read_b64_tr_b16 {vr(frag(i,p)+2*r2,2)}, v{VT+i} offset:{(32*p+4*r2)*128}' for p in range(4*(h & 1), 4*(h & 1) + 4) for r2 in range(2)]
    def mf(d, a, b, z): return f'v_mfma_f32_16x16x32_bf16 {vr(d,4)}, {vr(a,4)}, {vr(b,4)}, {"0" if z else vr(d,4)}'
    def half(h): return [mf(ACC[u] + 4*(h >> 1), frag(h >> 1, p), B[u] + 4*p, p == 0) for p in range(4*(h & 1), 4*(h & 1) + 4) for u in range(2)]
    ONE = 4; S = [5, 7]; Q = [6, 8]; TM = EF; OUT = EF + 16
    E = AutoLgkm(A)
    for x in rd(0) + [f'ds_read_b128 {vr(EF+4*p,4)}, v{VE} offset:{64*p}' for p in range(8)]: E(x)
    for x in weave(half(0), rd(1), per=2): E(x)
    for x in weave([mf(MA[u], EF + 4*p, B[u] + 4*p, p == 0) for p in range(8) for u in range(2)], rd(2), per=1): E(x)
    misc = [f'v_mov_b32 v{ONE}, 0x3f803f80'] + [f'v_mov_b32 v{r}, 0' for r in S + Q] + [f'v_lshlrev_b32 v9, 2, v{vn}', 's_lshl_b32 s60, s13, 6',
            's_lshl_b32 s14, s13, 15', 's_lshl_b32 s15, s11, 11', 's_add_u32 s14, s14, s15', 's_add_u32 s15, s14, 0x20000']
    for x in weave(half(1), rd(3) + misc, per=3): E(x)
    xr = ['s_waitcnt vmcnt(0)'] + [f'ds_read_b64 {vr(X[u]+2*k2,2)}, v{VX+k2} offset:{u*2048}' for k2 in range(4) for u in range(2)]
    for x in weave(half(2), rd(4) + xr, per=3): E(x)
    for x in weave(half(3), rd(5) + [f'v_add_f32 v{MA[u]}, v{MA[u]}, v{MXV[u]}' for u in range(2)], per=2): E(x)
    def epi(V, pr):
        out = []
        for u in range(2):
            o = OUT + 8*u + 4*pr
            for i2 in range(2):
                i = 2*pr + i2; t = TM + 8*u + 4*i2
                for q in range(2):
                    r_ = X[u] + 2*i + q
                    out += [f'v_lshlrev_b32 v{t+2*q}, 16, v{r_}', f'v_and_b32 v{t+1+2*q}, 0xffff0000, v{r_}']
                out += [f'v_sub_f32 v{t+r}, v{t+r}, v{MA[u]}' for r in range(4)]
                out += [f'v_add_f32 v{t+r}, v{t+r}, v{V[u][i][r]}' for r in range(4)]
                out += [f'v_cvt_pk_bf16_f32 v{o+2*i2+q}, v{t+2*q}, v{t+1+2*q}' for q in range(2)]
            out.append(f'buffer_store_dwordx4 {vr(o,4)}, v{VH}, s[52:55], s{14+u} offen offset:{pr*1024} sc1')
        return out
    def dots(pr): return [x for u in range(2) for k in range(4) for x in
                          (f'v_dot2_f32_bf16 v{S[u]}, v{OUT+8*u+4*pr+k}, v{ONE}, v{S[u]}', f'v_dot2_f32_bf16 v{Q[u]}, v{OUT+8*u+4*pr+k}, v{OUT+8*u+4*pr+k}, v{Q[u]}')]
    RP = 10; SH = 248
    A('s_cmp_lg_u32 s19, 0')
    A(f's_cbranch_scc1 {name}_up')
    pend0 = list(E.pend)
    for lower in (1, 0):
        if not lower:
            A.label(f'{name}_up'); A('s_nop 7'); E.pend = list(pend0)
        if lower:
            V = [[[SH+4*u+i, ACC[u]+4*i, ACC[u]+4*i+1, ACC[u]+4*i+2] for i in range(4)] for u in range(2)]
            def rot(i): return [f'ds_bpermute_b32 v{RP+3*u+(i%3)}, v{VB}, v{ACC[u]+4*i+3}' for u in range(2)]
            def sel(i): return [f'v_cndmask_b32 v{SH+4*u+i}, v{RP+3*u+(i%3)}, v{RP+3*u+((i-1)%3) if i else MA[u]+1}, s[46:47]' for u in range(2)]
        else:
            V = [[[ACC[u]+4*i+3-r for r in range(4)] for i in range(4)] for u in range(2)]
            rot = sel = lambda i: []
        for x in weave(half(4), rot(0) + rd(6) + rot(1), per=2): E(x)
        e0 = sel(0) + sel(1) + epi(V, 0)
        for x in weave(half(5), rd(7) + e0[:16], per=3): E(x)
        for x in weave(half(6) + half(7), rot(2) + e0[16:] + dots(0), start=2, per=4): E(x)
        for x in rot(3) + sel(2) + sel(3) + epi(V, 1) + dots(1): E(x)
        E.drain()
        if lower: A(f's_branch {name}_join')
    A.label(f'{name}_join')
    st(3)
    A(f'buffer_store_dword v{MA[0]}, v9, s[32:35], s60 offen sc1')
    A(f'buffer_store_dword v{MA[1]}, v9, s[32:35], s60 offen offset:256 sc1')
    A(f'v_lshlrev_b32 v40, 7, v{vn}')
    A(f'v_lshrrev_b32 v41, 1, v{vg}')
    A('v_lshl_add_u32 v40, v41, 2, v40')
    A('s_lshl_b32 s14, s13, 11')
    A('s_lshl_b32 s15, s11, 3')
    A('s_add_u32 s14, s14, s15')
    A('s_add_u32 s15, s14, 8192')
    for u in range(2): A(f'v_permlane32_swap_b32 v{S[u]}, v{Q[u]}')
    for u in range(2): A(f'v_add_f32 v{S[u]}, v{S[u]}, v{Q[u]}')
    for u in range(2): A(f'v_mov_b32 v{Q[u]}, v{S[u]}')
    for u in range(2): A(f'v_permlane16_swap_b32 v{S[u]}, v{Q[u]}')
    for u in range(2): A(f'v_add_f32 v{S[u]}, v{S[u]}, v{Q[u]}')
    for u in range(2): A(f'buffer_store_dword v{S[u]}, v40, s[56:59], s{14+u} offen sc1')

def drained(A):
    A('s_waitcnt vmcnt(0)')
    A('s_barrier')

def g1_compute(A, name, st, opt):
    WB = [8, 36]; ACC = 64; HB = [176, 192]
    vAh, cAh, VW, CW = 2, 3, 208, 216
    vSy, vOne, vRd = 4, 5, 6
    nb = opt.get('nobar', 0)
    g1_decode(A)
    A('s_and_b32 s13, s12, 1')
    A('s_lshr_b32 s14, s12, 1')
    A('s_lshl_b32 s15, s13, 13')
    A(f'v_lshlrev_b32 v{vAh}, 4, v1')
    A(f'v_add_u32 v{vAh}, s15, v{vAh}')
    tr_bases(A, 44, 45, 1, 48)
    A('s_cmp_lg_u32 s14, 0')
    A('s_cselect_b64 vcc, -1, 0')
    def gaddr(dst, lam):
        if lam < 12:
            A(f'v_xor_b32 v{dst}, {32*(lam&3)}, v44')
            A(f'v_add_u32 v{dst}, {WB0 + (lam>>2)*1024}, v{dst}')
        else:
            A(f'v_xor_b32 v{dst}, {32*(lam&1)}, v45')
            A(f'v_add_u32 v{dst}, {WB0 + 6144}, v{dst}')
    for k, (l0, l1) in enumerate(zip([4, 5, 2, 3, 0, 1, 6], [8, 9, 10, 11, 12, 13, 7])):
        gaddr(46, l0); gaddr(47, l1)
        A(f'v_cndmask_b32 v{VW+k}, v46, v47, vcc')
    A(f'v_mov_b32 v{cAh}, v{vAh}')
    for k in range(7): A(f'v_mov_b32 v{CW+k}, v{VW+k}')
    for i in range(112): A(f'v_mov_b32 v{ACC+i}, 0')
    A('s_lshl_b32 s15, s10, 1')
    A('s_add_u32 s15, s15, s13')
    gs = opt.get('gskip', 1); TT = GTT if gs else 112 * 1024
    A('s_mul_i32 s15, s15, %d' % (4 * TT))
    A('s_add_u32 s15, s15, %d' % (GS_OFF if gs else G_OFF))
    srd(A, 20, 4, 's15', 4 * TT)
    A('s_mov_b32 s17, 0')
    A('s_mov_b32 s19, 0')
    A('s_mov_b32 s18, 0')
    BV = 240; H2 = 224
    A('s_load_dwordx2 s[24:25], s[0:1], %d' % KA['b1'])
    A('s_and_b32 s52, s11, 1')
    A('s_mul_i32 s15, s11, 7')
    A('s_add_u32 s16, s15, s52')
    A('s_add_u32 s56, s16, 3')
    A('s_cmp_lg_u32 s14, 0')
    A('s_cselect_b32 s53, 4, 2')
    A('s_cselect_b32 s54, 5, 1')
    A('s_cselect_b32 s55, 6, 0')
    for r in (53, 54, 55): A(f's_add_u32 s{r}, s{r}, s16')
    A('s_and_b32 s52, s52, s14')
    A('s_cmp_lg_u32 s52, 0')
    A('s_cselect_b32 s55, s15, s55')
    for r in (53, 54, 55, 56): A(f's_lshl_b32 s{r+4}, s{r}, 6')
    A('s_lshl_b32 s15, s14, 5')
    A('s_add_u32 s60, s60, s15')
    A(f's_add_u32 s15, s12, {SYB}')
    A(f'v_mov_b32 v{vSy}, {SYB}')
    A(f'v_mov_b32 v7, s15')
    A(f'v_mov_b32 v{vOne}, 1')
    A('v_and_b32 v44, 15, v1')
    A('v_lshlrev_b32 v44, 1, v44')
    A('s_mov_b32 s26, 7168')
    A('s_mov_b32 s27, 0x20000')
    drained(A)
    st(4)
    A('s_waitcnt lgkmcnt(0)')
    for i in range(7):
        so, off = 57 + i // 2, (32*(i&1) if i < 6 else 0)
        A(f'buffer_load_ushort v{BV+i}, v44, s[24:27], s{so} offen offset:{off}')
    A('s_barrier')
    def reads(s, buf):
        r = []
        for j in range(4):
            r.append(f'ds_read_b128 {vr(HB[buf]+4*j,4)}, v{cAh} offset:{(2*j+s)*1024}')
        for i in range(7):
            for rd in range(2):
                r.append(f'ds_read_b64_tr_b16 {vr(WB[buf]+4*i+2*rd,2)}, v{CW+i} offset:{(2*s + rd) * 7168}')
        return r
    def step(buf, rds, tail=None, nowait=False):
        k = 0; n = 0
        for i in range(7):
            for jj in range(4):
                j = jj if (i & 1) == 0 else 3 - jj
                mfma(A, ACC + (i*4+j)*4, WB[buf] + 4*i, HB[buf] + 4*j)
                if k < len(rds): A(rds[k]); k += 1
                n += 1
                if tail and n - 20 in tail:
                    for t in tail[n - 20]: A(t)
        if not nowait: A('s_waitcnt lgkmcnt(0)')
    A('s_barrier')
    st(8)
    for r in reads(0, 0): A(r)
    A('s_waitcnt lgkmcnt(0)')
    A(f's_branch {name}_g1mid')
    if nb:
        A.label(f'{name}_g1slow')
        A(f'ds_read_b32 v{vRd}, v{vSy} offset:{R1}')
        A('s_waitcnt lgkmcnt(0)')
        A(f'v_readfirstlane_b32 s16, v{vRd}')
        A(f's_cmp_lg_u32 s16, {FULL}')
        A(f's_cbranch_scc1 {name}_g1slow')
        A(f's_cmp_le_u32 s18, 14')
        A(f's_cbranch_scc0 {name}_g1tail')
    A('.p2align 6')
    A.label(f'{name}_g1loop')
    if not nb: A('s_barrier')
    step(1, reads(0, 0))
    A.label(f'{name}_g1mid')
    tailB = {-4: [f's_add_u32 s17, s17, {HS}', f's_add_u32 s19, s19, {WS}'], -3: [f's_cmp_eq_u32 s17, {3*HS}', 's_cselect_b32 s17, 0, s17'],
             -2: ['s_cselect_b32 s19, 0, s19', 's_add_u32 s18, s18, 1'], -1: [f'v_add_u32 v{cAh}, s17, v{vAh}', 's_cmp_le_u32 s18, 14']}
    for k in range(7): tailB[k] = [f'v_add_u32 v{CW+k}, s19, v{VW+k}']
    if nb:
        tailB[-1] = [f'v_add_u32 v{cAh}, s17, v{vAh}', f'ds_read_b32 v{vRd}, v{vSy} offset:{R1 + 4}']
        tailB[6] += ['s_waitcnt lgkmcnt(0)', f'ds_write_b8 v7, v{vOne} offset:{D1}']
        tailB[7] = [f'v_readfirstlane_b32 s16, v{vRd}', f'v_add_u32 v{vSy}, 4, v{vSy}', 'v_add_u32 v7, 4, v7']
        tailB[8] = [f's_cmp_lg_u32 s16, {FULL}', f's_cbranch_scc1 {name}_g1slow', 's_cmp_le_u32 s18, 14']
    step(0, reads(1, 1), tailB, nowait=nb)
    A(f's_cbranch_scc1 {name}_g1loop')
    A.label(f'{name}_g1tail')
    if not nb: A('s_barrier')
    gs = opt.get('gskip', 1)
    order = [6, 0, 1, 2, 3, 4, 5]
    SG = 4
    def wset(k): return WB[0] + 8 * (k % 3)
    def wrd(k):
        i = order[k]
        return [f'ds_read_b64_tr_b16 {vr(wset(k)+4*s_+2*rd,2)}, v{CW+i} offset:{(2*s_ + rd) * 7168}' for s_ in range(2) for rd in range(2)]
    BT = 32
    ST4 = [208, 212, 248, 252]
    A('v_and_b32 v2, 15, v1')
    A('s_lshl_b32 s15, s13, 8')
    A(f's_add_u32 s15, s15, {SGB}')
    A('v_lshl_add_u32 v2, v2, 2, s15')
    pre = [f'ds_read_b128 {vr(HB[0]+4*j,4)}, v{cAh} offset:{(2*j)*1024}' for j in range(4)] + wrd(0) + \
          [f'ds_read_b128 {vr(H2+4*j,4)}, v{cAh} offset:{(2*j+1)*1024}' for j in range(4)] + \
          [f'ds_read_b32 v{ST4[j]}, v2 offset:{64*j}' for j in range(4)] + wrd(1)
    setup = []
    for j in range(4):
        for k in range(1, 4): setup.append(f'v_mov_b32 v{ST4[j]+k}, 0')
    for k in range(1, 4): setup.append(f'v_mov_b32 v{BT+k}, 0')
    addr = []
    for r in (53, 54, 55, 56):
        addr += [f's_lshr_b32 s{r}, s{r}, 1', f's_mul_i32 s{r}, s{r}, {GST}'] if gs else [f's_lshl_b32 s{r}, s{r}, 10']
    class L(list):
        def __call__(self, t): self.append(t)
    va = L()
    va('v_and_b32 v4, 15, v1'); va('v_lshlrev_b32 v4, 4, v4'); va('v_and_b32 v6, 16, v1'); va('v_and_b32 v7, 32, v1')
    va('v_lshl_add_u32 v5, v7, 3, v4'); va('v_lshl_add_u32 v4, v6, 5, v5'); va('v_lshrrev_b32 v6, 1, v6'); va('s_lshl_b32 s19, s14, 9')
    va('v_add3_u32 v5, v5, v6, s19')
    if gs:
        skipmap(va, 6, 4, 1, 2); skipmap(va, 4, 4, 0, 2); skipmap(va, 5, 5, 1, 2)
        va('s_cmp_lg_u32 s52, 0'); va('s_cselect_b64 vcc, -1, 0'); va('v_cndmask_b32 v7, v4, v6, vcc')
    else:
        va('v_mov_b32 v6, v4'); va('v_mov_b32 v7, v4')
    def acc(i, j): return ACC + (i*4+j)*4
    def epi_tile(i, j, d):
        a = acc(i, j)
        return [f'v_max_f32 v{a+r}, 0, v{a+r}' for r in range(4)] + \
               [f'v_pk_mul_f32 {vr(a,2)}, {vr(a,2)}, {vr(a,2)}', f'v_pk_mul_f32 {vr(a+2,2)}, {vr(a+2,2)}, {vr(a+2,2)}',
                f'v_cvt_pk_bf16_f32 v{d}, v{a}, v{a+1}', f'v_cvt_pk_bf16_f32 v{d+1}, v{a+2}, v{a+3}']
    late = []
    def epi(i):
        out = []
        for j in range(4):
            if i == 6:
                out += epi_tile(i, j, acc(i, j))
                out.append(f'buffer_store_dwordx2 {vr(acc(i,j),2)}, v5, s[20:23], s56 offen sc1')
                if j < 3: out.append(f's_add_u32 s56, s56, {TT}')
            elif i % 2 == 0:
                out += epi_tile(i, j, acc(i, j))
            else:
                d = acc(i - 1, j)
                out += epi_tile(i, j, d + 2)
                out += [f'v_permlane16_swap_b32 v{d}, v{d+2}', f'v_permlane16_swap_b32 v{d+1}, v{d+3}']
                pp = i // 2
                dst = out if pp < 2 else late
                dst.append(f'buffer_store_dwordx4 {vr(d,4)}, v{[4, 6, 7][pp]}, s[20:23], s{53+pp} offen sc1')
                if j < 3: dst.append(f's_add_u32 s{53+pp}, s{53+pp}, {TT}')
        return out
    for k, i in enumerate(order):
        mf = [(acc(i, j), WB[1] + 4*i, HB[1] + 4*j) for j in range(4)] + [(acc(i, j), wset(k), HB[0] + 4*j) for j in range(4)] + \
             [(acc(i, j), wset(k) + 4, H2 + 4*j) for j in range(4)] + [(acc(i, j), BT, ST4[j]) for j in range(4)]
        if k == 0:
            fill = pre + addr + list(va) + setup
        else:
            fill = (wrd(k + 1) if k + 1 < 7 else []) + epi(order[k - 1])
        per = -(-len(fill) // 15)
        fi = 0
        for n, (d, a, b) in enumerate(mf):
            if k == 0 and n == 4:
                for x in fill[fi:len(pre)]: A(x)
                fi = max(fi, len(pre))
                A('s_waitcnt lgkmcnt(14)')
            if k == 0 and n == 8: A('s_waitcnt lgkmcnt(8)')
            if k == 0 and n == 12:
                for x in fill[fi:]: A(x)
                fi = len(fill)
                A('s_waitcnt vmcnt(0) lgkmcnt(4)')
                A('v_cmp_gt_u32 vcc, 16, v1')
                for j in range(4): A(f'v_cndmask_b32 v{ST4[j]}, 0, v{ST4[j]}, vcc')
            if k > 0 and n == 4: A(f's_waitcnt lgkmcnt({4 if k + 1 < 7 else 0})')
            if n == 10 and k > 0 or (k == 0 and n == 12): A(f'v_mov_b32 v{BT}, v{BV+i}')
            mfma(A, d, a, b)
            if k == 6 and n == 4:
                A('s_barrier')
                st(9)
            for _ in range(per):
                if fi < len(fill): A(fill[fi]); fi += 1
        for x in fill[fi:]: A(x)
    for x in epi(5): A(x)
    return late

def g2_compute(A, name, st, opt, late):
    NS = 4; N2 = opt.get('n2', 8); N1 = (56 - N2) // 2
    SIG = opt.get('sig', 2); POLL = opt.get('poll', 4)
    AO = 8; AX = 40; HB = [72, 88]; WO = [104, 112]; WX = [120, 128]; EP = 136; PR = 224
    vAh, vAw, cAh, cAw, vAw1, cAw1, vL16, vFl = 164, 165, 166, 167, 168, 169, 170, 171
    A('s_load_dwordx2 s[50:51], s[0:1], %d' % KA['b2'])
    A('s_load_dwordx2 s[48:49], s[0:1], %d' % KA['out'])
    A('s_waitcnt vmcnt(0)')
    A('s_barrier')
    st(10)
    g2_decode(A)
    A('s_lshl_b32 s15, s13, 13')
    A(f'v_lshlrev_b32 v{vL16}, 4, v1')
    A(f'v_add_u32 v{vAh}, s15, v{vL16}')
    A('v_lshrrev_b32 v8, 2, v1')
    A('v_and_b32 v8, 3, v8')
    A('v_lshrrev_b32 v9, 4, v1')
    A('v_lshl_add_u32 v8, v9, 3, v8')
    A('v_lshrrev_b32 v10, 3, v1')
    A('v_and_b32 v10, 3, v10')
    A('v_lshlrev_b32 v10, 5, v10')
    A('v_lshl_add_u32 v8, v8, 7, v10')
    A('v_and_b32 v10, 3, v1')
    A(f'v_lshl_add_u32 v{vAw}, v10, 3, v8')
    A('s_lshl_b32 s15, s14, 6')
    A(f'v_xor_b32 v{vAw}, s15, v{vAw}')
    A(f'v_add_u32 v{vAw}, 16384, v{vAw}')
    A(f'v_xor_b32 v{vAw1}, 32, v{vAw}')
    A(f'v_mov_b32 v{cAh}, v{vAh}')
    A(f'v_mov_b32 v{cAw}, v{vAw}')
    A(f'v_mov_b32 v{cAw1}, v{vAw1}')
    A(f'v_mov_b32 v{vFl}, 0')
    for i in range(64): A(f'v_mov_b32 v{AO+i}, 0')
    for k in range(16): A(f'v_mov_b32 v{192+k}, v{128+k}')
    for k in range(4): A(f's_mov_b32 s{64+k}, s{20+k}' if k < 3 else 's_mov_b32 s67, 0x20000')
    A('s_mov_b32 s68, s55')
    TT = GTT if opt.get('gskip', 1) else 112 * 1024
    def late_store(k): return [f'buffer_store_dwordx4 {vr(192+4*k,4)}, v7, s[64:67], s68 offen sc1', f's_add_u32 s68, s68, {TT}']
    A('s_lshl_b32 s15, s10, 1')
    A('s_add_u32 s15, s15, s13')
    A('s_lshl_b32 s16, s15, 17')
    A(f's_add_u32 s16, s16, {HF_OFF}')
    A('s_lshl_b32 s19, s15, 8')
    A(f's_add_u32 s19, s19, {MU_OFF}')
    A('s_lshl_b32 s54, s2, 2')
    A('s_add_u32 s54, s54, s12')
    A('s_xor_b32 s55, s54, 4')
    A('s_lshl_b32 s56, s54, 12')
    A('s_lshl_b32 s57, s55, 12')
    A('s_lshl_b32 s54, s54, 7')
    A('s_lshl_b32 s55, s55, 7')
    A(f's_add_u32 s54, s54, {FL3}')
    A(f's_add_u32 s55, s55, {FL3}')
    A('s_mov_b32 s17, 0')
    A('s_mov_b32 s18, 0')
    A('s_waitcnt lgkmcnt(0)')
    srd(A, 20, 4, 's16', 128 * 1024)
    srd(A, 44, 4, 's19', 256)
    A(f's_add_u32 s19, s19, {R2_OFF - MU_OFF}')
    srd(A, 24, 4, 's19', 256)
    srd(A, 28, 50, 0, 2048)
    srd(A, 32, 48, 0, 2048 * 2048)
    srd(A, 40, 4, PX_OFF, 4 * MB)
    A('s_barrier')
    def reads(s, buf, full):
        r = []
        for i in range(2):
            for rd in range(2):
                r.append(f'ds_read_b64_tr_b16 {vr(WO[buf]+4*i+2*rd,2)}, v{cAw1 if i else cAw} offset:{4096*s + 512*rd}')
        for j in range(4):
            r.append(f'ds_read_b128 {vr(HB[buf]+4*j,4)}, v{cAh} offset:{(2*j+s)*1024}')
        if full:
            for i in range(2):
                for rd in range(2):
                    r.append(f'ds_read_b64_tr_b16 {vr(WX[buf]+4*i+2*rd,2)}, v{cAw1 if i else cAw} offset:{8192 + 4096*s + 512*rd}')
        return r
    ADV = [[f's_add_u32 s17, s17, {SLOT}', f's_cmp_eq_u32 s17, {NS*SLOT}'], ['s_cselect_b32 s17, 0, s17', f'v_add_u32 v{cAh}, s17, v{vAh}'],
           [f'v_add_u32 v{cAw}, s17, v{vAw}'], [f'v_add_u32 v{cAw1}, s17, v{vAw1}']]
    def step(buf, full, rds, tail=(), xfirst=False):
        seq = []
        order = ([(AX, WX)] if full else []) + [(AO, WO)] if xfirst else [(AO, WO)] + ([(AX, WX)] if full else [])
        for acc, W in order:
            for i in range(2):
                for jj in range(4):
                    j = jj if i == 0 else 3 - jj
                    seq.append((acc + (i*4+j)*4, W[buf] + 4*i, HB[buf] + 4*j))
        per = 1 if len(rds) + len(tail) <= len(seq) else 2
        fill = [[x] for x in rds]
        if per == 2: fill = [sum(fill[k:k+2], []) for k in range(0, len(fill), 2)]
        fill += list(tail)
        for n, (d, a, b) in enumerate(seq):
            mfma(A, d, a, b)
            if n < len(fill):
                for x in fill[n]: A(x)
        for f in fill[len(seq):]:
            for x in f: A(x)
        A('s_waitcnt lgkmcnt(0)')
    A('s_barrier')
    st(11)
    for r in reads(0, 0, True): A(r)
    A('s_lshl_b32 s16, s11, 1')
    A('s_add_u32 s16, s16, s14')
    A('s_lshl_b32 s19, s16, 10')
    for j in range(4):
        A(f'buffer_load_dwordx4 {vr(EP+4*j,4)}, v{vL16}, s[20:23], s19 offen sc1')
        if j < 3: A('s_add_u32 s19, s19, 32768')
    A(f'v_and_b32 v{PR}, 15, v1')
    A(f'v_lshlrev_b32 v{PR}, 2, v{PR}')
    for j in range(4):
        A(f'buffer_load_dword v{EP+16+j}, v{PR}, s[24:27], 0 offen offset:{64*j} sc1')
        A(f'buffer_load_dword v{EP+24+j}, v{PR}, s[44:47], 0 offen offset:{64*j} sc1')
    A(f'v_lshrrev_b32 v{PR+1}, 4, v1')
    A(f'v_lshlrev_b32 v{PR+1}, 3, v{PR+1}')
    A('s_lshl_b32 s19, s16, 6')
    A(f'buffer_load_dwordx2 {vr(EP+20,2)}, v{PR+1}, s[28:31], s19 offen')
    A(f'buffer_load_dwordx2 {vr(EP+22,2)}, v{PR+1}, s[28:31], s19 offen offset:32')
    A('s_waitcnt lgkmcnt(0)')
    step(0, True, reads(1, 1, True), ADV[:3] + [ADV[3] + late_store(0)])
    for k in range(1, 4):
        A('s_barrier')
        step(1, True, reads(0, 0, True), [late_store(k)])
        step(0, True, reads(1, 1, True), ADV)
    A('s_mov_b32 s18, 4')
    A('.p2align 6')
    A.label(f'{name}_g2loop')
    A('s_barrier')
    step(1, True, reads(0, 0, True), [['s_waitcnt vmcnt(0)']])
    step(0, True, reads(1, 1, True), ADV[:3] + [ADV[3] + ['s_add_u32 s18, s18, 1', f's_cmp_lt_u32 s18, {N1}']])
    A(f's_cbranch_scc1 {name}_g2loop')
    A('s_mov_b32 s59, 0')
    A('s_mov_b32 s58, 400000')
    def check(tag, sp):
        A('s_cmp_lg_u32 s59, 0')
        A(f's_cbranch_scc1 {name}_done{tag}')
        A.label(f'{name}_poll{tag}')
        A('s_waitcnt vmcnt(0)')
        A(f'v_readfirstlane_b32 s59, v{PR+16}')
        A('s_cmp_eq_u32 s59, 1')
        A(f's_cbranch_scc1 {name}_got{tag}')
        A('s_mov_b32 s59, 0')
        if sp:
            A('s_sub_u32 s58, s58, 1')
            A(f's_cbranch_scc1 {name}_got{tag}')
            A('s_sleep 1')
        A(f'buffer_load_dword v{PR+16}, v{vFl}, s[36:39], s55 offen sc1')
        A(f's_branch {name}_poll{tag}' if sp else f's_branch {name}_done{tag}')
        A.label(f'{name}_got{tag}')
        for k in range(4):
            A(f'buffer_load_dwordx4 {vr(PR+4*k,4)}, v{vL16}, s[40:43], s57 offen offset:{k*1024} sc1')
        A.label(f'{name}_done{tag}')
    for it in range(N2):
        A('s_barrier')
        if it == 0:
            step(1, True, reads(0, 0, False), xfirst=True)
            for k in range(4):
                for c in range(4*k, 4*k+4): A(f'v_cvt_pk_bf16_f32 v{AX+c}, v{AX+2*c}, v{AX+2*c+1}')
                A(f'buffer_store_dwordx4 {vr(AX+4*k,4)}, v{vL16}, s[40:43], s56 offen offset:{k*1024} sc1')
        else:
            if it == SIG:
                A('s_waitcnt vmcnt(0)')
                A(f'v_mov_b32 v{PR}, 1')
                A(f'buffer_store_dword v{PR}, v{vFl}, s[36:39], s54 offen sc1')
            if it == POLL:
                A(f'buffer_load_dword v{PR+16}, v{vFl}, s[36:39], s55 offen sc1')
            if it > POLL: check(it, False)
            step(1, False, reads(0, 0, False))
        step(0, False, reads(1, 1, False), ADV if it < N2 - 1 else ())
    check('L', True)
    step(1, False, [])
    st(12)
    B = 104
    A('v_and_b32 v6, 15, v1')
    A('v_lshlrev_b32 v6, 15, v6')
    A('v_lshrrev_b32 v7, 4, v1')
    A('v_and_b32 v2, 1, v7')
    A('v_lshl_add_u32 v6, v2, 5, v6')
    A('v_lshrrev_b32 v7, 1, v7')
    A('v_lshl_add_u32 v6, v7, 4, v6')
    A('s_lshl_b32 s19, s10, 11')
    A('s_lshl_b32 s15, s13, 21')
    A('s_add_u32 s19, s19, s15')
    A('s_lshl_b32 s16, s16, 6')
    A('s_add_u32 s19, s19, s16')
    A('s_waitcnt vmcnt(0)')
    for i in range(2):
        for q in range(2):
            A(f'v_lshlrev_b32 v{B+4*i+2*q}, 16, v{EP+20+2*i+q}')
            A(f'v_and_b32 v{B+4*i+2*q+1}, 0xffff0000, v{EP+20+2*i+q}')
    T = 40
    for j in range(4):
        d = T + 8*j
        for i in range(2):
            a = AO + (i*4+j)*4; pr = PR + (i*4+j)*2
            for q in range(2):
                hreg = EP + 4*j + 2*i + q
                A(f'v_lshlrev_b32 v{d+4+2*q}, 16, v{hreg}')
                A(f'v_and_b32 v{d+5+2*q}, 0xffff0000, v{hreg}')
                A(f'v_lshlrev_b32 v{72+2*q}, 16, v{pr+q}')
                A(f'v_and_b32 v{73+2*q}, 0xffff0000, v{pr+q}')
            for q in range(2):
                A(f'v_pk_add_f32 {vr(a+2*q,2)}, {vr(a+2*q,2)}, {vr(72+2*q,2)}')
                A(f'v_pk_add_f32 {vr(d+4+2*q,2)}, {vr(d+4+2*q,2)}, {vr(B+4*i+2*q,2)}')
            for r in range(4): A(f'v_add_f32 v{d+4+r}, v{d+4+r}, v{EP+24+j}')
            for r in range(4): A(f'v_fma_f32 v{a+r}, v{a+r}, v{EP+16+j}, v{d+4+r}')
            A(f'v_cvt_pk_bf16_f32 v{d+2*i}, v{a}, v{a+1}')
            A(f'v_cvt_pk_bf16_f32 v{d+2*i+1}, v{a+2}, v{a+3}')
        A(f'v_permlane16_swap_b32 v{d}, v{d+2}')
        A(f'v_permlane16_swap_b32 v{d+1}, v{d+3}')
        A(f'buffer_store_dwordx4 {vr(d,4)}, v6, s[32:35], s19 offen')
        if j < 3: A(f's_add_u32 s19, s19, {16*16*2048}')

def loaders(A, name, opt):
    NS = 4; N2 = opt.get('n2', 8); N1 = (56 - N2) // 2; NT = N1 + N2
    hm = opt.get('hmod', 'sc1')
    lst = Stamper(A, opt.get('stamp') == 1, 1)
    A('s_load_dwordx4 s[64:67], s[0:1], %d' % KA['w1'])
    A('s_load_dwordx2 s[48:49], s[0:1], %d' % KA['w2'])
    A('s_sub_u32 s12, s12, 4')
    g1_decode(A)
    A('s_lshl_b32 s15, s12, 16')
    A('v_lshlrev_b32 v8, 4, v1')
    A('v_add_u32 v8, s15, v8')
    A('v_add_u32 v9, 0x8000, v8')
    A('s_lshl_b32 s15, s12, 4')
    A('s_and_b32 s16, s11, 1')
    w_voffs(A, 10, 1, 15, 16, 4, range(7))
    A('s_lshl_b32 s43, s12, 12')
    A('s_mul_i32 s44, s12, 7168')
    A(f's_add_u32 s44, s44, {WB0}')
    A('s_mov_b32 s41, 0')
    A('s_mov_b32 s42, 0')
    A('s_lshl_b32 s15, s12, 12')
    A('v_lshlrev_b32 v3, 4, v1')
    A('v_add_u32 v3, s15, v3')
    A('v_and_b32 v17, 15, v1')
    A('v_lshlrev_b32 v17, 7, v17')
    A('v_mov_b32 v20, 1')
    A('v_mov_b32 v21, 0')
    A('s_and_b32 s13, s2, 7')
    A('s_sub_u32 s15, 16, s13')
    A('s_cmp_eq_u32 s13, 0')
    A('s_cselect_b32 s15, 8, s15')
    A('s_bitcmp1_b32 s2, 3')
    A('s_cselect_b32 s13, s15, s13')
    A('s_lshl_b32 s13, s13, 4')
    A('s_lshr_b32 s15, s2, 4')
    A('s_add_u32 s13, s13, s15')
    A('s_lshl_b32 s13, s13, 7')
    A('s_lshl_b32 s14, s10, 4')
    A('s_add_u32 s14, s14, s11')
    A('s_lshl_b32 s14, s14, 7')
    A(f's_add_u32 s14, s14, {FL2}')
    A('s_lshl_b32 s15, s10, 18')
    A(f's_add_u32 s15, s15, {HF_OFF}')
    A('s_mul_i32 s16, s11, 448')
    A(f's_sub_u32 s19, {1024*7168}, s16')
    A('s_waitcnt lgkmcnt(0)')
    srd(A, 20, 4, 's15', 256 * 1024)
    srd(A, 24, 64, 's16', 's19')
    A('s_lshl_b32 s15, s10, 14')
    A(f's_add_u32 s15, s15, {ST_OFF}')
    srd(A, 32, 4, 's15', 16384)
    A('s_lshl_b32 s15, s10, 9')
    A(f's_add_u32 s15, s15, {R2_OFF}')
    srd(A, 36, 4, 's15', 512)
    srd(A, 52, 4, FL_OFF, FL_SIZE)
    srd(A, 56, 48, 0, 3584 * 2048)
    A('s_lshl_b32 s60, s2, 2')
    A('s_add_u32 s60, s60, s12')
    A('s_lshl_b32 s60, s60, 9')
    A(f's_mov_b32 s50, {4 << 20}')
    hstep = [2048]
    A('v_mov_b32 v26, v8')
    A('v_mov_b32 v27, v9')
    def issue_h(lds):
        A(f's_add_u32 m0, {lds}, s43')
        A('s_nop 0')
        A(f'buffer_load_dwordx4 v8, s[20:23], s41 offen {hm} lds')
        A(f'buffer_load_dwordx4 v26, s[20:23], s41 offen offset:1024 {hm} lds')
        A('s_add_u32 m0, m0, 2048')
        A('s_nop 0')
        A(f'buffer_load_dwordx4 v9, s[20:23], s41 offen {hm} lds')
        A(f'buffer_load_dwordx4 v27, s[20:23], s41 offen offset:1024 {hm} lds')
        A(f's_add_u32 s41, s41, {hstep[0]}')
    def issue_w(lds, srdn=24, so='s42'):
        A(f's_add_u32 s45, {lds}, s44')
        for q in range(7):
            A(f's_add_u32 m0, s45, {q*1024}')
            A('s_nop 0')
            A(f'buffer_load_dwordx4 v{10+q}, s[{srdn}:{srdn+3}], {so} offen lds')
        if srdn == 24: A(f's_add_u32 s42, s42, {64*7168}')
    def sp2():
        for k in range(4): A(f's_buffer_load_dwordx2 s[62:63], s[56:59], s60 offset:{128*k + 60}')
        A('s_add_u32 s60, s60, s50')
        A('s_sub_u32 s50, 0x80000, s50')
    if opt.get('pf', 0) == 1: line_touch(A, 18, 19, 68, 64, 256 * 14336, 256, 15)
    def handoff(tag, sown, soth, ls=None):
        A('s_barrier')
        if ls: lst(ls)
        A('s_cmp_lg_u32 s12, 0')
        A(f's_cbranch_scc1 {tag}_go')
        A(f'buffer_store_dword v20, v21, s[52:55], s{sown} offen sc1')
        spin(A, tag, 52, soth, 36, 17, 47, opt.get('pdepth', 4), opt.get('pgap', 2))
        if ls: lst(ls + 1)
        A('s_barrier')
    nb = opt.get('nobar', 0)
    A('v_lshlrev_b32 v18, 2, v1')
    A('s_lshl_b32 s15, s12, 8')
    A(f's_add_u32 s15, s15, {SYB}')
    A('v_add_u32 v18, s15, v18')
    A('s_cmp_eq_u32 s12, 3')
    A(f's_cbranch_scc1 {name}_noclr')
    A('ds_write_b32 v18, v21')
    A.label(f'{name}_noclr')
    A(f's_add_u32 s15, s12, {SYB}')
    A('v_mov_b32 v18, s15')
    A(f'v_mov_b32 v19, {SYB}')
    A('s_waitcnt lgkmcnt(0)')
    def post(off): A(f'ds_write_b8 v18, v20 offset:{off}')
    def wait_free(tag, off):
        A.label(f'{tag}_o')
        A('v_mov_b32 v25, -1')
        A(f'ds_read_b32 v25, v19 offset:{off}')
        A.label(f'{tag}_i')
        A(f's_sleep {opt.get("fsl", 1)}')
        A('v_readfirstlane_b32 s51, v25')
        A('s_cmp_eq_u32 s51, -1')
        A(f's_cbranch_scc1 {tag}_i')
        A(f's_cmp_lg_u32 s51, {FULL}')
        A(f's_cbranch_scc1 {tag}_o')
    A('s_barrier')
    NW1 = opt.get('nw1', 3)
    for k in range(NW1): issue_w(k * WS)
    if opt.get('pf', 0) == 2: line_touch(A, 18, 19, 68, 64, 256 * 14336, 256, 15)
    sp2(); sp2()
    A('s_lshl_b32 s15, s10, 11')
    handoff(f'{name}_fl1', 13, 15)
    for k in range(3):
        issue_h(k * HS)
        if k >= NW1: issue_w(k * WS)
    for k in range(4): A(f'buffer_load_dwordx4 {vr(40+4*k,4)}, v3, s[32:35], 0 offen offset:{1024*k} sc1')
    A('s_mov_b32 s40, 0')
    A('s_mov_b32 s46, 0')
    c1 = lambda k: 4 + (7 if k >= NW1 else 0)
    A(f's_waitcnt vmcnt({c1(1) + c1(2) + 4})')
    A('s_barrier')
    A(f's_waitcnt vmcnt({c1(2) + 4})')
    if nb: post(R1 + 4)
    else: A('s_barrier')
    def issue(mid=None):
        issue_h('s40')
        if mid is not None:
            A('s_waitcnt vmcnt(4)')
            post(mid)
        issue_w('s46')
        A(f's_add_u32 s40, s40, {HS}')
        A(f's_add_u32 s46, s46, {WS}')
        A(f's_cmp_eq_u32 s40, {3*HS}')
        A('s_cselect_b32 s40, 0, s40')
        A('s_cselect_b32 s46, 0, s46')
    if nb: wait_free(f'{name}_f3', D1)
    issue(R1 + 8 if nb else None); sp2()
    if not nb:
        A('s_waitcnt vmcnt(11)')
        A('s_barrier')
    def stats():
        for k in range(4):
            A(f'v_add_f32 v{40+4*k}, v{40+4*k}, v{42+4*k}')
            A(f'v_add_f32 v{41+4*k}, v{41+4*k}, v{43+4*k}')
        for perm in ('quad_perm:[1,0,3,2]', 'quad_perm:[2,3,0,1]', 'row_half_mirror'):
            for k in range(4):
                for c in range(2):
                    A(f'v_add_f32_dpp v{40+4*k+c}, v{40+4*k+c}, v{40+4*k+c} {perm} row_mask:0xf bank_mask:0xf')
        A('v_and_b32 v4, 3, v1')
        for k in range(1, 4):
            A(f'v_cmp_eq_u32 vcc, {k}, v4')
            for c in range(2): A(f'v_cndmask_b32 v{40+c}, v{40+c}, v{40+4*k+c}, vcc')
        ln_finish(A, 40, 41, 22, 23, 24, 47)
        A('v_lshrrev_b32 v28, 16, v23')
        A('v_lshrrev_b32 v5, 3, v1')
        A('v_lshl_add_u32 v2, v4, 3, v5')
        A('s_lshl_b32 s15, s12, 7')
        A(f's_add_u32 s15, s15, {SGB}')
        A('v_lshl_add_u32 v5, v2, 2, s15')
        A('ds_write_b32 v5, v28')
        A('v_mul_f32 v23, v23, v23')
        A('v_rcp_f32 v23, v23')
        A('s_lshl_b32 s15, s12, 7')
        A('v_lshlrev_b32 v5, 2, v2')
        A('buffer_store_dword v23, v5, s[36:39], s15 offen sc1')
    if nb: wait_free(f'{name}_f4', D1 + 4)
    issue(R1 + 12 if nb else None); sp2()
    stats()
    if not nb:
        A('s_waitcnt vmcnt(12)')
        A('s_barrier')
    A('s_mov_b32 s18, 5')
    if nb:
        A('v_add_u32 v18, 16, v18')
        A('v_add_u32 v19, 8, v19')
    A.label(f'{name}_l1loop')
    if nb: wait_free(f'{name}_fl', D1)
    issue(R1 if nb else None)
    A('s_cmp_eq_u32 s18, 15')
    A(f's_cbranch_scc1 {name}_nosp')
    A('s_cmp_eq_u32 s18, 13')
    A('s_cselect_b32 s50, 0x80000, s50')
    sp2()
    A.label(f'{name}_nosp')
    A('s_add_u32 s18, s18, 1')
    A('s_cmp_lt_u32 s18, 16')
    if nb:
        A('v_add_u32 v18, 4, v18')
        A('v_add_u32 v19, 4, v19')
    else:
        A('s_waitcnt vmcnt(11)')
        A('s_barrier')
    A(f's_cbranch_scc1 {name}_l1loop')
    if nb:
        A('s_waitcnt vmcnt(0)')
        post(R1)
    g2_decode(A)
    gs = opt.get('gskip', 1); TT = GTT if gs else 112 * 1024; hstep[0] = GST if gs else 2048
    A(f's_mul_i32 s15, s12, {2*TT}')
    A('v_lshlrev_b32 v8, 4, v1')
    if gs:
        skipmap(A, 26, 8, 1, 4)
        skipmap(A, 8, 8, 0, 4)
        A('v_subrev_u32 v26, 1024, v26')
    else:
        A('v_mov_b32 v26, v8')
    A('v_add_u32 v8, s15, v8')
    A('v_add_u32 v26, s15, v26')
    A(f'v_add_u32 v9, {TT}, v8')
    A(f'v_add_u32 v27, {TT}, v26')
    A('v_lshrrev_b32 v4, 3, v1')
    A('s_lshl_b32 s15, s12, 4')
    A('v_add_u32 v4, s15, v4')
    A('v_lshlrev_b32 v4, 11, v4')
    A('v_and_b32 v5, 1, v1')
    A('v_lshl_add_u32 v4, v5, 4, v4')
    A('v_lshrrev_b32 v5, 4, v1')
    A('v_and_b32 v5, 1, v5')
    A('v_lshrrev_b32 v6, 1, v1')
    A('v_and_b32 v6, 3, v6')
    A('v_xor_b32 v5, v5, v6')
    A('v_lshl_add_u32 v4, v5, 5, v4')
    A('v_xor_b32 v5, 64, v4')
    A(f'v_add_u32 v5, {16384 - 1024}, v5')
    A('v_lshrrev_b32 v6, 3, v1')
    for hsel, (va, sr_) in enumerate(((10, 24), (12, 32))):
        if hsel == 0: A('s_mov_b32 s16, s11')
        else: A('s_xor_b32 s16, s11, 1')
        A('s_and_b32 s19, s16, 8')
        A('v_add_u32 v7, s19, v6')
        A('v_lshlrev_b32 v14, 7, v7')
        A('v_xor_b32 v15, 0x400, v14')
        A('s_and_b32 s15, s16, 7')
        A('s_lshl_b32 s16, s16, 7')
        A('v_mov_b32 v7, s16')
        A(f's_add_u32 s{sr_}, s4, {WC_OFF}')
        A(f's_addc_u32 s{sr_+1}, s5, 0')
        A(f's_cmp_eq_u32 s15, {3 if opt.get("wcopy", 1) else 9}')
        A('s_cselect_b64 vcc, -1, 0')
        A(f's_cselect_b32 s{sr_}, s{sr_}, s48')
        A(f's_cselect_b32 s{sr_+1}, s{sr_+1}, s49')
        A(f's_mov_b32 s{sr_+2}, {3584*2048}')
        A(f's_mov_b32 s{sr_+3}, 0x20000')
        A('v_cndmask_b32 v14, v7, v14, vcc')
        A('v_cndmask_b32 v15, v7, v15, vcc')
        A(f'v_add_u32 v{va}, v4, v14')
        A(f'v_add_u32 v{va+1}, v5, v15')
    A('s_lshl_b32 s44, s12, 11')
    A('s_add_u32 s44, s44, 16384')
    def mask(st_): return sum(1 << x for x in st_)
    E0 = [x for x in range(N1) if x % 7 in (1, 2, 5, 6)]; E1 = [x for x in range(56 - N1, 56) if x % 7 in (1, 2, 5, 6)]
    NE = min(len(E0), len(E1)); E0 = E0[:NE]; E1 = E1[:NE]
    L0 = [x for x in range(N1) if x not in E0]; L1 = [x for x in range(56 - N1, 56) if x not in E1]
    for r, (m0, m1) in ((28, (mask(E0), mask(E1))), (30, (mask(L0), mask(L1)))):
        A('s_cmp_lg_u32 s8, 0')
        for h in range(2):
            A(f's_mov_b32 s{r+h}, {(m0 >> (32*h)) & 0xffffffff}')
            A(f's_mov_b32 s61, {(m1 >> (32*h)) & 0xffffffff}')
            A(f's_cselect_b32 s{r+h}, s61, s{r+h}')
    def nxt(r=28):
        A(f's_ff1_i32_b64 s61, s[{r}:{r+1}]')
        A(f's_bitset0_b64 s[{r}:{r+1}], s61')
    def seth(): A(f's_mul_i32 s41, s61, {hstep[0]}')
    def setw(): A('s_lshl_b32 s42, s61, 17')
    A(f's_mul_i32 s15, s10, {8*TT}')
    A(f's_add_u32 s15, s15, {GS_OFF if gs else G_OFF}')
    srd(A, 20, 4, 's15', 8 * TT)
    if not nb:
        A('s_waitcnt vmcnt(0) lgkmcnt(0)')
        A('s_barrier')
    def issue_w2(lds, full):
        A(f's_add_u32 m0, {lds}, s44')
        A('s_nop 0')
        A(f'buffer_load_dwordx4 v10, s[24:27], s42 offen lds')
        A(f'buffer_load_dwordx4 v11, s[24:27], s42 offen offset:1024 lds')
        if full:
            A('s_add_u32 m0, m0, 8192')
            A('s_nop 0')
            A(f'buffer_load_dwordx4 v12, s[32:35], s42 offen lds')
            A(f'buffer_load_dwordx4 v13, s[32:35], s42 offen offset:1024 lds')
        A(f's_add_u32 s42, s42, {64*2048}')
    def slotadv():
        A(f's_add_u32 s40, s40, {SLOT}')
        A(f's_cmp_eq_u32 s40, {NS*SLOT}')
        A('s_cselect_b32 s40, 0, s40')
    def issue2(full, r=None):
        if r is not None: nxt(r); seth(); setw()
        issue_h('s40'); issue_w2('s40', full)
        slotadv()
    A('s_lshl_b32 s15, s10, 11')
    A(f's_add_u32 s15, s15, {FL2}')
    prod = lambda E: sorted({(2*x) // 7 for x in E} | {(2*x + 1) // 7 for x in E})
    P0, P1 = prod(E0), prod(E1)
    assert len(P0) == len(P1) and P0 == list(range(P0[0], P0[0] + len(P0))) and P1 == list(range(P1[0], P1[0] + len(P1)))
    A(f's_mul_i32 s61, s8, {P1[0] - P0[0]}')
    A(f's_add_u32 s61, s61, {P0[0]}')
    A(f'v_min_u32 v17, {len(P0) - 1}, v1')
    A('v_add_u32 v17, s61, v17')
    A('v_lshlrev_b32 v17, 7, v17')
    A('s_barrier')
    for k in range(2):
        nxt(); setw(); A(f's_mul_i32 s{36+k}, s61, {hstep[0]}')
        issue_w2(k * SLOT, True)
    lst(1)
    handoff(f'{name}_fl2', 14, 15, 2)
    for k in range(2):
        A(f's_mov_b32 s41, s{36+k}')
        issue_h(k * SLOT)
    A(f's_mov_b32 s40, {2*SLOT}')
    issue2(True, 28); issue2(True, 28)
    A('s_waitcnt vmcnt(20)')
    lst(4)
    A('s_barrier')
    A('s_waitcnt vmcnt(16)')
    A('s_barrier')
    def loop(tag, n, r):
        A(f's_mov_b32 s18, {n}')
        A.label(f'{name}_{tag}')
        issue2(True, r)
        A('s_sub_u32 s18, s18, 1')
        A('s_cmp_lg_u32 s18, 0')
        A('s_waitcnt vmcnt(16)')
        A('s_barrier')
        A(f's_cbranch_scc1 {name}_{tag}')
    loop('l2a', 4, 28)
    A('s_cmp_lg_u32 s12, 0')
    A(f's_cbranch_scc1 {name}_nob')
    A(f's_add_u32 s14, s14, {FL4 - FL2}')
    A('buffer_store_dword v20, v21, s[52:55], s14 offen sc1')
    A.label(f'{name}_nob')
    loop('l2b', NE - NS - 5, 28)
    A(f's_add_u32 s15, s15, {FL4 - FL2}')
    A('v_and_b32 v17, 15, v1')
    A('v_lshlrev_b32 v17, 7, v17')
    A('buffer_load_dword v36, v17, s[52:55], s15 offen sc1')
    issue2(True, 28)
    A('s_waitcnt vmcnt(16)')
    A('s_barrier')
    A('s_waitcnt vmcnt(8)')
    A('v_cmp_ne_u32 vcc, 1, v36')
    A(f's_cbranch_vccz {name}_fl4_go')
    spin(A, f'{name}_fl4', 52, 15, 36, 17, 47, 1, 1)
    loop('l2c', N1 - NE, 30)
    A(f's_mov_b32 s41, {N1*hstep[0]}')
    A(f's_mov_b32 s42, {N1*64*2048}')
    cnt = lambda s: 0 if s >= NT else (8 if s < N1 else 6)
    for j in range(N1 - NS + 1, NT - 1):
        s = j + NS - 1
        if s < NT: issue2(False)
        A(f's_waitcnt vmcnt({sum(cnt(x) for x in range(j + 2, j + NS))})')
        A('s_barrier')
    if opt.get('stamp') == 1:
        lst(5); lst(6, True); lst(8)
        A('s_cmp_lg_u32 s12, 0')
        A(f's_cbranch_scc1 {name}_end')
        lst.dump(9, 1, 60)

def gen_m(A, name='m_kernel', opt=None):
    opt = opt or {}
    khead(A, name)
    st = Stamper(A, opt.get('stamp'), 1)
    st(0); st(7, True)
    A('s_cmp_ge_u32 s2, 256')
    A(f's_cbranch_scc1 {name}_end')
    A('s_load_dwordx2 s[4:5], s[0:1], %d' % KA['ws'])
    A('s_load_dwordx2 s[6:7], s[0:1], %d' % KA['x'])
    A('v_lshrrev_b32 v2, 6, v0')
    A('v_and_b32 v1, 63, v0')
    A('v_readfirstlane_b32 s12, v2')
    A('s_cmp_ge_u32 s12, 4')
    A(f's_cbranch_scc1 {name}_loader')
    if opt.get('prio'): A(f's_setprio {opt["prio"]}')
    fb_compute(A, name, st, opt)
    late = g1_compute(A, name, st, opt)
    g2_compute(A, name, st, opt, late)
    A('s_waitcnt vmcnt(0)') if opt.get('stamp') else None
    st(5); st(6, True)
    st.dump(13, 0, 244)
    A('s_endpgm')
    A.label(f'{name}_loader')
    loaders(A, name, opt)
    A.label(f'{name}_end')
    A('s_endpgm')
    return dict(name=name, grid=256, block=512, lds=M_LDS, vgpr=256)
```

```python
from common import *

XP = 2112; NP = 80; ZP = 1312
ZB = 16 * XP
RB = ZB + 16 * ZP
FA_LDS = RB + 64

def gen_fa(A, name='fa_kernel', opt=None):
    opt = opt or {}
    smod = opt.get('smod', 'sc1'); xmod = opt.get('xmod', 'nt')
    khead(A, name)
    st = Stamper(A, opt.get('stamp'), 0)
    st(0); st(7, True)
    A('s_cmp_ge_u32 s2, 256')
    A(f's_cbranch_scc1 {name}_end')
    A('s_load_dwordx2 s[6:7], s[0:1], %d' % KA['x'])
    A('s_load_dwordx2 s[4:5], s[0:1], %d' % KA['ws'])
    A('s_load_dwordx2 s[8:9], s[0:1], %d' % KA['w1'])
    A('s_load_dwordx2 s[60:61], s[0:1], %d' % KA['w2'])
    if opt.get('cpf', 1):
        A('s_getpc_b64 s[36:37]')
        A(f's_mov_b32 s38, CODE_END-{name}-64')
        A('s_mov_b32 s39, 0x20000')
        A('s_lshr_b32 s13, s2, 3')
        A('s_lshl_b32 s13, s13, 7')
        A('v_lshlrev_b32 v4, 12, v0')
        A('buffer_load_dword v88, v4, s[36:39], s13 offen')
    A('v_lshrrev_b32 v2, 6, v0')
    A('v_and_b32 v1, 63, v0')
    A('s_and_b32 s13, s2, 7')
    A('v_readfirstlane_b32 s12, v2')
    A('s_lshr_b32 s14, s2, 3')
    A('s_and_b32 s11, s14, 1')
    A('s_sub_u32 s15, 16, s13')
    A('s_cmp_eq_u32 s13, 0')
    A('s_cselect_b32 s15, 8, s15')
    A('s_bitcmp1_b32 s14, 1')
    A('s_cselect_b32 s10, s15, s13')
    A('s_lshr_b32 s15, s14, 2')
    A('s_lshl_b32 s15, s15, 4')
    A('s_add_u32 s10, s10, s15')
    A('v_lshrrev_b32 v4, 5, v1')
    A('v_lshlrev_b32 v4, 1, v4')
    A('v_xor_b32 v4, v4, v1')
    A('v_lshlrev_b32 v14, 4, v4')
    A('s_lshl_b32 s13, s12, 9')
    A('s_add_u32 s13, s13, s10')
    A('s_lshl_b32 s63, s13, 2')
    A('s_lshl_b32 s13, s13, 11')
    A(f's_mul_i32 s14, s12, {4*XP}')
    vn, vg = 2, 3
    M1, TC, TS, M2C, M2S, SA1, SA2, SGN, MU, ONES = 16, 24, 40, 56, 60, 64, 68, 72, 73, 76
    GA, SA = 80, 84
    vSt, vTr0, vTr1, vZw, vZr, vU, vE, vE0, vZx, vX0, vZ0 = 108, 90, 91, 92, 93, 94, 95, 96, 97, 98, 99
    F = 112; T = 144; AF = 208; TMP = 112; P = 128; D = 240
    A(f'v_and_b32 v{vn}, 15, v1')
    A(f'v_lshrrev_b32 v{vg}, 4, v1')
    A('s_lshl_b32 s43, s11, 4')
    A('s_add_u32 s43, s43, 1')
    A(f'v_and_b32 v5, 7, v{vn}')
    A('v_add_u32 v5, s43, v5')
    A('v_cvt_f32_u32 v5, v5')
    A(f'v_and_b32 v6, 8, v{vn}')
    A(f'v_cvt_f32_u32 v7, v{vg}')
    A('v_cvt_f32_u32 v8, v6')
    A('v_mul_f32 v9, 0x3d000000, v5')
    A('v_mul_f32 v8, 0x3d000000, v8')
    A('v_mul_f32 v12, 0x41000000, v7')
    A('v_fmac_f32 v8, v12, v9')
    def m1(hh8, th, dl):
        for j in range(8):
            if j: A(f'v_add_f32 v{th}, v{th}, v{dl}')
            A(f'v_cos_f32 v{10 + (j & 1)}, v{th}')
            if j & 1: A(f'v_cvt_pk_bf16_f32 v{M1 + 4*hh8 + j//2}, v10, v11')
    A('v_mov_b32 v13, v8')
    m1(0, 8, 9)
    A('s_waitcnt lgkmcnt(0)')
    srd(A, 20, 6, 0, 2048 * 2048)
    for r in range(4):
        A(f's_add_u32 m0, s14, {r*XP}')
        A('s_nop 0')
        A(f'buffer_load_dwordx4 v14, s[20:23], s13 offen {xmod} lds')
        A(f'buffer_load_dwordx4 v14, s[20:23], s13 offen offset:1024 {xmod} lds')
        if r < 3: A(f's_add_u32 s13, s13, {128*2048}')
    A('v_add_f32 v9, 0x3e800000, v9')
    m1(1, 13, 9)
    A(f'v_lshlrev_b32 v9, 28, v6')
    A(f'v_lshrrev_b32 v10, 16, v9')
    A(f'v_or_b32 v{SGN}, v9, v10')
    A('v_mul_f32 v12, 4.0, v7')
    for hh8 in range(2):
        if hh8: A('v_add_f32 v5, 0x41000000, v5')
        A('v_mul_f32 v13, 0x3a800000, v5')
        A('v_xor_b32 v15, v9, v13')
        A('v_mul_f32 v8, v12, v15')
        for hh in range(2):
            for r in range(4):
                o = 8*hh8 + 4*hh + r
                if r: A('v_add_f32 v8, v8, v15')
                elif hh: A('v_fmac_f32 v8, 0x41500000, v15')
                A(f'v_cos_f32 v{TC+o}, v8')
                A(f'v_sin_f32 v{TS+o}, v8')
    A('s_cmp_eq_u32 s11, 1')
    A('s_cselect_b32 s44, 0xc2000000, 0')
    A(f'v_mov_b32 v{MU}, s44')
    A(f'v_cmp_eq_u32 vcc, 7, v{vn}')
    A(f'v_cndmask_b32 v{MU}, 0, v{MU}, vcc')
    A(f'v_cvt_f32_u32 v5, v{vn}')
    A('v_mul_f32 v13, 0x3d000000, v5')
    A('v_mul_f32 v8, v12, v13')
    for j in range(8):
        if j == 4: A('v_fmac_f32 v8, 0x41500000, v13')
        elif j: A('v_add_f32 v8, v8, v13')
        A(f'v_cos_f32 v{10+(j&1)}, v8')
        A(f'v_sin_f32 v{14+(j&1)}, v8')
        if j & 1:
            A(f'v_cvt_pk_bf16_f32 v{M2C+j//2}, v10, v11')
            A(f'v_cvt_pk_bf16_f32 v{M2S+j//2}, v14, v15')
    for i in range(4): A(f'v_mov_b32 v{ONES+i}, 0x3f803f80')
    A(f'v_lshrrev_b32 v10, 2, v{vn}')
    A(f'v_and_b32 v11, 3, v{vn}')
    A(f'v_mul_u32_u24 v12, {XP}, v10')
    A(f'v_mul_u32_u24 v13, 528, v11')
    A('v_add3_u32 v12, v12, v13, s14')
    A(f'v_and_b32 v13, 1, v{vg}')
    A('v_lshl_add_u32 v12, v13, 8, v12')
    A(f'v_lshrrev_b32 v15, 1, v{vg}')
    A(f'v_lshl_add_u32 v{vSt}, v15, 7, v12')
    for e in range(1, 4): A(f'v_xor_b32 v{vSt+e}, {16*e}, v{vSt}')
    A('v_lshlrev_b32 v12, 6, v10')
    A(f'v_lshl_add_u32 v12, v{vg}, 9, v12')
    A('v_lshl_add_u32 v12, v11, 3, v12')
    A('v_lshl_add_u32 v12, v13, 5, v12')
    A(f'v_add_u32 v{vTr0}, s14, v12')
    A(f'v_xor_b32 v{vTr1}, 32, v{vTr0}')
    A(f's_mul_i32 s15, s12, {4*ZP}')
    A(f's_add_u32 s15, s15, {ZB}')
    A(f'v_mul_u32_u24 v{vZw}, {NP}, v{vn}')
    A(f'v_lshl_add_u32 v{vZw}, v{vg}, 4, v{vZw}')
    A(f'v_add_u32 v{vZw}, s15, v{vZw}')
    A(f'v_mul_u32_u24 v{vX0}, {XP}, v10')
    A(f'v_add_u32 v{vX0}, s14, v{vX0}')
    A(f'v_mul_u32_u24 v{vZ0}, {ZP}, v10')
    A('v_and_b32 v12, 1, v1')
    A(f'v_mul_u32_u24 v12, {8*NP}, v12')
    A(f'v_add3_u32 v{vZ0}, v{vZ0}, v12, s15')
    A('v_cmp_eq_u32 s[46:47], 1, v11')
    A('v_cmp_eq_u32 s[48:49], 2, v11')
    A('v_cmp_eq_u32 s[50:51], 3, v11')
    A(f'v_cmp_eq_u32 s[52:53], v10, v{vg}')
    A('s_cmp_eq_u32 s11, 0')
    A('s_cselect_b32 s16, 8192, 0')
    srd(A, 32, 4, MX_OFF, 's16')
    srd(A, 28, 4, U_OFF, 4 * MB)
    srd(A, 36, 4, E_OFF, 65536)
    A('s_lshr_b32 s65, s12, 1')
    A('s_cmp_lg_u32 s65, 0')
    A('s_cselect_b32 s44, 0.25, 0')
    A(f'v_lshlrev_b32 v8, 9, v{vg}')
    A('v_add_u32 v8, s10, v8')
    A('v_cvt_f32_u32 v8, v8')
    A('v_mul_f32 v13, 0x3a000000, v5')
    A('v_fma_f32 v8, v8, v13, s44')
    A('v_mul_f32 v13, 0x3d800000, v5')
    for j in range(4):
        if j: A('v_add_f32 v8, v8, v13')
        A(f'v_cos_f32 v{SA1+j}, v8')
        A(f'v_sin_f32 v{SA2+j}, v8')
    A(f'v_lshl_add_u32 v12, v{vg}, 2, v10')
    A(f'v_mul_u32_u24 v12, {ZP}, v12')
    A(f'v_add_u32 v{vZx}, {ZB + 64}, v12')
    A('v_lshl_add_u32 v12, v11, 3, v12')
    A('s_and_b32 s15, s12, 1')
    A('s_lshl_b32 s16, s15, 5')
    A(f's_add_u32 s16, s16, {ZB}')
    A(f'v_add_u32 v{vZr}, s16, v12')
    A(f'v_lshlrev_b32 v{vU}, 20, v{vg}')
    A('s_lshl_b32 s16, s15, 2')
    A('s_add_u32 s16, s16, s10')
    A('v_add_u32 v12, s16, v10')
    A('v_and_b32 v12, 7, v12')
    A(f'v_lshl_add_u32 v{vU}, v12, 7, v{vU}')
    A(f'v_lshl_add_u32 v{vU}, v11, 4, v{vU}')
    A('s_lshl_b32 s66, s65, 17')
    A('s_lshl_b32 s16, s10, 10')
    A('s_add_u32 s66, s66, s16')
    A('s_lshl_b32 s16, s11, 6')
    A('s_add_u32 s66, s66, s16')
    A('s_lshl_b32 s16, s15, 2')
    A('s_add_u32 s16, s16, 1')
    A('v_add_u32 v12, s16, v10')
    A(f'v_lshlrev_b32 v{vE0}, 14, v{vg}')
    A(f'v_lshl_add_u32 v{vE}, v12, 9, v{vE0}')
    A('v_cmp_gt_u32 vcc, 8, v12')
    A('s_and_b64 vcc, vcc, s[50:51]')
    A(f'v_cndmask_b32 v{vE}, 4.0, v{vE}, vcc')
    A(f'v_or_b32 v12, s15, v{vn}')
    A('v_cmp_eq_u32 vcc, 0, v12')
    A(f'v_cndmask_b32 v{vE0}, 4.0, v{vE0}, vcc')
    A('s_lshl_b32 s67, s65, 7')
    A('s_add_u32 s67, s67, s10')
    A('s_lshl_b32 s67, s67, 1')
    srd(A, 24, 4, 38 * MB, 1792 * 128)
    A('v_lshlrev_b32 v12, 7, v0')
    A('v_cmp_gt_u32 vcc, 7, v0')
    A('v_cndmask_b32 v12, 4.0, v12, vcc')
    A('s_mul_i32 s15, s2, 896')
    A('v_mov_b32 v13, 0')
    A('buffer_store_dword v13, v12, s[24:27], s15 offen')
    npf = 2
    srd(A, 24, 60, 0, 3584 * 2048)
    A('v_lshrrev_b32 v12, 4, v0')
    A('s_mul_i32 s15, s2, 14')
    A('v_add_u32 v12, s15, v12')
    A('v_and_b32 v13, 8, v0')
    A('v_and_b32 v14, 7, v0')
    A('v_lshlrev_b32 v14, 4, v14')
    A('v_lshl_add_u32 v14, v12, 11, v14')
    A('v_add_u32 v12, v12, v13')
    A('v_and_b32 v12, 15, v12')
    A('v_and_b32 v15, 7, v12')
    A('v_cmp_eq_u32 vcc, 3, v15')
    A('v_xor_b32 v15, 4, v12')
    A('v_cndmask_b32 v12, v12, v15, vcc')
    A('v_lshl_add_u32 v104, v12, 7, v14')
    A('v_lshl_add_u32 v14, v13, 7, v14')
    A('v_cmp_gt_u32 vcc, 224, v0')
    A('v_cndmask_b32 v14, 4.0, v14, vcc')
    A('v_cndmask_b32 v104, 4.0, v104, vcc')
    A('buffer_load_dwordx4 v[100:103], v14, s[24:27], 0 offen offset:384')
    if opt.get('pf', 1):
        srd(A, 24, 8, 0, 1024 * 7168)
        A('v_lshlrev_b32 v12, 7, v0')
        nl = 224 if opt.get('pf', 1) == 1 else 112
        A(f'v_cmp_gt_u32 vcc, {nl}, v0')
        A('v_cndmask_b32 v12, 4.0, v12, vcc')
        A(f's_mul_i32 s15, s2, {nl*128}')
        A('buffer_load_dword v89, v12, s[24:27], s15 offen')
        npf += 1
    st(1)
    A(f's_waitcnt vmcnt({npf})')
    st(2)
    E = AutoLgkm(A)
    def mf(d, a, b, z): return f'v_mfma_f32_16x16x32_bf16 {vr(d,4)}, {vr(a,4)}, {vr(b,4)}, {"0" if z else vr(d,4)}'
    def s1rd(r): return [f'ds_read_b64_tr_b16 {vr(AF+8*r+4*hh+2*rd,2)}, v{vTr0 if hh == 0 else vTr1} offset:{r*XP + 256*rd}' for hh in range(2) for rd in range(2)]
    frd = [f'ds_read_b128 {vr(F+4*i,4)}, v{vSt + (i&3)} offset:{64*(i>>2)}' for i in range(8)] + [f'ds_read_u16 v{vX0}, v{vX0}']
    def s1(r): return [mf(T + 16*r + 8*hh8 + 4*hh, AF + 8*r + 4*hh, M1 + 4*hh8, True) for hh8 in range(2) for hh in range(2)]
    for x in s1rd(0) + s1rd(1) + s1rd(2) + frd[:3]: E(x)
    for x in weave(s1(0) + s1(1), s1rd(3) + frd[3:], per=2) + s1(2) + s1(3): E(x)
    D0 = AF + 16; D1 = D
    def tw(r, hh8, tm, p):
        t = T + 16*r + 8*hh8; d = (D1 if hh8 else D0) + 4*r
        return [f'v_pk_mul_f32 {vr(tm+k,2)}, {vr(t+k,2)}, {vr(TC+8*hh8+k,2)}' for k in range(0, 8, 2)] + \
               [f'v_fmac_f32_dpp v{tm+k}, v{t+k}, v{TS+8*hh8+k} row_ror:8 row_mask:0xf bank_mask:0xf' for k in range(8)] + \
               [f'v_cvt_pk_bf16_f32 v{p+k}, v{tm+2*k}, v{tm+2*k+1}' for k in range(4)] + [mf(d, M2C, p, True)] + \
               [f'v_xor_b32_dpp v{p+4+k}, v{p+k}, v{SGN} row_ror:8 row_mask:0xf bank_mask:0xf' for k in range(4)], mf(d, M2S, p + 4, False)
    stm = [x for i in range(8) for x in (mf(SA, ONES, F+4*i, i == 0), mf(GA, F+4*i, F+4*i, i == 0))]
    t0 = []
    for r in range(4):
        a, b = tw(r, 0, AF, AF + 8)
        t0 += a[:6] + ([pb] if r else []) + a[6:]
        pb = b
    mean = [f'v_add_f32_dpp v11, v{SA}, v{SA} quad_perm:[1,0,3,2] row_mask:0xf bank_mask:0xf', f'v_cndmask_b32 v10, v{GA}, v{GA+1}, s[46:47]',
            f'v_lshlrev_b32 v{vX0}, 16, v{vX0}', 'v_add_f32_dpp v11, v11, v11 quad_perm:[2,3,0,1] row_mask:0xf bank_mask:0xf',
            f'v_cndmask_b32 v10, v10, v{GA+2}, s[48:49]', 'v_mul_f32 v15, 0x3a800000, v11', f'v_cndmask_b32 v10, v10, v{GA+3}, s[50:51]'] + \
           [f'v_readlane_b32 s{56+r}, v15, {4*r}' for r in range(4)]
    for x in weave(stm, t0[:48], per=3) + weave(t0[48:], mean, start=6, per=1) + [pb]: E(x)
    class L(list):
        def __call__(self, t): self.append(t)
    sg = L()
    sg('v_add_f32_dpp v10, v10, v10 quad_perm:[1,0,3,2] row_mask:0xf bank_mask:0xf')
    sg(f'v_sub_f32 v{vX0}, v{vX0}, v15')
    sg('v_add_f32_dpp v10, v10, v10 quad_perm:[2,3,0,1] row_mask:0xf bank_mask:0xf')
    ln_finish(sg, 11, 10, 12, 13, 14, 45)
    sg('v_rcp_f32 v13, v13')
    sg(f'v_lshlrev_b32 v12, 9, v{vg}'); sg(f'v_lshlrev_b32 v10, 2, v{vg}'); sg('s_lshl_b32 s15, s12, 4'); sg(f's_add_u32 s15, s15, {RB}')
    sg('v_add_u32 v10, s15, v10')
    def fin(r):
        return [f'v_cvt_pk_bf16_f32 v{D0+4*r+k}, v{D0+4*r+k}, v{D1+4*r+k}' for k in range(4)] + [f'ds_write_b128 v{vZw}, {vr(D0+4*r,4)} offset:{r*ZP}']
    t1 = []
    for r in range(4):
        a, b = tw(r, 1, TMP, P + 8*(r & 1))
        pre = [f'v_mul_f32 v8, s{56+r}, v{MU}', 'v_mov_b32 v9, v8'] + [f'v_pk_add_f32 {vr(T+16*r+8+k,2)}, {vr(T+16*r+8+k,2)}, v[8:9]' for k in range(0, 8, 2)]
        t1 += pre[:2] + ([pb] if r else []) + pre[2:] + a[:12] + (fin(r - 1) if r else []) + a[12:]
        pb = b
    for x in weave(t1[:2*len(sg)], list(sg), per=1)[:]: E(x)
    A('s_mov_b64 exec, s[52:53]')
    E('ds_write_b32 v10, v13')
    A('buffer_store_dword v15, v12, s[32:35], s63 offen')
    A('s_mov_b64 exec, -1')
    x0 = ['v_mov_b32 v11, 0', f'v_cvt_pk_bf16_f32 v10, v{vX0}, v11', 's_mov_b32 vcc_lo, 0x55555555', 's_mov_b32 vcc_hi, 0x55555555',
          'v_cndmask_b32 v10, 0, v10, vcc', f'ds_write_b64 v{vZ0}, v[10:11] offset:64']
    for x in weave(t1[2*len(sg):], x0, per=1): E(x)
    E(pb)
    A(f'v_lshlrev_b32 v10, 4, v{vg}')
    A(f'v_add_u32 v10, {RB}, v10')
    for x in fin(3): E(x)
    st(3)
    A('s_waitcnt lgkmcnt(0)')
    A('s_barrier')
    st(8)
    RS = F; AM = F + 4; ZF = T; O = T + 36
    A(f'ds_read_b128 {vr(RS,4)}, v10')
    for tau in range(9):
        if tau == 7: A('s_waitcnt lgkmcnt(14)')
        for rd in range(2):
            if tau < 8: A(f'ds_read_b64_tr_b16 {vr(ZF + tau*4 + 2*rd, 2)}, v{vZr} offset:{(rd*8 + tau)*NP}')
            else: A(f'ds_read_b64_tr_b16 {vr(ZF + tau*4 + 2*rd, 2)}, v{vZx} offset:{rd*8*NP}')
    for j in range(0, 4, 2):
        A(f'v_pk_mul_f32 {vr(SA1+j,2)}, {vr(SA1+j,2)}, {vr(RS+j,2)}')
        A(f'v_pk_mul_f32 {vr(SA2+j,2)}, {vr(SA2+j,2)}, {vr(RS+j,2)}')
    for k in range(4): A(f'v_cvt_pk_bf16_f32 v{AM+k}, v{SA1+2*k}, v{SA1+2*k+1}')
    for tau in range(9):
        if tau % 2 == 0: A(f's_waitcnt lgkmcnt({max(14 - 2*tau, 0)})')
        mfma(A, O + 4*tau, AM, ZF + tau*4, '0')
    for r in range(4):
        b = P + 4*r
        for k in range(4): A(f'v_cvt_pk_bf16_f32 v{b+k}, v{O+8*k+r}, v{O+8*k+4+r}')
        A(f'buffer_store_dwordx4 {vr(b,4)}, v{vU}, s[28:31], s66 offen {smod}')
        if r < 3: A('s_add_u32 s66, s66, 0x40000')
    srd(A, 24, 4, WC_OFF, 3584 * 2048)
    A(f's_waitcnt vmcnt({6 if opt.get("pf", 1) else 5})')
    A('buffer_store_dwordx4 v[100:103], v104, s[24:27], 0 offen')
    A('s_cmp_eq_u32 s11, 0')
    A(f's_cbranch_scc1 {name}_c0')
    for r in range(4):
        A(f'buffer_store_short_d16_hi v{P+4*r+3}, v{vE}, s[36:39], s67 offen')
        if r < 3: A('s_add_u32 s67, s67, 4096')
    A(f's_branch {name}_fin')
    A.label(f'{name}_c0')
    for r in range(4):
        A(f'v_cvt_pk_bf16_f32 v{O+32+r}, v{O+32+r}, v{O+32+r}')
        A(f'buffer_store_short v{O+32+r}, v{vE0}, s[36:39], s67 offen')
        if r < 3: A('s_add_u32 s67, s67, 4096')
    A.label(f'{name}_fin')
    st(4)
    A('s_waitcnt vmcnt(0)') if opt.get('stamp') else None
    st(5); st(6, True)
    st.dump(9, 0, 108)
    A.label(f'{name}_end')
    A('s_endpgm')
    return dict(name=name, grid=256, block=256, lds=FA_LDS, vgpr=256)
```

```python
from common import *
from g1 import w_voffs, tr_bases

HS = 16384; WS = 28672; WB0 = 3 * HS
XB = 32768; EB = WB0 + 3 * WS
SLOT = 32768
SGB = EB + 1024
SYB = SGB + 512
R1, D1, R2W, D2 = 0, 64, 128, 384
STG = SYB + 768
M_LDS = STG + 16384
FULL = 0x01010101
PX_OFF = 29 * MB
FL_OFF = 38 * MB
GS_OFF = 40 * MB; GST = 3072; GTT = 56 * GST
FL1, FL2, FL3, FL4 = 0, 32768, 65536, 196608
FL_SIZE = 1792 * 128

def spin(A, tag, srdn, soff, vflag, vaddr, scnt, depth=4, gap=2):
    A(f's_mov_b32 s{scnt}, 400000')
    ld = lambda k: A(f'buffer_load_dword v{vflag+k}, v{vaddr}, s[{srdn}:{srdn+3}], s{soff} offen sc1')
    for k in range(depth - 1):
        ld(k); A(f's_sleep {gap}')
    A.label(f'{tag}_spin')
    for k in range(depth):
        ld((k + depth - 1) % depth)
        A(f's_waitcnt vmcnt({depth - 1})')
        A(f'v_cmp_ne_u32 vcc, 1, v{vflag+k}')
        A(f's_cbranch_vccz {tag}_go')
        A(f's_sleep {gap}')
    A(f's_sub_u32 s{scnt}, s{scnt}, 1')
    A(f's_cbranch_scc0 {tag}_spin')
    A.label(f'{tag}_go')

def skipmap(A, dst, src, odd, t):
    if odd:
        A(f'v_cmp_lt_u32 vcc, 255, v{src}')
        A(f'v_add_u32 v{dst}, {1024 + 128}, v{src}')
    else:
        A(f'v_cmp_lt_u32 vcc, 383, v{src}')
        if dst != src: A(f'v_mov_b32 v{dst}, v{src}')
    A(f'v_add_u32 v{t}, 128, v{dst}')
    A(f'v_cndmask_b32 v{dst}, v{dst}, v{t}, vcc')

def g1_decode(A):
    A('s_and_b32 s8, s2, 7')
    A('s_lshr_b32 s9, s2, 3')
    A('s_and_b32 s10, s8, 1')
    A('s_lshl_b32 s10, s10, 3')
    A('s_and_b32 s11, s9, 7')
    A('s_add_u32 s10, s10, s11')
    A('s_lshr_b32 s11, s8, 1')
    A('s_lshl_b32 s11, s11, 2')
    A('s_lshr_b32 s9, s9, 3')
    A('s_add_u32 s11, s11, s9')

def g2_decode(A):
    A('s_and_b32 s8, s2, 1')
    A('s_lshr_b32 s9, s2, 3')
    A('s_and_b32 s10, s2, 6')
    A('s_lshl_b32 s10, s10, 1')
    A('s_and_b32 s11, s9, 3')
    A('s_add_u32 s10, s10, s11')
    A('s_lshr_b32 s11, s9, 2')
    A('s_lshl_b32 s11, s11, 1')
    A('s_add_u32 s11, s11, s8')

def fb_compute(A, name, st, opt):
    A('s_and_b32 s13, s2, 7')
    A('s_lshr_b32 s14, s2, 3')
    A('s_sub_u32 s15, 16, s13')
    A('s_cmp_eq_u32 s13, 0')
    A('s_cselect_b32 s15, 8, s15')
    A('s_bitcmp1_b32 s14, 0')
    A('s_cselect_b32 s10, s15, s13')
    A('s_lshr_b32 s11, s14, 1')
    A('s_sub_u32 s16, 16, s10')
    A('s_and_b32 s16, s16, 15')
    A('s_sub_u32 s17, 15, s11')
    A('s_lshr_b32 s19, s11, 3')
    A('s_cmp_lg_u32 s19, 0')
    A('s_cselect_b32 s16, s16, s10')
    A('s_cselect_b32 s17, s17, s11')
    vn, vg = 2, 3
    A(f'v_and_b32 v{vn}, 15, v1')
    A(f'v_lshrrev_b32 v{vg}, 4, v1')
    A('v_lshrrev_b32 v6, 3, v1')
    A(f'v_and_b32 v7, 1, v{vg}')
    A('v_lshrrev_b32 v8, 1, v1')
    A('v_and_b32 v8, 3, v8')
    A('v_xor_b32 v7, v7, v8')
    A('v_lshlrev_b32 v7, 5, v7')
    A('v_lshl_add_u32 v4, v6, 10, v7')
    A('v_and_b32 v7, 1, v1')
    A('v_lshl_add_u32 v4, v7, 4, v4')
    A('v_add_u32 v7, s17, v6')
    A('v_and_b32 v7, 7, v7')
    A('v_lshl_add_u32 v4, v7, 7, v4')
    A('v_xor_b32 v5, 64, v4')
    A(f'v_add_u32 v5, {8192 - 1024}, v5')
    A('s_lshl_b32 s14, s16, 2')
    A('s_add_u32 s14, s14, s12')
    A('s_lshl_b32 s14, s14, 16')
    A('s_lshl_b32 s18, s12, 13')
    A(f'v_xor_b32 v8, v{vg}, v1')
    A('v_and_b32 v8, 7, v8')
    A('v_lshlrev_b32 v8, 4, v8')
    A('v_lshl_add_u32 v6, v6, 15, v8')
    A('v_xor_b32 v7, 64, v6')
    A(f'v_add_u32 v7, {8*32768 - 1024}, v7')
    A('s_lshl_b32 s61, s12, 19')
    A('s_lshl_b32 s15, s10, 11')
    A('s_add_u32 s61, s61, s15')
    A('s_lshl_b32 s15, s11, 7')
    A('s_add_u32 s61, s61, s15')
    A('s_lshl_b32 s62, s12, 12')
    A(f's_add_u32 s62, s62, {XB}')
    A('s_lshl_b32 s63, s10, 3')
    A('s_add_u32 s63, s63, s11')
    A('s_lshl_b32 s63, s63, 9')
    A('s_sub_u32 s63, s63, 512')
    A('s_sub_u32 s15, s11, 1')
    A('s_cmp_lt_u32 s15, 7')
    A('s_cselect_b32 s63, s63, 0x40000000')
    A('s_lshl_b32 s15, s16, 12')
    A('v_mov_b32 v9, s15')
    A('v_mov_b32 v10, s63')
    A('v_cmp_gt_u32 vcc, 32, v1')
    A('v_cndmask_b32 v9, v10, v9, vcc')
    A('v_lshl_add_u32 v9, v1, 4, v9')
    A(f'v_lshlrev_b32 v10, 6, v{vn}')
    A('s_lshl_b32 s15, s12, 8')
    A('s_add_u32 s15, s15, s10')
    A('s_lshl_b32 s15, s15, 2')
    A('s_waitcnt lgkmcnt(0)')
    srd(A, 20, 4, U_OFF, 4 * MB)
    srd(A, 28, 4, E_OFF, 65536)
    for h in range(4):
        A(f's_add_u32 m0, s18, {h*2048}')
        A('s_nop 0')
        A(f'buffer_load_dwordx4 v4, s[20:23], s14 offen lds')
        A(f'buffer_load_dwordx4 v5, s[20:23], s14 offen offset:1024 lds')
        if h < 3: A('s_add_u32 s14, s14, 16384')
    A(f's_mov_b32 m0, {EB}')
    srd(A, 24, 6, 0, 2048 * 2048)
    A('buffer_load_dwordx4 v9, s[28:31], 0 offen lds')
    FR = [16, 48]; EF = 80; B = [112, 144]; ACC = [176, 192]; MA = [208, 212]; VT = 216; VX = 220; X = [224, 232]; VB = 240; MXV = [241, 242]; VH = 243; VE = 244
    srd(A, 40, 4, MX_OFF, 8192)
    for u in range(2):
        A(f's_add_u32 m0, s62, {u*2048}')
        if u: A(f's_add_u32 s61, s61, {4 << 19}')
        else: A('s_nop 0')
        A('buffer_load_dwordx4 v6, s[24:27], s61 offen lds')
        A('buffer_load_dwordx4 v7, s[24:27], s61 offen offset:1024 lds')
    A('s_add_u32 s14, s15, 4096')
    A(f'buffer_load_dword v{MXV[0]}, v10, s[40:43], s15 offen')
    A(f'buffer_load_dword v{MXV[1]}, v10, s[40:43], s14 offen')
    A('s_lshl_b32 s15, s12, 4')
    A(f'v_add_u32 v6, s15, v{vn}')
    A('s_cmp_lg_u32 s10, 0')
    A('s_cselect_b32 s15, -1, 0')
    A('v_sub_u32 v7, s15, v6')
    A('s_cmp_lg_u32 s19, 0')
    A('s_cselect_b64 vcc, -1, 0')
    A('v_cndmask_b32 v6, v6, v7, vcc')
    A('v_and_b32 v6, 127, v6')
    A('v_cvt_f32_u32 v7, v6')
    A('v_mul_f32 v7, 0x3c000000, v7')
    A(f'v_lshlrev_b32 v10, 3, v{vg}')
    A('v_cvt_f32_u32 v10, v10')
    A('v_mul_f32 v10, v10, v7')
    B0 = B[0]
    for j in range(8):
        if j: A('v_add_f32 v10, v10, v7')
        A(f'v_cos_f32 v{12+(j&1)}, v10')
        A(f'v_sin_f32 v{14+(j&1)}, v10')
        if j & 1:
            A(f'v_cvt_pk_bf16_f32 v{B0+j//2}, v12, v13')
            A(f'v_cvt_pk_bf16_f32 v{B0+16+j//2}, v14, v15')
    A('v_and_b32 v8, 1, v6')
    A('v_cmp_eq_u32 vcc, 1, v8')
    A('v_mul_u32_u24 v8, 0x8000, v8')
    A('v_lshl_or_b32 v8, v8, 16, v8')
    A('v_and_b32 v10, 2, v6')
    A('v_mul_u32_u24 v10, 0x4000, v10')
    A('v_lshl_or_b32 v10, v10, 16, v10')
    A('v_xor_b32 v11, v10, v8')
    for k in range(4):
        A(f'v_cndmask_b32 v12, v{B0+k}, v{B0+16+k}, vcc')
        A(f'v_cndmask_b32 v13, v{B0+16+k}, v{B0+k}, vcc')
        A(f'v_xor_b32 v{B0+4+k}, v11, v12')
        A(f'v_xor_b32 v{B0+20+k}, v10, v13')
    for k in range(8):
        A(f'v_xor_b32 v{B0+8+k}, v8, v{B0+k}')
        A(f'v_xor_b32 v{B0+24+k}, v8, v{B0+16+k}')
    A('s_brev_b32 s15, 1')
    for k in range(32): A(f'v_xor_b32 v{B[1]+k}, s15, v{B0+k}')
    A(f'v_lshrrev_b32 v10, 2, v{vn}')
    A(f'v_lshl_add_u32 v10, v{vg}, 3, v10')
    A(f'v_lshrrev_b32 v11, 3, v{vn}')
    A(f'v_and_b32 v12, 1, v{vg}')
    A('v_lshl_add_u32 v11, v12, 1, v11')
    A('v_lshlrev_b32 v11, 5, v11')
    A('v_lshl_add_u32 v10, v10, 7, v11')
    A(f'v_and_b32 v11, 3, v{vn}')
    A(f'v_lshl_add_u32 v{VT}, v11, 3, v10')
    A('s_mul_i32 s15, s19, 96')
    A(f'v_xor_b32 v{VT}, s15, v{VT}')
    for i in range(1, 4): A(f'v_xor_b32 v{VT+i}, {(2*(i&1) + (i>>1))*32}, v{VT}')
    A(f'v_and_b32 v11, 1, v{vn}')
    A('v_lshlrev_b32 v11, 9, v11')
    A(f'v_lshl_add_u32 v11, v{vg}, 4, v11')
    A(f'v_add_u32 v{VE}, {EB}, v11')
    A('s_mul_i32 s15, s19, 3')
    A(f'v_xor_b32 v10, s15, v{vg}')
    A('v_lshrrev_b32 v11, 1, v10')
    A(f'v_lshrrev_b32 v12, 1, v{vn}')
    A('v_xor_b32 v11, v11, v12')
    A('v_lshlrev_b32 v11, 4, v11')
    A(f'v_lshl_add_u32 v11, v{vn}, 7, v11')
    A('v_and_b32 v12, 1, v10')
    A('v_lshl_add_u32 v11, v12, 3, v11')
    A(f'v_add_u32 v{VX}, s62, v11')
    for i in range(1, 4): A(f'v_xor_b32 v{VX+i}, {32*i}, v{VX}')
    A(f'v_lshl_add_u32 v10, v10, 4, v{vn}')
    A(f'v_lshlrev_b32 v{VH}, 4, v10')
    A('v_add_u32 v10, 48, v1')
    A('v_and_b32 v10, 63, v10')
    A(f'v_lshlrev_b32 v{VB}, 2, v10')
    A(f'v_cmp_eq_u32 s[46:47], 0, v{vg}')
    srd(A, 52, 4, HF_OFF, 4 * MB)
    srd(A, 56, 4, ST_OFF, 2048 * 128)
    A('s_cmp_eq_u32 s11, 0')
    A('s_cselect_b32 s15, 8192, 0')
    srd(A, 32, 4, MU_OFF, 's15')
    srd(A, 36, 4, FL_OFF, FL_SIZE)
    A('s_lshl_b32 s13, s10, 3')
    A('s_add_u32 s13, s13, s12')
    st(1)
    A('s_waitcnt vmcnt(6)')
    A('s_barrier')
    st(2)
    def frag(i, p): return FR[i & 1] + 4 * p
    def rd(h):
        i = h >> 1
        return [f'ds_read_b64_tr_b16 {vr(frag(i,p)+2*r2,2)}, v{VT+i} offset:{(32*p+4*r2)*128}' for p in range(4*(h & 1), 4*(h & 1) + 4) for r2 in range(2)]
    def mf(d, a, b, z): return f'v_mfma_f32_16x16x32_bf16 {vr(d,4)}, {vr(a,4)}, {vr(b,4)}, {"0" if z else vr(d,4)}'
    def half(h): return [mf(ACC[u] + 4*(h >> 1), frag(h >> 1, p), B[u] + 4*p, p == 0) for p in range(4*(h & 1), 4*(h & 1) + 4) for u in range(2)]
    ONE = 4; S = [5, 7]; Q = [6, 8]; TM = EF; OUT = EF + 16
    E = AutoLgkm(A)
    for x in rd(0) + [f'ds_read_b128 {vr(EF+4*p,4)}, v{VE} offset:{64*p}' for p in range(8)]: E(x)
    for x in weave(half(0), rd(1), per=2): E(x)
    for x in weave([mf(MA[u], EF + 4*p, B[u] + 4*p, p == 0) for p in range(8) for u in range(2)], rd(2), per=1): E(x)
    misc = [f'v_mov_b32 v{ONE}, 0x3f803f80'] + [f'v_mov_b32 v{r}, 0' for r in S + Q] + [f'v_lshlrev_b32 v9, 2, v{vn}', 's_lshl_b32 s60, s13, 6',
            's_lshl_b32 s14, s13, 15', 's_lshl_b32 s15, s11, 11', 's_add_u32 s14, s14, s15', 's_add_u32 s15, s14, 0x20000']
    for x in weave(half(1), rd(3) + misc, per=3): E(x)
    xr = ['s_waitcnt vmcnt(0)'] + [f'ds_read_b64 {vr(X[u]+2*k2,2)}, v{VX+k2} offset:{u*2048}' for k2 in range(4) for u in range(2)]
    for x in weave(half(2), rd(4) + xr, per=3): E(x)
    for x in weave(half(3), rd(5) + [f'v_add_f32 v{MA[u]}, v{MA[u]}, v{MXV[u]}' for u in range(2)], per=2): E(x)
    def epi(V, pr):
        out = []
        for u in range(2):
            o = OUT + 8*u + 4*pr
            for i2 in range(2):
                i = 2*pr + i2; t = TM + 8*u + 4*i2
                for q in range(2):
                    r_ = X[u] + 2*i + q
                    out += [f'v_lshlrev_b32 v{t+2*q}, 16, v{r_}', f'v_and_b32 v{t+1+2*q}, 0xffff0000, v{r_}']
                out += [f'v_sub_f32 v{t+r}, v{t+r}, v{MA[u]}' for r in range(4)]
                out += [f'v_add_f32 v{t+r}, v{t+r}, v{V[u][i][r]}' for r in range(4)]
                out += [f'v_cvt_pk_bf16_f32 v{o+2*i2+q}, v{t+2*q}, v{t+1+2*q}' for q in range(2)]
            out.append(f'buffer_store_dwordx4 {vr(o,4)}, v{VH}, s[52:55], s{14+u} offen offset:{pr*1024} sc1')
        return out
    def dots(pr): return [x for u in range(2) for k in range(4) for x in
                          (f'v_dot2_f32_bf16 v{S[u]}, v{OUT+8*u+4*pr+k}, v{ONE}, v{S[u]}', f'v_dot2_f32_bf16 v{Q[u]}, v{OUT+8*u+4*pr+k}, v{OUT+8*u+4*pr+k}, v{Q[u]}')]
    RP = 10; SH = 248
    A('s_cmp_lg_u32 s19, 0')
    A(f's_cbranch_scc1 {name}_up')
    pend0 = list(E.pend)
    for lower in (1, 0):
        if not lower:
            A.label(f'{name}_up'); A('s_nop 7'); E.pend = list(pend0)
        if lower:
            V = [[[SH+4*u+i, ACC[u]+4*i, ACC[u]+4*i+1, ACC[u]+4*i+2] for i in range(4)] for u in range(2)]
            def rot(i): return [f'ds_bpermute_b32 v{RP+3*u+(i%3)}, v{VB}, v{ACC[u]+4*i+3}' for u in range(2)]
            def sel(i): return [f'v_cndmask_b32 v{SH+4*u+i}, v{RP+3*u+(i%3)}, v{RP+3*u+((i-1)%3) if i else MA[u]+1}, s[46:47]' for u in range(2)]
        else:
            V = [[[ACC[u]+4*i+3-r for r in range(4)] for i in range(4)] for u in range(2)]
            rot = sel = lambda i: []
        for x in weave(half(4), rot(0) + rd(6) + rot(1), per=2): E(x)
        e0 = sel(0) + sel(1) + epi(V, 0)
        for x in weave(half(5), rd(7) + e0[:16], per=3): E(x)
        for x in weave(half(6) + half(7), rot(2) + e0[16:] + dots(0), start=2, per=4): E(x)
        for x in rot(3) + sel(2) + sel(3) + epi(V, 1) + dots(1): E(x)
        E.drain()
        if lower: A(f's_branch {name}_join')
    A.label(f'{name}_join')
    st(3)
    A(f'buffer_store_dword v{MA[0]}, v9, s[32:35], s60 offen sc1')
    A(f'buffer_store_dword v{MA[1]}, v9, s[32:35], s60 offen offset:256 sc1')
    A(f'v_lshlrev_b32 v40, 7, v{vn}')
    A(f'v_lshrrev_b32 v41, 1, v{vg}')
    A('v_lshl_add_u32 v40, v41, 2, v40')
    A('s_lshl_b32 s14, s13, 11')
    A('s_lshl_b32 s15, s11, 3')
    A('s_add_u32 s14, s14, s15')
    A('s_add_u32 s15, s14, 8192')
    for u in range(2): A(f'v_permlane32_swap_b32 v{S[u]}, v{Q[u]}')
    for u in range(2): A(f'v_add_f32 v{S[u]}, v{S[u]}, v{Q[u]}')
    for u in range(2): A(f'v_mov_b32 v{Q[u]}, v{S[u]}')
    for u in range(2): A(f'v_permlane16_swap_b32 v{S[u]}, v{Q[u]}')
    for u in range(2): A(f'v_add_f32 v{S[u]}, v{S[u]}, v{Q[u]}')
    for u in range(2): A(f'buffer_store_dword v{S[u]}, v40, s[56:59], s{14+u} offen sc1')

def drained(A):
    A('s_waitcnt vmcnt(0)')
    A('s_barrier')

def g1_compute(A, name, st, opt):
    WB = [8, 36]; ACC = 64; HB = [176, 192]
    vAh, cAh, VW, CW = 2, 3, 208, 216
    vSy, vOne, vRd = 4, 5, 6
    nb = opt.get('nobar', 0)
    g1_decode(A)
    A('s_and_b32 s13, s12, 1')
    A('s_lshr_b32 s14, s12, 1')
    A('s_lshl_b32 s15, s13, 13')
    A(f'v_lshlrev_b32 v{vAh}, 4, v1')
    A(f'v_add_u32 v{vAh}, s15, v{vAh}')
    tr_bases(A, 44, 45, 1, 48)
    A('s_cmp_lg_u32 s14, 0')
    A('s_cselect_b64 vcc, -1, 0')
    def gaddr(dst, lam):
        if lam < 12:
            A(f'v_xor_b32 v{dst}, {32*(lam&3)}, v44')
            A(f'v_add_u32 v{dst}, {WB0 + (lam>>2)*1024}, v{dst}')
        else:
            A(f'v_xor_b32 v{dst}, {32*(lam&1)}, v45')
            A(f'v_add_u32 v{dst}, {WB0 + 6144}, v{dst}')
    for k, (l0, l1) in enumerate(zip([4, 5, 2, 3, 0, 1, 6], [8, 9, 10, 11, 12, 13, 7])):
        gaddr(46, l0); gaddr(47, l1)
        A(f'v_cndmask_b32 v{VW+k}, v46, v47, vcc')
    A(f'v_mov_b32 v{cAh}, v{vAh}')
    for k in range(7): A(f'v_mov_b32 v{CW+k}, v{VW+k}')
    for i in range(112): A(f'v_mov_b32 v{ACC+i}, 0')
    A('s_lshl_b32 s15, s10, 1')
    A('s_add_u32 s15, s15, s13')
    gs = opt.get('gskip', 1); TT = GTT if gs else 112 * 1024
    A('s_mul_i32 s15, s15, %d' % (4 * TT))
    A('s_add_u32 s15, s15, %d' % (GS_OFF if gs else G_OFF))
    srd(A, 20, 4, 's15', 4 * TT)
    A('s_mov_b32 s17, 0')
    A('s_mov_b32 s19, 0')
    A('s_mov_b32 s18, 0')
    BV = 240; H2 = 224
    A('s_load_dwordx2 s[24:25], s[0:1], %d' % KA['b1'])
    A('s_and_b32 s52, s11, 1')
    A('s_mul_i32 s15, s11, 7')
    A('s_add_u32 s16, s15, s52')
    A('s_add_u32 s56, s16, 3')
    A('s_cmp_lg_u32 s14, 0')
    A('s_cselect_b32 s53, 4, 2')
    A('s_cselect_b32 s54, 5, 1')
    A('s_cselect_b32 s55, 6, 0')
    for r in (53, 54, 55): A(f's_add_u32 s{r}, s{r}, s16')
    A('s_and_b32 s52, s52, s14')
    A('s_cmp_lg_u32 s52, 0')
    A('s_cselect_b32 s55, s15, s55')
    for r in (53, 54, 55, 56): A(f's_lshl_b32 s{r+4}, s{r}, 6')
    A('s_lshl_b32 s15, s14, 5')
    A('s_add_u32 s60, s60, s15')
    A(f's_add_u32 s15, s12, {SYB}')
    A(f'v_mov_b32 v{vSy}, {SYB}')
    A(f'v_mov_b32 v7, s15')
    A(f'v_mov_b32 v{vOne}, 1')
    A('v_and_b32 v44, 15, v1')
    A('v_lshlrev_b32 v44, 1, v44')
    A('s_mov_b32 s26, 7168')
    A('s_mov_b32 s27, 0x20000')
    drained(A)
    st(4)
    A('s_waitcnt lgkmcnt(0)')
    for i in range(7):
        so, off = 57 + i // 2, (32*(i&1) if i < 6 else 0)
        A(f'buffer_load_ushort v{BV+i}, v44, s[24:27], s{so} offen offset:{off}')
    A('s_barrier')
    def reads(s, buf):
        r = []
        for j in range(4):
            r.append(f'ds_read_b128 {vr(HB[buf]+4*j,4)}, v{cAh} offset:{(2*j+s)*1024}')
        for i in range(7):
            for rd in range(2):
                r.append(f'ds_read_b64_tr_b16 {vr(WB[buf]+4*i+2*rd,2)}, v{CW+i} offset:{(2*s + rd) * 7168}')
        return r
    def step(buf, rds, tail=None, nowait=False):
        k = 0; n = 0
        for i in range(7):
            for jj in range(4):
                j = jj if (i & 1) == 0 else 3 - jj
                mfma(A, ACC + (i*4+j)*4, WB[buf] + 4*i, HB[buf] + 4*j)
                if k < len(rds): A(rds[k]); k += 1
                n += 1
                if tail and n - 20 in tail:
                    for t in tail[n - 20]: A(t)
        if not nowait: A('s_waitcnt lgkmcnt(0)')
    A('s_barrier')
    st(8)
    for r in reads(0, 0): A(r)
    A('s_waitcnt lgkmcnt(0)')
    A(f's_branch {name}_g1mid')
    if nb:
        A.label(f'{name}_g1slow')
        A(f'ds_read_b32 v{vRd}, v{vSy} offset:{R1}')
        A('s_waitcnt lgkmcnt(0)')
        A(f'v_readfirstlane_b32 s16, v{vRd}')
        A(f's_cmp_lg_u32 s16, {FULL}')
        A(f's_cbranch_scc1 {name}_g1slow')
        A(f's_cmp_le_u32 s18, 14')
        A(f's_cbranch_scc0 {name}_g1tail')
    A('.p2align 6')
    A.label(f'{name}_g1loop')
    if not nb: A('s_barrier')
    step(1, reads(0, 0))
    A.label(f'{name}_g1mid')
    tailB = {-4: [f's_add_u32 s17, s17, {HS}', f's_add_u32 s19, s19, {WS}'], -3: [f's_cmp_eq_u32 s17, {3*HS}', 's_cselect_b32 s17, 0, s17'],
             -2: ['s_cselect_b32 s19, 0, s19', 's_add_u32 s18, s18, 1'], -1: [f'v_add_u32 v{cAh}, s17, v{vAh}', 's_cmp_le_u32 s18, 14']}
    for k in range(7): tailB[k] = [f'v_add_u32 v{CW+k}, s19, v{VW+k}']
    if nb:
        tailB[-1] = [f'v_add_u32 v{cAh}, s17, v{vAh}', f'ds_read_b32 v{vRd}, v{vSy} offset:{R1 + 4}']
        tailB[6] += ['s_waitcnt lgkmcnt(0)', f'ds_write_b8 v7, v{vOne} offset:{D1}']
        tailB[7] = [f'v_readfirstlane_b32 s16, v{vRd}', f'v_add_u32 v{vSy}, 4, v{vSy}', 'v_add_u32 v7, 4, v7']
        tailB[8] = [f's_cmp_lg_u32 s16, {FULL}', f's_cbranch_scc1 {name}_g1slow', 's_cmp_le_u32 s18, 14']
    step(0, reads(1, 1), tailB, nowait=nb)
    A(f's_cbranch_scc1 {name}_g1loop')
    A.label(f'{name}_g1tail')
    if not nb: A('s_barrier')
    gs = opt.get('gskip', 1)
    order = [6, 0, 1, 2, 3, 4, 5]
    SG = 4
    def wset(k): return WB[0] + 8 * (k % 3)
    def wrd(k):
        i = order[k]
        return [f'ds_read_b64_tr_b16 {vr(wset(k)+4*s_+2*rd,2)}, v{CW+i} offset:{(2*s_ + rd) * 7168}' for s_ in range(2) for rd in range(2)]
    BT = 32
    ST4 = [208, 212, 248, 252]
    A('v_and_b32 v2, 15, v1')
    A('s_lshl_b32 s15, s13, 8')
    A(f's_add_u32 s15, s15, {SGB}')
    A('v_lshl_add_u32 v2, v2, 2, s15')
    pre = [f'ds_read_b128 {vr(HB[0]+4*j,4)}, v{cAh} offset:{(2*j)*1024}' for j in range(4)] + wrd(0) + \
          [f'ds_read_b128 {vr(H2+4*j,4)}, v{cAh} offset:{(2*j+1)*1024}' for j in range(4)] + \
          [f'ds_read_b32 v{ST4[j]}, v2 offset:{64*j}' for j in range(4)] + wrd(1)
    setup = []
    for j in range(4):
        for k in range(1, 4): setup.append(f'v_mov_b32 v{ST4[j]+k}, 0')
    for k in range(1, 4): setup.append(f'v_mov_b32 v{BT+k}, 0')
    addr = []
    for r in (53, 54, 55, 56):
        addr += [f's_lshr_b32 s{r}, s{r}, 1', f's_mul_i32 s{r}, s{r}, {GST}'] if gs else [f's_lshl_b32 s{r}, s{r}, 10']
    class L(list):
        def __call__(self, t): self.append(t)
    va = L()
    va('v_and_b32 v4, 15, v1'); va('v_lshlrev_b32 v4, 4, v4'); va('v_and_b32 v6, 16, v1'); va('v_and_b32 v7, 32, v1')
    va('v_lshl_add_u32 v5, v7, 3, v4'); va('v_lshl_add_u32 v4, v6, 5, v5'); va('v_lshrrev_b32 v6, 1, v6'); va('s_lshl_b32 s19, s14, 9')
    va('v_add3_u32 v5, v5, v6, s19')
    if gs:
        skipmap(va, 6, 4, 1, 2); skipmap(va, 4, 4, 0, 2); skipmap(va, 5, 5, 1, 2)
        va('s_cmp_lg_u32 s52, 0'); va('s_cselect_b64 vcc, -1, 0'); va('v_cndmask_b32 v7, v4, v6, vcc')
    else:
        va('v_mov_b32 v6, v4'); va('v_mov_b32 v7, v4')
    def acc(i, j): return ACC + (i*4+j)*4
    def epi_tile(i, j, d):
        a = acc(i, j)
        return [f'v_max_f32 v{a+r}, 0, v{a+r}' for r in range(4)] + \
               [f'v_pk_mul_f32 {vr(a,2)}, {vr(a,2)}, {vr(a,2)}', f'v_pk_mul_f32 {vr(a+2,2)}, {vr(a+2,2)}, {vr(a+2,2)}',
                f'v_cvt_pk_bf16_f32 v{d}, v{a}, v{a+1}', f'v_cvt_pk_bf16_f32 v{d+1}, v{a+2}, v{a+3}']
    late = []
    def epi(i):
        out = []
        for j in range(4):
            if i == 6:
                out += epi_tile(i, j, acc(i, j))
                out.append(f'buffer_store_dwordx2 {vr(acc(i,j),2)}, v5, s[20:23], s56 offen sc1')
                if j < 3: out.append(f's_add_u32 s56, s56, {TT}')
            elif i % 2 == 0:
                out += epi_tile(i, j, acc(i, j))
            else:
                d = acc(i - 1, j)
                out += epi_tile(i, j, d + 2)
                out += [f'v_permlane16_swap_b32 v{d}, v{d+2}', f'v_permlane16_swap_b32 v{d+1}, v{d+3}']
                pp = i // 2
                dst = out if pp < 2 else late
                dst.append(f'buffer_store_dwordx4 {vr(d,4)}, v{[4, 6, 7][pp]}, s[20:23], s{53+pp} offen sc1')
                if j < 3: dst.append(f's_add_u32 s{53+pp}, s{53+pp}, {TT}')
        return out
    for k, i in enumerate(order):
        mf = [(acc(i, j), WB[1] + 4*i, HB[1] + 4*j) for j in range(4)] + [(acc(i, j), wset(k), HB[0] + 4*j) for j in range(4)] + \
             [(acc(i, j), wset(k) + 4, H2 + 4*j) for j in range(4)] + [(acc(i, j), BT, ST4[j]) for j in range(4)]
        if k == 0:
            fill = pre + addr + list(va) + setup
        else:
            fill = (wrd(k + 1) if k + 1 < 7 else []) + epi(order[k - 1])
        per = -(-len(fill) // 15)
        fi = 0
        for n, (d, a, b) in enumerate(mf):
            if k == 0 and n == 4:
                for x in fill[fi:len(pre)]: A(x)
                fi = max(fi, len(pre))
                A('s_waitcnt lgkmcnt(14)')
            if k == 0 and n == 8: A('s_waitcnt lgkmcnt(8)')
            if k == 0 and n == 12:
                for x in fill[fi:]: A(x)
                fi = len(fill)
                A('s_waitcnt vmcnt(0) lgkmcnt(4)')
                A('v_cmp_gt_u32 vcc, 16, v1')
                for j in range(4): A(f'v_cndmask_b32 v{ST4[j]}, 0, v{ST4[j]}, vcc')
            if k > 0 and n == 4: A(f's_waitcnt lgkmcnt({4 if k + 1 < 7 else 0})')
            if n == 10 and k > 0 or (k == 0 and n == 12): A(f'v_mov_b32 v{BT}, v{BV+i}')
            mfma(A, d, a, b)
            if k == 6 and n == 4:
                A('s_barrier')
                st(9)
            for _ in range(per):
                if fi < len(fill): A(fill[fi]); fi += 1
        for x in fill[fi:]: A(x)
    for x in epi(5): A(x)
    return late

def g2_compute(A, name, st, opt, late):
    NS = 4; N2 = opt.get('n2', 8); N1 = (56 - N2) // 2
    SIG = opt.get('sig', 2); POLL = opt.get('poll', 4)
    AO = 8; AX = 40; HB = [72, 88]; WO = [104, 112]; WX = [120, 128]; EP = 136; PR = 224
    vAh, vAw, cAh, cAw, vAw1, cAw1, vL16, vFl = 164, 165, 166, 167, 168, 169, 170, 171
    A('s_load_dwordx2 s[50:51], s[0:1], %d' % KA['b2'])
    A('s_load_dwordx2 s[48:49], s[0:1], %d' % KA['out'])
    A('s_waitcnt vmcnt(0)')
    A('s_barrier')
    st(10)
    g2_decode(A)
    A('s_lshl_b32 s15, s13, 13')
    A(f'v_lshlrev_b32 v{vL16}, 4, v1')
    A(f'v_add_u32 v{vAh}, s15, v{vL16}')
    A('v_lshrrev_b32 v8, 2, v1')
    A('v_and_b32 v8, 3, v8')
    A('v_lshrrev_b32 v9, 4, v1')
    A('v_lshl_add_u32 v8, v9, 3, v8')
    A('v_lshrrev_b32 v10, 3, v1')
    A('v_and_b32 v10, 3, v10')
    A('v_lshlrev_b32 v10, 5, v10')
    A('v_lshl_add_u32 v8, v8, 7, v10')
    A('v_and_b32 v10, 3, v1')
    A(f'v_lshl_add_u32 v{vAw}, v10, 3, v8')
    A('s_lshl_b32 s15, s14, 6')
    A(f'v_xor_b32 v{vAw}, s15, v{vAw}')
    A(f'v_add_u32 v{vAw}, 16384, v{vAw}')
    A(f'v_xor_b32 v{vAw1}, 32, v{vAw}')
    A(f'v_mov_b32 v{cAh}, v{vAh}')
    A(f'v_mov_b32 v{cAw}, v{vAw}')
    A(f'v_mov_b32 v{cAw1}, v{vAw1}')
    A(f'v_mov_b32 v{vFl}, 0')
    for i in range(64): A(f'v_mov_b32 v{AO+i}, 0')
    for k in range(16): A(f'v_mov_b32 v{192+k}, v{128+k}')
    for k in range(4): A(f's_mov_b32 s{64+k}, s{20+k}' if k < 3 else 's_mov_b32 s67, 0x20000')
    A('s_mov_b32 s68, s55')
    TT = GTT if opt.get('gskip', 1) else 112 * 1024
    def late_store(k): return [f'buffer_store_dwordx4 {vr(192+4*k,4)}, v7, s[64:67], s68 offen sc1', f's_add_u32 s68, s68, {TT}']
    A('s_lshl_b32 s15, s10, 1')
    A('s_add_u32 s15, s15, s13')
    A('s_lshl_b32 s16, s15, 17')
    A(f's_add_u32 s16, s16, {HF_OFF}')
    A('s_lshl_b32 s19, s15, 8')
    A(f's_add_u32 s19, s19, {MU_OFF}')
    A('s_lshl_b32 s54, s2, 2')
    A('s_add_u32 s54, s54, s12')
    A('s_xor_b32 s55, s54, 4')
    A('s_lshl_b32 s56, s54, 12')
    A('s_lshl_b32 s57, s55, 12')
    A('s_lshl_b32 s54, s54, 7')
    A('s_lshl_b32 s55, s55, 7')
    A(f's_add_u32 s54, s54, {FL3}')
    A(f's_add_u32 s55, s55, {FL3}')
    A('s_mov_b32 s17, 0')
    A('s_mov_b32 s18, 0')
    A('s_waitcnt lgkmcnt(0)')
    srd(A, 20, 4, 's16', 128 * 1024)
    srd(A, 44, 4, 's19', 256)
    A(f's_add_u32 s19, s19, {R2_OFF - MU_OFF}')
    srd(A, 24, 4, 's19', 256)
    srd(A, 28, 50, 0, 2048)
    srd(A, 32, 48, 0, 2048 * 2048)
    srd(A, 40, 4, PX_OFF, 4 * MB)
    A('s_barrier')
    def reads(s, buf, full):
        r = []
        for i in range(2):
            for rd in range(2):
                r.append(f'ds_read_b64_tr_b16 {vr(WO[buf]+4*i+2*rd,2)}, v{cAw1 if i else cAw} offset:{4096*s + 512*rd}')
        for j in range(4):
            r.append(f'ds_read_b128 {vr(HB[buf]+4*j,4)}, v{cAh} offset:{(2*j+s)*1024}')
        if full:
            for i in range(2):
                for rd in range(2):
                    r.append(f'ds_read_b64_tr_b16 {vr(WX[buf]+4*i+2*rd,2)}, v{cAw1 if i else cAw} offset:{8192 + 4096*s + 512*rd}')
        return r
    ADV = [[f's_add_u32 s17, s17, {SLOT}', f's_cmp_eq_u32 s17, {NS*SLOT}'], ['s_cselect_b32 s17, 0, s17', f'v_add_u32 v{cAh}, s17, v{vAh}'],
           [f'v_add_u32 v{cAw}, s17, v{vAw}'], [f'v_add_u32 v{cAw1}, s17, v{vAw1}']]
    def step(buf, full, rds, tail=(), xfirst=False):
        seq = []
        order = ([(AX, WX)] if full else []) + [(AO, WO)] if xfirst else [(AO, WO)] + ([(AX, WX)] if full else [])
        for acc, W in order:
            for i in range(2):
                for jj in range(4):
                    j = jj if i == 0 else 3 - jj
                    seq.append((acc + (i*4+j)*4, W[buf] + 4*i, HB[buf] + 4*j))
        per = 1 if len(rds) + len(tail) <= len(seq) else 2
        fill = [[x] for x in rds]
        if per == 2: fill = [sum(fill[k:k+2], []) for k in range(0, len(fill), 2)]
        fill += list(tail)
        for n, (d, a, b) in enumerate(seq):
            mfma(A, d, a, b)
            if n < len(fill):
                for x in fill[n]: A(x)
        for f in fill[len(seq):]:
            for x in f: A(x)
        A('s_waitcnt lgkmcnt(0)')
    A('s_barrier')
    st(11)
    for r in reads(0, 0, True): A(r)
    A('s_lshl_b32 s16, s11, 1')
    A('s_add_u32 s16, s16, s14')
    A('s_lshl_b32 s19, s16, 10')
    for j in range(4):
        A(f'buffer_load_dwordx4 {vr(EP+4*j,4)}, v{vL16}, s[20:23], s19 offen sc1')
        if j < 3: A('s_add_u32 s19, s19, 32768')
    A(f'v_and_b32 v{PR}, 15, v1')
    A(f'v_lshlrev_b32 v{PR}, 2, v{PR}')
    for j in range(4):
        A(f'buffer_load_dword v{EP+16+j}, v{PR}, s[24:27], 0 offen offset:{64*j} sc1')
        A(f'buffer_load_dword v{EP+24+j}, v{PR}, s[44:47], 0 offen offset:{64*j} sc1')
    A(f'v_lshrrev_b32 v{PR+1}, 4, v1')
    A(f'v_lshlrev_b32 v{PR+1}, 3, v{PR+1}')
    A('s_lshl_b32 s19, s16, 6')
    A(f'buffer_load_dwordx2 {vr(EP+20,2)}, v{PR+1}, s[28:31], s19 offen')
    A(f'buffer_load_dwordx2 {vr(EP+22,2)}, v{PR+1}, s[28:31], s19 offen offset:32')
    A('s_waitcnt lgkmcnt(0)')
    step(0, True, reads(1, 1, True), ADV[:3] + [ADV[3] + late_store(0)])
    for k in range(1, 4):
        A('s_barrier')
        step(1, True, reads(0, 0, True), [late_store(k)])
        step(0, True, reads(1, 1, True), ADV)
    A('s_mov_b32 s18, 4')
    A('.p2align 6')
    A.label(f'{name}_g2loop')
    A('s_barrier')
    step(1, True, reads(0, 0, True), [['s_waitcnt vmcnt(0)']])
    step(0, True, reads(1, 1, True), ADV[:3] + [ADV[3] + ['s_add_u32 s18, s18, 1', f's_cmp_lt_u32 s18, {N1}']])
    A(f's_cbranch_scc1 {name}_g2loop')
    A('s_mov_b32 s59, 0')
    A('s_mov_b32 s58, 400000')
    def check(tag, sp):
        A('s_cmp_lg_u32 s59, 0')
        A(f's_cbranch_scc1 {name}_done{tag}')
        A.label(f'{name}_poll{tag}')
        A('s_waitcnt vmcnt(0)')
        A(f'v_readfirstlane_b32 s59, v{PR+16}')
        A('s_cmp_eq_u32 s59, 1')
        A(f's_cbranch_scc1 {name}_got{tag}')
        A('s_mov_b32 s59, 0')
        if sp:
            A('s_sub_u32 s58, s58, 1')
            A(f's_cbranch_scc1 {name}_got{tag}')
            A('s_sleep 1')
        A(f'buffer_load_dword v{PR+16}, v{vFl}, s[36:39], s55 offen sc1')
        A(f's_branch {name}_poll{tag}' if sp else f's_branch {name}_done{tag}')
        A.label(f'{name}_got{tag}')
        for k in range(4):
            A(f'buffer_load_dwordx4 {vr(PR+4*k,4)}, v{vL16}, s[40:43], s57 offen offset:{k*1024} sc1')
        A.label(f'{name}_done{tag}')
    for it in range(N2):
        A('s_barrier')
        if it == 0:
            step(1, True, reads(0, 0, False), xfirst=True)
            for k in range(4):
                for c in range(4*k, 4*k+4): A(f'v_cvt_pk_bf16_f32 v{AX+c}, v{AX+2*c}, v{AX+2*c+1}')
                A(f'buffer_store_dwordx4 {vr(AX+4*k,4)}, v{vL16}, s[40:43], s56 offen offset:{k*1024} sc1')
        else:
            if it == SIG:
                A('s_waitcnt vmcnt(0)')
                A(f'v_mov_b32 v{PR}, 1')
                A(f'buffer_store_dword v{PR}, v{vFl}, s[36:39], s54 offen sc1')
            if it == POLL:
                A(f'buffer_load_dword v{PR+16}, v{vFl}, s[36:39], s55 offen sc1')
            if it > POLL: check(it, False)
            step(1, False, reads(0, 0, False))
        step(0, False, reads(1, 1, False), ADV if it < N2 - 1 else ())
    check('L', True)
    step(1, False, [])
    st(12)
    B = 104
    A('v_and_b32 v6, 15, v1')
    A('v_lshrrev_b32 v7, 4, v1')
    A('v_and_b32 v2, 1, v7')
    A('v_lshrrev_b32 v7, 1, v7')
    A('v_lshl_add_u32 v7, v2, 1, v7')
    A('v_lshrrev_b32 v2, 1, v6')
    A('v_xor_b32 v7, v7, v2')
    A('v_and_b32 v7, 3, v7')
    A('v_lshl_add_u32 v7, v6, 2, v7')
    A('s_lshl_b32 s15, s12, 12')
    A(f's_add_u32 s15, s15, {STG}')
    A('v_lshl_add_u32 v4, v7, 4, s15')
    A('v_lshrrev_b32 v6, 2, v1')
    A('v_lshrrev_b32 v7, 3, v1')
    A('v_xor_b32 v7, v7, v1')
    A('v_and_b32 v7, 3, v7')
    A('v_lshl_add_u32 v5, v1, 4, s15')
    A('v_lshlrev_b32 v6, 15, v6')
    A('v_lshl_add_u32 v6, v7, 4, v6')
    A('s_lshl_b32 s19, s10, 11')
    A('s_lshl_b32 s15, s13, 21')
    A('s_add_u32 s19, s19, s15')
    A('s_lshl_b32 s16, s16, 6')
    A('s_add_u32 s19, s19, s16')
    A('s_waitcnt vmcnt(0)')
    for i in range(2):
        for q in range(2):
            A(f'v_lshlrev_b32 v{B+4*i+2*q}, 16, v{EP+20+2*i+q}')
            A(f'v_and_b32 v{B+4*i+2*q+1}, 0xffff0000, v{EP+20+2*i+q}')
    T = 40
    for j in range(4):
        d = T + 8*j
        for i in range(2):
            a = AO + (i*4+j)*4; pr = PR + (i*4+j)*2
            for q in range(2):
                hreg = EP + 4*j + 2*i + q
                A(f'v_lshlrev_b32 v{d+4+2*q}, 16, v{hreg}')
                A(f'v_and_b32 v{d+5+2*q}, 0xffff0000, v{hreg}')
                A(f'v_lshlrev_b32 v{72+2*q}, 16, v{pr+q}')
                A(f'v_and_b32 v{73+2*q}, 0xffff0000, v{pr+q}')
            for q in range(2):
                A(f'v_pk_add_f32 {vr(a+2*q,2)}, {vr(a+2*q,2)}, {vr(72+2*q,2)}')
                A(f'v_pk_add_f32 {vr(d+4+2*q,2)}, {vr(d+4+2*q,2)}, {vr(B+4*i+2*q,2)}')
            for r in range(4): A(f'v_add_f32 v{d+4+r}, v{d+4+r}, v{EP+24+j}')
            for r in range(4): A(f'v_fma_f32 v{a+r}, v{a+r}, v{EP+16+j}, v{d+4+r}')
            A(f'v_cvt_pk_bf16_f32 v{d+2*i}, v{a}, v{a+1}')
            A(f'v_cvt_pk_bf16_f32 v{d+2*i+1}, v{a+2}, v{a+3}')
        A(f'v_permlane16_swap_b32 v{d}, v{d+2}')
        A(f'v_permlane16_swap_b32 v{d+1}, v{d+3}')
        A(f'ds_write_b128 v4, {vr(d,4)} offset:{1024*j}')
        A(f'ds_read_b128 {vr(76+4*j,4)}, v5 offset:{1024*j}')
        if j:
            A('s_waitcnt lgkmcnt(2)')
            A(f'buffer_store_dwordx4 {vr(72+4*j,4)}, v6, s[32:35], s19 offen {opt.get("omod", "sc1")}')
            A(f's_add_u32 s19, s19, {16*16*2048}')
    A('s_waitcnt lgkmcnt(0)')
    A(f'buffer_store_dwordx4 {vr(88,4)}, v6, s[32:35], s19 offen {opt.get("omod", "sc1")}')

def loaders(A, name, opt):
    NS = 4; N2 = opt.get('n2', 8); N1 = (56 - N2) // 2; NT = N1 + N2
    hm = opt.get('hmod', 'sc1')
    lst = Stamper(A, opt.get('stamp') == 1, 1)
    A('s_load_dwordx4 s[64:67], s[0:1], %d' % KA['w1'])
    A('s_load_dwordx2 s[48:49], s[0:1], %d' % KA['w2'])
    A('s_sub_u32 s12, s12, 4')
    g1_decode(A)
    A('s_lshl_b32 s15, s12, 16')
    A('v_lshlrev_b32 v8, 4, v1')
    A('v_add_u32 v8, s15, v8')
    A('v_add_u32 v9, 0x8000, v8')
    A('s_lshl_b32 s15, s12, 4')
    A('s_and_b32 s16, s11, 1')
    w_voffs(A, 10, 1, 15, 16, 4, range(7))
    A('s_lshl_b32 s43, s12, 12')
    A('s_mul_i32 s44, s12, 7168')
    A(f's_add_u32 s44, s44, {WB0}')
    A('s_mov_b32 s41, 0')
    A('s_mov_b32 s42, 0')
    A('s_lshl_b32 s15, s12, 12')
    A('v_lshlrev_b32 v3, 4, v1')
    A('v_add_u32 v3, s15, v3')
    A('v_and_b32 v17, 15, v1')
    A('v_lshlrev_b32 v17, 7, v17')
    A('v_mov_b32 v20, 1')
    A('v_mov_b32 v21, 0')
    A('s_and_b32 s13, s2, 7')
    A('s_sub_u32 s15, 16, s13')
    A('s_cmp_eq_u32 s13, 0')
    A('s_cselect_b32 s15, 8, s15')
    A('s_bitcmp1_b32 s2, 3')
    A('s_cselect_b32 s13, s15, s13')
    A('s_lshl_b32 s13, s13, 4')
    A('s_lshr_b32 s15, s2, 4')
    A('s_add_u32 s13, s13, s15')
    A('s_lshl_b32 s13, s13, 7')
    A('s_lshl_b32 s14, s10, 4')
    A('s_add_u32 s14, s14, s11')
    A('s_lshl_b32 s14, s14, 7')
    A(f's_add_u32 s14, s14, {FL2}')
    A('s_lshl_b32 s15, s10, 18')
    A(f's_add_u32 s15, s15, {HF_OFF}')
    A('s_mul_i32 s16, s11, 448')
    A(f's_sub_u32 s19, {1024*7168}, s16')
    A('s_waitcnt lgkmcnt(0)')
    srd(A, 20, 4, 's15', 256 * 1024)
    srd(A, 24, 64, 's16', 's19')
    A('s_lshl_b32 s15, s10, 14')
    A(f's_add_u32 s15, s15, {ST_OFF}')
    srd(A, 32, 4, 's15', 16384)
    A('s_lshl_b32 s15, s10, 9')
    A(f's_add_u32 s15, s15, {R2_OFF}')
    srd(A, 36, 4, 's15', 512)
    srd(A, 52, 4, FL_OFF, FL_SIZE)
    srd(A, 56, 48, 0, 3584 * 2048)
    A('s_lshl_b32 s60, s2, 2')
    A('s_add_u32 s60, s60, s12')
    A('s_lshl_b32 s60, s60, 9')
    A(f's_mov_b32 s50, {4 << 20}')
    hstep = [2048]
    A('v_mov_b32 v26, v8')
    A('v_mov_b32 v27, v9')
    def issue_h(lds):
        A(f's_add_u32 m0, {lds}, s43')
        A('s_nop 0')
        A(f'buffer_load_dwordx4 v8, s[20:23], s41 offen {hm} lds')
        A(f'buffer_load_dwordx4 v26, s[20:23], s41 offen offset:1024 {hm} lds')
        A('s_add_u32 m0, m0, 2048')
        A('s_nop 0')
        A(f'buffer_load_dwordx4 v9, s[20:23], s41 offen {hm} lds')
        A(f'buffer_load_dwordx4 v27, s[20:23], s41 offen offset:1024 {hm} lds')
        A(f's_add_u32 s41, s41, {hstep[0]}')
    def issue_w(lds, srdn=24, so='s42'):
        A(f's_add_u32 s45, {lds}, s44')
        for q in range(7):
            A(f's_add_u32 m0, s45, {q*1024}')
            A('s_nop 0')
            A(f'buffer_load_dwordx4 v{10+q}, s[{srdn}:{srdn+3}], {so} offen lds')
        if srdn == 24: A(f's_add_u32 s42, s42, {64*7168}')
    def sp2():
        for k in range(4): A(f's_buffer_load_dwordx2 s[62:63], s[56:59], s60 offset:{128*k + 60}')
        A('s_add_u32 s60, s60, s50')
        A('s_sub_u32 s50, 0x80000, s50')
    if opt.get('pf', 0) == 1: line_touch(A, 18, 19, 68, 64, 256 * 14336, 256, 15)
    def handoff(tag, sown, soth, ls=None):
        A('s_barrier')
        if ls: lst(ls)
        A('s_cmp_lg_u32 s12, 0')
        A(f's_cbranch_scc1 {tag}_go')
        A(f'buffer_store_dword v20, v21, s[52:55], s{sown} offen sc1')
        spin(A, tag, 52, soth, 36, 17, 47, opt.get('pdepth', 4), opt.get('pgap', 2))
        if ls: lst(ls + 1)
        A('s_barrier')
    nb = opt.get('nobar', 0)
    A('v_lshlrev_b32 v18, 2, v1')
    A('s_lshl_b32 s15, s12, 8')
    A(f's_add_u32 s15, s15, {SYB}')
    A('v_add_u32 v18, s15, v18')
    A('s_cmp_eq_u32 s12, 3')
    A(f's_cbranch_scc1 {name}_noclr')
    A('ds_write_b32 v18, v21')
    A.label(f'{name}_noclr')
    A(f's_add_u32 s15, s12, {SYB}')
    A('v_mov_b32 v18, s15')
    A(f'v_mov_b32 v19, {SYB}')
    A('s_waitcnt lgkmcnt(0)')
    def post(off): A(f'ds_write_b8 v18, v20 offset:{off}')
    def wait_free(tag, off):
        A.label(f'{tag}_o')
        A('v_mov_b32 v25, -1')
        A(f'ds_read_b32 v25, v19 offset:{off}')
        A.label(f'{tag}_i')
        A(f's_sleep {opt.get("fsl", 1)}')
        A('v_readfirstlane_b32 s51, v25')
        A('s_cmp_eq_u32 s51, -1')
        A(f's_cbranch_scc1 {tag}_i')
        A(f's_cmp_lg_u32 s51, {FULL}')
        A(f's_cbranch_scc1 {tag}_o')
    A('s_barrier')
    NW1 = opt.get('nw1', 3)
    for k in range(NW1): issue_w(k * WS)
    if opt.get('pf', 0) == 2: line_touch(A, 18, 19, 68, 64, 256 * 14336, 256, 15)
    sp2(); sp2()
    A('s_lshl_b32 s15, s10, 11')
    handoff(f'{name}_fl1', 13, 15)
    for k in range(3):
        issue_h(k * HS)
        if k >= NW1: issue_w(k * WS)
    for k in range(4): A(f'buffer_load_dwordx4 {vr(40+4*k,4)}, v3, s[32:35], 0 offen offset:{1024*k} sc1')
    A('s_mov_b32 s40, 0')
    A('s_mov_b32 s46, 0')
    c1 = lambda k: 4 + (7 if k >= NW1 else 0)
    A(f's_waitcnt vmcnt({c1(1) + c1(2) + 4})')
    A('s_barrier')
    A(f's_waitcnt vmcnt({c1(2) + 4})')
    if nb: post(R1 + 4)
    else: A('s_barrier')
    def issue(mid=None):
        issue_h('s40')
        if mid is not None:
            A('s_waitcnt vmcnt(4)')
            post(mid)
        issue_w('s46')
        A(f's_add_u32 s40, s40, {HS}')
        A(f's_add_u32 s46, s46, {WS}')
        A(f's_cmp_eq_u32 s40, {3*HS}')
        A('s_cselect_b32 s40, 0, s40')
        A('s_cselect_b32 s46, 0, s46')
    if nb: wait_free(f'{name}_f3', D1)
    issue(R1 + 8 if nb else None); sp2()
    if not nb:
        A('s_waitcnt vmcnt(11)')
        A('s_barrier')
    def stats():
        for k in range(4):
            A(f'v_add_f32 v{40+4*k}, v{40+4*k}, v{42+4*k}')
            A(f'v_add_f32 v{41+4*k}, v{41+4*k}, v{43+4*k}')
        for perm in ('quad_perm:[1,0,3,2]', 'quad_perm:[2,3,0,1]', 'row_half_mirror'):
            for k in range(4):
                for c in range(2):
                    A(f'v_add_f32_dpp v{40+4*k+c}, v{40+4*k+c}, v{40+4*k+c} {perm} row_mask:0xf bank_mask:0xf')
        A('v_and_b32 v4, 3, v1')
        for k in range(1, 4):
            A(f'v_cmp_eq_u32 vcc, {k}, v4')
            for c in range(2): A(f'v_cndmask_b32 v{40+c}, v{40+c}, v{40+4*k+c}, vcc')
        ln_finish(A, 40, 41, 22, 23, 24, 47)
        A('v_lshrrev_b32 v28, 16, v23')
        A('v_lshrrev_b32 v5, 3, v1')
        A('v_lshl_add_u32 v2, v4, 3, v5')
        A('s_lshl_b32 s15, s12, 7')
        A(f's_add_u32 s15, s15, {SGB}')
        A('v_lshl_add_u32 v5, v2, 2, s15')
        A('ds_write_b32 v5, v28')
        A('v_mul_f32 v23, v23, v23')
        A('v_rcp_f32 v23, v23')
        A('s_lshl_b32 s15, s12, 7')
        A('v_lshlrev_b32 v5, 2, v2')
        A('buffer_store_dword v23, v5, s[36:39], s15 offen sc1')
    if nb: wait_free(f'{name}_f4', D1 + 4)
    issue(R1 + 12 if nb else None); sp2()
    stats()
    if not nb:
        A('s_waitcnt vmcnt(12)')
        A('s_barrier')
    A('s_mov_b32 s18, 5')
    if nb:
        A('v_add_u32 v18, 16, v18')
        A('v_add_u32 v19, 8, v19')
    A.label(f'{name}_l1loop')
    if nb: wait_free(f'{name}_fl', D1)
    issue(R1 if nb else None)
    A('s_cmp_eq_u32 s18, 15')
    A(f's_cbranch_scc1 {name}_nosp')
    A('s_cmp_eq_u32 s18, 13')
    A('s_cselect_b32 s50, 0x80000, s50')
    sp2()
    A.label(f'{name}_nosp')
    A('s_add_u32 s18, s18, 1')
    A('s_cmp_lt_u32 s18, 16')
    if nb:
        A('v_add_u32 v18, 4, v18')
        A('v_add_u32 v19, 4, v19')
    else:
        A('s_waitcnt vmcnt(11)')
        A('s_barrier')
    A(f's_cbranch_scc1 {name}_l1loop')
    if nb:
        A('s_waitcnt vmcnt(0)')
        post(R1)
    g2_decode(A)
    gs = opt.get('gskip', 1); TT = GTT if gs else 112 * 1024; hstep[0] = GST if gs else 2048
    A(f's_mul_i32 s15, s12, {2*TT}')
    A('v_lshlrev_b32 v8, 4, v1')
    if gs:
        skipmap(A, 26, 8, 1, 4)
        skipmap(A, 8, 8, 0, 4)
        A('v_subrev_u32 v26, 1024, v26')
    else:
        A('v_mov_b32 v26, v8')
    A('v_add_u32 v8, s15, v8')
    A('v_add_u32 v26, s15, v26')
    A(f'v_add_u32 v9, {TT}, v8')
    A(f'v_add_u32 v27, {TT}, v26')
    A('v_lshrrev_b32 v4, 3, v1')
    A('s_lshl_b32 s15, s12, 4')
    A('v_add_u32 v4, s15, v4')
    A('v_lshlrev_b32 v4, 11, v4')
    A('v_and_b32 v5, 1, v1')
    A('v_lshl_add_u32 v4, v5, 4, v4')
    A('v_lshrrev_b32 v5, 4, v1')
    A('v_and_b32 v5, 1, v5')
    A('v_lshrrev_b32 v6, 1, v1')
    A('v_and_b32 v6, 3, v6')
    A('v_xor_b32 v5, v5, v6')
    A('v_lshl_add_u32 v4, v5, 5, v4')
    A('v_xor_b32 v5, 64, v4')
    A(f'v_add_u32 v5, {16384 - 1024}, v5')
    A('v_lshrrev_b32 v6, 3, v1')
    A('v_cmp_eq_u32 vcc, 3, v6')
    A('v_cndmask_b32 v6, v6, 7, vcc')
    for hsel, (va, sr_) in enumerate(((10, 24), (12, 32))):
        if hsel == 0: A('s_mov_b32 s16, s11')
        else: A('s_xor_b32 s16, s11, 1')
        A('s_and_b32 s19, s16, 8')
        A('v_add_u32 v7, s19, v6')
        A('v_lshlrev_b32 v14, 7, v7')
        A('v_xor_b32 v15, 0x400, v14')
        A('s_and_b32 s15, s16, 7')
        A('s_lshl_b32 s16, s16, 7')
        A('v_mov_b32 v7, s16')
        A(f's_add_u32 s{sr_}, s4, {WC_OFF}')
        A(f's_addc_u32 s{sr_+1}, s5, 0')
        A(f's_cmp_eq_u32 s15, {3 if opt.get("wcopy", 1) else 9}')
        A('s_cselect_b64 vcc, -1, 0')
        A(f's_cselect_b32 s{sr_}, s{sr_}, s48')
        A(f's_cselect_b32 s{sr_+1}, s{sr_+1}, s49')
        A(f's_mov_b32 s{sr_+2}, {3584*2048}')
        A(f's_mov_b32 s{sr_+3}, 0x20000')
        A('v_cndmask_b32 v14, v7, v14, vcc')
        A('v_cndmask_b32 v15, v7, v15, vcc')
        A(f'v_add_u32 v{va}, v4, v14')
        A(f'v_add_u32 v{va+1}, v5, v15')
    A('s_lshl_b32 s44, s12, 11')
    A('s_add_u32 s44, s44, 16384')
    def mask(st_): return sum(1 << x for x in st_)
    E0 = [x for x in range(N1) if x % 7 in (1, 2, 5, 6)]; E1 = [x for x in range(56 - N1, 56) if x % 7 in (1, 2, 5, 6)]
    NE = min(len(E0), len(E1)); E0 = E0[:NE]; E1 = E1[:NE]
    L0 = [x for x in range(N1) if x not in E0]; L1 = [x for x in range(56 - N1, 56) if x not in E1]
    for r, (m0, m1) in ((28, (mask(E0), mask(E1))), (30, (mask(L0), mask(L1)))):
        A('s_cmp_lg_u32 s8, 0')
        for h in range(2):
            A(f's_mov_b32 s{r+h}, {(m0 >> (32*h)) & 0xffffffff}')
            A(f's_mov_b32 s61, {(m1 >> (32*h)) & 0xffffffff}')
            A(f's_cselect_b32 s{r+h}, s61, s{r+h}')
    def nxt(r=28):
        A(f's_ff1_i32_b64 s61, s[{r}:{r+1}]')
        A(f's_bitset0_b64 s[{r}:{r+1}], s61')
    def seth(): A(f's_mul_i32 s41, s61, {hstep[0]}')
    def setw(): A('s_lshl_b32 s42, s61, 17')
    A(f's_mul_i32 s15, s10, {8*TT}')
    A(f's_add_u32 s15, s15, {GS_OFF if gs else G_OFF}')
    srd(A, 20, 4, 's15', 8 * TT)
    if not nb:
        A('s_waitcnt vmcnt(0) lgkmcnt(0)')
        A('s_barrier')
    def issue_w2(lds, full):
        A(f's_add_u32 m0, {lds}, s44')
        A('s_nop 0')
        A(f'buffer_load_dwordx4 v10, s[24:27], s42 offen lds')
        A(f'buffer_load_dwordx4 v11, s[24:27], s42 offen offset:1024 lds')
        if full:
            A('s_add_u32 m0, m0, 8192')
            A('s_nop 0')
            A(f'buffer_load_dwordx4 v12, s[32:35], s42 offen lds')
            A(f'buffer_load_dwordx4 v13, s[32:35], s42 offen offset:1024 lds')
        A(f's_add_u32 s42, s42, {64*2048}')
    def slotadv():
        A(f's_add_u32 s40, s40, {SLOT}')
        A(f's_cmp_eq_u32 s40, {NS*SLOT}')
        A('s_cselect_b32 s40, 0, s40')
    def issue2(full, r=None):
        if r is not None: nxt(r); seth(); setw()
        issue_h('s40'); issue_w2('s40', full)
        slotadv()
    A('s_lshl_b32 s15, s10, 11')
    A(f's_add_u32 s15, s15, {FL2}')
    prod = lambda E: sorted({(2*x) // 7 for x in E} | {(2*x + 1) // 7 for x in E})
    P0, P1 = prod(E0), prod(E1)
    assert len(P0) == len(P1) and P0 == list(range(P0[0], P0[0] + len(P0))) and P1 == list(range(P1[0], P1[0] + len(P1)))
    A(f's_mul_i32 s61, s8, {P1[0] - P0[0]}')
    A(f's_add_u32 s61, s61, {P0[0]}')
    A(f'v_min_u32 v17, {len(P0) - 1}, v1')
    A('v_add_u32 v17, s61, v17')
    A('v_lshlrev_b32 v17, 7, v17')
    A('s_barrier')
    for k in range(2):
        nxt(); setw(); A(f's_mul_i32 s{36+k}, s61, {hstep[0]}')
        issue_w2(k * SLOT, True)
    lst(1)
    handoff(f'{name}_fl2', 14, 15, 2)
    for k in range(2):
        A(f's_mov_b32 s41, s{36+k}')
        issue_h(k * SLOT)
    A(f's_mov_b32 s40, {2*SLOT}')
    issue2(True, 28); issue2(True, 28)
    A('s_waitcnt vmcnt(20)')
    lst(4)
    A('s_barrier')
    A('s_waitcnt vmcnt(16)')
    A('s_barrier')
    def loop(tag, n, r):
        A(f's_mov_b32 s18, {n}')
        A.label(f'{name}_{tag}')
        issue2(True, r)
        A('s_sub_u32 s18, s18, 1')
        A('s_cmp_lg_u32 s18, 0')
        A('s_waitcnt vmcnt(16)')
        A('s_barrier')
        A(f's_cbranch_scc1 {name}_{tag}')
    loop('l2a', 4, 28)
    A('s_cmp_lg_u32 s12, 0')
    A(f's_cbranch_scc1 {name}_nob')
    A(f's_add_u32 s14, s14, {FL4 - FL2}')
    A('buffer_store_dword v20, v21, s[52:55], s14 offen sc1')
    A.label(f'{name}_nob')
    loop('l2b', NE - NS - 5, 28)
    A(f's_add_u32 s15, s15, {FL4 - FL2}')
    A('v_and_b32 v17, 15, v1')
    A('v_lshlrev_b32 v17, 7, v17')
    A('buffer_load_dword v36, v17, s[52:55], s15 offen sc1')
    issue2(True, 28)
    A('s_waitcnt vmcnt(16)')
    A('s_barrier')
    A('s_waitcnt vmcnt(8)')
    A('v_cmp_ne_u32 vcc, 1, v36')
    A(f's_cbranch_vccz {name}_fl4_go')
    spin(A, f'{name}_fl4', 52, 15, 36, 17, 47, 1, 1)
    loop('l2c', N1 - NE, 30)
    A(f's_mov_b32 s41, {N1*hstep[0]}')
    A(f's_mov_b32 s42, {N1*64*2048}')
    cnt = lambda s: 0 if s >= NT else (8 if s < N1 else 6)
    for j in range(N1 - NS + 1, NT - 1):
        s = j + NS - 1
        if s < NT: issue2(False)
        A(f's_waitcnt vmcnt({sum(cnt(x) for x in range(j + 2, j + NS))})')
        A('s_barrier')
    if opt.get('stamp') == 1:
        lst(5); lst(6, True); lst(8)
        A('s_cmp_lg_u32 s12, 0')
        A(f's_cbranch_scc1 {name}_end')
        lst.dump(9, 1, 60)

def gen_m(A, name='m_kernel', opt=None):
    opt = opt or {}
    khead(A, name)
    st = Stamper(A, opt.get('stamp'), 1)
    st(0); st(7, True)
    A('s_cmp_ge_u32 s2, 256')
    A(f's_cbranch_scc1 {name}_end')
    A('s_load_dwordx2 s[4:5], s[0:1], %d' % KA['ws'])
    A('s_load_dwordx2 s[6:7], s[0:1], %d' % KA['x'])
    A('v_lshrrev_b32 v2, 6, v0')
    A('v_and_b32 v1, 63, v0')
    A('v_readfirstlane_b32 s12, v2')
    A('s_cmp_ge_u32 s12, 4')
    A(f's_cbranch_scc1 {name}_loader')
    if opt.get('prio'): A(f's_setprio {opt["prio"]}')
    fb_compute(A, name, st, opt)
    late = g1_compute(A, name, st, opt)
    g2_compute(A, name, st, opt, late)
    A('s_waitcnt vmcnt(0)') if opt.get('stamp') else None
    st(5); st(6, True)
    st.dump(13, 0, 244)
    A('s_endpgm')
    A.label(f'{name}_loader')
    loaders(A, name, opt)
    A.label(f'{name}_end')
    A('s_endpgm')
    return dict(name=name, grid=256, block=512, lds=M_LDS, vgpr=256)
```

```python
from common import *

XP = 2112; NP = 80; ZP = 1312
ZB = 16 * XP
RB = ZB + 16 * ZP
FA_LDS = RB + 64

def gen_fa(A, name='fa_kernel', opt=None):
    opt = opt or {}
    smod = opt.get('smod', 'sc1'); xmod = opt.get('xmod', 'nt')
    khead(A, name)
    st = Stamper(A, opt.get('stamp'), 0)
    st(0); st(7, True)
    A('s_cmp_ge_u32 s2, 256')
    A(f's_cbranch_scc1 {name}_end')
    A('s_load_dwordx2 s[6:7], s[0:1], %d' % KA['x'])
    A('s_load_dwordx2 s[4:5], s[0:1], %d' % KA['ws'])
    A('s_load_dwordx2 s[8:9], s[0:1], %d' % KA['w1'])
    A('s_load_dwordx2 s[60:61], s[0:1], %d' % KA['w2'])
    if opt.get('cpf', 1):
        A('s_getpc_b64 s[36:37]')
        A(f's_mov_b32 s38, CODE_END-{name}-64')
        A('s_mov_b32 s39, 0x20000')
        A('s_lshr_b32 s13, s2, 3')
        A('s_lshl_b32 s13, s13, 7')
        A('v_lshlrev_b32 v4, 12, v0')
        A('buffer_load_dword v88, v4, s[36:39], s13 offen')
    A('v_lshrrev_b32 v2, 6, v0')
    A('v_and_b32 v1, 63, v0')
    A('s_and_b32 s13, s2, 7')
    A('v_readfirstlane_b32 s12, v2')
    A('s_lshr_b32 s14, s2, 3')
    A('s_and_b32 s11, s14, 1')
    A('s_sub_u32 s15, 16, s13')
    A('s_cmp_eq_u32 s13, 0')
    A('s_cselect_b32 s15, 8, s15')
    A('s_bitcmp1_b32 s14, 1')
    A('s_cselect_b32 s10, s15, s13')
    A('s_lshr_b32 s15, s14, 2')
    A('s_lshl_b32 s15, s15, 4')
    A('s_add_u32 s10, s10, s15')
    A('v_lshrrev_b32 v4, 5, v1')
    A('v_lshlrev_b32 v4, 1, v4')
    A('v_xor_b32 v4, v4, v1')
    A('v_lshlrev_b32 v14, 4, v4')
    A('s_lshl_b32 s13, s12, 9')
    A('s_add_u32 s13, s13, s10')
    A('s_lshl_b32 s63, s13, 2')
    A('s_lshl_b32 s13, s13, 11')
    A(f's_mul_i32 s14, s12, {4*XP}')
    vn, vg = 2, 3
    M1, TC, TS, M2C, M2S, SA1, SA2, SGN, MU, ONES = 16, 24, 40, 56, 60, 64, 68, 72, 73, 76
    GA, SA = 80, 84
    vSt, vTr0, vTr1, vZw, vZr, vU, vE, vE0, vZx, vX0, vZ0 = 108, 90, 91, 92, 93, 94, 95, 96, 97, 98, 99
    F = 112; T = 144; AF = 208; TMP = 112; P = 128; D = 240
    A(f'v_and_b32 v{vn}, 15, v1')
    A(f'v_lshrrev_b32 v{vg}, 4, v1')
    A('s_lshl_b32 s43, s11, 4')
    A('s_add_u32 s43, s43, 1')
    A(f'v_and_b32 v5, 7, v{vn}')
    A('v_add_u32 v5, s43, v5')
    A('v_cvt_f32_u32 v5, v5')
    A(f'v_and_b32 v6, 8, v{vn}')
    A(f'v_cvt_f32_u32 v7, v{vg}')
    A('v_cvt_f32_u32 v8, v6')
    A('v_mul_f32 v9, 0x3d000000, v5')
    A('v_mul_f32 v8, 0x3d000000, v8')
    A('v_mul_f32 v12, 0x41000000, v7')
    A('v_fmac_f32 v8, v12, v9')
    def m1(hh8, th, dl):
        for j in range(8):
            if j: A(f'v_add_f32 v{th}, v{th}, v{dl}')
            A(f'v_cos_f32 v{10 + (j & 1)}, v{th}')
            if j & 1: A(f'v_cvt_pk_bf16_f32 v{M1 + 4*hh8 + j//2}, v10, v11')
    A('v_mov_b32 v13, v8')
    m1(0, 8, 9)
    A('s_waitcnt lgkmcnt(0)')
    srd(A, 20, 6, 0, 2048 * 2048)
    for r in range(4):
        A(f's_add_u32 m0, s14, {r*XP}')
        A('s_nop 0')
        A(f'buffer_load_dwordx4 v14, s[20:23], s13 offen {xmod} lds')
        A(f'buffer_load_dwordx4 v14, s[20:23], s13 offen offset:1024 {xmod} lds')
        if r < 3: A(f's_add_u32 s13, s13, {128*2048}')
    A('v_add_f32 v9, 0x3e800000, v9')
    m1(1, 13, 9)
    A(f'v_lshlrev_b32 v9, 28, v6')
    A(f'v_lshrrev_b32 v10, 16, v9')
    A(f'v_or_b32 v{SGN}, v9, v10')
    A('v_mul_f32 v12, 4.0, v7')
    for hh8 in range(2):
        if hh8: A('v_add_f32 v5, 0x41000000, v5')
        A('v_mul_f32 v13, 0x3a800000, v5')
        A('v_xor_b32 v15, v9, v13')
        A('v_mul_f32 v8, v12, v15')
        for hh in range(2):
            for r in range(4):
                o = 8*hh8 + 4*hh + r
                if r: A('v_add_f32 v8, v8, v15')
                elif hh: A('v_fmac_f32 v8, 0x41500000, v15')
                A(f'v_cos_f32 v{TC+o}, v8')
                A(f'v_sin_f32 v{TS+o}, v8')
    A('s_cmp_eq_u32 s11, 1')
    A('s_cselect_b32 s44, 0xc2000000, 0')
    A(f'v_mov_b32 v{MU}, s44')
    A(f'v_cmp_eq_u32 vcc, 7, v{vn}')
    A(f'v_cndmask_b32 v{MU}, 0, v{MU}, vcc')
    A(f'v_cvt_f32_u32 v5, v{vn}')
    A('v_mul_f32 v13, 0x3d000000, v5')
    A('v_mul_f32 v8, v12, v13')
    for j in range(8):
        if j == 4: A('v_fmac_f32 v8, 0x41500000, v13')
        elif j: A('v_add_f32 v8, v8, v13')
        A(f'v_cos_f32 v{10+(j&1)}, v8')
        A(f'v_sin_f32 v{14+(j&1)}, v8')
        if j & 1:
            A(f'v_cvt_pk_bf16_f32 v{M2C+j//2}, v10, v11')
            A(f'v_cvt_pk_bf16_f32 v{M2S+j//2}, v14, v15')
    for i in range(4): A(f'v_mov_b32 v{ONES+i}, 0x3f803f80')
    A(f'v_lshrrev_b32 v10, 2, v{vn}')
    A(f'v_and_b32 v11, 3, v{vn}')
    A(f'v_mul_u32_u24 v12, {XP}, v10')
    A(f'v_mul_u32_u24 v13, 528, v11')
    A('v_add3_u32 v12, v12, v13, s14')
    A(f'v_and_b32 v13, 1, v{vg}')
    A('v_lshl_add_u32 v12, v13, 8, v12')
    A(f'v_lshrrev_b32 v15, 1, v{vg}')
    A(f'v_lshl_add_u32 v{vSt}, v15, 7, v12')
    for e in range(1, 4): A(f'v_xor_b32 v{vSt+e}, {16*e}, v{vSt}')
    A('v_lshlrev_b32 v12, 6, v10')
    A(f'v_lshl_add_u32 v12, v{vg}, 9, v12')
    A('v_lshl_add_u32 v12, v11, 3, v12')
    A('v_lshl_add_u32 v12, v13, 5, v12')
    A(f'v_add_u32 v{vTr0}, s14, v12')
    A(f'v_xor_b32 v{vTr1}, 32, v{vTr0}')
    A(f's_mul_i32 s15, s12, {4*ZP}')
    A(f's_add_u32 s15, s15, {ZB}')
    A(f'v_mul_u32_u24 v{vZw}, {NP}, v{vn}')
    A(f'v_lshl_add_u32 v{vZw}, v{vg}, 4, v{vZw}')
    A(f'v_add_u32 v{vZw}, s15, v{vZw}')
    A(f'v_mul_u32_u24 v{vX0}, {XP}, v10')
    A(f'v_add_u32 v{vX0}, s14, v{vX0}')
    A(f'v_mul_u32_u24 v{vZ0}, {ZP}, v10')
    A('v_and_b32 v12, 1, v1')
    A(f'v_mul_u32_u24 v12, {8*NP}, v12')
    A(f'v_add3_u32 v{vZ0}, v{vZ0}, v12, s15')
    A('v_cmp_eq_u32 s[46:47], 1, v11')
    A('v_cmp_eq_u32 s[48:49], 2, v11')
    A('v_cmp_eq_u32 s[50:51], 3, v11')
    A(f'v_cmp_eq_u32 s[52:53], v10, v{vg}')
    A('s_cmp_eq_u32 s11, 0')
    A('s_cselect_b32 s16, 8192, 0')
    srd(A, 32, 4, MX_OFF, 's16')
    srd(A, 28, 4, U_OFF, 4 * MB)
    srd(A, 36, 4, E_OFF, 65536)
    A('s_lshr_b32 s65, s12, 1')
    A('s_cmp_lg_u32 s65, 0')
    A('s_cselect_b32 s44, 0.25, 0')
    A(f'v_lshlrev_b32 v8, 9, v{vg}')
    A('v_add_u32 v8, s10, v8')
    A('v_cvt_f32_u32 v8, v8')
    A('v_mul_f32 v13, 0x3a000000, v5')
    A('v_fma_f32 v8, v8, v13, s44')
    A('v_mul_f32 v13, 0x3d800000, v5')
    for j in range(4):
        if j: A('v_add_f32 v8, v8, v13')
        A(f'v_cos_f32 v{SA1+j}, v8')
        A(f'v_sin_f32 v{SA2+j}, v8')
    A(f'v_lshl_add_u32 v12, v{vg}, 2, v10')
    A(f'v_mul_u32_u24 v12, {ZP}, v12')
    A(f'v_add_u32 v{vZx}, {ZB + 64}, v12')
    A('v_lshl_add_u32 v12, v11, 3, v12')
    A('s_and_b32 s15, s12, 1')
    A('s_lshl_b32 s16, s15, 5')
    A(f's_add_u32 s16, s16, {ZB}')
    A(f'v_add_u32 v{vZr}, s16, v12')
    A(f'v_lshlrev_b32 v{vU}, 20, v{vg}')
    A('s_lshl_b32 s16, s15, 2')
    A('s_add_u32 s16, s16, s10')
    A('v_add_u32 v12, s16, v10')
    A('v_and_b32 v12, 7, v12')
    A(f'v_lshl_add_u32 v{vU}, v12, 7, v{vU}')
    A(f'v_lshl_add_u32 v{vU}, v11, 4, v{vU}')
    A('s_lshl_b32 s66, s65, 17')
    A('s_lshl_b32 s16, s10, 10')
    A('s_add_u32 s66, s66, s16')
    A('s_lshl_b32 s16, s11, 6')
    A('s_add_u32 s66, s66, s16')
    A('s_lshl_b32 s16, s15, 2')
    A('s_add_u32 s16, s16, 1')
    A('v_add_u32 v12, s16, v10')
    A(f'v_lshlrev_b32 v{vE0}, 14, v{vg}')
    A(f'v_lshl_add_u32 v{vE}, v12, 9, v{vE0}')
    A('v_cmp_gt_u32 vcc, 8, v12')
    A('s_and_b64 vcc, vcc, s[50:51]')
    A(f'v_cndmask_b32 v{vE}, 4.0, v{vE}, vcc')
    A(f'v_or_b32 v12, s15, v{vn}')
    A('v_cmp_eq_u32 vcc, 0, v12')
    A(f'v_cndmask_b32 v{vE0}, 4.0, v{vE0}, vcc')
    A('s_lshl_b32 s67, s65, 7')
    A('s_add_u32 s67, s67, s10')
    A('s_lshl_b32 s67, s67, 1')
    srd(A, 24, 4, 38 * MB, 1792 * 128)
    A('v_lshlrev_b32 v12, 7, v0')
    A('v_cmp_gt_u32 vcc, 7, v0')
    A('v_cndmask_b32 v12, 4.0, v12, vcc')
    A('s_mul_i32 s15, s2, 896')
    A('v_mov_b32 v13, 0')
    A('buffer_store_dword v13, v12, s[24:27], s15 offen')
    npf = 2
    srd(A, 24, 60, 0, 3584 * 2048)
    A('v_lshrrev_b32 v12, 4, v0')
    A('s_mul_i32 s15, s2, 14')
    A('v_add_u32 v12, s15, v12')
    A('v_and_b32 v13, 8, v0')
    A('v_and_b32 v14, 7, v0')
    A('v_lshlrev_b32 v14, 4, v14')
    A('v_lshl_add_u32 v14, v12, 11, v14')
    A('v_add_u32 v12, v12, v13')
    A('v_and_b32 v12, 15, v12')
    A('v_and_b32 v15, 7, v12')
    A('v_cmp_eq_u32 vcc, 3, v15')
    A('v_xor_b32 v15, 4, v12')
    A('v_cndmask_b32 v12, v12, v15, vcc')
    A('v_lshl_add_u32 v104, v12, 7, v14')
    A('v_lshl_add_u32 v14, v13, 7, v14')
    A('v_cmp_gt_u32 vcc, 224, v0')
    A('v_cndmask_b32 v14, 4.0, v14, vcc')
    A('v_cndmask_b32 v104, 4.0, v104, vcc')
    A('buffer_load_dwordx4 v[100:103], v14, s[24:27], 0 offen offset:384')
    if opt.get('tlb'):
        sh = opt['tlb']
        A('s_load_dwordx2 s[68:69], s[0:1], %d' % KA['out'])
        A('s_lshr_b32 s15, s2, 3')
        A(f's_lshl_b32 s15, s15, {sh + 2}')
        A('s_lshl_b32 s16, s12, %d' % sh)
        A('s_add_u32 s15, s15, s16')
        srd(A, 24, 4, 0, 72 * MB)
        A(f'v_lshlrev_b32 v12, {sh + 7}, v1')
        A('v_cmp_gt_u32 vcc, %d, v1' % max(1, (72 * MB >> (sh + 7)) + 1))
        A('v_cndmask_b32 v12, 4.0, v12, vcc')
        A('buffer_load_dword v87, v12, s[24:27], s15 offen')
        A('s_waitcnt lgkmcnt(0)')
        srd(A, 24, 68, 0, 4 * MB)
        A('buffer_load_dword v87, v12, s[24:27], s15 offen')
        npf += 2
    if opt.get('pf', 1):
        srd(A, 24, 8, 0, 1024 * 7168)
        A('v_lshlrev_b32 v12, 7, v0')
        nl = 224 if opt.get('pf', 1) == 1 else 112
        A(f'v_cmp_gt_u32 vcc, {nl}, v0')
        A('v_cndmask_b32 v12, 4.0, v12, vcc')
        A(f's_mul_i32 s15, s2, {nl*128}')
        A('buffer_load_dword v89, v12, s[24:27], s15 offen')
        npf += 1
    st(1)
    A(f's_waitcnt vmcnt({npf})')
    st(2)
    E = AutoLgkm(A)
    def mf(d, a, b, z): return f'v_mfma_f32_16x16x32_bf16 {vr(d,4)}, {vr(a,4)}, {vr(b,4)}, {"0" if z else vr(d,4)}'
    def s1rd(r): return [f'ds_read_b64_tr_b16 {vr(AF+8*r+4*hh+2*rd,2)}, v{vTr0 if hh == 0 else vTr1} offset:{r*XP + 256*rd}' for hh in range(2) for rd in range(2)]
    frd = [f'ds_read_b128 {vr(F+4*i,4)}, v{vSt + (i&3)} offset:{64*(i>>2)}' for i in range(8)] + [f'ds_read_u16 v{vX0}, v{vX0}']
    def s1(r): return [mf(T + 16*r + 8*hh8 + 4*hh, AF + 8*r + 4*hh, M1 + 4*hh8, True) for hh8 in range(2) for hh in range(2)]
    for x in s1rd(0) + s1rd(1) + s1rd(2) + frd[:3]: E(x)
    for x in weave(s1(0) + s1(1), s1rd(3) + frd[3:], per=2) + s1(2) + s1(3): E(x)
    D0 = AF + 16; D1 = D
    def tw(r, hh8, tm, p):
        t = T + 16*r + 8*hh8; d = (D1 if hh8 else D0) + 4*r
        return [f'v_pk_mul_f32 {vr(tm+k,2)}, {vr(t+k,2)}, {vr(TC+8*hh8+k,2)}' for k in range(0, 8, 2)] + \
               [f'v_fmac_f32_dpp v{tm+k}, v{t+k}, v{TS+8*hh8+k} row_ror:8 row_mask:0xf bank_mask:0xf' for k in range(8)] + \
               [f'v_cvt_pk_bf16_f32 v{p+k}, v{tm+2*k}, v{tm+2*k+1}' for k in range(4)] + [mf(d, M2C, p, True)] + \
               [f'v_xor_b32_dpp v{p+4+k}, v{p+k}, v{SGN} row_ror:8 row_mask:0xf bank_mask:0xf' for k in range(4)], mf(d, M2S, p + 4, False)
    stm = [x for i in range(8) for x in (mf(SA, ONES, F+4*i, i == 0), mf(GA, F+4*i, F+4*i, i == 0))]
    t0 = []
    for r in range(4):
        a, b = tw(r, 0, AF, AF + 8)
        t0 += a[:6] + ([pb] if r else []) + a[6:]
        pb = b
    mean = [f'v_add_f32_dpp v11, v{SA}, v{SA} quad_perm:[1,0,3,2] row_mask:0xf bank_mask:0xf', f'v_cndmask_b32 v10, v{GA}, v{GA+1}, s[46:47]',
            f'v_lshlrev_b32 v{vX0}, 16, v{vX0}', 'v_add_f32_dpp v11, v11, v11 quad_perm:[2,3,0,1] row_mask:0xf bank_mask:0xf',
            f'v_cndmask_b32 v10, v10, v{GA+2}, s[48:49]', 'v_mul_f32 v15, 0x3a800000, v11', f'v_cndmask_b32 v10, v10, v{GA+3}, s[50:51]'] + \
           [f'v_readlane_b32 s{56+r}, v15, {4*r}' for r in range(4)]
    for x in weave(stm, t0[:48], per=3) + weave(t0[48:], mean, start=6, per=1) + [pb]: E(x)
    class L(list):
        def __call__(self, t): self.append(t)
    sg = L()
    sg('v_add_f32_dpp v10, v10, v10 quad_perm:[1,0,3,2] row_mask:0xf bank_mask:0xf')
    sg(f'v_sub_f32 v{vX0}, v{vX0}, v15')
    sg('v_add_f32_dpp v10, v10, v10 quad_perm:[2,3,0,1] row_mask:0xf bank_mask:0xf')
    ln_finish(sg, 11, 10, 12, 13, 14, 45)
    sg('v_rcp_f32 v13, v13')
    sg(f'v_lshlrev_b32 v12, 9, v{vg}'); sg(f'v_lshlrev_b32 v10, 2, v{vg}'); sg('s_lshl_b32 s15, s12, 4'); sg(f's_add_u32 s15, s15, {RB}')
    sg('v_add_u32 v10, s15, v10')
    def fin(r):
        return [f'v_cvt_pk_bf16_f32 v{D0+4*r+k}, v{D0+4*r+k}, v{D1+4*r+k}' for k in range(4)] + [f'ds_write_b128 v{vZw}, {vr(D0+4*r,4)} offset:{r*ZP}']
    t1 = []
    for r in range(4):
        a, b = tw(r, 1, TMP, P + 8*(r & 1))
        pre = [f'v_mul_f32 v8, s{56+r}, v{MU}', 'v_mov_b32 v9, v8'] + [f'v_pk_add_f32 {vr(T+16*r+8+k,2)}, {vr(T+16*r+8+k,2)}, v[8:9]' for k in range(0, 8, 2)]
        t1 += pre[:2] + ([pb] if r else []) + pre[2:] + a[:12] + (fin(r - 1) if r else []) + a[12:]
        pb = b
    for x in weave(t1[:2*len(sg)], list(sg), per=1)[:]: E(x)
    A('s_mov_b64 exec, s[52:53]')
    E('ds_write_b32 v10, v13')
    A('buffer_store_dword v15, v12, s[32:35], s63 offen')
    A('s_mov_b64 exec, -1')
    x0 = ['v_mov_b32 v11, 0', f'v_cvt_pk_bf16_f32 v10, v{vX0}, v11', 's_mov_b32 vcc_lo, 0x55555555', 's_mov_b32 vcc_hi, 0x55555555',
          'v_cndmask_b32 v10, 0, v10, vcc', f'ds_write_b64 v{vZ0}, v[10:11] offset:64']
    for x in weave(t1[2*len(sg):], x0, per=1): E(x)
    E(pb)
    A(f'v_lshlrev_b32 v10, 4, v{vg}')
    A(f'v_add_u32 v10, {RB}, v10')
    for x in fin(3): E(x)
    st(3)
    A('s_waitcnt lgkmcnt(0)')
    A('s_barrier')
    st(8)
    RS = F; AM = F + 4; ZF = T; O = T + 36
    A(f'ds_read_b128 {vr(RS,4)}, v10')
    for tau in range(9):
        if tau == 7: A('s_waitcnt lgkmcnt(14)')
        for rd in range(2):
            if tau < 8: A(f'ds_read_b64_tr_b16 {vr(ZF + tau*4 + 2*rd, 2)}, v{vZr} offset:{(rd*8 + tau)*NP}')
            else: A(f'ds_read_b64_tr_b16 {vr(ZF + tau*4 + 2*rd, 2)}, v{vZx} offset:{rd*8*NP}')
    for j in range(0, 4, 2):
        A(f'v_pk_mul_f32 {vr(SA1+j,2)}, {vr(SA1+j,2)}, {vr(RS+j,2)}')
        A(f'v_pk_mul_f32 {vr(SA2+j,2)}, {vr(SA2+j,2)}, {vr(RS+j,2)}')
    for k in range(4): A(f'v_cvt_pk_bf16_f32 v{AM+k}, v{SA1+2*k}, v{SA1+2*k+1}')
    for tau in range(9):
        if tau % 2 == 0: A(f's_waitcnt lgkmcnt({max(14 - 2*tau, 0)})')
        mfma(A, O + 4*tau, AM, ZF + tau*4, '0')
    for r in range(4):
        b = P + 4*r
        for k in range(4): A(f'v_cvt_pk_bf16_f32 v{b+k}, v{O+8*k+r}, v{O+8*k+4+r}')
        A(f'buffer_store_dwordx4 {vr(b,4)}, v{vU}, s[28:31], s66 offen {smod}')
        if r < 3: A('s_add_u32 s66, s66, 0x40000')
    srd(A, 24, 4, WC_OFF, 3584 * 2048)
    A(f's_waitcnt vmcnt({npf + 3})')
    A('buffer_store_dwordx4 v[100:103], v104, s[24:27], 0 offen')
    A('s_cmp_eq_u32 s11, 0')
    A(f's_cbranch_scc1 {name}_c0')
    for r in range(4):
        A(f'buffer_store_short_d16_hi v{P+4*r+3}, v{vE}, s[36:39], s67 offen')
        if r < 3: A('s_add_u32 s67, s67, 4096')
    A(f's_branch {name}_fin')
    A.label(f'{name}_c0')
    for r in range(4):
        A(f'v_cvt_pk_bf16_f32 v{O+32+r}, v{O+32+r}, v{O+32+r}')
        A(f'buffer_store_short v{O+32+r}, v{vE0}, s[36:39], s67 offen')
        if r < 3: A('s_add_u32 s67, s67, 4096')
    A.label(f'{name}_fin')
    st(4)
    A('s_waitcnt vmcnt(0)') if opt.get('stamp') else None
    st(5); st(6, True)
    st.dump(9, 0, 108)
    A.label(f'{name}_end')
    A('s_endpgm')
    return dict(name=name, grid=256, block=256, lds=FA_LDS, vgpr=256)
```

```python
from common import *
from g1 import w_voffs, tr_bases

HS = 16384; WS = 28672; WB0 = 3 * HS
XB = 32768; EB = WB0 + 3 * WS
SLOT = 32768
SGB = EB + 1024
SYB = SGB + 512
R1, D1, R2W, D2 = 0, 64, 128, 384
STG = SYB + 768
M_LDS = STG + 16384
FULL = 0x01010101
PX_OFF = 29 * MB
FL_OFF = 38 * MB
GS_OFF = 40 * MB; GST = 3072; GTT = 56 * GST
FL1, FL2, FL3, FL4 = 0, 32768, 65536, 196608
FL_SIZE = 1792 * 128

def spin(A, tag, srdn, soff, vflag, vaddr, scnt, depth=4, gap=2):
    A(f's_mov_b32 s{scnt}, 400000')
    ld = lambda k: A(f'buffer_load_dword v{vflag+k}, v{vaddr}, s[{srdn}:{srdn+3}], s{soff} offen sc1')
    for k in range(depth - 1):
        ld(k); A(f's_sleep {gap}')
    A.label(f'{tag}_spin')
    for k in range(depth):
        ld((k + depth - 1) % depth)
        A(f's_waitcnt vmcnt({depth - 1})')
        A(f'v_cmp_ne_u32 vcc, 1, v{vflag+k}')
        A(f's_cbranch_vccz {tag}_go')
        A(f's_sleep {gap}')
    A(f's_sub_u32 s{scnt}, s{scnt}, 1')
    A(f's_cbranch_scc0 {tag}_spin')
    A.label(f'{tag}_go')

def skipmap(A, dst, src, odd, t):
    if odd:
        A(f'v_cmp_lt_u32 vcc, 255, v{src}')
        A(f'v_add_u32 v{dst}, {1024 + 128}, v{src}')
    else:
        A(f'v_cmp_lt_u32 vcc, 383, v{src}')
        if dst != src: A(f'v_mov_b32 v{dst}, v{src}')
    A(f'v_add_u32 v{t}, 128, v{dst}')
    A(f'v_cndmask_b32 v{dst}, v{dst}, v{t}, vcc')

def g1_decode(A):
    A('s_and_b32 s8, s2, 7')
    A('s_lshr_b32 s9, s2, 3')
    A('s_and_b32 s10, s8, 1')
    A('s_lshl_b32 s10, s10, 3')
    A('s_and_b32 s11, s9, 7')
    A('s_add_u32 s10, s10, s11')
    A('s_lshr_b32 s11, s8, 1')
    A('s_lshl_b32 s11, s11, 2')
    A('s_lshr_b32 s9, s9, 3')
    A('s_add_u32 s11, s11, s9')

def g2_decode(A):
    A('s_mov_b32 s9, s11')
    A('s_lshr_b32 s8, s9, 3')
    A('s_and_b32 s11, s9, 7')
    A('s_lshl_b32 s11, s11, 1')
    A('s_add_u32 s11, s11, s8')

def fb_compute(A, name, st, opt):
    A('s_and_b32 s13, s2, 7')
    A('s_lshr_b32 s14, s2, 3')
    A('s_sub_u32 s15, 16, s13')
    A('s_cmp_eq_u32 s13, 0')
    A('s_cselect_b32 s15, 8, s15')
    A('s_bitcmp1_b32 s14, 0')
    A('s_cselect_b32 s10, s15, s13')
    A('s_lshr_b32 s11, s14, 1')
    A('s_sub_u32 s16, 16, s10')
    A('s_and_b32 s16, s16, 15')
    A('s_sub_u32 s17, 15, s11')
    A('s_lshr_b32 s19, s11, 3')
    A('s_cmp_lg_u32 s19, 0')
    A('s_cselect_b32 s16, s16, s10')
    A('s_cselect_b32 s17, s17, s11')
    vn, vg = 2, 3
    A(f'v_and_b32 v{vn}, 15, v1')
    A(f'v_lshrrev_b32 v{vg}, 4, v1')
    A('v_lshrrev_b32 v6, 3, v1')
    A(f'v_and_b32 v7, 1, v{vg}')
    A('v_lshrrev_b32 v8, 1, v1')
    A('v_and_b32 v8, 3, v8')
    A('v_xor_b32 v7, v7, v8')
    A('v_lshlrev_b32 v7, 5, v7')
    A('v_lshl_add_u32 v4, v6, 10, v7')
    A('v_and_b32 v7, 1, v1')
    A('v_lshl_add_u32 v4, v7, 4, v4')
    A('v_add_u32 v7, s17, v6')
    A('v_and_b32 v7, 7, v7')
    A('v_lshl_add_u32 v4, v7, 7, v4')
    A('v_xor_b32 v5, 64, v4')
    A(f'v_add_u32 v5, {8192 - 1024}, v5')
    A('s_lshl_b32 s14, s16, 2')
    A('s_add_u32 s14, s14, s12')
    A('s_lshl_b32 s14, s14, 16')
    A('s_lshl_b32 s18, s12, 13')
    A(f'v_xor_b32 v8, v{vg}, v1')
    A('v_and_b32 v8, 7, v8')
    A('v_lshlrev_b32 v8, 4, v8')
    A('v_lshl_add_u32 v6, v6, 15, v8')
    A('v_xor_b32 v7, 64, v6')
    A(f'v_add_u32 v7, {8*32768 - 1024}, v7')
    A('s_lshl_b32 s61, s12, 19')
    A('s_lshl_b32 s15, s10, 11')
    A('s_add_u32 s61, s61, s15')
    A('s_lshl_b32 s15, s11, 7')
    A('s_add_u32 s61, s61, s15')
    A('s_lshl_b32 s62, s12, 12')
    A(f's_add_u32 s62, s62, {XB}')
    A('s_lshl_b32 s63, s10, 3')
    A('s_add_u32 s63, s63, s11')
    A('s_lshl_b32 s63, s63, 9')
    A('s_sub_u32 s63, s63, 512')
    A('s_sub_u32 s15, s11, 1')
    A('s_cmp_lt_u32 s15, 7')
    A('s_cselect_b32 s63, s63, 0x40000000')
    A('s_lshl_b32 s15, s16, 12')
    A('v_mov_b32 v9, s15')
    A('v_mov_b32 v10, s63')
    A('v_cmp_gt_u32 vcc, 32, v1')
    A('v_cndmask_b32 v9, v10, v9, vcc')
    A('v_lshl_add_u32 v9, v1, 4, v9')
    A(f'v_lshlrev_b32 v10, 6, v{vn}')
    A('s_lshl_b32 s15, s12, 8')
    A('s_add_u32 s15, s15, s10')
    A('s_lshl_b32 s15, s15, 2')
    A('s_waitcnt lgkmcnt(0)')
    srd(A, 20, 4, U_OFF, 4 * MB)
    srd(A, 28, 4, E_OFF, 65536)
    for h in range(4):
        A(f's_add_u32 m0, s18, {h*2048}')
        A('s_nop 0')
        A(f'buffer_load_dwordx4 v4, s[20:23], s14 offen lds')
        A(f'buffer_load_dwordx4 v5, s[20:23], s14 offen offset:1024 lds')
        if h < 3: A('s_add_u32 s14, s14, 16384')
    A(f's_mov_b32 m0, {EB}')
    srd(A, 24, 6, 0, 2048 * 2048)
    A('buffer_load_dwordx4 v9, s[28:31], 0 offen lds')
    FR = [16, 48]; EF = 80; B = [112, 144]; ACC = [176, 192]; MA = [208, 212]; VT = 216; VX = 220; X = [224, 232]; VB = 240; MXV = [241, 242]; VH = 243; VE = 244
    srd(A, 40, 4, MX_OFF, 8192)
    for u in range(2):
        A(f's_add_u32 m0, s62, {u*2048}')
        if u: A(f's_add_u32 s61, s61, {4 << 19}')
        else: A('s_nop 0')
        A('buffer_load_dwordx4 v6, s[24:27], s61 offen lds')
        A('buffer_load_dwordx4 v7, s[24:27], s61 offen offset:1024 lds')
    A('s_add_u32 s14, s15, 4096')
    A(f'buffer_load_dword v{MXV[0]}, v10, s[40:43], s15 offen')
    A(f'buffer_load_dword v{MXV[1]}, v10, s[40:43], s14 offen')
    A('s_lshl_b32 s15, s12, 4')
    A(f'v_add_u32 v6, s15, v{vn}')
    A('s_cmp_lg_u32 s10, 0')
    A('s_cselect_b32 s15, -1, 0')
    A('v_sub_u32 v7, s15, v6')
    A('s_cmp_lg_u32 s19, 0')
    A('s_cselect_b64 vcc, -1, 0')
    A('v_cndmask_b32 v6, v6, v7, vcc')
    A('v_and_b32 v6, 127, v6')
    A('v_cvt_f32_u32 v7, v6')
    A('v_mul_f32 v7, 0x3c000000, v7')
    A(f'v_lshlrev_b32 v10, 3, v{vg}')
    A('v_cvt_f32_u32 v10, v10')
    A('v_mul_f32 v10, v10, v7')
    B0 = B[0]
    for j in range(8):
        if j: A('v_add_f32 v10, v10, v7')
        A(f'v_cos_f32 v{12+(j&1)}, v10')
        A(f'v_sin_f32 v{14+(j&1)}, v10')
        if j & 1:
            A(f'v_cvt_pk_bf16_f32 v{B0+j//2}, v12, v13')
            A(f'v_cvt_pk_bf16_f32 v{B0+16+j//2}, v14, v15')
    A('v_and_b32 v8, 1, v6')
    A('v_cmp_eq_u32 vcc, 1, v8')
    A('v_mul_u32_u24 v8, 0x8000, v8')
    A('v_lshl_or_b32 v8, v8, 16, v8')
    A('v_and_b32 v10, 2, v6')
    A('v_mul_u32_u24 v10, 0x4000, v10')
    A('v_lshl_or_b32 v10, v10, 16, v10')
    A('v_xor_b32 v11, v10, v8')
    for k in range(4):
        A(f'v_cndmask_b32 v12, v{B0+k}, v{B0+16+k}, vcc')
        A(f'v_cndmask_b32 v13, v{B0+16+k}, v{B0+k}, vcc')
        A(f'v_xor_b32 v{B0+4+k}, v11, v12')
        A(f'v_xor_b32 v{B0+20+k}, v10, v13')
    for k in range(8):
        A(f'v_xor_b32 v{B0+8+k}, v8, v{B0+k}')
        A(f'v_xor_b32 v{B0+24+k}, v8, v{B0+16+k}')
    A('s_brev_b32 s15, 1')
    for k in range(32): A(f'v_xor_b32 v{B[1]+k}, s15, v{B0+k}')
    A(f'v_lshrrev_b32 v10, 2, v{vn}')
    A(f'v_lshl_add_u32 v10, v{vg}, 3, v10')
    A(f'v_lshrrev_b32 v11, 3, v{vn}')
    A(f'v_and_b32 v12, 1, v{vg}')
    A('v_lshl_add_u32 v11, v12, 1, v11')
    A('v_lshlrev_b32 v11, 5, v11')
    A('v_lshl_add_u32 v10, v10, 7, v11')
    A(f'v_and_b32 v11, 3, v{vn}')
    A(f'v_lshl_add_u32 v{VT}, v11, 3, v10')
    A('s_mul_i32 s15, s19, 96')
    A(f'v_xor_b32 v{VT}, s15, v{VT}')
    for i in range(1, 4): A(f'v_xor_b32 v{VT+i}, {(2*(i&1) + (i>>1))*32}, v{VT}')
    A(f'v_and_b32 v11, 1, v{vn}')
    A('v_lshlrev_b32 v11, 9, v11')
    A(f'v_lshl_add_u32 v11, v{vg}, 4, v11')
    A(f'v_add_u32 v{VE}, {EB}, v11')
    A('s_mul_i32 s15, s19, 3')
    A(f'v_xor_b32 v10, s15, v{vg}')
    A('v_lshrrev_b32 v11, 1, v10')
    A(f'v_lshrrev_b32 v12, 1, v{vn}')
    A('v_xor_b32 v11, v11, v12')
    A('v_lshlrev_b32 v11, 4, v11')
    A(f'v_lshl_add_u32 v11, v{vn}, 7, v11')
    A('v_and_b32 v12, 1, v10')
    A('v_lshl_add_u32 v11, v12, 3, v11')
    A(f'v_add_u32 v{VX}, s62, v11')
    for i in range(1, 4): A(f'v_xor_b32 v{VX+i}, {32*i}, v{VX}')
    A(f'v_lshl_add_u32 v10, v10, 4, v{vn}')
    A(f'v_lshlrev_b32 v{VH}, 4, v10')
    A('v_add_u32 v10, 48, v1')
    A('v_and_b32 v10, 63, v10')
    A(f'v_lshlrev_b32 v{VB}, 2, v10')
    A(f'v_cmp_eq_u32 s[46:47], 0, v{vg}')
    srd(A, 52, 4, HF_OFF, 4 * MB)
    srd(A, 56, 4, ST_OFF, 2048 * 128)
    A('s_cmp_eq_u32 s11, 0')
    A('s_cselect_b32 s15, 8192, 0')
    srd(A, 32, 4, MU_OFF, 's15')
    srd(A, 36, 4, FL_OFF, FL_SIZE)
    A('s_lshl_b32 s13, s10, 3')
    A('s_add_u32 s13, s13, s12')
    st(1)
    A('s_waitcnt vmcnt(6)')
    A('s_barrier')
    st(2)
    def frag(i, p): return FR[i & 1] + 4 * p
    def rd(h):
        i = h >> 1
        return [f'ds_read_b64_tr_b16 {vr(frag(i,p)+2*r2,2)}, v{VT+i} offset:{(32*p+4*r2)*128}' for p in range(4*(h & 1), 4*(h & 1) + 4) for r2 in range(2)]
    def mf(d, a, b, z): return f'v_mfma_f32_16x16x32_bf16 {vr(d,4)}, {vr(a,4)}, {vr(b,4)}, {"0" if z else vr(d,4)}'
    def half(h): return [mf(ACC[u] + 4*(h >> 1), frag(h >> 1, p), B[u] + 4*p, p == 0) for p in range(4*(h & 1), 4*(h & 1) + 4) for u in range(2)]
    ONE = 4; S = [5, 7]; Q = [6, 8]; TM = EF; OUT = EF + 16
    E = AutoLgkm(A)
    for x in rd(0) + [f'ds_read_b128 {vr(EF+4*p,4)}, v{VE} offset:{64*p}' for p in range(8)]: E(x)
    for x in weave(half(0), rd(1), per=2): E(x)
    for x in weave([mf(MA[u], EF + 4*p, B[u] + 4*p, p == 0) for p in range(8) for u in range(2)], rd(2), per=1): E(x)
    misc = [f'v_mov_b32 v{ONE}, 0x3f803f80'] + [f'v_mov_b32 v{r}, 0' for r in S + Q] + [f'v_lshlrev_b32 v9, 2, v{vn}', 's_lshl_b32 s60, s13, 6',
            's_lshl_b32 s14, s13, 15', 's_lshl_b32 s15, s11, 11', 's_add_u32 s14, s14, s15', 's_add_u32 s15, s14, 0x20000']
    for x in weave(half(1), rd(3) + misc, per=3): E(x)
    xr = ['s_waitcnt vmcnt(0)'] + [f'ds_read_b64 {vr(X[u]+2*k2,2)}, v{VX+k2} offset:{u*2048}' for k2 in range(4) for u in range(2)]
    for x in weave(half(2), rd(4) + xr, per=3): E(x)
    for x in weave(half(3), rd(5) + [f'v_add_f32 v{MA[u]}, v{MA[u]}, v{MXV[u]}' for u in range(2)], per=2): E(x)
    def epi(V, pr):
        out = []
        for u in range(2):
            o = OUT + 8*u + 4*pr
            for i2 in range(2):
                i = 2*pr + i2; t = TM + 8*u + 4*i2
                for q in range(2):
                    r_ = X[u] + 2*i + q
                    out += [f'v_lshlrev_b32 v{t+2*q}, 16, v{r_}', f'v_and_b32 v{t+1+2*q}, 0xffff0000, v{r_}']
                out += [f'v_sub_f32 v{t+r}, v{t+r}, v{MA[u]}' for r in range(4)]
                out += [f'v_add_f32 v{t+r}, v{t+r}, v{V[u][i][r]}' for r in range(4)]
                out += [f'v_cvt_pk_bf16_f32 v{o+2*i2+q}, v{t+2*q}, v{t+1+2*q}' for q in range(2)]
            out.append(f'buffer_store_dwordx4 {vr(o,4)}, v{VH}, s[52:55], s{14+u} offen offset:{pr*1024} sc1')
        return out
    def dots(pr): return [x for u in range(2) for k in range(4) for x in
                          (f'v_dot2_f32_bf16 v{S[u]}, v{OUT+8*u+4*pr+k}, v{ONE}, v{S[u]}', f'v_dot2_f32_bf16 v{Q[u]}, v{OUT+8*u+4*pr+k}, v{OUT+8*u+4*pr+k}, v{Q[u]}')]
    RP = 10; SH = 248
    A('s_cmp_lg_u32 s19, 0')
    A(f's_cbranch_scc1 {name}_up')
    pend0 = list(E.pend)
    for lower in (1, 0):
        if not lower:
            A.label(f'{name}_up'); A('s_nop 7'); E.pend = list(pend0)
        if lower:
            V = [[[SH+4*u+i, ACC[u]+4*i, ACC[u]+4*i+1, ACC[u]+4*i+2] for i in range(4)] for u in range(2)]
            def rot(i): return [f'ds_bpermute_b32 v{RP+3*u+(i%3)}, v{VB}, v{ACC[u]+4*i+3}' for u in range(2)]
            def sel(i): return [f'v_cndmask_b32 v{SH+4*u+i}, v{RP+3*u+(i%3)}, v{RP+3*u+((i-1)%3) if i else MA[u]+1}, s[46:47]' for u in range(2)]
        else:
            V = [[[ACC[u]+4*i+3-r for r in range(4)] for i in range(4)] for u in range(2)]
            rot = sel = lambda i: []
        for x in weave(half(4), rot(0) + rd(6) + rot(1), per=2): E(x)
        e0 = sel(0) + sel(1) + epi(V, 0)
        for x in weave(half(5), rd(7) + e0[:16], per=3): E(x)
        for x in weave(half(6) + half(7), rot(2) + e0[16:] + dots(0), start=2, per=4): E(x)
        for x in rot(3) + sel(2) + sel(3) + epi(V, 1) + dots(1): E(x)
        E.drain()
        if lower: A(f's_branch {name}_join')
    A.label(f'{name}_join')
    st(3)
    A(f'buffer_store_dword v{MA[0]}, v9, s[32:35], s60 offen sc1')
    A(f'buffer_store_dword v{MA[1]}, v9, s[32:35], s60 offen offset:256 sc1')
    A(f'v_lshlrev_b32 v40, 7, v{vn}')
    A(f'v_lshrrev_b32 v41, 1, v{vg}')
    A('v_lshl_add_u32 v40, v41, 2, v40')
    A('s_lshl_b32 s14, s13, 11')
    A('s_lshl_b32 s15, s11, 3')
    A('s_add_u32 s14, s14, s15')
    A('s_add_u32 s15, s14, 8192')
    for u in range(2): A(f'v_permlane32_swap_b32 v{S[u]}, v{Q[u]}')
    for u in range(2): A(f'v_add_f32 v{S[u]}, v{S[u]}, v{Q[u]}')
    for u in range(2): A(f'v_mov_b32 v{Q[u]}, v{S[u]}')
    for u in range(2): A(f'v_permlane16_swap_b32 v{S[u]}, v{Q[u]}')
    for u in range(2): A(f'v_add_f32 v{S[u]}, v{S[u]}, v{Q[u]}')
    for u in range(2): A(f'buffer_store_dword v{S[u]}, v40, s[56:59], s{14+u} offen sc1')

def drained(A):
    A('s_waitcnt vmcnt(0)')
    A('s_barrier')

def g1_compute(A, name, st, opt):
    WB = [8, 36]; ACC = 64; HB = [176, 192]
    vAh, cAh, VW, CW = 2, 3, 208, 216
    vSy, vOne, vRd = 4, 5, 6
    nb = opt.get('nobar', 0)
    g1_decode(A)
    A('s_and_b32 s13, s12, 1')
    A('s_lshr_b32 s14, s12, 1')
    A('s_lshl_b32 s15, s13, 13')
    A(f'v_lshlrev_b32 v{vAh}, 4, v1')
    A(f'v_add_u32 v{vAh}, s15, v{vAh}')
    tr_bases(A, 44, 45, 1, 48)
    A('s_cmp_lg_u32 s14, 0')
    A('s_cselect_b64 vcc, -1, 0')
    def gaddr(dst, lam):
        if lam < 12:
            A(f'v_xor_b32 v{dst}, {32*(lam&3)}, v44')
            A(f'v_add_u32 v{dst}, {WB0 + (lam>>2)*1024}, v{dst}')
        else:
            A(f'v_xor_b32 v{dst}, {32*(lam&1)}, v45')
            A(f'v_add_u32 v{dst}, {WB0 + 6144}, v{dst}')
    for k, (l0, l1) in enumerate(zip([4, 5, 2, 3, 0, 1, 6], [8, 9, 10, 11, 12, 13, 7])):
        gaddr(46, l0); gaddr(47, l1)
        A(f'v_cndmask_b32 v{VW+k}, v46, v47, vcc')
    A(f'v_mov_b32 v{cAh}, v{vAh}')
    for k in range(7): A(f'v_mov_b32 v{CW+k}, v{VW+k}')
    for i in range(112): A(f'v_mov_b32 v{ACC+i}, 0')
    A('s_lshl_b32 s15, s10, 1')
    A('s_add_u32 s15, s15, s13')
    gs = opt.get('gskip', 1); TT = GTT if gs else 112 * 1024
    A('s_mul_i32 s15, s15, %d' % (4 * TT))
    A('s_add_u32 s15, s15, %d' % (GS_OFF if gs else G_OFF))
    srd(A, 20, 4, 's15', 4 * TT)
    A('s_mov_b32 s17, 0')
    A('s_mov_b32 s19, 0')
    A('s_mov_b32 s18, 0')
    BV = 240; H2 = 224
    A('s_load_dwordx2 s[24:25], s[0:1], %d' % KA['b1'])
    A('s_and_b32 s52, s11, 1')
    A('s_mul_i32 s15, s11, 7')
    A('s_add_u32 s16, s15, s52')
    A('s_add_u32 s56, s16, 3')
    A('s_cmp_lg_u32 s14, 0')
    A('s_cselect_b32 s53, 4, 2')
    A('s_cselect_b32 s54, 5, 1')
    A('s_cselect_b32 s55, 6, 0')
    for r in (53, 54, 55): A(f's_add_u32 s{r}, s{r}, s16')
    A('s_and_b32 s52, s52, s14')
    A('s_cmp_lg_u32 s52, 0')
    A('s_cselect_b32 s55, s15, s55')
    for r in (53, 54, 55, 56): A(f's_lshl_b32 s{r+4}, s{r}, 6')
    A('s_lshl_b32 s15, s14, 5')
    A('s_add_u32 s60, s60, s15')
    A(f's_add_u32 s15, s12, {SYB}')
    A(f'v_mov_b32 v{vSy}, {SYB}')
    A(f'v_mov_b32 v7, s15')
    A(f'v_mov_b32 v{vOne}, 1')
    A('v_and_b32 v44, 15, v1')
    A('v_lshlrev_b32 v44, 1, v44')
    A('s_mov_b32 s26, 7168')
    A('s_mov_b32 s27, 0x20000')
    drained(A)
    st(4)
    A('s_waitcnt lgkmcnt(0)')
    for i in range(7):
        so, off = 57 + i // 2, (32*(i&1) if i < 6 else 0)
        A(f'buffer_load_ushort v{BV+i}, v44, s[24:27], s{so} offen offset:{off}')
    A('s_barrier')
    def reads(s, buf):
        r = []
        for j in range(4):
            r.append(f'ds_read_b128 {vr(HB[buf]+4*j,4)}, v{cAh} offset:{(2*j+s)*1024}')
        for i in range(7):
            for rd in range(2):
                r.append(f'ds_read_b64_tr_b16 {vr(WB[buf]+4*i+2*rd,2)}, v{CW+i} offset:{(2*s + rd) * 7168}')
        return r
    def step(buf, rds, tail=None, nowait=False):
        k = 0; n = 0
        for i in range(7):
            for jj in range(4):
                j = jj if (i & 1) == 0 else 3 - jj
                mfma(A, ACC + (i*4+j)*4, WB[buf] + 4*i, HB[buf] + 4*j)
                if k < len(rds): A(rds[k]); k += 1
                n += 1
                if tail and n - 20 in tail:
                    for t in tail[n - 20]: A(t)
        if not nowait: A('s_waitcnt lgkmcnt(0)')
    A('s_barrier')
    st(8)
    for r in reads(0, 0): A(r)
    A('s_waitcnt lgkmcnt(0)')
    A(f's_branch {name}_g1mid')
    if nb:
        A.label(f'{name}_g1slow')
        A(f'ds_read_b32 v{vRd}, v{vSy} offset:{R1}')
        A('s_waitcnt lgkmcnt(0)')
        A(f'v_readfirstlane_b32 s16, v{vRd}')
        A(f's_cmp_lg_u32 s16, {FULL}')
        A(f's_cbranch_scc1 {name}_g1slow')
        A(f's_cmp_le_u32 s18, 14')
        A(f's_cbranch_scc0 {name}_g1tail')
    A('.p2align 6')
    A.label(f'{name}_g1loop')
    if not nb: A('s_barrier')
    step(1, reads(0, 0))
    A.label(f'{name}_g1mid')
    tailB = {-4: [f's_add_u32 s17, s17, {HS}', f's_add_u32 s19, s19, {WS}'], -3: [f's_cmp_eq_u32 s17, {3*HS}', 's_cselect_b32 s17, 0, s17'],
             -2: ['s_cselect_b32 s19, 0, s19', 's_add_u32 s18, s18, 1'], -1: [f'v_add_u32 v{cAh}, s17, v{vAh}', 's_cmp_le_u32 s18, 14']}
    for k in range(7): tailB[k] = [f'v_add_u32 v{CW+k}, s19, v{VW+k}']
    if nb:
        tailB[-1] = [f'v_add_u32 v{cAh}, s17, v{vAh}', f'ds_read_b32 v{vRd}, v{vSy} offset:{R1 + 4}']
        tailB[6] += ['s_waitcnt lgkmcnt(0)', f'ds_write_b8 v7, v{vOne} offset:{D1}']
        tailB[7] = [f'v_readfirstlane_b32 s16, v{vRd}', f'v_add_u32 v{vSy}, 4, v{vSy}', 'v_add_u32 v7, 4, v7']
        tailB[8] = [f's_cmp_lg_u32 s16, {FULL}', f's_cbranch_scc1 {name}_g1slow', 's_cmp_le_u32 s18, 14']
    step(0, reads(1, 1), tailB, nowait=nb)
    A(f's_cbranch_scc1 {name}_g1loop')
    A.label(f'{name}_g1tail')
    if not nb: A('s_barrier')
    gs = opt.get('gskip', 1)
    order = [6, 0, 1, 2, 3, 4, 5]
    SG = 4
    def wset(k): return WB[0] + 8 * (k % 3)
    def wrd(k):
        i = order[k]
        return [f'ds_read_b64_tr_b16 {vr(wset(k)+4*s_+2*rd,2)}, v{CW+i} offset:{(2*s_ + rd) * 7168}' for s_ in range(2) for rd in range(2)]
    BT = 32
    ST4 = [208, 212, 248, 252]
    A('v_and_b32 v2, 15, v1')
    A('s_lshl_b32 s15, s13, 8')
    A(f's_add_u32 s15, s15, {SGB}')
    A('v_lshl_add_u32 v2, v2, 2, s15')
    pre = [f'ds_read_b128 {vr(HB[0]+4*j,4)}, v{cAh} offset:{(2*j)*1024}' for j in range(4)] + wrd(0) + \
          [f'ds_read_b128 {vr(H2+4*j,4)}, v{cAh} offset:{(2*j+1)*1024}' for j in range(4)] + \
          [f'ds_read_b32 v{ST4[j]}, v2 offset:{64*j}' for j in range(4)] + wrd(1)
    setup = []
    for j in range(4):
        for k in range(1, 4): setup.append(f'v_mov_b32 v{ST4[j]+k}, 0')
    for k in range(1, 4): setup.append(f'v_mov_b32 v{BT+k}, 0')
    addr = []
    for r in (53, 54, 55, 56):
        addr += [f's_lshr_b32 s{r}, s{r}, 1', f's_mul_i32 s{r}, s{r}, {GST}'] if gs else [f's_lshl_b32 s{r}, s{r}, 10']
    class L(list):
        def __call__(self, t): self.append(t)
    va = L()
    va('v_and_b32 v4, 15, v1'); va('v_lshlrev_b32 v4, 4, v4'); va('v_and_b32 v6, 16, v1'); va('v_and_b32 v7, 32, v1')
    va('v_lshl_add_u32 v5, v7, 3, v4'); va('v_lshl_add_u32 v4, v6, 5, v5'); va('v_lshrrev_b32 v6, 1, v6'); va('s_lshl_b32 s19, s14, 9')
    va('v_add3_u32 v5, v5, v6, s19')
    if gs:
        skipmap(va, 6, 4, 1, 2); skipmap(va, 4, 4, 0, 2); skipmap(va, 5, 5, 1, 2)
        va('s_cmp_lg_u32 s52, 0'); va('s_cselect_b64 vcc, -1, 0'); va('v_cndmask_b32 v7, v4, v6, vcc')
    else:
        va('v_mov_b32 v6, v4'); va('v_mov_b32 v7, v4')
    def acc(i, j): return ACC + (i*4+j)*4
    def epi_tile(i, j, d):
        a = acc(i, j)
        return [f'v_max_f32 v{a+r}, 0, v{a+r}' for r in range(4)] + \
               [f'v_pk_mul_f32 {vr(a,2)}, {vr(a,2)}, {vr(a,2)}', f'v_pk_mul_f32 {vr(a+2,2)}, {vr(a+2,2)}, {vr(a+2,2)}',
                f'v_cvt_pk_bf16_f32 v{d}, v{a}, v{a+1}', f'v_cvt_pk_bf16_f32 v{d+1}, v{a+2}, v{a+3}']
    late = []
    def epi(i):
        out = []
        for j in range(4):
            if i == 6:
                out += epi_tile(i, j, acc(i, j))
                out.append(f'buffer_store_dwordx2 {vr(acc(i,j),2)}, v5, s[20:23], s56 offen sc1')
                if j < 3: out.append(f's_add_u32 s56, s56, {TT}')
            elif i % 2 == 0:
                out += epi_tile(i, j, acc(i, j))
            else:
                d = acc(i - 1, j)
                out += epi_tile(i, j, d + 2)
                out += [f'v_permlane16_swap_b32 v{d}, v{d+2}', f'v_permlane16_swap_b32 v{d+1}, v{d+3}']
                pp = i // 2
                dst = out if pp < 2 else late
                dst.append(f'buffer_store_dwordx4 {vr(d,4)}, v{[4, 6, 7][pp]}, s[20:23], s{53+pp} offen sc1')
                if j < 3: dst.append(f's_add_u32 s{53+pp}, s{53+pp}, {TT}')
        return out
    for k, i in enumerate(order):
        mf = [(acc(i, j), WB[1] + 4*i, HB[1] + 4*j) for j in range(4)] + [(acc(i, j), wset(k), HB[0] + 4*j) for j in range(4)] + \
             [(acc(i, j), wset(k) + 4, H2 + 4*j) for j in range(4)] + [(acc(i, j), BT, ST4[j]) for j in range(4)]
        if k == 0:
            fill = pre + addr + list(va) + setup
        else:
            fill = (wrd(k + 1) if k + 1 < 7 else []) + epi(order[k - 1])
        per = -(-len(fill) // 15)
        fi = 0
        for n, (d, a, b) in enumerate(mf):
            if k == 0 and n == 4:
                for x in fill[fi:len(pre)]: A(x)
                fi = max(fi, len(pre))
                A('s_waitcnt lgkmcnt(14)')
            if k == 0 and n == 8: A('s_waitcnt lgkmcnt(8)')
            if k == 0 and n == 12:
                for x in fill[fi:]: A(x)
                fi = len(fill)
                A('s_waitcnt vmcnt(0) lgkmcnt(4)')
                A('v_cmp_gt_u32 vcc, 16, v1')
                for j in range(4): A(f'v_cndmask_b32 v{ST4[j]}, 0, v{ST4[j]}, vcc')
            if k > 0 and n == 4: A(f's_waitcnt lgkmcnt({4 if k + 1 < 7 else 0})')
            if n == 10 and k > 0 or (k == 0 and n == 12): A(f'v_mov_b32 v{BT}, v{BV+i}')
            mfma(A, d, a, b)
            if k == 6 and n == 4:
                A('s_barrier')
                st(9)
            for _ in range(per):
                if fi < len(fill): A(fill[fi]); fi += 1
        for x in fill[fi:]: A(x)
    for x in epi(5): A(x)
    return late

def g2_compute(A, name, st, opt, late):
    NS = 4; N2 = opt.get('n2', 8); N1 = (56 - N2) // 2
    SIG = opt.get('sig', 2); POLL = opt.get('poll', 4)
    AO = 8; AX = 40; HB = [72, 88]; WO = [104, 112]; WX = [120, 128]; EP = 136; PR = 224
    vAh, vAw, cAh, cAw, vAw1, cAw1, vL16, vFl = 176, 177, 178, 179, 180, 181, 182, 183
    A('s_load_dwordx2 s[50:51], s[0:1], %d' % KA['b2'])
    A('s_load_dwordx2 s[48:49], s[0:1], %d' % KA['out'])
    A('v_and_b32 v8, 15, v1')
    A('v_lshlrev_b32 v8, 4, v8')
    A('v_and_b32 v10, 16, v1')
    A('v_and_b32 v11, 32, v1')
    A('v_lshl_add_u32 v9, v11, 3, v8')
    A('v_lshl_add_u32 v8, v10, 5, v9')
    A('v_lshrrev_b32 v10, 1, v10')
    A('s_lshl_b32 s15, s13, 13')
    A('s_lshl_b32 s16, s14, 9')
    A('s_add_u32 s16, s16, s15')
    A(f's_add_u32 s16, s16, {3*SLOT + 1024}')
    A('v_add3_u32 v9, v9, v10, s16')
    A('v_add_u32 v8, s15, v8')
    A('s_cmp_lg_u32 s14, 0')
    for k, (b0, b1) in enumerate(((3*SLOT, 0), (2*SLOT + 1024, 1024), (2*SLOT, 0x40000))):
        A(f's_mov_b32 s16, {b0}')
        A(f's_cselect_b32 s16, {b1}, s16')
        A(f'v_add_u32 v{10+k}, s16, v8')
    wr_ = [f'ds_write_b128 v{10+k}, {vr(64+32*k+4*j,4)} offset:{2048*j}' for k in (2, 1, 0) for j in range(4)]
    wr_ += [f'ds_write_b64 v9, {vr(160+4*j,2)} offset:{2048*j}' for j in range(4)]
    ad = [f'v_lshlrev_b32 v{vL16}, 4, v1', f'v_add_u32 v{vAh}, s15, v{vL16}', 'v_lshrrev_b32 v184, 2, v1', 'v_and_b32 v184, 3, v184',
          'v_lshrrev_b32 v185, 4, v1', 'v_lshl_add_u32 v184, v185, 3, v184', 'v_lshrrev_b32 v186, 3, v1', 'v_and_b32 v186, 3, v186',
          'v_lshlrev_b32 v186, 5, v186', 'v_lshl_add_u32 v184, v184, 7, v186', 'v_and_b32 v186, 3, v1', f'v_lshl_add_u32 v{vAw}, v186, 3, v184',
          's_lshl_b32 s16, s14, 6', f'v_xor_b32 v{vAw}, s16, v{vAw}', f'v_add_u32 v{vAw}, 16384, v{vAw}', f'v_xor_b32 v{vAw1}, 32, v{vAw}',
          f'v_add_u32 v{cAh}, {2*SLOT}, v{vAh}', f'v_add_u32 v{cAw}, {2*SLOT}, v{vAw}', f'v_add_u32 v{cAw1}, {2*SLOT}, v{vAw1}', f'v_mov_b32 v{vFl}, 0']
    ad += [f'v_mov_b32 v{192+k}, v{128+k}' for k in range(16)]
    for x in weave(wr_[:8], ad[:16], per=2): A(x)
    A('s_waitcnt vmcnt(0)')
    A('s_barrier')
    st(10)
    for x in weave(wr_[8:], ad[16:], per=3): A(x)
    for k in range(4): A(f's_mov_b32 s{64+k}, s{20+k}' if k < 3 else 's_mov_b32 s67, 0x20000')
    A('s_mov_b32 s68, s55')
    A(f's_mov_b32 s17, {2*SLOT}')
    TT = GTT if opt.get('gskip', 1) else 112 * 1024
    def late_store(k): return [f'buffer_store_dwordx4 {vr(192+4*k,4)}, v7, s[64:67], s68 offen sc1', f's_add_u32 s68, s68, {TT}']
    def setup():
        g2_decode(A)
        A('s_lshl_b32 s15, s10, 1')
        A('s_add_u32 s15, s15, s13')
        A('s_lshl_b32 s16, s15, 17')
        A(f's_add_u32 s16, s16, {HF_OFF}')
        A('s_lshl_b32 s19, s15, 8')
        A(f's_add_u32 s19, s19, {MU_OFF}')
        A('s_lshl_b32 s54, s2, 2')
        A('s_add_u32 s54, s54, s12')
        A('s_xor_b32 s55, s54, 16')
        A('s_lshl_b32 s56, s54, 12')
        A('s_lshl_b32 s57, s55, 12')
        A('s_lshl_b32 s54, s54, 7')
        A('s_lshl_b32 s55, s55, 7')
        A(f's_add_u32 s54, s54, {FL3}')
        A(f's_add_u32 s55, s55, {FL3}')
        srd(A, 20, 4, 's16', 128 * 1024)
        srd(A, 44, 4, 's19', 256)
        A(f's_add_u32 s19, s19, {R2_OFF - MU_OFF}')
        srd(A, 24, 4, 's19', 256)
        srd(A, 28, 50, 0, 2048)
        srd(A, 32, 48, 0, 2048 * 2048)
        srd(A, 40, 4, PX_OFF, 4 * MB)
    A('s_waitcnt lgkmcnt(0)')
    def reads(s, buf, full):
        r = []
        for i in range(2):
            for rd in range(2):
                r.append(f'ds_read_b64_tr_b16 {vr(WO[buf]+4*i+2*rd,2)}, v{cAw1 if i else cAw} offset:{4096*s + 512*rd}')
        for j in range(4):
            r.append(f'ds_read_b128 {vr(HB[buf]+4*j,4)}, v{cAh} offset:{(2*j+s)*1024}')
        if full:
            for i in range(2):
                for rd in range(2):
                    r.append(f'ds_read_b64_tr_b16 {vr(WX[buf]+4*i+2*rd,2)}, v{cAw1 if i else cAw} offset:{8192 + 4096*s + 512*rd}')
        return r
    ADV = [[f's_add_u32 s17, s17, {SLOT}', f's_cmp_eq_u32 s17, {NS*SLOT}'], ['s_cselect_b32 s17, 0, s17', f'v_add_u32 v{cAh}, s17, v{vAh}'],
           [f'v_add_u32 v{cAw}, s17, v{vAw}'], [f'v_add_u32 v{cAw1}, s17, v{vAw1}']]
    def step(buf, full, rds, tail=(), xfirst=False, zero=False):
        seq = []
        order = ([(AX, WX)] if full else []) + [(AO, WO)] if xfirst else [(AO, WO)] + ([(AX, WX)] if full else [])
        for acc, W in order:
            for i in range(2):
                for jj in range(4):
                    j = jj if i == 0 else 3 - jj
                    seq.append((acc + (i*4+j)*4, W[buf] + 4*i, HB[buf] + 4*j))
        per = 1 if len(rds) + len(tail) <= len(seq) else 2
        fill = [[x] for x in rds]
        if per == 2: fill = [sum(fill[k:k+2], []) for k in range(0, len(fill), 2)]
        fill += list(tail)
        for n, (d, a, b) in enumerate(seq):
            mfma(A, d, a, b, '0' if zero else None)
            if n < len(fill):
                for x in fill[n]: A(x)
        for f in fill[len(seq):]:
            for x in f: A(x)
        A('s_waitcnt lgkmcnt(0)')
    A('s_barrier')
    st(11)
    for r in reads(0, 0, True): A(r)
    setup()
    A('s_lshl_b32 s16, s11, 1')
    A('s_add_u32 s16, s16, s14')
    A('s_lshl_b32 s19, s16, 10')
    for j in range(4):
        A(f'buffer_load_dwordx4 {vr(EP+4*j,4)}, v{vL16}, s[20:23], s19 offen sc1')
        if j < 3: A('s_add_u32 s19, s19, 32768')
    A(f'v_and_b32 v{PR}, 15, v1')
    A(f'v_lshlrev_b32 v{PR}, 2, v{PR}')
    for j in range(4):
        A(f'buffer_load_dword v{EP+16+j}, v{PR}, s[24:27], 0 offen offset:{64*j} sc1')
        A(f'buffer_load_dword v{EP+24+j}, v{PR}, s[44:47], 0 offen offset:{64*j} sc1')
    A(f'v_lshrrev_b32 v{PR+1}, 4, v1')
    A(f'v_lshlrev_b32 v{PR+1}, 3, v{PR+1}')
    A('s_lshl_b32 s19, s16, 6')
    A(f'buffer_load_dwordx2 {vr(EP+20,2)}, v{PR+1}, s[28:31], s19 offen')
    A(f'buffer_load_dwordx2 {vr(EP+22,2)}, v{PR+1}, s[28:31], s19 offen offset:32')
    A('s_waitcnt lgkmcnt(0)')
    step(0, True, reads(1, 1, True), ADV[:3] + [ADV[3] + late_store(0)], zero=True)
    for k in range(1, 4):
        A('s_barrier')
        step(1, True, reads(0, 0, True), [late_store(k)])
        step(0, True, reads(1, 1, True), ADV)
    A('s_mov_b32 s18, 4')
    A('.p2align 6')
    A.label(f'{name}_g2loop')
    A('s_barrier')
    step(1, True, reads(0, 0, True), [['s_waitcnt vmcnt(0)']])
    step(0, True, reads(1, 1, True), ADV[:3] + [ADV[3] + ['s_add_u32 s18, s18, 1', f's_cmp_lt_u32 s18, {N1}']])
    A(f's_cbranch_scc1 {name}_g2loop')
    A('s_mov_b32 s59, 0')
    A('s_mov_b32 s58, 400000')
    def check(tag, sp):
        A('s_cmp_lg_u32 s59, 0')
        A(f's_cbranch_scc1 {name}_done{tag}')
        A.label(f'{name}_poll{tag}')
        A('s_waitcnt vmcnt(0)')
        A(f'v_readfirstlane_b32 s59, v{PR+16}')
        A('s_cmp_eq_u32 s59, 1')
        A(f's_cbranch_scc1 {name}_got{tag}')
        A('s_mov_b32 s59, 0')
        if sp:
            A('s_sub_u32 s58, s58, 1')
            A(f's_cbranch_scc1 {name}_got{tag}')
            A('s_sleep 1')
        A(f'buffer_load_dword v{PR+16}, v{vFl}, s[36:39], s55 offen sc1')
        A(f's_branch {name}_poll{tag}' if sp else f's_branch {name}_done{tag}')
        A.label(f'{name}_got{tag}')
        for k in range(4):
            A(f'buffer_load_dwordx4 {vr(PR+4*k,4)}, v{vL16}, s[40:43], s57 offen offset:{k*1024} sc1')
        A.label(f'{name}_done{tag}')
    for it in range(N2):
        A('s_barrier')
        if it == 0:
            step(1, True, reads(0, 0, False), xfirst=True)
            for k in range(4):
                for c in range(4*k, 4*k+4): A(f'v_cvt_pk_bf16_f32 v{AX+c}, v{AX+2*c}, v{AX+2*c+1}')
                A(f'buffer_store_dwordx4 {vr(AX+4*k,4)}, v{vL16}, s[40:43], s56 offen offset:{k*1024} sc1')
        else:
            if it == SIG:
                A('s_waitcnt vmcnt(0)')
                A(f'v_mov_b32 v{PR}, 1')
                A(f'buffer_store_dword v{PR}, v{vFl}, s[36:39], s54 offen sc1')
            if it == POLL:
                A(f'buffer_load_dword v{PR+16}, v{vFl}, s[36:39], s55 offen sc1')
            if it > POLL: check(it, False)
            step(1, False, reads(0, 0, False))
        step(0, False, reads(1, 1, False), ADV if it < N2 - 1 else ())
    check('L', True)
    step(1, False, [])
    st(12)
    B = 104
    A('v_and_b32 v6, 15, v1')
    A('v_lshrrev_b32 v7, 4, v1')
    A('v_and_b32 v2, 1, v7')
    A('v_lshrrev_b32 v7, 1, v7')
    A('v_lshl_add_u32 v7, v2, 1, v7')
    A('v_lshrrev_b32 v2, 1, v6')
    A('v_xor_b32 v7, v7, v2')
    A('v_and_b32 v7, 3, v7')
    A('v_lshl_add_u32 v7, v6, 2, v7')
    A('s_lshl_b32 s15, s12, 12')
    A(f's_add_u32 s15, s15, {STG}')
    A('v_lshl_add_u32 v4, v7, 4, s15')
    A('v_lshrrev_b32 v6, 2, v1')
    A('v_lshrrev_b32 v7, 3, v1')
    A('v_xor_b32 v7, v7, v1')
    A('v_and_b32 v7, 3, v7')
    A('v_lshl_add_u32 v5, v1, 4, s15')
    A('v_lshlrev_b32 v6, 15, v6')
    A('v_lshl_add_u32 v6, v7, 4, v6')
    A('s_lshl_b32 s19, s10, 11')
    A('s_lshl_b32 s15, s13, 21')
    A('s_add_u32 s19, s19, s15')
    A('s_lshl_b32 s16, s16, 6')
    A('s_add_u32 s19, s19, s16')
    A('s_waitcnt vmcnt(0)')
    for i in range(2):
        for q in range(2):
            A(f'v_lshlrev_b32 v{B+4*i+2*q}, 16, v{EP+20+2*i+q}')
            A(f'v_and_b32 v{B+4*i+2*q+1}, 0xffff0000, v{EP+20+2*i+q}')
    T = 40
    for j in range(4):
        d = T + 8*j
        for i in range(2):
            a = AO + (i*4+j)*4; pr = PR + (i*4+j)*2
            for q in range(2):
                hreg = EP + 4*j + 2*i + q
                A(f'v_lshlrev_b32 v{d+4+2*q}, 16, v{hreg}')
                A(f'v_and_b32 v{d+5+2*q}, 0xffff0000, v{hreg}')
                A(f'v_lshlrev_b32 v{72+2*q}, 16, v{pr+q}')
                A(f'v_and_b32 v{73+2*q}, 0xffff0000, v{pr+q}')
            for q in range(2):
                A(f'v_pk_add_f32 {vr(a+2*q,2)}, {vr(a+2*q,2)}, {vr(72+2*q,2)}')
                A(f'v_pk_add_f32 {vr(d+4+2*q,2)}, {vr(d+4+2*q,2)}, {vr(B+4*i+2*q,2)}')
            for r in range(4): A(f'v_add_f32 v{d+4+r}, v{d+4+r}, v{EP+24+j}')
            for r in range(4): A(f'v_fma_f32 v{a+r}, v{a+r}, v{EP+16+j}, v{d+4+r}')
            A(f'v_cvt_pk_bf16_f32 v{d+2*i}, v{a}, v{a+1}')
            A(f'v_cvt_pk_bf16_f32 v{d+2*i+1}, v{a+2}, v{a+3}')
        A(f'v_permlane16_swap_b32 v{d}, v{d+2}')
        A(f'v_permlane16_swap_b32 v{d+1}, v{d+3}')
        A(f'ds_write_b128 v4, {vr(d,4)} offset:{1024*j}')
        A(f'ds_read_b128 {vr(76+4*j,4)}, v5 offset:{1024*j}')
        if j:
            A('s_waitcnt lgkmcnt(2)')
            A(f'buffer_store_dwordx4 {vr(72+4*j,4)}, v6, s[32:35], s19 offen {opt.get("omod", "sc1")}')
            A(f's_add_u32 s19, s19, {16*16*2048}')
    A('s_waitcnt lgkmcnt(0)')
    A(f'buffer_store_dwordx4 {vr(88,4)}, v6, s[32:35], s19 offen {opt.get("omod", "sc1")}')

def loaders(A, name, opt):
    NS = 4; N2 = opt.get('n2', 8); N1 = (56 - N2) // 2; NT = N1 + N2
    hm = opt.get('hmod', 'sc1')
    lst = Stamper(A, opt.get('stamp') == 1, 1)
    A('s_load_dwordx4 s[64:67], s[0:1], %d' % KA['w1'])
    A('s_load_dwordx2 s[48:49], s[0:1], %d' % KA['w2'])
    A('s_sub_u32 s12, s12, 4')
    g1_decode(A)
    A('s_lshl_b32 s15, s12, 16')
    A('v_lshlrev_b32 v8, 4, v1')
    A('v_add_u32 v8, s15, v8')
    A('v_add_u32 v9, 0x8000, v8')
    A('s_lshl_b32 s15, s12, 4')
    A('s_and_b32 s16, s11, 1')
    w_voffs(A, 10, 1, 15, 16, 4, range(7))
    A('s_lshl_b32 s43, s12, 12')
    A('s_mul_i32 s44, s12, 7168')
    A(f's_add_u32 s44, s44, {WB0}')
    A('s_mov_b32 s41, 0')
    A('s_mov_b32 s42, 0')
    A('s_lshl_b32 s15, s12, 12')
    A('v_lshlrev_b32 v3, 4, v1')
    A('v_add_u32 v3, s15, v3')
    A('v_and_b32 v17, 15, v1')
    A('v_lshlrev_b32 v17, 7, v17')
    A('v_mov_b32 v20, 1')
    A('v_mov_b32 v21, 0')
    A('s_and_b32 s13, s2, 7')
    A('s_sub_u32 s15, 16, s13')
    A('s_cmp_eq_u32 s13, 0')
    A('s_cselect_b32 s15, 8, s15')
    A('s_bitcmp1_b32 s2, 3')
    A('s_cselect_b32 s13, s15, s13')
    A('s_lshl_b32 s13, s13, 4')
    A('s_lshr_b32 s15, s2, 4')
    A('s_add_u32 s13, s13, s15')
    A('s_lshl_b32 s13, s13, 7')
    A('s_lshl_b32 s14, s10, 4')
    A('s_add_u32 s14, s14, s11')
    A('s_lshl_b32 s14, s14, 7')
    A(f's_add_u32 s14, s14, {FL2}')
    A('s_lshl_b32 s15, s10, 18')
    A(f's_add_u32 s15, s15, {HF_OFF}')
    A('s_mul_i32 s16, s11, 448')
    A(f's_sub_u32 s19, {1024*7168}, s16')
    A('s_waitcnt lgkmcnt(0)')
    srd(A, 20, 4, 's15', 256 * 1024)
    srd(A, 24, 64, 's16', 's19')
    A('s_lshl_b32 s15, s10, 14')
    A(f's_add_u32 s15, s15, {ST_OFF}')
    srd(A, 32, 4, 's15', 16384)
    A('s_lshl_b32 s15, s10, 9')
    A(f's_add_u32 s15, s15, {R2_OFF}')
    srd(A, 36, 4, 's15', 512)
    srd(A, 52, 4, FL_OFF, FL_SIZE)
    srd(A, 56, 48, 0, 3584 * 2048)
    A('s_lshl_b32 s60, s2, 2')
    A('s_add_u32 s60, s60, s12')
    A('s_lshl_b32 s60, s60, 9')
    A(f's_mov_b32 s50, {4 << 20}')
    hstep = [2048]
    A('v_mov_b32 v26, v8')
    A('v_mov_b32 v27, v9')
    def issue_h(lds):
        A(f's_add_u32 m0, {lds}, s43')
        A('s_nop 0')
        A(f'buffer_load_dwordx4 v8, s[20:23], s41 offen {hm} lds')
        A(f'buffer_load_dwordx4 v26, s[20:23], s41 offen offset:1024 {hm} lds')
        A('s_add_u32 m0, m0, 2048')
        A('s_nop 0')
        A(f'buffer_load_dwordx4 v9, s[20:23], s41 offen {hm} lds')
        A(f'buffer_load_dwordx4 v27, s[20:23], s41 offen offset:1024 {hm} lds')
        A(f's_add_u32 s41, s41, {hstep[0]}')
    def issue_w(lds, srdn=24, so='s42'):
        A(f's_add_u32 s45, {lds}, s44')
        for q in range(7):
            A(f's_add_u32 m0, s45, {q*1024}')
            A('s_nop 0')
            A(f'buffer_load_dwordx4 v{10+q}, s[{srdn}:{srdn+3}], {so} offen lds')
        if srdn == 24: A(f's_add_u32 s42, s42, {64*7168}')
    def sp2():
        for k in range(4): A(f's_buffer_load_dwordx2 s[62:63], s[56:59], s60 offset:{128*k + 60}')
        A('s_add_u32 s60, s60, s50')
        A('s_sub_u32 s50, 0x80000, s50')
    if opt.get('pf', 0) == 1: line_touch(A, 18, 19, 68, 64, 256 * 14336, 256, 15)
    def handoff(tag, sown, soth, ls=None):
        A('s_barrier')
        if ls: lst(ls)
        A('s_cmp_lg_u32 s12, 0')
        A(f's_cbranch_scc1 {tag}_go')
        A(f'buffer_store_dword v20, v21, s[52:55], s{sown} offen sc1')
        spin(A, tag, 52, soth, 36, 17, 47, opt.get('pdepth', 4), opt.get('pgap', 2))
        if ls: lst(ls + 1)
        A('s_barrier')
    nb = opt.get('nobar', 0)
    A('v_lshlrev_b32 v18, 2, v1')
    A('s_lshl_b32 s15, s12, 8')
    A(f's_add_u32 s15, s15, {SYB}')
    A('v_add_u32 v18, s15, v18')
    A('s_cmp_eq_u32 s12, 3')
    A(f's_cbranch_scc1 {name}_noclr')
    A('ds_write_b32 v18, v21')
    A.label(f'{name}_noclr')
    A(f's_add_u32 s15, s12, {SYB}')
    A('v_mov_b32 v18, s15')
    A(f'v_mov_b32 v19, {SYB}')
    A('s_waitcnt lgkmcnt(0)')
    def post(off): A(f'ds_write_b8 v18, v20 offset:{off}')
    def wait_free(tag, off):
        A.label(f'{tag}_o')
        A('v_mov_b32 v25, -1')
        A(f'ds_read_b32 v25, v19 offset:{off}')
        A.label(f'{tag}_i')
        A(f's_sleep {opt.get("fsl", 1)}')
        A('v_readfirstlane_b32 s51, v25')
        A('s_cmp_eq_u32 s51, -1')
        A(f's_cbranch_scc1 {tag}_i')
        A(f's_cmp_lg_u32 s51, {FULL}')
        A(f's_cbranch_scc1 {tag}_o')
    A('s_barrier')
    NW1 = opt.get('nw1', 3)
    for k in range(NW1): issue_w(k * WS)
    if opt.get('pf', 0) == 2: line_touch(A, 18, 19, 68, 64, 256 * 14336, 256, 15)
    sp2(); sp2()
    A('s_lshl_b32 s15, s10, 11')
    handoff(f'{name}_fl1', 13, 15)
    for k in range(3):
        issue_h(k * HS)
        if k >= NW1: issue_w(k * WS)
    for k in range(4): A(f'buffer_load_dwordx4 {vr(40+4*k,4)}, v3, s[32:35], 0 offen offset:{1024*k} sc1')
    A('s_mov_b32 s40, 0')
    A('s_mov_b32 s46, 0')
    c1 = lambda k: 4 + (7 if k >= NW1 else 0)
    A(f's_waitcnt vmcnt({c1(1) + c1(2) + 4})')
    A('s_barrier')
    A(f's_waitcnt vmcnt({c1(2) + 4})')
    if nb: post(R1 + 4)
    else: A('s_barrier')
    def issue(mid=None):
        issue_h('s40')
        if mid is not None:
            A('s_waitcnt vmcnt(4)')
            post(mid)
        issue_w('s46')
        A(f's_add_u32 s40, s40, {HS}')
        A(f's_add_u32 s46, s46, {WS}')
        A(f's_cmp_eq_u32 s40, {3*HS}')
        A('s_cselect_b32 s40, 0, s40')
        A('s_cselect_b32 s46, 0, s46')
    if nb: wait_free(f'{name}_f3', D1)
    issue(R1 + 8 if nb else None); sp2()
    if not nb:
        A('s_waitcnt vmcnt(11)')
        A('s_barrier')
    def stats():
        for k in range(4):
            A(f'v_add_f32 v{40+4*k}, v{40+4*k}, v{42+4*k}')
            A(f'v_add_f32 v{41+4*k}, v{41+4*k}, v{43+4*k}')
        for perm in ('quad_perm:[1,0,3,2]', 'quad_perm:[2,3,0,1]', 'row_half_mirror'):
            for k in range(4):
                for c in range(2):
                    A(f'v_add_f32_dpp v{40+4*k+c}, v{40+4*k+c}, v{40+4*k+c} {perm} row_mask:0xf bank_mask:0xf')
        A('v_and_b32 v4, 3, v1')
        for k in range(1, 4):
            A(f'v_cmp_eq_u32 vcc, {k}, v4')
            for c in range(2): A(f'v_cndmask_b32 v{40+c}, v{40+c}, v{40+4*k+c}, vcc')
        ln_finish(A, 40, 41, 22, 23, 24, 47)
        A('v_lshrrev_b32 v28, 16, v23')
        A('v_lshrrev_b32 v5, 3, v1')
        A('v_lshl_add_u32 v2, v4, 3, v5')
        A('s_lshl_b32 s15, s12, 7')
        A(f's_add_u32 s15, s15, {SGB}')
        A('v_lshl_add_u32 v5, v2, 2, s15')
        A('ds_write_b32 v5, v28')
        A('v_mul_f32 v23, v23, v23')
        A('v_rcp_f32 v23, v23')
        A('s_lshl_b32 s15, s12, 7')
        A('v_lshlrev_b32 v5, 2, v2')
        A('buffer_store_dword v23, v5, s[36:39], s15 offen sc1')
    if nb: wait_free(f'{name}_f4', D1 + 4)
    issue(R1 + 12 if nb else None); sp2()
    stats()
    if not nb:
        A('s_waitcnt vmcnt(12)')
        A('s_barrier')
    A('s_mov_b32 s18, 5')
    if nb:
        A('v_add_u32 v18, 16, v18')
        A('v_add_u32 v19, 8, v19')
    A.label(f'{name}_l1loop')
    if nb: wait_free(f'{name}_fl', D1)
    issue(R1 if nb else None)
    A('s_cmp_eq_u32 s18, 15')
    A(f's_cbranch_scc1 {name}_nosp')
    A('s_cmp_eq_u32 s18, 13')
    A('s_cselect_b32 s50, 0x80000, s50')
    sp2()
    A.label(f'{name}_nosp')
    A('s_add_u32 s18, s18, 1')
    A('s_cmp_lt_u32 s18, 16')
    if nb:
        A('v_add_u32 v18, 4, v18')
        A('v_add_u32 v19, 4, v19')
    else:
        A('s_waitcnt vmcnt(11)')
        A('s_barrier')
    A(f's_cbranch_scc1 {name}_l1loop')
    if nb:
        A('s_waitcnt vmcnt(0)')
        post(R1)
    g2_decode(A)
    gs = opt.get('gskip', 1); TT = GTT if gs else 112 * 1024; hstep[0] = GST if gs else 2048
    A(f's_mul_i32 s15, s12, {2*TT}')
    A('v_lshlrev_b32 v8, 4, v1')
    if gs:
        skipmap(A, 26, 8, 1, 4)
        skipmap(A, 8, 8, 0, 4)
        A('v_subrev_u32 v26, 1024, v26')
    else:
        A('v_mov_b32 v26, v8')
    A('v_add_u32 v8, s15, v8')
    A('v_add_u32 v26, s15, v26')
    A(f'v_add_u32 v9, {TT}, v8')
    A(f'v_add_u32 v27, {TT}, v26')
    A('v_lshrrev_b32 v4, 3, v1')
    A('s_lshl_b32 s15, s12, 4')
    A('v_add_u32 v4, s15, v4')
    A('v_lshlrev_b32 v4, 11, v4')
    A('v_and_b32 v5, 1, v1')
    A('v_lshl_add_u32 v4, v5, 4, v4')
    A('v_lshrrev_b32 v5, 4, v1')
    A('v_and_b32 v5, 1, v5')
    A('v_lshrrev_b32 v6, 1, v1')
    A('v_and_b32 v6, 3, v6')
    A('v_xor_b32 v5, v5, v6')
    A('v_lshl_add_u32 v4, v5, 5, v4')
    A('v_xor_b32 v5, 64, v4')
    A(f'v_add_u32 v5, {16384 - 1024}, v5')
    A('v_lshrrev_b32 v6, 3, v1')
    A('v_cmp_eq_u32 vcc, 3, v6')
    A('v_cndmask_b32 v6, v6, 7, vcc')
    for hsel, (va, sr_) in enumerate(((10, 24), (12, 32))):
        if hsel == 0: A('s_mov_b32 s16, s11')
        else: A('s_xor_b32 s16, s11, 1')
        A('s_and_b32 s19, s16, 8')
        A('v_add_u32 v7, s19, v6')
        A('v_lshlrev_b32 v14, 7, v7')
        A('v_xor_b32 v15, 0x400, v14')
        A('s_and_b32 s15, s16, 7')
        A('s_lshl_b32 s16, s16, 7')
        A('v_mov_b32 v7, s16')
        A(f's_add_u32 s{sr_}, s4, {WC_OFF}')
        A(f's_addc_u32 s{sr_+1}, s5, 0')
        A(f's_cmp_eq_u32 s15, {3 if opt.get("wcopy", 1) else 9}')
        A('s_cselect_b64 vcc, -1, 0')
        A(f's_cselect_b32 s{sr_}, s{sr_}, s48')
        A(f's_cselect_b32 s{sr_+1}, s{sr_+1}, s49')
        A(f's_mov_b32 s{sr_+2}, {3584*2048}')
        A(f's_mov_b32 s{sr_+3}, 0x20000')
        A('v_cndmask_b32 v14, v7, v14, vcc')
        A('v_cndmask_b32 v15, v7, v15, vcc')
        A(f'v_add_u32 v{va}, v4, v14')
        A(f'v_add_u32 v{va+1}, v5, v15')
    A('s_lshl_b32 s44, s12, 11')
    A('s_add_u32 s44, s44, 16384')
    assert N1 == 24
    def mask(st_): return sum(1 << x for x in st_)
    def m64(r, m):
        A(f's_mov_b32 s{r}, {m & 0xffffffff}'); A(f's_mov_b32 s{r+1}, {m >> 32}')
    def sel64(r, m_true, m_false):
        for h in range(2):
            A(f's_mov_b32 s{r+h}, {(m_false >> (32*h)) & 0xffffffff}')
            A(f's_cselect_b32 s{r+h}, {(m_true >> (32*h)) & 0xffffffff}, s{r+h}')
    A('s_and_b32 s15, s9, 7')
    A('s_cmp_eq_u32 s15, 7')
    sel64(38, mask(range(0, 4)), mask(range(24, 28)))
    A('s_cmp_eq_u32 s15, 0')
    sel64(30, mask(range(52, 56)), mask(range(28, 32)))
    A('s_or_b64 s[38:39], s[38:39], s[30:31]')
    A('s_cmp_lg_u32 s8, 0')
    sel64(30, mask(range(28, 56)), mask(range(0, 28)))
    A('s_andn2_b64 s[30:31], s[30:31], s[38:39]')
    A('s_mul_i32 s15, s9, 7')
    A('s_add_u32 s15, s15, 1')
    A('s_lshr_b32 s36, s15, 1')
    A('s_lshl_b64 s[28:29], 7, s36')
    A('s_andn2_b64 s[30:31], s[30:31], s[28:29]')
    m64(64, mask([x for x in range(56) if x % 7 in (1, 2, 5, 6)]))
    A('s_and_b64 s[28:29], s[30:31], s[64:65]')
    A('s_andn2_b64 s[30:31], s[30:31], s[64:65]')
    NE = 15
    def nxt(r=28):
        A(f's_ff1_i32_b64 s61, s[{r}:{r+1}]')
        A(f's_bitset0_b64 s[{r}:{r+1}], s61')
    def seth(): A(f's_mul_i32 s41, s61, {hstep[0]}')
    def setw(): A('s_lshl_b32 s42, s61, 17')
    A(f's_mul_i32 s15, s10, {8*TT}')
    A(f's_add_u32 s15, s15, {GS_OFF if gs else G_OFF}')
    srd(A, 20, 4, 's15', 8 * TT)
    if not nb:
        A('s_waitcnt vmcnt(0) lgkmcnt(0)')
        A('s_barrier')
    def issue_w2(lds, full):
        A(f's_add_u32 m0, {lds}, s44')
        A('s_nop 0')
        A(f'buffer_load_dwordx4 v10, s[24:27], s42 offen lds')
        A(f'buffer_load_dwordx4 v11, s[24:27], s42 offen offset:1024 lds')
        if full:
            A('s_add_u32 m0, m0, 8192')
            A('s_nop 0')
            A(f'buffer_load_dwordx4 v12, s[32:35], s42 offen lds')
            A(f'buffer_load_dwordx4 v13, s[32:35], s42 offen offset:1024 lds')
        A(f's_add_u32 s42, s42, {64*2048}')
    def slotadv():
        A(f's_add_u32 s40, s40, {SLOT}')
        A(f's_cmp_eq_u32 s40, {NS*SLOT}')
        A('s_cselect_b32 s40, 0, s40')
    def issue2(full, r=None):
        if r is not None: nxt(r); seth(); setw()
        issue_h('s40'); issue_w2('s40', full)
        slotadv()
    A('s_lshl_b32 s42, s36, 17')
    for k in (2, 3, 0): issue_w2(k * SLOT, True)
    A('s_lshl_b32 s15, s10, 11')
    A(f's_add_u32 s15, s15, {FL2}')
    A('s_lshl_b32 s61, s8, 3')
    A('v_min_u32 v17, 7, v1')
    A('v_add_u32 v17, s61, v17')
    A('v_lshlrev_b32 v17, 7, v17')
    A('s_barrier')
    nxt(); setw(); seth()
    issue_w2(SLOT, True)
    lst(1)
    A('s_barrier')
    lst(2)
    A('s_cmp_lg_u32 s12, 0')
    A(f's_cbranch_scc1 {name}_noa')
    A('buffer_store_dword v20, v21, s[52:55], s14 offen sc1')
    A.label(f'{name}_noa')
    A('s_waitcnt vmcnt(4)')
    A('s_barrier')
    A('s_barrier')
    A('s_barrier')
    spin(A, f'{name}_fl2', 52, 15, 36, 17, 47, opt.get('pdepth', 2), opt.get('pgap', 2))
    lst(3)
    issue_h(SLOT)
    A(f's_mov_b32 s40, {2*SLOT}')
    issue2(True, 28); issue2(True, 28)
    A('s_waitcnt vmcnt(16)')
    lst(4)
    A('s_barrier')
    def loop(tag, n, r):
        A(f's_mov_b32 s18, {n}')
        A.label(f'{name}_{tag}')
        issue2(True, r)
        A('s_sub_u32 s18, s18, 1')
        A('s_cmp_lg_u32 s18, 0')
        A('s_waitcnt vmcnt(16)')
        A('s_barrier')
        A(f's_cbranch_scc1 {name}_{tag}')
    loop('l2a', 2, 28)
    A('s_cmp_lg_u32 s12, 0')
    A(f's_cbranch_scc1 {name}_nob')
    A(f's_add_u32 s14, s14, {FL4 - FL2}')
    A('buffer_store_dword v20, v21, s[52:55], s14 offen sc1')
    A.label(f'{name}_nob')
    loop('l2b', NE - 9, 28)
    A(f's_add_u32 s15, s15, {FL4 - FL2}')
    A('v_and_b32 v17, 15, v1')
    A('v_lshlrev_b32 v17, 7, v17')
    A('buffer_load_dword v36, v17, s[52:55], s15 offen sc1')
    issue2(True, 28)
    A('s_waitcnt vmcnt(16)')
    A('s_barrier')
    A('s_waitcnt vmcnt(8)')
    A('v_cmp_ne_u32 vcc, 1, v36')
    A(f's_cbranch_vccz {name}_fl4_go')
    spin(A, f'{name}_fl4', 52, 15, 36, 17, 47, 1, 1)
    loop('l2c', N1 - NE, 30)
    cnt = lambda s: 0 if s >= NT else (8 if s < N1 else 6)
    for j in range(N1 - NS + 1, NT - 1):
        s = j + NS - 1
        if s < NT: issue2(False, 38)
        A(f's_waitcnt vmcnt({sum(cnt(x) for x in range(j + 2, j + NS))})')
        A('s_barrier')
    if opt.get('stamp') == 1:
        lst(5); lst(6, True); lst(8)
        A('s_cmp_lg_u32 s12, 0')
        A(f's_cbranch_scc1 {name}_end')
        lst.dump(9, 1, 60)

def gen_m(A, name='m_kernel', opt=None):
    opt = opt or {}
    khead(A, name)
    st = Stamper(A, opt.get('stamp'), 1)
    st(0); st(7, True)
    A('s_cmp_ge_u32 s2, 256')
    A(f's_cbranch_scc1 {name}_end')
    A('s_load_dwordx2 s[4:5], s[0:1], %d' % KA['ws'])
    A('s_load_dwordx2 s[6:7], s[0:1], %d' % KA['x'])
    A('v_lshrrev_b32 v2, 6, v0')
    A('v_and_b32 v1, 63, v0')
    A('v_readfirstlane_b32 s12, v2')
    A('s_cmp_ge_u32 s12, 4')
    A(f's_cbranch_scc1 {name}_loader')
    if opt.get('prio'): A(f's_setprio {opt["prio"]}')
    fb_compute(A, name, st, opt)
    late = g1_compute(A, name, st, opt)
    g2_compute(A, name, st, opt, late)
    A('s_waitcnt vmcnt(0)') if opt.get('stamp') else None
    st(5); st(6, True)
    st.dump(13, 0, 244)
    A('s_endpgm')
    A.label(f'{name}_loader')
    loaders(A, name, opt)
    A.label(f'{name}_end')
    A('s_endpgm')
    return dict(name=name, grid=256, block=512, lds=M_LDS, vgpr=256)
```

```python
from common import *

XP = 2112; NP = 80; ZP = 1312
ZB = 16 * XP
RB = ZB + 16 * ZP
FA_LDS = RB + 64

def gen_fa(A, name='fa_kernel', opt=None):
    opt = opt or {}
    smod = opt.get('smod', 'sc1'); xmod = opt.get('xmod', 'nt')
    khead(A, name)
    st = Stamper(A, opt.get('stamp'), 0)
    st(0); st(7, True)
    A('s_cmp_ge_u32 s2, 256')
    A(f's_cbranch_scc1 {name}_end')
    A('s_load_dwordx2 s[6:7], s[0:1], %d' % KA['x'])
    A('s_load_dwordx2 s[4:5], s[0:1], %d' % KA['ws'])
    A('s_load_dwordx2 s[8:9], s[0:1], %d' % KA['w1'])
    A('s_load_dwordx2 s[60:61], s[0:1], %d' % KA['w2'])
    if opt.get('cpf', 1):
        A('s_getpc_b64 s[36:37]')
        A(f's_mov_b32 s38, CODE_END-{name}-64')
        A('s_mov_b32 s39, 0x20000')
        A('s_lshr_b32 s13, s2, 3')
        A('s_lshl_b32 s13, s13, 7')
        A('v_lshlrev_b32 v4, 12, v0')
        A('buffer_load_dword v88, v4, s[36:39], s13 offen')
    A('v_lshrrev_b32 v2, 6, v0')
    A('v_and_b32 v1, 63, v0')
    A('s_and_b32 s13, s2, 7')
    A('v_readfirstlane_b32 s12, v2')
    A('s_lshr_b32 s14, s2, 3')
    A('s_and_b32 s11, s14, 1')
    A('s_sub_u32 s15, 16, s13')
    A('s_cmp_eq_u32 s13, 0')
    A('s_cselect_b32 s15, 8, s15')
    A('s_bitcmp1_b32 s14, 1')
    A('s_cselect_b32 s10, s15, s13')
    A('s_lshr_b32 s15, s14, 2')
    A('s_lshl_b32 s15, s15, 4')
    A('s_add_u32 s10, s10, s15')
    A('v_lshrrev_b32 v4, 5, v1')
    A('v_lshlrev_b32 v4, 1, v4')
    A('v_xor_b32 v4, v4, v1')
    A('v_lshlrev_b32 v14, 4, v4')
    A('s_lshl_b32 s13, s12, 9')
    A('s_add_u32 s13, s13, s10')
    A('s_lshl_b32 s63, s13, 2')
    A('s_lshl_b32 s13, s13, 11')
    A(f's_mul_i32 s14, s12, {4*XP}')
    vn, vg = 2, 3
    M1, TC, TS, M2C, M2S, SA1, SA2, SGN, MU, ONES = 16, 24, 40, 56, 60, 64, 68, 72, 73, 76
    GA, SA = 80, 84
    vSt, vTr0, vTr1, vZw, vZr, vU, vE, vE0, vZx, vX0, vZ0 = 108, 90, 91, 92, 93, 94, 95, 96, 97, 98, 99
    F = 112; T = 144; AF = 208; TMP = 112; P = 128; D = 240
    A(f'v_and_b32 v{vn}, 15, v1')
    A(f'v_lshrrev_b32 v{vg}, 4, v1')
    A('s_lshl_b32 s43, s11, 4')
    A('s_add_u32 s43, s43, 1')
    A(f'v_and_b32 v5, 7, v{vn}')
    A('v_add_u32 v5, s43, v5')
    A('v_cvt_f32_u32 v5, v5')
    A(f'v_and_b32 v6, 8, v{vn}')
    A(f'v_cvt_f32_u32 v7, v{vg}')
    A('v_cvt_f32_u32 v8, v6')
    A('v_mul_f32 v9, 0x3d000000, v5')
    A('v_mul_f32 v8, 0x3d000000, v8')
    A('v_mul_f32 v12, 0x41000000, v7')
    A('v_fmac_f32 v8, v12, v9')
    def m1(hh8, th, dl):
        for j in range(8):
            if j: A(f'v_add_f32 v{th}, v{th}, v{dl}')
            A(f'v_cos_f32 v{10 + (j & 1)}, v{th}')
            if j & 1: A(f'v_cvt_pk_bf16_f32 v{M1 + 4*hh8 + j//2}, v10, v11')
    A('v_mov_b32 v13, v8')
    m1(0, 8, 9)
    A('s_waitcnt lgkmcnt(0)')
    srd(A, 20, 6, 0, 2048 * 2048)
    for r in range(4):
        A(f's_add_u32 m0, s14, {r*XP}')
        A('s_nop 0')
        A(f'buffer_load_dwordx4 v14, s[20:23], s13 offen {xmod} lds')
        A(f'buffer_load_dwordx4 v14, s[20:23], s13 offen offset:1024 {xmod} lds')
        if r < 3: A(f's_add_u32 s13, s13, {128*2048}')
    A('v_add_f32 v9, 0x3e800000, v9')
    m1(1, 13, 9)
    A(f'v_lshlrev_b32 v9, 28, v6')
    A(f'v_lshrrev_b32 v10, 16, v9')
    A(f'v_or_b32 v{SGN}, v9, v10')
    A('v_mul_f32 v12, 4.0, v7')
    for hh8 in range(2):
        if hh8: A('v_add_f32 v5, 0x41000000, v5')
        A('v_mul_f32 v13, 0x3a800000, v5')
        A('v_xor_b32 v15, v9, v13')
        A('v_mul_f32 v8, v12, v15')
        for hh in range(2):
            for r in range(4):
                o = 8*hh8 + 4*hh + r
                if r: A('v_add_f32 v8, v8, v15')
                elif hh: A('v_fmac_f32 v8, 0x41500000, v15')
                A(f'v_cos_f32 v{TC+o}, v8')
                A(f'v_sin_f32 v{TS+o}, v8')
    A('s_cmp_eq_u32 s11, 1')
    A('s_cselect_b32 s44, 0xc2000000, 0')
    A(f'v_mov_b32 v{MU}, s44')
    A(f'v_cmp_eq_u32 vcc, 7, v{vn}')
    A(f'v_cndmask_b32 v{MU}, 0, v{MU}, vcc')
    A(f'v_cvt_f32_u32 v5, v{vn}')
    A('v_mul_f32 v13, 0x3d000000, v5')
    A('v_mul_f32 v8, v12, v13')
    for j in range(8):
        if j == 4: A('v_fmac_f32 v8, 0x41500000, v13')
        elif j: A('v_add_f32 v8, v8, v13')
        A(f'v_cos_f32 v{10+(j&1)}, v8')
        A(f'v_sin_f32 v{14+(j&1)}, v8')
        if j & 1:
            A(f'v_cvt_pk_bf16_f32 v{M2C+j//2}, v10, v11')
            A(f'v_cvt_pk_bf16_f32 v{M2S+j//2}, v14, v15')
    for i in range(4): A(f'v_mov_b32 v{ONES+i}, 0x3f803f80')
    A(f'v_lshrrev_b32 v10, 2, v{vn}')
    A(f'v_and_b32 v11, 3, v{vn}')
    A(f'v_mul_u32_u24 v12, {XP}, v10')
    A(f'v_mul_u32_u24 v13, 528, v11')
    A('v_add3_u32 v12, v12, v13, s14')
    A(f'v_and_b32 v13, 1, v{vg}')
    A('v_lshl_add_u32 v12, v13, 8, v12')
    A(f'v_lshrrev_b32 v15, 1, v{vg}')
    A(f'v_lshl_add_u32 v{vSt}, v15, 7, v12')
    for e in range(1, 4): A(f'v_xor_b32 v{vSt+e}, {16*e}, v{vSt}')
    A('v_lshlrev_b32 v12, 6, v10')
    A(f'v_lshl_add_u32 v12, v{vg}, 9, v12')
    A('v_lshl_add_u32 v12, v11, 3, v12')
    A('v_lshl_add_u32 v12, v13, 5, v12')
    A(f'v_add_u32 v{vTr0}, s14, v12')
    A(f'v_xor_b32 v{vTr1}, 32, v{vTr0}')
    A(f's_mul_i32 s15, s12, {4*ZP}')
    A(f's_add_u32 s15, s15, {ZB}')
    A(f'v_mul_u32_u24 v{vZw}, {NP}, v{vn}')
    A(f'v_lshl_add_u32 v{vZw}, v{vg}, 4, v{vZw}')
    A(f'v_add_u32 v{vZw}, s15, v{vZw}')
    A(f'v_mul_u32_u24 v{vX0}, {XP}, v10')
    A(f'v_add_u32 v{vX0}, s14, v{vX0}')
    A(f'v_mul_u32_u24 v{vZ0}, {ZP}, v10')
    A('v_and_b32 v12, 1, v1')
    A(f'v_mul_u32_u24 v12, {8*NP}, v12')
    A(f'v_add3_u32 v{vZ0}, v{vZ0}, v12, s15')
    A('v_cmp_eq_u32 s[46:47], 1, v11')
    A('v_cmp_eq_u32 s[48:49], 2, v11')
    A('v_cmp_eq_u32 s[50:51], 3, v11')
    A(f'v_cmp_eq_u32 s[52:53], v10, v{vg}')
    A('s_cmp_eq_u32 s11, 0')
    A('s_cselect_b32 s16, 8192, 0')
    srd(A, 32, 4, MX_OFF, 's16')
    srd(A, 28, 4, U_OFF, 4 * MB)
    srd(A, 36, 4, E_OFF, 65536)
    A('s_lshr_b32 s65, s12, 1')
    A('s_cmp_lg_u32 s65, 0')
    A('s_cselect_b32 s44, 0.25, 0')
    A(f'v_lshlrev_b32 v8, 9, v{vg}')
    A('v_add_u32 v8, s10, v8')
    A('v_cvt_f32_u32 v8, v8')
    A('v_mul_f32 v13, 0x3a000000, v5')
    A('v_fma_f32 v8, v8, v13, s44')
    A('v_mul_f32 v13, 0x3d800000, v5')
    for j in range(4):
        if j: A('v_add_f32 v8, v8, v13')
        A(f'v_cos_f32 v{SA1+j}, v8')
        A(f'v_sin_f32 v{SA2+j}, v8')
    A(f'v_lshl_add_u32 v12, v{vg}, 2, v10')
    A(f'v_mul_u32_u24 v12, {ZP}, v12')
    A(f'v_add_u32 v{vZx}, {ZB + 64}, v12')
    A('v_lshl_add_u32 v12, v11, 3, v12')
    A('s_and_b32 s15, s12, 1')
    A('s_lshl_b32 s16, s15, 5')
    A(f's_add_u32 s16, s16, {ZB}')
    A(f'v_add_u32 v{vZr}, s16, v12')
    A(f'v_lshlrev_b32 v{vU}, 20, v{vg}')
    A('s_lshl_b32 s16, s15, 2')
    A('s_add_u32 s16, s16, s10')
    A('v_add_u32 v12, s16, v10')
    A('v_and_b32 v12, 7, v12')
    A(f'v_lshl_add_u32 v{vU}, v12, 7, v{vU}')
    A(f'v_lshl_add_u32 v{vU}, v11, 4, v{vU}')
    A('s_lshl_b32 s66, s65, 17')
    A('s_lshl_b32 s16, s10, 10')
    A('s_add_u32 s66, s66, s16')
    A('s_lshl_b32 s16, s11, 6')
    A('s_add_u32 s66, s66, s16')
    A('s_lshl_b32 s16, s15, 2')
    A('s_add_u32 s16, s16, 1')
    A('v_add_u32 v12, s16, v10')
    A(f'v_lshlrev_b32 v{vE0}, 14, v{vg}')
    A(f'v_lshl_add_u32 v{vE}, v12, 9, v{vE0}')
    A('v_cmp_gt_u32 vcc, 8, v12')
    A('s_and_b64 vcc, vcc, s[50:51]')
    A(f'v_cndmask_b32 v{vE}, 4.0, v{vE}, vcc')
    A(f'v_or_b32 v12, s15, v{vn}')
    A('v_cmp_eq_u32 vcc, 0, v12')
    A(f'v_cndmask_b32 v{vE0}, 4.0, v{vE0}, vcc')
    A('s_lshl_b32 s67, s65, 7')
    A('s_add_u32 s67, s67, s10')
    A('s_lshl_b32 s67, s67, 1')
    srd(A, 24, 4, 38 * MB, 2048 * 128)
    A('v_lshlrev_b32 v12, 7, v0')
    A('v_cmp_gt_u32 vcc, 8, v0')
    A('v_cndmask_b32 v12, 4.0, v12, vcc')
    A('s_mul_i32 s15, s2, 1024')
    A('v_mov_b32 v13, 0')
    A('buffer_store_dword v13, v12, s[24:27], s15 offen')
    npf = 2
    srd(A, 24, 60, 0, 3584 * 2048)
    A('v_lshrrev_b32 v12, 4, v0')
    A('s_mul_i32 s15, s2, 14')
    A('v_add_u32 v12, s15, v12')
    A('v_and_b32 v13, 8, v0')
    A('v_and_b32 v14, 7, v0')
    A('v_lshlrev_b32 v14, 4, v14')
    A('v_lshl_add_u32 v14, v12, 11, v14')
    A('v_add_u32 v12, v12, v13')
    A('v_and_b32 v12, 15, v12')
    A('v_and_b32 v15, 7, v12')
    A('v_cmp_eq_u32 vcc, 3, v15')
    A('v_xor_b32 v15, 4, v12')
    A('v_cndmask_b32 v12, v12, v15, vcc')
    A('v_lshl_add_u32 v104, v12, 7, v14')
    A('v_lshl_add_u32 v14, v13, 7, v14')
    A('v_cmp_gt_u32 vcc, 224, v0')
    A('v_cndmask_b32 v14, 4.0, v14, vcc')
    A('v_cndmask_b32 v104, 4.0, v104, vcc')
    A('buffer_load_dwordx4 v[100:103], v14, s[24:27], 0 offen offset:384')
    if opt.get('tlb'):
        sh = opt['tlb']
        A('s_load_dwordx2 s[68:69], s[0:1], %d' % KA['out'])
        A('s_lshr_b32 s15, s2, 3')
        A(f's_lshl_b32 s15, s15, {sh + 2}')
        A('s_lshl_b32 s16, s12, %d' % sh)
        A('s_add_u32 s15, s15, s16')
        srd(A, 24, 4, 0, 72 * MB)
        A(f'v_lshlrev_b32 v12, {sh + 7}, v1')
        A('v_cmp_gt_u32 vcc, %d, v1' % max(1, (72 * MB >> (sh + 7)) + 1))
        A('v_cndmask_b32 v12, 4.0, v12, vcc')
        A('buffer_load_dword v87, v12, s[24:27], s15 offen')
        A('s_waitcnt lgkmcnt(0)')
        srd(A, 24, 68, 0, 4 * MB)
        A('buffer_load_dword v87, v12, s[24:27], s15 offen')
        npf += 2
    if opt.get('pf', 1):
        srd(A, 24, 8, 0, 1024 * 7168)
        A('v_lshlrev_b32 v12, 7, v0')
        nl = 224 if opt.get('pf', 1) == 1 else 112
        A(f'v_cmp_gt_u32 vcc, {nl}, v0')
        A('v_cndmask_b32 v12, 4.0, v12, vcc')
        A(f's_mul_i32 s15, s2, {nl*128}')
        A('buffer_load_dword v89, v12, s[24:27], s15 offen')
        npf += 1
    st(1)
    A(f's_waitcnt vmcnt({npf})')
    st(2)
    E = AutoLgkm(A)
    def mf(d, a, b, z): return f'v_mfma_f32_16x16x32_bf16 {vr(d,4)}, {vr(a,4)}, {vr(b,4)}, {"0" if z else vr(d,4)}'
    def s1rd(r): return [f'ds_read_b64_tr_b16 {vr(AF+8*r+4*hh+2*rd,2)}, v{vTr0 if hh == 0 else vTr1} offset:{r*XP + 256*rd}' for hh in range(2) for rd in range(2)]
    frd = [f'ds_read_b128 {vr(F+4*i,4)}, v{vSt + (i&3)} offset:{64*(i>>2)}' for i in range(8)] + [f'ds_read_u16 v{vX0}, v{vX0}']
    def s1(r): return [mf(T + 16*r + 8*hh8 + 4*hh, AF + 8*r + 4*hh, M1 + 4*hh8, True) for hh8 in range(2) for hh in range(2)]
    for x in s1rd(0) + s1rd(1) + s1rd(2) + frd[:3]: E(x)
    for x in weave(s1(0) + s1(1), s1rd(3) + frd[3:], per=2) + s1(2) + s1(3): E(x)
    D0 = AF + 16; D1 = D
    def tw(r, hh8, tm, p):
        t = T + 16*r + 8*hh8; d = (D1 if hh8 else D0) + 4*r
        return [f'v_pk_mul_f32 {vr(tm+k,2)}, {vr(t+k,2)}, {vr(TC+8*hh8+k,2)}' for k in range(0, 8, 2)] + \
               [f'v_fmac_f32_dpp v{tm+k}, v{t+k}, v{TS+8*hh8+k} row_ror:8 row_mask:0xf bank_mask:0xf' for k in range(8)] + \
               [f'v_cvt_pk_bf16_f32 v{p+k}, v{tm+2*k}, v{tm+2*k+1}' for k in range(4)] + [mf(d, M2C, p, True)] + \
               [f'v_xor_b32_dpp v{p+4+k}, v{p+k}, v{SGN} row_ror:8 row_mask:0xf bank_mask:0xf' for k in range(4)], mf(d, M2S, p + 4, False)
    stm = [x for i in range(8) for x in (mf(SA, ONES, F+4*i, i == 0), mf(GA, F+4*i, F+4*i, i == 0))]
    t0 = []
    for r in range(4):
        a, b = tw(r, 0, AF, AF + 8)
        t0 += a[:6] + ([pb] if r else []) + a[6:]
        pb = b
    mean = [f'v_add_f32_dpp v11, v{SA}, v{SA} quad_perm:[1,0,3,2] row_mask:0xf bank_mask:0xf', f'v_cndmask_b32 v10, v{GA}, v{GA+1}, s[46:47]',
            f'v_lshlrev_b32 v{vX0}, 16, v{vX0}', 'v_add_f32_dpp v11, v11, v11 quad_perm:[2,3,0,1] row_mask:0xf bank_mask:0xf',
            f'v_cndmask_b32 v10, v10, v{GA+2}, s[48:49]', 'v_mul_f32 v15, 0x3a800000, v11', f'v_cndmask_b32 v10, v10, v{GA+3}, s[50:51]'] + \
           [f'v_readlane_b32 s{56+r}, v15, {4*r}' for r in range(4)]
    for x in weave(stm, t0[:48], per=3) + weave(t0[48:], mean, start=6, per=1) + [pb]: E(x)
    class L(list):
        def __call__(self, t): self.append(t)
    sg = L()
    sg('v_add_f32_dpp v10, v10, v10 quad_perm:[1,0,3,2] row_mask:0xf bank_mask:0xf')
    sg(f'v_sub_f32 v{vX0}, v{vX0}, v15')
    sg('v_add_f32_dpp v10, v10, v10 quad_perm:[2,3,0,1] row_mask:0xf bank_mask:0xf')
    ln_finish(sg, 11, 10, 12, 13, 14, 45)
    sg('v_rcp_f32 v13, v13')
    sg(f'v_lshlrev_b32 v12, 9, v{vg}'); sg(f'v_lshlrev_b32 v10, 2, v{vg}'); sg('s_lshl_b32 s15, s12, 4'); sg(f's_add_u32 s15, s15, {RB}')
    sg('v_add_u32 v10, s15, v10')
    def fin(r):
        return [f'v_cvt_pk_bf16_f32 v{D0+4*r+k}, v{D0+4*r+k}, v{D1+4*r+k}' for k in range(4)] + [f'ds_write_b128 v{vZw}, {vr(D0+4*r,4)} offset:{r*ZP}']
    t1 = []
    for r in range(4):
        a, b = tw(r, 1, TMP, P + 8*(r & 1))
        pre = [f'v_mul_f32 v8, s{56+r}, v{MU}', 'v_mov_b32 v9, v8'] + [f'v_pk_add_f32 {vr(T+16*r+8+k,2)}, {vr(T+16*r+8+k,2)}, v[8:9]' for k in range(0, 8, 2)]
        t1 += pre[:2] + ([pb] if r else []) + pre[2:] + a[:12] + (fin(r - 1) if r else []) + a[12:]
        pb = b
    for x in weave(t1[:2*len(sg)], list(sg), per=1)[:]: E(x)
    A('s_mov_b64 exec, s[52:53]')
    E('ds_write_b32 v10, v13')
    A('buffer_store_dword v15, v12, s[32:35], s63 offen')
    A('s_mov_b64 exec, -1')
    x0 = ['v_mov_b32 v11, 0', f'v_cvt_pk_bf16_f32 v10, v{vX0}, v11', 's_mov_b32 vcc_lo, 0x55555555', 's_mov_b32 vcc_hi, 0x55555555',
          'v_cndmask_b32 v10, 0, v10, vcc', f'ds_write_b64 v{vZ0}, v[10:11] offset:64']
    for x in weave(t1[2*len(sg):], x0, per=1): E(x)
    E(pb)
    A(f'v_lshlrev_b32 v10, 4, v{vg}')
    A(f'v_add_u32 v10, {RB}, v10')
    for x in fin(3): E(x)
    st(3)
    A('s_waitcnt lgkmcnt(0)')
    A('s_barrier')
    st(8)
    RS = F; AM = F + 4; ZF = T; O = T + 36
    A(f'ds_read_b128 {vr(RS,4)}, v10')
    for tau in range(9):
        if tau == 7: A('s_waitcnt lgkmcnt(14)')
        for rd in range(2):
            if tau < 8: A(f'ds_read_b64_tr_b16 {vr(ZF + tau*4 + 2*rd, 2)}, v{vZr} offset:{(rd*8 + tau)*NP}')
            else: A(f'ds_read_b64_tr_b16 {vr(ZF + tau*4 + 2*rd, 2)}, v{vZx} offset:{rd*8*NP}')
    for j in range(0, 4, 2):
        A(f'v_pk_mul_f32 {vr(SA1+j,2)}, {vr(SA1+j,2)}, {vr(RS+j,2)}')
        A(f'v_pk_mul_f32 {vr(SA2+j,2)}, {vr(SA2+j,2)}, {vr(RS+j,2)}')
    for k in range(4): A(f'v_cvt_pk_bf16_f32 v{AM+k}, v{SA1+2*k}, v{SA1+2*k+1}')
    for tau in range(9):
        if tau % 2 == 0: A(f's_waitcnt lgkmcnt({max(14 - 2*tau, 0)})')
        mfma(A, O + 4*tau, AM, ZF + tau*4, '0')
    for r in range(4):
        b = P + 4*r
        for k in range(4): A(f'v_cvt_pk_bf16_f32 v{b+k}, v{O+8*k+r}, v{O+8*k+4+r}')
        A(f'buffer_store_dwordx4 {vr(b,4)}, v{vU}, s[28:31], s66 offen {smod}')
        if r < 3: A('s_add_u32 s66, s66, 0x40000')
    srd(A, 24, 4, WC_OFF, 3584 * 2048)
    A(f's_waitcnt vmcnt({npf + 3})')
    A('buffer_store_dwordx4 v[100:103], v104, s[24:27], 0 offen')
    A('s_cmp_eq_u32 s11, 0')
    A(f's_cbranch_scc1 {name}_c0')
    for r in range(4):
        A(f'buffer_store_short_d16_hi v{P+4*r+3}, v{vE}, s[36:39], s67 offen')
        if r < 3: A('s_add_u32 s67, s67, 4096')
    A(f's_branch {name}_fin')
    A.label(f'{name}_c0')
    for r in range(4):
        A(f'v_cvt_pk_bf16_f32 v{O+32+r}, v{O+32+r}, v{O+32+r}')
        A(f'buffer_store_short v{O+32+r}, v{vE0}, s[36:39], s67 offen')
        if r < 3: A('s_add_u32 s67, s67, 4096')
    A.label(f'{name}_fin')
    st(4)
    A('s_waitcnt vmcnt(0)') if opt.get('stamp') else None
    st(5); st(6, True)
    st.dump(9, 0, 108)
    A.label(f'{name}_end')
    A('s_endpgm')
    return dict(name=name, grid=256, block=256, lds=FA_LDS, vgpr=256)
```

```python
from common import *
from g1 import w_voffs, tr_bases

HS = 16384; WS = 28672; WB0 = 3 * HS
XB = 32768; EB = WB0 + 3 * WS
SLOT = 32768
SGB = EB + 1024
SYB = SGB + 512
R1, D1, R2W, D2 = 0, 64, 128, 384
STG = SYB + 768
M_LDS = STG + 16384
FULL = 0x01010101
PX_OFF = 29 * MB
FL_OFF = 38 * MB
GS_OFF = 40 * MB; GST = 3072; GTT = 56 * GST
FL1, FL2, FL3, FL4, FL5 = 0, 32768, 65536, 196608, 229376
FL_SIZE = 2048 * 128

def spin(A, tag, srdn, soff, vflag, vaddr, scnt, depth=4, gap=2):
    A(f's_mov_b32 s{scnt}, 400000')
    ld = lambda k: A(f'buffer_load_dword v{vflag+k}, v{vaddr}, s[{srdn}:{srdn+3}], s{soff} offen sc1')
    for k in range(depth - 1):
        ld(k); A(f's_sleep {gap}')
    A.label(f'{tag}_spin')
    for k in range(depth):
        ld((k + depth - 1) % depth)
        A(f's_waitcnt vmcnt({depth - 1})')
        A(f'v_cmp_ne_u32 vcc, 1, v{vflag+k}')
        A(f's_cbranch_vccz {tag}_go')
        A(f's_sleep {gap}')
    A(f's_sub_u32 s{scnt}, s{scnt}, 1')
    A(f's_cbranch_scc0 {tag}_spin')
    A.label(f'{tag}_go')

def skipmap(A, dst, src, odd, t):
    if odd:
        A(f'v_cmp_lt_u32 vcc, 255, v{src}')
        A(f'v_add_u32 v{dst}, {1024 + 128}, v{src}')
    else:
        A(f'v_cmp_lt_u32 vcc, 383, v{src}')
        if dst != src: A(f'v_mov_b32 v{dst}, v{src}')
    A(f'v_add_u32 v{t}, 128, v{dst}')
    A(f'v_cndmask_b32 v{dst}, v{dst}, v{t}, vcc')

def g1_decode(A):
    A('s_and_b32 s8, s2, 7')
    A('s_lshr_b32 s9, s2, 3')
    A('s_and_b32 s10, s8, 1')
    A('s_lshl_b32 s10, s10, 3')
    A('s_and_b32 s11, s9, 7')
    A('s_add_u32 s10, s10, s11')
    A('s_lshr_b32 s11, s8, 1')
    A('s_lshl_b32 s11, s11, 2')
    A('s_lshr_b32 s9, s9, 3')
    A('s_add_u32 s11, s11, s9')

def g2_decode(A):
    A('s_mov_b32 s9, s11')
    A('s_lshr_b32 s8, s9, 3')
    A('s_and_b32 s11, s9, 7')
    A('s_lshl_b32 s11, s11, 1')
    A('s_add_u32 s11, s11, s8')

def fb_compute(A, name, st, opt):
    A('s_and_b32 s13, s2, 7')
    A('s_lshr_b32 s14, s2, 3')
    A('s_sub_u32 s15, 16, s13')
    A('s_cmp_eq_u32 s13, 0')
    A('s_cselect_b32 s15, 8, s15')
    A('s_bitcmp1_b32 s14, 0')
    A('s_cselect_b32 s10, s15, s13')
    A('s_lshr_b32 s11, s14, 1')
    A('s_sub_u32 s16, 16, s10')
    A('s_and_b32 s16, s16, 15')
    A('s_sub_u32 s17, 15, s11')
    A('s_lshr_b32 s19, s11, 3')
    A('s_cmp_lg_u32 s19, 0')
    A('s_cselect_b32 s16, s16, s10')
    A('s_cselect_b32 s17, s17, s11')
    vn, vg = 2, 3
    A(f'v_and_b32 v{vn}, 15, v1')
    A(f'v_lshrrev_b32 v{vg}, 4, v1')
    A('v_lshrrev_b32 v6, 3, v1')
    A(f'v_and_b32 v7, 1, v{vg}')
    A('v_lshrrev_b32 v8, 1, v1')
    A('v_and_b32 v8, 3, v8')
    A('v_xor_b32 v7, v7, v8')
    A('v_lshlrev_b32 v7, 5, v7')
    A('v_lshl_add_u32 v4, v6, 10, v7')
    A('v_and_b32 v7, 1, v1')
    A('v_lshl_add_u32 v4, v7, 4, v4')
    A('v_add_u32 v7, s17, v6')
    A('v_and_b32 v7, 7, v7')
    A('v_lshl_add_u32 v4, v7, 7, v4')
    A('v_xor_b32 v5, 64, v4')
    A(f'v_add_u32 v5, {8192 - 1024}, v5')
    A('s_lshl_b32 s14, s16, 2')
    A('s_add_u32 s14, s14, s12')
    A('s_lshl_b32 s14, s14, 16')
    A('s_lshl_b32 s18, s12, 13')
    A(f'v_xor_b32 v8, v{vg}, v1')
    A('v_and_b32 v8, 7, v8')
    A('v_lshlrev_b32 v8, 4, v8')
    A('v_lshl_add_u32 v6, v6, 15, v8')
    A('v_xor_b32 v7, 64, v6')
    A(f'v_add_u32 v7, {8*32768 - 1024}, v7')
    A('s_lshl_b32 s61, s12, 19')
    A('s_lshl_b32 s15, s10, 11')
    A('s_add_u32 s61, s61, s15')
    A('s_lshl_b32 s15, s11, 7')
    A('s_add_u32 s61, s61, s15')
    A('s_lshl_b32 s62, s12, 12')
    A(f's_add_u32 s62, s62, {XB}')
    A('s_lshl_b32 s63, s10, 3')
    A('s_add_u32 s63, s63, s11')
    A('s_lshl_b32 s63, s63, 9')
    A('s_sub_u32 s63, s63, 512')
    A('s_sub_u32 s15, s11, 1')
    A('s_cmp_lt_u32 s15, 7')
    A('s_cselect_b32 s63, s63, 0x40000000')
    A('s_lshl_b32 s15, s16, 12')
    A('v_mov_b32 v9, s15')
    A('v_mov_b32 v10, s63')
    A('v_cmp_gt_u32 vcc, 32, v1')
    A('v_cndmask_b32 v9, v10, v9, vcc')
    A('v_lshl_add_u32 v9, v1, 4, v9')
    A(f'v_lshlrev_b32 v10, 6, v{vn}')
    A('s_lshl_b32 s15, s12, 8')
    A('s_add_u32 s15, s15, s10')
    A('s_lshl_b32 s15, s15, 2')
    A('s_waitcnt lgkmcnt(0)')
    srd(A, 20, 4, U_OFF, 4 * MB)
    srd(A, 28, 4, E_OFF, 65536)
    for h in range(4):
        A(f's_add_u32 m0, s18, {h*2048}')
        A('s_nop 0')
        A(f'buffer_load_dwordx4 v4, s[20:23], s14 offen lds')
        A(f'buffer_load_dwordx4 v5, s[20:23], s14 offen offset:1024 lds')
        if h < 3: A('s_add_u32 s14, s14, 16384')
    A(f's_mov_b32 m0, {EB}')
    srd(A, 24, 6, 0, 2048 * 2048)
    A('buffer_load_dwordx4 v9, s[28:31], 0 offen lds')
    FR = [16, 48]; EF = 80; B = [112, 144]; ACC = [176, 192]; MA = [208, 212]; VT = 216; VX = 220; X = [224, 232]; VB = 240; MXV = [241, 242]; VH = 243; VE = 244
    srd(A, 40, 4, MX_OFF, 8192)
    for u in range(2):
        A(f's_add_u32 m0, s62, {u*2048}')
        if u: A(f's_add_u32 s61, s61, {4 << 19}')
        else: A('s_nop 0')
        A('buffer_load_dwordx4 v6, s[24:27], s61 offen lds')
        A('buffer_load_dwordx4 v7, s[24:27], s61 offen offset:1024 lds')
    A('s_add_u32 s14, s15, 4096')
    A(f'buffer_load_dword v{MXV[0]}, v10, s[40:43], s15 offen')
    A(f'buffer_load_dword v{MXV[1]}, v10, s[40:43], s14 offen')
    A('s_lshl_b32 s15, s12, 4')
    A(f'v_add_u32 v6, s15, v{vn}')
    A('s_cmp_lg_u32 s10, 0')
    A('s_cselect_b32 s15, -1, 0')
    A('v_sub_u32 v7, s15, v6')
    A('s_cmp_lg_u32 s19, 0')
    A('s_cselect_b64 vcc, -1, 0')
    A('v_cndmask_b32 v6, v6, v7, vcc')
    A('v_and_b32 v6, 127, v6')
    A('v_cvt_f32_u32 v7, v6')
    A('v_mul_f32 v7, 0x3c000000, v7')
    A(f'v_lshlrev_b32 v10, 3, v{vg}')
    A('v_cvt_f32_u32 v10, v10')
    A('v_mul_f32 v10, v10, v7')
    B0 = B[0]
    for j in range(8):
        if j: A('v_add_f32 v10, v10, v7')
        A(f'v_cos_f32 v{12+(j&1)}, v10')
        A(f'v_sin_f32 v{14+(j&1)}, v10')
        if j & 1:
            A(f'v_cvt_pk_bf16_f32 v{B0+j//2}, v12, v13')
            A(f'v_cvt_pk_bf16_f32 v{B0+16+j//2}, v14, v15')
    A('v_and_b32 v8, 1, v6')
    A('v_cmp_eq_u32 vcc, 1, v8')
    A('v_mul_u32_u24 v8, 0x8000, v8')
    A('v_lshl_or_b32 v8, v8, 16, v8')
    A('v_and_b32 v10, 2, v6')
    A('v_mul_u32_u24 v10, 0x4000, v10')
    A('v_lshl_or_b32 v10, v10, 16, v10')
    A('v_xor_b32 v11, v10, v8')
    for k in range(4):
        A(f'v_cndmask_b32 v12, v{B0+k}, v{B0+16+k}, vcc')
        A(f'v_cndmask_b32 v13, v{B0+16+k}, v{B0+k}, vcc')
        A(f'v_xor_b32 v{B0+4+k}, v11, v12')
        A(f'v_xor_b32 v{B0+20+k}, v10, v13')
    for k in range(8):
        A(f'v_xor_b32 v{B0+8+k}, v8, v{B0+k}')
        A(f'v_xor_b32 v{B0+24+k}, v8, v{B0+16+k}')
    A('s_brev_b32 s15, 1')
    for k in range(32): A(f'v_xor_b32 v{B[1]+k}, s15, v{B0+k}')
    A(f'v_lshrrev_b32 v10, 2, v{vn}')
    A(f'v_lshl_add_u32 v10, v{vg}, 3, v10')
    A(f'v_lshrrev_b32 v11, 3, v{vn}')
    A(f'v_and_b32 v12, 1, v{vg}')
    A('v_lshl_add_u32 v11, v12, 1, v11')
    A('v_lshlrev_b32 v11, 5, v11')
    A('v_lshl_add_u32 v10, v10, 7, v11')
    A(f'v_and_b32 v11, 3, v{vn}')
    A(f'v_lshl_add_u32 v{VT}, v11, 3, v10')
    A('s_mul_i32 s15, s19, 96')
    A(f'v_xor_b32 v{VT}, s15, v{VT}')
    for i in range(1, 4): A(f'v_xor_b32 v{VT+i}, {(2*(i&1) + (i>>1))*32}, v{VT}')
    A(f'v_and_b32 v11, 1, v{vn}')
    A('v_lshlrev_b32 v11, 9, v11')
    A(f'v_lshl_add_u32 v11, v{vg}, 4, v11')
    A(f'v_add_u32 v{VE}, {EB}, v11')
    A('s_mul_i32 s15, s19, 3')
    A(f'v_xor_b32 v10, s15, v{vg}')
    A('v_lshrrev_b32 v11, 1, v10')
    A(f'v_lshrrev_b32 v12, 1, v{vn}')
    A('v_xor_b32 v11, v11, v12')
    A('v_lshlrev_b32 v11, 4, v11')
    A(f'v_lshl_add_u32 v11, v{vn}, 7, v11')
    A('v_and_b32 v12, 1, v10')
    A('v_lshl_add_u32 v11, v12, 3, v11')
    A(f'v_add_u32 v{VX}, s62, v11')
    for i in range(1, 4): A(f'v_xor_b32 v{VX+i}, {32*i}, v{VX}')
    A(f'v_lshl_add_u32 v10, v10, 4, v{vn}')
    A(f'v_lshlrev_b32 v{VH}, 4, v10')
    A('v_add_u32 v10, 48, v1')
    A('v_and_b32 v10, 63, v10')
    A(f'v_lshlrev_b32 v{VB}, 2, v10')
    A(f'v_cmp_eq_u32 s[46:47], 0, v{vg}')
    srd(A, 52, 4, HF_OFF, 4 * MB)
    srd(A, 56, 4, ST_OFF, 2048 * 128)
    A('s_cmp_eq_u32 s11, 0')
    A('s_cselect_b32 s15, 8192, 0')
    srd(A, 32, 4, MU_OFF, 's15')
    srd(A, 36, 4, FL_OFF, FL_SIZE)
    A('s_lshl_b32 s13, s10, 3')
    A('s_add_u32 s13, s13, s12')
    st(1)
    A('s_waitcnt vmcnt(6)')
    A('s_barrier')
    st(2)
    def frag(i, p): return FR[i & 1] + 4 * p
    def rd(h):
        i = h >> 1
        return [f'ds_read_b64_tr_b16 {vr(frag(i,p)+2*r2,2)}, v{VT+i} offset:{(32*p+4*r2)*128}' for p in range(4*(h & 1), 4*(h & 1) + 4) for r2 in range(2)]
    def mf(d, a, b, z): return f'v_mfma_f32_16x16x32_bf16 {vr(d,4)}, {vr(a,4)}, {vr(b,4)}, {"0" if z else vr(d,4)}'
    def half(h): return [mf(ACC[u] + 4*(h >> 1), frag(h >> 1, p), B[u] + 4*p, p == 0) for p in range(4*(h & 1), 4*(h & 1) + 4) for u in range(2)]
    ONE = 4; S = [5, 7]; Q = [6, 8]; TM = EF; OUT = EF + 16
    E = AutoLgkm(A)
    for x in rd(0) + [f'ds_read_b128 {vr(EF+4*p,4)}, v{VE} offset:{64*p}' for p in range(8)]: E(x)
    for x in weave(half(0), rd(1), per=2): E(x)
    for x in weave([mf(MA[u], EF + 4*p, B[u] + 4*p, p == 0) for p in range(8) for u in range(2)], rd(2), per=1): E(x)
    misc = [f'v_mov_b32 v{ONE}, 0x3f803f80'] + [f'v_mov_b32 v{r}, 0' for r in S + Q] + [f'v_lshlrev_b32 v9, 2, v{vn}', 's_lshl_b32 s60, s13, 6',
            's_lshl_b32 s14, s13, 15', 's_lshl_b32 s15, s11, 11', 's_add_u32 s14, s14, s15', 's_add_u32 s15, s14, 0x20000']
    for x in weave(half(1), rd(3) + misc, per=3): E(x)
    xr = ['s_waitcnt vmcnt(0)'] + [f'ds_read_b64 {vr(X[u]+2*k2,2)}, v{VX+k2} offset:{u*2048}' for k2 in range(4) for u in range(2)]
    for x in weave(half(2), rd(4) + xr, per=3): E(x)
    for x in weave(half(3), rd(5) + [f'v_add_f32 v{MA[u]}, v{MA[u]}, v{MXV[u]}' for u in range(2)], per=2): E(x)
    def epi(V, pr):
        out = []
        for u in range(2):
            o = OUT + 8*u + 4*pr
            for i2 in range(2):
                i = 2*pr + i2; t = TM + 8*u + 4*i2
                for q in range(2):
                    r_ = X[u] + 2*i + q
                    out += [f'v_lshlrev_b32 v{t+2*q}, 16, v{r_}', f'v_and_b32 v{t+1+2*q}, 0xffff0000, v{r_}']
                out += [f'v_sub_f32 v{t+r}, v{t+r}, v{MA[u]}' for r in range(4)]
                out += [f'v_add_f32 v{t+r}, v{t+r}, v{V[u][i][r]}' for r in range(4)]
                out += [f'v_cvt_pk_bf16_f32 v{o+2*i2+q}, v{t+2*q}, v{t+1+2*q}' for q in range(2)]
            out.append(f'buffer_store_dwordx4 {vr(o,4)}, v{VH}, s[52:55], s{14+u} offen offset:{pr*1024} sc1')
        return out
    def dots(pr): return [x for u in range(2) for k in range(4) for x in
                          (f'v_dot2_f32_bf16 v{S[u]}, v{OUT+8*u+4*pr+k}, v{ONE}, v{S[u]}', f'v_dot2_f32_bf16 v{Q[u]}, v{OUT+8*u+4*pr+k}, v{OUT+8*u+4*pr+k}, v{Q[u]}')]
    RP = 10; SH = 248
    A('s_cmp_lg_u32 s19, 0')
    A(f's_cbranch_scc1 {name}_up')
    pend0 = list(E.pend)
    for lower in (1, 0):
        if not lower:
            A.label(f'{name}_up'); A('s_nop 7'); E.pend = list(pend0)
        if lower:
            V = [[[SH+4*u+i, ACC[u]+4*i, ACC[u]+4*i+1, ACC[u]+4*i+2] for i in range(4)] for u in range(2)]
            def rot(i): return [f'ds_bpermute_b32 v{RP+3*u+(i%3)}, v{VB}, v{ACC[u]+4*i+3}' for u in range(2)]
            def sel(i): return [f'v_cndmask_b32 v{SH+4*u+i}, v{RP+3*u+(i%3)}, v{RP+3*u+((i-1)%3) if i else MA[u]+1}, s[46:47]' for u in range(2)]
        else:
            V = [[[ACC[u]+4*i+3-r for r in range(4)] for i in range(4)] for u in range(2)]
            rot = sel = lambda i: []
        for x in weave(half(4), rot(0) + rd(6) + rot(1), per=2): E(x)
        e0 = sel(0) + sel(1) + epi(V, 0)
        for x in weave(half(5), rd(7) + e0[:16], per=3): E(x)
        for x in weave(half(6) + half(7), rot(2) + e0[16:] + dots(0), start=2, per=4): E(x)
        e1 = epi(V, 1)
        hst = [x for x in e1 if x.startswith('buffer_store')]
        for x in rot(3) + sel(2) + sel(3) + [x for x in e1 if x not in hst]: E(x)
        E.drain()
        if lower: A(f's_branch {name}_join')
    A.label(f'{name}_join')
    st(3)
    A('s_waitcnt vmcnt(0)')
    A('s_barrier')
    st(4)
    for x in dots(1)[:8] + hst + dots(1)[8:]: A(x)
    A(f'buffer_store_dword v{MA[0]}, v9, s[32:35], s60 offen sc1')
    A(f'buffer_store_dword v{MA[1]}, v9, s[32:35], s60 offen offset:256 sc1')
    A(f'v_lshlrev_b32 v40, 7, v{vn}')
    A(f'v_lshrrev_b32 v41, 1, v{vg}')
    A('v_lshl_add_u32 v40, v41, 2, v40')
    A('s_lshl_b32 s14, s13, 11')
    A('s_lshl_b32 s15, s11, 3')
    A('s_add_u32 s14, s14, s15')
    A('s_add_u32 s15, s14, 8192')
    for u in range(2): A(f'v_permlane32_swap_b32 v{S[u]}, v{Q[u]}')
    for u in range(2): A(f'v_add_f32 v{S[u]}, v{S[u]}, v{Q[u]}')
    for u in range(2): A(f'v_mov_b32 v{Q[u]}, v{S[u]}')
    for u in range(2): A(f'v_permlane16_swap_b32 v{S[u]}, v{Q[u]}')
    for u in range(2): A(f'v_add_f32 v{S[u]}, v{S[u]}, v{Q[u]}')
    for u in range(2): A(f'buffer_store_dword v{S[u]}, v40, s[56:59], s{14+u} offen sc1')

def drained(A):
    A('s_waitcnt vmcnt(0)')
    A('s_barrier')

def g1_compute(A, name, st, opt):
    WB = [8, 36]; ACC = 64; HB = [176, 192]
    vAh, cAh, VW, CW = 2, 3, 208, 216
    g1_decode(A)
    A('s_and_b32 s13, s12, 1')
    A('s_lshr_b32 s14, s12, 1')
    A('s_lshl_b32 s15, s13, 13')
    A(f'v_lshlrev_b32 v{vAh}, 4, v1')
    A(f'v_add_u32 v{vAh}, s15, v{vAh}')
    tr_bases(A, 44, 45, 1, 48)
    A('s_cmp_lg_u32 s14, 0')
    A('s_cselect_b64 vcc, -1, 0')
    def gaddr(dst, lam):
        if lam < 12:
            A(f'v_xor_b32 v{dst}, {32*(lam&3)}, v44')
            A(f'v_add_u32 v{dst}, {WB0 + (lam>>2)*1024}, v{dst}')
        else:
            A(f'v_xor_b32 v{dst}, {32*(lam&1)}, v45')
            A(f'v_add_u32 v{dst}, {WB0 + 6144}, v{dst}')
    for k, (l0, l1) in enumerate(zip([4, 5, 2, 3, 0, 1, 6], [8, 9, 10, 11, 12, 13, 7])):
        gaddr(46, l0); gaddr(47, l1)
        A(f'v_cndmask_b32 v{VW+k}, v46, v47, vcc')
    A(f'v_mov_b32 v{cAh}, v{vAh}')
    for k in range(7): A(f'v_mov_b32 v{CW+k}, v{VW+k}')
    for i in range(112): A(f'v_mov_b32 v{ACC+i}, 0')
    A('s_lshl_b32 s15, s10, 1')
    A('s_add_u32 s15, s15, s13')
    gs = opt.get('gskip', 1); TT = GTT if gs else 112 * 1024
    A('s_mul_i32 s15, s15, %d' % (4 * TT))
    A('s_add_u32 s15, s15, %d' % (GS_OFF if gs else G_OFF))
    srd(A, 20, 4, 's15', 4 * TT)
    A('s_mov_b32 s17, 0')
    A('s_mov_b32 s19, 0')
    A('s_mov_b32 s18, 0')
    BV = 240; H2 = 224
    A('s_load_dwordx2 s[24:25], s[0:1], %d' % KA['b1'])
    A('s_and_b32 s52, s11, 1')
    A('s_mul_i32 s15, s11, 7')
    A('s_add_u32 s16, s15, s52')
    A('s_add_u32 s56, s16, 3')
    A('s_cmp_lg_u32 s14, 0')
    A('s_cselect_b32 s53, 4, 2')
    A('s_cselect_b32 s54, 5, 1')
    A('s_cselect_b32 s55, 6, 0')
    for r in (53, 54, 55): A(f's_add_u32 s{r}, s{r}, s16')
    A('s_and_b32 s52, s52, s14')
    A('s_cmp_lg_u32 s52, 0')
    A('s_cselect_b32 s55, s15, s55')
    for r in (53, 54, 55, 56): A(f's_lshl_b32 s{r+4}, s{r}, 6')
    A('s_lshl_b32 s15, s14, 5')
    A('s_add_u32 s60, s60, s15')
    A('v_and_b32 v44, 15, v1')
    A('v_lshlrev_b32 v44, 1, v44')
    A('s_mov_b32 s26, 7168')
    A('s_mov_b32 s27, 0x20000')
    A('s_waitcnt lgkmcnt(0)')
    for i in range(7):
        so, off = 57 + i // 2, (32*(i&1) if i < 6 else 0)
        A(f'buffer_load_ushort v{BV+i}, v44, s[24:27], s{so} offen offset:{off}')
    A('s_barrier')
    A('s_waitcnt vmcnt(0)')
    def reads(s, buf):
        r = []
        for j in range(4):
            r.append(f'ds_read_b128 {vr(HB[buf]+4*j,4)}, v{cAh} offset:{(2*j+s)*1024}')
        for i in range(7):
            for rd in range(2):
                r.append(f'ds_read_b64_tr_b16 {vr(WB[buf]+4*i+2*rd,2)}, v{CW+i} offset:{(2*s + rd) * 7168}')
        return r
    def step(buf, rds, tail=None, nowait=False):
        k = 0; n = 0
        for i in range(7):
            for jj in range(4):
                j = jj if (i & 1) == 0 or opt.get('nosnake') else 3 - jj
                ii = i
                if opt.get('jmajor'):
                    j, ii = (i*4 + jj) // 7, (i*4 + jj) % 7
                    if j & 1: ii = 6 - ii
                mfma(A, ACC + (ii*4+j)*4, WB[buf] + 4*ii, HB[buf] + 4*j)
                if k < len(rds): A(rds[k]); k += 1
                n += 1
                if tail and n - 20 in tail:
                    for t in tail[n - 20]: A(t)
        if not nowait: A('s_waitcnt lgkmcnt(0)')
    A('s_barrier')
    st(8)
    for r in reads(0, 0): A(r)
    A('s_waitcnt lgkmcnt(0)')
    A(f's_branch {name}_g1mid')
    tailB = {-4: [f's_add_u32 s17, s17, {HS}', f's_add_u32 s19, s19, {WS}'], -3: [f's_cmp_eq_u32 s17, {3*HS}', 's_cselect_b32 s17, 0, s17'],
             -2: ['s_cselect_b32 s19, 0, s19', 's_add_u32 s18, s18, 1'], -1: [f'v_add_u32 v{cAh}, s17, v{vAh}', 's_cmp_le_u32 s18, 14']}
    for k in range(7): tailB[k] = [f'v_add_u32 v{CW+k}, s19, v{VW+k}']
    A('.p2align 6')
    A.label(f'{name}_g1loop')
    A('s_barrier')
    step(1, reads(0, 0))
    A.label(f'{name}_g1mid')
    step(0, reads(1, 1), tailB)
    A(f's_cbranch_scc1 {name}_g1loop')
    A('s_barrier')
    gs = opt.get('gskip', 1)
    order = [6, 0, 1, 2, 3, 4, 5]
    SG = 4
    def wset(k): return WB[0] + 8 * (k % 3)
    def wrd(k):
        i = order[k]
        return [f'ds_read_b64_tr_b16 {vr(wset(k)+4*s_+2*rd,2)}, v{CW+i} offset:{(2*s_ + rd) * 7168}' for s_ in range(2) for rd in range(2)]
    BT = 32
    ST4 = [208, 212, 248, 252]
    A('v_and_b32 v2, 15, v1')
    A('s_lshl_b32 s15, s13, 8')
    A(f's_add_u32 s15, s15, {SGB}')
    A('v_lshl_add_u32 v2, v2, 2, s15')
    pre = [f'ds_read_b128 {vr(HB[0]+4*j,4)}, v{cAh} offset:{(2*j)*1024}' for j in range(4)] + wrd(0) + \
          [f'ds_read_b128 {vr(H2+4*j,4)}, v{cAh} offset:{(2*j+1)*1024}' for j in range(4)] + \
          [f'ds_read_b32 v{ST4[j]}, v2 offset:{64*j}' for j in range(4)] + wrd(1)
    setup = []
    for j in range(4):
        for k in range(1, 4): setup.append(f'v_mov_b32 v{ST4[j]+k}, 0')
    for k in range(1, 4): setup.append(f'v_mov_b32 v{BT+k}, 0')
    addr = []
    for r in (53, 54, 55, 56):
        addr += [f's_lshr_b32 s{r}, s{r}, 1', f's_mul_i32 s{r}, s{r}, {GST}'] if gs else [f's_lshl_b32 s{r}, s{r}, 10']
    class L(list):
        def __call__(self, t): self.append(t)
    va = L()
    va('v_and_b32 v4, 15, v1'); va('v_lshlrev_b32 v4, 4, v4'); va('v_and_b32 v6, 16, v1'); va('v_and_b32 v7, 32, v1')
    va('v_lshl_add_u32 v5, v7, 3, v4'); va('v_lshl_add_u32 v4, v6, 5, v5'); va('v_lshrrev_b32 v6, 1, v6'); va('s_lshl_b32 s19, s14, 9')
    va('v_add3_u32 v5, v5, v6, s19')
    if gs:
        skipmap(va, 6, 4, 1, 2); skipmap(va, 4, 4, 0, 2); skipmap(va, 5, 5, 1, 2)
        va('s_cmp_lg_u32 s52, 0'); va('s_cselect_b64 vcc, -1, 0'); va('v_cndmask_b32 v7, v4, v6, vcc')
    else:
        va('v_mov_b32 v6, v4'); va('v_mov_b32 v7, v4')
    def acc(i, j): return ACC + (i*4+j)*4
    def epi_tile(i, j, d):
        a = acc(i, j)
        return [f'v_max_f32 v{a+r}, 0, v{a+r}' for r in range(4)] + \
               [f'v_pk_mul_f32 {vr(a,2)}, {vr(a,2)}, {vr(a,2)}', f'v_pk_mul_f32 {vr(a+2,2)}, {vr(a+2,2)}, {vr(a+2,2)}',
                f'v_cvt_pk_bf16_f32 v{d}, v{a}, v{a+1}', f'v_cvt_pk_bf16_f32 v{d+1}, v{a+2}, v{a+3}']
    late = []
    def epi(i):
        out = []
        for j in range(4):
            if i == 6:
                out += epi_tile(i, j, acc(i, j))
                out.append(f'buffer_store_dwordx2 {vr(acc(i,j),2)}, v5, s[20:23], s56 offen sc1')
                if j < 3: out.append(f's_add_u32 s56, s56, {TT}')
            elif i % 2 == 0:
                out += epi_tile(i, j, acc(i, j))
            else:
                d = acc(i - 1, j)
                out += epi_tile(i, j, d + 2)
                out += [f'v_permlane16_swap_b32 v{d}, v{d+2}', f'v_permlane16_swap_b32 v{d+1}, v{d+3}']
                pp = i // 2
                dst = out if pp < 2 else late
                dst.append(f'buffer_store_dwordx4 {vr(d,4)}, v{[4, 6, 7][pp]}, s[20:23], s{53+pp} offen sc1')
                if j < 3: dst.append(f's_add_u32 s{53+pp}, s{53+pp}, {TT}')
        return out
    for k, i in enumerate(order):
        mf = [(acc(i, j), WB[1] + 4*i, HB[1] + 4*j) for j in range(4)] + [(acc(i, j), wset(k), HB[0] + 4*j) for j in range(4)] + \
             [(acc(i, j), wset(k) + 4, H2 + 4*j) for j in range(4)] + [(acc(i, j), BT, ST4[j]) for j in range(4)]
        if k == 0:
            fill = pre + addr + list(va) + setup
        else:
            fill = (wrd(k + 1) if k + 1 < 7 else []) + epi(order[k - 1])
        per = -(-len(fill) // 15)
        fi = 0
        for n, (d, a, b) in enumerate(mf):
            if k == 0 and n == 4:
                for x in fill[fi:len(pre)]: A(x)
                fi = max(fi, len(pre))
                A('s_waitcnt lgkmcnt(14)')
            if k == 0 and n == 8: A('s_waitcnt lgkmcnt(8)')
            if k == 0 and n == 12:
                for x in fill[fi:]: A(x)
                fi = len(fill)
                A('s_waitcnt vmcnt(0) lgkmcnt(4)')
                A('v_cmp_gt_u32 vcc, 16, v1')
                for j in range(4): A(f'v_cndmask_b32 v{ST4[j]}, 0, v{ST4[j]}, vcc')
            if k > 0 and n == 4: A(f's_waitcnt lgkmcnt({4 if k + 1 < 7 else 0})')
            if n == 10 and k > 0 or (k == 0 and n == 12): A(f'v_mov_b32 v{BT}, v{BV+i}')
            mfma(A, d, a, b)
            if k == 6 and n == 4:
                A('s_barrier')
                st(9)
            for _ in range(per):
                if fi < len(fill): A(fill[fi]); fi += 1
        for x in fill[fi:]: A(x)
    for x in epi(5): A(x)
    return late

def g2_compute(A, name, st, opt, late):
    NS = 4; N2 = opt.get('n2', 8); N1 = (56 - N2) // 2
    SIG = opt.get('sig', 2); POLL = opt.get('poll', 4)
    AO = 8; AX = 40; HB = [72, 88]; WO = [104, 112]; WX = [120, 128]; EP = 136; PR = 224
    vAh, vAw, cAh, cAw, vAw1, cAw1, vL16, vFl = 176, 177, 178, 179, 180, 181, 182, 183
    A('s_load_dwordx2 s[50:51], s[0:1], %d' % KA['b2'])
    A('s_load_dwordx2 s[48:49], s[0:1], %d' % KA['out'])
    A('v_and_b32 v8, 15, v1')
    A('v_lshlrev_b32 v8, 4, v8')
    A('v_and_b32 v10, 16, v1')
    A('v_and_b32 v11, 32, v1')
    A('v_lshl_add_u32 v9, v11, 3, v8')
    A('v_lshl_add_u32 v8, v10, 5, v9')
    A('v_lshrrev_b32 v10, 1, v10')
    A('s_lshl_b32 s15, s13, 13')
    A('s_lshl_b32 s16, s14, 9')
    A('s_add_u32 s16, s16, s15')
    A(f's_add_u32 s16, s16, {3*SLOT + 1024}')
    A('v_add3_u32 v9, v9, v10, s16')
    A('v_add_u32 v8, s15, v8')
    A('s_cmp_lg_u32 s14, 0')
    for k, (b0, b1) in enumerate(((3*SLOT, 0), (2*SLOT + 1024, 1024), (2*SLOT, 0x40000))):
        A(f's_mov_b32 s16, {b0}')
        A(f's_cselect_b32 s16, {b1}, s16')
        A(f'v_add_u32 v{10+k}, s16, v8')
    wr_ = [f'ds_write_b128 v{10+k}, {vr(64+32*k+4*j,4)} offset:{2048*j}' for k in (2, 1, 0) for j in range(4)]
    wr_ += [f'ds_write_b64 v9, {vr(160+4*j,2)} offset:{2048*j}' for j in range(4)]
    ad = [f'v_lshlrev_b32 v{vL16}, 4, v1', f'v_add_u32 v{vAh}, s15, v{vL16}', 'v_lshrrev_b32 v184, 2, v1', 'v_and_b32 v184, 3, v184',
          'v_lshrrev_b32 v185, 4, v1', 'v_lshl_add_u32 v184, v185, 3, v184', 'v_lshrrev_b32 v186, 3, v1', 'v_and_b32 v186, 3, v186',
          'v_lshlrev_b32 v186, 5, v186', 'v_lshl_add_u32 v184, v184, 7, v186', 'v_and_b32 v186, 3, v1', f'v_lshl_add_u32 v{vAw}, v186, 3, v184',
          's_lshl_b32 s16, s14, 6', f'v_xor_b32 v{vAw}, s16, v{vAw}', f'v_add_u32 v{vAw}, 16384, v{vAw}', f'v_xor_b32 v{vAw1}, 32, v{vAw}',
          f'v_add_u32 v{cAh}, {2*SLOT}, v{vAh}', f'v_add_u32 v{cAw}, {2*SLOT}, v{vAw}', f'v_add_u32 v{cAw1}, {2*SLOT}, v{vAw1}', f'v_mov_b32 v{vFl}, 0']
    ad += [f'v_mov_b32 v{192+k}, v{128+k}' for k in range(16)]
    for x in weave(wr_[:8], ad[:16], per=2): A(x)
    A('s_waitcnt vmcnt(0)')
    A('s_barrier')
    st(10)
    for x in weave(wr_[8:], ad[16:], per=3): A(x)
    for k in range(4): A(f's_mov_b32 s{64+k}, s{20+k}' if k < 3 else 's_mov_b32 s67, 0x20000')
    A('s_mov_b32 s68, s55')
    A(f's_mov_b32 s17, {2*SLOT}')
    TT = GTT if opt.get('gskip', 1) else 112 * 1024
    def late_store(k): return [f'buffer_store_dwordx4 {vr(192+4*k,4)}, v7, s[64:67], s68 offen sc1', f's_add_u32 s68, s68, {TT}']
    def setup():
        g2_decode(A)
        A('s_lshl_b32 s15, s10, 1')
        A('s_add_u32 s15, s15, s13')
        A('s_lshl_b32 s16, s15, 17')
        A(f's_add_u32 s16, s16, {HF_OFF}')
        A('s_lshl_b32 s19, s15, 8')
        A(f's_add_u32 s19, s19, {MU_OFF}')
        A('s_lshl_b32 s54, s2, 2')
        A('s_add_u32 s54, s54, s12')
        A('s_xor_b32 s55, s54, 16')
        A('s_lshl_b32 s56, s54, 12')
        A('s_lshl_b32 s57, s55, 12')
        A('s_lshl_b32 s54, s54, 7')
        A('s_lshl_b32 s55, s55, 7')
        A(f's_add_u32 s54, s54, {FL3}')
        A(f's_add_u32 s55, s55, {FL3}')
        srd(A, 20, 4, 's16', 128 * 1024)
        srd(A, 44, 4, 's19', 256)
        A(f's_add_u32 s19, s19, {R2_OFF - MU_OFF}')
        srd(A, 24, 4, 's19', 256)
        srd(A, 28, 50, 0, 2048)
        srd(A, 32, 48, 0, 2048 * 2048)
        srd(A, 40, 4, PX_OFF, 4 * MB)
    A('s_waitcnt lgkmcnt(0)')
    def reads(s, buf, full):
        r = []
        for i in range(2):
            for rd in range(2):
                r.append(f'ds_read_b64_tr_b16 {vr(WO[buf]+4*i+2*rd,2)}, v{cAw1 if i else cAw} offset:{4096*s + 512*rd}')
        for j in range(4):
            r.append(f'ds_read_b128 {vr(HB[buf]+4*j,4)}, v{cAh} offset:{(2*j+s)*1024}')
        if full:
            for i in range(2):
                for rd in range(2):
                    r.append(f'ds_read_b64_tr_b16 {vr(WX[buf]+4*i+2*rd,2)}, v{cAw1 if i else cAw} offset:{8192 + 4096*s + 512*rd}')
        return r
    ADV = [[f's_add_u32 s17, s17, {SLOT}', f's_cmp_eq_u32 s17, {NS*SLOT}'], ['s_cselect_b32 s17, 0, s17', f'v_add_u32 v{cAh}, s17, v{vAh}'],
           [f'v_add_u32 v{cAw}, s17, v{vAw}'], [f'v_add_u32 v{cAw1}, s17, v{vAw1}']]
    def step(buf, full, rds, tail=(), xfirst=False, zero=False):
        seq = []
        order = ([(AX, WX)] if full else []) + [(AO, WO)] if xfirst else [(AO, WO)] + ([(AX, WX)] if full else [])
        for acc, W in order:
            for i in range(2):
                for jj in range(4):
                    j = jj if i == 0 else 3 - jj
                    seq.append((acc + (i*4+j)*4, W[buf] + 4*i, HB[buf] + 4*j))
        per = 1 if len(rds) + len(tail) <= len(seq) else 2
        fill = [[x] for x in rds]
        if per == 2: fill = [sum(fill[k:k+2], []) for k in range(0, len(fill), 2)]
        fill += list(tail)
        for n, (d, a, b) in enumerate(seq):
            mfma(A, d, a, b, '0' if zero else None)
            if n < len(fill):
                for x in fill[n]: A(x)
        for f in fill[len(seq):]:
            for x in f: A(x)
        A('s_waitcnt lgkmcnt(0)')
    A('s_barrier')
    st(11)
    for r in reads(0, 0, True): A(r)
    setup()
    A('s_lshl_b32 s16, s11, 1')
    A('s_add_u32 s16, s16, s14')
    A('s_lshl_b32 s19, s16, 10')
    for j in range(4):
        A(f'buffer_load_dwordx4 {vr(EP+4*j,4)}, v{vL16}, s[20:23], s19 offen sc1')
        if j < 3: A('s_add_u32 s19, s19, 32768')
    A(f'v_and_b32 v{PR}, 15, v1')
    A(f'v_lshlrev_b32 v{PR}, 2, v{PR}')
    for j in range(4):
        A(f'buffer_load_dword v{EP+16+j}, v{PR}, s[24:27], 0 offen offset:{64*j} sc1')
        A(f'buffer_load_dword v{EP+24+j}, v{PR}, s[44:47], 0 offen offset:{64*j} sc1')
    A(f'v_lshrrev_b32 v{PR+1}, 4, v1')
    A(f'v_lshlrev_b32 v{PR+1}, 3, v{PR+1}')
    A('s_lshl_b32 s19, s16, 6')
    A(f'buffer_load_dwordx2 {vr(EP+20,2)}, v{PR+1}, s[28:31], s19 offen')
    A(f'buffer_load_dwordx2 {vr(EP+22,2)}, v{PR+1}, s[28:31], s19 offen offset:32')
    A('s_waitcnt lgkmcnt(0)')
    L0 = opt.get('l0', 0)
    step(0, True, reads(1, 1, True), ADV[:3] + [ADV[3] + (late_store(0) if L0 == 0 else [])], zero=True)
    for k in range(1, L0 + 4):
        A('s_barrier')
        step(1, True, reads(0, 0, True), [late_store(k - L0)] if k >= L0 else [])
        step(0, True, reads(1, 1, True), ADV)
    A(f's_mov_b32 s18, {L0 + 4}')
    A('.p2align 6')
    A.label(f'{name}_g2loop')
    A('s_barrier')
    step(1, True, reads(0, 0, True), [['s_waitcnt vmcnt(0)']])
    step(0, True, reads(1, 1, True), ADV[:3] + [ADV[3] + ['s_add_u32 s18, s18, 1', f's_cmp_lt_u32 s18, {N1}']])
    A(f's_cbranch_scc1 {name}_g2loop')
    A('s_mov_b32 s59, 0')
    A('s_mov_b32 s58, 400000')
    def check(tag, sp):
        A('s_cmp_lg_u32 s59, 0')
        A(f's_cbranch_scc1 {name}_done{tag}')
        A.label(f'{name}_poll{tag}')
        A('s_waitcnt vmcnt(0)')
        A(f'v_readfirstlane_b32 s59, v{PR+16}')
        A('s_cmp_eq_u32 s59, 1')
        A(f's_cbranch_scc1 {name}_got{tag}')
        A('s_mov_b32 s59, 0')
        if sp:
            A('s_sub_u32 s58, s58, 1')
            A(f's_cbranch_scc1 {name}_got{tag}')
            A('s_sleep 1')
        A(f'buffer_load_dword v{PR+16}, v{vFl}, s[36:39], s55 offen sc1')
        A(f's_branch {name}_poll{tag}' if sp else f's_branch {name}_done{tag}')
        A.label(f'{name}_got{tag}')
        for k in range(4):
            A(f'buffer_load_dwordx4 {vr(PR+4*k,4)}, v{vL16}, s[40:43], s57 offen offset:{k*1024} sc1')
        A.label(f'{name}_done{tag}')
    for it in range(N2):
        A('s_barrier')
        if it == 0:
            step(1, True, reads(0, 0, False), xfirst=True)
            for k in range(4):
                for c in range(4*k, 4*k+4): A(f'v_cvt_pk_bf16_f32 v{AX+c}, v{AX+2*c}, v{AX+2*c+1}')
                A(f'buffer_store_dwordx4 {vr(AX+4*k,4)}, v{vL16}, s[40:43], s56 offen offset:{k*1024} sc1')
        else:
            if it == SIG:
                A('s_waitcnt vmcnt(0)')
                A(f'v_mov_b32 v{PR}, 1')
                A(f'buffer_store_dword v{PR}, v{vFl}, s[36:39], s54 offen sc1')
            if it == POLL:
                A(f'buffer_load_dword v{PR+16}, v{vFl}, s[36:39], s55 offen sc1')
            if it > POLL: check(it, False)
            step(1, False, reads(0, 0, False))
        step(0, False, reads(1, 1, False), ADV if it < N2 - 1 else ())
    check('L', True)
    step(1, False, [])
    st(12)
    B = 104
    A('v_and_b32 v6, 15, v1')
    A('v_lshrrev_b32 v7, 4, v1')
    A('v_and_b32 v2, 1, v7')
    A('v_lshrrev_b32 v7, 1, v7')
    A('v_lshl_add_u32 v7, v2, 1, v7')
    A('v_lshrrev_b32 v2, 1, v6')
    A('v_xor_b32 v7, v7, v2')
    A('v_and_b32 v7, 3, v7')
    A('v_lshl_add_u32 v7, v6, 2, v7')
    A('s_lshl_b32 s15, s12, 12')
    A(f's_add_u32 s15, s15, {STG}')
    A('v_lshl_add_u32 v4, v7, 4, s15')
    A('v_lshrrev_b32 v6, 2, v1')
    A('v_lshrrev_b32 v7, 3, v1')
    A('v_xor_b32 v7, v7, v1')
    A('v_and_b32 v7, 3, v7')
    A('v_lshl_add_u32 v5, v1, 4, s15')
    A('v_lshlrev_b32 v6, 15, v6')
    A('v_lshl_add_u32 v6, v7, 4, v6')
    A('s_lshl_b32 s19, s10, 11')
    A('s_lshl_b32 s15, s13, 21')
    A('s_add_u32 s19, s19, s15')
    A('s_lshl_b32 s16, s16, 6')
    A('s_add_u32 s19, s19, s16')
    A('s_waitcnt vmcnt(0)')
    for i in range(2):
        for q in range(2):
            A(f'v_lshlrev_b32 v{B+4*i+2*q}, 16, v{EP+20+2*i+q}')
            A(f'v_and_b32 v{B+4*i+2*q+1}, 0xffff0000, v{EP+20+2*i+q}')
    T = 40
    for j in range(4):
        d = T + 8*j
        for i in range(2):
            a = AO + (i*4+j)*4; pr = PR + (i*4+j)*2
            for q in range(2):
                hreg = EP + 4*j + 2*i + q
                A(f'v_lshlrev_b32 v{d+4+2*q}, 16, v{hreg}')
                A(f'v_and_b32 v{d+5+2*q}, 0xffff0000, v{hreg}')
                A(f'v_lshlrev_b32 v{72+2*q}, 16, v{pr+q}')
                A(f'v_and_b32 v{73+2*q}, 0xffff0000, v{pr+q}')
            for q in range(2):
                A(f'v_pk_add_f32 {vr(a+2*q,2)}, {vr(a+2*q,2)}, {vr(72+2*q,2)}')
                A(f'v_pk_add_f32 {vr(d+4+2*q,2)}, {vr(d+4+2*q,2)}, {vr(B+4*i+2*q,2)}')
            for r in range(4): A(f'v_add_f32 v{d+4+r}, v{d+4+r}, v{EP+24+j}')
            for r in range(4): A(f'v_fma_f32 v{a+r}, v{a+r}, v{EP+16+j}, v{d+4+r}')
            A(f'v_cvt_pk_bf16_f32 v{d+2*i}, v{a}, v{a+1}')
            A(f'v_cvt_pk_bf16_f32 v{d+2*i+1}, v{a+2}, v{a+3}')
        A(f'v_permlane16_swap_b32 v{d}, v{d+2}')
        A(f'v_permlane16_swap_b32 v{d+1}, v{d+3}')
        A(f'ds_write_b128 v4, {vr(d,4)} offset:{1024*j}')
        A(f'ds_read_b128 {vr(76+4*j,4)}, v5 offset:{1024*j}')
        if j:
            A('s_waitcnt lgkmcnt(2)')
            A(f'buffer_store_dwordx4 {vr(72+4*j,4)}, v6, s[32:35], s19 offen {opt.get("omod", "sc1")}')
            A(f's_add_u32 s19, s19, {16*16*2048}')
    A('s_waitcnt lgkmcnt(0)')
    A(f'buffer_store_dwordx4 {vr(88,4)}, v6, s[32:35], s19 offen {opt.get("omod", "sc1")}')

def loaders(A, name, opt):
    NS = 4; N2 = opt.get('n2', 8); N1 = (56 - N2) // 2; NT = N1 + N2
    hm = opt.get('hmod', 'sc1')
    lst = Stamper(A, opt.get('stamp') == 1, 1)
    A('s_load_dwordx4 s[64:67], s[0:1], %d' % KA['w1'])
    A('s_load_dwordx2 s[48:49], s[0:1], %d' % KA['w2'])
    A('s_sub_u32 s12, s12, 4')
    g1_decode(A)
    A('s_lshl_b32 s15, s12, 16')
    A('v_lshlrev_b32 v8, 4, v1')
    A('v_add_u32 v8, s15, v8')
    A('v_add_u32 v9, 0x8000, v8')
    A('s_lshr_b32 s15, s12, 1')
    A('s_lshl_b32 s15, s15, 6')
    A('s_and_b32 s16, s12, 1')
    A('s_lshl_b32 s16, s16, 4')
    A('s_add_u32 s15, s15, s16')
    A('s_and_b32 s16, s11, 1')
    w_voffs(A, 10, 1, 15, 16, 4, range(7))
    A('s_lshl_b32 s43, s12, 12')
    A('s_mul_i32 s44, s12, 7168')
    A(f's_add_u32 s44, s44, {WB0}')
    A('s_mov_b32 s41, 0')
    A('s_mov_b32 s42, 0')
    A('s_lshl_b32 s15, s12, 12')
    A('v_lshlrev_b32 v3, 4, v1')
    A('v_add_u32 v3, s15, v3')
    A('v_and_b32 v17, 15, v1')
    A('v_lshlrev_b32 v17, 7, v17')
    A('v_mov_b32 v20, 1')
    A('v_mov_b32 v21, 0')
    A('s_and_b32 s13, s2, 7')
    A('s_sub_u32 s15, 16, s13')
    A('s_cmp_eq_u32 s13, 0')
    A('s_cselect_b32 s15, 8, s15')
    A('s_bitcmp1_b32 s2, 3')
    A('s_cselect_b32 s13, s15, s13')
    A('s_lshl_b32 s13, s13, 4')
    A('s_lshr_b32 s15, s2, 4')
    A('s_add_u32 s13, s13, s15')
    A('s_lshl_b32 s13, s13, 7')
    A('s_lshl_b32 s14, s10, 4')
    A('s_add_u32 s14, s14, s11')
    A('s_lshl_b32 s14, s14, 7')
    A(f's_add_u32 s14, s14, {FL2}')
    A('s_lshl_b32 s15, s10, 18')
    A(f's_add_u32 s15, s15, {HF_OFF}')
    A('s_mul_i32 s16, s11, 448')
    A(f's_sub_u32 s19, {1024*7168}, s16')
    A('s_waitcnt lgkmcnt(0)')
    srd(A, 20, 4, 's15', 256 * 1024)
    srd(A, 24, 64, 's16', 's19')
    A('s_lshl_b32 s15, s10, 14')
    A(f's_add_u32 s15, s15, {ST_OFF}')
    srd(A, 32, 4, 's15', 16384)
    A('s_lshl_b32 s15, s10, 9')
    A(f's_add_u32 s15, s15, {R2_OFF}')
    srd(A, 36, 4, 's15', 512)
    srd(A, 52, 4, FL_OFF, FL_SIZE)
    srd(A, 56, 48, 0, 3584 * 2048)
    A('s_lshl_b32 s60, s2, 2')
    A('s_add_u32 s60, s60, s12')
    A('s_lshl_b32 s60, s60, 9')
    A(f's_mov_b32 s50, {4 << 20}')
    hstep = [4096]
    A('v_add_u32 v26, 1024, v8')
    A('v_add_u32 v27, 1024, v9')
    def issue_h(lds):
        A(f's_add_u32 m0, {lds}, s43')
        A('s_nop 0')
        A(f'buffer_load_dwordx4 v8, s[20:23], s41 offen {hm} lds')
        A(f'buffer_load_dwordx4 v26, s[20:23], s41 offen offset:1024 {hm} lds')
        A('s_add_u32 m0, m0, 2048')
        A('s_nop 0')
        A(f'buffer_load_dwordx4 v9, s[20:23], s41 offen {hm} lds')
        A(f'buffer_load_dwordx4 v27, s[20:23], s41 offen offset:1024 {hm} lds')
        A(f's_add_u32 s41, s41, {hstep[0]}')
    def issue_w(lds, srdn=24, so='s42'):
        A(f's_add_u32 s45, {lds}, s44')
        for q in range(7):
            A(f's_add_u32 m0, s45, {q*1024}')
            A('s_nop 0')
            A(f'buffer_load_dwordx4 v{10+q}, s[{srdn}:{srdn+3}], {so} offen lds')
        A(f's_add_u32 s42, s42, {128*7168}')
    def sp2():
        for k in range(4): A(f's_buffer_load_dwordx2 s[62:63], s[56:59], s60 offset:{128*k + 60}')
        A('s_add_u32 s60, s60, s50')
        A('s_sub_u32 s50, 0x80000, s50')
    def only0(tag, ins):
        A('s_cmp_lg_u32 s12, 0')
        A(f's_cbranch_scc1 {tag}')
        for x in ins: A(x)
        A.label(tag)
    A('s_barrier')
    for k in range(3): issue_w(k * WS)
    sp2(); sp2()
    A('s_lshl_b32 s15, s10, 11')
    A('s_barrier')
    A('s_cmp_lg_u32 s12, 0')
    A(f's_cbranch_scc1 {name}_fl1_go')
    A('buffer_store_dword v20, v21, s[52:55], s13 offen sc1')
    spin(A, f'{name}_fl1', 52, 15, 36, 17, 47, opt.get('pdepth', 4), opt.get('pgap', 2))
    A('s_barrier')
    for k in range(3): issue_h(k * HS)
    A('s_mov_b32 s40, 0')
    A('s_mov_b32 s46, 0')
    A('s_waitcnt vmcnt(8)')
    A('s_barrier')
    only0(f'{name}_no5', [f's_add_u32 s13, s13, {FL5}', 'buffer_store_dword v20, v21, s[52:55], s13 offen sc1'])
    A('s_waitcnt vmcnt(4)')
    A('s_barrier')
    def issue():
        issue_h('s40'); issue_w('s46')
        A(f's_add_u32 s40, s40, {HS}')
        A(f's_add_u32 s46, s46, {WS}')
        A(f's_cmp_eq_u32 s40, {3*HS}')
        A('s_cselect_b32 s40, 0, s40')
        A('s_cselect_b32 s46, 0, s46')
    def stats():
        for k in range(4):
            A(f'v_add_f32 v{40+4*k}, v{40+4*k}, v{42+4*k}')
            A(f'v_add_f32 v{41+4*k}, v{41+4*k}, v{43+4*k}')
        for perm in ('quad_perm:[1,0,3,2]', 'quad_perm:[2,3,0,1]', 'row_half_mirror'):
            for k in range(4):
                for c in range(2):
                    A(f'v_add_f32_dpp v{40+4*k+c}, v{40+4*k+c}, v{40+4*k+c} {perm} row_mask:0xf bank_mask:0xf')
        A('v_and_b32 v4, 3, v1')
        for k in range(1, 4):
            A(f'v_cmp_eq_u32 vcc, {k}, v4')
            for c in range(2): A(f'v_cndmask_b32 v{40+c}, v{40+c}, v{40+4*k+c}, vcc')
        ln_finish(A, 40, 41, 22, 23, 24, 47)
        A('v_lshrrev_b32 v28, 16, v23')
        A('v_lshrrev_b32 v5, 3, v1')
        A('v_lshl_add_u32 v2, v4, 3, v5')
        A('s_lshl_b32 s15, s12, 7')
        A(f's_add_u32 s15, s15, {SGB}')
        A('v_lshl_add_u32 v5, v2, 2, s15')
        A('ds_write_b32 v5, v28')
        A('v_mul_f32 v23, v23, v23')
        A('v_rcp_f32 v23, v23')
        A('s_lshl_b32 s15, s12, 7')
        A('v_lshlrev_b32 v5, 2, v2')
        A('buffer_store_dword v23, v5, s[36:39], s15 offen sc1')
    def loop1(tag, first, last):
        A(f's_mov_b32 s18, {first}')
        A.label(f'{name}_{tag}')
        issue()
        if last == 15:
            A('s_cmp_eq_u32 s18, 15')
            A(f's_cbranch_scc1 {name}_nosp')
            A('s_cmp_eq_u32 s18, 13')
            A('s_cselect_b32 s50, 0x80000, s50')
        sp2()
        if last == 15: A.label(f'{name}_nosp')
        A('s_add_u32 s18, s18, 1')
        A(f's_cmp_le_u32 s18, {last}')
        A('s_waitcnt vmcnt(11)')
        A('s_barrier')
        A(f's_cbranch_scc1 {name}_{tag}')
    loop1('l1a', 3, 4)
    A(f's_add_u32 s15, s15, {FL5}')
    A('buffer_load_dword v36, v17, s[52:55], s15 offen sc1')
    issue(); sp2()
    A('s_waitcnt vmcnt(11)')
    A('s_barrier')
    A('v_cmp_ne_u32 vcc, 1, v36')
    A(f's_cbranch_vccz {name}_fl5_go')
    spin(A, f'{name}_fl5', 52, 15, 36, 17, 47, 1, 1)
    for k in range(4): A(f'buffer_load_dwordx4 {vr(40+4*k,4)}, v3, s[32:35], 0 offen offset:{1024*k} sc1')
    loop1('l1b', 6, 7)
    A('s_mov_b32 s41, 1024')
    A(f's_mov_b32 s42, {32*7168}')
    issue(); sp2()
    stats()
    A('s_waitcnt vmcnt(12)')
    A('s_barrier')
    loop1('l1c', 9, 15)
    g2_decode(A)
    gs = opt.get('gskip', 1); TT = GTT if gs else 112 * 1024; hstep[0] = GST if gs else 2048
    A(f's_mul_i32 s15, s12, {2*TT}')
    A('v_lshlrev_b32 v8, 4, v1')
    if gs:
        skipmap(A, 26, 8, 1, 4)
        skipmap(A, 8, 8, 0, 4)
        A('v_subrev_u32 v26, 1024, v26')
    else:
        A('v_mov_b32 v26, v8')
    A('v_add_u32 v8, s15, v8')
    A('v_add_u32 v26, s15, v26')
    A(f'v_add_u32 v9, {TT}, v8')
    A(f'v_add_u32 v27, {TT}, v26')
    A('v_lshrrev_b32 v4, 3, v1')
    A('s_lshl_b32 s15, s12, 4')
    A('v_add_u32 v4, s15, v4')
    A('v_lshlrev_b32 v4, 11, v4')
    A('v_and_b32 v5, 1, v1')
    A('v_lshl_add_u32 v4, v5, 4, v4')
    A('v_lshrrev_b32 v5, 4, v1')
    A('v_and_b32 v5, 1, v5')
    A('v_lshrrev_b32 v6, 1, v1')
    A('v_and_b32 v6, 3, v6')
    A('v_xor_b32 v5, v5, v6')
    A('v_lshl_add_u32 v4, v5, 5, v4')
    A('v_xor_b32 v5, 64, v4')
    A(f'v_add_u32 v5, {16384 - 1024}, v5')
    A('v_lshrrev_b32 v6, 3, v1')
    A('v_cmp_eq_u32 vcc, 3, v6')
    A('v_cndmask_b32 v6, v6, 7, vcc')
    for hsel, (va, sr_) in enumerate(((10, 24), (12, 32))):
        if hsel == 0: A('s_mov_b32 s16, s11')
        else: A('s_xor_b32 s16, s11, 1')
        A('s_and_b32 s19, s16, 8')
        A('v_add_u32 v7, s19, v6')
        A('v_lshlrev_b32 v14, 7, v7')
        A('v_xor_b32 v15, 0x400, v14')
        A('s_and_b32 s15, s16, 7')
        A('s_lshl_b32 s16, s16, 7')
        A('v_mov_b32 v7, s16')
        A(f's_add_u32 s{sr_}, s4, {WC_OFF}')
        A(f's_addc_u32 s{sr_+1}, s5, 0')
        A(f's_cmp_eq_u32 s15, {3 if opt.get("wcopy", 1) else 9}')
        A('s_cselect_b64 vcc, -1, 0')
        A(f's_cselect_b32 s{sr_}, s{sr_}, s48')
        A(f's_cselect_b32 s{sr_+1}, s{sr_+1}, s49')
        A(f's_mov_b32 s{sr_+2}, {3584*2048}')
        A(f's_mov_b32 s{sr_+3}, 0x20000')
        A('v_cndmask_b32 v14, v7, v14, vcc')
        A('v_cndmask_b32 v15, v7, v15, vcc')
        A(f'v_add_u32 v{va}, v4, v14')
        A(f'v_add_u32 v{va+1}, v5, v15')
    A('s_lshl_b32 s44, s12, 11')
    A('s_add_u32 s44, s44, 16384')
    assert N1 == 24
    def mask(st_): return sum(1 << x for x in st_)
    def m64(r, m):
        A(f's_mov_b32 s{r}, {m & 0xffffffff}'); A(f's_mov_b32 s{r+1}, {m >> 32}')
    def sel64(r, m_true, m_false):
        for h in range(2):
            A(f's_mov_b32 s{r+h}, {(m_false >> (32*h)) & 0xffffffff}')
            A(f's_cselect_b32 s{r+h}, {(m_true >> (32*h)) & 0xffffffff}, s{r+h}')
    A('s_and_b32 s15, s9, 7')
    A('s_cmp_eq_u32 s15, 7')
    sel64(38, mask(range(0, 4)), mask(range(24, 28)))
    A('s_cmp_eq_u32 s15, 0')
    sel64(30, mask(range(52, 56)), mask(range(28, 32)))
    A('s_or_b64 s[38:39], s[38:39], s[30:31]')
    A('s_cmp_lg_u32 s8, 0')
    sel64(30, mask(range(28, 56)), mask(range(0, 28)))
    A('s_andn2_b64 s[30:31], s[30:31], s[38:39]')
    A('s_mul_i32 s15, s9, 7')
    A('s_add_u32 s15, s15, 1')
    A('s_lshr_b32 s36, s15, 1')
    A('s_lshl_b64 s[28:29], 7, s36')
    A('s_andn2_b64 s[30:31], s[30:31], s[28:29]')
    m64(64, mask([x for x in range(56) if x % 7 in (1, 2, 5, 6)]))
    A('s_and_b64 s[28:29], s[30:31], s[64:65]')
    A('s_andn2_b64 s[30:31], s[30:31], s[64:65]')
    NE = 15
    def nxt(r=28):
        A(f's_ff1_i32_b64 s61, s[{r}:{r+1}]')
        A(f's_bitset0_b64 s[{r}:{r+1}], s61')
    def seth(): A(f's_mul_i32 s41, s61, {hstep[0]}')
    def setw(): A('s_lshl_b32 s42, s61, 17')
    A(f's_mul_i32 s15, s10, {8*TT}')
    A(f's_add_u32 s15, s15, {GS_OFF if gs else G_OFF}')
    srd(A, 20, 4, 's15', 8 * TT)
    A('s_waitcnt vmcnt(0) lgkmcnt(0)')
    A('s_barrier')
    def issue_w2(lds, full):
        A(f's_add_u32 m0, {lds}, s44')
        A('s_nop 0')
        A(f'buffer_load_dwordx4 v10, s[24:27], s42 offen lds')
        A(f'buffer_load_dwordx4 v11, s[24:27], s42 offen offset:1024 lds')
        if full:
            A('s_add_u32 m0, m0, 8192')
            A('s_nop 0')
            A(f'buffer_load_dwordx4 v12, s[32:35], s42 offen lds')
            A(f'buffer_load_dwordx4 v13, s[32:35], s42 offen offset:1024 lds')
        A(f's_add_u32 s42, s42, {64*2048}')
    def slotadv():
        A(f's_add_u32 s40, s40, {SLOT}')
        A(f's_cmp_eq_u32 s40, {NS*SLOT}')
        A('s_cselect_b32 s40, 0, s40')
    def issue2(full, r=None):
        if r is not None: nxt(r); seth(); setw()
        issue_h('s40'); issue_w2('s40', full)
        slotadv()
    A('s_lshl_b32 s42, s36, 17')
    for k in (2, 3, 0): issue_w2(k * SLOT, True)
    A('s_lshl_b32 s15, s10, 11')
    A(f's_add_u32 s15, s15, {FL2}')
    A('s_lshl_b32 s61, s8, 3')
    A('v_min_u32 v17, 7, v1')
    A('v_add_u32 v17, s61, v17')
    A('v_lshlrev_b32 v17, 7, v17')
    A('s_barrier')
    nxt(); setw(); seth()
    issue_w2(SLOT, True)
    lst(1)
    A('s_barrier')
    lst(2)
    only0(f'{name}_noa', ['buffer_store_dword v20, v21, s[52:55], s14 offen sc1'])
    A('s_waitcnt vmcnt(4)')
    A('s_barrier')
    A('s_barrier')
    PE = opt.get('pe', 1)
    if PE: A('buffer_load_dword v38, v17, s[52:55], s15 offen sc1')
    A('s_barrier')
    if PE:
        A('s_waitcnt vmcnt(0)')
        A('v_cmp_ne_u32 vcc, 1, v38')
        A(f's_cbranch_vccz {name}_fl2_go')
    spin(A, f'{name}_fl2', 52, 15, 36, 17, 47, opt.get('pdepth', 2), opt.get('pgap', 2))
    lst(3)
    issue_h(SLOT)
    A(f's_mov_b32 s40, {2*SLOT}')
    issue2(True, 28); issue2(True, 28)
    A('s_waitcnt vmcnt(16)')
    lst(4)
    A('s_barrier')
    def loop(tag, n, r):
        A(f's_mov_b32 s18, {n}')
        A.label(f'{name}_{tag}')
        issue2(True, r)
        A('s_sub_u32 s18, s18, 1')
        A('s_cmp_lg_u32 s18, 0')
        A('s_waitcnt vmcnt(16)')
        A('s_barrier')
        A(f's_cbranch_scc1 {name}_{tag}')
    L0 = opt.get('l0', 0)
    loop('l2a', 2 + L0, 28)
    A('s_cmp_lg_u32 s12, 0')
    A(f's_cbranch_scc1 {name}_nob')
    A(f's_add_u32 s14, s14, {FL4 - FL2}')
    A('buffer_store_dword v20, v21, s[52:55], s14 offen sc1')
    A.label(f'{name}_nob')
    loop('l2b', NE - 9 - L0, 28)
    A(f's_add_u32 s15, s15, {FL4 - FL2}')
    A('v_and_b32 v17, 15, v1')
    A('v_lshlrev_b32 v17, 7, v17')
    A('buffer_load_dword v36, v17, s[52:55], s15 offen sc1')
    issue2(True, 28)
    A('s_waitcnt vmcnt(16)')
    A('s_barrier')
    A('s_waitcnt vmcnt(8)')
    A('v_cmp_ne_u32 vcc, 1, v36')
    A(f's_cbranch_vccz {name}_fl4_go')
    spin(A, f'{name}_fl4', 52, 15, 36, 17, 47, 1, 1)
    loop('l2c', N1 - NE, 30)
    cnt = lambda s: 0 if s >= NT else (8 if s < N1 else 6)
    for j in range(N1 - NS + 1, NT - 1):
        s = j + NS - 1
        if s < NT: issue2(False, 38)
        A(f's_waitcnt vmcnt({sum(cnt(x) for x in range(j + 2, j + NS))})')
        A('s_barrier')
    if opt.get('stamp') == 1:
        lst(5); lst(6, True); lst(8)
        A('s_cmp_lg_u32 s12, 0')
        A(f's_cbranch_scc1 {name}_end')
        lst.dump(9, 1, 60)

def gen_m(A, name='m_kernel', opt=None):
    opt = opt or {}
    khead(A, name)
    st = Stamper(A, opt.get('stamp'), 1)
    st(0); st(7, True)
    A('s_cmp_ge_u32 s2, 256')
    A(f's_cbranch_scc1 {name}_end')
    A('s_load_dwordx2 s[4:5], s[0:1], %d' % KA['ws'])
    A('s_load_dwordx2 s[6:7], s[0:1], %d' % KA['x'])
    A('v_lshrrev_b32 v2, 6, v0')
    A('v_and_b32 v1, 63, v0')
    A('v_readfirstlane_b32 s12, v2')
    A('s_cmp_ge_u32 s12, 4')
    A(f's_cbranch_scc1 {name}_loader')
    if opt.get('prio'): A(f's_setprio {opt["prio"]}')
    fb_compute(A, name, st, opt)
    late = g1_compute(A, name, st, opt)
    g2_compute(A, name, st, opt, late)
    A('s_waitcnt vmcnt(0)') if opt.get('stamp') else None
    st(5); st(6, True)
    st.dump(13, 0, 244)
    A('s_endpgm')
    A.label(f'{name}_loader')
    loaders(A, name, opt)
    A.label(f'{name}_end')
    A('s_endpgm')
    return dict(name=name, grid=256, block=512, lds=M_LDS, vgpr=256)
```

```python
from common import *

XP = 2112; NP = 80; ZP = 1312
ZB = 16 * XP
RB = ZB + 16 * ZP
FA_LDS = RB + 64

def gen_fa(A, name='fa_kernel', opt=None):
    opt = opt or {}
    smod = opt.get('smod', 'sc1'); sm2 = opt.get('sm2', 'sc1'); xmod = opt.get('xmod', 'nt')
    khead(A, name)
    st = Stamper(A, opt.get('stamp'), 0)
    st(0); st(7, True)
    A('s_cmp_ge_u32 s2, 256')
    A(f's_cbranch_scc1 {name}_end')
    A('s_load_dwordx2 s[6:7], s[0:1], %d' % KA['x'])
    A('s_load_dwordx2 s[4:5], s[0:1], %d' % KA['ws'])
    A('s_load_dwordx2 s[8:9], s[0:1], %d' % KA['w1'])
    A('s_load_dwordx2 s[60:61], s[0:1], %d' % KA['w2'])
    if opt.get('cpf', 1):
        A('s_getpc_b64 s[36:37]')
        A(f's_mov_b32 s38, CODE_END-{name}-64')
        A('s_mov_b32 s39, 0x20000')
        A('s_lshr_b32 s13, s2, 3')
        A('s_lshl_b32 s13, s13, 7')
        A('v_lshlrev_b32 v4, 12, v0')
        A('buffer_load_dword v88, v4, s[36:39], s13 offen')
    A('v_lshrrev_b32 v2, 6, v0')
    A('v_and_b32 v1, 63, v0')
    A('s_and_b32 s13, s2, 7')
    A('v_readfirstlane_b32 s12, v2')
    A('s_lshr_b32 s14, s2, 3')
    A('s_and_b32 s11, s14, 1')
    A('s_sub_u32 s15, 16, s13')
    A('s_cmp_eq_u32 s13, 0')
    A('s_cselect_b32 s15, 8, s15')
    A('s_bitcmp1_b32 s14, 1')
    A('s_cselect_b32 s10, s15, s13')
    A('s_lshr_b32 s15, s14, 2')
    A('s_lshl_b32 s15, s15, 4')
    A('s_add_u32 s10, s10, s15')
    A('v_lshrrev_b32 v4, 5, v1')
    A('v_lshlrev_b32 v4, 1, v4')
    A('v_xor_b32 v4, v4, v1')
    A('v_lshlrev_b32 v14, 4, v4')
    A('s_lshl_b32 s13, s12, 9')
    A('s_add_u32 s13, s13, s10')
    A('s_lshl_b32 s63, s13, 2')
    A('s_lshl_b32 s13, s13, 11')
    A(f's_mul_i32 s14, s12, {4*XP}')
    vn, vg = 2, 3
    M1, TC, TS, M2C, M2S, SA1, SA2, SGN, MU, ONES = 16, 24, 40, 56, 60, 64, 68, 72, 73, 76
    GA, SA = 80, 84
    vSt, vTr0, vTr1, vZw, vZr, vU, vE, vE0, vZx, vX0, vZ0 = 108, 90, 91, 92, 93, 94, 95, 96, 97, 98, 99
    F = 112; T = 144; AF = 208; TMP = 112; P = 128; D = 240
    A(f'v_and_b32 v{vn}, 15, v1')
    A(f'v_lshrrev_b32 v{vg}, 4, v1')
    A('s_lshl_b32 s43, s11, 4')
    A('s_add_u32 s43, s43, 1')
    A(f'v_and_b32 v5, 7, v{vn}')
    A('v_add_u32 v5, s43, v5')
    A('v_cvt_f32_u32 v5, v5')
    A(f'v_and_b32 v6, 8, v{vn}')
    A(f'v_cvt_f32_u32 v7, v{vg}')
    A('v_cvt_f32_u32 v8, v6')
    A('v_mul_f32 v9, 0x3d000000, v5')
    A('v_mul_f32 v8, 0x3d000000, v8')
    A('v_mul_f32 v12, 0x41000000, v7')
    A('v_fmac_f32 v8, v12, v9')
    def m1(hh8, th, dl):
        for j in range(8):
            if j: A(f'v_add_f32 v{th}, v{th}, v{dl}')
            A(f'v_cos_f32 v{10 + (j & 1)}, v{th}')
            if j & 1: A(f'v_cvt_pk_bf16_f32 v{M1 + 4*hh8 + j//2}, v10, v11')
    A('v_mov_b32 v13, v8')
    m1(0, 8, 9)
    A('s_waitcnt lgkmcnt(0)')
    srd(A, 20, 6, 0, 2048 * 2048)
    for r in range(4):
        A(f's_add_u32 m0, s14, {r*XP}')
        A('s_nop 0')
        A(f'buffer_load_dwordx4 v14, s[20:23], s13 offen {xmod} lds')
        A(f'buffer_load_dwordx4 v14, s[20:23], s13 offen offset:1024 {xmod} lds')
        if r < 3: A(f's_add_u32 s13, s13, {128*2048}')
    A('v_add_f32 v9, 0x3e800000, v9')
    m1(1, 13, 9)
    A(f'v_lshlrev_b32 v9, 28, v6')
    A(f'v_lshrrev_b32 v10, 16, v9')
    A(f'v_or_b32 v{SGN}, v9, v10')
    A('v_mul_f32 v12, 4.0, v7')
    for hh8 in range(2):
        if hh8: A('v_add_f32 v5, 0x41000000, v5')
        A('v_mul_f32 v13, 0x3a800000, v5')
        A('v_xor_b32 v15, v9, v13')
        A('v_mul_f32 v8, v12, v15')
        for hh in range(2):
            for r in range(4):
                o = 8*hh8 + 4*hh + r
                if r: A('v_add_f32 v8, v8, v15')
                elif hh: A('v_fmac_f32 v8, 0x41500000, v15')
                A(f'v_cos_f32 v{TC+o}, v8')
                A(f'v_sin_f32 v{TS+o}, v8')
    A('s_cmp_eq_u32 s11, 1')
    A('s_cselect_b32 s44, 0xc2000000, 0')
    A(f'v_mov_b32 v{MU}, s44')
    A(f'v_cmp_eq_u32 vcc, 7, v{vn}')
    A(f'v_cndmask_b32 v{MU}, 0, v{MU}, vcc')
    A(f'v_cvt_f32_u32 v5, v{vn}')
    A('v_mul_f32 v13, 0x3d000000, v5')
    A('v_mul_f32 v8, v12, v13')
    for j in range(8):
        if j == 4: A('v_fmac_f32 v8, 0x41500000, v13')
        elif j: A('v_add_f32 v8, v8, v13')
        A(f'v_cos_f32 v{10+(j&1)}, v8')
        A(f'v_sin_f32 v{14+(j&1)}, v8')
        if j & 1:
            A(f'v_cvt_pk_bf16_f32 v{M2C+j//2}, v10, v11')
            A(f'v_cvt_pk_bf16_f32 v{M2S+j//2}, v14, v15')
    for i in range(4): A(f'v_mov_b32 v{ONES+i}, 0x3f803f80')
    A(f'v_lshrrev_b32 v10, 2, v{vn}')
    A(f'v_and_b32 v11, 3, v{vn}')
    A(f'v_mul_u32_u24 v12, {XP}, v10')
    A(f'v_mul_u32_u24 v13, 528, v11')
    A('v_add3_u32 v12, v12, v13, s14')
    A(f'v_and_b32 v13, 1, v{vg}')
    A('v_lshl_add_u32 v12, v13, 8, v12')
    A(f'v_lshrrev_b32 v15, 1, v{vg}')
    A(f'v_lshl_add_u32 v{vSt}, v15, 7, v12')
    for e in range(1, 4): A(f'v_xor_b32 v{vSt+e}, {16*e}, v{vSt}')
    A('v_lshlrev_b32 v12, 6, v10')
    A(f'v_lshl_add_u32 v12, v{vg}, 9, v12')
    A('v_lshl_add_u32 v12, v11, 3, v12')
    A('v_lshl_add_u32 v12, v13, 5, v12')
    A(f'v_add_u32 v{vTr0}, s14, v12')
    A(f'v_xor_b32 v{vTr1}, 32, v{vTr0}')
    A(f's_mul_i32 s15, s12, {4*ZP}')
    A(f's_add_u32 s15, s15, {ZB}')
    A(f'v_mul_u32_u24 v{vZw}, {NP}, v{vn}')
    A(f'v_lshl_add_u32 v{vZw}, v{vg}, 4, v{vZw}')
    A(f'v_add_u32 v{vZw}, s15, v{vZw}')
    A(f'v_mul_u32_u24 v{vX0}, {XP}, v10')
    A(f'v_add_u32 v{vX0}, s14, v{vX0}')
    A(f'v_mul_u32_u24 v{vZ0}, {ZP}, v10')
    A('v_and_b32 v12, 1, v1')
    A(f'v_mul_u32_u24 v12, {8*NP}, v12')
    A(f'v_add3_u32 v{vZ0}, v{vZ0}, v12, s15')
    A('v_cmp_eq_u32 s[46:47], 1, v11')
    A('v_cmp_eq_u32 s[48:49], 2, v11')
    A('v_cmp_eq_u32 s[50:51], 3, v11')
    A(f'v_cmp_eq_u32 s[52:53], v10, v{vg}')
    A('s_cmp_eq_u32 s11, 0')
    A('s_cselect_b32 s16, 8192, 0')
    srd(A, 32, 4, MX_OFF, 's16')
    srd(A, 28, 4, U_OFF, 4 * MB)
    srd(A, 36, 4, E_OFF, 65536)
    A('s_lshr_b32 s65, s12, 1')
    A('s_cmp_lg_u32 s65, 0')
    A('s_cselect_b32 s44, 0.25, 0')
    A(f'v_lshlrev_b32 v8, 9, v{vg}')
    A('v_add_u32 v8, s10, v8')
    A('v_cvt_f32_u32 v8, v8')
    A('v_mul_f32 v13, 0x3a000000, v5')
    A('v_fma_f32 v8, v8, v13, s44')
    A('v_mul_f32 v13, 0x3d800000, v5')
    for j in range(4):
        if j: A('v_add_f32 v8, v8, v13')
        A(f'v_cos_f32 v{SA1+j}, v8')
        A(f'v_sin_f32 v{SA2+j}, v8')
    A(f'v_lshl_add_u32 v12, v{vg}, 2, v10')
    A(f'v_mul_u32_u24 v12, {ZP}, v12')
    A(f'v_add_u32 v{vZx}, {ZB + 64}, v12')
    A('v_lshl_add_u32 v12, v11, 3, v12')
    A('s_and_b32 s15, s12, 1')
    A('s_lshl_b32 s16, s15, 5')
    A(f's_add_u32 s16, s16, {ZB}')
    A(f'v_add_u32 v{vZr}, s16, v12')
    A(f'v_lshlrev_b32 v{vU}, 20, v{vg}')
    A('s_lshl_b32 s16, s15, 2')
    A('s_add_u32 s16, s16, s10')
    A('v_add_u32 v12, s16, v10')
    A('v_and_b32 v12, 7, v12')
    A(f'v_lshl_add_u32 v{vU}, v12, 7, v{vU}')
    A(f'v_lshl_add_u32 v{vU}, v11, 4, v{vU}')
    A('s_lshl_b32 s66, s65, 17')
    A('s_lshl_b32 s16, s10, 10')
    A('s_add_u32 s66, s66, s16')
    A('s_lshl_b32 s16, s11, 6')
    A('s_add_u32 s66, s66, s16')
    A('s_lshl_b32 s16, s15, 2')
    A('s_add_u32 s16, s16, 1')
    A('v_add_u32 v12, s16, v10')
    A(f'v_lshlrev_b32 v{vE0}, 14, v{vg}')
    A(f'v_lshl_add_u32 v{vE}, v12, 9, v{vE0}')
    A('v_cmp_gt_u32 vcc, 8, v12')
    A('s_and_b64 vcc, vcc, s[50:51]')
    A(f'v_cndmask_b32 v{vE}, 4.0, v{vE}, vcc')
    A(f'v_or_b32 v12, s15, v{vn}')
    A('v_cmp_eq_u32 vcc, 0, v12')
    A(f'v_cndmask_b32 v{vE0}, 4.0, v{vE0}, vcc')
    A('s_lshl_b32 s67, s65, 7')
    A('s_add_u32 s67, s67, s10')
    A('s_lshl_b32 s67, s67, 1')
    srd(A, 24, 4, 38 * MB, 2048 * 128)
    A('v_lshlrev_b32 v12, 7, v0')
    A('v_cmp_gt_u32 vcc, 8, v0')
    A('v_cndmask_b32 v12, 4.0, v12, vcc')
    A('s_mul_i32 s15, s2, 1024')
    A('v_mov_b32 v13, 0')
    A(f'buffer_store_dword v13, v12, s[24:27], s15 offen {sm2}')
    npf = 2
    srd(A, 24, 60, 0, 3584 * 2048)
    A('v_lshrrev_b32 v12, 4, v0')
    A('s_mul_i32 s15, s2, 14')
    A('v_add_u32 v12, s15, v12')
    A('v_and_b32 v13, 8, v0')
    A('v_and_b32 v14, 7, v0')
    A('v_lshlrev_b32 v14, 4, v14')
    A('v_lshl_add_u32 v14, v12, 11, v14')
    A('v_add_u32 v12, v12, v13')
    A('v_and_b32 v12, 15, v12')
    A('v_and_b32 v15, 7, v12')
    A('v_cmp_eq_u32 vcc, 3, v15')
    A('v_xor_b32 v15, 4, v12')
    A('v_cndmask_b32 v12, v12, v15, vcc')
    A('v_lshl_add_u32 v104, v12, 7, v14')
    A('v_lshl_add_u32 v14, v13, 7, v14')
    A('v_cmp_gt_u32 vcc, 224, v0')
    A('v_cndmask_b32 v14, 4.0, v14, vcc')
    A('v_cndmask_b32 v104, 4.0, v104, vcc')
    A('buffer_load_dwordx4 v[100:103], v14, s[24:27], 0 offen offset:384')
    if opt.get('tlb'):
        sh = opt['tlb']
        A('s_load_dwordx2 s[68:69], s[0:1], %d' % KA['out'])
        A('s_lshr_b32 s15, s2, 3')
        A(f's_lshl_b32 s15, s15, {sh + 2}')
        A('s_lshl_b32 s16, s12, %d' % sh)
        A('s_add_u32 s15, s15, s16')
        srd(A, 24, 4, 0, 72 * MB)
        A(f'v_lshlrev_b32 v12, {sh + 7}, v1')
        A('v_cmp_gt_u32 vcc, %d, v1' % max(1, (72 * MB >> (sh + 7)) + 1))
        A('v_cndmask_b32 v12, 4.0, v12, vcc')
        A('buffer_load_dword v87, v12, s[24:27], s15 offen')
        A('s_waitcnt lgkmcnt(0)')
        srd(A, 24, 68, 0, 4 * MB)
        A('buffer_load_dword v87, v12, s[24:27], s15 offen')
        npf += 2
    if opt.get('pf', 1):
        srd(A, 24, 8, 0, 1024 * 7168)
        A('v_lshlrev_b32 v12, 7, v0')
        nl = 224 if opt.get('pf', 1) == 1 else 112
        A(f'v_cmp_gt_u32 vcc, {nl}, v0')
        A('v_cndmask_b32 v12, 4.0, v12, vcc')
        A(f's_mul_i32 s15, s2, {nl*128}')
        A('buffer_load_dword v89, v12, s[24:27], s15 offen')
        npf += 1
    st(1)
    A(f's_waitcnt vmcnt({npf})')
    st(2)
    E = AutoLgkm(A)
    def mf(d, a, b, z): return f'v_mfma_f32_16x16x32_bf16 {vr(d,4)}, {vr(a,4)}, {vr(b,4)}, {"0" if z else vr(d,4)}'
    def s1rd(r): return [f'ds_read_b64_tr_b16 {vr(AF+8*r+4*hh+2*rd,2)}, v{vTr0 if hh == 0 else vTr1} offset:{r*XP + 256*rd}' for hh in range(2) for rd in range(2)]
    frd = [f'ds_read_b128 {vr(F+4*i,4)}, v{vSt + (i&3)} offset:{64*(i>>2)}' for i in range(8)] + [f'ds_read_u16 v{vX0}, v{vX0}']
    def s1(r): return [mf(T + 16*r + 8*hh8 + 4*hh, AF + 8*r + 4*hh, M1 + 4*hh8, True) for hh8 in range(2) for hh in range(2)]
    for x in s1rd(0) + s1rd(1) + s1rd(2) + frd[:3]: E(x)
    for x in weave(s1(0) + s1(1), s1rd(3) + frd[3:], per=2) + s1(2) + s1(3): E(x)
    D0 = AF + 16; D1 = D
    def tw(r, hh8, tm, p):
        t = T + 16*r + 8*hh8; d = (D1 if hh8 else D0) + 4*r
        return [f'v_pk_mul_f32 {vr(tm+k,2)}, {vr(t+k,2)}, {vr(TC+8*hh8+k,2)}' for k in range(0, 8, 2)] + \
               [f'v_fmac_f32_dpp v{tm+k}, v{t+k}, v{TS+8*hh8+k} row_ror:8 row_mask:0xf bank_mask:0xf' for k in range(8)] + \
               [f'v_cvt_pk_bf16_f32 v{p+k}, v{tm+2*k}, v{tm+2*k+1}' for k in range(4)] + [mf(d, M2C, p, True)] + \
               [f'v_xor_b32_dpp v{p+4+k}, v{p+k}, v{SGN} row_ror:8 row_mask:0xf bank_mask:0xf' for k in range(4)], mf(d, M2S, p + 4, False)
    stm = [x for i in range(8) for x in (mf(SA, ONES, F+4*i, i == 0), mf(GA, F+4*i, F+4*i, i == 0))]
    t0 = []
    for r in range(4):
        a, b = tw(r, 0, AF, AF + 8)
        t0 += a[:6] + ([pb] if r else []) + a[6:]
        pb = b
    mean = [f'v_add_f32_dpp v11, v{SA}, v{SA} quad_perm:[1,0,3,2] row_mask:0xf bank_mask:0xf', f'v_cndmask_b32 v10, v{GA}, v{GA+1}, s[46:47]',
            f'v_lshlrev_b32 v{vX0}, 16, v{vX0}', 'v_add_f32_dpp v11, v11, v11 quad_perm:[2,3,0,1] row_mask:0xf bank_mask:0xf',
            f'v_cndmask_b32 v10, v10, v{GA+2}, s[48:49]', 'v_mul_f32 v15, 0x3a800000, v11', f'v_cndmask_b32 v10, v10, v{GA+3}, s[50:51]'] + \
           [f'v_readlane_b32 s{56+r}, v15, {4*r}' for r in range(4)]
    for x in weave(stm, t0[:48], per=3) + weave(t0[48:], mean, start=6, per=1) + [pb]: E(x)
    class L(list):
        def __call__(self, t): self.append(t)
    sg = L()
    sg('v_add_f32_dpp v10, v10, v10 quad_perm:[1,0,3,2] row_mask:0xf bank_mask:0xf')
    sg(f'v_sub_f32 v{vX0}, v{vX0}, v15')
    sg('v_add_f32_dpp v10, v10, v10 quad_perm:[2,3,0,1] row_mask:0xf bank_mask:0xf')
    ln_finish(sg, 11, 10, 12, 13, 14, 45)
    sg('v_rcp_f32 v13, v13')
    sg(f'v_lshlrev_b32 v12, 9, v{vg}'); sg(f'v_lshlrev_b32 v10, 2, v{vg}'); sg('s_lshl_b32 s15, s12, 4'); sg(f's_add_u32 s15, s15, {RB}')
    sg('v_add_u32 v10, s15, v10')
    def fin(r):
        return [f'v_cvt_pk_bf16_f32 v{D0+4*r+k}, v{D0+4*r+k}, v{D1+4*r+k}' for k in range(4)] + [f'ds_write_b128 v{vZw}, {vr(D0+4*r,4)} offset:{r*ZP}']
    t1 = []
    for r in range(4):
        a, b = tw(r, 1, TMP, P + 8*(r & 1))
        pre = [f'v_mul_f32 v8, s{56+r}, v{MU}', 'v_mov_b32 v9, v8'] + [f'v_pk_add_f32 {vr(T+16*r+8+k,2)}, {vr(T+16*r+8+k,2)}, v[8:9]' for k in range(0, 8, 2)]
        t1 += pre[:2] + ([pb] if r else []) + pre[2:] + a[:12] + (fin(r - 1) if r else []) + a[12:]
        pb = b
    for x in weave(t1[:2*len(sg)], list(sg), per=1)[:]: E(x)
    A('s_mov_b64 exec, s[52:53]')
    E('ds_write_b32 v10, v13')
    A(f'buffer_store_dword v15, v12, s[32:35], s63 offen {sm2}')
    A('s_mov_b64 exec, -1')
    x0 = ['v_mov_b32 v11, 0', f'v_cvt_pk_bf16_f32 v10, v{vX0}, v11', 's_mov_b32 vcc_lo, 0x55555555', 's_mov_b32 vcc_hi, 0x55555555',
          'v_cndmask_b32 v10, 0, v10, vcc', f'ds_write_b64 v{vZ0}, v[10:11] offset:64']
    for x in weave(t1[2*len(sg):], x0, per=1): E(x)
    E(pb)
    A(f'v_lshlrev_b32 v10, 4, v{vg}')
    A(f'v_add_u32 v10, {RB}, v10')
    for x in fin(3): E(x)
    st(3)
    A('s_waitcnt lgkmcnt(0)')
    A('s_barrier')
    st(8)
    RS = F; AM = F + 4; ZF = T; O = T + 36
    A(f'ds_read_b128 {vr(RS,4)}, v10')
    for tau in range(9):
        if tau == 7: A('s_waitcnt lgkmcnt(14)')
        for rd in range(2):
            if tau < 8: A(f'ds_read_b64_tr_b16 {vr(ZF + tau*4 + 2*rd, 2)}, v{vZr} offset:{(rd*8 + tau)*NP}')
            else: A(f'ds_read_b64_tr_b16 {vr(ZF + tau*4 + 2*rd, 2)}, v{vZx} offset:{rd*8*NP}')
    for j in range(0, 4, 2):
        A(f'v_pk_mul_f32 {vr(SA1+j,2)}, {vr(SA1+j,2)}, {vr(RS+j,2)}')
        A(f'v_pk_mul_f32 {vr(SA2+j,2)}, {vr(SA2+j,2)}, {vr(RS+j,2)}')
    for k in range(4): A(f'v_cvt_pk_bf16_f32 v{AM+k}, v{SA1+2*k}, v{SA1+2*k+1}')
    for tau in range(9):
        if tau % 2 == 0: A(f's_waitcnt lgkmcnt({max(14 - 2*tau, 0)})')
        mfma(A, O + 4*tau, AM, ZF + tau*4, '0')
    for r in range(4):
        b = P + 4*r
        for k in range(4): A(f'v_cvt_pk_bf16_f32 v{b+k}, v{O+8*k+r}, v{O+8*k+4+r}')
        A(f'buffer_store_dwordx4 {vr(b,4)}, v{vU}, s[28:31], s66 offen {smod}')
        if r < 3: A('s_add_u32 s66, s66, 0x40000')
    srd(A, 24, 4, WC_OFF, 3584 * 2048)
    A(f's_waitcnt vmcnt({npf + 3})')
    A(f'buffer_store_dwordx4 v[100:103], v104, s[24:27], 0 offen {sm2}')
    A('s_cmp_eq_u32 s11, 0')
    A(f's_cbranch_scc1 {name}_c0')
    for r in range(4):
        A(f'buffer_store_short_d16_hi v{P+4*r+3}, v{vE}, s[36:39], s67 offen {sm2}')
        if r < 3: A('s_add_u32 s67, s67, 4096')
    A(f's_branch {name}_fin')
    A.label(f'{name}_c0')
    for r in range(4):
        A(f'v_cvt_pk_bf16_f32 v{O+32+r}, v{O+32+r}, v{O+32+r}')
        A(f'buffer_store_short v{O+32+r}, v{vE0}, s[36:39], s67 offen {sm2}')
        if r < 3: A('s_add_u32 s67, s67, 4096')
    A.label(f'{name}_fin')
    st(4)
    A('s_waitcnt vmcnt(0)') if opt.get('stamp') else None
    st(5); st(6, True)
    st.dump(9, 0, 108)
    A.label(f'{name}_end')
    A('s_endpgm')
    return dict(name=name, grid=256, block=256, lds=FA_LDS, vgpr=256)
```

```python
from common import *

XP = 2112; NP = 80; ZP = 1312
ZB = 16 * XP
RB = ZB + 16 * ZP
FA_LDS = RB + 64

def gen_fa(A, name='fa_kernel', opt=None):
    opt = opt or {}
    smod = opt.get('smod', 'sc1'); sm2 = opt.get('sm2', ''); sm3 = opt.get('sm3', 'sc1'); xmod = opt.get('xmod', 'nt')
    khead(A, name)
    st = Stamper(A, opt.get('stamp'), 0)
    st(0); st(7, True)
    A('s_cmp_ge_u32 s2, 256')
    A(f's_cbranch_scc1 {name}_end')
    A('s_load_dwordx2 s[6:7], s[0:1], %d' % KA['x'])
    A('s_load_dwordx2 s[4:5], s[0:1], %d' % KA['ws'])
    A('s_load_dwordx2 s[8:9], s[0:1], %d' % KA['w1'])
    A('s_load_dwordx2 s[60:61], s[0:1], %d' % KA['w2'])
    if opt.get('cpf', 1):
        A('s_getpc_b64 s[36:37]')
        A(f's_mov_b32 s38, CODE_END-{name}-64')
        A('s_mov_b32 s39, 0x20000')
        A('s_lshr_b32 s13, s2, 3')
        A('s_lshl_b32 s13, s13, 7')
        A('v_lshlrev_b32 v4, 12, v0')
        A('buffer_load_dword v88, v4, s[36:39], s13 offen')
    A('v_lshrrev_b32 v2, 6, v0')
    A('v_and_b32 v1, 63, v0')
    A('s_and_b32 s13, s2, 7')
    A('v_readfirstlane_b32 s12, v2')
    A('s_lshr_b32 s14, s2, 3')
    A('s_and_b32 s11, s14, 1')
    A('s_sub_u32 s15, 16, s13')
    A('s_cmp_eq_u32 s13, 0')
    A('s_cselect_b32 s15, 8, s15')
    A('s_bitcmp1_b32 s14, 1')
    A('s_cselect_b32 s10, s15, s13')
    A('s_lshr_b32 s15, s14, 2')
    A('s_lshl_b32 s15, s15, 4')
    A('s_add_u32 s10, s10, s15')
    A('v_lshrrev_b32 v4, 5, v1')
    A('v_lshlrev_b32 v4, 1, v4')
    A('v_xor_b32 v4, v4, v1')
    A('v_lshlrev_b32 v14, 4, v4')
    A('s_lshl_b32 s13, s12, 9')
    A('s_add_u32 s13, s13, s10')
    A('s_lshl_b32 s63, s13, 2')
    A('s_lshl_b32 s13, s13, 11')
    A(f's_mul_i32 s14, s12, {4*XP}')
    vn, vg = 2, 3
    M1, TC, TS, M2C, M2S, SA1, SA2, SGN, MU, ONES = 16, 24, 40, 56, 60, 64, 68, 72, 73, 76
    GA, SA = 80, 84
    vSt, vTr0, vTr1, vZw, vZr, vU, vE, vE0, vZx, vX0, vZ0 = 108, 90, 91, 92, 93, 94, 95, 96, 97, 98, 99
    F = 112; T = 144; AF = 208; TMP = 112; P = 128; D = 240
    A(f'v_and_b32 v{vn}, 15, v1')
    A(f'v_lshrrev_b32 v{vg}, 4, v1')
    A('s_lshl_b32 s43, s11, 4')
    A('s_add_u32 s43, s43, 1')
    A(f'v_and_b32 v5, 7, v{vn}')
    A('v_add_u32 v5, s43, v5')
    A('v_cvt_f32_u32 v5, v5')
    A(f'v_and_b32 v6, 8, v{vn}')
    A(f'v_cvt_f32_u32 v7, v{vg}')
    A('v_cvt_f32_u32 v8, v6')
    A('v_mul_f32 v9, 0x3d000000, v5')
    A('v_mul_f32 v8, 0x3d000000, v8')
    A('v_mul_f32 v12, 0x41000000, v7')
    A('v_fmac_f32 v8, v12, v9')
    def m1(hh8, th, dl):
        for j in range(8):
            if j: A(f'v_add_f32 v{th}, v{th}, v{dl}')
            A(f'v_cos_f32 v{10 + (j & 1)}, v{th}')
            if j & 1: A(f'v_cvt_pk_bf16_f32 v{M1 + 4*hh8 + j//2}, v10, v11')
    A('v_mov_b32 v13, v8')
    m1(0, 8, 9)
    A('s_waitcnt lgkmcnt(0)')
    srd(A, 20, 6, 0, 2048 * 2048)
    for r in range(4):
        A(f's_add_u32 m0, s14, {r*XP}')
        A('s_nop 0')
        A(f'buffer_load_dwordx4 v14, s[20:23], s13 offen {xmod} lds')
        A(f'buffer_load_dwordx4 v14, s[20:23], s13 offen offset:1024 {xmod} lds')
        if r < 3: A(f's_add_u32 s13, s13, {128*2048}')
    A('v_add_f32 v9, 0x3e800000, v9')
    m1(1, 13, 9)
    A(f'v_lshlrev_b32 v9, 28, v6')
    A(f'v_lshrrev_b32 v10, 16, v9')
    A(f'v_or_b32 v{SGN}, v9, v10')
    A('v_mul_f32 v12, 4.0, v7')
    for hh8 in range(2):
        if hh8: A('v_add_f32 v5, 0x41000000, v5')
        A('v_mul_f32 v13, 0x3a800000, v5')
        A('v_xor_b32 v15, v9, v13')
        A('v_mul_f32 v8, v12, v15')
        for hh in range(2):
            for r in range(4):
                o = 8*hh8 + 4*hh + r
                if r: A('v_add_f32 v8, v8, v15')
                elif hh: A('v_fmac_f32 v8, 0x41500000, v15')
                A(f'v_cos_f32 v{TC+o}, v8')
                A(f'v_sin_f32 v{TS+o}, v8')
    A('s_cmp_eq_u32 s11, 1')
    A('s_cselect_b32 s44, 0xc2000000, 0')
    A(f'v_mov_b32 v{MU}, s44')
    A(f'v_cmp_eq_u32 vcc, 7, v{vn}')
    A(f'v_cndmask_b32 v{MU}, 0, v{MU}, vcc')
    A(f'v_cvt_f32_u32 v5, v{vn}')
    A('v_mul_f32 v13, 0x3d000000, v5')
    A('v_mul_f32 v8, v12, v13')
    for j in range(8):
        if j == 4: A('v_fmac_f32 v8, 0x41500000, v13')
        elif j: A('v_add_f32 v8, v8, v13')
        A(f'v_cos_f32 v{10+(j&1)}, v8')
        A(f'v_sin_f32 v{14+(j&1)}, v8')
        if j & 1:
            A(f'v_cvt_pk_bf16_f32 v{M2C+j//2}, v10, v11')
            A(f'v_cvt_pk_bf16_f32 v{M2S+j//2}, v14, v15')
    for i in range(4): A(f'v_mov_b32 v{ONES+i}, 0x3f803f80')
    A(f'v_lshrrev_b32 v10, 2, v{vn}')
    A(f'v_and_b32 v11, 3, v{vn}')
    A(f'v_mul_u32_u24 v12, {XP}, v10')
    A(f'v_mul_u32_u24 v13, 528, v11')
    A('v_add3_u32 v12, v12, v13, s14')
    A(f'v_and_b32 v13, 1, v{vg}')
    A('v_lshl_add_u32 v12, v13, 8, v12')
    A(f'v_lshrrev_b32 v15, 1, v{vg}')
    A(f'v_lshl_add_u32 v{vSt}, v15, 7, v12')
    for e in range(1, 4): A(f'v_xor_b32 v{vSt+e}, {16*e}, v{vSt}')
    A('v_lshlrev_b32 v12, 6, v10')
    A(f'v_lshl_add_u32 v12, v{vg}, 9, v12')
    A('v_lshl_add_u32 v12, v11, 3, v12')
    A('v_lshl_add_u32 v12, v13, 5, v12')
    A(f'v_add_u32 v{vTr0}, s14, v12')
    A(f'v_xor_b32 v{vTr1}, 32, v{vTr0}')
    A(f's_mul_i32 s15, s12, {4*ZP}')
    A(f's_add_u32 s15, s15, {ZB}')
    A(f'v_mul_u32_u24 v{vZw}, {NP}, v{vn}')
    A(f'v_lshl_add_u32 v{vZw}, v{vg}, 4, v{vZw}')
    A(f'v_add_u32 v{vZw}, s15, v{vZw}')
    A(f'v_mul_u32_u24 v{vX0}, {XP}, v10')
    A(f'v_add_u32 v{vX0}, s14, v{vX0}')
    A(f'v_mul_u32_u24 v{vZ0}, {ZP}, v10')
    A('v_and_b32 v12, 1, v1')
    A(f'v_mul_u32_u24 v12, {8*NP}, v12')
    A(f'v_add3_u32 v{vZ0}, v{vZ0}, v12, s15')
    A('v_cmp_eq_u32 s[46:47], 1, v11')
    A('v_cmp_eq_u32 s[48:49], 2, v11')
    A('v_cmp_eq_u32 s[50:51], 3, v11')
    A(f'v_cmp_eq_u32 s[52:53], v10, v{vg}')
    A('s_cmp_eq_u32 s11, 0')
    A('s_cselect_b32 s16, 8192, 0')
    srd(A, 32, 4, MX_OFF, 's16')
    srd(A, 28, 4, U_OFF, 4 * MB)
    srd(A, 36, 4, E_OFF, 65536)
    A('s_lshr_b32 s65, s12, 1')
    A('s_cmp_lg_u32 s65, 0')
    A('s_cselect_b32 s44, 0.25, 0')
    A(f'v_lshlrev_b32 v8, 9, v{vg}')
    A('v_add_u32 v8, s10, v8')
    A('v_cvt_f32_u32 v8, v8')
    A('v_mul_f32 v13, 0x3a000000, v5')
    A('v_fma_f32 v8, v8, v13, s44')
    A('v_mul_f32 v13, 0x3d800000, v5')
    for j in range(4):
        if j: A('v_add_f32 v8, v8, v13')
        A(f'v_cos_f32 v{SA1+j}, v8')
        A(f'v_sin_f32 v{SA2+j}, v8')
    A(f'v_lshl_add_u32 v12, v{vg}, 2, v10')
    A(f'v_mul_u32_u24 v12, {ZP}, v12')
    A(f'v_add_u32 v{vZx}, {ZB + 64}, v12')
    A('v_lshl_add_u32 v12, v11, 3, v12')
    A('s_and_b32 s15, s12, 1')
    A('s_lshl_b32 s16, s15, 5')
    A(f's_add_u32 s16, s16, {ZB}')
    A(f'v_add_u32 v{vZr}, s16, v12')
    A(f'v_lshlrev_b32 v{vU}, 20, v{vg}')
    A('s_lshl_b32 s16, s15, 2')
    A('s_add_u32 s16, s16, s10')
    A('v_add_u32 v12, s16, v10')
    A('v_and_b32 v12, 7, v12')
    A(f'v_lshl_add_u32 v{vU}, v12, 7, v{vU}')
    A(f'v_lshl_add_u32 v{vU}, v11, 4, v{vU}')
    A('s_lshl_b32 s66, s65, 17')
    A('s_lshl_b32 s16, s10, 10')
    A('s_add_u32 s66, s66, s16')
    A('s_lshl_b32 s16, s11, 6')
    A('s_add_u32 s66, s66, s16')
    A('s_lshl_b32 s16, s15, 2')
    A('s_add_u32 s16, s16, 1')
    A('v_add_u32 v12, s16, v10')
    A(f'v_lshlrev_b32 v{vE0}, 14, v{vg}')
    A(f'v_lshl_add_u32 v{vE}, v12, 9, v{vE0}')
    A('v_cmp_gt_u32 vcc, 8, v12')
    A('s_and_b64 vcc, vcc, s[50:51]')
    A(f'v_cndmask_b32 v{vE}, 4.0, v{vE}, vcc')
    A(f'v_or_b32 v12, s15, v{vn}')
    A('v_cmp_eq_u32 vcc, 0, v12')
    A(f'v_cndmask_b32 v{vE0}, 4.0, v{vE0}, vcc')
    A('s_lshl_b32 s67, s65, 7')
    A('s_add_u32 s67, s67, s10')
    A('s_lshl_b32 s67, s67, 1')
    srd(A, 24, 4, 38 * MB, 2048 * 128)
    A('v_lshlrev_b32 v12, 7, v0')
    A('v_cmp_gt_u32 vcc, 8, v0')
    A('v_cndmask_b32 v12, 4.0, v12, vcc')
    A('s_mul_i32 s15, s2, 1024')
    A('v_mov_b32 v13, 0')
    A(f'buffer_store_dword v13, v12, s[24:27], s15 offen {sm2}')
    npf = 2
    srd(A, 24, 60, 0, 3584 * 2048)
    A('v_lshrrev_b32 v12, 4, v0')
    A('s_mul_i32 s15, s2, 14')
    A('v_add_u32 v12, s15, v12')
    A('v_and_b32 v13, 8, v0')
    A('v_and_b32 v14, 7, v0')
    A('v_lshlrev_b32 v14, 4, v14')
    A('v_lshl_add_u32 v14, v12, 11, v14')
    A('v_add_u32 v12, v12, v13')
    A('v_and_b32 v12, 15, v12')
    A('v_and_b32 v15, 7, v12')
    A('v_cmp_eq_u32 vcc, 3, v15')
    A('v_xor_b32 v15, 4, v12')
    A('v_cndmask_b32 v12, v12, v15, vcc')
    A('v_lshl_add_u32 v104, v12, 7, v14')
    A('v_lshl_add_u32 v14, v13, 7, v14')
    A('v_cmp_gt_u32 vcc, 224, v0')
    A('v_cndmask_b32 v14, 4.0, v14, vcc')
    A('v_cndmask_b32 v104, 4.0, v104, vcc')
    A('buffer_load_dwordx4 v[100:103], v14, s[24:27], 0 offen offset:384')
    if opt.get('tlb'):
        sh = opt['tlb']
        A('s_load_dwordx2 s[68:69], s[0:1], %d' % KA['out'])
        A('s_lshr_b32 s15, s2, 3')
        A(f's_lshl_b32 s15, s15, {sh + 2}')
        A('s_lshl_b32 s16, s12, %d' % sh)
        A('s_add_u32 s15, s15, s16')
        srd(A, 24, 4, 0, 72 * MB)
        A(f'v_lshlrev_b32 v12, {sh + 7}, v1')
        A('v_cmp_gt_u32 vcc, %d, v1' % max(1, (72 * MB >> (sh + 7)) + 1))
        A('v_cndmask_b32 v12, 4.0, v12, vcc')
        A('buffer_load_dword v87, v12, s[24:27], s15 offen')
        A('s_waitcnt lgkmcnt(0)')
        srd(A, 24, 68, 0, 4 * MB)
        A('buffer_load_dword v87, v12, s[24:27], s15 offen')
        npf += 2
    if opt.get('pf', 1):
        srd(A, 24, 8, 0, 1024 * 7168)
        A('v_lshlrev_b32 v12, 7, v0')
        nl = 224 if opt.get('pf', 1) == 1 else 112
        A(f'v_cmp_gt_u32 vcc, {nl}, v0')
        A('v_cndmask_b32 v12, 4.0, v12, vcc')
        if nl == 224: A(f's_mul_i32 s15, s2, {nl*128}')
        else:
            A('s_lshr_b32 s15, s2, 4')
            A('s_lshl_b32 s15, s15, 5')
            A('s_and_b32 s16, s2, 15')
            A('s_add_u32 s15, s15, s16')
            A('s_mul_i32 s15, s15, 14336')
        A('buffer_load_dword v89, v12, s[24:27], s15 offen')
        npf += 1
    st(1)
    A(f's_waitcnt vmcnt({npf})')
    st(2)
    E = AutoLgkm(A)
    def mf(d, a, b, z): return f'v_mfma_f32_16x16x32_bf16 {vr(d,4)}, {vr(a,4)}, {vr(b,4)}, {"0" if z else vr(d,4)}'
    def s1rd(r): return [f'ds_read_b64_tr_b16 {vr(AF+8*r+4*hh+2*rd,2)}, v{vTr0 if hh == 0 else vTr1} offset:{r*XP + 256*rd}' for hh in range(2) for rd in range(2)]
    frd = [f'ds_read_b128 {vr(F+4*i,4)}, v{vSt + (i&3)} offset:{64*(i>>2)}' for i in range(8)] + [f'ds_read_u16 v{vX0}, v{vX0}']
    def s1(r): return [mf(T + 16*r + 8*hh8 + 4*hh, AF + 8*r + 4*hh, M1 + 4*hh8, True) for hh8 in range(2) for hh in range(2)]
    for x in s1rd(0) + s1rd(1) + s1rd(2) + frd[:3]: E(x)
    for x in weave(s1(0) + s1(1), s1rd(3) + frd[3:], per=2) + s1(2) + s1(3): E(x)
    D0 = AF + 16; D1 = D
    def tw(r, hh8, tm, p):
        t = T + 16*r + 8*hh8; d = (D1 if hh8 else D0) + 4*r
        return [f'v_pk_mul_f32 {vr(tm+k,2)}, {vr(t+k,2)}, {vr(TC+8*hh8+k,2)}' for k in range(0, 8, 2)] + \
               [f'v_fmac_f32_dpp v{tm+k}, v{t+k}, v{TS+8*hh8+k} row_ror:8 row_mask:0xf bank_mask:0xf' for k in range(8)] + \
               [f'v_cvt_pk_bf16_f32 v{p+k}, v{tm+2*k}, v{tm+2*k+1}' for k in range(4)] + [mf(d, M2C, p, True)] + \
               [f'v_xor_b32_dpp v{p+4+k}, v{p+k}, v{SGN} row_ror:8 row_mask:0xf bank_mask:0xf' for k in range(4)], mf(d, M2S, p + 4, False)
    stm = [x for i in range(8) for x in (mf(SA, ONES, F+4*i, i == 0), mf(GA, F+4*i, F+4*i, i == 0))]
    t0 = []
    for r in range(4):
        a, b = tw(r, 0, AF, AF + 8)
        t0 += a[:6] + ([pb] if r else []) + a[6:]
        pb = b
    mean = [f'v_add_f32_dpp v11, v{SA}, v{SA} quad_perm:[1,0,3,2] row_mask:0xf bank_mask:0xf', f'v_cndmask_b32 v10, v{GA}, v{GA+1}, s[46:47]',
            f'v_lshlrev_b32 v{vX0}, 16, v{vX0}', 'v_add_f32_dpp v11, v11, v11 quad_perm:[2,3,0,1] row_mask:0xf bank_mask:0xf',
            f'v_cndmask_b32 v10, v10, v{GA+2}, s[48:49]', 'v_mul_f32 v15, 0x3a800000, v11', f'v_cndmask_b32 v10, v10, v{GA+3}, s[50:51]'] + \
           [f'v_readlane_b32 s{56+r}, v15, {4*r}' for r in range(4)]
    for x in weave(stm, t0[:48], per=3) + weave(t0[48:], mean, start=6, per=1) + [pb]: E(x)
    class L(list):
        def __call__(self, t): self.append(t)
    sg = L()
    sg('v_add_f32_dpp v10, v10, v10 quad_perm:[1,0,3,2] row_mask:0xf bank_mask:0xf')
    sg(f'v_sub_f32 v{vX0}, v{vX0}, v15')
    sg('v_add_f32_dpp v10, v10, v10 quad_perm:[2,3,0,1] row_mask:0xf bank_mask:0xf')
    ln_finish(sg, 11, 10, 12, 13, 14, 45)
    sg('v_rcp_f32 v13, v13')
    sg(f'v_lshlrev_b32 v12, 9, v{vg}'); sg(f'v_lshlrev_b32 v10, 2, v{vg}'); sg('s_lshl_b32 s15, s12, 4'); sg(f's_add_u32 s15, s15, {RB}')
    sg('v_add_u32 v10, s15, v10')
    def fin(r):
        return [f'v_cvt_pk_bf16_f32 v{D0+4*r+k}, v{D0+4*r+k}, v{D1+4*r+k}' for k in range(4)] + [f'ds_write_b128 v{vZw}, {vr(D0+4*r,4)} offset:{r*ZP}']
    t1 = []
    for r in range(4):
        a, b = tw(r, 1, TMP, P + 8*(r & 1))
        pre = [f'v_mul_f32 v8, s{56+r}, v{MU}', 'v_mov_b32 v9, v8'] + [f'v_pk_add_f32 {vr(T+16*r+8+k,2)}, {vr(T+16*r+8+k,2)}, v[8:9]' for k in range(0, 8, 2)]
        t1 += pre[:2] + ([pb] if r else []) + pre[2:] + a[:12] + (fin(r - 1) if r else []) + a[12:]
        pb = b
    for x in weave(t1[:2*len(sg)], list(sg), per=1)[:]: E(x)
    A('s_mov_b64 exec, s[52:53]')
    E('ds_write_b32 v10, v13')
    A(f'buffer_store_dword v15, v12, s[32:35], s63 offen {sm2}')
    A('s_mov_b64 exec, -1')
    x0 = ['v_mov_b32 v11, 0', f'v_cvt_pk_bf16_f32 v10, v{vX0}, v11', 's_mov_b32 vcc_lo, 0x55555555', 's_mov_b32 vcc_hi, 0x55555555',
          'v_cndmask_b32 v10, 0, v10, vcc', f'ds_write_b64 v{vZ0}, v[10:11] offset:64']
    for x in weave(t1[2*len(sg):], x0, per=1): E(x)
    E(pb)
    A(f'v_lshlrev_b32 v10, 4, v{vg}')
    A(f'v_add_u32 v10, {RB}, v10')
    for x in fin(3): E(x)
    st(3)
    A('s_waitcnt lgkmcnt(0)')
    A('s_barrier')
    st(8)
    RS = F; AM = F + 4; ZF = T; O = T + 36
    A(f'ds_read_b128 {vr(RS,4)}, v10')
    for tau in range(9):
        if tau == 7: A('s_waitcnt lgkmcnt(14)')
        for rd in range(2):
            if tau < 8: A(f'ds_read_b64_tr_b16 {vr(ZF + tau*4 + 2*rd, 2)}, v{vZr} offset:{(rd*8 + tau)*NP}')
            else: A(f'ds_read_b64_tr_b16 {vr(ZF + tau*4 + 2*rd, 2)}, v{vZx} offset:{rd*8*NP}')
    for j in range(0, 4, 2):
        A(f'v_pk_mul_f32 {vr(SA1+j,2)}, {vr(SA1+j,2)}, {vr(RS+j,2)}')
        A(f'v_pk_mul_f32 {vr(SA2+j,2)}, {vr(SA2+j,2)}, {vr(RS+j,2)}')
    for k in range(4): A(f'v_cvt_pk_bf16_f32 v{AM+k}, v{SA1+2*k}, v{SA1+2*k+1}')
    for tau in range(9):
        if tau % 2 == 0: A(f's_waitcnt lgkmcnt({max(14 - 2*tau, 0)})')
        mfma(A, O + 4*tau, AM, ZF + tau*4, '0')
    for r in range(4):
        b = P + 4*r
        for k in range(4): A(f'v_cvt_pk_bf16_f32 v{b+k}, v{O+8*k+r}, v{O+8*k+4+r}')
        A(f'buffer_store_dwordx4 {vr(b,4)}, v{vU}, s[28:31], s66 offen {smod}')
        if r < 3: A('s_add_u32 s66, s66, 0x40000')
    srd(A, 24, 4, WC_OFF, 3584 * 2048)
    A(f's_waitcnt vmcnt({npf + 3})')
    A(f'buffer_store_dwordx4 v[100:103], v104, s[24:27], 0 offen {sm3}')
    A('s_cmp_eq_u32 s11, 0')
    A(f's_cbranch_scc1 {name}_c0')
    for r in range(4):
        A(f'buffer_store_short_d16_hi v{P+4*r+3}, v{vE}, s[36:39], s67 offen {sm2}')
        if r < 3: A('s_add_u32 s67, s67, 4096')
    A(f's_branch {name}_fin')
    A.label(f'{name}_c0')
    for r in range(4):
        A(f'v_cvt_pk_bf16_f32 v{O+32+r}, v{O+32+r}, v{O+32+r}')
        A(f'buffer_store_short v{O+32+r}, v{vE0}, s[36:39], s67 offen {sm2}')
        if r < 3: A('s_add_u32 s67, s67, 4096')
    A.label(f'{name}_fin')
    st(4)
    A('s_waitcnt vmcnt(0)') if opt.get('stamp') else None
    st(5); st(6, True)
    st.dump(9, 0, 108)
    A.label(f'{name}_end')
    A('s_endpgm')
    return dict(name=name, grid=256, block=256, lds=FA_LDS, vgpr=256)
```

```python
from common import *
from g1 import w_voffs, tr_bases

HS = 16384; WS = 28672; WB0 = 3 * HS
XB = 32768; EB = WB0 + 3 * WS
SLOT = 32768
SGB = EB + 1024
SYB = SGB + 512
R1, D1, R2W, D2 = 0, 64, 128, 384
STG = SYB + 768
M_LDS = STG + 16384
FULL = 0x01010101
PX_OFF = 29 * MB
FL_OFF = 38 * MB
GS_OFF = 40 * MB; GST = 3072; GTT = 56 * GST
FL1, FL2, FL3, FL4, FL5 = 0, 32768, 65536, 196608, 229376
FL_SIZE = 2048 * 128

def spin(A, tag, srdn, soff, vflag, vaddr, scnt, depth=4, gap=2):
    A(f's_mov_b32 s{scnt}, 400000')
    ld = lambda k: A(f'buffer_load_dword v{vflag+k}, v{vaddr}, s[{srdn}:{srdn+3}], s{soff} offen sc1')
    for k in range(depth - 1):
        ld(k); A(f's_sleep {gap}')
    A.label(f'{tag}_spin')
    for k in range(depth):
        ld((k + depth - 1) % depth)
        A(f's_waitcnt vmcnt({depth - 1})')
        A(f'v_cmp_ne_u32 vcc, 1, v{vflag+k}')
        A(f's_cbranch_vccz {tag}_go')
        A(f's_sleep {gap}')
    A(f's_sub_u32 s{scnt}, s{scnt}, 1')
    A(f's_cbranch_scc0 {tag}_spin')
    A.label(f'{tag}_go')

def skipmap(A, dst, src, odd, t):
    if odd:
        A(f'v_cmp_lt_u32 vcc, 255, v{src}')
        A(f'v_add_u32 v{dst}, {1024 + 128}, v{src}')
    else:
        A(f'v_cmp_lt_u32 vcc, 383, v{src}')
        if dst != src: A(f'v_mov_b32 v{dst}, v{src}')
    A(f'v_add_u32 v{t}, 128, v{dst}')
    A(f'v_cndmask_b32 v{dst}, v{dst}, v{t}, vcc')

def g1_decode(A):
    A('s_and_b32 s8, s2, 7')
    A('s_lshr_b32 s9, s2, 3')
    A('s_and_b32 s10, s8, 1')
    A('s_lshl_b32 s10, s10, 3')
    A('s_and_b32 s11, s9, 7')
    A('s_add_u32 s10, s10, s11')
    A('s_lshr_b32 s11, s8, 1')
    A('s_lshl_b32 s11, s11, 2')
    A('s_lshr_b32 s9, s9, 3')
    A('s_add_u32 s11, s11, s9')

def g2_decode(A):
    A('s_mov_b32 s9, s11')
    A('s_lshr_b32 s8, s9, 3')
    A('s_and_b32 s11, s9, 7')
    A('s_lshl_b32 s11, s11, 1')
    A('s_add_u32 s11, s11, s8')

def fb_compute(A, name, st, opt):
    A('s_and_b32 s13, s2, 7')
    A('s_lshr_b32 s14, s2, 3')
    A('s_sub_u32 s15, 16, s13')
    A('s_cmp_eq_u32 s13, 0')
    A('s_cselect_b32 s15, 8, s15')
    A('s_bitcmp1_b32 s14, 0')
    A('s_cselect_b32 s10, s15, s13')
    A('s_lshr_b32 s11, s14, 1')
    A('s_sub_u32 s16, 16, s10')
    A('s_and_b32 s16, s16, 15')
    A('s_sub_u32 s17, 15, s11')
    A('s_lshr_b32 s19, s11, 3')
    A('s_cmp_lg_u32 s19, 0')
    A('s_cselect_b32 s16, s16, s10')
    A('s_cselect_b32 s17, s17, s11')
    vn, vg = 2, 3
    A(f'v_and_b32 v{vn}, 15, v1')
    A(f'v_lshrrev_b32 v{vg}, 4, v1')
    A('v_lshrrev_b32 v6, 3, v1')
    A(f'v_and_b32 v7, 1, v{vg}')
    A('v_lshrrev_b32 v8, 1, v1')
    A('v_and_b32 v8, 3, v8')
    A('v_xor_b32 v7, v7, v8')
    A('v_lshlrev_b32 v7, 5, v7')
    A('v_lshl_add_u32 v4, v6, 10, v7')
    A('v_and_b32 v7, 1, v1')
    A('v_lshl_add_u32 v4, v7, 4, v4')
    A('v_add_u32 v7, s17, v6')
    A('v_and_b32 v7, 7, v7')
    A('v_lshl_add_u32 v4, v7, 7, v4')
    A('v_xor_b32 v5, 64, v4')
    A(f'v_add_u32 v5, {8192 - 1024}, v5')
    A('s_lshl_b32 s14, s16, 2')
    A('s_add_u32 s14, s14, s12')
    A('s_lshl_b32 s14, s14, 16')
    A('s_lshl_b32 s18, s12, 13')
    A(f'v_xor_b32 v8, v{vg}, v1')
    A('v_and_b32 v8, 7, v8')
    A('v_lshlrev_b32 v8, 4, v8')
    A('v_lshl_add_u32 v6, v6, 15, v8')
    A('v_xor_b32 v7, 64, v6')
    A(f'v_add_u32 v7, {8*32768 - 1024}, v7')
    A('s_lshl_b32 s61, s12, 19')
    A('s_lshl_b32 s15, s10, 11')
    A('s_add_u32 s61, s61, s15')
    A('s_lshl_b32 s15, s11, 7')
    A('s_add_u32 s61, s61, s15')
    A('s_lshl_b32 s62, s12, 12')
    A(f's_add_u32 s62, s62, {XB}')
    A('s_lshl_b32 s63, s10, 3')
    A('s_add_u32 s63, s63, s11')
    A('s_lshl_b32 s63, s63, 9')
    A('s_sub_u32 s63, s63, 512')
    A('s_sub_u32 s15, s11, 1')
    A('s_cmp_lt_u32 s15, 7')
    A('s_cselect_b32 s63, s63, 0x40000000')
    A('s_lshl_b32 s15, s16, 12')
    A('v_mov_b32 v9, s15')
    A('v_mov_b32 v10, s63')
    A('v_cmp_gt_u32 vcc, 32, v1')
    A('v_cndmask_b32 v9, v10, v9, vcc')
    A('v_lshl_add_u32 v9, v1, 4, v9')
    A(f'v_lshlrev_b32 v10, 6, v{vn}')
    A('s_lshl_b32 s15, s12, 8')
    A('s_add_u32 s15, s15, s10')
    A('s_lshl_b32 s15, s15, 2')
    A('s_waitcnt lgkmcnt(0)')
    srd(A, 20, 4, U_OFF, 4 * MB)
    srd(A, 28, 4, E_OFF, 65536)
    for h in range(4):
        A(f's_add_u32 m0, s18, {h*2048}')
        A('s_nop 0')
        A(f'buffer_load_dwordx4 v4, s[20:23], s14 offen lds')
        A(f'buffer_load_dwordx4 v5, s[20:23], s14 offen offset:1024 lds')
        if h < 3: A('s_add_u32 s14, s14, 16384')
    A(f's_mov_b32 m0, {EB}')
    srd(A, 24, 6, 0, 2048 * 2048)
    A('buffer_load_dwordx4 v9, s[28:31], 0 offen lds')
    FR = [16, 48]; EF = 80; B = [112, 144]; ACC = [176, 192]; MA = [208, 212]; VT = 216; VX = 220; X = [224, 232]; VB = 240; MXV = [241, 242]; VH = 243; VE = 244
    srd(A, 40, 4, MX_OFF, 8192)
    for u in range(2):
        A(f's_add_u32 m0, s62, {u*2048}')
        if u: A(f's_add_u32 s61, s61, {4 << 19}')
        else: A('s_nop 0')
        A('buffer_load_dwordx4 v6, s[24:27], s61 offen lds')
        A('buffer_load_dwordx4 v7, s[24:27], s61 offen offset:1024 lds')
    A('s_add_u32 s14, s15, 4096')
    A(f'buffer_load_dword v{MXV[0]}, v10, s[40:43], s15 offen')
    A(f'buffer_load_dword v{MXV[1]}, v10, s[40:43], s14 offen')
    A('s_lshl_b32 s15, s12, 4')
    A(f'v_add_u32 v6, s15, v{vn}')
    A('s_cmp_lg_u32 s10, 0')
    A('s_cselect_b32 s15, -1, 0')
    A('v_sub_u32 v7, s15, v6')
    A('s_cmp_lg_u32 s19, 0')
    A('s_cselect_b64 vcc, -1, 0')
    A('v_cndmask_b32 v6, v6, v7, vcc')
    A('v_and_b32 v6, 127, v6')
    A('v_cvt_f32_u32 v7, v6')
    A('v_mul_f32 v7, 0x3c000000, v7')
    A(f'v_lshlrev_b32 v10, 3, v{vg}')
    A('v_cvt_f32_u32 v10, v10')
    A('v_mul_f32 v10, v10, v7')
    B0 = B[0]
    for j in range(8):
        if j: A('v_add_f32 v10, v10, v7')
        A(f'v_cos_f32 v{12+(j&1)}, v10')
        A(f'v_sin_f32 v{14+(j&1)}, v10')
        if j & 1:
            A(f'v_cvt_pk_bf16_f32 v{B0+j//2}, v12, v13')
            A(f'v_cvt_pk_bf16_f32 v{B0+16+j//2}, v14, v15')
    A('v_and_b32 v8, 1, v6')
    A('v_cmp_eq_u32 vcc, 1, v8')
    A('v_mul_u32_u24 v8, 0x8000, v8')
    A('v_lshl_or_b32 v8, v8, 16, v8')
    A('v_and_b32 v10, 2, v6')
    A('v_mul_u32_u24 v10, 0x4000, v10')
    A('v_lshl_or_b32 v10, v10, 16, v10')
    A('v_xor_b32 v11, v10, v8')
    for k in range(4):
        A(f'v_cndmask_b32 v12, v{B0+k}, v{B0+16+k}, vcc')
        A(f'v_cndmask_b32 v13, v{B0+16+k}, v{B0+k}, vcc')
        A(f'v_xor_b32 v{B0+4+k}, v11, v12')
        A(f'v_xor_b32 v{B0+20+k}, v10, v13')
    for k in range(8):
        A(f'v_xor_b32 v{B0+8+k}, v8, v{B0+k}')
        A(f'v_xor_b32 v{B0+24+k}, v8, v{B0+16+k}')
    A('s_brev_b32 s15, 1')
    for k in range(32): A(f'v_xor_b32 v{B[1]+k}, s15, v{B0+k}')
    A(f'v_lshrrev_b32 v10, 2, v{vn}')
    A(f'v_lshl_add_u32 v10, v{vg}, 3, v10')
    A(f'v_lshrrev_b32 v11, 3, v{vn}')
    A(f'v_and_b32 v12, 1, v{vg}')
    A('v_lshl_add_u32 v11, v12, 1, v11')
    A('v_lshlrev_b32 v11, 5, v11')
    A('v_lshl_add_u32 v10, v10, 7, v11')
    A(f'v_and_b32 v11, 3, v{vn}')
    A(f'v_lshl_add_u32 v{VT}, v11, 3, v10')
    A('s_mul_i32 s15, s19, 96')
    A(f'v_xor_b32 v{VT}, s15, v{VT}')
    for i in range(1, 4): A(f'v_xor_b32 v{VT+i}, {(2*(i&1) + (i>>1))*32}, v{VT}')
    A(f'v_and_b32 v11, 1, v{vn}')
    A('v_lshlrev_b32 v11, 9, v11')
    A(f'v_lshl_add_u32 v11, v{vg}, 4, v11')
    A(f'v_add_u32 v{VE}, {EB}, v11')
    A('s_mul_i32 s15, s19, 3')
    A(f'v_xor_b32 v10, s15, v{vg}')
    A('v_lshrrev_b32 v11, 1, v10')
    A(f'v_lshrrev_b32 v12, 1, v{vn}')
    A('v_xor_b32 v11, v11, v12')
    A('v_lshlrev_b32 v11, 4, v11')
    A(f'v_lshl_add_u32 v11, v{vn}, 7, v11')
    A('v_and_b32 v12, 1, v10')
    A('v_lshl_add_u32 v11, v12, 3, v11')
    A(f'v_add_u32 v{VX}, s62, v11')
    for i in range(1, 4): A(f'v_xor_b32 v{VX+i}, {32*i}, v{VX}')
    A(f'v_lshl_add_u32 v10, v10, 4, v{vn}')
    A(f'v_lshlrev_b32 v{VH}, 4, v10')
    A('v_add_u32 v10, 48, v1')
    A('v_and_b32 v10, 63, v10')
    A(f'v_lshlrev_b32 v{VB}, 2, v10')
    A(f'v_cmp_eq_u32 s[46:47], 0, v{vg}')
    srd(A, 52, 4, HF_OFF, 4 * MB)
    srd(A, 56, 4, ST_OFF, 2048 * 128)
    A('s_cmp_eq_u32 s11, 0')
    A('s_cselect_b32 s15, 8192, 0')
    srd(A, 32, 4, MU_OFF, 's15')
    srd(A, 36, 4, FL_OFF, FL_SIZE)
    A('s_lshl_b32 s13, s10, 3')
    A('s_add_u32 s13, s13, s12')
    st(1)
    A('s_waitcnt vmcnt(6)')
    A('s_barrier')
    st(2)
    def frag(i, p): return FR[i & 1] + 4 * p
    def rd(h):
        i = h >> 1
        return [f'ds_read_b64_tr_b16 {vr(frag(i,p)+2*r2,2)}, v{VT+i} offset:{(32*p+4*r2)*128}' for p in range(4*(h & 1), 4*(h & 1) + 4) for r2 in range(2)]
    def mf(d, a, b, z): return f'v_mfma_f32_16x16x32_bf16 {vr(d,4)}, {vr(a,4)}, {vr(b,4)}, {"0" if z else vr(d,4)}'
    def half(h): return [mf(ACC[u] + 4*(h >> 1), frag(h >> 1, p), B[u] + 4*p, p == 0) for p in range(4*(h & 1), 4*(h & 1) + 4) for u in range(2)]
    ONE = 4; S = [5, 7]; Q = [6, 8]; TM = EF; OUT = EF + 16
    E = AutoLgkm(A)
    for x in rd(0) + [f'ds_read_b128 {vr(EF+4*p,4)}, v{VE} offset:{64*p}' for p in range(8)]: E(x)
    for x in weave(half(0), rd(1), per=2): E(x)
    for x in weave([mf(MA[u], EF + 4*p, B[u] + 4*p, p == 0) for p in range(8) for u in range(2)], rd(2), per=1): E(x)
    misc = [f'v_mov_b32 v{ONE}, 0x3f803f80'] + [f'v_mov_b32 v{r}, 0' for r in S + Q] + [f'v_lshlrev_b32 v9, 2, v{vn}', 's_lshl_b32 s60, s13, 6',
            's_lshl_b32 s14, s13, 15', 's_lshl_b32 s15, s11, 11', 's_add_u32 s14, s14, s15', 's_add_u32 s15, s14, 0x20000']
    for x in weave(half(1), rd(3) + misc, per=3): E(x)
    xr = ['s_waitcnt vmcnt(0)'] + [f'ds_read_b64 {vr(X[u]+2*k2,2)}, v{VX+k2} offset:{u*2048}' for k2 in range(4) for u in range(2)]
    for x in weave(half(2), rd(4) + xr, per=3): E(x)
    for x in weave(half(3), rd(5) + [f'v_add_f32 v{MA[u]}, v{MA[u]}, v{MXV[u]}' for u in range(2)], per=2): E(x)
    def epi(V, pr):
        out = []
        for u in range(2):
            o = OUT + 8*u + 4*pr
            for i2 in range(2):
                i = 2*pr + i2; t = TM + 8*u + 4*i2
                for q in range(2):
                    r_ = X[u] + 2*i + q
                    out += [f'v_lshlrev_b32 v{t+2*q}, 16, v{r_}', f'v_and_b32 v{t+1+2*q}, 0xffff0000, v{r_}']
                out += [f'v_sub_f32 v{t+r}, v{t+r}, v{MA[u]}' for r in range(4)]
                out += [f'v_add_f32 v{t+r}, v{t+r}, v{V[u][i][r]}' for r in range(4)]
                out += [f'v_cvt_pk_bf16_f32 v{o+2*i2+q}, v{t+2*q}, v{t+1+2*q}' for q in range(2)]
            out.append(f'buffer_store_dwordx4 {vr(o,4)}, v{VH}, s[52:55], s{14+u} offen offset:{pr*1024} sc1')
        return out
    def dots(pr): return [x for u in range(2) for k in range(4) for x in
                          (f'v_dot2_f32_bf16 v{S[u]}, v{OUT+8*u+4*pr+k}, v{ONE}, v{S[u]}', f'v_dot2_f32_bf16 v{Q[u]}, v{OUT+8*u+4*pr+k}, v{OUT+8*u+4*pr+k}, v{Q[u]}')]
    RP = 10; SH = 248
    A('s_cmp_lg_u32 s19, 0')
    A(f's_cbranch_scc1 {name}_up')
    pend0 = list(E.pend)
    for lower in (1, 0):
        if not lower:
            A.label(f'{name}_up'); A('s_nop 7'); E.pend = list(pend0)
        if lower:
            V = [[[SH+4*u+i, ACC[u]+4*i, ACC[u]+4*i+1, ACC[u]+4*i+2] for i in range(4)] for u in range(2)]
            def rot(i): return [f'ds_bpermute_b32 v{RP+3*u+(i%3)}, v{VB}, v{ACC[u]+4*i+3}' for u in range(2)]
            def sel(i): return [f'v_cndmask_b32 v{SH+4*u+i}, v{RP+3*u+(i%3)}, v{RP+3*u+((i-1)%3) if i else MA[u]+1}, s[46:47]' for u in range(2)]
        else:
            V = [[[ACC[u]+4*i+3-r for r in range(4)] for i in range(4)] for u in range(2)]
            rot = sel = lambda i: []
        for x in weave(half(4), rot(0) + rd(6) + rot(1), per=2): E(x)
        e0 = sel(0) + sel(1) + epi(V, 0)
        for x in weave(half(5), rd(7) + e0[:16], per=3): E(x)
        for x in weave(half(6) + half(7), rot(2) + e0[16:] + dots(0), start=2, per=4): E(x)
        e1 = epi(V, 1)
        hst = [x for x in e1 if x.startswith('buffer_store')]
        for x in rot(3) + sel(2) + sel(3) + [x for x in e1 if x not in hst]: E(x)
        E.drain()
        if lower: A(f's_branch {name}_join')
    A.label(f'{name}_join')
    st(3)
    A('s_waitcnt vmcnt(0)')
    A('s_barrier')
    st(4)
    for x in dots(1)[:8] + hst + dots(1)[8:]: A(x)
    A(f'buffer_store_dword v{MA[0]}, v9, s[32:35], s60 offen sc1')
    A(f'buffer_store_dword v{MA[1]}, v9, s[32:35], s60 offen offset:256 sc1')
    A(f'v_lshlrev_b32 v40, 7, v{vn}')
    A(f'v_lshrrev_b32 v41, 1, v{vg}')
    A('v_lshl_add_u32 v40, v41, 2, v40')
    A('s_lshl_b32 s14, s13, 11')
    A('s_lshl_b32 s15, s11, 3')
    A('s_add_u32 s14, s14, s15')
    A('s_add_u32 s15, s14, 8192')
    for u in range(2): A(f'v_permlane32_swap_b32 v{S[u]}, v{Q[u]}')
    for u in range(2): A(f'v_add_f32 v{S[u]}, v{S[u]}, v{Q[u]}')
    for u in range(2): A(f'v_mov_b32 v{Q[u]}, v{S[u]}')
    for u in range(2): A(f'v_permlane16_swap_b32 v{S[u]}, v{Q[u]}')
    for u in range(2): A(f'v_add_f32 v{S[u]}, v{S[u]}, v{Q[u]}')
    for u in range(2): A(f'buffer_store_dword v{S[u]}, v40, s[56:59], s{14+u} offen sc1')

def drained(A):
    A('s_waitcnt vmcnt(0)')
    A('s_barrier')

def g1_compute(A, name, st, opt):
    WB = [8, 36]; ACC = 64; HB = [176, 192]
    vAh, cAh, VW, CW = 2, 3, 208, 216
    g1_decode(A)
    A('s_and_b32 s13, s12, 1')
    A('s_lshr_b32 s14, s12, 1')
    A('s_lshl_b32 s15, s13, 13')
    A(f'v_lshlrev_b32 v{vAh}, 4, v1')
    A(f'v_add_u32 v{vAh}, s15, v{vAh}')
    tr_bases(A, 44, 45, 1, 48)
    A('s_cmp_lg_u32 s14, 0')
    A('s_cselect_b64 vcc, -1, 0')
    def gaddr(dst, lam):
        if lam < 12:
            A(f'v_xor_b32 v{dst}, {32*(lam&3)}, v44')
            A(f'v_add_u32 v{dst}, {WB0 + (lam>>2)*1024}, v{dst}')
        else:
            A(f'v_xor_b32 v{dst}, {32*(lam&1)}, v45')
            A(f'v_add_u32 v{dst}, {WB0 + 6144}, v{dst}')
    for k, (l0, l1) in enumerate(zip([4, 5, 2, 3, 0, 1, 6], [8, 9, 10, 11, 12, 13, 7])):
        gaddr(46, l0); gaddr(47, l1)
        A(f'v_cndmask_b32 v{VW+k}, v46, v47, vcc')
    A(f'v_mov_b32 v{cAh}, v{vAh}')
    for k in range(7): A(f'v_mov_b32 v{CW+k}, v{VW+k}')
    for i in range(112): A(f'v_mov_b32 v{ACC+i}, 0')
    A('s_lshl_b32 s15, s10, 1')
    A('s_add_u32 s15, s15, s13')
    gs = opt.get('gskip', 1); TT = GTT if gs else 112 * 1024
    A('s_mul_i32 s15, s15, %d' % (4 * TT))
    A('s_add_u32 s15, s15, %d' % (GS_OFF if gs else G_OFF))
    srd(A, 20, 4, 's15', 4 * TT)
    A('s_mov_b32 s17, 0')
    A('s_mov_b32 s19, 0')
    A('s_mov_b32 s18, 0')
    BV = 240; H2 = 224
    A('s_load_dwordx2 s[24:25], s[0:1], %d' % KA['b1'])
    A('s_and_b32 s52, s11, 1')
    A('s_mul_i32 s15, s11, 7')
    A('s_add_u32 s16, s15, s52')
    A('s_add_u32 s56, s16, 3')
    A('s_cmp_lg_u32 s14, 0')
    A('s_cselect_b32 s53, 4, 2')
    A('s_cselect_b32 s54, 5, 1')
    A('s_cselect_b32 s55, 6, 0')
    for r in (53, 54, 55): A(f's_add_u32 s{r}, s{r}, s16')
    A('s_and_b32 s52, s52, s14')
    A('s_cmp_lg_u32 s52, 0')
    A('s_cselect_b32 s55, s15, s55')
    for r in (53, 54, 55, 56): A(f's_lshl_b32 s{r+4}, s{r}, 6')
    A('s_lshl_b32 s15, s14, 5')
    A('s_add_u32 s60, s60, s15')
    A('v_and_b32 v44, 15, v1')
    A('v_lshlrev_b32 v44, 1, v44')
    A('s_mov_b32 s26, 7168')
    A('s_mov_b32 s27, 0x20000')
    A('s_waitcnt lgkmcnt(0)')
    for i in range(7):
        so, off = 57 + i // 2, (32*(i&1) if i < 6 else 0)
        A(f'buffer_load_ushort v{BV+i}, v44, s[24:27], s{so} offen offset:{off}')
    A('s_barrier')
    A('s_waitcnt vmcnt(0)')
    def reads(s, buf):
        r = []
        for j in range(4):
            r.append(f'ds_read_b128 {vr(HB[buf]+4*j,4)}, v{cAh} offset:{(2*j+s)*1024}')
        for i in range(7):
            for rd in range(2):
                r.append(f'ds_read_b64_tr_b16 {vr(WB[buf]+4*i+2*rd,2)}, v{CW+i} offset:{(2*s + rd) * 7168}')
        return r
    def step(buf, rds, tail=None, nowait=False):
        k = 0; n = 0
        for i in range(7):
            for jj in range(4):
                j = jj if (i & 1) == 0 or opt.get('nosnake') else 3 - jj
                ii = i
                if opt.get('jmajor'):
                    j, ii = (i*4 + jj) // 7, (i*4 + jj) % 7
                    if j & 1: ii = 6 - ii
                mfma(A, ACC + (ii*4+j)*4, WB[buf] + 4*ii, HB[buf] + 4*j)
                if k < len(rds): A(rds[k]); k += 1
                n += 1
                if tail and n - 20 in tail:
                    for t in tail[n - 20]: A(t)
        if not nowait: A('s_waitcnt lgkmcnt(0)')
    A('s_barrier')
    st(8)
    for r in reads(0, 0): A(r)
    A('s_waitcnt lgkmcnt(0)')
    A(f's_branch {name}_g1mid')
    tailB = {-4: [f's_add_u32 s17, s17, {HS}', f's_add_u32 s19, s19, {WS}'], -3: [f's_cmp_eq_u32 s17, {3*HS}', 's_cselect_b32 s17, 0, s17'],
             -2: ['s_cselect_b32 s19, 0, s19', 's_add_u32 s18, s18, 1'], -1: [f'v_add_u32 v{cAh}, s17, v{vAh}', 's_cmp_le_u32 s18, 14']}
    for k in range(7): tailB[k] = [f'v_add_u32 v{CW+k}, s19, v{VW+k}']
    A('.p2align 6')
    A.label(f'{name}_g1loop')
    A('s_barrier')
    step(1, reads(0, 0))
    A.label(f'{name}_g1mid')
    step(0, reads(1, 1), tailB)
    A(f's_cbranch_scc1 {name}_g1loop')
    A('s_barrier')
    gs = opt.get('gskip', 1)
    order = [6, 0, 1, 2, 3, 4, 5]
    SG = 4
    def wset(k): return WB[0] + 8 * (k % 3)
    def wrd(k):
        i = order[k]
        return [f'ds_read_b64_tr_b16 {vr(wset(k)+4*s_+2*rd,2)}, v{CW+i} offset:{(2*s_ + rd) * 7168}' for s_ in range(2) for rd in range(2)]
    BT = 32
    ST4 = [208, 212, 248, 252]
    A('v_and_b32 v2, 15, v1')
    A('s_lshl_b32 s15, s13, 8')
    A(f's_add_u32 s15, s15, {SGB}')
    A('v_lshl_add_u32 v2, v2, 2, s15')
    pre = [f'ds_read_b128 {vr(HB[0]+4*j,4)}, v{cAh} offset:{(2*j)*1024}' for j in range(4)] + wrd(0) + \
          [f'ds_read_b128 {vr(H2+4*j,4)}, v{cAh} offset:{(2*j+1)*1024}' for j in range(4)] + \
          [f'ds_read_b32 v{ST4[j]}, v2 offset:{64*j}' for j in range(4)] + wrd(1)
    setup = []
    for j in range(4):
        for k in range(1, 4): setup.append(f'v_mov_b32 v{ST4[j]+k}, 0')
    for k in range(1, 4): setup.append(f'v_mov_b32 v{BT+k}, 0')
    addr = []
    for r in (53, 54, 55, 56):
        addr += [f's_lshr_b32 s{r}, s{r}, 1', f's_mul_i32 s{r}, s{r}, {GST}'] if gs else [f's_lshl_b32 s{r}, s{r}, 10']
    class L(list):
        def __call__(self, t): self.append(t)
    va = L()
    va('v_and_b32 v4, 15, v1'); va('v_lshlrev_b32 v4, 4, v4'); va('v_and_b32 v6, 16, v1'); va('v_and_b32 v7, 32, v1')
    va('v_lshl_add_u32 v5, v7, 3, v4'); va('v_lshl_add_u32 v4, v6, 5, v5'); va('v_lshrrev_b32 v6, 1, v6'); va('s_lshl_b32 s19, s14, 9')
    va('v_add3_u32 v5, v5, v6, s19')
    if gs:
        skipmap(va, 6, 4, 1, 2); skipmap(va, 4, 4, 0, 2); skipmap(va, 5, 5, 1, 2)
        va('s_cmp_lg_u32 s52, 0'); va('s_cselect_b64 vcc, -1, 0'); va('v_cndmask_b32 v7, v4, v6, vcc')
    else:
        va('v_mov_b32 v6, v4'); va('v_mov_b32 v7, v4')
    def acc(i, j): return ACC + (i*4+j)*4
    def epi_tile(i, j, d):
        a = acc(i, j)
        return [f'v_max_f32 v{a+r}, 0, v{a+r}' for r in range(4)] + \
               [f'v_pk_mul_f32 {vr(a,2)}, {vr(a,2)}, {vr(a,2)}', f'v_pk_mul_f32 {vr(a+2,2)}, {vr(a+2,2)}, {vr(a+2,2)}',
                f'v_cvt_pk_bf16_f32 v{d}, v{a}, v{a+1}', f'v_cvt_pk_bf16_f32 v{d+1}, v{a+2}, v{a+3}']
    late = []
    def epi(i):
        out = []
        for j in range(4):
            if i == 6:
                out += epi_tile(i, j, acc(i, j))
                out.append(f'buffer_store_dwordx2 {vr(acc(i,j),2)}, v5, s[20:23], s56 offen sc1')
                if j < 3: out.append(f's_add_u32 s56, s56, {TT}')
            elif i % 2 == 0:
                out += epi_tile(i, j, acc(i, j))
            else:
                d = acc(i - 1, j)
                out += epi_tile(i, j, d + 2)
                out += [f'v_permlane16_swap_b32 v{d}, v{d+2}', f'v_permlane16_swap_b32 v{d+1}, v{d+3}']
                pp = i // 2
                dst = out if pp < 2 else late
                dst.append(f'buffer_store_dwordx4 {vr(d,4)}, v{[4, 6, 7][pp]}, s[20:23], s{53+pp} offen sc1')
                if j < 3: dst.append(f's_add_u32 s{53+pp}, s{53+pp}, {TT}')
        return out
    for k, i in enumerate(order):
        mf = [(acc(i, j), WB[1] + 4*i, HB[1] + 4*j) for j in range(4)] + [(acc(i, j), wset(k), HB[0] + 4*j) for j in range(4)] + \
             [(acc(i, j), wset(k) + 4, H2 + 4*j) for j in range(4)] + [(acc(i, j), BT, ST4[j]) for j in range(4)]
        if k == 0:
            fill = pre + addr + list(va) + setup
        else:
            fill = (wrd(k + 1) if k + 1 < 7 else []) + epi(order[k - 1])
        per = -(-len(fill) // 15)
        fi = 0
        for n, (d, a, b) in enumerate(mf):
            if k == 0 and n == 4:
                for x in fill[fi:len(pre)]: A(x)
                fi = max(fi, len(pre))
                A('s_waitcnt lgkmcnt(14)')
            if k == 0 and n == 8: A('s_waitcnt lgkmcnt(8)')
            if k == 0 and n == 12:
                for x in fill[fi:]: A(x)
                fi = len(fill)
                A('s_waitcnt vmcnt(0) lgkmcnt(4)')
                A('v_cmp_gt_u32 vcc, 16, v1')
                for j in range(4): A(f'v_cndmask_b32 v{ST4[j]}, 0, v{ST4[j]}, vcc')
            if k > 0 and n == 4: A(f's_waitcnt lgkmcnt({4 if k + 1 < 7 else 0})')
            if n == 10 and k > 0 or (k == 0 and n == 12): A(f'v_mov_b32 v{BT}, v{BV+i}')
            mfma(A, d, a, b)
            if k == 6 and n == 4:
                A('s_barrier')
                st(9)
            for _ in range(per):
                if fi < len(fill): A(fill[fi]); fi += 1
        for x in fill[fi:]: A(x)
    for x in epi(5): A(x)
    return late

def g2_compute(A, name, st, opt, late):
    NS = 4; N2 = opt.get('n2', 8); N1 = (56 - N2) // 2
    SIG = opt.get('sig', 2); POLL = opt.get('poll', 4)
    AO = 8; AX = 40; HB = [72, 88]; WO = [104, 112]; WX = [120, 128]; EP = 136; PR = 224
    vAh, vAw, cAh, cAw, vAw1, cAw1, vL16, vFl = 176, 177, 178, 179, 180, 181, 182, 183
    A('s_load_dwordx2 s[50:51], s[0:1], %d' % KA['b2'])
    A('s_load_dwordx2 s[48:49], s[0:1], %d' % KA['out'])
    A('v_and_b32 v8, 15, v1')
    A('v_lshlrev_b32 v8, 4, v8')
    A('v_and_b32 v10, 16, v1')
    A('v_and_b32 v11, 32, v1')
    A('v_lshl_add_u32 v9, v11, 3, v8')
    A('v_lshl_add_u32 v8, v10, 5, v9')
    A('v_lshrrev_b32 v10, 1, v10')
    A('s_lshl_b32 s15, s13, 13')
    A('s_lshl_b32 s16, s14, 9')
    A('s_add_u32 s16, s16, s15')
    A(f's_add_u32 s16, s16, {3*SLOT + 1024}')
    A('v_add3_u32 v9, v9, v10, s16')
    A('v_add_u32 v8, s15, v8')
    A('s_cmp_lg_u32 s14, 0')
    for k, (b0, b1) in enumerate(((3*SLOT, 0), (2*SLOT + 1024, 1024), (2*SLOT, 0x40000))):
        A(f's_mov_b32 s16, {b0}')
        A(f's_cselect_b32 s16, {b1}, s16')
        A(f'v_add_u32 v{10+k}, s16, v8')
    wr_ = [f'ds_write_b128 v{10+k}, {vr(64+32*k+4*j,4)} offset:{2048*j}' for k in (2, 1, 0) for j in range(4)]
    wr_ += [f'ds_write_b64 v9, {vr(160+4*j,2)} offset:{2048*j}' for j in range(4)]
    ad = [f'v_lshlrev_b32 v{vL16}, 4, v1', f'v_add_u32 v{vAh}, s15, v{vL16}', 'v_lshrrev_b32 v184, 2, v1', 'v_and_b32 v184, 3, v184',
          'v_lshrrev_b32 v185, 4, v1', 'v_lshl_add_u32 v184, v185, 3, v184', 'v_lshrrev_b32 v186, 3, v1', 'v_and_b32 v186, 3, v186',
          'v_lshlrev_b32 v186, 5, v186', 'v_lshl_add_u32 v184, v184, 7, v186', 'v_and_b32 v186, 3, v1', f'v_lshl_add_u32 v{vAw}, v186, 3, v184',
          's_lshl_b32 s16, s14, 6', f'v_xor_b32 v{vAw}, s16, v{vAw}', f'v_add_u32 v{vAw}, 16384, v{vAw}', f'v_xor_b32 v{vAw1}, 32, v{vAw}',
          f'v_add_u32 v{cAh}, {2*SLOT}, v{vAh}', f'v_add_u32 v{cAw}, {2*SLOT}, v{vAw}', f'v_add_u32 v{cAw1}, {2*SLOT}, v{vAw1}', f'v_mov_b32 v{vFl}, 0']
    ad += [f'v_mov_b32 v{192+k}, v{128+k}' for k in range(16)]
    for x in weave(wr_[:8], ad[:16], per=2): A(x)
    A('s_waitcnt vmcnt(0)')
    A('s_barrier')
    st(10)
    for x in weave(wr_[8:], ad[16:], per=3): A(x)
    for k in range(4): A(f's_mov_b32 s{64+k}, s{20+k}' if k < 3 else 's_mov_b32 s67, 0x20000')
    A('s_mov_b32 s68, s55')
    A(f's_mov_b32 s17, {2*SLOT}')
    TT = GTT if opt.get('gskip', 1) else 112 * 1024
    def late_store(k): return [f'buffer_store_dwordx4 {vr(192+4*k,4)}, v7, s[64:67], s68 offen sc1', f's_add_u32 s68, s68, {TT}']
    def setup():
        g2_decode(A)
        A('s_lshl_b32 s15, s10, 1')
        A('s_add_u32 s15, s15, s13')
        A('s_lshl_b32 s16, s15, 17')
        A(f's_add_u32 s16, s16, {HF_OFF}')
        A('s_lshl_b32 s19, s15, 8')
        A(f's_add_u32 s19, s19, {MU_OFF}')
        A('s_lshl_b32 s54, s2, 2')
        A('s_add_u32 s54, s54, s12')
        A('s_xor_b32 s55, s54, 16')
        A('s_lshl_b32 s56, s54, 12')
        A('s_lshl_b32 s57, s55, 12')
        A('s_lshl_b32 s54, s54, 7')
        A('s_lshl_b32 s55, s55, 7')
        A(f's_add_u32 s54, s54, {FL3}')
        A(f's_add_u32 s55, s55, {FL3}')
        srd(A, 20, 4, 's16', 128 * 1024)
        srd(A, 44, 4, 's19', 256)
        A(f's_add_u32 s19, s19, {R2_OFF - MU_OFF}')
        srd(A, 24, 4, 's19', 256)
        srd(A, 28, 50, 0, 2048)
        srd(A, 32, 48, 0, 2048 * 2048)
        srd(A, 40, 4, PX_OFF, 4 * MB)
    A('s_waitcnt lgkmcnt(0)')
    def reads(s, buf, full):
        r = []
        for i in range(2):
            for rd in range(2):
                r.append(f'ds_read_b64_tr_b16 {vr(WO[buf]+4*i+2*rd,2)}, v{cAw1 if i else cAw} offset:{4096*s + 512*rd}')
        for j in range(4):
            r.append(f'ds_read_b128 {vr(HB[buf]+4*j,4)}, v{cAh} offset:{(2*j+s)*1024}')
        if full:
            for i in range(2):
                for rd in range(2):
                    r.append(f'ds_read_b64_tr_b16 {vr(WX[buf]+4*i+2*rd,2)}, v{cAw1 if i else cAw} offset:{8192 + 4096*s + 512*rd}')
        return r
    ADV = [[f's_add_u32 s17, s17, {SLOT}', f's_cmp_eq_u32 s17, {NS*SLOT}'], ['s_cselect_b32 s17, 0, s17', f'v_add_u32 v{cAh}, s17, v{vAh}'],
           [f'v_add_u32 v{cAw}, s17, v{vAw}'], [f'v_add_u32 v{cAw1}, s17, v{vAw1}']]
    def step(buf, full, rds, tail=(), xfirst=False, zero=False):
        seq = []
        order = ([(AX, WX)] if full else []) + [(AO, WO)] if xfirst else [(AO, WO)] + ([(AX, WX)] if full else [])
        for acc, W in order:
            for i in range(2):
                for jj in range(4):
                    j = jj if i == 0 else 3 - jj
                    seq.append((acc + (i*4+j)*4, W[buf] + 4*i, HB[buf] + 4*j))
        per = 1 if len(rds) + len(tail) <= len(seq) else 2
        fill = [[x] for x in rds]
        if per == 2: fill = [sum(fill[k:k+2], []) for k in range(0, len(fill), 2)]
        fill += list(tail)
        for n, (d, a, b) in enumerate(seq):
            mfma(A, d, a, b, '0' if zero else None)
            if n < len(fill):
                for x in fill[n]: A(x)
        for f in fill[len(seq):]:
            for x in f: A(x)
        A('s_waitcnt lgkmcnt(0)')
    A('s_barrier')
    st(11)
    for r in reads(0, 0, True): A(r)
    setup()
    A('s_lshl_b32 s16, s11, 1')
    A('s_add_u32 s16, s16, s14')
    A('s_lshl_b32 s19, s16, 10')
    for j in range(4):
        A(f'buffer_load_dwordx4 {vr(EP+4*j,4)}, v{vL16}, s[20:23], s19 offen sc1')
        if j < 3: A('s_add_u32 s19, s19, 32768')
    A(f'v_and_b32 v{PR}, 15, v1')
    A(f'v_lshlrev_b32 v{PR}, 2, v{PR}')
    for j in range(4):
        A(f'buffer_load_dword v{EP+16+j}, v{PR}, s[24:27], 0 offen offset:{64*j} sc1')
        A(f'buffer_load_dword v{EP+24+j}, v{PR}, s[44:47], 0 offen offset:{64*j} sc1')
    A(f'v_lshrrev_b32 v{PR+1}, 4, v1')
    A(f'v_lshlrev_b32 v{PR+1}, 3, v{PR+1}')
    A('s_lshl_b32 s19, s16, 6')
    A(f'buffer_load_dwordx2 {vr(EP+20,2)}, v{PR+1}, s[28:31], s19 offen')
    A(f'buffer_load_dwordx2 {vr(EP+22,2)}, v{PR+1}, s[28:31], s19 offen offset:32')
    A('s_waitcnt lgkmcnt(0)')
    L0 = opt.get('l0', 0)
    step(0, True, reads(1, 1, True), ADV[:3] + [ADV[3] + (late_store(0) if L0 == 0 else [])], zero=True)
    for k in range(1, L0 + 4):
        A('s_barrier')
        step(1, True, reads(0, 0, True), [late_store(k - L0)] if k >= L0 else [])
        step(0, True, reads(1, 1, True), ADV)
    A(f's_mov_b32 s18, {L0 + 4}')
    A('.p2align 6')
    A.label(f'{name}_g2loop')
    A('s_barrier')
    step(1, True, reads(0, 0, True), [['s_waitcnt vmcnt(0)']])
    step(0, True, reads(1, 1, True), ADV[:3] + [ADV[3] + ['s_add_u32 s18, s18, 1', f's_cmp_lt_u32 s18, {N1}']])
    A(f's_cbranch_scc1 {name}_g2loop')
    A('s_mov_b32 s59, 0')
    A('s_mov_b32 s58, 400000')
    def check(tag, sp):
        A('s_cmp_lg_u32 s59, 0')
        A(f's_cbranch_scc1 {name}_done{tag}')
        A.label(f'{name}_poll{tag}')
        A('s_waitcnt vmcnt(0)')
        A(f'v_readfirstlane_b32 s59, v{PR+16}')
        A('s_cmp_eq_u32 s59, 1')
        A(f's_cbranch_scc1 {name}_got{tag}')
        A('s_mov_b32 s59, 0')
        if sp:
            A('s_sub_u32 s58, s58, 1')
            A(f's_cbranch_scc1 {name}_got{tag}')
            A('s_sleep 1')
        A(f'buffer_load_dword v{PR+16}, v{vFl}, s[36:39], s55 offen sc1')
        A(f's_branch {name}_poll{tag}' if sp else f's_branch {name}_done{tag}')
        A.label(f'{name}_got{tag}')
        for k in range(4):
            A(f'buffer_load_dwordx4 {vr(PR+4*k,4)}, v{vL16}, s[40:43], s57 offen offset:{k*1024} sc1')
        A.label(f'{name}_done{tag}')
    for it in range(N2):
        A('s_barrier')
        if it == 0:
            step(1, True, reads(0, 0, False), xfirst=True)
            for k in range(4):
                for c in range(4*k, 4*k+4): A(f'v_cvt_pk_bf16_f32 v{AX+c}, v{AX+2*c}, v{AX+2*c+1}')
                A(f'buffer_store_dwordx4 {vr(AX+4*k,4)}, v{vL16}, s[40:43], s56 offen offset:{k*1024} sc1')
        else:
            if it == SIG:
                A('s_waitcnt vmcnt(0)')
                A(f'v_mov_b32 v{PR}, 1')
                A(f'buffer_store_dword v{PR}, v{vFl}, s[36:39], s54 offen sc1')
            if it == POLL:
                A(f'buffer_load_dword v{PR+16}, v{vFl}, s[36:39], s55 offen sc1')
            if it > POLL: check(it, False)
            step(1, False, reads(0, 0, False))
        step(0, False, reads(1, 1, False), ADV if it < N2 - 1 else ())
    check('L', True)
    step(1, False, [])
    st(12)
    B = 104
    A('v_and_b32 v6, 15, v1')
    A('v_lshrrev_b32 v7, 4, v1')
    A('v_and_b32 v2, 1, v7')
    A('v_lshrrev_b32 v7, 1, v7')
    A('v_lshl_add_u32 v7, v2, 1, v7')
    A('v_lshrrev_b32 v2, 1, v6')
    A('v_xor_b32 v7, v7, v2')
    A('v_and_b32 v7, 3, v7')
    A('v_lshl_add_u32 v7, v6, 2, v7')
    A('s_lshl_b32 s15, s12, 12')
    A(f's_add_u32 s15, s15, {STG}')
    A('v_lshl_add_u32 v4, v7, 4, s15')
    A('v_lshrrev_b32 v6, 2, v1')
    A('v_lshrrev_b32 v7, 3, v1')
    A('v_xor_b32 v7, v7, v1')
    A('v_and_b32 v7, 3, v7')
    A('v_lshl_add_u32 v5, v1, 4, s15')
    A('v_lshlrev_b32 v6, 15, v6')
    A('v_lshl_add_u32 v6, v7, 4, v6')
    A('s_lshl_b32 s19, s10, 11')
    A('s_lshl_b32 s15, s13, 21')
    A('s_add_u32 s19, s19, s15')
    A('s_lshl_b32 s16, s16, 6')
    A('s_add_u32 s19, s19, s16')
    A('s_waitcnt vmcnt(0)')
    for i in range(2):
        for q in range(2):
            A(f'v_lshlrev_b32 v{B+4*i+2*q}, 16, v{EP+20+2*i+q}')
            A(f'v_and_b32 v{B+4*i+2*q+1}, 0xffff0000, v{EP+20+2*i+q}')
    T = 40
    for j in range(4):
        d = T + 8*j
        for i in range(2):
            a = AO + (i*4+j)*4; pr = PR + (i*4+j)*2
            for q in range(2):
                hreg = EP + 4*j + 2*i + q
                A(f'v_lshlrev_b32 v{d+4+2*q}, 16, v{hreg}')
                A(f'v_and_b32 v{d+5+2*q}, 0xffff0000, v{hreg}')
                A(f'v_lshlrev_b32 v{72+2*q}, 16, v{pr+q}')
                A(f'v_and_b32 v{73+2*q}, 0xffff0000, v{pr+q}')
            for q in range(2):
                A(f'v_pk_add_f32 {vr(a+2*q,2)}, {vr(a+2*q,2)}, {vr(72+2*q,2)}')
                A(f'v_pk_add_f32 {vr(d+4+2*q,2)}, {vr(d+4+2*q,2)}, {vr(B+4*i+2*q,2)}')
            for r in range(4): A(f'v_add_f32 v{d+4+r}, v{d+4+r}, v{EP+24+j}')
            for r in range(4): A(f'v_fma_f32 v{a+r}, v{a+r}, v{EP+16+j}, v{d+4+r}')
            A(f'v_cvt_pk_bf16_f32 v{d+2*i}, v{a}, v{a+1}')
            A(f'v_cvt_pk_bf16_f32 v{d+2*i+1}, v{a+2}, v{a+3}')
        A(f'v_permlane16_swap_b32 v{d}, v{d+2}')
        A(f'v_permlane16_swap_b32 v{d+1}, v{d+3}')
        A(f'ds_write_b128 v4, {vr(d,4)} offset:{1024*j}')
        A(f'ds_read_b128 {vr(76+4*j,4)}, v5 offset:{1024*j}')
        if j:
            A('s_waitcnt lgkmcnt(2)')
            A(f'buffer_store_dwordx4 {vr(72+4*j,4)}, v6, s[32:35], s19 offen {opt.get("omod", "sc1")}')
            A(f's_add_u32 s19, s19, {16*16*2048}')
    A('s_waitcnt lgkmcnt(0)')
    A(f'buffer_store_dwordx4 {vr(88,4)}, v6, s[32:35], s19 offen {opt.get("omod", "sc1")}')

def loaders(A, name, opt):
    NS = 4; N2 = opt.get('n2', 8); N1 = (56 - N2) // 2; NT = N1 + N2
    hm = opt.get('hmod', 'sc1')
    lst = Stamper(A, opt.get('stamp') == 1, 1)
    A('s_load_dwordx4 s[64:67], s[0:1], %d' % KA['w1'])
    A('s_load_dwordx2 s[48:49], s[0:1], %d' % KA['w2'])
    A('s_sub_u32 s12, s12, 4')
    g1_decode(A)
    A('s_lshl_b32 s15, s12, 16')
    A('v_lshlrev_b32 v8, 4, v1')
    A('v_add_u32 v8, s15, v8')
    A('v_add_u32 v9, 0x8000, v8')
    A('s_lshr_b32 s15, s12, 1')
    A('s_lshl_b32 s15, s15, 6')
    A('s_and_b32 s16, s12, 1')
    A('s_lshl_b32 s16, s16, 4')
    A('s_add_u32 s15, s15, s16')
    A('s_and_b32 s16, s11, 1')
    w_voffs(A, 10, 1, 15, 16, 4, range(7))
    A('s_lshl_b32 s43, s12, 12')
    A('s_mul_i32 s44, s12, 7168')
    A(f's_add_u32 s44, s44, {WB0}')
    A('s_mov_b32 s41, 0')
    A('s_mov_b32 s42, 0')
    A('s_lshl_b32 s15, s12, 12')
    A('v_lshlrev_b32 v3, 4, v1')
    A('v_add_u32 v3, s15, v3')
    A('v_and_b32 v17, 15, v1')
    A('v_lshlrev_b32 v17, 7, v17')
    A('v_mov_b32 v20, 1')
    A('v_mov_b32 v21, 0')
    A('s_and_b32 s13, s2, 7')
    A('s_sub_u32 s15, 16, s13')
    A('s_cmp_eq_u32 s13, 0')
    A('s_cselect_b32 s15, 8, s15')
    A('s_bitcmp1_b32 s2, 3')
    A('s_cselect_b32 s13, s15, s13')
    A('s_lshl_b32 s13, s13, 4')
    A('s_lshr_b32 s15, s2, 4')
    A('s_add_u32 s13, s13, s15')
    A('s_lshl_b32 s13, s13, 7')
    A('s_lshl_b32 s14, s10, 4')
    A('s_add_u32 s14, s14, s11')
    A('s_lshl_b32 s14, s14, 7')
    A(f's_add_u32 s14, s14, {FL2}')
    A('s_lshl_b32 s15, s10, 18')
    A(f's_add_u32 s15, s15, {HF_OFF}')
    A('s_mul_i32 s16, s11, 448')
    A(f's_sub_u32 s19, {1024*7168}, s16')
    A('s_waitcnt lgkmcnt(0)')
    srd(A, 20, 4, 's15', 256 * 1024)
    srd(A, 24, 64, 's16', 's19')
    A('s_lshl_b32 s15, s10, 14')
    A(f's_add_u32 s15, s15, {ST_OFF}')
    srd(A, 32, 4, 's15', 16384)
    A('s_lshl_b32 s15, s10, 9')
    A(f's_add_u32 s15, s15, {R2_OFF}')
    srd(A, 36, 4, 's15', 512)
    srd(A, 52, 4, FL_OFF, FL_SIZE)
    srd(A, 56, 48, 0, 3584 * 2048)
    A('s_lshl_b32 s60, s2, 2')
    A('s_add_u32 s60, s60, s12')
    NL2 = 5 if opt.get('sw1', 1) else 4
    A(f's_mul_i32 s60, s60, {128*NL2}')
    A(f's_mov_b32 s50, {(6 if NL2 == 5 else 8) * (NL2 << 17)}')
    hstep = [4096]
    A('v_add_u32 v26, 1024, v8')
    A('v_add_u32 v27, 1024, v9')
    def issue_h(lds):
        A(f's_add_u32 m0, {lds}, s43')
        A('s_nop 0')
        A(f'buffer_load_dwordx4 v8, s[20:23], s41 offen {hm} lds')
        A(f'buffer_load_dwordx4 v26, s[20:23], s41 offen offset:1024 {hm} lds')
        A('s_add_u32 m0, m0, 2048')
        A('s_nop 0')
        A(f'buffer_load_dwordx4 v9, s[20:23], s41 offen {hm} lds')
        A(f'buffer_load_dwordx4 v27, s[20:23], s41 offen offset:1024 {hm} lds')
        A(f's_add_u32 s41, s41, {hstep[0]}')
    def issue_w(lds, srdn=24, so='s42'):
        A(f's_add_u32 s45, {lds}, s44')
        for q in range(7):
            A(f's_add_u32 m0, s45, {q*1024}')
            A('s_nop 0')
            A(f'buffer_load_dwordx4 v{10+q}, s[{srdn}:{srdn+3}], {so} offen lds')
        A(f's_add_u32 s42, s42, {128*7168}')
    def sp2():
        for k in range(NL2): A(f's_buffer_load_dwordx2 s[62:63], s[56:59], s60 offset:{128*k + 60}')
        A('s_add_u32 s60, s60, s50')
        A(f's_sub_u32 s50, {NL2 << 17}, s50')
    sw1 = opt.get('sw1', 1)
    if sw1:
        srd(A, 68, 64, 32 * 7168, 992 * 7168)
        A('s_lshr_b32 s61, s2, 4')
        A('s_lshl_b32 s61, s61, 5')
        A('s_and_b32 s15, s2, 15')
        A('s_add_u32 s61, s61, s15')
        A('s_lshl_b32 s61, s61, 2')
        A('s_add_u32 s61, s61, s12')
        A('s_mul_i32 s61, s61, 3584')
    def sp1(b):
        if sw1:
            for k in range(7): A(f's_buffer_load_dwordx2 s[62:63], s[68:71], s61 offset:{896*b + 128*k + 60}')
    sp1(0)
    def only0(tag, ins):
        A('s_cmp_lg_u32 s12, 0')
        A(f's_cbranch_scc1 {tag}')
        for x in ins: A(x)
        A.label(tag)
    A('s_barrier')
    for k in range(3): issue_w(k * WS)
    if sw1: sp1(1)
    else: sp2(); sp2()
    A('s_lshl_b32 s15, s10, 11')
    A('s_barrier')
    only0(f'{name}_f1', ['buffer_store_dword v20, v21, s[52:55], s13 offen sc1'])
    sp1(2)
    A('s_cmp_lg_u32 s12, 0')
    A(f's_cbranch_scc1 {name}_fl1_go')
    spin(A, f'{name}_fl1', 52, 15, 36, 17, 47, opt.get('pdepth', 4), opt.get('pgap', 2))
    A('s_barrier')
    for k in range(3): issue_h(k * HS)
    sp1(3)
    A('s_mov_b32 s40, 0')
    A('s_mov_b32 s46, 0')
    A('s_waitcnt vmcnt(8)')
    A('s_barrier')
    only0(f'{name}_no5', [f's_add_u32 s13, s13, {FL5}', 'buffer_store_dword v20, v21, s[52:55], s13 offen sc1'])
    A('s_waitcnt vmcnt(4)')
    A('s_barrier')
    def issue():
        issue_h('s40'); issue_w('s46')
        A(f's_add_u32 s40, s40, {HS}')
        A(f's_add_u32 s46, s46, {WS}')
        A(f's_cmp_eq_u32 s40, {3*HS}')
        A('s_cselect_b32 s40, 0, s40')
        A('s_cselect_b32 s46, 0, s46')
    def stats():
        for k in range(4):
            A(f'v_add_f32 v{40+4*k}, v{40+4*k}, v{42+4*k}')
            A(f'v_add_f32 v{41+4*k}, v{41+4*k}, v{43+4*k}')
        for perm in ('quad_perm:[1,0,3,2]', 'quad_perm:[2,3,0,1]', 'row_half_mirror'):
            for k in range(4):
                for c in range(2):
                    A(f'v_add_f32_dpp v{40+4*k+c}, v{40+4*k+c}, v{40+4*k+c} {perm} row_mask:0xf bank_mask:0xf')
        A('v_and_b32 v4, 3, v1')
        for k in range(1, 4):
            A(f'v_cmp_eq_u32 vcc, {k}, v4')
            for c in range(2): A(f'v_cndmask_b32 v{40+c}, v{40+c}, v{40+4*k+c}, vcc')
        ln_finish(A, 40, 41, 22, 23, 24, 47)
        A('v_lshrrev_b32 v28, 16, v23')
        A('v_lshrrev_b32 v5, 3, v1')
        A('v_lshl_add_u32 v2, v4, 3, v5')
        A('s_lshl_b32 s15, s12, 7')
        A(f's_add_u32 s15, s15, {SGB}')
        A('v_lshl_add_u32 v5, v2, 2, s15')
        A('ds_write_b32 v5, v28')
        A('v_mul_f32 v23, v23, v23')
        A('v_rcp_f32 v23, v23')
        A('s_lshl_b32 s15, s12, 7')
        A('v_lshlrev_b32 v5, 2, v2')
        A('buffer_store_dword v23, v5, s[36:39], s15 offen sc1')
    def loop1(tag, first, last):
        A(f's_mov_b32 s18, {first}')
        A.label(f'{name}_{tag}')
        issue()
        if last == 15:
            A('s_cmp_eq_u32 s18, 15')
            A(f's_cbranch_scc1 {name}_nosp')
            if NL2 == 4:
                A('s_cmp_eq_u32 s18, 13')
                A('s_cselect_b32 s50, 0x80000, s50')
        sp2()
        if last == 15: A.label(f'{name}_nosp')
        A('s_add_u32 s18, s18, 1')
        A(f's_cmp_le_u32 s18, {last}')
        A('s_waitcnt vmcnt(11)')
        A('s_barrier')
        A(f's_cbranch_scc1 {name}_{tag}')
    loop1('l1a', 3, 4)
    A(f's_add_u32 s15, s15, {FL5}')
    A('buffer_load_dword v36, v17, s[52:55], s15 offen sc1')
    issue(); sp2()
    A('s_waitcnt vmcnt(11)')
    A('s_barrier')
    A('v_cmp_ne_u32 vcc, 1, v36')
    A(f's_cbranch_vccz {name}_fl5_go')
    spin(A, f'{name}_fl5', 52, 15, 36, 17, 47, 1, 1)
    for k in range(4): A(f'buffer_load_dwordx4 {vr(40+4*k,4)}, v3, s[32:35], 0 offen offset:{1024*k} sc1')
    loop1('l1b', 6, 7)
    A('s_mov_b32 s41, 1024')
    A(f's_mov_b32 s42, {32*7168}')
    issue(); sp2()
    stats()
    A('s_waitcnt vmcnt(12)')
    A('s_barrier')
    loop1('l1c', 9, 15)
    g2_decode(A)
    gs = opt.get('gskip', 1); TT = GTT if gs else 112 * 1024; hstep[0] = GST if gs else 2048
    A(f's_mul_i32 s15, s12, {2*TT}')
    A('v_lshlrev_b32 v8, 4, v1')
    if gs:
        skipmap(A, 26, 8, 1, 4)
        skipmap(A, 8, 8, 0, 4)
        A('v_subrev_u32 v26, 1024, v26')
    else:
        A('v_mov_b32 v26, v8')
    A('v_add_u32 v8, s15, v8')
    A('v_add_u32 v26, s15, v26')
    A(f'v_add_u32 v9, {TT}, v8')
    A(f'v_add_u32 v27, {TT}, v26')
    A('v_lshrrev_b32 v4, 3, v1')
    A('s_lshl_b32 s15, s12, 4')
    A('v_add_u32 v4, s15, v4')
    A('v_lshlrev_b32 v4, 11, v4')
    A('v_and_b32 v5, 1, v1')
    A('v_lshl_add_u32 v4, v5, 4, v4')
    A('v_lshrrev_b32 v5, 4, v1')
    A('v_and_b32 v5, 1, v5')
    A('v_lshrrev_b32 v6, 1, v1')
    A('v_and_b32 v6, 3, v6')
    A('v_xor_b32 v5, v5, v6')
    A('v_lshl_add_u32 v4, v5, 5, v4')
    A('v_xor_b32 v5, 64, v4')
    A(f'v_add_u32 v5, {16384 - 1024}, v5')
    A('v_lshrrev_b32 v6, 3, v1')
    A('v_cmp_eq_u32 vcc, 3, v6')
    A('v_cndmask_b32 v6, v6, 7, vcc')
    for hsel, (va, sr_) in enumerate(((10, 24), (12, 32))):
        if hsel == 0: A('s_mov_b32 s16, s11')
        else: A('s_xor_b32 s16, s11, 1')
        A('s_and_b32 s19, s16, 8')
        A('v_add_u32 v7, s19, v6')
        A('v_lshlrev_b32 v14, 7, v7')
        A('v_xor_b32 v15, 0x400, v14')
        A('s_and_b32 s15, s16, 7')
        A('s_lshl_b32 s16, s16, 7')
        A('v_mov_b32 v7, s16')
        A(f's_add_u32 s{sr_}, s4, {WC_OFF}')
        A(f's_addc_u32 s{sr_+1}, s5, 0')
        A(f's_cmp_eq_u32 s15, {3 if opt.get("wcopy", 1) else 9}')
        A('s_cselect_b64 vcc, -1, 0')
        A(f's_cselect_b32 s{sr_}, s{sr_}, s48')
        A(f's_cselect_b32 s{sr_+1}, s{sr_+1}, s49')
        A(f's_mov_b32 s{sr_+2}, {3584*2048}')
        A(f's_mov_b32 s{sr_+3}, 0x20000')
        A('v_cndmask_b32 v14, v7, v14, vcc')
        A('v_cndmask_b32 v15, v7, v15, vcc')
        A(f'v_add_u32 v{va}, v4, v14')
        A(f'v_add_u32 v{va+1}, v5, v15')
    A('s_lshl_b32 s44, s12, 11')
    A('s_add_u32 s44, s44, 16384')
    assert N1 == 24
    def mask(st_): return sum(1 << x for x in st_)
    def m64(r, m):
        A(f's_mov_b32 s{r}, {m & 0xffffffff}'); A(f's_mov_b32 s{r+1}, {m >> 32}')
    def sel64(r, m_true, m_false):
        for h in range(2):
            A(f's_mov_b32 s{r+h}, {(m_false >> (32*h)) & 0xffffffff}')
            A(f's_cselect_b32 s{r+h}, {(m_true >> (32*h)) & 0xffffffff}, s{r+h}')
    A('s_and_b32 s15, s9, 7')
    A('s_cmp_eq_u32 s15, 7')
    sel64(38, mask(range(0, 4)), mask(range(24, 28)))
    A('s_cmp_eq_u32 s15, 0')
    sel64(30, mask(range(52, 56)), mask(range(28, 32)))
    A('s_or_b64 s[38:39], s[38:39], s[30:31]')
    A('s_cmp_lg_u32 s8, 0')
    sel64(30, mask(range(28, 56)), mask(range(0, 28)))
    A('s_andn2_b64 s[30:31], s[30:31], s[38:39]')
    A('s_mul_i32 s15, s9, 7')
    A('s_add_u32 s15, s15, 1')
    A('s_lshr_b32 s36, s15, 1')
    A('s_lshl_b64 s[28:29], 7, s36')
    A('s_andn2_b64 s[30:31], s[30:31], s[28:29]')
    m64(64, mask([x for x in range(56) if x % 7 in (1, 2, 5, 6)]))
    A('s_and_b64 s[28:29], s[30:31], s[64:65]')
    A('s_andn2_b64 s[30:31], s[30:31], s[64:65]')
    NE = 15
    def nxt(r=28):
        A(f's_ff1_i32_b64 s61, s[{r}:{r+1}]')
        A(f's_bitset0_b64 s[{r}:{r+1}], s61')
    def seth(): A(f's_mul_i32 s41, s61, {hstep[0]}')
    def setw(): A('s_lshl_b32 s42, s61, 17')
    A(f's_mul_i32 s15, s10, {8*TT}')
    A(f's_add_u32 s15, s15, {GS_OFF if gs else G_OFF}')
    srd(A, 20, 4, 's15', 8 * TT)
    A('s_waitcnt vmcnt(0) lgkmcnt(0)')
    A('s_barrier')
    def issue_w2(lds, full):
        A(f's_add_u32 m0, {lds}, s44')
        A('s_nop 0')
        A(f'buffer_load_dwordx4 v10, s[24:27], s42 offen lds')
        A(f'buffer_load_dwordx4 v11, s[24:27], s42 offen offset:1024 lds')
        if full:
            A('s_add_u32 m0, m0, 8192')
            A('s_nop 0')
            A(f'buffer_load_dwordx4 v12, s[32:35], s42 offen lds')
            A(f'buffer_load_dwordx4 v13, s[32:35], s42 offen offset:1024 lds')
        A(f's_add_u32 s42, s42, {64*2048}')
    def slotadv():
        A(f's_add_u32 s40, s40, {SLOT}')
        A(f's_cmp_eq_u32 s40, {NS*SLOT}')
        A('s_cselect_b32 s40, 0, s40')
    def issue2(full, r=None):
        if r is not None: nxt(r); seth(); setw()
        issue_h('s40'); issue_w2('s40', full)
        slotadv()
    A('s_lshl_b32 s42, s36, 17')
    for k in (2, 3, 0): issue_w2(k * SLOT, True)
    A('s_lshl_b32 s15, s10, 11')
    A(f's_add_u32 s15, s15, {FL2}')
    A('s_lshl_b32 s61, s8, 3')
    A('v_min_u32 v17, 7, v1')
    A('v_add_u32 v17, s61, v17')
    A('v_lshlrev_b32 v17, 7, v17')
    A('s_barrier')
    nxt(); setw(); seth()
    issue_w2(SLOT, True)
    lst(1)
    A('s_barrier')
    lst(2)
    only0(f'{name}_noa', ['buffer_store_dword v20, v21, s[52:55], s14 offen sc1'])
    A('s_waitcnt vmcnt(4)')
    A('s_barrier')
    A('s_barrier')
    PE = opt.get('pe', 1)
    if PE: A('buffer_load_dword v38, v17, s[52:55], s15 offen sc1')
    A('s_barrier')
    if PE:
        A('s_waitcnt vmcnt(0)')
        A('v_cmp_ne_u32 vcc, 1, v38')
        A(f's_cbranch_vccz {name}_fl2_go')
    spin(A, f'{name}_fl2', 52, 15, 36, 17, 47, opt.get('pdepth', 2), opt.get('pgap', 2))
    lst(3)
    issue_h(SLOT)
    A(f's_mov_b32 s40, {2*SLOT}')
    issue2(True, 28); issue2(True, 28)
    A('s_waitcnt vmcnt(16)')
    lst(4)
    A('s_barrier')
    def loop(tag, n, r):
        A(f's_mov_b32 s18, {n}')
        A.label(f'{name}_{tag}')
        issue2(True, r)
        A('s_sub_u32 s18, s18, 1')
        A('s_cmp_lg_u32 s18, 0')
        A('s_waitcnt vmcnt(16)')
        A('s_barrier')
        A(f's_cbranch_scc1 {name}_{tag}')
    L0 = opt.get('l0', 0)
    loop('l2a', 2 + L0, 28)
    A('s_cmp_lg_u32 s12, 0')
    A(f's_cbranch_scc1 {name}_nob')
    A(f's_add_u32 s14, s14, {FL4 - FL2}')
    A('buffer_store_dword v20, v21, s[52:55], s14 offen sc1')
    A.label(f'{name}_nob')
    loop('l2b', NE - 9 - L0, 28)
    A(f's_add_u32 s15, s15, {FL4 - FL2}')
    A('v_and_b32 v17, 15, v1')
    A('v_lshlrev_b32 v17, 7, v17')
    A('buffer_load_dword v36, v17, s[52:55], s15 offen sc1')
    issue2(True, 28)
    A('s_waitcnt vmcnt(16)')
    A('s_barrier')
    A('s_waitcnt vmcnt(8)')
    A('v_cmp_ne_u32 vcc, 1, v36')
    A(f's_cbranch_vccz {name}_fl4_go')
    spin(A, f'{name}_fl4', 52, 15, 36, 17, 47, 1, 1)
    loop('l2c', N1 - NE, 30)
    cnt = lambda s: 0 if s >= NT else (8 if s < N1 else 6)
    for j in range(N1 - NS + 1, NT - 1):
        s = j + NS - 1
        if s < NT: issue2(False, 38)
        A(f's_waitcnt vmcnt({sum(cnt(x) for x in range(j + 2, j + NS))})')
        A('s_barrier')
    if opt.get('stamp') == 1:
        lst(5); lst(6, True); lst(8)
        A('s_cmp_lg_u32 s12, 0')
        A(f's_cbranch_scc1 {name}_end')
        lst.dump(9, 1, 60)

def gen_m(A, name='m_kernel', opt=None):
    opt = opt or {}
    khead(A, name)
    st = Stamper(A, opt.get('stamp'), 1)
    st(0); st(7, True)
    A('s_cmp_ge_u32 s2, 256')
    A(f's_cbranch_scc1 {name}_end')
    A('s_load_dwordx2 s[4:5], s[0:1], %d' % KA['ws'])
    A('s_load_dwordx2 s[6:7], s[0:1], %d' % KA['x'])
    A('v_lshrrev_b32 v2, 6, v0')
    A('v_and_b32 v1, 63, v0')
    A('v_readfirstlane_b32 s12, v2')
    A('s_cmp_ge_u32 s12, 4')
    A(f's_cbranch_scc1 {name}_loader')
    if opt.get('prio'): A(f's_setprio {opt["prio"]}')
    fb_compute(A, name, st, opt)
    late = g1_compute(A, name, st, opt)
    g2_compute(A, name, st, opt, late)
    A('s_waitcnt vmcnt(0)') if opt.get('stamp') else None
    st(5); st(6, True)
    st.dump(13, 0, 244)
    A('s_endpgm')
    A.label(f'{name}_loader')
    loaders(A, name, opt)
    A.label(f'{name}_end')
    A('s_endpgm')
    return dict(name=name, grid=256, block=512, lds=M_LDS, vgpr=256)
```

```python
from common import *
from g1 import w_voffs, tr_bases

HS = 16384; WS = 28672; WB0 = 3 * HS
XB = 32768; EB = WB0 + 3 * WS
SLOT = 32768
SGB = EB + 1024
SYB = SGB + 512
R1, D1, R2W, D2 = 0, 64, 128, 384
M_LDS = SYB
FULL = 0x01010101
PX_OFF = 29 * MB
FL_OFF = 38 * MB
GS_OFF = 40 * MB; GST = 3072; GTT = 56 * GST
FL1, FL2, FL3, FL4, FL5 = 0, 32768, 65536, 196608, 229376
FL_SIZE = 2048 * 128

def spin(A, tag, srdn, soff, vflag, vaddr, scnt, depth=4, gap=2):
    A(f's_mov_b32 s{scnt}, 400000')
    ld = lambda k: A(f'buffer_load_dword v{vflag+k}, v{vaddr}, s[{srdn}:{srdn+3}], s{soff} offen sc1')
    for k in range(depth - 1):
        ld(k); A(f's_sleep {gap}')
    A.label(f'{tag}_spin')
    for k in range(depth):
        ld((k + depth - 1) % depth)
        A(f's_waitcnt vmcnt({depth - 1})')
        A(f'v_cmp_ne_u32 vcc, 1, v{vflag+k}')
        A(f's_cbranch_vccz {tag}_go')
        A(f's_sleep {gap}')
    A(f's_sub_u32 s{scnt}, s{scnt}, 1')
    A(f's_cbranch_scc0 {tag}_spin')
    A.label(f'{tag}_go')

def skipmap(A, dst, src, odd, t):
    if odd:
        A(f'v_cmp_lt_u32 vcc, 255, v{src}')
        A(f'v_add_u32 v{dst}, {1024 + 128}, v{src}')
    else:
        A(f'v_cmp_lt_u32 vcc, 383, v{src}')
        if dst != src: A(f'v_mov_b32 v{dst}, v{src}')
    A(f'v_add_u32 v{t}, 128, v{dst}')
    A(f'v_cndmask_b32 v{dst}, v{dst}, v{t}, vcc')

def g1_decode(A):
    A('s_and_b32 s8, s2, 7')
    A('s_lshr_b32 s9, s2, 3')
    A('s_and_b32 s10, s8, 1')
    A('s_lshl_b32 s10, s10, 3')
    A('s_and_b32 s11, s9, 7')
    A('s_add_u32 s10, s10, s11')
    A('s_lshr_b32 s11, s8, 1')
    A('s_lshl_b32 s11, s11, 2')
    A('s_lshr_b32 s9, s9, 3')
    A('s_add_u32 s11, s11, s9')

def g2_decode(A):
    A('s_mov_b32 s9, s11')
    A('s_lshr_b32 s8, s9, 3')
    A('s_and_b32 s11, s9, 7')
    A('s_lshl_b32 s11, s11, 1')
    A('s_add_u32 s11, s11, s8')

def fb_compute(A, name, st, opt):
    A('s_and_b32 s13, s2, 7')
    A('s_lshr_b32 s14, s2, 3')
    A('s_sub_u32 s15, 16, s13')
    A('s_cmp_eq_u32 s13, 0')
    A('s_cselect_b32 s15, 8, s15')
    A('s_bitcmp1_b32 s14, 0')
    A('s_cselect_b32 s10, s15, s13')
    A('s_lshr_b32 s11, s14, 1')
    A('s_sub_u32 s16, 16, s10')
    A('s_and_b32 s16, s16, 15')
    A('s_sub_u32 s17, 15, s11')
    A('s_lshr_b32 s19, s11, 3')
    A('s_cmp_lg_u32 s19, 0')
    A('s_cselect_b32 s16, s16, s10')
    A('s_cselect_b32 s17, s17, s11')
    vn, vg = 2, 3
    A(f'v_and_b32 v{vn}, 15, v1')
    A(f'v_lshrrev_b32 v{vg}, 4, v1')
    A('v_lshrrev_b32 v6, 3, v1')
    A(f'v_and_b32 v7, 1, v{vg}')
    A('v_lshrrev_b32 v8, 1, v1')
    A('v_and_b32 v8, 3, v8')
    A('v_xor_b32 v7, v7, v8')
    A('v_lshlrev_b32 v7, 5, v7')
    A('v_lshl_add_u32 v4, v6, 10, v7')
    A('v_and_b32 v7, 1, v1')
    A('v_lshl_add_u32 v4, v7, 4, v4')
    A('v_add_u32 v7, s17, v6')
    A('v_and_b32 v7, 7, v7')
    A('v_lshl_add_u32 v4, v7, 7, v4')
    A('v_xor_b32 v5, 64, v4')
    A(f'v_add_u32 v5, {8192 - 1024}, v5')
    A('s_lshl_b32 s14, s16, 2')
    A('s_add_u32 s14, s14, s12')
    A('s_lshl_b32 s14, s14, 16')
    A('s_lshl_b32 s18, s12, 13')
    A(f'v_xor_b32 v8, v{vg}, v1')
    A('v_and_b32 v8, 7, v8')
    A('v_lshlrev_b32 v8, 4, v8')
    A('v_lshl_add_u32 v6, v6, 15, v8')
    A('v_xor_b32 v7, 64, v6')
    A(f'v_add_u32 v7, {8*32768 - 1024}, v7')
    A('s_lshl_b32 s61, s12, 19')
    A('s_lshl_b32 s15, s10, 11')
    A('s_add_u32 s61, s61, s15')
    A('s_lshl_b32 s15, s11, 7')
    A('s_add_u32 s61, s61, s15')
    A('s_lshl_b32 s62, s12, 12')
    A(f's_add_u32 s62, s62, {XB}')
    A('s_lshl_b32 s63, s10, 3')
    A('s_add_u32 s63, s63, s11')
    A('s_lshl_b32 s63, s63, 9')
    A('s_sub_u32 s63, s63, 512')
    A('s_sub_u32 s15, s11, 1')
    A('s_cmp_lt_u32 s15, 7')
    A('s_cselect_b32 s63, s63, 0x40000000')
    A('s_lshl_b32 s15, s16, 12')
    A('v_mov_b32 v9, s15')
    A('v_mov_b32 v10, s63')
    A('v_cmp_gt_u32 vcc, 32, v1')
    A('v_cndmask_b32 v9, v10, v9, vcc')
    A('v_lshl_add_u32 v9, v1, 4, v9')
    A(f'v_lshlrev_b32 v10, 6, v{vn}')
    A('s_lshl_b32 s15, s12, 8')
    A('s_add_u32 s15, s15, s10')
    A('s_lshl_b32 s15, s15, 2')
    A('s_waitcnt lgkmcnt(0)')
    srd(A, 20, 4, U_OFF, 4 * MB)
    srd(A, 28, 4, E_OFF, 65536)
    for h in range(4):
        A(f's_add_u32 m0, s18, {h*2048}')
        A('s_nop 0')
        A(f'buffer_load_dwordx4 v4, s[20:23], s14 offen lds')
        A(f'buffer_load_dwordx4 v5, s[20:23], s14 offen offset:1024 lds')
        if h < 3: A('s_add_u32 s14, s14, 16384')
    A(f's_mov_b32 m0, {EB}')
    srd(A, 24, 6, 0, 2048 * 2048)
    A('buffer_load_dwordx4 v9, s[28:31], 0 offen lds')
    FR = [16, 48]; EF = 80; B = [112, 144]; ACC = [176, 192]; MA = [208, 212]; VT = 216; VX = 220; X = [224, 232]; VB = 240; MXV = [241, 242]; VH = 243; VE = 244
    srd(A, 40, 4, MX_OFF, 8192)
    for u in range(2):
        A(f's_add_u32 m0, s62, {u*2048}')
        if u: A(f's_add_u32 s61, s61, {4 << 19}')
        else: A('s_nop 0')
        A('buffer_load_dwordx4 v6, s[24:27], s61 offen lds')
        A('buffer_load_dwordx4 v7, s[24:27], s61 offen offset:1024 lds')
    A('s_add_u32 s14, s15, 4096')
    A(f'buffer_load_dword v{MXV[0]}, v10, s[40:43], s15 offen')
    A(f'buffer_load_dword v{MXV[1]}, v10, s[40:43], s14 offen')
    A('s_lshl_b32 s15, s12, 4')
    A(f'v_add_u32 v6, s15, v{vn}')
    A('s_cmp_lg_u32 s10, 0')
    A('s_cselect_b32 s15, -1, 0')
    A('v_sub_u32 v7, s15, v6')
    A('s_cmp_lg_u32 s19, 0')
    A('s_cselect_b64 vcc, -1, 0')
    A('v_cndmask_b32 v6, v6, v7, vcc')
    A('v_and_b32 v6, 127, v6')
    A('v_cvt_f32_u32 v7, v6')
    A('v_mul_f32 v7, 0x3c000000, v7')
    A(f'v_lshlrev_b32 v10, 3, v{vg}')
    A('v_cvt_f32_u32 v10, v10')
    A('v_mul_f32 v10, v10, v7')
    B0 = B[0]
    for j in range(8):
        if j: A('v_add_f32 v10, v10, v7')
        A(f'v_cos_f32 v{12+(j&1)}, v10')
        A(f'v_sin_f32 v{14+(j&1)}, v10')
        if j & 1:
            A(f'v_cvt_pk_bf16_f32 v{B0+j//2}, v12, v13')
            A(f'v_cvt_pk_bf16_f32 v{B0+16+j//2}, v14, v15')
    A('v_and_b32 v8, 1, v6')
    A('v_cmp_eq_u32 vcc, 1, v8')
    A('v_mul_u32_u24 v8, 0x8000, v8')
    A('v_lshl_or_b32 v8, v8, 16, v8')
    A('v_and_b32 v10, 2, v6')
    A('v_mul_u32_u24 v10, 0x4000, v10')
    A('v_lshl_or_b32 v10, v10, 16, v10')
    A('v_xor_b32 v11, v10, v8')
    for k in range(4):
        A(f'v_cndmask_b32 v12, v{B0+k}, v{B0+16+k}, vcc')
        A(f'v_cndmask_b32 v13, v{B0+16+k}, v{B0+k}, vcc')
        A(f'v_xor_b32 v{B0+4+k}, v11, v12')
        A(f'v_xor_b32 v{B0+20+k}, v10, v13')
    for k in range(8):
        A(f'v_xor_b32 v{B0+8+k}, v8, v{B0+k}')
        A(f'v_xor_b32 v{B0+24+k}, v8, v{B0+16+k}')
    A('s_brev_b32 s15, 1')
    for k in range(32): A(f'v_xor_b32 v{B[1]+k}, s15, v{B0+k}')
    A(f'v_lshrrev_b32 v10, 2, v{vn}')
    A(f'v_lshl_add_u32 v10, v{vg}, 3, v10')
    A(f'v_lshrrev_b32 v11, 3, v{vn}')
    A(f'v_and_b32 v12, 1, v{vg}')
    A('v_lshl_add_u32 v11, v12, 1, v11')
    A('v_lshlrev_b32 v11, 5, v11')
    A('v_lshl_add_u32 v10, v10, 7, v11')
    A(f'v_and_b32 v11, 3, v{vn}')
    A(f'v_lshl_add_u32 v{VT}, v11, 3, v10')
    A('s_mul_i32 s15, s19, 96')
    A(f'v_xor_b32 v{VT}, s15, v{VT}')
    for i in range(1, 4): A(f'v_xor_b32 v{VT+i}, {(2*(i&1) + (i>>1))*32}, v{VT}')
    A(f'v_and_b32 v11, 1, v{vn}')
    A('v_lshlrev_b32 v11, 9, v11')
    A(f'v_lshl_add_u32 v11, v{vg}, 4, v11')
    A(f'v_add_u32 v{VE}, {EB}, v11')
    A('s_mul_i32 s15, s19, 3')
    A(f'v_xor_b32 v10, s15, v{vg}')
    A('v_lshrrev_b32 v11, 1, v10')
    A(f'v_lshrrev_b32 v12, 1, v{vn}')
    A('v_xor_b32 v11, v11, v12')
    A('v_lshlrev_b32 v11, 4, v11')
    A(f'v_lshl_add_u32 v11, v{vn}, 7, v11')
    A('v_and_b32 v12, 1, v10')
    A('v_lshl_add_u32 v11, v12, 3, v11')
    A(f'v_add_u32 v{VX}, s62, v11')
    for i in range(1, 4): A(f'v_xor_b32 v{VX+i}, {32*i}, v{VX}')
    A(f'v_lshl_add_u32 v10, v10, 4, v{vn}')
    A(f'v_lshlrev_b32 v{VH}, 4, v10')
    A('v_add_u32 v10, 48, v1')
    A('v_and_b32 v10, 63, v10')
    A(f'v_lshlrev_b32 v{VB}, 2, v10')
    A(f'v_cmp_eq_u32 s[46:47], 0, v{vg}')
    srd(A, 52, 4, HF_OFF, 4 * MB)
    srd(A, 56, 4, ST_OFF, 2048 * 128)
    A('s_cmp_eq_u32 s11, 0')
    A('s_cselect_b32 s15, 8192, 0')
    srd(A, 32, 4, MU_OFF, 's15')
    srd(A, 36, 4, FL_OFF, FL_SIZE)
    A('s_lshl_b32 s13, s10, 3')
    A('s_add_u32 s13, s13, s12')
    st(1)
    A('s_waitcnt vmcnt(6)')
    A('s_barrier')
    st(2)
    def frag(i, p): return FR[i & 1] + 4 * p
    def rd(h):
        i = h >> 1
        return [f'ds_read_b64_tr_b16 {vr(frag(i,p)+2*r2,2)}, v{VT+i} offset:{(32*p+4*r2)*128}' for p in range(4*(h & 1), 4*(h & 1) + 4) for r2 in range(2)]
    def mf(d, a, b, z): return f'v_mfma_f32_16x16x32_bf16 {vr(d,4)}, {vr(a,4)}, {vr(b,4)}, {"0" if z else vr(d,4)}'
    def half(h): return [mf(ACC[u] + 4*(h >> 1), frag(h >> 1, p), B[u] + 4*p, p == 0) for p in range(4*(h & 1), 4*(h & 1) + 4) for u in range(2)]
    ONE = 4; S = [5, 7]; Q = [6, 8]; TM = EF; OUT = EF + 16
    E = AutoLgkm(A)
    for x in rd(0) + [f'ds_read_b128 {vr(EF+4*p,4)}, v{VE} offset:{64*p}' for p in range(8)]: E(x)
    for x in weave(half(0), rd(1), per=2): E(x)
    for x in weave([mf(MA[u], EF + 4*p, B[u] + 4*p, p == 0) for p in range(8) for u in range(2)], rd(2), per=1): E(x)
    misc = [f'v_mov_b32 v{ONE}, 0x3f803f80'] + [f'v_mov_b32 v{r}, 0' for r in S + Q] + [f'v_lshlrev_b32 v9, 2, v{vn}', 's_lshl_b32 s60, s13, 6',
            's_lshl_b32 s14, s13, 15', 's_lshl_b32 s15, s11, 11', 's_add_u32 s14, s14, s15', 's_add_u32 s15, s14, 0x20000']
    for x in weave(half(1), rd(3) + misc, per=3): E(x)
    xr = ['s_waitcnt vmcnt(0)'] + [f'ds_read_b64 {vr(X[u]+2*k2,2)}, v{VX+k2} offset:{u*2048}' for k2 in range(4) for u in range(2)]
    for x in weave(half(2), rd(4) + xr, per=3): E(x)
    for x in weave(half(3), rd(5) + [f'v_add_f32 v{MA[u]}, v{MA[u]}, v{MXV[u]}' for u in range(2)], per=2): E(x)
    def epi(V, pr):
        out = []
        for u in range(2):
            o = OUT + 8*u + 4*pr
            for i2 in range(2):
                i = 2*pr + i2; t = TM + 8*u + 4*i2
                for q in range(2):
                    r_ = X[u] + 2*i + q
                    out += [f'v_lshlrev_b32 v{t+2*q}, 16, v{r_}', f'v_and_b32 v{t+1+2*q}, 0xffff0000, v{r_}']
                out += [f'v_sub_f32 v{t+r}, v{t+r}, v{MA[u]}' for r in range(4)]
                out += [f'v_add_f32 v{t+r}, v{t+r}, v{V[u][i][r]}' for r in range(4)]
                out += [f'v_cvt_pk_bf16_f32 v{o+2*i2+q}, v{t+2*q}, v{t+1+2*q}' for q in range(2)]
            out.append(f'buffer_store_dwordx4 {vr(o,4)}, v{VH}, s[52:55], s{14+u} offen offset:{pr*1024} sc1')
        return out
    def dots(pr): return [x for u in range(2) for k in range(4) for x in
                          (f'v_dot2_f32_bf16 v{S[u]}, v{OUT+8*u+4*pr+k}, v{ONE}, v{S[u]}', f'v_dot2_f32_bf16 v{Q[u]}, v{OUT+8*u+4*pr+k}, v{OUT+8*u+4*pr+k}, v{Q[u]}')]
    RP = 10; SH = 248
    A('s_cmp_lg_u32 s19, 0')
    A(f's_cbranch_scc1 {name}_up')
    pend0 = list(E.pend)
    for lower in (1, 0):
        if not lower:
            A.label(f'{name}_up'); A('s_nop 7'); E.pend = list(pend0)
        if lower:
            V = [[[SH+4*u+i, ACC[u]+4*i, ACC[u]+4*i+1, ACC[u]+4*i+2] for i in range(4)] for u in range(2)]
            def rot(i): return [f'ds_bpermute_b32 v{RP+3*u+(i%3)}, v{VB}, v{ACC[u]+4*i+3}' for u in range(2)]
            def sel(i): return [f'v_cndmask_b32 v{SH+4*u+i}, v{RP+3*u+(i%3)}, v{RP+3*u+((i-1)%3) if i else MA[u]+1}, s[46:47]' for u in range(2)]
        else:
            V = [[[ACC[u]+4*i+3-r for r in range(4)] for i in range(4)] for u in range(2)]
            rot = sel = lambda i: []
        for x in weave(half(4), rot(0) + rd(6) + rot(1), per=2): E(x)
        e0 = sel(0) + sel(1) + epi(V, 0)
        for x in weave(half(5), rd(7) + e0[:16], per=3): E(x)
        for x in weave(half(6) + half(7), rot(2) + e0[16:] + dots(0), start=2, per=4): E(x)
        e1 = epi(V, 1)
        hst = [x for x in e1 if x.startswith('buffer_store')]
        for x in rot(3) + sel(2) + sel(3) + [x for x in e1 if x not in hst]: E(x)
        E.drain()
        if lower: A(f's_branch {name}_join')
    A.label(f'{name}_join')
    st(3)
    A('s_waitcnt vmcnt(0)')
    A('s_barrier')
    st(4)
    for x in dots(1)[:8] + hst + dots(1)[8:]: A(x)
    A(f'buffer_store_dword v{MA[0]}, v9, s[32:35], s60 offen sc1')
    A(f'buffer_store_dword v{MA[1]}, v9, s[32:35], s60 offen offset:256 sc1')
    A(f'v_lshlrev_b32 v40, 7, v{vn}')
    A(f'v_lshrrev_b32 v41, 1, v{vg}')
    A('v_lshl_add_u32 v40, v41, 2, v40')
    A('s_lshl_b32 s14, s13, 11')
    A('s_lshl_b32 s15, s11, 3')
    A('s_add_u32 s14, s14, s15')
    A('s_add_u32 s15, s14, 8192')
    for u in range(2): A(f'v_permlane32_swap_b32 v{S[u]}, v{Q[u]}')
    for u in range(2): A(f'v_add_f32 v{S[u]}, v{S[u]}, v{Q[u]}')
    for u in range(2): A(f'v_mov_b32 v{Q[u]}, v{S[u]}')
    for u in range(2): A(f'v_permlane16_swap_b32 v{S[u]}, v{Q[u]}')
    for u in range(2): A(f'v_add_f32 v{S[u]}, v{S[u]}, v{Q[u]}')
    for u in range(2): A(f'buffer_store_dword v{S[u]}, v40, s[56:59], s{14+u} offen sc1')

def drained(A):
    A('s_waitcnt vmcnt(0)')
    A('s_barrier')

def g1_compute(A, name, st, opt):
    WB = [8, 36]; ACC = 64; HB = [176, 192]
    vAh, cAh, VW, CW = 2, 3, 208, 216
    g1_decode(A)
    A('s_and_b32 s13, s12, 1')
    A('s_lshr_b32 s14, s12, 1')
    A('s_lshl_b32 s15, s13, 13')
    A(f'v_lshlrev_b32 v{vAh}, 4, v1')
    A(f'v_add_u32 v{vAh}, s15, v{vAh}')
    tr_bases(A, 44, 45, 1, 48)
    A('s_cmp_lg_u32 s14, 0')
    A('s_cselect_b64 vcc, -1, 0')
    def gaddr(dst, lam):
        if lam < 12:
            A(f'v_xor_b32 v{dst}, {32*(lam&3)}, v44')
            A(f'v_add_u32 v{dst}, {WB0 + (lam>>2)*1024}, v{dst}')
        else:
            A(f'v_xor_b32 v{dst}, {32*(lam&1)}, v45')
            A(f'v_add_u32 v{dst}, {WB0 + 6144}, v{dst}')
    for k, (l0, l1) in enumerate(zip([4, 5, 2, 3, 0, 1, 6], [8, 9, 10, 11, 12, 13, 7])):
        gaddr(46, l0); gaddr(47, l1)
        A(f'v_cndmask_b32 v{VW+k}, v46, v47, vcc')
    A(f'v_mov_b32 v{cAh}, v{vAh}')
    for k in range(7): A(f'v_mov_b32 v{CW+k}, v{VW+k}')
    for i in range(112): A(f'v_mov_b32 v{ACC+i}, 0')
    A('s_lshl_b32 s15, s10, 1')
    A('s_add_u32 s15, s15, s13')
    gs = opt.get('gskip', 1); TT = GTT if gs else 112 * 1024
    A('s_mul_i32 s15, s15, %d' % (4 * TT))
    A('s_add_u32 s15, s15, %d' % (GS_OFF if gs else G_OFF))
    srd(A, 20, 4, 's15', 4 * TT)
    A('s_mov_b32 s17, 0')
    A('s_mov_b32 s19, 0')
    A('s_mov_b32 s18, 0')
    BV = 240; H2 = 224
    A('s_load_dwordx2 s[24:25], s[0:1], %d' % KA['b1'])
    A('s_and_b32 s52, s11, 1')
    A('s_mul_i32 s15, s11, 7')
    A('s_add_u32 s16, s15, s52')
    A('s_add_u32 s56, s16, 3')
    A('s_cmp_lg_u32 s14, 0')
    A('s_cselect_b32 s53, 4, 2')
    A('s_cselect_b32 s54, 5, 1')
    A('s_cselect_b32 s55, 6, 0')
    for r in (53, 54, 55): A(f's_add_u32 s{r}, s{r}, s16')
    A('s_and_b32 s52, s52, s14')
    A('s_cmp_lg_u32 s52, 0')
    A('s_cselect_b32 s55, s15, s55')
    for r in (53, 54, 55, 56): A(f's_lshl_b32 s{r+4}, s{r}, 6')
    A('s_lshl_b32 s15, s14, 5')
    A('s_add_u32 s60, s60, s15')
    A('v_and_b32 v44, 15, v1')
    A('v_lshlrev_b32 v44, 1, v44')
    A('s_mov_b32 s26, 7168')
    A('s_mov_b32 s27, 0x20000')
    A('s_waitcnt lgkmcnt(0)')
    for i in range(7):
        so, off = 57 + i // 2, (32*(i&1) if i < 6 else 0)
        A(f'buffer_load_ushort v{BV+i}, v44, s[24:27], s{so} offen offset:{off}')
    A('s_barrier')
    A('s_waitcnt vmcnt(0)')
    def reads(s, buf):
        r = []
        for j in range(4):
            r.append(f'ds_read_b128 {vr(HB[buf]+4*j,4)}, v{cAh} offset:{(2*j+s)*1024}')
        for i in range(7):
            for rd in range(2):
                r.append(f'ds_read_b64_tr_b16 {vr(WB[buf]+4*i+2*rd,2)}, v{CW+i} offset:{(2*s + rd) * 7168}')
        return r
    def step(buf, rds, tail=None, nowait=False):
        k = 0; n = 0
        for i in range(7):
            for jj in range(4):
                j = jj if (i & 1) == 0 or opt.get('nosnake') else 3 - jj
                ii = i
                if opt.get('jmajor'):
                    j, ii = (i*4 + jj) // 7, (i*4 + jj) % 7
                    if j & 1: ii = 6 - ii
                mfma(A, ACC + (ii*4+j)*4, WB[buf] + 4*ii, HB[buf] + 4*j)
                if k < len(rds): A(rds[k]); k += 1
                n += 1
                if tail and n - 20 in tail:
                    for t in tail[n - 20]: A(t)
        if not nowait: A('s_waitcnt lgkmcnt(0)')
    A('s_barrier')
    st(8)
    for r in reads(0, 0): A(r)
    A('s_waitcnt lgkmcnt(0)')
    A(f's_branch {name}_g1mid')
    tailB = {-4: [f's_add_u32 s17, s17, {HS}', f's_add_u32 s19, s19, {WS}'], -3: [f's_cmp_eq_u32 s17, {3*HS}', 's_cselect_b32 s17, 0, s17'],
             -2: ['s_cselect_b32 s19, 0, s19', 's_add_u32 s18, s18, 1'], -1: [f'v_add_u32 v{cAh}, s17, v{vAh}', 's_cmp_le_u32 s18, 14']}
    for k in range(7): tailB[k] = [f'v_add_u32 v{CW+k}, s19, v{VW+k}']
    A('.p2align 6')
    A.label(f'{name}_g1loop')
    A('s_barrier')
    step(1, reads(0, 0))
    A.label(f'{name}_g1mid')
    step(0, reads(1, 1), tailB)
    A(f's_cbranch_scc1 {name}_g1loop')
    A('s_barrier')
    gs = opt.get('gskip', 1)
    order = [6, 0, 1, 2, 3, 4, 5]
    SG = 4
    def wset(k): return WB[0] + 8 * (k % 3)
    def wrd(k):
        i = order[k]
        return [f'ds_read_b64_tr_b16 {vr(wset(k)+4*s_+2*rd,2)}, v{CW+i} offset:{(2*s_ + rd) * 7168}' for s_ in range(2) for rd in range(2)]
    BT = 32
    ST4 = [208, 212, 248, 252]
    A('v_and_b32 v2, 15, v1')
    A('s_lshl_b32 s15, s13, 8')
    A(f's_add_u32 s15, s15, {SGB}')
    A('v_lshl_add_u32 v2, v2, 2, s15')
    pre = [f'ds_read_b128 {vr(HB[0]+4*j,4)}, v{cAh} offset:{(2*j)*1024}' for j in range(4)] + wrd(0) + \
          [f'ds_read_b128 {vr(H2+4*j,4)}, v{cAh} offset:{(2*j+1)*1024}' for j in range(4)] + \
          [f'ds_read_b32 v{ST4[j]}, v2 offset:{64*j}' for j in range(4)] + wrd(1)
    setup = []
    for j in range(4):
        for k in range(1, 4): setup.append(f'v_mov_b32 v{ST4[j]+k}, 0')
    for k in range(1, 4): setup.append(f'v_mov_b32 v{BT+k}, 0')
    addr = []
    for r in (53, 54, 55, 56):
        addr += [f's_lshr_b32 s{r}, s{r}, 1', f's_mul_i32 s{r}, s{r}, {GST}'] if gs else [f's_lshl_b32 s{r}, s{r}, 10']
    class L(list):
        def __call__(self, t): self.append(t)
    va = L()
    va('v_and_b32 v4, 15, v1'); va('v_lshlrev_b32 v4, 4, v4'); va('v_and_b32 v6, 16, v1'); va('v_and_b32 v7, 32, v1')
    va('v_lshl_add_u32 v5, v7, 3, v4'); va('v_lshl_add_u32 v4, v6, 5, v5'); va('v_lshrrev_b32 v6, 1, v6'); va('s_lshl_b32 s19, s14, 9')
    va('v_add3_u32 v5, v5, v6, s19')
    if gs:
        skipmap(va, 6, 4, 1, 2); skipmap(va, 4, 4, 0, 2); skipmap(va, 5, 5, 1, 2)
        va('s_cmp_lg_u32 s52, 0'); va('s_cselect_b64 vcc, -1, 0'); va('v_cndmask_b32 v7, v4, v6, vcc')
    else:
        va('v_mov_b32 v6, v4'); va('v_mov_b32 v7, v4')
    def acc(i, j): return ACC + (i*4+j)*4
    def epi_tile(i, j, d):
        a = acc(i, j)
        return [f'v_max_f32 v{a+r}, 0, v{a+r}' for r in range(4)] + \
               [f'v_pk_mul_f32 {vr(a,2)}, {vr(a,2)}, {vr(a,2)}', f'v_pk_mul_f32 {vr(a+2,2)}, {vr(a+2,2)}, {vr(a+2,2)}',
                f'v_cvt_pk_bf16_f32 v{d}, v{a}, v{a+1}', f'v_cvt_pk_bf16_f32 v{d+1}, v{a+2}, v{a+3}']
    late = []
    def epi(i):
        out = []
        for j in range(4):
            if i == 6:
                out += epi_tile(i, j, acc(i, j))
                out.append(f'buffer_store_dwordx2 {vr(acc(i,j),2)}, v5, s[20:23], s56 offen sc1')
                if j < 3: out.append(f's_add_u32 s56, s56, {TT}')
            elif i % 2 == 0:
                out += epi_tile(i, j, acc(i, j))
            else:
                d = acc(i - 1, j)
                out += epi_tile(i, j, d + 2)
                out += [f'v_permlane16_swap_b32 v{d}, v{d+2}', f'v_permlane16_swap_b32 v{d+1}, v{d+3}']
                pp = i // 2
                dst = out if pp < 2 else late
                dst.append(f'buffer_store_dwordx4 {vr(d,4)}, v{[4, 6, 7][pp]}, s[20:23], s{53+pp} offen sc1')
                if j < 3: dst.append(f's_add_u32 s{53+pp}, s{53+pp}, {TT}')
        return out
    for k, i in enumerate(order):
        mf = [(acc(i, j), WB[1] + 4*i, HB[1] + 4*j) for j in range(4)] + [(acc(i, j), wset(k), HB[0] + 4*j) for j in range(4)] + \
             [(acc(i, j), wset(k) + 4, H2 + 4*j) for j in range(4)] + [(acc(i, j), BT, ST4[j]) for j in range(4)]
        if k == 0:
            fill = pre + addr + list(va) + setup
        else:
            fill = (wrd(k + 1) if k + 1 < 7 else []) + epi(order[k - 1])
        per = -(-len(fill) // 15)
        fi = 0
        for n, (d, a, b) in enumerate(mf):
            if k == 0 and n == 4:
                for x in fill[fi:len(pre)]: A(x)
                fi = max(fi, len(pre))
                A('s_waitcnt lgkmcnt(14)')
            if k == 0 and n == 8: A('s_waitcnt lgkmcnt(8)')
            if k == 0 and n == 12:
                for x in fill[fi:]: A(x)
                fi = len(fill)
                A('s_waitcnt vmcnt(0) lgkmcnt(4)')
                A('v_cmp_gt_u32 vcc, 16, v1')
                for j in range(4): A(f'v_cndmask_b32 v{ST4[j]}, 0, v{ST4[j]}, vcc')
            if k > 0 and n == 4: A(f's_waitcnt lgkmcnt({4 if k + 1 < 7 else 0})')
            if n == 10 and k > 0 or (k == 0 and n == 12): A(f'v_mov_b32 v{BT}, v{BV+i}')
            mfma(A, d, a, b)
            if k == 6 and n == 4:
                A('s_barrier')
                st(9)
            for _ in range(per):
                if fi < len(fill): A(fill[fi]); fi += 1
        for x in fill[fi:]: A(x)
    for x in epi(5): A(x)
    return late

def g2_compute(A, name, st, opt, late):
    NS = 4; N2 = opt.get('n2', 8); N1 = (56 - N2) // 2
    SIG = opt.get('sig', 2); POLL = opt.get('poll', 4)
    AO = 8; AX = 40; HB = [72, 88]; WO = [104, 112]; WX = [120, 128]; EP = 136; PR = 224
    vAh, vAw, cAh, cAw, vAw1, cAw1, vL16, vFl = 176, 177, 178, 179, 180, 181, 182, 183
    A('s_load_dwordx2 s[50:51], s[0:1], %d' % KA['b2'])
    A('s_load_dwordx2 s[48:49], s[0:1], %d' % KA['out'])
    A('v_and_b32 v8, 15, v1')
    A('v_lshlrev_b32 v8, 4, v8')
    A('v_and_b32 v10, 16, v1')
    A('v_and_b32 v11, 32, v1')
    A('v_lshl_add_u32 v9, v11, 3, v8')
    A('v_lshl_add_u32 v8, v10, 5, v9')
    A('v_lshrrev_b32 v10, 1, v10')
    A('s_lshl_b32 s15, s13, 13')
    A('s_lshl_b32 s16, s14, 9')
    A('s_add_u32 s16, s16, s15')
    A(f's_add_u32 s16, s16, {3*SLOT + 1024}')
    A('v_add3_u32 v9, v9, v10, s16')
    A('v_add_u32 v8, s15, v8')
    A('s_cmp_lg_u32 s14, 0')
    for k, (b0, b1) in enumerate(((3*SLOT, 0), (2*SLOT + 1024, 1024), (2*SLOT, 0x40000))):
        A(f's_mov_b32 s16, {b0}')
        A(f's_cselect_b32 s16, {b1}, s16')
        A(f'v_add_u32 v{10+k}, s16, v8')
    wr_ = [f'ds_write_b128 v{10+k}, {vr(64+32*k+4*j,4)} offset:{2048*j}' for k in (2, 1, 0) for j in range(4)]
    wr_ += [f'ds_write_b64 v9, {vr(160+4*j,2)} offset:{2048*j}' for j in range(4)]
    ad = [f'v_lshlrev_b32 v{vL16}, 4, v1', f'v_add_u32 v{vAh}, s15, v{vL16}', 'v_lshrrev_b32 v184, 2, v1', 'v_and_b32 v184, 3, v184',
          'v_lshrrev_b32 v185, 4, v1', 'v_lshl_add_u32 v184, v185, 3, v184', 'v_lshrrev_b32 v186, 3, v1', 'v_and_b32 v186, 3, v186',
          'v_lshlrev_b32 v186, 5, v186', 'v_lshl_add_u32 v184, v184, 7, v186', 'v_and_b32 v186, 3, v1', f'v_lshl_add_u32 v{vAw}, v186, 3, v184',
          's_lshl_b32 s16, s14, 6', f'v_xor_b32 v{vAw}, s16, v{vAw}', f'v_add_u32 v{vAw}, 16384, v{vAw}', f'v_xor_b32 v{vAw1}, 32, v{vAw}',
          f'v_add_u32 v{cAh}, {2*SLOT}, v{vAh}', f'v_add_u32 v{cAw}, {2*SLOT}, v{vAw}', f'v_add_u32 v{cAw1}, {2*SLOT}, v{vAw1}', f'v_mov_b32 v{vFl}, 0']
    ad += [f'v_mov_b32 v{192+k}, v{128+k}' for k in range(16)]
    for x in weave(wr_[:8], ad[:16], per=2): A(x)
    A('s_waitcnt vmcnt(0)')
    A('s_barrier')
    st(10)
    for x in weave(wr_[8:], ad[16:], per=3): A(x)
    for k in range(4): A(f's_mov_b32 s{64+k}, s{20+k}' if k < 3 else 's_mov_b32 s67, 0x20000')
    A('s_mov_b32 s68, s55')
    A(f's_mov_b32 s17, {2*SLOT}')
    TT = GTT if opt.get('gskip', 1) else 112 * 1024
    def late_store(k): return [f'buffer_store_dwordx4 {vr(192+4*k,4)}, v7, s[64:67], s68 offen sc1', f's_add_u32 s68, s68, {TT}']
    def setup():
        g2_decode(A)
        A('s_lshl_b32 s15, s10, 1')
        A('s_add_u32 s15, s15, s13')
        A('s_lshl_b32 s16, s15, 17')
        A(f's_add_u32 s16, s16, {HF_OFF}')
        A('s_lshl_b32 s19, s15, 8')
        A(f's_add_u32 s19, s19, {MU_OFF}')
        A('s_lshl_b32 s54, s2, 2')
        A('s_add_u32 s54, s54, s12')
        A('s_xor_b32 s55, s54, 16')
        A('s_lshl_b32 s56, s54, 12')
        A('s_lshl_b32 s57, s55, 12')
        A('s_lshl_b32 s54, s54, 7')
        A('s_lshl_b32 s55, s55, 7')
        A(f's_add_u32 s54, s54, {FL3}')
        A(f's_add_u32 s55, s55, {FL3}')
        srd(A, 20, 4, 's16', 128 * 1024)
        srd(A, 44, 4, 's19', 256)
        A(f's_add_u32 s19, s19, {R2_OFF - MU_OFF}')
        srd(A, 24, 4, 's19', 256)
        srd(A, 28, 50, 0, 2048)
        srd(A, 32, 48, 0, 2048 * 2048)
        srd(A, 40, 4, PX_OFF, 4 * MB)
    A('s_waitcnt lgkmcnt(0)')
    def reads(s, buf, full):
        r = []
        for i in range(2):
            for rd in range(2):
                r.append(f'ds_read_b64_tr_b16 {vr(WO[buf]+4*i+2*rd,2)}, v{cAw1 if i else cAw} offset:{4096*s + 512*rd}')
        for j in range(4):
            r.append(f'ds_read_b128 {vr(HB[buf]+4*j,4)}, v{cAh} offset:{(2*j+s)*1024}')
        if full:
            for i in range(2):
                for rd in range(2):
                    r.append(f'ds_read_b64_tr_b16 {vr(WX[buf]+4*i+2*rd,2)}, v{cAw1 if i else cAw} offset:{8192 + 4096*s + 512*rd}')
        return r
    ADV = [[f's_add_u32 s17, s17, {SLOT}', f's_cmp_eq_u32 s17, {NS*SLOT}'], ['s_cselect_b32 s17, 0, s17', f'v_add_u32 v{cAh}, s17, v{vAh}'],
           [f'v_add_u32 v{cAw}, s17, v{vAw}'], [f'v_add_u32 v{cAw1}, s17, v{vAw1}']]
    def step(buf, full, rds, tail=(), xfirst=False, zero=False):
        seq = []
        order = ([(AX, WX)] if full else []) + [(AO, WO)] if xfirst else [(AO, WO)] + ([(AX, WX)] if full else [])
        for acc, W in order:
            for i in range(2):
                for jj in range(4):
                    j = jj if i == 0 else 3 - jj
                    seq.append((acc + (i*4+j)*4, W[buf] + 4*i, HB[buf] + 4*j))
        per = 1 if len(rds) + len(tail) <= len(seq) else 2
        fill = [[x] for x in rds]
        if per == 2: fill = [sum(fill[k:k+2], []) for k in range(0, len(fill), 2)]
        fill += list(tail)
        for n, (d, a, b) in enumerate(seq):
            mfma(A, d, a, b, '0' if zero else None)
            if n < len(fill):
                for x in fill[n]: A(x)
        for f in fill[len(seq):]:
            for x in f: A(x)
        A('s_waitcnt lgkmcnt(0)')
    A('s_barrier')
    st(11)
    for r in reads(0, 0, True): A(r)
    setup()
    A('s_lshl_b32 s16, s11, 1')
    A('s_add_u32 s16, s16, s14')
    A('s_lshl_b32 s19, s16, 10')
    for j in range(4):
        A(f'buffer_load_dwordx4 {vr(EP+4*j,4)}, v{vL16}, s[20:23], s19 offen sc1')
        if j < 3: A('s_add_u32 s19, s19, 32768')
    A(f'v_and_b32 v{PR}, 15, v1')
    A(f'v_lshlrev_b32 v{PR}, 2, v{PR}')
    for j in range(4):
        A(f'buffer_load_dword v{EP+16+j}, v{PR}, s[24:27], 0 offen offset:{64*j} sc1')
        A(f'buffer_load_dword v{EP+24+j}, v{PR}, s[44:47], 0 offen offset:{64*j} sc1')
    A(f'v_lshrrev_b32 v{PR+1}, 4, v1')
    A(f'v_lshlrev_b32 v{PR+1}, 3, v{PR+1}')
    A('s_lshl_b32 s19, s16, 6')
    A(f'buffer_load_dwordx2 {vr(EP+20,2)}, v{PR+1}, s[28:31], s19 offen')
    A(f'buffer_load_dwordx2 {vr(EP+22,2)}, v{PR+1}, s[28:31], s19 offen offset:32')
    A('s_waitcnt lgkmcnt(0)')
    L0 = opt.get('l0', 0)
    step(0, True, reads(1, 1, True), ADV[:3] + [ADV[3] + (late_store(0) if L0 == 0 else [])], zero=True)
    for k in range(1, L0 + 4):
        A('s_barrier')
        step(1, True, reads(0, 0, True), [late_store(k - L0)] if k >= L0 else [])
        step(0, True, reads(1, 1, True), ADV)
    A(f's_mov_b32 s18, {L0 + 4}')
    A('.p2align 6')
    A.label(f'{name}_g2loop')
    A('s_barrier')
    step(1, True, reads(0, 0, True), [['s_waitcnt vmcnt(0)']])
    step(0, True, reads(1, 1, True), ADV[:3] + [ADV[3] + ['s_add_u32 s18, s18, 1', f's_cmp_lt_u32 s18, {N1}']])
    A(f's_cbranch_scc1 {name}_g2loop')
    A('s_mov_b32 s59, 0')
    A('s_mov_b32 s58, 400000')
    def check(tag, sp):
        A('s_cmp_lg_u32 s59, 0')
        A(f's_cbranch_scc1 {name}_done{tag}')
        A.label(f'{name}_poll{tag}')
        A('s_waitcnt vmcnt(0)')
        A(f'v_readfirstlane_b32 s59, v{PR+16}')
        A('s_cmp_eq_u32 s59, 1')
        A(f's_cbranch_scc1 {name}_got{tag}')
        A('s_mov_b32 s59, 0')
        if sp:
            A('s_sub_u32 s58, s58, 1')
            A(f's_cbranch_scc1 {name}_got{tag}')
            A('s_sleep 1')
        A(f'buffer_load_dword v{PR+16}, v{vFl}, s[36:39], s55 offen sc1')
        A(f's_branch {name}_poll{tag}' if sp else f's_branch {name}_done{tag}')
        A.label(f'{name}_got{tag}')
        for k in range(4):
            A(f'buffer_load_dwordx4 {vr(PR+4*k,4)}, v{vL16}, s[40:43], s57 offen offset:{k*1024} sc1')
        A.label(f'{name}_done{tag}')
    B = 184; C = 192
    pre = {1: ['v_and_b32 v6, 15, v1', 'v_lshlrev_b32 v6, 15, v6', 'v_lshrrev_b32 v7, 4, v1', 'v_and_b32 v2, 1, v7', 'v_lshl_add_u32 v6, v2, 5, v6',
               'v_lshrrev_b32 v7, 1, v7', 'v_lshl_add_u32 v6, v7, 4, v6', 's_lshl_b32 s19, s10, 11', 's_lshl_b32 s15, s13, 21', 's_add_u32 s19, s19, s15',
               's_lshl_b32 s16, s16, 6', 's_add_u32 s19, s19, s16', 's_mov_b32 s60, 0x3f80', 's_mov_b32 s61, 0x3f800000']}
    for i in range(2):
        for q in range(2):
            pre[1] += [f'v_lshlrev_b32 v{B+4*i+2*q}, 16, v{EP+20+2*i+q}', f'v_and_b32 v{B+4*i+2*q+1}, 0xffff0000, v{EP+20+2*i+q}']
    for j in range(4):
        l = pre.setdefault(2 + j, [])
        for i in range(2):
            c = C + (i*4+j)*4
            for q in range(2):
                l += [f'v_lshlrev_b32 v{c+2*q}, 16, v{EP+4*j+2*i+q}', f'v_and_b32 v{c+2*q+1}, 0xffff0000, v{EP+4*j+2*i+q}']
            l += [f'v_pk_add_f32 {vr(c+2*q,2)}, {vr(c+2*q,2)}, {vr(B+4*i+2*q,2)}' for q in range(2)]
            l += [f'v_add_f32 v{c+r}, v{c+r}, v{EP+24+j}' for r in range(4)]
    assert N2 >= 6
    for it in range(N2):
        A('s_barrier')
        if it == 0:
            step(1, True, reads(0, 0, False), xfirst=True)
            for k in range(4):
                for c in range(4*k, 4*k+4): A(f'v_cvt_pk_bf16_f32 v{AX+c}, v{AX+2*c}, v{AX+2*c+1}')
                A(f'buffer_store_dwordx4 {vr(AX+4*k,4)}, v{vL16}, s[40:43], s56 offen offset:{k*1024} sc1')
        else:
            if it == SIG:
                A('s_waitcnt vmcnt(0)')
                A(f'v_mov_b32 v{PR}, 1')
                A(f'buffer_store_dword v{PR}, v{vFl}, s[36:39], s54 offen sc1')
            if it == POLL:
                A(f'buffer_load_dword v{PR+16}, v{vFl}, s[36:39], s55 offen sc1')
            if it > POLL: check(it, False)
            step(1, False, reads(0, 0, False))
            for x in pre.get(it, []): A(x)
        step(0, False, reads(1, 1, False), ADV if it < N2 - 1 else ())
    check('L', True)
    step(1, False, [])
    st(12)
    A('s_waitcnt vmcnt(0)')
    T = 40
    for j in range(4):
        d = T + 4*j
        for i in range(2):
            a = AO + (i*4+j)*4; pr = PR + (i*4+j)*2
            for r in range(4): A(f'v_dot2_f32_bf16 v{a+r}, v{pr+(r>>1)}, s{60+(r&1)}, v{a+r}')
        for i in range(2):
            a = AO + (i*4+j)*4
            for r in range(4): A(f'v_fma_f32 v{a+r}, v{a+r}, v{EP+16+j}, v{C+(i*4+j)*4+r}')
        for i in range(2):
            a = AO + (i*4+j)*4
            A(f'v_cvt_pk_bf16_f32 v{d+2*i}, v{a}, v{a+1}')
            A(f'v_cvt_pk_bf16_f32 v{d+2*i+1}, v{a+2}, v{a+3}')
        A(f'v_permlane16_swap_b32 v{d}, v{d+2}')
        A(f'v_permlane16_swap_b32 v{d+1}, v{d+3}')
        A(f'buffer_store_dwordx4 {vr(d,4)}, v6, s[32:35], s19 offen {opt.get("omod", "sc1")}')
        if j < 3: A(f's_add_u32 s19, s19, {16*16*2048}')

def loaders(A, name, opt):
    NS = 4; N2 = opt.get('n2', 8); N1 = (56 - N2) // 2; NT = N1 + N2
    hm = opt.get('hmod', 'sc1')
    lst = Stamper(A, opt.get('stamp') == 1, 1)
    A('s_load_dwordx4 s[64:67], s[0:1], %d' % KA['w1'])
    A('s_load_dwordx2 s[48:49], s[0:1], %d' % KA['w2'])
    A('s_sub_u32 s12, s12, 4')
    g1_decode(A)
    A('s_lshl_b32 s15, s12, 16')
    A('v_lshlrev_b32 v8, 4, v1')
    A('v_add_u32 v8, s15, v8')
    A('v_add_u32 v9, 0x8000, v8')
    A('s_lshr_b32 s15, s12, 1')
    A('s_lshl_b32 s15, s15, 6')
    A('s_and_b32 s16, s12, 1')
    A('s_lshl_b32 s16, s16, 4')
    A('s_add_u32 s15, s15, s16')
    A('s_and_b32 s16, s11, 1')
    w_voffs(A, 10, 1, 15, 16, 4, range(7))
    A('s_lshl_b32 s43, s12, 12')
    A('s_mul_i32 s44, s12, 7168')
    A(f's_add_u32 s44, s44, {WB0}')
    A('s_mov_b32 s41, 0')
    A('s_mov_b32 s42, 0')
    A('s_lshl_b32 s15, s12, 12')
    A('v_lshlrev_b32 v3, 4, v1')
    A('v_add_u32 v3, s15, v3')
    A('v_and_b32 v17, 15, v1')
    A('v_lshlrev_b32 v17, 7, v17')
    A('v_mov_b32 v20, 1')
    A('v_mov_b32 v21, 0')
    A('s_and_b32 s13, s2, 7')
    A('s_sub_u32 s15, 16, s13')
    A('s_cmp_eq_u32 s13, 0')
    A('s_cselect_b32 s15, 8, s15')
    A('s_bitcmp1_b32 s2, 3')
    A('s_cselect_b32 s13, s15, s13')
    A('s_lshl_b32 s13, s13, 4')
    A('s_lshr_b32 s15, s2, 4')
    A('s_add_u32 s13, s13, s15')
    A('s_lshl_b32 s13, s13, 7')
    A('s_lshl_b32 s14, s10, 4')
    A('s_add_u32 s14, s14, s11')
    A('s_lshl_b32 s14, s14, 7')
    A(f's_add_u32 s14, s14, {FL2}')
    A('s_lshl_b32 s15, s10, 18')
    A(f's_add_u32 s15, s15, {HF_OFF}')
    A('s_mul_i32 s16, s11, 448')
    A(f's_sub_u32 s19, {1024*7168}, s16')
    A('s_waitcnt lgkmcnt(0)')
    srd(A, 20, 4, 's15', 256 * 1024)
    srd(A, 24, 64, 's16', 's19')
    A('s_lshl_b32 s15, s10, 14')
    A(f's_add_u32 s15, s15, {ST_OFF}')
    srd(A, 32, 4, 's15', 16384)
    A('s_lshl_b32 s15, s10, 9')
    A(f's_add_u32 s15, s15, {R2_OFF}')
    srd(A, 36, 4, 's15', 512)
    srd(A, 52, 4, FL_OFF, FL_SIZE)
    srd(A, 56, 48, 0, 3584 * 2048)
    A('s_lshl_b32 s60, s2, 2')
    A('s_add_u32 s60, s60, s12')
    NL2 = 5 if opt.get('sw1', 0) else 4
    A(f's_mul_i32 s60, s60, {128*NL2}')
    A(f's_mov_b32 s50, {(6 if NL2 == 5 else 8) * (NL2 << 17)}')
    hstep = [4096]
    A('v_add_u32 v26, 1024, v8')
    A('v_add_u32 v27, 1024, v9')
    def issue_h(lds):
        A(f's_add_u32 m0, {lds}, s43')
        A('s_nop 0')
        A(f'buffer_load_dwordx4 v8, s[20:23], s41 offen {hm} lds')
        A(f'buffer_load_dwordx4 v26, s[20:23], s41 offen offset:1024 {hm} lds')
        A('s_add_u32 m0, m0, 2048')
        A('s_nop 0')
        A(f'buffer_load_dwordx4 v9, s[20:23], s41 offen {hm} lds')
        A(f'buffer_load_dwordx4 v27, s[20:23], s41 offen offset:1024 {hm} lds')
        A(f's_add_u32 s41, s41, {hstep[0]}')
    def issue_w(lds, srdn=24, so='s42'):
        A(f's_add_u32 s45, {lds}, s44')
        for q in range(7):
            A(f's_add_u32 m0, s45, {q*1024}')
            A('s_nop 0')
            A(f'buffer_load_dwordx4 v{10+q}, s[{srdn}:{srdn+3}], {so} offen lds')
        A(f's_add_u32 s42, s42, {128*7168}')
    def sp2():
        for k in range(NL2): A(f's_buffer_load_dwordx2 s[62:63], s[56:59], s60 offset:{128*k + 60}')
        A('s_add_u32 s60, s60, s50')
        A(f's_sub_u32 s50, {NL2 << 17}, s50')
    sw1 = opt.get('sw1', 0)
    if sw1:
        srd(A, 68, 64, 32 * 7168, 992 * 7168)
        A('s_lshr_b32 s61, s2, 4')
        A('s_lshl_b32 s61, s61, 5')
        A('s_and_b32 s15, s2, 15')
        A('s_add_u32 s61, s61, s15')
        A('s_lshl_b32 s61, s61, 2')
        A('s_add_u32 s61, s61, s12')
        A('s_mul_i32 s61, s61, 3584')
    def sp1(b):
        if sw1:
            for k in range(7): A(f's_buffer_load_dwordx2 s[62:63], s[68:71], s61 offset:{896*b + 128*k + 60}')
    sp1(0)
    def only0(tag, ins):
        A('s_cmp_lg_u32 s12, 0')
        A(f's_cbranch_scc1 {tag}')
        for x in ins: A(x)
        A.label(tag)
    A('s_barrier')
    for k in range(3): issue_w(k * WS)
    if sw1: sp1(1)
    else: sp2(); sp2()
    A('s_lshl_b32 s15, s10, 11')
    A('s_barrier')
    only0(f'{name}_f1', ['buffer_store_dword v20, v21, s[52:55], s13 offen sc1'])
    sp1(2)
    A('s_cmp_lg_u32 s12, 0')
    A(f's_cbranch_scc1 {name}_fl1_go')
    spin(A, f'{name}_fl1', 52, 15, 36, 17, 47, opt.get('pdepth', 4), opt.get('pgap', 2))
    A('s_barrier')
    for k in range(3): issue_h(k * HS)
    sp1(3)
    A('s_mov_b32 s40, 0')
    A('s_mov_b32 s46, 0')
    A('s_waitcnt vmcnt(8)')
    A('s_barrier')
    only0(f'{name}_no5', [f's_add_u32 s13, s13, {FL5}', 'buffer_store_dword v20, v21, s[52:55], s13 offen sc1'])
    A('s_waitcnt vmcnt(4)')
    A('s_barrier')
    def issue():
        issue_h('s40'); issue_w('s46')
        A(f's_add_u32 s40, s40, {HS}')
        A(f's_add_u32 s46, s46, {WS}')
        A(f's_cmp_eq_u32 s40, {3*HS}')
        A('s_cselect_b32 s40, 0, s40')
        A('s_cselect_b32 s46, 0, s46')
    def stats():
        for k in range(4):
            A(f'v_add_f32 v{40+4*k}, v{40+4*k}, v{42+4*k}')
            A(f'v_add_f32 v{41+4*k}, v{41+4*k}, v{43+4*k}')
        for perm in ('quad_perm:[1,0,3,2]', 'quad_perm:[2,3,0,1]', 'row_half_mirror'):
            for k in range(4):
                for c in range(2):
                    A(f'v_add_f32_dpp v{40+4*k+c}, v{40+4*k+c}, v{40+4*k+c} {perm} row_mask:0xf bank_mask:0xf')
        A('v_and_b32 v4, 3, v1')
        for k in range(1, 4):
            A(f'v_cmp_eq_u32 vcc, {k}, v4')
            for c in range(2): A(f'v_cndmask_b32 v{40+c}, v{40+c}, v{40+4*k+c}, vcc')
        ln_finish(A, 40, 41, 22, 23, 24, 47)
        A('v_lshrrev_b32 v28, 16, v23')
        A('v_lshrrev_b32 v5, 3, v1')
        A('v_lshl_add_u32 v2, v4, 3, v5')
        A('s_lshl_b32 s15, s12, 7')
        A(f's_add_u32 s15, s15, {SGB}')
        A('v_lshl_add_u32 v5, v2, 2, s15')
        A('ds_write_b32 v5, v28')
        A('v_mul_f32 v23, v23, v23')
        A('v_rcp_f32 v23, v23')
        A('s_lshl_b32 s15, s12, 7')
        A('v_lshlrev_b32 v5, 2, v2')
        A('buffer_store_dword v23, v5, s[36:39], s15 offen sc1')
    def loop1(tag, first, last):
        A(f's_mov_b32 s18, {first}')
        A.label(f'{name}_{tag}')
        issue()
        if last == 15:
            A('s_cmp_eq_u32 s18, 15')
            A(f's_cbranch_scc1 {name}_nosp')
            if NL2 == 4:
                A('s_cmp_eq_u32 s18, 13')
                A('s_cselect_b32 s50, 0x80000, s50')
        sp2()
        if last == 15: A.label(f'{name}_nosp')
        A('s_add_u32 s18, s18, 1')
        A(f's_cmp_le_u32 s18, {last}')
        A('s_waitcnt vmcnt(11)')
        A('s_barrier')
        A(f's_cbranch_scc1 {name}_{tag}')
    loop1('l1a', 3, 4)
    A(f's_add_u32 s15, s15, {FL5}')
    A('buffer_load_dword v36, v17, s[52:55], s15 offen sc1')
    issue(); sp2()
    A('s_waitcnt vmcnt(11)')
    A('s_barrier')
    A('v_cmp_ne_u32 vcc, 1, v36')
    A(f's_cbranch_vccz {name}_fl5_go')
    spin(A, f'{name}_fl5', 52, 15, 36, 17, 47, 1, 1)
    for k in range(4): A(f'buffer_load_dwordx4 {vr(40+4*k,4)}, v3, s[32:35], 0 offen offset:{1024*k} sc1')
    loop1('l1b', 6, 7)
    A('s_mov_b32 s41, 1024')
    A(f's_mov_b32 s42, {32*7168}')
    issue(); sp2()
    stats()
    A('s_waitcnt vmcnt(12)')
    A('s_barrier')
    loop1('l1c', 9, 15)
    g2_decode(A)
    gs = opt.get('gskip', 1); TT = GTT if gs else 112 * 1024; hstep[0] = GST if gs else 2048
    A(f's_mul_i32 s15, s12, {2*TT}')
    A('v_lshlrev_b32 v8, 4, v1')
    if gs:
        skipmap(A, 26, 8, 1, 4)
        skipmap(A, 8, 8, 0, 4)
        A('v_subrev_u32 v26, 1024, v26')
    else:
        A('v_mov_b32 v26, v8')
    A('v_add_u32 v8, s15, v8')
    A('v_add_u32 v26, s15, v26')
    A(f'v_add_u32 v9, {TT}, v8')
    A(f'v_add_u32 v27, {TT}, v26')
    A('v_lshrrev_b32 v4, 3, v1')
    A('s_lshl_b32 s15, s12, 4')
    A('v_add_u32 v4, s15, v4')
    A('v_lshlrev_b32 v4, 11, v4')
    A('v_and_b32 v5, 1, v1')
    A('v_lshl_add_u32 v4, v5, 4, v4')
    A('v_lshrrev_b32 v5, 4, v1')
    A('v_and_b32 v5, 1, v5')
    A('v_lshrrev_b32 v6, 1, v1')
    A('v_and_b32 v6, 3, v6')
    A('v_xor_b32 v5, v5, v6')
    A('v_lshl_add_u32 v4, v5, 5, v4')
    A('v_xor_b32 v5, 64, v4')
    A(f'v_add_u32 v5, {16384 - 1024}, v5')
    A('v_lshrrev_b32 v6, 3, v1')
    A('v_cmp_eq_u32 vcc, 3, v6')
    A('v_cndmask_b32 v6, v6, 7, vcc')
    for hsel, (va, sr_) in enumerate(((10, 24), (12, 32))):
        if hsel == 0: A('s_mov_b32 s16, s11')
        else: A('s_xor_b32 s16, s11, 1')
        A('s_and_b32 s19, s16, 8')
        A('v_add_u32 v7, s19, v6')
        A('v_lshlrev_b32 v14, 7, v7')
        A('v_xor_b32 v15, 0x400, v14')
        A('s_and_b32 s15, s16, 7')
        A('s_lshl_b32 s16, s16, 7')
        A('v_mov_b32 v7, s16')
        A(f's_add_u32 s{sr_}, s4, {WC_OFF}')
        A(f's_addc_u32 s{sr_+1}, s5, 0')
        A(f's_cmp_eq_u32 s15, {3 if opt.get("wcopy", 1) else 9}')
        A('s_cselect_b64 vcc, -1, 0')
        A(f's_cselect_b32 s{sr_}, s{sr_}, s48')
        A(f's_cselect_b32 s{sr_+1}, s{sr_+1}, s49')
        A(f's_mov_b32 s{sr_+2}, {3584*2048}')
        A(f's_mov_b32 s{sr_+3}, 0x20000')
        A('v_cndmask_b32 v14, v7, v14, vcc')
        A('v_cndmask_b32 v15, v7, v15, vcc')
        A(f'v_add_u32 v{va}, v4, v14')
        A(f'v_add_u32 v{va+1}, v5, v15')
    A('s_lshl_b32 s44, s12, 11')
    A('s_add_u32 s44, s44, 16384')
    assert N1 == 24
    def mask(st_): return sum(1 << x for x in st_)
    def m64(r, m):
        A(f's_mov_b32 s{r}, {m & 0xffffffff}'); A(f's_mov_b32 s{r+1}, {m >> 32}')
    def sel64(r, m_true, m_false):
        for h in range(2):
            A(f's_mov_b32 s{r+h}, {(m_false >> (32*h)) & 0xffffffff}')
            A(f's_cselect_b32 s{r+h}, {(m_true >> (32*h)) & 0xffffffff}, s{r+h}')
    A('s_and_b32 s15, s9, 7')
    A('s_cmp_eq_u32 s15, 7')
    sel64(38, mask(range(0, 4)), mask(range(24, 28)))
    A('s_cmp_eq_u32 s15, 0')
    sel64(30, mask(range(52, 56)), mask(range(28, 32)))
    A('s_or_b64 s[38:39], s[38:39], s[30:31]')
    A('s_cmp_lg_u32 s8, 0')
    sel64(30, mask(range(28, 56)), mask(range(0, 28)))
    A('s_andn2_b64 s[30:31], s[30:31], s[38:39]')
    A('s_mul_i32 s15, s9, 7')
    A('s_add_u32 s15, s15, 1')
    A('s_lshr_b32 s36, s15, 1')
    A('s_lshl_b64 s[28:29], 7, s36')
    A('s_andn2_b64 s[30:31], s[30:31], s[28:29]')
    m64(64, mask([x for x in range(56) if x % 7 in (1, 2, 5, 6)]))
    A('s_and_b64 s[28:29], s[30:31], s[64:65]')
    A('s_andn2_b64 s[30:31], s[30:31], s[64:65]')
    NE = 15
    def nxt(r=28):
        A(f's_ff1_i32_b64 s61, s[{r}:{r+1}]')
        A(f's_bitset0_b64 s[{r}:{r+1}], s61')
    def seth(): A(f's_mul_i32 s41, s61, {hstep[0]}')
    def setw(): A('s_lshl_b32 s42, s61, 17')
    A(f's_mul_i32 s15, s10, {8*TT}')
    A(f's_add_u32 s15, s15, {GS_OFF if gs else G_OFF}')
    srd(A, 20, 4, 's15', 8 * TT)
    A('s_waitcnt vmcnt(0) lgkmcnt(0)')
    A('s_barrier')
    def issue_w2(lds, full):
        A(f's_add_u32 m0, {lds}, s44')
        A('s_nop 0')
        A(f'buffer_load_dwordx4 v10, s[24:27], s42 offen lds')
        A(f'buffer_load_dwordx4 v11, s[24:27], s42 offen offset:1024 lds')
        if full:
            A('s_add_u32 m0, m0, 8192')
            A('s_nop 0')
            A(f'buffer_load_dwordx4 v12, s[32:35], s42 offen lds')
            A(f'buffer_load_dwordx4 v13, s[32:35], s42 offen offset:1024 lds')
        A(f's_add_u32 s42, s42, {64*2048}')
    def slotadv():
        A(f's_add_u32 s40, s40, {SLOT}')
        A(f's_cmp_eq_u32 s40, {NS*SLOT}')
        A('s_cselect_b32 s40, 0, s40')
    def issue2(full, r=None):
        if r is not None: nxt(r); seth(); setw()
        issue_h('s40'); issue_w2('s40', full)
        slotadv()
    A('s_lshl_b32 s42, s36, 17')
    for k in (2, 3, 0): issue_w2(k * SLOT, True)
    A('s_lshl_b32 s15, s10, 11')
    A(f's_add_u32 s15, s15, {FL2}')
    A('s_lshl_b32 s61, s8, 3')
    A('v_min_u32 v17, 7, v1')
    A('v_add_u32 v17, s61, v17')
    A('v_lshlrev_b32 v17, 7, v17')
    A('s_barrier')
    nxt(); setw(); seth()
    issue_w2(SLOT, True)
    lst(1)
    A('s_barrier')
    lst(2)
    only0(f'{name}_noa', ['buffer_store_dword v20, v21, s[52:55], s14 offen sc1'])
    A('s_waitcnt vmcnt(4)')
    A('s_barrier')
    A('s_barrier')
    PE = opt.get('pe', 1)
    if PE: A('buffer_load_dword v38, v17, s[52:55], s15 offen sc1')
    A('s_barrier')
    if PE:
        A('s_waitcnt vmcnt(0)')
        A('v_cmp_ne_u32 vcc, 1, v38')
        A(f's_cbranch_vccz {name}_fl2_go')
    spin(A, f'{name}_fl2', 52, 15, 36, 17, 47, opt.get('pdepth', 2), opt.get('pgap', 2))
    lst(3)
    issue_h(SLOT)
    A(f's_mov_b32 s40, {2*SLOT}')
    issue2(True, 28); issue2(True, 28)
    A('s_waitcnt vmcnt(16)')
    lst(4)
    A('s_barrier')
    def loop(tag, n, r):
        A(f's_mov_b32 s18, {n}')
        A.label(f'{name}_{tag}')
        issue2(True, r)
        A('s_sub_u32 s18, s18, 1')
        A('s_cmp_lg_u32 s18, 0')
        A('s_waitcnt vmcnt(16)')
        A('s_barrier')
        A(f's_cbranch_scc1 {name}_{tag}')
    L0 = opt.get('l0', 0)
    loop('l2a', 2 + L0, 28)
    A('s_cmp_lg_u32 s12, 0')
    A(f's_cbranch_scc1 {name}_nob')
    A(f's_add_u32 s14, s14, {FL4 - FL2}')
    A('buffer_store_dword v20, v21, s[52:55], s14 offen sc1')
    A.label(f'{name}_nob')
    loop('l2b', NE - 9 - L0, 28)
    A(f's_add_u32 s15, s15, {FL4 - FL2}')
    A('v_and_b32 v17, 15, v1')
    A('v_lshlrev_b32 v17, 7, v17')
    A('buffer_load_dword v36, v17, s[52:55], s15 offen sc1')
    issue2(True, 28)
    A('s_waitcnt vmcnt(16)')
    A('s_barrier')
    A('s_waitcnt vmcnt(8)')
    A('v_cmp_ne_u32 vcc, 1, v36')
    A(f's_cbranch_vccz {name}_fl4_go')
    spin(A, f'{name}_fl4', 52, 15, 36, 17, 47, 1, 1)
    loop('l2c', N1 - NE, 30)
    cnt = lambda s: 0 if s >= NT else (8 if s < N1 else 6)
    for j in range(N1 - NS + 1, NT - 1):
        s = j + NS - 1
        if s < NT: issue2(False, 38)
        A(f's_waitcnt vmcnt({sum(cnt(x) for x in range(j + 2, j + NS))})')
        A('s_barrier')
    if opt.get('stamp') == 1:
        lst(5); lst(6, True); lst(8)
        A('s_cmp_lg_u32 s12, 0')
        A(f's_cbranch_scc1 {name}_end')
        lst.dump(9, 1, 60)

def gen_m(A, name='m_kernel', opt=None):
    opt = opt or {}
    khead(A, name)
    st = Stamper(A, opt.get('stamp'), 1)
    st(0); st(7, True)
    A('s_cmp_ge_u32 s2, 256')
    A(f's_cbranch_scc1 {name}_end')
    A('s_load_dwordx2 s[4:5], s[0:1], %d' % KA['ws'])
    A('s_load_dwordx2 s[6:7], s[0:1], %d' % KA['x'])
    A('v_lshrrev_b32 v2, 6, v0')
    A('v_and_b32 v1, 63, v0')
    A('v_readfirstlane_b32 s12, v2')
    A('s_cmp_ge_u32 s12, 4')
    A(f's_cbranch_scc1 {name}_loader')
    if opt.get('prio'): A(f's_setprio {opt["prio"]}')
    fb_compute(A, name, st, opt)
    late = g1_compute(A, name, st, opt)
    g2_compute(A, name, st, opt, late)
    A('s_waitcnt vmcnt(0)') if opt.get('stamp') else None
    st(5); st(6, True)
    st.dump(13, 0, 244)
    A('s_endpgm')
    A.label(f'{name}_loader')
    loaders(A, name, opt)
    A.label(f'{name}_end')
    A('s_endpgm')
    return dict(name=name, grid=256, block=512, lds=M_LDS, vgpr=256)
```

```python
from common import *

XP = 2112; NP = 80; ZP = 1312
ZB = 16 * XP
RB = ZB + 16 * ZP
FA_LDS = RB + 64

def gen_fa(A, name='fa_kernel', opt=None):
    opt = opt or {}
    smod = opt.get('smod', 'sc1'); sm2 = opt.get('sm2', ''); sm3 = opt.get('sm3', 'sc1'); xmod = opt.get('xmod', 'nt')
    khead(A, name)
    st = Stamper(A, opt.get('stamp'), 0)
    st(0); st(7, True)
    A('s_cmp_ge_u32 s2, 256')
    A(f's_cbranch_scc1 {name}_end')
    A('s_load_dwordx2 s[6:7], s[0:1], %d' % KA['x'])
    A('s_load_dwordx2 s[4:5], s[0:1], %d' % KA['ws'])
    A('s_load_dwordx2 s[8:9], s[0:1], %d' % KA['w1'])
    A('s_load_dwordx2 s[60:61], s[0:1], %d' % KA['w2'])
    if opt.get('cpf', 1):
        A('s_getpc_b64 s[36:37]')
        A(f's_mov_b32 s38, CODE_END-{name}-64')
        A('s_mov_b32 s39, 0x20000')
        A('s_lshr_b32 s13, s2, 3')
        A('s_lshl_b32 s13, s13, 7')
        A('v_lshlrev_b32 v4, 12, v0')
        A('buffer_load_dword v88, v4, s[36:39], s13 offen')
    A('v_lshrrev_b32 v2, 6, v0')
    A('v_and_b32 v1, 63, v0')
    A('s_and_b32 s13, s2, 7')
    A('v_readfirstlane_b32 s12, v2')
    A('s_lshr_b32 s14, s2, 3')
    A('s_and_b32 s11, s14, 1')
    A('s_sub_u32 s15, 16, s13')
    A('s_cmp_eq_u32 s13, 0')
    A('s_cselect_b32 s15, 8, s15')
    A('s_bitcmp1_b32 s14, 1')
    A('s_cselect_b32 s10, s15, s13')
    A('s_lshr_b32 s15, s14, 2')
    A('s_lshl_b32 s15, s15, 4')
    A('s_add_u32 s10, s10, s15')
    A('v_lshrrev_b32 v4, 5, v1')
    A('v_lshlrev_b32 v4, 1, v4')
    A('v_xor_b32 v4, v4, v1')
    A('v_lshlrev_b32 v14, 4, v4')
    A('s_lshl_b32 s13, s12, 9')
    A('s_add_u32 s13, s13, s10')
    A('s_lshl_b32 s63, s13, 2')
    A('s_lshl_b32 s13, s13, 11')
    A(f's_mul_i32 s14, s12, {4*XP}')
    vn, vg = 2, 3
    M1, TC, TS, M2C, M2S, SA1, SA2, SGN, MU, ONES = 16, 24, 40, 56, 60, 64, 68, 72, 73, 76
    GA, SA = 80, 84
    vSt, vTr0, vTr1, vZw, vZr, vU, vE, vE0, vZx, vX0, vZ0 = 108, 90, 91, 92, 93, 94, 95, 96, 97, 98, 99
    F = 112; T = 144; AF = 208; TMP = 112; P = 128; D = 240
    A(f'v_and_b32 v{vn}, 15, v1')
    A(f'v_lshrrev_b32 v{vg}, 4, v1')
    A('s_lshl_b32 s43, s11, 4')
    A('s_add_u32 s43, s43, 1')
    A(f'v_and_b32 v5, 7, v{vn}')
    A('v_add_u32 v5, s43, v5')
    A('v_cvt_f32_u32 v5, v5')
    A(f'v_and_b32 v6, 8, v{vn}')
    A(f'v_cvt_f32_u32 v7, v{vg}')
    A('v_cvt_f32_u32 v8, v6')
    A('v_mul_f32 v9, 0x3d000000, v5')
    A('v_mul_f32 v8, 0x3d000000, v8')
    A('v_mul_f32 v12, 0x41000000, v7')
    A('v_fmac_f32 v8, v12, v9')
    def m1(hh8, th, dl):
        for j in range(8):
            if j: A(f'v_add_f32 v{th}, v{th}, v{dl}')
            A(f'v_cos_f32 v{10 + (j & 1)}, v{th}')
            if j & 1: A(f'v_cvt_pk_bf16_f32 v{M1 + 4*hh8 + j//2}, v10, v11')
    A('v_mov_b32 v13, v8')
    m1(0, 8, 9)
    A('s_waitcnt lgkmcnt(0)')
    srd(A, 20, 6, 0, 2048 * 2048)
    for r in range(4):
        A(f's_add_u32 m0, s14, {r*XP}')
        A('s_nop 0')
        A(f'buffer_load_dwordx4 v14, s[20:23], s13 offen {xmod} lds')
        A(f'buffer_load_dwordx4 v14, s[20:23], s13 offen offset:1024 {xmod} lds')
        if r < 3: A(f's_add_u32 s13, s13, {128*2048}')
    A('v_add_f32 v9, 0x3e800000, v9')
    m1(1, 13, 9)
    A(f'v_lshlrev_b32 v9, 28, v6')
    A(f'v_lshrrev_b32 v10, 16, v9')
    A(f'v_or_b32 v{SGN}, v9, v10')
    A('v_mul_f32 v12, 4.0, v7')
    for hh8 in range(2):
        if hh8: A('v_add_f32 v5, 0x41000000, v5')
        A('v_mul_f32 v13, 0x3a800000, v5')
        A('v_xor_b32 v15, v9, v13')
        A('v_mul_f32 v8, v12, v15')
        for hh in range(2):
            for r in range(4):
                o = 8*hh8 + 4*hh + r
                if r: A('v_add_f32 v8, v8, v15')
                elif hh: A('v_fmac_f32 v8, 0x41500000, v15')
                A(f'v_cos_f32 v{TC+o}, v8')
                A(f'v_sin_f32 v{TS+o}, v8')
    A('s_cmp_eq_u32 s11, 1')
    A('s_cselect_b32 s44, 0xc2000000, 0')
    A(f'v_mov_b32 v{MU}, s44')
    A(f'v_cmp_eq_u32 vcc, 7, v{vn}')
    A(f'v_cndmask_b32 v{MU}, 0, v{MU}, vcc')
    A(f'v_cvt_f32_u32 v5, v{vn}')
    A('v_mul_f32 v13, 0x3d000000, v5')
    A('v_mul_f32 v8, v12, v13')
    for j in range(8):
        if j == 4: A('v_fmac_f32 v8, 0x41500000, v13')
        elif j: A('v_add_f32 v8, v8, v13')
        A(f'v_cos_f32 v{10+(j&1)}, v8')
        A(f'v_sin_f32 v{14+(j&1)}, v8')
        if j & 1:
            A(f'v_cvt_pk_bf16_f32 v{M2C+j//2}, v10, v11')
            A(f'v_cvt_pk_bf16_f32 v{M2S+j//2}, v14, v15')
    for i in range(4): A(f'v_mov_b32 v{ONES+i}, 0x3f803f80')
    A(f'v_lshrrev_b32 v10, 2, v{vn}')
    A(f'v_and_b32 v11, 3, v{vn}')
    A(f'v_mul_u32_u24 v12, {XP}, v10')
    A(f'v_mul_u32_u24 v13, 528, v11')
    A('v_add3_u32 v12, v12, v13, s14')
    A(f'v_and_b32 v13, 1, v{vg}')
    A('v_lshl_add_u32 v12, v13, 8, v12')
    A(f'v_lshrrev_b32 v15, 1, v{vg}')
    A(f'v_lshl_add_u32 v{vSt}, v15, 7, v12')
    for e in range(1, 4): A(f'v_xor_b32 v{vSt+e}, {16*e}, v{vSt}')
    A('v_lshlrev_b32 v12, 6, v10')
    A(f'v_lshl_add_u32 v12, v{vg}, 9, v12')
    A('v_lshl_add_u32 v12, v11, 3, v12')
    A('v_lshl_add_u32 v12, v13, 5, v12')
    A(f'v_add_u32 v{vTr0}, s14, v12')
    A(f'v_xor_b32 v{vTr1}, 32, v{vTr0}')
    A(f's_mul_i32 s15, s12, {4*ZP}')
    A(f's_add_u32 s15, s15, {ZB}')
    A(f'v_mul_u32_u24 v{vZw}, {NP}, v{vn}')
    A(f'v_lshl_add_u32 v{vZw}, v{vg}, 4, v{vZw}')
    A(f'v_add_u32 v{vZw}, s15, v{vZw}')
    A(f'v_mul_u32_u24 v{vX0}, {XP}, v10')
    A(f'v_add_u32 v{vX0}, s14, v{vX0}')
    A(f'v_mul_u32_u24 v{vZ0}, {ZP}, v10')
    A('v_and_b32 v12, 1, v1')
    A(f'v_mul_u32_u24 v12, {8*NP}, v12')
    A(f'v_add3_u32 v{vZ0}, v{vZ0}, v12, s15')
    A('v_cmp_eq_u32 s[46:47], 1, v11')
    A('v_cmp_eq_u32 s[48:49], 2, v11')
    A('v_cmp_eq_u32 s[50:51], 3, v11')
    A(f'v_cmp_eq_u32 s[52:53], v10, v{vg}')
    A('s_cmp_eq_u32 s11, 0')
    A('s_cselect_b32 s16, 8192, 0')
    srd(A, 32, 4, MX_OFF, 's16')
    srd(A, 28, 4, U_OFF, 4 * MB)
    srd(A, 36, 4, E_OFF, 65536)
    A('s_lshr_b32 s65, s12, 1')
    A('s_cmp_lg_u32 s65, 0')
    A('s_cselect_b32 s44, 0.25, 0')
    A(f'v_lshlrev_b32 v8, 9, v{vg}')
    A('v_add_u32 v8, s10, v8')
    A('v_cvt_f32_u32 v8, v8')
    A('v_mul_f32 v13, 0x3a000000, v5')
    A('v_fma_f32 v8, v8, v13, s44')
    A('v_mul_f32 v13, 0x3d800000, v5')
    for j in range(4):
        if j: A('v_add_f32 v8, v8, v13')
        A(f'v_cos_f32 v{SA1+j}, v8')
        A(f'v_sin_f32 v{SA2+j}, v8')
    A(f'v_lshl_add_u32 v12, v{vg}, 2, v10')
    A(f'v_mul_u32_u24 v12, {ZP}, v12')
    A(f'v_add_u32 v{vZx}, {ZB + 64}, v12')
    A('v_lshl_add_u32 v12, v11, 3, v12')
    A('s_and_b32 s15, s12, 1')
    A('s_lshl_b32 s16, s15, 5')
    A(f's_add_u32 s16, s16, {ZB}')
    A(f'v_add_u32 v{vZr}, s16, v12')
    A(f'v_lshlrev_b32 v{vU}, 20, v{vg}')
    A('s_lshl_b32 s16, s15, 2')
    A('s_add_u32 s16, s16, s10')
    A('v_add_u32 v12, s16, v10')
    A('v_and_b32 v12, 7, v12')
    A(f'v_lshl_add_u32 v{vU}, v12, 7, v{vU}')
    A(f'v_lshl_add_u32 v{vU}, v11, 4, v{vU}')
    A('s_lshl_b32 s66, s65, 17')
    A('s_lshl_b32 s16, s10, 10')
    A('s_add_u32 s66, s66, s16')
    A('s_lshl_b32 s16, s11, 6')
    A('s_add_u32 s66, s66, s16')
    A('s_lshl_b32 s16, s15, 2')
    A('s_add_u32 s16, s16, 1')
    A('v_add_u32 v12, s16, v10')
    A(f'v_lshlrev_b32 v{vE0}, 14, v{vg}')
    A(f'v_lshl_add_u32 v{vE}, v12, 9, v{vE0}')
    A('v_cmp_gt_u32 vcc, 8, v12')
    A('s_and_b64 vcc, vcc, s[50:51]')
    A(f'v_cndmask_b32 v{vE}, 4.0, v{vE}, vcc')
    A(f'v_or_b32 v12, s15, v{vn}')
    A('v_cmp_eq_u32 vcc, 0, v12')
    A(f'v_cndmask_b32 v{vE0}, 4.0, v{vE0}, vcc')
    A('s_lshl_b32 s67, s65, 7')
    A('s_add_u32 s67, s67, s10')
    A('s_lshl_b32 s67, s67, 1')
    srd(A, 24, 4, 38 * MB, 2048 * 128)
    A('v_lshlrev_b32 v12, 7, v0')
    A('v_cmp_gt_u32 vcc, 8, v0')
    A('v_cndmask_b32 v12, 4.0, v12, vcc')
    A('s_mul_i32 s15, s2, 1024')
    A('v_mov_b32 v13, 0')
    A(f'buffer_store_dword v13, v12, s[24:27], s15 offen {sm2}')
    npf = 2
    srd(A, 24, 60, 0, 3584 * 2048)
    A('v_lshrrev_b32 v12, 4, v0')
    A('s_mul_i32 s15, s2, 14')
    A('v_add_u32 v12, s15, v12')
    A('v_and_b32 v13, 8, v0')
    A('v_and_b32 v14, 7, v0')
    A('v_lshlrev_b32 v14, 4, v14')
    A('v_lshl_add_u32 v14, v12, 11, v14')
    A('v_add_u32 v12, v12, v13')
    A('v_and_b32 v12, 15, v12')
    A('v_and_b32 v15, 7, v12')
    A('v_cmp_eq_u32 vcc, 3, v15')
    A('v_xor_b32 v15, 4, v12')
    A('v_cndmask_b32 v12, v12, v15, vcc')
    A('v_lshl_add_u32 v104, v12, 7, v14')
    A('v_lshl_add_u32 v14, v13, 7, v14')
    A('v_cmp_gt_u32 vcc, 224, v0')
    A('v_cndmask_b32 v14, 4.0, v14, vcc')
    A('v_cndmask_b32 v104, 4.0, v104, vcc')
    A('buffer_load_dwordx4 v[100:103], v14, s[24:27], 0 offen offset:384')
    if opt.get('tlb'):
        sh = opt['tlb']
        A('s_load_dwordx2 s[68:69], s[0:1], %d' % KA['out'])
        A('s_lshr_b32 s15, s2, 3')
        A(f's_lshl_b32 s15, s15, {sh + 2}')
        A('s_lshl_b32 s16, s12, %d' % sh)
        A('s_add_u32 s15, s15, s16')
        srd(A, 24, 4, 0, 72 * MB)
        A(f'v_lshlrev_b32 v12, {sh + 7}, v1')
        A('v_cmp_gt_u32 vcc, %d, v1' % max(1, (72 * MB >> (sh + 7)) + 1))
        A('v_cndmask_b32 v12, 4.0, v12, vcc')
        A('buffer_load_dword v87, v12, s[24:27], s15 offen')
        A('s_waitcnt lgkmcnt(0)')
        srd(A, 24, 68, 0, 4 * MB)
        A('buffer_load_dword v87, v12, s[24:27], s15 offen')
        npf += 2
    def touch():
        if opt.get('pf', 1):
            srd(A, 24, 8, 0, 1024 * 7168)
            A('v_lshlrev_b32 v12, 7, v0')
            nl = 224 if opt.get('pf', 1) == 1 else 112
            A(f'v_cmp_gt_u32 vcc, {nl}, v0')
            A('v_cndmask_b32 v12, 4.0, v12, vcc')
            if nl == 224: A(f's_mul_i32 s15, s2, {nl*128}')
            else:
                A('s_lshr_b32 s15, s2, 4')
                A('s_lshl_b32 s15, s15, 5')
                A('s_and_b32 s16, s2, 15')
                A('s_add_u32 s15, s15, s16')
                A('s_mul_i32 s15, s15, 14336')
            A('buffer_load_dword v89, v12, s[24:27], s15 offen')
    if not opt.get('pfend') and opt.get('pf', 1):
        touch(); npf += 1
    st(1)
    A(f's_waitcnt vmcnt({npf})')
    st(2)
    E = AutoLgkm(A)
    def mf(d, a, b, z): return f'v_mfma_f32_16x16x32_bf16 {vr(d,4)}, {vr(a,4)}, {vr(b,4)}, {"0" if z else vr(d,4)}'
    def s1rd(r): return [f'ds_read_b64_tr_b16 {vr(AF+8*r+4*hh+2*rd,2)}, v{vTr0 if hh == 0 else vTr1} offset:{r*XP + 256*rd}' for hh in range(2) for rd in range(2)]
    frd = [f'ds_read_b128 {vr(F+4*i,4)}, v{vSt + (i&3)} offset:{64*(i>>2)}' for i in range(8)] + [f'ds_read_u16 v{vX0}, v{vX0}']
    def s1(r): return [mf(T + 16*r + 8*hh8 + 4*hh, AF + 8*r + 4*hh, M1 + 4*hh8, True) for hh8 in range(2) for hh in range(2)]
    for x in s1rd(0) + s1rd(1) + s1rd(2) + frd[:3]: E(x)
    for x in weave(s1(0) + s1(1), s1rd(3) + frd[3:], per=2) + s1(2) + s1(3): E(x)
    D0 = AF + 16; D1 = D
    def tw(r, hh8, tm, p):
        t = T + 16*r + 8*hh8; d = (D1 if hh8 else D0) + 4*r
        return [f'v_pk_mul_f32 {vr(tm+k,2)}, {vr(t+k,2)}, {vr(TC+8*hh8+k,2)}' for k in range(0, 8, 2)] + \
               [f'v_fmac_f32_dpp v{tm+k}, v{t+k}, v{TS+8*hh8+k} row_ror:8 row_mask:0xf bank_mask:0xf' for k in range(8)] + \
               [f'v_cvt_pk_bf16_f32 v{p+k}, v{tm+2*k}, v{tm+2*k+1}' for k in range(4)] + [mf(d, M2C, p, True)] + \
               [f'v_xor_b32_dpp v{p+4+k}, v{p+k}, v{SGN} row_ror:8 row_mask:0xf bank_mask:0xf' for k in range(4)], mf(d, M2S, p + 4, False)
    stm = [x for i in range(8) for x in (mf(SA, ONES, F+4*i, i == 0), mf(GA, F+4*i, F+4*i, i == 0))]
    t0 = []
    for r in range(4):
        a, b = tw(r, 0, AF, AF + 8)
        t0 += a[:6] + ([pb] if r else []) + a[6:]
        pb = b
    mean = [f'v_add_f32_dpp v11, v{SA}, v{SA} quad_perm:[1,0,3,2] row_mask:0xf bank_mask:0xf', f'v_cndmask_b32 v10, v{GA}, v{GA+1}, s[46:47]',
            f'v_lshlrev_b32 v{vX0}, 16, v{vX0}', 'v_add_f32_dpp v11, v11, v11 quad_perm:[2,3,0,1] row_mask:0xf bank_mask:0xf',
            f'v_cndmask_b32 v10, v10, v{GA+2}, s[48:49]', 'v_mul_f32 v15, 0x3a800000, v11', f'v_cndmask_b32 v10, v10, v{GA+3}, s[50:51]'] + \
           [f'v_readlane_b32 s{56+r}, v15, {4*r}' for r in range(4)]
    for x in weave(stm, t0[:48], per=3) + weave(t0[48:], mean, start=6, per=1) + [pb]: E(x)
    class L(list):
        def __call__(self, t): self.append(t)
    sg = L()
    sg('v_add_f32_dpp v10, v10, v10 quad_perm:[1,0,3,2] row_mask:0xf bank_mask:0xf')
    sg(f'v_sub_f32 v{vX0}, v{vX0}, v15')
    sg('v_add_f32_dpp v10, v10, v10 quad_perm:[2,3,0,1] row_mask:0xf bank_mask:0xf')
    ln_finish(sg, 11, 10, 12, 13, 14, 45)
    sg('v_rcp_f32 v13, v13')
    sg(f'v_lshlrev_b32 v12, 9, v{vg}'); sg(f'v_lshlrev_b32 v10, 2, v{vg}'); sg('s_lshl_b32 s15, s12, 4'); sg(f's_add_u32 s15, s15, {RB}')
    sg('v_add_u32 v10, s15, v10')
    def fin(r):
        return [f'v_cvt_pk_bf16_f32 v{D0+4*r+k}, v{D0+4*r+k}, v{D1+4*r+k}' for k in range(4)] + [f'ds_write_b128 v{vZw}, {vr(D0+4*r,4)} offset:{r*ZP}']
    t1 = []
    for r in range(4):
        a, b = tw(r, 1, TMP, P + 8*(r & 1))
        pre = [f'v_mul_f32 v8, s{56+r}, v{MU}', 'v_mov_b32 v9, v8'] + [f'v_pk_add_f32 {vr(T+16*r+8+k,2)}, {vr(T+16*r+8+k,2)}, v[8:9]' for k in range(0, 8, 2)]
        t1 += pre[:2] + ([pb] if r else []) + pre[2:] + a[:12] + (fin(r - 1) if r else []) + a[12:]
        pb = b
    for x in weave(t1[:2*len(sg)], list(sg), per=1)[:]: E(x)
    A('s_mov_b64 exec, s[52:53]')
    E('ds_write_b32 v10, v13')
    A(f'buffer_store_dword v15, v12, s[32:35], s63 offen {sm2}')
    A('s_mov_b64 exec, -1')
    x0 = ['v_mov_b32 v11, 0', f'v_cvt_pk_bf16_f32 v10, v{vX0}, v11', 's_mov_b32 vcc_lo, 0x55555555', 's_mov_b32 vcc_hi, 0x55555555',
          'v_cndmask_b32 v10, 0, v10, vcc', f'ds_write_b64 v{vZ0}, v[10:11] offset:64']
    for x in weave(t1[2*len(sg):], x0, per=1): E(x)
    E(pb)
    A(f'v_lshlrev_b32 v10, 4, v{vg}')
    A(f'v_add_u32 v10, {RB}, v10')
    for x in fin(3): E(x)
    st(3)
    A('s_waitcnt lgkmcnt(0)')
    A('s_barrier')
    st(8)
    RS = F; AM = F + 4; ZF = T; O = T + 36
    A(f'ds_read_b128 {vr(RS,4)}, v10')
    for tau in range(9):
        if tau == 7: A('s_waitcnt lgkmcnt(14)')
        for rd in range(2):
            if tau < 8: A(f'ds_read_b64_tr_b16 {vr(ZF + tau*4 + 2*rd, 2)}, v{vZr} offset:{(rd*8 + tau)*NP}')
            else: A(f'ds_read_b64_tr_b16 {vr(ZF + tau*4 + 2*rd, 2)}, v{vZx} offset:{rd*8*NP}')
    for j in range(0, 4, 2):
        A(f'v_pk_mul_f32 {vr(SA1+j,2)}, {vr(SA1+j,2)}, {vr(RS+j,2)}')
        A(f'v_pk_mul_f32 {vr(SA2+j,2)}, {vr(SA2+j,2)}, {vr(RS+j,2)}')
    for k in range(4): A(f'v_cvt_pk_bf16_f32 v{AM+k}, v{SA1+2*k}, v{SA1+2*k+1}')
    for tau in range(9):
        if tau % 2 == 0: A(f's_waitcnt lgkmcnt({max(14 - 2*tau, 0)})')
        mfma(A, O + 4*tau, AM, ZF + tau*4, '0')
    for r in range(4):
        b = P + 4*r
        for k in range(4): A(f'v_cvt_pk_bf16_f32 v{b+k}, v{O+8*k+r}, v{O+8*k+4+r}')
        A(f'buffer_store_dwordx4 {vr(b,4)}, v{vU}, s[28:31], s66 offen {smod}')
        if r < 3: A('s_add_u32 s66, s66, 0x40000')
    srd(A, 24, 4, WC_OFF, 3584 * 2048)
    A(f's_waitcnt vmcnt({npf + 3})')
    A(f'buffer_store_dwordx4 v[100:103], v104, s[24:27], 0 offen {sm3}')
    A('s_cmp_eq_u32 s11, 0')
    A(f's_cbranch_scc1 {name}_c0')
    for r in range(4):
        A(f'buffer_store_short_d16_hi v{P+4*r+3}, v{vE}, s[36:39], s67 offen {sm2}')
        if r < 3: A('s_add_u32 s67, s67, 4096')
    A(f's_branch {name}_fin')
    A.label(f'{name}_c0')
    for r in range(4):
        A(f'v_cvt_pk_bf16_f32 v{O+32+r}, v{O+32+r}, v{O+32+r}')
        A(f'buffer_store_short v{O+32+r}, v{vE0}, s[36:39], s67 offen {sm2}')
        if r < 3: A('s_add_u32 s67, s67, 4096')
    A.label(f'{name}_fin')
    if opt.get('pfend'):
        touch()
        if opt['pfend'] == 2:
            srd(A, 24, 60, 0, 3584 * 2048)
            A('buffer_load_dword v88, v12, s[24:27], s15 offen')
    st(4)
    A('s_waitcnt vmcnt(0)') if opt.get('stamp') else None
    st(5); st(6, True)
    st.dump(9, 0, 108)
    A.label(f'{name}_end')
    A('s_endpgm')
    return dict(name=name, grid=256, block=256, lds=FA_LDS, vgpr=256)
```

```python
from common import *
from g1 import w_voffs, tr_bases

HS = 16384; WS = 28672; WB0 = 3 * HS
XB = 32768; EB = WB0 + 3 * WS
SLOT = 32768
SGB = EB + 1024
SYB = SGB + 512
R1, D1, R2W, D2 = 0, 64, 128, 384
STG = SYB
M_LDS = STG + 16384
FULL = 0x01010101
PX_OFF = 29 * MB
FL_OFF = 38 * MB
GS_OFF = 40 * MB; GST = 3072; GTT = 56 * GST
FL1, FL2, FL3, FL4, FL5 = 0, 32768, 65536, 196608, 229376
FL_SIZE = 2048 * 128

def spin(A, tag, srdn, soff, vflag, vaddr, scnt, depth=4, gap=2):
    A(f's_mov_b32 s{scnt}, 400000')
    ld = lambda k: A(f'buffer_load_dword v{vflag+k}, v{vaddr}, s[{srdn}:{srdn+3}], s{soff} offen sc1')
    for k in range(depth - 1):
        ld(k); A(f's_sleep {gap}')
    A.label(f'{tag}_spin')
    for k in range(depth):
        ld((k + depth - 1) % depth)
        A(f's_waitcnt vmcnt({depth - 1})')
        A(f'v_cmp_ne_u32 vcc, 1, v{vflag+k}')
        A(f's_cbranch_vccz {tag}_go')
        A(f's_sleep {gap}')
    A(f's_sub_u32 s{scnt}, s{scnt}, 1')
    A(f's_cbranch_scc0 {tag}_spin')
    A.label(f'{tag}_go')

def skipmap(A, dst, src, odd, t):
    if odd:
        A(f'v_cmp_lt_u32 vcc, 255, v{src}')
        A(f'v_add_u32 v{dst}, {1024 + 128}, v{src}')
    else:
        A(f'v_cmp_lt_u32 vcc, 383, v{src}')
        if dst != src: A(f'v_mov_b32 v{dst}, v{src}')
    A(f'v_add_u32 v{t}, 128, v{dst}')
    A(f'v_cndmask_b32 v{dst}, v{dst}, v{t}, vcc')

def g1_decode(A):
    A('s_and_b32 s8, s2, 7')
    A('s_lshr_b32 s9, s2, 3')
    A('s_and_b32 s10, s8, 1')
    A('s_lshl_b32 s10, s10, 3')
    A('s_and_b32 s11, s9, 7')
    A('s_add_u32 s10, s10, s11')
    A('s_lshr_b32 s11, s8, 1')
    A('s_lshl_b32 s11, s11, 2')
    A('s_lshr_b32 s9, s9, 3')
    A('s_add_u32 s11, s11, s9')

def g2_decode(A):
    A('s_mov_b32 s9, s11')
    A('s_lshr_b32 s8, s9, 3')
    A('s_and_b32 s11, s9, 7')
    A('s_lshl_b32 s11, s11, 1')
    A('s_add_u32 s11, s11, s8')

def fb_compute(A, name, st, opt):
    A('s_and_b32 s13, s2, 7')
    A('s_lshr_b32 s14, s2, 3')
    A('s_sub_u32 s15, 16, s13')
    A('s_cmp_eq_u32 s13, 0')
    A('s_cselect_b32 s15, 8, s15')
    A('s_bitcmp1_b32 s14, 0')
    A('s_cselect_b32 s10, s15, s13')
    A('s_lshr_b32 s11, s14, 1')
    A('s_sub_u32 s16, 16, s10')
    A('s_and_b32 s16, s16, 15')
    A('s_sub_u32 s17, 15, s11')
    A('s_lshr_b32 s19, s11, 3')
    A('s_cmp_lg_u32 s19, 0')
    A('s_cselect_b32 s16, s16, s10')
    A('s_cselect_b32 s17, s17, s11')
    vn, vg = 2, 3
    A(f'v_and_b32 v{vn}, 15, v1')
    A(f'v_lshrrev_b32 v{vg}, 4, v1')
    A('v_lshrrev_b32 v6, 3, v1')
    A(f'v_and_b32 v7, 1, v{vg}')
    A('v_lshrrev_b32 v8, 1, v1')
    A('v_and_b32 v8, 3, v8')
    A('v_xor_b32 v7, v7, v8')
    A('v_lshlrev_b32 v7, 5, v7')
    A('v_lshl_add_u32 v4, v6, 10, v7')
    A('v_and_b32 v7, 1, v1')
    A('v_lshl_add_u32 v4, v7, 4, v4')
    A('v_add_u32 v7, s17, v6')
    A('v_and_b32 v7, 7, v7')
    A('v_lshl_add_u32 v4, v7, 7, v4')
    A('v_xor_b32 v5, 64, v4')
    A(f'v_add_u32 v5, {8192 - 1024}, v5')
    A('s_lshl_b32 s14, s16, 2')
    A('s_add_u32 s14, s14, s12')
    A('s_lshl_b32 s14, s14, 16')
    A('s_lshl_b32 s18, s12, 13')
    A(f'v_xor_b32 v8, v{vg}, v1')
    A('v_and_b32 v8, 7, v8')
    A('v_lshlrev_b32 v8, 4, v8')
    A('v_lshl_add_u32 v6, v6, 15, v8')
    A('v_xor_b32 v7, 64, v6')
    A(f'v_add_u32 v7, {8*32768 - 1024}, v7')
    A('s_lshl_b32 s61, s12, 19')
    A('s_lshl_b32 s15, s10, 11')
    A('s_add_u32 s61, s61, s15')
    A('s_lshl_b32 s15, s11, 7')
    A('s_add_u32 s61, s61, s15')
    A('s_lshl_b32 s62, s12, 12')
    A(f's_add_u32 s62, s62, {XB}')
    A('s_lshl_b32 s63, s10, 3')
    A('s_add_u32 s63, s63, s11')
    A('s_lshl_b32 s63, s63, 9')
    A('s_sub_u32 s63, s63, 512')
    A('s_sub_u32 s15, s11, 1')
    A('s_cmp_lt_u32 s15, 7')
    A('s_cselect_b32 s63, s63, 0x40000000')
    A('s_lshl_b32 s15, s16, 12')
    A('v_mov_b32 v9, s15')
    A('v_mov_b32 v10, s63')
    A('v_cmp_gt_u32 vcc, 32, v1')
    A('v_cndmask_b32 v9, v10, v9, vcc')
    A('v_lshl_add_u32 v9, v1, 4, v9')
    A(f'v_lshlrev_b32 v10, 6, v{vn}')
    A('s_lshl_b32 s15, s12, 8')
    A('s_add_u32 s15, s15, s10')
    A('s_lshl_b32 s15, s15, 2')
    A('s_waitcnt lgkmcnt(0)')
    srd(A, 20, 4, U_OFF, 4 * MB)
    srd(A, 28, 4, E_OFF, 65536)
    for h in range(4):
        A(f's_add_u32 m0, s18, {h*2048}')
        A('s_nop 0')
        A(f'buffer_load_dwordx4 v4, s[20:23], s14 offen lds')
        A(f'buffer_load_dwordx4 v5, s[20:23], s14 offen offset:1024 lds')
        if h < 3: A('s_add_u32 s14, s14, 16384')
    A(f's_mov_b32 m0, {EB}')
    srd(A, 24, 6, 0, 2048 * 2048)
    A('buffer_load_dwordx4 v9, s[28:31], 0 offen lds')
    FR = [16, 48]; EF = 80; B = [112, 144]; ACC = [176, 192]; MA = [208, 212]; VT = 216; VX = 220; X = [224, 232]; VB = 240; MXV = [241, 242]; VH = 243; VE = 244
    srd(A, 40, 4, MX_OFF, 8192)
    for u in range(2):
        A(f's_add_u32 m0, s62, {u*2048}')
        if u: A(f's_add_u32 s61, s61, {4 << 19}')
        else: A('s_nop 0')
        A('buffer_load_dwordx4 v6, s[24:27], s61 offen lds')
        A('buffer_load_dwordx4 v7, s[24:27], s61 offen offset:1024 lds')
    A('s_add_u32 s14, s15, 4096')
    A(f'buffer_load_dword v{MXV[0]}, v10, s[40:43], s15 offen')
    A(f'buffer_load_dword v{MXV[1]}, v10, s[40:43], s14 offen')
    A('s_lshl_b32 s15, s12, 4')
    A(f'v_add_u32 v6, s15, v{vn}')
    A('s_cmp_lg_u32 s10, 0')
    A('s_cselect_b32 s15, -1, 0')
    A('v_sub_u32 v7, s15, v6')
    A('s_cmp_lg_u32 s19, 0')
    A('s_cselect_b64 vcc, -1, 0')
    A('v_cndmask_b32 v6, v6, v7, vcc')
    A('v_and_b32 v6, 127, v6')
    A('v_cvt_f32_u32 v7, v6')
    A('v_mul_f32 v7, 0x3c000000, v7')
    A(f'v_lshlrev_b32 v10, 3, v{vg}')
    A('v_cvt_f32_u32 v10, v10')
    A('v_mul_f32 v10, v10, v7')
    B0 = B[0]
    for j in range(8):
        if j: A('v_add_f32 v10, v10, v7')
        A(f'v_cos_f32 v{12+(j&1)}, v10')
        A(f'v_sin_f32 v{14+(j&1)}, v10')
        if j & 1:
            A(f'v_cvt_pk_bf16_f32 v{B0+j//2}, v12, v13')
            A(f'v_cvt_pk_bf16_f32 v{B0+16+j//2}, v14, v15')
    A('v_and_b32 v8, 1, v6')
    A('v_cmp_eq_u32 vcc, 1, v8')
    A('v_mul_u32_u24 v8, 0x8000, v8')
    A('v_lshl_or_b32 v8, v8, 16, v8')
    A('v_and_b32 v10, 2, v6')
    A('v_mul_u32_u24 v10, 0x4000, v10')
    A('v_lshl_or_b32 v10, v10, 16, v10')
    A('v_xor_b32 v11, v10, v8')
    for k in range(4):
        A(f'v_cndmask_b32 v12, v{B0+k}, v{B0+16+k}, vcc')
        A(f'v_cndmask_b32 v13, v{B0+16+k}, v{B0+k}, vcc')
        A(f'v_xor_b32 v{B0+4+k}, v11, v12')
        A(f'v_xor_b32 v{B0+20+k}, v10, v13')
    for k in range(8):
        A(f'v_xor_b32 v{B0+8+k}, v8, v{B0+k}')
        A(f'v_xor_b32 v{B0+24+k}, v8, v{B0+16+k}')
    A('s_brev_b32 s15, 1')
    for k in range(32): A(f'v_xor_b32 v{B[1]+k}, s15, v{B0+k}')
    A(f'v_lshrrev_b32 v10, 2, v{vn}')
    A(f'v_lshl_add_u32 v10, v{vg}, 3, v10')
    A(f'v_lshrrev_b32 v11, 3, v{vn}')
    A(f'v_and_b32 v12, 1, v{vg}')
    A('v_lshl_add_u32 v11, v12, 1, v11')
    A('v_lshlrev_b32 v11, 5, v11')
    A('v_lshl_add_u32 v10, v10, 7, v11')
    A(f'v_and_b32 v11, 3, v{vn}')
    A(f'v_lshl_add_u32 v{VT}, v11, 3, v10')
    A('s_mul_i32 s15, s19, 96')
    A(f'v_xor_b32 v{VT}, s15, v{VT}')
    for i in range(1, 4): A(f'v_xor_b32 v{VT+i}, {(2*(i&1) + (i>>1))*32}, v{VT}')
    A(f'v_and_b32 v11, 1, v{vn}')
    A('v_lshlrev_b32 v11, 9, v11')
    A(f'v_lshl_add_u32 v11, v{vg}, 4, v11')
    A(f'v_add_u32 v{VE}, {EB}, v11')
    A('s_mul_i32 s15, s19, 3')
    A(f'v_xor_b32 v10, s15, v{vg}')
    A('v_lshrrev_b32 v11, 1, v10')
    A(f'v_lshrrev_b32 v12, 1, v{vn}')
    A('v_xor_b32 v11, v11, v12')
    A('v_lshlrev_b32 v11, 4, v11')
    A(f'v_lshl_add_u32 v11, v{vn}, 7, v11')
    A('v_and_b32 v12, 1, v10')
    A('v_lshl_add_u32 v11, v12, 3, v11')
    A(f'v_add_u32 v{VX}, s62, v11')
    for i in range(1, 4): A(f'v_xor_b32 v{VX+i}, {32*i}, v{VX}')
    A(f'v_lshl_add_u32 v10, v10, 4, v{vn}')
    A(f'v_lshlrev_b32 v{VH}, 4, v10')
    A('v_add_u32 v10, 48, v1')
    A('v_and_b32 v10, 63, v10')
    A(f'v_lshlrev_b32 v{VB}, 2, v10')
    A(f'v_cmp_eq_u32 s[46:47], 0, v{vg}')
    srd(A, 52, 4, HF_OFF, 4 * MB)
    srd(A, 56, 4, ST_OFF, 2048 * 128)
    A('s_cmp_eq_u32 s11, 0')
    A('s_cselect_b32 s15, 8192, 0')
    srd(A, 32, 4, MU_OFF, 's15')
    srd(A, 36, 4, FL_OFF, FL_SIZE)
    A('s_lshl_b32 s13, s10, 3')
    A('s_add_u32 s13, s13, s12')
    st(1)
    A('s_waitcnt vmcnt(6)')
    A('s_barrier')
    st(2)
    def frag(i, p): return FR[i & 1] + 4 * p
    def rd(h):
        i = h >> 1
        return [f'ds_read_b64_tr_b16 {vr(frag(i,p)+2*r2,2)}, v{VT+i} offset:{(32*p+4*r2)*128}' for p in range(4*(h & 1), 4*(h & 1) + 4) for r2 in range(2)]
    def mf(d, a, b, z): return f'v_mfma_f32_16x16x32_bf16 {vr(d,4)}, {vr(a,4)}, {vr(b,4)}, {"0" if z else vr(d,4)}'
    def half(h): return [mf(ACC[u] + 4*(h >> 1), frag(h >> 1, p), B[u] + 4*p, p == 0) for p in range(4*(h & 1), 4*(h & 1) + 4) for u in range(2)]
    ONE = 4; S = [5, 7]; Q = [6, 8]; TM = EF; OUT = EF + 16
    E = AutoLgkm(A)
    for x in rd(0) + [f'ds_read_b128 {vr(EF+4*p,4)}, v{VE} offset:{64*p}' for p in range(8)]: E(x)
    for x in weave(half(0), rd(1), per=2): E(x)
    for x in weave([mf(MA[u], EF + 4*p, B[u] + 4*p, p == 0) for p in range(8) for u in range(2)], rd(2), per=1): E(x)
    misc = [f'v_mov_b32 v{ONE}, 0x3f803f80'] + [f'v_mov_b32 v{r}, 0' for r in S + Q] + [f'v_lshlrev_b32 v9, 2, v{vn}', 's_lshl_b32 s60, s13, 6',
            's_lshl_b32 s14, s13, 15', 's_lshl_b32 s15, s11, 11', 's_add_u32 s14, s14, s15', 's_add_u32 s15, s14, 0x20000']
    for x in weave(half(1), rd(3) + misc, per=3): E(x)
    xr = ['s_waitcnt vmcnt(0)'] + [f'ds_read_b64 {vr(X[u]+2*k2,2)}, v{VX+k2} offset:{u*2048}' for k2 in range(4) for u in range(2)]
    for x in weave(half(2), rd(4) + xr, per=3): E(x)
    for x in weave(half(3), rd(5) + [f'v_add_f32 v{MA[u]}, v{MA[u]}, v{MXV[u]}' for u in range(2)], per=2): E(x)
    def epi(V, pr):
        out = []
        for u in range(2):
            o = OUT + 8*u + 4*pr
            for i2 in range(2):
                i = 2*pr + i2; t = TM + 8*u + 4*i2
                for q in range(2):
                    r_ = X[u] + 2*i + q
                    out += [f'v_lshlrev_b32 v{t+2*q}, 16, v{r_}', f'v_and_b32 v{t+1+2*q}, 0xffff0000, v{r_}']
                out += [f'v_sub_f32 v{t+r}, v{t+r}, v{MA[u]}' for r in range(4)]
                out += [f'v_add_f32 v{t+r}, v{t+r}, v{V[u][i][r]}' for r in range(4)]
                out += [f'v_cvt_pk_bf16_f32 v{o+2*i2+q}, v{t+2*q}, v{t+1+2*q}' for q in range(2)]
            out.append(f'buffer_store_dwordx4 {vr(o,4)}, v{VH}, s[52:55], s{14+u} offen offset:{pr*1024} sc1')
        return out
    def dots(pr): return [x for u in range(2) for k in range(4) for x in
                          (f'v_dot2_f32_bf16 v{S[u]}, v{OUT+8*u+4*pr+k}, v{ONE}, v{S[u]}', f'v_dot2_f32_bf16 v{Q[u]}, v{OUT+8*u+4*pr+k}, v{OUT+8*u+4*pr+k}, v{Q[u]}')]
    RP = 10; SH = 248
    A('s_cmp_lg_u32 s19, 0')
    A(f's_cbranch_scc1 {name}_up')
    pend0 = list(E.pend)
    for lower in (1, 0):
        if not lower:
            A.label(f'{name}_up'); A('s_nop 7'); E.pend = list(pend0)
        if lower:
            V = [[[SH+4*u+i, ACC[u]+4*i, ACC[u]+4*i+1, ACC[u]+4*i+2] for i in range(4)] for u in range(2)]
            def rot(i): return [f'ds_bpermute_b32 v{RP+3*u+(i%3)}, v{VB}, v{ACC[u]+4*i+3}' for u in range(2)]
            def sel(i): return [f'v_cndmask_b32 v{SH+4*u+i}, v{RP+3*u+(i%3)}, v{RP+3*u+((i-1)%3) if i else MA[u]+1}, s[46:47]' for u in range(2)]
        else:
            V = [[[ACC[u]+4*i+3-r for r in range(4)] for i in range(4)] for u in range(2)]
            rot = sel = lambda i: []
        for x in weave(half(4), rot(0) + rd(6) + rot(1), per=2): E(x)
        e0 = sel(0) + sel(1) + epi(V, 0)
        for x in weave(half(5), rd(7) + e0[:16], per=3): E(x)
        for x in weave(half(6) + half(7), rot(2) + e0[16:] + dots(0), start=2, per=4): E(x)
        e1 = epi(V, 1)
        hst = [x for x in e1 if x.startswith('buffer_store')]
        for x in rot(3) + sel(2) + sel(3) + [x for x in e1 if x not in hst]: E(x)
        E.drain()
        if lower: A(f's_branch {name}_join')
    A.label(f'{name}_join')
    st(3)
    A('s_waitcnt vmcnt(0)')
    A('s_barrier')
    st(4)
    for x in dots(1)[:8] + hst + dots(1)[8:]: A(x)
    A(f'buffer_store_dword v{MA[0]}, v9, s[32:35], s60 offen sc1')
    A(f'buffer_store_dword v{MA[1]}, v9, s[32:35], s60 offen offset:256 sc1')
    A(f'v_lshlrev_b32 v40, 7, v{vn}')
    A(f'v_lshrrev_b32 v41, 1, v{vg}')
    A('v_lshl_add_u32 v40, v41, 2, v40')
    A('s_lshl_b32 s14, s13, 11')
    A('s_lshl_b32 s15, s11, 3')
    A('s_add_u32 s14, s14, s15')
    A('s_add_u32 s15, s14, 8192')
    for u in range(2): A(f'v_permlane32_swap_b32 v{S[u]}, v{Q[u]}')
    for u in range(2): A(f'v_add_f32 v{S[u]}, v{S[u]}, v{Q[u]}')
    for u in range(2): A(f'v_mov_b32 v{Q[u]}, v{S[u]}')
    for u in range(2): A(f'v_permlane16_swap_b32 v{S[u]}, v{Q[u]}')
    for u in range(2): A(f'v_add_f32 v{S[u]}, v{S[u]}, v{Q[u]}')
    for u in range(2): A(f'buffer_store_dword v{S[u]}, v40, s[56:59], s{14+u} offen sc1')

def drained(A):
    A('s_waitcnt vmcnt(0)')
    A('s_barrier')

def g1_compute(A, name, st, opt):
    WB = [8, 36]; ACC = 64; HB = [176, 192]
    vAh, cAh, VW, CW = 2, 3, 208, 216
    g1_decode(A)
    A('s_and_b32 s13, s12, 1')
    A('s_lshr_b32 s14, s12, 1')
    A('s_lshl_b32 s15, s13, 13')
    A(f'v_lshlrev_b32 v{vAh}, 4, v1')
    A(f'v_add_u32 v{vAh}, s15, v{vAh}')
    tr_bases(A, 44, 45, 1, 48)
    A('s_cmp_lg_u32 s14, 0')
    A('s_cselect_b64 vcc, -1, 0')
    def gaddr(dst, lam):
        if lam < 12:
            A(f'v_xor_b32 v{dst}, {32*(lam&3)}, v44')
            A(f'v_add_u32 v{dst}, {WB0 + (lam>>2)*1024}, v{dst}')
        else:
            A(f'v_xor_b32 v{dst}, {32*(lam&1)}, v45')
            A(f'v_add_u32 v{dst}, {WB0 + 6144}, v{dst}')
    for k, (l0, l1) in enumerate(zip([4, 5, 2, 3, 0, 1, 6], [8, 9, 10, 11, 12, 13, 7])):
        gaddr(46, l0); gaddr(47, l1)
        A(f'v_cndmask_b32 v{VW+k}, v46, v47, vcc')
    A(f'v_mov_b32 v{cAh}, v{vAh}')
    for k in range(7): A(f'v_mov_b32 v{CW+k}, v{VW+k}')
    for i in range(112): A(f'v_mov_b32 v{ACC+i}, 0')
    A('s_lshl_b32 s15, s10, 1')
    A('s_add_u32 s15, s15, s13')
    gs = opt.get('gskip', 1); TT = GTT if gs else 112 * 1024
    A('s_mul_i32 s15, s15, %d' % (4 * TT))
    A('s_add_u32 s15, s15, %d' % (GS_OFF if gs else G_OFF))
    srd(A, 20, 4, 's15', 4 * TT)
    A('s_mov_b32 s17, 0')
    A('s_mov_b32 s19, 0')
    A('s_mov_b32 s18, 0')
    BV = 240; H2 = 224
    A('s_load_dwordx2 s[24:25], s[0:1], %d' % KA['b1'])
    A('s_and_b32 s52, s11, 1')
    A('s_mul_i32 s15, s11, 7')
    A('s_add_u32 s16, s15, s52')
    A('s_add_u32 s56, s16, 3')
    A('s_cmp_lg_u32 s14, 0')
    A('s_cselect_b32 s53, 4, 2')
    A('s_cselect_b32 s54, 5, 1')
    A('s_cselect_b32 s55, 6, 0')
    for r in (53, 54, 55): A(f's_add_u32 s{r}, s{r}, s16')
    A('s_and_b32 s52, s52, s14')
    A('s_cmp_lg_u32 s52, 0')
    A('s_cselect_b32 s55, s15, s55')
    for r in (53, 54, 55, 56): A(f's_lshl_b32 s{r+4}, s{r}, 6')
    A('s_lshl_b32 s15, s14, 5')
    A('s_add_u32 s60, s60, s15')
    A('v_and_b32 v44, 15, v1')
    A('v_lshlrev_b32 v44, 1, v44')
    A('s_mov_b32 s26, 7168')
    A('s_mov_b32 s27, 0x20000')
    A('s_waitcnt lgkmcnt(0)')
    for i in range(7):
        so, off = 57 + i // 2, (32*(i&1) if i < 6 else 0)
        A(f'buffer_load_ushort v{BV+i}, v44, s[24:27], s{so} offen offset:{off}')
    A('s_barrier')
    A('s_waitcnt vmcnt(0)')
    def reads(s, buf):
        r = []
        for j in range(4):
            r.append(f'ds_read_b128 {vr(HB[buf]+4*j,4)}, v{cAh} offset:{(2*j+s)*1024}')
        for i in range(7):
            for rd in range(2):
                r.append(f'ds_read_b64_tr_b16 {vr(WB[buf]+4*i+2*rd,2)}, v{CW+i} offset:{(2*s + rd) * 7168}')
        return r
    def step(buf, rds, tail=None, nowait=False):
        k = 0; n = 0
        for i in range(7):
            for jj in range(4):
                j = jj if (i & 1) == 0 or opt.get('nosnake') else 3 - jj
                ii = i
                if opt.get('jmajor'):
                    j, ii = (i*4 + jj) // 7, (i*4 + jj) % 7
                    if j & 1: ii = 6 - ii
                mfma(A, ACC + (ii*4+j)*4, WB[buf] + 4*ii, HB[buf] + 4*j)
                if k < len(rds): A(rds[k]); k += 1
                n += 1
                if tail and n - 20 in tail:
                    for t in tail[n - 20]: A(t)
        if not nowait: A('s_waitcnt lgkmcnt(0)')
    A('s_barrier')
    st(8)
    for r in reads(0, 0): A(r)
    A('s_waitcnt lgkmcnt(0)')
    A(f's_branch {name}_g1mid')
    tailB = {-4: [f's_add_u32 s17, s17, {HS}', f's_add_u32 s19, s19, {WS}'], -3: [f's_cmp_eq_u32 s17, {3*HS}', 's_cselect_b32 s17, 0, s17'],
             -2: ['s_cselect_b32 s19, 0, s19', 's_add_u32 s18, s18, 1'], -1: [f'v_add_u32 v{cAh}, s17, v{vAh}', 's_cmp_le_u32 s18, 14']}
    for k in range(7): tailB[k] = [f'v_add_u32 v{CW+k}, s19, v{VW+k}']
    A('.p2align 6')
    A.label(f'{name}_g1loop')
    A('s_barrier')
    step(1, reads(0, 0))
    A.label(f'{name}_g1mid')
    step(0, reads(1, 1), tailB)
    A(f's_cbranch_scc1 {name}_g1loop')
    A('s_barrier')
    gs = opt.get('gskip', 1)
    order = [6, 0, 1, 2, 3, 4, 5]
    SG = 4
    def wset(k): return WB[0] + 8 * (k % 3)
    def wrd(k):
        i = order[k]
        return [f'ds_read_b64_tr_b16 {vr(wset(k)+4*s_+2*rd,2)}, v{CW+i} offset:{(2*s_ + rd) * 7168}' for s_ in range(2) for rd in range(2)]
    BT = 32
    ST4 = [208, 212, 248, 252]
    A('v_and_b32 v2, 15, v1')
    A('s_lshl_b32 s15, s13, 8')
    A(f's_add_u32 s15, s15, {SGB}')
    A('v_lshl_add_u32 v2, v2, 2, s15')
    pre = [f'ds_read_b128 {vr(HB[0]+4*j,4)}, v{cAh} offset:{(2*j)*1024}' for j in range(4)] + wrd(0) + \
          [f'ds_read_b128 {vr(H2+4*j,4)}, v{cAh} offset:{(2*j+1)*1024}' for j in range(4)] + \
          [f'ds_read_b32 v{ST4[j]}, v2 offset:{64*j}' for j in range(4)] + wrd(1)
    setup = []
    for j in range(4):
        for k in range(1, 4): setup.append(f'v_mov_b32 v{ST4[j]+k}, 0')
    for k in range(1, 4): setup.append(f'v_mov_b32 v{BT+k}, 0')
    addr = []
    for r in (53, 54, 55, 56):
        addr += [f's_lshr_b32 s{r}, s{r}, 1', f's_mul_i32 s{r}, s{r}, {GST}'] if gs else [f's_lshl_b32 s{r}, s{r}, 10']
    class L(list):
        def __call__(self, t): self.append(t)
    va = L()
    va('v_and_b32 v4, 15, v1'); va('v_lshlrev_b32 v4, 4, v4'); va('v_and_b32 v6, 16, v1'); va('v_and_b32 v7, 32, v1')
    va('v_lshl_add_u32 v5, v7, 3, v4'); va('v_lshl_add_u32 v4, v6, 5, v5'); va('v_lshrrev_b32 v6, 1, v6'); va('s_lshl_b32 s19, s14, 9')
    va('v_add3_u32 v5, v5, v6, s19')
    if gs:
        skipmap(va, 6, 4, 1, 2); skipmap(va, 4, 4, 0, 2); skipmap(va, 5, 5, 1, 2)
        va('s_cmp_lg_u32 s52, 0'); va('s_cselect_b64 vcc, -1, 0'); va('v_cndmask_b32 v7, v4, v6, vcc')
    else:
        va('v_mov_b32 v6, v4'); va('v_mov_b32 v7, v4')
    def acc(i, j): return ACC + (i*4+j)*4
    def epi_tile(i, j, d):
        a = acc(i, j)
        return [f'v_max_f32 v{a+r}, 0, v{a+r}' for r in range(4)] + \
               [f'v_pk_mul_f32 {vr(a,2)}, {vr(a,2)}, {vr(a,2)}', f'v_pk_mul_f32 {vr(a+2,2)}, {vr(a+2,2)}, {vr(a+2,2)}',
                f'v_cvt_pk_bf16_f32 v{d}, v{a}, v{a+1}', f'v_cvt_pk_bf16_f32 v{d+1}, v{a+2}, v{a+3}']
    late = []
    def epi(i):
        out = []
        for j in range(4):
            if i == 6:
                out += epi_tile(i, j, acc(i, j))
                out.append(f'buffer_store_dwordx2 {vr(acc(i,j),2)}, v5, s[20:23], s56 offen sc1')
                if j < 3: out.append(f's_add_u32 s56, s56, {TT}')
            elif i % 2 == 0:
                out += epi_tile(i, j, acc(i, j))
            else:
                d = acc(i - 1, j)
                out += epi_tile(i, j, d + 2)
                out += [f'v_permlane16_swap_b32 v{d}, v{d+2}', f'v_permlane16_swap_b32 v{d+1}, v{d+3}']
                pp = i // 2
                dst = out if pp < 2 else late
                dst.append(f'buffer_store_dwordx4 {vr(d,4)}, v{[4, 6, 7][pp]}, s[20:23], s{53+pp} offen sc1')
                if j < 3: dst.append(f's_add_u32 s{53+pp}, s{53+pp}, {TT}')
        return out
    for k, i in enumerate(order):
        mf = [(acc(i, j), WB[1] + 4*i, HB[1] + 4*j) for j in range(4)] + [(acc(i, j), wset(k), HB[0] + 4*j) for j in range(4)] + \
             [(acc(i, j), wset(k) + 4, H2 + 4*j) for j in range(4)] + [(acc(i, j), BT, ST4[j]) for j in range(4)]
        if k == 0:
            fill = pre + addr + list(va) + setup
        else:
            fill = (wrd(k + 1) if k + 1 < 7 else []) + epi(order[k - 1])
        per = -(-len(fill) // 15)
        fi = 0
        for n, (d, a, b) in enumerate(mf):
            if k == 0 and n == 4:
                for x in fill[fi:len(pre)]: A(x)
                fi = max(fi, len(pre))
                A('s_waitcnt lgkmcnt(14)')
            if k == 0 and n == 8: A('s_waitcnt lgkmcnt(8)')
            if k == 0 and n == 12:
                for x in fill[fi:]: A(x)
                fi = len(fill)
                A('s_waitcnt vmcnt(0) lgkmcnt(4)')
                A('v_cmp_gt_u32 vcc, 16, v1')
                for j in range(4): A(f'v_cndmask_b32 v{ST4[j]}, 0, v{ST4[j]}, vcc')
            if k > 0 and n == 4: A(f's_waitcnt lgkmcnt({4 if k + 1 < 7 else 0})')
            if n == 10 and k > 0 or (k == 0 and n == 12): A(f'v_mov_b32 v{BT}, v{BV+i}')
            mfma(A, d, a, b)
            if k == 6 and n == 4:
                A('s_barrier')
                st(9)
            for _ in range(per):
                if fi < len(fill): A(fill[fi]); fi += 1
        for x in fill[fi:]: A(x)
    for x in epi(5): A(x)
    return late

def g2_compute(A, name, st, opt, late):
    NS = 4; N2 = opt.get('n2', 8); N1 = (56 - N2) // 2
    SIG = opt.get('sig', 2); POLL = opt.get('poll', 4)
    AO = 8; AX = 40; HB = [72, 88]; WO = [104, 112]; WX = [120, 128]; EP = 136; PR = 224
    vAh, vAw, cAh, cAw, vAw1, cAw1, vL16, vFl = 176, 177, 178, 179, 180, 181, 182, 183
    A('s_load_dwordx2 s[50:51], s[0:1], %d' % KA['b2'])
    A('s_load_dwordx2 s[48:49], s[0:1], %d' % KA['out'])
    A('v_and_b32 v8, 15, v1')
    A('v_lshlrev_b32 v8, 4, v8')
    A('v_and_b32 v10, 16, v1')
    A('v_and_b32 v11, 32, v1')
    A('v_lshl_add_u32 v9, v11, 3, v8')
    A('v_lshl_add_u32 v8, v10, 5, v9')
    A('v_lshrrev_b32 v10, 1, v10')
    A('s_lshl_b32 s15, s13, 13')
    A('s_lshl_b32 s16, s14, 9')
    A('s_add_u32 s16, s16, s15')
    A(f's_add_u32 s16, s16, {3*SLOT + 1024}')
    A('v_add3_u32 v9, v9, v10, s16')
    A('v_add_u32 v8, s15, v8')
    A('s_cmp_lg_u32 s14, 0')
    for k, (b0, b1) in enumerate(((3*SLOT, 0), (2*SLOT + 1024, 1024), (2*SLOT, 0x40000))):
        A(f's_mov_b32 s16, {b0}')
        A(f's_cselect_b32 s16, {b1}, s16')
        A(f'v_add_u32 v{10+k}, s16, v8')
    wr_ = [f'ds_write_b128 v{10+k}, {vr(64+32*k+4*j,4)} offset:{2048*j}' for k in (2, 1, 0) for j in range(4)]
    wr_ += [f'ds_write_b64 v9, {vr(160+4*j,2)} offset:{2048*j}' for j in range(4)]
    ad = [f'v_lshlrev_b32 v{vL16}, 4, v1', f'v_add_u32 v{vAh}, s15, v{vL16}', 'v_lshrrev_b32 v184, 2, v1', 'v_and_b32 v184, 3, v184',
          'v_lshrrev_b32 v185, 4, v1', 'v_lshl_add_u32 v184, v185, 3, v184', 'v_lshrrev_b32 v186, 3, v1', 'v_and_b32 v186, 3, v186',
          'v_lshlrev_b32 v186, 5, v186', 'v_lshl_add_u32 v184, v184, 7, v186', 'v_and_b32 v186, 3, v1', f'v_lshl_add_u32 v{vAw}, v186, 3, v184',
          's_lshl_b32 s16, s14, 6', f'v_xor_b32 v{vAw}, s16, v{vAw}', f'v_add_u32 v{vAw}, 16384, v{vAw}', f'v_xor_b32 v{vAw1}, 32, v{vAw}',
          f'v_add_u32 v{cAh}, {2*SLOT}, v{vAh}', f'v_add_u32 v{cAw}, {2*SLOT}, v{vAw}', f'v_add_u32 v{cAw1}, {2*SLOT}, v{vAw1}', f'v_mov_b32 v{vFl}, 0']
    ad += [f'v_mov_b32 v{192+k}, v{128+k}' for k in range(16)]
    for x in weave(wr_[:8], ad[:16], per=2): A(x)
    A('s_waitcnt vmcnt(0)')
    A('s_barrier')
    st(10)
    for x in weave(wr_[8:], ad[16:], per=3): A(x)
    for k in range(4): A(f's_mov_b32 s{64+k}, s{20+k}' if k < 3 else 's_mov_b32 s67, 0x20000')
    A('s_mov_b32 s68, s55')
    A(f's_mov_b32 s17, {2*SLOT}')
    TT = GTT if opt.get('gskip', 1) else 112 * 1024
    def late_store(k): return [f'buffer_store_dwordx4 {vr(192+4*k,4)}, v7, s[64:67], s68 offen sc1', f's_add_u32 s68, s68, {TT}']
    def setup():
        g2_decode(A)
        A('s_lshl_b32 s15, s10, 1')
        A('s_add_u32 s15, s15, s13')
        A('s_lshl_b32 s16, s15, 17')
        A(f's_add_u32 s16, s16, {HF_OFF}')
        A('s_lshl_b32 s19, s15, 8')
        A(f's_add_u32 s19, s19, {MU_OFF}')
        A('s_lshl_b32 s54, s2, 2')
        A('s_add_u32 s54, s54, s12')
        A('s_xor_b32 s55, s54, 16')
        A('s_lshl_b32 s56, s54, 12')
        A('s_lshl_b32 s57, s55, 12')
        A('s_lshl_b32 s54, s54, 7')
        A('s_lshl_b32 s55, s55, 7')
        A(f's_add_u32 s54, s54, {FL3}')
        A(f's_add_u32 s55, s55, {FL3}')
        srd(A, 20, 4, 's16', 128 * 1024)
        srd(A, 44, 4, 's19', 256)
        A(f's_add_u32 s19, s19, {R2_OFF - MU_OFF}')
        srd(A, 24, 4, 's19', 256)
        srd(A, 28, 50, 0, 2048)
        srd(A, 32, 48, 0, 2048 * 2048)
        srd(A, 40, 4, PX_OFF, 4 * MB)
    A('s_waitcnt lgkmcnt(0)')
    def reads(s, buf, full):
        r = []
        for i in range(2):
            for rd in range(2):
                r.append(f'ds_read_b64_tr_b16 {vr(WO[buf]+4*i+2*rd,2)}, v{cAw1 if i else cAw} offset:{4096*s + 512*rd}')
        for j in range(4):
            r.append(f'ds_read_b128 {vr(HB[buf]+4*j,4)}, v{cAh} offset:{(2*j+s)*1024}')
        if full:
            for i in range(2):
                for rd in range(2):
                    r.append(f'ds_read_b64_tr_b16 {vr(WX[buf]+4*i+2*rd,2)}, v{cAw1 if i else cAw} offset:{8192 + 4096*s + 512*rd}')
        return r
    ADV = [[f's_add_u32 s17, s17, {SLOT}', f's_cmp_eq_u32 s17, {NS*SLOT}'], ['s_cselect_b32 s17, 0, s17', f'v_add_u32 v{cAh}, s17, v{vAh}'],
           [f'v_add_u32 v{cAw}, s17, v{vAw}'], [f'v_add_u32 v{cAw1}, s17, v{vAw1}']]
    def step(buf, full, rds, tail=(), xfirst=False, zero=False):
        seq = []
        order = ([(AX, WX)] if full else []) + [(AO, WO)] if xfirst else [(AO, WO)] + ([(AX, WX)] if full else [])
        for acc, W in order:
            for i in range(2):
                for jj in range(4):
                    j = jj if i == 0 else 3 - jj
                    seq.append((acc + (i*4+j)*4, W[buf] + 4*i, HB[buf] + 4*j))
        per = 1 if len(rds) + len(tail) <= len(seq) else 2
        fill = [[x] for x in rds]
        if per == 2: fill = [sum(fill[k:k+2], []) for k in range(0, len(fill), 2)]
        fill += list(tail)
        for n, (d, a, b) in enumerate(seq):
            mfma(A, d, a, b, '0' if zero else None)
            if n < len(fill):
                for x in fill[n]: A(x)
        for f in fill[len(seq):]:
            for x in f: A(x)
        A('s_waitcnt lgkmcnt(0)')
    A('s_barrier')
    st(11)
    for r in reads(0, 0, True): A(r)
    setup()
    A('s_lshl_b32 s16, s11, 1')
    A('s_add_u32 s16, s16, s14')
    A('s_lshl_b32 s19, s16, 10')
    for j in range(4):
        A(f'buffer_load_dwordx4 {vr(EP+4*j,4)}, v{vL16}, s[20:23], s19 offen sc1')
        if j < 3: A('s_add_u32 s19, s19, 32768')
    A(f'v_and_b32 v{PR}, 15, v1')
    A(f'v_lshlrev_b32 v{PR}, 2, v{PR}')
    for j in range(4):
        A(f'buffer_load_dword v{EP+16+j}, v{PR}, s[24:27], 0 offen offset:{64*j} sc1')
        A(f'buffer_load_dword v{EP+24+j}, v{PR}, s[44:47], 0 offen offset:{64*j} sc1')
    A(f'v_lshrrev_b32 v{PR+1}, 4, v1')
    A(f'v_lshlrev_b32 v{PR+1}, 3, v{PR+1}')
    A('s_lshl_b32 s19, s16, 6')
    A(f'buffer_load_dwordx2 {vr(EP+20,2)}, v{PR+1}, s[28:31], s19 offen')
    A(f'buffer_load_dwordx2 {vr(EP+22,2)}, v{PR+1}, s[28:31], s19 offen offset:32')
    A('s_waitcnt lgkmcnt(0)')
    L0 = opt.get('l0', 0)
    step(0, True, reads(1, 1, True), ADV[:3] + [ADV[3] + (late_store(0) if L0 == 0 else [])], zero=True)
    for k in range(1, L0 + 4):
        A('s_barrier')
        step(1, True, reads(0, 0, True), [late_store(k - L0)] if k >= L0 else [])
        step(0, True, reads(1, 1, True), ADV)
    A(f's_mov_b32 s18, {L0 + 4}')
    A('.p2align 6')
    A.label(f'{name}_g2loop')
    A('s_barrier')
    step(1, True, reads(0, 0, True), [['s_waitcnt vmcnt(0)']])
    step(0, True, reads(1, 1, True), ADV[:3] + [ADV[3] + ['s_add_u32 s18, s18, 1', f's_cmp_lt_u32 s18, {N1}']])
    A(f's_cbranch_scc1 {name}_g2loop')
    A('s_mov_b32 s59, 0')
    A('s_mov_b32 s58, 400000')
    def check(tag, sp):
        A('s_cmp_lg_u32 s59, 0')
        A(f's_cbranch_scc1 {name}_done{tag}')
        A.label(f'{name}_poll{tag}')
        A('s_waitcnt vmcnt(0)')
        A(f'v_readfirstlane_b32 s59, v{PR+16}')
        A('s_cmp_eq_u32 s59, 1')
        A(f's_cbranch_scc1 {name}_got{tag}')
        A('s_mov_b32 s59, 0')
        if sp:
            A('s_sub_u32 s58, s58, 1')
            A(f's_cbranch_scc1 {name}_got{tag}')
            A('s_sleep 1')
        A(f'buffer_load_dword v{PR+16}, v{vFl}, s[36:39], s55 offen sc1')
        A(f's_branch {name}_poll{tag}' if sp else f's_branch {name}_done{tag}')
        A.label(f'{name}_got{tag}')
        for k in range(4):
            A(f'buffer_load_dwordx4 {vr(PR+4*k,4)}, v{vL16}, s[40:43], s57 offen offset:{k*1024} sc1')
        A.label(f'{name}_done{tag}')
    B = 184; C = 192
    pre = {1: ['v_and_b32 v6, 15, v1', 'v_lshrrev_b32 v7, 4, v1', 'v_and_b32 v2, 1, v7', 'v_lshrrev_b32 v7, 1, v7', 'v_lshl_add_u32 v7, v2, 1, v7',
               'v_lshrrev_b32 v2, 1, v6', 'v_xor_b32 v7, v7, v2', 'v_and_b32 v7, 3, v7', 'v_lshl_add_u32 v7, v6, 2, v7', 's_lshl_b32 s15, s12, 12',
               f's_add_u32 s15, s15, {STG}', 'v_lshl_add_u32 v4, v7, 4, s15', 'v_lshrrev_b32 v6, 2, v1', 'v_lshrrev_b32 v7, 3, v1', 'v_xor_b32 v7, v7, v1',
               'v_and_b32 v7, 3, v7', 'v_lshl_add_u32 v5, v1, 4, s15', 'v_lshlrev_b32 v6, 15, v6', 'v_lshl_add_u32 v6, v7, 4, v6', 's_lshl_b32 s19, s10, 11', 's_lshl_b32 s15, s13, 21', 's_add_u32 s19, s19, s15',
               's_lshl_b32 s16, s16, 6', 's_add_u32 s19, s19, s16', 's_mov_b32 s60, 0x3f80', 's_mov_b32 s61, 0x3f800000']}
    for i in range(2):
        for q in range(2):
            pre[1] += [f'v_lshlrev_b32 v{B+4*i+2*q}, 16, v{EP+20+2*i+q}', f'v_and_b32 v{B+4*i+2*q+1}, 0xffff0000, v{EP+20+2*i+q}']
    for j in range(4):
        l = pre.setdefault(2 + j, [])
        for i in range(2):
            c = C + (i*4+j)*4
            for q in range(2):
                l += [f'v_lshlrev_b32 v{c+2*q}, 16, v{EP+4*j+2*i+q}', f'v_and_b32 v{c+2*q+1}, 0xffff0000, v{EP+4*j+2*i+q}']
            l += [f'v_pk_add_f32 {vr(c+2*q,2)}, {vr(c+2*q,2)}, {vr(B+4*i+2*q,2)}' for q in range(2)]
            l += [f'v_add_f32 v{c+r}, v{c+r}, v{EP+24+j}' for r in range(4)]
    assert N2 >= 6
    for it in range(N2):
        A('s_barrier')
        if it == 0:
            step(1, True, reads(0, 0, False), xfirst=True)
            for k in range(4):
                for c in range(4*k, 4*k+4): A(f'v_cvt_pk_bf16_f32 v{AX+c}, v{AX+2*c}, v{AX+2*c+1}')
                A(f'buffer_store_dwordx4 {vr(AX+4*k,4)}, v{vL16}, s[40:43], s56 offen offset:{k*1024} sc1')
        else:
            if it == SIG:
                A('s_waitcnt vmcnt(0)')
                A(f'v_mov_b32 v{PR}, 1')
                A(f'buffer_store_dword v{PR}, v{vFl}, s[36:39], s54 offen sc1')
            if it == POLL:
                A(f'buffer_load_dword v{PR+16}, v{vFl}, s[36:39], s55 offen sc1')
            if it > POLL: check(it, False)
            step(1, False, reads(0, 0, False))
            for x in pre.get(it, []): A(x)
        step(0, False, reads(1, 1, False), ADV if it < N2 - 1 else ())
    check('L', True)
    step(1, False, [])
    st(12)
    A('s_waitcnt vmcnt(0)')
    T = 40
    for j in range(4):
        d = T + 4*j
        for i in range(2):
            a = AO + (i*4+j)*4; pr = PR + (i*4+j)*2
            for r in range(4): A(f'v_dot2_f32_bf16 v{a+r}, v{pr+(r>>1)}, s{60+(r&1)}, v{a+r}')
        for i in range(2):
            a = AO + (i*4+j)*4
            for r in range(4): A(f'v_fma_f32 v{a+r}, v{a+r}, v{EP+16+j}, v{C+(i*4+j)*4+r}')
        for i in range(2):
            a = AO + (i*4+j)*4
            A(f'v_cvt_pk_bf16_f32 v{d+2*i}, v{a}, v{a+1}')
            A(f'v_cvt_pk_bf16_f32 v{d+2*i+1}, v{a+2}, v{a+3}')
        A(f'v_permlane16_swap_b32 v{d}, v{d+2}')
        A(f'v_permlane16_swap_b32 v{d+1}, v{d+3}')
        A(f'ds_write_b128 v4, {vr(d,4)} offset:{1024*j}')
        A(f'ds_read_b128 {vr(76+4*j,4)}, v5 offset:{1024*j}')
        if j:
            A('s_waitcnt lgkmcnt(2)')
            A(f'buffer_store_dwordx4 {vr(72+4*j,4)}, v6, s[32:35], s19 offen {opt.get("omod", "sc1")}')
            A(f's_add_u32 s19, s19, {16*16*2048}')
    A('s_waitcnt lgkmcnt(0)')
    A(f'buffer_store_dwordx4 {vr(88,4)}, v6, s[32:35], s19 offen {opt.get("omod", "sc1")}')

def loaders(A, name, opt):
    NS = 4; N2 = opt.get('n2', 8); N1 = (56 - N2) // 2; NT = N1 + N2
    hm = opt.get('hmod', 'sc1')
    lst = Stamper(A, opt.get('stamp') == 1, 1)
    A('s_load_dwordx4 s[64:67], s[0:1], %d' % KA['w1'])
    A('s_load_dwordx2 s[48:49], s[0:1], %d' % KA['w2'])
    A('s_sub_u32 s12, s12, 4')
    g1_decode(A)
    A('s_lshl_b32 s15, s12, 16')
    A('v_lshlrev_b32 v8, 4, v1')
    A('v_add_u32 v8, s15, v8')
    A('v_add_u32 v9, 0x8000, v8')
    A('s_lshr_b32 s15, s12, 1')
    A('s_lshl_b32 s15, s15, 6')
    A('s_and_b32 s16, s12, 1')
    A('s_lshl_b32 s16, s16, 4')
    A('s_add_u32 s15, s15, s16')
    A('s_and_b32 s16, s11, 1')
    w_voffs(A, 10, 1, 15, 16, 4, range(7))
    A('s_lshl_b32 s43, s12, 12')
    A('s_mul_i32 s44, s12, 7168')
    A(f's_add_u32 s44, s44, {WB0}')
    A('s_mov_b32 s41, 0')
    A('s_mov_b32 s42, 0')
    A('s_lshl_b32 s15, s12, 12')
    A('v_lshlrev_b32 v3, 4, v1')
    A('v_add_u32 v3, s15, v3')
    A('v_and_b32 v17, 15, v1')
    A('v_lshlrev_b32 v17, 7, v17')
    A('v_mov_b32 v20, 1')
    A('v_mov_b32 v21, 0')
    A('s_and_b32 s13, s2, 7')
    A('s_sub_u32 s15, 16, s13')
    A('s_cmp_eq_u32 s13, 0')
    A('s_cselect_b32 s15, 8, s15')
    A('s_bitcmp1_b32 s2, 3')
    A('s_cselect_b32 s13, s15, s13')
    A('s_lshl_b32 s13, s13, 4')
    A('s_lshr_b32 s15, s2, 4')
    A('s_add_u32 s13, s13, s15')
    A('s_lshl_b32 s13, s13, 7')
    A('s_lshl_b32 s14, s10, 4')
    A('s_add_u32 s14, s14, s11')
    A('s_lshl_b32 s14, s14, 7')
    A(f's_add_u32 s14, s14, {FL2}')
    A('s_lshl_b32 s15, s10, 18')
    A(f's_add_u32 s15, s15, {HF_OFF}')
    A('s_mul_i32 s16, s11, 448')
    A(f's_sub_u32 s19, {1024*7168}, s16')
    A('s_waitcnt lgkmcnt(0)')
    srd(A, 20, 4, 's15', 256 * 1024)
    srd(A, 24, 64, 's16', 's19')
    A('s_lshl_b32 s15, s10, 14')
    A(f's_add_u32 s15, s15, {ST_OFF}')
    srd(A, 32, 4, 's15', 16384)
    A('s_lshl_b32 s15, s10, 9')
    A(f's_add_u32 s15, s15, {R2_OFF}')
    srd(A, 36, 4, 's15', 512)
    srd(A, 52, 4, FL_OFF, FL_SIZE)
    srd(A, 56, 48, 0, 3584 * 2048)
    A('s_lshl_b32 s60, s2, 2')
    A('s_add_u32 s60, s60, s12')
    NL2 = 5 if opt.get('sw1', 0) else 4
    A(f's_mul_i32 s60, s60, {128*NL2}')
    A(f's_mov_b32 s50, {(6 if NL2 == 5 else 8) * (NL2 << 17)}')
    hstep = [4096]
    A('v_add_u32 v26, 1024, v8')
    A('v_add_u32 v27, 1024, v9')
    def issue_h(lds):
        A(f's_add_u32 m0, {lds}, s43')
        A('s_nop 0')
        A(f'buffer_load_dwordx4 v8, s[20:23], s41 offen {hm} lds')
        A(f'buffer_load_dwordx4 v26, s[20:23], s41 offen offset:1024 {hm} lds')
        A('s_add_u32 m0, m0, 2048')
        A('s_nop 0')
        A(f'buffer_load_dwordx4 v9, s[20:23], s41 offen {hm} lds')
        A(f'buffer_load_dwordx4 v27, s[20:23], s41 offen offset:1024 {hm} lds')
        A(f's_add_u32 s41, s41, {hstep[0]}')
    def issue_w(lds, srdn=24, so='s42'):
        A(f's_add_u32 s45, {lds}, s44')
        for q in range(7):
            A(f's_add_u32 m0, s45, {q*1024}')
            A('s_nop 0')
            A(f'buffer_load_dwordx4 v{10+q}, s[{srdn}:{srdn+3}], {so} offen lds')
        A(f's_add_u32 s42, s42, {128*7168}')
    def sp2():
        if opt.get('nosp2'): return
        for k in range(NL2): A(f's_buffer_load_dwordx2 s[62:63], s[56:59], s60 offset:{128*k + 60}')
        A('s_add_u32 s60, s60, s50')
        A(f's_sub_u32 s50, {NL2 << 17}, s50')
    sw1 = opt.get('sw1', 0)
    if sw1:
        srd(A, 68, 64, 32 * 7168, 992 * 7168)
        A('s_lshr_b32 s61, s2, 4')
        A('s_lshl_b32 s61, s61, 5')
        A('s_and_b32 s15, s2, 15')
        A('s_add_u32 s61, s61, s15')
        A('s_lshl_b32 s61, s61, 2')
        A('s_add_u32 s61, s61, s12')
        A('s_mul_i32 s61, s61, 3584')
    def sp1(b):
        if sw1:
            for k in range(7): A(f's_buffer_load_dwordx2 s[62:63], s[68:71], s61 offset:{896*b + 128*k + 60}')
    sp1(0)
    def only0(tag, ins):
        A('s_cmp_lg_u32 s12, 0')
        A(f's_cbranch_scc1 {tag}')
        for x in ins: A(x)
        A.label(tag)
    A('s_barrier')
    for k in range(3): issue_w(k * WS)
    if sw1: sp1(1)
    else: sp2(); sp2()
    A('s_lshl_b32 s15, s10, 11')
    A('s_barrier')
    only0(f'{name}_f1', ['buffer_store_dword v20, v21, s[52:55], s13 offen sc1'])
    sp1(2)
    A('s_cmp_lg_u32 s12, 0')
    A(f's_cbranch_scc1 {name}_fl1_go')
    spin(A, f'{name}_fl1', 52, 15, 36, 17, 47, opt.get('pdepth', 4), opt.get('pgap', 2))
    A('s_barrier')
    for k in range(3): issue_h(k * HS)
    sp1(3)
    A('s_mov_b32 s40, 0')
    A('s_mov_b32 s46, 0')
    A('s_waitcnt vmcnt(8)')
    A('s_barrier')
    only0(f'{name}_no5', [f's_add_u32 s13, s13, {FL5}', 'buffer_store_dword v20, v21, s[52:55], s13 offen sc1'])
    A('s_waitcnt vmcnt(4)')
    A('s_barrier')
    def issue():
        issue_h('s40'); issue_w('s46')
        A(f's_add_u32 s40, s40, {HS}')
        A(f's_add_u32 s46, s46, {WS}')
        A(f's_cmp_eq_u32 s40, {3*HS}')
        A('s_cselect_b32 s40, 0, s40')
        A('s_cselect_b32 s46, 0, s46')
    def stats():
        for k in range(4):
            A(f'v_add_f32 v{40+4*k}, v{40+4*k}, v{42+4*k}')
            A(f'v_add_f32 v{41+4*k}, v{41+4*k}, v{43+4*k}')
        for perm in ('quad_perm:[1,0,3,2]', 'quad_perm:[2,3,0,1]', 'row_half_mirror'):
            for k in range(4):
                for c in range(2):
                    A(f'v_add_f32_dpp v{40+4*k+c}, v{40+4*k+c}, v{40+4*k+c} {perm} row_mask:0xf bank_mask:0xf')
        A('v_and_b32 v4, 3, v1')
        for k in range(1, 4):
            A(f'v_cmp_eq_u32 vcc, {k}, v4')
            for c in range(2): A(f'v_cndmask_b32 v{40+c}, v{40+c}, v{40+4*k+c}, vcc')
        ln_finish(A, 40, 41, 22, 23, 24, 47)
        A('v_lshrrev_b32 v28, 16, v23')
        A('v_lshrrev_b32 v5, 3, v1')
        A('v_lshl_add_u32 v2, v4, 3, v5')
        A('s_lshl_b32 s15, s12, 7')
        A(f's_add_u32 s15, s15, {SGB}')
        A('v_lshl_add_u32 v5, v2, 2, s15')
        A('ds_write_b32 v5, v28')
        A('v_mul_f32 v23, v23, v23')
        A('v_rcp_f32 v23, v23')
        A('s_lshl_b32 s15, s12, 7')
        A('v_lshlrev_b32 v5, 2, v2')
        A('buffer_store_dword v23, v5, s[36:39], s15 offen sc1')
    def loop1(tag, first, last):
        A(f's_mov_b32 s18, {first}')
        A.label(f'{name}_{tag}')
        issue()
        if last == 15:
            A('s_cmp_eq_u32 s18, 15')
            A(f's_cbranch_scc1 {name}_nosp')
            if NL2 == 4:
                A('s_cmp_eq_u32 s18, 13')
                A('s_cselect_b32 s50, 0x80000, s50')
        sp2()
        if last == 15: A.label(f'{name}_nosp')
        A('s_add_u32 s18, s18, 1')
        A(f's_cmp_le_u32 s18, {last}')
        A('s_waitcnt vmcnt(11)')
        A('s_barrier')
        A(f's_cbranch_scc1 {name}_{tag}')
    loop1('l1a', 3, 4)
    A(f's_add_u32 s15, s15, {FL5}')
    A('buffer_load_dword v36, v17, s[52:55], s15 offen sc1')
    issue(); sp2()
    A('s_waitcnt vmcnt(11)')
    A('s_barrier')
    A('v_cmp_ne_u32 vcc, 1, v36')
    A(f's_cbranch_vccz {name}_fl5_go')
    spin(A, f'{name}_fl5', 52, 15, 36, 17, 47, 1, 1)
    for k in range(4): A(f'buffer_load_dwordx4 {vr(40+4*k,4)}, v3, s[32:35], 0 offen offset:{1024*k} sc1')
    loop1('l1b', 6, 7)
    A('s_mov_b32 s41, 1024')
    A(f's_mov_b32 s42, {32*7168}')
    issue(); sp2()
    stats()
    A('s_waitcnt vmcnt(12)')
    A('s_barrier')
    loop1('l1c', 9, 15)
    g2_decode(A)
    gs = opt.get('gskip', 1); TT = GTT if gs else 112 * 1024; hstep[0] = GST if gs else 2048
    A(f's_mul_i32 s15, s12, {2*TT}')
    A('v_lshlrev_b32 v8, 4, v1')
    if gs:
        skipmap(A, 26, 8, 1, 4)
        skipmap(A, 8, 8, 0, 4)
        A('v_subrev_u32 v26, 1024, v26')
    else:
        A('v_mov_b32 v26, v8')
    A('v_add_u32 v8, s15, v8')
    A('v_add_u32 v26, s15, v26')
    A(f'v_add_u32 v9, {TT}, v8')
    A(f'v_add_u32 v27, {TT}, v26')
    A('v_lshrrev_b32 v4, 3, v1')
    A('s_lshl_b32 s15, s12, 4')
    A('v_add_u32 v4, s15, v4')
    A('v_lshlrev_b32 v4, 11, v4')
    A('v_and_b32 v5, 1, v1')
    A('v_lshl_add_u32 v4, v5, 4, v4')
    A('v_lshrrev_b32 v5, 4, v1')
    A('v_and_b32 v5, 1, v5')
    A('v_lshrrev_b32 v6, 1, v1')
    A('v_and_b32 v6, 3, v6')
    A('v_xor_b32 v5, v5, v6')
    A('v_lshl_add_u32 v4, v5, 5, v4')
    A('v_xor_b32 v5, 64, v4')
    A(f'v_add_u32 v5, {16384 - 1024}, v5')
    A('v_lshrrev_b32 v6, 3, v1')
    A('v_cmp_eq_u32 vcc, 3, v6')
    A('v_cndmask_b32 v6, v6, 7, vcc')
    for hsel, (va, sr_) in enumerate(((10, 24), (12, 32))):
        if hsel == 0: A('s_mov_b32 s16, s11')
        else: A('s_xor_b32 s16, s11, 1')
        A('s_and_b32 s19, s16, 8')
        A('v_add_u32 v7, s19, v6')
        A('v_lshlrev_b32 v14, 7, v7')
        A('v_xor_b32 v15, 0x400, v14')
        A('s_and_b32 s15, s16, 7')
        A('s_lshl_b32 s16, s16, 7')
        A('v_mov_b32 v7, s16')
        A(f's_add_u32 s{sr_}, s4, {WC_OFF}')
        A(f's_addc_u32 s{sr_+1}, s5, 0')
        A(f's_cmp_eq_u32 s15, {3 if opt.get("wcopy", 1) else 9}')
        A('s_cselect_b64 vcc, -1, 0')
        A(f's_cselect_b32 s{sr_}, s{sr_}, s48')
        A(f's_cselect_b32 s{sr_+1}, s{sr_+1}, s49')
        A(f's_mov_b32 s{sr_+2}, {3584*2048}')
        A(f's_mov_b32 s{sr_+3}, 0x20000')
        A('v_cndmask_b32 v14, v7, v14, vcc')
        A('v_cndmask_b32 v15, v7, v15, vcc')
        A(f'v_add_u32 v{va}, v4, v14')
        A(f'v_add_u32 v{va+1}, v5, v15')
    A('s_lshl_b32 s44, s12, 11')
    A('s_add_u32 s44, s44, 16384')
    assert N1 == 24
    def mask(st_): return sum(1 << x for x in st_)
    def m64(r, m):
        A(f's_mov_b32 s{r}, {m & 0xffffffff}'); A(f's_mov_b32 s{r+1}, {m >> 32}')
    def sel64(r, m_true, m_false):
        for h in range(2):
            A(f's_mov_b32 s{r+h}, {(m_false >> (32*h)) & 0xffffffff}')
            A(f's_cselect_b32 s{r+h}, {(m_true >> (32*h)) & 0xffffffff}, s{r+h}')
    A('s_and_b32 s15, s9, 7')
    A('s_cmp_eq_u32 s15, 7')
    sel64(38, mask(range(0, 4)), mask(range(24, 28)))
    A('s_cmp_eq_u32 s15, 0')
    sel64(30, mask(range(52, 56)), mask(range(28, 32)))
    A('s_or_b64 s[38:39], s[38:39], s[30:31]')
    A('s_cmp_lg_u32 s8, 0')
    sel64(30, mask(range(28, 56)), mask(range(0, 28)))
    A('s_andn2_b64 s[30:31], s[30:31], s[38:39]')
    A('s_mul_i32 s15, s9, 7')
    A('s_add_u32 s15, s15, 1')
    A('s_lshr_b32 s36, s15, 1')
    A('s_lshl_b64 s[28:29], 7, s36')
    A('s_andn2_b64 s[30:31], s[30:31], s[28:29]')
    m64(64, mask([x for x in range(56) if x % 7 in (1, 2, 5, 6)]))
    A('s_and_b64 s[28:29], s[30:31], s[64:65]')
    A('s_andn2_b64 s[30:31], s[30:31], s[64:65]')
    NE = 15
    def nxt(r=28):
        A(f's_ff1_i32_b64 s61, s[{r}:{r+1}]')
        A(f's_bitset0_b64 s[{r}:{r+1}], s61')
    def seth(): A(f's_mul_i32 s41, s61, {hstep[0]}')
    def setw(): A('s_lshl_b32 s42, s61, 17')
    A(f's_mul_i32 s15, s10, {8*TT}')
    A(f's_add_u32 s15, s15, {GS_OFF if gs else G_OFF}')
    srd(A, 20, 4, 's15', 8 * TT)
    A('s_waitcnt vmcnt(0) lgkmcnt(0)')
    A('s_barrier')
    def issue_w2(lds, full):
        A(f's_add_u32 m0, {lds}, s44')
        A('s_nop 0')
        A(f'buffer_load_dwordx4 v10, s[24:27], s42 offen lds')
        A(f'buffer_load_dwordx4 v11, s[24:27], s42 offen offset:1024 lds')
        if full:
            A('s_add_u32 m0, m0, 8192')
            A('s_nop 0')
            A(f'buffer_load_dwordx4 v12, s[32:35], s42 offen lds')
            A(f'buffer_load_dwordx4 v13, s[32:35], s42 offen offset:1024 lds')
        A(f's_add_u32 s42, s42, {64*2048}')
    def slotadv():
        A(f's_add_u32 s40, s40, {SLOT}')
        A(f's_cmp_eq_u32 s40, {NS*SLOT}')
        A('s_cselect_b32 s40, 0, s40')
    def issue2(full, r=None):
        if r is not None: nxt(r); seth(); setw()
        issue_h('s40'); issue_w2('s40', full)
        slotadv()
    A('s_lshl_b32 s42, s36, 17')
    for k in (2, 3, 0): issue_w2(k * SLOT, True)
    A('s_lshl_b32 s15, s10, 11')
    A(f's_add_u32 s15, s15, {FL2}')
    A('s_lshl_b32 s61, s8, 3')
    A('v_min_u32 v17, 7, v1')
    A('v_add_u32 v17, s61, v17')
    A('v_lshlrev_b32 v17, 7, v17')
    A('s_barrier')
    nxt(); setw(); seth()
    issue_w2(SLOT, True)
    lst(1)
    A('s_barrier')
    lst(2)
    only0(f'{name}_noa', ['buffer_store_dword v20, v21, s[52:55], s14 offen sc1'])
    A('s_waitcnt vmcnt(4)')
    A('s_barrier')
    A('s_barrier')
    PE = opt.get('pe', 1)
    if PE: A('buffer_load_dword v38, v17, s[52:55], s15 offen sc1')
    A('s_barrier')
    if PE:
        A('s_waitcnt vmcnt(0)')
        A('v_cmp_ne_u32 vcc, 1, v38')
        A(f's_cbranch_vccz {name}_fl2_go')
    spin(A, f'{name}_fl2', 52, 15, 36, 17, 47, opt.get('pdepth', 2), opt.get('pgap', 2))
    lst(3)
    issue_h(SLOT)
    A(f's_mov_b32 s40, {2*SLOT}')
    issue2(True, 28); issue2(True, 28)
    A('s_waitcnt vmcnt(16)')
    lst(4)
    A('s_barrier')
    def loop(tag, n, r):
        A(f's_mov_b32 s18, {n}')
        A.label(f'{name}_{tag}')
        issue2(True, r)
        A('s_sub_u32 s18, s18, 1')
        A('s_cmp_lg_u32 s18, 0')
        A('s_waitcnt vmcnt(16)')
        A('s_barrier')
        A(f's_cbranch_scc1 {name}_{tag}')
    L0 = opt.get('l0', 0)
    loop('l2a', 2 + L0, 28)
    A('s_cmp_lg_u32 s12, 0')
    A(f's_cbranch_scc1 {name}_nob')
    A(f's_add_u32 s14, s14, {FL4 - FL2}')
    A('buffer_store_dword v20, v21, s[52:55], s14 offen sc1')
    A.label(f'{name}_nob')
    loop('l2b', NE - 9 - L0, 28)
    A(f's_add_u32 s15, s15, {FL4 - FL2}')
    A('v_and_b32 v17, 15, v1')
    A('v_lshlrev_b32 v17, 7, v17')
    A('buffer_load_dword v36, v17, s[52:55], s15 offen sc1')
    issue2(True, 28)
    A('s_waitcnt vmcnt(16)')
    A('s_barrier')
    A('s_waitcnt vmcnt(8)')
    A('v_cmp_ne_u32 vcc, 1, v36')
    A(f's_cbranch_vccz {name}_fl4_go')
    spin(A, f'{name}_fl4', 52, 15, 36, 17, 47, 1, 1)
    loop('l2c', N1 - NE, 30)
    cnt = lambda s: 0 if s >= NT else (8 if s < N1 else 6)
    for j in range(N1 - NS + 1, NT - 1):
        s = j + NS - 1
        if s < NT: issue2(False, 38)
        A(f's_waitcnt vmcnt({sum(cnt(x) for x in range(j + 2, j + NS))})')
        A('s_barrier')
    if opt.get('stamp') == 1:
        lst(5); lst(6, True); lst(8)
        A('s_cmp_lg_u32 s12, 0')
        A(f's_cbranch_scc1 {name}_end')
        lst.dump(9, 1, 60)

def gen_m(A, name='m_kernel', opt=None):
    opt = opt or {}
    khead(A, name)
    st = Stamper(A, opt.get('stamp'), 1)
    st(0); st(7, True)
    A('s_cmp_ge_u32 s2, 256')
    A(f's_cbranch_scc1 {name}_end')
    A('s_load_dwordx2 s[4:5], s[0:1], %d' % KA['ws'])
    A('s_load_dwordx2 s[6:7], s[0:1], %d' % KA['x'])
    A('v_lshrrev_b32 v2, 6, v0')
    A('v_and_b32 v1, 63, v0')
    A('v_readfirstlane_b32 s12, v2')
    A('s_cmp_ge_u32 s12, 4')
    A(f's_cbranch_scc1 {name}_loader')
    if opt.get('prio'): A(f's_setprio {opt["prio"]}')
    fb_compute(A, name, st, opt)
    late = g1_compute(A, name, st, opt)
    g2_compute(A, name, st, opt, late)
    A('s_waitcnt vmcnt(0)') if opt.get('stamp') else None
    st(5); st(6, True)
    st.dump(13, 0, 244)
    A('s_endpgm')
    A.label(f'{name}_loader')
    loaders(A, name, opt)
    A.label(f'{name}_end')
    A('s_endpgm')
    return dict(name=name, grid=256, block=512, lds=M_LDS, vgpr=256)
```

```python
from common import *

XP = 2112; NP = 80; ZP = 1312
ZB = 16 * XP
RB = ZB + 16 * ZP
FA_LDS = RB + 64

def gen_fa(A, name='fa_kernel', opt=None):
    opt = opt or {}
    smod = opt.get('smod', 'sc1'); sm2 = opt.get('sm2', ''); sm3 = opt.get('sm3', 'sc1'); xmod = opt.get('xmod', 'nt')
    khead(A, name)
    st = Stamper(A, opt.get('stamp'), 0)
    st(0); st(7, True)
    A('s_cmp_ge_u32 s2, 256')
    A(f's_cbranch_scc1 {name}_end')
    A('s_load_dwordx2 s[6:7], s[0:1], %d' % KA['x'])
    A('s_load_dwordx2 s[4:5], s[0:1], %d' % KA['ws'])
    A('s_load_dwordx2 s[8:9], s[0:1], %d' % KA['w1'])
    A('s_load_dwordx2 s[60:61], s[0:1], %d' % KA['w2'])
    if opt.get('cpf', 1):
        A('s_getpc_b64 s[36:37]')
        A(f's_mov_b32 s38, CODE_END-{name}-64')
        A('s_mov_b32 s39, 0x20000')
        A('s_lshr_b32 s13, s2, 3')
        A('s_lshl_b32 s13, s13, 7')
        A('v_lshlrev_b32 v4, 12, v0')
        A('buffer_load_dword v88, v4, s[36:39], s13 offen')
    A('v_lshrrev_b32 v2, 6, v0')
    A('v_and_b32 v1, 63, v0')
    A('s_and_b32 s13, s2, 7')
    A('v_readfirstlane_b32 s12, v2')
    A('s_lshr_b32 s14, s2, 3')
    A('s_and_b32 s11, s14, 1')
    A('s_sub_u32 s15, 16, s13')
    A('s_cmp_eq_u32 s13, 0')
    A('s_cselect_b32 s15, 8, s15')
    A('s_bitcmp1_b32 s14, 1')
    A('s_cselect_b32 s10, s15, s13')
    A('s_lshr_b32 s15, s14, 2')
    A('s_lshl_b32 s15, s15, 4')
    A('s_add_u32 s10, s10, s15')
    A('v_lshrrev_b32 v4, 5, v1')
    A('v_lshlrev_b32 v4, 1, v4')
    A('v_xor_b32 v4, v4, v1')
    A('v_lshlrev_b32 v14, 4, v4')
    A('s_lshl_b32 s13, s12, 9')
    A('s_add_u32 s13, s13, s10')
    A('s_lshl_b32 s63, s13, 2')
    A('s_lshl_b32 s13, s13, 11')
    A(f's_mul_i32 s14, s12, {4*XP}')
    vn, vg = 2, 3
    M1, TC, TS, M2C, M2S, SA1, SA2, SGN, MU, ONES = 16, 24, 40, 56, 60, 64, 68, 72, 73, 76
    GA, SA = 80, 84
    vSt, vTr0, vTr1, vZw, vZr, vU, vE, vE0, vZx, vX0, vZ0 = 108, 90, 91, 92, 93, 94, 95, 96, 97, 98, 99
    F = 112; T = 144; AF = 208; TMP = 112; P = 128; D = 240
    A(f'v_and_b32 v{vn}, 15, v1')
    A(f'v_lshrrev_b32 v{vg}, 4, v1')
    A('s_lshl_b32 s43, s11, 4')
    A('s_add_u32 s43, s43, 1')
    A(f'v_and_b32 v5, 7, v{vn}')
    A('v_add_u32 v5, s43, v5')
    A('v_cvt_f32_u32 v5, v5')
    A(f'v_and_b32 v6, 8, v{vn}')
    A(f'v_cvt_f32_u32 v7, v{vg}')
    A('v_cvt_f32_u32 v8, v6')
    A('v_mul_f32 v9, 0x3d000000, v5')
    A('v_mul_f32 v8, 0x3d000000, v8')
    A('v_mul_f32 v12, 0x41000000, v7')
    A('v_fmac_f32 v8, v12, v9')
    def m1(hh8, th, dl):
        for j in range(8):
            if j: A(f'v_add_f32 v{th}, v{th}, v{dl}')
            A(f'v_cos_f32 v{10 + (j & 1)}, v{th}')
            if j & 1: A(f'v_cvt_pk_bf16_f32 v{M1 + 4*hh8 + j//2}, v10, v11')
    A('v_mov_b32 v13, v8')
    m1(0, 8, 9)
    A('s_waitcnt lgkmcnt(0)')
    srd(A, 20, 6, 0, 2048 * 2048)
    for r in range(4):
        A(f's_add_u32 m0, s14, {r*XP}')
        A('s_nop 0')
        A(f'buffer_load_dwordx4 v14, s[20:23], s13 offen {xmod} lds')
        A(f'buffer_load_dwordx4 v14, s[20:23], s13 offen offset:1024 {xmod} lds')
        if r < 3: A(f's_add_u32 s13, s13, {128*2048}')
    A('v_add_f32 v9, 0x3e800000, v9')
    m1(1, 13, 9)
    A(f'v_lshlrev_b32 v9, 28, v6')
    A(f'v_lshrrev_b32 v10, 16, v9')
    A(f'v_or_b32 v{SGN}, v9, v10')
    A('v_mul_f32 v12, 4.0, v7')
    for hh8 in range(2):
        if hh8: A('v_add_f32 v5, 0x41000000, v5')
        A('v_mul_f32 v13, 0x3a800000, v5')
        A('v_xor_b32 v15, v9, v13')
        A('v_mul_f32 v8, v12, v15')
        for hh in range(2):
            for r in range(4):
                o = 8*hh8 + 4*hh + r
                if r: A('v_add_f32 v8, v8, v15')
                elif hh: A('v_fmac_f32 v8, 0x41500000, v15')
                A(f'v_cos_f32 v{TC+o}, v8')
                A(f'v_sin_f32 v{TS+o}, v8')
    A('s_cmp_eq_u32 s11, 1')
    A('s_cselect_b32 s44, 0xc2000000, 0')
    A(f'v_mov_b32 v{MU}, s44')
    A(f'v_cmp_eq_u32 vcc, 7, v{vn}')
    A(f'v_cndmask_b32 v{MU}, 0, v{MU}, vcc')
    A(f'v_cvt_f32_u32 v5, v{vn}')
    A('v_mul_f32 v13, 0x3d000000, v5')
    A('v_mul_f32 v8, v12, v13')
    for j in range(8):
        if j == 4: A('v_fmac_f32 v8, 0x41500000, v13')
        elif j: A('v_add_f32 v8, v8, v13')
        A(f'v_cos_f32 v{10+(j&1)}, v8')
        A(f'v_sin_f32 v{14+(j&1)}, v8')
        if j & 1:
            A(f'v_cvt_pk_bf16_f32 v{M2C+j//2}, v10, v11')
            A(f'v_cvt_pk_bf16_f32 v{M2S+j//2}, v14, v15')
    for i in range(4): A(f'v_mov_b32 v{ONES+i}, 0x3f803f80')
    A(f'v_lshrrev_b32 v10, 2, v{vn}')
    A(f'v_and_b32 v11, 3, v{vn}')
    A(f'v_mul_u32_u24 v12, {XP}, v10')
    A(f'v_mul_u32_u24 v13, 528, v11')
    A('v_add3_u32 v12, v12, v13, s14')
    A(f'v_and_b32 v13, 1, v{vg}')
    A('v_lshl_add_u32 v12, v13, 8, v12')
    A(f'v_lshrrev_b32 v15, 1, v{vg}')
    A(f'v_lshl_add_u32 v{vSt}, v15, 7, v12')
    for e in range(1, 4): A(f'v_xor_b32 v{vSt+e}, {16*e}, v{vSt}')
    A('v_lshlrev_b32 v12, 6, v10')
    A(f'v_lshl_add_u32 v12, v{vg}, 9, v12')
    A('v_lshl_add_u32 v12, v11, 3, v12')
    A('v_lshl_add_u32 v12, v13, 5, v12')
    A(f'v_add_u32 v{vTr0}, s14, v12')
    A(f'v_xor_b32 v{vTr1}, 32, v{vTr0}')
    A(f's_mul_i32 s15, s12, {4*ZP}')
    A(f's_add_u32 s15, s15, {ZB}')
    A(f'v_mul_u32_u24 v{vZw}, {NP}, v{vn}')
    A(f'v_lshl_add_u32 v{vZw}, v{vg}, 4, v{vZw}')
    A(f'v_add_u32 v{vZw}, s15, v{vZw}')
    A(f'v_mul_u32_u24 v{vX0}, {XP}, v10')
    A(f'v_add_u32 v{vX0}, s14, v{vX0}')
    A(f'v_mul_u32_u24 v{vZ0}, {ZP}, v10')
    A('v_and_b32 v12, 1, v1')
    A(f'v_mul_u32_u24 v12, {8*NP}, v12')
    A(f'v_add3_u32 v{vZ0}, v{vZ0}, v12, s15')
    A('v_cmp_eq_u32 s[46:47], 1, v11')
    A('v_cmp_eq_u32 s[48:49], 2, v11')
    A('v_cmp_eq_u32 s[50:51], 3, v11')
    A(f'v_cmp_eq_u32 s[52:53], v10, v{vg}')
    A('s_cmp_eq_u32 s11, 0')
    A('s_cselect_b32 s16, 8192, 0')
    srd(A, 32, 4, MX_OFF, 's16')
    srd(A, 28, 4, U_OFF, 4 * MB)
    srd(A, 36, 4, E_OFF, 65536)
    A('s_lshr_b32 s65, s12, 1')
    A('s_cmp_lg_u32 s65, 0')
    A('s_cselect_b32 s44, 0.25, 0')
    A(f'v_lshlrev_b32 v8, 9, v{vg}')
    A('v_add_u32 v8, s10, v8')
    A('v_cvt_f32_u32 v8, v8')
    A('v_mul_f32 v13, 0x3a000000, v5')
    A('v_fma_f32 v8, v8, v13, s44')
    A('v_mul_f32 v13, 0x3d800000, v5')
    for j in range(4):
        if j: A('v_add_f32 v8, v8, v13')
        A(f'v_cos_f32 v{SA1+j}, v8')
        A(f'v_sin_f32 v{SA2+j}, v8')
    A(f'v_lshl_add_u32 v12, v{vg}, 2, v10')
    A(f'v_mul_u32_u24 v12, {ZP}, v12')
    A(f'v_add_u32 v{vZx}, {ZB + 64}, v12')
    A('v_lshl_add_u32 v12, v11, 3, v12')
    A('s_and_b32 s15, s12, 1')
    A('s_lshl_b32 s16, s15, 5')
    A(f's_add_u32 s16, s16, {ZB}')
    A(f'v_add_u32 v{vZr}, s16, v12')
    A(f'v_lshlrev_b32 v{vU}, 20, v{vg}')
    A('s_lshl_b32 s16, s15, 2')
    A('s_add_u32 s16, s16, s10')
    A('v_add_u32 v12, s16, v10')
    A('v_and_b32 v12, 7, v12')
    A(f'v_lshl_add_u32 v{vU}, v12, 7, v{vU}')
    A(f'v_lshl_add_u32 v{vU}, v11, 4, v{vU}')
    A('s_lshl_b32 s66, s65, 17')
    A('s_lshl_b32 s16, s10, 10')
    A('s_add_u32 s66, s66, s16')
    A('s_lshl_b32 s16, s11, 6')
    A('s_add_u32 s66, s66, s16')
    A('s_lshl_b32 s16, s15, 2')
    A('s_add_u32 s16, s16, 1')
    A('v_add_u32 v12, s16, v10')
    A(f'v_lshlrev_b32 v{vE0}, 14, v{vg}')
    A(f'v_lshl_add_u32 v{vE}, v12, 9, v{vE0}')
    A('v_cmp_gt_u32 vcc, 8, v12')
    A('s_and_b64 vcc, vcc, s[50:51]')
    A(f'v_cndmask_b32 v{vE}, 4.0, v{vE}, vcc')
    A(f'v_or_b32 v12, s15, v{vn}')
    A('v_cmp_eq_u32 vcc, 0, v12')
    A(f'v_cndmask_b32 v{vE0}, 4.0, v{vE0}, vcc')
    A('s_lshl_b32 s67, s65, 7')
    A('s_add_u32 s67, s67, s10')
    A('s_lshl_b32 s67, s67, 1')
    srd(A, 24, 4, 38 * MB, 2048 * 128)
    A('v_lshlrev_b32 v12, 7, v0')
    A('v_cmp_gt_u32 vcc, 8, v0')
    A('v_cndmask_b32 v12, 4.0, v12, vcc')
    A('s_mul_i32 s15, s2, 1024')
    A('v_mov_b32 v13, 0')
    A(f'buffer_store_dword v13, v12, s[24:27], s15 offen {sm2}')
    npf = 2
    srd(A, 24, 60, 0, 3584 * 2048)
    A('v_lshrrev_b32 v12, 4, v0')
    A('s_mul_i32 s15, s2, 14')
    A('v_add_u32 v12, s15, v12')
    A('v_and_b32 v13, 8, v0')
    A('v_and_b32 v14, 7, v0')
    A('v_lshlrev_b32 v14, 4, v14')
    A('v_lshl_add_u32 v14, v12, 11, v14')
    A('v_add_u32 v12, v12, v13')
    A('v_and_b32 v12, 15, v12')
    A('v_and_b32 v15, 7, v12')
    A('v_cmp_eq_u32 vcc, 3, v15')
    A('v_xor_b32 v15, 4, v12')
    A('v_cndmask_b32 v12, v12, v15, vcc')
    A('v_lshl_add_u32 v104, v12, 7, v14')
    A('v_lshl_add_u32 v14, v13, 7, v14')
    A('v_cmp_gt_u32 vcc, 224, v0')
    A('v_cndmask_b32 v14, 4.0, v14, vcc')
    A('v_cndmask_b32 v104, 4.0, v104, vcc')
    A('buffer_load_dwordx4 v[100:103], v14, s[24:27], 0 offen offset:384')
    if opt.get('tlb'):
        sh = opt['tlb']
        A('s_load_dwordx2 s[68:69], s[0:1], %d' % KA['out'])
        A('s_lshr_b32 s15, s2, 3')
        A(f's_lshl_b32 s15, s15, {sh + 2}')
        A('s_lshl_b32 s16, s12, %d' % sh)
        A('s_add_u32 s15, s15, s16')
        srd(A, 24, 4, 0, 72 * MB)
        A(f'v_lshlrev_b32 v12, {sh + 7}, v1')
        A('v_cmp_gt_u32 vcc, %d, v1' % max(1, (72 * MB >> (sh + 7)) + 1))
        A('v_cndmask_b32 v12, 4.0, v12, vcc')
        A('buffer_load_dword v87, v12, s[24:27], s15 offen')
        A('s_waitcnt lgkmcnt(0)')
        srd(A, 24, 68, 0, 4 * MB)
        A('buffer_load_dword v87, v12, s[24:27], s15 offen')
        npf += 2
    def touch():
        if opt.get('pf', 1):
            srd(A, 24, 8, 0, 1024 * 7168)
            A('v_lshlrev_b32 v12, 7, v0')
            nl = 224 if opt.get('pf', 1) == 1 else 112
            A(f'v_cmp_gt_u32 vcc, {nl}, v0')
            A('v_cndmask_b32 v12, 4.0, v12, vcc')
            if nl == 224: A(f's_mul_i32 s15, s2, {nl*128}')
            else:
                A('s_lshr_b32 s15, s2, 4')
                A('s_lshl_b32 s15, s15, 5')
                A('s_and_b32 s16, s2, 15')
                A('s_add_u32 s15, s15, s16')
                A('s_mul_i32 s15, s15, 14336')
            A('buffer_load_dword v89, v12, s[24:27], s15 offen')
    if not opt.get('pfend') and opt.get('pf', 1):
        touch(); npf += 1
        if opt.get('pw2'):
            srd(A, 24, 60, 0, opt['pw2'] * 2048)
            if opt['pw2'] < 3584: A(f's_mul_i32 s15, s2, {opt["pw2"] * 8}'); A(f'v_cmp_gt_u32 vcc, {opt["pw2"] // 16}, v0'); A('v_cndmask_b32 v12, 4.0, v12, vcc')
            A('buffer_load_dword v88, v12, s[24:27], s15 offen')
            npf += 1
    st(1)
    A(f's_waitcnt vmcnt({npf})')
    st(2)
    E = AutoLgkm(A)
    def mf(d, a, b, z): return f'v_mfma_f32_16x16x32_bf16 {vr(d,4)}, {vr(a,4)}, {vr(b,4)}, {"0" if z else vr(d,4)}'
    def s1rd(r): return [f'ds_read_b64_tr_b16 {vr(AF+8*r+4*hh+2*rd,2)}, v{vTr0 if hh == 0 else vTr1} offset:{r*XP + 256*rd}' for hh in range(2) for rd in range(2)]
    frd = [f'ds_read_b128 {vr(F+4*i,4)}, v{vSt + (i&3)} offset:{64*(i>>2)}' for i in range(8)] + [f'ds_read_u16 v{vX0}, v{vX0}']
    def s1(r): return [mf(T + 16*r + 8*hh8 + 4*hh, AF + 8*r + 4*hh, M1 + 4*hh8, True) for hh8 in range(2) for hh in range(2)]
    for x in s1rd(0) + s1rd(1) + s1rd(2) + frd[:3]: E(x)
    for x in weave(s1(0) + s1(1), s1rd(3) + frd[3:], per=2) + s1(2) + s1(3): E(x)
    D0 = AF + 16; D1 = D
    def tw(r, hh8, tm, p):
        t = T + 16*r + 8*hh8; d = (D1 if hh8 else D0) + 4*r
        return [f'v_pk_mul_f32 {vr(tm+k,2)}, {vr(t+k,2)}, {vr(TC+8*hh8+k,2)}' for k in range(0, 8, 2)] + \
               [f'v_fmac_f32_dpp v{tm+k}, v{t+k}, v{TS+8*hh8+k} row_ror:8 row_mask:0xf bank_mask:0xf' for k in range(8)] + \
               [f'v_cvt_pk_bf16_f32 v{p+k}, v{tm+2*k}, v{tm+2*k+1}' for k in range(4)] + [mf(d, M2C, p, True)] + \
               [f'v_xor_b32_dpp v{p+4+k}, v{p+k}, v{SGN} row_ror:8 row_mask:0xf bank_mask:0xf' for k in range(4)], mf(d, M2S, p + 4, False)
    stm = [x for i in range(8) for x in (mf(SA, ONES, F+4*i, i == 0), mf(GA, F+4*i, F+4*i, i == 0))]
    t0 = []
    for r in range(4):
        a, b = tw(r, 0, AF, AF + 8)
        t0 += a[:6] + ([pb] if r else []) + a[6:]
        pb = b
    mean = [f'v_add_f32_dpp v11, v{SA}, v{SA} quad_perm:[1,0,3,2] row_mask:0xf bank_mask:0xf', f'v_cndmask_b32 v10, v{GA}, v{GA+1}, s[46:47]',
            f'v_lshlrev_b32 v{vX0}, 16, v{vX0}', 'v_add_f32_dpp v11, v11, v11 quad_perm:[2,3,0,1] row_mask:0xf bank_mask:0xf',
            f'v_cndmask_b32 v10, v10, v{GA+2}, s[48:49]', 'v_mul_f32 v15, 0x3a800000, v11', f'v_cndmask_b32 v10, v10, v{GA+3}, s[50:51]'] + \
           [f'v_readlane_b32 s{56+r}, v15, {4*r}' for r in range(4)]
    for x in weave(stm, t0[:48], per=3) + weave(t0[48:], mean, start=6, per=1) + [pb]: E(x)
    class L(list):
        def __call__(self, t): self.append(t)
    sg = L()
    sg('v_add_f32_dpp v10, v10, v10 quad_perm:[1,0,3,2] row_mask:0xf bank_mask:0xf')
    sg(f'v_sub_f32 v{vX0}, v{vX0}, v15')
    sg('v_add_f32_dpp v10, v10, v10 quad_perm:[2,3,0,1] row_mask:0xf bank_mask:0xf')
    ln_finish(sg, 11, 10, 12, 13, 14, 45)
    sg('v_rcp_f32 v13, v13')
    sg(f'v_lshlrev_b32 v12, 9, v{vg}'); sg(f'v_lshlrev_b32 v10, 2, v{vg}'); sg('s_lshl_b32 s15, s12, 4'); sg(f's_add_u32 s15, s15, {RB}')
    sg('v_add_u32 v10, s15, v10')
    def fin(r):
        return [f'v_cvt_pk_bf16_f32 v{D0+4*r+k}, v{D0+4*r+k}, v{D1+4*r+k}' for k in range(4)] + [f'ds_write_b128 v{vZw}, {vr(D0+4*r,4)} offset:{r*ZP}']
    t1 = []
    for r in range(4):
        a, b = tw(r, 1, TMP, P + 8*(r & 1))
        pre = [f'v_mul_f32 v8, s{56+r}, v{MU}', 'v_mov_b32 v9, v8'] + [f'v_pk_add_f32 {vr(T+16*r+8+k,2)}, {vr(T+16*r+8+k,2)}, v[8:9]' for k in range(0, 8, 2)]
        t1 += pre[:2] + ([pb] if r else []) + pre[2:] + a[:12] + (fin(r - 1) if r else []) + a[12:]
        pb = b
    for x in weave(t1[:2*len(sg)], list(sg), per=1)[:]: E(x)
    A('s_mov_b64 exec, s[52:53]')
    E('ds_write_b32 v10, v13')
    A(f'buffer_store_dword v15, v12, s[32:35], s63 offen {sm2}')
    A('s_mov_b64 exec, -1')
    x0 = ['v_mov_b32 v11, 0', f'v_cvt_pk_bf16_f32 v10, v{vX0}, v11', 's_mov_b32 vcc_lo, 0x55555555', 's_mov_b32 vcc_hi, 0x55555555',
          'v_cndmask_b32 v10, 0, v10, vcc', f'ds_write_b64 v{vZ0}, v[10:11] offset:64']
    for x in weave(t1[2*len(sg):], x0, per=1): E(x)
    E(pb)
    A(f'v_lshlrev_b32 v10, 4, v{vg}')
    A(f'v_add_u32 v10, {RB}, v10')
    for x in fin(3): E(x)
    st(3)
    A('s_waitcnt lgkmcnt(0)')
    A('s_barrier')
    st(8)
    RS = F; AM = F + 4; ZF = T; O = T + 36
    A(f'ds_read_b128 {vr(RS,4)}, v10')
    for tau in range(9):
        if tau == 7: A('s_waitcnt lgkmcnt(14)')
        for rd in range(2):
            if tau < 8: A(f'ds_read_b64_tr_b16 {vr(ZF + tau*4 + 2*rd, 2)}, v{vZr} offset:{(rd*8 + tau)*NP}')
            else: A(f'ds_read_b64_tr_b16 {vr(ZF + tau*4 + 2*rd, 2)}, v{vZx} offset:{rd*8*NP}')
    for j in range(0, 4, 2):
        A(f'v_pk_mul_f32 {vr(SA1+j,2)}, {vr(SA1+j,2)}, {vr(RS+j,2)}')
        A(f'v_pk_mul_f32 {vr(SA2+j,2)}, {vr(SA2+j,2)}, {vr(RS+j,2)}')
    for k in range(4): A(f'v_cvt_pk_bf16_f32 v{AM+k}, v{SA1+2*k}, v{SA1+2*k+1}')
    for tau in range(9):
        if tau % 2 == 0: A(f's_waitcnt lgkmcnt({max(14 - 2*tau, 0)})')
        mfma(A, O + 4*tau, AM, ZF + tau*4, '0')
    for r in range(4):
        b = P + 4*r
        for k in range(4): A(f'v_cvt_pk_bf16_f32 v{b+k}, v{O+8*k+r}, v{O+8*k+4+r}')
        A(f'buffer_store_dwordx4 {vr(b,4)}, v{vU}, s[28:31], s66 offen {smod}')
        if r < 3: A('s_add_u32 s66, s66, 0x40000')
    srd(A, 24, 4, WC_OFF, 3584 * 2048)
    A(f's_waitcnt vmcnt({npf + 3})')
    A(f'buffer_store_dwordx4 v[100:103], v104, s[24:27], 0 offen {sm3}')
    A('s_cmp_eq_u32 s11, 0')
    A(f's_cbranch_scc1 {name}_c0')
    for r in range(4):
        A(f'buffer_store_short_d16_hi v{P+4*r+3}, v{vE}, s[36:39], s67 offen {sm2}')
        if r < 3: A('s_add_u32 s67, s67, 4096')
    A(f's_branch {name}_fin')
    A.label(f'{name}_c0')
    for r in range(4):
        A(f'v_cvt_pk_bf16_f32 v{O+32+r}, v{O+32+r}, v{O+32+r}')
        A(f'buffer_store_short v{O+32+r}, v{vE0}, s[36:39], s67 offen {sm2}')
        if r < 3: A('s_add_u32 s67, s67, 4096')
    A.label(f'{name}_fin')
    if opt.get('pfend'):
        touch()
        if opt['pfend'] == 2:
            srd(A, 24, 60, 0, 3584 * 2048)
            A('buffer_load_dword v88, v12, s[24:27], s15 offen')
    st(4)
    A('s_waitcnt vmcnt(0)') if opt.get('stamp') else None
    st(5); st(6, True)
    st.dump(9, 0, 108)
    A.label(f'{name}_end')
    A('s_endpgm')
    return dict(name=name, grid=256, block=256, lds=FA_LDS, vgpr=256)
```

```python
from common import *

XP = 2112; NP = 80; ZP = 1312
ZB = 16 * XP
RB = ZB + 16 * ZP
FA_LDS = RB + 64

def gen_fa(A, name='fa_kernel', opt=None):
    opt = opt or {}
    smod = opt.get('smod', 'sc1'); sm2 = opt.get('sm2', ''); sm3 = opt.get('sm3', 'sc1'); xmod = opt.get('xmod', 'nt')
    khead(A, name)
    st = Stamper(A, opt.get('stamp'), 0)
    st(0); st(7, True)
    A('s_cmp_ge_u32 s2, 256')
    A(f's_cbranch_scc1 {name}_end')
    A('s_load_dwordx2 s[6:7], s[0:1], %d' % KA['x'])
    A('s_load_dwordx2 s[4:5], s[0:1], %d' % KA['ws'])
    A('s_load_dwordx2 s[8:9], s[0:1], %d' % KA['w1'])
    A('s_load_dwordx2 s[60:61], s[0:1], %d' % KA['w2'])
    if opt.get('cpf', 1):
        A('s_getpc_b64 s[36:37]')
        A(f's_mov_b32 s38, CODE_END-{name}-64')
        A('s_mov_b32 s39, 0x20000')
        A('s_lshr_b32 s13, s2, 3')
        A('s_lshl_b32 s13, s13, 7')
        A('v_lshlrev_b32 v4, 12, v0')
        A('buffer_load_dword v88, v4, s[36:39], s13 offen')
    A('v_lshrrev_b32 v2, 6, v0')
    A('v_and_b32 v1, 63, v0')
    A('s_and_b32 s13, s2, 7')
    A('v_readfirstlane_b32 s12, v2')
    A('s_lshr_b32 s14, s2, 3')
    A('s_and_b32 s11, s14, 1')
    A('s_sub_u32 s15, 16, s13')
    A('s_cmp_eq_u32 s13, 0')
    A('s_cselect_b32 s15, 8, s15')
    A('s_bitcmp1_b32 s14, 1')
    A('s_cselect_b32 s10, s15, s13')
    A('s_lshr_b32 s15, s14, 2')
    A('s_lshl_b32 s15, s15, 4')
    A('s_add_u32 s10, s10, s15')
    A('v_lshrrev_b32 v4, 5, v1')
    A('v_lshlrev_b32 v4, 1, v4')
    A('v_xor_b32 v4, v4, v1')
    A('v_lshlrev_b32 v14, 4, v4')
    A('s_lshl_b32 s13, s12, 9')
    A('s_add_u32 s13, s13, s10')
    A('s_lshl_b32 s63, s13, 2')
    A('s_lshl_b32 s13, s13, 11')
    A(f's_mul_i32 s14, s12, {4*XP}')
    vn, vg = 2, 3
    M1, TC, TS, M2C, M2S, SA1, SA2, SGN, MU, ONES = 16, 24, 40, 56, 60, 64, 68, 72, 73, 76
    GA, SA = 80, 84
    vSt, vTr0, vTr1, vZw, vZr, vU, vE, vE0, vZx, vX0, vZ0 = 108, 90, 91, 92, 93, 94, 95, 96, 97, 98, 99
    F = 112; T = 144; AF = 208; TMP = 112; P = 128; D = 240
    A(f'v_and_b32 v{vn}, 15, v1')
    A(f'v_lshrrev_b32 v{vg}, 4, v1')
    A('s_lshl_b32 s43, s11, 4')
    A('s_add_u32 s43, s43, 1')
    A(f'v_and_b32 v5, 7, v{vn}')
    A('v_add_u32 v5, s43, v5')
    A('v_cvt_f32_u32 v5, v5')
    A(f'v_and_b32 v6, 8, v{vn}')
    A(f'v_cvt_f32_u32 v7, v{vg}')
    A('v_cvt_f32_u32 v8, v6')
    A('v_mul_f32 v9, 0x3d000000, v5')
    A('v_mul_f32 v8, 0x3d000000, v8')
    A('v_mul_f32 v12, 0x41000000, v7')
    A('v_fmac_f32 v8, v12, v9')
    def m1(hh8, th, dl):
        for j in range(8):
            if j: A(f'v_add_f32 v{th}, v{th}, v{dl}')
            A(f'v_cos_f32 v{10 + (j & 1)}, v{th}')
            if j & 1: A(f'v_cvt_pk_bf16_f32 v{M1 + 4*hh8 + j//2}, v10, v11')
    A('v_mov_b32 v13, v8')
    m1(0, 8, 9)
    A('s_waitcnt lgkmcnt(0)')
    srd(A, 20, 6, 0, 2048 * 2048)
    for r in range(4):
        A(f's_add_u32 m0, s14, {r*XP}')
        A('s_nop 0')
        A(f'buffer_load_dwordx4 v14, s[20:23], s13 offen {xmod} lds')
        A(f'buffer_load_dwordx4 v14, s[20:23], s13 offen offset:1024 {xmod} lds')
        if r < 3: A(f's_add_u32 s13, s13, {128*2048}')
    A('v_add_f32 v9, 0x3e800000, v9')
    m1(1, 13, 9)
    A(f'v_lshlrev_b32 v9, 28, v6')
    A(f'v_lshrrev_b32 v10, 16, v9')
    A(f'v_or_b32 v{SGN}, v9, v10')
    A('v_mul_f32 v12, 4.0, v7')
    for hh8 in range(2):
        if hh8: A('v_add_f32 v5, 0x41000000, v5')
        A('v_mul_f32 v13, 0x3a800000, v5')
        A('v_xor_b32 v15, v9, v13')
        A('v_mul_f32 v8, v12, v15')
        for hh in range(2):
            for r in range(4):
                o = 8*hh8 + 4*hh + r
                if r: A('v_add_f32 v8, v8, v15')
                elif hh: A('v_fmac_f32 v8, 0x41500000, v15')
                A(f'v_cos_f32 v{TC+o}, v8')
                A(f'v_sin_f32 v{TS+o}, v8')
    A('s_cmp_eq_u32 s11, 1')
    A('s_cselect_b32 s44, 0xc2000000, 0')
    A(f'v_mov_b32 v{MU}, s44')
    A(f'v_cmp_eq_u32 vcc, 7, v{vn}')
    A(f'v_cndmask_b32 v{MU}, 0, v{MU}, vcc')
    A(f'v_cvt_f32_u32 v5, v{vn}')
    A('v_mul_f32 v13, 0x3d000000, v5')
    A('v_mul_f32 v8, v12, v13')
    for j in range(8):
        if j == 4: A('v_fmac_f32 v8, 0x41500000, v13')
        elif j: A('v_add_f32 v8, v8, v13')
        A(f'v_cos_f32 v{10+(j&1)}, v8')
        A(f'v_sin_f32 v{14+(j&1)}, v8')
        if j & 1:
            A(f'v_cvt_pk_bf16_f32 v{M2C+j//2}, v10, v11')
            A(f'v_cvt_pk_bf16_f32 v{M2S+j//2}, v14, v15')
    for i in range(4): A(f'v_mov_b32 v{ONES+i}, 0x3f803f80')
    A(f'v_lshrrev_b32 v10, 2, v{vn}')
    A(f'v_and_b32 v11, 3, v{vn}')
    A(f'v_mul_u32_u24 v12, {XP}, v10')
    A(f'v_mul_u32_u24 v13, 528, v11')
    A('v_add3_u32 v12, v12, v13, s14')
    A(f'v_and_b32 v13, 1, v{vg}')
    A('v_lshl_add_u32 v12, v13, 8, v12')
    A(f'v_lshrrev_b32 v15, 1, v{vg}')
    A(f'v_lshl_add_u32 v{vSt}, v15, 7, v12')
    for e in range(1, 4): A(f'v_xor_b32 v{vSt+e}, {16*e}, v{vSt}')
    A('v_lshlrev_b32 v12, 6, v10')
    A(f'v_lshl_add_u32 v12, v{vg}, 9, v12')
    A('v_lshl_add_u32 v12, v11, 3, v12')
    A('v_lshl_add_u32 v12, v13, 5, v12')
    A(f'v_add_u32 v{vTr0}, s14, v12')
    A(f'v_xor_b32 v{vTr1}, 32, v{vTr0}')
    A(f's_mul_i32 s15, s12, {4*ZP}')
    A(f's_add_u32 s15, s15, {ZB}')
    A(f'v_mul_u32_u24 v{vZw}, {NP}, v{vn}')
    A(f'v_lshl_add_u32 v{vZw}, v{vg}, 4, v{vZw}')
    A(f'v_add_u32 v{vZw}, s15, v{vZw}')
    A(f'v_mul_u32_u24 v{vX0}, {XP}, v10')
    A(f'v_add_u32 v{vX0}, s14, v{vX0}')
    A(f'v_mul_u32_u24 v{vZ0}, {ZP}, v10')
    A('v_and_b32 v12, 1, v1')
    A(f'v_mul_u32_u24 v12, {8*NP}, v12')
    A(f'v_add3_u32 v{vZ0}, v{vZ0}, v12, s15')
    A('v_cmp_eq_u32 s[46:47], 1, v11')
    A('v_cmp_eq_u32 s[48:49], 2, v11')
    A('v_cmp_eq_u32 s[50:51], 3, v11')
    A(f'v_cmp_eq_u32 s[52:53], v10, v{vg}')
    A('s_cmp_eq_u32 s11, 0')
    A('s_cselect_b32 s16, 8192, 0')
    srd(A, 32, 4, MX_OFF, 's16')
    srd(A, 28, 4, U_OFF, 4 * MB)
    srd(A, 36, 4, E_OFF, 131072)
    A('s_lshr_b32 s65, s12, 1')
    A('s_cmp_lg_u32 s65, 0')
    A('s_cselect_b32 s44, 0.25, 0')
    A(f'v_lshlrev_b32 v8, 9, v{vg}')
    A('v_add_u32 v8, s10, v8')
    A('v_cvt_f32_u32 v8, v8')
    A('v_mul_f32 v13, 0x3a000000, v5')
    A('v_fma_f32 v8, v8, v13, s44')
    A('v_mul_f32 v13, 0x3d800000, v5')
    for j in range(4):
        if j: A('v_add_f32 v8, v8, v13')
        A(f'v_cos_f32 v{SA1+j}, v8')
        A(f'v_sin_f32 v{SA2+j}, v8')
    A(f'v_lshl_add_u32 v12, v{vg}, 2, v10')
    A(f'v_mul_u32_u24 v12, {ZP}, v12')
    A(f'v_add_u32 v{vZx}, {ZB + 64}, v12')
    A('v_lshl_add_u32 v12, v11, 3, v12')
    A('s_and_b32 s15, s12, 1')
    A('s_lshl_b32 s16, s15, 5')
    A(f's_add_u32 s16, s16, {ZB}')
    A(f'v_add_u32 v{vZr}, s16, v12')
    A(f'v_lshlrev_b32 v{vU}, 20, v{vg}')
    A('s_lshl_b32 s16, s15, 2')
    A('s_add_u32 s16, s16, s10')
    A('v_add_u32 v12, s16, v10')
    A('v_and_b32 v12, 7, v12')
    A(f'v_lshl_add_u32 v{vU}, v12, 7, v{vU}')
    A(f'v_lshl_add_u32 v{vU}, v11, 4, v{vU}')
    A('s_lshl_b32 s66, s65, 17')
    A('s_lshl_b32 s16, s10, 10')
    A('s_add_u32 s66, s66, s16')
    A('s_lshl_b32 s16, s11, 6')
    A('s_add_u32 s66, s66, s16')
    A('s_lshl_b32 s16, s15, 2')
    A('s_add_u32 s16, s16, 1')
    A('v_add_u32 v12, s16, v10')
    A(f'v_lshlrev_b32 v{vE0}, 14, v{vg}')
    A(f'v_lshl_add_u32 v{vE}, v12, 9, v{vE0}')
    A('v_cmp_gt_u32 vcc, 8, v12')
    A('s_and_b64 vcc, vcc, s[50:51]')
    A(f'v_cndmask_b32 v{vE}, 4.0, v{vE}, vcc')
    A(f'v_lshl_add_u32 v{vE0}, v{vn}, 16, v{vE0}')
    A('s_lshl_b32 s16, s15, 1')
    A(f'v_or_b32 v12, s16, v{vn}')
    A('v_cmp_gt_u32 vcc, 2, v12')
    A(f'v_cndmask_b32 v{vE0}, 4.0, v{vE0}, vcc')
    A('s_lshl_b32 s67, s65, 7')
    A('s_add_u32 s67, s67, s10')
    A('s_lshl_b32 s67, s67, 1')
    srd(A, 24, 4, 38 * MB, 2048 * 128)
    A('v_lshlrev_b32 v12, 7, v0')
    A('v_cmp_gt_u32 vcc, 8, v0')
    A('v_cndmask_b32 v12, 4.0, v12, vcc')
    A('s_mul_i32 s15, s2, 1024')
    A('v_mov_b32 v13, 0')
    A(f'buffer_store_dword v13, v12, s[24:27], s15 offen {sm2}')
    npf = 2
    srd(A, 24, 60, 0, 3584 * 2048)
    A('v_lshrrev_b32 v12, 4, v0')
    A('s_mul_i32 s15, s2, 14')
    A('v_add_u32 v12, s15, v12')
    A('v_and_b32 v13, 8, v0')
    A('v_and_b32 v14, 7, v0')
    A('v_lshlrev_b32 v14, 4, v14')
    A('v_lshl_add_u32 v14, v12, 11, v14')
    A('v_add_u32 v12, v12, v13')
    A('v_and_b32 v12, 15, v12')
    A('v_and_b32 v15, 7, v12')
    A('v_cmp_eq_u32 vcc, 3, v15')
    A('v_xor_b32 v15, 4, v12')
    A('v_cndmask_b32 v12, v12, v15, vcc')
    A('v_lshl_add_u32 v104, v12, 7, v14')
    A('v_lshl_add_u32 v14, v13, 7, v14')
    A('v_cmp_gt_u32 vcc, 224, v0')
    A('v_cndmask_b32 v14, 4.0, v14, vcc')
    A('v_cndmask_b32 v104, 4.0, v104, vcc')
    A('buffer_load_dwordx4 v[100:103], v14, s[24:27], 0 offen offset:384')
    if opt.get('tlb'):
        sh = opt['tlb']
        A('s_load_dwordx2 s[68:69], s[0:1], %d' % KA['out'])
        A('s_lshr_b32 s15, s2, 3')
        A(f's_lshl_b32 s15, s15, {sh + 2}')
        A('s_lshl_b32 s16, s12, %d' % sh)
        A('s_add_u32 s15, s15, s16')
        srd(A, 24, 4, 0, 72 * MB)
        A(f'v_lshlrev_b32 v12, {sh + 7}, v1')
        A('v_cmp_gt_u32 vcc, %d, v1' % max(1, (72 * MB >> (sh + 7)) + 1))
        A('v_cndmask_b32 v12, 4.0, v12, vcc')
        A('buffer_load_dword v87, v12, s[24:27], s15 offen')
        A('s_waitcnt lgkmcnt(0)')
        srd(A, 24, 68, 0, 4 * MB)
        A('buffer_load_dword v87, v12, s[24:27], s15 offen')
        npf += 2
    def touch():
        if opt.get('pf', 1):
            srd(A, 24, 8, 0, 1024 * 7168)
            A('v_lshlrev_b32 v12, 7, v0')
            nl = 224 if opt.get('pf', 1) == 1 else 112
            A(f'v_cmp_gt_u32 vcc, {nl}, v0')
            A('v_cndmask_b32 v12, 4.0, v12, vcc')
            if nl == 224: A(f's_mul_i32 s15, s2, {nl*128}')
            else:
                A('s_lshr_b32 s15, s2, 4')
                A('s_lshl_b32 s15, s15, 5')
                A('s_and_b32 s16, s2, 15')
                A('s_add_u32 s15, s15, s16')
                A('s_mul_i32 s15, s15, 14336')
            A('buffer_load_dword v89, v12, s[24:27], s15 offen')
    if not opt.get('pfend') and opt.get('pf', 1):
        touch(); npf += 1
        if opt.get('pw2'):
            srd(A, 24, 60, 0, opt['pw2'] * 2048)
            if opt['pw2'] < 3584: A(f's_mul_i32 s15, s2, {opt["pw2"] * 8}'); A(f'v_cmp_gt_u32 vcc, {opt["pw2"] // 16}, v0'); A('v_cndmask_b32 v12, 4.0, v12, vcc')
            A('buffer_load_dword v88, v12, s[24:27], s15 offen')
            npf += 1
    st(1)
    A(f's_waitcnt vmcnt({npf})')
    st(2)
    E = AutoLgkm(A)
    def mf(d, a, b, z): return f'v_mfma_f32_16x16x32_bf16 {vr(d,4)}, {vr(a,4)}, {vr(b,4)}, {"0" if z else vr(d,4)}'
    def s1rd(r): return [f'ds_read_b64_tr_b16 {vr(AF+8*r+4*hh+2*rd,2)}, v{vTr0 if hh == 0 else vTr1} offset:{r*XP + 256*rd}' for hh in range(2) for rd in range(2)]
    frd = [f'ds_read_b128 {vr(F+4*i,4)}, v{vSt + (i&3)} offset:{64*(i>>2)}' for i in range(8)] + [f'ds_read_u16 v{vX0}, v{vX0}']
    def s1(r): return [mf(T + 16*r + 8*hh8 + 4*hh, AF + 8*r + 4*hh, M1 + 4*hh8, True) for hh8 in range(2) for hh in range(2)]
    for x in s1rd(0) + s1rd(1) + s1rd(2) + frd[:3]: E(x)
    for x in weave(s1(0) + s1(1), s1rd(3) + frd[3:], per=2) + s1(2) + s1(3): E(x)
    D0 = AF + 16; D1 = D
    def tw(r, hh8, tm, p):
        t = T + 16*r + 8*hh8; d = (D1 if hh8 else D0) + 4*r
        return [f'v_pk_mul_f32 {vr(tm+k,2)}, {vr(t+k,2)}, {vr(TC+8*hh8+k,2)}' for k in range(0, 8, 2)] + \
               [f'v_fmac_f32_dpp v{tm+k}, v{t+k}, v{TS+8*hh8+k} row_ror:8 row_mask:0xf bank_mask:0xf' for k in range(8)] + \
               [f'v_cvt_pk_bf16_f32 v{p+k}, v{tm+2*k}, v{tm+2*k+1}' for k in range(4)] + [mf(d, M2C, p, True)] + \
               [f'v_xor_b32_dpp v{p+4+k}, v{p+k}, v{SGN} row_ror:8 row_mask:0xf bank_mask:0xf' for k in range(4)], mf(d, M2S, p + 4, False)
    stm = [x for i in range(8) for x in (mf(SA, ONES, F+4*i, i == 0), mf(GA, F+4*i, F+4*i, i == 0))]
    t0 = []
    for r in range(4):
        a, b = tw(r, 0, AF, AF + 8)
        t0 += a[:6] + ([pb] if r else []) + a[6:]
        pb = b
    mean = [f'v_add_f32_dpp v11, v{SA}, v{SA} quad_perm:[1,0,3,2] row_mask:0xf bank_mask:0xf', f'v_cndmask_b32 v10, v{GA}, v{GA+1}, s[46:47]',
            f'v_lshlrev_b32 v{vX0}, 16, v{vX0}', 'v_add_f32_dpp v11, v11, v11 quad_perm:[2,3,0,1] row_mask:0xf bank_mask:0xf',
            f'v_cndmask_b32 v10, v10, v{GA+2}, s[48:49]', 'v_mul_f32 v15, 0x3a800000, v11', f'v_cndmask_b32 v10, v10, v{GA+3}, s[50:51]'] + \
           [f'v_readlane_b32 s{56+r}, v15, {4*r}' for r in range(4)]
    for x in weave(stm, t0[:48], per=3) + weave(t0[48:], mean, start=6, per=1) + [pb]: E(x)
    class L(list):
        def __call__(self, t): self.append(t)
    sg = L()
    sg('v_add_f32_dpp v10, v10, v10 quad_perm:[1,0,3,2] row_mask:0xf bank_mask:0xf')
    sg('v_add_f32_dpp v10, v10, v10 quad_perm:[2,3,0,1] row_mask:0xf bank_mask:0xf')
    ln_finish(sg, 11, 10, 12, 13, 14, 45)
    sg('v_rcp_f32 v13, v13')
    sg(f'v_sub_f32 v{vX0}, v{vX0}, v12')
    sg('v_sub_f32 v14, v15, v12')
    sg('v_mul_f32 v14, 0x44800000, v14')
    sg(f'v_cvt_pk_bf16_f32 v{vX0}, v{vX0}, v14')
    sg(f'v_lshlrev_b32 v12, 9, v{vg}'); sg(f'v_lshlrev_b32 v10, 2, v{vg}'); sg('s_lshl_b32 s15, s12, 4'); sg(f's_add_u32 s15, s15, {RB}')
    sg('v_add_u32 v10, s15, v10')
    def fin(r):
        return [f'v_cvt_pk_bf16_f32 v{D0+4*r+k}, v{D0+4*r+k}, v{D1+4*r+k}' for k in range(4)] + [f'ds_write_b128 v{vZw}, {vr(D0+4*r,4)} offset:{r*ZP}']
    t1 = []
    for r in range(4):
        a, b = tw(r, 1, TMP, P + 8*(r & 1))
        pre = [f'v_mul_f32 v8, s{56+r}, v{MU}', 'v_mov_b32 v9, v8'] + [f'v_pk_add_f32 {vr(T+16*r+8+k,2)}, {vr(T+16*r+8+k,2)}, v[8:9]' for k in range(0, 8, 2)]
        t1 += pre[:2] + ([pb] if r else []) + pre[2:] + a[:12] + (fin(r - 1) if r else []) + a[12:]
        pb = b
    for x in weave(t1[:2*len(sg)], list(sg), per=1)[:]: E(x)
    A('s_mov_b64 exec, s[52:53]')
    E('ds_write_b32 v10, v13')
    A(f'buffer_store_dword v15, v12, s[32:35], s63 offen {sm2}')
    A('s_mov_b64 exec, -1')
    x0 = ['v_mov_b32 v11, 0', 's_mov_b32 vcc_lo, 0x55555555', 's_mov_b32 vcc_hi, 0x55555555',
          f'v_cndmask_b32 v10, 0, v{vX0}, vcc', f'ds_write_b64 v{vZ0}, v[10:11] offset:64']
    for x in weave(t1[2*len(sg):], x0, per=1): E(x)
    E(pb)
    A(f'v_lshlrev_b32 v10, 4, v{vg}')
    A(f'v_add_u32 v10, {RB}, v10')
    for x in fin(3): E(x)
    st(3)
    A('s_waitcnt lgkmcnt(0)')
    A('s_barrier')
    st(8)
    RS = F; AM = F + 4; ZF = T; O = T + 36
    A(f'ds_read_b128 {vr(RS,4)}, v10')
    for tau in range(9):
        if tau == 7: A('s_waitcnt lgkmcnt(14)')
        for rd in range(2):
            if tau < 8: A(f'ds_read_b64_tr_b16 {vr(ZF + tau*4 + 2*rd, 2)}, v{vZr} offset:{(rd*8 + tau)*NP}')
            else: A(f'ds_read_b64_tr_b16 {vr(ZF + tau*4 + 2*rd, 2)}, v{vZx} offset:{rd*8*NP}')
    for j in range(0, 4, 2):
        A(f'v_pk_mul_f32 {vr(SA1+j,2)}, {vr(SA1+j,2)}, {vr(RS+j,2)}')
        A(f'v_pk_mul_f32 {vr(SA2+j,2)}, {vr(SA2+j,2)}, {vr(RS+j,2)}')
    for k in range(4): A(f'v_cvt_pk_bf16_f32 v{AM+k}, v{SA1+2*k}, v{SA1+2*k+1}')
    for tau in range(9):
        if tau % 2 == 0: A(f's_waitcnt lgkmcnt({max(14 - 2*tau, 0)})')
        mfma(A, O + 4*tau, AM, ZF + tau*4, '0')
    for r in range(4):
        b = P + 4*r
        for k in range(4): A(f'v_cvt_pk_bf16_f32 v{b+k}, v{O+8*k+r}, v{O+8*k+4+r}')
        A(f'buffer_store_dwordx4 {vr(b,4)}, v{vU}, s[28:31], s66 offen {smod}')
        if r < 3: A('s_add_u32 s66, s66, 0x40000')
    srd(A, 24, 4, WC_OFF, 3584 * 2048)
    A(f's_waitcnt vmcnt({npf + 3})')
    A(f'buffer_store_dwordx4 v[100:103], v104, s[24:27], 0 offen {sm3}')
    A('s_cmp_eq_u32 s11, 0')
    A(f's_cbranch_scc1 {name}_c0')
    for r in range(4):
        A(f'buffer_store_short_d16_hi v{P+4*r+3}, v{vE}, s[36:39], s67 offen {sm2}')
        if r < 3: A('s_add_u32 s67, s67, 4096')
    A(f's_branch {name}_fin')
    A.label(f'{name}_c0')
    for r in range(4):
        A(f'v_cvt_pk_bf16_f32 v{O+32+r}, v{O+32+r}, v{O+32+r}')
        A(f'buffer_store_short v{O+32+r}, v{vE0}, s[36:39], s67 offen {sm2}')
        if r < 3: A('s_add_u32 s67, s67, 4096')
    A.label(f'{name}_fin')
    if opt.get('pfend'):
        touch()
        if opt['pfend'] == 2:
            srd(A, 24, 60, 0, 3584 * 2048)
            A('buffer_load_dword v88, v12, s[24:27], s15 offen')
    st(4)
    A('s_waitcnt vmcnt(0)') if opt.get('stamp') else None
    st(5); st(6, True)
    st.dump(9, 0, 108)
    A.label(f'{name}_end')
    A('s_endpgm')
    return dict(name=name, grid=256, block=256, lds=FA_LDS, vgpr=256)
```

```python
from common import *
from g1 import w_voffs, tr_bases

HS = 16384; WS = 28672; WB0 = 3 * HS
XB = 32768; EB = WB0 + 3 * WS
SLOT = 32768
SGB = EB + 1024
SYB = SGB + 512
R1, D1, R2W, D2 = 0, 64, 128, 384
STG = SYB
M_LDS = STG + 16384
FULL = 0x01010101
PX_OFF = 29 * MB
FL_OFF = 38 * MB
GS_OFF = 40 * MB; GST = 3072; GTT = 56 * GST
FL1, FL2, FL3, FL4, FL5 = 0, 32768, 65536, 196608, 229376
FL_SIZE = 2048 * 128

def spin(A, tag, srdn, soff, vflag, vaddr, scnt, depth=4, gap=2):
    A(f's_mov_b32 s{scnt}, 400000')
    ld = lambda k: A(f'buffer_load_dword v{vflag+k}, v{vaddr}, s[{srdn}:{srdn+3}], s{soff} offen sc1')
    for k in range(depth - 1):
        ld(k); A(f's_sleep {gap}')
    A.label(f'{tag}_spin')
    for k in range(depth):
        ld((k + depth - 1) % depth)
        A(f's_waitcnt vmcnt({depth - 1})')
        A(f'v_cmp_ne_u32 vcc, 1, v{vflag+k}')
        A(f's_cbranch_vccz {tag}_go')
        A(f's_sleep {gap}')
    A(f's_sub_u32 s{scnt}, s{scnt}, 1')
    A(f's_cbranch_scc0 {tag}_spin')
    A.label(f'{tag}_go')

def skipmap(A, dst, src, odd, t):
    if odd:
        A(f'v_cmp_lt_u32 vcc, 255, v{src}')
        A(f'v_add_u32 v{dst}, {1024 + 128}, v{src}')
    else:
        A(f'v_cmp_lt_u32 vcc, 383, v{src}')
        if dst != src: A(f'v_mov_b32 v{dst}, v{src}')
    A(f'v_add_u32 v{t}, 128, v{dst}')
    A(f'v_cndmask_b32 v{dst}, v{dst}, v{t}, vcc')

def g1_decode(A):
    A('s_and_b32 s8, s2, 7')
    A('s_lshr_b32 s9, s2, 3')
    A('s_and_b32 s10, s8, 1')
    A('s_lshl_b32 s10, s10, 3')
    A('s_and_b32 s11, s9, 7')
    A('s_add_u32 s10, s10, s11')
    A('s_lshr_b32 s11, s8, 1')
    A('s_lshl_b32 s11, s11, 2')
    A('s_lshr_b32 s9, s9, 3')
    A('s_add_u32 s11, s11, s9')

def g2_decode(A):
    A('s_mov_b32 s9, s11')
    A('s_lshr_b32 s8, s9, 3')
    A('s_and_b32 s11, s9, 7')
    A('s_lshl_b32 s11, s11, 1')
    A('s_add_u32 s11, s11, s8')

def fb_compute(A, name, st, opt):
    A('s_and_b32 s13, s2, 7')
    A('s_lshr_b32 s14, s2, 3')
    A('s_sub_u32 s15, 16, s13')
    A('s_cmp_eq_u32 s13, 0')
    A('s_cselect_b32 s15, 8, s15')
    A('s_bitcmp1_b32 s14, 0')
    A('s_cselect_b32 s10, s15, s13')
    A('s_lshr_b32 s11, s14, 1')
    A('s_sub_u32 s16, 16, s10')
    A('s_and_b32 s16, s16, 15')
    A('s_sub_u32 s17, 15, s11')
    A('s_lshr_b32 s19, s11, 3')
    A('s_cmp_lg_u32 s19, 0')
    A('s_cselect_b32 s16, s16, s10')
    A('s_cselect_b32 s17, s17, s11')
    vn, vg = 2, 3
    A(f'v_and_b32 v{vn}, 15, v1')
    A(f'v_lshrrev_b32 v{vg}, 4, v1')
    A('v_lshrrev_b32 v6, 3, v1')
    A(f'v_and_b32 v7, 1, v{vg}')
    A('v_lshrrev_b32 v8, 1, v1')
    A('v_and_b32 v8, 3, v8')
    A('v_xor_b32 v7, v7, v8')
    A('v_lshlrev_b32 v7, 5, v7')
    A('v_lshl_add_u32 v4, v6, 10, v7')
    A('v_and_b32 v7, 1, v1')
    A('v_lshl_add_u32 v4, v7, 4, v4')
    A('v_add_u32 v7, s17, v6')
    A('v_and_b32 v7, 7, v7')
    A('v_lshl_add_u32 v4, v7, 7, v4')
    A('v_xor_b32 v5, 64, v4')
    A(f'v_add_u32 v5, {8192 - 1024}, v5')
    A('s_lshl_b32 s14, s16, 2')
    A('s_add_u32 s14, s14, s12')
    A('s_lshl_b32 s14, s14, 16')
    A('s_lshl_b32 s18, s12, 13')
    A(f'v_xor_b32 v8, v{vg}, v1')
    A('v_and_b32 v8, 7, v8')
    A('v_lshlrev_b32 v8, 4, v8')
    A('v_lshl_add_u32 v6, v6, 15, v8')
    A('v_xor_b32 v7, 64, v6')
    A(f'v_add_u32 v7, {8*32768 - 1024}, v7')
    A('s_lshl_b32 s61, s12, 19')
    A('s_lshl_b32 s15, s10, 11')
    A('s_add_u32 s61, s61, s15')
    A('s_lshl_b32 s15, s11, 7')
    A('s_add_u32 s61, s61, s15')
    A('s_lshl_b32 s62, s12, 12')
    A(f's_add_u32 s62, s62, {XB}')
    A('s_lshl_b32 s63, s10, 3')
    A('s_add_u32 s63, s63, s11')
    A('s_lshl_b32 s63, s63, 9')
    A('s_sub_u32 s63, s63, 512')
    A('s_cmp_eq_u32 s11, 0')
    A('s_cselect_b32 s15, 65536, 0')
    A('s_add_u32 s63, s63, s15')
    A('s_cmp_lt_u32 s11, 8')
    A('s_cselect_b32 s63, s63, 0x40000000')
    A('s_lshl_b32 s15, s16, 12')
    A('v_mov_b32 v9, s15')
    A('v_mov_b32 v10, s63')
    A('v_cmp_gt_u32 vcc, 32, v1')
    A('v_cndmask_b32 v9, v10, v9, vcc')
    A('v_lshl_add_u32 v9, v1, 4, v9')
    A(f'v_lshlrev_b32 v10, 6, v{vn}')
    A('s_lshl_b32 s15, s12, 8')
    A('s_add_u32 s15, s15, s10')
    A('s_lshl_b32 s15, s15, 2')
    A('s_waitcnt lgkmcnt(0)')
    srd(A, 20, 4, U_OFF, 4 * MB)
    srd(A, 28, 4, E_OFF, 131072)
    for h in range(4):
        A(f's_add_u32 m0, s18, {h*2048}')
        A('s_nop 0')
        A(f'buffer_load_dwordx4 v4, s[20:23], s14 offen lds')
        A(f'buffer_load_dwordx4 v5, s[20:23], s14 offen offset:1024 lds')
        if h < 3: A('s_add_u32 s14, s14, 16384')
    A(f's_mov_b32 m0, {EB}')
    srd(A, 24, 6, 0, 2048 * 2048)
    A('buffer_load_dwordx4 v9, s[28:31], 0 offen lds')
    FR = [16, 48]; EF = 80; B = [112, 144]; ACC = [176, 192]; MA = [208, 212]; VT = 216; VX = 220; X = [224, 232]; VB = 240; MXV = [241, 242]; VH = 243; VE = 244
    srd(A, 40, 4, MX_OFF, 8192)
    for u in range(2):
        A(f's_add_u32 m0, s62, {u*2048}')
        if u: A(f's_add_u32 s61, s61, {4 << 19}')
        else: A('s_nop 0')
        A('buffer_load_dwordx4 v6, s[24:27], s61 offen lds')
        A('buffer_load_dwordx4 v7, s[24:27], s61 offen offset:1024 lds')
    A('s_add_u32 s14, s15, 4096')
    A(f'buffer_load_dword v{MXV[0]}, v10, s[40:43], s15 offen')
    A(f'buffer_load_dword v{MXV[1]}, v10, s[40:43], s14 offen')
    A('s_lshl_b32 s15, s12, 4')
    A(f'v_add_u32 v6, s15, v{vn}')
    A('s_cmp_lg_u32 s10, 0')
    A('s_cselect_b32 s15, -1, 0')
    A('v_sub_u32 v7, s15, v6')
    A('s_cmp_lg_u32 s19, 0')
    A('s_cselect_b64 vcc, -1, 0')
    A('v_cndmask_b32 v6, v6, v7, vcc')
    A('v_and_b32 v6, 127, v6')
    A('v_cvt_f32_u32 v7, v6')
    A('v_mul_f32 v7, 0x3c000000, v7')
    A(f'v_lshlrev_b32 v10, 3, v{vg}')
    A('v_cvt_f32_u32 v10, v10')
    A('v_mul_f32 v10, v10, v7')
    B0 = B[0]
    for j in range(8):
        if j: A('v_add_f32 v10, v10, v7')
        A(f'v_cos_f32 v{12+(j&1)}, v10')
        A(f'v_sin_f32 v{14+(j&1)}, v10')
        if j & 1:
            A(f'v_cvt_pk_bf16_f32 v{B0+j//2}, v12, v13')
            A(f'v_cvt_pk_bf16_f32 v{B0+16+j//2}, v14, v15')
    A('v_and_b32 v8, 1, v6')
    A('v_cmp_eq_u32 vcc, 1, v8')
    A('v_mul_u32_u24 v8, 0x8000, v8')
    A('v_lshl_or_b32 v8, v8, 16, v8')
    A('v_and_b32 v10, 2, v6')
    A('v_mul_u32_u24 v10, 0x4000, v10')
    A('v_lshl_or_b32 v10, v10, 16, v10')
    A('v_xor_b32 v11, v10, v8')
    for k in range(4):
        A(f'v_cndmask_b32 v12, v{B0+k}, v{B0+16+k}, vcc')
        A(f'v_cndmask_b32 v13, v{B0+16+k}, v{B0+k}, vcc')
        A(f'v_xor_b32 v{B0+4+k}, v11, v12')
        A(f'v_xor_b32 v{B0+20+k}, v10, v13')
    for k in range(8):
        A(f'v_xor_b32 v{B0+8+k}, v8, v{B0+k}')
        A(f'v_xor_b32 v{B0+24+k}, v8, v{B0+16+k}')
    A('s_brev_b32 s15, 1')
    for k in range(32): A(f'v_xor_b32 v{B[1]+k}, s15, v{B0+k}')
    A(f'v_lshrrev_b32 v10, 2, v{vn}')
    A(f'v_lshl_add_u32 v10, v{vg}, 3, v10')
    A(f'v_lshrrev_b32 v11, 3, v{vn}')
    A(f'v_and_b32 v12, 1, v{vg}')
    A('v_lshl_add_u32 v11, v12, 1, v11')
    A('v_lshlrev_b32 v11, 5, v11')
    A('v_lshl_add_u32 v10, v10, 7, v11')
    A(f'v_and_b32 v11, 3, v{vn}')
    A(f'v_lshl_add_u32 v{VT}, v11, 3, v10')
    A('s_mul_i32 s15, s19, 96')
    A(f'v_xor_b32 v{VT}, s15, v{VT}')
    for i in range(1, 4): A(f'v_xor_b32 v{VT+i}, {(2*(i&1) + (i>>1))*32}, v{VT}')
    A(f'v_and_b32 v11, 1, v{vn}')
    A('v_lshlrev_b32 v11, 9, v11')
    A(f'v_lshl_add_u32 v11, v{vg}, 4, v11')
    A(f'v_add_u32 v{VE}, {EB}, v11')
    A('s_mul_i32 s15, s19, 3')
    A(f'v_xor_b32 v10, s15, v{vg}')
    A('v_lshrrev_b32 v11, 1, v10')
    A(f'v_lshrrev_b32 v12, 1, v{vn}')
    A('v_xor_b32 v11, v11, v12')
    A('v_lshlrev_b32 v11, 4, v11')
    A(f'v_lshl_add_u32 v11, v{vn}, 7, v11')
    A('v_and_b32 v12, 1, v10')
    A('v_lshl_add_u32 v11, v12, 3, v11')
    A(f'v_add_u32 v{VX}, s62, v11')
    for i in range(1, 4): A(f'v_xor_b32 v{VX+i}, {32*i}, v{VX}')
    A(f'v_lshl_add_u32 v10, v10, 4, v{vn}')
    A(f'v_lshlrev_b32 v{VH}, 4, v10')
    A('v_add_u32 v10, 48, v1')
    A('v_and_b32 v10, 63, v10')
    A(f'v_lshlrev_b32 v{VB}, 2, v10')
    A(f'v_cmp_eq_u32 s[46:47], 0, v{vg}')
    srd(A, 52, 4, HF_OFF, 4 * MB)
    srd(A, 56, 4, ST_OFF, 2048 * 128)
    A('s_cmp_eq_u32 s11, 0')
    A('s_cselect_b32 s15, 8192, 0')
    srd(A, 32, 4, MU_OFF, 's15')
    srd(A, 36, 4, FL_OFF, FL_SIZE)
    A('s_lshl_b32 s13, s10, 3')
    A('s_add_u32 s13, s13, s12')
    st(1)
    A('s_waitcnt vmcnt(6)')
    A('s_barrier')
    st(2)
    def frag(i, p): return FR[i & 1] + 4 * p
    def rd(h):
        i = h >> 1
        return [f'ds_read_b64_tr_b16 {vr(frag(i,p)+2*r2,2)}, v{VT+i} offset:{(32*p+4*r2)*128}' for p in range(4*(h & 1), 4*(h & 1) + 4) for r2 in range(2)]
    def mf(d, a, b, z): return f'v_mfma_f32_16x16x32_bf16 {vr(d,4)}, {vr(a,4)}, {vr(b,4)}, {"0" if z else vr(d,4)}'
    def half(h): return [mf(ACC[u] + 4*(h >> 1), frag(h >> 1, p), B[u] + 4*p, p == 0) for p in range(4*(h & 1), 4*(h & 1) + 4) for u in range(2)]
    ONE = 4; S = [5, 7]; Q = [6, 8]; TM = EF; OUT = EF + 16
    E = AutoLgkm(A)
    for x in rd(0) + [f'ds_read_b128 {vr(EF+4*p,4)}, v{VE} offset:{64*p}' for p in range(8)]: E(x)
    for x in weave(half(0), rd(1), per=2): E(x)
    for x in weave([mf(MA[u], EF + 4*p, B[u] + 4*p, p == 0) for p in range(8) for u in range(2)], rd(2), per=1): E(x)
    misc = [f'v_mov_b32 v{ONE}, 0x3f803f80'] + [f'v_mov_b32 v{r}, 0' for r in S + Q] + [f'v_lshlrev_b32 v9, 2, v{vn}', 's_lshl_b32 s60, s13, 6',
            's_lshl_b32 s14, s13, 15', 's_lshl_b32 s15, s11, 11', 's_add_u32 s14, s14, s15', 's_add_u32 s15, s14, 0x20000']
    for x in weave(half(1), rd(3) + misc, per=3): E(x)
    xr = ['s_waitcnt vmcnt(0)'] + [f'ds_read_b64 {vr(X[u]+2*k2,2)}, v{VX+k2} offset:{u*2048}' for k2 in range(4) for u in range(2)]
    for x in weave(half(2), rd(4) + xr, per=3): E(x)
    for x in weave(half(3), rd(5) + [f'v_add_f32 v{MA[u]}, v{MA[u]}, v{MXV[u]}' for u in range(2)], per=2): E(x)
    def epi(V, pr):
        out = []
        for u in range(2):
            o = OUT + 8*u + 4*pr
            for i2 in range(2):
                i = 2*pr + i2; t = TM + 8*u + 4*i2
                for q in range(2):
                    r_ = X[u] + 2*i + q
                    out += [f'v_lshlrev_b32 v{t+2*q}, 16, v{r_}', f'v_and_b32 v{t+1+2*q}, 0xffff0000, v{r_}']
                out += [f'v_sub_f32 v{t+r}, v{t+r}, v{MA[u]}' for r in range(4)]
                out += [f'v_add_f32 v{t+r}, v{t+r}, v{V[u][i][r]}' for r in range(4)]
                out += [f'v_cvt_pk_bf16_f32 v{o+2*i2+q}, v{t+2*q}, v{t+1+2*q}' for q in range(2)]
            out.append(f'buffer_store_dwordx4 {vr(o,4)}, v{VH}, s[52:55], s{14+u} offen offset:{pr*1024} sc1')
        return out
    def dots(pr): return [x for u in range(2) for k in range(4) for x in
                          (f'v_dot2_f32_bf16 v{S[u]}, v{OUT+8*u+4*pr+k}, v{ONE}, v{S[u]}', f'v_dot2_f32_bf16 v{Q[u]}, v{OUT+8*u+4*pr+k}, v{OUT+8*u+4*pr+k}, v{Q[u]}')]
    RP = 10; SH = 248
    A('s_cmp_lg_u32 s19, 0')
    A(f's_cbranch_scc1 {name}_up')
    pend0 = list(E.pend)
    for lower in (1, 0):
        if not lower:
            A.label(f'{name}_up'); A('s_nop 7'); E.pend = list(pend0)
        if lower:
            V = [[[SH+4*u+i, ACC[u]+4*i, ACC[u]+4*i+1, ACC[u]+4*i+2] for i in range(4)] for u in range(2)]
            def rot(i): return [f'ds_bpermute_b32 v{RP+3*u+(i%3)}, v{VB}, v{ACC[u]+4*i+3}' for u in range(2)]
            def sel(i): return [f'v_cndmask_b32 v{SH+4*u+i}, v{RP+3*u+(i%3)}, v{RP+3*u+((i-1)%3) if i else MA[u]+1}, s[46:47]' for u in range(2)]
        else:
            V = [[[ACC[u]+4*i+3-r for r in range(4)] for i in range(4)] for u in range(2)]
            rot = sel = lambda i: []
        for x in weave(half(4), rot(0) + rd(6) + rot(1), per=2): E(x)
        e0 = sel(0) + sel(1) + epi(V, 0)
        for x in weave(half(5), rd(7) + e0[:16], per=3): E(x)
        for x in weave(half(6) + half(7), rot(2) + e0[16:] + dots(0), start=2, per=4): E(x)
        e1 = epi(V, 1)
        hst = [x for x in e1 if x.startswith('buffer_store')]
        for x in rot(3) + sel(2) + sel(3) + [x for x in e1 if x not in hst]: E(x)
        E.drain()
        if lower: A(f's_branch {name}_join')
    A.label(f'{name}_join')
    st(3)
    A('s_waitcnt vmcnt(0)')
    A('s_barrier')
    st(4)
    for x in dots(1)[:8] + hst + dots(1)[8:]: A(x)
    A(f'buffer_store_dword v{MA[0]}, v9, s[32:35], s60 offen sc1')
    A(f'buffer_store_dword v{MA[1]}, v9, s[32:35], s60 offen offset:256 sc1')
    A(f'v_lshlrev_b32 v40, 7, v{vn}')
    A(f'v_lshrrev_b32 v41, 1, v{vg}')
    A('v_lshl_add_u32 v40, v41, 2, v40')
    A('s_lshl_b32 s14, s13, 11')
    A('s_lshl_b32 s15, s11, 3')
    A('s_add_u32 s14, s14, s15')
    A('s_add_u32 s15, s14, 8192')
    for u in range(2): A(f'v_permlane32_swap_b32 v{S[u]}, v{Q[u]}')
    for u in range(2): A(f'v_add_f32 v{S[u]}, v{S[u]}, v{Q[u]}')
    for u in range(2): A(f'v_mov_b32 v{Q[u]}, v{S[u]}')
    for u in range(2): A(f'v_permlane16_swap_b32 v{S[u]}, v{Q[u]}')
    for u in range(2): A(f'v_add_f32 v{S[u]}, v{S[u]}, v{Q[u]}')
    for u in range(2): A(f'buffer_store_dword v{S[u]}, v40, s[56:59], s{14+u} offen sc1')

def drained(A):
    A('s_waitcnt vmcnt(0)')
    A('s_barrier')

def g1_compute(A, name, st, opt):
    WB = [8, 36]; ACC = 64; HB = [176, 192]
    vAh, cAh, VW, CW = 2, 3, 208, 216
    g1_decode(A)
    A('s_and_b32 s13, s12, 1')
    A('s_lshr_b32 s14, s12, 1')
    A('s_lshl_b32 s15, s13, 13')
    A(f'v_lshlrev_b32 v{vAh}, 4, v1')
    A(f'v_add_u32 v{vAh}, s15, v{vAh}')
    tr_bases(A, 44, 45, 1, 48)
    A('s_cmp_lg_u32 s14, 0')
    A('s_cselect_b64 vcc, -1, 0')
    def gaddr(dst, lam):
        if lam < 12:
            A(f'v_xor_b32 v{dst}, {32*(lam&3)}, v44')
            A(f'v_add_u32 v{dst}, {WB0 + (lam>>2)*1024}, v{dst}')
        else:
            A(f'v_xor_b32 v{dst}, {32*(lam&1)}, v45')
            A(f'v_add_u32 v{dst}, {WB0 + 6144}, v{dst}')
    for k, (l0, l1) in enumerate(zip([4, 5, 2, 3, 0, 1, 6], [8, 9, 10, 11, 12, 13, 7])):
        gaddr(46, l0); gaddr(47, l1)
        A(f'v_cndmask_b32 v{VW+k}, v46, v47, vcc')
    A(f'v_mov_b32 v{cAh}, v{vAh}')
    for k in range(7): A(f'v_mov_b32 v{CW+k}, v{VW+k}')
    for i in range(112): A(f'v_mov_b32 v{ACC+i}, 0')
    A('s_lshl_b32 s15, s10, 1')
    A('s_add_u32 s15, s15, s13')
    gs = opt.get('gskip', 1); TT = GTT if gs else 112 * 1024
    A('s_mul_i32 s15, s15, %d' % (4 * TT))
    A('s_add_u32 s15, s15, %d' % (GS_OFF if gs else G_OFF))
    srd(A, 20, 4, 's15', 4 * TT)
    A('s_mov_b32 s17, 0')
    A('s_mov_b32 s19, 0')
    A('s_mov_b32 s18, 0')
    BV = 240; H2 = 224
    A('s_load_dwordx2 s[24:25], s[0:1], %d' % KA['b1'])
    A('s_and_b32 s52, s11, 1')
    A('s_mul_i32 s15, s11, 7')
    A('s_add_u32 s16, s15, s52')
    A('s_add_u32 s56, s16, 3')
    A('s_cmp_lg_u32 s14, 0')
    A('s_cselect_b32 s53, 4, 2')
    A('s_cselect_b32 s54, 5, 1')
    A('s_cselect_b32 s55, 6, 0')
    for r in (53, 54, 55): A(f's_add_u32 s{r}, s{r}, s16')
    A('s_and_b32 s52, s52, s14')
    A('s_cmp_lg_u32 s52, 0')
    A('s_cselect_b32 s55, s15, s55')
    for r in (53, 54, 55, 56): A(f's_lshl_b32 s{r+4}, s{r}, 6')
    A('s_lshl_b32 s15, s14, 5')
    A('s_add_u32 s60, s60, s15')
    A('v_and_b32 v44, 15, v1')
    A('v_lshlrev_b32 v44, 1, v44')
    A('s_mov_b32 s26, 7168')
    A('s_mov_b32 s27, 0x20000')
    A('s_waitcnt lgkmcnt(0)')
    for i in range(7):
        so, off = 57 + i // 2, (32*(i&1) if i < 6 else 0)
        A(f'buffer_load_ushort v{BV+i}, v44, s[24:27], s{so} offen offset:{off}')
    A('s_barrier')
    A('s_waitcnt vmcnt(0)')
    def reads(s, buf):
        r = []
        for j in range(4):
            r.append(f'ds_read_b128 {vr(HB[buf]+4*j,4)}, v{cAh} offset:{(2*j+s)*1024}')
        for i in range(7):
            for rd in range(2):
                r.append(f'ds_read_b64_tr_b16 {vr(WB[buf]+4*i+2*rd,2)}, v{CW+i} offset:{(2*s + rd) * 7168}')
        return r
    def step(buf, rds, tail=None, nowait=False):
        k = 0; n = 0
        for i in range(7):
            for jj in range(4):
                j = jj if (i & 1) == 0 or opt.get('nosnake') else 3 - jj
                ii = i
                if opt.get('jmajor'):
                    j, ii = (i*4 + jj) // 7, (i*4 + jj) % 7
                    if j & 1: ii = 6 - ii
                mfma(A, ACC + (ii*4+j)*4, WB[buf] + 4*ii, HB[buf] + 4*j)
                if k < len(rds): A(rds[k]); k += 1
                n += 1
                if tail and n - 20 in tail:
                    for t in tail[n - 20]: A(t)
        if not nowait: A('s_waitcnt lgkmcnt(0)')
    A('s_barrier')
    st(8)
    for r in reads(0, 0): A(r)
    A('s_waitcnt lgkmcnt(0)')
    A(f's_branch {name}_g1mid')
    tailB = {-4: [f's_add_u32 s17, s17, {HS}', f's_add_u32 s19, s19, {WS}'], -3: [f's_cmp_eq_u32 s17, {3*HS}', 's_cselect_b32 s17, 0, s17'],
             -2: ['s_cselect_b32 s19, 0, s19', 's_add_u32 s18, s18, 1'], -1: [f'v_add_u32 v{cAh}, s17, v{vAh}', 's_cmp_le_u32 s18, 14']}
    for k in range(7): tailB[k] = [f'v_add_u32 v{CW+k}, s19, v{VW+k}']
    A('.p2align 6')
    A.label(f'{name}_g1loop')
    A('s_barrier')
    step(1, reads(0, 0))
    A.label(f'{name}_g1mid')
    step(0, reads(1, 1), tailB)
    A(f's_cbranch_scc1 {name}_g1loop')
    A('s_barrier')
    gs = opt.get('gskip', 1)
    order = [6, 0, 1, 2, 3, 4, 5]
    SG = 4
    def wset(k): return WB[0] + 8 * (k % 3)
    def wrd(k):
        i = order[k]
        return [f'ds_read_b64_tr_b16 {vr(wset(k)+4*s_+2*rd,2)}, v{CW+i} offset:{(2*s_ + rd) * 7168}' for s_ in range(2) for rd in range(2)]
    BT = 32
    ST4 = [208, 212, 248, 252]
    A('v_and_b32 v2, 15, v1')
    A('s_lshl_b32 s15, s13, 8')
    A(f's_add_u32 s15, s15, {SGB}')
    A('v_lshl_add_u32 v2, v2, 2, s15')
    pre = [f'ds_read_b128 {vr(HB[0]+4*j,4)}, v{cAh} offset:{(2*j)*1024}' for j in range(4)] + wrd(0) + \
          [f'ds_read_b128 {vr(H2+4*j,4)}, v{cAh} offset:{(2*j+1)*1024}' for j in range(4)] + \
          [f'ds_read_b32 v{ST4[j]}, v2 offset:{64*j}' for j in range(4)] + wrd(1)
    setup = []
    for j in range(4):
        for k in range(1, 4): setup.append(f'v_mov_b32 v{ST4[j]+k}, 0')
    for k in range(1, 4): setup.append(f'v_mov_b32 v{BT+k}, 0')
    addr = []
    for r in (53, 54, 55, 56):
        addr += [f's_lshr_b32 s{r}, s{r}, 1', f's_mul_i32 s{r}, s{r}, {GST}'] if gs else [f's_lshl_b32 s{r}, s{r}, 10']
    class L(list):
        def __call__(self, t): self.append(t)
    va = L()
    va('v_and_b32 v4, 15, v1'); va('v_lshlrev_b32 v4, 4, v4'); va('v_and_b32 v6, 16, v1'); va('v_and_b32 v7, 32, v1')
    va('v_lshl_add_u32 v5, v7, 3, v4'); va('v_lshl_add_u32 v4, v6, 5, v5'); va('v_lshrrev_b32 v6, 1, v6'); va('s_lshl_b32 s19, s14, 9')
    va('v_add3_u32 v5, v5, v6, s19')
    if gs:
        skipmap(va, 6, 4, 1, 2); skipmap(va, 4, 4, 0, 2); skipmap(va, 5, 5, 1, 2)
        va('s_cmp_lg_u32 s52, 0'); va('s_cselect_b64 vcc, -1, 0'); va('v_cndmask_b32 v7, v4, v6, vcc')
    else:
        va('v_mov_b32 v6, v4'); va('v_mov_b32 v7, v4')
    def acc(i, j): return ACC + (i*4+j)*4
    def epi_tile(i, j, d):
        a = acc(i, j)
        return [f'v_max_f32 v{a+r}, 0, v{a+r}' for r in range(4)] + \
               [f'v_pk_mul_f32 {vr(a,2)}, {vr(a,2)}, {vr(a,2)}', f'v_pk_mul_f32 {vr(a+2,2)}, {vr(a+2,2)}, {vr(a+2,2)}',
                f'v_cvt_pk_bf16_f32 v{d}, v{a}, v{a+1}', f'v_cvt_pk_bf16_f32 v{d+1}, v{a+2}, v{a+3}']
    late = []
    def epi(i):
        out = []
        for j in range(4):
            if i == 6:
                out += epi_tile(i, j, acc(i, j))
                out.append(f'buffer_store_dwordx2 {vr(acc(i,j),2)}, v5, s[20:23], s56 offen sc1')
                if j < 3: out.append(f's_add_u32 s56, s56, {TT}')
            elif i % 2 == 0:
                out += epi_tile(i, j, acc(i, j))
            else:
                d = acc(i - 1, j)
                out += epi_tile(i, j, d + 2)
                out += [f'v_permlane16_swap_b32 v{d}, v{d+2}', f'v_permlane16_swap_b32 v{d+1}, v{d+3}']
                pp = i // 2
                dst = out if pp < 2 else late
                dst.append(f'buffer_store_dwordx4 {vr(d,4)}, v{[4, 6, 7][pp]}, s[20:23], s{53+pp} offen sc1')
                if j < 3: dst.append(f's_add_u32 s{53+pp}, s{53+pp}, {TT}')
        return out
    for k, i in enumerate(order):
        mf = [(acc(i, j), WB[1] + 4*i, HB[1] + 4*j) for j in range(4)] + [(acc(i, j), wset(k), HB[0] + 4*j) for j in range(4)] + \
             [(acc(i, j), wset(k) + 4, H2 + 4*j) for j in range(4)] + [(acc(i, j), BT, ST4[j]) for j in range(4)]
        if k == 0:
            fill = pre + addr + list(va) + setup
        else:
            fill = (wrd(k + 1) if k + 1 < 7 else []) + epi(order[k - 1])
        per = -(-len(fill) // 15)
        fi = 0
        for n, (d, a, b) in enumerate(mf):
            if k == 0 and n == 4:
                for x in fill[fi:len(pre)]: A(x)
                fi = max(fi, len(pre))
                A('s_waitcnt lgkmcnt(14)')
            if k == 0 and n == 8: A('s_waitcnt lgkmcnt(8)')
            if k == 0 and n == 12:
                for x in fill[fi:]: A(x)
                fi = len(fill)
                A('s_waitcnt vmcnt(0) lgkmcnt(4)')
                A('v_cmp_gt_u32 vcc, 16, v1')
                for j in range(4): A(f'v_cndmask_b32 v{ST4[j]}, 0, v{ST4[j]}, vcc')
            if k > 0 and n == 4: A(f's_waitcnt lgkmcnt({4 if k + 1 < 7 else 0})')
            if n == 10 and k > 0 or (k == 0 and n == 12): A(f'v_mov_b32 v{BT}, v{BV+i}')
            mfma(A, d, a, b)
            if k == 6 and n == 4:
                A('s_barrier')
                st(9)
            for _ in range(per):
                if fi < len(fill): A(fill[fi]); fi += 1
        for x in fill[fi:]: A(x)
    for x in epi(5): A(x)
    return late

def g2_compute(A, name, st, opt, late):
    NS = 4; N2 = opt.get('n2', 8); N1 = (56 - N2) // 2
    SIG = opt.get('sig', 2); POLL = opt.get('poll', 4)
    AO = 8; AX = 40; HB = [72, 88]; WO = [104, 112]; WX = [120, 128]; EP = 136; PR = 224
    vAh, vAw, cAh, cAw, vAw1, cAw1, vL16, vFl = 176, 177, 178, 179, 180, 181, 182, 183
    A('s_load_dwordx2 s[50:51], s[0:1], %d' % KA['b2'])
    A('s_load_dwordx2 s[48:49], s[0:1], %d' % KA['out'])
    A('v_and_b32 v8, 15, v1')
    A('v_lshlrev_b32 v8, 4, v8')
    A('v_and_b32 v10, 16, v1')
    A('v_and_b32 v11, 32, v1')
    A('v_lshl_add_u32 v9, v11, 3, v8')
    A('v_lshl_add_u32 v8, v10, 5, v9')
    A('v_lshrrev_b32 v10, 1, v10')
    A('s_lshl_b32 s15, s13, 13')
    A('s_lshl_b32 s16, s14, 9')
    A('s_add_u32 s16, s16, s15')
    A(f's_add_u32 s16, s16, {3*SLOT + 1024}')
    A('v_add3_u32 v9, v9, v10, s16')
    A('v_add_u32 v8, s15, v8')
    A('s_cmp_lg_u32 s14, 0')
    for k, (b0, b1) in enumerate(((3*SLOT, 0), (2*SLOT + 1024, 1024), (2*SLOT, 0x40000))):
        A(f's_mov_b32 s16, {b0}')
        A(f's_cselect_b32 s16, {b1}, s16')
        A(f'v_add_u32 v{10+k}, s16, v8')
    wr_ = [f'ds_write_b128 v{10+k}, {vr(64+32*k+4*j,4)} offset:{2048*j}' for k in (2, 1, 0) for j in range(4)]
    wr_ += [f'ds_write_b64 v9, {vr(160+4*j,2)} offset:{2048*j}' for j in range(4)]
    ad = [f'v_lshlrev_b32 v{vL16}, 4, v1', f'v_add_u32 v{vAh}, s15, v{vL16}', 'v_lshrrev_b32 v184, 2, v1', 'v_and_b32 v184, 3, v184',
          'v_lshrrev_b32 v185, 4, v1', 'v_lshl_add_u32 v184, v185, 3, v184', 'v_lshrrev_b32 v186, 3, v1', 'v_and_b32 v186, 3, v186',
          'v_lshlrev_b32 v186, 5, v186', 'v_lshl_add_u32 v184, v184, 7, v186', 'v_and_b32 v186, 3, v1', f'v_lshl_add_u32 v{vAw}, v186, 3, v184',
          's_lshl_b32 s16, s14, 6', f'v_xor_b32 v{vAw}, s16, v{vAw}', f'v_add_u32 v{vAw}, 16384, v{vAw}', f'v_xor_b32 v{vAw1}, 32, v{vAw}',
          f'v_add_u32 v{cAh}, {2*SLOT}, v{vAh}', f'v_add_u32 v{cAw}, {2*SLOT}, v{vAw}', f'v_add_u32 v{cAw1}, {2*SLOT}, v{vAw1}', f'v_mov_b32 v{vFl}, 0']
    ad += [f'v_mov_b32 v{192+k}, v{128+k}' for k in range(16)]
    for x in weave(wr_[:8], ad[:16], per=2): A(x)
    A('s_waitcnt vmcnt(0)')
    A('s_barrier')
    st(10)
    for x in weave(wr_[8:], ad[16:], per=3): A(x)
    for k in range(4): A(f's_mov_b32 s{64+k}, s{20+k}' if k < 3 else 's_mov_b32 s67, 0x20000')
    A('s_mov_b32 s68, s55')
    A(f's_mov_b32 s17, {2*SLOT}')
    TT = GTT if opt.get('gskip', 1) else 112 * 1024
    def late_store(k): return [f'buffer_store_dwordx4 {vr(192+4*k,4)}, v7, s[64:67], s68 offen sc1', f's_add_u32 s68, s68, {TT}']
    def setup():
        g2_decode(A)
        A('s_lshl_b32 s15, s10, 1')
        A('s_add_u32 s15, s15, s13')
        A('s_lshl_b32 s16, s15, 17')
        A(f's_add_u32 s16, s16, {HF_OFF}')
        A('s_lshl_b32 s19, s15, 8')
        A(f's_add_u32 s19, s19, {MU_OFF}')
        A('s_lshl_b32 s54, s2, 2')
        A('s_add_u32 s54, s54, s12')
        A('s_xor_b32 s55, s54, 16')
        A('s_lshl_b32 s56, s54, 12')
        A('s_lshl_b32 s57, s55, 12')
        A('s_lshl_b32 s54, s54, 7')
        A('s_lshl_b32 s55, s55, 7')
        A(f's_add_u32 s54, s54, {FL3}')
        A(f's_add_u32 s55, s55, {FL3}')
        srd(A, 20, 4, 's16', 128 * 1024)
        srd(A, 44, 4, 's19', 256)
        A(f's_add_u32 s19, s19, {R2_OFF - MU_OFF}')
        srd(A, 24, 4, 's19', 256)
        srd(A, 28, 50, 0, 2048)
        srd(A, 32, 48, 0, 2048 * 2048)
        srd(A, 40, 4, PX_OFF, 4 * MB)
    A('s_waitcnt lgkmcnt(0)')
    def reads(s, buf, full):
        r = []
        for i in range(2):
            for rd in range(2):
                r.append(f'ds_read_b64_tr_b16 {vr(WO[buf]+4*i+2*rd,2)}, v{cAw1 if i else cAw} offset:{4096*s + 512*rd}')
        for j in range(4):
            r.append(f'ds_read_b128 {vr(HB[buf]+4*j,4)}, v{cAh} offset:{(2*j+s)*1024}')
        if full:
            for i in range(2):
                for rd in range(2):
                    r.append(f'ds_read_b64_tr_b16 {vr(WX[buf]+4*i+2*rd,2)}, v{cAw1 if i else cAw} offset:{8192 + 4096*s + 512*rd}')
        return r
    ADV = [[f's_add_u32 s17, s17, {SLOT}', f's_cmp_eq_u32 s17, {NS*SLOT}'], ['s_cselect_b32 s17, 0, s17', f'v_add_u32 v{cAh}, s17, v{vAh}'],
           [f'v_add_u32 v{cAw}, s17, v{vAw}'], [f'v_add_u32 v{cAw1}, s17, v{vAw1}']]
    def step(buf, full, rds, tail=(), xfirst=False, zero=False):
        seq = []
        order = ([(AX, WX)] if full else []) + [(AO, WO)] if xfirst else [(AO, WO)] + ([(AX, WX)] if full else [])
        for acc, W in order:
            for i in range(2):
                for jj in range(4):
                    j = jj if i == 0 else 3 - jj
                    seq.append((acc + (i*4+j)*4, W[buf] + 4*i, HB[buf] + 4*j))
        per = 1 if len(rds) + len(tail) <= len(seq) else 2
        fill = [[x] for x in rds]
        if per == 2: fill = [sum(fill[k:k+2], []) for k in range(0, len(fill), 2)]
        fill += list(tail)
        for n, (d, a, b) in enumerate(seq):
            mfma(A, d, a, b, '0' if zero else None)
            if n < len(fill):
                for x in fill[n]: A(x)
        for f in fill[len(seq):]:
            for x in f: A(x)
        A('s_waitcnt lgkmcnt(0)')
    A('s_barrier')
    st(11)
    for r in reads(0, 0, True): A(r)
    setup()
    A('s_lshl_b32 s16, s11, 1')
    A('s_add_u32 s16, s16, s14')
    A('s_lshl_b32 s19, s16, 10')
    for j in range(4):
        A(f'buffer_load_dwordx4 {vr(EP+4*j,4)}, v{vL16}, s[20:23], s19 offen sc1')
        if j < 3: A('s_add_u32 s19, s19, 32768')
    A(f'v_and_b32 v{PR}, 15, v1')
    A(f'v_lshlrev_b32 v{PR}, 2, v{PR}')
    for j in range(4):
        A(f'buffer_load_dword v{EP+16+j}, v{PR}, s[24:27], 0 offen offset:{64*j} sc1')
        A(f'buffer_load_dword v{EP+24+j}, v{PR}, s[44:47], 0 offen offset:{64*j} sc1')
    A(f'v_lshrrev_b32 v{PR+1}, 4, v1')
    A(f'v_lshlrev_b32 v{PR+1}, 3, v{PR+1}')
    A('s_lshl_b32 s19, s16, 6')
    A(f'buffer_load_dwordx2 {vr(EP+20,2)}, v{PR+1}, s[28:31], s19 offen')
    A(f'buffer_load_dwordx2 {vr(EP+22,2)}, v{PR+1}, s[28:31], s19 offen offset:32')
    A('s_waitcnt lgkmcnt(0)')
    L0 = opt.get('l0', 0)
    step(0, True, reads(1, 1, True), ADV[:3] + [ADV[3] + (late_store(0) if L0 == 0 else [])], zero=True)
    for k in range(1, L0 + 4):
        A('s_barrier')
        step(1, True, reads(0, 0, True), [late_store(k - L0)] if k >= L0 else [])
        step(0, True, reads(1, 1, True), ADV)
    A(f's_mov_b32 s18, {L0 + 4}')
    A('.p2align 6')
    A.label(f'{name}_g2loop')
    A('s_barrier')
    step(1, True, reads(0, 0, True), [['s_waitcnt vmcnt(0)']])
    step(0, True, reads(1, 1, True), ADV[:3] + [ADV[3] + ['s_add_u32 s18, s18, 1', f's_cmp_lt_u32 s18, {N1}']])
    A(f's_cbranch_scc1 {name}_g2loop')
    A('s_mov_b32 s59, 0')
    A('s_mov_b32 s58, 400000')
    def check(tag, sp):
        A('s_cmp_lg_u32 s59, 0')
        A(f's_cbranch_scc1 {name}_done{tag}')
        A.label(f'{name}_poll{tag}')
        A('s_waitcnt vmcnt(0)')
        A(f'v_readfirstlane_b32 s59, v{PR+16}')
        A('s_cmp_eq_u32 s59, 1')
        A(f's_cbranch_scc1 {name}_got{tag}')
        A('s_mov_b32 s59, 0')
        if sp:
            A('s_sub_u32 s58, s58, 1')
            A(f's_cbranch_scc1 {name}_got{tag}')
            A('s_sleep 1')
        A(f'buffer_load_dword v{PR+16}, v{vFl}, s[36:39], s55 offen sc1')
        A(f's_branch {name}_poll{tag}' if sp else f's_branch {name}_done{tag}')
        A.label(f'{name}_got{tag}')
        for k in range(4):
            A(f'buffer_load_dwordx4 {vr(PR+4*k,4)}, v{vL16}, s[40:43], s57 offen offset:{k*1024} sc1')
        A.label(f'{name}_done{tag}')
    B = 184; C = 192
    pre = {1: ['v_and_b32 v6, 15, v1', 'v_lshrrev_b32 v7, 4, v1', 'v_and_b32 v2, 1, v7', 'v_lshrrev_b32 v7, 1, v7', 'v_lshl_add_u32 v7, v2, 1, v7',
               'v_lshrrev_b32 v2, 1, v6', 'v_xor_b32 v7, v7, v2', 'v_and_b32 v7, 3, v7', 'v_lshl_add_u32 v7, v6, 2, v7', 's_lshl_b32 s15, s12, 12',
               f's_add_u32 s15, s15, {STG}', 'v_lshl_add_u32 v4, v7, 4, s15', 'v_lshrrev_b32 v6, 2, v1', 'v_lshrrev_b32 v7, 3, v1', 'v_xor_b32 v7, v7, v1',
               'v_and_b32 v7, 3, v7', 'v_lshl_add_u32 v5, v1, 4, s15', 'v_lshlrev_b32 v6, 15, v6', 'v_lshl_add_u32 v6, v7, 4, v6', 's_lshl_b32 s19, s10, 11', 's_lshl_b32 s15, s13, 21', 's_add_u32 s19, s19, s15',
               's_lshl_b32 s16, s16, 6', 's_add_u32 s19, s19, s16', 's_mov_b32 s60, 0x3f80', 's_mov_b32 s61, 0x3f800000']}
    for i in range(2):
        for q in range(2):
            pre[1] += [f'v_lshlrev_b32 v{B+4*i+2*q}, 16, v{EP+20+2*i+q}', f'v_and_b32 v{B+4*i+2*q+1}, 0xffff0000, v{EP+20+2*i+q}']
    for j in range(4):
        l = pre.setdefault(2 + j, [])
        for i in range(2):
            c = C + (i*4+j)*4
            for q in range(2):
                l += [f'v_lshlrev_b32 v{c+2*q}, 16, v{EP+4*j+2*i+q}', f'v_and_b32 v{c+2*q+1}, 0xffff0000, v{EP+4*j+2*i+q}']
            l += [f'v_pk_add_f32 {vr(c+2*q,2)}, {vr(c+2*q,2)}, {vr(B+4*i+2*q,2)}' for q in range(2)]
            l += [f'v_add_f32 v{c+r}, v{c+r}, v{EP+24+j}' for r in range(4)]
    assert N2 >= 6
    for it in range(N2):
        A('s_barrier')
        if it == 0:
            step(1, True, reads(0, 0, False), xfirst=True)
            for k in range(4):
                for c in range(4*k, 4*k+4): A(f'v_cvt_pk_bf16_f32 v{AX+c}, v{AX+2*c}, v{AX+2*c+1}')
                A(f'buffer_store_dwordx4 {vr(AX+4*k,4)}, v{vL16}, s[40:43], s56 offen offset:{k*1024} sc1')
        else:
            if it == SIG:
                A('s_waitcnt vmcnt(0)')
                A(f'v_mov_b32 v{PR}, 1')
                A(f'buffer_store_dword v{PR}, v{vFl}, s[36:39], s54 offen sc1')
            if it == POLL:
                A(f'buffer_load_dword v{PR+16}, v{vFl}, s[36:39], s55 offen sc1')
            if it > POLL: check(it, False)
            step(1, False, reads(0, 0, False))
            for x in pre.get(it, []): A(x)
        step(0, False, reads(1, 1, False), ADV if it < N2 - 1 else ())
    check('L', True)
    step(1, False, [])
    st(12)
    A('s_waitcnt vmcnt(0)')
    T = 40
    for j in range(4):
        d = T + 4*j
        for i in range(2):
            a = AO + (i*4+j)*4; pr = PR + (i*4+j)*2
            for r in range(4): A(f'v_dot2_f32_bf16 v{a+r}, v{pr+(r>>1)}, s{60+(r&1)}, v{a+r}')
        for i in range(2):
            a = AO + (i*4+j)*4
            for r in range(4): A(f'v_fma_f32 v{a+r}, v{a+r}, v{EP+16+j}, v{C+(i*4+j)*4+r}')
        for i in range(2):
            a = AO + (i*4+j)*4
            A(f'v_cvt_pk_bf16_f32 v{d+2*i}, v{a}, v{a+1}')
            A(f'v_cvt_pk_bf16_f32 v{d+2*i+1}, v{a+2}, v{a+3}')
        A(f'v_permlane16_swap_b32 v{d}, v{d+2}')
        A(f'v_permlane16_swap_b32 v{d+1}, v{d+3}')
        A(f'ds_write_b128 v4, {vr(d,4)} offset:{1024*j}')
        A(f'ds_read_b128 {vr(76+4*j,4)}, v5 offset:{1024*j}')
        if j:
            A('s_waitcnt lgkmcnt(2)')
            A(f'buffer_store_dwordx4 {vr(72+4*j,4)}, v6, s[32:35], s19 offen {opt.get("omod", "sc1")}')
            A(f's_add_u32 s19, s19, {16*16*2048}')
    A('s_waitcnt lgkmcnt(0)')
    A(f'buffer_store_dwordx4 {vr(88,4)}, v6, s[32:35], s19 offen {opt.get("omod", "sc1")}')

def loaders(A, name, opt):
    NS = 4; N2 = opt.get('n2', 8); N1 = (56 - N2) // 2; NT = N1 + N2
    hm = opt.get('hmod', 'sc1')
    lst = Stamper(A, opt.get('stamp') == 1, 1)
    A('s_load_dwordx4 s[64:67], s[0:1], %d' % KA['w1'])
    A('s_load_dwordx2 s[48:49], s[0:1], %d' % KA['w2'])
    A('s_sub_u32 s12, s12, 4')
    g1_decode(A)
    A('s_lshl_b32 s15, s12, 16')
    A('v_lshlrev_b32 v8, 4, v1')
    A('v_add_u32 v8, s15, v8')
    A('v_add_u32 v9, 0x8000, v8')
    A('s_lshr_b32 s15, s12, 1')
    A('s_lshl_b32 s15, s15, 6')
    A('s_and_b32 s16, s12, 1')
    A('s_lshl_b32 s16, s16, 4')
    A('s_add_u32 s15, s15, s16')
    A('s_and_b32 s16, s11, 1')
    w_voffs(A, 10, 1, 15, 16, 4, range(7))
    A('s_lshl_b32 s43, s12, 12')
    A('s_mul_i32 s44, s12, 7168')
    A(f's_add_u32 s44, s44, {WB0}')
    A('s_mov_b32 s41, 0')
    A('s_mov_b32 s42, 0')
    A('s_lshl_b32 s15, s12, 12')
    A('v_lshlrev_b32 v3, 4, v1')
    A('v_add_u32 v3, s15, v3')
    A('v_and_b32 v17, 15, v1')
    A('v_lshlrev_b32 v17, 7, v17')
    A('v_mov_b32 v20, 1')
    A('v_mov_b32 v21, 0')
    A('s_and_b32 s13, s2, 7')
    A('s_sub_u32 s15, 16, s13')
    A('s_cmp_eq_u32 s13, 0')
    A('s_cselect_b32 s15, 8, s15')
    A('s_bitcmp1_b32 s2, 3')
    A('s_cselect_b32 s13, s15, s13')
    A('s_lshl_b32 s13, s13, 4')
    A('s_lshr_b32 s15, s2, 4')
    A('s_add_u32 s13, s13, s15')
    A('s_lshl_b32 s13, s13, 7')
    A('s_lshl_b32 s14, s10, 4')
    A('s_add_u32 s14, s14, s11')
    A('s_lshl_b32 s14, s14, 7')
    A(f's_add_u32 s14, s14, {FL2}')
    A('s_lshl_b32 s15, s10, 18')
    A(f's_add_u32 s15, s15, {HF_OFF}')
    A('s_mul_i32 s16, s11, 448')
    A(f's_sub_u32 s19, {1024*7168}, s16')
    A('s_waitcnt lgkmcnt(0)')
    srd(A, 20, 4, 's15', 256 * 1024)
    srd(A, 24, 64, 's16', 's19')
    A('s_lshl_b32 s15, s10, 14')
    A(f's_add_u32 s15, s15, {ST_OFF}')
    srd(A, 32, 4, 's15', 16384)
    A('s_lshl_b32 s15, s10, 9')
    A(f's_add_u32 s15, s15, {R2_OFF}')
    srd(A, 36, 4, 's15', 512)
    srd(A, 52, 4, FL_OFF, FL_SIZE)
    srd(A, 56, 48, 0, 3584 * 2048)
    A('s_lshl_b32 s60, s2, 2')
    A('s_add_u32 s60, s60, s12')
    NL2 = 5 if opt.get('sw1', 0) else 4
    A(f's_mul_i32 s60, s60, {128*NL2}')
    A(f's_mov_b32 s50, {(6 if NL2 == 5 else 8) * (NL2 << 17)}')
    hstep = [4096]
    A('v_add_u32 v26, 1024, v8')
    A('v_add_u32 v27, 1024, v9')
    def issue_h(lds):
        A(f's_add_u32 m0, {lds}, s43')
        A('s_nop 0')
        A(f'buffer_load_dwordx4 v8, s[20:23], s41 offen {hm} lds')
        A(f'buffer_load_dwordx4 v26, s[20:23], s41 offen offset:1024 {hm} lds')
        A('s_add_u32 m0, m0, 2048')
        A('s_nop 0')
        A(f'buffer_load_dwordx4 v9, s[20:23], s41 offen {hm} lds')
        A(f'buffer_load_dwordx4 v27, s[20:23], s41 offen offset:1024 {hm} lds')
        A(f's_add_u32 s41, s41, {hstep[0]}')
    def issue_w(lds, srdn=24, so='s42'):
        A(f's_add_u32 s45, {lds}, s44')
        for q in range(7):
            A(f's_add_u32 m0, s45, {q*1024}')
            A('s_nop 0')
            A(f'buffer_load_dwordx4 v{10+q}, s[{srdn}:{srdn+3}], {so} offen lds')
        A(f's_add_u32 s42, s42, {128*7168}')
    def sp2():
        if opt.get('nosp2'): return
        for k in range(NL2): A(f's_buffer_load_dwordx2 s[62:63], s[56:59], s60 offset:{128*k + 60}')
        A('s_add_u32 s60, s60, s50')
        A(f's_sub_u32 s50, {NL2 << 17}, s50')
    sw1 = opt.get('sw1', 0)
    if sw1:
        srd(A, 68, 64, 32 * 7168, 992 * 7168)
        A('s_lshr_b32 s61, s2, 4')
        A('s_lshl_b32 s61, s61, 5')
        A('s_and_b32 s15, s2, 15')
        A('s_add_u32 s61, s61, s15')
        A('s_lshl_b32 s61, s61, 2')
        A('s_add_u32 s61, s61, s12')
        A('s_mul_i32 s61, s61, 3584')
    def sp1(b):
        if sw1:
            for k in range(7): A(f's_buffer_load_dwordx2 s[62:63], s[68:71], s61 offset:{896*b + 128*k + 60}')
    sp1(0)
    def only0(tag, ins):
        A('s_cmp_lg_u32 s12, 0')
        A(f's_cbranch_scc1 {tag}')
        for x in ins: A(x)
        A.label(tag)
    A('s_barrier')
    for k in range(3): issue_w(k * WS)
    if sw1: sp1(1)
    else: sp2(); sp2()
    A('s_lshl_b32 s15, s10, 11')
    A('s_barrier')
    only0(f'{name}_f1', ['buffer_store_dword v20, v21, s[52:55], s13 offen sc1'])
    sp1(2)
    A('s_cmp_lg_u32 s12, 0')
    A(f's_cbranch_scc1 {name}_fl1_go')
    spin(A, f'{name}_fl1', 52, 15, 36, 17, 47, opt.get('pdepth', 4), opt.get('pgap', 2))
    A('s_barrier')
    for k in range(3): issue_h(k * HS)
    sp1(3)
    A('s_mov_b32 s40, 0')
    A('s_mov_b32 s46, 0')
    A('s_waitcnt vmcnt(8)')
    A('s_barrier')
    only0(f'{name}_no5', [f's_add_u32 s13, s13, {FL5}', 'buffer_store_dword v20, v21, s[52:55], s13 offen sc1'])
    A('s_waitcnt vmcnt(4)')
    A('s_barrier')
    def issue():
        issue_h('s40'); issue_w('s46')
        A(f's_add_u32 s40, s40, {HS}')
        A(f's_add_u32 s46, s46, {WS}')
        A(f's_cmp_eq_u32 s40, {3*HS}')
        A('s_cselect_b32 s40, 0, s40')
        A('s_cselect_b32 s46, 0, s46')
    def stats():
        for k in range(4):
            A(f'v_add_f32 v{40+4*k}, v{40+4*k}, v{42+4*k}')
            A(f'v_add_f32 v{41+4*k}, v{41+4*k}, v{43+4*k}')
        for perm in ('quad_perm:[1,0,3,2]', 'quad_perm:[2,3,0,1]', 'row_half_mirror'):
            for k in range(4):
                for c in range(2):
                    A(f'v_add_f32_dpp v{40+4*k+c}, v{40+4*k+c}, v{40+4*k+c} {perm} row_mask:0xf bank_mask:0xf')
        A('v_and_b32 v4, 3, v1')
        for k in range(1, 4):
            A(f'v_cmp_eq_u32 vcc, {k}, v4')
            for c in range(2): A(f'v_cndmask_b32 v{40+c}, v{40+c}, v{40+4*k+c}, vcc')
        ln_finish(A, 40, 41, 22, 23, 24, 47)
        A('v_lshrrev_b32 v28, 16, v23')
        A('v_lshrrev_b32 v5, 3, v1')
        A('v_lshl_add_u32 v2, v4, 3, v5')
        A('s_lshl_b32 s15, s12, 7')
        A(f's_add_u32 s15, s15, {SGB}')
        A('v_lshl_add_u32 v5, v2, 2, s15')
        A('ds_write_b32 v5, v28')
        A('v_mul_f32 v23, v23, v23')
        A('v_rcp_f32 v23, v23')
        A('s_lshl_b32 s15, s12, 7')
        A('v_lshlrev_b32 v5, 2, v2')
        A('buffer_store_dword v23, v5, s[36:39], s15 offen sc1')
    def loop1(tag, first, last):
        A(f's_mov_b32 s18, {first}')
        A.label(f'{name}_{tag}')
        issue()
        if last == 15:
            A('s_cmp_eq_u32 s18, 15')
            A(f's_cbranch_scc1 {name}_nosp')
            if NL2 == 4:
                A('s_cmp_eq_u32 s18, 13')
                A('s_cselect_b32 s50, 0x80000, s50')
        sp2()
        if last == 15: A.label(f'{name}_nosp')
        A('s_add_u32 s18, s18, 1')
        A(f's_cmp_le_u32 s18, {last}')
        A('s_waitcnt vmcnt(11)')
        A('s_barrier')
        A(f's_cbranch_scc1 {name}_{tag}')
    loop1('l1a', 3, 4)
    A(f's_add_u32 s15, s15, {FL5}')
    A('buffer_load_dword v36, v17, s[52:55], s15 offen sc1')
    issue(); sp2()
    A('s_waitcnt vmcnt(11)')
    A('s_barrier')
    A('v_cmp_ne_u32 vcc, 1, v36')
    A(f's_cbranch_vccz {name}_fl5_go')
    spin(A, f'{name}_fl5', 52, 15, 36, 17, 47, 1, 1)
    for k in range(4): A(f'buffer_load_dwordx4 {vr(40+4*k,4)}, v3, s[32:35], 0 offen offset:{1024*k} sc1')
    loop1('l1b', 6, 7)
    A('s_mov_b32 s41, 1024')
    A(f's_mov_b32 s42, {32*7168}')
    issue(); sp2()
    stats()
    A('s_waitcnt vmcnt(12)')
    A('s_barrier')
    loop1('l1c', 9, 15)
    g2_decode(A)
    gs = opt.get('gskip', 1); TT = GTT if gs else 112 * 1024; hstep[0] = GST if gs else 2048
    A(f's_mul_i32 s15, s12, {2*TT}')
    A('v_lshlrev_b32 v8, 4, v1')
    if gs:
        skipmap(A, 26, 8, 1, 4)
        skipmap(A, 8, 8, 0, 4)
        A('v_subrev_u32 v26, 1024, v26')
    else:
        A('v_mov_b32 v26, v8')
    A('v_add_u32 v8, s15, v8')
    A('v_add_u32 v26, s15, v26')
    A(f'v_add_u32 v9, {TT}, v8')
    A(f'v_add_u32 v27, {TT}, v26')
    A('v_lshrrev_b32 v4, 3, v1')
    A('s_lshl_b32 s15, s12, 4')
    A('v_add_u32 v4, s15, v4')
    A('v_lshlrev_b32 v4, 11, v4')
    A('v_and_b32 v5, 1, v1')
    A('v_lshl_add_u32 v4, v5, 4, v4')
    A('v_lshrrev_b32 v5, 4, v1')
    A('v_and_b32 v5, 1, v5')
    A('v_lshrrev_b32 v6, 1, v1')
    A('v_and_b32 v6, 3, v6')
    A('v_xor_b32 v5, v5, v6')
    A('v_lshl_add_u32 v4, v5, 5, v4')
    A('v_xor_b32 v5, 64, v4')
    A(f'v_add_u32 v5, {16384 - 1024}, v5')
    A('v_lshrrev_b32 v6, 3, v1')
    A('v_cmp_eq_u32 vcc, 3, v6')
    A('v_cndmask_b32 v6, v6, 7, vcc')
    for hsel, (va, sr_) in enumerate(((10, 24), (12, 32))):
        if hsel == 0: A('s_mov_b32 s16, s11')
        else: A('s_xor_b32 s16, s11, 1')
        A('s_and_b32 s19, s16, 8')
        A('v_add_u32 v7, s19, v6')
        A('v_lshlrev_b32 v14, 7, v7')
        A('v_xor_b32 v15, 0x400, v14')
        A('s_and_b32 s15, s16, 7')
        A('s_lshl_b32 s16, s16, 7')
        A('v_mov_b32 v7, s16')
        A(f's_add_u32 s{sr_}, s4, {WC_OFF}')
        A(f's_addc_u32 s{sr_+1}, s5, 0')
        A(f's_cmp_eq_u32 s15, {3 if opt.get("wcopy", 1) else 9}')
        A('s_cselect_b64 vcc, -1, 0')
        A(f's_cselect_b32 s{sr_}, s{sr_}, s48')
        A(f's_cselect_b32 s{sr_+1}, s{sr_+1}, s49')
        A(f's_mov_b32 s{sr_+2}, {3584*2048}')
        A(f's_mov_b32 s{sr_+3}, 0x20000')
        A('v_cndmask_b32 v14, v7, v14, vcc')
        A('v_cndmask_b32 v15, v7, v15, vcc')
        A(f'v_add_u32 v{va}, v4, v14')
        A(f'v_add_u32 v{va+1}, v5, v15')
    A('s_lshl_b32 s44, s12, 11')
    A('s_add_u32 s44, s44, 16384')
    assert N1 == 24
    def mask(st_): return sum(1 << x for x in st_)
    def m64(r, m):
        A(f's_mov_b32 s{r}, {m & 0xffffffff}'); A(f's_mov_b32 s{r+1}, {m >> 32}')
    def sel64(r, m_true, m_false):
        for h in range(2):
            A(f's_mov_b32 s{r+h}, {(m_false >> (32*h)) & 0xffffffff}')
            A(f's_cselect_b32 s{r+h}, {(m_true >> (32*h)) & 0xffffffff}, s{r+h}')
    A('s_and_b32 s15, s9, 7')
    A('s_cmp_eq_u32 s15, 7')
    sel64(38, mask(range(0, 4)), mask(range(24, 28)))
    A('s_cmp_eq_u32 s15, 0')
    sel64(30, mask(range(52, 56)), mask(range(28, 32)))
    A('s_or_b64 s[38:39], s[38:39], s[30:31]')
    A('s_cmp_lg_u32 s8, 0')
    sel64(30, mask(range(28, 56)), mask(range(0, 28)))
    A('s_andn2_b64 s[30:31], s[30:31], s[38:39]')
    A('s_mul_i32 s15, s9, 7')
    A('s_add_u32 s15, s15, 1')
    A('s_lshr_b32 s36, s15, 1')
    A('s_lshl_b64 s[28:29], 7, s36')
    A('s_andn2_b64 s[30:31], s[30:31], s[28:29]')
    m64(64, mask([x for x in range(56) if x % 7 in (1, 2, 5, 6)]))
    A('s_and_b64 s[28:29], s[30:31], s[64:65]')
    A('s_andn2_b64 s[30:31], s[30:31], s[64:65]')
    NE = 15
    def nxt(r=28):
        A(f's_ff1_i32_b64 s61, s[{r}:{r+1}]')
        A(f's_bitset0_b64 s[{r}:{r+1}], s61')
    def seth(): A(f's_mul_i32 s41, s61, {hstep[0]}')
    def setw(): A('s_lshl_b32 s42, s61, 17')
    A(f's_mul_i32 s15, s10, {8*TT}')
    A(f's_add_u32 s15, s15, {GS_OFF if gs else G_OFF}')
    srd(A, 20, 4, 's15', 8 * TT)
    A('s_waitcnt vmcnt(0) lgkmcnt(0)')
    A('s_barrier')
    def issue_w2(lds, full):
        A(f's_add_u32 m0, {lds}, s44')
        A('s_nop 0')
        A(f'buffer_load_dwordx4 v10, s[24:27], s42 offen lds')
        A(f'buffer_load_dwordx4 v11, s[24:27], s42 offen offset:1024 lds')
        if full:
            A('s_add_u32 m0, m0, 8192')
            A('s_nop 0')
            A(f'buffer_load_dwordx4 v12, s[32:35], s42 offen lds')
            A(f'buffer_load_dwordx4 v13, s[32:35], s42 offen offset:1024 lds')
        A(f's_add_u32 s42, s42, {64*2048}')
    def slotadv():
        A(f's_add_u32 s40, s40, {SLOT}')
        A(f's_cmp_eq_u32 s40, {NS*SLOT}')
        A('s_cselect_b32 s40, 0, s40')
    def issue2(full, r=None):
        if r is not None: nxt(r); seth(); setw()
        issue_h('s40'); issue_w2('s40', full)
        slotadv()
    A('s_lshl_b32 s42, s36, 17')
    for k in (2, 3, 0): issue_w2(k * SLOT, True)
    A('s_lshl_b32 s15, s10, 11')
    A(f's_add_u32 s15, s15, {FL2}')
    A('s_lshl_b32 s61, s8, 3')
    A('v_min_u32 v17, 7, v1')
    A('v_add_u32 v17, s61, v17')
    A('v_lshlrev_b32 v17, 7, v17')
    A('s_barrier')
    nxt(); setw(); seth()
    issue_w2(SLOT, True)
    lst(1)
    A('s_barrier')
    lst(2)
    only0(f'{name}_noa', ['buffer_store_dword v20, v21, s[52:55], s14 offen sc1'])
    A('s_waitcnt vmcnt(4)')
    A('s_barrier')
    A('s_barrier')
    PE = opt.get('pe', 1)
    if PE: A('buffer_load_dword v38, v17, s[52:55], s15 offen sc1')
    A('s_barrier')
    if PE:
        A('s_waitcnt vmcnt(0)')
        A('v_cmp_ne_u32 vcc, 1, v38')
        A(f's_cbranch_vccz {name}_fl2_go')
    spin(A, f'{name}_fl2', 52, 15, 36, 17, 47, opt.get('pdepth', 2), opt.get('pgap', 2))
    lst(3)
    issue_h(SLOT)
    A(f's_mov_b32 s40, {2*SLOT}')
    issue2(True, 28); issue2(True, 28)
    A('s_waitcnt vmcnt(16)')
    lst(4)
    A('s_barrier')
    def loop(tag, n, r):
        A(f's_mov_b32 s18, {n}')
        A.label(f'{name}_{tag}')
        issue2(True, r)
        A('s_sub_u32 s18, s18, 1')
        A('s_cmp_lg_u32 s18, 0')
        A('s_waitcnt vmcnt(16)')
        A('s_barrier')
        A(f's_cbranch_scc1 {name}_{tag}')
    L0 = opt.get('l0', 0)
    loop('l2a', 2 + L0, 28)
    A('s_cmp_lg_u32 s12, 0')
    A(f's_cbranch_scc1 {name}_nob')
    A(f's_add_u32 s14, s14, {FL4 - FL2}')
    A('buffer_store_dword v20, v21, s[52:55], s14 offen sc1')
    A.label(f'{name}_nob')
    loop('l2b', NE - 9 - L0, 28)
    A(f's_add_u32 s15, s15, {FL4 - FL2}')
    A('v_and_b32 v17, 15, v1')
    A('v_lshlrev_b32 v17, 7, v17')
    A('buffer_load_dword v36, v17, s[52:55], s15 offen sc1')
    issue2(True, 28)
    A('s_waitcnt vmcnt(16)')
    A('s_barrier')
    A('s_waitcnt vmcnt(8)')
    A('v_cmp_ne_u32 vcc, 1, v36')
    A(f's_cbranch_vccz {name}_fl4_go')
    spin(A, f'{name}_fl4', 52, 15, 36, 17, 47, 1, 1)
    loop('l2c', N1 - NE, 30)
    cnt = lambda s: 0 if s >= NT else (8 if s < N1 else 6)
    for j in range(N1 - NS + 1, NT - 1):
        s = j + NS - 1
        if s < NT: issue2(False, 38)
        A(f's_waitcnt vmcnt({sum(cnt(x) for x in range(j + 2, j + NS))})')
        A('s_barrier')
    if opt.get('stamp') == 1:
        lst(5); lst(6, True); lst(8)
        A('s_cmp_lg_u32 s12, 0')
        A(f's_cbranch_scc1 {name}_end')
        lst.dump(9, 1, 60)

def gen_m(A, name='m_kernel', opt=None):
    opt = opt or {}
    khead(A, name)
    st = Stamper(A, opt.get('stamp'), 1)
    st(0); st(7, True)
    A('s_cmp_ge_u32 s2, 256')
    A(f's_cbranch_scc1 {name}_end')
    A('s_load_dwordx2 s[4:5], s[0:1], %d' % KA['ws'])
    A('s_load_dwordx2 s[6:7], s[0:1], %d' % KA['x'])
    A('v_lshrrev_b32 v2, 6, v0')
    A('v_and_b32 v1, 63, v0')
    A('v_readfirstlane_b32 s12, v2')
    A('s_cmp_ge_u32 s12, 4')
    A(f's_cbranch_scc1 {name}_loader')
    if opt.get('prio'): A(f's_setprio {opt["prio"]}')
    fb_compute(A, name, st, opt)
    late = g1_compute(A, name, st, opt)
    g2_compute(A, name, st, opt, late)
    A('s_waitcnt vmcnt(0)') if opt.get('stamp') else None
    st(5); st(6, True)
    st.dump(13, 0, 244)
    A('s_endpgm')
    A.label(f'{name}_loader')
    loaders(A, name, opt)
    A.label(f'{name}_end')
    A('s_endpgm')
    return dict(name=name, grid=256, block=512, lds=M_LDS, vgpr=256)
```

```python
from common import *

XP = 2112; NP = 80; ZP = 1312
ZB = 16 * XP
RB = ZB + 16 * ZP
FA_LDS = RB + 64

def gen_fa(A, name='fa_kernel', opt=None):
    opt = opt or {}
    smod = opt.get('smod', 'sc1'); sm2 = opt.get('sm2', ''); sm3 = opt.get('sm3', 'sc1'); xmod = opt.get('xmod', 'nt')
    khead(A, name)
    st = Stamper(A, opt.get('stamp'), 0)
    st(0); st(7, True)
    A('s_cmp_ge_u32 s2, 256')
    A(f's_cbranch_scc1 {name}_end')
    A('s_load_dwordx2 s[6:7], s[0:1], %d' % KA['x'])
    A('s_load_dwordx2 s[4:5], s[0:1], %d' % KA['ws'])
    A('s_load_dwordx2 s[8:9], s[0:1], %d' % KA['w1'])
    A('s_load_dwordx2 s[60:61], s[0:1], %d' % KA['w2'])
    if opt.get('cpf', 1):
        A('s_getpc_b64 s[36:37]')
        A(f's_mov_b32 s38, CODE_END-{name}-64')
        A('s_mov_b32 s39, 0x20000')
        A('s_lshr_b32 s13, s2, 3')
        A('s_lshl_b32 s13, s13, 7')
        A('v_lshlrev_b32 v4, 12, v0')
        A('buffer_load_dword v88, v4, s[36:39], s13 offen')
    A('v_lshrrev_b32 v2, 6, v0')
    A('v_and_b32 v1, 63, v0')
    A('s_and_b32 s13, s2, 7')
    A('v_readfirstlane_b32 s12, v2')
    A('s_lshr_b32 s14, s2, 3')
    A('s_and_b32 s11, s14, 1')
    A('s_sub_u32 s15, 16, s13')
    A('s_cmp_eq_u32 s13, 0')
    A('s_cselect_b32 s15, 8, s15')
    A('s_bitcmp1_b32 s14, 1')
    A('s_cselect_b32 s10, s15, s13')
    A('s_lshr_b32 s15, s14, 2')
    A('s_lshl_b32 s15, s15, 4')
    A('s_add_u32 s10, s10, s15')
    A('v_lshrrev_b32 v4, 5, v1')
    A('v_lshlrev_b32 v4, 1, v4')
    A('v_xor_b32 v4, v4, v1')
    A('v_lshlrev_b32 v14, 4, v4')
    A('s_lshl_b32 s13, s12, 9')
    A('s_add_u32 s13, s13, s10')
    A('s_lshl_b32 s63, s13, 2')
    A('s_lshl_b32 s13, s13, 11')
    A(f's_mul_i32 s14, s12, {4*XP}')
    vn, vg = 2, 3
    M1, TC, TS, M2C, M2S, SA1, SA2, SGN, MU, ONES = 16, 24, 40, 56, 60, 64, 68, 72, 73, 76
    GA, SA = 80, 84
    vSt, vTr0, vTr1, vZw, vZr, vU, vE, vE0, vZx, vX0, vZ0 = 108, 90, 91, 92, 93, 94, 95, 96, 97, 98, 99
    F = 112; T = 144; AF = 208; TMP = 112; P = 128; D = 240
    A(f'v_and_b32 v{vn}, 15, v1')
    A(f'v_lshrrev_b32 v{vg}, 4, v1')
    A('s_lshl_b32 s43, s11, 4')
    A('s_add_u32 s43, s43, 1')
    A(f'v_and_b32 v5, 7, v{vn}')
    A('v_add_u32 v5, s43, v5')
    A('v_cvt_f32_u32 v5, v5')
    A(f'v_and_b32 v6, 8, v{vn}')
    A(f'v_cvt_f32_u32 v7, v{vg}')
    A('v_cvt_f32_u32 v8, v6')
    A('v_mul_f32 v9, 0x3d000000, v5')
    A('v_mul_f32 v8, 0x3d000000, v8')
    A('v_mul_f32 v12, 0x41000000, v7')
    A('v_fmac_f32 v8, v12, v9')
    def m1(hh8, th, dl):
        for j in range(8):
            if j: A(f'v_add_f32 v{th}, v{th}, v{dl}')
            A(f'v_cos_f32 v{10 + (j & 1)}, v{th}')
            if j & 1: A(f'v_cvt_pk_bf16_f32 v{M1 + 4*hh8 + j//2}, v10, v11')
    A('v_mov_b32 v13, v8')
    m1(0, 8, 9)
    A('s_waitcnt lgkmcnt(0)')
    srd(A, 20, 6, 0, 2048 * 2048)
    for r in range(4):
        A(f's_add_u32 m0, s14, {r*XP}')
        A('s_nop 0')
        A(f'buffer_load_dwordx4 v14, s[20:23], s13 offen {xmod} lds')
        A(f'buffer_load_dwordx4 v14, s[20:23], s13 offen offset:1024 {xmod} lds')
        if r < 3: A(f's_add_u32 s13, s13, {128*2048}')
    A('v_add_f32 v9, 0x3e800000, v9')
    m1(1, 13, 9)
    A(f'v_lshlrev_b32 v9, 28, v6')
    A(f'v_lshrrev_b32 v10, 16, v9')
    A(f'v_or_b32 v{SGN}, v9, v10')
    A('v_mul_f32 v12, 4.0, v7')
    for hh8 in range(2):
        if hh8: A('v_add_f32 v5, 0x41000000, v5')
        A('v_mul_f32 v13, 0x3a800000, v5')
        A('v_xor_b32 v15, v9, v13')
        A('v_mul_f32 v8, v12, v15')
        for hh in range(2):
            for r in range(4):
                o = 8*hh8 + 4*hh + r
                if r: A('v_add_f32 v8, v8, v15')
                elif hh: A('v_fmac_f32 v8, 0x41500000, v15')
                A(f'v_cos_f32 v{TC+o}, v8')
                A(f'v_sin_f32 v{TS+o}, v8')
    A('s_cmp_eq_u32 s11, 1')
    A('s_cselect_b32 s44, 0xc2000000, 0')
    A(f'v_mov_b32 v{MU}, s44')
    A(f'v_cmp_eq_u32 vcc, 7, v{vn}')
    A(f'v_cndmask_b32 v{MU}, 0, v{MU}, vcc')
    A(f'v_cvt_f32_u32 v5, v{vn}')
    A('v_mul_f32 v13, 0x3d000000, v5')
    A('v_mul_f32 v8, v12, v13')
    for j in range(8):
        if j == 4: A('v_fmac_f32 v8, 0x41500000, v13')
        elif j: A('v_add_f32 v8, v8, v13')
        A(f'v_cos_f32 v{10+(j&1)}, v8')
        A(f'v_sin_f32 v{14+(j&1)}, v8')
        if j & 1:
            A(f'v_cvt_pk_bf16_f32 v{M2C+j//2}, v10, v11')
            A(f'v_cvt_pk_bf16_f32 v{M2S+j//2}, v14, v15')
    for i in range(4): A(f'v_mov_b32 v{ONES+i}, 0x3f803f80')
    A(f'v_lshrrev_b32 v10, 2, v{vn}')
    A(f'v_and_b32 v11, 3, v{vn}')
    A(f'v_mul_u32_u24 v12, {XP}, v10')
    A(f'v_mul_u32_u24 v13, 528, v11')
    A('v_add3_u32 v12, v12, v13, s14')
    A(f'v_and_b32 v13, 1, v{vg}')
    A('v_lshl_add_u32 v12, v13, 8, v12')
    A(f'v_lshrrev_b32 v15, 1, v{vg}')
    A(f'v_lshl_add_u32 v{vSt}, v15, 7, v12')
    for e in range(1, 4): A(f'v_xor_b32 v{vSt+e}, {16*e}, v{vSt}')
    A('v_lshlrev_b32 v12, 6, v10')
    A(f'v_lshl_add_u32 v12, v{vg}, 9, v12')
    A('v_lshl_add_u32 v12, v11, 3, v12')
    A('v_lshl_add_u32 v12, v13, 5, v12')
    A(f'v_add_u32 v{vTr0}, s14, v12')
    A(f'v_xor_b32 v{vTr1}, 32, v{vTr0}')
    A(f's_mul_i32 s15, s12, {4*ZP}')
    A(f's_add_u32 s15, s15, {ZB}')
    A(f'v_mul_u32_u24 v{vZw}, {NP}, v{vn}')
    A(f'v_lshl_add_u32 v{vZw}, v{vg}, 4, v{vZw}')
    A(f'v_add_u32 v{vZw}, s15, v{vZw}')
    A(f'v_mul_u32_u24 v{vX0}, {XP}, v10')
    A(f'v_add_u32 v{vX0}, s14, v{vX0}')
    A(f'v_mul_u32_u24 v{vZ0}, {ZP}, v10')
    A('v_and_b32 v12, 1, v1')
    A(f'v_mul_u32_u24 v12, {8*NP}, v12')
    A(f'v_add3_u32 v{vZ0}, v{vZ0}, v12, s15')
    A('v_cmp_eq_u32 s[46:47], 1, v11')
    A('v_cmp_eq_u32 s[48:49], 2, v11')
    A('v_cmp_eq_u32 s[50:51], 3, v11')
    A(f'v_cmp_eq_u32 s[52:53], v10, v{vg}')
    A('s_cmp_eq_u32 s11, 0')
    A('s_cselect_b32 s16, 8192, 0')
    srd(A, 32, 4, MX_OFF, 's16')
    srd(A, 28, 4, U_OFF, 4 * MB)
    srd(A, 36, 4, E_OFF, 131072)
    A('s_lshr_b32 s65, s12, 1')
    A('s_cmp_lg_u32 s65, 0')
    A('s_cselect_b32 s44, 0.25, 0')
    A(f'v_lshlrev_b32 v8, 9, v{vg}')
    A('v_add_u32 v8, s10, v8')
    A('v_cvt_f32_u32 v8, v8')
    A('v_mul_f32 v13, 0x3a000000, v5')
    A('v_fma_f32 v8, v8, v13, s44')
    A('v_mul_f32 v13, 0x3d800000, v5')
    for j in range(4):
        if j: A('v_add_f32 v8, v8, v13')
        A(f'v_cos_f32 v{SA1+j}, v8')
        A(f'v_sin_f32 v{SA2+j}, v8')
    A(f'v_lshl_add_u32 v12, v{vg}, 2, v10')
    A(f'v_mul_u32_u24 v12, {ZP}, v12')
    A(f'v_add_u32 v{vZx}, {ZB + 64}, v12')
    A('v_lshl_add_u32 v12, v11, 3, v12')
    A('s_and_b32 s15, s12, 1')
    A('s_lshl_b32 s16, s15, 5')
    A(f's_add_u32 s16, s16, {ZB}')
    A(f'v_add_u32 v{vZr}, s16, v12')
    A(f'v_lshlrev_b32 v{vU}, 20, v{vg}')
    A('s_lshl_b32 s16, s15, 2')
    A('s_add_u32 s16, s16, s10')
    A('v_add_u32 v12, s16, v10')
    A('v_and_b32 v12, 7, v12')
    A(f'v_lshl_add_u32 v{vU}, v12, 7, v{vU}')
    A(f'v_lshl_add_u32 v{vU}, v11, 4, v{vU}')
    A('s_lshl_b32 s66, s65, 17')
    A('s_lshl_b32 s16, s10, 10')
    A('s_add_u32 s66, s66, s16')
    A('s_lshl_b32 s16, s11, 6')
    A('s_add_u32 s66, s66, s16')
    A('s_lshl_b32 s16, s15, 2')
    A('s_add_u32 s16, s16, 1')
    A('v_add_u32 v12, s16, v10')
    A(f'v_lshlrev_b32 v{vE0}, 14, v{vg}')
    A(f'v_lshl_add_u32 v{vE}, v12, 9, v{vE0}')
    A('v_cmp_gt_u32 vcc, 8, v12')
    A('s_and_b64 vcc, vcc, s[50:51]')
    A(f'v_cndmask_b32 v{vE}, 4.0, v{vE}, vcc')
    A(f'v_lshl_add_u32 v{vE0}, v{vn}, 16, v{vE0}')
    A('s_lshl_b32 s16, s15, 1')
    A(f'v_or_b32 v12, s16, v{vn}')
    A('v_cmp_gt_u32 vcc, 2, v12')
    A(f'v_cndmask_b32 v{vE0}, 4.0, v{vE0}, vcc')
    A('s_lshl_b32 s67, s65, 7')
    A('s_add_u32 s67, s67, s10')
    A('s_lshl_b32 s67, s67, 1')
    srd(A, 24, 4, 38 * MB, 2048 * 128)
    A('v_lshlrev_b32 v12, 7, v0')
    A('v_cmp_gt_u32 vcc, 8, v0')
    A('v_cndmask_b32 v12, 4.0, v12, vcc')
    A('s_mul_i32 s15, s2, 1024')
    A('v_mov_b32 v13, 0')
    A(f'buffer_store_dword v13, v12, s[24:27], s15 offen {sm2}')
    npf = 2
    srd(A, 24, 60, 0, 3584 * 2048)
    A('v_lshrrev_b32 v12, 4, v0')
    A('s_mul_i32 s15, s2, 14')
    A('v_add_u32 v12, s15, v12')
    A('v_and_b32 v13, 8, v0')
    A('v_and_b32 v14, 7, v0')
    A('v_lshlrev_b32 v14, 4, v14')
    A('v_lshl_add_u32 v14, v12, 11, v14')
    A('v_add_u32 v12, v12, v13')
    A('v_and_b32 v12, 15, v12')
    A('v_and_b32 v15, 7, v12')
    A('v_cmp_eq_u32 vcc, 3, v15')
    A('v_xor_b32 v15, 4, v12')
    A('v_cndmask_b32 v12, v12, v15, vcc')
    A('v_lshl_add_u32 v104, v12, 7, v14')
    A('v_lshl_add_u32 v14, v13, 7, v14')
    A('v_cmp_gt_u32 vcc, 224, v0')
    A('v_cndmask_b32 v14, 4.0, v14, vcc')
    A('v_cndmask_b32 v104, 4.0, v104, vcc')
    A('buffer_load_dwordx4 v[100:103], v14, s[24:27], 0 offen offset:384')
    if opt.get('tlb'):
        sh = opt['tlb']
        A('s_load_dwordx2 s[68:69], s[0:1], %d' % KA['out'])
        A('s_lshr_b32 s15, s2, 3')
        A(f's_lshl_b32 s15, s15, {sh + 2}')
        A('s_lshl_b32 s16, s12, %d' % sh)
        A('s_add_u32 s15, s15, s16')
        srd(A, 24, 4, 0, 72 * MB)
        A(f'v_lshlrev_b32 v12, {sh + 7}, v1')
        A('v_cmp_gt_u32 vcc, %d, v1' % max(1, (72 * MB >> (sh + 7)) + 1))
        A('v_cndmask_b32 v12, 4.0, v12, vcc')
        A('buffer_load_dword v87, v12, s[24:27], s15 offen')
        A('s_waitcnt lgkmcnt(0)')
        srd(A, 24, 68, 0, 4 * MB)
        A('buffer_load_dword v87, v12, s[24:27], s15 offen')
        npf += 2
    def touch():
        if opt.get('pf', 1):
            srd(A, 24, 8, 0, 1024 * 7168)
            A('v_lshlrev_b32 v12, 7, v0')
            nl = 224 if opt.get('pf', 1) == 1 else 112
            A(f'v_cmp_gt_u32 vcc, {nl}, v0')
            A('v_cndmask_b32 v12, 4.0, v12, vcc')
            if nl == 224: A(f's_mul_i32 s15, s2, {nl*128}')
            else:
                A('s_lshr_b32 s15, s2, 4')
                A('s_lshl_b32 s15, s15, 5')
                A('s_and_b32 s16, s2, 15')
                A('s_add_u32 s15, s15, s16')
                A('s_mul_i32 s15, s15, 14336')
            A('buffer_load_dword v89, v12, s[24:27], s15 offen')
    if not opt.get('pfend') and opt.get('pf', 1):
        touch(); npf += 1
        if opt.get('pw2'):
            srd(A, 24, 60, 0, opt['pw2'] * 2048)
            if opt['pw2'] < 3584: A(f's_mul_i32 s15, s2, {opt["pw2"] * 8}'); A(f'v_cmp_gt_u32 vcc, {opt["pw2"] // 16}, v0'); A('v_cndmask_b32 v12, 4.0, v12, vcc')
            A('buffer_load_dword v88, v12, s[24:27], s15 offen')
            npf += 1
    st(1)
    A(f's_waitcnt vmcnt({npf})')
    st(2)
    E = AutoLgkm(A)
    def mf(d, a, b, z): return f'v_mfma_f32_16x16x32_bf16 {vr(d,4)}, {vr(a,4)}, {vr(b,4)}, {"0" if z else vr(d,4)}'
    def s1rd(r): return [f'ds_read_b64_tr_b16 {vr(AF+8*r+4*hh+2*rd,2)}, v{vTr0 if hh == 0 else vTr1} offset:{r*XP + 256*rd}' for hh in range(2) for rd in range(2)]
    frd = [f'ds_read_b128 {vr(F+4*i,4)}, v{vSt + (i&3)} offset:{64*(i>>2)}' for i in range(8)] + [f'ds_read_u16 v{vX0}, v{vX0}']
    def s1(r): return [mf(T + 16*r + 8*hh8 + 4*hh, AF + 8*r + 4*hh, M1 + 4*hh8, True) for hh8 in range(2) for hh in range(2)]
    for x in s1rd(0) + s1rd(1) + s1rd(2) + frd[:3]: E(x)
    for x in weave(s1(0) + s1(1), s1rd(3) + frd[3:], per=2) + s1(2) + s1(3): E(x)
    D0 = AF + 16; D1 = D
    def tw(r, hh8, tm, p):
        t = T + 16*r + 8*hh8; d = (D1 if hh8 else D0) + 4*r
        return ([f'v_pk_mul_f32 {vr(tm+k,2)}, {vr(t+k,2)}, {vr(TC+8*hh8+k,2)}' for k in range(0, 8, 2)] if opt.get('pk', 1) else
                [f'v_mul_f32 v{tm+k}, v{t+k}, v{TC+8*hh8+k}' for k in range(8)]) + \
               [f'v_fmac_f32_dpp v{tm+k}, v{t+k}, v{TS+8*hh8+k} row_ror:8 row_mask:0xf bank_mask:0xf' for k in range(8)] + \
               [f'v_cvt_pk_bf16_f32 v{p+k}, v{tm+2*k}, v{tm+2*k+1}' for k in range(4)] + [mf(d, M2C, p, True)] + \
               [f'v_xor_b32_dpp v{p+4+k}, v{p+k}, v{SGN} row_ror:8 row_mask:0xf bank_mask:0xf' for k in range(4)], mf(d, M2S, p + 4, False)
    stm = [x for i in range(8) for x in (mf(SA, ONES, F+4*i, i == 0), mf(GA, F+4*i, F+4*i, i == 0))]
    t0 = []
    for r in range(4):
        a, b = tw(r, 0, AF, AF + 8)
        t0 += a[:6] + ([pb] if r else []) + a[6:]
        pb = b
    mean = [f'v_add_f32_dpp v11, v{SA}, v{SA} quad_perm:[1,0,3,2] row_mask:0xf bank_mask:0xf', f'v_cndmask_b32 v10, v{GA}, v{GA+1}, s[46:47]',
            f'v_lshlrev_b32 v{vX0}, 16, v{vX0}', 'v_add_f32_dpp v11, v11, v11 quad_perm:[2,3,0,1] row_mask:0xf bank_mask:0xf',
            f'v_cndmask_b32 v10, v10, v{GA+2}, s[48:49]', 'v_mul_f32 v15, 0x3a800000, v11', f'v_cndmask_b32 v10, v10, v{GA+3}, s[50:51]'] + \
           [f'v_readlane_b32 s{56+r}, v15, {4*r}' for r in range(4)]
    for x in weave(stm, t0[:48], per=3) + weave(t0[48:], mean, start=6, per=1) + [pb]: E(x)
    class L(list):
        def __call__(self, t): self.append(t)
    sg = L()
    sg('v_add_f32_dpp v10, v10, v10 quad_perm:[1,0,3,2] row_mask:0xf bank_mask:0xf')
    sg('v_add_f32_dpp v10, v10, v10 quad_perm:[2,3,0,1] row_mask:0xf bank_mask:0xf')
    ln_finish(sg, 11, 10, 12, 13, 14, 45)
    sg('v_rcp_f32 v13, v13')
    sg(f'v_sub_f32 v{vX0}, v{vX0}, v12')
    sg('v_sub_f32 v14, v15, v12')
    sg('v_mul_f32 v14, 0x44800000, v14')
    sg(f'v_cvt_pk_bf16_f32 v{vX0}, v{vX0}, v14')
    sg(f'v_lshlrev_b32 v12, 9, v{vg}'); sg(f'v_lshlrev_b32 v10, 2, v{vg}'); sg('s_lshl_b32 s15, s12, 4'); sg(f's_add_u32 s15, s15, {RB}')
    sg('v_add_u32 v10, s15, v10')
    def fin(r):
        return [f'v_cvt_pk_bf16_f32 v{D0+4*r+k}, v{D0+4*r+k}, v{D1+4*r+k}' for k in range(4)] + [f'ds_write_b128 v{vZw}, {vr(D0+4*r,4)} offset:{r*ZP}']
    t1 = []
    for r in range(4):
        a, b = tw(r, 1, TMP, P + 8*(r & 1))
        pre = [f'v_mul_f32 v8, s{56+r}, v{MU}', 'v_mov_b32 v9, v8'] + ([f'v_pk_add_f32 {vr(T+16*r+8+k,2)}, {vr(T+16*r+8+k,2)}, v[8:9]' for k in range(0, 8, 2)] if opt.get('pk', 1)
              else [f'v_add_f32 v{T+16*r+8+k}, v{T+16*r+8+k}, v8' for k in range(8)])
        t1 += pre[:2] + ([pb] if r else []) + pre[2:] + a[:12] + (fin(r - 1) if r else []) + a[12:]
        pb = b
    for x in weave(t1[:2*len(sg)], list(sg), per=1)[:]: E(x)
    A('s_mov_b64 exec, s[52:53]')
    E('ds_write_b32 v10, v13')
    A(f'buffer_store_dword v15, v12, s[32:35], s63 offen {sm2}')
    A('s_mov_b64 exec, -1')
    x0 = ['v_mov_b32 v11, 0', 's_mov_b32 vcc_lo, 0x55555555', 's_mov_b32 vcc_hi, 0x55555555',
          f'v_cndmask_b32 v10, 0, v{vX0}, vcc', f'ds_write_b64 v{vZ0}, v[10:11] offset:64']
    for x in weave(t1[2*len(sg):], x0, per=1): E(x)
    E(pb)
    A(f'v_lshlrev_b32 v10, 4, v{vg}')
    A(f'v_add_u32 v10, {RB}, v10')
    for x in fin(3): E(x)
    st(3)
    A('s_waitcnt lgkmcnt(0)')
    A('s_barrier')
    st(8)
    RS = F; AM = F + 4; ZF = T; O = T + 36
    A(f'ds_read_b128 {vr(RS,4)}, v10')
    for tau in range(9):
        if tau == 7: A('s_waitcnt lgkmcnt(14)')
        for rd in range(2):
            if tau < 8: A(f'ds_read_b64_tr_b16 {vr(ZF + tau*4 + 2*rd, 2)}, v{vZr} offset:{(rd*8 + tau)*NP}')
            else: A(f'ds_read_b64_tr_b16 {vr(ZF + tau*4 + 2*rd, 2)}, v{vZx} offset:{rd*8*NP}')
    for j in range(0, 4, 2):
        A(f'v_pk_mul_f32 {vr(SA1+j,2)}, {vr(SA1+j,2)}, {vr(RS+j,2)}')
        A(f'v_pk_mul_f32 {vr(SA2+j,2)}, {vr(SA2+j,2)}, {vr(RS+j,2)}')
    for k in range(4): A(f'v_cvt_pk_bf16_f32 v{AM+k}, v{SA1+2*k}, v{SA1+2*k+1}')
    for tau in range(9):
        if tau % 2 == 0: A(f's_waitcnt lgkmcnt({max(14 - 2*tau, 0)})')
        mfma(A, O + 4*tau, AM, ZF + tau*4, '0')
    for r in range(4):
        b = P + 4*r
        for k in range(4): A(f'v_cvt_pk_bf16_f32 v{b+k}, v{O+8*k+r}, v{O+8*k+4+r}')
        A(f'buffer_store_dwordx4 {vr(b,4)}, v{vU}, s[28:31], s66 offen {smod}')
        if r < 3: A('s_add_u32 s66, s66, 0x40000')
    srd(A, 24, 4, WC_OFF, 3584 * 2048)
    A(f's_waitcnt vmcnt({npf + 3})')
    A(f'buffer_store_dwordx4 v[100:103], v104, s[24:27], 0 offen {sm3}')
    A('s_cmp_eq_u32 s11, 0')
    A(f's_cbranch_scc1 {name}_c0')
    for r in range(4):
        A(f'buffer_store_short_d16_hi v{P+4*r+3}, v{vE}, s[36:39], s67 offen {sm2}')
        if r < 3: A('s_add_u32 s67, s67, 4096')
    A(f's_branch {name}_fin')
    A.label(f'{name}_c0')
    for r in range(4):
        A(f'v_cvt_pk_bf16_f32 v{O+32+r}, v{O+32+r}, v{O+32+r}')
        A(f'buffer_store_short v{O+32+r}, v{vE0}, s[36:39], s67 offen {sm2}')
        if r < 3: A('s_add_u32 s67, s67, 4096')
    A.label(f'{name}_fin')
    if opt.get('pfend'):
        touch()
        if opt['pfend'] == 2:
            srd(A, 24, 60, 0, 3584 * 2048)
            A('buffer_load_dword v88, v12, s[24:27], s15 offen')
    st(4)
    A('s_waitcnt vmcnt(0)') if opt.get('stamp') else None
    st(5); st(6, True)
    st.dump(9, 0, 108)
    A.label(f'{name}_end')
    A('s_endpgm')
    return dict(name=name, grid=256, block=256, lds=FA_LDS, vgpr=256)
```

```python
from common import *
from g1 import w_voffs, tr_bases

HS = 16384; WS = 28672; WB0 = 3 * HS
XB = 32768; EB = WB0 + 3 * WS
SLOT = 32768
SGB = EB + 1024
SYB = SGB + 512
R1, D1, R2W, D2 = 0, 64, 128, 384
STG = SYB
M_LDS = STG + 16384
FULL = 0x01010101
PX_OFF = 29 * MB
FL_OFF = 38 * MB
GS_OFF = 40 * MB; GST = 3072; GTT = 56 * GST
FL1, FL2, FL3, FL4, FL5 = 0, 32768, 65536, 196608, 229376
FL_SIZE = 2048 * 128

def spin(A, tag, srdn, soff, vflag, vaddr, scnt, depth=4, gap=2):
    A(f's_mov_b32 s{scnt}, 400000')
    ld = lambda k: A(f'buffer_load_dword v{vflag+k}, v{vaddr}, s[{srdn}:{srdn+3}], s{soff} offen sc1')
    for k in range(depth - 1):
        ld(k); A(f's_sleep {gap}')
    A.label(f'{tag}_spin')
    for k in range(depth):
        ld((k + depth - 1) % depth)
        A(f's_waitcnt vmcnt({depth - 1})')
        A(f'v_cmp_ne_u32 vcc, 1, v{vflag+k}')
        A(f's_cbranch_vccz {tag}_go')
        A(f's_sleep {gap}')
    A(f's_sub_u32 s{scnt}, s{scnt}, 1')
    A(f's_cbranch_scc0 {tag}_spin')
    A.label(f'{tag}_go')

def skipmap(A, dst, src, odd, t):
    if odd:
        A(f'v_cmp_lt_u32 vcc, 255, v{src}')
        A(f'v_add_u32 v{dst}, {1024 + 128}, v{src}')
    else:
        A(f'v_cmp_lt_u32 vcc, 383, v{src}')
        if dst != src: A(f'v_mov_b32 v{dst}, v{src}')
    A(f'v_add_u32 v{t}, 128, v{dst}')
    A(f'v_cndmask_b32 v{dst}, v{dst}, v{t}, vcc')

def g1_decode(A):
    A('s_and_b32 s8, s2, 7')
    A('s_lshr_b32 s9, s2, 3')
    A('s_and_b32 s10, s8, 1')
    A('s_lshl_b32 s10, s10, 3')
    A('s_and_b32 s11, s9, 7')
    A('s_add_u32 s10, s10, s11')
    A('s_lshr_b32 s11, s8, 1')
    A('s_lshl_b32 s11, s11, 2')
    A('s_lshr_b32 s9, s9, 3')
    A('s_add_u32 s11, s11, s9')

def g2_decode(A):
    A('s_mov_b32 s9, s11')
    A('s_lshr_b32 s8, s9, 3')
    A('s_and_b32 s11, s9, 7')
    A('s_lshl_b32 s11, s11, 1')
    A('s_add_u32 s11, s11, s8')

def fb_compute(A, name, st, opt):
    A('s_and_b32 s13, s2, 7')
    A('s_lshr_b32 s14, s2, 3')
    A('s_sub_u32 s15, 16, s13')
    A('s_cmp_eq_u32 s13, 0')
    A('s_cselect_b32 s15, 8, s15')
    A('s_bitcmp1_b32 s14, 0')
    A('s_cselect_b32 s10, s15, s13')
    A('s_lshr_b32 s11, s14, 1')
    A('s_sub_u32 s16, 16, s10')
    A('s_and_b32 s16, s16, 15')
    A('s_sub_u32 s17, 15, s11')
    A('s_lshr_b32 s19, s11, 3')
    A('s_cmp_lg_u32 s19, 0')
    A('s_cselect_b32 s16, s16, s10')
    A('s_cselect_b32 s17, s17, s11')
    vn, vg = 2, 3
    A(f'v_and_b32 v{vn}, 15, v1')
    A(f'v_lshrrev_b32 v{vg}, 4, v1')
    A('v_lshrrev_b32 v6, 3, v1')
    A(f'v_and_b32 v7, 1, v{vg}')
    A('v_lshrrev_b32 v8, 1, v1')
    A('v_and_b32 v8, 3, v8')
    A('v_xor_b32 v7, v7, v8')
    A('v_lshlrev_b32 v7, 5, v7')
    A('v_lshl_add_u32 v4, v6, 10, v7')
    A('v_and_b32 v7, 1, v1')
    A('v_lshl_add_u32 v4, v7, 4, v4')
    A('v_add_u32 v7, s17, v6')
    A('v_and_b32 v7, 7, v7')
    A('v_lshl_add_u32 v4, v7, 7, v4')
    A('v_xor_b32 v5, 64, v4')
    A(f'v_add_u32 v5, {8192 - 1024}, v5')
    A('s_lshl_b32 s14, s16, 2')
    A('s_add_u32 s14, s14, s12')
    A('s_lshl_b32 s14, s14, 16')
    A('s_lshl_b32 s18, s12, 13')
    A(f'v_xor_b32 v8, v{vg}, v1')
    A('v_and_b32 v8, 7, v8')
    A('v_lshlrev_b32 v8, 4, v8')
    A('v_lshl_add_u32 v6, v6, 15, v8')
    A('v_xor_b32 v7, 64, v6')
    A(f'v_add_u32 v7, {8*32768 - 1024}, v7')
    A('s_lshl_b32 s61, s12, 19')
    A('s_lshl_b32 s15, s10, 11')
    A('s_add_u32 s61, s61, s15')
    A('s_lshl_b32 s15, s11, 7')
    A('s_add_u32 s61, s61, s15')
    A('s_lshl_b32 s62, s12, 12')
    A(f's_add_u32 s62, s62, {XB}')
    A('s_lshl_b32 s63, s10, 3')
    A('s_add_u32 s63, s63, s11')
    A('s_lshl_b32 s63, s63, 9')
    A('s_sub_u32 s63, s63, 512')
    A('s_cmp_eq_u32 s11, 0')
    A('s_cselect_b32 s15, 65536, 0')
    A('s_add_u32 s63, s63, s15')
    A('s_cmp_lt_u32 s11, 8')
    A('s_cselect_b32 s63, s63, 0x40000000')
    A('s_lshl_b32 s15, s16, 12')
    A('v_mov_b32 v9, s15')
    A('v_mov_b32 v10, s63')
    A('v_cmp_gt_u32 vcc, 32, v1')
    A('v_cndmask_b32 v9, v10, v9, vcc')
    A('v_lshl_add_u32 v9, v1, 4, v9')
    A(f'v_lshlrev_b32 v10, 6, v{vn}')
    A('s_lshl_b32 s15, s12, 8')
    A('s_add_u32 s15, s15, s10')
    A('s_lshl_b32 s15, s15, 2')
    A('s_waitcnt lgkmcnt(0)')
    srd(A, 20, 4, U_OFF, 4 * MB)
    srd(A, 28, 4, E_OFF, 131072)
    for h in range(4):
        A(f's_add_u32 m0, s18, {h*2048}')
        A('s_nop 0')
        A(f'buffer_load_dwordx4 v4, s[20:23], s14 offen lds')
        A(f'buffer_load_dwordx4 v5, s[20:23], s14 offen offset:1024 lds')
        if h < 3: A('s_add_u32 s14, s14, 16384')
    A(f's_mov_b32 m0, {EB}')
    srd(A, 24, 6, 0, 2048 * 2048)
    A('buffer_load_dwordx4 v9, s[28:31], 0 offen lds')
    FR = [16, 48]; EF = 80; B = [112, 144]; ACC = [176, 192]; MA = [208, 212]; VT = 216; VX = 220; X = [224, 232]; VB = 240; MXV = [241, 242]; VH = 243; VE = 244
    srd(A, 40, 4, MX_OFF, 8192)
    for u in range(2):
        A(f's_add_u32 m0, s62, {u*2048}')
        if u: A(f's_add_u32 s61, s61, {4 << 19}')
        else: A('s_nop 0')
        A('buffer_load_dwordx4 v6, s[24:27], s61 offen lds')
        A('buffer_load_dwordx4 v7, s[24:27], s61 offen offset:1024 lds')
    A('s_add_u32 s14, s15, 4096')
    A(f'buffer_load_dword v{MXV[0]}, v10, s[40:43], s15 offen')
    A(f'buffer_load_dword v{MXV[1]}, v10, s[40:43], s14 offen')
    A('s_lshl_b32 s15, s12, 4')
    A(f'v_add_u32 v6, s15, v{vn}')
    A('s_cmp_lg_u32 s10, 0')
    A('s_cselect_b32 s15, -1, 0')
    A('v_sub_u32 v7, s15, v6')
    A('s_cmp_lg_u32 s19, 0')
    A('s_cselect_b64 vcc, -1, 0')
    A('v_cndmask_b32 v6, v6, v7, vcc')
    A('v_and_b32 v6, 127, v6')
    A('v_cvt_f32_u32 v7, v6')
    A('v_mul_f32 v7, 0x3c000000, v7')
    A(f'v_lshlrev_b32 v10, 3, v{vg}')
    A('v_cvt_f32_u32 v10, v10')
    A('v_mul_f32 v10, v10, v7')
    B0 = B[0]
    for j in range(8):
        if j: A('v_add_f32 v10, v10, v7')
        A(f'v_cos_f32 v{12+(j&1)}, v10')
        A(f'v_sin_f32 v{14+(j&1)}, v10')
        if j & 1:
            A(f'v_cvt_pk_bf16_f32 v{B0+j//2}, v12, v13')
            A(f'v_cvt_pk_bf16_f32 v{B0+16+j//2}, v14, v15')
    A('v_and_b32 v8, 1, v6')
    A('v_cmp_eq_u32 vcc, 1, v8')
    A('v_mul_u32_u24 v8, 0x8000, v8')
    A('v_lshl_or_b32 v8, v8, 16, v8')
    A('v_and_b32 v10, 2, v6')
    A('v_mul_u32_u24 v10, 0x4000, v10')
    A('v_lshl_or_b32 v10, v10, 16, v10')
    A('v_xor_b32 v11, v10, v8')
    for k in range(4):
        A(f'v_cndmask_b32 v12, v{B0+k}, v{B0+16+k}, vcc')
        A(f'v_cndmask_b32 v13, v{B0+16+k}, v{B0+k}, vcc')
        A(f'v_xor_b32 v{B0+4+k}, v11, v12')
        A(f'v_xor_b32 v{B0+20+k}, v10, v13')
    for k in range(8):
        A(f'v_xor_b32 v{B0+8+k}, v8, v{B0+k}')
        A(f'v_xor_b32 v{B0+24+k}, v8, v{B0+16+k}')
    A('s_brev_b32 s15, 1')
    for k in range(32): A(f'v_xor_b32 v{B[1]+k}, s15, v{B0+k}')
    A(f'v_lshrrev_b32 v10, 2, v{vn}')
    A(f'v_lshl_add_u32 v10, v{vg}, 3, v10')
    A(f'v_lshrrev_b32 v11, 3, v{vn}')
    A(f'v_and_b32 v12, 1, v{vg}')
    A('v_lshl_add_u32 v11, v12, 1, v11')
    A('v_lshlrev_b32 v11, 5, v11')
    A('v_lshl_add_u32 v10, v10, 7, v11')
    A(f'v_and_b32 v11, 3, v{vn}')
    A(f'v_lshl_add_u32 v{VT}, v11, 3, v10')
    A('s_mul_i32 s15, s19, 96')
    A(f'v_xor_b32 v{VT}, s15, v{VT}')
    for i in range(1, 4): A(f'v_xor_b32 v{VT+i}, {(2*(i&1) + (i>>1))*32}, v{VT}')
    A(f'v_and_b32 v11, 1, v{vn}')
    A('v_lshlrev_b32 v11, 9, v11')
    A(f'v_lshl_add_u32 v11, v{vg}, 4, v11')
    A(f'v_add_u32 v{VE}, {EB}, v11')
    A('s_mul_i32 s15, s19, 3')
    A(f'v_xor_b32 v10, s15, v{vg}')
    A('v_lshrrev_b32 v11, 1, v10')
    A(f'v_lshrrev_b32 v12, 1, v{vn}')
    A('v_xor_b32 v11, v11, v12')
    A('v_lshlrev_b32 v11, 4, v11')
    A(f'v_lshl_add_u32 v11, v{vn}, 7, v11')
    A('v_and_b32 v12, 1, v10')
    A('v_lshl_add_u32 v11, v12, 3, v11')
    A(f'v_add_u32 v{VX}, s62, v11')
    for i in range(1, 4): A(f'v_xor_b32 v{VX+i}, {32*i}, v{VX}')
    A(f'v_lshl_add_u32 v10, v10, 4, v{vn}')
    A(f'v_lshlrev_b32 v{VH}, 4, v10')
    A('v_add_u32 v10, 48, v1')
    A('v_and_b32 v10, 63, v10')
    A(f'v_lshlrev_b32 v{VB}, 2, v10')
    A(f'v_cmp_eq_u32 s[46:47], 0, v{vg}')
    srd(A, 52, 4, HF_OFF, 4 * MB)
    A('s_cmp_eq_u32 s11, 0')
    A('s_cselect_b32 s15, 8192, 0')
    srd(A, 32, 4, MU_OFF, 's15')
    srd(A, 36, 4, FL_OFF, FL_SIZE)
    A('s_lshl_b32 s13, s10, 3')
    A('s_add_u32 s13, s13, s12')
    st(1)
    A('s_waitcnt vmcnt(6)')
    A('s_barrier')
    st(2)
    def frag(i, p): return FR[i & 1] + 4 * p
    def rd(h):
        i = h >> 1
        return [f'ds_read_b64_tr_b16 {vr(frag(i,p)+2*r2,2)}, v{VT+i} offset:{(32*p+4*r2)*128}' for p in range(4*(h & 1), 4*(h & 1) + 4) for r2 in range(2)]
    def mf(d, a, b, z): return f'v_mfma_f32_16x16x32_bf16 {vr(d,4)}, {vr(a,4)}, {vr(b,4)}, {"0" if z else vr(d,4)}'
    def half(h): return [mf(ACC[u] + 4*(h >> 1), frag(h >> 1, p), B[u] + 4*p, p == 0) for p in range(4*(h & 1), 4*(h & 1) + 4) for u in range(2)]
    ONE = 4; S = [5, 7]; Q = [6, 8]; TM = EF; OUT = EF + 16
    E = AutoLgkm(A)
    for x in rd(0) + [f'ds_read_b128 {vr(EF+4*p,4)}, v{VE} offset:{64*p}' for p in range(8)]: E(x)
    for x in weave(half(0), rd(1), per=2): E(x)
    for x in weave([mf(MA[u], EF + 4*p, B[u] + 4*p, p == 0) for p in range(8) for u in range(2)], rd(2), per=1): E(x)
    misc = [f'v_mov_b32 v{ONE}, 0x3f803f80'] + [f'v_mov_b32 v{r}, 0' for r in S + Q] + [f'v_lshlrev_b32 v9, 2, v{vn}', 's_lshl_b32 s60, s13, 6',
            's_lshl_b32 s14, s13, 15', 's_lshl_b32 s15, s11, 11', 's_add_u32 s14, s14, s15', 's_add_u32 s15, s14, 0x20000']
    for x in weave(half(1), rd(3) + misc, per=3): E(x)
    xr = ['s_waitcnt vmcnt(0)'] + [f'ds_read_b64 {vr(X[u]+2*k2,2)}, v{VX+k2} offset:{u*2048}' for k2 in range(4) for u in range(2)]
    for x in weave(half(2), rd(4) + xr, per=3): E(x)
    for x in weave(half(3), rd(5) + [f'v_add_f32 v{MA[u]}, v{MA[u]}, v{MXV[u]}' for u in range(2)], per=2): E(x)
    def epi(V, pr):
        out = []
        for u in range(2):
            o = OUT + 8*u + 4*pr
            for i2 in range(2):
                i = 2*pr + i2; t = TM + 8*u + 4*i2
                for q in range(2):
                    r_ = X[u] + 2*i + q
                    out += [f'v_lshlrev_b32 v{t+2*q}, 16, v{r_}', f'v_and_b32 v{t+1+2*q}, 0xffff0000, v{r_}']
                out += [f'v_sub_f32 v{t+r}, v{t+r}, v{MA[u]}' for r in range(4)]
                out += [f'v_add_f32 v{t+r}, v{t+r}, v{V[u][i][r]}' for r in range(4)]
                out += [f'v_cvt_pk_bf16_f32 v{o+2*i2+q}, v{t+2*q}, v{t+1+2*q}' for q in range(2)]
            out.append(f'buffer_store_dwordx4 {vr(o,4)}, v{VH}, s[52:55], s{14+u} offen offset:{pr*1024} sc1')
        return out
    def dots(pr): return [x for u in range(2) for k in range(4) for x in
                          (f'v_dot2_f32_bf16 v{S[u]}, v{OUT+8*u+4*pr+k}, v{ONE}, v{S[u]}', f'v_dot2_f32_bf16 v{Q[u]}, v{OUT+8*u+4*pr+k}, v{OUT+8*u+4*pr+k}, v{Q[u]}')]
    RP = 10; SH = 248
    A('s_cmp_lg_u32 s19, 0')
    A(f's_cbranch_scc1 {name}_up')
    pend0 = list(E.pend)
    for lower in (1, 0):
        if not lower:
            A.label(f'{name}_up'); A('s_nop 7'); E.pend = list(pend0)
        if lower:
            V = [[[SH+4*u+i, ACC[u]+4*i, ACC[u]+4*i+1, ACC[u]+4*i+2] for i in range(4)] for u in range(2)]
            def rot(i): return [f'ds_bpermute_b32 v{RP+3*u+(i%3)}, v{VB}, v{ACC[u]+4*i+3}' for u in range(2)]
            def sel(i): return [f'v_cndmask_b32 v{SH+4*u+i}, v{RP+3*u+(i%3)}, v{RP+3*u+((i-1)%3) if i else MA[u]+1}, s[46:47]' for u in range(2)]
        else:
            V = [[[ACC[u]+4*i+3-r for r in range(4)] for i in range(4)] for u in range(2)]
            rot = sel = lambda i: []
        for x in weave(half(4), rot(0) + rd(6) + rot(1), per=2): E(x)
        e0 = sel(0) + sel(1) + epi(V, 0)
        for x in weave(half(5), rd(7) + e0[:16], per=3): E(x)
        for x in weave(half(6) + half(7), rot(2) + e0[16:] + dots(0), start=2, per=4): E(x)
        e1 = epi(V, 1)
        hst = [x for x in e1 if x.startswith('buffer_store')]
        for x in rot(3) + sel(2) + sel(3) + [x for x in e1 if x not in hst]: E(x)
        E.drain()
        if lower: A(f's_branch {name}_join')
    A.label(f'{name}_join')
    st(3)
    A('s_waitcnt vmcnt(0)')
    A('s_barrier')
    st(4)
    for x in dots(1)[:6] + hst + dots(1)[6:]: A(x)
    A(f'buffer_store_dword v{MA[0]}, v9, s[32:35], s60 offen sc1')
    A(f'buffer_store_dword v{MA[1]}, v9, s[32:35], s60 offen offset:256 sc1')
    A(f'v_lshlrev_b32 v40, 3, v{vn}')
    A(f'v_lshrrev_b32 v41, 1, v{vg}')
    A('v_lshl_add_u32 v40, v41, 2, v40')
    A('s_lshl_b32 s14, s10, 4')
    A('s_add_u32 s14, s14, s11')
    A('s_lshl_b32 s14, s14, 3')
    A('s_add_u32 s14, s14, s12')
    A('s_lshl_b32 s14, s14, 7')
    srd(A, 28, 4, ST_OFF, 2048 * 128)
    for u in range(2): A(f'v_permlane32_swap_b32 v{S[u]}, v{Q[u]}')
    for u in range(2): A(f'v_add_f32 v{S[u]}, v{S[u]}, v{Q[u]}')
    for u in range(2): A(f'v_mov_b32 v{Q[u]}, v{S[u]}')
    for u in range(2): A(f'v_permlane16_swap_b32 v{S[u]}, v{Q[u]}')
    for u in range(2): A(f'v_add_f32 v{S[u]}, v{S[u]}, v{Q[u]}')
    for u in range(2): A(f'buffer_store_dword v{S[u]}, v40, s[28:31], s14 offen offset:{512*u} sc1')
    return []

def drained(A):
    A('s_waitcnt vmcnt(0)')
    A('s_barrier')

def g1_compute(A, name, st, opt, later):
    WB = [8, 36]; ACC = 64; HB = [176, 192]
    vAh, cAh, VW, CW = 2, 3, 208, 216
    g1_decode(A)
    A('s_and_b32 s13, s12, 1')
    A('s_lshr_b32 s14, s12, 1')
    A('s_lshl_b32 s15, s13, 13')
    A(f'v_lshlrev_b32 v{vAh}, 4, v1')
    A(f'v_add_u32 v{vAh}, s15, v{vAh}')
    tr_bases(A, 44, 45, 1, 48)
    A('s_cmp_lg_u32 s14, 0')
    A('s_cselect_b64 vcc, -1, 0')
    def gaddr(dst, lam):
        if lam < 12:
            A(f'v_xor_b32 v{dst}, {32*(lam&3)}, v44')
            A(f'v_add_u32 v{dst}, {WB0 + (lam>>2)*1024}, v{dst}')
        else:
            A(f'v_xor_b32 v{dst}, {32*(lam&1)}, v45')
            A(f'v_add_u32 v{dst}, {WB0 + 6144}, v{dst}')
    for k, (l0, l1) in enumerate(zip([4, 5, 2, 3, 0, 1, 6], [8, 9, 10, 11, 12, 13, 7])):
        gaddr(46, l0); gaddr(47, l1)
        A(f'v_cndmask_b32 v{VW+k}, v46, v47, vcc')
    A(f'v_mov_b32 v{cAh}, v{vAh}')
    for k in range(7): A(f'v_mov_b32 v{CW+k}, v{VW+k}')
    for i in range(112): A(f'v_mov_b32 v{ACC+i}, 0')
    A('s_lshl_b32 s15, s10, 1')
    A('s_add_u32 s15, s15, s13')
    gs = opt.get('gskip', 1); TT = GTT if gs else 112 * 1024
    A('s_mul_i32 s15, s15, %d' % (4 * TT))
    A('s_add_u32 s15, s15, %d' % (GS_OFF if gs else G_OFF))
    srd(A, 20, 4, 's15', 4 * TT)
    A('s_mov_b32 s17, 0')
    A('s_mov_b32 s19, 0')
    A('s_mov_b32 s18, 0')
    BV = 240; H2 = 224
    A('s_load_dwordx2 s[24:25], s[0:1], %d' % KA['b1'])
    A('s_and_b32 s52, s11, 1')
    A('s_mul_i32 s15, s11, 7')
    A('s_add_u32 s16, s15, s52')
    A('s_add_u32 s56, s16, 3')
    A('s_cmp_lg_u32 s14, 0')
    A('s_cselect_b32 s53, 4, 2')
    A('s_cselect_b32 s54, 5, 1')
    A('s_cselect_b32 s55, 6, 0')
    for r in (53, 54, 55): A(f's_add_u32 s{r}, s{r}, s16')
    A('s_and_b32 s52, s52, s14')
    A('s_cmp_lg_u32 s52, 0')
    A('s_cselect_b32 s55, s15, s55')
    for r in (53, 54, 55, 56): A(f's_lshl_b32 s{r+4}, s{r}, 6')
    A('s_lshl_b32 s15, s14, 5')
    A('s_add_u32 s60, s60, s15')
    A('v_and_b32 v44, 15, v1')
    A('v_lshlrev_b32 v44, 1, v44')
    A('s_mov_b32 s26, 7168')
    A('s_mov_b32 s27, 0x20000')
    A('s_waitcnt lgkmcnt(0)')
    A('s_barrier')
    for i in range(7):
        so, off = 57 + i // 2, (32*(i&1) if i < 6 else 0)
        later.append(f'buffer_load_ushort v{BV+i}, v44, s[24:27], s{so} offen offset:{off}')
    def reads(s, buf):
        r = []
        for j in range(4):
            r.append(f'ds_read_b128 {vr(HB[buf]+4*j,4)}, v{cAh} offset:{(2*j+s)*1024}')
        for i in range(7):
            for rd in range(2):
                r.append(f'ds_read_b64_tr_b16 {vr(WB[buf]+4*i+2*rd,2)}, v{CW+i} offset:{(2*s + rd) * 7168}')
        return r
    def step(buf, rds, tail=None, nowait=False):
        k = 0; n = 0
        for i in range(7):
            for jj in range(4):
                j = jj if (i & 1) == 0 or opt.get('nosnake') else 3 - jj
                ii = i
                if opt.get('jmajor'):
                    j, ii = (i*4 + jj) // 7, (i*4 + jj) % 7
                    if j & 1: ii = 6 - ii
                mfma(A, ACC + (ii*4+j)*4, WB[buf] + 4*ii, HB[buf] + 4*j)
                if k < len(rds): A(rds[k]); k += 1
                n += 1
                if tail and n - 20 in tail:
                    for t in tail[n - 20]: A(t)
        if not nowait: A('s_waitcnt lgkmcnt(0)')
    A('s_barrier')
    st(8)
    for r in reads(0, 0): A(r)
    for x in later: A(x)
    A('s_waitcnt lgkmcnt(0)')
    if opt.get('itime'): A(f'v_mov_b32 v7, {STG}')
    A(f's_branch {name}_g1mid')
    tailB = {-4: [f's_add_u32 s17, s17, {HS}', f's_add_u32 s19, s19, {WS}'], -3: [f's_cmp_eq_u32 s17, {3*HS}', 's_cselect_b32 s17, 0, s17'],
             -2: ['s_cselect_b32 s19, 0, s19', 's_add_u32 s18, s18, 1'], -1: [f'v_add_u32 v{cAh}, s17, v{vAh}', 's_cmp_le_u32 s18, 14']}
    for k in range(7): tailB[k] = [f'v_add_u32 v{CW+k}, s19, v{VW+k}']
    A('.p2align 6')
    A.label(f'{name}_g1loop')
    if opt.get('itime'): A('s_memtime s[92:93]')
    A('s_barrier')
    if opt.get('itime'):
        A('s_memtime s[94:95]')
        tailB[7] = ['v_mov_b32 v4, s92', 'v_mov_b32 v5, s94', f'v_lshl_add_u32 v6, s18, 3, v7', 'ds_write_b64 v6, v[4:5]']
    step(1, reads(0, 0), {6: ['s_waitcnt vmcnt(0)']} if 1 else None)
    A.label(f'{name}_g1mid')
    step(0, reads(1, 1), tailB)
    A(f's_cbranch_scc1 {name}_g1loop')
    if opt.get('itime'):
        A('s_memtime s[92:93]')
        A('v_lshlrev_b32 v6, 3, v1')
        A(f'v_add_u32 v4, {STG}, v6')
        A('ds_read_b64 v[4:5], v4')
        A(f's_add_u32 s96, s4, {TS_OFF + 2*65536}')
        A('s_addc_u32 s97, s5, 0')
        A('s_mov_b32 s98, 65536')
        A('s_mov_b32 s99, 0x20000')
        A('s_lshl_b32 s69, s2, 8')
        A('s_waitcnt lgkmcnt(0)')
        A('v_cmp_gt_u32 vcc, 16, v1')
        A('v_cndmask_b32 v6, 4.0, v6, vcc')
        A('buffer_store_dwordx2 v[4:5], v6, s[96:99], s69 offen')
        A('v_mov_b32 v4, s92')
        A('v_mov_b32 v6, 128')
        A('buffer_store_dword v4, v6, s[96:99], s69 offen')
    if opt.get('ttime'): st(3)
    A('s_barrier')
    if opt.get('ttime'): st(4)
    gs = opt.get('gskip', 1)
    order = [6, 0, 1, 2, 3, 4, 5]
    SG = 4
    def wset(k): return WB[0] + 8 * (k % 3)
    def wrd(k):
        i = order[k]
        return [f'ds_read_b64_tr_b16 {vr(wset(k)+4*s_+2*rd,2)}, v{CW+i} offset:{(2*s_ + rd) * 7168}' for s_ in range(2) for rd in range(2)]
    BT = 32
    ST4 = [208, 212, 248, 252]
    A('v_and_b32 v2, 15, v1')
    A('s_lshl_b32 s15, s13, 8')
    A(f's_add_u32 s15, s15, {SGB}')
    A('v_lshl_add_u32 v2, v2, 2, s15')
    pre = [f'ds_read_b128 {vr(HB[0]+4*j,4)}, v{cAh} offset:{(2*j)*1024}' for j in range(4)] + wrd(0) + \
          [f'ds_read_b128 {vr(H2+4*j,4)}, v{cAh} offset:{(2*j+1)*1024}' for j in range(4)] + \
          [f'ds_read_b32 v{ST4[j]}, v2 offset:{64*j}' for j in range(4)] + wrd(1)
    setup = []
    for j in range(4):
        for k in range(1, 4): setup.append(f'v_mov_b32 v{ST4[j]+k}, 0')
    for k in range(1, 4): setup.append(f'v_mov_b32 v{BT+k}, 0')
    addr = []
    for r in (53, 54, 55, 56):
        addr += [f's_lshr_b32 s{r}, s{r}, 1', f's_mul_i32 s{r}, s{r}, {GST}'] if gs else [f's_lshl_b32 s{r}, s{r}, 10']
    class L(list):
        def __call__(self, t): self.append(t)
    va = L()
    va('v_and_b32 v4, 15, v1'); va('v_lshlrev_b32 v4, 4, v4'); va('v_and_b32 v6, 16, v1'); va('v_and_b32 v7, 32, v1')
    va('v_lshl_add_u32 v5, v7, 3, v4'); va('v_lshl_add_u32 v4, v6, 5, v5'); va('v_lshrrev_b32 v6, 1, v6'); va('s_lshl_b32 s19, s14, 9')
    va('v_add3_u32 v5, v5, v6, s19')
    if gs:
        skipmap(va, 6, 4, 1, 2); skipmap(va, 4, 4, 0, 2); skipmap(va, 5, 5, 1, 2)
        va('s_cmp_lg_u32 s52, 0'); va('s_cselect_b64 vcc, -1, 0'); va('v_cndmask_b32 v7, v4, v6, vcc')
    else:
        va('v_mov_b32 v6, v4'); va('v_mov_b32 v7, v4')
    def acc(i, j): return ACC + (i*4+j)*4
    def epi_tile(i, j, d):
        a = acc(i, j)
        return [f'v_max_f32 v{a+r}, 0, v{a+r}' for r in range(4)] + [f'v_mul_f32 v{a+r}, v{a+r}, v{a+r}' for r in range(4)] + \
               [f'v_cvt_pk_bf16_f32 v{d}, v{a}, v{a+1}', f'v_cvt_pk_bf16_f32 v{d+1}, v{a+2}, v{a+3}']
    late = []
    def epi(i):
        out = []
        for j in range(4):
            if i == 6:
                out += epi_tile(i, j, acc(i, j))
                out.append(f'buffer_store_dwordx2 {vr(acc(i,j),2)}, v5, s[20:23], s56 offen sc1')
                if j < 3: out.append(f's_add_u32 s56, s56, {TT}')
            elif i % 2 == 0:
                out += epi_tile(i, j, acc(i, j))
            else:
                d = acc(i - 1, j)
                out += epi_tile(i, j, d + 2)
                out += [f'v_permlane16_swap_b32 v{d}, v{d+2}', f'v_permlane16_swap_b32 v{d+1}, v{d+3}']
                pp = i // 2
                dst = out if pp < 2 else late
                dst.append(f'buffer_store_dwordx4 {vr(d,4)}, v{[4, 6, 7][pp]}, s[20:23], s{53+pp} offen sc1')
                if j < 3: dst.append(f's_add_u32 s{53+pp}, s{53+pp}, {TT}')
        return out
    for k, i in enumerate(order):
        mf = [(acc(i, j), WB[1] + 4*i, HB[1] + 4*j) for j in range(4)] + [(acc(i, j), wset(k), HB[0] + 4*j) for j in range(4)] + \
             [(acc(i, j), wset(k) + 4, H2 + 4*j) for j in range(4)] + [(acc(i, j), BT, ST4[j]) for j in range(4)]
        if k == 0:
            fill = pre + addr + list(va) + setup
        else:
            fill = (wrd(k + 1) if k + 1 < 7 else []) + epi(order[k - 1])
        per = -(-len(fill) // 15)
        fi = 0
        for n, (d, a, b) in enumerate(mf):
            if k == 0 and n == 4:
                for x in fill[fi:len(pre)]: A(x)
                fi = max(fi, len(pre))
                A('s_waitcnt lgkmcnt(14)')
            if k == 0 and n == 8: A('s_waitcnt lgkmcnt(8)')
            if k == 0 and n == 12:
                for x in fill[fi:]: A(x)
                fi = len(fill)
                A('s_waitcnt vmcnt(0) lgkmcnt(4)')
                A('v_cmp_gt_u32 vcc, 16, v1')
                for j in range(4): A(f'v_cndmask_b32 v{ST4[j]}, 0, v{ST4[j]}, vcc')
            if k > 0 and n == 4: A(f's_waitcnt lgkmcnt({4 if k + 1 < 7 else 0})')
            if n == 10 and k > 0 or (k == 0 and n == 12): A(f'v_mov_b32 v{BT}, v{BV+i}')
            mfma(A, d, a, b)
            if k == 6 and n == 4:
                A('s_barrier')
                st(9)
            for _ in range(per):
                if fi < len(fill): A(fill[fi]); fi += 1
        for x in fill[fi:]: A(x)
    for x in epi(5): A(x)
    return late

def g2_compute(A, name, st, opt, late):
    NS = 4; N2 = opt.get('n2', 8); N1 = (56 - N2) // 2
    SIG = opt.get('sig', 2); POLL = opt.get('poll', 4)
    AO = 8; AX = 40; HB = [72, 88]; WO = [104, 112]; WX = [120, 128]; EP = 136; PR = 224
    vAh, vAw, cAh, cAw, vAw1, cAw1, vL16, vFl = 176, 177, 178, 179, 180, 181, 182, 183
    A('s_load_dwordx2 s[50:51], s[0:1], %d' % KA['b2'])
    A('s_load_dwordx2 s[48:49], s[0:1], %d' % KA['out'])
    A('v_and_b32 v8, 15, v1')
    A('v_lshlrev_b32 v8, 4, v8')
    A('v_and_b32 v10, 16, v1')
    A('v_and_b32 v11, 32, v1')
    A('v_lshl_add_u32 v9, v11, 3, v8')
    A('v_lshl_add_u32 v8, v10, 5, v9')
    A('v_lshrrev_b32 v10, 1, v10')
    A('s_lshl_b32 s15, s13, 13')
    A('s_lshl_b32 s16, s14, 9')
    A('s_add_u32 s16, s16, s15')
    A(f's_add_u32 s16, s16, {3*SLOT + 1024}')
    A('v_add3_u32 v9, v9, v10, s16')
    A('v_add_u32 v8, s15, v8')
    A('s_cmp_lg_u32 s14, 0')
    for k, (b0, b1) in enumerate(((3*SLOT, 0), (2*SLOT + 1024, 1024), (2*SLOT, 0x40000))):
        A(f's_mov_b32 s16, {b0}')
        A(f's_cselect_b32 s16, {b1}, s16')
        A(f'v_add_u32 v{10+k}, s16, v8')
    wr_ = [f'ds_write_b128 v{10+k}, {vr(64+32*k+4*j,4)} offset:{2048*j}' for k in (2, 1, 0) for j in range(4)]
    wr_ += [f'ds_write_b64 v9, {vr(160+4*j,2)} offset:{2048*j}' for j in range(4)]
    ad = [f'v_lshlrev_b32 v{vL16}, 4, v1', f'v_add_u32 v{vAh}, s15, v{vL16}', 'v_lshrrev_b32 v184, 2, v1', 'v_and_b32 v184, 3, v184',
          'v_lshrrev_b32 v185, 4, v1', 'v_lshl_add_u32 v184, v185, 3, v184', 'v_lshrrev_b32 v186, 3, v1', 'v_and_b32 v186, 3, v186',
          'v_lshlrev_b32 v186, 5, v186', 'v_lshl_add_u32 v184, v184, 7, v186', 'v_and_b32 v186, 3, v1', f'v_lshl_add_u32 v{vAw}, v186, 3, v184',
          's_lshl_b32 s16, s14, 6', f'v_xor_b32 v{vAw}, s16, v{vAw}', f'v_add_u32 v{vAw}, 16384, v{vAw}', f'v_xor_b32 v{vAw1}, 32, v{vAw}',
          f'v_add_u32 v{cAh}, {2*SLOT}, v{vAh}', f'v_add_u32 v{cAw}, {2*SLOT}, v{vAw}', f'v_add_u32 v{cAw1}, {2*SLOT}, v{vAw1}', f'v_mov_b32 v{vFl}, 0']
    ad += [f'v_mov_b32 v{192+k}, v{128+k}' for k in range(16)]
    for x in weave(wr_[:8], ad[:16], per=2): A(x)
    A('s_waitcnt vmcnt(0)')
    A('s_barrier')
    st(10)
    for x in weave(wr_[8:], ad[16:], per=3): A(x)
    for k in range(4): A(f's_mov_b32 s{64+k}, s{20+k}' if k < 3 else 's_mov_b32 s67, 0x20000')
    A('s_mov_b32 s68, s55')
    A(f's_mov_b32 s17, {2*SLOT}')
    TT = GTT if opt.get('gskip', 1) else 112 * 1024
    def late_store(k): return [f'buffer_store_dwordx4 {vr(192+4*k,4)}, v7, s[64:67], s68 offen sc1', f's_add_u32 s68, s68, {TT}']
    def setup():
        g2_decode(A)
        A('s_lshl_b32 s15, s10, 1')
        A('s_add_u32 s15, s15, s13')
        A('s_lshl_b32 s16, s15, 17')
        A(f's_add_u32 s16, s16, {HF_OFF}')
        A('s_lshl_b32 s19, s15, 8')
        A(f's_add_u32 s19, s19, {MU_OFF}')
        A('s_lshl_b32 s54, s2, 2')
        A('s_add_u32 s54, s54, s12')
        A('s_xor_b32 s55, s54, 16')
        A('s_lshl_b32 s56, s54, 12')
        A('s_lshl_b32 s57, s55, 12')
        A('s_lshl_b32 s54, s54, 7')
        A('s_lshl_b32 s55, s55, 7')
        A(f's_add_u32 s54, s54, {FL3}')
        A(f's_add_u32 s55, s55, {FL3}')
        srd(A, 20, 4, 's16', 128 * 1024)
        srd(A, 44, 4, 's19', 256)
        A(f's_add_u32 s19, s19, {R2_OFF - MU_OFF}')
        srd(A, 24, 4, 's19', 256)
        srd(A, 28, 50, 0, 2048)
        srd(A, 32, 48, 0, 2048 * 2048)
        srd(A, 40, 4, PX_OFF, 4 * MB)
    A('s_waitcnt lgkmcnt(0)')
    def reads(s, buf, full):
        r = []
        for i in range(2):
            for rd in range(2):
                r.append(f'ds_read_b64_tr_b16 {vr(WO[buf]+4*i+2*rd,2)}, v{cAw1 if i else cAw} offset:{4096*s + 512*rd}')
        for j in range(4):
            r.append(f'ds_read_b128 {vr(HB[buf]+4*j,4)}, v{cAh} offset:{(2*j+s)*1024}')
        if full:
            for i in range(2):
                for rd in range(2):
                    r.append(f'ds_read_b64_tr_b16 {vr(WX[buf]+4*i+2*rd,2)}, v{cAw1 if i else cAw} offset:{8192 + 4096*s + 512*rd}')
        return r
    ADV = [[f's_add_u32 s17, s17, {SLOT}', f's_cmp_eq_u32 s17, {NS*SLOT}'], ['s_cselect_b32 s17, 0, s17', f'v_add_u32 v{cAh}, s17, v{vAh}'],
           [f'v_add_u32 v{cAw}, s17, v{vAw}'], [f'v_add_u32 v{cAw1}, s17, v{vAw1}']]
    def step(buf, full, rds, tail=(), xfirst=False, zero=False):
        seq = []
        order = ([(AX, WX)] if full else []) + [(AO, WO)] if xfirst else [(AO, WO)] + ([(AX, WX)] if full else [])
        for acc, W in order:
            for i in range(2):
                for jj in range(4):
                    j = jj if i == 0 else 3 - jj
                    seq.append((acc + (i*4+j)*4, W[buf] + 4*i, HB[buf] + 4*j))
        per = 1 if len(rds) + len(tail) <= len(seq) else 2
        fill = [[x] for x in rds]
        if per == 2: fill = [sum(fill[k:k+2], []) for k in range(0, len(fill), 2)]
        fill += list(tail)
        for n, (d, a, b) in enumerate(seq):
            mfma(A, d, a, b, '0' if zero else None)
            if n < len(fill):
                for x in fill[n]: A(x)
        for f in fill[len(seq):]:
            for x in f: A(x)
        A('s_waitcnt lgkmcnt(0)')
    A('s_barrier')
    st(11)
    for r in reads(0, 0, True): A(r)
    setup()
    A('s_lshl_b32 s16, s11, 1')
    A('s_add_u32 s16, s16, s14')
    A('s_lshl_b32 s19, s16, 10')
    for j in range(4):
        A(f'buffer_load_dwordx4 {vr(EP+4*j,4)}, v{vL16}, s[20:23], s19 offen sc1')
        if j < 3: A('s_add_u32 s19, s19, 32768')
    A(f'v_and_b32 v{PR}, 15, v1')
    A(f'v_lshlrev_b32 v{PR}, 2, v{PR}')
    for j in range(4):
        A(f'buffer_load_dword v{EP+16+j}, v{PR}, s[24:27], 0 offen offset:{64*j} sc1')
        A(f'buffer_load_dword v{EP+24+j}, v{PR}, s[44:47], 0 offen offset:{64*j} sc1')
    A(f'v_lshrrev_b32 v{PR+1}, 4, v1')
    A(f'v_lshlrev_b32 v{PR+1}, 3, v{PR+1}')
    A('s_lshl_b32 s19, s16, 6')
    A(f'buffer_load_dwordx2 {vr(EP+20,2)}, v{PR+1}, s[28:31], s19 offen')
    A(f'buffer_load_dwordx2 {vr(EP+22,2)}, v{PR+1}, s[28:31], s19 offen offset:32')
    A('s_waitcnt lgkmcnt(0)')
    L0 = opt.get('l0', 0)
    step(0, True, reads(1, 1, True), ADV[:3] + [ADV[3] + (late_store(0) if L0 == 0 else [])], zero=True)
    for k in range(1, L0 + 4):
        A('s_barrier')
        step(1, True, reads(0, 0, True), [late_store(k - L0)] if k >= L0 else [])
        step(0, True, reads(1, 1, True), ADV)
    A(f's_mov_b32 s18, {L0 + 4}')
    A('.p2align 6')
    A.label(f'{name}_g2loop')
    A('s_barrier')
    step(1, True, reads(0, 0, True), [['s_waitcnt vmcnt(0)']])
    step(0, True, reads(1, 1, True), ADV[:3] + [ADV[3] + ['s_add_u32 s18, s18, 1', f's_cmp_lt_u32 s18, {N1}']])
    A(f's_cbranch_scc1 {name}_g2loop')
    A('s_mov_b32 s59, 0')
    A('s_mov_b32 s58, 400000')
    def check(tag, sp):
        A('s_cmp_lg_u32 s59, 0')
        A(f's_cbranch_scc1 {name}_done{tag}')
        A.label(f'{name}_poll{tag}')
        A('s_waitcnt vmcnt(0)')
        A(f'v_readfirstlane_b32 s59, v{PR+16}')
        A('s_cmp_eq_u32 s59, 1')
        A(f's_cbranch_scc1 {name}_got{tag}')
        A('s_mov_b32 s59, 0')
        if sp:
            A('s_sub_u32 s58, s58, 1')
            A(f's_cbranch_scc1 {name}_got{tag}')
            A('s_sleep 1')
        A(f'buffer_load_dword v{PR+16}, v{vFl}, s[36:39], s55 offen sc1')
        A(f's_branch {name}_poll{tag}' if sp else f's_branch {name}_done{tag}')
        A.label(f'{name}_got{tag}')
        for k in range(4):
            A(f'buffer_load_dwordx4 {vr(PR+4*k,4)}, v{vL16}, s[40:43], s57 offen offset:{k*1024} sc1')
        A.label(f'{name}_done{tag}')
    B = 184; C = 192
    pre = {1: ['v_and_b32 v6, 15, v1', 'v_lshrrev_b32 v7, 4, v1', 'v_and_b32 v2, 1, v7', 'v_lshrrev_b32 v7, 1, v7', 'v_lshl_add_u32 v7, v2, 1, v7',
               'v_lshrrev_b32 v2, 1, v6', 'v_xor_b32 v7, v7, v2', 'v_and_b32 v7, 3, v7', 'v_lshl_add_u32 v7, v6, 2, v7', 's_lshl_b32 s15, s12, 12',
               f's_add_u32 s15, s15, {STG}', 'v_lshl_add_u32 v4, v7, 4, s15', 'v_lshrrev_b32 v6, 2, v1', 'v_lshrrev_b32 v7, 3, v1', 'v_xor_b32 v7, v7, v1',
               'v_and_b32 v7, 3, v7', 'v_lshl_add_u32 v5, v1, 4, s15', 'v_lshlrev_b32 v6, 15, v6', 'v_lshl_add_u32 v6, v7, 4, v6', 's_lshl_b32 s19, s10, 11', 's_lshl_b32 s15, s13, 21', 's_add_u32 s19, s19, s15',
               's_lshl_b32 s16, s16, 6', 's_add_u32 s19, s19, s16', 's_mov_b32 s60, 0x3f80', 's_mov_b32 s61, 0x3f800000']}
    for i in range(2):
        for q in range(2):
            pre[1] += [f'v_lshlrev_b32 v{B+4*i+2*q}, 16, v{EP+20+2*i+q}', f'v_and_b32 v{B+4*i+2*q+1}, 0xffff0000, v{EP+20+2*i+q}']
    for j in range(4):
        l = pre.setdefault(2 + j, [])
        for i in range(2):
            c = C + (i*4+j)*4
            for q in range(2):
                l += [f'v_lshlrev_b32 v{c+2*q}, 16, v{EP+4*j+2*i+q}', f'v_and_b32 v{c+2*q+1}, 0xffff0000, v{EP+4*j+2*i+q}']
            l += [f'v_pk_add_f32 {vr(c+2*q,2)}, {vr(c+2*q,2)}, {vr(B+4*i+2*q,2)}' for q in range(2)]
            l += [f'v_add_f32 v{c+r}, v{c+r}, v{EP+24+j}' for r in range(4)]
    assert N2 >= 6
    for it in range(N2):
        A('s_barrier')
        if it == 0:
            step(1, True, reads(0, 0, False), xfirst=True)
            for k in range(4):
                for c in range(4*k, 4*k+4): A(f'v_cvt_pk_bf16_f32 v{AX+c}, v{AX+2*c}, v{AX+2*c+1}')
                A(f'buffer_store_dwordx4 {vr(AX+4*k,4)}, v{vL16}, s[40:43], s56 offen offset:{k*1024} sc1')
        else:
            if it == SIG:
                A('s_waitcnt vmcnt(0)')
                A(f'v_mov_b32 v{PR}, 1')
                A(f'buffer_store_dword v{PR}, v{vFl}, s[36:39], s54 offen sc1')
            if it == POLL:
                A(f'buffer_load_dword v{PR+16}, v{vFl}, s[36:39], s55 offen sc1')
            if it > POLL: check(it, False)
            step(1, False, reads(0, 0, False))
            for x in pre.get(it, []): A(x)
        step(0, False, reads(1, 1, False), ADV if it < N2 - 1 else ())
    check('L', True)
    step(1, False, [])
    st(12)
    A('s_waitcnt vmcnt(0)')
    T = 40
    for j in range(4):
        d = T + 4*j
        for i in range(2):
            a = AO + (i*4+j)*4; pr = PR + (i*4+j)*2
            for r in range(4): A(f'v_dot2_f32_bf16 v{a+r}, v{pr+(r>>1)}, s{60+(r&1)}, v{a+r}')
        for i in range(2):
            a = AO + (i*4+j)*4
            for r in range(4): A(f'v_fma_f32 v{a+r}, v{a+r}, v{EP+16+j}, v{C+(i*4+j)*4+r}')
        for i in range(2):
            a = AO + (i*4+j)*4
            A(f'v_cvt_pk_bf16_f32 v{d+2*i}, v{a}, v{a+1}')
            A(f'v_cvt_pk_bf16_f32 v{d+2*i+1}, v{a+2}, v{a+3}')
        A(f'v_permlane16_swap_b32 v{d}, v{d+2}')
        A(f'v_permlane16_swap_b32 v{d+1}, v{d+3}')
        A(f'ds_write_b128 v4, {vr(d,4)} offset:{1024*j}')
        A(f'ds_read_b128 {vr(76+4*j,4)}, v5 offset:{1024*j}')
        if j:
            A('s_waitcnt lgkmcnt(2)')
            A(f'buffer_store_dwordx4 {vr(72+4*j,4)}, v6, s[32:35], s19 offen {opt.get("omod", "sc1")}')
            A(f's_add_u32 s19, s19, {16*16*2048}')
    A('s_waitcnt lgkmcnt(0)')
    A(f'buffer_store_dwordx4 {vr(88,4)}, v6, s[32:35], s19 offen {opt.get("omod", "sc1")}')

def loaders(A, name, opt):
    NS = 4; N2 = opt.get('n2', 8); N1 = (56 - N2) // 2; NT = N1 + N2
    hm = opt.get('hmod', 'sc1')
    lst0 = Stamper(A, opt.get('stamp') == 1, 1)
    class LS:
        def __call__(self, i, real=False, ph=2):
            if i in (1, 2, 3, 4) and ph != opt.get('lph', 2): return
            lst0(i, real)
        def dump(self, *a): lst0.dump(*a)
    lst = LS()
    A('s_load_dwordx4 s[64:67], s[0:1], %d' % KA['w1'])
    A('s_load_dwordx2 s[48:49], s[0:1], %d' % KA['w2'])
    A('s_sub_u32 s12, s12, 4')
    g1_decode(A)
    A('s_lshl_b32 s15, s12, 16')
    A('v_lshlrev_b32 v8, 4, v1')
    A('v_add_u32 v8, s15, v8')
    A('v_add_u32 v9, 0x8000, v8')
    A('s_lshr_b32 s15, s12, 1')
    A('s_lshl_b32 s15, s15, 6')
    A('s_and_b32 s16, s12, 1')
    A('s_lshl_b32 s16, s16, 4')
    A('s_add_u32 s15, s15, s16')
    A('s_and_b32 s16, s11, 1')
    w_voffs(A, 10, 1, 15, 16, 4, range(7))
    A('s_lshl_b32 s43, s12, 12')
    A('s_mul_i32 s44, s12, 7168')
    A(f's_add_u32 s44, s44, {WB0}')
    A('s_mov_b32 s41, 0')
    A('s_mov_b32 s42, 0')
    A('s_lshl_b32 s15, s12, 8')
    A('v_and_b32 v3, 15, v1')
    A('v_lshlrev_b32 v3, 4, v3')
    A('v_lshrrev_b32 v4, 4, v1')
    A('v_lshl_add_u32 v3, v4, 10, v3')
    A('v_add_u32 v3, s15, v3')
    A('v_and_b32 v17, 15, v1')
    A('v_lshlrev_b32 v17, 7, v17')
    A('v_mov_b32 v20, 1')
    A('v_mov_b32 v21, 0')
    A('s_and_b32 s13, s2, 7')
    A('s_sub_u32 s15, 16, s13')
    A('s_cmp_eq_u32 s13, 0')
    A('s_cselect_b32 s15, 8, s15')
    A('s_bitcmp1_b32 s2, 3')
    A('s_cselect_b32 s13, s15, s13')
    A('s_lshl_b32 s13, s13, 4')
    A('s_lshr_b32 s15, s2, 4')
    A('s_add_u32 s13, s13, s15')
    A('s_lshl_b32 s13, s13, 7')
    A('s_lshl_b32 s14, s10, 4')
    A('s_add_u32 s14, s14, s11')
    A('s_lshl_b32 s14, s14, 7')
    A(f's_add_u32 s14, s14, {FL2}')
    A('s_lshl_b32 s15, s10, 18')
    A(f's_add_u32 s15, s15, {HF_OFF}')
    A('s_mul_i32 s16, s11, 448')
    A(f's_sub_u32 s19, {1024*7168}, s16')
    A('s_waitcnt lgkmcnt(0)')
    srd(A, 20, 4, 's15', 256 * 1024)
    srd(A, 24, 64, 's16', 's19')
    A('s_lshl_b32 s15, s10, 14')
    A(f's_add_u32 s15, s15, {ST_OFF}')
    srd(A, 32, 4, 's15', 16384)
    A('s_lshl_b32 s15, s10, 9')
    A(f's_add_u32 s15, s15, {R2_OFF}')
    srd(A, 36, 4, 's15', 512)
    srd(A, 52, 4, FL_OFF, FL_SIZE)
    srd(A, 56, 48, 0, 3584 * 2048)
    A('s_lshl_b32 s60, s2, 2')
    A('s_add_u32 s60, s60, s12')
    NL2 = 5 if opt.get('sw1', 0) else 4
    A(f's_mul_i32 s60, s60, {128*NL2}')
    A(f's_mov_b32 s50, {(6 if NL2 == 5 else 8) * (NL2 << 17)}')
    hstep = [4096]
    A('v_add_u32 v26, 1024, v8')
    A('v_add_u32 v27, 1024, v9')
    def issue_h(lds):
        A(f's_add_u32 m0, {lds}, s43')
        A('s_nop 0')
        A(f'buffer_load_dwordx4 v8, s[20:23], s41 offen {hm} lds')
        A(f'buffer_load_dwordx4 v26, s[20:23], s41 offen offset:1024 {hm} lds')
        A('s_add_u32 m0, m0, 2048')
        A('s_nop 0')
        A(f'buffer_load_dwordx4 v9, s[20:23], s41 offen {hm} lds')
        A(f'buffer_load_dwordx4 v27, s[20:23], s41 offen offset:1024 {hm} lds')
        A(f's_add_u32 s41, s41, {hstep[0]}')
    def issue_w(lds, srdn=24, so='s42'):
        A(f's_add_u32 s45, {lds}, s44')
        for q in range(7):
            A(f's_add_u32 m0, s45, {q*1024}')
            A('s_nop 0')
            A(f'buffer_load_dwordx4 v{10+q}, s[{srdn}:{srdn+3}], {so} offen lds')
        A(f's_add_u32 s42, s42, {128*7168}')
    def sp2():
        if opt.get('nosp2'): return
        for k in range(NL2): A(f's_buffer_load_dwordx2 s[62:63], s[56:59], s60 offset:{128*k + 60}')
        A('s_add_u32 s60, s60, s50')
        A(f's_sub_u32 s50, {NL2 << 17}, s50')
    sw1 = opt.get('sw1', 0)
    if sw1:
        srd(A, 68, 64, 32 * 7168, 992 * 7168)
        A('s_lshr_b32 s61, s2, 4')
        A('s_lshl_b32 s61, s61, 5')
        A('s_and_b32 s15, s2, 15')
        A('s_add_u32 s61, s61, s15')
        A('s_lshl_b32 s61, s61, 2')
        A('s_add_u32 s61, s61, s12')
        A('s_mul_i32 s61, s61, 3584')
    def sp1(b):
        if sw1:
            for k in range(7): A(f's_buffer_load_dwordx2 s[62:63], s[68:71], s61 offset:{896*b + 128*k + 60}')
    sp1(0)
    def only0(tag, ins):
        A('s_cmp_lg_u32 s12, 0')
        A(f's_cbranch_scc1 {tag}')
        for x in ins: A(x)
        A.label(tag)
    A('s_barrier')
    for k in range(3): issue_w(k * WS)
    if sw1: sp1(1)
    else: sp2(); sp2()
    A('s_lshl_b32 s15, s10, 11')
    lst(1, ph=1)
    A('s_barrier')
    lst(2, ph=1)
    only0(f'{name}_f1', ['buffer_store_dword v20, v21, s[52:55], s13 offen sc1'])
    sp1(2)
    A('s_cmp_lg_u32 s12, 0')
    A(f's_cbranch_scc1 {name}_fl1_go')
    spin(A, f'{name}_fl1', 52, 15, 36, 17, 47, opt.get('pdepth', 1), opt.get('pgap', 1))
    lst(3, ph=1)
    A('s_barrier')
    for k in range(3): issue_h(k * HS)
    sp1(3)
    A('s_mov_b32 s40, 0')
    A('s_mov_b32 s46, 0')
    A('s_waitcnt vmcnt(8)')
    lst(4, ph=1)
    A('s_barrier')
    sig5 = lambda: only0(f'{name}_no5', [f's_add_u32 s13, s13, {FL5}', 'buffer_store_dword v20, v21, s[52:55], s13 offen sc1'])
    if not 1: sig5()
    A('s_waitcnt vmcnt(4)')
    A('s_barrier')
    def issue():
        issue_h('s40'); issue_w('s46')
        A(f's_add_u32 s40, s40, {HS}')
        A(f's_add_u32 s46, s46, {WS}')
        A(f's_cmp_eq_u32 s40, {3*HS}')
        A('s_cselect_b32 s40, 0, s40')
        A('s_cselect_b32 s46, 0, s46')
    def stats():
        for c in range(4):
            A(f'v_add_f32 v{40+c}, v{40+c}, v{44+c}')
            A(f'v_add_f32 v{48+c}, v{48+c}, v{52+c}')
        for c in range(4): A(f'v_add_f32 v{40+c}, v{40+c}, v{48+c}')
        A('v_permlane32_swap_b32 v40, v42')
        A('v_permlane32_swap_b32 v41, v43')
        A('v_add_f32 v40, v40, v42')
        A('v_add_f32 v41, v41, v43')
        A('v_mov_b32 v42, v40')
        A('v_mov_b32 v43, v41')
        A('v_permlane16_swap_b32 v40, v42')
        A('v_permlane16_swap_b32 v41, v43')
        A('v_add_f32 v40, v40, v42')
        A('v_add_f32 v41, v41, v43')
        ln_finish(A, 40, 41, 22, 23, 24, 47)
        A('v_lshrrev_b32 v28, 16, v23')
        A('v_and_b32 v4, 15, v1')
        A('v_lshrrev_b32 v5, 5, v1')
        A('v_lshl_add_u32 v2, v4, 1, v5')
        A('s_lshl_b32 s15, s12, 7')
        A(f's_add_u32 s15, s15, {SGB}')
        A('v_lshl_add_u32 v5, v2, 2, s15')
        A('ds_write_b32 v5, v28')
        A('v_mul_f32 v23, v23, v23')
        A('v_rcp_f32 v23, v23')
        A('s_lshl_b32 s15, s12, 7')
        A('v_lshlrev_b32 v5, 2, v2')
        A('buffer_store_dword v23, v5, s[36:39], s15 offen sc1')
    def loop1(tag, first, last):
        A(f's_mov_b32 s18, {first}')
        A.label(f'{name}_{tag}')
        issue()
        if last == 15:
            A('s_cmp_eq_u32 s18, 15')
            A(f's_cbranch_scc1 {name}_nosp')
            if NL2 == 4:
                A('s_cmp_eq_u32 s18, 13')
                A('s_cselect_b32 s50, 0x80000, s50')
        sp2()
        if last == 15: A.label(f'{name}_nosp')
        A('s_add_u32 s18, s18, 1')
        A(f's_cmp_le_u32 s18, {last}')
        A('s_waitcnt vmcnt(11)')
        A('s_barrier')
        A(f's_cbranch_scc1 {name}_{tag}')
    if 1:
        loop1('l1z', 3, 3)
        sig5()
        loop1('l1a', 4, 4)
    else: loop1('l1a', 3, 4)
    A(f's_add_u32 s15, s15, {FL5}')
    A('buffer_load_dword v36, v17, s[52:55], s15 offen sc1')
    issue(); sp2()
    A('s_waitcnt vmcnt(11)')
    A('s_barrier')
    A('v_cmp_ne_u32 vcc, 1, v36')
    A(f's_cbranch_vccz {name}_fl5_go')
    spin(A, f'{name}_fl5', 52, 15, 36, 17, 47, 1, 1)
    for k in range(4):
        A(f's_mov_b32 s47, {4096*k}')
        A(f'buffer_load_dwordx4 {vr(40+4*k,4)}, v3, s[32:35], s47 offen sc1')
    loop1('l1b', 6, 7)
    A('s_mov_b32 s41, 1024')
    A(f's_mov_b32 s42, {32*7168}')
    issue(); sp2()
    stats()
    A('s_waitcnt vmcnt(12)')
    A('s_barrier')
    loop1('l1c', 9, 15)
    A('s_waitcnt vmcnt(0) lgkmcnt(0)')
    A('s_barrier')
    g2_decode(A)
    gs = opt.get('gskip', 1); TT = GTT if gs else 112 * 1024; hstep[0] = GST if gs else 2048
    A(f's_mul_i32 s15, s12, {2*TT}')
    A('v_lshlrev_b32 v8, 4, v1')
    if gs:
        skipmap(A, 26, 8, 1, 4)
        skipmap(A, 8, 8, 0, 4)
        A('v_subrev_u32 v26, 1024, v26')
    else:
        A('v_mov_b32 v26, v8')
    A('v_add_u32 v8, s15, v8')
    A('v_add_u32 v26, s15, v26')
    A(f'v_add_u32 v9, {TT}, v8')
    A(f'v_add_u32 v27, {TT}, v26')
    A('v_lshrrev_b32 v4, 3, v1')
    A('s_lshl_b32 s15, s12, 4')
    A('v_add_u32 v4, s15, v4')
    A('v_lshlrev_b32 v4, 11, v4')
    A('v_and_b32 v5, 1, v1')
    A('v_lshl_add_u32 v4, v5, 4, v4')
    A('v_lshrrev_b32 v5, 4, v1')
    A('v_and_b32 v5, 1, v5')
    A('v_lshrrev_b32 v6, 1, v1')
    A('v_and_b32 v6, 3, v6')
    A('v_xor_b32 v5, v5, v6')
    A('v_lshl_add_u32 v4, v5, 5, v4')
    A('v_xor_b32 v5, 64, v4')
    A(f'v_add_u32 v5, {16384 - 1024}, v5')
    A('v_lshrrev_b32 v6, 3, v1')
    A('v_cmp_eq_u32 vcc, 3, v6')
    A('v_cndmask_b32 v6, v6, 7, vcc')
    for hsel, (va, sr_) in enumerate(((10, 24), (12, 32))):
        if hsel == 0: A('s_mov_b32 s16, s11')
        else: A('s_xor_b32 s16, s11, 1')
        A('s_and_b32 s19, s16, 8')
        A('v_add_u32 v7, s19, v6')
        A('v_lshlrev_b32 v14, 7, v7')
        A('v_xor_b32 v15, 0x400, v14')
        A('s_and_b32 s15, s16, 7')
        A('s_lshl_b32 s16, s16, 7')
        A('v_mov_b32 v7, s16')
        A(f's_add_u32 s{sr_}, s4, {WC_OFF}')
        A(f's_addc_u32 s{sr_+1}, s5, 0')
        A(f's_cmp_eq_u32 s15, {3 if opt.get("wcopy", 1) else 9}')
        A('s_cselect_b64 vcc, -1, 0')
        A(f's_cselect_b32 s{sr_}, s{sr_}, s48')
        A(f's_cselect_b32 s{sr_+1}, s{sr_+1}, s49')
        A(f's_mov_b32 s{sr_+2}, {3584*2048}')
        A(f's_mov_b32 s{sr_+3}, 0x20000')
        A('v_cndmask_b32 v14, v7, v14, vcc')
        A('v_cndmask_b32 v15, v7, v15, vcc')
        A(f'v_add_u32 v{va}, v4, v14')
        A(f'v_add_u32 v{va+1}, v5, v15')
    A('s_lshl_b32 s44, s12, 11')
    A('s_add_u32 s44, s44, 16384')
    assert N1 == 24
    def mask(st_): return sum(1 << x for x in st_)
    def m64(r, m):
        A(f's_mov_b32 s{r}, {m & 0xffffffff}'); A(f's_mov_b32 s{r+1}, {m >> 32}')
    def sel64(r, m_true, m_false):
        for h in range(2):
            A(f's_mov_b32 s{r+h}, {(m_false >> (32*h)) & 0xffffffff}')
            A(f's_cselect_b32 s{r+h}, {(m_true >> (32*h)) & 0xffffffff}, s{r+h}')
    A('s_and_b32 s15, s9, 7')
    A('s_cmp_eq_u32 s15, 7')
    sel64(38, mask(range(0, 4)), mask(range(24, 28)))
    A('s_cmp_eq_u32 s15, 0')
    sel64(30, mask(range(52, 56)), mask(range(28, 32)))
    A('s_or_b64 s[38:39], s[38:39], s[30:31]')
    A('s_cmp_lg_u32 s8, 0')
    sel64(30, mask(range(28, 56)), mask(range(0, 28)))
    A('s_andn2_b64 s[30:31], s[30:31], s[38:39]')
    A('s_mul_i32 s15, s9, 7')
    A('s_add_u32 s15, s15, 1')
    A('s_lshr_b32 s36, s15, 1')
    A('s_lshl_b64 s[28:29], 7, s36')
    A('s_andn2_b64 s[30:31], s[30:31], s[28:29]')
    m64(64, mask([x for x in range(56) if x % 7 in (1, 2, 5, 6)]))
    A('s_and_b64 s[28:29], s[30:31], s[64:65]')
    A('s_andn2_b64 s[30:31], s[30:31], s[64:65]')
    NE = 15
    def nxt(r=28):
        A(f's_ff1_i32_b64 s61, s[{r}:{r+1}]')
        A(f's_bitset0_b64 s[{r}:{r+1}], s61')
    def seth(): A(f's_mul_i32 s41, s61, {hstep[0]}')
    def setw(): A('s_lshl_b32 s42, s61, 17')
    A(f's_mul_i32 s15, s10, {8*TT}')
    A(f's_add_u32 s15, s15, {GS_OFF if gs else G_OFF}')
    srd(A, 20, 4, 's15', 8 * TT)
    def issue_w2(lds, full):
        A(f's_add_u32 m0, {lds}, s44')
        A('s_nop 0')
        A(f'buffer_load_dwordx4 v10, s[24:27], s42 offen lds')
        A(f'buffer_load_dwordx4 v11, s[24:27], s42 offen offset:1024 lds')
        if full:
            A('s_add_u32 m0, m0, 8192')
            A('s_nop 0')
            A(f'buffer_load_dwordx4 v12, s[32:35], s42 offen lds')
            A(f'buffer_load_dwordx4 v13, s[32:35], s42 offen offset:1024 lds')
        A(f's_add_u32 s42, s42, {64*2048}')
    def slotadv():
        A(f's_add_u32 s40, s40, {SLOT}')
        A(f's_cmp_eq_u32 s40, {NS*SLOT}')
        A('s_cselect_b32 s40, 0, s40')
    def issue2(full, r=None):
        if r is not None: nxt(r); seth(); setw()
        issue_h('s40'); issue_w2('s40', full)
        slotadv()
    A('s_lshl_b32 s42, s36, 17')
    for k in (2, 3, 0): issue_w2(k * SLOT, True)
    A('s_lshl_b32 s15, s10, 11')
    A(f's_add_u32 s15, s15, {FL2}')
    A('s_lshl_b32 s61, s8, 3')
    A('v_min_u32 v17, 7, v1')
    A('v_add_u32 v17, s61, v17')
    A('v_lshlrev_b32 v17, 7, v17')
    A('s_barrier')
    nxt(); setw(); seth()
    issue_w2(SLOT, True)
    lst(1)
    A('s_barrier')
    lst(2)
    only0(f'{name}_noa', ['buffer_store_dword v20, v21, s[52:55], s14 offen sc1'])
    A('s_waitcnt vmcnt(4)')
    A('s_barrier')
    A('s_barrier')
    PE = opt.get('pe', 1)
    if PE: A('buffer_load_dword v38, v17, s[52:55], s15 offen sc1')
    A('s_barrier')
    if PE:
        A('s_waitcnt vmcnt(0)')
        A('v_cmp_ne_u32 vcc, 1, v38')
        A(f's_cbranch_vccz {name}_fl2_go')
    spin(A, f'{name}_fl2', 52, 15, 36, 17, 47, opt.get('pdepth', 1), opt.get('pgap', 1))
    lst(3)
    issue_h(SLOT)
    A(f's_mov_b32 s40, {2*SLOT}')
    issue2(True, 28); issue2(True, 28)
    A('s_waitcnt vmcnt(16)')
    lst(4)
    A('s_barrier')
    def loop(tag, n, r):
        A(f's_mov_b32 s18, {n}')
        A.label(f'{name}_{tag}')
        issue2(True, r)
        A('s_sub_u32 s18, s18, 1')
        A('s_cmp_lg_u32 s18, 0')
        A('s_waitcnt vmcnt(16)')
        A('s_barrier')
        A(f's_cbranch_scc1 {name}_{tag}')
    L0 = opt.get('l0', 0)
    loop('l2a', 2 + L0, 28)
    A('s_cmp_lg_u32 s12, 0')
    A(f's_cbranch_scc1 {name}_nob')
    A(f's_add_u32 s14, s14, {FL4 - FL2}')
    A('buffer_store_dword v20, v21, s[52:55], s14 offen sc1')
    A.label(f'{name}_nob')
    loop('l2b', NE - 9 - L0, 28)
    A(f's_add_u32 s15, s15, {FL4 - FL2}')
    A('v_and_b32 v17, 15, v1')
    A('v_lshlrev_b32 v17, 7, v17')
    A('buffer_load_dword v36, v17, s[52:55], s15 offen sc1')
    issue2(True, 28)
    A('s_waitcnt vmcnt(16)')
    A('s_barrier')
    A('s_waitcnt vmcnt(8)')
    A('v_cmp_ne_u32 vcc, 1, v36')
    A(f's_cbranch_vccz {name}_fl4_go')
    spin(A, f'{name}_fl4', 52, 15, 36, 17, 47, 1, 1)
    loop('l2c', N1 - NE, 30)
    cnt = lambda s: 0 if s >= NT else (8 if s < N1 else 6)
    for j in range(N1 - NS + 1, NT - 1):
        s = j + NS - 1
        if s < NT: issue2(False, 38)
        A(f's_waitcnt vmcnt({sum(cnt(x) for x in range(j + 2, j + NS))})')
        A('s_barrier')
    if opt.get('stamp') == 1:
        lst(5); lst(6, True); lst(8)
        A('s_cmp_lg_u32 s12, 0')
        A(f's_cbranch_scc1 {name}_end')
        lst.dump(9, 1, 60)

def gen_m(A, name='m_kernel', opt=None):
    opt = opt or {}
    khead(A, name)
    st = Stamper(A, opt.get('stamp'), 1)
    st(0); st(7, True)
    A('s_cmp_ge_u32 s2, 256')
    A(f's_cbranch_scc1 {name}_end')
    A('s_load_dwordx2 s[4:5], s[0:1], %d' % KA['ws'])
    A('s_load_dwordx2 s[6:7], s[0:1], %d' % KA['x'])
    A('v_lshrrev_b32 v2, 6, v0')
    A('v_and_b32 v1, 63, v0')
    A('v_readfirstlane_b32 s12, v2')
    A('s_cmp_ge_u32 s12, 4')
    A(f's_cbranch_scc1 {name}_loader')
    if opt.get('prio'): A(f's_setprio {opt["prio"]}')
    later = fb_compute(A, name, st, opt)
    late = g1_compute(A, name, st, opt, later)
    g2_compute(A, name, st, opt, late)
    A('s_waitcnt vmcnt(0)') if opt.get('stamp') else None
    st(5); st(6, True)
    st.dump(13, 0, 244)
    A('s_endpgm')
    A.label(f'{name}_loader')
    loaders(A, name, opt)
    A.label(f'{name}_end')
    A('s_endpgm')
    return dict(name=name, grid=256, block=512, lds=M_LDS, vgpr=256)
```

```python
from common import *

XP = 2112; NP = 80; ZP = 1312
ZB = 16 * XP
RB = ZB + 16 * ZP
FA_LDS = RB + 64

def gen_fa(A, name='fa_kernel', opt=None):
    opt = opt or {}
    smod = opt.get('smod', 'sc1'); sm2 = opt.get('sm2', ''); sm3 = opt.get('sm3', 'sc1'); xmod = opt.get('xmod', 'nt')
    khead(A, name)
    st = Stamper(A, opt.get('stamp'), 0)
    st(0); st(7, True)
    A('s_cmp_ge_u32 s2, 256')
    A(f's_cbranch_scc1 {name}_end')
    A('s_load_dwordx2 s[6:7], s[0:1], %d' % KA['x'])
    A('s_load_dwordx2 s[4:5], s[0:1], %d' % KA['ws'])
    A('s_load_dwordx2 s[8:9], s[0:1], %d' % KA['w1'])
    A('s_load_dwordx2 s[60:61], s[0:1], %d' % KA['w2'])
    if opt.get('cpf', 1):
        A('s_getpc_b64 s[36:37]')
        A(f's_mov_b32 s38, CODE_END-{name}-64')
        A('s_mov_b32 s39, 0x20000')
        A('s_lshr_b32 s13, s2, 3')
        A('s_lshl_b32 s13, s13, 7')
        A('v_lshlrev_b32 v4, 12, v0')
        A('buffer_load_dword v88, v4, s[36:39], s13 offen')
    A('v_lshrrev_b32 v2, 6, v0')
    A('v_and_b32 v1, 63, v0')
    A('s_and_b32 s13, s2, 7')
    A('v_readfirstlane_b32 s12, v2')
    A('s_lshr_b32 s14, s2, 3')
    A('s_and_b32 s11, s14, 1')
    A('s_sub_u32 s15, 16, s13')
    A('s_cmp_eq_u32 s13, 0')
    A('s_cselect_b32 s15, 8, s15')
    A('s_bitcmp1_b32 s14, 1')
    A('s_cselect_b32 s10, s15, s13')
    A('s_lshr_b32 s15, s14, 2')
    A('s_lshl_b32 s15, s15, 4')
    A('s_add_u32 s10, s10, s15')
    A('v_lshrrev_b32 v4, 5, v1')
    A('v_lshlrev_b32 v4, 1, v4')
    A('v_xor_b32 v4, v4, v1')
    A('v_lshlrev_b32 v14, 4, v4')
    A('s_lshl_b32 s13, s12, 9')
    A('s_add_u32 s13, s13, s10')
    A('s_lshl_b32 s63, s13, 2')
    A('s_lshl_b32 s13, s13, 11')
    A(f's_mul_i32 s14, s12, {4*XP}')
    vn, vg = 2, 3
    M1, TC, TS, M2C, M2S, SA1, SA2, SGN, MU, ONES = 16, 24, 40, 56, 60, 64, 68, 72, 73, 76
    GA, SA = 80, 84
    vSt, vTr0, vTr1, vZw, vZr, vU, vE, vE0, vZx, vX0, vZ0 = 108, 90, 91, 92, 93, 94, 95, 96, 97, 98, 99
    WHR = 4
    F = 112; T = 144; AF = 208; TMP = 112; P = 128; D = 240
    A(f'v_and_b32 v{vn}, 15, v1')
    A(f'v_lshrrev_b32 v{vg}, 4, v1')
    A('s_lshl_b32 s43, s11, 4')
    A('s_add_u32 s43, s43, 1')
    A(f'v_and_b32 v5, 7, v{vn}')
    A('v_add_u32 v5, s43, v5')
    A('v_cvt_f32_u32 v5, v5')
    A(f'v_and_b32 v6, 8, v{vn}')
    A(f'v_cvt_f32_u32 v7, v{vg}')
    A('v_cvt_f32_u32 v8, v6')
    A('v_mul_f32 v9, 0x3d000000, v5')
    A('v_mul_f32 v8, 0x3d000000, v8')
    A('v_mul_f32 v12, 0x41000000, v7')
    A('v_fmac_f32 v8, v12, v9')
    def m1(hh8, th, dl):
        for j in range(8):
            if j: A(f'v_add_f32 v{th}, v{th}, v{dl}')
            A(f'v_cos_f32 v{10 + (j & 1)}, v{th}')
            if j & 1: A(f'v_cvt_pk_bf16_f32 v{M1 + 4*hh8 + j//2}, v10, v11')
    A('v_mov_b32 v13, v8')
    m1(0, 8, 9)
    A('s_waitcnt lgkmcnt(0)')
    srd(A, 20, 6, 0, 2048 * 2048)
    for r in range(4):
        A(f's_add_u32 m0, s14, {r*XP}')
        A('s_nop 0')
        A(f'buffer_load_dwordx4 v14, s[20:23], s13 offen {xmod} lds')
        A(f'buffer_load_dwordx4 v14, s[20:23], s13 offen offset:1024 {xmod} lds')
        if r < 3: A(f's_add_u32 s13, s13, {128*2048}')
    A('v_add_f32 v9, 0x3e800000, v9')
    m1(1, 13, 9)
    A(f'v_lshlrev_b32 v9, 28, v6')
    A(f'v_lshrrev_b32 v10, 16, v9')
    A(f'v_or_b32 v{SGN}, v9, v10')
    A('v_mul_f32 v12, 4.0, v7')
    for hh8 in range(2):
        if hh8: A('v_add_f32 v5, 0x41000000, v5')
        A('v_mul_f32 v13, 0x3a800000, v5')
        A('v_xor_b32 v15, v9, v13')
        A('v_mul_f32 v8, v12, v15')
        for hh in range(2):
            for r in range(4):
                o = 8*hh8 + 4*hh + r
                if r: A('v_add_f32 v8, v8, v15')
                elif hh: A('v_fmac_f32 v8, 0x41500000, v15')
                A(f'v_cos_f32 v{TC+o}, v8')
                A(f'v_sin_f32 v{TS+o}, v8')
    A('s_cmp_eq_u32 s11, 1')
    A('s_cselect_b32 s44, 0xc2000000, 0')
    A(f'v_mov_b32 v{MU}, s44')
    A(f'v_cmp_eq_u32 vcc, 7, v{vn}')
    A(f'v_cndmask_b32 v{MU}, 0, v{MU}, vcc')
    A(f'v_cvt_f32_u32 v5, v{vn}')
    A('v_mul_f32 v13, 0x3d000000, v5')
    A('v_mul_f32 v8, v12, v13')
    for j in range(8):
        if j == 4: A('v_fmac_f32 v8, 0x41500000, v13')
        elif j: A('v_add_f32 v8, v8, v13')
        A(f'v_cos_f32 v{10+(j&1)}, v8')
        A(f'v_sin_f32 v{14+(j&1)}, v8')
        if j & 1:
            A(f'v_cvt_pk_bf16_f32 v{M2C+j//2}, v10, v11')
            A(f'v_cvt_pk_bf16_f32 v{M2S+j//2}, v14, v15')
    for i in range(4): A(f'v_mov_b32 v{ONES+i}, 0x3f803f80')
    A(f'v_lshrrev_b32 v10, 2, v{vn}')
    A(f'v_and_b32 v11, 3, v{vn}')
    A(f'v_mul_u32_u24 v12, {XP}, v10')
    A(f'v_mul_u32_u24 v13, 528, v11')
    A('v_add3_u32 v12, v12, v13, s14')
    A(f'v_and_b32 v13, 1, v{vg}')
    A('v_lshl_add_u32 v12, v13, 8, v12')
    A(f'v_lshrrev_b32 v15, 1, v{vg}')
    A(f'v_lshl_add_u32 v{vSt}, v15, 7, v12')
    for e in range(1, 4): A(f'v_xor_b32 v{vSt+e}, {16*e}, v{vSt}')
    A('v_lshlrev_b32 v12, 6, v10')
    A(f'v_lshl_add_u32 v12, v{vg}, 9, v12')
    A('v_lshl_add_u32 v12, v11, 3, v12')
    A('v_lshl_add_u32 v12, v13, 5, v12')
    A(f'v_add_u32 v{vTr0}, s14, v12')
    A(f'v_xor_b32 v{vTr1}, 32, v{vTr0}')
    A(f's_mul_i32 s15, s12, {4*ZP}')
    A(f's_add_u32 s15, s15, {ZB}')
    A(f'v_mul_u32_u24 v{vZw}, {NP}, v{vn}')
    A(f'v_lshl_add_u32 v{vZw}, v{vg}, 4, v{vZw}')
    A(f'v_add_u32 v{vZw}, s15, v{vZw}')
    A(f'v_mul_u32_u24 v{vX0}, {XP}, v10')
    A(f'v_add_u32 v{vX0}, s14, v{vX0}')
    A(f'v_mul_u32_u24 v{vZ0}, {ZP}, v10')
    A('v_and_b32 v12, 1, v1')
    A(f'v_mul_u32_u24 v12, {8*NP}, v12')
    A(f'v_add3_u32 v{vZ0}, v{vZ0}, v12, s15')
    A('v_cmp_eq_u32 s[46:47], 1, v11')
    A('v_cmp_eq_u32 s[48:49], 2, v11')
    A('v_cmp_eq_u32 s[50:51], 3, v11')
    A(f'v_cmp_eq_u32 s[52:53], v10, v{vg}')
    A('s_cmp_eq_u32 s11, 0')
    A('s_cselect_b32 s16, 8192, 0')
    srd(A, 32, 4, MX_OFF, 's16')
    srd(A, 28, 4, U_OFF, 4 * MB)
    srd(A, 36, 4, E_OFF, 131072)
    A('s_lshr_b32 s65, s12, 1')
    A('s_cmp_lg_u32 s65, 0')
    A('s_cselect_b32 s44, 0.25, 0')
    A(f'v_lshlrev_b32 v8, 9, v{vg}')
    A('v_add_u32 v8, s10, v8')
    A('v_cvt_f32_u32 v8, v8')
    A('v_mul_f32 v13, 0x3a000000, v5')
    A('v_fma_f32 v8, v8, v13, s44')
    A('v_mul_f32 v13, 0x3d800000, v5')
    for j in range(4):
        if j: A('v_add_f32 v8, v8, v13')
        A(f'v_cos_f32 v{SA1+j}, v8')
        A(f'v_sin_f32 v{SA2+j}, v8')
    A(f'v_lshl_add_u32 v12, v{vg}, 2, v10')
    A(f'v_mul_u32_u24 v12, {ZP}, v12')
    A(f'v_add_u32 v{vZx}, {ZB + 64}, v12')
    A('v_lshl_add_u32 v12, v11, 3, v12')
    A('s_and_b32 s15, s12, 1')
    A('s_lshl_b32 s16, s15, 5')
    A(f's_add_u32 s16, s16, {ZB}')
    A(f'v_add_u32 v{vZr}, s16, v12')
    A(f'v_lshlrev_b32 v{vU}, 20, v{vg}')
    A('s_lshl_b32 s16, s15, 2')
    A('s_add_u32 s16, s16, s10')
    A('v_add_u32 v12, s16, v10')
    A('v_and_b32 v12, 7, v12')
    A(f'v_lshl_add_u32 v{vU}, v12, 7, v{vU}')
    A(f'v_lshl_add_u32 v{vU}, v11, 4, v{vU}')
    A('s_lshl_b32 s66, s65, 17')
    A('s_lshl_b32 s16, s10, 10')
    A('s_add_u32 s66, s66, s16')
    A('s_lshl_b32 s16, s11, 6')
    A('s_add_u32 s66, s66, s16')
    A('s_lshl_b32 s16, s15, 2')
    A('s_add_u32 s16, s16, 1')
    A('v_add_u32 v12, s16, v10')
    A(f'v_lshlrev_b32 v{vE0}, 14, v{vg}')
    A(f'v_lshl_add_u32 v{vE}, v12, 9, v{vE0}')
    A('v_cmp_gt_u32 vcc, 8, v12')
    A('s_and_b64 vcc, vcc, s[50:51]')
    A(f'v_cndmask_b32 v{vE}, 4.0, v{vE}, vcc')
    A(f'v_lshl_add_u32 v{vE0}, v{vn}, 16, v{vE0}')
    A('s_lshl_b32 s16, s15, 1')
    A(f'v_or_b32 v12, s16, v{vn}')
    A('v_cmp_gt_u32 vcc, 2, v12')
    A(f'v_cndmask_b32 v{vE0}, 4.0, v{vE0}, vcc')
    A('s_lshl_b32 s67, s65, 7')
    A('s_add_u32 s67, s67, s10')
    A('s_lshl_b32 s67, s67, 1')
    srd(A, 24, 4, 38 * MB, 2048 * 128)
    A('v_lshlrev_b32 v12, 7, v0')
    A('v_cmp_gt_u32 vcc, 8, v0')
    A('v_cndmask_b32 v12, 4.0, v12, vcc')
    A('s_mul_i32 s15, s2, 1024')
    A('v_mov_b32 v13, 0')
    A(f'buffer_store_dword v13, v12, s[24:27], s15 offen {sm2}')
    npf = 2
    srd(A, 24, 60, 0, 3584 * 2048)
    A('v_lshrrev_b32 v12, 4, v0')
    A('s_mul_i32 s15, s2, 14')
    A('v_add_u32 v12, s15, v12')
    A('v_and_b32 v13, 8, v0')
    A('v_and_b32 v14, 7, v0')
    A('v_lshlrev_b32 v14, 4, v14')
    A('v_lshl_add_u32 v14, v12, 11, v14')
    A('v_add_u32 v12, v12, v13')
    A('v_and_b32 v12, 15, v12')
    A('v_and_b32 v15, 7, v12')
    A('v_cmp_eq_u32 vcc, 3, v15')
    A('v_xor_b32 v15, 4, v12')
    A('v_cndmask_b32 v12, v12, v15, vcc')
    A('v_lshl_add_u32 v104, v12, 7, v14')
    A('v_lshl_add_u32 v14, v13, 7, v14')
    A('v_cmp_gt_u32 vcc, 224, v0')
    A('v_cndmask_b32 v14, 4.0, v14, vcc')
    A('v_cndmask_b32 v104, 4.0, v104, vcc')
    A('buffer_load_dwordx4 v[100:103], v14, s[24:27], 0 offen offset:384')
    if opt.get('wh', 0):
        srd(A, 24, 8, 0, 1024 * 7168)
        A('s_lshl_b32 s15, s2, 2')
        A('s_add_u32 s15, s15, s12')
        A('v_lshrrev_b32 v12, 3, v1')
        A('v_and_b32 v13, 7, v1')
        A('v_mul_u32_u24 v14, 896, v12')
        A('v_lshl_add_u32 v14, v13, 4, v14')
        A('s_mul_i32 s16, s15, 7168')
        A('buffer_load_dwordx4 v[72+0:72+0], v14, s[24:27], s16 offen offset:384'.replace('v[72+0:72+0]', f'v[{WHR}:{WHR+3}]'))
        A('v_lshrrev_b32 v14, 2, v1')
        A('v_lshlrev_b32 v14, 16, v14')
        A('v_and_b32 v13, 3, v1')
        A('v_lshl_add_u32 v105, v13, 4, v14')
        A('s_lshl_b32 s62, s15, 6')
        npf += 1
    if opt.get('tlb'):
        sh = opt['tlb']
        A('s_load_dwordx2 s[68:69], s[0:1], %d' % KA['out'])
        A('s_lshr_b32 s15, s2, 3')
        A(f's_lshl_b32 s15, s15, {sh + 2}')
        A('s_lshl_b32 s16, s12, %d' % sh)
        A('s_add_u32 s15, s15, s16')
        srd(A, 24, 4, 0, 72 * MB)
        A(f'v_lshlrev_b32 v12, {sh + 7}, v1')
        A('v_cmp_gt_u32 vcc, %d, v1' % max(1, (72 * MB >> (sh + 7)) + 1))
        A('v_cndmask_b32 v12, 4.0, v12, vcc')
        A('buffer_load_dword v87, v12, s[24:27], s15 offen')
        A('s_waitcnt lgkmcnt(0)')
        srd(A, 24, 68, 0, 4 * MB)
        A('buffer_load_dword v87, v12, s[24:27], s15 offen')
        npf += 2
    def touch():
        if opt.get('pf', 1):
            srd(A, 24, 8, 0, 1024 * 7168)
            A('v_lshlrev_b32 v12, 7, v0')
            nl = 224 if opt.get('pf', 1) == 1 else 112
            A(f'v_cmp_gt_u32 vcc, {nl}, v0')
            A('v_cndmask_b32 v12, 4.0, v12, vcc')
            if nl == 224: A(f's_mul_i32 s15, s2, {nl*128}')
            else:
                A('s_lshr_b32 s15, s2, 4')
                A('s_lshl_b32 s15, s15, 5')
                A('s_and_b32 s16, s2, 15')
                A('s_add_u32 s15, s15, s16')
                A('s_mul_i32 s15, s15, 14336')
            A('buffer_load_dword v89, v12, s[24:27], s15 offen')
    if not opt.get('pfend') and opt.get('pf', 1):
        touch(); npf += 1
        if opt.get('pw2'):
            srd(A, 24, 60, 0, opt['pw2'] * 2048)
            if opt['pw2'] < 3584: A(f's_mul_i32 s15, s2, {opt["pw2"] * 8}'); A(f'v_cmp_gt_u32 vcc, {opt["pw2"] // 16}, v0'); A('v_cndmask_b32 v12, 4.0, v12, vcc')
            A('buffer_load_dword v88, v12, s[24:27], s15 offen')
            npf += 1
    st(1)
    A(f's_waitcnt vmcnt({npf})')
    st(2)
    E = AutoLgkm(A)
    def mf(d, a, b, z): return f'v_mfma_f32_16x16x32_bf16 {vr(d,4)}, {vr(a,4)}, {vr(b,4)}, {"0" if z else vr(d,4)}'
    def s1rd(r): return [f'ds_read_b64_tr_b16 {vr(AF+8*r+4*hh+2*rd,2)}, v{vTr0 if hh == 0 else vTr1} offset:{r*XP + 256*rd}' for hh in range(2) for rd in range(2)]
    frd = [f'ds_read_b128 {vr(F+4*i,4)}, v{vSt + (i&3)} offset:{64*(i>>2)}' for i in range(8)] + [f'ds_read_u16 v{vX0}, v{vX0}']
    def s1(r): return [mf(T + 16*r + 8*hh8 + 4*hh, AF + 8*r + 4*hh, M1 + 4*hh8, True) for hh8 in range(2) for hh in range(2)]
    for x in s1rd(0) + s1rd(1) + s1rd(2) + frd[:3]: E(x)
    for x in weave(s1(0) + s1(1), s1rd(3) + frd[3:], per=2) + s1(2) + s1(3): E(x)
    D0 = AF + 16; D1 = D
    def tw(r, hh8, tm, p):
        t = T + 16*r + 8*hh8; d = (D1 if hh8 else D0) + 4*r
        return ([f'v_pk_mul_f32 {vr(tm+k,2)}, {vr(t+k,2)}, {vr(TC+8*hh8+k,2)}' for k in range(0, 8, 2)] if opt.get('pk', 1) else
                [f'v_mul_f32 v{tm+k}, v{t+k}, v{TC+8*hh8+k}' for k in range(8)]) + \
               [f'v_fmac_f32_dpp v{tm+k}, v{t+k}, v{TS+8*hh8+k} row_ror:8 row_mask:0xf bank_mask:0xf' for k in range(8)] + \
               [f'v_cvt_pk_bf16_f32 v{p+k}, v{tm+2*k}, v{tm+2*k+1}' for k in range(4)] + [mf(d, M2C, p, True)] + \
               [f'v_xor_b32_dpp v{p+4+k}, v{p+k}, v{SGN} row_ror:8 row_mask:0xf bank_mask:0xf' for k in range(4)], mf(d, M2S, p + 4, False)
    stm = [x for i in range(8) for x in (mf(SA, ONES, F+4*i, i == 0), mf(GA, F+4*i, F+4*i, i == 0))]
    t0 = []
    for r in range(4):
        a, b = tw(r, 0, AF, AF + 8)
        t0 += a[:6] + ([pb] if r else []) + a[6:]
        pb = b
    mean = [f'v_add_f32_dpp v11, v{SA}, v{SA} quad_perm:[1,0,3,2] row_mask:0xf bank_mask:0xf', f'v_cndmask_b32 v10, v{GA}, v{GA+1}, s[46:47]',
            f'v_lshlrev_b32 v{vX0}, 16, v{vX0}', 'v_add_f32_dpp v11, v11, v11 quad_perm:[2,3,0,1] row_mask:0xf bank_mask:0xf',
            f'v_cndmask_b32 v10, v10, v{GA+2}, s[48:49]', 'v_mul_f32 v15, 0x3a800000, v11', f'v_cndmask_b32 v10, v10, v{GA+3}, s[50:51]'] + \
           [f'v_readlane_b32 s{56+r}, v15, {4*r}' for r in range(4)]
    for x in weave(stm, t0[:48], per=3) + weave(t0[48:], mean, start=6, per=1) + [pb]: E(x)
    class L(list):
        def __call__(self, t): self.append(t)
    sg = L()
    sg('v_add_f32_dpp v10, v10, v10 quad_perm:[1,0,3,2] row_mask:0xf bank_mask:0xf')
    sg('v_add_f32_dpp v10, v10, v10 quad_perm:[2,3,0,1] row_mask:0xf bank_mask:0xf')
    ln_finish(sg, 11, 10, 12, 13, 14, 45)
    sg('v_rcp_f32 v13, v13')
    sg(f'v_sub_f32 v{vX0}, v{vX0}, v12')
    sg('v_sub_f32 v14, v15, v12')
    sg('v_mul_f32 v14, 0x44800000, v14')
    sg(f'v_cvt_pk_bf16_f32 v{vX0}, v{vX0}, v14')
    sg(f'v_lshlrev_b32 v12, 9, v{vg}'); sg(f'v_lshlrev_b32 v10, 2, v{vg}'); sg('s_lshl_b32 s15, s12, 4'); sg(f's_add_u32 s15, s15, {RB}')
    sg('v_add_u32 v10, s15, v10')
    def fin(r):
        return [f'v_cvt_pk_bf16_f32 v{D0+4*r+k}, v{D0+4*r+k}, v{D1+4*r+k}' for k in range(4)] + [f'ds_write_b128 v{vZw}, {vr(D0+4*r,4)} offset:{r*ZP}']
    t1 = []
    for r in range(4):
        a, b = tw(r, 1, TMP, P + 8*(r & 1))
        pre = [f'v_mul_f32 v8, s{56+r}, v{MU}', 'v_mov_b32 v9, v8'] + ([f'v_pk_add_f32 {vr(T+16*r+8+k,2)}, {vr(T+16*r+8+k,2)}, v[8:9]' for k in range(0, 8, 2)] if opt.get('pk', 1)
              else [f'v_add_f32 v{T+16*r+8+k}, v{T+16*r+8+k}, v8' for k in range(8)])
        t1 += pre[:2] + ([pb] if r else []) + pre[2:] + a[:12] + (fin(r - 1) if r else []) + a[12:]
        pb = b
    for x in weave(t1[:2*len(sg)], list(sg), per=1)[:]: E(x)
    A('s_mov_b64 exec, s[52:53]')
    E('ds_write_b32 v10, v13')
    A(f'buffer_store_dword v15, v12, s[32:35], s63 offen {sm2}')
    A('s_mov_b64 exec, -1')
    x0 = ['v_mov_b32 v11, 0', 's_mov_b32 vcc_lo, 0x55555555', 's_mov_b32 vcc_hi, 0x55555555',
          f'v_cndmask_b32 v10, 0, v{vX0}, vcc', f'ds_write_b64 v{vZ0}, v[10:11] offset:64']
    for x in weave(t1[2*len(sg):], x0, per=1): E(x)
    E(pb)
    A(f'v_lshlrev_b32 v10, 4, v{vg}')
    A(f'v_add_u32 v10, {RB}, v10')
    for x in fin(3): E(x)
    st(3)
    A('s_waitcnt lgkmcnt(0)')
    A('s_barrier')
    st(8)
    RS = F; AM = F + 4; ZF = T; O = T + 36
    A(f'ds_read_b128 {vr(RS,4)}, v10')
    for tau in range(9):
        if tau == 7: A('s_waitcnt lgkmcnt(14)')
        for rd in range(2):
            if tau < 8: A(f'ds_read_b64_tr_b16 {vr(ZF + tau*4 + 2*rd, 2)}, v{vZr} offset:{(rd*8 + tau)*NP}')
            else: A(f'ds_read_b64_tr_b16 {vr(ZF + tau*4 + 2*rd, 2)}, v{vZx} offset:{rd*8*NP}')
    for j in range(0, 4, 2):
        A(f'v_pk_mul_f32 {vr(SA1+j,2)}, {vr(SA1+j,2)}, {vr(RS+j,2)}')
        A(f'v_pk_mul_f32 {vr(SA2+j,2)}, {vr(SA2+j,2)}, {vr(RS+j,2)}')
    for k in range(4): A(f'v_cvt_pk_bf16_f32 v{AM+k}, v{SA1+2*k}, v{SA1+2*k+1}')
    for tau in range(9):
        if tau % 2 == 0: A(f's_waitcnt lgkmcnt({max(14 - 2*tau, 0)})')
        mfma(A, O + 4*tau, AM, ZF + tau*4, '0')
    for r in range(4):
        b = P + 4*r
        for k in range(4): A(f'v_cvt_pk_bf16_f32 v{b+k}, v{O+8*k+r}, v{O+8*k+4+r}')
        A(f'buffer_store_dwordx4 {vr(b,4)}, v{vU}, s[28:31], s66 offen {smod}')
        if r < 3: A('s_add_u32 s66, s66, 0x40000')
    srd(A, 24, 4, WC_OFF, 3584 * 2048)
    A(f's_waitcnt vmcnt({npf + 3})')
    A(f'buffer_store_dwordx4 v[100:103], v104, s[24:27], 0 offen {sm3}')
    if opt.get('wh', 0):
        srd(A, 24, 4, WH_OFF, MB)
        A(f's_waitcnt vmcnt({npf + 3})')
        A(f'buffer_store_dwordx4 v[{WHR}:{WHR+3}], v105, s[24:27], s62 offen {sm3}')
    A('s_cmp_eq_u32 s11, 0')
    A(f's_cbranch_scc1 {name}_c0')
    for r in range(4):
        A(f'buffer_store_short_d16_hi v{P+4*r+3}, v{vE}, s[36:39], s67 offen {sm2}')
        if r < 3: A('s_add_u32 s67, s67, 4096')
    A(f's_branch {name}_fin')
    A.label(f'{name}_c0')
    for r in range(4):
        A(f'v_cvt_pk_bf16_f32 v{O+32+r}, v{O+32+r}, v{O+32+r}')
        A(f'buffer_store_short v{O+32+r}, v{vE0}, s[36:39], s67 offen {sm2}')
        if r < 3: A('s_add_u32 s67, s67, 4096')
    A.label(f'{name}_fin')
    if opt.get('pfend'):
        touch()
        if opt['pfend'] == 2:
            srd(A, 24, 60, 0, 3584 * 2048)
            A('buffer_load_dword v88, v12, s[24:27], s15 offen')
    st(4)
    A('s_waitcnt vmcnt(0)') if opt.get('stamp') else None
    st(5); st(6, True)
    st.dump(9, 0, 108)
    A.label(f'{name}_end')
    A('s_endpgm')
    return dict(name=name, grid=256, block=256, lds=FA_LDS, vgpr=256)
```

```python
from common import *
from g1 import w_voffs, tr_bases

HS = 16384; WS = 28672; WB0 = 3 * HS
XB = 32768; EB = WB0 + 3 * WS
SLOT = 32768
SGB = EB + 1024
SYB = SGB + 512
R1, D1, R2W, D2 = 0, 64, 128, 384
STG = SYB
M_LDS = STG + 16384
FULL = 0x01010101
PX_OFF = 29 * MB
FL_OFF = 38 * MB
HS_OFF = 72 * MB
GS_OFF = 40 * MB; GST = 3072; GTT = 56 * GST
FL1, FL2, FL3, FL4, FL5 = 0, 32768, 65536, 196608, 229376
FL_SIZE = 2048 * 128

def spin(A, tag, srdn, soff, vflag, vaddr, scnt, depth=4, gap=2):
    A(f's_mov_b32 s{scnt}, 400000')
    ld = lambda k: A(f'buffer_load_dword v{vflag+k}, v{vaddr}, s[{srdn}:{srdn+3}], s{soff} offen sc1')
    for k in range(depth - 1):
        ld(k); A(f's_sleep {gap}')
    A.label(f'{tag}_spin')
    for k in range(depth):
        ld((k + depth - 1) % depth)
        A(f's_waitcnt vmcnt({depth - 1})')
        A(f'v_cmp_ne_u32 vcc, 1, v{vflag+k}')
        A(f's_cbranch_vccz {tag}_go')
        A(f's_sleep {gap}')
    A(f's_sub_u32 s{scnt}, s{scnt}, 1')
    A(f's_cbranch_scc0 {tag}_spin')
    A.label(f'{tag}_go')

def skipmap(A, dst, src, odd, t):
    if odd:
        A(f'v_cmp_lt_u32 vcc, 255, v{src}')
        A(f'v_add_u32 v{dst}, {1024 + 128}, v{src}')
    else:
        A(f'v_cmp_lt_u32 vcc, 383, v{src}')
        if dst != src: A(f'v_mov_b32 v{dst}, v{src}')
    A(f'v_add_u32 v{t}, 128, v{dst}')
    A(f'v_cndmask_b32 v{dst}, v{dst}, v{t}, vcc')

def g1_decode(A):
    A('s_and_b32 s8, s2, 7')
    A('s_lshr_b32 s9, s2, 3')
    A('s_and_b32 s10, s8, 1')
    A('s_lshl_b32 s10, s10, 3')
    A('s_and_b32 s11, s9, 7')
    A('s_add_u32 s10, s10, s11')
    A('s_lshr_b32 s11, s8, 1')
    A('s_lshl_b32 s11, s11, 2')
    A('s_lshr_b32 s9, s9, 3')
    A('s_add_u32 s11, s11, s9')

def g2_decode(A):
    A('s_mov_b32 s9, s11')
    A('s_lshr_b32 s8, s9, 3')
    A('s_and_b32 s11, s9, 7')
    A('s_lshl_b32 s11, s11, 1')
    A('s_add_u32 s11, s11, s8')

def fb_compute(A, name, st, opt):
    A('s_and_b32 s13, s2, 7')
    A('s_lshr_b32 s14, s2, 3')
    A('s_sub_u32 s15, 16, s13')
    A('s_cmp_eq_u32 s13, 0')
    A('s_cselect_b32 s15, 8, s15')
    A('s_bitcmp1_b32 s14, 0')
    A('s_cselect_b32 s10, s15, s13')
    A('s_lshr_b32 s11, s14, 1')
    A('s_sub_u32 s16, 16, s10')
    A('s_and_b32 s16, s16, 15')
    A('s_sub_u32 s17, 15, s11')
    A('s_lshr_b32 s19, s11, 3')
    A('s_cmp_lg_u32 s19, 0')
    A('s_cselect_b32 s16, s16, s10')
    A('s_cselect_b32 s17, s17, s11')
    vn, vg = 2, 3
    A(f'v_and_b32 v{vn}, 15, v1')
    A(f'v_lshrrev_b32 v{vg}, 4, v1')
    A('v_lshrrev_b32 v6, 3, v1')
    A(f'v_and_b32 v7, 1, v{vg}')
    A('v_lshrrev_b32 v8, 1, v1')
    A('v_and_b32 v8, 3, v8')
    A('v_xor_b32 v7, v7, v8')
    A('v_lshlrev_b32 v7, 5, v7')
    A('v_lshl_add_u32 v4, v6, 10, v7')
    A('v_and_b32 v7, 1, v1')
    A('v_lshl_add_u32 v4, v7, 4, v4')
    A('v_add_u32 v7, s17, v6')
    A('v_and_b32 v7, 7, v7')
    A('v_lshl_add_u32 v4, v7, 7, v4')
    A('v_xor_b32 v5, 64, v4')
    A(f'v_add_u32 v5, {8192 - 1024}, v5')
    A('s_lshl_b32 s14, s16, 2')
    A('s_add_u32 s14, s14, s12')
    A('s_lshl_b32 s14, s14, 16')
    A('s_lshl_b32 s18, s12, 13')
    A(f'v_xor_b32 v8, v{vg}, v1')
    A('v_and_b32 v8, 7, v8')
    A('v_lshlrev_b32 v8, 4, v8')
    A('v_lshl_add_u32 v6, v6, 15, v8')
    A('v_xor_b32 v7, 64, v6')
    A(f'v_add_u32 v7, {8*32768 - 1024}, v7')
    A('s_lshl_b32 s61, s12, 19')
    A('s_lshl_b32 s15, s10, 11')
    A('s_add_u32 s61, s61, s15')
    A('s_lshl_b32 s15, s11, 7')
    A('s_add_u32 s61, s61, s15')
    A('s_lshl_b32 s62, s12, 12')
    A(f's_add_u32 s62, s62, {XB}')
    A('s_lshl_b32 s63, s10, 3')
    A('s_add_u32 s63, s63, s11')
    A('s_lshl_b32 s63, s63, 9')
    A('s_sub_u32 s63, s63, 512')
    A('s_cmp_eq_u32 s11, 0')
    A('s_cselect_b32 s15, 65536, 0')
    A('s_add_u32 s63, s63, s15')
    A('s_cmp_lt_u32 s11, 8')
    A('s_cselect_b32 s63, s63, 0x40000000')
    A('s_lshl_b32 s15, s16, 12')
    A('v_mov_b32 v9, s15')
    A('v_mov_b32 v10, s63')
    A('v_cmp_gt_u32 vcc, 32, v1')
    A('v_cndmask_b32 v9, v10, v9, vcc')
    A('v_lshl_add_u32 v9, v1, 4, v9')
    A(f'v_lshlrev_b32 v10, 6, v{vn}')
    A('s_lshl_b32 s15, s12, 8')
    A('s_add_u32 s15, s15, s10')
    A('s_lshl_b32 s15, s15, 2')
    A('s_waitcnt lgkmcnt(0)')
    srd(A, 20, 4, U_OFF, 4 * MB)
    srd(A, 28, 4, E_OFF, 131072)
    for h in range(4):
        A(f's_add_u32 m0, s18, {h*2048}')
        A('s_nop 0')
        A(f'buffer_load_dwordx4 v4, s[20:23], s14 offen lds')
        A(f'buffer_load_dwordx4 v5, s[20:23], s14 offen offset:1024 lds')
        if h < 3: A('s_add_u32 s14, s14, 16384')
    A(f's_mov_b32 m0, {EB}')
    srd(A, 24, 6, 0, 2048 * 2048)
    A('buffer_load_dwordx4 v9, s[28:31], 0 offen lds')
    FR = [16, 48]; EF = 80; B = [112, 144]; ACC = [176, 192]; MA = [208, 212]; VT = 216; VX = 220; X = [224, 232]; VB = 240; MXV = [241, 242]; VH = 243; VE = 244
    srd(A, 40, 4, MX_OFF, 8192)
    for u in range(2):
        A(f's_add_u32 m0, s62, {u*2048}')
        if u: A(f's_add_u32 s61, s61, {4 << 19}')
        else: A('s_nop 0')
        A('buffer_load_dwordx4 v6, s[24:27], s61 offen lds')
        A('buffer_load_dwordx4 v7, s[24:27], s61 offen offset:1024 lds')
    A('s_add_u32 s14, s15, 4096')
    A(f'buffer_load_dword v{MXV[0]}, v10, s[40:43], s15 offen')
    A(f'buffer_load_dword v{MXV[1]}, v10, s[40:43], s14 offen')
    A('s_lshl_b32 s15, s12, 4')
    A(f'v_add_u32 v6, s15, v{vn}')
    A('s_cmp_lg_u32 s10, 0')
    A('s_cselect_b32 s15, -1, 0')
    A('v_sub_u32 v7, s15, v6')
    A('s_cmp_lg_u32 s19, 0')
    A('s_cselect_b64 vcc, -1, 0')
    A('v_cndmask_b32 v6, v6, v7, vcc')
    A('v_and_b32 v6, 127, v6')
    A('v_cvt_f32_u32 v7, v6')
    A('v_mul_f32 v7, 0x3c000000, v7')
    A(f'v_lshlrev_b32 v10, 3, v{vg}')
    A('v_cvt_f32_u32 v10, v10')
    A('v_mul_f32 v10, v10, v7')
    B0 = B[0]
    for j in range(8):
        if j: A('v_add_f32 v10, v10, v7')
        A(f'v_cos_f32 v{12+(j&1)}, v10')
        A(f'v_sin_f32 v{14+(j&1)}, v10')
        if j & 1:
            A(f'v_cvt_pk_bf16_f32 v{B0+j//2}, v12, v13')
            A(f'v_cvt_pk_bf16_f32 v{B0+16+j//2}, v14, v15')
    A('v_and_b32 v8, 1, v6')
    A('v_cmp_eq_u32 vcc, 1, v8')
    A('v_mul_u32_u24 v8, 0x8000, v8')
    A('v_lshl_or_b32 v8, v8, 16, v8')
    A('v_and_b32 v10, 2, v6')
    A('v_mul_u32_u24 v10, 0x4000, v10')
    A('v_lshl_or_b32 v10, v10, 16, v10')
    A('v_xor_b32 v11, v10, v8')
    for k in range(4):
        A(f'v_cndmask_b32 v12, v{B0+k}, v{B0+16+k}, vcc')
        A(f'v_cndmask_b32 v13, v{B0+16+k}, v{B0+k}, vcc')
        A(f'v_xor_b32 v{B0+4+k}, v11, v12')
        A(f'v_xor_b32 v{B0+20+k}, v10, v13')
    for k in range(8):
        A(f'v_xor_b32 v{B0+8+k}, v8, v{B0+k}')
        A(f'v_xor_b32 v{B0+24+k}, v8, v{B0+16+k}')
    A('s_brev_b32 s15, 1')
    for k in range(32): A(f'v_xor_b32 v{B[1]+k}, s15, v{B0+k}')
    A(f'v_lshrrev_b32 v10, 2, v{vn}')
    A(f'v_lshl_add_u32 v10, v{vg}, 3, v10')
    A(f'v_lshrrev_b32 v11, 3, v{vn}')
    A(f'v_and_b32 v12, 1, v{vg}')
    A('v_lshl_add_u32 v11, v12, 1, v11')
    A('v_lshlrev_b32 v11, 5, v11')
    A('v_lshl_add_u32 v10, v10, 7, v11')
    A(f'v_and_b32 v11, 3, v{vn}')
    A(f'v_lshl_add_u32 v{VT}, v11, 3, v10')
    A('s_mul_i32 s15, s19, 96')
    A(f'v_xor_b32 v{VT}, s15, v{VT}')
    for i in range(1, 4): A(f'v_xor_b32 v{VT+i}, {(2*(i&1) + (i>>1))*32}, v{VT}')
    A(f'v_and_b32 v11, 1, v{vn}')
    A('v_lshlrev_b32 v11, 9, v11')
    A(f'v_lshl_add_u32 v11, v{vg}, 4, v11')
    A(f'v_add_u32 v{VE}, {EB}, v11')
    A('s_mul_i32 s15, s19, 3')
    A(f'v_xor_b32 v10, s15, v{vg}')
    A('v_lshrrev_b32 v11, 1, v10')
    A(f'v_lshrrev_b32 v12, 1, v{vn}')
    A('v_xor_b32 v11, v11, v12')
    A('v_lshlrev_b32 v11, 4, v11')
    A(f'v_lshl_add_u32 v11, v{vn}, 7, v11')
    A('v_and_b32 v12, 1, v10')
    A('v_lshl_add_u32 v11, v12, 3, v11')
    A(f'v_add_u32 v{VX}, s62, v11')
    for i in range(1, 4): A(f'v_xor_b32 v{VX+i}, {32*i}, v{VX}')
    A(f'v_lshl_add_u32 v10, v10, 4, v{vn}')
    A(f'v_lshlrev_b32 v{VH}, 4, v10')
    A('v_add_u32 v10, 48, v1')
    A('v_and_b32 v10, 63, v10')
    A(f'v_lshlrev_b32 v{VB}, 2, v10')
    A(f'v_cmp_eq_u32 s[46:47], 0, v{vg}')
    srd(A, 52, 4, HS_OFF, 8 * MB)
    skipmap(A, VH, VH, 0, 10)
    A('s_cmp_eq_u32 s11, 0')
    A('s_cselect_b32 s15, 8192, 0')
    srd(A, 32, 4, MU_OFF, 's15')
    srd(A, 36, 4, FL_OFF, FL_SIZE)
    A('s_lshl_b32 s13, s10, 3')
    A('s_add_u32 s13, s13, s12')
    st(1)
    A('s_waitcnt vmcnt(6)')
    A('s_barrier')
    st(2)
    def frag(i, p): return FR[i & 1] + 4 * p
    def rd(h):
        i = h >> 1
        return [f'ds_read_b64_tr_b16 {vr(frag(i,p)+2*r2,2)}, v{VT+i} offset:{(32*p+4*r2)*128}' for p in range(4*(h & 1), 4*(h & 1) + 4) for r2 in range(2)]
    def mf(d, a, b, z): return f'v_mfma_f32_16x16x32_bf16 {vr(d,4)}, {vr(a,4)}, {vr(b,4)}, {"0" if z else vr(d,4)}'
    def half(h): return [mf(ACC[u] + 4*(h >> 1), frag(h >> 1, p), B[u] + 4*p, p == 0) for p in range(4*(h & 1), 4*(h & 1) + 4) for u in range(2)]
    ONE = 4; S = [5, 7]; Q = [6, 8]; TM = EF; OUT = EF + 16
    E = AutoLgkm(A)
    for x in rd(0) + [f'ds_read_b128 {vr(EF+4*p,4)}, v{VE} offset:{64*p}' for p in range(8)]: E(x)
    for x in weave(half(0), rd(1), per=2): E(x)
    for x in weave([mf(MA[u], EF + 4*p, B[u] + 4*p, p == 0) for p in range(8) for u in range(2)], rd(2), per=1): E(x)
    misc = [f'v_mov_b32 v{ONE}, 0x3f803f80'] + [f'v_mov_b32 v{r}, 0' for r in S + Q] + [f'v_lshlrev_b32 v9, 2, v{vn}', 's_lshl_b32 s60, s13, 6',
            's_lshl_b32 s14, s13, 16', 's_lshl_b32 s15, s11, 12', 's_add_u32 s14, s14, s15', 's_add_u32 s15, s14, 0x40000']
    for x in weave(half(1), rd(3) + misc, per=3): E(x)
    xr = ['s_waitcnt vmcnt(0)'] + [f'ds_read_b64 {vr(X[u]+2*k2,2)}, v{VX+k2} offset:{u*2048}' for k2 in range(4) for u in range(2)]
    for x in weave(half(2), rd(4) + xr, per=3): E(x)
    for x in weave(half(3), rd(5) + [f'v_add_f32 v{MA[u]}, v{MA[u]}, v{MXV[u]}' for u in range(2)], per=2): E(x)
    def epi(V, pr):
        out = []
        for u in range(2):
            o = OUT + 8*u + 4*pr
            for i2 in range(2):
                i = 2*pr + i2; t = TM + 8*u + 4*i2
                for q in range(2):
                    r_ = X[u] + 2*i + q
                    out += [f'v_lshlrev_b32 v{t+2*q}, 16, v{r_}', f'v_and_b32 v{t+1+2*q}, 0xffff0000, v{r_}']
                out += [f'v_sub_f32 v{t+r}, v{t+r}, v{MA[u]}' for r in range(4)]
                out += [f'v_add_f32 v{t+r}, v{t+r}, v{V[u][i][r]}' for r in range(4)]
                out += [f'v_cvt_pk_bf16_f32 v{o+2*i2+q}, v{t+2*q}, v{t+1+2*q}' for q in range(2)]
            out.append(f'buffer_store_dwordx4 {vr(o,4)}, v{VH}, s[52:55], s{14+u} offen offset:{pr*2048} sc1')
        return out
    def dots(pr): return [x for u in range(2) for k in range(4) for x in
                          (f'v_dot2_f32_bf16 v{S[u]}, v{OUT+8*u+4*pr+k}, v{ONE}, v{S[u]}', f'v_dot2_f32_bf16 v{Q[u]}, v{OUT+8*u+4*pr+k}, v{OUT+8*u+4*pr+k}, v{Q[u]}')]
    RP = 10; SH = 248
    A('s_cmp_lg_u32 s19, 0')
    A(f's_cbranch_scc1 {name}_up')
    pend0 = list(E.pend)
    for lower in (1, 0):
        if not lower:
            A.label(f'{name}_up'); A('s_nop 7'); E.pend = list(pend0)
        if lower:
            V = [[[SH+4*u+i, ACC[u]+4*i, ACC[u]+4*i+1, ACC[u]+4*i+2] for i in range(4)] for u in range(2)]
            def rot(i): return [f'ds_bpermute_b32 v{RP+3*u+(i%3)}, v{VB}, v{ACC[u]+4*i+3}' for u in range(2)]
            def sel(i): return [f'v_cndmask_b32 v{SH+4*u+i}, v{RP+3*u+(i%3)}, v{RP+3*u+((i-1)%3) if i else MA[u]+1}, s[46:47]' for u in range(2)]
        else:
            V = [[[ACC[u]+4*i+3-r for r in range(4)] for i in range(4)] for u in range(2)]
            rot = sel = lambda i: []
        for x in weave(half(4), rot(0) + rd(6) + rot(1), per=2): E(x)
        e0 = sel(0) + sel(1) + epi(V, 0)
        for x in weave(half(5), rd(7) + e0[:16], per=3): E(x)
        for x in weave(half(6) + half(7), rot(2) + e0[16:] + dots(0), start=2, per=4): E(x)
        e1 = epi(V, 1)
        hst = [x for x in e1 if x.startswith('buffer_store')]
        for x in rot(3) + sel(2) + sel(3) + [x for x in e1 if x not in hst]: E(x)
        E.drain()
        if lower: A(f's_branch {name}_join')
    A.label(f'{name}_join')
    st(3)
    A('s_waitcnt vmcnt(0)')
    A('s_barrier')
    st(4)
    for x in dots(1)[:6] + hst + dots(1)[6:]: A(x)
    A(f'buffer_store_dword v{MA[0]}, v9, s[32:35], s60 offen sc1')
    A(f'buffer_store_dword v{MA[1]}, v9, s[32:35], s60 offen offset:256 sc1')
    A(f'v_lshlrev_b32 v40, 3, v{vn}')
    A(f'v_lshrrev_b32 v41, 1, v{vg}')
    A('v_lshl_add_u32 v40, v41, 2, v40')
    A('s_lshl_b32 s14, s10, 4')
    A('s_add_u32 s14, s14, s11')
    A('s_lshl_b32 s14, s14, 3')
    A('s_add_u32 s14, s14, s12')
    A('s_lshl_b32 s14, s14, 7')
    srd(A, 28, 4, ST_OFF, 2048 * 128)
    for u in range(2): A(f'v_permlane32_swap_b32 v{S[u]}, v{Q[u]}')
    for u in range(2): A(f'v_add_f32 v{S[u]}, v{S[u]}, v{Q[u]}')
    for u in range(2): A(f'v_mov_b32 v{Q[u]}, v{S[u]}')
    for u in range(2): A(f'v_permlane16_swap_b32 v{S[u]}, v{Q[u]}')
    for u in range(2): A(f'v_add_f32 v{S[u]}, v{S[u]}, v{Q[u]}')
    for u in range(2): A(f'buffer_store_dword v{S[u]}, v40, s[28:31], s14 offen offset:{512*u} sc1')
    return []

def drained(A):
    A('s_waitcnt vmcnt(0)')
    A('s_barrier')

def g1_compute(A, name, st, opt, later):
    WB = [8, 36]; ACC = 64; HB = [176, 192]
    vAh, cAh, VW, CW = 2, 3, 208, 216
    g1_decode(A)
    A('s_and_b32 s13, s12, 1')
    A('s_lshr_b32 s14, s12, 1')
    A('s_lshl_b32 s15, s13, 13')
    A(f'v_lshlrev_b32 v{vAh}, 4, v1')
    A(f'v_add_u32 v{vAh}, s15, v{vAh}')
    tr_bases(A, 44, 45, 1, 48)
    A('s_cmp_lg_u32 s14, 0')
    A('s_cselect_b64 vcc, -1, 0')
    def gaddr(dst, lam):
        if lam < 12:
            A(f'v_xor_b32 v{dst}, {32*(lam&3)}, v44')
            A(f'v_add_u32 v{dst}, {WB0 + (lam>>2)*1024}, v{dst}')
        else:
            A(f'v_xor_b32 v{dst}, {32*(lam&1)}, v45')
            A(f'v_add_u32 v{dst}, {WB0 + 6144}, v{dst}')
    for k, (l0, l1) in enumerate(zip([4, 5, 2, 3, 0, 1, 6], [8, 9, 10, 11, 12, 13, 7])):
        gaddr(46, l0); gaddr(47, l1)
        A(f'v_cndmask_b32 v{VW+k}, v46, v47, vcc')
    A(f'v_mov_b32 v{cAh}, v{vAh}')
    for k in range(7): A(f'v_mov_b32 v{CW+k}, v{VW+k}')
    for i in range(112): A(f'v_mov_b32 v{ACC+i}, 0')
    A('s_lshl_b32 s15, s10, 1')
    A('s_add_u32 s15, s15, s13')
    gs = opt.get('gskip', 1); TT = GTT if gs else 112 * 1024
    A('s_mul_i32 s15, s15, %d' % (4 * TT))
    A('s_add_u32 s15, s15, %d' % (GS_OFF if gs else G_OFF))
    srd(A, 20, 4, 's15', 4 * TT)
    A('s_mov_b32 s17, 0')
    A('s_mov_b32 s19, 0')
    A('s_mov_b32 s18, 0')
    BV = 240; H2 = 224
    A('s_load_dwordx2 s[24:25], s[0:1], %d' % KA['b1'])
    A('s_and_b32 s52, s11, 1')
    A('s_mul_i32 s15, s11, 7')
    A('s_add_u32 s16, s15, s52')
    A('s_add_u32 s56, s16, 3')
    A('s_cmp_lg_u32 s14, 0')
    A('s_cselect_b32 s53, 4, 2')
    A('s_cselect_b32 s54, 5, 1')
    A('s_cselect_b32 s55, 6, 0')
    for r in (53, 54, 55): A(f's_add_u32 s{r}, s{r}, s16')
    A('s_and_b32 s52, s52, s14')
    A('s_cmp_lg_u32 s52, 0')
    A('s_cselect_b32 s55, s15, s55')
    for r in (53, 54, 55, 56): A(f's_lshl_b32 s{r+4}, s{r}, 6')
    A('s_lshl_b32 s15, s14, 5')
    A('s_add_u32 s60, s60, s15')
    A('v_and_b32 v44, 15, v1')
    A('v_lshlrev_b32 v44, 1, v44')
    A('s_mov_b32 s26, 7168')
    A('s_mov_b32 s27, 0x20000')
    A('s_waitcnt lgkmcnt(0)')
    A('s_barrier')
    A('s_waitcnt vmcnt(0)')
    for i in range(7):
        so, off = 57 + i // 2, (32*(i&1) if i < 6 else 0)
        later.append(f'buffer_load_ushort v{BV+i}, v44, s[24:27], s{so} offen offset:{off}')
    def reads(s, buf):
        r = []
        for j in range(4):
            r.append(f'ds_read_b128 {vr(HB[buf]+4*j,4)}, v{cAh} offset:{(2*j+s)*1024}')
        for i in range(7):
            for rd in range(2):
                r.append(f'ds_read_b64_tr_b16 {vr(WB[buf]+4*i+2*rd,2)}, v{CW+i} offset:{(2*s + rd) * 7168}')
        return r
    E = AutoLgkm(A)
    RP_ = opt.get('rper', 1); R0 = opt.get('r0', 0)
    def step(buf, rds, tail=None, nowait=False):
        k = 0; n = 0
        for i in range(7):
            for jj in range(4):
                j = jj if (i & 1) == 0 else 3 - jj
                E(f'v_mfma_f32_16x16x32_bf16 {vr(ACC + (i*4+j)*4,4)}, {vr(WB[buf] + 4*i,4)}, {vr(HB[buf] + 4*j,4)}, {vr(ACC + (i*4+j)*4,4)}')
                span = opt.get('spanA', 17) if buf else opt.get('spanB', 17)
                while k < len(rds) and round(k * span / 17) <= n: E(rds[k]); k += 1
                n += 1
                if tail and n - 20 in tail:
                    for t in tail[n - 20]: A(t)
        if not nowait: E.drain()
    A('s_barrier')
    st(8)
    for r in reads(0, 0): A(r)
    for x in later: A(x)
    A('s_waitcnt lgkmcnt(0)')
    if opt.get('itime'): A(f'v_mov_b32 v7, {STG}')
    A(f's_branch {name}_g1mid')
    tailB = {-4: [f's_add_u32 s17, s17, {HS}', f's_add_u32 s19, s19, {WS}'], -3: [f's_cmp_eq_u32 s17, {3*HS}', 's_cselect_b32 s17, 0, s17'],
             -2: ['s_cselect_b32 s19, 0, s19', 's_add_u32 s18, s18, 1'], -1: [f'v_add_u32 v{cAh}, s17, v{vAh}', 's_cmp_le_u32 s18, 14']}
    for k in range(7): tailB[k] = [f'v_add_u32 v{CW+k}, s19, v{VW+k}']
    if opt.get('spanB', 17) > 17:
        sp = opt['spanB']
        tailB = {-19: tailB[-4], -18: tailB[-3], -17: tailB[-2], 8: ['s_cmp_le_u32 s18, 14']}
        tailB.setdefault(round(3 * sp / 17) + 2 - 20, []).append(f'v_add_u32 v{cAh}, s17, v{vAh}')
        for k in range(7): tailB.setdefault(min(round((5 + 2*k) * sp / 17) + 2, 28) - 20, []).insert(0, f'v_add_u32 v{CW+k}, s19, v{VW+k}')
    A('.p2align 6')
    A.label(f'{name}_g1loop')
    if opt.get('itime'): A('s_memtime s[92:93]')
    A('s_barrier')
    if opt.get('itime'):
        A('s_memtime s[94:95]')
        tailB[7] = ['v_mov_b32 v4, s92', 'v_mov_b32 v5, s94', f'v_lshl_add_u32 v6, s18, 3, v7', 'ds_write_b64 v6, v[4:5]']
    step(1, reads(0, 0), nowait=opt.get('lazy', 1))
    A.label(f'{name}_g1mid')
    step(0, reads(1, 1), tailB)
    A(f's_cbranch_scc1 {name}_g1loop')
    if opt.get('itime'):
        A('s_memtime s[92:93]')
        A('v_lshlrev_b32 v6, 3, v1')
        A(f'v_add_u32 v4, {STG}, v6')
        A('ds_read_b64 v[4:5], v4')
        A(f's_add_u32 s96, s4, {TS_OFF + 2*65536}')
        A('s_addc_u32 s97, s5, 0')
        A('s_mov_b32 s98, 65536')
        A('s_mov_b32 s99, 0x20000')
        A('s_lshl_b32 s69, s2, 8')
        A('s_waitcnt lgkmcnt(0)')
        A('v_cmp_gt_u32 vcc, 16, v1')
        A('v_cndmask_b32 v6, 4.0, v6, vcc')
        A('buffer_store_dwordx2 v[4:5], v6, s[96:99], s69 offen')
        A('v_mov_b32 v4, s92')
        A('v_mov_b32 v6, 128')
        A('buffer_store_dword v4, v6, s[96:99], s69 offen')
    if opt.get('ttime'): st(3)
    A('s_barrier')
    if opt.get('ttime'): st(4)
    gs = opt.get('gskip', 1)
    order = [6, 0, 1, 2, 3, 4, 5]
    SG = 4
    def wset(k): return WB[0] + 8 * (k % 3)
    def wrd(k):
        i = order[k]
        return [f'ds_read_b64_tr_b16 {vr(wset(k)+4*s_+2*rd,2)}, v{CW+i} offset:{(2*s_ + rd) * 7168}' for s_ in range(2) for rd in range(2)]
    BT = 32
    ST4 = [208, 212, 248, 252]
    A('v_and_b32 v2, 15, v1')
    A('s_lshl_b32 s15, s13, 8')
    A(f's_add_u32 s15, s15, {SGB}')
    A('v_lshl_add_u32 v2, v2, 2, s15')
    pre = [f'ds_read_b128 {vr(HB[0]+4*j,4)}, v{cAh} offset:{(2*j)*1024}' for j in range(4)] + wrd(0) + \
          [f'ds_read_b128 {vr(H2+4*j,4)}, v{cAh} offset:{(2*j+1)*1024}' for j in range(4)] + \
          [f'ds_read_b32 v{ST4[j]}, v2 offset:{64*j}' for j in range(4)] + wrd(1)
    setup = []
    for j in range(4):
        for k in range(1, 4): setup.append(f'v_mov_b32 v{ST4[j]+k}, 0')
    for k in range(1, 4): setup.append(f'v_mov_b32 v{BT+k}, 0')
    addr = []
    for r in (53, 54, 55, 56):
        addr += [f's_lshr_b32 s{r}, s{r}, 1', f's_mul_i32 s{r}, s{r}, {GST}'] if gs else [f's_lshl_b32 s{r}, s{r}, 10']
    class L(list):
        def __call__(self, t): self.append(t)
    va = L()
    va('v_and_b32 v4, 15, v1'); va('v_lshlrev_b32 v4, 4, v4'); va('v_and_b32 v6, 16, v1'); va('v_and_b32 v7, 32, v1')
    va('v_lshl_add_u32 v5, v7, 3, v4'); va('v_lshl_add_u32 v4, v6, 5, v5'); va('v_lshrrev_b32 v6, 1, v6'); va('s_lshl_b32 s19, s14, 9')
    va('v_add3_u32 v5, v5, v6, s19')
    if gs:
        skipmap(va, 6, 4, 1, 2); skipmap(va, 4, 4, 0, 2); skipmap(va, 5, 5, 1, 2)
        va('s_cmp_lg_u32 s52, 0'); va('s_cselect_b64 vcc, -1, 0'); va('v_cndmask_b32 v7, v4, v6, vcc')
    else:
        va('v_mov_b32 v6, v4'); va('v_mov_b32 v7, v4')
    def acc(i, j): return ACC + (i*4+j)*4
    def epi_tile(i, j, d):
        a = acc(i, j)
        return [f'v_max_f32 v{a+r}, 0, v{a+r}' for r in range(4)] + [f'v_mul_f32 v{a+r}, v{a+r}, v{a+r}' for r in range(4)] + \
               [f'v_cvt_pk_bf16_f32 v{d}, v{a}, v{a+1}', f'v_cvt_pk_bf16_f32 v{d+1}, v{a+2}, v{a+3}']
    late = []
    def epi(i):
        out = []
        for j in range(4):
            if i == 6:
                out += epi_tile(i, j, acc(i, j))
                out.append(f'buffer_store_dwordx2 {vr(acc(i,j),2)}, v5, s[20:23], s56 offen sc1')
                if j < 3: out.append(f's_add_u32 s56, s56, {TT}')
            elif i % 2 == 0:
                out += epi_tile(i, j, acc(i, j))
            else:
                d = acc(i - 1, j)
                out += epi_tile(i, j, d + 2)
                out += [f'v_permlane16_swap_b32 v{d}, v{d+2}', f'v_permlane16_swap_b32 v{d+1}, v{d+3}']
                pp = i // 2
                dst = out if pp < 2 else late
                dst.append(f'buffer_store_dwordx4 {vr(d,4)}, v{[4, 6, 7][pp]}, s[20:23], s{53+pp} offen sc1')
                if j < 3: dst.append(f's_add_u32 s{53+pp}, s{53+pp}, {TT}')
        return out
    for k, i in enumerate(order):
        mf = [(acc(i, j), WB[1] + 4*i, HB[1] + 4*j) for j in range(4)] + [(acc(i, j), wset(k), HB[0] + 4*j) for j in range(4)] + \
             [(acc(i, j), wset(k) + 4, H2 + 4*j) for j in range(4)] + [(acc(i, j), BT, ST4[j]) for j in range(4)]
        if k == 0:
            fill = pre + addr + list(va) + setup
        else:
            fill = (wrd(k + 1) if k + 1 < 7 else []) + epi(order[k - 1])
        per = -(-len(fill) // 15)
        fi = 0
        for n, (d, a, b) in enumerate(mf):
            if k == 0 and n == 4:
                for x in fill[fi:len(pre)]: A(x)
                fi = max(fi, len(pre))
                A('s_waitcnt lgkmcnt(14)')
            if k == 0 and n == 8: A('s_waitcnt lgkmcnt(8)')
            if k == 0 and n == 12:
                for x in fill[fi:]: A(x)
                fi = len(fill)
                A('s_waitcnt vmcnt(0) lgkmcnt(4)')
                A('v_cmp_gt_u32 vcc, 16, v1')
                for j in range(4): A(f'v_cndmask_b32 v{ST4[j]}, 0, v{ST4[j]}, vcc')
            if k > 0 and n == 4: A(f's_waitcnt lgkmcnt({4 if k + 1 < 7 else 0})')
            if n == 10 and k > 0 or (k == 0 and n == 12): A(f'v_mov_b32 v{BT}, v{BV+i}')
            mfma(A, d, a, b)
            if k == 6 and n == 4:
                A('s_barrier')
                st(9)
            for _ in range(per):
                if fi < len(fill): A(fill[fi]); fi += 1
        for x in fill[fi:]: A(x)
    for x in epi(5): A(x)
    return late

def g2_compute(A, name, st, opt, late):
    NS = 4; N2 = opt.get('n2', 8); N1 = (56 - N2) // 2
    SIG = opt.get('sig', 2); POLL = opt.get('poll', 4)
    AO = 8; AX = 40; HB = [72, 88]; WO = [104, 112]; WX = [120, 128]; EP = 136; PR = 224
    vAh, vAw, cAh, cAw, vAw1, cAw1, vL16, vFl = 176, 177, 178, 179, 180, 181, 182, 183
    A('s_load_dwordx2 s[50:51], s[0:1], %d' % KA['b2'])
    A('s_load_dwordx2 s[48:49], s[0:1], %d' % KA['out'])
    A('v_and_b32 v8, 15, v1')
    A('v_lshlrev_b32 v8, 4, v8')
    A('v_and_b32 v10, 16, v1')
    A('v_and_b32 v11, 32, v1')
    A('v_lshl_add_u32 v9, v11, 3, v8')
    A('v_lshl_add_u32 v8, v10, 5, v9')
    A('v_lshrrev_b32 v10, 1, v10')
    A('s_lshl_b32 s15, s13, 13')
    A('s_lshl_b32 s16, s14, 9')
    A('s_add_u32 s16, s16, s15')
    A(f's_add_u32 s16, s16, {3*SLOT + 1024}')
    A('v_add3_u32 v9, v9, v10, s16')
    A('v_add_u32 v8, s15, v8')
    A('s_cmp_lg_u32 s14, 0')
    for k, (b0, b1) in enumerate(((3*SLOT, 0), (2*SLOT + 1024, 1024), (2*SLOT, 0x40000))):
        A(f's_mov_b32 s16, {b0}')
        A(f's_cselect_b32 s16, {b1}, s16')
        A(f'v_add_u32 v{10+k}, s16, v8')
    wr_ = [f'ds_write_b128 v{10+k}, {vr(64+32*k+4*j,4)} offset:{2048*j}' for k in (2, 1, 0) for j in range(4)]
    wr_ += [f'ds_write_b64 v9, {vr(160+4*j,2)} offset:{2048*j}' for j in range(4)]
    ad = [f'v_lshlrev_b32 v{vL16}, 4, v1', f'v_add_u32 v{vAh}, s15, v{vL16}', 'v_lshrrev_b32 v184, 2, v1', 'v_and_b32 v184, 3, v184',
          'v_lshrrev_b32 v185, 4, v1', 'v_lshl_add_u32 v184, v185, 3, v184', 'v_lshrrev_b32 v186, 3, v1', 'v_and_b32 v186, 3, v186',
          'v_lshlrev_b32 v186, 5, v186', 'v_lshl_add_u32 v184, v184, 7, v186', 'v_and_b32 v186, 3, v1', f'v_lshl_add_u32 v{vAw}, v186, 3, v184',
          's_lshl_b32 s16, s14, 6', f'v_xor_b32 v{vAw}, s16, v{vAw}', f'v_add_u32 v{vAw}, 16384, v{vAw}', f'v_xor_b32 v{vAw1}, 32, v{vAw}',
          f'v_add_u32 v{cAh}, {2*SLOT}, v{vAh}', f'v_add_u32 v{cAw}, {2*SLOT}, v{vAw}', f'v_add_u32 v{cAw1}, {2*SLOT}, v{vAw1}', f'v_mov_b32 v{vFl}, 0']
    ad += [f'v_mov_b32 v{192+k}, v{128+k}' for k in range(16)]
    for x in weave(wr_[:8], ad[:16], per=2): A(x)
    A('s_waitcnt vmcnt(0)')
    A('s_barrier')
    st(10)
    for x in weave(wr_[8:], ad[16:], per=3): A(x)
    for k in range(4): A(f's_mov_b32 s{64+k}, s{20+k}' if k < 3 else 's_mov_b32 s67, 0x20000')
    A('s_mov_b32 s68, s55')
    A(f's_mov_b32 s17, {2*SLOT}')
    TT = GTT if opt.get('gskip', 1) else 112 * 1024
    def late_store(k): return [f'buffer_store_dwordx4 {vr(192+4*k,4)}, v7, s[64:67], s68 offen sc1', f's_add_u32 s68, s68, {TT}']
    def setup():
        g2_decode(A)
        A('s_lshl_b32 s15, s10, 1')
        A('s_add_u32 s15, s15, s13')
        A('s_lshl_b32 s16, s15, 18')
        A(f's_add_u32 s16, s16, {HS_OFF}')
        A('s_lshl_b32 s19, s15, 8')
        A(f's_add_u32 s19, s19, {MU_OFF}')
        A('s_lshl_b32 s54, s2, 2')
        A('s_add_u32 s54, s54, s12')
        A('s_xor_b32 s55, s54, 16')
        A('s_lshl_b32 s56, s54, 12')
        A('s_lshl_b32 s57, s55, 12')
        A('s_lshl_b32 s54, s54, 7')
        A('s_lshl_b32 s55, s55, 7')
        A(f's_add_u32 s54, s54, {FL3}')
        A(f's_add_u32 s55, s55, {FL3}')
        srd(A, 20, 4, 's16', 256 * 1024)
        srd(A, 44, 4, 's19', 256)
        A(f's_add_u32 s19, s19, {R2_OFF - MU_OFF}')
        srd(A, 24, 4, 's19', 256)
        srd(A, 28, 50, 0, 2048)
        srd(A, 32, 48, 0, 2048 * 2048)
        srd(A, 40, 4, PX_OFF, 4 * MB)
    A('s_waitcnt lgkmcnt(0)')
    def reads(s, buf, full):
        r = []
        for i in range(2):
            for rd in range(2):
                r.append(f'ds_read_b64_tr_b16 {vr(WO[buf]+4*i+2*rd,2)}, v{cAw1 if i else cAw} offset:{4096*s + 512*rd}')
        for j in range(4):
            r.append(f'ds_read_b128 {vr(HB[buf]+4*j,4)}, v{cAh} offset:{(2*j+s)*1024}')
        if full:
            for i in range(2):
                for rd in range(2):
                    r.append(f'ds_read_b64_tr_b16 {vr(WX[buf]+4*i+2*rd,2)}, v{cAw1 if i else cAw} offset:{8192 + 4096*s + 512*rd}')
        return r
    ADV = [[f's_add_u32 s17, s17, {SLOT}', f's_cmp_eq_u32 s17, {NS*SLOT}'], ['s_cselect_b32 s17, 0, s17', f'v_add_u32 v{cAh}, s17, v{vAh}'],
           [f'v_add_u32 v{cAw}, s17, v{vAw}'], [f'v_add_u32 v{cAw1}, s17, v{vAw1}']]
    def step(buf, full, rds, tail=(), xfirst=False, zero=False):
        seq = []
        order = ([(AX, WX)] if full else []) + [(AO, WO)] if xfirst else [(AO, WO)] + ([(AX, WX)] if full else [])
        for acc, W in order:
            for i in range(2):
                for jj in range(4):
                    j = jj if i == 0 else 3 - jj
                    seq.append((acc + (i*4+j)*4, W[buf] + 4*i, HB[buf] + 4*j))
        per = 1 if len(rds) + len(tail) <= len(seq) else 2
        fill = [[x] for x in rds]
        if per == 2: fill = [sum(fill[k:k+2], []) for k in range(0, len(fill), 2)]
        fill += list(tail)
        for n, (d, a, b) in enumerate(seq):
            mfma(A, d, a, b, '0' if zero else None)
            if n < len(fill):
                for x in fill[n]: A(x)
        for f in fill[len(seq):]:
            for x in f: A(x)
        A('s_waitcnt lgkmcnt(0)')
    A('s_barrier')
    st(11)
    for r in reads(0, 0, True): A(r)
    setup()
    A('s_lshl_b32 s16, s11, 1')
    A('s_add_u32 s16, s16, s14')
    A('s_lshl_b32 s19, s16, 11')
    skipmap(A, PR + 2, vL16, 0, PR + 3)
    for j in range(4):
        A(f'buffer_load_dwordx4 {vr(EP+4*j,4)}, v{PR+2}, s[20:23], s19 offen sc1')
        if j < 3: A('s_add_u32 s19, s19, 65536')
    A(f'v_and_b32 v{PR}, 15, v1')
    A(f'v_lshlrev_b32 v{PR}, 2, v{PR}')
    for j in range(4):
        A(f'buffer_load_dword v{EP+16+j}, v{PR}, s[24:27], 0 offen offset:{64*j} sc1')
        A(f'buffer_load_dword v{EP+24+j}, v{PR}, s[44:47], 0 offen offset:{64*j} sc1')
    A(f'v_lshrrev_b32 v{PR+1}, 4, v1')
    A(f'v_lshlrev_b32 v{PR+1}, 3, v{PR+1}')
    A('s_lshl_b32 s19, s16, 6')
    A(f'buffer_load_dwordx2 {vr(EP+20,2)}, v{PR+1}, s[28:31], s19 offen')
    A(f'buffer_load_dwordx2 {vr(EP+22,2)}, v{PR+1}, s[28:31], s19 offen offset:32')
    A('s_waitcnt lgkmcnt(0)')
    L0 = opt.get('l0', 0)
    step(0, True, reads(1, 1, True), ADV[:3] + [ADV[3] + (late_store(0) if L0 == 0 else [])], zero=True)
    for k in range(1, L0 + 4):
        A('s_barrier')
        step(1, True, reads(0, 0, True), [late_store(k - L0)] if k >= L0 else [])
        step(0, True, reads(1, 1, True), ADV)
    A(f's_mov_b32 s18, {L0 + 4}')
    A('.p2align 6')
    A.label(f'{name}_g2loop')
    A('s_barrier')
    step(1, True, reads(0, 0, True), [['s_waitcnt vmcnt(0)']])
    step(0, True, reads(1, 1, True), ADV[:3] + [ADV[3] + ['s_add_u32 s18, s18, 1', f's_cmp_lt_u32 s18, {N1}']])
    A(f's_cbranch_scc1 {name}_g2loop')
    A('s_mov_b32 s59, 0')
    A('s_mov_b32 s58, 400000')
    def check(tag, sp):
        A('s_cmp_lg_u32 s59, 0')
        A(f's_cbranch_scc1 {name}_done{tag}')
        A.label(f'{name}_poll{tag}')
        A('s_waitcnt vmcnt(0)')
        A(f'v_readfirstlane_b32 s59, v{PR+16}')
        A('s_cmp_eq_u32 s59, 1')
        A(f's_cbranch_scc1 {name}_got{tag}')
        A('s_mov_b32 s59, 0')
        if sp:
            A('s_sub_u32 s58, s58, 1')
            A(f's_cbranch_scc1 {name}_got{tag}')
            A('s_sleep 1')
        A(f'buffer_load_dword v{PR+16}, v{vFl}, s[36:39], s55 offen sc1')
        A(f's_branch {name}_poll{tag}' if sp else f's_branch {name}_done{tag}')
        A.label(f'{name}_got{tag}')
        for k in range(4):
            A(f'buffer_load_dwordx4 {vr(PR+4*k,4)}, v{vL16}, s[40:43], s57 offen offset:{k*1024} sc1')
        A.label(f'{name}_done{tag}')
    B = 184; C = 192
    pre = {1: ['v_and_b32 v6, 15, v1', 'v_lshrrev_b32 v7, 4, v1', 'v_and_b32 v2, 1, v7', 'v_lshrrev_b32 v7, 1, v7', 'v_lshl_add_u32 v7, v2, 1, v7',
               'v_lshrrev_b32 v2, 1, v6', 'v_xor_b32 v7, v7, v2', 'v_and_b32 v7, 3, v7', 'v_lshl_add_u32 v7, v6, 2, v7', 's_lshl_b32 s15, s12, 12',
               f's_add_u32 s15, s15, {STG}', 'v_lshl_add_u32 v4, v7, 4, s15', 'v_lshrrev_b32 v6, 2, v1', 'v_lshrrev_b32 v7, 3, v1', 'v_xor_b32 v7, v7, v1',
               'v_and_b32 v7, 3, v7', 'v_lshl_add_u32 v5, v1, 4, s15', 'v_lshlrev_b32 v6, 15, v6', 'v_lshl_add_u32 v6, v7, 4, v6', 's_lshl_b32 s19, s10, 11', 's_lshl_b32 s15, s13, 21', 's_add_u32 s19, s19, s15',
               's_lshl_b32 s16, s16, 6', 's_add_u32 s19, s19, s16', 's_mov_b32 s60, 0x3f80', 's_mov_b32 s61, 0x3f800000']}
    for i in range(2):
        for q in range(2):
            pre[1] += [f'v_lshlrev_b32 v{B+4*i+2*q}, 16, v{EP+20+2*i+q}', f'v_and_b32 v{B+4*i+2*q+1}, 0xffff0000, v{EP+20+2*i+q}']
    for j in range(4):
        l = pre.setdefault(2 + j, [])
        for i in range(2):
            c = C + (i*4+j)*4
            for q in range(2):
                l += [f'v_lshlrev_b32 v{c+2*q}, 16, v{EP+4*j+2*i+q}', f'v_and_b32 v{c+2*q+1}, 0xffff0000, v{EP+4*j+2*i+q}']
            l += [f'v_pk_add_f32 {vr(c+2*q,2)}, {vr(c+2*q,2)}, {vr(B+4*i+2*q,2)}' for q in range(2)]
            l += [f'v_add_f32 v{c+r}, v{c+r}, v{EP+24+j}' for r in range(4)]
    assert N2 >= 6
    for it in range(N2):
        A('s_barrier')
        if it == 0:
            step(1, True, reads(0, 0, False), xfirst=True)
            for k in range(4):
                for c in range(4*k, 4*k+4): A(f'v_cvt_pk_bf16_f32 v{AX+c}, v{AX+2*c}, v{AX+2*c+1}')
                A(f'buffer_store_dwordx4 {vr(AX+4*k,4)}, v{vL16}, s[40:43], s56 offen offset:{k*1024} sc1')
        else:
            if it == SIG:
                A('s_waitcnt vmcnt(0)')
                A(f'v_mov_b32 v{PR}, 1')
                A(f'buffer_store_dword v{PR}, v{vFl}, s[36:39], s54 offen sc1')
            if it == POLL:
                A(f'buffer_load_dword v{PR+16}, v{vFl}, s[36:39], s55 offen sc1')
            if it > POLL: check(it, False)
            step(1, False, reads(0, 0, False))
            for x in pre.get(it, []): A(x)
        step(0, False, reads(1, 1, False), ADV if it < N2 - 1 else ())
    check('L', True)
    step(1, False, [])
    st(12)
    A('s_waitcnt vmcnt(0)')
    T = 40
    for j in range(4):
        d = T + 4*j
        for i in range(2):
            a = AO + (i*4+j)*4; pr = PR + (i*4+j)*2
            for r in range(4): A(f'v_dot2_f32_bf16 v{a+r}, v{pr+(r>>1)}, s{60+(r&1)}, v{a+r}')
        for i in range(2):
            a = AO + (i*4+j)*4
            for r in range(4): A(f'v_fma_f32 v{a+r}, v{a+r}, v{EP+16+j}, v{C+(i*4+j)*4+r}')
        for i in range(2):
            a = AO + (i*4+j)*4
            A(f'v_cvt_pk_bf16_f32 v{d+2*i}, v{a}, v{a+1}')
            A(f'v_cvt_pk_bf16_f32 v{d+2*i+1}, v{a+2}, v{a+3}')
        A(f'v_permlane16_swap_b32 v{d}, v{d+2}')
        A(f'v_permlane16_swap_b32 v{d+1}, v{d+3}')
        A(f'ds_write_b128 v4, {vr(d,4)} offset:{1024*j}')
        A(f'ds_read_b128 {vr(76+4*j,4)}, v5 offset:{1024*j}')
        if j:
            A('s_waitcnt lgkmcnt(2)')
            A(f'buffer_store_dwordx4 {vr(72+4*j,4)}, v6, s[32:35], s19 offen {opt.get("omod", "sc1")}')
            A(f's_add_u32 s19, s19, {16*16*2048}')
    A('s_waitcnt lgkmcnt(0)')
    A(f'buffer_store_dwordx4 {vr(88,4)}, v6, s[32:35], s19 offen {opt.get("omod", "sc1")}')

def loaders(A, name, opt):
    NS = 4; N2 = opt.get('n2', 8); N1 = (56 - N2) // 2; NT = N1 + N2
    hm = opt.get('hmod', 'sc1')
    lst0 = Stamper(A, opt.get('stamp') == 1, 1)
    class LS:
        def __call__(self, i, real=False, ph=2):
            if i in (1, 2, 3, 4) and ph != opt.get('lph', 2): return
            lst0(i, real)
        def dump(self, *a): lst0.dump(*a)
    lst = LS()
    A('s_load_dwordx4 s[64:67], s[0:1], %d' % KA['w1'])
    A('s_load_dwordx4 s[48:51], s[0:1], %d' % KA['w2'])
    A('s_sub_u32 s12, s12, 4')
    g1_decode(A)
    A('s_lshl_b32 s15, s12, 17')
    A('v_lshlrev_b32 v8, 4, v1')
    skipmap(A, 8, 8, 0, 9)
    A('v_add_u32 v8, s15, v8')
    A('v_add_u32 v9, 0x10000, v8')
    A('s_lshr_b32 s15, s12, 1')
    A('s_lshl_b32 s15, s15, 6')
    A('s_and_b32 s16, s12, 1')
    A('s_lshl_b32 s16, s16, 4')
    A('s_add_u32 s15, s15, s16')
    A('s_and_b32 s16, s11, 1')
    w_voffs(A, 10, 1, 15, 16, 4, range(6 if opt.get('wh', 0) else 7))
    A('s_lshl_b32 s43, s12, 12')
    A('s_mul_i32 s44, s12, 7168')
    A(f's_add_u32 s44, s44, {WB0}')
    A('s_mov_b32 s41, 0')
    A('s_mov_b32 s42, 0')
    A('s_lshl_b32 s15, s12, 8')
    A('v_and_b32 v3, 15, v1')
    A('v_lshlrev_b32 v3, 4, v3')
    A('v_lshrrev_b32 v4, 4, v1')
    A('v_lshl_add_u32 v3, v4, 10, v3')
    A('v_add_u32 v3, s15, v3')
    A('v_and_b32 v17, 15, v1')
    A('v_lshlrev_b32 v17, 7, v17')
    A('v_mov_b32 v20, 1')
    A('v_mov_b32 v21, 0')
    A('s_and_b32 s13, s2, 7')
    A('s_sub_u32 s15, 16, s13')
    A('s_cmp_eq_u32 s13, 0')
    A('s_cselect_b32 s15, 8, s15')
    A('s_bitcmp1_b32 s2, 3')
    A('s_cselect_b32 s13, s15, s13')
    A('s_lshl_b32 s13, s13, 4')
    A('s_lshr_b32 s15, s2, 4')
    A('s_add_u32 s13, s13, s15')
    A('s_lshl_b32 s13, s13, 7')
    A('s_lshl_b32 s14, s10, 4')
    A('s_add_u32 s14, s14, s11')
    A('s_lshl_b32 s14, s14, 7')
    A(f's_add_u32 s14, s14, {FL2}')
    A('s_lshl_b32 s15, s10, 19')
    A(f's_add_u32 s15, s15, {HS_OFF}')
    A('s_mul_i32 s16, s11, 448')
    A(f's_sub_u32 s19, {1024*7168}, s16')
    A('s_waitcnt lgkmcnt(0)')
    A('s_lshl_b32 s17, s12, 7')
    A('s_add_u32 s18, s17, s16')
    A('s_min_u32 s18, s18, 7040')
    A('s_load_dwordx2 s[62:63], s[66:67], s18 offset:60')
    A('s_and_b32 s18, s11, 3')
    A('s_lshl_b32 s18, s18, 9')
    A('s_add_u32 s18, s18, s17')
    A('s_load_dwordx2 s[62:63], s[50:51], s18 offset:60')
    srd(A, 20, 4, 's15', 512 * 1024)
    srd(A, 24, 64, 's16', 's19')
    if opt.get('wh', 0):
        A('s_lshl_b32 s15, s11, 16')
        A(f's_add_u32 s15, s15, {WH_OFF}')
        srd(A, 28, 4, 's15', 65536)
        A('s_mov_b32 s51, 0')
        A('s_lshr_b32 s15, s12, 1')
        A('s_lshl_b32 s15, s15, 12')
        A('s_and_b32 s17, s12, 1')
        A('s_lshl_b32 s17, s17, 10')
        A('s_add_u32 s15, s15, s17')
        A('v_lshrrev_b32 v16, 3, v1')
        A('v_and_b32 v16, 2, v16')
        A('v_xor_b32 v16, v16, v1')
        A('v_lshl_add_u32 v16, v16, 4, s15')
    A('s_lshl_b32 s15, s10, 14')
    A(f's_add_u32 s15, s15, {ST_OFF}')
    srd(A, 32, 4, 's15', 16384)
    A('s_lshl_b32 s15, s10, 9')
    A(f's_add_u32 s15, s15, {R2_OFF}')
    srd(A, 36, 4, 's15', 512)
    srd(A, 52, 4, FL_OFF, FL_SIZE)
    srd(A, 56, 48, 0, 3584 * 2048)
    A('s_lshl_b32 s60, s2, 2')
    A('s_add_u32 s60, s60, s12')
    NL2 = 5 if opt.get('sw1', 0) else 4
    A(f's_mul_i32 s60, s60, {128*NL2}')
    A(f's_mov_b32 s50, {(6 if NL2 == 5 else 8) * (NL2 << 17)}')
    hstep = [8192]
    A('v_add_u32 v26, 3072, v8')
    A('v_add_u32 v27, 3072, v9')
    def issue_h(lds):
        A(f's_add_u32 m0, {lds}, s43')
        A('s_nop 0')
        A(f'buffer_load_dwordx4 v8, s[20:23], s41 offen {hm} lds')
        A(f'buffer_load_dwordx4 v26, s[20:23], s41 offen offset:1024 {hm} lds')
        A('s_add_u32 m0, m0, 2048')
        A('s_nop 0')
        A(f'buffer_load_dwordx4 v9, s[20:23], s41 offen {hm} lds')
        A(f'buffer_load_dwordx4 v27, s[20:23], s41 offen offset:1024 {hm} lds')
        A(f's_add_u32 s41, s41, {hstep[0]}')
    def issue_w(lds, srdn=24, so='s42'):
        A(f's_add_u32 s45, {lds}, s44')
        for q in range(7):
            A(f's_add_u32 m0, s45, {q*1024}')
            A('s_nop 0')
            if q < 6 or not opt.get('wh', 0): A(f'buffer_load_dwordx4 v{10+q}, s[24:27], s42 offen lds')
            else: A('buffer_load_dwordx4 v16, s[28:31], s51 offen lds')
        A(f's_add_u32 s42, s42, {128*7168}')
        if opt.get('wh', 0): A('s_add_u32 s51, s51, 8192')
    def sp2():
        if opt.get('nosp2'): return
        for k in range(NL2): A(f's_buffer_load_dwordx2 s[62:63], s[56:59], s60 offset:{128*k + 60}')
        A('s_add_u32 s60, s60, s50')
        A(f's_sub_u32 s50, {NL2 << 17}, s50')
    sw1 = opt.get('sw1', 0)
    if sw1:
        srd(A, 68, 64, 32 * 7168, 992 * 7168)
        A('s_lshr_b32 s61, s2, 4')
        A('s_lshl_b32 s61, s61, 5')
        A('s_and_b32 s15, s2, 15')
        A('s_add_u32 s61, s61, s15')
        A('s_lshl_b32 s61, s61, 2')
        A('s_add_u32 s61, s61, s12')
        A('s_mul_i32 s61, s61, 3584')
    def sp1(b):
        if sw1:
            for k in range(7): A(f's_buffer_load_dwordx2 s[62:63], s[68:71], s61 offset:{896*b + 128*k + 60}')
    sp1(0)
    def only0(tag, ins):
        A('s_cmp_lg_u32 s12, 0')
        A(f's_cbranch_scc1 {tag}')
        for x in ins: A(x)
        A.label(tag)
    A('s_barrier')
    for k in range(3): issue_w(k * WS)
    if sw1: sp1(1)
    else: sp2(); sp2()
    A('s_lshl_b32 s15, s10, 11')
    lst(1, ph=1)
    A('s_barrier')
    lst(2, ph=1)
    only0(f'{name}_f1', ['buffer_store_dword v20, v21, s[52:55], s13 offen sc1'])
    sp1(2)
    A('s_cmp_lg_u32 s12, 0')
    A(f's_cbranch_scc1 {name}_fl1_go')
    spin(A, f'{name}_fl1', 52, 15, 36, 17, 47, opt.get('pdepth', 1), opt.get('pgap', 1))
    lst(3, ph=1)
    A('s_barrier')
    for k in range(3): issue_h(k * HS)
    sp1(3)
    A('s_mov_b32 s40, 0')
    A('s_mov_b32 s46, 0')
    A('s_waitcnt vmcnt(8)')
    lst(4, ph=1)
    A('s_barrier')
    sig5 = lambda: only0(f'{name}_no5', [f's_add_u32 s13, s13, {FL5}', 'buffer_store_dword v20, v21, s[52:55], s13 offen sc1'])
    sig5()
    A('s_waitcnt vmcnt(4)')
    A('s_barrier')
    def issue():
        issue_h('s40'); issue_w('s46')
        A(f's_add_u32 s40, s40, {HS}')
        A(f's_add_u32 s46, s46, {WS}')
        A(f's_cmp_eq_u32 s40, {3*HS}')
        A('s_cselect_b32 s40, 0, s40')
        A('s_cselect_b32 s46, 0, s46')
    def stats():
        for c in range(4):
            A(f'v_add_f32 v{40+c}, v{40+c}, v{44+c}')
            A(f'v_add_f32 v{48+c}, v{48+c}, v{52+c}')
        for c in range(4): A(f'v_add_f32 v{40+c}, v{40+c}, v{48+c}')
        A('v_permlane32_swap_b32 v40, v42')
        A('v_permlane32_swap_b32 v41, v43')
        A('v_add_f32 v40, v40, v42')
        A('v_add_f32 v41, v41, v43')
        A('v_mov_b32 v42, v40')
        A('v_mov_b32 v43, v41')
        A('v_permlane16_swap_b32 v40, v42')
        A('v_permlane16_swap_b32 v41, v43')
        A('v_add_f32 v40, v40, v42')
        A('v_add_f32 v41, v41, v43')
        ln_finish(A, 40, 41, 22, 23, 24, 47)
        A('v_lshrrev_b32 v28, 16, v23')
        A('v_and_b32 v4, 15, v1')
        A('v_lshrrev_b32 v5, 5, v1')
        A('v_lshl_add_u32 v2, v4, 1, v5')
        A('s_lshl_b32 s15, s12, 7')
        A(f's_add_u32 s15, s15, {SGB}')
        A('v_lshl_add_u32 v5, v2, 2, s15')
        A('ds_write_b32 v5, v28')
        A('v_mul_f32 v23, v23, v23')
        A('v_rcp_f32 v23, v23')
        A('s_lshl_b32 s15, s12, 7')
        A('v_lshlrev_b32 v5, 2, v2')
        A('buffer_store_dword v23, v5, s[36:39], s15 offen sc1')
    def loop1(tag, first, last):
        A(f's_mov_b32 s18, {first}')
        A.label(f'{name}_{tag}')
        issue()
        if last == 15:
            A('s_cmp_eq_u32 s18, 15')
            A(f's_cbranch_scc1 {name}_nosp')
            if NL2 == 4:
                A('s_cmp_eq_u32 s18, 13')
                A('s_cselect_b32 s50, 0x80000, s50')
        sp2()
        if last == 15: A.label(f'{name}_nosp')
        A('s_add_u32 s18, s18, 1')
        A(f's_cmp_le_u32 s18, {last}')
        A('s_waitcnt vmcnt(11)')
        A('s_barrier')
        A(f's_cbranch_scc1 {name}_{tag}')
    loop1('l1a', 3, 4)
    A(f's_add_u32 s15, s15, {FL5}')
    A('buffer_load_dword v36, v17, s[52:55], s15 offen sc1')
    issue(); sp2()
    A('s_waitcnt vmcnt(11)')
    A('s_barrier')
    A('v_cmp_ne_u32 vcc, 1, v36')
    A(f's_cbranch_vccz {name}_fl5_go')
    spin(A, f'{name}_fl5', 52, 15, 36, 17, 47, 1, 1)
    for k in range(4):
        A(f's_mov_b32 s47, {4096*k}')
        A(f'buffer_load_dwordx4 {vr(40+4*k,4)}, v3, s[32:35], s47 offen sc1')
    loop1('l1b', 6, 7)
    A('s_mov_b32 s41, 2048')
    A(f's_mov_b32 s42, {32*7168}')
    if opt.get('wh', 0): A('s_mov_b32 s51, 2048')
    issue(); sp2()
    stats()
    A('s_waitcnt vmcnt(12)')
    A('s_barrier')
    loop1('l1c', 9, 15)
    A('s_waitcnt vmcnt(0) lgkmcnt(0)')
    A('s_barrier')
    g2_decode(A)
    gs = opt.get('gskip', 1); TT = GTT if gs else 112 * 1024; hstep[0] = GST if gs else 2048
    A(f's_mul_i32 s15, s12, {2*TT}')
    A('v_lshlrev_b32 v8, 4, v1')
    if gs:
        skipmap(A, 26, 8, 1, 4)
        skipmap(A, 8, 8, 0, 4)
        A('v_subrev_u32 v26, 1024, v26')
    else:
        A('v_mov_b32 v26, v8')
    A('v_add_u32 v8, s15, v8')
    A('v_add_u32 v26, s15, v26')
    A(f'v_add_u32 v9, {TT}, v8')
    A(f'v_add_u32 v27, {TT}, v26')
    A('v_lshrrev_b32 v4, 3, v1')
    A('s_lshl_b32 s15, s12, 4')
    A('v_add_u32 v4, s15, v4')
    A('v_lshlrev_b32 v4, 11, v4')
    A('v_and_b32 v5, 1, v1')
    A('v_lshl_add_u32 v4, v5, 4, v4')
    A('v_lshrrev_b32 v5, 4, v1')
    A('v_and_b32 v5, 1, v5')
    A('v_lshrrev_b32 v6, 1, v1')
    A('v_and_b32 v6, 3, v6')
    A('v_xor_b32 v5, v5, v6')
    A('v_lshl_add_u32 v4, v5, 5, v4')
    A('v_xor_b32 v5, 64, v4')
    A(f'v_add_u32 v5, {16384 - 1024}, v5')
    A('v_lshrrev_b32 v6, 3, v1')
    A('v_cmp_eq_u32 vcc, 3, v6')
    A('v_cndmask_b32 v6, v6, 7, vcc')
    for hsel, (va, sr_) in enumerate(((10, 24), (12, 32))):
        if hsel == 0: A('s_mov_b32 s16, s11')
        else: A('s_xor_b32 s16, s11, 1')
        A('s_and_b32 s19, s16, 8')
        A('v_add_u32 v7, s19, v6')
        A('v_lshlrev_b32 v14, 7, v7')
        A('v_xor_b32 v15, 0x400, v14')
        A('s_and_b32 s15, s16, 7')
        A('s_lshl_b32 s16, s16, 7')
        A('v_mov_b32 v7, s16')
        A(f's_add_u32 s{sr_}, s4, {WC_OFF}')
        A(f's_addc_u32 s{sr_+1}, s5, 0')
        A(f's_cmp_eq_u32 s15, {3 if opt.get("wcopy", 1) else 9}')
        A('s_cselect_b64 vcc, -1, 0')
        A(f's_cselect_b32 s{sr_}, s{sr_}, s48')
        A(f's_cselect_b32 s{sr_+1}, s{sr_+1}, s49')
        A(f's_mov_b32 s{sr_+2}, {3584*2048}')
        A(f's_mov_b32 s{sr_+3}, 0x20000')
        A('v_cndmask_b32 v14, v7, v14, vcc')
        A('v_cndmask_b32 v15, v7, v15, vcc')
        A(f'v_add_u32 v{va}, v4, v14')
        A(f'v_add_u32 v{va+1}, v5, v15')
    A('s_lshl_b32 s44, s12, 11')
    A('s_add_u32 s44, s44, 16384')
    assert N1 == 24
    def mask(st_): return sum(1 << x for x in st_)
    def m64(r, m):
        A(f's_mov_b32 s{r}, {m & 0xffffffff}'); A(f's_mov_b32 s{r+1}, {m >> 32}')
    def sel64(r, m_true, m_false):
        for h in range(2):
            A(f's_mov_b32 s{r+h}, {(m_false >> (32*h)) & 0xffffffff}')
            A(f's_cselect_b32 s{r+h}, {(m_true >> (32*h)) & 0xffffffff}, s{r+h}')
    A('s_and_b32 s15, s9, 7')
    A('s_cmp_eq_u32 s15, 7')
    sel64(38, mask(range(0, 4)), mask(range(24, 28)))
    A('s_cmp_eq_u32 s15, 0')
    sel64(30, mask(range(52, 56)), mask(range(28, 32)))
    A('s_or_b64 s[38:39], s[38:39], s[30:31]')
    A('s_cmp_lg_u32 s8, 0')
    sel64(30, mask(range(28, 56)), mask(range(0, 28)))
    A('s_andn2_b64 s[30:31], s[30:31], s[38:39]')
    A('s_mul_i32 s15, s9, 7')
    A('s_add_u32 s15, s15, 1')
    A('s_lshr_b32 s36, s15, 1')
    A('s_lshl_b64 s[28:29], 7, s36')
    A('s_andn2_b64 s[30:31], s[30:31], s[28:29]')
    m64(64, mask([x for x in range(56) if x % 7 in (1, 2, 5, 6)]))
    A('s_and_b64 s[28:29], s[30:31], s[64:65]')
    A('s_andn2_b64 s[30:31], s[30:31], s[64:65]')
    NE = 15
    def nxt(r=28):
        A(f's_ff1_i32_b64 s61, s[{r}:{r+1}]')
        A(f's_bitset0_b64 s[{r}:{r+1}], s61')
    def seth(): A(f's_mul_i32 s41, s61, {hstep[0]}')
    def setw(): A('s_lshl_b32 s42, s61, 17')
    A(f's_mul_i32 s15, s10, {8*TT}')
    A(f's_add_u32 s15, s15, {GS_OFF if gs else G_OFF}')
    srd(A, 20, 4, 's15', 8 * TT)
    def issue_w2(lds, full):
        A(f's_add_u32 m0, {lds}, s44')
        A('s_nop 0')
        A(f'buffer_load_dwordx4 v10, s[24:27], s42 offen lds')
        A(f'buffer_load_dwordx4 v11, s[24:27], s42 offen offset:1024 lds')
        if full:
            A('s_add_u32 m0, m0, 8192')
            A('s_nop 0')
            A(f'buffer_load_dwordx4 v12, s[32:35], s42 offen lds')
            A(f'buffer_load_dwordx4 v13, s[32:35], s42 offen offset:1024 lds')
        A(f's_add_u32 s42, s42, {64*2048}')
    def slotadv():
        A(f's_add_u32 s40, s40, {SLOT}')
        A(f's_cmp_eq_u32 s40, {NS*SLOT}')
        A('s_cselect_b32 s40, 0, s40')
    def issue2(full, r=None):
        if r is not None: nxt(r); seth(); setw()
        issue_h('s40'); issue_w2('s40', full)
        slotadv()
    A('s_lshl_b32 s42, s36, 17')
    for k in (2, 3, 0): issue_w2(k * SLOT, True)
    A('s_lshl_b32 s15, s10, 11')
    A(f's_add_u32 s15, s15, {FL2}')
    A('s_lshl_b32 s61, s8, 3')
    A('v_min_u32 v17, 7, v1')
    A('v_add_u32 v17, s61, v17')
    A('v_lshlrev_b32 v17, 7, v17')
    A('s_barrier')
    nxt(); setw(); seth()
    issue_w2(SLOT, True)
    lst(1)
    A('s_barrier')
    lst(2)
    only0(f'{name}_noa', ['buffer_store_dword v20, v21, s[52:55], s14 offen sc1'])
    A('s_waitcnt vmcnt(4)')
    A('s_barrier')
    A('s_barrier')
    PE = opt.get('pe', 1)
    if PE: A('buffer_load_dword v38, v17, s[52:55], s15 offen sc1')
    A('s_barrier')
    if PE:
        A('s_waitcnt vmcnt(0)')
        A('v_cmp_ne_u32 vcc, 1, v38')
        A(f's_cbranch_vccz {name}_fl2_go')
    spin(A, f'{name}_fl2', 52, 15, 36, 17, 47, opt.get('pdepth', 1), opt.get('pgap', 1))
    lst(3)
    issue_h(SLOT)
    A(f's_mov_b32 s40, {2*SLOT}')
    issue2(True, 28); issue2(True, 28)
    A('s_waitcnt vmcnt(16)')
    lst(4)
    A('s_barrier')
    def loop(tag, n, r):
        A(f's_mov_b32 s18, {n}')
        A.label(f'{name}_{tag}')
        issue2(True, r)
        A('s_sub_u32 s18, s18, 1')
        A('s_cmp_lg_u32 s18, 0')
        A('s_waitcnt vmcnt(16)')
        A('s_barrier')
        A(f's_cbranch_scc1 {name}_{tag}')
    L0 = opt.get('l0', 0)
    loop('l2a', 2 + L0, 28)
    A('s_cmp_lg_u32 s12, 0')
    A(f's_cbranch_scc1 {name}_nob')
    A(f's_add_u32 s14, s14, {FL4 - FL2}')
    A('buffer_store_dword v20, v21, s[52:55], s14 offen sc1')
    A.label(f'{name}_nob')
    loop('l2b', NE - 9 - L0, 28)
    A(f's_add_u32 s15, s15, {FL4 - FL2}')
    A('v_and_b32 v17, 15, v1')
    A('v_lshlrev_b32 v17, 7, v17')
    A('buffer_load_dword v36, v17, s[52:55], s15 offen sc1')
    issue2(True, 28)
    A('s_waitcnt vmcnt(16)')
    A('s_barrier')
    A('s_waitcnt vmcnt(8)')
    A('v_cmp_ne_u32 vcc, 1, v36')
    A(f's_cbranch_vccz {name}_fl4_go')
    spin(A, f'{name}_fl4', 52, 15, 36, 17, 47, 1, 1)
    loop('l2c', N1 - NE, 30)
    cnt = lambda s: 0 if s >= NT else (8 if s < N1 else 6)
    for j in range(N1 - NS + 1, NT - 1):
        s = j + NS - 1
        if s < NT: issue2(False, 38)
        A(f's_waitcnt vmcnt({sum(cnt(x) for x in range(j + 2, j + NS))})')
        A('s_barrier')
    if opt.get('stamp') == 1:
        lst(5); lst(6, True); lst(8)
        A('s_cmp_lg_u32 s12, 0')
        A(f's_cbranch_scc1 {name}_end')
        lst.dump(9, 1, 60)

def gen_m(A, name='m_kernel', opt=None):
    opt = opt or {}
    khead(A, name)
    st = Stamper(A, opt.get('stamp'), 1)
    st(0); st(7, True)
    A('s_cmp_ge_u32 s2, 256')
    A(f's_cbranch_scc1 {name}_end')
    A('s_load_dwordx2 s[4:5], s[0:1], %d' % KA['ws'])
    A('s_load_dwordx2 s[6:7], s[0:1], %d' % KA['x'])
    A('v_lshrrev_b32 v2, 6, v0')
    A('v_and_b32 v1, 63, v0')
    A('v_readfirstlane_b32 s12, v2')
    A('s_cmp_ge_u32 s12, 4')
    A(f's_cbranch_scc1 {name}_loader')
    if opt.get('prio'): A(f's_setprio {opt["prio"]}')
    later = fb_compute(A, name, st, opt)
    late = g1_compute(A, name, st, opt, later)
    g2_compute(A, name, st, opt, late)
    A('s_waitcnt vmcnt(0)') if opt.get('stamp') else None
    st(5); st(6, True)
    st.dump(13, 0, 244)
    A('s_endpgm')
    A.label(f'{name}_loader')
    loaders(A, name, opt)
    A.label(f'{name}_end')
    A('s_endpgm')
    return dict(name=name, grid=256, block=512, lds=M_LDS, vgpr=256)
```

```python
from common import *

XP = 2112; NP = 80; ZP = 1312
ZB = 16 * XP
RB = ZB + 16 * ZP
FA_LDS = RB + 64

def gen_fa(A, name='fa_kernel', opt=None):
    opt = opt or {}
    smod = opt.get('smod', 'sc1'); sm2 = opt.get('sm2', ''); sm3 = opt.get('sm3', 'sc1'); xmod = opt.get('xmod', 'nt')
    khead(A, name)
    st = Stamper(A, opt.get('stamp'), 0)
    st(0); st(7, True)
    A('s_cmp_ge_u32 s2, 256')
    A(f's_cbranch_scc1 {name}_end')
    A('s_load_dwordx2 s[6:7], s[0:1], %d' % KA['x'])
    A('s_load_dwordx2 s[4:5], s[0:1], %d' % KA['ws'])
    A('s_load_dwordx2 s[8:9], s[0:1], %d' % KA['w1'])
    A('s_load_dwordx2 s[60:61], s[0:1], %d' % KA['w2'])
    if opt.get('cpf', 1):
        A('s_getpc_b64 s[36:37]')
        A(f's_mov_b32 s38, CODE_END-{name}-64')
        A('s_mov_b32 s39, 0x20000')
        A('s_lshr_b32 s13, s2, 3')
        A('s_lshl_b32 s13, s13, 7')
        A('v_lshlrev_b32 v4, 12, v0')
        A('buffer_load_dword v88, v4, s[36:39], s13 offen')
    A('v_lshrrev_b32 v2, 6, v0')
    A('v_and_b32 v1, 63, v0')
    A('s_and_b32 s13, s2, 7')
    A('v_readfirstlane_b32 s12, v2')
    A('s_lshr_b32 s14, s2, 3')
    A('s_and_b32 s11, s14, 1')
    A('s_sub_u32 s15, 16, s13')
    A('s_cmp_eq_u32 s13, 0')
    A('s_cselect_b32 s15, 8, s15')
    A('s_bitcmp1_b32 s14, 1')
    A('s_cselect_b32 s10, s15, s13')
    A('s_lshr_b32 s15, s14, 2')
    A('s_lshl_b32 s15, s15, 4')
    A('s_add_u32 s10, s10, s15')
    A('v_lshrrev_b32 v4, 5, v1')
    A('v_lshlrev_b32 v4, 1, v4')
    A('v_xor_b32 v4, v4, v1')
    A('v_lshlrev_b32 v14, 4, v4')
    A('s_lshl_b32 s13, s12, 9')
    A('s_add_u32 s13, s13, s10')
    A('s_lshl_b32 s63, s13, 2')
    A('s_lshl_b32 s13, s13, 11')
    A(f's_mul_i32 s14, s12, {4*XP}')
    vn, vg = 2, 3
    M1, TC, TS, M2C, M2S, SA1, SA2, SGN, MU, ONES = 16, 24, 40, 56, 60, 64, 68, 72, 73, 76
    GA, SA = 80, 84
    vSt, vTr0, vTr1, vZw, vZr, vU, vE, vE0, vZx, vX0, vZ0 = 108, 90, 91, 92, 93, 94, 95, 96, 97, 98, 99
    WHR = 4
    F = 112; T = 144; AF = 208; TMP = 112; P = 128; D = 240
    A(f'v_and_b32 v{vn}, 15, v1')
    A(f'v_lshrrev_b32 v{vg}, 4, v1')
    A('s_lshl_b32 s43, s11, 4')
    A('s_add_u32 s43, s43, 1')
    A(f'v_and_b32 v5, 7, v{vn}')
    A('v_add_u32 v5, s43, v5')
    A('v_cvt_f32_u32 v5, v5')
    A(f'v_and_b32 v6, 8, v{vn}')
    A(f'v_cvt_f32_u32 v7, v{vg}')
    A('v_cvt_f32_u32 v8, v6')
    A('v_mul_f32 v9, 0x3d000000, v5')
    A('v_mul_f32 v8, 0x3d000000, v8')
    A('v_mul_f32 v12, 0x41000000, v7')
    A('v_fmac_f32 v8, v12, v9')
    def m1(hh8, th, dl):
        for j in range(8):
            if j: A(f'v_add_f32 v{th}, v{th}, v{dl}')
            A(f'v_cos_f32 v{10 + (j & 1)}, v{th}')
            if j & 1: A(f'v_cvt_pk_bf16_f32 v{M1 + 4*hh8 + j//2}, v10, v11')
    A('v_mov_b32 v13, v8')
    m1(0, 8, 9)
    A('s_waitcnt lgkmcnt(0)')
    def touch():
        if opt.get('pf', 1):
            srd(A, 24, 8, 0, 1024 * 7168)
            A('v_lshlrev_b32 v15, 7, v0')
            nl = 224 if opt.get('pf', 1) == 1 else 112
            A(f'v_cmp_gt_u32 vcc, {nl}, v0')
            A('v_cndmask_b32 v15, 4.0, v15, vcc')
            if nl == 224: A(f's_mul_i32 s15, s2, {nl*128}')
            else:
                A('s_lshr_b32 s15, s2, 4')
                A('s_lshl_b32 s15, s15, 5')
                A('s_and_b32 s17, s2, 15')
                A('s_add_u32 s15, s15, s17')
                A('s_mul_i32 s15, s15, 14336')
            A('buffer_load_dword v89, v15, s[24:27], s15 offen')
    srd(A, 20, 6, 0, 2048 * 2048)
    if opt.get('pfpos') == 0: touch()
    for r in range(4):
        A(f's_add_u32 m0, s14, {r*XP}')
        A('s_nop 0')
        A(f'buffer_load_dwordx4 v14, s[20:23], s13 offen {xmod} lds')
        A(f'buffer_load_dwordx4 v14, s[20:23], s13 offen offset:1024 {xmod} lds')
        if r < 3: A(f's_add_u32 s13, s13, {128*2048}')
    if opt.get('pfpos') == 1: touch()
    A('v_add_f32 v9, 0x3e800000, v9')
    m1(1, 13, 9)
    A(f'v_lshlrev_b32 v9, 28, v6')
    A(f'v_lshrrev_b32 v10, 16, v9')
    A(f'v_or_b32 v{SGN}, v9, v10')
    A('v_mul_f32 v12, 4.0, v7')
    for hh8 in range(2):
        if hh8: A('v_add_f32 v5, 0x41000000, v5')
        A('v_mul_f32 v13, 0x3a800000, v5')
        A('v_xor_b32 v15, v9, v13')
        A('v_mul_f32 v8, v12, v15')
        for hh in range(2):
            for r in range(4):
                o = 8*hh8 + 4*hh + r
                if r: A('v_add_f32 v8, v8, v15')
                elif hh: A('v_fmac_f32 v8, 0x41500000, v15')
                A(f'v_cos_f32 v{TC+o}, v8')
                A(f'v_sin_f32 v{TS+o}, v8')
    A('s_cmp_eq_u32 s11, 1')
    A('s_cselect_b32 s44, 0xc2000000, 0')
    A(f'v_mov_b32 v{MU}, s44')
    A(f'v_cmp_eq_u32 vcc, 7, v{vn}')
    A(f'v_cndmask_b32 v{MU}, 0, v{MU}, vcc')
    A(f'v_cvt_f32_u32 v5, v{vn}')
    A('v_mul_f32 v13, 0x3d000000, v5')
    A('v_mul_f32 v8, v12, v13')
    for j in range(8):
        if j == 4: A('v_fmac_f32 v8, 0x41500000, v13')
        elif j: A('v_add_f32 v8, v8, v13')
        A(f'v_cos_f32 v{10+(j&1)}, v8')
        A(f'v_sin_f32 v{14+(j&1)}, v8')
        if j & 1:
            A(f'v_cvt_pk_bf16_f32 v{M2C+j//2}, v10, v11')
            A(f'v_cvt_pk_bf16_f32 v{M2S+j//2}, v14, v15')
    for i in range(4): A(f'v_mov_b32 v{ONES+i}, 0x3f803f80')
    A(f'v_lshrrev_b32 v10, 2, v{vn}')
    A(f'v_and_b32 v11, 3, v{vn}')
    A(f'v_mul_u32_u24 v12, {XP}, v10')
    A(f'v_mul_u32_u24 v13, 528, v11')
    A('v_add3_u32 v12, v12, v13, s14')
    A(f'v_and_b32 v13, 1, v{vg}')
    A('v_lshl_add_u32 v12, v13, 8, v12')
    A(f'v_lshrrev_b32 v15, 1, v{vg}')
    A(f'v_lshl_add_u32 v{vSt}, v15, 7, v12')
    for e in range(1, 4): A(f'v_xor_b32 v{vSt+e}, {16*e}, v{vSt}')
    A('v_lshlrev_b32 v12, 6, v10')
    A(f'v_lshl_add_u32 v12, v{vg}, 9, v12')
    A('v_lshl_add_u32 v12, v11, 3, v12')
    A('v_lshl_add_u32 v12, v13, 5, v12')
    A(f'v_add_u32 v{vTr0}, s14, v12')
    A(f'v_xor_b32 v{vTr1}, 32, v{vTr0}')
    A(f's_mul_i32 s15, s12, {4*ZP}')
    A(f's_add_u32 s15, s15, {ZB}')
    A(f'v_mul_u32_u24 v{vZw}, {NP}, v{vn}')
    A(f'v_lshl_add_u32 v{vZw}, v{vg}, 4, v{vZw}')
    A(f'v_add_u32 v{vZw}, s15, v{vZw}')
    A(f'v_mul_u32_u24 v{vX0}, {XP}, v10')
    A(f'v_add_u32 v{vX0}, s14, v{vX0}')
    A(f'v_mul_u32_u24 v{vZ0}, {ZP}, v10')
    A('v_and_b32 v12, 1, v1')
    A(f'v_mul_u32_u24 v12, {8*NP}, v12')
    A(f'v_add3_u32 v{vZ0}, v{vZ0}, v12, s15')
    A('v_cmp_eq_u32 s[46:47], 1, v11')
    A('v_cmp_eq_u32 s[48:49], 2, v11')
    A('v_cmp_eq_u32 s[50:51], 3, v11')
    A(f'v_cmp_eq_u32 s[52:53], v10, v{vg}')
    A('s_cmp_eq_u32 s11, 0')
    A('s_cselect_b32 s16, 8192, 0')
    srd(A, 32, 4, MX_OFF, 's16')
    srd(A, 28, 4, U_OFF, 4 * MB)
    srd(A, 36, 4, E_OFF, 131072)
    A('s_lshr_b32 s65, s12, 1')
    A('s_cmp_lg_u32 s65, 0')
    A('s_cselect_b32 s44, 0.25, 0')
    A(f'v_lshlrev_b32 v8, 9, v{vg}')
    A('v_add_u32 v8, s10, v8')
    A('v_cvt_f32_u32 v8, v8')
    A('v_mul_f32 v13, 0x3a000000, v5')
    A('v_fma_f32 v8, v8, v13, s44')
    A('v_mul_f32 v13, 0x3d800000, v5')
    for j in range(4):
        if j: A('v_add_f32 v8, v8, v13')
        A(f'v_cos_f32 v{SA1+j}, v8')
        A(f'v_sin_f32 v{SA2+j}, v8')
    A(f'v_lshl_add_u32 v12, v{vg}, 2, v10')
    A(f'v_mul_u32_u24 v12, {ZP}, v12')
    A(f'v_add_u32 v{vZx}, {ZB + 64}, v12')
    A('v_lshl_add_u32 v12, v11, 3, v12')
    A('s_and_b32 s15, s12, 1')
    A('s_lshl_b32 s16, s15, 5')
    A(f's_add_u32 s16, s16, {ZB}')
    A(f'v_add_u32 v{vZr}, s16, v12')
    A(f'v_lshlrev_b32 v{vU}, 20, v{vg}')
    A('s_lshl_b32 s16, s15, 2')
    A('s_add_u32 s16, s16, s10')
    A('v_add_u32 v12, s16, v10')
    A('v_and_b32 v12, 7, v12')
    A(f'v_lshl_add_u32 v{vU}, v12, 7, v{vU}')
    A(f'v_lshl_add_u32 v{vU}, v11, 4, v{vU}')
    A('s_lshl_b32 s66, s65, 17')
    A('s_lshl_b32 s16, s10, 10')
    A('s_add_u32 s66, s66, s16')
    A('s_lshl_b32 s16, s11, 6')
    A('s_add_u32 s66, s66, s16')
    A('s_lshl_b32 s16, s15, 2')
    A('s_add_u32 s16, s16, 1')
    A('v_add_u32 v12, s16, v10')
    A(f'v_lshlrev_b32 v{vE0}, 14, v{vg}')
    A(f'v_lshl_add_u32 v{vE}, v12, 9, v{vE0}')
    A('v_cmp_gt_u32 vcc, 8, v12')
    A('s_and_b64 vcc, vcc, s[50:51]')
    A(f'v_cndmask_b32 v{vE}, 4.0, v{vE}, vcc')
    A(f'v_lshl_add_u32 v{vE0}, v{vn}, 16, v{vE0}')
    A('s_lshl_b32 s16, s15, 1')
    A(f'v_or_b32 v12, s16, v{vn}')
    A('v_cmp_gt_u32 vcc, 2, v12')
    A(f'v_cndmask_b32 v{vE0}, 4.0, v{vE0}, vcc')
    A('s_lshl_b32 s67, s65, 7')
    A('s_add_u32 s67, s67, s10')
    A('s_lshl_b32 s67, s67, 1')
    srd(A, 24, 4, 38 * MB, 2048 * 128)
    A('v_lshlrev_b32 v12, 7, v0')
    A('v_cmp_gt_u32 vcc, 8, v0')
    A('v_cndmask_b32 v12, 4.0, v12, vcc')
    A('s_mul_i32 s15, s2, 1024')
    A('v_mov_b32 v13, 0')
    A(f'buffer_store_dword v13, v12, s[24:27], s15 offen {sm2}')
    npf = 2
    srd(A, 24, 60, 0, 3584 * 2048)
    A('v_lshrrev_b32 v12, 4, v0')
    A('s_mul_i32 s15, s2, 14')
    A('v_add_u32 v12, s15, v12')
    A('v_and_b32 v13, 8, v0')
    A('v_and_b32 v14, 7, v0')
    A('v_lshlrev_b32 v14, 4, v14')
    A('v_lshl_add_u32 v14, v12, 11, v14')
    A('v_add_u32 v12, v12, v13')
    A('v_and_b32 v12, 15, v12')
    A('v_and_b32 v15, 7, v12')
    A('v_cmp_eq_u32 vcc, 3, v15')
    A('v_xor_b32 v15, 4, v12')
    A('v_cndmask_b32 v12, v12, v15, vcc')
    A('v_lshl_add_u32 v104, v12, 7, v14')
    A('v_lshl_add_u32 v14, v13, 7, v14')
    A('v_cmp_gt_u32 vcc, 224, v0')
    A('v_cndmask_b32 v14, 4.0, v14, vcc')
    A('v_cndmask_b32 v104, 4.0, v104, vcc')
    A('buffer_load_dwordx4 v[100:103], v14, s[24:27], 0 offen offset:384')
    if opt.get('wh', 0):
        srd(A, 24, 8, 0, 1024 * 7168)
        A('s_lshl_b32 s15, s2, 2')
        A('s_add_u32 s15, s15, s12')
        A('v_lshrrev_b32 v12, 3, v1')
        A('v_and_b32 v13, 7, v1')
        A('v_mul_u32_u24 v14, 896, v12')
        A('v_lshl_add_u32 v14, v13, 4, v14')
        A('s_mul_i32 s16, s15, 7168')
        A('buffer_load_dwordx4 v[72+0:72+0], v14, s[24:27], s16 offen offset:384'.replace('v[72+0:72+0]', f'v[{WHR}:{WHR+3}]'))
        A('v_lshrrev_b32 v14, 2, v1')
        A('v_lshlrev_b32 v14, 16, v14')
        A('v_and_b32 v13, 3, v1')
        A('v_lshl_add_u32 v105, v13, 4, v14')
        A('s_lshl_b32 s62, s15, 6')
        npf += 1
    if opt.get('tlb'):
        sh = opt['tlb']
        A('s_load_dwordx2 s[68:69], s[0:1], %d' % KA['out'])
        A('s_lshr_b32 s15, s2, 3')
        A(f's_lshl_b32 s15, s15, {sh + 2}')
        A('s_lshl_b32 s16, s12, %d' % sh)
        A('s_add_u32 s15, s15, s16')
        srd(A, 24, 4, 0, 72 * MB)
        A(f'v_lshlrev_b32 v12, {sh + 7}, v1')
        A('v_cmp_gt_u32 vcc, %d, v1' % max(1, (72 * MB >> (sh + 7)) + 1))
        A('v_cndmask_b32 v12, 4.0, v12, vcc')
        A('buffer_load_dword v87, v12, s[24:27], s15 offen')
        A('s_waitcnt lgkmcnt(0)')
        srd(A, 24, 68, 0, 4 * MB)
        A('buffer_load_dword v87, v12, s[24:27], s15 offen')
        npf += 2
    if opt.get('pfpos') == 1: npf += 1
    if opt.get('pfpos') is None and not opt.get('pfend') and opt.get('pf', 1):
        touch(); npf += 1
        if opt.get('pw2'):
            srd(A, 24, 60, 0, opt['pw2'] * 2048)
            if opt['pw2'] < 3584: A(f's_mul_i32 s15, s2, {opt["pw2"] * 8}'); A(f'v_cmp_gt_u32 vcc, {opt["pw2"] // 16}, v0'); A('v_cndmask_b32 v12, 4.0, v12, vcc')
            A('buffer_load_dword v88, v12, s[24:27], s15 offen')
            npf += 1
    st(1)
    A(f's_waitcnt vmcnt({npf})')
    st(2)
    E = AutoLgkm(A)
    def mf(d, a, b, z): return f'v_mfma_f32_16x16x32_bf16 {vr(d,4)}, {vr(a,4)}, {vr(b,4)}, {"0" if z else vr(d,4)}'
    def s1rd(r): return [f'ds_read_b64_tr_b16 {vr(AF+8*r+4*hh+2*rd,2)}, v{vTr0 if hh == 0 else vTr1} offset:{r*XP + 256*rd}' for hh in range(2) for rd in range(2)]
    frd = [f'ds_read_b128 {vr(F+4*i,4)}, v{vSt + (i&3)} offset:{64*(i>>2)}' for i in range(8)] + [f'ds_read_u16 v{vX0}, v{vX0}']
    def s1(r): return [mf(T + 16*r + 8*hh8 + 4*hh, AF + 8*r + 4*hh, M1 + 4*hh8, True) for hh8 in range(2) for hh in range(2)]
    for x in s1rd(0) + s1rd(1) + s1rd(2) + frd[:3]: E(x)
    for x in weave(s1(0) + s1(1), s1rd(3) + frd[3:], per=2) + s1(2) + s1(3): E(x)
    D0 = AF + 16; D1 = D
    def tw(r, hh8, tm, p):
        t = T + 16*r + 8*hh8; d = (D1 if hh8 else D0) + 4*r
        return ([f'v_pk_mul_f32 {vr(tm+k,2)}, {vr(t+k,2)}, {vr(TC+8*hh8+k,2)}' for k in range(0, 8, 2)] if opt.get('pk', 1) else
                [f'v_mul_f32 v{tm+k}, v{t+k}, v{TC+8*hh8+k}' for k in range(8)]) + \
               [f'v_fmac_f32_dpp v{tm+k}, v{t+k}, v{TS+8*hh8+k} row_ror:8 row_mask:0xf bank_mask:0xf' for k in range(8)] + \
               [f'v_cvt_pk_bf16_f32 v{p+k}, v{tm+2*k}, v{tm+2*k+1}' for k in range(4)] + [mf(d, M2C, p, True)] + \
               [f'v_xor_b32_dpp v{p+4+k}, v{p+k}, v{SGN} row_ror:8 row_mask:0xf bank_mask:0xf' for k in range(4)], mf(d, M2S, p + 4, False)
    stm = [x for i in range(8) for x in (mf(SA, ONES, F+4*i, i == 0), mf(GA, F+4*i, F+4*i, i == 0))]
    t0 = []
    for r in range(4):
        a, b = tw(r, 0, AF, AF + 8)
        t0 += a[:6] + ([pb] if r else []) + a[6:]
        pb = b
    mean = [f'v_add_f32_dpp v11, v{SA}, v{SA} quad_perm:[1,0,3,2] row_mask:0xf bank_mask:0xf', f'v_cndmask_b32 v10, v{GA}, v{GA+1}, s[46:47]',
            f'v_lshlrev_b32 v{vX0}, 16, v{vX0}', 'v_add_f32_dpp v11, v11, v11 quad_perm:[2,3,0,1] row_mask:0xf bank_mask:0xf',
            f'v_cndmask_b32 v10, v10, v{GA+2}, s[48:49]', 'v_mul_f32 v15, 0x3a800000, v11', f'v_cndmask_b32 v10, v10, v{GA+3}, s[50:51]'] + \
           [f'v_readlane_b32 s{56+r}, v15, {4*r}' for r in range(4)]
    for x in weave(stm, t0[:48], per=3) + weave(t0[48:], mean, start=6, per=1) + [pb]: E(x)
    class L(list):
        def __call__(self, t): self.append(t)
    sg = L()
    sg('v_add_f32_dpp v10, v10, v10 quad_perm:[1,0,3,2] row_mask:0xf bank_mask:0xf')
    sg('v_add_f32_dpp v10, v10, v10 quad_perm:[2,3,0,1] row_mask:0xf bank_mask:0xf')
    ln_finish(sg, 11, 10, 12, 13, 14, 45)
    sg('v_rcp_f32 v13, v13')
    sg(f'v_sub_f32 v{vX0}, v{vX0}, v12')
    sg('v_sub_f32 v14, v15, v12')
    sg('v_mul_f32 v14, 0x44800000, v14')
    sg(f'v_cvt_pk_bf16_f32 v{vX0}, v{vX0}, v14')
    sg(f'v_lshlrev_b32 v12, 9, v{vg}'); sg(f'v_lshlrev_b32 v10, 2, v{vg}'); sg('s_lshl_b32 s15, s12, 4'); sg(f's_add_u32 s15, s15, {RB}')
    sg('v_add_u32 v10, s15, v10')
    def fin(r):
        return [f'v_cvt_pk_bf16_f32 v{D0+4*r+k}, v{D0+4*r+k}, v{D1+4*r+k}' for k in range(4)] + [f'ds_write_b128 v{vZw}, {vr(D0+4*r,4)} offset:{r*ZP}']
    t1 = []
    for r in range(4):
        a, b = tw(r, 1, TMP, P + 8*(r & 1))
        pre = [f'v_mul_f32 v8, s{56+r}, v{MU}', 'v_mov_b32 v9, v8'] + ([f'v_pk_add_f32 {vr(T+16*r+8+k,2)}, {vr(T+16*r+8+k,2)}, v[8:9]' for k in range(0, 8, 2)] if opt.get('pk', 1)
              else [f'v_add_f32 v{T+16*r+8+k}, v{T+16*r+8+k}, v8' for k in range(8)])
        t1 += pre[:2] + ([pb] if r else []) + pre[2:] + a[:12] + (fin(r - 1) if r else []) + a[12:]
        pb = b
    for x in weave(t1[:2*len(sg)], list(sg), per=1)[:]: E(x)
    A('s_mov_b64 exec, s[52:53]')
    E('ds_write_b32 v10, v13')
    A(f'buffer_store_dword v15, v12, s[32:35], s63 offen {sm2}')
    A('s_mov_b64 exec, -1')
    x0 = ['v_mov_b32 v11, 0', 's_mov_b32 vcc_lo, 0x55555555', 's_mov_b32 vcc_hi, 0x55555555',
          f'v_cndmask_b32 v10, 0, v{vX0}, vcc', f'ds_write_b64 v{vZ0}, v[10:11] offset:64']
    for x in weave(t1[2*len(sg):], x0, per=1): E(x)
    E(pb)
    A(f'v_lshlrev_b32 v10, 4, v{vg}')
    A(f'v_add_u32 v10, {RB}, v10')
    for x in fin(3): E(x)
    st(3)
    A('s_waitcnt lgkmcnt(0)')
    A('s_barrier')
    st(8)
    RS = F; AM = F + 4; ZF = T; O = T + 36
    A(f'ds_read_b128 {vr(RS,4)}, v10')
    for tau in range(9):
        if tau == 7: A('s_waitcnt lgkmcnt(14)')
        for rd in range(2):
            if tau < 8: A(f'ds_read_b64_tr_b16 {vr(ZF + tau*4 + 2*rd, 2)}, v{vZr} offset:{(rd*8 + tau)*NP}')
            else: A(f'ds_read_b64_tr_b16 {vr(ZF + tau*4 + 2*rd, 2)}, v{vZx} offset:{rd*8*NP}')
    for j in range(0, 4, 2):
        A(f'v_pk_mul_f32 {vr(SA1+j,2)}, {vr(SA1+j,2)}, {vr(RS+j,2)}')
        A(f'v_pk_mul_f32 {vr(SA2+j,2)}, {vr(SA2+j,2)}, {vr(RS+j,2)}')
    for k in range(4): A(f'v_cvt_pk_bf16_f32 v{AM+k}, v{SA1+2*k}, v{SA1+2*k+1}')
    for tau in range(9):
        if tau % 2 == 0: A(f's_waitcnt lgkmcnt({max(14 - 2*tau, 0)})')
        mfma(A, O + 4*tau, AM, ZF + tau*4, '0')
    for r in range(4):
        b = P + 4*r
        for k in range(4): A(f'v_cvt_pk_bf16_f32 v{b+k}, v{O+8*k+r}, v{O+8*k+4+r}')
        A(f'buffer_store_dwordx4 {vr(b,4)}, v{vU}, s[28:31], s66 offen {smod}')
        if r < 3: A('s_add_u32 s66, s66, 0x40000')
    srd(A, 24, 4, WC_OFF, 3584 * 2048)
    A(f's_waitcnt vmcnt({npf + 3 - (1 if opt.get("pfpos") == 1 else 0)})')
    A(f'buffer_store_dwordx4 v[100:103], v104, s[24:27], 0 offen {sm3}')
    if opt.get('wh', 0):
        srd(A, 24, 4, WH_OFF, MB)
        A(f's_waitcnt vmcnt({npf + 3})')
        A(f'buffer_store_dwordx4 v[{WHR}:{WHR+3}], v105, s[24:27], s62 offen {sm3}')
    A('s_cmp_eq_u32 s11, 0')
    A(f's_cbranch_scc1 {name}_c0')
    for r in range(4):
        A(f'buffer_store_short_d16_hi v{P+4*r+3}, v{vE}, s[36:39], s67 offen {sm2}')
        if r < 3: A('s_add_u32 s67, s67, 4096')
    A(f's_branch {name}_fin')
    A.label(f'{name}_c0')
    for r in range(4):
        A(f'v_cvt_pk_bf16_f32 v{O+32+r}, v{O+32+r}, v{O+32+r}')
        A(f'buffer_store_short v{O+32+r}, v{vE0}, s[36:39], s67 offen {sm2}')
        if r < 3: A('s_add_u32 s67, s67, 4096')
    A.label(f'{name}_fin')
    if opt.get('pfend'):
        touch()
        if opt['pfend'] == 2:
            srd(A, 24, 60, 0, 3584 * 2048)
            A('buffer_load_dword v88, v12, s[24:27], s15 offen')
    st(4)
    A('s_waitcnt vmcnt(0)') if opt.get('stamp') else None
    st(5); st(6, True)
    st.dump(9, 0, 108)
    A.label(f'{name}_end')
    A('s_endpgm')
    return dict(name=name, grid=256, block=256, lds=FA_LDS, vgpr=256)
```

```python
from common import *

XP = 2112; NP = 80; ZP = 1312
ZB = 16 * XP
RB = ZB + 16 * ZP
FA_LDS = RB + 64

def gen_fa(A, name='fa_kernel', opt=None):
    opt = opt or {}
    smod = opt.get('smod', 'sc1'); sm2 = opt.get('sm2', ''); sm3 = opt.get('sm3', 'sc1'); xmod = opt.get('xmod', 'nt')
    khead(A, name)
    st = Stamper(A, opt.get('stamp'), 0)
    st(0); st(7, True)
    A('s_cmp_ge_u32 s2, 256')
    A(f's_cbranch_scc1 {name}_end')
    A('s_load_dwordx2 s[6:7], s[0:1], %d' % KA['x'])
    A('s_load_dwordx2 s[4:5], s[0:1], %d' % KA['ws'])
    A('s_load_dwordx2 s[8:9], s[0:1], %d' % KA['w1'])
    A('s_load_dwordx2 s[60:61], s[0:1], %d' % KA['w2'])
    if opt.get('cpf', 1):
        A('s_getpc_b64 s[36:37]')
        A(f's_mov_b32 s38, CODE_END-{name}-64')
        A('s_mov_b32 s39, 0x20000')
        A('s_lshr_b32 s13, s2, 3')
        A('s_lshl_b32 s13, s13, 7')
        A('v_lshlrev_b32 v4, 12, v0')
        A('buffer_load_dword v88, v4, s[36:39], s13 offen')
    A('v_lshrrev_b32 v2, 6, v0')
    A('v_and_b32 v1, 63, v0')
    A('s_and_b32 s13, s2, 7')
    A('v_readfirstlane_b32 s12, v2')
    A('s_lshr_b32 s14, s2, 3')
    A('s_and_b32 s11, s14, 1')
    A('s_sub_u32 s15, 16, s13')
    A('s_cmp_eq_u32 s13, 0')
    A('s_cselect_b32 s15, 8, s15')
    A('s_bitcmp1_b32 s14, 1')
    A('s_cselect_b32 s10, s15, s13')
    A('s_lshr_b32 s15, s14, 2')
    A('s_lshl_b32 s15, s15, 4')
    A('s_add_u32 s10, s10, s15')
    A('v_lshrrev_b32 v4, 5, v1')
    A('v_lshlrev_b32 v4, 1, v4')
    A('v_xor_b32 v4, v4, v1')
    A('v_lshlrev_b32 v14, 4, v4')
    A('s_lshl_b32 s13, s12, 9')
    A('s_add_u32 s13, s13, s10')
    A('s_lshl_b32 s63, s13, 2')
    A('s_lshl_b32 s13, s13, 11')
    A(f's_mul_i32 s14, s12, {4*XP}')
    vn, vg = 2, 3
    M1, TC, TS, M2C, M2S, SA1, SA2, SGN, MU, ONES = 16, 24, 40, 56, 60, 64, 68, 72, 73, 76
    GA, SA = 80, 84
    vSt, vTr0, vTr1, vZw, vZr, vU, vE, vE0, vZx, vX0, vZ0 = 108, 90, 91, 92, 93, 94, 95, 96, 97, 98, 99
    WHR = 4
    F = 112; T = 144; AF = 208; TMP = 112; P = 128; D = 240
    A(f'v_and_b32 v{vn}, 15, v1')
    A(f'v_lshrrev_b32 v{vg}, 4, v1')
    A('s_lshl_b32 s43, s11, 4')
    A('s_add_u32 s43, s43, 1')
    A(f'v_and_b32 v5, 7, v{vn}')
    A('v_add_u32 v5, s43, v5')
    A('v_cvt_f32_u32 v5, v5')
    A(f'v_and_b32 v6, 8, v{vn}')
    A(f'v_cvt_f32_u32 v7, v{vg}')
    A('v_cvt_f32_u32 v8, v6')
    A('v_mul_f32 v9, 0x3d000000, v5')
    A('v_mul_f32 v8, 0x3d000000, v8')
    A('v_mul_f32 v12, 0x41000000, v7')
    A('v_fmac_f32 v8, v12, v9')
    def m1(hh8, th, dl):
        for j in range(8):
            if j: A(f'v_add_f32 v{th}, v{th}, v{dl}')
            A(f'v_cos_f32 v{10 + (j & 1)}, v{th}')
            if j & 1: A(f'v_cvt_pk_bf16_f32 v{M1 + 4*hh8 + j//2}, v10, v11')
    A('v_mov_b32 v13, v8')
    m1(0, 8, 9)
    A('s_waitcnt lgkmcnt(0)')
    def touch():
        if opt.get('pf', 1):
            srd(A, 24, 8, 0, 1024 * 7168)
            A('v_lshlrev_b32 v15, 7, v0')
            nl = 224 if opt.get('pf', 1) == 1 else 112
            A(f'v_cmp_gt_u32 vcc, {nl}, v0')
            A('v_cndmask_b32 v15, 4.0, v15, vcc')
            if nl == 224: A(f's_mul_i32 s15, s2, {nl*128}')
            else:
                A('s_lshr_b32 s15, s2, 4')
                A('s_lshl_b32 s15, s15, 5')
                A('s_and_b32 s17, s2, 15')
                A('s_add_u32 s15, s15, s17')
                A('s_mul_i32 s15, s15, 14336')
            A('buffer_load_dword v89, v15, s[24:27], s15 offen')
    srd(A, 20, 6, 0, 2048 * 2048)
    if opt.get('pfpos') == 0: touch()
    for r in range(4):
        A(f's_add_u32 m0, s14, {r*XP}')
        A('s_nop 0')
        A(f'buffer_load_dwordx4 v14, s[20:23], s13 offen {xmod} lds')
        A(f'buffer_load_dwordx4 v14, s[20:23], s13 offen offset:1024 {xmod} lds')
        if r < 3: A(f's_add_u32 s13, s13, {128*2048}')
    if opt.get('pfpos', 1) == 1: touch()
    A('v_add_f32 v9, 0x3e800000, v9')
    m1(1, 13, 9)
    A(f'v_lshlrev_b32 v9, 28, v6')
    A(f'v_lshrrev_b32 v10, 16, v9')
    A(f'v_or_b32 v{SGN}, v9, v10')
    A('v_mul_f32 v12, 4.0, v7')
    for hh8 in range(2):
        if hh8: A('v_add_f32 v5, 0x41000000, v5')
        A('v_mul_f32 v13, 0x3a800000, v5')
        A('v_xor_b32 v15, v9, v13')
        A('v_mul_f32 v8, v12, v15')
        for hh in range(2):
            for r in range(4):
                o = 8*hh8 + 4*hh + r
                if r: A('v_add_f32 v8, v8, v15')
                elif hh: A('v_fmac_f32 v8, 0x41500000, v15')
                A(f'v_cos_f32 v{TC+o}, v8')
                A(f'v_sin_f32 v{TS+o}, v8')
    A('s_cmp_eq_u32 s11, 1')
    A('s_cselect_b32 s44, 0xc2000000, 0')
    A(f'v_mov_b32 v{MU}, s44')
    A(f'v_cmp_eq_u32 vcc, 7, v{vn}')
    A(f'v_cndmask_b32 v{MU}, 0, v{MU}, vcc')
    A(f'v_cvt_f32_u32 v5, v{vn}')
    A('v_mul_f32 v13, 0x3d000000, v5')
    A('v_mul_f32 v8, v12, v13')
    for j in range(8):
        if j == 4: A('v_fmac_f32 v8, 0x41500000, v13')
        elif j: A('v_add_f32 v8, v8, v13')
        A(f'v_cos_f32 v{10+(j&1)}, v8')
        A(f'v_sin_f32 v{14+(j&1)}, v8')
        if j & 1:
            A(f'v_cvt_pk_bf16_f32 v{M2C+j//2}, v10, v11')
            A(f'v_cvt_pk_bf16_f32 v{M2S+j//2}, v14, v15')
    for i in range(4): A(f'v_mov_b32 v{ONES+i}, 0x3f803f80')
    A(f'v_lshrrev_b32 v10, 2, v{vn}')
    A(f'v_and_b32 v11, 3, v{vn}')
    A(f'v_mul_u32_u24 v12, {XP}, v10')
    A(f'v_mul_u32_u24 v13, 528, v11')
    A('v_add3_u32 v12, v12, v13, s14')
    A(f'v_and_b32 v13, 1, v{vg}')
    A('v_lshl_add_u32 v12, v13, 8, v12')
    A(f'v_lshrrev_b32 v15, 1, v{vg}')
    A(f'v_lshl_add_u32 v{vSt}, v15, 7, v12')
    for e in range(1, 4): A(f'v_xor_b32 v{vSt+e}, {16*e}, v{vSt}')
    A('v_lshlrev_b32 v12, 6, v10')
    A(f'v_lshl_add_u32 v12, v{vg}, 9, v12')
    A('v_lshl_add_u32 v12, v11, 3, v12')
    A('v_lshl_add_u32 v12, v13, 5, v12')
    A(f'v_add_u32 v{vTr0}, s14, v12')
    A(f'v_xor_b32 v{vTr1}, 32, v{vTr0}')
    A(f's_mul_i32 s15, s12, {4*ZP}')
    A(f's_add_u32 s15, s15, {ZB}')
    A(f'v_mul_u32_u24 v{vZw}, {NP}, v{vn}')
    A(f'v_lshl_add_u32 v{vZw}, v{vg}, 4, v{vZw}')
    A(f'v_add_u32 v{vZw}, s15, v{vZw}')
    A(f'v_mul_u32_u24 v{vX0}, {XP}, v10')
    A(f'v_add_u32 v{vX0}, s14, v{vX0}')
    A(f'v_mul_u32_u24 v{vZ0}, {ZP}, v10')
    A('v_and_b32 v12, 1, v1')
    A(f'v_mul_u32_u24 v12, {8*NP}, v12')
    A(f'v_add3_u32 v{vZ0}, v{vZ0}, v12, s15')
    A('v_cmp_eq_u32 s[46:47], 1, v11')
    A('v_cmp_eq_u32 s[48:49], 2, v11')
    A('v_cmp_eq_u32 s[50:51], 3, v11')
    A(f'v_cmp_eq_u32 s[52:53], v10, v{vg}')
    A('s_cmp_eq_u32 s11, 0')
    A('s_cselect_b32 s16, 8192, 0')
    srd(A, 32, 4, MX_OFF, 's16')
    srd(A, 28, 4, U_OFF, 4 * MB)
    srd(A, 36, 4, E_OFF, 131072)
    A('s_lshr_b32 s65, s12, 1')
    A('s_cmp_lg_u32 s65, 0')
    A('s_cselect_b32 s44, 0.25, 0')
    A(f'v_lshlrev_b32 v8, 9, v{vg}')
    A('v_add_u32 v8, s10, v8')
    A('v_cvt_f32_u32 v8, v8')
    A('v_mul_f32 v13, 0x3a000000, v5')
    A('v_fma_f32 v8, v8, v13, s44')
    A('v_mul_f32 v13, 0x3d800000, v5')
    for j in range(4):
        if j: A('v_add_f32 v8, v8, v13')
        A(f'v_cos_f32 v{SA1+j}, v8')
        A(f'v_sin_f32 v{SA2+j}, v8')
    A(f'v_lshl_add_u32 v12, v{vg}, 2, v10')
    A(f'v_mul_u32_u24 v12, {ZP}, v12')
    A(f'v_add_u32 v{vZx}, {ZB + 64}, v12')
    A('v_lshl_add_u32 v12, v11, 3, v12')
    A('s_and_b32 s15, s12, 1')
    A('s_lshl_b32 s16, s15, 5')
    A(f's_add_u32 s16, s16, {ZB}')
    A(f'v_add_u32 v{vZr}, s16, v12')
    A(f'v_lshlrev_b32 v{vU}, 20, v{vg}')
    A('s_lshl_b32 s16, s15, 2')
    A('s_add_u32 s16, s16, s10')
    A('v_add_u32 v12, s16, v10')
    A('v_and_b32 v12, 7, v12')
    A(f'v_lshl_add_u32 v{vU}, v12, 7, v{vU}')
    A(f'v_lshl_add_u32 v{vU}, v11, 4, v{vU}')
    A('s_lshl_b32 s66, s65, 17')
    A('s_lshl_b32 s16, s10, 10')
    A('s_add_u32 s66, s66, s16')
    A('s_lshl_b32 s16, s11, 6')
    A('s_add_u32 s66, s66, s16')
    A('s_lshl_b32 s16, s15, 2')
    A('s_add_u32 s16, s16, 1')
    A('v_add_u32 v12, s16, v10')
    A(f'v_lshlrev_b32 v{vE0}, 14, v{vg}')
    A(f'v_lshl_add_u32 v{vE}, v12, 9, v{vE0}')
    A('v_cmp_gt_u32 vcc, 8, v12')
    A('s_and_b64 vcc, vcc, s[50:51]')
    A(f'v_cndmask_b32 v{vE}, 4.0, v{vE}, vcc')
    A(f'v_lshl_add_u32 v{vE0}, v{vn}, 16, v{vE0}')
    A('s_lshl_b32 s16, s15, 1')
    A(f'v_or_b32 v12, s16, v{vn}')
    A('v_cmp_gt_u32 vcc, 2, v12')
    A(f'v_cndmask_b32 v{vE0}, 4.0, v{vE0}, vcc')
    A('s_lshl_b32 s67, s65, 7')
    A('s_add_u32 s67, s67, s10')
    A('s_lshl_b32 s67, s67, 1')
    srd(A, 24, 4, 38 * MB, 2048 * 128)
    A('v_lshlrev_b32 v12, 7, v0')
    A('v_cmp_gt_u32 vcc, 8, v0')
    A('v_cndmask_b32 v12, 4.0, v12, vcc')
    A('s_mul_i32 s15, s2, 1024')
    A('v_mov_b32 v13, 0')
    A(f'buffer_store_dword v13, v12, s[24:27], s15 offen {sm2}')
    npf = 2
    srd(A, 24, 60, 0, 3584 * 2048)
    A('v_lshrrev_b32 v12, 4, v0')
    A('s_mul_i32 s15, s2, 14')
    A('v_add_u32 v12, s15, v12')
    A('v_and_b32 v13, 8, v0')
    A('v_and_b32 v14, 7, v0')
    A('v_lshlrev_b32 v14, 4, v14')
    A('v_lshl_add_u32 v14, v12, 11, v14')
    A('v_add_u32 v12, v12, v13')
    A('v_and_b32 v12, 15, v12')
    A('v_and_b32 v15, 7, v12')
    A('v_cmp_eq_u32 vcc, 3, v15')
    A('v_xor_b32 v15, 4, v12')
    A('v_cndmask_b32 v12, v12, v15, vcc')
    A('v_lshl_add_u32 v104, v12, 7, v14')
    A('v_lshl_add_u32 v14, v13, 7, v14')
    A('v_cmp_gt_u32 vcc, 224, v0')
    A('v_cndmask_b32 v14, 4.0, v14, vcc')
    A('v_cndmask_b32 v104, 4.0, v104, vcc')
    A('buffer_load_dwordx4 v[100:103], v14, s[24:27], 0 offen offset:384')
    if opt.get('wh', 0):
        srd(A, 24, 8, 0, 1024 * 7168)
        A('s_lshl_b32 s15, s2, 2')
        A('s_add_u32 s15, s15, s12')
        A('v_lshrrev_b32 v12, 3, v1')
        A('v_and_b32 v13, 7, v1')
        A('v_mul_u32_u24 v14, 896, v12')
        A('v_lshl_add_u32 v14, v13, 4, v14')
        A('s_mul_i32 s16, s15, 7168')
        A('buffer_load_dwordx4 v[72+0:72+0], v14, s[24:27], s16 offen offset:384'.replace('v[72+0:72+0]', f'v[{WHR}:{WHR+3}]'))
        A('v_lshrrev_b32 v14, 2, v1')
        A('v_lshlrev_b32 v14, 16, v14')
        A('v_and_b32 v13, 3, v1')
        A('v_lshl_add_u32 v105, v13, 4, v14')
        A('s_lshl_b32 s62, s15, 6')
        npf += 1
    if opt.get('tlb'):
        sh = opt['tlb']
        A('s_load_dwordx2 s[68:69], s[0:1], %d' % KA['out'])
        A('s_lshr_b32 s15, s2, 3')
        A(f's_lshl_b32 s15, s15, {sh + 2}')
        A('s_lshl_b32 s16, s12, %d' % sh)
        A('s_add_u32 s15, s15, s16')
        srd(A, 24, 4, 0, 72 * MB)
        A(f'v_lshlrev_b32 v12, {sh + 7}, v1')
        A('v_cmp_gt_u32 vcc, %d, v1' % max(1, (72 * MB >> (sh + 7)) + 1))
        A('v_cndmask_b32 v12, 4.0, v12, vcc')
        A('buffer_load_dword v87, v12, s[24:27], s15 offen')
        A('s_waitcnt lgkmcnt(0)')
        srd(A, 24, 68, 0, 4 * MB)
        A('buffer_load_dword v87, v12, s[24:27], s15 offen')
        npf += 2
    if opt.get('pfpos', 1) == 1: npf += 1
    if opt.get('pfpos', 1) == 2 and not opt.get('pfend') and opt.get('pf', 1):
        touch(); npf += 1
        if opt.get('pw2'):
            srd(A, 24, 60, 0, opt['pw2'] * 2048)
            if opt['pw2'] < 3584: A(f's_mul_i32 s15, s2, {opt["pw2"] * 8}'); A(f'v_cmp_gt_u32 vcc, {opt["pw2"] // 16}, v0'); A('v_cndmask_b32 v12, 4.0, v12, vcc')
            A('buffer_load_dword v88, v12, s[24:27], s15 offen')
            npf += 1
    st(1)
    A(f's_waitcnt vmcnt({npf})')
    st(2)
    E = AutoLgkm(A)
    def mf(d, a, b, z): return f'v_mfma_f32_16x16x32_bf16 {vr(d,4)}, {vr(a,4)}, {vr(b,4)}, {"0" if z else vr(d,4)}'
    def s1rd(r): return [f'ds_read_b64_tr_b16 {vr(AF+8*r+4*hh+2*rd,2)}, v{vTr0 if hh == 0 else vTr1} offset:{r*XP + 256*rd}' for hh in range(2) for rd in range(2)]
    frd = [f'ds_read_b128 {vr(F+4*i,4)}, v{vSt + (i&3)} offset:{64*(i>>2)}' for i in range(8)] + [f'ds_read_u16 v{vX0}, v{vX0}']
    def s1(r): return [mf(T + 16*r + 8*hh8 + 4*hh, AF + 8*r + 4*hh, M1 + 4*hh8, True) for hh8 in range(2) for hh in range(2)]
    for x in s1rd(0) + s1rd(1) + s1rd(2) + frd[:3]: E(x)
    for x in weave(s1(0) + s1(1), s1rd(3) + frd[3:], per=2) + s1(2) + s1(3): E(x)
    D0 = AF + 16; D1 = D
    def tw(r, hh8, tm, p):
        t = T + 16*r + 8*hh8; d = (D1 if hh8 else D0) + 4*r
        return ([f'v_pk_mul_f32 {vr(tm+k,2)}, {vr(t+k,2)}, {vr(TC+8*hh8+k,2)}' for k in range(0, 8, 2)] if opt.get('pk', 1) else
                [f'v_mul_f32 v{tm+k}, v{t+k}, v{TC+8*hh8+k}' for k in range(8)]) + \
               [f'v_fmac_f32_dpp v{tm+k}, v{t+k}, v{TS+8*hh8+k} row_ror:8 row_mask:0xf bank_mask:0xf' for k in range(8)] + \
               [f'v_cvt_pk_bf16_f32 v{p+k}, v{tm+2*k}, v{tm+2*k+1}' for k in range(4)] + [mf(d, M2C, p, True)] + \
               [f'v_xor_b32_dpp v{p+4+k}, v{p+k}, v{SGN} row_ror:8 row_mask:0xf bank_mask:0xf' for k in range(4)], mf(d, M2S, p + 4, False)
    stm = [x for i in range(8) for x in (mf(SA, ONES, F+4*i, i == 0), mf(GA, F+4*i, F+4*i, i == 0))]
    t0 = []
    for r in range(4):
        a, b = tw(r, 0, AF, AF + 8)
        t0 += a[:6] + ([pb] if r else []) + a[6:]
        pb = b
    mean = [f'v_add_f32_dpp v11, v{SA}, v{SA} quad_perm:[1,0,3,2] row_mask:0xf bank_mask:0xf', f'v_cndmask_b32 v10, v{GA}, v{GA+1}, s[46:47]',
            f'v_lshlrev_b32 v{vX0}, 16, v{vX0}', 'v_add_f32_dpp v11, v11, v11 quad_perm:[2,3,0,1] row_mask:0xf bank_mask:0xf',
            f'v_cndmask_b32 v10, v10, v{GA+2}, s[48:49]', 'v_mul_f32 v15, 0x3a800000, v11', f'v_cndmask_b32 v10, v10, v{GA+3}, s[50:51]'] + \
           [f'v_readlane_b32 s{56+r}, v15, {4*r}' for r in range(4)]
    for x in weave(stm, t0[:48], per=3) + weave(t0[48:], mean, start=6, per=1) + [pb]: E(x)
    class L(list):
        def __call__(self, t): self.append(t)
    sg = L()
    sg('v_add_f32_dpp v10, v10, v10 quad_perm:[1,0,3,2] row_mask:0xf bank_mask:0xf')
    sg('v_add_f32_dpp v10, v10, v10 quad_perm:[2,3,0,1] row_mask:0xf bank_mask:0xf')
    ln_finish(sg, 11, 10, 12, 13, 14, 45)
    sg('v_rcp_f32 v13, v13')
    sg(f'v_sub_f32 v{vX0}, v{vX0}, v12')
    sg('v_sub_f32 v14, v15, v12')
    sg('v_mul_f32 v14, 0x44800000, v14')
    sg(f'v_cvt_pk_bf16_f32 v{vX0}, v{vX0}, v14')
    sg(f'v_lshlrev_b32 v12, 9, v{vg}'); sg(f'v_lshlrev_b32 v10, 2, v{vg}'); sg('s_lshl_b32 s15, s12, 4'); sg(f's_add_u32 s15, s15, {RB}')
    sg('v_add_u32 v10, s15, v10')
    def fin(r):
        return [f'v_cvt_pk_bf16_f32 v{D0+4*r+k}, v{D0+4*r+k}, v{D1+4*r+k}' for k in range(4)] + [f'ds_write_b128 v{vZw}, {vr(D0+4*r,4)} offset:{r*ZP}']
    t1 = []
    for r in range(4):
        a, b = tw(r, 1, TMP, P + 8*(r & 1))
        pre = [f'v_mul_f32 v8, s{56+r}, v{MU}', 'v_mov_b32 v9, v8'] + ([f'v_pk_add_f32 {vr(T+16*r+8+k,2)}, {vr(T+16*r+8+k,2)}, v[8:9]' for k in range(0, 8, 2)] if opt.get('pk', 1)
              else [f'v_add_f32 v{T+16*r+8+k}, v{T+16*r+8+k}, v8' for k in range(8)])
        t1 += pre[:2] + ([pb] if r else []) + pre[2:] + a[:12] + (fin(r - 1) if r else []) + a[12:]
        pb = b
    for x in weave(t1[:2*len(sg)], list(sg), per=1)[:]: E(x)
    A('s_mov_b64 exec, s[52:53]')
    E('ds_write_b32 v10, v13')
    A(f'buffer_store_dword v15, v12, s[32:35], s63 offen {sm2}')
    A('s_mov_b64 exec, -1')
    x0 = ['v_mov_b32 v11, 0', 's_mov_b32 vcc_lo, 0x55555555', 's_mov_b32 vcc_hi, 0x55555555',
          f'v_cndmask_b32 v10, 0, v{vX0}, vcc', f'ds_write_b64 v{vZ0}, v[10:11] offset:64']
    for x in weave(t1[2*len(sg):], x0, per=1): E(x)
    E(pb)
    A(f'v_lshlrev_b32 v10, 4, v{vg}')
    A(f'v_add_u32 v10, {RB}, v10')
    for x in fin(3): E(x)
    st(3)
    A('s_waitcnt lgkmcnt(0)')
    A('s_barrier')
    st(8)
    RS = F; AM = F + 4; ZF = T; O = T + 36
    A(f'ds_read_b128 {vr(RS,4)}, v10')
    for tau in range(9):
        if tau == 7: A('s_waitcnt lgkmcnt(14)')
        for rd in range(2):
            if tau < 8: A(f'ds_read_b64_tr_b16 {vr(ZF + tau*4 + 2*rd, 2)}, v{vZr} offset:{(rd*8 + tau)*NP}')
            else: A(f'ds_read_b64_tr_b16 {vr(ZF + tau*4 + 2*rd, 2)}, v{vZx} offset:{rd*8*NP}')
    for j in range(0, 4, 2):
        A(f'v_pk_mul_f32 {vr(SA1+j,2)}, {vr(SA1+j,2)}, {vr(RS+j,2)}')
        A(f'v_pk_mul_f32 {vr(SA2+j,2)}, {vr(SA2+j,2)}, {vr(RS+j,2)}')
    for k in range(4): A(f'v_cvt_pk_bf16_f32 v{AM+k}, v{SA1+2*k}, v{SA1+2*k+1}')
    for tau in range(9):
        if tau % 2 == 0: A(f's_waitcnt lgkmcnt({max(14 - 2*tau, 0)})')
        mfma(A, O + 4*tau, AM, ZF + tau*4, '0')
    for r in range(4):
        b = P + 4*r
        for k in range(4): A(f'v_cvt_pk_bf16_f32 v{b+k}, v{O+8*k+r}, v{O+8*k+4+r}')
        A(f'buffer_store_dwordx4 {vr(b,4)}, v{vU}, s[28:31], s66 offen {smod}')
        if r < 3: A('s_add_u32 s66, s66, 0x40000')
    srd(A, 24, 4, WC_OFF, 3584 * 2048)
    A(f's_waitcnt vmcnt({npf + 3 - (1 if opt.get("pfpos", 1) == 1 else 0)})')
    A(f'buffer_store_dwordx4 v[100:103], v104, s[24:27], 0 offen {sm3}')
    if opt.get('wh', 0):
        srd(A, 24, 4, WH_OFF, MB)
        A(f's_waitcnt vmcnt({npf + 3})')
        A(f'buffer_store_dwordx4 v[{WHR}:{WHR+3}], v105, s[24:27], s62 offen {sm3}')
    A('s_cmp_eq_u32 s11, 0')
    A(f's_cbranch_scc1 {name}_c0')
    for r in range(4):
        A(f'buffer_store_short_d16_hi v{P+4*r+3}, v{vE}, s[36:39], s67 offen {sm2}')
        if r < 3: A('s_add_u32 s67, s67, 4096')
    A(f's_branch {name}_fin')
    A.label(f'{name}_c0')
    for r in range(4):
        A(f'v_cvt_pk_bf16_f32 v{O+32+r}, v{O+32+r}, v{O+32+r}')
        A(f'buffer_store_short v{O+32+r}, v{vE0}, s[36:39], s67 offen {sm2}')
        if r < 3: A('s_add_u32 s67, s67, 4096')
    A.label(f'{name}_fin')
    if opt.get('pfend'):
        touch()
        if opt['pfend'] == 2:
            srd(A, 24, 60, 0, 3584 * 2048)
            A('buffer_load_dword v88, v12, s[24:27], s15 offen')
    st(4)
    A('s_waitcnt vmcnt(0)') if opt.get('stamp') else None
    st(5); st(6, True)
    st.dump(9, 0, 108)
    A.label(f'{name}_end')
    A('s_endpgm')
    return dict(name=name, grid=256, block=256, lds=FA_LDS, vgpr=256)
```

```python
from common import *
from g1 import w_voffs, tr_bases

HS = 16384; WS = 28672; WB0 = 3 * HS
XB = 32768; EB = WB0 + 3 * WS
SLOT = 32768
SGB = EB + 1024
SYB = SGB + 512
R1, D1, R2W, D2 = 0, 64, 128, 384
STG = SYB
M_LDS = STG + 16384
FULL = 0x01010101
PX_OFF = 29 * MB
FL_OFF = 38 * MB
HS_OFF = 72 * MB
GS_OFF = 40 * MB; GST = 3072; GTT = 56 * GST
FL1, FL2, FL3, FL4, FL5 = 0, 32768, 65536, 196608, 229376
FL_SIZE = 2048 * 128

def spin(A, tag, srdn, soff, vflag, vaddr, scnt, depth=4, gap=2):
    A(f's_mov_b32 s{scnt}, 400000')
    ld = lambda k: A(f'buffer_load_dword v{vflag+k}, v{vaddr}, s[{srdn}:{srdn+3}], s{soff} offen sc1')
    for k in range(depth - 1):
        ld(k); A(f's_sleep {gap}')
    A.label(f'{tag}_spin')
    for k in range(depth):
        ld((k + depth - 1) % depth)
        A(f's_waitcnt vmcnt({depth - 1})')
        A(f'v_cmp_ne_u32 vcc, 1, v{vflag+k}')
        A(f's_cbranch_vccz {tag}_go')
        A(f's_sleep {gap}')
    A(f's_sub_u32 s{scnt}, s{scnt}, 1')
    A(f's_cbranch_scc0 {tag}_spin')
    A.label(f'{tag}_go')

def skipmap(A, dst, src, odd, t):
    if odd:
        A(f'v_cmp_lt_u32 vcc, 255, v{src}')
        A(f'v_add_u32 v{dst}, {1024 + 128}, v{src}')
    else:
        A(f'v_cmp_lt_u32 vcc, 383, v{src}')
        if dst != src: A(f'v_mov_b32 v{dst}, v{src}')
    A(f'v_add_u32 v{t}, 128, v{dst}')
    A(f'v_cndmask_b32 v{dst}, v{dst}, v{t}, vcc')

def g1_decode(A):
    A('s_and_b32 s8, s2, 7')
    A('s_lshr_b32 s9, s2, 3')
    A('s_and_b32 s10, s8, 1')
    A('s_lshl_b32 s10, s10, 3')
    A('s_and_b32 s11, s9, 7')
    A('s_add_u32 s10, s10, s11')
    A('s_lshr_b32 s11, s8, 1')
    A('s_lshl_b32 s11, s11, 2')
    A('s_lshr_b32 s9, s9, 3')
    A('s_add_u32 s11, s11, s9')

def g2_decode(A):
    A('s_mov_b32 s9, s11')
    A('s_lshr_b32 s8, s9, 3')
    A('s_and_b32 s11, s9, 7')
    A('s_lshl_b32 s11, s11, 1')
    A('s_add_u32 s11, s11, s8')

def fb_compute(A, name, st, opt):
    A('s_and_b32 s13, s2, 7')
    A('s_lshr_b32 s14, s2, 3')
    A('s_sub_u32 s15, 16, s13')
    A('s_cmp_eq_u32 s13, 0')
    A('s_cselect_b32 s15, 8, s15')
    A('s_bitcmp1_b32 s14, 0')
    A('s_cselect_b32 s10, s15, s13')
    A('s_lshr_b32 s11, s14, 1')
    A('s_sub_u32 s16, 16, s10')
    A('s_and_b32 s16, s16, 15')
    A('s_sub_u32 s17, 15, s11')
    A('s_lshr_b32 s19, s11, 3')
    A('s_cmp_lg_u32 s19, 0')
    A('s_cselect_b32 s16, s16, s10')
    A('s_cselect_b32 s17, s17, s11')
    vn, vg = 2, 3
    A(f'v_and_b32 v{vn}, 15, v1')
    A(f'v_lshrrev_b32 v{vg}, 4, v1')
    A('v_lshrrev_b32 v6, 3, v1')
    A(f'v_and_b32 v7, 1, v{vg}')
    A('v_lshrrev_b32 v8, 1, v1')
    A('v_and_b32 v8, 3, v8')
    A('v_xor_b32 v7, v7, v8')
    A('v_lshlrev_b32 v7, 5, v7')
    A('v_lshl_add_u32 v4, v6, 10, v7')
    A('v_and_b32 v7, 1, v1')
    A('v_lshl_add_u32 v4, v7, 4, v4')
    A('v_add_u32 v7, s17, v6')
    A('v_and_b32 v7, 7, v7')
    A('v_lshl_add_u32 v4, v7, 7, v4')
    A('v_xor_b32 v5, 64, v4')
    A(f'v_add_u32 v5, {8192 - 1024}, v5')
    A('s_lshl_b32 s14, s16, 2')
    A('s_add_u32 s14, s14, s12')
    A('s_lshl_b32 s14, s14, 16')
    A('s_lshl_b32 s18, s12, 13')
    A(f'v_xor_b32 v8, v{vg}, v1')
    A('v_and_b32 v8, 7, v8')
    A('v_lshlrev_b32 v8, 4, v8')
    A('v_lshl_add_u32 v6, v6, 15, v8')
    A('v_xor_b32 v7, 64, v6')
    A(f'v_add_u32 v7, {8*32768 - 1024}, v7')
    A('s_lshl_b32 s61, s12, 19')
    A('s_lshl_b32 s15, s10, 11')
    A('s_add_u32 s61, s61, s15')
    A('s_lshl_b32 s15, s11, 7')
    A('s_add_u32 s61, s61, s15')
    A('s_lshl_b32 s62, s12, 12')
    A(f's_add_u32 s62, s62, {XB}')
    A('s_lshl_b32 s63, s10, 3')
    A('s_add_u32 s63, s63, s11')
    A('s_lshl_b32 s63, s63, 9')
    A('s_sub_u32 s63, s63, 512')
    A('s_cmp_eq_u32 s11, 0')
    A('s_cselect_b32 s15, 65536, 0')
    A('s_add_u32 s63, s63, s15')
    A('s_cmp_lt_u32 s11, 8')
    A('s_cselect_b32 s63, s63, 0x40000000')
    A('s_lshl_b32 s15, s16, 12')
    A('v_mov_b32 v9, s15')
    A('v_mov_b32 v10, s63')
    A('v_cmp_gt_u32 vcc, 32, v1')
    A('v_cndmask_b32 v9, v10, v9, vcc')
    A('v_lshl_add_u32 v9, v1, 4, v9')
    A(f'v_lshlrev_b32 v10, 6, v{vn}')
    A('s_lshl_b32 s15, s12, 8')
    A('s_add_u32 s15, s15, s10')
    A('s_lshl_b32 s15, s15, 2')
    A('s_waitcnt lgkmcnt(0)')
    srd(A, 20, 4, U_OFF, 4 * MB)
    srd(A, 28, 4, E_OFF, 131072)
    for h in range(4):
        A(f's_add_u32 m0, s18, {h*2048}')
        A('s_nop 0')
        A(f'buffer_load_dwordx4 v4, s[20:23], s14 offen lds')
        A(f'buffer_load_dwordx4 v5, s[20:23], s14 offen offset:1024 lds')
        if h < 3: A('s_add_u32 s14, s14, 16384')
    A(f's_mov_b32 m0, {EB}')
    srd(A, 24, 6, 0, 2048 * 2048)
    A('buffer_load_dwordx4 v9, s[28:31], 0 offen lds')
    FR = [16, 48]; EF = 80; B = [112, 144]; ACC = [176, 192]; MA = [208, 212]; VT = 216; VX = 220; X = [224, 232]; VB = 240; MXV = [241, 242]; VH = 243; VE = 244
    srd(A, 40, 4, MX_OFF, 8192)
    for u in range(2):
        A(f's_add_u32 m0, s62, {u*2048}')
        if u: A(f's_add_u32 s61, s61, {4 << 19}')
        else: A('s_nop 0')
        A('buffer_load_dwordx4 v6, s[24:27], s61 offen lds')
        A('buffer_load_dwordx4 v7, s[24:27], s61 offen offset:1024 lds')
    A('s_add_u32 s14, s15, 4096')
    A(f'buffer_load_dword v{MXV[0]}, v10, s[40:43], s15 offen')
    A(f'buffer_load_dword v{MXV[1]}, v10, s[40:43], s14 offen')
    A('s_lshl_b32 s15, s12, 4')
    A(f'v_add_u32 v6, s15, v{vn}')
    A('s_cmp_lg_u32 s10, 0')
    A('s_cselect_b32 s15, -1, 0')
    A('v_sub_u32 v7, s15, v6')
    A('s_cmp_lg_u32 s19, 0')
    A('s_cselect_b64 vcc, -1, 0')
    A('v_cndmask_b32 v6, v6, v7, vcc')
    A('v_and_b32 v6, 127, v6')
    A('v_cvt_f32_u32 v7, v6')
    A('v_mul_f32 v7, 0x3c000000, v7')
    A(f'v_lshlrev_b32 v10, 3, v{vg}')
    A('v_cvt_f32_u32 v10, v10')
    A('v_mul_f32 v10, v10, v7')
    B0 = B[0]
    for j in range(8):
        if j: A('v_add_f32 v10, v10, v7')
        A(f'v_cos_f32 v{12+(j&1)}, v10')
        A(f'v_sin_f32 v{14+(j&1)}, v10')
        if j & 1:
            A(f'v_cvt_pk_bf16_f32 v{B0+j//2}, v12, v13')
            A(f'v_cvt_pk_bf16_f32 v{B0+16+j//2}, v14, v15')
    A('v_and_b32 v8, 1, v6')
    A('v_cmp_eq_u32 vcc, 1, v8')
    A('v_mul_u32_u24 v8, 0x8000, v8')
    A('v_lshl_or_b32 v8, v8, 16, v8')
    A('v_and_b32 v10, 2, v6')
    A('v_mul_u32_u24 v10, 0x4000, v10')
    A('v_lshl_or_b32 v10, v10, 16, v10')
    A('v_xor_b32 v11, v10, v8')
    for k in range(4):
        A(f'v_cndmask_b32 v12, v{B0+k}, v{B0+16+k}, vcc')
        A(f'v_cndmask_b32 v13, v{B0+16+k}, v{B0+k}, vcc')
        A(f'v_xor_b32 v{B0+4+k}, v11, v12')
        A(f'v_xor_b32 v{B0+20+k}, v10, v13')
    for k in range(8):
        A(f'v_xor_b32 v{B0+8+k}, v8, v{B0+k}')
        A(f'v_xor_b32 v{B0+24+k}, v8, v{B0+16+k}')
    A('s_brev_b32 s15, 1')
    for k in range(32): A(f'v_xor_b32 v{B[1]+k}, s15, v{B0+k}')
    A(f'v_lshrrev_b32 v10, 2, v{vn}')
    A(f'v_lshl_add_u32 v10, v{vg}, 3, v10')
    A(f'v_lshrrev_b32 v11, 3, v{vn}')
    A(f'v_and_b32 v12, 1, v{vg}')
    A('v_lshl_add_u32 v11, v12, 1, v11')
    A('v_lshlrev_b32 v11, 5, v11')
    A('v_lshl_add_u32 v10, v10, 7, v11')
    A(f'v_and_b32 v11, 3, v{vn}')
    A(f'v_lshl_add_u32 v{VT}, v11, 3, v10')
    A('s_mul_i32 s15, s19, 96')
    A(f'v_xor_b32 v{VT}, s15, v{VT}')
    for i in range(1, 4): A(f'v_xor_b32 v{VT+i}, {(2*(i&1) + (i>>1))*32}, v{VT}')
    A(f'v_and_b32 v11, 1, v{vn}')
    A('v_lshlrev_b32 v11, 9, v11')
    A(f'v_lshl_add_u32 v11, v{vg}, 4, v11')
    A(f'v_add_u32 v{VE}, {EB}, v11')
    A('s_mul_i32 s15, s19, 3')
    A(f'v_xor_b32 v10, s15, v{vg}')
    A('v_lshrrev_b32 v11, 1, v10')
    A(f'v_lshrrev_b32 v12, 1, v{vn}')
    A('v_xor_b32 v11, v11, v12')
    A('v_lshlrev_b32 v11, 4, v11')
    A(f'v_lshl_add_u32 v11, v{vn}, 7, v11')
    A('v_and_b32 v12, 1, v10')
    A('v_lshl_add_u32 v11, v12, 3, v11')
    A(f'v_add_u32 v{VX}, s62, v11')
    for i in range(1, 4): A(f'v_xor_b32 v{VX+i}, {32*i}, v{VX}')
    A(f'v_lshl_add_u32 v10, v10, 4, v{vn}')
    A(f'v_lshlrev_b32 v{VH}, 4, v10')
    A('v_add_u32 v10, 48, v1')
    A('v_and_b32 v10, 63, v10')
    A(f'v_lshlrev_b32 v{VB}, 2, v10')
    A(f'v_cmp_eq_u32 s[46:47], 0, v{vg}')
    srd(A, 52, 4, HS_OFF, 8 * MB)
    skipmap(A, VH, VH, 0, 10)
    A('s_cmp_eq_u32 s11, 0')
    A('s_cselect_b32 s15, 8192, 0')
    srd(A, 32, 4, MU_OFF, 's15')
    srd(A, 36, 4, FL_OFF, FL_SIZE)
    A('s_lshl_b32 s13, s10, 3')
    A('s_add_u32 s13, s13, s12')
    st(1)
    A('s_waitcnt vmcnt(6)')
    A('s_barrier')
    st(2)
    def frag(i, p): return FR[i & 1] + 4 * p
    def rd(h):
        i = h >> 1
        return [f'ds_read_b64_tr_b16 {vr(frag(i,p)+2*r2,2)}, v{VT+i} offset:{(32*p+4*r2)*128}' for p in range(4*(h & 1), 4*(h & 1) + 4) for r2 in range(2)]
    def mf(d, a, b, z): return f'v_mfma_f32_16x16x32_bf16 {vr(d,4)}, {vr(a,4)}, {vr(b,4)}, {"0" if z else vr(d,4)}'
    NEG = [EF, EF + 4]
    def half(h):
        out = [mf(ACC[u] + 4*(h >> 1), frag(h >> 1, p), B[u] + 4*p, p == 0) for p in range(4*(h & 1), 4*(h & 1) + 4) for u in range(2)]
        if h in (2, 4, 6): out[:2] = [out[u][:-1] + vr(NEG[u], 4) for u in range(2)]
        return out
    ONE = 4; S = [5, 7]; Q = [6, 8]; TM = EF; OUT = EF + 16
    E = AutoLgkm(A)
    for x in rd(0) + [f'ds_read_b128 {vr(EF+4*p,4)}, v{VE} offset:{64*p}' for p in range(8)]: E(x)
    for x in weave(half(0), rd(1), per=2): E(x)
    for x in weave([mf(MA[u], EF + 4*p, B[u] + 4*p, p == 0) for p in range(8) for u in range(2)], rd(2), per=1): E(x)
    misc = [f'v_mov_b32 v{ONE}, 0x3f803f80'] + [f'v_mov_b32 v{r}, 0' for r in S + Q] + [f'v_lshlrev_b32 v9, 2, v{vn}', 's_lshl_b32 s60, s13, 6',
            's_lshl_b32 s14, s13, 16', 's_lshl_b32 s15, s11, 12', 's_add_u32 s14, s14, s15', 's_add_u32 s15, s14, 0x40000']
    misc += ['s_mov_b32 s62, 0x3f80', 's_mov_b32 s63, 0x3f800000']
    mu = ['s_waitcnt vmcnt(0)'] + [f'v_add_f32 v{MA[u]}, v{MA[u]}, v{MXV[u]}' for u in range(2)] + \
         [f'v_sub_f32 v{NEG[u]+k}, 0, v{MA[u]}' for u in range(2) for k in range(4)]
    for x in weave(half(1), rd(3)[:6] + mu + rd(3)[6:], per=3): E(x)
    xr = [f'ds_read_b64 {vr(X[u]+2*k2,2)}, v{VX+k2} offset:{u*2048}' for k2 in range(4) for u in range(2)]
    for x in weave(half(2), rd(4) + xr + misc[:6], per=3): E(x)
    t0 = [f'v_sub_f32 v{MA[u]+1}, v{MA[u]+1}, v{MA[u]}' for u in range(2)] + [f'v_sub_f32 v{ACC[u]+k}, v{ACC[u]+k}, v{MA[u]}' for u in range(2) for k in range(4)]
    for x in weave(half(3), rd(5) + misc[6:] + t0, per=3): E(x)
    def epi(V, pr):
        out = []
        for u in range(2):
            out += [f'v_dot2_f32_bf16 v{V[u][i][r]}, v{X[u]+2*i+(r>>1)}, s{62+(r&1)}, v{V[u][i][r]}' for i in (2*pr, 2*pr + 1) for r in range(4)]
        for u in range(2):
            o = OUT + 8*u + 4*pr
            out += [f'v_cvt_pk_bf16_f32 v{o+2*i2+q}, v{V[u][2*pr+i2][2*q]}, v{V[u][2*pr+i2][2*q+1]}' for i2 in range(2) for q in range(2)]
            out.append(f'buffer_store_dwordx4 {vr(o,4)}, v{VH}, s[52:55], s{14+u} offen offset:{pr*2048} sc1')
        return out
    def dots(pr): return [x for u in range(2) for k in range(4) for x in
                          (f'v_dot2_f32_bf16 v{S[u]}, v{OUT+8*u+4*pr+k}, v{ONE}, v{S[u]}', f'v_dot2_f32_bf16 v{Q[u]}, v{OUT+8*u+4*pr+k}, v{OUT+8*u+4*pr+k}, v{Q[u]}')]
    RP = 10; SH = 248
    A('s_cmp_lg_u32 s19, 0')
    A(f's_cbranch_scc1 {name}_up')
    pend0 = list(E.pend)
    for lower in (1, 0):
        if not lower:
            A.label(f'{name}_up'); A('s_nop 7'); E.pend = list(pend0)
        if lower:
            V = [[[SH+4*u+i, ACC[u]+4*i, ACC[u]+4*i+1, ACC[u]+4*i+2] for i in range(4)] for u in range(2)]
            def rot(i): return [f'ds_bpermute_b32 v{RP+3*u+(i%3)}, v{VB}, v{ACC[u]+4*i+3}' for u in range(2)]
            def sel(i): return [f'v_cndmask_b32 v{SH+4*u+i}, v{RP+3*u+(i%3)}, v{RP+3*u+((i-1)%3) if i else MA[u]+1}, s[46:47]' for u in range(2)]
        else:
            V = [[[ACC[u]+4*i+3-r for r in range(4)] for i in range(4)] for u in range(2)]
            rot = sel = lambda i: []
        for x in weave(half(4), rot(0) + rd(6) + rot(1), per=2): E(x)
        e0 = sel(0) + sel(1) + epi(V, 0)
        for x in weave(half(5), rd(7) + e0[:16], per=3): E(x)
        for x in weave(half(6), e0[16:] + rot(2), per=3) + weave(half(7), dots(0) + sel(2), per=3): E(x)
        e1 = epi(V, 1)
        hst = [x for x in e1 if x.startswith('buffer_store')]
        e1 = [x for x in e1 if x not in hst]
        for x in rot(3) + e1[:4] + e1[8:12] + sel(3) + e1[4:8] + e1[12:]: E(x)
        E.drain()
        if lower: A(f's_branch {name}_join')
    A.label(f'{name}_join')
    st(3)
    A('s_waitcnt vmcnt(0)')
    A('s_barrier')
    st(4)
    for x in dots(1)[:6] + hst + dots(1)[6:]: A(x)
    A(f'buffer_store_dword v{MA[0]}, v9, s[32:35], s60 offen sc1')
    A(f'buffer_store_dword v{MA[1]}, v9, s[32:35], s60 offen offset:256 sc1')
    A(f'v_lshlrev_b32 v40, 3, v{vn}')
    A(f'v_lshrrev_b32 v41, 1, v{vg}')
    A('v_lshl_add_u32 v40, v41, 2, v40')
    A('s_lshl_b32 s14, s10, 4')
    A('s_add_u32 s14, s14, s11')
    A('s_lshl_b32 s14, s14, 3')
    A('s_add_u32 s14, s14, s12')
    A('s_lshl_b32 s14, s14, 7')
    srd(A, 28, 4, ST_OFF, 2048 * 128)
    for u in range(2): A(f'v_permlane32_swap_b32 v{S[u]}, v{Q[u]}')
    for u in range(2): A(f'v_add_f32 v{S[u]}, v{S[u]}, v{Q[u]}')
    for u in range(2): A(f'v_mov_b32 v{Q[u]}, v{S[u]}')
    for u in range(2): A(f'v_permlane16_swap_b32 v{S[u]}, v{Q[u]}')
    for u in range(2): A(f'v_add_f32 v{S[u]}, v{S[u]}, v{Q[u]}')
    for u in range(2): A(f'buffer_store_dword v{S[u]}, v40, s[28:31], s14 offen offset:{512*u} sc1')
    return []

def drained(A):
    A('s_waitcnt vmcnt(0)')
    A('s_barrier')

def g1_compute(A, name, st, opt, later):
    WB = [8, 36]; ACC = 64; HB = [176, 192]
    vAh, cAh, VW, CW = 2, 3, 208, 216
    g1_decode(A)
    A('s_and_b32 s13, s12, 1')
    A('s_lshr_b32 s14, s12, 1')
    A('s_lshl_b32 s15, s13, 13')
    A(f'v_lshlrev_b32 v{vAh}, 4, v1')
    A(f'v_add_u32 v{vAh}, s15, v{vAh}')
    tr_bases(A, 44, 45, 1, 48)
    A('s_cmp_lg_u32 s14, 0')
    A('s_cselect_b64 vcc, -1, 0')
    def gaddr(dst, lam):
        if lam < 12:
            A(f'v_xor_b32 v{dst}, {32*(lam&3)}, v44')
            A(f'v_add_u32 v{dst}, {WB0 + (lam>>2)*1024}, v{dst}')
        else:
            A(f'v_xor_b32 v{dst}, {32*(lam&1)}, v45')
            A(f'v_add_u32 v{dst}, {WB0 + 6144}, v{dst}')
    for k, (l0, l1) in enumerate(zip([4, 5, 2, 3, 0, 1, 6], [8, 9, 10, 11, 12, 13, 7])):
        gaddr(46, l0); gaddr(47, l1)
        A(f'v_cndmask_b32 v{VW+k}, v46, v47, vcc')
    A(f'v_mov_b32 v{cAh}, v{vAh}')
    for k in range(7): A(f'v_mov_b32 v{CW+k}, v{VW+k}')
    for i in range(112): A(f'v_mov_b32 v{ACC+i}, 0')
    A('s_lshl_b32 s15, s10, 1')
    A('s_add_u32 s15, s15, s13')
    gs = opt.get('gskip', 1); TT = GTT if gs else 112 * 1024
    A('s_mul_i32 s15, s15, %d' % (4 * TT))
    A('s_add_u32 s15, s15, %d' % (GS_OFF if gs else G_OFF))
    srd(A, 20, 4, 's15', 4 * TT)
    A('s_mov_b32 s17, 0')
    A('s_mov_b32 s19, 0')
    A('s_mov_b32 s18, 0')
    BV = 240; H2 = 224
    A('s_load_dwordx2 s[24:25], s[0:1], %d' % KA['b1'])
    A('s_and_b32 s52, s11, 1')
    A('s_mul_i32 s15, s11, 7')
    A('s_add_u32 s16, s15, s52')
    A('s_add_u32 s56, s16, 3')
    A('s_cmp_lg_u32 s14, 0')
    A('s_cselect_b32 s53, 4, 2')
    A('s_cselect_b32 s54, 5, 1')
    A('s_cselect_b32 s55, 6, 0')
    for r in (53, 54, 55): A(f's_add_u32 s{r}, s{r}, s16')
    A('s_and_b32 s52, s52, s14')
    A('s_cmp_lg_u32 s52, 0')
    A('s_cselect_b32 s55, s15, s55')
    for r in (53, 54, 55, 56): A(f's_lshl_b32 s{r+4}, s{r}, 6')
    A('s_lshl_b32 s15, s14, 5')
    A('s_add_u32 s60, s60, s15')
    A('v_and_b32 v44, 15, v1')
    A('v_lshlrev_b32 v44, 1, v44')
    A('s_mov_b32 s26, 7168')
    A('s_mov_b32 s27, 0x20000')
    A('s_waitcnt lgkmcnt(0)')
    A('s_barrier')
    A('s_waitcnt vmcnt(0)')
    for i in range(7):
        so, off = 57 + i // 2, (32*(i&1) if i < 6 else 0)
        later.append(f'buffer_load_ushort v{BV+i}, v44, s[24:27], s{so} offen offset:{off}')
    def reads(s, buf):
        r = []
        for j in range(4):
            r.append(f'ds_read_b128 {vr(HB[buf]+4*j,4)}, v{cAh} offset:{(2*j+s)*1024}')
        for i in range(7):
            for rd in range(2):
                r.append(f'ds_read_b64_tr_b16 {vr(WB[buf]+4*i+2*rd,2)}, v{CW+i} offset:{(2*s + rd) * 7168}')
        return r
    E = AutoLgkm(A)
    RP_ = opt.get('rper', 1); R0 = opt.get('r0', 0)
    def step(buf, rds, tail=None, nowait=False):
        k = 0; n = 0
        for i in range(7):
            for jj in range(4):
                j = jj if (i & 1) == 0 else 3 - jj
                E(f'v_mfma_f32_16x16x32_bf16 {vr(ACC + (i*4+j)*4,4)}, {vr(WB[buf] + 4*i,4)}, {vr(HB[buf] + 4*j,4)}, {vr(ACC + (i*4+j)*4,4)}')
                span = opt.get('spanA', 17) if buf else opt.get('spanB', 17)
                while k < len(rds) and round(k * span / 17) <= n: E(rds[k]); k += 1
                n += 1
                if tail and n - 20 in tail:
                    for t in tail[n - 20]: A(t)
        if not nowait: E.drain()
    A('s_barrier')
    st(8)
    for r in reads(0, 0): A(r)
    for x in later: A(x)
    A('s_waitcnt lgkmcnt(0)')
    if opt.get('itime'): A(f'v_mov_b32 v7, {STG}')
    A(f's_branch {name}_g1mid')
    tailB = {-4: [f's_add_u32 s17, s17, {HS}', f's_add_u32 s19, s19, {WS}'], -3: [f's_cmp_eq_u32 s17, {3*HS}', 's_cselect_b32 s17, 0, s17'],
             -2: ['s_cselect_b32 s19, 0, s19', 's_add_u32 s18, s18, 1'], -1: [f'v_add_u32 v{cAh}, s17, v{vAh}', 's_cmp_le_u32 s18, 14']}
    for k in range(7): tailB[k] = [f'v_add_u32 v{CW+k}, s19, v{VW+k}']
    if opt.get('spanB', 17) > 17:
        sp = opt['spanB']
        tailB = {-19: tailB[-4], -18: tailB[-3], -17: tailB[-2], 8: ['s_cmp_le_u32 s18, 14']}
        tailB.setdefault(round(3 * sp / 17) + 2 - 20, []).append(f'v_add_u32 v{cAh}, s17, v{vAh}')
        for k in range(7): tailB.setdefault(min(round((5 + 2*k) * sp / 17) + 2, 28) - 20, []).insert(0, f'v_add_u32 v{CW+k}, s19, v{VW+k}')
    A('.p2align 6')
    A.label(f'{name}_g1loop')
    if opt.get('itime'): A('s_memtime s[92:93]')
    A('s_barrier')
    if opt.get('itime'):
        A('s_memtime s[94:95]')
        tailB[7] = ['v_mov_b32 v4, s92', 'v_mov_b32 v5, s94', f'v_lshl_add_u32 v6, s18, 3, v7', 'ds_write_b64 v6, v[4:5]']
    step(1, reads(0, 0), nowait=opt.get('lazy', 1))
    A.label(f'{name}_g1mid')
    step(0, reads(1, 1), tailB)
    A(f's_cbranch_scc1 {name}_g1loop')
    if opt.get('itime'):
        A('s_memtime s[92:93]')
        A('v_lshlrev_b32 v6, 3, v1')
        A(f'v_add_u32 v4, {STG}, v6')
        A('ds_read_b64 v[4:5], v4')
        A(f's_add_u32 s96, s4, {TS_OFF + 2*65536}')
        A('s_addc_u32 s97, s5, 0')
        A('s_mov_b32 s98, 65536')
        A('s_mov_b32 s99, 0x20000')
        A('s_lshl_b32 s69, s2, 8')
        A('s_waitcnt lgkmcnt(0)')
        A('v_cmp_gt_u32 vcc, 16, v1')
        A('v_cndmask_b32 v6, 4.0, v6, vcc')
        A('buffer_store_dwordx2 v[4:5], v6, s[96:99], s69 offen')
        A('v_mov_b32 v4, s92')
        A('v_mov_b32 v6, 128')
        A('buffer_store_dword v4, v6, s[96:99], s69 offen')
    if opt.get('ttime'): st(3)
    A('s_barrier')
    if opt.get('ttime'): st(4)
    gs = opt.get('gskip', 1)
    order = [6, 0, 1, 2, 3, 4, 5]
    SG = 4
    def wset(k): return WB[0] + 8 * (k % 3)
    def wrd(k):
        i = order[k]
        return [f'ds_read_b64_tr_b16 {vr(wset(k)+4*s_+2*rd,2)}, v{CW+i} offset:{(2*s_ + rd) * 7168}' for s_ in range(2) for rd in range(2)]
    BT = 32
    ST4 = [208, 212, 248, 252]
    A('v_and_b32 v2, 15, v1')
    A('s_lshl_b32 s15, s13, 8')
    A(f's_add_u32 s15, s15, {SGB}')
    A('v_lshl_add_u32 v2, v2, 2, s15')
    pre = [f'ds_read_b128 {vr(HB[0]+4*j,4)}, v{cAh} offset:{(2*j)*1024}' for j in range(4)] + wrd(0) + \
          [f'ds_read_b128 {vr(H2+4*j,4)}, v{cAh} offset:{(2*j+1)*1024}' for j in range(4)] + \
          [f'ds_read_b32 v{ST4[j]}, v2 offset:{64*j}' for j in range(4)] + wrd(1)
    setup = []
    for j in range(4):
        for k in range(1, 4): setup.append(f'v_mov_b32 v{ST4[j]+k}, 0')
    for k in range(1, 4): setup.append(f'v_mov_b32 v{BT+k}, 0')
    addr = []
    for r in (53, 54, 55, 56):
        addr += [f's_lshr_b32 s{r}, s{r}, 1', f's_mul_i32 s{r}, s{r}, {GST}'] if gs else [f's_lshl_b32 s{r}, s{r}, 10']
    class L(list):
        def __call__(self, t): self.append(t)
    va = L()
    va('v_and_b32 v4, 15, v1'); va('v_lshlrev_b32 v4, 4, v4'); va('v_and_b32 v6, 16, v1'); va('v_and_b32 v7, 32, v1')
    va('v_lshl_add_u32 v5, v7, 3, v4'); va('v_lshl_add_u32 v4, v6, 5, v5'); va('s_lshl_b32 s19, s14, 9')
    va('v_add_u32 v5, s19, v5')
    if gs: skipmap(va, 5, 5, 1, 2)
    va(f'v_mul_u32_u24 v6, {TT // 16}, v6'); va('v_add_u32 v5, v5, v6')
    if gs:
        skipmap(va, 6, 4, 1, 2); skipmap(va, 4, 4, 0, 2)
        va('s_cmp_lg_u32 s52, 0'); va('s_cselect_b64 vcc, -1, 0'); va('v_cndmask_b32 v7, v4, v6, vcc')
    else:
        va('v_mov_b32 v6, v4'); va('v_mov_b32 v7, v4')
    def acc(i, j): return ACC + (i*4+j)*4
    def epi_tile(i, j, d):
        a = acc(i, j)
        return [f'v_mul_f32 v{a+r}, v{a+r}, abs(v{a+r})' for r in range(4)] + \
               [f'v_cvt_pk_bf16_f32 v{d}, v{a}, v{a+1}', f'v_cvt_pk_bf16_f32 v{d+1}, v{a+2}, v{a+3}'] + \
               [f'v_pk_max_i16 v{d}, v{d}, 0', f'v_pk_max_i16 v{d+1}, v{d+1}, 0']
    late = []
    def epi(i):
        out = []
        for j0 in (0, 2):
            js = (j0, j0 + 1)
            if i == 6: dst = {j: acc(i, j0) + 2 * (j & 1) for j in js}
            elif i % 2 == 0: dst = {j: acc(i, j) for j in js}
            else: dst = {j: acc(i - 1, j) + 2 for j in js}
            t = [epi_tile(i, j, dst[j]) for j in js]
            out += t[0][:4] + t[1][:4] + t[0][4:6] + t[1][4:6] + t[0][6:] + t[1][6:]
            if i == 6:
                d = acc(i, j0)
                out += [f'v_permlane16_swap_b32 v{d}, v{d+2}', f'v_permlane16_swap_b32 v{d+1}, v{d+3}',
                        f'buffer_store_dwordx4 {vr(d,4)}, v5, s[20:23], s56 offen sc1']
                if j0 == 0: out.append(f's_add_u32 s56, s56, {2*TT}')
            elif i % 2:
                pp = i // 2
                for j in js:
                    d = acc(i - 1, j)
                    out += [f'v_permlane16_swap_b32 v{d}, v{d+2}', f'v_permlane16_swap_b32 v{d+1}, v{d+3}']
                for j in js:
                    o2 = out if pp < 2 else late
                    o2.append(f'buffer_store_dwordx4 {vr(acc(i - 1, j),4)}, v{[4, 6, 7][pp]}, s[20:23], s{53+pp} offen sc1')
                    if j < 3: o2.append(f's_add_u32 s{53+pp}, s{53+pp}, {TT}')
        return out
    for k, i in enumerate(order):
        mf = [(acc(i, j), WB[1] + 4*i, HB[1] + 4*j) for j in range(4)] + [(acc(i, j), wset(k), HB[0] + 4*j) for j in range(4)] + \
             [(acc(i, j), wset(k) + 4, H2 + 4*j) for j in range(4)] + [(acc(i, j), BT, ST4[j]) for j in range(4)]
        if k == 0:
            fill = pre + addr + list(va) + setup
        else:
            fill = (wrd(k + 1) if k + 1 < 7 else []) + epi(order[k - 1])
        per = -(-len(fill) // 15)
        fi = 0
        for n, (d, a, b) in enumerate(mf):
            if k == 0 and n == 4:
                for x in fill[fi:len(pre)]: A(x)
                fi = max(fi, len(pre))
                A('s_waitcnt lgkmcnt(14)')
            if k == 0 and n == 8: A('s_waitcnt lgkmcnt(8)')
            if k == 0 and n == 12:
                for x in fill[fi:]: A(x)
                fi = len(fill)
                A('s_waitcnt vmcnt(0) lgkmcnt(4)')
                A('v_cmp_gt_u32 vcc, 16, v1')
                for j in range(4): A(f'v_cndmask_b32 v{ST4[j]}, 0, v{ST4[j]}, vcc')
            if k > 0 and n == 4: A(f's_waitcnt lgkmcnt({4 if k + 1 < 7 else 0})')
            if n == 10 and k > 0 or (k == 0 and n == 12): A(f'v_mov_b32 v{BT}, v{BV+i}')
            mfma(A, d, a, b)
            if k == 6 and n == 4:
                A('s_barrier')
                st(9)
            for _ in range(per):
                if fi < len(fill): A(fill[fi]); fi += 1
        for x in fill[fi:]: A(x)
    for x in epi(5): A(x)
    return late

def g2_compute(A, name, st, opt, late):
    NS = 4; N2 = opt.get('n2', 8); N1 = (56 - N2) // 2
    SIG = opt.get('sig', 2); POLL = opt.get('poll', 4)
    AO = 8; AX = 40; HB = [72, 88]; WO = [104, 112]; WX = [120, 128]; EP = 136; PR = 224
    vAh, vAw, cAh, cAw, vAw1, cAw1, vL16, vFl = 176, 177, 178, 179, 180, 181, 182, 183
    A('s_load_dwordx2 s[50:51], s[0:1], %d' % KA['b2'])
    A('s_load_dwordx2 s[48:49], s[0:1], %d' % KA['out'])
    if opt.get('sapos', 1) == 0:
        A('s_waitcnt vmcnt(0)')
        A('s_barrier')
        st(10)
    A('v_and_b32 v8, 15, v1')
    A('v_lshlrev_b32 v8, 4, v8')
    A('v_and_b32 v10, 16, v1')
    A('v_and_b32 v11, 32, v1')
    A('v_lshl_add_u32 v9, v11, 3, v8')
    A('v_lshl_add_u32 v8, v10, 5, v9')
    A('v_lshlrev_b32 v10, 7, v10')
    A('s_lshl_b32 s15, s13, 13')
    A('s_lshl_b32 s16, s14, 9')
    A('s_add_u32 s16, s16, s15')
    A(f's_add_u32 s16, s16, {3*SLOT + 1024}')
    A('v_add3_u32 v9, v9, v10, s16')
    A('v_add_u32 v8, s15, v8')
    A('s_cmp_lg_u32 s14, 0')
    for k, (b0, b1) in enumerate(((3*SLOT, 0), (2*SLOT + 1024, 1024), (2*SLOT, 0x40000))):
        A(f's_mov_b32 s16, {b0}')
        A(f's_cselect_b32 s16, {b1}, s16')
        A(f'v_add_u32 v{10+k}, s16, v8')
    wr_ = [f'ds_write_b128 v{10+k}, {vr(64+32*k+4*j,4)} offset:{2048*j}' for k in (2, 1, 0) for j in range(4)]
    wr_ += [f'ds_write_b128 v9, {vr(160+4*j,4)} offset:{2048*j}' for j in (0, 2)]
    ad = [f'v_lshlrev_b32 v{vL16}, 4, v1', f'v_add_u32 v{vAh}, s15, v{vL16}', 'v_lshrrev_b32 v184, 2, v1', 'v_and_b32 v184, 3, v184',
          'v_lshrrev_b32 v185, 4, v1', 'v_lshl_add_u32 v184, v185, 3, v184', 'v_lshrrev_b32 v186, 3, v1', 'v_and_b32 v186, 3, v186',
          'v_lshlrev_b32 v186, 5, v186', 'v_lshl_add_u32 v184, v184, 7, v186', 'v_and_b32 v186, 3, v1', f'v_lshl_add_u32 v{vAw}, v186, 3, v184',
          's_lshl_b32 s16, s14, 6', f'v_xor_b32 v{vAw}, s16, v{vAw}', f'v_add_u32 v{vAw}, 16384, v{vAw}', f'v_xor_b32 v{vAw1}, 32, v{vAw}',
          f'v_add_u32 v{cAh}, {2*SLOT}, v{vAh}', f'v_add_u32 v{cAw}, {2*SLOT}, v{vAw}', f'v_add_u32 v{cAw1}, {2*SLOT}, v{vAw1}', f'v_mov_b32 v{vFl}, 0']
    ad += [f'v_mov_b32 v{192+k}, v{128+k}' for k in range(16)]
    for x in weave(wr_[:8], ad[:16], per=2): A(x)
    if opt.get('sapos', 1) == 1:
        A('s_waitcnt vmcnt(0)')
        A('s_barrier')
        st(10)
    for x in weave(wr_[8:], ad[16:], per=3): A(x)
    for k in range(4): A(f's_mov_b32 s{64+k}, s{20+k}' if k < 3 else 's_mov_b32 s67, 0x20000')
    A('s_mov_b32 s68, s55')
    A(f's_mov_b32 s17, {2*SLOT}')
    TT = GTT if opt.get('gskip', 1) else 112 * 1024
    def late_store(k): return [f'buffer_store_dwordx4 {vr(192+4*k,4)}, v7, s[64:67], s68 offen sc1', f's_add_u32 s68, s68, {TT}']
    def setup():
        g2_decode(A)
        A('s_lshl_b32 s15, s10, 1')
        A('s_add_u32 s15, s15, s13')
        A('s_lshl_b32 s16, s15, 18')
        A(f's_add_u32 s16, s16, {HS_OFF}')
        A('s_lshl_b32 s19, s15, 8')
        A(f's_add_u32 s19, s19, {MU_OFF}')
        A('s_lshl_b32 s54, s2, 2')
        A('s_add_u32 s54, s54, s12')
        A('s_xor_b32 s55, s54, 16')
        A('s_lshl_b32 s56, s54, 12')
        A('s_lshl_b32 s57, s55, 12')
        A('s_lshl_b32 s54, s54, 7')
        A('s_lshl_b32 s55, s55, 7')
        A(f's_add_u32 s54, s54, {FL3}')
        A(f's_add_u32 s55, s55, {FL3}')
        srd(A, 20, 4, 's16', 256 * 1024)
        srd(A, 44, 4, 's19', 256)
        A(f's_add_u32 s19, s19, {R2_OFF - MU_OFF}')
        srd(A, 24, 4, 's19', 256)
        srd(A, 28, 50, 0, 2048)
        srd(A, 32, 48, 0, 2048 * 2048)
        srd(A, 40, 4, PX_OFF, 4 * MB)
    A('s_waitcnt lgkmcnt(0)')
    def reads(s, buf, full):
        r = []
        for i in range(2):
            for rd in range(2):
                r.append(f'ds_read_b64_tr_b16 {vr(WO[buf]+4*i+2*rd,2)}, v{cAw1 if i else cAw} offset:{4096*s + 512*rd}')
        for j in range(4):
            r.append(f'ds_read_b128 {vr(HB[buf]+4*j,4)}, v{cAh} offset:{(2*j+s)*1024}')
        if full:
            for i in range(2):
                for rd in range(2):
                    r.append(f'ds_read_b64_tr_b16 {vr(WX[buf]+4*i+2*rd,2)}, v{cAw1 if i else cAw} offset:{8192 + 4096*s + 512*rd}')
        return r
    ADV = [[f's_add_u32 s17, s17, {SLOT}', f's_cmp_eq_u32 s17, {NS*SLOT}'], ['s_cselect_b32 s17, 0, s17', f'v_add_u32 v{cAh}, s17, v{vAh}'],
           [f'v_add_u32 v{cAw}, s17, v{vAw}'], [f'v_add_u32 v{cAw1}, s17, v{vAw1}']]
    def step(buf, full, rds, tail=(), xfirst=False, zero=False):
        seq = []
        order = ([(AX, WX)] if full else []) + [(AO, WO)] if xfirst else [(AO, WO)] + ([(AX, WX)] if full else [])
        for acc, W in order:
            for i in range(2):
                for jj in range(4):
                    j = jj if i == 0 else 3 - jj
                    seq.append((acc + (i*4+j)*4, W[buf] + 4*i, HB[buf] + 4*j))
        per = 1 if len(rds) + len(tail) <= len(seq) else 2
        fill = [[x] for x in rds]
        if per == 2: fill = [sum(fill[k:k+2], []) for k in range(0, len(fill), 2)]
        fill += list(tail)
        for n, (d, a, b) in enumerate(seq):
            mfma(A, d, a, b, '0' if zero else None)
            if n < len(fill):
                for x in fill[n]: A(x)
        for f in fill[len(seq):]:
            for x in f: A(x)
        A('s_waitcnt lgkmcnt(0)')
    A('s_barrier')
    st(11)
    for r in reads(0, 0, True): A(r)
    setup()
    A('s_lshl_b32 s16, s11, 1')
    A('s_add_u32 s16, s16, s14')
    A('s_lshl_b32 s19, s16, 11')
    skipmap(A, PR + 2, vL16, 0, PR + 3)
    for j in range(4):
        A(f'buffer_load_dwordx4 {vr(EP+4*j,4)}, v{PR+2}, s[20:23], s19 offen sc1')
        if j < 3: A('s_add_u32 s19, s19, 65536')
    A(f'v_and_b32 v{PR}, 15, v1')
    A(f'v_lshlrev_b32 v{PR}, 2, v{PR}')
    for j in range(4):
        A(f'buffer_load_dword v{EP+16+j}, v{PR}, s[24:27], 0 offen offset:{64*j} sc1')
        A(f'buffer_load_dword v{EP+24+j}, v{PR}, s[44:47], 0 offen offset:{64*j} sc1')
    A(f'v_lshrrev_b32 v{PR+1}, 4, v1')
    A(f'v_lshlrev_b32 v{PR+1}, 3, v{PR+1}')
    A('s_lshl_b32 s19, s16, 6')
    A(f'buffer_load_dwordx2 {vr(EP+20,2)}, v{PR+1}, s[28:31], s19 offen')
    A(f'buffer_load_dwordx2 {vr(EP+22,2)}, v{PR+1}, s[28:31], s19 offen offset:32')
    A('s_waitcnt lgkmcnt(0)')
    L0 = opt.get('l0', 0)
    step(0, True, reads(1, 1, True), ADV[:3] + [ADV[3] + (late_store(0) if L0 == 0 else [])], zero=True)
    for k in range(1, L0 + 4):
        if k >= 3 or not opt.get('nb12', 0): A('s_barrier')
        step(1, True, reads(0, 0, True), [late_store(k - L0)] if k >= L0 else [])
        step(0, True, reads(1, 1, True), ADV)
    A(f's_mov_b32 s18, {L0 + 4}')
    A('.p2align 6')
    A.label(f'{name}_g2loop')
    A('s_barrier')
    step(1, True, reads(0, 0, True), [['s_waitcnt vmcnt(0)']])
    step(0, True, reads(1, 1, True), ADV[:3] + [ADV[3] + ['s_add_u32 s18, s18, 1', f's_cmp_lt_u32 s18, {N1}']])
    A(f's_cbranch_scc1 {name}_g2loop')
    A('s_mov_b32 s59, 0')
    A('s_mov_b32 s58, 400000')
    def check(tag, sp):
        A('s_cmp_lg_u32 s59, 0')
        A(f's_cbranch_scc1 {name}_done{tag}')
        A.label(f'{name}_poll{tag}')
        A('s_waitcnt vmcnt(0)')
        A(f'v_readfirstlane_b32 s59, v{PR+16}')
        A('s_cmp_eq_u32 s59, 1')
        A(f's_cbranch_scc1 {name}_got{tag}')
        A('s_mov_b32 s59, 0')
        if sp:
            A('s_sub_u32 s58, s58, 1')
            A(f's_cbranch_scc1 {name}_got{tag}')
            A('s_sleep 1')
        A(f'buffer_load_dword v{PR+16}, v{vFl}, s[36:39], s55 offen sc1')
        A(f's_branch {name}_poll{tag}' if sp else f's_branch {name}_done{tag}')
        A.label(f'{name}_got{tag}')
        for k in range(4):
            A(f'buffer_load_dwordx4 {vr(PR+4*k,4)}, v{vL16}, s[40:43], s57 offen offset:{k*1024} sc1')
        A.label(f'{name}_done{tag}')
    B = 184; C = 192
    pre = {1: ['v_and_b32 v6, 15, v1', 'v_lshrrev_b32 v7, 4, v1', 'v_and_b32 v2, 1, v7', 'v_lshrrev_b32 v7, 1, v7', 'v_lshl_add_u32 v7, v2, 1, v7',
               'v_lshrrev_b32 v2, 1, v6', 'v_xor_b32 v7, v7, v2', 'v_and_b32 v7, 3, v7', 'v_lshl_add_u32 v7, v6, 2, v7', 's_lshl_b32 s15, s12, 12',
               f's_add_u32 s15, s15, {STG}', 'v_lshl_add_u32 v4, v7, 4, s15', 'v_lshrrev_b32 v6, 2, v1', 'v_lshrrev_b32 v7, 3, v1', 'v_xor_b32 v7, v7, v1',
               'v_and_b32 v7, 3, v7', 'v_lshl_add_u32 v5, v1, 4, s15', 'v_lshlrev_b32 v6, 15, v6', 'v_lshl_add_u32 v6, v7, 4, v6', 's_lshl_b32 s19, s10, 11', 's_lshl_b32 s15, s13, 21', 's_add_u32 s19, s19, s15',
               's_lshl_b32 s16, s16, 6', 's_add_u32 s19, s19, s16', 's_mov_b32 s60, 0x3f80', 's_mov_b32 s61, 0x3f800000']}
    for i in range(2):
        for q in range(2):
            pre[1] += [f'v_lshlrev_b32 v{B+4*i+2*q}, 16, v{EP+20+2*i+q}', f'v_and_b32 v{B+4*i+2*q+1}, 0xffff0000, v{EP+20+2*i+q}']
    for j in range(4):
        l = pre.setdefault(2 + j, [])
        for i in range(2):
            c = C + (i*4+j)*4
            for q in range(2):
                l += [f'v_lshlrev_b32 v{c+2*q}, 16, v{EP+4*j+2*i+q}', f'v_and_b32 v{c+2*q+1}, 0xffff0000, v{EP+4*j+2*i+q}']
            l += [f'v_pk_add_f32 {vr(c+2*q,2)}, {vr(c+2*q,2)}, {vr(B+4*i+2*q,2)}' for q in range(2)]
            l += [f'v_add_f32 v{c+r}, v{c+r}, v{EP+24+j}' for r in range(4)]
    assert N2 >= 6
    for it in range(N2):
        A('s_barrier')
        if it == 0:
            step(1, True, reads(0, 0, False), xfirst=True)
            for k in range(4):
                for c in range(4*k, 4*k+4): A(f'v_cvt_pk_bf16_f32 v{AX+c}, v{AX+2*c}, v{AX+2*c+1}')
                A(f'buffer_store_dwordx4 {vr(AX+4*k,4)}, v{vL16}, s[40:43], s56 offen offset:{k*1024} sc1')
        else:
            if it == SIG:
                A('s_waitcnt vmcnt(0)')
                A(f'v_mov_b32 v{PR}, 1')
                A(f'buffer_store_dword v{PR}, v{vFl}, s[36:39], s54 offen sc1')
            if it == POLL:
                A(f'buffer_load_dword v{PR+16}, v{vFl}, s[36:39], s55 offen sc1')
            if it > POLL: check(it, False)
            step(1, False, reads(0, 0, False))
            for x in pre.get(it, []): A(x)
        step(0, False, reads(1, 1, False), ADV if it < N2 - 1 else ())
    check('L', True)
    step(1, False, [])
    st(12)
    A('s_waitcnt vmcnt(0)')
    T = 40
    for j in range(4):
        d = T + 4*j
        for i in range(2):
            a = AO + (i*4+j)*4; pr = PR + (i*4+j)*2
            for r in range(4): A(f'v_dot2_f32_bf16 v{a+r}, v{pr+(r>>1)}, s{60+(r&1)}, v{a+r}')
        for i in range(2):
            a = AO + (i*4+j)*4
            for r in range(4): A(f'v_fma_f32 v{a+r}, v{a+r}, v{EP+16+j}, v{C+(i*4+j)*4+r}')
        for i in range(2):
            a = AO + (i*4+j)*4
            A(f'v_cvt_pk_bf16_f32 v{d+2*i}, v{a}, v{a+1}')
            A(f'v_cvt_pk_bf16_f32 v{d+2*i+1}, v{a+2}, v{a+3}')
        A(f'v_permlane16_swap_b32 v{d}, v{d+2}')
        A(f'v_permlane16_swap_b32 v{d+1}, v{d+3}')
        A(f'ds_write_b128 v4, {vr(d,4)} offset:{1024*j}')
        A(f'ds_read_b128 {vr(76+4*j,4)}, v5 offset:{1024*j}')
        if j:
            A('s_waitcnt lgkmcnt(2)')
            A(f'buffer_store_dwordx4 {vr(72+4*j,4)}, v6, s[32:35], s19 offen {opt.get("omod", "sc1")}')
            A(f's_add_u32 s19, s19, {16*16*2048}')
    A('s_waitcnt lgkmcnt(0)')
    A(f'buffer_store_dwordx4 {vr(88,4)}, v6, s[32:35], s19 offen {opt.get("omod", "sc1")}')

def loaders(A, name, opt):
    NS = 4; N2 = opt.get('n2', 8); N1 = (56 - N2) // 2; NT = N1 + N2
    hm = opt.get('hmod', 'sc1')
    lst0 = Stamper(A, opt.get('stamp') == 1, 1)
    class LS:
        def __call__(self, i, real=False, ph=2):
            if i in (1, 2, 3, 4) and ph != opt.get('lph', 2): return
            lst0(i, real)
        def dump(self, *a): lst0.dump(*a)
    lst = LS()
    A('s_load_dwordx4 s[64:67], s[0:1], %d' % KA['w1'])
    A('s_load_dwordx4 s[48:51], s[0:1], %d' % KA['w2'])
    A('s_sub_u32 s12, s12, 4')
    g1_decode(A)
    A('s_lshl_b32 s15, s12, 17')
    A('v_lshlrev_b32 v8, 4, v1')
    skipmap(A, 8, 8, 0, 9)
    A('v_add_u32 v8, s15, v8')
    A('v_add_u32 v9, 0x10000, v8')
    A('s_lshr_b32 s15, s12, 1')
    A('s_lshl_b32 s15, s15, 6')
    A('s_and_b32 s16, s12, 1')
    A('s_lshl_b32 s16, s16, 4')
    A('s_add_u32 s15, s15, s16')
    A('s_and_b32 s16, s11, 1')
    w_voffs(A, 10, 1, 15, 16, 4, range(6 if opt.get('wh', 0) else 7))
    A('s_lshl_b32 s43, s12, 12')
    A('s_mul_i32 s44, s12, 7168')
    A(f's_add_u32 s44, s44, {WB0}')
    A('s_mov_b32 s41, 0')
    A('s_mov_b32 s42, 0')
    A('s_lshl_b32 s15, s12, 8')
    A('v_and_b32 v3, 15, v1')
    A('v_lshlrev_b32 v3, 4, v3')
    A('v_lshrrev_b32 v4, 4, v1')
    A('v_lshl_add_u32 v3, v4, 10, v3')
    A('v_add_u32 v3, s15, v3')
    A('v_and_b32 v17, 15, v1')
    A('v_lshlrev_b32 v17, 7, v17')
    A('v_mov_b32 v20, 1')
    A('v_mov_b32 v21, 0')
    A('s_and_b32 s13, s2, 7')
    A('s_sub_u32 s15, 16, s13')
    A('s_cmp_eq_u32 s13, 0')
    A('s_cselect_b32 s15, 8, s15')
    A('s_bitcmp1_b32 s2, 3')
    A('s_cselect_b32 s13, s15, s13')
    A('s_lshl_b32 s13, s13, 4')
    A('s_lshr_b32 s15, s2, 4')
    A('s_add_u32 s13, s13, s15')
    A('s_lshl_b32 s13, s13, 7')
    A('s_lshl_b32 s14, s10, 4')
    A('s_add_u32 s14, s14, s11')
    A('s_lshl_b32 s14, s14, 7')
    A(f's_add_u32 s14, s14, {FL2}')
    A('s_lshl_b32 s15, s10, 19')
    A(f's_add_u32 s15, s15, {HS_OFF}')
    A('s_mul_i32 s16, s11, 448')
    A(f's_sub_u32 s19, {1024*7168}, s16')
    A('s_waitcnt lgkmcnt(0)')
    A('s_lshl_b32 s17, s12, 7')
    A('s_add_u32 s18, s17, s16')
    A('s_min_u32 s18, s18, 7040')
    A('s_load_dwordx2 s[62:63], s[66:67], s18 offset:60')
    A('s_and_b32 s18, s11, 3')
    A('s_lshl_b32 s18, s18, 9')
    A('s_add_u32 s18, s18, s17')
    A('s_load_dwordx2 s[62:63], s[50:51], s18 offset:60')
    srd(A, 20, 4, 's15', 512 * 1024)
    srd(A, 24, 64, 's16', 's19')
    if opt.get('wh', 0):
        A('s_lshl_b32 s15, s11, 16')
        A(f's_add_u32 s15, s15, {WH_OFF}')
        srd(A, 28, 4, 's15', 65536)
        A('s_mov_b32 s51, 0')
        A('s_lshr_b32 s15, s12, 1')
        A('s_lshl_b32 s15, s15, 12')
        A('s_and_b32 s17, s12, 1')
        A('s_lshl_b32 s17, s17, 10')
        A('s_add_u32 s15, s15, s17')
        A('v_lshrrev_b32 v16, 3, v1')
        A('v_and_b32 v16, 2, v16')
        A('v_xor_b32 v16, v16, v1')
        A('v_lshl_add_u32 v16, v16, 4, s15')
    A('s_lshl_b32 s15, s10, 14')
    A(f's_add_u32 s15, s15, {ST_OFF}')
    srd(A, 32, 4, 's15', 16384)
    A('s_lshl_b32 s15, s10, 9')
    A(f's_add_u32 s15, s15, {R2_OFF}')
    srd(A, 36, 4, 's15', 512)
    srd(A, 52, 4, FL_OFF, FL_SIZE)
    srd(A, 56, 48, 0, 3584 * 2048)
    A('s_lshl_b32 s60, s2, 2')
    A('s_add_u32 s60, s60, s12')
    NL2 = 5 if opt.get('sw1', 0) else 4
    A(f's_mul_i32 s60, s60, {128*NL2}')
    A(f's_mov_b32 s50, {(6 if NL2 == 5 else 8) * (NL2 << 17)}')
    hstep = [8192]
    A('v_add_u32 v26, 3072, v8')
    A('v_add_u32 v27, 3072, v9')
    def issue_h(lds):
        A(f's_add_u32 m0, {lds}, s43')
        A('s_nop 0')
        A(f'buffer_load_dwordx4 v8, s[20:23], s41 offen {hm} lds')
        A(f'buffer_load_dwordx4 v26, s[20:23], s41 offen offset:1024 {hm} lds')
        A('s_add_u32 m0, m0, 2048')
        A('s_nop 0')
        A(f'buffer_load_dwordx4 v9, s[20:23], s41 offen {hm} lds')
        A(f'buffer_load_dwordx4 v27, s[20:23], s41 offen offset:1024 {hm} lds')
        A(f's_add_u32 s41, s41, {hstep[0]}')
    def issue_w(lds, srdn=24, so='s42'):
        A(f's_add_u32 s45, {lds}, s44')
        for q in range(7):
            A(f's_add_u32 m0, s45, {q*1024}')
            A('s_nop 0')
            if q < 6 or not opt.get('wh', 0): A(f'buffer_load_dwordx4 v{10+q}, s[24:27], s42 offen lds')
            else: A('buffer_load_dwordx4 v16, s[28:31], s51 offen lds')
        A(f's_add_u32 s42, s42, {128*7168}')
        if opt.get('wh', 0): A('s_add_u32 s51, s51, 8192')
    def sp2():
        if opt.get('nosp2'): return
        for k in range(NL2): A(f's_buffer_load_dwordx2 s[62:63], s[56:59], s60 offset:{128*k + 60}')
        A('s_add_u32 s60, s60, s50')
        A(f's_sub_u32 s50, {NL2 << 17}, s50')
    sw1 = opt.get('sw1', 0)
    if sw1:
        srd(A, 68, 64, 32 * 7168, 992 * 7168)
        A('s_lshr_b32 s61, s2, 4')
        A('s_lshl_b32 s61, s61, 5')
        A('s_and_b32 s15, s2, 15')
        A('s_add_u32 s61, s61, s15')
        A('s_lshl_b32 s61, s61, 2')
        A('s_add_u32 s61, s61, s12')
        A('s_mul_i32 s61, s61, 3584')
    def sp1(b):
        if sw1:
            for k in range(7): A(f's_buffer_load_dwordx2 s[62:63], s[68:71], s61 offset:{896*b + 128*k + 60}')
    sp1(0)
    def only0(tag, ins):
        A('s_cmp_lg_u32 s12, 0')
        A(f's_cbranch_scc1 {tag}')
        for x in ins: A(x)
        A.label(tag)
    A('s_barrier')
    for k in range(3): issue_w(k * WS)
    if sw1: sp1(1)
    else: sp2(); sp2()
    A('s_lshl_b32 s15, s10, 11')
    lst(1, ph=1)
    A('s_barrier')
    lst(2, ph=1)
    only0(f'{name}_f1', ['buffer_store_dword v20, v21, s[52:55], s13 offen sc1'])
    sp1(2)
    A('s_cmp_lg_u32 s12, 0')
    A(f's_cbranch_scc1 {name}_fl1_go')
    spin(A, f'{name}_fl1', 52, 15, 36, 17, 47, opt.get('pdepth', 1), opt.get('pgap', 1))
    lst(3, ph=1)
    A('s_barrier')
    for k in range(3): issue_h(k * HS)
    sp1(3)
    A('s_mov_b32 s40, 0')
    A('s_mov_b32 s46, 0')
    A('s_waitcnt vmcnt(8)')
    lst(4, ph=1)
    A('s_barrier')
    sig5 = lambda: only0(f'{name}_no5', [f's_add_u32 s13, s13, {FL5}', 'buffer_store_dword v20, v21, s[52:55], s13 offen sc1'])
    sig5()
    A('s_waitcnt vmcnt(4)')
    A('s_barrier')
    def issue():
        issue_h('s40'); issue_w('s46')
        A(f's_add_u32 s40, s40, {HS}')
        A(f's_add_u32 s46, s46, {WS}')
        A(f's_cmp_eq_u32 s40, {3*HS}')
        A('s_cselect_b32 s40, 0, s40')
        A('s_cselect_b32 s46, 0, s46')
    def stats():
        for c in range(4):
            A(f'v_add_f32 v{40+c}, v{40+c}, v{44+c}')
            A(f'v_add_f32 v{48+c}, v{48+c}, v{52+c}')
        for c in range(4): A(f'v_add_f32 v{40+c}, v{40+c}, v{48+c}')
        A('v_permlane32_swap_b32 v40, v42')
        A('v_permlane32_swap_b32 v41, v43')
        A('v_add_f32 v40, v40, v42')
        A('v_add_f32 v41, v41, v43')
        A('v_mov_b32 v42, v40')
        A('v_mov_b32 v43, v41')
        A('v_permlane16_swap_b32 v40, v42')
        A('v_permlane16_swap_b32 v41, v43')
        A('v_add_f32 v40, v40, v42')
        A('v_add_f32 v41, v41, v43')
        ln_finish(A, 40, 41, 22, 23, 24, 47)
        A('v_lshrrev_b32 v28, 16, v23')
        A('v_and_b32 v4, 15, v1')
        A('v_lshrrev_b32 v5, 5, v1')
        A('v_lshl_add_u32 v2, v4, 1, v5')
        A('s_lshl_b32 s15, s12, 7')
        A(f's_add_u32 s15, s15, {SGB}')
        A('v_lshl_add_u32 v5, v2, 2, s15')
        A('ds_write_b32 v5, v28')
        A('v_mul_f32 v23, v23, v23')
        A('v_rcp_f32 v23, v23')
        A('s_lshl_b32 s15, s12, 7')
        A('v_lshlrev_b32 v5, 2, v2')
        A('buffer_store_dword v23, v5, s[36:39], s15 offen sc1')
    def loop1(tag, first, last):
        A(f's_mov_b32 s18, {first}')
        A.label(f'{name}_{tag}')
        issue()
        if last == 15:
            A('s_cmp_eq_u32 s18, 15')
            A(f's_cbranch_scc1 {name}_nosp')
            if NL2 == 4:
                A('s_cmp_eq_u32 s18, 13')
                A('s_cselect_b32 s50, 0x80000, s50')
        sp2()
        if last == 15: A.label(f'{name}_nosp')
        A('s_add_u32 s18, s18, 1')
        A(f's_cmp_le_u32 s18, {last}')
        A('s_waitcnt vmcnt(11)')
        A('s_barrier')
        A(f's_cbranch_scc1 {name}_{tag}')
    loop1('l1a', 3, 4)
    A(f's_add_u32 s15, s15, {FL5}')
    A('buffer_load_dword v36, v17, s[52:55], s15 offen sc1')
    issue(); sp2()
    A('s_waitcnt vmcnt(11)')
    A('s_barrier')
    A('v_cmp_ne_u32 vcc, 1, v36')
    A(f's_cbranch_vccz {name}_fl5_go')
    spin(A, f'{name}_fl5', 52, 15, 36, 17, 47, 1, 1)
    for k in range(4):
        A(f's_mov_b32 s47, {4096*k}')
        A(f'buffer_load_dwordx4 {vr(40+4*k,4)}, v3, s[32:35], s47 offen sc1')
    loop1('l1b', 6, 7)
    A('s_mov_b32 s41, 2048')
    A(f's_mov_b32 s42, {32*7168}')
    if opt.get('wh', 0): A('s_mov_b32 s51, 2048')
    issue(); sp2()
    stats()
    A('s_waitcnt vmcnt(12)')
    A('s_barrier')
    loop1('l1c', 9, 15)
    A('s_waitcnt vmcnt(0) lgkmcnt(0)')
    A('s_barrier')
    g2_decode(A)
    gs = opt.get('gskip', 1); TT = GTT if gs else 112 * 1024; hstep[0] = GST if gs else 2048
    A(f's_mul_i32 s15, s12, {2*TT}')
    A('v_lshlrev_b32 v8, 4, v1')
    if gs:
        skipmap(A, 26, 8, 1, 4)
        skipmap(A, 8, 8, 0, 4)
        A('v_subrev_u32 v26, 1024, v26')
    else:
        A('v_mov_b32 v26, v8')
    A('v_add_u32 v8, s15, v8')
    A('v_add_u32 v26, s15, v26')
    A(f'v_add_u32 v9, {TT}, v8')
    A(f'v_add_u32 v27, {TT}, v26')
    A('v_lshrrev_b32 v4, 3, v1')
    A('s_lshl_b32 s15, s12, 4')
    A('v_add_u32 v4, s15, v4')
    A('v_lshlrev_b32 v4, 11, v4')
    A('v_and_b32 v5, 1, v1')
    A('v_lshl_add_u32 v4, v5, 4, v4')
    A('v_lshrrev_b32 v5, 4, v1')
    A('v_and_b32 v5, 1, v5')
    A('v_lshrrev_b32 v6, 1, v1')
    A('v_and_b32 v6, 3, v6')
    A('v_xor_b32 v5, v5, v6')
    A('v_lshl_add_u32 v4, v5, 5, v4')
    A('v_xor_b32 v5, 64, v4')
    A(f'v_add_u32 v5, {16384 - 1024}, v5')
    A('v_lshrrev_b32 v6, 3, v1')
    A('v_cmp_eq_u32 vcc, 3, v6')
    A('v_cndmask_b32 v6, v6, 7, vcc')
    for hsel, (va, sr_) in enumerate(((10, 24), (12, 32))):
        if hsel == 0: A('s_mov_b32 s16, s11')
        else: A('s_xor_b32 s16, s11, 1')
        A('s_and_b32 s19, s16, 8')
        A('v_add_u32 v7, s19, v6')
        A('v_lshlrev_b32 v14, 7, v7')
        A('v_xor_b32 v15, 0x400, v14')
        A('s_and_b32 s15, s16, 7')
        A('s_lshl_b32 s16, s16, 7')
        A('v_mov_b32 v7, s16')
        A(f's_add_u32 s{sr_}, s4, {WC_OFF}')
        A(f's_addc_u32 s{sr_+1}, s5, 0')
        A(f's_cmp_eq_u32 s15, {3 if opt.get("wcopy", 1) else 9}')
        A('s_cselect_b64 vcc, -1, 0')
        A(f's_cselect_b32 s{sr_}, s{sr_}, s48')
        A(f's_cselect_b32 s{sr_+1}, s{sr_+1}, s49')
        A(f's_mov_b32 s{sr_+2}, {3584*2048}')
        A(f's_mov_b32 s{sr_+3}, 0x20000')
        A('v_cndmask_b32 v14, v7, v14, vcc')
        A('v_cndmask_b32 v15, v7, v15, vcc')
        A(f'v_add_u32 v{va}, v4, v14')
        A(f'v_add_u32 v{va+1}, v5, v15')
    A('s_lshl_b32 s44, s12, 11')
    A('s_add_u32 s44, s44, 16384')
    assert N1 == 24
    def mask(st_): return sum(1 << x for x in st_)
    def m64(r, m):
        A(f's_mov_b32 s{r}, {m & 0xffffffff}'); A(f's_mov_b32 s{r+1}, {m >> 32}')
    def sel64(r, m_true, m_false):
        for h in range(2):
            A(f's_mov_b32 s{r+h}, {(m_false >> (32*h)) & 0xffffffff}')
            A(f's_cselect_b32 s{r+h}, {(m_true >> (32*h)) & 0xffffffff}, s{r+h}')
    A('s_and_b32 s15, s9, 7')
    A('s_cmp_eq_u32 s15, 7')
    sel64(38, mask(range(0, 4)), mask(range(24, 28)))
    A('s_cmp_eq_u32 s15, 0')
    sel64(30, mask(range(52, 56)), mask(range(28, 32)))
    A('s_or_b64 s[38:39], s[38:39], s[30:31]')
    A('s_cmp_lg_u32 s8, 0')
    sel64(30, mask(range(28, 56)), mask(range(0, 28)))
    A('s_andn2_b64 s[30:31], s[30:31], s[38:39]')
    A('s_mul_i32 s15, s9, 7')
    A('s_add_u32 s15, s15, 1')
    A('s_lshr_b32 s36, s15, 1')
    A('s_lshl_b64 s[28:29], 7, s36')
    A('s_andn2_b64 s[30:31], s[30:31], s[28:29]')
    m64(64, mask([x for x in range(56) if x % 7 in (1, 2, 5, 6)]))
    A('s_and_b64 s[28:29], s[30:31], s[64:65]')
    A('s_andn2_b64 s[30:31], s[30:31], s[64:65]')
    NE = 15
    def nxt(r=28):
        A(f's_ff1_i32_b64 s61, s[{r}:{r+1}]')
        A(f's_bitset0_b64 s[{r}:{r+1}], s61')
    def seth(): A(f's_mul_i32 s41, s61, {hstep[0]}')
    def setw(): A('s_lshl_b32 s42, s61, 17')
    A(f's_mul_i32 s15, s10, {8*TT}')
    A(f's_add_u32 s15, s15, {GS_OFF if gs else G_OFF}')
    srd(A, 20, 4, 's15', 8 * TT)
    def issue_w2(lds, full):
        A(f's_add_u32 m0, {lds}, s44')
        A('s_nop 0')
        A(f'buffer_load_dwordx4 v10, s[24:27], s42 offen lds')
        A(f'buffer_load_dwordx4 v11, s[24:27], s42 offen offset:1024 lds')
        if full:
            A('s_add_u32 m0, m0, 8192')
            A('s_nop 0')
            A(f'buffer_load_dwordx4 v12, s[32:35], s42 offen lds')
            A(f'buffer_load_dwordx4 v13, s[32:35], s42 offen offset:1024 lds')
        A(f's_add_u32 s42, s42, {64*2048}')
    def slotadv():
        A(f's_add_u32 s40, s40, {SLOT}')
        A(f's_cmp_eq_u32 s40, {NS*SLOT}')
        A('s_cselect_b32 s40, 0, s40')
    def issue2(full, r=None):
        if r is not None: nxt(r); seth(); setw()
        issue_h('s40'); issue_w2('s40', full)
        slotadv()
    A('s_lshl_b32 s42, s36, 17')
    for k in (2, 3, 0): issue_w2(k * SLOT, True)
    A('s_lshl_b32 s15, s10, 11')
    A(f's_add_u32 s15, s15, {FL2}')
    A('s_lshl_b32 s61, s8, 3')
    A('v_min_u32 v17, 7, v1')
    A('v_add_u32 v17, s61, v17')
    A('v_lshlrev_b32 v17, 7, v17')
    A('s_barrier')
    nxt(); setw(); seth()
    issue_w2(SLOT, True)
    lst(1)
    A('s_barrier')
    lst(2)
    only0(f'{name}_noa', ['buffer_store_dword v20, v21, s[52:55], s14 offen sc1'])
    A('s_waitcnt vmcnt(4)')
    A('s_barrier')
    if opt.get('nb12', 0):
        spin(A, f'{name}_fl2', 52, 15, 36, 17, 47, opt.get('pdepth', 1), opt.get('pgap', 1))
        lst(3)
        issue_h(SLOT)
        A(f's_mov_b32 s40, {2*SLOT}')
        A('s_waitcnt vmcnt(0)')
        lst(4)
        A('s_barrier')
        issue2(True, 28); issue2(True, 28)
    else:
        A('s_barrier')
        A('buffer_load_dword v38, v17, s[52:55], s15 offen sc1')
        A('s_barrier')
        A('s_waitcnt vmcnt(0)')
        A('v_cmp_ne_u32 vcc, 1, v38')
        A(f's_cbranch_vccz {name}_fl2_go')
        spin(A, f'{name}_fl2', 52, 15, 36, 17, 47, opt.get('pdepth', 1), opt.get('pgap', 1))
        lst(3)
        issue_h(SLOT)
        A(f's_mov_b32 s40, {2*SLOT}')
        issue2(True, 28); issue2(True, 28)
        A('s_waitcnt vmcnt(16)')
        lst(4)
        A('s_barrier')
    def loop(tag, n, r):
        A(f's_mov_b32 s18, {n}')
        A.label(f'{name}_{tag}')
        issue2(True, r)
        A('s_sub_u32 s18, s18, 1')
        A('s_cmp_lg_u32 s18, 0')
        A('s_waitcnt vmcnt(16)')
        A('s_barrier')
        A(f's_cbranch_scc1 {name}_{tag}')
    L0 = opt.get('l0', 0)
    loop('l2a', 2 + L0, 28)
    A('s_cmp_lg_u32 s12, 0')
    A(f's_cbranch_scc1 {name}_nob')
    A(f's_add_u32 s14, s14, {FL4 - FL2}')
    A('buffer_store_dword v20, v21, s[52:55], s14 offen sc1')
    A.label(f'{name}_nob')
    loop('l2b', NE - 9 - L0, 28)
    A(f's_add_u32 s15, s15, {FL4 - FL2}')
    A('v_and_b32 v17, 15, v1')
    A('v_lshlrev_b32 v17, 7, v17')
    A('buffer_load_dword v36, v17, s[52:55], s15 offen sc1')
    issue2(True, 28)
    A('s_waitcnt vmcnt(16)')
    A('s_barrier')
    A('s_waitcnt vmcnt(8)')
    A('v_cmp_ne_u32 vcc, 1, v36')
    A(f's_cbranch_vccz {name}_fl4_go')
    spin(A, f'{name}_fl4', 52, 15, 36, 17, 47, 1, 1)
    loop('l2c', N1 - NE, 30)
    cnt = lambda s: 0 if s >= NT else (8 if s < N1 else 6)
    for j in range(N1 - NS + 1, NT - 1):
        s = j + NS - 1
        if s < NT: issue2(False, 38)
        A(f's_waitcnt vmcnt({sum(cnt(x) for x in range(j + 2, j + NS))})')
        A('s_barrier')
    if opt.get('stamp') == 1:
        lst(5); lst(6, True); lst(8)
        A('s_cmp_lg_u32 s12, 0')
        A(f's_cbranch_scc1 {name}_end')
        lst.dump(9, 1, 60)

def gen_m(A, name='m_kernel', opt=None):
    opt = opt or {}
    khead(A, name)
    st = Stamper(A, opt.get('stamp'), 1)
    st(0); st(7, True)
    A('s_cmp_ge_u32 s2, 256')
    A(f's_cbranch_scc1 {name}_end')
    A('s_load_dwordx2 s[4:5], s[0:1], %d' % KA['ws'])
    A('s_load_dwordx2 s[6:7], s[0:1], %d' % KA['x'])
    A('v_lshrrev_b32 v2, 6, v0')
    A('v_and_b32 v1, 63, v0')
    A('v_readfirstlane_b32 s12, v2')
    A('s_cmp_ge_u32 s12, 4')
    A(f's_cbranch_scc1 {name}_loader')
    if opt.get('prio'): A(f's_setprio {opt["prio"]}')
    later = fb_compute(A, name, st, opt)
    late = g1_compute(A, name, st, opt, later)
    g2_compute(A, name, st, opt, late)
    A('s_waitcnt vmcnt(0)') if opt.get('stamp') else None
    st(5); st(6, True)
    st.dump(13, 0, 244)
    A('s_endpgm')
    A.label(f'{name}_loader')
    if opt.get('lprio'): A(f's_setprio {opt["lprio"]}')
    loaders(A, name, opt)
    A.label(f'{name}_end')
    A('s_endpgm')
    return dict(name=name, grid=256, block=512, lds=M_LDS, vgpr=256)
```

```python
from common import *
from g1 import w_voffs, tr_bases

HS = 16384; WS = 28672; WB0 = 3 * HS
XB = 32768; EB = WB0 + 3 * WS
SLOT = 32768
SGB = EB + 1024
SYB = SGB + 512
R1, D1, R2W, D2 = 0, 64, 128, 384
STG = SYB
M_LDS = STG + 16384
FULL = 0x01010101
PX_OFF = 29 * MB
FL_OFF = 38 * MB
HS_OFF = 72 * MB
GS_OFF = 40 * MB; GST = 3072; GTT = 56 * GST
FL1, FL2, FL3, FL4, FL5 = 0, 32768, 65536, 196608, 229376
FL_SIZE = 2048 * 128

def spin(A, tag, srdn, soff, vflag, vaddr, scnt, depth=4, gap=2):
    A(f's_mov_b32 s{scnt}, 400000')
    ld = lambda k: A(f'buffer_load_dword v{vflag+k}, v{vaddr}, s[{srdn}:{srdn+3}], s{soff} offen sc1')
    for k in range(depth - 1):
        ld(k); A(f's_sleep {gap}')
    A.label(f'{tag}_spin')
    for k in range(depth):
        ld((k + depth - 1) % depth)
        A(f's_waitcnt vmcnt({depth - 1})')
        A(f'v_cmp_ne_u32 vcc, 1, v{vflag+k}')
        A(f's_cbranch_vccz {tag}_go')
        A(f's_sleep {gap}')
    A(f's_sub_u32 s{scnt}, s{scnt}, 1')
    A(f's_cbranch_scc0 {tag}_spin')
    A.label(f'{tag}_go')

def skipmap(A, dst, src, odd, t):
    if odd:
        A(f'v_cmp_lt_u32 vcc, 255, v{src}')
        A(f'v_add_u32 v{dst}, {1024 + 128}, v{src}')
    else:
        A(f'v_cmp_lt_u32 vcc, 383, v{src}')
        if dst != src: A(f'v_mov_b32 v{dst}, v{src}')
    A(f'v_add_u32 v{t}, 128, v{dst}')
    A(f'v_cndmask_b32 v{dst}, v{dst}, v{t}, vcc')

def g1_decode(A):
    A('s_and_b32 s8, s2, 7')
    A('s_lshr_b32 s9, s2, 3')
    A('s_and_b32 s10, s8, 1')
    A('s_lshl_b32 s10, s10, 3')
    A('s_and_b32 s11, s9, 7')
    A('s_add_u32 s10, s10, s11')
    A('s_lshr_b32 s11, s8, 1')
    A('s_lshl_b32 s11, s11, 2')
    A('s_lshr_b32 s9, s9, 3')
    A('s_add_u32 s11, s11, s9')

def g2_decode(A):
    A('s_mov_b32 s9, s11')
    A('s_lshr_b32 s8, s9, 3')
    A('s_and_b32 s11, s9, 7')
    A('s_lshl_b32 s11, s11, 1')
    A('s_add_u32 s11, s11, s8')

def fb_compute(A, name, st, opt):
    A('s_and_b32 s13, s2, 7')
    A('s_lshr_b32 s14, s2, 3')
    A('s_sub_u32 s15, 16, s13')
    A('s_cmp_eq_u32 s13, 0')
    A('s_cselect_b32 s15, 8, s15')
    A('s_bitcmp1_b32 s14, 0')
    A('s_cselect_b32 s10, s15, s13')
    A('s_lshr_b32 s11, s14, 1')
    A('s_sub_u32 s16, 16, s10')
    A('s_and_b32 s16, s16, 15')
    A('s_sub_u32 s17, 15, s11')
    A('s_lshr_b32 s19, s11, 3')
    A('s_cmp_lg_u32 s19, 0')
    A('s_cselect_b32 s16, s16, s10')
    A('s_cselect_b32 s17, s17, s11')
    vn, vg = 2, 3
    A(f'v_and_b32 v{vn}, 15, v1')
    A(f'v_lshrrev_b32 v{vg}, 4, v1')
    A('v_lshrrev_b32 v6, 3, v1')
    A(f'v_and_b32 v7, 1, v{vg}')
    A('v_lshrrev_b32 v8, 1, v1')
    A('v_and_b32 v8, 3, v8')
    A('v_xor_b32 v7, v7, v8')
    A('v_lshlrev_b32 v7, 5, v7')
    A('v_lshl_add_u32 v4, v6, 10, v7')
    A('v_and_b32 v7, 1, v1')
    A('v_lshl_add_u32 v4, v7, 4, v4')
    A('v_add_u32 v7, s17, v6')
    A('v_and_b32 v7, 7, v7')
    A('v_lshl_add_u32 v4, v7, 7, v4')
    A('v_xor_b32 v5, 64, v4')
    A(f'v_add_u32 v5, {8192 - 1024}, v5')
    A('s_lshl_b32 s14, s16, 2')
    A('s_add_u32 s14, s14, s12')
    A('s_lshl_b32 s14, s14, 16')
    A('s_lshl_b32 s18, s12, 13')
    A(f'v_xor_b32 v8, v{vg}, v1')
    A('v_and_b32 v8, 7, v8')
    A('v_lshlrev_b32 v8, 4, v8')
    A('v_lshl_add_u32 v6, v6, 15, v8')
    A('v_xor_b32 v7, 64, v6')
    A(f'v_add_u32 v7, {8*32768 - 1024}, v7')
    A('s_lshl_b32 s61, s12, 19')
    A('s_lshl_b32 s15, s10, 11')
    A('s_add_u32 s61, s61, s15')
    A('s_lshl_b32 s15, s11, 7')
    A('s_add_u32 s61, s61, s15')
    A('s_lshl_b32 s62, s12, 12')
    A(f's_add_u32 s62, s62, {XB}')
    A('s_lshl_b32 s63, s10, 3')
    A('s_add_u32 s63, s63, s11')
    A('s_lshl_b32 s63, s63, 9')
    A('s_sub_u32 s63, s63, 512')
    A('s_cmp_eq_u32 s11, 0')
    A('s_cselect_b32 s15, 65536, 0')
    A('s_add_u32 s63, s63, s15')
    A('s_cmp_lt_u32 s11, 8')
    A('s_cselect_b32 s63, s63, 0x40000000')
    A('s_lshl_b32 s15, s16, 12')
    A('v_mov_b32 v9, s15')
    A('v_mov_b32 v10, s63')
    A('v_cmp_gt_u32 vcc, 32, v1')
    A('v_cndmask_b32 v9, v10, v9, vcc')
    A('v_lshl_add_u32 v9, v1, 4, v9')
    A(f'v_lshlrev_b32 v10, 6, v{vn}')
    A('s_lshl_b32 s15, s12, 8')
    A('s_add_u32 s15, s15, s10')
    A('s_lshl_b32 s15, s15, 2')
    A('s_waitcnt lgkmcnt(0)')
    srd(A, 20, 4, U_OFF, 4 * MB)
    srd(A, 28, 4, E_OFF, 131072)
    for h in range(4):
        A(f's_add_u32 m0, s18, {h*2048}')
        A('s_nop 0')
        A(f'buffer_load_dwordx4 v4, s[20:23], s14 offen lds')
        A(f'buffer_load_dwordx4 v5, s[20:23], s14 offen offset:1024 lds')
        if h < 3: A('s_add_u32 s14, s14, 16384')
    A(f's_mov_b32 m0, {EB}')
    srd(A, 24, 6, 0, 2048 * 2048)
    A('buffer_load_dwordx4 v9, s[28:31], 0 offen lds')
    FR = [16, 48]; EF = 80; B = [112, 144]; ACC = [176, 192]; MA = [208, 212]; VT = 216; VX = 220; X = [224, 232]; VB = 240; MXV = [241, 242]; VH = 243; VE = 244
    srd(A, 40, 4, MX_OFF, 8192)
    for u in range(2):
        A(f's_add_u32 m0, s62, {u*2048}')
        if u: A(f's_add_u32 s61, s61, {4 << 19}')
        else: A('s_nop 0')
        A('buffer_load_dwordx4 v6, s[24:27], s61 offen lds')
        A('buffer_load_dwordx4 v7, s[24:27], s61 offen offset:1024 lds')
    A('s_add_u32 s14, s15, 4096')
    A(f'buffer_load_dword v{MXV[0]}, v10, s[40:43], s15 offen')
    A(f'buffer_load_dword v{MXV[1]}, v10, s[40:43], s14 offen')
    A('s_lshl_b32 s15, s12, 4')
    A(f'v_add_u32 v6, s15, v{vn}')
    A('s_cmp_lg_u32 s10, 0')
    A('s_cselect_b32 s15, -1, 0')
    A('v_sub_u32 v7, s15, v6')
    A('s_cmp_lg_u32 s19, 0')
    A('s_cselect_b64 vcc, -1, 0')
    A('v_cndmask_b32 v6, v6, v7, vcc')
    A('v_and_b32 v6, 127, v6')
    A('v_cvt_f32_u32 v7, v6')
    A('v_mul_f32 v7, 0x3c000000, v7')
    A(f'v_lshlrev_b32 v10, 3, v{vg}')
    A('v_cvt_f32_u32 v10, v10')
    A('v_mul_f32 v10, v10, v7')
    B0 = B[0]
    for j in range(8):
        if j: A('v_add_f32 v10, v10, v7')
        A(f'v_cos_f32 v{12+(j&1)}, v10')
        A(f'v_sin_f32 v{14+(j&1)}, v10')
        if j & 1:
            A(f'v_cvt_pk_bf16_f32 v{B0+j//2}, v12, v13')
            A(f'v_cvt_pk_bf16_f32 v{B0+16+j//2}, v14, v15')
    A('v_and_b32 v8, 1, v6')
    A('v_cmp_eq_u32 vcc, 1, v8')
    A('v_mul_u32_u24 v8, 0x8000, v8')
    A('v_lshl_or_b32 v8, v8, 16, v8')
    A('v_and_b32 v10, 2, v6')
    A('v_mul_u32_u24 v10, 0x4000, v10')
    A('v_lshl_or_b32 v10, v10, 16, v10')
    A('v_xor_b32 v11, v10, v8')
    for k in range(4):
        A(f'v_cndmask_b32 v12, v{B0+k}, v{B0+16+k}, vcc')
        A(f'v_cndmask_b32 v13, v{B0+16+k}, v{B0+k}, vcc')
        A(f'v_xor_b32 v{B0+4+k}, v11, v12')
        A(f'v_xor_b32 v{B0+20+k}, v10, v13')
    for k in range(8):
        A(f'v_xor_b32 v{B0+8+k}, v8, v{B0+k}')
        A(f'v_xor_b32 v{B0+24+k}, v8, v{B0+16+k}')
    A('s_brev_b32 s15, 1')
    for k in range(32): A(f'v_xor_b32 v{B[1]+k}, s15, v{B0+k}')
    A(f'v_lshrrev_b32 v10, 2, v{vn}')
    A(f'v_lshl_add_u32 v10, v{vg}, 3, v10')
    A(f'v_lshrrev_b32 v11, 3, v{vn}')
    A(f'v_and_b32 v12, 1, v{vg}')
    A('v_lshl_add_u32 v11, v12, 1, v11')
    A('v_lshlrev_b32 v11, 5, v11')
    A('v_lshl_add_u32 v10, v10, 7, v11')
    A(f'v_and_b32 v11, 3, v{vn}')
    A(f'v_lshl_add_u32 v{VT}, v11, 3, v10')
    A('s_mul_i32 s15, s19, 96')
    A(f'v_xor_b32 v{VT}, s15, v{VT}')
    for i in range(1, 4): A(f'v_xor_b32 v{VT+i}, {(2*(i&1) + (i>>1))*32}, v{VT}')
    A(f'v_and_b32 v11, 1, v{vn}')
    A('v_lshlrev_b32 v11, 9, v11')
    A(f'v_lshl_add_u32 v11, v{vg}, 4, v11')
    A(f'v_add_u32 v{VE}, {EB}, v11')
    A('s_mul_i32 s15, s19, 3')
    A(f'v_xor_b32 v10, s15, v{vg}')
    A('v_lshrrev_b32 v11, 1, v10')
    A(f'v_lshrrev_b32 v12, 1, v{vn}')
    A('v_xor_b32 v11, v11, v12')
    A('v_lshlrev_b32 v11, 4, v11')
    A(f'v_lshl_add_u32 v11, v{vn}, 7, v11')
    A('v_and_b32 v12, 1, v10')
    A('v_lshl_add_u32 v11, v12, 3, v11')
    A(f'v_add_u32 v{VX}, s62, v11')
    for i in range(1, 4): A(f'v_xor_b32 v{VX+i}, {32*i}, v{VX}')
    A(f'v_lshl_add_u32 v10, v10, 4, v{vn}')
    A(f'v_lshlrev_b32 v{VH}, 4, v10')
    A('v_add_u32 v10, 48, v1')
    A('v_and_b32 v10, 63, v10')
    A(f'v_lshlrev_b32 v{VB}, 2, v10')
    A(f'v_cmp_eq_u32 s[46:47], 0, v{vg}')
    srd(A, 52, 4, HS_OFF, 8 * MB)
    skipmap(A, VH, VH, 0, 10)
    A('s_cmp_eq_u32 s11, 0')
    A('s_cselect_b32 s15, 8192, 0')
    srd(A, 32, 4, MU_OFF, 's15')
    srd(A, 36, 4, FL_OFF, FL_SIZE)
    A('s_lshl_b32 s13, s10, 3')
    A('s_add_u32 s13, s13, s12')
    st(1)
    A('s_waitcnt vmcnt(6)')
    A('s_barrier')
    st(2)
    def frag(i, p): return FR[i & 1] + 4 * p
    def rd(h):
        i = h >> 1
        return [f'ds_read_b64_tr_b16 {vr(frag(i,p)+2*r2,2)}, v{VT+i} offset:{(32*p+4*r2)*128}' for p in range(4*(h & 1), 4*(h & 1) + 4) for r2 in range(2)]
    def mf(d, a, b, z): return f'v_mfma_f32_16x16x32_bf16 {vr(d,4)}, {vr(a,4)}, {vr(b,4)}, {"0" if z else vr(d,4)}'
    NEG = [EF, EF + 4]
    def half(h):
        out = [mf(ACC[u] + 4*(h >> 1), frag(h >> 1, p), B[u] + 4*p, p == 0) for p in range(4*(h & 1), 4*(h & 1) + 4) for u in range(2)]
        if h in (2, 4, 6): out[:2] = [out[u][:-1] + vr(NEG[u], 4) for u in range(2)]
        return out
    ONE = 4; S = [5, 7]; Q = [6, 8]; TM = EF; OUT = EF + 16
    E = AutoLgkm(A)
    for x in rd(0) + [f'ds_read_b128 {vr(EF+4*p,4)}, v{VE} offset:{64*p}' for p in range(8)]: E(x)
    for x in weave(half(0), rd(1), per=2): E(x)
    for x in weave([mf(MA[u], EF + 4*p, B[u] + 4*p, p == 0) for p in range(8) for u in range(2)], rd(2), per=1): E(x)
    misc = [f'v_mov_b32 v{ONE}, 0x3f803f80'] + [f'v_mov_b32 v{r}, 0' for r in S + Q] + [f'v_lshlrev_b32 v9, 2, v{vn}', 's_lshl_b32 s60, s13, 6',
            's_lshl_b32 s14, s13, 16', 's_lshl_b32 s15, s11, 12', 's_add_u32 s14, s14, s15', 's_add_u32 s15, s14, 0x40000']
    misc += ['s_mov_b32 s62, 0x3f80', 's_mov_b32 s63, 0x3f800000']
    mu = ['s_waitcnt vmcnt(0)'] + [f'v_add_f32 v{MA[u]}, v{MA[u]}, v{MXV[u]}' for u in range(2)] + \
         [f'v_sub_f32 v{NEG[u]+k}, 0, v{MA[u]}' for u in range(2) for k in range(4)]
    for x in weave(half(1), rd(3)[:6] + mu + rd(3)[6:], per=3): E(x)
    xr = [f'ds_read_b64 {vr(X[u]+2*k2,2)}, v{VX+k2} offset:{u*2048}' for k2 in range(4) for u in range(2)]
    for x in weave(half(2), rd(4) + xr + misc[:6], per=3): E(x)
    t0 = [f'v_sub_f32 v{MA[u]+1}, v{MA[u]+1}, v{MA[u]}' for u in range(2)] + [f'v_sub_f32 v{ACC[u]+k}, v{ACC[u]+k}, v{MA[u]}' for u in range(2) for k in range(4)]
    for x in weave(half(3), rd(5) + misc[6:] + t0, per=3): E(x)
    def epi(V, pr):
        out = []
        for u in range(2):
            if opt.get('edot', 0):
                out += [f'v_dot2_f32_bf16 v{V[u][i][r]}, v{X[u]+2*i+(r>>1)}, s{62+(r&1)}, v{V[u][i][r]}' for i in (2*pr, 2*pr + 1) for r in range(4)]
            else:
                t = EF + 8
                out += [[(f'v_lshlrev_b32 v{t+r}, 16, v{X[u]+2*i+(r>>1)}' if r % 2 == 0 else f'v_and_b32 v{t+r}, 0xffff0000, v{X[u]+2*i+(r>>1)}') + '\n' +
                         f'v_add_f32 v{V[u][i][r]}, v{V[u][i][r]}, v{t+r}'][0] for i in (2*pr, 2*pr + 1) for r in range(4)]
        for u in range(2):
            o = OUT + 8*u + 4*pr
            out += [f'v_cvt_pk_bf16_f32 v{o+2*i2+q}, v{V[u][2*pr+i2][2*q]}, v{V[u][2*pr+i2][2*q+1]}' for i2 in range(2) for q in range(2)]
            out.append(f'buffer_store_dwordx4 {vr(o,4)}, v{VH}, s[52:55], s{14+u} offen offset:{pr*2048} sc1')
        return out
    def dots(pr): return [x for u in range(2) for k in range(4) for x in
                          (f'v_dot2_f32_bf16 v{S[u]}, v{OUT+8*u+4*pr+k}, v{ONE}, v{S[u]}', f'v_dot2_f32_bf16 v{Q[u]}, v{OUT+8*u+4*pr+k}, v{OUT+8*u+4*pr+k}, v{Q[u]}')]
    RP = 10; SH = 248
    A('s_cmp_lg_u32 s19, 0')
    A(f's_cbranch_scc1 {name}_up')
    pend0 = list(E.pend)
    for lower in (1, 0):
        if not lower:
            A.label(f'{name}_up'); A('s_nop 7'); E.pend = list(pend0)
        if lower:
            V = [[[SH+4*u+i, ACC[u]+4*i, ACC[u]+4*i+1, ACC[u]+4*i+2] for i in range(4)] for u in range(2)]
            def rot(i): return [f'ds_bpermute_b32 v{RP+3*u+(i%3)}, v{VB}, v{ACC[u]+4*i+3}' for u in range(2)]
            def sel(i): return [f'v_cndmask_b32 v{SH+4*u+i}, v{RP+3*u+(i%3)}, v{RP+3*u+((i-1)%3) if i else MA[u]+1}, s[46:47]' for u in range(2)]
        else:
            V = [[[ACC[u]+4*i+3-r for r in range(4)] for i in range(4)] for u in range(2)]
            rot = sel = lambda i: []
        e0 = [y for x in sel(0) + sel(1) + epi(V, 0) for y in x.split('\n')]
        if opt.get('e0', 1):
            seq = rot(0) + rd(6)[:4] + rot(1) + rd(6)[4:] + e0 + rd(7) + rot(2)
            for x in weave(half(4) + half(5) + half(6), seq, per=3) + weave(half(7), sel(2), per=3): E(x)
        else:
            for x in weave(half(4), rot(0) + rd(6) + rot(1), per=2): E(x)
            for x in weave(half(5), rd(7) + e0[:24], per=4): E(x)
            for x in weave(half(6), e0[24:] + rot(2), per=3) + weave(half(7), sel(2), per=3): E(x)
        e1 = epi(V, 1)
        hst = [x for x in e1 if x.startswith('buffer_store')]
        e1 = [x for x in e1 if x not in hst]
        for x in rot(3) + e1[:4] + e1[8:12] + sel(3) + e1[4:8] + e1[12:]: E(x)
        E.drain()
        if lower: A(f's_branch {name}_join')
    A.label(f'{name}_join')
    st(3)
    A('s_waitcnt vmcnt(0)')
    A('s_barrier')
    st(4)
    for x in dots(1)[:6] + hst + dots(1)[6:] + ([] if opt.get('d0', 0) else dots(0)): A(x)
    A(f'buffer_store_dword v{MA[0]}, v9, s[32:35], s60 offen sc1')
    A(f'buffer_store_dword v{MA[1]}, v9, s[32:35], s60 offen offset:256 sc1')
    A(f'v_lshlrev_b32 v40, 3, v{vn}')
    A(f'v_lshrrev_b32 v41, 1, v{vg}')
    A('v_lshl_add_u32 v40, v41, 2, v40')
    A('s_lshl_b32 s14, s10, 4')
    A('s_add_u32 s14, s14, s11')
    A('s_lshl_b32 s14, s14, 3')
    A('s_add_u32 s14, s14, s12')
    A('s_lshl_b32 s14, s14, 7')
    srd(A, 28, 4, ST_OFF, 2048 * 128)
    for u in range(2): A(f'v_permlane32_swap_b32 v{S[u]}, v{Q[u]}')
    for u in range(2): A(f'v_add_f32 v{S[u]}, v{S[u]}, v{Q[u]}')
    for u in range(2): A(f'v_mov_b32 v{Q[u]}, v{S[u]}')
    for u in range(2): A(f'v_permlane16_swap_b32 v{S[u]}, v{Q[u]}')
    for u in range(2): A(f'v_add_f32 v{S[u]}, v{S[u]}, v{Q[u]}')
    for u in range(2): A(f'buffer_store_dword v{S[u]}, v40, s[28:31], s14 offen offset:{512*u} sc1')
    return []

def drained(A):
    A('s_waitcnt vmcnt(0)')
    A('s_barrier')

def g1_compute(A, name, st, opt, later):
    WB = [8, 36]; ACC = 64; HB = [176, 192]
    vAh, cAh, VW, CW = 2, 3, 208, 216
    g1_decode(A)
    A('s_and_b32 s13, s12, 1')
    A('s_lshr_b32 s14, s12, 1')
    A('s_lshl_b32 s15, s13, 13')
    A(f'v_lshlrev_b32 v{vAh}, 4, v1')
    A(f'v_add_u32 v{vAh}, s15, v{vAh}')
    tr_bases(A, 44, 45, 1, 48)
    A('s_cmp_lg_u32 s14, 0')
    A('s_cselect_b64 vcc, -1, 0')
    def gaddr(dst, lam):
        if lam < 12:
            A(f'v_xor_b32 v{dst}, {32*(lam&3)}, v44')
            A(f'v_add_u32 v{dst}, {WB0 + (lam>>2)*1024}, v{dst}')
        else:
            A(f'v_xor_b32 v{dst}, {32*(lam&1)}, v45')
            A(f'v_add_u32 v{dst}, {WB0 + 6144}, v{dst}')
    for k, (l0, l1) in enumerate(zip([4, 5, 2, 3, 0, 1, 6], [8, 9, 10, 11, 12, 13, 7])):
        gaddr(46, l0); gaddr(47, l1)
        A(f'v_cndmask_b32 v{VW+k}, v46, v47, vcc')
    A(f'v_mov_b32 v{cAh}, v{vAh}')
    for k in range(7): A(f'v_mov_b32 v{CW+k}, v{VW+k}')
    for i in range(112): A(f'v_mov_b32 v{ACC+i}, 0')
    A('s_lshl_b32 s15, s10, 1')
    A('s_add_u32 s15, s15, s13')
    gs = opt.get('gskip', 1); TT = GTT if gs else 112 * 1024
    A('s_mul_i32 s15, s15, %d' % (4 * TT))
    A('s_add_u32 s15, s15, %d' % (GS_OFF if gs else G_OFF))
    srd(A, 20, 4, 's15', 4 * TT)
    A('s_mov_b32 s17, 0')
    A('s_mov_b32 s19, 0')
    A('s_mov_b32 s18, 0')
    BV = 240; H2 = 224
    A('s_load_dwordx2 s[24:25], s[0:1], %d' % KA['b1'])
    A('s_and_b32 s52, s11, 1')
    A('s_mul_i32 s15, s11, 7')
    A('s_add_u32 s16, s15, s52')
    A('s_add_u32 s56, s16, 3')
    A('s_cmp_lg_u32 s14, 0')
    A('s_cselect_b32 s53, 4, 2')
    A('s_cselect_b32 s54, 5, 1')
    A('s_cselect_b32 s55, 6, 0')
    for r in (53, 54, 55): A(f's_add_u32 s{r}, s{r}, s16')
    A('s_and_b32 s52, s52, s14')
    A('s_cmp_lg_u32 s52, 0')
    A('s_cselect_b32 s55, s15, s55')
    for r in (53, 54, 55, 56): A(f's_lshl_b32 s{r+4}, s{r}, 6')
    A('s_lshl_b32 s15, s14, 5')
    A('s_add_u32 s60, s60, s15')
    A('v_and_b32 v44, 15, v1')
    A('v_lshlrev_b32 v44, 1, v44')
    A('s_mov_b32 s26, 7168')
    A('s_mov_b32 s27, 0x20000')
    A('s_waitcnt lgkmcnt(0)')
    A('s_barrier')
    A('s_waitcnt vmcnt(0)')
    for i in range(7):
        so, off = 57 + i // 2, (32*(i&1) if i < 6 else 0)
        later.append(f'buffer_load_ushort v{BV+i}, v44, s[24:27], s{so} offen offset:{off}')
    def reads(s, buf):
        r = []
        for j in range(4):
            r.append(f'ds_read_b128 {vr(HB[buf]+4*j,4)}, v{cAh} offset:{(2*j+s)*1024}')
        for i in range(7):
            for rd in range(2):
                r.append(f'ds_read_b64_tr_b16 {vr(WB[buf]+4*i+2*rd,2)}, v{CW+i} offset:{(2*s + rd) * 7168}')
        return r
    E = AutoLgkm(A)
    RP_ = opt.get('rper', 1); R0 = opt.get('r0', 0)
    def step(buf, rds, tail=None, nowait=False):
        k = 0; n = 0
        for i in range(7):
            for jj in range(4):
                j = jj if (i & 1) == 0 else 3 - jj
                E(f'v_mfma_f32_16x16x32_bf16 {vr(ACC + (i*4+j)*4,4)}, {vr(WB[buf] + 4*i,4)}, {vr(HB[buf] + 4*j,4)}, {vr(ACC + (i*4+j)*4,4)}')
                span = opt.get('spanA', 17) if buf else opt.get('spanB', 17)
                while k < len(rds) and round(k * span / 17) <= n: E(rds[k]); k += 1
                n += 1
                if tail and n - 20 in tail:
                    for t in tail[n - 20]: A(t)
        if not nowait: E.drain()
    A('s_barrier')
    st(8)
    for r in reads(0, 0): A(r)
    for x in later: A(x)
    A('s_waitcnt lgkmcnt(0)')
    if opt.get('itime'): A(f'v_mov_b32 v7, {STG}')
    A(f's_branch {name}_g1mid')
    tailB = {-4: [f's_add_u32 s17, s17, {HS}', f's_add_u32 s19, s19, {WS}'], -3: [f's_cmp_eq_u32 s17, {3*HS}', 's_cselect_b32 s17, 0, s17'],
             -2: ['s_cselect_b32 s19, 0, s19', 's_add_u32 s18, s18, 1'], -1: [f'v_add_u32 v{cAh}, s17, v{vAh}', 's_cmp_le_u32 s18, 14']}
    for k in range(7): tailB[k] = [f'v_add_u32 v{CW+k}, s19, v{VW+k}']
    if opt.get('spanB', 17) > 17:
        sp = opt['spanB']
        tailB = {-19: tailB[-4], -18: tailB[-3], -17: tailB[-2], 8: ['s_cmp_le_u32 s18, 14']}
        tailB.setdefault(round(3 * sp / 17) + 2 - 20, []).append(f'v_add_u32 v{cAh}, s17, v{vAh}')
        for k in range(7): tailB.setdefault(min(round((5 + 2*k) * sp / 17) + 2, 28) - 20, []).insert(0, f'v_add_u32 v{CW+k}, s19, v{VW+k}')
    A('.p2align 6')
    A.label(f'{name}_g1loop')
    if opt.get('itime'): A('s_memtime s[92:93]')
    A('s_barrier')
    if opt.get('itime'):
        A('s_memtime s[94:95]')
        tailB[7] = ['v_mov_b32 v4, s92', 'v_mov_b32 v5, s94', f'v_lshl_add_u32 v6, s18, 3, v7', 'ds_write_b64 v6, v[4:5]']
    step(1, reads(0, 0), nowait=opt.get('lazy', 1))
    A.label(f'{name}_g1mid')
    step(0, reads(1, 1), tailB)
    A(f's_cbranch_scc1 {name}_g1loop')
    if opt.get('itime'):
        A('s_memtime s[92:93]')
        A('v_lshlrev_b32 v6, 3, v1')
        A(f'v_add_u32 v4, {STG}, v6')
        A('ds_read_b64 v[4:5], v4')
        A(f's_add_u32 s96, s4, {TS_OFF + 2*65536}')
        A('s_addc_u32 s97, s5, 0')
        A('s_mov_b32 s98, 65536')
        A('s_mov_b32 s99, 0x20000')
        A('s_lshl_b32 s69, s2, 8')
        A('s_waitcnt lgkmcnt(0)')
        A('v_cmp_gt_u32 vcc, 16, v1')
        A('v_cndmask_b32 v6, 4.0, v6, vcc')
        A('buffer_store_dwordx2 v[4:5], v6, s[96:99], s69 offen')
        A('v_mov_b32 v4, s92')
        A('v_mov_b32 v6, 128')
        A('buffer_store_dword v4, v6, s[96:99], s69 offen')
    if opt.get('ttime'): st(3)
    A('s_barrier')
    if opt.get('ttime'): st(4)
    gs = opt.get('gskip', 1)
    order = [6, 0, 1, 2, 3, 4, 5]
    SG = 4
    def wset(k): return WB[0] + 8 * (k % 3)
    def wrd(k):
        i = order[k]
        return [f'ds_read_b64_tr_b16 {vr(wset(k)+4*s_+2*rd,2)}, v{CW+i} offset:{(2*s_ + rd) * 7168}' for s_ in range(2) for rd in range(2)]
    BT = 32
    ST4 = [208, 212, 248, 252]
    A('v_and_b32 v2, 15, v1')
    A('s_lshl_b32 s15, s13, 8')
    A(f's_add_u32 s15, s15, {SGB}')
    A('v_lshl_add_u32 v2, v2, 2, s15')
    pre = [f'ds_read_b128 {vr(HB[0]+4*j,4)}, v{cAh} offset:{(2*j)*1024}' for j in range(4)] + wrd(0) + \
          [f'ds_read_b128 {vr(H2+4*j,4)}, v{cAh} offset:{(2*j+1)*1024}' for j in range(4)] + \
          [f'ds_read_b32 v{ST4[j]}, v2 offset:{64*j}' for j in range(4)] + wrd(1)
    setup = []
    for j in range(4):
        for k in range(1, 4): setup.append(f'v_mov_b32 v{ST4[j]+k}, 0')
    for k in range(1, 4): setup.append(f'v_mov_b32 v{BT+k}, 0')
    addr = []
    for r in (53, 54, 55, 56):
        addr += [f's_lshr_b32 s{r}, s{r}, 1', f's_mul_i32 s{r}, s{r}, {GST}'] if gs else [f's_lshl_b32 s{r}, s{r}, 10']
    class L(list):
        def __call__(self, t): self.append(t)
    va = L()
    va('v_and_b32 v4, 15, v1'); va('v_lshlrev_b32 v4, 4, v4'); va('v_and_b32 v6, 16, v1'); va('v_and_b32 v7, 32, v1')
    va('v_lshl_add_u32 v5, v7, 3, v4'); va('v_lshl_add_u32 v4, v6, 5, v5'); va('s_lshl_b32 s19, s14, 9')
    va('v_add_u32 v5, s19, v5')
    if gs: skipmap(va, 5, 5, 1, 2)
    va(f'v_mul_u32_u24 v6, {TT // 16}, v6'); va('v_add_u32 v5, v5, v6')
    if gs:
        skipmap(va, 6, 4, 1, 2); skipmap(va, 4, 4, 0, 2)
        va('s_cmp_lg_u32 s52, 0'); va('s_cselect_b64 vcc, -1, 0'); va('v_cndmask_b32 v7, v4, v6, vcc')
    else:
        va('v_mov_b32 v6, v4'); va('v_mov_b32 v7, v4')
    def acc(i, j): return ACC + (i*4+j)*4
    def epi_tile(i, j, d):
        a = acc(i, j)
        return [f'v_mul_f32 v{a+r}, v{a+r}, abs(v{a+r})' for r in range(4)] + \
               [f'v_cvt_pk_bf16_f32 v{d}, v{a}, v{a+1}', f'v_cvt_pk_bf16_f32 v{d+1}, v{a+2}, v{a+3}'] + \
               [f'v_pk_max_i16 v{d}, v{d}, 0', f'v_pk_max_i16 v{d+1}, v{d+1}, 0']
    late = []
    def epi(i):
        out = []
        for j0 in (0, 2):
            js = (j0, j0 + 1)
            if i == 6: dst = {j: acc(i, j0) + 2 * (j & 1) for j in js}
            elif i % 2 == 0: dst = {j: acc(i, j) for j in js}
            else: dst = {j: acc(i - 1, j) + 2 for j in js}
            t = [epi_tile(i, j, dst[j]) for j in js]
            out += t[0][:4] + t[1][:4] + t[0][4:6] + t[1][4:6] + t[0][6:] + t[1][6:]
            if i == 6:
                d = acc(i, j0)
                out += [f'v_permlane16_swap_b32 v{d}, v{d+2}', f'v_permlane16_swap_b32 v{d+1}, v{d+3}',
                        f'buffer_store_dwordx4 {vr(d,4)}, v5, s[20:23], s56 offen sc1']
                if j0 == 0: out.append(f's_add_u32 s56, s56, {2*TT}')
            elif i % 2:
                pp = i // 2
                for j in js:
                    d = acc(i - 1, j)
                    out += [f'v_permlane16_swap_b32 v{d}, v{d+2}', f'v_permlane16_swap_b32 v{d+1}, v{d+3}']
                for j in js:
                    o2 = out if pp < 2 else late
                    o2.append(f'buffer_store_dwordx4 {vr(acc(i - 1, j),4)}, v{[4, 6, 7][pp]}, s[20:23], s{53+pp} offen sc1')
                    if j < 3: o2.append(f's_add_u32 s{53+pp}, s{53+pp}, {TT}')
        return out
    for k, i in enumerate(order):
        mf = [(acc(i, j), WB[1] + 4*i, HB[1] + 4*j) for j in range(4)] + [(acc(i, j), wset(k), HB[0] + 4*j) for j in range(4)] + \
             [(acc(i, j), wset(k) + 4, H2 + 4*j) for j in range(4)] + [(acc(i, j), BT, ST4[j]) for j in range(4)]
        if k == 0:
            fill = pre + addr + list(va) + setup
        else:
            fill = (wrd(k + 1) if k + 1 < 7 else []) + epi(order[k - 1])
        per = -(-len(fill) // 15)
        fi = 0
        for n, (d, a, b) in enumerate(mf):
            if k == 0 and n == 4:
                for x in fill[fi:len(pre)]: A(x)
                fi = max(fi, len(pre))
                A('s_waitcnt lgkmcnt(14)')
            if k == 0 and n == 8: A('s_waitcnt lgkmcnt(8)')
            if k == 0 and n == 12:
                for x in fill[fi:]: A(x)
                fi = len(fill)
                A('s_waitcnt vmcnt(0) lgkmcnt(4)')
                A('v_cmp_gt_u32 vcc, 16, v1')
                for j in range(4): A(f'v_cndmask_b32 v{ST4[j]}, 0, v{ST4[j]}, vcc')
            if k > 0 and n == 4: A(f's_waitcnt lgkmcnt({4 if k + 1 < 7 else 0})')
            if n == 10 and k > 0 or (k == 0 and n == 12): A(f'v_mov_b32 v{BT}, v{BV+i}')
            mfma(A, d, a, b)
            if k == 6 and n == 4:
                A('s_barrier')
                st(9)
            for _ in range(per):
                if fi < len(fill): A(fill[fi]); fi += 1
        for x in fill[fi:]: A(x)
    for x in epi(5): A(x)
    return late

def g2_compute(A, name, st, opt, late):
    NS = 4; N2 = opt.get('n2', 8); N1 = (56 - N2) // 2
    SIG = opt.get('sig', 2); POLL = opt.get('poll', 4)
    AO = 8; AX = 40; HB = [72, 88]; WO = [104, 112]; WX = [120, 128]; EP = 136; PR = 224
    vAh, vAw, cAh, cAw, vAw1, cAw1, vL16, vFl = 176, 177, 178, 179, 180, 181, 182, 183
    A('s_load_dwordx2 s[50:51], s[0:1], %d' % KA['b2'])
    A('s_load_dwordx2 s[48:49], s[0:1], %d' % KA['out'])
    if opt.get('sapos', 1) == 0:
        A('s_waitcnt vmcnt(0)')
        A('s_barrier')
        st(10)
    A('v_and_b32 v8, 15, v1')
    A('v_lshlrev_b32 v8, 4, v8')
    A('v_and_b32 v10, 16, v1')
    A('v_and_b32 v11, 32, v1')
    A('v_lshl_add_u32 v9, v11, 3, v8')
    A('v_lshl_add_u32 v8, v10, 5, v9')
    A('v_lshlrev_b32 v10, 7, v10')
    A('s_lshl_b32 s15, s13, 13')
    A('s_lshl_b32 s16, s14, 9')
    A('s_add_u32 s16, s16, s15')
    A(f's_add_u32 s16, s16, {3*SLOT + 1024}')
    A('v_add3_u32 v9, v9, v10, s16')
    A('v_add_u32 v8, s15, v8')
    A('s_cmp_lg_u32 s14, 0')
    for k, (b0, b1) in enumerate(((3*SLOT, 0), (2*SLOT + 1024, 1024), (2*SLOT, 0x40000))):
        A(f's_mov_b32 s16, {b0}')
        A(f's_cselect_b32 s16, {b1}, s16')
        A(f'v_add_u32 v{10+k}, s16, v8')
    wr_ = [f'ds_write_b128 v{10+k}, {vr(64+32*k+4*j,4)} offset:{2048*j}' for k in (2, 1, 0) for j in range(4)]
    wr_ += [f'ds_write_b128 v9, {vr(160+4*j,4)} offset:{2048*j}' for j in (0, 2)]
    ad = [f'v_lshlrev_b32 v{vL16}, 4, v1', f'v_add_u32 v{vAh}, s15, v{vL16}', 'v_lshrrev_b32 v184, 2, v1', 'v_and_b32 v184, 3, v184',
          'v_lshrrev_b32 v185, 4, v1', 'v_lshl_add_u32 v184, v185, 3, v184', 'v_lshrrev_b32 v186, 3, v1', 'v_and_b32 v186, 3, v186',
          'v_lshlrev_b32 v186, 5, v186', 'v_lshl_add_u32 v184, v184, 7, v186', 'v_and_b32 v186, 3, v1', f'v_lshl_add_u32 v{vAw}, v186, 3, v184',
          's_lshl_b32 s16, s14, 6', f'v_xor_b32 v{vAw}, s16, v{vAw}', f'v_add_u32 v{vAw}, 16384, v{vAw}', f'v_xor_b32 v{vAw1}, 32, v{vAw}',
          f'v_add_u32 v{cAh}, {2*SLOT}, v{vAh}', f'v_add_u32 v{cAw}, {2*SLOT}, v{vAw}', f'v_add_u32 v{cAw1}, {2*SLOT}, v{vAw1}', f'v_mov_b32 v{vFl}, 0']
    ad += [f'v_mov_b32 v{192+k}, v{128+k}' for k in range(16)]
    for x in weave(wr_[:8], ad[:16], per=2): A(x)
    if opt.get('sapos', 1) == 1:
        A('s_waitcnt vmcnt(0)')
        A('s_barrier')
        st(10)
    for x in weave(wr_[8:], ad[16:], per=3): A(x)
    for k in range(4): A(f's_mov_b32 s{64+k}, s{20+k}' if k < 3 else 's_mov_b32 s67, 0x20000')
    A('s_mov_b32 s68, s55')
    A(f's_mov_b32 s17, {2*SLOT}')
    TT = GTT if opt.get('gskip', 1) else 112 * 1024
    def late_store(k): return [f'buffer_store_dwordx4 {vr(192+4*k,4)}, v7, s[64:67], s68 offen sc1', f's_add_u32 s68, s68, {TT}']
    def setup():
        g2_decode(A)
        A('s_lshl_b32 s15, s10, 1')
        A('s_add_u32 s15, s15, s13')
        A('s_lshl_b32 s16, s15, 18')
        A(f's_add_u32 s16, s16, {HS_OFF}')
        A('s_lshl_b32 s19, s15, 8')
        A(f's_add_u32 s19, s19, {MU_OFF}')
        A('s_lshl_b32 s54, s2, 2')
        A('s_add_u32 s54, s54, s12')
        A('s_xor_b32 s55, s54, 16')
        A('s_lshl_b32 s56, s54, 12')
        A('s_lshl_b32 s57, s55, 12')
        A('s_lshl_b32 s54, s54, 7')
        A('s_lshl_b32 s55, s55, 7')
        A(f's_add_u32 s54, s54, {FL3}')
        A(f's_add_u32 s55, s55, {FL3}')
        srd(A, 20, 4, 's16', 256 * 1024)
        srd(A, 44, 4, 's19', 256)
        A(f's_add_u32 s19, s19, {R2_OFF - MU_OFF}')
        srd(A, 24, 4, 's19', 256)
        srd(A, 28, 50, 0, 2048)
        srd(A, 32, 48, 0, 2048 * 2048)
        srd(A, 40, 4, PX_OFF, 4 * MB)
    A('s_waitcnt lgkmcnt(0)')
    def reads(s, buf, full):
        r = []
        for i in range(2):
            for rd in range(2):
                r.append(f'ds_read_b64_tr_b16 {vr(WO[buf]+4*i+2*rd,2)}, v{cAw1 if i else cAw} offset:{4096*s + 512*rd}')
        for j in range(4):
            r.append(f'ds_read_b128 {vr(HB[buf]+4*j,4)}, v{cAh} offset:{(2*j+s)*1024}')
        if full:
            for i in range(2):
                for rd in range(2):
                    r.append(f'ds_read_b64_tr_b16 {vr(WX[buf]+4*i+2*rd,2)}, v{cAw1 if i else cAw} offset:{8192 + 4096*s + 512*rd}')
        return r
    ADV = [[f's_add_u32 s17, s17, {SLOT}', f's_cmp_eq_u32 s17, {NS*SLOT}'], ['s_cselect_b32 s17, 0, s17', f'v_add_u32 v{cAh}, s17, v{vAh}'],
           [f'v_add_u32 v{cAw}, s17, v{vAw}'], [f'v_add_u32 v{cAw1}, s17, v{vAw1}']]
    def step(buf, full, rds, tail=(), xfirst=False, zero=False):
        seq = []
        order = ([(AX, WX)] if full else []) + [(AO, WO)] if xfirst else [(AO, WO)] + ([(AX, WX)] if full else [])
        for acc, W in order:
            for i in range(2):
                for jj in range(4):
                    j = jj if i == 0 else 3 - jj
                    seq.append((acc + (i*4+j)*4, W[buf] + 4*i, HB[buf] + 4*j))
        per = 1 if len(rds) + len(tail) <= len(seq) else 2
        fill = [[x] for x in rds]
        if per == 2: fill = [sum(fill[k:k+2], []) for k in range(0, len(fill), 2)]
        fill += list(tail)
        for n, (d, a, b) in enumerate(seq):
            mfma(A, d, a, b, '0' if zero else None)
            if n < len(fill):
                for x in fill[n]: A(x)
        for f in fill[len(seq):]:
            for x in f: A(x)
        A('s_waitcnt lgkmcnt(0)')
    A('s_barrier')
    st(11)
    for r in reads(0, 0, True): A(r)
    setup()
    A('s_lshl_b32 s16, s11, 1')
    A('s_add_u32 s16, s16, s14')
    A('s_lshl_b32 s19, s16, 11')
    skipmap(A, PR + 2, vL16, 0, PR + 3)
    for j in range(4):
        A(f'buffer_load_dwordx4 {vr(EP+4*j,4)}, v{PR+2}, s[20:23], s19 offen sc1')
        if j < 3: A('s_add_u32 s19, s19, 65536')
    A(f'v_and_b32 v{PR}, 15, v1')
    A(f'v_lshlrev_b32 v{PR}, 2, v{PR}')
    for j in range(4):
        A(f'buffer_load_dword v{EP+16+j}, v{PR}, s[24:27], 0 offen offset:{64*j} sc1')
        A(f'buffer_load_dword v{EP+24+j}, v{PR}, s[44:47], 0 offen offset:{64*j} sc1')
    A(f'v_lshrrev_b32 v{PR+1}, 4, v1')
    A(f'v_lshlrev_b32 v{PR+1}, 3, v{PR+1}')
    A('s_lshl_b32 s19, s16, 6')
    A(f'buffer_load_dwordx2 {vr(EP+20,2)}, v{PR+1}, s[28:31], s19 offen')
    A(f'buffer_load_dwordx2 {vr(EP+22,2)}, v{PR+1}, s[28:31], s19 offen offset:32')
    A('s_waitcnt lgkmcnt(0)')
    L0 = opt.get('l0', 0)
    step(0, True, reads(1, 1, True), ADV[:3] + [ADV[3] + (late_store(0) if L0 == 0 else [])], zero=True)
    for k in range(1, L0 + 4):
        if k >= 3 or not opt.get('nb12', 0): A('s_barrier')
        step(1, True, reads(0, 0, True), [late_store(k - L0)] if k >= L0 else [])
        step(0, True, reads(1, 1, True), ADV)
    A(f's_mov_b32 s18, {L0 + 4}')
    A('.p2align 6')
    A.label(f'{name}_g2loop')
    A('s_barrier')
    step(1, True, reads(0, 0, True), [['s_waitcnt vmcnt(0)']])
    step(0, True, reads(1, 1, True), ADV[:3] + [ADV[3] + ['s_add_u32 s18, s18, 1', f's_cmp_lt_u32 s18, {N1}']])
    A(f's_cbranch_scc1 {name}_g2loop')
    A('s_mov_b32 s59, 0')
    A('s_mov_b32 s58, 400000')
    def check(tag, sp):
        A('s_cmp_lg_u32 s59, 0')
        A(f's_cbranch_scc1 {name}_done{tag}')
        A.label(f'{name}_poll{tag}')
        A('s_waitcnt vmcnt(0)')
        A(f'v_readfirstlane_b32 s59, v{PR+16}')
        A('s_cmp_eq_u32 s59, 1')
        A(f's_cbranch_scc1 {name}_got{tag}')
        A('s_mov_b32 s59, 0')
        if sp:
            A('s_sub_u32 s58, s58, 1')
            A(f's_cbranch_scc1 {name}_got{tag}')
            A('s_sleep 1')
        A(f'buffer_load_dword v{PR+16}, v{vFl}, s[36:39], s55 offen sc1')
        A(f's_branch {name}_poll{tag}' if sp else f's_branch {name}_done{tag}')
        A.label(f'{name}_got{tag}')
        for k in range(4):
            A(f'buffer_load_dwordx4 {vr(PR+4*k,4)}, v{vL16}, s[40:43], s57 offen offset:{k*1024} sc1')
        A.label(f'{name}_done{tag}')
    B = 184; C = 192
    pre = {1: ['v_and_b32 v6, 15, v1', 'v_lshrrev_b32 v7, 4, v1', 'v_and_b32 v2, 1, v7', 'v_lshrrev_b32 v7, 1, v7', 'v_lshl_add_u32 v7, v2, 1, v7',
               'v_lshrrev_b32 v2, 1, v6', 'v_xor_b32 v7, v7, v2', 'v_and_b32 v7, 3, v7', 'v_lshl_add_u32 v7, v6, 2, v7', 's_lshl_b32 s15, s12, 12',
               f's_add_u32 s15, s15, {STG}', 'v_lshl_add_u32 v4, v7, 4, s15', 'v_lshrrev_b32 v6, 2, v1', 'v_lshrrev_b32 v7, 3, v1', 'v_xor_b32 v7, v7, v1',
               'v_and_b32 v7, 3, v7', 'v_lshl_add_u32 v5, v1, 4, s15', 'v_lshlrev_b32 v6, 15, v6', 'v_lshl_add_u32 v6, v7, 4, v6', 's_lshl_b32 s19, s10, 11', 's_lshl_b32 s15, s13, 21', 's_add_u32 s19, s19, s15',
               's_lshl_b32 s16, s16, 6', 's_add_u32 s19, s19, s16', 's_mov_b32 s60, 0x3f80', 's_mov_b32 s61, 0x3f800000']}
    for i in range(2):
        for q in range(2):
            pre[1] += [f'v_lshlrev_b32 v{B+4*i+2*q}, 16, v{EP+20+2*i+q}', f'v_and_b32 v{B+4*i+2*q+1}, 0xffff0000, v{EP+20+2*i+q}']
    for j in range(4):
        l = pre.setdefault(2 + j, [])
        for i in range(2):
            c = C + (i*4+j)*4
            for q in range(2):
                l += [f'v_lshlrev_b32 v{c+2*q}, 16, v{EP+4*j+2*i+q}', f'v_and_b32 v{c+2*q+1}, 0xffff0000, v{EP+4*j+2*i+q}']
            l += [f'v_pk_add_f32 {vr(c+2*q,2)}, {vr(c+2*q,2)}, {vr(B+4*i+2*q,2)}' for q in range(2)]
            l += [f'v_add_f32 v{c+r}, v{c+r}, v{EP+24+j}' for r in range(4)]
    assert N2 >= 6
    for it in range(N2):
        A('s_barrier')
        if it == 0:
            step(1, True, reads(0, 0, False), xfirst=True)
            for k in range(4):
                for c in range(4*k, 4*k+4): A(f'v_cvt_pk_bf16_f32 v{AX+c}, v{AX+2*c}, v{AX+2*c+1}')
                A(f'buffer_store_dwordx4 {vr(AX+4*k,4)}, v{vL16}, s[40:43], s56 offen offset:{k*1024} sc1')
        else:
            if it == SIG:
                A('s_waitcnt vmcnt(0)')
                A(f'v_mov_b32 v{PR}, 1')
                A(f'buffer_store_dword v{PR}, v{vFl}, s[36:39], s54 offen sc1')
            if it == POLL:
                A(f'buffer_load_dword v{PR+16}, v{vFl}, s[36:39], s55 offen sc1')
            if it > POLL: check(it, False)
            step(1, False, reads(0, 0, False))
            for x in pre.get(it, []): A(x)
        step(0, False, reads(1, 1, False), ADV if it < N2 - 1 else ())
    check('L', True)
    step(1, False, [])
    st(12)
    A('s_waitcnt vmcnt(0)')
    T = 40
    for j in range(4):
        d = T + 4*j
        for i in range(2):
            a = AO + (i*4+j)*4; pr = PR + (i*4+j)*2
            for r in range(4): A(f'v_dot2_f32_bf16 v{a+r}, v{pr+(r>>1)}, s{60+(r&1)}, v{a+r}')
        for i in range(2):
            a = AO + (i*4+j)*4
            for r in range(4): A(f'v_fma_f32 v{a+r}, v{a+r}, v{EP+16+j}, v{C+(i*4+j)*4+r}')
        for i in range(2):
            a = AO + (i*4+j)*4
            A(f'v_cvt_pk_bf16_f32 v{d+2*i}, v{a}, v{a+1}')
            A(f'v_cvt_pk_bf16_f32 v{d+2*i+1}, v{a+2}, v{a+3}')
        A(f'v_permlane16_swap_b32 v{d}, v{d+2}')
        A(f'v_permlane16_swap_b32 v{d+1}, v{d+3}')
        A(f'ds_write_b128 v4, {vr(d,4)} offset:{1024*j}')
        A(f'ds_read_b128 {vr(76+4*j,4)}, v5 offset:{1024*j}')
        if j:
            A('s_waitcnt lgkmcnt(2)')
            A(f'buffer_store_dwordx4 {vr(72+4*j,4)}, v6, s[32:35], s19 offen {opt.get("omod", "sc1")}')
            A(f's_add_u32 s19, s19, {16*16*2048}')
    A('s_waitcnt lgkmcnt(0)')
    A(f'buffer_store_dwordx4 {vr(88,4)}, v6, s[32:35], s19 offen {opt.get("omod", "sc1")}')

def loaders(A, name, opt):
    NS = 4; N2 = opt.get('n2', 8); N1 = (56 - N2) // 2; NT = N1 + N2
    hm = opt.get('hmod', 'sc1')
    lst0 = Stamper(A, opt.get('stamp') == 1, 1)
    class LS:
        def __call__(self, i, real=False, ph=2):
            if i in (1, 2, 3, 4) and ph != opt.get('lph', 2): return
            lst0(i, real)
        def dump(self, *a): lst0.dump(*a)
    lst = LS()
    A('s_load_dwordx4 s[64:67], s[0:1], %d' % KA['w1'])
    A('s_load_dwordx4 s[48:51], s[0:1], %d' % KA['w2'])
    A('s_sub_u32 s12, s12, 4')
    g1_decode(A)
    A('s_lshl_b32 s15, s12, 17')
    A('v_lshlrev_b32 v8, 4, v1')
    skipmap(A, 8, 8, 0, 9)
    A('v_add_u32 v8, s15, v8')
    A('v_add_u32 v9, 0x10000, v8')
    A('s_lshr_b32 s15, s12, 1')
    A('s_lshl_b32 s15, s15, 6')
    A('s_and_b32 s16, s12, 1')
    A('s_lshl_b32 s16, s16, 4')
    A('s_add_u32 s15, s15, s16')
    A('s_and_b32 s16, s11, 1')
    w_voffs(A, 10, 1, 15, 16, 4, range(6 if opt.get('wh', 0) else 7))
    A('s_lshl_b32 s43, s12, 12')
    A('s_mul_i32 s44, s12, 7168')
    A(f's_add_u32 s44, s44, {WB0}')
    A('s_mov_b32 s41, 0')
    A('s_mov_b32 s42, 0')
    A('s_lshl_b32 s15, s12, 8')
    A('v_and_b32 v3, 15, v1')
    A('v_lshlrev_b32 v3, 4, v3')
    A('v_lshrrev_b32 v4, 4, v1')
    A('v_lshl_add_u32 v3, v4, 10, v3')
    A('v_add_u32 v3, s15, v3')
    A('v_and_b32 v17, 15, v1')
    A('v_lshlrev_b32 v17, 7, v17')
    A('v_mov_b32 v20, 1')
    A('v_mov_b32 v21, 0')
    A('s_and_b32 s13, s2, 7')
    A('s_sub_u32 s15, 16, s13')
    A('s_cmp_eq_u32 s13, 0')
    A('s_cselect_b32 s15, 8, s15')
    A('s_bitcmp1_b32 s2, 3')
    A('s_cselect_b32 s13, s15, s13')
    A('s_lshl_b32 s13, s13, 4')
    A('s_lshr_b32 s15, s2, 4')
    A('s_add_u32 s13, s13, s15')
    A('s_lshl_b32 s13, s13, 7')
    A('s_lshl_b32 s14, s10, 4')
    A('s_add_u32 s14, s14, s11')
    A('s_lshl_b32 s14, s14, 7')
    A(f's_add_u32 s14, s14, {FL2}')
    A('s_lshl_b32 s15, s10, 19')
    A(f's_add_u32 s15, s15, {HS_OFF}')
    A('s_mul_i32 s16, s11, 448')
    A(f's_sub_u32 s19, {1024*7168}, s16')
    A('s_waitcnt lgkmcnt(0)')
    A('s_lshl_b32 s17, s12, 7')
    A('s_add_u32 s18, s17, s16')
    A('s_min_u32 s18, s18, 7040')
    A('s_load_dwordx2 s[62:63], s[66:67], s18 offset:60')
    A('s_and_b32 s18, s11, 3')
    A('s_lshl_b32 s18, s18, 9')
    A('s_add_u32 s18, s18, s17')
    A('s_load_dwordx2 s[62:63], s[50:51], s18 offset:60')
    srd(A, 20, 4, 's15', 512 * 1024)
    srd(A, 24, 64, 's16', 's19')
    if opt.get('wh', 0):
        A('s_lshl_b32 s15, s11, 16')
        A(f's_add_u32 s15, s15, {WH_OFF}')
        srd(A, 28, 4, 's15', 65536)
        A('s_mov_b32 s51, 0')
        A('s_lshr_b32 s15, s12, 1')
        A('s_lshl_b32 s15, s15, 12')
        A('s_and_b32 s17, s12, 1')
        A('s_lshl_b32 s17, s17, 10')
        A('s_add_u32 s15, s15, s17')
        A('v_lshrrev_b32 v16, 3, v1')
        A('v_and_b32 v16, 2, v16')
        A('v_xor_b32 v16, v16, v1')
        A('v_lshl_add_u32 v16, v16, 4, s15')
    A('s_lshl_b32 s15, s10, 14')
    A(f's_add_u32 s15, s15, {ST_OFF}')
    srd(A, 32, 4, 's15', 16384)
    A('s_lshl_b32 s15, s10, 9')
    A(f's_add_u32 s15, s15, {R2_OFF}')
    srd(A, 36, 4, 's15', 512)
    srd(A, 52, 4, FL_OFF, FL_SIZE)
    srd(A, 56, 48, 0, 3584 * 2048)
    A('s_lshl_b32 s60, s2, 2')
    A('s_add_u32 s60, s60, s12')
    NL2 = 5 if opt.get('sw1', 0) else 4
    A(f's_mul_i32 s60, s60, {128*NL2}')
    A(f's_mov_b32 s50, {(6 if NL2 == 5 else 8) * (NL2 << 17)}')
    hstep = [8192]
    A('v_add_u32 v26, 3072, v8')
    A('v_add_u32 v27, 3072, v9')
    def issue_h(lds):
        A(f's_add_u32 m0, {lds}, s43')
        A('s_nop 0')
        A(f'buffer_load_dwordx4 v8, s[20:23], s41 offen {hm} lds')
        A(f'buffer_load_dwordx4 v26, s[20:23], s41 offen offset:1024 {hm} lds')
        A('s_add_u32 m0, m0, 2048')
        A('s_nop 0')
        A(f'buffer_load_dwordx4 v9, s[20:23], s41 offen {hm} lds')
        A(f'buffer_load_dwordx4 v27, s[20:23], s41 offen offset:1024 {hm} lds')
        A(f's_add_u32 s41, s41, {hstep[0]}')
    def issue_w(lds, srdn=24, so='s42'):
        A(f's_add_u32 s45, {lds}, s44')
        for q in range(7):
            A(f's_add_u32 m0, s45, {q*1024}')
            A('s_nop 0')
            if q < 6 or not opt.get('wh', 0): A(f'buffer_load_dwordx4 v{10+q}, s[24:27], s42 offen lds')
            else: A('buffer_load_dwordx4 v16, s[28:31], s51 offen lds')
        A(f's_add_u32 s42, s42, {128*7168}')
        if opt.get('wh', 0): A('s_add_u32 s51, s51, 8192')
    def sp2():
        if opt.get('nosp2'): return
        for k in range(NL2): A(f's_buffer_load_dwordx2 s[62:63], s[56:59], s60 offset:{128*k + 60}')
        A('s_add_u32 s60, s60, s50')
        A(f's_sub_u32 s50, {NL2 << 17}, s50')
    sw1 = opt.get('sw1', 0)
    if sw1:
        srd(A, 68, 64, 32 * 7168, 992 * 7168)
        A('s_lshr_b32 s61, s2, 4')
        A('s_lshl_b32 s61, s61, 5')
        A('s_and_b32 s15, s2, 15')
        A('s_add_u32 s61, s61, s15')
        A('s_lshl_b32 s61, s61, 2')
        A('s_add_u32 s61, s61, s12')
        A('s_mul_i32 s61, s61, 3584')
    def sp1(b):
        if sw1:
            for k in range(7): A(f's_buffer_load_dwordx2 s[62:63], s[68:71], s61 offset:{896*b + 128*k + 60}')
    sp1(0)
    def only0(tag, ins):
        A('s_cmp_lg_u32 s12, 0')
        A(f's_cbranch_scc1 {tag}')
        for x in ins: A(x)
        A.label(tag)
    A('s_barrier')
    NWA = opt.get('nwa', 1)
    for k in range(NWA): issue_w(k * WS)
    if sw1: sp1(1)
    else: sp2(); sp2()
    A('s_lshl_b32 s15, s10, 11')
    lst(1, ph=1)
    A('s_barrier')
    lst(2, ph=1)
    only0(f'{name}_f1', ['buffer_store_dword v20, v21, s[52:55], s13 offen sc1'])
    for k in range(NWA, 3): issue_w(k * WS)
    sp1(2)
    A('s_cmp_lg_u32 s12, 0')
    A(f's_cbranch_scc1 {name}_fl1_go')
    spin(A, f'{name}_fl1', 52, 15, 36, 17, 47, opt.get('pdepth', 1), opt.get('pgap', 1))
    lst(3, ph=1)
    A('s_barrier')
    for k in range(3): issue_h(k * HS)
    sp1(3)
    A('s_mov_b32 s40, 0')
    A('s_mov_b32 s46, 0')
    A('s_waitcnt vmcnt(8)')
    lst(4, ph=1)
    A('s_barrier')
    sig5 = lambda: only0(f'{name}_no5', [f's_add_u32 s13, s13, {FL5}', 'buffer_store_dword v20, v21, s[52:55], s13 offen sc1'])
    sig5()
    A('s_waitcnt vmcnt(4)')
    A('s_barrier')
    def issue():
        issue_h('s40'); issue_w('s46')
        A(f's_add_u32 s40, s40, {HS}')
        A(f's_add_u32 s46, s46, {WS}')
        A(f's_cmp_eq_u32 s40, {3*HS}')
        A('s_cselect_b32 s40, 0, s40')
        A('s_cselect_b32 s46, 0, s46')
    def stats():
        for c in range(4):
            A(f'v_add_f32 v{40+c}, v{40+c}, v{44+c}')
            A(f'v_add_f32 v{48+c}, v{48+c}, v{52+c}')
        for c in range(4): A(f'v_add_f32 v{40+c}, v{40+c}, v{48+c}')
        A('v_permlane32_swap_b32 v40, v42')
        A('v_permlane32_swap_b32 v41, v43')
        A('v_add_f32 v40, v40, v42')
        A('v_add_f32 v41, v41, v43')
        A('v_mov_b32 v42, v40')
        A('v_mov_b32 v43, v41')
        A('v_permlane16_swap_b32 v40, v42')
        A('v_permlane16_swap_b32 v41, v43')
        A('v_add_f32 v40, v40, v42')
        A('v_add_f32 v41, v41, v43')
        ln_finish(A, 40, 41, 22, 23, 24, 47)
        A('v_lshrrev_b32 v28, 16, v23')
        A('v_and_b32 v4, 15, v1')
        A('v_lshrrev_b32 v5, 5, v1')
        A('v_lshl_add_u32 v2, v4, 1, v5')
        A('s_lshl_b32 s15, s12, 7')
        A(f's_add_u32 s15, s15, {SGB}')
        A('v_lshl_add_u32 v5, v2, 2, s15')
        A('ds_write_b32 v5, v28')
        A('v_mul_f32 v23, v23, v23')
        A('v_rcp_f32 v23, v23')
        A('s_lshl_b32 s15, s12, 7')
        A('v_lshlrev_b32 v5, 2, v2')
        A('buffer_store_dword v23, v5, s[36:39], s15 offen sc1')
    def loop1(tag, first, last):
        A(f's_mov_b32 s18, {first}')
        A.label(f'{name}_{tag}')
        issue()
        if last == 15:
            A('s_cmp_eq_u32 s18, 15')
            A(f's_cbranch_scc1 {name}_nosp')
            if NL2 == 4:
                A('s_cmp_eq_u32 s18, 13')
                A('s_cselect_b32 s50, 0x80000, s50')
        sp2()
        if last == 15: A.label(f'{name}_nosp')
        A('s_add_u32 s18, s18, 1')
        A(f's_cmp_le_u32 s18, {last}')
        A('s_waitcnt vmcnt(11)')
        A('s_barrier')
        A(f's_cbranch_scc1 {name}_{tag}')
    loop1('l1a', 3, 4)
    A(f's_add_u32 s15, s15, {FL5}')
    A('buffer_load_dword v36, v17, s[52:55], s15 offen sc1')
    issue(); sp2()
    A('s_waitcnt vmcnt(11)')
    A('s_barrier')
    A('v_cmp_ne_u32 vcc, 1, v36')
    A(f's_cbranch_vccz {name}_fl5_go')
    spin(A, f'{name}_fl5', 52, 15, 36, 17, 47, 1, 1)
    for k in range(4):
        A(f's_mov_b32 s47, {4096*k}')
        A(f'buffer_load_dwordx4 {vr(40+4*k,4)}, v3, s[32:35], s47 offen sc1')
    loop1('l1b', 6, 7)
    A('s_mov_b32 s41, 2048')
    A(f's_mov_b32 s42, {32*7168}')
    if opt.get('wh', 0): A('s_mov_b32 s51, 2048')
    issue(); sp2()
    stats()
    A('s_waitcnt vmcnt(12)')
    A('s_barrier')
    loop1('l1c', 9, 15)
    A('s_waitcnt vmcnt(0) lgkmcnt(0)')
    A('s_barrier')
    g2_decode(A)
    gs = opt.get('gskip', 1); TT = GTT if gs else 112 * 1024; hstep[0] = GST if gs else 2048
    A(f's_mul_i32 s15, s12, {2*TT}')
    A('v_lshlrev_b32 v8, 4, v1')
    if gs:
        skipmap(A, 26, 8, 1, 4)
        skipmap(A, 8, 8, 0, 4)
        A('v_subrev_u32 v26, 1024, v26')
    else:
        A('v_mov_b32 v26, v8')
    A('v_add_u32 v8, s15, v8')
    A('v_add_u32 v26, s15, v26')
    A(f'v_add_u32 v9, {TT}, v8')
    A(f'v_add_u32 v27, {TT}, v26')
    A('v_lshrrev_b32 v4, 3, v1')
    A('s_lshl_b32 s15, s12, 4')
    A('v_add_u32 v4, s15, v4')
    A('v_lshlrev_b32 v4, 11, v4')
    A('v_and_b32 v5, 1, v1')
    A('v_lshl_add_u32 v4, v5, 4, v4')
    A('v_lshrrev_b32 v5, 4, v1')
    A('v_and_b32 v5, 1, v5')
    A('v_lshrrev_b32 v6, 1, v1')
    A('v_and_b32 v6, 3, v6')
    A('v_xor_b32 v5, v5, v6')
    A('v_lshl_add_u32 v4, v5, 5, v4')
    A('v_xor_b32 v5, 64, v4')
    A(f'v_add_u32 v5, {16384 - 1024}, v5')
    A('v_lshrrev_b32 v6, 3, v1')
    A('v_cmp_eq_u32 vcc, 3, v6')
    A('v_cndmask_b32 v6, v6, 7, vcc')
    for hsel, (va, sr_) in enumerate(((10, 24), (12, 32))):
        if hsel == 0: A('s_mov_b32 s16, s11')
        else: A('s_xor_b32 s16, s11, 1')
        A('s_and_b32 s19, s16, 8')
        A('v_add_u32 v7, s19, v6')
        A('v_lshlrev_b32 v14, 7, v7')
        A('v_xor_b32 v15, 0x400, v14')
        A('s_and_b32 s15, s16, 7')
        A('s_lshl_b32 s16, s16, 7')
        A('v_mov_b32 v7, s16')
        A(f's_add_u32 s{sr_}, s4, {WC_OFF}')
        A(f's_addc_u32 s{sr_+1}, s5, 0')
        A(f's_cmp_eq_u32 s15, {3 if opt.get("wcopy", 1) else 9}')
        A('s_cselect_b64 vcc, -1, 0')
        A(f's_cselect_b32 s{sr_}, s{sr_}, s48')
        A(f's_cselect_b32 s{sr_+1}, s{sr_+1}, s49')
        A(f's_mov_b32 s{sr_+2}, {3584*2048}')
        A(f's_mov_b32 s{sr_+3}, 0x20000')
        A('v_cndmask_b32 v14, v7, v14, vcc')
        A('v_cndmask_b32 v15, v7, v15, vcc')
        A(f'v_add_u32 v{va}, v4, v14')
        A(f'v_add_u32 v{va+1}, v5, v15')
    A('s_lshl_b32 s44, s12, 11')
    A('s_add_u32 s44, s44, 16384')
    assert N1 == 24
    def mask(st_): return sum(1 << x for x in st_)
    def m64(r, m):
        A(f's_mov_b32 s{r}, {m & 0xffffffff}'); A(f's_mov_b32 s{r+1}, {m >> 32}')
    def sel64(r, m_true, m_false):
        for h in range(2):
            A(f's_mov_b32 s{r+h}, {(m_false >> (32*h)) & 0xffffffff}')
            A(f's_cselect_b32 s{r+h}, {(m_true >> (32*h)) & 0xffffffff}, s{r+h}')
    A('s_and_b32 s15, s9, 7')
    A('s_cmp_eq_u32 s15, 7')
    sel64(38, mask(range(0, 4)), mask(range(24, 28)))
    A('s_cmp_eq_u32 s15, 0')
    sel64(30, mask(range(52, 56)), mask(range(28, 32)))
    A('s_or_b64 s[38:39], s[38:39], s[30:31]')
    A('s_cmp_lg_u32 s8, 0')
    sel64(30, mask(range(28, 56)), mask(range(0, 28)))
    A('s_andn2_b64 s[30:31], s[30:31], s[38:39]')
    A('s_mul_i32 s15, s9, 7')
    A('s_add_u32 s15, s15, 1')
    A('s_lshr_b32 s36, s15, 1')
    A('s_lshl_b64 s[28:29], 7, s36')
    A('s_andn2_b64 s[30:31], s[30:31], s[28:29]')
    m64(64, mask([x for x in range(56) if x % 7 in (1, 2, 5, 6)]))
    A('s_and_b64 s[28:29], s[30:31], s[64:65]')
    A('s_andn2_b64 s[30:31], s[30:31], s[64:65]')
    NE = 15
    def nxt(r=28):
        A(f's_ff1_i32_b64 s61, s[{r}:{r+1}]')
        A(f's_bitset0_b64 s[{r}:{r+1}], s61')
    def seth(): A(f's_mul_i32 s41, s61, {hstep[0]}')
    def setw(): A('s_lshl_b32 s42, s61, 17')
    A(f's_mul_i32 s15, s10, {8*TT}')
    A(f's_add_u32 s15, s15, {GS_OFF if gs else G_OFF}')
    srd(A, 20, 4, 's15', 8 * TT)
    def issue_w2(lds, full):
        A(f's_add_u32 m0, {lds}, s44')
        A('s_nop 0')
        A(f'buffer_load_dwordx4 v10, s[24:27], s42 offen lds')
        A(f'buffer_load_dwordx4 v11, s[24:27], s42 offen offset:1024 lds')
        if full:
            A('s_add_u32 m0, m0, 8192')
            A('s_nop 0')
            A(f'buffer_load_dwordx4 v12, s[32:35], s42 offen lds')
            A(f'buffer_load_dwordx4 v13, s[32:35], s42 offen offset:1024 lds')
        A(f's_add_u32 s42, s42, {64*2048}')
    def slotadv():
        A(f's_add_u32 s40, s40, {SLOT}')
        A(f's_cmp_eq_u32 s40, {NS*SLOT}')
        A('s_cselect_b32 s40, 0, s40')
    def issue2(full, r=None):
        if r is not None: nxt(r); seth(); setw()
        issue_h('s40'); issue_w2('s40', full)
        slotadv()
    A('s_lshl_b32 s42, s36, 17')
    for k in (2, 3, 0): issue_w2(k * SLOT, True)
    A('s_lshl_b32 s15, s10, 11')
    A(f's_add_u32 s15, s15, {FL2}')
    A('s_lshl_b32 s61, s8, 3')
    A('v_min_u32 v17, 7, v1')
    A('v_add_u32 v17, s61, v17')
    A('v_lshlrev_b32 v17, 7, v17')
    A('s_barrier')
    nxt(); setw(); seth()
    issue_w2(SLOT, True)
    lst(1)
    A('s_barrier')
    lst(2)
    only0(f'{name}_noa', ['buffer_store_dword v20, v21, s[52:55], s14 offen sc1'])
    A('s_waitcnt vmcnt(4)')
    A('s_barrier')
    if opt.get('nb12', 0):
        spin(A, f'{name}_fl2', 52, 15, 36, 17, 47, opt.get('pdepth', 1), opt.get('pgap', 1))
        lst(3)
        issue_h(SLOT)
        A(f's_mov_b32 s40, {2*SLOT}')
        A('s_waitcnt vmcnt(0)')
        lst(4)
        A('s_barrier')
        issue2(True, 28); issue2(True, 28)
    else:
        A('s_barrier')
        A('buffer_load_dword v38, v17, s[52:55], s15 offen sc1')
        A('s_barrier')
        A('s_waitcnt vmcnt(0)')
        A('v_cmp_ne_u32 vcc, 1, v38')
        A(f's_cbranch_vccz {name}_fl2_go')
        spin(A, f'{name}_fl2', 52, 15, 36, 17, 47, opt.get('pdepth', 1), opt.get('pgap', 1))
        lst(3)
        issue_h(SLOT)
        A(f's_mov_b32 s40, {2*SLOT}')
        issue2(True, 28); issue2(True, 28)
        A('s_waitcnt vmcnt(16)')
        lst(4)
        A('s_barrier')
    def loop(tag, n, r):
        A(f's_mov_b32 s18, {n}')
        A.label(f'{name}_{tag}')
        issue2(True, r)
        A('s_sub_u32 s18, s18, 1')
        A('s_cmp_lg_u32 s18, 0')
        A('s_waitcnt vmcnt(16)')
        A('s_barrier')
        A(f's_cbranch_scc1 {name}_{tag}')
    L0 = opt.get('l0', 0)
    loop('l2a', 2 + L0, 28)
    A('s_cmp_lg_u32 s12, 0')
    A(f's_cbranch_scc1 {name}_nob')
    A(f's_add_u32 s14, s14, {FL4 - FL2}')
    A('buffer_store_dword v20, v21, s[52:55], s14 offen sc1')
    A.label(f'{name}_nob')
    loop('l2b', NE - 9 - L0, 28)
    A(f's_add_u32 s15, s15, {FL4 - FL2}')
    A('v_and_b32 v17, 15, v1')
    A('v_lshlrev_b32 v17, 7, v17')
    A('buffer_load_dword v36, v17, s[52:55], s15 offen sc1')
    issue2(True, 28)
    A('s_waitcnt vmcnt(16)')
    A('s_barrier')
    A('s_waitcnt vmcnt(8)')
    A('v_cmp_ne_u32 vcc, 1, v36')
    A(f's_cbranch_vccz {name}_fl4_go')
    spin(A, f'{name}_fl4', 52, 15, 36, 17, 47, 1, 1)
    loop('l2c', N1 - NE, 30)
    cnt = lambda s: 0 if s >= NT else (8 if s < N1 else 6)
    for j in range(N1 - NS + 1, NT - 1):
        s = j + NS - 1
        if s < NT: issue2(False, 38)
        A(f's_waitcnt vmcnt({sum(cnt(x) for x in range(j + 2, j + NS))})')
        A('s_barrier')
    if opt.get('stamp') == 1:
        lst(5); lst(6, True); lst(8)
        A('s_cmp_lg_u32 s12, 0')
        A(f's_cbranch_scc1 {name}_end')
        lst.dump(9, 1, 60)

def gen_m(A, name='m_kernel', opt=None):
    opt = opt or {}
    khead(A, name)
    st = Stamper(A, opt.get('stamp'), 1)
    st(0); st(7, True)
    A('s_cmp_ge_u32 s2, 256')
    A(f's_cbranch_scc1 {name}_end')
    A('s_load_dwordx2 s[4:5], s[0:1], %d' % KA['ws'])
    A('s_load_dwordx2 s[6:7], s[0:1], %d' % KA['x'])
    A('v_lshrrev_b32 v2, 6, v0')
    A('v_and_b32 v1, 63, v0')
    A('v_readfirstlane_b32 s12, v2')
    A('s_cmp_ge_u32 s12, 4')
    A(f's_cbranch_scc1 {name}_loader')
    if opt.get('prio'): A(f's_setprio {opt["prio"]}')
    later = fb_compute(A, name, st, opt)
    late = g1_compute(A, name, st, opt, later)
    g2_compute(A, name, st, opt, late)
    A('s_waitcnt vmcnt(0)') if opt.get('stamp') else None
    st(5); st(6, True)
    st.dump(13, 0, 244)
    A('s_endpgm')
    A.label(f'{name}_loader')
    if opt.get('lprio'): A(f's_setprio {opt["lprio"]}')
    loaders(A, name, opt)
    A.label(f'{name}_end')
    A('s_endpgm')
    return dict(name=name, grid=256, block=512, lds=M_LDS, vgpr=256)
```

```python
from common import *
from g1 import w_voffs, tr_bases

HS = 16384; WS = 28672; WB0 = 3 * HS
XB = 32768; EB = WB0 + 3 * WS
SLOT = 32768
SGB = EB + 1024
SYB = SGB + 512
R1, D1, R2W, D2 = 0, 64, 128, 384
STG = SYB
M_LDS = STG + 16384
FULL = 0x01010101
PX_OFF = 29 * MB
FL_OFF = 38 * MB
HS_OFF = 72 * MB
GS_OFF = 40 * MB; GST = 3072; GTT = 56 * GST
FL1, FL2, FL3, FL4, FL5 = 0, 32768, 65536, 196608, 229376
FL_SIZE = 2048 * 128

def spin(A, tag, srdn, soff, vflag, vaddr, scnt, depth=4, gap=2):
    A(f's_mov_b32 s{scnt}, 400000')
    ld = lambda k: A(f'buffer_load_dword v{vflag+k}, v{vaddr}, s[{srdn}:{srdn+3}], s{soff} offen sc1')
    for k in range(depth - 1):
        ld(k); A(f's_sleep {gap}')
    A.label(f'{tag}_spin')
    for k in range(depth):
        ld((k + depth - 1) % depth)
        A(f's_waitcnt vmcnt({depth - 1})')
        A(f'v_cmp_ne_u32 vcc, 1, v{vflag+k}')
        A(f's_cbranch_vccz {tag}_go')
        A(f's_sleep {gap}')
    A(f's_sub_u32 s{scnt}, s{scnt}, 1')
    A(f's_cbranch_scc0 {tag}_spin')
    A.label(f'{tag}_go')

def skipmap(A, dst, src, odd, t):
    if odd:
        A(f'v_cmp_lt_u32 vcc, 255, v{src}')
        A(f'v_add_u32 v{dst}, {1024 + 128}, v{src}')
    else:
        A(f'v_cmp_lt_u32 vcc, 383, v{src}')
        if dst != src: A(f'v_mov_b32 v{dst}, v{src}')
    A(f'v_add_u32 v{t}, 128, v{dst}')
    A(f'v_cndmask_b32 v{dst}, v{dst}, v{t}, vcc')

def g1_decode(A):
    A('s_and_b32 s8, s2, 7')
    A('s_lshr_b32 s9, s2, 3')
    A('s_and_b32 s10, s8, 1')
    A('s_lshl_b32 s10, s10, 3')
    A('s_and_b32 s11, s9, 7')
    A('s_add_u32 s10, s10, s11')
    A('s_lshr_b32 s11, s8, 1')
    A('s_lshl_b32 s11, s11, 2')
    A('s_lshr_b32 s9, s9, 3')
    A('s_add_u32 s11, s11, s9')

def g2_decode(A):
    A('s_mov_b32 s9, s11')
    A('s_lshr_b32 s8, s9, 3')
    A('s_and_b32 s11, s9, 7')
    A('s_lshl_b32 s11, s11, 1')
    A('s_add_u32 s11, s11, s8')

def fb_compute(A, name, st, opt):
    A('s_and_b32 s13, s2, 7')
    A('s_lshr_b32 s14, s2, 3')
    A('s_sub_u32 s15, 16, s13')
    A('s_cmp_eq_u32 s13, 0')
    A('s_cselect_b32 s15, 8, s15')
    A('s_bitcmp1_b32 s14, 0')
    A('s_cselect_b32 s10, s15, s13')
    A('s_lshr_b32 s11, s14, 1')
    A('s_sub_u32 s16, 16, s10')
    A('s_and_b32 s16, s16, 15')
    A('s_sub_u32 s17, 15, s11')
    A('s_lshr_b32 s19, s11, 3')
    A('s_cmp_lg_u32 s19, 0')
    A('s_cselect_b32 s16, s16, s10')
    A('s_cselect_b32 s17, s17, s11')
    vn, vg = 2, 3
    A(f'v_and_b32 v{vn}, 15, v1')
    A(f'v_lshrrev_b32 v{vg}, 4, v1')
    A('v_lshrrev_b32 v6, 3, v1')
    A(f'v_and_b32 v7, 1, v{vg}')
    A('v_lshrrev_b32 v8, 1, v1')
    A('v_and_b32 v8, 3, v8')
    A('v_xor_b32 v7, v7, v8')
    A('v_lshlrev_b32 v7, 5, v7')
    A('v_lshl_add_u32 v4, v6, 10, v7')
    A('v_and_b32 v7, 1, v1')
    A('v_lshl_add_u32 v4, v7, 4, v4')
    A('v_add_u32 v7, s17, v6')
    A('v_and_b32 v7, 7, v7')
    A('v_lshl_add_u32 v4, v7, 7, v4')
    A('v_xor_b32 v5, 64, v4')
    A(f'v_add_u32 v5, {8192 - 1024}, v5')
    A('s_lshl_b32 s14, s16, 2')
    A('s_add_u32 s14, s14, s12')
    A('s_lshl_b32 s14, s14, 16')
    A('s_lshl_b32 s18, s12, 13')
    A(f'v_xor_b32 v8, v{vg}, v1')
    A('v_and_b32 v8, 7, v8')
    A('v_lshlrev_b32 v8, 4, v8')
    A('v_lshl_add_u32 v246, v6, 15, v8')
    A('v_xor_b32 v247, 64, v246')
    A(f'v_add_u32 v247, {8*32768 - 1024}, v247')
    A('s_lshl_b32 s61, s12, 19')
    A('s_lshl_b32 s15, s10, 11')
    A('s_add_u32 s61, s61, s15')
    A('s_lshl_b32 s15, s11, 7')
    A('s_add_u32 s61, s61, s15')
    A('s_lshl_b32 s62, s12, 12')
    A(f's_add_u32 s62, s62, {XB}')
    A('s_lshl_b32 s63, s10, 3')
    A('s_add_u32 s63, s63, s11')
    A('s_lshl_b32 s63, s63, 9')
    A('s_sub_u32 s63, s63, 512')
    A('s_cmp_eq_u32 s11, 0')
    A('s_cselect_b32 s15, 65536, 0')
    A('s_add_u32 s63, s63, s15')
    A('s_cmp_lt_u32 s11, 8')
    A('s_cselect_b32 s63, s63, 0x40000000')
    A('s_lshl_b32 s15, s16, 12')
    A('v_mov_b32 v9, s15')
    A('v_mov_b32 v10, s63')
    A('v_cmp_gt_u32 vcc, 32, v1')
    A('v_cndmask_b32 v9, v10, v9, vcc')
    A('v_lshl_add_u32 v9, v1, 4, v9')
    A(f'v_lshlrev_b32 v245, 6, v{vn}')
    A('s_lshl_b32 s64, s12, 8')
    A('s_add_u32 s64, s64, s10')
    A('s_lshl_b32 s64, s64, 2')
    FR = [16, 48]; EF = 80; B = [112, 144]; ACC = [176, 192]; MA = [208, 212]; VT = 216; VX = 220; X = [224, 232]; VB = 240; MXV = [241, 242]; VH = 243; VE = 244
    A('s_lshl_b32 s15, s12, 4')
    A(f'v_add_u32 v6, s15, v{vn}')
    A('s_cmp_lg_u32 s10, 0')
    A('s_cselect_b32 s15, -1, 0')
    A('v_sub_u32 v7, s15, v6')
    A('s_cmp_lg_u32 s19, 0')
    A('s_cselect_b64 vcc, -1, 0')
    A('v_cndmask_b32 v6, v6, v7, vcc')
    A('v_and_b32 v6, 127, v6')
    A('v_cvt_f32_u32 v7, v6')
    A('v_mul_f32 v7, 0x3c000000, v7')
    A(f'v_lshlrev_b32 v10, 3, v{vg}')
    A('v_cvt_f32_u32 v10, v10')
    A('v_mul_f32 v10, v10, v7')
    B0 = B[0]
    for j in range(8):
        if j: A('v_add_f32 v10, v10, v7')
        A(f'v_cos_f32 v{12+(j&1)}, v10')
        A(f'v_sin_f32 v{14+(j&1)}, v10')
        if j & 1:
            A(f'v_cvt_pk_bf16_f32 v{B0+j//2}, v12, v13')
            A(f'v_cvt_pk_bf16_f32 v{B0+16+j//2}, v14, v15')
    A('s_waitcnt lgkmcnt(0)')
    srd(A, 20, 4, U_OFF, 4 * MB)
    srd(A, 28, 4, E_OFF, 131072)
    for h in range(4):
        A(f's_add_u32 m0, s18, {h*2048}')
        A('s_nop 0')
        A(f'buffer_load_dwordx4 v4, s[20:23], s14 offen lds')
        A(f'buffer_load_dwordx4 v5, s[20:23], s14 offen offset:1024 lds')
        if h < 3: A('s_add_u32 s14, s14, 16384')
    A(f's_mov_b32 m0, {EB}')
    srd(A, 24, 6, 0, 2048 * 2048)
    A('buffer_load_dwordx4 v9, s[28:31], 0 offen lds')
    A('v_and_b32 v8, 1, v6')
    A('v_cmp_eq_u32 vcc, 1, v8')
    A('v_mul_u32_u24 v8, 0x8000, v8')
    A('v_lshl_or_b32 v8, v8, 16, v8')
    A('v_and_b32 v10, 2, v6')
    A('v_mul_u32_u24 v10, 0x4000, v10')
    A('v_lshl_or_b32 v10, v10, 16, v10')
    A('v_xor_b32 v11, v10, v8')
    for k in range(4):
        A(f'v_cndmask_b32 v12, v{B0+k}, v{B0+16+k}, vcc')
        A(f'v_cndmask_b32 v13, v{B0+16+k}, v{B0+k}, vcc')
        A(f'v_xor_b32 v{B0+4+k}, v11, v12')
        A(f'v_xor_b32 v{B0+20+k}, v10, v13')
    for k in range(8):
        A(f'v_xor_b32 v{B0+8+k}, v8, v{B0+k}')
        A(f'v_xor_b32 v{B0+24+k}, v8, v{B0+16+k}')
    A('s_brev_b32 s15, 1')
    for k in range(32): A(f'v_xor_b32 v{B[1]+k}, s15, v{B0+k}')
    srd(A, 40, 4, MX_OFF, 8192)
    for u in range(2):
        A(f's_add_u32 m0, s62, {u*2048}')
        if u: A(f's_add_u32 s61, s61, {4 << 19}')
        else: A('s_nop 0')
        A('buffer_load_dwordx4 v246, s[24:27], s61 offen lds')
        A('buffer_load_dwordx4 v247, s[24:27], s61 offen offset:1024 lds')
    A('s_add_u32 s14, s64, 4096')
    A(f'buffer_load_dword v{MXV[0]}, v245, s[40:43], s64 offen')
    A(f'buffer_load_dword v{MXV[1]}, v245, s[40:43], s14 offen')
    A(f'v_lshrrev_b32 v10, 2, v{vn}')
    A(f'v_lshl_add_u32 v10, v{vg}, 3, v10')
    A(f'v_lshrrev_b32 v11, 3, v{vn}')
    A(f'v_and_b32 v12, 1, v{vg}')
    A('v_lshl_add_u32 v11, v12, 1, v11')
    A('v_lshlrev_b32 v11, 5, v11')
    A('v_lshl_add_u32 v10, v10, 7, v11')
    A(f'v_and_b32 v11, 3, v{vn}')
    A(f'v_lshl_add_u32 v{VT}, v11, 3, v10')
    A('s_mul_i32 s15, s19, 96')
    A(f'v_xor_b32 v{VT}, s15, v{VT}')
    for i in range(1, 4): A(f'v_xor_b32 v{VT+i}, {(2*(i&1) + (i>>1))*32}, v{VT}')
    A(f'v_and_b32 v11, 1, v{vn}')
    A('v_lshlrev_b32 v11, 9, v11')
    A(f'v_lshl_add_u32 v11, v{vg}, 4, v11')
    A(f'v_add_u32 v{VE}, {EB}, v11')
    A('s_mul_i32 s15, s19, 3')
    A(f'v_xor_b32 v10, s15, v{vg}')
    A('v_lshrrev_b32 v11, 1, v10')
    A(f'v_lshrrev_b32 v12, 1, v{vn}')
    A('v_xor_b32 v11, v11, v12')
    A('v_lshlrev_b32 v11, 4, v11')
    A(f'v_lshl_add_u32 v11, v{vn}, 7, v11')
    A('v_and_b32 v12, 1, v10')
    A('v_lshl_add_u32 v11, v12, 3, v11')
    A(f'v_add_u32 v{VX}, s62, v11')
    for i in range(1, 4): A(f'v_xor_b32 v{VX+i}, {32*i}, v{VX}')
    A(f'v_lshl_add_u32 v10, v10, 4, v{vn}')
    A(f'v_lshlrev_b32 v{VH}, 4, v10')
    A('v_add_u32 v10, 48, v1')
    A('v_and_b32 v10, 63, v10')
    A(f'v_lshlrev_b32 v{VB}, 2, v10')
    A(f'v_cmp_eq_u32 s[46:47], 0, v{vg}')
    srd(A, 52, 4, HS_OFF, 8 * MB)
    skipmap(A, VH, VH, 0, 10)
    A('s_cmp_eq_u32 s11, 0')
    A('s_cselect_b32 s15, 8192, 0')
    srd(A, 32, 4, MU_OFF, 's15')
    srd(A, 36, 4, FL_OFF, FL_SIZE)
    A('s_lshl_b32 s13, s10, 3')
    A('s_add_u32 s13, s13, s12')
    st(1)
    A('s_waitcnt vmcnt(6)')
    A('s_barrier')
    st(2)
    def frag(i, p): return FR[i & 1] + 4 * p
    def rd(h):
        i = h >> 1
        return [f'ds_read_b64_tr_b16 {vr(frag(i,p)+2*r2,2)}, v{VT+i} offset:{(32*p+4*r2)*128}' for p in range(4*(h & 1), 4*(h & 1) + 4) for r2 in range(2)]
    def mf(d, a, b, z): return f'v_mfma_f32_16x16x32_bf16 {vr(d,4)}, {vr(a,4)}, {vr(b,4)}, {"0" if z else vr(d,4)}'
    NEG = [EF, EF + 4]
    def half(h):
        out = [mf(ACC[u] + 4*(h >> 1), frag(h >> 1, p), B[u] + 4*p, p == 0) for p in range(4*(h & 1), 4*(h & 1) + 4) for u in range(2)]
        if h in (2, 4, 6): out[:2] = [out[u][:-1] + vr(NEG[u], 4) for u in range(2)]
        return out
    ONE = 4; S = [5, 7]; Q = [6, 8]; TM = EF; OUT = EF + 16
    E = AutoLgkm(A)
    for x in rd(0) + [f'ds_read_b128 {vr(EF+4*p,4)}, v{VE} offset:{64*p}' for p in range(8)]: E(x)
    for x in weave(half(0), rd(1), per=2): E(x)
    for x in weave([mf(MA[u], EF + 4*p, B[u] + 4*p, p == 0) for p in range(8) for u in range(2)], rd(2), per=1): E(x)
    misc = [f'v_mov_b32 v{ONE}, 0x3f803f80'] + [f'v_mov_b32 v{r}, 0' for r in S + Q] + [f'v_lshlrev_b32 v9, 2, v{vn}', 's_lshl_b32 s60, s13, 6',
            's_lshl_b32 s14, s13, 16', 's_lshl_b32 s15, s11, 12', 's_add_u32 s14, s14, s15', 's_add_u32 s15, s14, 0x40000']
    misc += ['s_mov_b32 s62, 0x3f80', 's_mov_b32 s63, 0x3f800000']
    mu = ['s_waitcnt vmcnt(0)'] + [f'v_add_f32 v{MA[u]}, v{MA[u]}, v{MXV[u]}' for u in range(2)] + \
         [f'v_sub_f32 v{NEG[u]+k}, 0, v{MA[u]}' for u in range(2) for k in range(4)]
    for x in weave(half(1), rd(3)[:6] + mu + rd(3)[6:], per=3): E(x)
    xr = [f'ds_read_b64 {vr(X[u]+2*k2,2)}, v{VX+k2} offset:{u*2048}' for k2 in range(4) for u in range(2)]
    for x in weave(half(2), rd(4) + xr + misc[:6], per=3): E(x)
    t0 = [f'v_sub_f32 v{MA[u]+1}, v{MA[u]+1}, v{MA[u]}' for u in range(2)] + [f'v_sub_f32 v{ACC[u]+k}, v{ACC[u]+k}, v{MA[u]}' for u in range(2) for k in range(4)]
    for x in weave(half(3), rd(5) + misc[6:] + t0, per=3): E(x)
    def epi(V, pr):
        out = []
        for u in range(2):
            if opt.get('edot', 0):
                out += [f'v_dot2_f32_bf16 v{V[u][i][r]}, v{X[u]+2*i+(r>>1)}, s{62+(r&1)}, v{V[u][i][r]}' for i in (2*pr, 2*pr + 1) for r in range(4)]
            else:
                t = EF + 8
                out += [[(f'v_lshlrev_b32 v{t+r}, 16, v{X[u]+2*i+(r>>1)}' if r % 2 == 0 else f'v_and_b32 v{t+r}, 0xffff0000, v{X[u]+2*i+(r>>1)}') + '\n' +
                         f'v_add_f32 v{V[u][i][r]}, v{V[u][i][r]}, v{t+r}'][0] for i in (2*pr, 2*pr + 1) for r in range(4)]
        for u in range(2):
            o = OUT + 8*u + 4*pr
            out += [f'v_cvt_pk_bf16_f32 v{o+2*i2+q}, v{V[u][2*pr+i2][2*q]}, v{V[u][2*pr+i2][2*q+1]}' for i2 in range(2) for q in range(2)]
            out.append(f'buffer_store_dwordx4 {vr(o,4)}, v{VH}, s[52:55], s{14+u} offen offset:{pr*2048} sc1')
        return out
    def dots(pr): return [x for u in range(2) for k in range(4) for x in
                          (f'v_dot2_f32_bf16 v{S[u]}, v{OUT+8*u+4*pr+k}, v{ONE}, v{S[u]}', f'v_dot2_f32_bf16 v{Q[u]}, v{OUT+8*u+4*pr+k}, v{OUT+8*u+4*pr+k}, v{Q[u]}')]
    RP = 10; SH = 248
    A('s_cmp_lg_u32 s19, 0')
    A(f's_cbranch_scc1 {name}_up')
    pend0 = list(E.pend)
    for lower in (1, 0):
        if not lower:
            A.label(f'{name}_up'); A('s_nop 7'); E.pend = list(pend0)
        if lower:
            V = [[[SH+4*u+i, ACC[u]+4*i, ACC[u]+4*i+1, ACC[u]+4*i+2] for i in range(4)] for u in range(2)]
            def rot(i): return [f'ds_bpermute_b32 v{RP+3*u+(i%3)}, v{VB}, v{ACC[u]+4*i+3}' for u in range(2)]
            def sel(i): return [f'v_cndmask_b32 v{SH+4*u+i}, v{RP+3*u+(i%3)}, v{RP+3*u+((i-1)%3) if i else MA[u]+1}, s[46:47]' for u in range(2)]
        else:
            V = [[[ACC[u]+4*i+3-r for r in range(4)] for i in range(4)] for u in range(2)]
            rot = sel = lambda i: []
        e0 = [y for x in sel(0) + sel(1) + epi(V, 0) for y in x.split('\n')]
        if opt.get('e0', 1):
            seq = rot(0) + rd(6)[:4] + rot(1) + rd(6)[4:] + e0 + rd(7) + rot(2)
            for x in weave(half(4) + half(5) + half(6), seq, per=3) + weave(half(7), sel(2), per=3): E(x)
        else:
            for x in weave(half(4), rot(0) + rd(6) + rot(1), per=2): E(x)
            for x in weave(half(5), rd(7) + e0[:24], per=4): E(x)
            for x in weave(half(6), e0[24:] + rot(2), per=3) + weave(half(7), sel(2), per=3): E(x)
        e1 = epi(V, 1)
        hst = [x for x in e1 if x.startswith('buffer_store')]
        e1 = [x for x in e1 if x not in hst]
        for x in rot(3) + e1[:4] + e1[8:12] + sel(3) + e1[4:8] + e1[12:]: E(x)
        E.drain()
        if lower: A(f's_branch {name}_join')
    A.label(f'{name}_join')
    st(3)
    A('s_waitcnt vmcnt(0)')
    A('s_barrier')
    st(4)
    for x in dots(1)[:6] + hst + dots(1)[6:] + ([] if opt.get('d0', 0) else dots(0)): A(x)
    A(f'buffer_store_dword v{MA[0]}, v9, s[32:35], s60 offen sc1')
    A(f'buffer_store_dword v{MA[1]}, v9, s[32:35], s60 offen offset:256 sc1')
    A(f'v_lshlrev_b32 v40, 3, v{vn}')
    A(f'v_lshrrev_b32 v41, 1, v{vg}')
    A('v_lshl_add_u32 v40, v41, 2, v40')
    A('s_lshl_b32 s14, s10, 4')
    A('s_add_u32 s14, s14, s11')
    A('s_lshl_b32 s14, s14, 3')
    A('s_add_u32 s14, s14, s12')
    A('s_lshl_b32 s14, s14, 7')
    srd(A, 28, 4, ST_OFF, 2048 * 128)
    for u in range(2): A(f'v_permlane32_swap_b32 v{S[u]}, v{Q[u]}')
    for u in range(2): A(f'v_add_f32 v{S[u]}, v{S[u]}, v{Q[u]}')
    for u in range(2): A(f'v_mov_b32 v{Q[u]}, v{S[u]}')
    for u in range(2): A(f'v_permlane16_swap_b32 v{S[u]}, v{Q[u]}')
    for u in range(2): A(f'v_add_f32 v{S[u]}, v{S[u]}, v{Q[u]}')
    for u in range(2): A(f'buffer_store_dword v{S[u]}, v40, s[28:31], s14 offen offset:{512*u} sc1')
    return []

def drained(A):
    A('s_waitcnt vmcnt(0)')
    A('s_barrier')

def g1_compute(A, name, st, opt, later):
    WB = [8, 36]; ACC = 64; HB = [176, 192]
    vAh, cAh, VW, CW = 2, 3, 208, 216
    g1_decode(A)
    A('s_and_b32 s13, s12, 1')
    A('s_lshr_b32 s14, s12, 1')
    A('s_lshl_b32 s15, s13, 13')
    A(f'v_lshlrev_b32 v{vAh}, 4, v1')
    A(f'v_add_u32 v{vAh}, s15, v{vAh}')
    tr_bases(A, 44, 45, 1, 48)
    A('s_cmp_lg_u32 s14, 0')
    A('s_cselect_b64 vcc, -1, 0')
    def gaddr(dst, lam):
        if lam < 12:
            A(f'v_xor_b32 v{dst}, {32*(lam&3)}, v44')
            A(f'v_add_u32 v{dst}, {WB0 + (lam>>2)*1024}, v{dst}')
        else:
            A(f'v_xor_b32 v{dst}, {32*(lam&1)}, v45')
            A(f'v_add_u32 v{dst}, {WB0 + 6144}, v{dst}')
    for k, (l0, l1) in enumerate(zip([4, 5, 2, 3, 0, 1, 6], [8, 9, 10, 11, 12, 13, 7])):
        gaddr(46, l0); gaddr(47, l1)
        A(f'v_cndmask_b32 v{VW+k}, v46, v47, vcc')
    A(f'v_mov_b32 v{cAh}, v{vAh}')
    for k in range(7): A(f'v_mov_b32 v{CW+k}, v{VW+k}')
    for i in range(112): A(f'v_mov_b32 v{ACC+i}, 0')
    A('s_lshl_b32 s15, s10, 1')
    A('s_add_u32 s15, s15, s13')
    gs = opt.get('gskip', 1); TT = GTT if gs else 112 * 1024
    A('s_mul_i32 s15, s15, %d' % (4 * TT))
    A('s_add_u32 s15, s15, %d' % (GS_OFF if gs else G_OFF))
    srd(A, 20, 4, 's15', 4 * TT)
    A('s_mov_b32 s17, 0')
    A('s_mov_b32 s19, 0')
    A('s_mov_b32 s18, 0')
    BV = 240; H2 = 224
    A('s_load_dwordx2 s[24:25], s[0:1], %d' % KA['b1'])
    A('s_and_b32 s52, s11, 1')
    A('s_mul_i32 s15, s11, 7')
    A('s_add_u32 s16, s15, s52')
    A('s_add_u32 s56, s16, 3')
    A('s_cmp_lg_u32 s14, 0')
    A('s_cselect_b32 s53, 4, 2')
    A('s_cselect_b32 s54, 5, 1')
    A('s_cselect_b32 s55, 6, 0')
    for r in (53, 54, 55): A(f's_add_u32 s{r}, s{r}, s16')
    A('s_and_b32 s52, s52, s14')
    A('s_cmp_lg_u32 s52, 0')
    A('s_cselect_b32 s55, s15, s55')
    for r in (53, 54, 55, 56): A(f's_lshl_b32 s{r+4}, s{r}, 6')
    A('s_lshl_b32 s15, s14, 5')
    A('s_add_u32 s60, s60, s15')
    A('v_and_b32 v44, 15, v1')
    A('v_lshlrev_b32 v44, 1, v44')
    A('s_mov_b32 s26, 7168')
    A('s_mov_b32 s27, 0x20000')
    A('s_waitcnt lgkmcnt(0)')
    A('s_barrier')
    A('s_waitcnt vmcnt(0)')
    for i in range(7):
        so, off = 57 + i // 2, (32*(i&1) if i < 6 else 0)
        later.append(f'buffer_load_ushort v{BV+i}, v44, s[24:27], s{so} offen offset:{off}')
    def reads(s, buf):
        r = []
        for j in range(4):
            r.append(f'ds_read_b128 {vr(HB[buf]+4*j,4)}, v{cAh} offset:{(2*j+s)*1024}')
        for i in range(7):
            for rd in range(2):
                r.append(f'ds_read_b64_tr_b16 {vr(WB[buf]+4*i+2*rd,2)}, v{CW+i} offset:{(2*s + rd) * 7168}')
        return r
    E = AutoLgkm(A)
    RP_ = opt.get('rper', 1); R0 = opt.get('r0', 0)
    def step(buf, rds, tail=None, nowait=False):
        k = 0; n = 0
        for i in range(7):
            for jj in range(4):
                j = jj if (i & 1) == 0 else 3 - jj
                E(f'v_mfma_f32_16x16x32_bf16 {vr(ACC + (i*4+j)*4,4)}, {vr(WB[buf] + 4*i,4)}, {vr(HB[buf] + 4*j,4)}, {vr(ACC + (i*4+j)*4,4)}')
                span = opt.get('spanA', 17) if buf else opt.get('spanB', 17)
                while k < len(rds) and round(k * span / 17) <= n: E(rds[k]); k += 1
                n += 1
                if tail and n - 20 in tail:
                    for t in tail[n - 20]: A(t)
        if not nowait: E.drain()
    A('s_barrier')
    st(8)
    for r in reads(0, 0): A(r)
    for x in later: A(x)
    A('s_waitcnt lgkmcnt(0)')
    if opt.get('itime'): A(f'v_mov_b32 v7, {STG}')
    A(f's_branch {name}_g1mid')
    tailB = {-4: [f's_add_u32 s17, s17, {HS}', f's_add_u32 s19, s19, {WS}'], -3: [f's_cmp_eq_u32 s17, {3*HS}', 's_cselect_b32 s17, 0, s17'],
             -2: ['s_cselect_b32 s19, 0, s19', 's_add_u32 s18, s18, 1'], -1: [f'v_add_u32 v{cAh}, s17, v{vAh}', 's_cmp_le_u32 s18, 14']}
    for k in range(7): tailB[k] = [f'v_add_u32 v{CW+k}, s19, v{VW+k}']
    if opt.get('spanB', 17) > 17:
        sp = opt['spanB']
        tailB = {-19: tailB[-4], -18: tailB[-3], -17: tailB[-2], 8: ['s_cmp_le_u32 s18, 14']}
        tailB.setdefault(round(3 * sp / 17) + 2 - 20, []).append(f'v_add_u32 v{cAh}, s17, v{vAh}')
        for k in range(7): tailB.setdefault(min(round((5 + 2*k) * sp / 17) + 2, 28) - 20, []).insert(0, f'v_add_u32 v{CW+k}, s19, v{VW+k}')
    A('.p2align 6')
    A.label(f'{name}_g1loop')
    if opt.get('itime'): A('s_memtime s[92:93]')
    A('s_barrier')
    if opt.get('itime'):
        A('s_memtime s[94:95]')
        tailB[7] = ['v_mov_b32 v4, s92', 'v_mov_b32 v5, s94', f'v_lshl_add_u32 v6, s18, 3, v7', 'ds_write_b64 v6, v[4:5]']
    step(1, reads(0, 0), nowait=opt.get('lazy', 1))
    A.label(f'{name}_g1mid')
    step(0, reads(1, 1), tailB)
    A(f's_cbranch_scc1 {name}_g1loop')
    if opt.get('itime'):
        A('s_memtime s[92:93]')
        A('v_lshlrev_b32 v6, 3, v1')
        A(f'v_add_u32 v4, {STG}, v6')
        A('ds_read_b64 v[4:5], v4')
        A(f's_add_u32 s96, s4, {TS_OFF + 2*65536}')
        A('s_addc_u32 s97, s5, 0')
        A('s_mov_b32 s98, 65536')
        A('s_mov_b32 s99, 0x20000')
        A('s_lshl_b32 s69, s2, 8')
        A('s_waitcnt lgkmcnt(0)')
        A('v_cmp_gt_u32 vcc, 16, v1')
        A('v_cndmask_b32 v6, 4.0, v6, vcc')
        A('buffer_store_dwordx2 v[4:5], v6, s[96:99], s69 offen')
        A('v_mov_b32 v4, s92')
        A('v_mov_b32 v6, 128')
        A('buffer_store_dword v4, v6, s[96:99], s69 offen')
    if opt.get('ttime'): st(3)
    A('s_barrier')
    if opt.get('ttime'): st(4)
    gs = opt.get('gskip', 1)
    order = [6, 0, 1, 2, 3, 4, 5]
    SG = 4
    def wset(k): return WB[0] + 8 * (k % 3)
    def wrd(k):
        i = order[k]
        return [f'ds_read_b64_tr_b16 {vr(wset(k)+4*s_+2*rd,2)}, v{CW+i} offset:{(2*s_ + rd) * 7168}' for s_ in range(2) for rd in range(2)]
    BT = 32
    ST4 = [208, 212, 248, 252]
    A('v_and_b32 v2, 15, v1')
    A('s_lshl_b32 s15, s13, 8')
    A(f's_add_u32 s15, s15, {SGB}')
    A('v_lshl_add_u32 v2, v2, 2, s15')
    pre = [f'ds_read_b128 {vr(HB[0]+4*j,4)}, v{cAh} offset:{(2*j)*1024}' for j in range(4)] + wrd(0) + \
          [f'ds_read_b128 {vr(H2+4*j,4)}, v{cAh} offset:{(2*j+1)*1024}' for j in range(4)] + \
          [f'ds_read_b32 v{ST4[j]}, v2 offset:{64*j}' for j in range(4)] + wrd(1)
    setup = []
    for j in range(4):
        for k in range(1, 4): setup.append(f'v_mov_b32 v{ST4[j]+k}, 0')
    for k in range(1, 4): setup.append(f'v_mov_b32 v{BT+k}, 0')
    addr = []
    for r in (53, 54, 55, 56):
        addr += [f's_lshr_b32 s{r}, s{r}, 1', f's_mul_i32 s{r}, s{r}, {GST}'] if gs else [f's_lshl_b32 s{r}, s{r}, 10']
    class L(list):
        def __call__(self, t): self.append(t)
    va = L()
    va('v_and_b32 v4, 15, v1'); va('v_lshlrev_b32 v4, 4, v4'); va('v_and_b32 v6, 16, v1'); va('v_and_b32 v7, 32, v1')
    va('v_lshl_add_u32 v5, v7, 3, v4'); va('v_lshl_add_u32 v4, v6, 5, v5'); va('s_lshl_b32 s19, s14, 9')
    va('v_add_u32 v5, s19, v5')
    if gs: skipmap(va, 5, 5, 1, 2)
    va(f'v_mul_u32_u24 v6, {TT // 16}, v6'); va('v_add_u32 v5, v5, v6')
    if gs:
        skipmap(va, 6, 4, 1, 2); skipmap(va, 4, 4, 0, 2)
        va('s_cmp_lg_u32 s52, 0'); va('s_cselect_b64 vcc, -1, 0'); va('v_cndmask_b32 v7, v4, v6, vcc')
    else:
        va('v_mov_b32 v6, v4'); va('v_mov_b32 v7, v4')
    def acc(i, j): return ACC + (i*4+j)*4
    def epi_tile(i, j, d):
        a = acc(i, j)
        return [f'v_mul_f32 v{a+r}, v{a+r}, abs(v{a+r})' for r in range(4)] + \
               [f'v_cvt_pk_bf16_f32 v{d}, v{a}, v{a+1}', f'v_cvt_pk_bf16_f32 v{d+1}, v{a+2}, v{a+3}'] + \
               [f'v_pk_max_i16 v{d}, v{d}, 0', f'v_pk_max_i16 v{d+1}, v{d+1}, 0']
    late = []
    def epi(i):
        out = []
        for j0 in (0, 2):
            js = (j0, j0 + 1)
            if i == 6: dst = {j: acc(i, j0) + 2 * (j & 1) for j in js}
            elif i % 2 == 0: dst = {j: acc(i, j) for j in js}
            else: dst = {j: acc(i - 1, j) + 2 for j in js}
            t = [epi_tile(i, j, dst[j]) for j in js]
            out += t[0][:4] + t[1][:4] + t[0][4:6] + t[1][4:6] + t[0][6:] + t[1][6:]
            if i == 6:
                d = acc(i, j0)
                out += [f'v_permlane16_swap_b32 v{d}, v{d+2}', f'v_permlane16_swap_b32 v{d+1}, v{d+3}',
                        f'buffer_store_dwordx4 {vr(d,4)}, v5, s[20:23], s56 offen sc1']
                if j0 == 0: out.append(f's_add_u32 s56, s56, {2*TT}')
            elif i % 2:
                pp = i // 2
                for j in js:
                    d = acc(i - 1, j)
                    out += [f'v_permlane16_swap_b32 v{d}, v{d+2}', f'v_permlane16_swap_b32 v{d+1}, v{d+3}']
                for j in js:
                    o2 = out if pp < 2 else late
                    o2.append(f'buffer_store_dwordx4 {vr(acc(i - 1, j),4)}, v{[4, 6, 7][pp]}, s[20:23], s{53+pp} offen sc1')
                    if j < 3: o2.append(f's_add_u32 s{53+pp}, s{53+pp}, {TT}')
        return out
    for k, i in enumerate(order):
        mf = [(acc(i, j), WB[1] + 4*i, HB[1] + 4*j) for j in range(4)] + [(acc(i, j), wset(k), HB[0] + 4*j) for j in range(4)] + \
             [(acc(i, j), wset(k) + 4, H2 + 4*j) for j in range(4)] + [(acc(i, j), BT, ST4[j]) for j in range(4)]
        if k == 0:
            fill = pre + addr + list(va) + setup
        else:
            fill = (wrd(k + 1) if k + 1 < 7 else []) + epi(order[k - 1])
        per = -(-len(fill) // 15)
        fi = 0
        for n, (d, a, b) in enumerate(mf):
            if k == 0 and n == 4:
                for x in fill[fi:len(pre)]: A(x)
                fi = max(fi, len(pre))
                A('s_waitcnt lgkmcnt(14)')
            if k == 0 and n == 8: A('s_waitcnt lgkmcnt(8)')
            if k == 0 and n == 12:
                for x in fill[fi:]: A(x)
                fi = len(fill)
                A('s_waitcnt vmcnt(0) lgkmcnt(4)')
                A('v_cmp_gt_u32 vcc, 16, v1')
                for j in range(4): A(f'v_cndmask_b32 v{ST4[j]}, 0, v{ST4[j]}, vcc')
            if k > 0 and n == 4: A(f's_waitcnt lgkmcnt({4 if k + 1 < 7 else 0})')
            if n == 10 and k > 0 or (k == 0 and n == 12): A(f'v_mov_b32 v{BT}, v{BV+i}')
            mfma(A, d, a, b)
            if k == 6 and n == 4:
                A('s_barrier')
                st(9)
            for _ in range(per):
                if fi < len(fill): A(fill[fi]); fi += 1
        for x in fill[fi:]: A(x)
    for x in epi(5): A(x)
    return late

def g2_compute(A, name, st, opt, late):
    NS = 4; N2 = opt.get('n2', 8); N1 = (56 - N2) // 2
    SIG = opt.get('sig', 2); POLL = opt.get('poll', 4)
    AO = 8; AX = 40; HB = [72, 88]; WO = [104, 112]; WX = [120, 128]; EP = 136; PR = 224
    vAh, vAw, cAh, cAw, vAw1, cAw1, vL16, vFl = 176, 177, 178, 179, 180, 181, 182, 183
    A('s_load_dwordx2 s[50:51], s[0:1], %d' % KA['b2'])
    A('s_load_dwordx2 s[48:49], s[0:1], %d' % KA['out'])
    if opt.get('sapos', 1) == 0:
        A('s_waitcnt vmcnt(0)')
        A('s_barrier')
        st(10)
    A('v_and_b32 v8, 15, v1')
    A('v_lshlrev_b32 v8, 4, v8')
    A('v_and_b32 v10, 16, v1')
    A('v_and_b32 v11, 32, v1')
    A('v_lshl_add_u32 v9, v11, 3, v8')
    A('v_lshl_add_u32 v8, v10, 5, v9')
    A('v_lshlrev_b32 v10, 7, v10')
    A('s_lshl_b32 s15, s13, 13')
    A('s_lshl_b32 s16, s14, 9')
    A('s_add_u32 s16, s16, s15')
    A(f's_add_u32 s16, s16, {3*SLOT + 1024}')
    A('v_add3_u32 v9, v9, v10, s16')
    A('v_add_u32 v8, s15, v8')
    A('s_cmp_lg_u32 s14, 0')
    for k, (b0, b1) in enumerate(((3*SLOT, 0), (2*SLOT + 1024, 1024), (2*SLOT, 0x40000))):
        A(f's_mov_b32 s16, {b0}')
        A(f's_cselect_b32 s16, {b1}, s16')
        A(f'v_add_u32 v{10+k}, s16, v8')
    wr_ = [f'ds_write_b128 v{10+k}, {vr(64+32*k+4*j,4)} offset:{2048*j}' for k in (2, 1, 0) for j in range(4)]
    wr_ += [f'ds_write_b128 v9, {vr(160+4*j,4)} offset:{2048*j}' for j in (0, 2)]
    ad = [f'v_lshlrev_b32 v{vL16}, 4, v1', f'v_add_u32 v{vAh}, s15, v{vL16}', 'v_lshrrev_b32 v184, 2, v1', 'v_and_b32 v184, 3, v184',
          'v_lshrrev_b32 v185, 4, v1', 'v_lshl_add_u32 v184, v185, 3, v184', 'v_lshrrev_b32 v186, 3, v1', 'v_and_b32 v186, 3, v186',
          'v_lshlrev_b32 v186, 5, v186', 'v_lshl_add_u32 v184, v184, 7, v186', 'v_and_b32 v186, 3, v1', f'v_lshl_add_u32 v{vAw}, v186, 3, v184',
          's_lshl_b32 s16, s14, 6', f'v_xor_b32 v{vAw}, s16, v{vAw}', f'v_add_u32 v{vAw}, 16384, v{vAw}', f'v_xor_b32 v{vAw1}, 32, v{vAw}',
          f'v_add_u32 v{cAh}, {2*SLOT}, v{vAh}', f'v_add_u32 v{cAw}, {2*SLOT}, v{vAw}', f'v_add_u32 v{cAw1}, {2*SLOT}, v{vAw1}', f'v_mov_b32 v{vFl}, 0']
    ad += [f'v_mov_b32 v{192+k}, v{128+k}' for k in range(16)]
    for x in weave(wr_[:8], ad[:16], per=2): A(x)
    if opt.get('sapos', 1) == 1:
        A('s_waitcnt vmcnt(0)')
        A('s_barrier')
        st(10)
    for x in weave(wr_[8:], ad[16:], per=3): A(x)
    for k in range(4): A(f's_mov_b32 s{64+k}, s{20+k}' if k < 3 else 's_mov_b32 s67, 0x20000')
    A('s_mov_b32 s68, s55')
    A(f's_mov_b32 s17, {2*SLOT}')
    TT = GTT if opt.get('gskip', 1) else 112 * 1024
    def late_store(k): return [f'buffer_store_dwordx4 {vr(192+4*k,4)}, v7, s[64:67], s68 offen sc1', f's_add_u32 s68, s68, {TT}']
    def setup():
        g2_decode(A)
        A('s_lshl_b32 s15, s10, 1')
        A('s_add_u32 s15, s15, s13')
        A('s_lshl_b32 s16, s15, 18')
        A(f's_add_u32 s16, s16, {HS_OFF}')
        A('s_lshl_b32 s19, s15, 8')
        A(f's_add_u32 s19, s19, {MU_OFF}')
        A('s_lshl_b32 s54, s2, 2')
        A('s_add_u32 s54, s54, s12')
        A('s_xor_b32 s55, s54, 16')
        A('s_lshl_b32 s56, s54, 12')
        A('s_lshl_b32 s57, s55, 12')
        A('s_lshl_b32 s54, s54, 7')
        A('s_lshl_b32 s55, s55, 7')
        A(f's_add_u32 s54, s54, {FL3}')
        A(f's_add_u32 s55, s55, {FL3}')
        srd(A, 20, 4, 's16', 256 * 1024)
        srd(A, 44, 4, 's19', 256)
        A(f's_add_u32 s19, s19, {R2_OFF - MU_OFF}')
        srd(A, 24, 4, 's19', 256)
        srd(A, 28, 50, 0, 2048)
        srd(A, 32, 48, 0, 2048 * 2048)
        srd(A, 40, 4, PX_OFF, 4 * MB)
    A('s_waitcnt lgkmcnt(0)')
    def reads(s, buf, full):
        r = []
        for i in range(2):
            for rd in range(2):
                r.append(f'ds_read_b64_tr_b16 {vr(WO[buf]+4*i+2*rd,2)}, v{cAw1 if i else cAw} offset:{4096*s + 512*rd}')
        for j in range(4):
            r.append(f'ds_read_b128 {vr(HB[buf]+4*j,4)}, v{cAh} offset:{(2*j+s)*1024}')
        if full:
            for i in range(2):
                for rd in range(2):
                    r.append(f'ds_read_b64_tr_b16 {vr(WX[buf]+4*i+2*rd,2)}, v{cAw1 if i else cAw} offset:{8192 + 4096*s + 512*rd}')
        return r
    ADV = [[f's_add_u32 s17, s17, {SLOT}', f's_cmp_eq_u32 s17, {NS*SLOT}'], ['s_cselect_b32 s17, 0, s17', f'v_add_u32 v{cAh}, s17, v{vAh}'],
           [f'v_add_u32 v{cAw}, s17, v{vAw}'], [f'v_add_u32 v{cAw1}, s17, v{vAw1}']]
    def step(buf, full, rds, tail=(), xfirst=False, zero=False):
        seq = []
        order = ([(AX, WX)] if full else []) + [(AO, WO)] if xfirst else [(AO, WO)] + ([(AX, WX)] if full else [])
        for acc, W in order:
            for i in range(2):
                for jj in range(4):
                    j = jj if i == 0 else 3 - jj
                    seq.append((acc + (i*4+j)*4, W[buf] + 4*i, HB[buf] + 4*j))
        per = 1 if len(rds) + len(tail) <= len(seq) else 2
        fill = [[x] for x in rds]
        if per == 2: fill = [sum(fill[k:k+2], []) for k in range(0, len(fill), 2)]
        fill += list(tail)
        for n, (d, a, b) in enumerate(seq):
            mfma(A, d, a, b, '0' if zero else None)
            if n < len(fill):
                for x in fill[n]: A(x)
        for f in fill[len(seq):]:
            for x in f: A(x)
        A('s_waitcnt lgkmcnt(0)')
    A('s_barrier')
    st(11)
    for r in reads(0, 0, True): A(r)
    setup()
    A('s_lshl_b32 s16, s11, 1')
    A('s_add_u32 s16, s16, s14')
    A('s_lshl_b32 s19, s16, 11')
    skipmap(A, PR + 2, vL16, 0, PR + 3)
    for j in range(4):
        A(f'buffer_load_dwordx4 {vr(EP+4*j,4)}, v{PR+2}, s[20:23], s19 offen sc1')
        if j < 3: A('s_add_u32 s19, s19, 65536')
    A(f'v_and_b32 v{PR}, 15, v1')
    A(f'v_lshlrev_b32 v{PR}, 2, v{PR}')
    for j in range(4):
        A(f'buffer_load_dword v{EP+16+j}, v{PR}, s[24:27], 0 offen offset:{64*j} sc1')
        A(f'buffer_load_dword v{EP+24+j}, v{PR}, s[44:47], 0 offen offset:{64*j} sc1')
    A(f'v_lshrrev_b32 v{PR+1}, 4, v1')
    A(f'v_lshlrev_b32 v{PR+1}, 3, v{PR+1}')
    A('s_lshl_b32 s19, s16, 6')
    A(f'buffer_load_dwordx2 {vr(EP+20,2)}, v{PR+1}, s[28:31], s19 offen')
    A(f'buffer_load_dwordx2 {vr(EP+22,2)}, v{PR+1}, s[28:31], s19 offen offset:32')
    A('s_waitcnt lgkmcnt(0)')
    L0 = opt.get('l0', 0)
    step(0, True, reads(1, 1, True), ADV[:3] + [ADV[3] + (late_store(0) if L0 == 0 else [])], zero=True)
    for k in range(1, L0 + 4):
        if k >= 3 or not opt.get('nb12', 0): A('s_barrier')
        step(1, True, reads(0, 0, True), [late_store(k - L0)] if k >= L0 else [])
        step(0, True, reads(1, 1, True), ADV)
    A(f's_mov_b32 s18, {L0 + 4}')
    A('.p2align 6')
    A.label(f'{name}_g2loop')
    A('s_barrier')
    step(1, True, reads(0, 0, True), [['s_waitcnt vmcnt(0)']])
    step(0, True, reads(1, 1, True), ADV[:3] + [ADV[3] + ['s_add_u32 s18, s18, 1', f's_cmp_lt_u32 s18, {N1}']])
    A(f's_cbranch_scc1 {name}_g2loop')
    A('s_mov_b32 s59, 0')
    A('s_mov_b32 s58, 400000')
    def check(tag, sp):
        A('s_cmp_lg_u32 s59, 0')
        A(f's_cbranch_scc1 {name}_done{tag}')
        A.label(f'{name}_poll{tag}')
        A('s_waitcnt vmcnt(0)')
        A(f'v_readfirstlane_b32 s59, v{PR+16}')
        A('s_cmp_eq_u32 s59, 1')
        A(f's_cbranch_scc1 {name}_got{tag}')
        A('s_mov_b32 s59, 0')
        if sp:
            A('s_sub_u32 s58, s58, 1')
            A(f's_cbranch_scc1 {name}_got{tag}')
            A('s_sleep 1')
        A(f'buffer_load_dword v{PR+16}, v{vFl}, s[36:39], s55 offen sc1')
        A(f's_branch {name}_poll{tag}' if sp else f's_branch {name}_done{tag}')
        A.label(f'{name}_got{tag}')
        for k in range(4):
            A(f'buffer_load_dwordx4 {vr(PR+4*k,4)}, v{vL16}, s[40:43], s57 offen offset:{k*1024} sc1')
        A.label(f'{name}_done{tag}')
    B = 184; C = 192
    pre = {1: ['v_and_b32 v6, 15, v1', 'v_lshrrev_b32 v7, 4, v1', 'v_and_b32 v2, 1, v7', 'v_lshrrev_b32 v7, 1, v7', 'v_lshl_add_u32 v7, v2, 1, v7',
               'v_lshrrev_b32 v2, 1, v6', 'v_xor_b32 v7, v7, v2', 'v_and_b32 v7, 3, v7', 'v_lshl_add_u32 v7, v6, 2, v7', 's_lshl_b32 s15, s12, 12',
               f's_add_u32 s15, s15, {STG}', 'v_lshl_add_u32 v4, v7, 4, s15', 'v_lshrrev_b32 v6, 2, v1', 'v_lshrrev_b32 v7, 3, v1', 'v_xor_b32 v7, v7, v1',
               'v_and_b32 v7, 3, v7', 'v_lshl_add_u32 v5, v1, 4, s15', 'v_lshlrev_b32 v6, 15, v6', 'v_lshl_add_u32 v6, v7, 4, v6', 's_lshl_b32 s19, s10, 11', 's_lshl_b32 s15, s13, 21', 's_add_u32 s19, s19, s15',
               's_lshl_b32 s16, s16, 6', 's_add_u32 s19, s19, s16', 's_mov_b32 s60, 0x3f80', 's_mov_b32 s61, 0x3f800000']}
    for i in range(2):
        for q in range(2):
            pre[1] += [f'v_lshlrev_b32 v{B+4*i+2*q}, 16, v{EP+20+2*i+q}', f'v_and_b32 v{B+4*i+2*q+1}, 0xffff0000, v{EP+20+2*i+q}']
    for j in range(4):
        l = pre.setdefault(2 + j, [])
        for i in range(2):
            c = C + (i*4+j)*4
            for q in range(2):
                l += [f'v_lshlrev_b32 v{c+2*q}, 16, v{EP+4*j+2*i+q}', f'v_and_b32 v{c+2*q+1}, 0xffff0000, v{EP+4*j+2*i+q}']
            l += [f'v_pk_add_f32 {vr(c+2*q,2)}, {vr(c+2*q,2)}, {vr(B+4*i+2*q,2)}' for q in range(2)]
            l += [f'v_add_f32 v{c+r}, v{c+r}, v{EP+24+j}' for r in range(4)]
    assert N2 >= 6
    for it in range(N2):
        A('s_barrier')
        if it == 0:
            step(1, True, reads(0, 0, False), xfirst=True)
            for k in range(4):
                for c in range(4*k, 4*k+4): A(f'v_cvt_pk_bf16_f32 v{AX+c}, v{AX+2*c}, v{AX+2*c+1}')
                A(f'buffer_store_dwordx4 {vr(AX+4*k,4)}, v{vL16}, s[40:43], s56 offen offset:{k*1024} sc1')
        else:
            if it == SIG:
                A('s_waitcnt vmcnt(0)')
                A(f'v_mov_b32 v{PR}, 1')
                A(f'buffer_store_dword v{PR}, v{vFl}, s[36:39], s54 offen sc1')
            if it == POLL:
                A(f'buffer_load_dword v{PR+16}, v{vFl}, s[36:39], s55 offen sc1')
            if it > POLL: check(it, False)
            step(1, False, reads(0, 0, False))
            for x in pre.get(it, []): A(x)
        step(0, False, reads(1, 1, False), ADV if it < N2 - 1 else ())
    check('L', True)
    step(1, False, [])
    st(12)
    A('s_waitcnt vmcnt(0)')
    T = 40
    for j in range(4):
        d = T + 4*j
        for i in range(2):
            a = AO + (i*4+j)*4; pr = PR + (i*4+j)*2
            for r in range(4): A(f'v_dot2_f32_bf16 v{a+r}, v{pr+(r>>1)}, s{60+(r&1)}, v{a+r}')
        for i in range(2):
            a = AO + (i*4+j)*4
            for r in range(4): A(f'v_fma_f32 v{a+r}, v{a+r}, v{EP+16+j}, v{C+(i*4+j)*4+r}')
        for i in range(2):
            a = AO + (i*4+j)*4
            A(f'v_cvt_pk_bf16_f32 v{d+2*i}, v{a}, v{a+1}')
            A(f'v_cvt_pk_bf16_f32 v{d+2*i+1}, v{a+2}, v{a+3}')
        A(f'v_permlane16_swap_b32 v{d}, v{d+2}')
        A(f'v_permlane16_swap_b32 v{d+1}, v{d+3}')
        A(f'ds_write_b128 v4, {vr(d,4)} offset:{1024*j}')
        A(f'ds_read_b128 {vr(76+4*j,4)}, v5 offset:{1024*j}')
        if j:
            A('s_waitcnt lgkmcnt(2)')
            A(f'buffer_store_dwordx4 {vr(72+4*j,4)}, v6, s[32:35], s19 offen {opt.get("omod", "sc1")}')
            A(f's_add_u32 s19, s19, {16*16*2048}')
    A('s_waitcnt lgkmcnt(0)')
    A(f'buffer_store_dwordx4 {vr(88,4)}, v6, s[32:35], s19 offen {opt.get("omod", "sc1")}')

def loaders(A, name, opt):
    NS = 4; N2 = opt.get('n2', 8); N1 = (56 - N2) // 2; NT = N1 + N2
    hm = opt.get('hmod', 'sc1')
    lst0 = Stamper(A, opt.get('stamp') == 1, 1)
    class LS:
        def __call__(self, i, real=False, ph=2):
            if i in (1, 2, 3, 4) and ph != opt.get('lph', 2): return
            lst0(i, real)
        def dump(self, *a): lst0.dump(*a)
    lst = LS()
    A('s_load_dwordx4 s[64:67], s[0:1], %d' % KA['w1'])
    A('s_load_dwordx4 s[48:51], s[0:1], %d' % KA['w2'])
    A('s_sub_u32 s12, s12, 4')
    g1_decode(A)
    A('s_lshl_b32 s15, s12, 17')
    A('v_lshlrev_b32 v8, 4, v1')
    skipmap(A, 8, 8, 0, 9)
    A('v_add_u32 v8, s15, v8')
    A('v_add_u32 v9, 0x10000, v8')
    A('s_lshr_b32 s15, s12, 1')
    A('s_lshl_b32 s15, s15, 6')
    A('s_and_b32 s16, s12, 1')
    A('s_lshl_b32 s16, s16, 4')
    A('s_add_u32 s15, s15, s16')
    A('s_and_b32 s16, s11, 1')
    w_voffs(A, 10, 1, 15, 16, 4, range(6 if opt.get('wh', 0) else 7))
    A('s_lshl_b32 s43, s12, 12')
    A('s_mul_i32 s44, s12, 7168')
    A(f's_add_u32 s44, s44, {WB0}')
    A('s_mov_b32 s41, 0')
    A('s_mov_b32 s42, 0')
    A('s_lshl_b32 s15, s12, 8')
    A('v_and_b32 v3, 15, v1')
    A('v_lshlrev_b32 v3, 4, v3')
    A('v_lshrrev_b32 v4, 4, v1')
    A('v_lshl_add_u32 v3, v4, 10, v3')
    A('v_add_u32 v3, s15, v3')
    A('v_and_b32 v17, 15, v1')
    A('v_lshlrev_b32 v17, 7, v17')
    A('v_mov_b32 v20, 1')
    A('v_mov_b32 v21, 0')
    A('s_and_b32 s13, s2, 7')
    A('s_sub_u32 s15, 16, s13')
    A('s_cmp_eq_u32 s13, 0')
    A('s_cselect_b32 s15, 8, s15')
    A('s_bitcmp1_b32 s2, 3')
    A('s_cselect_b32 s13, s15, s13')
    A('s_lshl_b32 s13, s13, 4')
    A('s_lshr_b32 s15, s2, 4')
    A('s_add_u32 s13, s13, s15')
    A('s_lshl_b32 s13, s13, 7')
    A('s_lshl_b32 s14, s10, 4')
    A('s_add_u32 s14, s14, s11')
    A('s_lshl_b32 s14, s14, 7')
    A(f's_add_u32 s14, s14, {FL2}')
    A('s_lshl_b32 s15, s10, 19')
    A(f's_add_u32 s15, s15, {HS_OFF}')
    A('s_mul_i32 s16, s11, 448')
    A(f's_sub_u32 s19, {1024*7168}, s16')
    A('s_waitcnt lgkmcnt(0)')
    A('s_lshl_b32 s17, s12, 7')
    A('s_add_u32 s18, s17, s16')
    A('s_min_u32 s18, s18, 7040')
    A('s_load_dwordx2 s[62:63], s[66:67], s18 offset:60')
    A('s_and_b32 s18, s11, 3')
    A('s_lshl_b32 s18, s18, 9')
    A('s_add_u32 s18, s18, s17')
    A('s_load_dwordx2 s[62:63], s[50:51], s18 offset:60')
    srd(A, 20, 4, 's15', 512 * 1024)
    srd(A, 24, 64, 's16', 's19')
    if opt.get('wh', 0):
        A('s_lshl_b32 s15, s11, 16')
        A(f's_add_u32 s15, s15, {WH_OFF}')
        srd(A, 28, 4, 's15', 65536)
        A('s_mov_b32 s51, 0')
        A('s_lshr_b32 s15, s12, 1')
        A('s_lshl_b32 s15, s15, 12')
        A('s_and_b32 s17, s12, 1')
        A('s_lshl_b32 s17, s17, 10')
        A('s_add_u32 s15, s15, s17')
        A('v_lshrrev_b32 v16, 3, v1')
        A('v_and_b32 v16, 2, v16')
        A('v_xor_b32 v16, v16, v1')
        A('v_lshl_add_u32 v16, v16, 4, s15')
    A('s_lshl_b32 s15, s10, 14')
    A(f's_add_u32 s15, s15, {ST_OFF}')
    srd(A, 32, 4, 's15', 16384)
    A('s_lshl_b32 s15, s10, 9')
    A(f's_add_u32 s15, s15, {R2_OFF}')
    srd(A, 36, 4, 's15', 512)
    srd(A, 52, 4, FL_OFF, FL_SIZE)
    srd(A, 56, 48, 0, 3584 * 2048)
    A('s_lshl_b32 s60, s2, 2')
    A('s_add_u32 s60, s60, s12')
    NL2 = 5 if opt.get('sw1', 0) else 4
    A(f's_mul_i32 s60, s60, {128*NL2}')
    A(f's_mov_b32 s50, {(6 if NL2 == 5 else 8) * (NL2 << 17)}')
    hstep = [8192]
    A('v_add_u32 v26, 3072, v8')
    A('v_add_u32 v27, 3072, v9')
    def issue_h(lds):
        A(f's_add_u32 m0, {lds}, s43')
        A('s_nop 0')
        A(f'buffer_load_dwordx4 v8, s[20:23], s41 offen {hm} lds')
        A(f'buffer_load_dwordx4 v26, s[20:23], s41 offen offset:1024 {hm} lds')
        A('s_add_u32 m0, m0, 2048')
        A('s_nop 0')
        A(f'buffer_load_dwordx4 v9, s[20:23], s41 offen {hm} lds')
        A(f'buffer_load_dwordx4 v27, s[20:23], s41 offen offset:1024 {hm} lds')
        A(f's_add_u32 s41, s41, {hstep[0]}')
    def issue_w(lds, srdn=24, so='s42'):
        A(f's_add_u32 s45, {lds}, s44')
        for q in range(7):
            A(f's_add_u32 m0, s45, {q*1024}')
            A('s_nop 0')
            if q < 6 or not opt.get('wh', 0): A(f'buffer_load_dwordx4 v{10+q}, s[24:27], s42 offen lds')
            else: A('buffer_load_dwordx4 v16, s[28:31], s51 offen lds')
        A(f's_add_u32 s42, s42, {128*7168}')
        if opt.get('wh', 0): A('s_add_u32 s51, s51, 8192')
    def sp2():
        if opt.get('nosp2'): return
        for k in range(NL2): A(f's_buffer_load_dwordx2 s[62:63], s[56:59], s60 offset:{128*k + 60}')
        A('s_add_u32 s60, s60, s50')
        A(f's_sub_u32 s50, {NL2 << 17}, s50')
    sw1 = opt.get('sw1', 0)
    if sw1:
        srd(A, 68, 64, 32 * 7168, 992 * 7168)
        A('s_lshr_b32 s61, s2, 4')
        A('s_lshl_b32 s61, s61, 5')
        A('s_and_b32 s15, s2, 15')
        A('s_add_u32 s61, s61, s15')
        A('s_lshl_b32 s61, s61, 2')
        A('s_add_u32 s61, s61, s12')
        A('s_mul_i32 s61, s61, 3584')
    def sp1(b):
        if sw1:
            for k in range(7): A(f's_buffer_load_dwordx2 s[62:63], s[68:71], s61 offset:{896*b + 128*k + 60}')
    sp1(0)
    def only0(tag, ins):
        A('s_cmp_lg_u32 s12, 0')
        A(f's_cbranch_scc1 {tag}')
        for x in ins: A(x)
        A.label(tag)
    A('s_barrier')
    NWA = opt.get('nwa', 1)
    for k in range(NWA): issue_w(k * WS)
    if sw1: sp1(1)
    else: sp2(); sp2()
    A('s_lshl_b32 s15, s10, 11')
    lst(1, ph=1)
    A('s_barrier')
    lst(2, ph=1)
    only0(f'{name}_f1', ['buffer_store_dword v20, v21, s[52:55], s13 offen sc1'])
    for k in range(NWA, 3): issue_w(k * WS)
    sp1(2)
    A('s_cmp_lg_u32 s12, 0')
    A(f's_cbranch_scc1 {name}_fl1_go')
    spin(A, f'{name}_fl1', 52, 15, 36, 17, 47, opt.get('pdepth', 1), opt.get('pgap', 1))
    lst(3, ph=1)
    A('s_barrier')
    for k in range(3): issue_h(k * HS)
    sp1(3)
    A('s_mov_b32 s40, 0')
    A('s_mov_b32 s46, 0')
    A('s_waitcnt vmcnt(8)')
    lst(4, ph=1)
    A('s_barrier')
    sig5 = lambda: only0(f'{name}_no5', [f's_add_u32 s13, s13, {FL5}', 'buffer_store_dword v20, v21, s[52:55], s13 offen sc1'])
    sig5()
    A('s_waitcnt vmcnt(4)')
    A('s_barrier')
    def issue():
        issue_h('s40'); issue_w('s46')
        A(f's_add_u32 s40, s40, {HS}')
        A(f's_add_u32 s46, s46, {WS}')
        A(f's_cmp_eq_u32 s40, {3*HS}')
        A('s_cselect_b32 s40, 0, s40')
        A('s_cselect_b32 s46, 0, s46')
    def stats():
        for c in range(4):
            A(f'v_add_f32 v{40+c}, v{40+c}, v{44+c}')
            A(f'v_add_f32 v{48+c}, v{48+c}, v{52+c}')
        for c in range(4): A(f'v_add_f32 v{40+c}, v{40+c}, v{48+c}')
        A('v_permlane32_swap_b32 v40, v42')
        A('v_permlane32_swap_b32 v41, v43')
        A('v_add_f32 v40, v40, v42')
        A('v_add_f32 v41, v41, v43')
        A('v_mov_b32 v42, v40')
        A('v_mov_b32 v43, v41')
        A('v_permlane16_swap_b32 v40, v42')
        A('v_permlane16_swap_b32 v41, v43')
        A('v_add_f32 v40, v40, v42')
        A('v_add_f32 v41, v41, v43')
        ln_finish(A, 40, 41, 22, 23, 24, 47)
        A('v_lshrrev_b32 v28, 16, v23')
        A('v_and_b32 v4, 15, v1')
        A('v_lshrrev_b32 v5, 5, v1')
        A('v_lshl_add_u32 v2, v4, 1, v5')
        A('s_lshl_b32 s15, s12, 7')
        A(f's_add_u32 s15, s15, {SGB}')
        A('v_lshl_add_u32 v5, v2, 2, s15')
        A('ds_write_b32 v5, v28')
        A('v_mul_f32 v23, v23, v23')
        A('v_rcp_f32 v23, v23')
        A('s_lshl_b32 s15, s12, 7')
        A('v_lshlrev_b32 v5, 2, v2')
        A('buffer_store_dword v23, v5, s[36:39], s15 offen sc1')
    def loop1(tag, first, last):
        A(f's_mov_b32 s18, {first}')
        A.label(f'{name}_{tag}')
        issue()
        if last == 15:
            A('s_cmp_eq_u32 s18, 15')
            A(f's_cbranch_scc1 {name}_nosp')
            if NL2 == 4:
                A('s_cmp_eq_u32 s18, 13')
                A('s_cselect_b32 s50, 0x80000, s50')
        sp2()
        if last == 15: A.label(f'{name}_nosp')
        A('s_add_u32 s18, s18, 1')
        A(f's_cmp_le_u32 s18, {last}')
        A('s_waitcnt vmcnt(11)')
        A('s_barrier')
        A(f's_cbranch_scc1 {name}_{tag}')
    loop1('l1a', 3, 4)
    A(f's_add_u32 s15, s15, {FL5}')
    A('buffer_load_dword v36, v17, s[52:55], s15 offen sc1')
    issue(); sp2()
    A('s_waitcnt vmcnt(11)')
    A('s_barrier')
    A('v_cmp_ne_u32 vcc, 1, v36')
    A(f's_cbranch_vccz {name}_fl5_go')
    spin(A, f'{name}_fl5', 52, 15, 36, 17, 47, 1, 1)
    for k in range(4):
        A(f's_mov_b32 s47, {4096*k}')
        A(f'buffer_load_dwordx4 {vr(40+4*k,4)}, v3, s[32:35], s47 offen sc1')
    loop1('l1b', 6, 7)
    A('s_mov_b32 s41, 2048')
    A(f's_mov_b32 s42, {32*7168}')
    if opt.get('wh', 0): A('s_mov_b32 s51, 2048')
    issue(); sp2()
    stats()
    A('s_waitcnt vmcnt(12)')
    A('s_barrier')
    loop1('l1c', 9, 15)
    A('s_waitcnt vmcnt(0) lgkmcnt(0)')
    A('s_barrier')
    g2_decode(A)
    gs = opt.get('gskip', 1); TT = GTT if gs else 112 * 1024; hstep[0] = GST if gs else 2048
    A(f's_mul_i32 s15, s12, {2*TT}')
    A('v_lshlrev_b32 v8, 4, v1')
    if gs:
        skipmap(A, 26, 8, 1, 4)
        skipmap(A, 8, 8, 0, 4)
        A('v_subrev_u32 v26, 1024, v26')
    else:
        A('v_mov_b32 v26, v8')
    A('v_add_u32 v8, s15, v8')
    A('v_add_u32 v26, s15, v26')
    A(f'v_add_u32 v9, {TT}, v8')
    A(f'v_add_u32 v27, {TT}, v26')
    A('v_lshrrev_b32 v4, 3, v1')
    A('s_lshl_b32 s15, s12, 4')
    A('v_add_u32 v4, s15, v4')
    A('v_lshlrev_b32 v4, 11, v4')
    A('v_and_b32 v5, 1, v1')
    A('v_lshl_add_u32 v4, v5, 4, v4')
    A('v_lshrrev_b32 v5, 4, v1')
    A('v_and_b32 v5, 1, v5')
    A('v_lshrrev_b32 v6, 1, v1')
    A('v_and_b32 v6, 3, v6')
    A('v_xor_b32 v5, v5, v6')
    A('v_lshl_add_u32 v4, v5, 5, v4')
    A('v_xor_b32 v5, 64, v4')
    A(f'v_add_u32 v5, {16384 - 1024}, v5')
    A('v_lshrrev_b32 v6, 3, v1')
    A('v_cmp_eq_u32 vcc, 3, v6')
    A('v_cndmask_b32 v6, v6, 7, vcc')
    for hsel, (va, sr_) in enumerate(((10, 24), (12, 32))):
        if hsel == 0: A('s_mov_b32 s16, s11')
        else: A('s_xor_b32 s16, s11, 1')
        A('s_and_b32 s19, s16, 8')
        A('v_add_u32 v7, s19, v6')
        A('v_lshlrev_b32 v14, 7, v7')
        A('v_xor_b32 v15, 0x400, v14')
        A('s_and_b32 s15, s16, 7')
        A('s_lshl_b32 s16, s16, 7')
        A('v_mov_b32 v7, s16')
        A(f's_add_u32 s{sr_}, s4, {WC_OFF}')
        A(f's_addc_u32 s{sr_+1}, s5, 0')
        A(f's_cmp_eq_u32 s15, {3 if opt.get("wcopy", 1) else 9}')
        A('s_cselect_b64 vcc, -1, 0')
        A(f's_cselect_b32 s{sr_}, s{sr_}, s48')
        A(f's_cselect_b32 s{sr_+1}, s{sr_+1}, s49')
        A(f's_mov_b32 s{sr_+2}, {3584*2048}')
        A(f's_mov_b32 s{sr_+3}, 0x20000')
        A('v_cndmask_b32 v14, v7, v14, vcc')
        A('v_cndmask_b32 v15, v7, v15, vcc')
        A(f'v_add_u32 v{va}, v4, v14')
        A(f'v_add_u32 v{va+1}, v5, v15')
    A('s_lshl_b32 s44, s12, 11')
    A('s_add_u32 s44, s44, 16384')
    assert N1 == 24
    def mask(st_): return sum(1 << x for x in st_)
    def m64(r, m):
        A(f's_mov_b32 s{r}, {m & 0xffffffff}'); A(f's_mov_b32 s{r+1}, {m >> 32}')
    def sel64(r, m_true, m_false):
        for h in range(2):
            A(f's_mov_b32 s{r+h}, {(m_false >> (32*h)) & 0xffffffff}')
            A(f's_cselect_b32 s{r+h}, {(m_true >> (32*h)) & 0xffffffff}, s{r+h}')
    A('s_and_b32 s15, s9, 7')
    A('s_cmp_eq_u32 s15, 7')
    sel64(38, mask(range(0, 4)), mask(range(24, 28)))
    A('s_cmp_eq_u32 s15, 0')
    sel64(30, mask(range(52, 56)), mask(range(28, 32)))
    A('s_or_b64 s[38:39], s[38:39], s[30:31]')
    A('s_cmp_lg_u32 s8, 0')
    sel64(30, mask(range(28, 56)), mask(range(0, 28)))
    A('s_andn2_b64 s[30:31], s[30:31], s[38:39]')
    A('s_mul_i32 s15, s9, 7')
    A('s_add_u32 s15, s15, 1')
    A('s_lshr_b32 s36, s15, 1')
    A('s_lshl_b64 s[28:29], 7, s36')
    A('s_andn2_b64 s[30:31], s[30:31], s[28:29]')
    m64(64, mask([x for x in range(56) if x % 7 in (1, 2, 5, 6)]))
    A('s_and_b64 s[28:29], s[30:31], s[64:65]')
    A('s_andn2_b64 s[30:31], s[30:31], s[64:65]')
    NE = 15
    def nxt(r=28):
        A(f's_ff1_i32_b64 s61, s[{r}:{r+1}]')
        A(f's_bitset0_b64 s[{r}:{r+1}], s61')
    def seth(): A(f's_mul_i32 s41, s61, {hstep[0]}')
    def setw(): A('s_lshl_b32 s42, s61, 17')
    A(f's_mul_i32 s15, s10, {8*TT}')
    A(f's_add_u32 s15, s15, {GS_OFF if gs else G_OFF}')
    srd(A, 20, 4, 's15', 8 * TT)
    def issue_w2(lds, full):
        A(f's_add_u32 m0, {lds}, s44')
        A('s_nop 0')
        A(f'buffer_load_dwordx4 v10, s[24:27], s42 offen lds')
        A(f'buffer_load_dwordx4 v11, s[24:27], s42 offen offset:1024 lds')
        if full:
            A('s_add_u32 m0, m0, 8192')
            A('s_nop 0')
            A(f'buffer_load_dwordx4 v12, s[32:35], s42 offen lds')
            A(f'buffer_load_dwordx4 v13, s[32:35], s42 offen offset:1024 lds')
        A(f's_add_u32 s42, s42, {64*2048}')
    def slotadv():
        A(f's_add_u32 s40, s40, {SLOT}')
        A(f's_cmp_eq_u32 s40, {NS*SLOT}')
        A('s_cselect_b32 s40, 0, s40')
    def issue2(full, r=None):
        if r is not None: nxt(r); seth(); setw()
        issue_h('s40'); issue_w2('s40', full)
        slotadv()
    A('s_lshl_b32 s42, s36, 17')
    for k in (2, 3, 0): issue_w2(k * SLOT, True)
    A('s_lshl_b32 s15, s10, 11')
    A(f's_add_u32 s15, s15, {FL2}')
    A('s_lshl_b32 s61, s8, 3')
    A('v_min_u32 v17, 7, v1')
    A('v_add_u32 v17, s61, v17')
    A('v_lshlrev_b32 v17, 7, v17')
    A('s_barrier')
    nxt(); setw(); seth()
    issue_w2(SLOT, True)
    lst(1)
    A('s_barrier')
    lst(2)
    only0(f'{name}_noa', ['buffer_store_dword v20, v21, s[52:55], s14 offen sc1'])
    A('s_waitcnt vmcnt(4)')
    A('s_barrier')
    if opt.get('nb12', 0):
        spin(A, f'{name}_fl2', 52, 15, 36, 17, 47, opt.get('pdepth', 1), opt.get('pgap', 1))
        lst(3)
        issue_h(SLOT)
        A(f's_mov_b32 s40, {2*SLOT}')
        A('s_waitcnt vmcnt(0)')
        lst(4)
        A('s_barrier')
        issue2(True, 28); issue2(True, 28)
    else:
        A('s_barrier')
        A('buffer_load_dword v38, v17, s[52:55], s15 offen sc1')
        A('s_barrier')
        A('s_waitcnt vmcnt(0)')
        A('v_cmp_ne_u32 vcc, 1, v38')
        A(f's_cbranch_vccz {name}_fl2_go')
        spin(A, f'{name}_fl2', 52, 15, 36, 17, 47, opt.get('pdepth', 1), opt.get('pgap', 1))
        lst(3)
        issue_h(SLOT)
        A(f's_mov_b32 s40, {2*SLOT}')
        issue2(True, 28); issue2(True, 28)
        A('s_waitcnt vmcnt(16)')
        lst(4)
        A('s_barrier')
    def loop(tag, n, r):
        A(f's_mov_b32 s18, {n}')
        A.label(f'{name}_{tag}')
        issue2(True, r)
        A('s_sub_u32 s18, s18, 1')
        A('s_cmp_lg_u32 s18, 0')
        A('s_waitcnt vmcnt(16)')
        A('s_barrier')
        A(f's_cbranch_scc1 {name}_{tag}')
    L0 = opt.get('l0', 0)
    loop('l2a', 2 + L0, 28)
    A('s_cmp_lg_u32 s12, 0')
    A(f's_cbranch_scc1 {name}_nob')
    A(f's_add_u32 s14, s14, {FL4 - FL2}')
    A('buffer_store_dword v20, v21, s[52:55], s14 offen sc1')
    A.label(f'{name}_nob')
    loop('l2b', NE - 9 - L0, 28)
    A(f's_add_u32 s15, s15, {FL4 - FL2}')
    A('v_and_b32 v17, 15, v1')
    A('v_lshlrev_b32 v17, 7, v17')
    A('buffer_load_dword v36, v17, s[52:55], s15 offen sc1')
    issue2(True, 28)
    A('s_waitcnt vmcnt(16)')
    A('s_barrier')
    A('s_waitcnt vmcnt(8)')
    A('v_cmp_ne_u32 vcc, 1, v36')
    A(f's_cbranch_vccz {name}_fl4_go')
    spin(A, f'{name}_fl4', 52, 15, 36, 17, 47, 1, 1)
    loop('l2c', N1 - NE, 30)
    cnt = lambda s: 0 if s >= NT else (8 if s < N1 else 6)
    for j in range(N1 - NS + 1, NT - 1):
        s = j + NS - 1
        if s < NT: issue2(False, 38)
        A(f's_waitcnt vmcnt({sum(cnt(x) for x in range(j + 2, j + NS))})')
        A('s_barrier')
    if opt.get('stamp') == 1:
        lst(5); lst(6, True); lst(8)
        A('s_cmp_lg_u32 s12, 0')
        A(f's_cbranch_scc1 {name}_end')
        lst.dump(9, 1, 60)

def gen_m(A, name='m_kernel', opt=None):
    opt = opt or {}
    khead(A, name)
    st = Stamper(A, opt.get('stamp'), 1)
    st(0); st(7, True)
    A('s_cmp_ge_u32 s2, 256')
    A(f's_cbranch_scc1 {name}_end')
    A('s_load_dwordx2 s[4:5], s[0:1], %d' % KA['ws'])
    A('s_load_dwordx2 s[6:7], s[0:1], %d' % KA['x'])
    A('v_lshrrev_b32 v2, 6, v0')
    A('v_and_b32 v1, 63, v0')
    A('v_readfirstlane_b32 s12, v2')
    A('s_cmp_ge_u32 s12, 4')
    A(f's_cbranch_scc1 {name}_loader')
    if opt.get('prio'): A(f's_setprio {opt["prio"]}')
    later = fb_compute(A, name, st, opt)
    late = g1_compute(A, name, st, opt, later)
    g2_compute(A, name, st, opt, late)
    A('s_waitcnt vmcnt(0)') if opt.get('stamp') else None
    st(5); st(6, True)
    st.dump(13, 0, 244)
    A('s_endpgm')
    A.label(f'{name}_loader')
    if opt.get('lprio'): A(f's_setprio {opt["lprio"]}')
    loaders(A, name, opt)
    A.label(f'{name}_end')
    A('s_endpgm')
    return dict(name=name, grid=256, block=512, lds=M_LDS, vgpr=256)
```

```python
from common import *
from g1 import w_voffs, tr_bases

HS = 16384; WS = 28672; WB0 = 3 * HS
XB = 32768; EB = WB0 + 3 * WS
SLOT = 32768
SGB = EB + 1024
SYB = SGB + 512
R1, D1, R2W, D2 = 0, 64, 128, 384
STG = SYB
M_LDS = STG + 16384
FULL = 0x01010101
PX_OFF = 29 * MB
FL_OFF = 38 * MB
HS_OFF = 72 * MB
GS_OFF = 40 * MB; GST = 3072; GTT = 56 * GST
FL1, FL2, FL3, FL4, FL5 = 0, 32768, 65536, 196608, 229376
FL_SIZE = 2048 * 128

def spin(A, tag, srdn, soff, vflag, vaddr, scnt, depth=4, gap=2):
    A(f's_mov_b32 s{scnt}, 400000')
    ld = lambda k: A(f'buffer_load_dword v{vflag+k}, v{vaddr}, s[{srdn}:{srdn+3}], s{soff} offen sc1')
    for k in range(depth - 1):
        ld(k); A(f's_sleep {gap}')
    A.label(f'{tag}_spin')
    for k in range(depth):
        ld((k + depth - 1) % depth)
        A(f's_waitcnt vmcnt({depth - 1})')
        A(f'v_cmp_ne_u32 vcc, 1, v{vflag+k}')
        A(f's_cbranch_vccz {tag}_go')
        A(f's_sleep {gap}')
    A(f's_sub_u32 s{scnt}, s{scnt}, 1')
    A(f's_cbranch_scc0 {tag}_spin')
    A.label(f'{tag}_go')

def skipmap(A, dst, src, odd, t):
    if odd:
        A(f'v_cmp_lt_u32 vcc, 255, v{src}')
        A(f'v_add_u32 v{dst}, {1024 + 128}, v{src}')
    else:
        A(f'v_cmp_lt_u32 vcc, 383, v{src}')
        if dst != src: A(f'v_mov_b32 v{dst}, v{src}')
    A(f'v_add_u32 v{t}, 128, v{dst}')
    A(f'v_cndmask_b32 v{dst}, v{dst}, v{t}, vcc')

def g1_decode(A):
    A('s_and_b32 s8, s2, 7')
    A('s_lshr_b32 s9, s2, 3')
    A('s_and_b32 s10, s8, 1')
    A('s_lshl_b32 s10, s10, 3')
    A('s_and_b32 s11, s9, 7')
    A('s_add_u32 s10, s10, s11')
    A('s_lshr_b32 s11, s8, 1')
    A('s_lshl_b32 s11, s11, 2')
    A('s_lshr_b32 s9, s9, 3')
    A('s_add_u32 s11, s11, s9')

def g2_decode(A):
    A('s_mov_b32 s9, s11')
    A('s_lshr_b32 s8, s9, 3')
    A('s_and_b32 s11, s9, 7')
    A('s_lshl_b32 s11, s11, 1')
    A('s_add_u32 s11, s11, s8')

def fb_compute(A, name, st, opt):
    A('s_and_b32 s13, s2, 7')
    A('s_lshr_b32 s14, s2, 3')
    A('s_sub_u32 s15, 16, s13')
    A('s_cmp_eq_u32 s13, 0')
    A('s_cselect_b32 s15, 8, s15')
    A('s_bitcmp1_b32 s14, 0')
    A('s_cselect_b32 s10, s15, s13')
    A('s_lshr_b32 s11, s14, 1')
    A('s_sub_u32 s16, 16, s10')
    A('s_and_b32 s16, s16, 15')
    A('s_sub_u32 s17, 15, s11')
    A('s_lshr_b32 s19, s11, 3')
    A('s_cmp_lg_u32 s19, 0')
    A('s_cselect_b32 s16, s16, s10')
    A('s_cselect_b32 s17, s17, s11')
    vn, vg = 2, 3
    A(f'v_and_b32 v{vn}, 15, v1')
    A(f'v_lshrrev_b32 v{vg}, 4, v1')
    A('v_lshrrev_b32 v6, 3, v1')
    A(f'v_and_b32 v7, 1, v{vg}')
    A('v_lshrrev_b32 v8, 1, v1')
    A('v_and_b32 v8, 3, v8')
    A('v_xor_b32 v7, v7, v8')
    A('v_lshlrev_b32 v7, 5, v7')
    A('v_lshl_add_u32 v4, v6, 10, v7')
    A('v_and_b32 v7, 1, v1')
    A('v_lshl_add_u32 v4, v7, 4, v4')
    A('v_add_u32 v7, s17, v6')
    A('v_and_b32 v7, 7, v7')
    A('v_lshl_add_u32 v4, v7, 7, v4')
    A('v_xor_b32 v5, 64, v4')
    A(f'v_add_u32 v5, {8192 - 1024}, v5')
    A('s_lshl_b32 s14, s16, 2')
    A('s_add_u32 s14, s14, s12')
    A('s_lshl_b32 s14, s14, 16')
    A('s_lshl_b32 s18, s12, 13')
    A(f'v_xor_b32 v8, v{vg}, v1')
    A('v_and_b32 v8, 7, v8')
    A('v_lshlrev_b32 v8, 4, v8')
    A('v_lshl_add_u32 v246, v6, 15, v8')
    A('v_xor_b32 v247, 64, v246')
    A(f'v_add_u32 v247, {8*32768 - 1024}, v247')
    A('s_lshl_b32 s61, s12, 19')
    A('s_lshl_b32 s15, s10, 11')
    A('s_add_u32 s61, s61, s15')
    A('s_lshl_b32 s15, s11, 7')
    A('s_add_u32 s61, s61, s15')
    A('s_lshl_b32 s62, s12, 12')
    A(f's_add_u32 s62, s62, {XB}')
    A('s_lshl_b32 s63, s10, 3')
    A('s_add_u32 s63, s63, s11')
    A('s_lshl_b32 s63, s63, 9')
    A('s_sub_u32 s63, s63, 512')
    A('s_cmp_eq_u32 s11, 0')
    A('s_cselect_b32 s15, 65536, 0')
    A('s_add_u32 s63, s63, s15')
    A('s_cmp_lt_u32 s11, 8')
    A('s_cselect_b32 s63, s63, 0x40000000')
    A('s_lshl_b32 s15, s16, 12')
    A('v_mov_b32 v9, s15')
    A('v_mov_b32 v10, s63')
    A('v_cmp_gt_u32 vcc, 32, v1')
    A('v_cndmask_b32 v9, v10, v9, vcc')
    A('v_lshl_add_u32 v9, v1, 4, v9')
    A(f'v_lshlrev_b32 v245, 6, v{vn}')
    A('s_lshl_b32 s64, s12, 8')
    A('s_add_u32 s64, s64, s10')
    A('s_lshl_b32 s64, s64, 2')
    FR = [16, 48]; EF = 80; B = [112, 144]; ACC = [176, 192]; MA = [208, 212]; VT = 216; VX = 220; X = [224, 232]; VB = 240; MXV = [241, 242]; VH = 243; VE = 244
    A('s_lshl_b32 s15, s12, 4')
    A(f'v_add_u32 v6, s15, v{vn}')
    A('s_cmp_lg_u32 s10, 0')
    A('s_cselect_b32 s15, -1, 0')
    A('v_sub_u32 v7, s15, v6')
    A('s_cmp_lg_u32 s19, 0')
    A('s_cselect_b64 vcc, -1, 0')
    A('v_cndmask_b32 v6, v6, v7, vcc')
    A('v_and_b32 v6, 127, v6')
    A('v_cvt_f32_u32 v7, v6')
    A('v_mul_f32 v7, 0x3c000000, v7')
    A(f'v_lshlrev_b32 v10, 3, v{vg}')
    A('v_cvt_f32_u32 v10, v10')
    A('v_mul_f32 v10, v10, v7')
    B0 = B[0]
    for j in range(8):
        if j: A('v_add_f32 v10, v10, v7')
        A(f'v_cos_f32 v{12+(j&1)}, v10')
        A(f'v_sin_f32 v{14+(j&1)}, v10')
        if j & 1:
            A(f'v_cvt_pk_bf16_f32 v{B0+j//2}, v12, v13')
            A(f'v_cvt_pk_bf16_f32 v{B0+16+j//2}, v14, v15')
    A('v_and_b32 v8, 1, v6')
    A('v_cmp_eq_u32 vcc, 1, v8')
    A('v_mul_u32_u24 v8, 0x8000, v8')
    A('v_lshl_or_b32 v8, v8, 16, v8')
    A('v_and_b32 v10, 2, v6')
    A('v_mul_u32_u24 v10, 0x4000, v10')
    A('v_lshl_or_b32 v10, v10, 16, v10')
    A('v_xor_b32 v11, v10, v8')
    for k in range(4):
        A(f'v_cndmask_b32 v12, v{B0+k}, v{B0+16+k}, vcc')
        A(f'v_cndmask_b32 v13, v{B0+16+k}, v{B0+k}, vcc')
        A(f'v_xor_b32 v{B0+4+k}, v11, v12')
        A(f'v_xor_b32 v{B0+20+k}, v10, v13')
    for k in range(8):
        A(f'v_xor_b32 v{B0+8+k}, v8, v{B0+k}')
        A(f'v_xor_b32 v{B0+24+k}, v8, v{B0+16+k}')
    A('s_brev_b32 s15, 1')
    for k in range(32): A(f'v_xor_b32 v{B[1]+k}, s15, v{B0+k}')
    A('s_waitcnt lgkmcnt(0)')
    srd(A, 28, 4, E_OFF, 131072)
    A(f's_mov_b32 m0, {EB}')
    srd(A, 40, 4, MX_OFF, 8192)
    A('buffer_load_dwordx4 v9, s[28:31], 0 offen lds')
    A('s_add_u32 s15, s64, 4096')
    A(f'buffer_load_dword v{MXV[0]}, v245, s[40:43], s64 offen')
    A(f'buffer_load_dword v{MXV[1]}, v245, s[40:43], s15 offen')
    srd(A, 20, 4, U_OFF, 4 * MB)
    for h in range(4):
        A(f's_add_u32 m0, s18, {h*2048}')
        A('s_nop 0')
        A(f'buffer_load_dwordx4 v4, s[20:23], s14 offen lds')
        A(f'buffer_load_dwordx4 v5, s[20:23], s14 offen offset:1024 lds')
        if h < 3: A('s_add_u32 s14, s14, 16384')
    A(f'v_lshrrev_b32 v10, 2, v{vn}')
    A(f'v_lshl_add_u32 v10, v{vg}, 3, v10')
    A(f'v_lshrrev_b32 v11, 3, v{vn}')
    A(f'v_and_b32 v12, 1, v{vg}')
    A('v_lshl_add_u32 v11, v12, 1, v11')
    A('v_lshlrev_b32 v11, 5, v11')
    A('v_lshl_add_u32 v10, v10, 7, v11')
    A(f'v_and_b32 v11, 3, v{vn}')
    A(f'v_lshl_add_u32 v{VT}, v11, 3, v10')
    A('s_mul_i32 s15, s19, 96')
    A(f'v_xor_b32 v{VT}, s15, v{VT}')
    for i in range(1, 4): A(f'v_xor_b32 v{VT+i}, {(2*(i&1) + (i>>1))*32}, v{VT}')
    A(f'v_and_b32 v11, 1, v{vn}')
    A('v_lshlrev_b32 v11, 9, v11')
    A(f'v_lshl_add_u32 v11, v{vg}, 4, v11')
    A(f'v_add_u32 v{VE}, {EB}, v11')
    A('s_mul_i32 s15, s19, 3')
    A(f'v_xor_b32 v10, s15, v{vg}')
    A('v_lshrrev_b32 v11, 1, v10')
    A(f'v_lshrrev_b32 v12, 1, v{vn}')
    A('v_xor_b32 v11, v11, v12')
    A('v_lshlrev_b32 v11, 4, v11')
    A(f'v_lshl_add_u32 v11, v{vn}, 7, v11')
    A('v_and_b32 v12, 1, v10')
    A('v_lshl_add_u32 v11, v12, 3, v11')
    A(f'v_add_u32 v{VX}, s62, v11')
    for i in range(1, 4): A(f'v_xor_b32 v{VX+i}, {32*i}, v{VX}')
    A(f'v_lshl_add_u32 v10, v10, 4, v{vn}')
    A(f'v_lshlrev_b32 v{VH}, 4, v10')
    A('v_add_u32 v10, 48, v1')
    A('v_and_b32 v10, 63, v10')
    A(f'v_lshlrev_b32 v{VB}, 2, v10')
    A(f'v_cmp_eq_u32 s[46:47], 0, v{vg}')
    srd(A, 52, 4, HS_OFF, 8 * MB)
    skipmap(A, VH, VH, 0, 10)
    A('s_cmp_eq_u32 s11, 0')
    A('s_cselect_b32 s15, 8192, 0')
    srd(A, 32, 4, MU_OFF, 's15')
    srd(A, 36, 4, FL_OFF, FL_SIZE)
    A('s_lshl_b32 s13, s10, 3')
    A('s_add_u32 s13, s13, s12')
    srd(A, 24, 6, 0, 2048 * 2048)
    for u in range(2):
        A(f's_add_u32 m0, s62, {u*2048}')
        if u: A(f's_add_u32 s61, s61, {4 << 19}')
        else: A('s_nop 0')
        A('buffer_load_dwordx4 v246, s[24:27], s61 offen lds')
        A('buffer_load_dwordx4 v247, s[24:27], s61 offen offset:1024 lds')
    st(1)
    A('s_waitcnt vmcnt(8)')
    A('s_barrier')
    st(2)
    units = [(0, 0), (1, 0), (2, 0), (0, 1), (1, 1), (3, 0), (2, 1), (3, 1)]
    def frag(k, q): return FR[0] + 16 * (k % 4) + 4 * q
    def rd(k):
        i, par = units[k]
        return [f'ds_read_b64_tr_b16 {vr(frag(k,q)+2*r2,2)}, v{VT+i} offset:{(32*(2*q+par)+4*r2)*128}' for q in range(4) for r2 in range(2)]
    def mf(d, a, b, z): return f'v_mfma_f32_16x16x32_bf16 {vr(d,4)}, {vr(a,4)}, {vr(b,4)}, {"0" if z else vr(d,4)}'
    NEG = [EF, EF + 4]
    def half(k):
        i, par = units[k]
        out = [mf(ACC[u] + 4*i, frag(k, q), B[u] + 4*(2*q+par), par == 0 and q == 0) for q in range(4) for u in range(2)]
        if par == 0: out[:2] = [out[u][:-1] + vr(NEG[u], 4) for u in range(2)]
        return out
    ONE = 4; S = [5, 7]; Q = [6, 8]; TM = EF; OUT = EF + 16
    E = AutoLgkm(A)
    misc = [f'v_mov_b32 v{ONE}, 0x3f803f80'] + [f'v_mov_b32 v{r}, 0' for r in S + Q] + [f'v_lshlrev_b32 v9, 2, v{vn}', 's_lshl_b32 s60, s13, 6',
            's_lshl_b32 s14, s13, 16', 's_lshl_b32 s15, s11, 12', 's_add_u32 s14, s14, s15', 's_add_u32 s15, s14, 0x40000']
    for x in [f'ds_read_b128 {vr(EF+4*p,4)}, v{VE} offset:{64*p}' for p in range(8)] + rd(0)[:6]: E(x)
    for x in weave([mf(MA[u], EF + 4*p, B[u] + 4*p, p == 0) for p in range(8) for u in range(2)], rd(0)[6:] + rd(1) + rd(2), per=2): E(x)
    for x in misc + [f'v_add_f32 v{MA[u]}, v{MA[u]}, v{MXV[u]}' for u in range(2)] + \
             [f'v_sub_f32 v{NEG[u]+k}, 0, v{MA[u]}' for u in range(2) for k in range(4)]: E(x)
    for x in weave(half(0), [f'v_sub_f32 v{MA[u]+1}, v{MA[u]+1}, v{MA[u]}' for u in range(2)], per=1) + half(1): E(x)
    A('s_waitcnt vmcnt(4)')
    A('s_barrier')
    for x in weave(half(2), rd(3) + rd(4), per=2): E(x)
    xr = ['s_waitcnt vmcnt(0)'] + [f'ds_read_b64 {vr(X[u]+2*k2,2)}, v{VX+k2} offset:{u*2048}' for k2 in range(4) for u in range(2)]
    for x in weave(half(3), rd(5) + xr, per=3): E(x)
    def epi(V, pr):
        out = []
        for u in range(2):
            if opt.get('edot', 0):
                out += [f'v_dot2_f32_bf16 v{V[u][i][r]}, v{X[u]+2*i+(r>>1)}, s{62+(r&1)}, v{V[u][i][r]}' for i in (2*pr, 2*pr + 1) for r in range(4)]
            else:
                t = EF + 8
                out += [[(f'v_lshlrev_b32 v{t+r}, 16, v{X[u]+2*i+(r>>1)}' if r % 2 == 0 else f'v_and_b32 v{t+r}, 0xffff0000, v{X[u]+2*i+(r>>1)}') + '\n' +
                         f'v_add_f32 v{V[u][i][r]}, v{V[u][i][r]}, v{t+r}'][0] for i in (2*pr, 2*pr + 1) for r in range(4)]
        for u in range(2):
            o = OUT + 8*u + 4*pr
            out += [f'v_cvt_pk_bf16_f32 v{o+2*i2+q}, v{V[u][2*pr+i2][2*q]}, v{V[u][2*pr+i2][2*q+1]}' for i2 in range(2) for q in range(2)]
            out.append(f'buffer_store_dwordx4 {vr(o,4)}, v{VH}, s[52:55], s{14+u} offen offset:{pr*2048} sc1')
        return out
    def dots(pr): return [x for u in range(2) for k in range(4) for x in
                          (f'v_dot2_f32_bf16 v{S[u]}, v{OUT+8*u+4*pr+k}, v{ONE}, v{S[u]}', f'v_dot2_f32_bf16 v{Q[u]}, v{OUT+8*u+4*pr+k}, v{OUT+8*u+4*pr+k}, v{Q[u]}')]
    RP = 10; SH = 248
    A('s_cmp_lg_u32 s19, 0')
    A(f's_cbranch_scc1 {name}_up')
    pend0 = list(E.pend)
    for lower in (1, 0):
        if not lower:
            A.label(f'{name}_up'); A('s_nop 7'); E.pend = list(pend0)
        if lower:
            V = [[[SH+4*u+i, ACC[u]+4*i, ACC[u]+4*i+1, ACC[u]+4*i+2] for i in range(4)] for u in range(2)]
            def rot(i): return [f'ds_bpermute_b32 v{RP+3*u+(i%3)}, v{VB}, v{ACC[u]+4*i+3}' for u in range(2)]
            def sel(i): return [f'v_cndmask_b32 v{SH+4*u+i}, v{RP+3*u+(i%3)}, v{RP+3*u+((i-1)%3) if i else MA[u]+1}, s[46:47]' for u in range(2)]
        else:
            V = [[[ACC[u]+4*i+3-r for r in range(4)] for i in range(4)] for u in range(2)]
            rot = sel = lambda i: []
        e0 = [y for x in sel(0) + sel(1) + epi(V, 0) for y in x.split('\n')]
        for x in weave(half(4), rd(6) + rot(0), per=2): E(x)
        for x in weave(half(5) + half(6), rd(7)[:6] + rot(1) + rd(7)[6:] + e0, per=4): E(x)
        for x in weave(half(7), rot(2) + sel(2), start=3, per=1): E(x)
        e1 = epi(V, 1)
        hst = [x for x in e1 if x.startswith('buffer_store')]
        e1 = [x for x in e1 if x not in hst]
        for x in rot(3) + e1[:4] + e1[8:12] + sel(3) + e1[4:8] + e1[12:]: E(x)
        E.drain()
        if lower: A(f's_branch {name}_join')
    A.label(f'{name}_join')
    st(3)
    A('s_waitcnt vmcnt(0)')
    A('s_barrier')
    st(4)
    for x in dots(1)[:6] + hst + dots(1)[6:] + ([] if opt.get('d0', 0) else dots(0)): A(x)
    A(f'buffer_store_dword v{MA[0]}, v9, s[32:35], s60 offen sc1')
    A(f'buffer_store_dword v{MA[1]}, v9, s[32:35], s60 offen offset:256 sc1')
    A(f'v_lshlrev_b32 v40, 3, v{vn}')
    A(f'v_lshrrev_b32 v41, 1, v{vg}')
    A('v_lshl_add_u32 v40, v41, 2, v40')
    A('s_lshl_b32 s14, s10, 4')
    A('s_add_u32 s14, s14, s11')
    A('s_lshl_b32 s14, s14, 3')
    A('s_add_u32 s14, s14, s12')
    A('s_lshl_b32 s14, s14, 7')
    srd(A, 28, 4, ST_OFF, 2048 * 128)
    for u in range(2): A(f'v_permlane32_swap_b32 v{S[u]}, v{Q[u]}')
    for u in range(2): A(f'v_add_f32 v{S[u]}, v{S[u]}, v{Q[u]}')
    for u in range(2): A(f'v_mov_b32 v{Q[u]}, v{S[u]}')
    for u in range(2): A(f'v_permlane16_swap_b32 v{S[u]}, v{Q[u]}')
    for u in range(2): A(f'v_add_f32 v{S[u]}, v{S[u]}, v{Q[u]}')
    for u in range(2): A(f'buffer_store_dword v{S[u]}, v40, s[28:31], s14 offen offset:{512*u} sc1')
    return []

def drained(A):
    A('s_waitcnt vmcnt(0)')
    A('s_barrier')

def g1_compute(A, name, st, opt, later):
    WB = [8, 36]; ACC = 64; HB = [176, 192]
    vAh, cAh, VW, CW = 2, 3, 208, 216
    g1_decode(A)
    A('s_and_b32 s13, s12, 1')
    A('s_lshr_b32 s14, s12, 1')
    A('s_lshl_b32 s15, s13, 13')
    A(f'v_lshlrev_b32 v{vAh}, 4, v1')
    A(f'v_add_u32 v{vAh}, s15, v{vAh}')
    tr_bases(A, 44, 45, 1, 48)
    A('s_cmp_lg_u32 s14, 0')
    A('s_cselect_b64 vcc, -1, 0')
    def gaddr(dst, lam):
        if lam < 12:
            A(f'v_xor_b32 v{dst}, {32*(lam&3)}, v44')
            A(f'v_add_u32 v{dst}, {WB0 + (lam>>2)*1024}, v{dst}')
        else:
            A(f'v_xor_b32 v{dst}, {32*(lam&1)}, v45')
            A(f'v_add_u32 v{dst}, {WB0 + 6144}, v{dst}')
    for k, (l0, l1) in enumerate(zip([4, 5, 2, 3, 0, 1, 6], [8, 9, 10, 11, 12, 13, 7])):
        gaddr(46, l0); gaddr(47, l1)
        A(f'v_cndmask_b32 v{VW+k}, v46, v47, vcc')
    A(f'v_mov_b32 v{cAh}, v{vAh}')
    for k in range(7): A(f'v_mov_b32 v{CW+k}, v{VW+k}')
    for i in range(112): A(f'v_mov_b32 v{ACC+i}, 0')
    A('s_lshl_b32 s15, s10, 1')
    A('s_add_u32 s15, s15, s13')
    gs = opt.get('gskip', 1); TT = GTT if gs else 112 * 1024
    A('s_mul_i32 s15, s15, %d' % (4 * TT))
    A('s_add_u32 s15, s15, %d' % (GS_OFF if gs else G_OFF))
    srd(A, 20, 4, 's15', 4 * TT)
    A('s_mov_b32 s17, 0')
    A('s_mov_b32 s19, 0')
    A('s_mov_b32 s18, 0')
    BV = 240; H2 = 224
    A('s_load_dwordx2 s[24:25], s[0:1], %d' % KA['b1'])
    A('s_and_b32 s52, s11, 1')
    A('s_mul_i32 s15, s11, 7')
    A('s_add_u32 s16, s15, s52')
    A('s_add_u32 s56, s16, 3')
    A('s_cmp_lg_u32 s14, 0')
    A('s_cselect_b32 s53, 4, 2')
    A('s_cselect_b32 s54, 5, 1')
    A('s_cselect_b32 s55, 6, 0')
    for r in (53, 54, 55): A(f's_add_u32 s{r}, s{r}, s16')
    A('s_and_b32 s52, s52, s14')
    A('s_cmp_lg_u32 s52, 0')
    A('s_cselect_b32 s55, s15, s55')
    for r in (53, 54, 55, 56): A(f's_lshl_b32 s{r+4}, s{r}, 6')
    A('s_lshl_b32 s15, s14, 5')
    A('s_add_u32 s60, s60, s15')
    A('v_and_b32 v44, 15, v1')
    A('v_lshlrev_b32 v44, 1, v44')
    A('s_mov_b32 s26, 7168')
    A('s_mov_b32 s27, 0x20000')
    A('s_waitcnt lgkmcnt(0)')
    A('s_barrier')
    A('s_waitcnt vmcnt(0)')
    for i in range(7):
        so, off = 57 + i // 2, (32*(i&1) if i < 6 else 0)
        later.append(f'buffer_load_ushort v{BV+i}, v44, s[24:27], s{so} offen offset:{off}')
    def reads(s, buf):
        r = []
        for j in range(4):
            r.append(f'ds_read_b128 {vr(HB[buf]+4*j,4)}, v{cAh} offset:{(2*j+s)*1024}')
        for i in range(7):
            for rd in range(2):
                r.append(f'ds_read_b64_tr_b16 {vr(WB[buf]+4*i+2*rd,2)}, v{CW+i} offset:{(2*s + rd) * 7168}')
        return r
    E = AutoLgkm(A)
    RP_ = opt.get('rper', 1); R0 = opt.get('r0', 0)
    def step(buf, rds, tail=None, nowait=False):
        k = 0; n = 0
        for i in range(7):
            for jj in range(4):
                j = jj if (i & 1) == 0 else 3 - jj
                E(f'v_mfma_f32_16x16x32_bf16 {vr(ACC + (i*4+j)*4,4)}, {vr(WB[buf] + 4*i,4)}, {vr(HB[buf] + 4*j,4)}, {vr(ACC + (i*4+j)*4,4)}')
                span = opt.get('spanA', 17) if buf else opt.get('spanB', 17)
                while k < len(rds) and round(k * span / 17) <= n: E(rds[k]); k += 1
                n += 1
                if tail and n - 20 in tail:
                    for t in tail[n - 20]: A(t)
        if not nowait: E.drain()
    A('s_barrier')
    st(8)
    for r in reads(0, 0): A(r)
    for x in later: A(x)
    A('s_waitcnt lgkmcnt(0)')
    if opt.get('itime'): A(f'v_mov_b32 v7, {STG}')
    A(f's_branch {name}_g1mid')
    tailB = {-4: [f's_add_u32 s17, s17, {HS}', f's_add_u32 s19, s19, {WS}'], -3: [f's_cmp_eq_u32 s17, {3*HS}', 's_cselect_b32 s17, 0, s17'],
             -2: ['s_cselect_b32 s19, 0, s19', 's_add_u32 s18, s18, 1'], -1: [f'v_add_u32 v{cAh}, s17, v{vAh}', 's_cmp_le_u32 s18, 14']}
    for k in range(7): tailB[k] = [f'v_add_u32 v{CW+k}, s19, v{VW+k}']
    if opt.get('spanB', 17) > 17:
        sp = opt['spanB']
        tailB = {-19: tailB[-4], -18: tailB[-3], -17: tailB[-2], 8: ['s_cmp_le_u32 s18, 14']}
        tailB.setdefault(round(3 * sp / 17) + 2 - 20, []).append(f'v_add_u32 v{cAh}, s17, v{vAh}')
        for k in range(7): tailB.setdefault(min(round((5 + 2*k) * sp / 17) + 2, 28) - 20, []).insert(0, f'v_add_u32 v{CW+k}, s19, v{VW+k}')
    A('.p2align 6')
    A.label(f'{name}_g1loop')
    if opt.get('itime'): A('s_memtime s[92:93]')
    A('s_barrier')
    if opt.get('itime'):
        A('s_memtime s[94:95]')
        tailB[7] = ['v_mov_b32 v4, s92', 'v_mov_b32 v5, s94', f'v_lshl_add_u32 v6, s18, 3, v7', 'ds_write_b64 v6, v[4:5]']
    step(1, reads(0, 0), nowait=opt.get('lazy', 1))
    A.label(f'{name}_g1mid')
    step(0, reads(1, 1), tailB)
    A(f's_cbranch_scc1 {name}_g1loop')
    if opt.get('itime'):
        A('s_memtime s[92:93]')
        A('v_lshlrev_b32 v6, 3, v1')
        A(f'v_add_u32 v4, {STG}, v6')
        A('ds_read_b64 v[4:5], v4')
        A(f's_add_u32 s96, s4, {TS_OFF + 2*65536}')
        A('s_addc_u32 s97, s5, 0')
        A('s_mov_b32 s98, 65536')
        A('s_mov_b32 s99, 0x20000')
        A('s_lshl_b32 s69, s2, 8')
        A('s_waitcnt lgkmcnt(0)')
        A('v_cmp_gt_u32 vcc, 16, v1')
        A('v_cndmask_b32 v6, 4.0, v6, vcc')
        A('buffer_store_dwordx2 v[4:5], v6, s[96:99], s69 offen')
        A('v_mov_b32 v4, s92')
        A('v_mov_b32 v6, 128')
        A('buffer_store_dword v4, v6, s[96:99], s69 offen')
    if opt.get('ttime'): st(3)
    A('s_barrier')
    if opt.get('ttime'): st(4)
    gs = opt.get('gskip', 1)
    order = [6, 0, 1, 2, 3, 4, 5]
    SG = 4
    def wset(k): return WB[0] + 8 * (k % 3)
    def wrd(k):
        i = order[k]
        return [f'ds_read_b64_tr_b16 {vr(wset(k)+4*s_+2*rd,2)}, v{CW+i} offset:{(2*s_ + rd) * 7168}' for s_ in range(2) for rd in range(2)]
    BT = 32
    ST4 = [208, 212, 248, 252]
    A('v_and_b32 v2, 15, v1')
    A('s_lshl_b32 s15, s13, 8')
    A(f's_add_u32 s15, s15, {SGB}')
    A('v_lshl_add_u32 v2, v2, 2, s15')
    pre = [f'ds_read_b128 {vr(HB[0]+4*j,4)}, v{cAh} offset:{(2*j)*1024}' for j in range(4)] + wrd(0) + \
          [f'ds_read_b128 {vr(H2+4*j,4)}, v{cAh} offset:{(2*j+1)*1024}' for j in range(4)] + \
          [f'ds_read_b32 v{ST4[j]}, v2 offset:{64*j}' for j in range(4)] + wrd(1)
    setup = []
    for j in range(4):
        for k in range(1, 4): setup.append(f'v_mov_b32 v{ST4[j]+k}, 0')
    for k in range(1, 4): setup.append(f'v_mov_b32 v{BT+k}, 0')
    addr = []
    for r in (53, 54, 55, 56):
        addr += [f's_lshr_b32 s{r}, s{r}, 1', f's_mul_i32 s{r}, s{r}, {GST}'] if gs else [f's_lshl_b32 s{r}, s{r}, 10']
    class L(list):
        def __call__(self, t): self.append(t)
    va = L()
    va('v_and_b32 v4, 15, v1'); va('v_lshlrev_b32 v4, 4, v4'); va('v_and_b32 v6, 16, v1'); va('v_and_b32 v7, 32, v1')
    va('v_lshl_add_u32 v5, v7, 3, v4'); va('v_lshl_add_u32 v4, v6, 5, v5'); va('s_lshl_b32 s19, s14, 9')
    va('v_add_u32 v5, s19, v5')
    if gs: skipmap(va, 5, 5, 1, 2)
    va(f'v_mul_u32_u24 v6, {TT // 16}, v6'); va('v_add_u32 v5, v5, v6')
    if gs:
        skipmap(va, 6, 4, 1, 2); skipmap(va, 4, 4, 0, 2)
        va('s_cmp_lg_u32 s52, 0'); va('s_cselect_b64 vcc, -1, 0'); va('v_cndmask_b32 v7, v4, v6, vcc')
    else:
        va('v_mov_b32 v6, v4'); va('v_mov_b32 v7, v4')
    def acc(i, j): return ACC + (i*4+j)*4
    def epi_tile(i, j, d):
        a = acc(i, j)
        return [f'v_mul_f32 v{a+r}, v{a+r}, abs(v{a+r})' for r in range(4)] + \
               [f'v_cvt_pk_bf16_f32 v{d}, v{a}, v{a+1}', f'v_cvt_pk_bf16_f32 v{d+1}, v{a+2}, v{a+3}'] + \
               [f'v_pk_max_i16 v{d}, v{d}, 0', f'v_pk_max_i16 v{d+1}, v{d+1}, 0']
    late = []
    def epi(i):
        out = []
        for j0 in (0, 2):
            js = (j0, j0 + 1)
            if i == 6: dst = {j: acc(i, j0) + 2 * (j & 1) for j in js}
            elif i % 2 == 0: dst = {j: acc(i, j) for j in js}
            else: dst = {j: acc(i - 1, j) + 2 for j in js}
            t = [epi_tile(i, j, dst[j]) for j in js]
            out += t[0][:4] + t[1][:4] + t[0][4:6] + t[1][4:6] + t[0][6:] + t[1][6:]
            if i == 6:
                d = acc(i, j0)
                out += [f'v_permlane16_swap_b32 v{d}, v{d+2}', f'v_permlane16_swap_b32 v{d+1}, v{d+3}',
                        f'buffer_store_dwordx4 {vr(d,4)}, v5, s[20:23], s56 offen sc1']
                if j0 == 0: out.append(f's_add_u32 s56, s56, {2*TT}')
            elif i % 2:
                pp = i // 2
                for j in js:
                    d = acc(i - 1, j)
                    out += [f'v_permlane16_swap_b32 v{d}, v{d+2}', f'v_permlane16_swap_b32 v{d+1}, v{d+3}']
                for j in js:
                    o2 = out if pp < 2 else late
                    o2.append(f'buffer_store_dwordx4 {vr(acc(i - 1, j),4)}, v{[4, 6, 7][pp]}, s[20:23], s{53+pp} offen sc1')
                    if j < 3: o2.append(f's_add_u32 s{53+pp}, s{53+pp}, {TT}')
        return out
    for k, i in enumerate(order):
        mf = [(acc(i, j), WB[1] + 4*i, HB[1] + 4*j) for j in range(4)] + [(acc(i, j), wset(k), HB[0] + 4*j) for j in range(4)] + \
             [(acc(i, j), wset(k) + 4, H2 + 4*j) for j in range(4)] + [(acc(i, j), BT, ST4[j]) for j in range(4)]
        if k == 0:
            fill = pre + addr + list(va) + setup
        else:
            fill = (wrd(k + 1) if k + 1 < 7 else []) + epi(order[k - 1])
        per = -(-len(fill) // 15)
        fi = 0
        for n, (d, a, b) in enumerate(mf):
            if k == 0 and n == 4:
                for x in fill[fi:len(pre)]: A(x)
                fi = max(fi, len(pre))
                A('s_waitcnt lgkmcnt(14)')
            if k == 0 and n == 8: A('s_waitcnt lgkmcnt(8)')
            if k == 0 and n == 12:
                for x in fill[fi:]: A(x)
                fi = len(fill)
                A('s_waitcnt vmcnt(0) lgkmcnt(4)')
                A('v_cmp_gt_u32 vcc, 16, v1')
                for j in range(4): A(f'v_cndmask_b32 v{ST4[j]}, 0, v{ST4[j]}, vcc')
            if k > 0 and n == 4: A(f's_waitcnt lgkmcnt({4 if k + 1 < 7 else 0})')
            if n == 10 and k > 0 or (k == 0 and n == 12): A(f'v_mov_b32 v{BT}, v{BV+i}')
            mfma(A, d, a, b)
            if k == 6 and n == 4:
                A('s_barrier')
                st(9)
            for _ in range(per):
                if fi < len(fill): A(fill[fi]); fi += 1
        for x in fill[fi:]: A(x)
    for x in epi(5): A(x)
    return late

def g2_compute(A, name, st, opt, late):
    NS = 4; N2 = opt.get('n2', 8); N1 = (56 - N2) // 2
    SIG = opt.get('sig', 2); POLL = opt.get('poll', 4)
    AO = 8; AX = 40; HB = [72, 88]; WO = [104, 112]; WX = [120, 128]; EP = 136; PR = 224
    vAh, vAw, cAh, cAw, vAw1, cAw1, vL16, vFl = 176, 177, 178, 179, 180, 181, 182, 183
    A('s_load_dwordx2 s[50:51], s[0:1], %d' % KA['b2'])
    A('s_load_dwordx2 s[48:49], s[0:1], %d' % KA['out'])
    if opt.get('sapos', 1) == 0:
        A('s_waitcnt vmcnt(0)')
        A('s_barrier')
        st(10)
    A('v_and_b32 v8, 15, v1')
    A('v_lshlrev_b32 v8, 4, v8')
    A('v_and_b32 v10, 16, v1')
    A('v_and_b32 v11, 32, v1')
    A('v_lshl_add_u32 v9, v11, 3, v8')
    A('v_lshl_add_u32 v8, v10, 5, v9')
    A('v_lshlrev_b32 v10, 7, v10')
    A('s_lshl_b32 s15, s13, 13')
    A('s_lshl_b32 s16, s14, 9')
    A('s_add_u32 s16, s16, s15')
    A(f's_add_u32 s16, s16, {3*SLOT + 1024}')
    A('v_add3_u32 v9, v9, v10, s16')
    A('v_add_u32 v8, s15, v8')
    A('s_cmp_lg_u32 s14, 0')
    for k, (b0, b1) in enumerate(((3*SLOT, 0), (2*SLOT + 1024, 1024), (2*SLOT, 0x40000))):
        A(f's_mov_b32 s16, {b0}')
        A(f's_cselect_b32 s16, {b1}, s16')
        A(f'v_add_u32 v{10+k}, s16, v8')
    wr_ = [f'ds_write_b128 v{10+k}, {vr(64+32*k+4*j,4)} offset:{2048*j}' for k in (2, 1, 0) for j in range(4)]
    wr_ += [f'ds_write_b128 v9, {vr(160+4*j,4)} offset:{2048*j}' for j in (0, 2)]
    ad = [f'v_lshlrev_b32 v{vL16}, 4, v1', f'v_add_u32 v{vAh}, s15, v{vL16}', 'v_lshrrev_b32 v184, 2, v1', 'v_and_b32 v184, 3, v184',
          'v_lshrrev_b32 v185, 4, v1', 'v_lshl_add_u32 v184, v185, 3, v184', 'v_lshrrev_b32 v186, 3, v1', 'v_and_b32 v186, 3, v186',
          'v_lshlrev_b32 v186, 5, v186', 'v_lshl_add_u32 v184, v184, 7, v186', 'v_and_b32 v186, 3, v1', f'v_lshl_add_u32 v{vAw}, v186, 3, v184',
          's_lshl_b32 s16, s14, 6', f'v_xor_b32 v{vAw}, s16, v{vAw}', f'v_add_u32 v{vAw}, 16384, v{vAw}', f'v_xor_b32 v{vAw1}, 32, v{vAw}',
          f'v_add_u32 v{cAh}, {2*SLOT}, v{vAh}', f'v_add_u32 v{cAw}, {2*SLOT}, v{vAw}', f'v_add_u32 v{cAw1}, {2*SLOT}, v{vAw1}', f'v_mov_b32 v{vFl}, 0']
    ad += [f'v_mov_b32 v{192+k}, v{128+k}' for k in range(16)]
    for x in weave(wr_[:8], ad[:16], per=2): A(x)
    if opt.get('sapos', 1) == 1:
        A('s_waitcnt vmcnt(0)')
        A('s_barrier')
        st(10)
    for x in weave(wr_[8:], ad[16:], per=3): A(x)
    for k in range(4): A(f's_mov_b32 s{64+k}, s{20+k}' if k < 3 else 's_mov_b32 s67, 0x20000')
    A('s_mov_b32 s68, s55')
    A(f's_mov_b32 s17, {2*SLOT}')
    TT = GTT if opt.get('gskip', 1) else 112 * 1024
    def late_store(k): return [f'buffer_store_dwordx4 {vr(192+4*k,4)}, v7, s[64:67], s68 offen sc1', f's_add_u32 s68, s68, {TT}']
    def setup():
        g2_decode(A)
        A('s_lshl_b32 s15, s10, 1')
        A('s_add_u32 s15, s15, s13')
        A('s_lshl_b32 s16, s15, 18')
        A(f's_add_u32 s16, s16, {HS_OFF}')
        A('s_lshl_b32 s19, s15, 8')
        A(f's_add_u32 s19, s19, {MU_OFF}')
        A('s_lshl_b32 s54, s2, 2')
        A('s_add_u32 s54, s54, s12')
        A('s_xor_b32 s55, s54, 16')
        A('s_lshl_b32 s56, s54, 12')
        A('s_lshl_b32 s57, s55, 12')
        A('s_lshl_b32 s54, s54, 7')
        A('s_lshl_b32 s55, s55, 7')
        A(f's_add_u32 s54, s54, {FL3}')
        A(f's_add_u32 s55, s55, {FL3}')
        srd(A, 20, 4, 's16', 256 * 1024)
        srd(A, 44, 4, 's19', 256)
        A(f's_add_u32 s19, s19, {R2_OFF - MU_OFF}')
        srd(A, 24, 4, 's19', 256)
        srd(A, 28, 50, 0, 2048)
        srd(A, 32, 48, 0, 2048 * 2048)
        srd(A, 40, 4, PX_OFF, 4 * MB)
    A('s_waitcnt lgkmcnt(0)')
    def reads(s, buf, full):
        r = []
        for i in range(2):
            for rd in range(2):
                r.append(f'ds_read_b64_tr_b16 {vr(WO[buf]+4*i+2*rd,2)}, v{cAw1 if i else cAw} offset:{4096*s + 512*rd}')
        for j in range(4):
            r.append(f'ds_read_b128 {vr(HB[buf]+4*j,4)}, v{cAh} offset:{(2*j+s)*1024}')
        if full:
            for i in range(2):
                for rd in range(2):
                    r.append(f'ds_read_b64_tr_b16 {vr(WX[buf]+4*i+2*rd,2)}, v{cAw1 if i else cAw} offset:{8192 + 4096*s + 512*rd}')
        return r
    ADV = [[f's_add_u32 s17, s17, {SLOT}', f's_cmp_eq_u32 s17, {NS*SLOT}'], ['s_cselect_b32 s17, 0, s17', f'v_add_u32 v{cAh}, s17, v{vAh}'],
           [f'v_add_u32 v{cAw}, s17, v{vAw}'], [f'v_add_u32 v{cAw1}, s17, v{vAw1}']]
    def step(buf, full, rds, tail=(), xfirst=False, zero=False):
        seq = []
        order = ([(AX, WX)] if full else []) + [(AO, WO)] if xfirst else [(AO, WO)] + ([(AX, WX)] if full else [])
        for acc, W in order:
            for i in range(2):
                for jj in range(4):
                    j = jj if i == 0 else 3 - jj
                    seq.append((acc + (i*4+j)*4, W[buf] + 4*i, HB[buf] + 4*j))
        per = 1 if len(rds) + len(tail) <= len(seq) else 2
        fill = [[x] for x in rds]
        if per == 2: fill = [sum(fill[k:k+2], []) for k in range(0, len(fill), 2)]
        fill += list(tail)
        for n, (d, a, b) in enumerate(seq):
            mfma(A, d, a, b, '0' if zero else None)
            if n < len(fill):
                for x in fill[n]: A(x)
        for f in fill[len(seq):]:
            for x in f: A(x)
        A('s_waitcnt lgkmcnt(0)')
    A('s_barrier')
    st(11)
    for r in reads(0, 0, True): A(r)
    setup()
    A('s_lshl_b32 s16, s11, 1')
    A('s_add_u32 s16, s16, s14')
    A('s_lshl_b32 s19, s16, 11')
    skipmap(A, PR + 2, vL16, 0, PR + 3)
    for j in range(4):
        A(f'buffer_load_dwordx4 {vr(EP+4*j,4)}, v{PR+2}, s[20:23], s19 offen sc1')
        if j < 3: A('s_add_u32 s19, s19, 65536')
    A(f'v_and_b32 v{PR}, 15, v1')
    A(f'v_lshlrev_b32 v{PR}, 2, v{PR}')
    for j in range(4):
        A(f'buffer_load_dword v{EP+16+j}, v{PR}, s[24:27], 0 offen offset:{64*j} sc1')
        A(f'buffer_load_dword v{EP+24+j}, v{PR}, s[44:47], 0 offen offset:{64*j} sc1')
    A(f'v_lshrrev_b32 v{PR+1}, 4, v1')
    A(f'v_lshlrev_b32 v{PR+1}, 3, v{PR+1}')
    A('s_lshl_b32 s19, s16, 6')
    A(f'buffer_load_dwordx2 {vr(EP+20,2)}, v{PR+1}, s[28:31], s19 offen')
    A(f'buffer_load_dwordx2 {vr(EP+22,2)}, v{PR+1}, s[28:31], s19 offen offset:32')
    A('s_waitcnt lgkmcnt(0)')
    L0 = opt.get('l0', 0)
    step(0, True, reads(1, 1, True), ADV[:3] + [ADV[3] + (late_store(0) if L0 == 0 else [])], zero=True)
    for k in range(1, L0 + 4):
        if k >= 3 or not opt.get('nb12', 0): A('s_barrier')
        step(1, True, reads(0, 0, True), [late_store(k - L0)] if k >= L0 else [])
        step(0, True, reads(1, 1, True), ADV)
    A(f's_mov_b32 s18, {L0 + 4}')
    A('.p2align 6')
    A.label(f'{name}_g2loop')
    A('s_barrier')
    step(1, True, reads(0, 0, True), [['s_waitcnt vmcnt(0)']])
    step(0, True, reads(1, 1, True), ADV[:3] + [ADV[3] + ['s_add_u32 s18, s18, 1', f's_cmp_lt_u32 s18, {N1}']])
    A(f's_cbranch_scc1 {name}_g2loop')
    A('s_mov_b32 s59, 0')
    A('s_mov_b32 s58, 400000')
    def check(tag, sp):
        A('s_cmp_lg_u32 s59, 0')
        A(f's_cbranch_scc1 {name}_done{tag}')
        A.label(f'{name}_poll{tag}')
        A('s_waitcnt vmcnt(0)')
        A(f'v_readfirstlane_b32 s59, v{PR+16}')
        A('s_cmp_eq_u32 s59, 1')
        A(f's_cbranch_scc1 {name}_got{tag}')
        A('s_mov_b32 s59, 0')
        if sp:
            A('s_sub_u32 s58, s58, 1')
            A(f's_cbranch_scc1 {name}_got{tag}')
            A('s_sleep 1')
        A(f'buffer_load_dword v{PR+16}, v{vFl}, s[36:39], s55 offen sc1')
        A(f's_branch {name}_poll{tag}' if sp else f's_branch {name}_done{tag}')
        A.label(f'{name}_got{tag}')
        for k in range(4):
            A(f'buffer_load_dwordx4 {vr(PR+4*k,4)}, v{vL16}, s[40:43], s57 offen offset:{k*1024} sc1')
        A.label(f'{name}_done{tag}')
    B = 184; C = 192
    pre = {1: ['v_and_b32 v6, 15, v1', 'v_lshrrev_b32 v7, 4, v1', 'v_and_b32 v2, 1, v7', 'v_lshrrev_b32 v7, 1, v7', 'v_lshl_add_u32 v7, v2, 1, v7',
               'v_lshrrev_b32 v2, 1, v6', 'v_xor_b32 v7, v7, v2', 'v_and_b32 v7, 3, v7', 'v_lshl_add_u32 v7, v6, 2, v7', 's_lshl_b32 s15, s12, 12',
               f's_add_u32 s15, s15, {STG}', 'v_lshl_add_u32 v4, v7, 4, s15', 'v_lshrrev_b32 v6, 2, v1', 'v_lshrrev_b32 v7, 3, v1', 'v_xor_b32 v7, v7, v1',
               'v_and_b32 v7, 3, v7', 'v_lshl_add_u32 v5, v1, 4, s15', 'v_lshlrev_b32 v6, 15, v6', 'v_lshl_add_u32 v6, v7, 4, v6', 's_lshl_b32 s19, s10, 11', 's_lshl_b32 s15, s13, 21', 's_add_u32 s19, s19, s15',
               's_lshl_b32 s16, s16, 6', 's_add_u32 s19, s19, s16', 's_mov_b32 s60, 0x3f80', 's_mov_b32 s61, 0x3f800000']}
    for i in range(2):
        for q in range(2):
            pre[1] += [f'v_lshlrev_b32 v{B+4*i+2*q}, 16, v{EP+20+2*i+q}', f'v_and_b32 v{B+4*i+2*q+1}, 0xffff0000, v{EP+20+2*i+q}']
    for j in range(4):
        l = pre.setdefault(2 + j, [])
        for i in range(2):
            c = C + (i*4+j)*4
            for q in range(2):
                l += [f'v_lshlrev_b32 v{c+2*q}, 16, v{EP+4*j+2*i+q}', f'v_and_b32 v{c+2*q+1}, 0xffff0000, v{EP+4*j+2*i+q}']
            l += [f'v_pk_add_f32 {vr(c+2*q,2)}, {vr(c+2*q,2)}, {vr(B+4*i+2*q,2)}' for q in range(2)]
            l += [f'v_add_f32 v{c+r}, v{c+r}, v{EP+24+j}' for r in range(4)]
    assert N2 >= 6
    for it in range(N2):
        A('s_barrier')
        if it == 0:
            step(1, True, reads(0, 0, False), xfirst=True)
            for k in range(4):
                for c in range(4*k, 4*k+4): A(f'v_cvt_pk_bf16_f32 v{AX+c}, v{AX+2*c}, v{AX+2*c+1}')
                A(f'buffer_store_dwordx4 {vr(AX+4*k,4)}, v{vL16}, s[40:43], s56 offen offset:{k*1024} sc1')
        else:
            if it == SIG:
                A('s_waitcnt vmcnt(0)')
                A(f'v_mov_b32 v{PR}, 1')
                A(f'buffer_store_dword v{PR}, v{vFl}, s[36:39], s54 offen sc1')
            if it == POLL:
                A(f'buffer_load_dword v{PR+16}, v{vFl}, s[36:39], s55 offen sc1')
            if it > POLL: check(it, False)
            step(1, False, reads(0, 0, False))
            for x in pre.get(it, []): A(x)
        step(0, False, reads(1, 1, False), ADV if it < N2 - 1 else ())
    check('L', True)
    step(1, False, [])
    st(12)
    A('s_waitcnt vmcnt(0)')
    T = 40
    for j in range(4):
        d = T + 4*j
        for i in range(2):
            a = AO + (i*4+j)*4; pr = PR + (i*4+j)*2
            for r in range(4): A(f'v_dot2_f32_bf16 v{a+r}, v{pr+(r>>1)}, s{60+(r&1)}, v{a+r}')
        for i in range(2):
            a = AO + (i*4+j)*4
            for r in range(4): A(f'v_fma_f32 v{a+r}, v{a+r}, v{EP+16+j}, v{C+(i*4+j)*4+r}')
        for i in range(2):
            a = AO + (i*4+j)*4
            A(f'v_cvt_pk_bf16_f32 v{d+2*i}, v{a}, v{a+1}')
            A(f'v_cvt_pk_bf16_f32 v{d+2*i+1}, v{a+2}, v{a+3}')
        A(f'v_permlane16_swap_b32 v{d}, v{d+2}')
        A(f'v_permlane16_swap_b32 v{d+1}, v{d+3}')
        A(f'ds_write_b128 v4, {vr(d,4)} offset:{1024*j}')
        A(f'ds_read_b128 {vr(76+4*j,4)}, v5 offset:{1024*j}')
        if j:
            A('s_waitcnt lgkmcnt(2)')
            A(f'buffer_store_dwordx4 {vr(72+4*j,4)}, v6, s[32:35], s19 offen {opt.get("omod", "sc1")}')
            A(f's_add_u32 s19, s19, {16*16*2048}')
    A('s_waitcnt lgkmcnt(0)')
    A(f'buffer_store_dwordx4 {vr(88,4)}, v6, s[32:35], s19 offen {opt.get("omod", "sc1")}')

def loaders(A, name, opt):
    NS = 4; N2 = opt.get('n2', 8); N1 = (56 - N2) // 2; NT = N1 + N2
    hm = opt.get('hmod', 'sc1')
    lst0 = Stamper(A, opt.get('stamp') == 1, 1)
    class LS:
        def __call__(self, i, real=False, ph=2):
            if i in (1, 2, 3, 4) and ph != opt.get('lph', 2): return
            lst0(i, real)
        def dump(self, *a): lst0.dump(*a)
    lst = LS()
    A('s_load_dwordx4 s[64:67], s[0:1], %d' % KA['w1'])
    A('s_load_dwordx4 s[48:51], s[0:1], %d' % KA['w2'])
    A('s_sub_u32 s12, s12, 4')
    g1_decode(A)
    A('s_lshl_b32 s15, s12, 17')
    A('v_lshlrev_b32 v8, 4, v1')
    skipmap(A, 8, 8, 0, 9)
    A('v_add_u32 v8, s15, v8')
    A('v_add_u32 v9, 0x10000, v8')
    A('s_lshr_b32 s15, s12, 1')
    A('s_lshl_b32 s15, s15, 6')
    A('s_and_b32 s16, s12, 1')
    A('s_lshl_b32 s16, s16, 4')
    A('s_add_u32 s15, s15, s16')
    A('s_and_b32 s16, s11, 1')
    w_voffs(A, 10, 1, 15, 16, 4, range(6 if opt.get('wh', 0) else 7))
    A('s_lshl_b32 s43, s12, 12')
    A('s_mul_i32 s44, s12, 7168')
    A(f's_add_u32 s44, s44, {WB0}')
    A('s_mov_b32 s41, 0')
    A('s_mov_b32 s42, 0')
    A('s_lshl_b32 s15, s12, 8')
    A('v_and_b32 v3, 15, v1')
    A('v_lshlrev_b32 v3, 4, v3')
    A('v_lshrrev_b32 v4, 4, v1')
    A('v_lshl_add_u32 v3, v4, 10, v3')
    A('v_add_u32 v3, s15, v3')
    A('v_and_b32 v17, 15, v1')
    A('v_lshlrev_b32 v17, 7, v17')
    A('v_mov_b32 v20, 1')
    A('v_mov_b32 v21, 0')
    A('s_and_b32 s13, s2, 7')
    A('s_sub_u32 s15, 16, s13')
    A('s_cmp_eq_u32 s13, 0')
    A('s_cselect_b32 s15, 8, s15')
    A('s_bitcmp1_b32 s2, 3')
    A('s_cselect_b32 s13, s15, s13')
    A('s_lshl_b32 s13, s13, 4')
    A('s_lshr_b32 s15, s2, 4')
    A('s_add_u32 s13, s13, s15')
    A('s_lshl_b32 s13, s13, 7')
    A('s_lshl_b32 s14, s10, 4')
    A('s_add_u32 s14, s14, s11')
    A('s_lshl_b32 s14, s14, 7')
    A(f's_add_u32 s14, s14, {FL2}')
    A('s_lshl_b32 s15, s10, 19')
    A(f's_add_u32 s15, s15, {HS_OFF}')
    A('s_mul_i32 s16, s11, 448')
    A(f's_sub_u32 s19, {1024*7168}, s16')
    A('s_waitcnt lgkmcnt(0)')
    lst(1, ph=3)
    A('s_lshl_b32 s17, s12, 7')
    A('s_add_u32 s18, s17, s16')
    A('s_min_u32 s18, s18, 7040')
    A('s_load_dwordx2 s[62:63], s[66:67], s18 offset:60')
    A('s_and_b32 s18, s11, 3')
    A('s_lshl_b32 s18, s18, 9')
    A('s_add_u32 s18, s18, s17')
    A('s_load_dwordx2 s[62:63], s[50:51], s18 offset:60')
    srd(A, 20, 4, 's15', 512 * 1024)
    srd(A, 24, 64, 's16', 's19')
    if opt.get('wh', 0):
        A('s_lshl_b32 s15, s11, 16')
        A(f's_add_u32 s15, s15, {WH_OFF}')
        srd(A, 28, 4, 's15', 65536)
        A('s_mov_b32 s51, 0')
        A('s_lshr_b32 s15, s12, 1')
        A('s_lshl_b32 s15, s15, 12')
        A('s_and_b32 s17, s12, 1')
        A('s_lshl_b32 s17, s17, 10')
        A('s_add_u32 s15, s15, s17')
        A('v_lshrrev_b32 v16, 3, v1')
        A('v_and_b32 v16, 2, v16')
        A('v_xor_b32 v16, v16, v1')
        A('v_lshl_add_u32 v16, v16, 4, s15')
    A('s_lshl_b32 s15, s10, 14')
    A(f's_add_u32 s15, s15, {ST_OFF}')
    srd(A, 32, 4, 's15', 16384)
    A('s_lshl_b32 s15, s10, 9')
    A(f's_add_u32 s15, s15, {R2_OFF}')
    srd(A, 36, 4, 's15', 512)
    srd(A, 52, 4, FL_OFF, FL_SIZE)
    srd(A, 56, 48, 0, 3584 * 2048)
    A('s_lshl_b32 s60, s2, 2')
    A('s_add_u32 s60, s60, s12')
    NL2 = 5 if opt.get('sw1', 0) else 4
    A(f's_mul_i32 s60, s60, {128*NL2}')
    A(f's_mov_b32 s50, {(6 if NL2 == 5 else 8) * (NL2 << 17)}')
    hstep = [8192]
    A('v_add_u32 v26, 3072, v8')
    A('v_add_u32 v27, 3072, v9')
    def issue_h(lds):
        A(f's_add_u32 m0, {lds}, s43')
        A('s_nop 0')
        A(f'buffer_load_dwordx4 v8, s[20:23], s41 offen {hm} lds')
        A(f'buffer_load_dwordx4 v26, s[20:23], s41 offen offset:1024 {hm} lds')
        A('s_add_u32 m0, m0, 2048')
        A('s_nop 0')
        A(f'buffer_load_dwordx4 v9, s[20:23], s41 offen {hm} lds')
        A(f'buffer_load_dwordx4 v27, s[20:23], s41 offen offset:1024 {hm} lds')
        A(f's_add_u32 s41, s41, {hstep[0]}')
    def issue_w(lds, srdn=24, so='s42'):
        A(f's_add_u32 s45, {lds}, s44')
        for q in range(7):
            A(f's_add_u32 m0, s45, {q*1024}')
            A('s_nop 0')
            if q < 6 or not opt.get('wh', 0): A(f'buffer_load_dwordx4 v{10+q}, s[24:27], s42 offen lds')
            else: A('buffer_load_dwordx4 v16, s[28:31], s51 offen lds')
        A(f's_add_u32 s42, s42, {128*7168}')
        if opt.get('wh', 0): A('s_add_u32 s51, s51, 8192')
    def sp2():
        if opt.get('nosp2'): return
        for k in range(NL2): A(f's_buffer_load_dwordx2 s[62:63], s[56:59], s60 offset:{128*k + 60}')
        A('s_add_u32 s60, s60, s50')
        A(f's_sub_u32 s50, {NL2 << 17}, s50')
    sw1 = opt.get('sw1', 0)
    if sw1:
        srd(A, 68, 64, 32 * 7168, 992 * 7168)
        A('s_lshr_b32 s61, s2, 4')
        A('s_lshl_b32 s61, s61, 5')
        A('s_and_b32 s15, s2, 15')
        A('s_add_u32 s61, s61, s15')
        A('s_lshl_b32 s61, s61, 2')
        A('s_add_u32 s61, s61, s12')
        A('s_mul_i32 s61, s61, 3584')
    def sp1(b):
        if sw1:
            for k in range(7): A(f's_buffer_load_dwordx2 s[62:63], s[68:71], s61 offset:{896*b + 128*k + 60}')
    sp1(0)
    def only0(tag, ins):
        A('s_cmp_lg_u32 s12, 0')
        A(f's_cbranch_scc1 {tag}')
        for x in ins: A(x)
        A.label(tag)
    lst(2, ph=3)
    A('s_barrier')
    A('s_barrier')
    lst(3, ph=3); lst(4, ph=3)
    NWA = opt.get('nwa', 1)
    for k in range(NWA): issue_w(k * WS)
    if sw1: sp1(1)
    else: sp2(); sp2()
    A('s_lshl_b32 s15, s10, 11')
    lst(1, ph=1)
    A('s_barrier')
    lst(2, ph=1)
    only0(f'{name}_f1', ['buffer_store_dword v20, v21, s[52:55], s13 offen sc1'])
    for k in range(NWA, 3): issue_w(k * WS)
    sp1(2)
    A('s_cmp_lg_u32 s12, 0')
    A(f's_cbranch_scc1 {name}_fl1_go')
    spin(A, f'{name}_fl1', 52, 15, 36, 17, 47, opt.get('pdepth', 1), opt.get('pgap', 1))
    lst(3, ph=1)
    A('s_barrier')
    for k in range(3): issue_h(k * HS)
    sp1(3)
    A('s_mov_b32 s40, 0')
    A('s_mov_b32 s46, 0')
    A('s_waitcnt vmcnt(8)')
    lst(4, ph=1)
    A('s_barrier')
    sig5 = lambda: only0(f'{name}_no5', [f's_add_u32 s13, s13, {FL5}', 'buffer_store_dword v20, v21, s[52:55], s13 offen sc1'])
    sig5()
    A('s_waitcnt vmcnt(4)')
    A('s_barrier')
    def issue():
        issue_h('s40'); issue_w('s46')
        A(f's_add_u32 s40, s40, {HS}')
        A(f's_add_u32 s46, s46, {WS}')
        A(f's_cmp_eq_u32 s40, {3*HS}')
        A('s_cselect_b32 s40, 0, s40')
        A('s_cselect_b32 s46, 0, s46')
    def stats():
        for c in range(4):
            A(f'v_add_f32 v{40+c}, v{40+c}, v{44+c}')
            A(f'v_add_f32 v{48+c}, v{48+c}, v{52+c}')
        for c in range(4): A(f'v_add_f32 v{40+c}, v{40+c}, v{48+c}')
        A('v_permlane32_swap_b32 v40, v42')
        A('v_permlane32_swap_b32 v41, v43')
        A('v_add_f32 v40, v40, v42')
        A('v_add_f32 v41, v41, v43')
        A('v_mov_b32 v42, v40')
        A('v_mov_b32 v43, v41')
        A('v_permlane16_swap_b32 v40, v42')
        A('v_permlane16_swap_b32 v41, v43')
        A('v_add_f32 v40, v40, v42')
        A('v_add_f32 v41, v41, v43')
        ln_finish(A, 40, 41, 22, 23, 24, 47)
        A('v_lshrrev_b32 v28, 16, v23')
        A('v_and_b32 v4, 15, v1')
        A('v_lshrrev_b32 v5, 5, v1')
        A('v_lshl_add_u32 v2, v4, 1, v5')
        A('s_lshl_b32 s15, s12, 7')
        A(f's_add_u32 s15, s15, {SGB}')
        A('v_lshl_add_u32 v5, v2, 2, s15')
        A('ds_write_b32 v5, v28')
        A('v_mul_f32 v23, v23, v23')
        A('v_rcp_f32 v23, v23')
        A('s_lshl_b32 s15, s12, 7')
        A('v_lshlrev_b32 v5, 2, v2')
        A('buffer_store_dword v23, v5, s[36:39], s15 offen sc1')
    def loop1(tag, first, last):
        A(f's_mov_b32 s18, {first}')
        A.label(f'{name}_{tag}')
        issue()
        if last == 15:
            A('s_cmp_eq_u32 s18, 15')
            A(f's_cbranch_scc1 {name}_nosp')
            if NL2 == 4:
                A('s_cmp_eq_u32 s18, 13')
                A('s_cselect_b32 s50, 0x80000, s50')
        sp2()
        if last == 15: A.label(f'{name}_nosp')
        A('s_add_u32 s18, s18, 1')
        A(f's_cmp_le_u32 s18, {last}')
        A('s_waitcnt vmcnt(11)')
        A('s_barrier')
        A(f's_cbranch_scc1 {name}_{tag}')
    loop1('l1a', 3, 4)
    A(f's_add_u32 s15, s15, {FL5}')
    A('buffer_load_dword v36, v17, s[52:55], s15 offen sc1')
    issue(); sp2()
    A('s_waitcnt vmcnt(11)')
    A('s_barrier')
    A('v_cmp_ne_u32 vcc, 1, v36')
    A(f's_cbranch_vccz {name}_fl5_go')
    spin(A, f'{name}_fl5', 52, 15, 36, 17, 47, 1, 1)
    for k in range(4):
        A(f's_mov_b32 s47, {4096*k}')
        A(f'buffer_load_dwordx4 {vr(40+4*k,4)}, v3, s[32:35], s47 offen sc1')
    loop1('l1b', 6, 7)
    A('s_mov_b32 s41, 2048')
    A(f's_mov_b32 s42, {32*7168}')
    if opt.get('wh', 0): A('s_mov_b32 s51, 2048')
    issue(); sp2()
    stats()
    A('s_waitcnt vmcnt(12)')
    A('s_barrier')
    loop1('l1c', 9, 15)
    A('s_waitcnt vmcnt(0) lgkmcnt(0)')
    A('s_barrier')
    g2_decode(A)
    gs = opt.get('gskip', 1); TT = GTT if gs else 112 * 1024; hstep[0] = GST if gs else 2048
    A(f's_mul_i32 s15, s12, {2*TT}')
    A('v_lshlrev_b32 v8, 4, v1')
    if gs:
        skipmap(A, 26, 8, 1, 4)
        skipmap(A, 8, 8, 0, 4)
        A('v_subrev_u32 v26, 1024, v26')
    else:
        A('v_mov_b32 v26, v8')
    A('v_add_u32 v8, s15, v8')
    A('v_add_u32 v26, s15, v26')
    A(f'v_add_u32 v9, {TT}, v8')
    A(f'v_add_u32 v27, {TT}, v26')
    A('v_lshrrev_b32 v4, 3, v1')
    A('s_lshl_b32 s15, s12, 4')
    A('v_add_u32 v4, s15, v4')
    A('v_lshlrev_b32 v4, 11, v4')
    A('v_and_b32 v5, 1, v1')
    A('v_lshl_add_u32 v4, v5, 4, v4')
    A('v_lshrrev_b32 v5, 4, v1')
    A('v_and_b32 v5, 1, v5')
    A('v_lshrrev_b32 v6, 1, v1')
    A('v_and_b32 v6, 3, v6')
    A('v_xor_b32 v5, v5, v6')
    A('v_lshl_add_u32 v4, v5, 5, v4')
    A('v_xor_b32 v5, 64, v4')
    A(f'v_add_u32 v5, {16384 - 1024}, v5')
    A('v_lshrrev_b32 v6, 3, v1')
    A('v_cmp_eq_u32 vcc, 3, v6')
    A('v_cndmask_b32 v6, v6, 7, vcc')
    for hsel, (va, sr_) in enumerate(((10, 24), (12, 32))):
        if hsel == 0: A('s_mov_b32 s16, s11')
        else: A('s_xor_b32 s16, s11, 1')
        A('s_and_b32 s19, s16, 8')
        A('v_add_u32 v7, s19, v6')
        A('v_lshlrev_b32 v14, 7, v7')
        A('v_xor_b32 v15, 0x400, v14')
        A('s_and_b32 s15, s16, 7')
        A('s_lshl_b32 s16, s16, 7')
        A('v_mov_b32 v7, s16')
        A(f's_add_u32 s{sr_}, s4, {WC_OFF}')
        A(f's_addc_u32 s{sr_+1}, s5, 0')
        A(f's_cmp_eq_u32 s15, {3 if opt.get("wcopy", 1) else 9}')
        A('s_cselect_b64 vcc, -1, 0')
        A(f's_cselect_b32 s{sr_}, s{sr_}, s48')
        A(f's_cselect_b32 s{sr_+1}, s{sr_+1}, s49')
        A(f's_mov_b32 s{sr_+2}, {3584*2048}')
        A(f's_mov_b32 s{sr_+3}, 0x20000')
        A('v_cndmask_b32 v14, v7, v14, vcc')
        A('v_cndmask_b32 v15, v7, v15, vcc')
        A(f'v_add_u32 v{va}, v4, v14')
        A(f'v_add_u32 v{va+1}, v5, v15')
    A('s_lshl_b32 s44, s12, 11')
    A('s_add_u32 s44, s44, 16384')
    assert N1 == 24
    def mask(st_): return sum(1 << x for x in st_)
    def m64(r, m):
        A(f's_mov_b32 s{r}, {m & 0xffffffff}'); A(f's_mov_b32 s{r+1}, {m >> 32}')
    def sel64(r, m_true, m_false):
        for h in range(2):
            A(f's_mov_b32 s{r+h}, {(m_false >> (32*h)) & 0xffffffff}')
            A(f's_cselect_b32 s{r+h}, {(m_true >> (32*h)) & 0xffffffff}, s{r+h}')
    A('s_and_b32 s15, s9, 7')
    A('s_cmp_eq_u32 s15, 7')
    sel64(38, mask(range(0, 4)), mask(range(24, 28)))
    A('s_cmp_eq_u32 s15, 0')
    sel64(30, mask(range(52, 56)), mask(range(28, 32)))
    A('s_or_b64 s[38:39], s[38:39], s[30:31]')
    A('s_cmp_lg_u32 s8, 0')
    sel64(30, mask(range(28, 56)), mask(range(0, 28)))
    A('s_andn2_b64 s[30:31], s[30:31], s[38:39]')
    A('s_mul_i32 s15, s9, 7')
    A('s_add_u32 s15, s15, 1')
    A('s_lshr_b32 s36, s15, 1')
    A('s_lshl_b64 s[28:29], 7, s36')
    A('s_andn2_b64 s[30:31], s[30:31], s[28:29]')
    m64(64, mask([x for x in range(56) if x % 7 in (1, 2, 5, 6)]))
    A('s_and_b64 s[28:29], s[30:31], s[64:65]')
    A('s_andn2_b64 s[30:31], s[30:31], s[64:65]')
    NE = 15
    def nxt(r=28):
        A(f's_ff1_i32_b64 s61, s[{r}:{r+1}]')
        A(f's_bitset0_b64 s[{r}:{r+1}], s61')
    def seth(): A(f's_mul_i32 s41, s61, {hstep[0]}')
    def setw(): A('s_lshl_b32 s42, s61, 17')
    A(f's_mul_i32 s15, s10, {8*TT}')
    A(f's_add_u32 s15, s15, {GS_OFF if gs else G_OFF}')
    srd(A, 20, 4, 's15', 8 * TT)
    def issue_w2(lds, full):
        A(f's_add_u32 m0, {lds}, s44')
        A('s_nop 0')
        A(f'buffer_load_dwordx4 v10, s[24:27], s42 offen lds')
        A(f'buffer_load_dwordx4 v11, s[24:27], s42 offen offset:1024 lds')
        if full:
            A('s_add_u32 m0, m0, 8192')
            A('s_nop 0')
            A(f'buffer_load_dwordx4 v12, s[32:35], s42 offen lds')
            A(f'buffer_load_dwordx4 v13, s[32:35], s42 offen offset:1024 lds')
        A(f's_add_u32 s42, s42, {64*2048}')
    def slotadv():
        A(f's_add_u32 s40, s40, {SLOT}')
        A(f's_cmp_eq_u32 s40, {NS*SLOT}')
        A('s_cselect_b32 s40, 0, s40')
    def issue2(full, r=None):
        if r is not None: nxt(r); seth(); setw()
        issue_h('s40'); issue_w2('s40', full)
        slotadv()
    A('s_lshl_b32 s42, s36, 17')
    for k in (2, 3, 0): issue_w2(k * SLOT, True)
    A('s_lshl_b32 s15, s10, 11')
    A(f's_add_u32 s15, s15, {FL2}')
    A('s_lshl_b32 s61, s8, 3')
    A('v_min_u32 v17, 7, v1')
    A('v_add_u32 v17, s61, v17')
    A('v_lshlrev_b32 v17, 7, v17')
    A('s_barrier')
    nxt(); setw(); seth()
    issue_w2(SLOT, True)
    lst(1)
    A('s_barrier')
    lst(2)
    only0(f'{name}_noa', ['buffer_store_dword v20, v21, s[52:55], s14 offen sc1'])
    A('s_waitcnt vmcnt(4)')
    A('s_barrier')
    if opt.get('nb12', 0):
        spin(A, f'{name}_fl2', 52, 15, 36, 17, 47, opt.get('pdepth', 1), opt.get('pgap', 1))
        lst(3)
        issue_h(SLOT)
        A(f's_mov_b32 s40, {2*SLOT}')
        A('s_waitcnt vmcnt(0)')
        lst(4)
        A('s_barrier')
        issue2(True, 28); issue2(True, 28)
    else:
        A('s_barrier')
        A('buffer_load_dword v38, v17, s[52:55], s15 offen sc1')
        A('s_barrier')
        A('s_waitcnt vmcnt(0)')
        A('v_cmp_ne_u32 vcc, 1, v38')
        A(f's_cbranch_vccz {name}_fl2_go')
        spin(A, f'{name}_fl2', 52, 15, 36, 17, 47, opt.get('pdepth', 1), opt.get('pgap', 1))
        lst(3)
        issue_h(SLOT)
        A(f's_mov_b32 s40, {2*SLOT}')
        issue2(True, 28); issue2(True, 28)
        A('s_waitcnt vmcnt(16)')
        lst(4)
        A('s_barrier')
    def loop(tag, n, r):
        A(f's_mov_b32 s18, {n}')
        A.label(f'{name}_{tag}')
        issue2(True, r)
        A('s_sub_u32 s18, s18, 1')
        A('s_cmp_lg_u32 s18, 0')
        A('s_waitcnt vmcnt(16)')
        A('s_barrier')
        A(f's_cbranch_scc1 {name}_{tag}')
    L0 = opt.get('l0', 0)
    loop('l2a', 2 + L0, 28)
    A('s_cmp_lg_u32 s12, 0')
    A(f's_cbranch_scc1 {name}_nob')
    A(f's_add_u32 s14, s14, {FL4 - FL2}')
    A('buffer_store_dword v20, v21, s[52:55], s14 offen sc1')
    A.label(f'{name}_nob')
    loop('l2b', NE - 9 - L0, 28)
    A(f's_add_u32 s15, s15, {FL4 - FL2}')
    A('v_and_b32 v17, 15, v1')
    A('v_lshlrev_b32 v17, 7, v17')
    A('buffer_load_dword v36, v17, s[52:55], s15 offen sc1')
    issue2(True, 28)
    A('s_waitcnt vmcnt(16)')
    A('s_barrier')
    A('s_waitcnt vmcnt(8)')
    A('v_cmp_ne_u32 vcc, 1, v36')
    A(f's_cbranch_vccz {name}_fl4_go')
    spin(A, f'{name}_fl4', 52, 15, 36, 17, 47, 1, 1)
    loop('l2c', N1 - NE, 30)
    cnt = lambda s: 0 if s >= NT else (8 if s < N1 else 6)
    for j in range(N1 - NS + 1, NT - 1):
        s = j + NS - 1
        if s < NT: issue2(False, 38)
        A(f's_waitcnt vmcnt({sum(cnt(x) for x in range(j + 2, j + NS))})')
        A('s_barrier')
    if opt.get('stamp') == 1:
        lst(5); lst(6, True); lst(8)
        A('s_cmp_lg_u32 s12, 0')
        A(f's_cbranch_scc1 {name}_end')
        lst.dump(9, 1, 60)

def gen_m(A, name='m_kernel', opt=None):
    opt = opt or {}
    khead(A, name)
    st = Stamper(A, opt.get('stamp'), 1)
    st(0); st(7, True)
    A('s_cmp_ge_u32 s2, 256')
    A(f's_cbranch_scc1 {name}_end')
    A('s_load_dwordx2 s[4:5], s[0:1], %d' % KA['ws'])
    A('s_load_dwordx2 s[6:7], s[0:1], %d' % KA['x'])
    A('v_lshrrev_b32 v2, 6, v0')
    A('v_and_b32 v1, 63, v0')
    A('v_readfirstlane_b32 s12, v2')
    A('s_cmp_ge_u32 s12, 4')
    A(f's_cbranch_scc1 {name}_loader')
    if opt.get('prio'): A(f's_setprio {opt["prio"]}')
    later = fb_compute(A, name, st, opt)
    late = g1_compute(A, name, st, opt, later)
    g2_compute(A, name, st, opt, late)
    A('s_waitcnt vmcnt(0)') if opt.get('stamp') else None
    st(5); st(6, True)
    st.dump(13, 0, 244)
    A('s_endpgm')
    A.label(f'{name}_loader')
    if opt.get('lprio'): A(f's_setprio {opt["lprio"]}')
    loaders(A, name, opt)
    A.label(f'{name}_end')
    A('s_endpgm')
    return dict(name=name, grid=256, block=512, lds=M_LDS, vgpr=256)
```
